```python
import torch

def _softmax(x, axis=-1):
    return torch.softmax(x, dim=axis)
def _gelu(x):
    return torch.nn.functional.gelu(x, approximate="tanh")
def _silu(x):
    return torch.nn.functional.silu(x)
def _sigmoid(x):
    return torch.sigmoid(x)
def _layernorm(x, axis=-1, eps=1e-5):
    m = x.mean(dim=axis, keepdim=True)
    v = x.var(dim=axis, keepdim=True, unbiased=False)
    return (x - m) / torch.sqrt(v + eps)
def _scatter_add(tgt, idx, src, axis=0):
    return tgt.clone().index_add_(axis, idx, src)
def _segment_sum(src, seg, n):
    out = torch.zeros((n,) + src.shape[1:], dtype=src.dtype)
    return out.index_add_(0, seg, src)
def _pad(x, pw):
    flat = tuple(v for pair in reversed(pw) for v in pair)
    return torch.nn.functional.pad(x, flat)

kernel_name = 'parallel_sum__spectral_fnet__swiglu_ffn__prompt'

def setup_inputs():

    _w = (lambda a: (lambda t: t.to(torch.bfloat16) if t.is_floating_point() else t)(torch.as_tensor(a)))
    def _A_setup():
        B, S, D = 1, 2048, 640
        ns = torch.arange(S)[:, None] * torch.arange(S)[None, :]
        nd = torch.arange(D)[:, None] * torch.arange(D)[None, :]
        Ws_re = torch.cos(-2.0 * torch.pi * ns / S).to(float)
        Ws_im = torch.sin(-2.0 * torch.pi * ns / S).to(float)
        Wd_re = torch.cos(-2.0 * torch.pi * nd / D).to(float)
        Wd_im = torch.sin(-2.0 * torch.pi * nd / D).to(float)
        return {
            "x": _w((lambda *s: torch.randn(*s, dtype=torch.bfloat16) * 0.05)(B, S, D)),
            "dft_seq_re": _w(Ws_re),
            "dft_seq_im": _w(Ws_im),
            "dft_hid_re": _w(Wd_re),
            "dft_hid_im": _w(Wd_im),
        }
    _A_in = _A_setup()

    def _B_setup():
        B, S, D, F = 1, 2048, 640, 1536
        return {
            "x": _w((lambda *s: torch.randn(*s, dtype=torch.bfloat16) * 0.05)(B, S, D)),
            "w_gate": _w((lambda *s: torch.randn(*s, dtype=torch.bfloat16) * 0.2)(D, F)),
            "w_up": _w((lambda *s: torch.randn(*s, dtype=torch.bfloat16) * 0.2)(D, F)),
            "w_down": _w((lambda *s: torch.randn(*s, dtype=torch.bfloat16) * 0.2)(F, D)),
        }
    _B_in = _B_setup()

    return {
        "A_x": _A_in["x"],
        "A_dft_seq_re": _A_in["dft_seq_re"],
        "A_dft_seq_im": _A_in["dft_seq_im"],
        "A_dft_hid_re": _A_in["dft_hid_re"],
        "A_dft_hid_im": _A_in["dft_hid_im"],
        "B_x": _B_in["x"],
        "B_w_gate": _B_in["w_gate"],
        "B_w_up": _B_in["w_up"],
        "B_w_down": _B_in["w_down"],
    }

def reference(A_x, A_dft_seq_re, A_dft_seq_im, A_dft_hid_re, A_dft_hid_im, B_x, B_w_gate, B_w_up, B_w_down):
    def _A_ref(x, dft_seq_re, dft_seq_im, dft_hid_re, dft_hid_im):
        a = torch.einsum("bsd,ed->bse", x, dft_hid_re)
        b = torch.einsum("bsd,ed->bse", x, dft_hid_im)
        y = torch.einsum("ts,bse->bte", dft_seq_re, a) - torch.einsum("ts,bse->bte", dft_seq_im, b)
        return y

    def _B_ref(x, w_gate, w_up, w_down):
        g = _silu(x @ w_gate)
        u = x @ w_up
        return (g * u) @ w_down

    x = A_x
    xn = _layernorm(x, axis=-1)
    return x + _A_ref(xn, A_dft_seq_re, A_dft_seq_im, A_dft_hid_re, A_dft_hid_im) + _B_ref(xn, B_w_gate, B_w_up, B_w_down)
```

```python
HEADER = open('parallel_sum__spectral_fnet__swiglu_ffn__prompt.s.ref').read().split('; Override launch geometry')[0]

class Asm:
    def __init__(self):
        self.lines = []
        self.kernels = []
        self._lbl = 0
    def __call__(self, s):
        for l in s.split('\n'):
            l = l.strip()
            if l:
                self.lines.append(('' if l.endswith(':') else '    ') + l)
    def label(self, base='L'):
        self._lbl += 1
        return f'{base}_{self._lbl}'
    def begin(self, name):
        self.lines.append(f'.globl {name}')
        self.lines.append('.p2align 8')
        self.lines.append(f'.type {name},@function')
        self.lines.append(f'{name}:')
        self.cur = name
    def end(self, vgpr, sgpr=96, accum=None, wg_y=False):
        self('s_endpgm')
        if accum is None:
            accum = (vgpr + 3)//4*4
        self.kernels.append((self.cur, vgpr, sgpr, accum, wg_y))
    def text(self, launches):
        out = [HEADER.rstrip()]
        for (k, g, b, lds) in launches:
            out.append(f'; @launch kernel={k} grid=({g[0]},{g[1]},{g[2]}) block=({b[0]},{b[1]},{b[2]}) lds={lds}')
        out.append('.amdgcn_target "amdgcn-amd-amdhsa--gfx950"')
        out.append('.text')
        out += self.lines
        out.append('.section .rodata,"a"')
        for (k, vgpr, sgpr, accum, wg_y) in self.kernels:
            out.append('.p2align 6')
            out.append(f'.amdhsa_kernel {k}')
            out.append(f'  .amdhsa_next_free_vgpr {vgpr}')
            out.append(f'  .amdhsa_next_free_sgpr {sgpr}')
            out.append(f'  .amdhsa_accum_offset {accum}')
            out.append('  .amdhsa_group_segment_fixed_size 0')
            out.append('  .amdhsa_kernarg_size 96')
            out.append('  .amdhsa_user_sgpr_count 2')
            out.append('  .amdhsa_user_sgpr_kernarg_segment_ptr 1')
            out.append('  .amdhsa_system_sgpr_workgroup_id_x 1')
            if wg_y:
                out.append('  .amdhsa_system_sgpr_workgroup_id_y 1')
            out.append('.end_amdhsa_kernel')
        return '\n'.join(out) + '\n'

ARG = dict(x=0, fr=8, fi=16, cr=24, ci=32, bx=40, wg=48, wu=56, wd=64, out=72, dbg=80, ws=88)

def srd(a, d, b, nbytes, off=0):
    if off:
        a(f's_add_u32 s{d}, s{b}, {off}')
        a(f's_addc_u32 s{d+1}, s{b+1}, 0')
    else:
        a(f's_mov_b32 s{d}, s{b}')
        a(f's_mov_b32 s{d+1}, s{b+1}')
    a(f's_mov_b32 s{d+2}, {nbytes}')
    a(f's_mov_b32 s{d+3}, 0x00020000')
```

```python
import sys
from asmlib import *
opts = set(sys.argv[2:])
S, D, F = 2048, 640, 1536
WS_XN = 0
WS_WGT = 4<<20
WS_WUT = 8<<20
WS_WDT = 12<<20
WS_AT = 16<<20
WS_BT = 20<<20
WS_H = 24<<20
a = Asm()

def wave_sum(a, v, t):
    for off in (0x041F, 0x081F, 0x101F, 0x201F, 0x401F):
        a(f'ds_swizzle_b32 v{t}, v{v} offset:{off}')
        a('s_waitcnt lgkmcnt(0)')
        a(f'v_add_f32 v{v}, v{v}, v{t}')
    a('s_nop 1')
    a(f'v_readlane_b32 s30, v{v}, 0')
    a(f'v_readlane_b32 s31, v{v}, 32')
    a('s_nop 3')
    a(f'v_mov_b32 v{v}, s30')
    a(f'v_add_f32 v{v}, s31, v{v}')

def rbf(a, v):
    a(f'v_cvt_pk_bf16_f32 v{v}, v{v}, v{v}')
    a(f'v_lshlrev_b32 v{v}, 16, v{v}')

a.begin('ln_kernel')
a(f's_cmp_ge_u32 s2, {S}')
a('s_cbranch_scc1 ln_done')
a(f's_load_dwordx2 s[4:5], s[0:1], {ARG["x"]}')
a(f's_load_dwordx2 s[6:7], s[0:1], {ARG["ws"]}')
a('s_waitcnt lgkmcnt(0)')
srd(a, 8, 4, S*D*2)
srd(a, 12, 6, S*D*2, WS_XN)
a(f's_mul_i32 s16, s2, {D*2}')
a('v_lshlrev_b32 v1, 2, v0')
a('v_add_u32 v1, s16, v1')
for i in range(5):
    a(f'buffer_load_dword v{2+i}, v1, s[8:11], 0 offen offset:{256*i}')
a('s_waitcnt vmcnt(0)')
for i in range(5):
    a(f'v_lshlrev_b32 v{10+2*i}, 16, v{2+i}')
    a(f'v_and_b32 v{11+2*i}, 0xffff0000, v{2+i}')
a('v_mov_b32 v20, 0')
for i in range(10):
    a(f'v_add_f32 v20, v20, v{10+i}')
wave_sum(a, 20, 21)
a(f'v_mul_f32 v20, {1.0/D!r}, v20')
a('v_mov_b32 v22, 0')
for i in range(10):
    a(f'v_sub_f32 v21, v{10+i}, v20')
    a(f'v_fmac_f32 v22, v21, v21')
wave_sum(a, 22, 21)
a(f'v_mul_f32 v22, {1.0/D!r}, v22')
rbf(a, 20); rbf(a, 22)
a('v_add_f32 v22, 0x3727c5ac, v22')
rbf(a, 22)
a('v_sqrt_f32 v22, v22')
a('s_nop 0')
rbf(a, 22)
a('v_rcp_f32 v22, v22')
a('s_nop 0')
for i in range(10):
    a(f'v_sub_f32 v{10+i}, v{10+i}, v20')
    rbf(a, 10+i)
    a(f'v_mul_f32 v{10+i}, v{10+i}, v22')
for i in range(5):
    a(f'v_cvt_pk_bf16_f32 v{2+i}, v{10+2*i}, v{11+2*i}')
    a(f'buffer_store_dword v{2+i}, v1, s[12:15], 0 offen offset:{256*i}')
a('ln_done:')
a.end(32)

def transpose(name, arg, R, C, wsoff):
    a.begin(name)
    n = R*C//2
    nb = n//256
    a(f's_cmp_ge_u32 s2, {nb}')
    a(f's_cbranch_scc1 {name}_done')
    a(f's_load_dwordx2 s[4:5], s[0:1], {ARG[arg]}')
    a(f's_load_dwordx2 s[6:7], s[0:1], {ARG["ws"]}')
    a('s_waitcnt lgkmcnt(0)')
    srd(a, 8, 4, R*C*2)
    srd(a, 12, 6, R*C*2, wsoff)
    a('s_lshl_b32 s3, s2, 8')
    a('v_add_u32 v1, s3, v0')
    h = R//2
    M = -(-(1<<32)//h)
    a(f's_mov_b32 s16, {M}')
    a('v_mul_hi_u32 v2, v1, s16')
    a(f's_mov_b32 s17, {h}')
    a('v_mul_lo_u32 v3, v2, s17')
    a('v_sub_u32 v3, v1, v3')
    a(f's_mov_b32 s18, {C*4}')
    a('v_mul_lo_u32 v3, v3, s18')
    a('v_lshl_add_u32 v3, v2, 1, v3')
    a(f'v_add_u32 v4, {C*2}, v3')
    a('buffer_load_ushort v5, v3, s[8:11], 0 offen')
    a('buffer_load_ushort v6, v4, s[8:11], 0 offen')
    a('v_lshlrev_b32 v1, 2, v1')
    a('s_waitcnt vmcnt(0)')
    a('v_lshl_or_b32 v5, v6, 16, v5')
    a('buffer_store_dword v5, v1, s[12:15], 0 offen')
    a(f'{name}_done:')
    a.end(16)
    return nb
nb_g = transpose('tg_kernel', 'wg', D, F, WS_WGT)
nb_u = transpose('tu_kernel', 'wu', D, F, WS_WUT)
nb_d = transpose('td_kernel', 'wd', F, D, WS_WDT)

def load_base(a, sreg, spec):
    kind, val = spec
    if kind == 'in':
        a(f's_load_dwordx2 s[{sreg}:{sreg+1}], s[0:1], {ARG[val]}')
        a('s_waitcnt lgkmcnt(0)')
    else:
        a(f's_load_dwordx2 s[{sreg}:{sreg+1}], s[0:1], {ARG["ws"]}')
        a('s_waitcnt lgkmcnt(0)')
        a(f's_add_u32 s{sreg}, s{sreg}, {val}')
        a(f's_addc_u32 s{sreg+1}, s{sreg+1}, 0')

def gemm(name, MT, NT, segs, epilogue):
    a.begin(name)
    a(f's_cmp_ge_u32 s2, {MT*NT}')
    a(f's_cbranch_scc1 {name}_done')
    M = -(-(1<<32)//NT)
    a(f's_mul_hi_u32 s40, s2, {M}')
    a(f's_mul_i32 s41, s40, {NT}')
    a('s_sub_u32 s41, s2, s41')
    a('s_lshl_b32 s40, s40, 5')
    a('s_lshl_b32 s41, s41, 5')
    a('v_and_b32 v1, 31, v0')
    a('v_lshrrev_b32 v2, 5, v0')
    for i in range(32):
        a(f'v_mov_b32 v{32+i}, 0')
    for (acc, As, Ab, lda, Bs, Bb, ldb, K) in segs:
        load_base(a, 4, As); load_base(a, 6, Bs)
        srd(a, 8, 4, Ab); srd(a, 12, 6, Bb)
        a('v_add_u32 v3, s40, v1')
        a(f's_mov_b32 s16, {lda*2}')
        a('v_mul_lo_u32 v3, v3, s16')
        a('v_lshl_add_u32 v3, v2, 4, v3')
        a('v_add_u32 v4, s41, v1')
        a(f's_mov_b32 s16, {ldb*2}')
        a('v_mul_lo_u32 v4, v4, s16')
        a('v_lshl_add_u32 v4, v2, 4, v4')
        a('s_mov_b32 s17, 0')
        L = a.label('K')
        a(f'{L}:')
        for u in range(4):
            a(f'buffer_load_dwordx4 v[{8+4*u}:{11+4*u}], v3, s[8:11], s17 offen offset:{32*u}')
            a(f'buffer_load_dwordx4 v[{64+4*u}:{67+4*u}], v4, s[12:15], s17 offen offset:{32*u}')
        for u in range(4):
            a(f's_waitcnt vmcnt({6-2*u})')
            a(f'v_mfma_f32_32x32x16_bf16 v[{32+16*acc}:{47+16*acc}], v[{8+4*u}:{11+4*u}], v[{64+4*u}:{67+4*u}], v[{32+16*acc}:{47+16*acc}]')
        a('s_add_u32 s17, s17, 128')
        a(f's_cmp_lt_u32 s17, {K*2}')
        a(f's_cbranch_scc1 {L}')
    a('s_nop 15')
    epilogue()
    a(f'{name}_done:')
    a.end(96)

def out_addr(a, ld):
    a('v_lshlrev_b32 v5, 2, v2')
    a('v_add_u32 v5, s40, v5')
    a(f's_mov_b32 s16, {ld*2}')
    a('v_mul_lo_u32 v5, v5, s16')
    a('v_add_u32 v6, s41, v1')
    a('v_lshl_add_u32 v5, v6, 1, v5')

def store_tile(a, base, ld, srdn):
    for i in range(16):
        row = 8*(i//4) + (i % 4)
        a(f'v_cvt_pk_bf16_f32 v7, v{base+i}, v{base+i}')
        a(f's_mov_b32 s17, {row*ld*2}')
        a(f'buffer_store_short v7, v5, s[{srdn}:{srdn+3}], s17 offen')
        a('s_nop 1')

def epi_ab():
    load_base(a, 4, ('ws', WS_AT)); load_base(a, 6, ('ws', WS_BT))
    srd(a, 8, 4, D*S*2); srd(a, 12, 6, D*S*2)
    out_addr(a, S)
    if 'zero0' in opts:
        a('v_add_u32 v6, s40, v2')
        a('v_cmp_eq_u32 vcc, 0, v6')
        a('s_nop 1')
        a('v_cndmask_b32 v32, v32, 0, vcc')
    for i in range(16):
        a(f'v_sub_f32 v{48+i}, 0, v{48+i}')
    store_tile(a, 32, S, 8); store_tile(a, 48, S, 12)
gemm('ab_kernel', D//32, S//32, [(0, ('in','cr'), D*D*2, D, ('ws',WS_XN), S*D*2, D, D), (1, ('in','ci'), D*D*2, D, ('ws',WS_XN), S*D*2, D, D)], epi_ab)

def epi_h():
    load_base(a, 4, ('ws', WS_H))
    srd(a, 8, 4, S*F*2)
    out_addr(a, F)
    for i in range(16):
        g = 32+i
        a(f'v_mul_f32 v7, {-1.4426950408889634!r}, v{g}')
        a('v_exp_f32 v7, v7')
        a('s_nop 0')
        a('v_add_f32 v7, 1.0, v7')
        a('v_rcp_f32 v7, v7')
        a('s_nop 0')
        a(f'v_mul_f32 v{g}, v{g}, v7')
        a(f'v_mul_f32 v{g}, v{g}, v{48+i}')
    store_tile(a, 32, F, 8)
gemm('h_kernel', S//32, F//32, [(0, ('ws',WS_XN), S*D*2, D, ('ws',WS_WGT), F*D*2, D, D), (1, ('ws',WS_XN), S*D*2, D, ('ws',WS_WUT), F*D*2, D, D)], epi_h)

def epi_out():
    load_base(a, 4, ('in', 'x')); load_base(a, 6, ('in', 'out'))
    srd(a, 8, 4, S*D*2); srd(a, 12, 6, S*D*2)
    out_addr(a, D)
    for i in range(16):
        row = 8*(i//4) + (i % 4)
        a(f's_mov_b32 s17, {row*D*2}')
        a(f'buffer_load_ushort v{48+i}, v5, s[8:11], s17 offen')
    a('s_waitcnt vmcnt(0)')
    scale = [o for o in opts if o.startswith('scale=')]
    for i in range(16):
        a(f'v_lshlrev_b32 v{48+i}, 16, v{48+i}')
        a(f'v_add_f32 v{32+i}, v{32+i}, v{48+i}')
        if scale:
            a(f'v_mul_f32 v{32+i}, {float(scale[0][6:])!r}, v{32+i}')
    store_tile(a, 32, D, 12)
gemm('out_kernel', S//32, D//32, [(0, ('in','fr'), S*S*2, S, ('ws',WS_AT), D*S*2, S, S), (0, ('in','fi'), S*S*2, S, ('ws',WS_BT), D*S*2, S, S), (0, ('ws',WS_H), S*F*2, F, ('ws',WS_WDT), D*F*2, F, F)], epi_out)

a.begin('nop_kernel')
a.end(8)

L = [('ln_kernel', (S,1,1), (64,1,1), 0), ('tg_kernel', (nb_g,1,1), (256,1,1), 0), ('tu_kernel', (nb_u,1,1), (256,1,1), 0), ('td_kernel', (nb_d,1,1), (256,1,1), 0),
     ('ab_kernel', (D//32*S//32,1,1), (64,1,1), 0), ('h_kernel', (S//32*F//32,1,1), (64,1,1), 0), ('out_kernel', (S//32*D//32,1,1), (64,1,1), 0)]
for o in opts:
    if o.startswith('nops='):
        L += [('nop_kernel', (256,1,1), (256,1,1), 0)] * int(o[5:])
open(sys.argv[1], 'w').write(a.text(L))
```

```python
import sys, math
from asmlib import *
opts = dict(o.split('=') for o in sys.argv[2:])
def opt(k, d): return type(d)(opts.get(k, d))
STAMPS = opt('stamps', 0)
P2MAP = opt('p2map', 0)
P2ROT = opt('p2rot', 1)
SPINMAX = opt('spinmax', 1 << 16)
CODEPF = opt('codepf', 1)
S, D, F = 2048, 640, 1536
KNAME = 'parallel_sum__spectral_fnet__swiglu_ffn__prompt_kernel'
STG = 49152
WS_H = 0
WS_WDT = 0x600000
WS_V = 0x800000
WS_XP = 0xB00000
WS_WP = 0xB10000
WS_FLAG = 0xB20000
WS_TS = 0xC00000
WS_SIZE = 0x1000000
L_AUX = 3*STG
L_R = L_AUX
L_M = L_AUX + 512
L_CS = L_AUX + 1024
L_CNT = L_AUX + 2048
L_WD = L_AUX + 4096
L_Z = 0
ZROW = 80
L_P2W = 0
P2W = 30720
L_SPEC = 4*P2W
PQ, PN, PE = 272, 1088, 4416
LDS_BYTES = 163840

a = Asm()
stamp_n = [0]
def stamp(i):
    if STAMPS:
        a(f's_memrealtime s[{80+2*i}:{81+2*i}]')
def rbf(v):
    a(f'v_cvt_pk_bf16_f32 v{v}, v{v}, v{v}')
    a(f'v_lshlrev_b32 v{v}, 16, v{v}')
def srd_from(d, b, nbytes):
    srd(a, d, b, nbytes)
def spin_begin(name):
    a(f's_mov_b32 s79, 0')
    a(f'{name}:')
def spin_end(name):
    a(f's_cbranch_scc1 {name}_ok')
    a('s_add_u32 s79, s79, 1')
    a(f's_cmp_ge_u32 s79, {SPINMAX}')
    a(f's_cbranch_scc1 {name}_ok')
    a('s_sleep 2')
    a(f's_branch {name}')
    a(f'{name}_ok:')

def lds_arrive(off, v):
    a(f'v_mov_b32 v{v}, {L_CNT}'); a(f'v_mov_b32 v{v+1}, 1')
    a('s_waitcnt lgkmcnt(0)')
    a('s_mov_b64 exec, 1')
    a(f'ds_add_u32 v{v}, v{v+1} offset:{off}')
    a('s_mov_b64 exec, -1')
def lds_wait(name, off, v):
    a(f'v_mov_b32 v{v}, {L_CNT}')
    a(f'{name}:')
    a(f'ds_read_b32 v{v+1}, v{v} offset:{off}')
    a('s_waitcnt lgkmcnt(0)')
    a(f'v_readfirstlane_b32 s78, v{v+1}')
    a('s_cmp_lt_u32 s78, 4')
    a(f's_cbranch_scc0 {name}_ok')
    a('s_sleep 1')
    a(f's_branch {name}')
    a(f'{name}_ok:')
a.begin(KNAME)
a('s_cmp_ge_u32 s2, 256')
a('s_cbranch_scc1 L_done')
stamp(0)
a('s_load_dwordx2 s[64:65], s[0:1], 0')
a('s_load_dwordx4 s[60:63], s[0:1], 24')
a('s_load_dwordx8 s[48:55], s[0:1], 48')
a('s_load_dwordx4 s[56:59], s[0:1], 80')
a('v_lshrrev_b32 v1, 6, v0')
a('v_and_b32 v0, 63, v0')
a('v_readfirstlane_b32 s3, v1')
a('s_and_b32 s40, s2, 7'); a('s_lshr_b32 s41, s2, 3')
a('s_and_b32 s31, s40, 1'); a('s_lshr_b32 s30, s40, 1')
a('s_and_b32 s32, s41, 7'); a('s_lshr_b32 s33, s41, 3')
a('s_lshl_b32 s28, s31, 3'); a('s_add_u32 s28, s28, s32')
a('s_mul_i32 s29, s30, 3'); a('s_add_u32 s29, s29, s33')
a('s_add_u32 s42, s30, 12')
a('s_cmp_eq_u32 s33, 3')
a('s_cselect_b32 s29, s42, s29')
a('s_cselect_b32 s35, 1, 0')
a('s_mul_i32 s34, s30, 5'); a('s_add_u32 s34, s34, 1'); a('s_lshr_b32 s34, s34, 1')
a('s_mul_i32 s42, s31, 5'); a('s_add_u32 s34, s34, s42')
a('s_cmp_ge_u32 s34, 10'); a('s_cselect_b32 s42, 10, 0'); a('s_sub_u32 s34, s34, s42')
if P2MAP == 0:
    a('s_lshl_b32 s42, s30, 3'); a('s_add_u32 s42, s42, s32')
    a('s_lshl_b32 s38, s31, 2'); a('s_add_u32 s38, s38, s33')
    a('s_mul_i32 s39, s32, 3'); a('s_lshr_b32 s39, s39, 1'); a('s_mul_i32 s66, s33, 3'); a('s_add_u32 s39, s39, s66')
    a('s_cmp_ge_u32 s39, 12'); a('s_cselect_b32 s66, 12, 0'); a('s_sub_u32 s39, s39, s66')
else:
    a('s_lshl_b32 s42, s40, 2'); a('s_add_u32 s42, s42, s33')
    a('s_mov_b32 s38, s32')
    a('s_mul_i32 s39, s32, 3'); a('s_lshr_b32 s39, s39, 1'); a('s_mul_i32 s66, s33, 3'); a('s_add_u32 s39, s39, s66')
    a('s_cmp_ge_u32 s39, 12'); a('s_cselect_b32 s66, 12, 0'); a('s_sub_u32 s39, s39, s66')
if not P2ROT: a('s_mov_b32 s39, 0')
a('s_lshr_b32 s36, s42, 1'); a('s_and_b32 s37, s42, 1')
a('s_waitcnt lgkmcnt(0)')
srd_from(4, 64, S*D*2)
srd_from(12, 58, WS_SIZE)
srd_from(16, 54, S*D*2)
srd_from(20, 52, F*D*2)
srd_from(24, 56, 256)
a('s_cmp_lt_u32 s3, 4')
a('s_cbranch_scc1 L_compute')
a('s_sub_u32 s44, s3, 4')
a('s_cmp_eq_u32 s44, 3')
a('s_cbranch_scc1 L_aux')

def dma_loop(name, npieces, piece_fn, step_fn):
    a('s_mov_b32 s46, 0'); a('s_mov_b32 s47, 0')
    a(f'{name}_l:')
    for t in range(npieces): piece_fn(t)
    step_fn()
    a(f's_add_u32 s46, s46, {STG}'); a(f's_cmp_eq_u32 s46, {3*STG}'); a('s_cselect_b32 s46, 0, s46')
    a('s_cmp_eq_u32 s47, 0')
    a(f's_cbranch_scc1 {name}_skip')
    a(f's_waitcnt vmcnt({npieces})')
    a('s_barrier')
    a(f'{name}_skip:')
    a('s_add_u32 s47, s47, 1'); a('s_cmp_lt_u32 s47, 10'); a(f's_cbranch_scc1 {name}_l')
    a('s_branch L_p2pre')

a('s_cmp_eq_u32 s44, 2')
a('s_cbranch_scc1 L_ldx')
a('s_cmp_eq_u32 s35, 1')
a('s_cbranch_scc1 L_ldc')
a('s_cmp_eq_u32 s44, 1')
a('s_cselect_b32 s8, s50, s48'); a('s_cselect_b32 s9, s51, s49'); a(f's_mov_b32 s10, {D*F*2}'); a('s_mov_b32 s11, 0x00020000')
a('v_lshrrev_b32 v1, 4, v0')
a('v_and_b32 v2, 15, v0')
a('v_lshlrev_b32 v3, 1, v1')
a('v_xor_b32 v2, v2, v3')
a('v_lshlrev_b32 v2, 4, v2')
a(f'v_mul_u32_u24 v3, {F*2}, v1')
a('v_add_u32 v2, v2, v3')
a('s_lshl_b32 s66, s29, 8')
a('v_add_u32 v2, s66, v2')
a('s_and_b32 s66, s32, 1'); a('s_lshl_b32 s66, s66, 7')
a('v_xor_b32 v4, s66, v2')
a('v_xor_b32 v5, 128, v4')
a('s_lshl_b32 s66, s32, 1')
a('s_lshl_b32 s67, s44, 14')
a(f's_mul_i32 s45, s34, {64*F*2}')
def wp(t):
    a(f's_add_u32 s68, s66, {t}'); a('s_and_b32 s68, s68, 15')
    a('s_lshl_b32 s69, s68, 10'); a('s_add_u32 s69, s69, s67'); a('s_add_u32 m0, s69, s46')
    a(f's_mul_i32 s68, s68, {4*F*2}'); a('s_add_u32 s68, s68, s45')
    a(f'buffer_load_dwordx4 v{4 + ((t>>1)&1)}, s[8:11], s68 offen lds')
def wstep():
    a(f's_add_u32 s45, s45, {64*F*2}'); a(f's_cmp_eq_u32 s45, {640*F*2}'); a('s_cselect_b32 s45, 0, s45')
dma_loop('L_ldw', 16, wp, wstep)
a('L_ldc:')
a('s_cmp_eq_u32 s44, 1')
a('s_cselect_b32 s8, s62, s60'); a('s_cselect_b32 s9, s63, s61'); a(f's_mov_b32 s10, {D*D*2}'); a('s_mov_b32 s11, 0x00020000')
a('v_lshrrev_b32 v1, 3, v0')
a('v_and_b32 v2, 7, v0')
a('v_lshrrev_b32 v3, 1, v1')
a('v_xor_b32 v2, v2, v3')
a('v_lshlrev_b32 v2, 4, v2')
a('s_mul_i32 s66, s30, 80'); a('s_add_u32 s66, s66, 1')
a('v_add_u32 v1, s66, v1')
a(f'v_mul_u32_u24 v3, {D*2}, v1')
a('v_add_u32 v2, v2, v3')
a('s_and_b32 s66, s32, 1'); a('s_lshl_b32 s66, s66, 6')
a('v_xor_b32 v4, s66, v2')
a('v_xor_b32 v5, 64, v4')
a('s_lshl_b32 s67, s44, 14')
a('s_lshl_b32 s45, s34, 7')
def cp(t):
    a(f's_add_u32 s68, s32, {t}'); a('s_cmp_ge_u32 s68, 10'); a('s_cselect_b32 s69, 10, 0'); a('s_sub_u32 s68, s68, s69')
    a('s_lshl_b32 s69, s68, 10'); a('s_add_u32 s69, s69, s67'); a('s_add_u32 m0, s69, s46')
    a(f's_mul_i32 s68, s68, {8*D*2}'); a('s_add_u32 s68, s68, s45')
    a(f'buffer_load_dwordx4 v{4 + (t&1)}, s[8:11], s68 offen lds')
def xstep():
    a('s_add_u32 s45, s45, 128'); a('s_cmp_eq_u32 s45, 1280'); a('s_cselect_b32 s45, 0, s45')
dma_loop('L_ldcl', 10, cp, xstep)
a('L_ldx:')
a('v_lshrrev_b32 v1, 3, v0')
a('v_and_b32 v2, 7, v0')
a('v_lshrrev_b32 v3, 1, v1')
a('v_xor_b32 v2, v2, v3')
a('v_lshlrev_b32 v2, 4, v2')
a('v_lshrrev_b32 v3, 2, v1'); a('v_and_b32 v6, 3, v1'); a('v_lshl_add_u32 v3, v6, 2, v3')
a('v_lshlrev_b32 v3, 7, v3'); a('v_add_u32 v3, s28, v3')
a(f'v_mul_u32_u24 v3, {D*2}, v3')
a('v_add_u32 v4, v2, v3')
a('v_xor_b32 v5, 64, v4'); a(f'v_add_u32 v5, {256*D*2}, v5')
a('s_lshl_b32 s66, s33, 2')
a('s_lshl_b32 s45, s34, 7')
def xp(t):
    a(f's_add_u32 s68, s66, {t}'); a('s_and_b32 s68, s68, 15')
    a('s_lshl_b32 s69, s68, 10'); a('s_add_u32 s69, s69, 32768'); a('s_add_u32 m0, s69, s46')
    a('s_lshr_b32 s68, s68, 1'); a(f's_mul_i32 s68, s68, {16*D*2}'); a('s_add_u32 s68, s68, s45')
    a(f'buffer_load_dwordx4 v{4 + (t&1)}, s[4:7], s68 offen lds')
dma_loop('L_ldxl', 16, xp, xstep)

P2ACC = 176; P2W_R = 56; P2H = 8
def p2_setup():
    a('v_lshlrev_b32 v1, 4, v0')
    a('s_mul_i32 s70, s38, 48'); a('s_mul_i32 s71, s44, 12'); a('s_add_u32 s70, s70, s71')
    a(f's_mul_i32 s70, s70, 5120'); a(f's_add_u32 s70, s70, {WS_WDT}')
    a('s_mov_b32 s71, s39')
def wdt_soff():
    a('s_mul_i32 s72, s71, 5120'); a('s_add_u32 s72, s72, s70')
    a('s_add_u32 s71, s71, 1'); a('s_cmp_eq_u32 s71, 12'); a('s_cselect_b32 s71, 0, s71')
def wdt_reg(step):
    wdt_soff()
    for ei in range(5):
        r = P2W_R + 20*step + 4*ei
        if ei == 4: a('s_add_u32 s72, s72, 4096')
        a(f'buffer_load_dwordx4 v[{r}:{r+3}], v1, s[12:15], s72 offen offset:{(ei % 4)*1024} sc1')
def wdt_lds(step):
    wdt_soff()
    for ei in range(5):
        a(f's_add_u32 m0, s73, {(step-6)*5120 + ei*1024}')
        if ei: a('s_add_u32 s72, s72, 1024')
        else: a('s_nop 0')
        a(f'buffer_load_dwordx4 v1, s[12:15], s72 offen sc1 lds')

a('L_p2pre:')
p2_setup()
a('s_waitcnt vmcnt(0)')
for st in range(3): wdt_reg(st)
a('s_barrier')
for st in range(3, 6): wdt_reg(st)
a('s_barrier')
a('L_p2join:')
stamp(2)
a('s_cmp_eq_u32 s35, 0')
a('s_cbranch_scc1 L_p2nz')
lds_wait('L_zc', 8, 2)
a('L_p2nz:')
a(f's_mul_i32 s73, s44, {P2W}')
for st in range(6, 12): wdt_lds(st)
for i in range(80): a(f'v_mov_b32 v{P2ACC+i}, 0')
a('s_lshl_b32 s74, s36, 7'); a('s_mul_i32 s75, s44, 12'); a('s_add_u32 s74, s74, s75'); a(f's_add_u32 s74, s74, {WS_FLAG}')
a('v_min_u32 v2, 2, v0'); a('v_lshlrev_b32 v2, 2, v2')
spin_begin('L_pollh')
a('buffer_load_dword v3, v2, s[12:15], s74 offen sc1')
a('s_waitcnt vmcnt(0)')
a('v_cmp_ne_u32 vcc, 2, v3')
a('s_cmp_eq_u64 vcc, 0')
spin_end('L_pollh')
stamp(3)
a('s_lshl_b32 s74, s36, 3'); a('s_lshl_b32 s75, s37, 2'); a('s_add_u32 s74, s74, s75')
a('s_mul_i32 s74, s74, 48'); a('s_mul_i32 s75, s44, 12'); a('s_add_u32 s74, s74, s75'); a('s_lshl_b32 s74, s74, 10')
a('s_mov_b32 s71, s39')
a(f'v_add_u32 v2, s73, v1')
def hload(step):
    a('s_lshl_b32 s72, s71, 10'); a('s_add_u32 s72, s72, s74')
    a('s_add_u32 s71, s71, 1'); a('s_cmp_eq_u32 s71, 12'); a('s_cselect_b32 s71, 0, s71')
    for ni in range(4):
        r = P2H + 16*(step % 3) + 4*ni
        if ni: a(f's_add_u32 s72, s72, {48*1024}')
        a(f'buffer_load_dwordx4 v[{r}:{r+3}], v1, s[12:15], s72 offen sc1')
for st in range(3): hload(st)
for st in range(12):
    rem = min(3, 12 - st) - 1
    a(f's_waitcnt vmcnt({4*rem})' + (' lgkmcnt(0)' if st >= 6 else ''))
    w0 = P2W_R + 20*(st % 6)
    for ei in range(5):
        for ni in (range(4) if ei % 2 == 0 else range(3, -1, -1)):
            t = P2ACC + 16*ei + 4*ni
            h = P2H + 16*(st % 3) + 4*ni
            a(f'v_mfma_f32_16x16x32_bf16 v[{t}:{t+3}], v[{w0+4*ei}:{w0+4*ei+3}], v[{h}:{h+3}], v[{t}:{t+3}]')
    if st + 3 < 12: hload(st + 3)
    if st < 6:
        for ei in range(5):
            a(f'ds_read_b128 v[{w0+4*ei}:{w0+4*ei+3}], v2 offset:{st*5120 + ei*1024}')
stamp(4)
a('v_and_b32 v3, 15, v0'); a('v_lshrrev_b32 v4, 4, v0')
a(f'v_mul_u32_u24 v4, {PQ}, v4'); a('v_lshl_add_u32 v3, v3, 4, v4'); a('v_add_u32 v3, s73, v3')
a('s_nop 4')
for ei in range(5):
    for ni in range(4):
        t = P2ACC + 16*ei + 4*ni
        a(f'ds_write_b128 v3, v[{t}:{t+3}] offset:{ei*PE + ni*PN}')
a('s_branch L_final')

a('L_aux:')
a('s_lshl_b32 s66, s28, 7'); a('s_lshl_b32 s67, s29, 2'); a('s_add_u32 s66, s66, s67'); a(f's_add_u32 s43, s66, {WS_FLAG}')
a('v_mov_b32 v1, 0'); a('v_mov_b32 v2, 0')
a('s_mov_b64 exec, 1')
a('buffer_store_dword v1, v2, s[12:15], s43 offen sc1')
a(f'v_mov_b32 v3, {L_CNT}')
a('ds_write_b32 v3, v1'); a('ds_write_b32 v3, v1 offset:4'); a('ds_write_b32 v3, v1 offset:8')
a('s_mov_b64 exec, -1')
if CODEPF:
    a('s_getpc_b64 s[66:67]')
    a('L_pcref:')
    a(f's_sub_u32 s66, s66, L_pcref-{KNAME}'); a('s_subb_u32 s67, s67, 0')
    a('s_lshl_b32 s68, s41, 3')
    a('v_and_b32 v4, 7, v0'); a('v_add_u32 v4, s68, v4'); a('v_lshlrev_b32 v4, 7, v4')
    a(f'v_min_u32 v4, L_done-{KNAME}, v4')
    a('s_mov_b64 exec, 0xff')
    a('global_load_dword v62, v4, s[66:67]')
    a('s_mov_b64 exec, -1')
a('s_cmp_ge_u32 s2, 240')
a('s_cbranch_scc1 L_aux_nowd')
a(f's_mul_hi_u32 s76, s2, {-(-(1<<32)//5)}'); a('s_mul_i32 s77, s76, 5'); a('s_sub_u32 s77, s2, s77')
a('v_lshrrev_b32 v4, 4, v0'); a('v_and_b32 v5, 15, v0')
a(f'v_mul_u32_u24 v4, {D*2}, v4'); a('v_lshl_add_u32 v4, v5, 4, v4')
a(f's_mul_i32 s68, s76, {32*D*2}'); a('s_lshl_b32 s69, s77, 8'); a('s_add_u32 s68, s68, s69')
for i in range(8):
    a(f's_mov_b32 m0, {L_WD + i*1024}')
    if i: a(f's_add_u32 s68, s68, {4*D*2}')
    else: a('s_nop 0')
    a('buffer_load_dwordx4 v4, s[20:23], s68 offen lds')
a('L_aux_nowd:')
for i in range(40, 56): a(f'v_mov_b32 v{i}, 0')
a('v_lshlrev_b32 v56, 4, v0'); a('s_lshl_b32 s66, s33, 12'); a('s_add_u32 s66, s66, 32768'); a('v_add_u32 v56, s66, v56')
a('v_lshrrev_b32 v4, 2, v0'); a('v_and_b32 v5, 3, v4'); a('v_bfe_u32 v6, v4, 3, 1'); a('v_lshl_or_b32 v5, v6, 2, v5'); a('v_lshlrev_b32 v5, 1, v5')
a('s_and_b32 s66, s32, 3'); a('s_lshl_b32 s66, s66, 2')
a('v_and_b32 v6, 3, v0'); a('v_add_u32 v6, s66, v6'); a('v_xor_b32 v5, v5, v6')
a('v_lshlrev_b32 v4, 8, v4'); a('v_lshl_add_u32 v57, v5, 4, v4')
a('s_lshr_b32 s66, s32, 2'); a('s_lshl_b32 s66, s66, 14'); a('v_add_u32 v57, s66, v57')
a('s_cmp_eq_u32 s35, 0'); a('s_cbranch_scc1 L_aux_w')
a('s_and_b32 s67, s32, 3'); a(f's_mul_i32 s67, s67, {20*128}'); a('s_add_u32 s66, s66, s67')
a('v_lshlrev_b32 v57, 4, v0'); a('v_add_u32 v57, s66, v57')
a('L_aux_w:')
a('s_and_b32 s45, s30, 1'); a('s_sub_u32 s45, 3, s45')
a('s_mov_b32 s46, 0')
a('s_mov_b32 s47, 0')
a('L_aux_l:')
a('s_barrier')
a('v_add_u32 v58, s46, v56'); a('v_add_u32 v59, s46, v57')
for i in range(4): a(f'ds_read_b128 v[{8+4*i}:{11+4*i}], v58 offset:{i*1024}')
a('s_cmp_eq_u32 s35, 1'); a('s_cbranch_scc1 L_aux_c')
for i in range(4): a(f'ds_read_b128 v[{24+4*i}:{27+4*i}], v59 offset:{i*4096}')
a('s_waitcnt lgkmcnt(0)')
for i in range(4):
    for d in range(4):
        r = 24 + 4*i + d
        a(f'v_lshlrev_b32 v60, 16, v{r}'); a(f'v_and_b32 v61, 0xffff0000, v{r}')
        a(f'v_add_f32 v{48+2*d}, v{48+2*d}, v60'); a(f'v_add_f32 v{49+2*d}, v{49+2*d}, v61')
a('s_branch L_aux_x')
a('L_aux_c:')
for i in range(3): a(f'ds_read_b128 v[{24+4*i}:{27+4*i}], v59 offset:{i*1024}')
a('s_waitcnt lgkmcnt(0)')
for i in range(3):
    for d in range(4):
        r = 24 + 4*i + d
        a(f'v_lshlrev_b32 v60, 16, v{r}'); a(f'v_and_b32 v61, 0xffff0000, v{r}')
        a(f'v_add_f32 v{48+2*i}, v{48+2*i}, v60'); a(f'v_add_f32 v{49+2*i}, v{49+2*i}, v61')
a('L_aux_x:')
a('s_cmp_ge_u32 s47, s45'); a('s_cbranch_scc1 L_aux_nx')
for i in range(4):
    for d in range(4):
        r = 8 + 4*i + d
        a(f'v_lshlrev_b32 v60, 16, v{r}'); a(f'v_and_b32 v61, 0xffff0000, v{r}')
        a(f'v_add_f32 v{40+2*i}, v{40+2*i}, v60'); a(f'v_fmac_f32 v{41+2*i}, v60, v60')
        a(f'v_add_f32 v{40+2*i}, v{40+2*i}, v61'); a(f'v_fmac_f32 v{41+2*i}, v61, v61')
a('L_aux_nx:')
a('s_cmp_lg_u32 s47, 1'); a('s_cbranch_scc1 L_aux_nw')
a('s_cmp_ge_u32 s2, 240'); a('s_cbranch_scc1 L_aux_nw')
a('v_lshrrev_b32 v97, 2, v0'); a('v_lshlrev_b32 v97, 8, v97'); a('v_and_b32 v98, 3, v0'); a('v_lshl_add_u32 v97, v98, 3, v97')
a(f'v_add_u32 v97, {L_WD}, v97')
a('v_lshlrev_b32 v99, 4, v0')
a('s_waitcnt vmcnt(0)')
for e in range(8):
    for b in range(2):
        a(f'ds_read_b64_tr_b16 v[{64+4*e+2*b}:{65+4*e+2*b}], v97 offset:{32*e + 4096*b}')
a('s_lshl_b32 s77, s77, 3')
a(f's_mul_i32 s76, s76, 5120'); a(f's_add_u32 s76, s76, {WS_WDT}')
a('s_waitcnt lgkmcnt(0)')
for e in range(8):
    a(f's_add_u32 s68, s77, {e}')
    a(f's_mul_hi_u32 s69, s68, {-(-(1<<32)//5)}')
    a('s_mul_i32 s70, s69, 5'); a('s_sub_u32 s70, s68, s70')
    a(f's_mul_i32 s69, s69, {48*5120}'); a('s_lshl_b32 s70, s70, 10')
    a('s_add_u32 s69, s69, s70'); a('s_add_u32 s69, s69, s76')
    a(f'buffer_store_dwordx4 v[{64+4*e}:{67+4*e}], v99, s[12:15], s69 offen sc1')
a('L_aux_nw:')
a('s_cmp_lg_u32 s47, 2'); a('s_cbranch_scc1 L_aux_na')
a('s_waitcnt vmcnt(0) lgkmcnt(0)')
a('s_and_b32 s66, s2, 1'); a('s_lshl_b32 s66, s66, 7')
a('v_mov_b32 v1, 1'); a('v_mov_b32 v2, 0')
a('s_mov_b64 exec, 1')
a('buffer_atomic_add v1, v2, s[24:27], s66 offen sc1')
a('s_mov_b64 exec, -1')
a('L_aux_na:')
a(f's_add_u32 s46, s46, {STG}'); a(f's_cmp_eq_u32 s46, {3*STG}'); a('s_cselect_b32 s46, 0, s46')
a('s_add_u32 s47, s47, 1'); a('s_cmp_lt_u32 s47, 5'); a('s_cbranch_scc1 L_aux_l')
a('s_barrier')
def red8(regs):
    for mod in ('quad_perm:[1,0,3,2]', 'quad_perm:[2,3,0,1]', 'row_half_mirror'):
        a('s_nop 1')
        for r in regs: a(f'v_add_f32_dpp v{r}, v{r}, v{r} {mod} row_mask:0xf bank_mask:0xf')
red8(range(40, 48))
a('s_lshl_b32 s66, s28, 2'); a('s_add_u32 s66, s66, s30'); a('s_lshl_b32 s66, s66, 10'); a('s_lshl_b32 s67, s33, 8'); a('s_add_u32 s66, s66, s67'); a(f's_add_u32 s66, s66, {WS_XP}')
a('s_mov_b32 exec_lo, 0x01010101'); a('s_mov_b32 exec_hi, 0x01010101')
for i in range(4): a(f'buffer_store_dwordx2 v[{40+2*i}:{41+2*i}], v0, s[12:15], s66 offen offset:{i*64} sc1')
a('s_mov_b64 exec, -1')
a('s_lshl_b32 s66, s29, 1'); a('s_add_u32 s66, s66, s31'); a('s_lshl_b32 s66, s66, 10'); a('s_lshr_b32 s67, s32, 2'); a('s_lshl_b32 s67, s67, 9'); a('s_add_u32 s66, s66, s67'); a(f's_add_u32 s66, s66, {WS_WP}')
a('s_and_b32 s67, s32, 3')
a('s_cmp_eq_u32 s35, 1'); a('s_cbranch_scc1 L_aux_pc')
for mod in ('row_ror:4', 'row_ror:8'):
    a('s_nop 1')
    for r in range(48, 56): a(f'v_add_f32_dpp v{r}, v{r}, v{r} {mod} row_mask:0xf bank_mask:0xf')
for sw in ('v_permlane16_swap_b32', 'v_permlane32_swap_b32'):
    for r in range(48, 56): a(f'v_mov_b32 v{r-24}, v{r}')
    a('s_nop 1')
    for r in range(48, 56): a(f'{sw} v{r}, v{r-24}')
    a('s_nop 1')
    for r in range(48, 56): a(f'v_add_f32 v{r}, v{r}, v{r-24}')
a('s_lshl_b32 s67, s67, 7'); a('s_add_u32 s66, s66, s67')
a('v_lshlrev_b32 v4, 5, v0')
a('s_mov_b64 exec, 0xf')
a('buffer_store_dwordx4 v[48:51], v4, s[12:15], s66 offen sc1')
a('buffer_store_dwordx4 v[52:55], v4, s[12:15], s66 offen offset:16 sc1')
a('s_branch L_aux_pub')
a('L_aux_pc:')
for i in range(3): a(f'v_add_f32 v{48+i*2}, v{48+i*2}, v{49+i*2}')
red8([48, 50, 52])
a('s_mul_i32 s67, s67, 80'); a('s_add_u32 s66, s66, s67')
a('v_lshrrev_b32 v4, 1, v0')
a('s_mov_b32 exec_lo, 0x01010101'); a('s_mov_b32 exec_hi, 0x01010101')
a('buffer_store_dword v48, v4, s[12:15], s66 offen sc1')
a('buffer_store_dword v50, v4, s[12:15], s66 offen offset:32 sc1')
a('s_mov_b32 exec_hi, 0')
a('buffer_store_dword v52, v4, s[12:15], s66 offen offset:64 sc1')
a('L_aux_pub:')
a('s_mov_b64 exec, 1')
a('v_mov_b32 v1, 1'); a('v_mov_b32 v2, 0')
a('s_waitcnt vmcnt(0)')
a('buffer_store_dword v1, v2, s[12:15], s43 offen sc1')
a('s_mov_b64 exec, -1')
a('s_barrier')
a('s_barrier')
a('v_and_b32 v2, 1, v0'); a('v_lshlrev_b32 v2, 7, v2')
spin_begin('L_pollc')
a('buffer_load_dword v3, v2, s[24:27], 0 offen sc1')
a('s_waitcnt vmcnt(0)')
a('v_cmp_ne_u32 vcc, 128, v3')
a('s_cmp_eq_u64 vcc, 0')
spin_end('L_pollc')
a('s_barrier')
a('v_and_b32 v2, 15, v0')
a('v_lshlrev_b32 v3, 2, v2'); a('s_lshl_b32 s66, s28, 7'); a('v_add_u32 v3, s66, v3')
a('v_lshlrev_b32 v4, 7, v2'); a('s_lshl_b32 s66, s29, 2'); a('v_add_u32 v4, s66, v4')
a('v_bfe_u32 v5, v0, 4, 1'); a('v_cmp_eq_u32 vcc, 0, v5'); a('s_nop 1'); a('v_cndmask_b32 v2, v4, v3, vcc')
a(f's_mov_b32 s66, {WS_FLAG}')
spin_begin('L_polls')
a('buffer_load_dword v3, v2, s[12:15], s66 offen sc1')
a('s_waitcnt vmcnt(0)')
a('v_cmp_eq_u32 vcc, 0, v3')
a('s_cmp_eq_u64 vcc, 0')
spin_end('L_polls')
a('v_lshlrev_b32 v1, 4, v0')
a('s_lshl_b32 s66, s28, 12'); a(f's_add_u32 s66, s66, {WS_XP}')
for i in range(4): a(f'buffer_load_dwordx4 v[{8+4*i}:{11+4*i}], v1, s[12:15], s66 offen offset:{i*1024} sc1')
a('s_lshl_b32 s66, s29, 11'); a(f's_add_u32 s66, s66, {WS_WP}')
for i in range(2): a(f'buffer_load_dwordx4 v[{24+4*i}:{27+4*i}], v1, s[12:15], s66 offen offset:{i*1024} sc1')
a('s_barrier')
a('s_waitcnt vmcnt(0)')
for d in range(4):
    a(f'v_add_f32 v{8+d}, v{8+d}, v{12+d}'); a(f'v_add_f32 v{16+d}, v{16+d}, v{20+d}'); a(f'v_add_f32 v{24+d}, v{24+d}, v{28+d}')
for d in range(4): a(f'v_add_f32 v{8+d}, v{8+d}, v{16+d}')
a(f'v_add_u32 v2, {L_CS}, v1')
a('ds_write_b128 v2, v[24:27]')
for (s_, q_, ro, mo) in ((8, 9, 12, 14), (10, 11, 13, 15)):
    a(f'v_mul_f32 v{mo}, {1.0/D!r}, v{s_}')
    a(f'v_mul_f32 v{q_}, {1.0/D!r}, v{q_}')
    a(f'v_fma_f32 v{q_}, -v{mo}, v{mo}, v{q_}')
    a(f'v_max_f32 v{q_}, 0, v{q_}')
    rbf(mo); rbf(q_)
    a(f'v_add_f32 v{q_}, 0x3727c5ac, v{q_}')
    rbf(q_)
    a(f'v_sqrt_f32 v{q_}, v{q_}'); a('s_nop 0')
    rbf(q_)
    a(f'v_rcp_f32 v{ro}, v{q_}')
a('v_lshlrev_b32 v2, 3, v0'); a(f'v_add_u32 v2, {L_R}, v2')
a('ds_write_b64 v2, v[12:13]')
a('ds_write_b64 v2, v[14:15] offset:512')
p2_setup()
a('s_waitcnt lgkmcnt(0)')
a('s_barrier')
for st in range(6): wdt_reg(st)
a('s_branch L_p2join')

a('L_compute:')
a(f's_mov_b32 s50, {(-2*STG) & 0xffffffff}'); a(f's_mov_b32 s51, {STG}')
a('s_mov_b32 s46, 0'); a('s_mov_b32 s47, 0')
a('s_lshl_b32 s66, s28, 7'); a('s_lshl_b32 s67, s29, 2'); a('s_add_u32 s66, s66, s67'); a(f's_add_u32 s43, s66, {WS_FLAG}')
a('v_lshrrev_b32 v2, 4, v0')
a('v_and_b32 v3, 15, v0')
a('v_bfe_u32 v6, v0, 1, 3'); a('v_xor_b32 v6, v6, v2')
a('s_cmp_eq_u32 s35, 1')
a('s_cbranch_scc1 L_dft')
def interleave(M, R):
    out = []; R = list(R)
    for m in M:
        out.append(m)
        if R: out.append(R.pop(0))
    return out + R
def slot_advance():
    a('s_add_u32 s46, s46, 1'); a('s_cmp_eq_u32 s46, 3'); a('s_cselect_b32 s42, s50, s51'); a('s_cselect_b32 s46, 0, s46')
ACC = 128
def T16(mat, mi, ni): return ACC + 64*mat + 16*mi + 4*ni
FR = 32
def fW(p, mat, mi): return FR + 48*p + 16*mat + 4*mi
def fX(p, ni): return FR + 48*p + 32 + 4*ni
AW, AX = 8, 12
a('s_and_b32 s44, s3, 1'); a('s_lshr_b32 s45, s3, 1')
a('v_bfe_u32 v7, v0, 2, 2')
a('v_lshl_add_u32 v4, v2, 3, v7'); a('v_lshlrev_b32 v4, 8, v4')
a('v_bfe_u32 v5, v0, 1, 1'); a('v_lshl_add_u32 v4, v5, 4, v4')
a('v_and_b32 v5, 1, v0'); a('v_lshl_add_u32 v4, v5, 3, v4')
a('v_and_b32 v5, 1, v2'); a('v_lshl_or_b32 v5, v5, 2, v7')
for mi in range(4):
    a('s_lshl_b32 s66, s44, 2'); a(f's_add_u32 s66, s66, {mi}')
    a('v_xor_b32 v7, s66, v5')
    a(f'v_lshl_add_u32 v{AW+mi}, v7, 5, v4')
a('s_lshl_b32 s66, s45, 13'); a('s_add_u32 s66, s66, 32768')
a('v_lshlrev_b32 v5, 7, v3'); a('v_add_u32 v5, s66, v5')
for ks in range(2):
    a(f'v_xor_b32 v7, {4*ks}, v6')
    a(f'v_lshl_add_u32 v{AX+ks}, v7, 4, v5')
for i in range(128): a(f'v_mov_b32 v{ACC+i}, 0')
def f_reads(p, ks):
    L = []
    def w(mat, mi):
        for b in range(2):
            L.append(f'ds_read_b64_tr_b16 v[{fW(p,mat,mi)+2*b}:{fW(p,mat,mi)+2*b+1}], v{AW+mi} offset:{mat*16384 + ks*8192 + b*1024}')
    w(0, 0)
    for ni in range(4): L.append(f'ds_read_b128 v[{fX(p,ni)}:{fX(p,ni)+3}], v{AX+ks} offset:{ni*2048}')
    for mat in range(2):
        for mi in range(4):
            if (mat, mi) != (0, 0): w(mat, mi)
    return L
def f_mfmas(p):
    L = []
    for i, (mat, mi) in enumerate([(mat, mi) for mat in range(2) for mi in range(4)]):
        for ni in (range(4) if i % 2 == 0 else range(3, -1, -1)):
            t = T16(mat, mi, ni)
            L.append(f'v_mfma_f32_16x16x32_bf16 v[{t}:{t+3}], v[{fW(p,mat,mi)}:{fW(p,mat,mi)+3}], v[{fX(p,ni)}:{fX(p,ni)+3}], v[{t}:{t+3}]')
    return L
a('s_barrier')
stamp(1)
for r in f_reads(0, 0): a(r)
a('L_floop:')
a('s_waitcnt lgkmcnt(0)')
for ins in interleave(f_mfmas(0), f_reads(1, 1)): a(ins)
a('s_waitcnt lgkmcnt(0)')
a('s_barrier')
slot_advance()
for r in (AW, AX): a(f'v_add_u32 v{r}, s42, v{r}')
R = f_reads(0, 0)
R = R[:3] + [f'v_add_u32 v{r}, s42, v{r}' for r in (AW+1, AW+2, AW+3, AX+1)] + R[3:]
for ins in interleave(f_mfmas(1), R): a(ins)
a('s_add_u32 s47, s47, 1'); a('s_cmp_lt_u32 s47, 10'); a('s_cbranch_scc1 L_floop')
stamp(2)
a('s_waitcnt lgkmcnt(0)')
a('s_lshl_b32 s66, s45, 8'); a(f's_add_u32 s66, s66, {L_R}')
a('v_lshlrev_b32 v4, 2, v3'); a('v_add_u32 v4, s66, v4')
for ni in range(4):
    a(f'ds_read_b32 v{32+ni}, v4 offset:{64*ni}')
    a(f'ds_read_b32 v{36+ni}, v4 offset:{512 + 64*ni}')
a('s_lshl_b32 s66, s44, 8'); a(f's_add_u32 s66, s66, {L_CS}')
a('v_lshlrev_b32 v5, 4, v2'); a('v_add_u32 v5, s66, v5')
for mat in range(2):
    for mi in range(4):
        r = 64 + 16*mat + 4*mi
        a(f'ds_read_b128 v[{r}:{r+3}], v5 offset:{mat*512 + mi*64}')
a('v_lshlrev_b32 v1, 4, v0')
a('s_lshl_b32 s66, s28, 3'); a('s_lshl_b32 s67, s45, 2'); a('s_add_u32 s66, s66, s67'); a('s_mul_i32 s66, s66, 48')
a('s_lshl_b32 s67, s29, 2'); a('s_add_u32 s66, s66, s67'); a('s_lshl_b32 s67, s44, 1'); a('s_add_u32 s66, s66, s67'); a('s_lshl_b32 s66, s66, 10')
a('s_waitcnt lgkmcnt(8)')
for ni in range(4):
    c = 40 + 6*ni
    a(f'v_sub_f32 v{c}, 0, v{36+ni}')
    a(f'v_mul_f32 v{c+2}, {-1.4426950408889634!r}, v{32+ni}')
    a(f'v_mul_f32 v{c+4}, v{32+ni}, v{32+ni}')
for ni in range(4): a(f'v_rcp_f32 v{44+6*ni}, v{44+6*ni}')
a('s_waitcnt lgkmcnt(0)')
BC = 'op_sel_hi:[1,0,1]'
for ni in range(4):
    c = 40 + 6*ni
    for kp in range(2):
        seq = []
        prs = [(2*kp + h, d) for h in range(2) for d in (0, 2)]
        for n, (mi, d) in enumerate(prs):
            g = T16(0, mi, ni) + d; u = T16(1, mi, ni) + d
            a(f'v_pk_fma_f32 v[{g}:{g+1}], v[{64+4*mi+d}:{65+4*mi+d}], v[{c}:{c+1}], v[{g}:{g+1}] {BC}')
            a(f'v_pk_fma_f32 v[{u}:{u+1}], v[{80+4*mi+d}:{81+4*mi+d}], v[{c}:{c+1}], v[{u}:{u+1}] {BC}')
            a(f'v_pk_mul_f32 v[{96+2*n}:{97+2*n}], v[{g}:{g+1}], v[{c+2}:{c+3}] op_sel_hi:[1,0]')
        for n in range(8): a(f'v_exp_f32 v{96+n}, v{96+n}')
        for n, (mi, d) in enumerate(prs):
            g = T16(0, mi, ni) + d; u = T16(1, mi, ni) + d
            a(f'v_pk_mul_f32 v[{g}:{g+1}], v[{g}:{g+1}], v[{u}:{u+1}]')
            a(f'v_pk_fma_f32 v[{96+2*n}:{97+2*n}], v[{96+2*n}:{97+2*n}], v[{c+4}:{c+5}], v[{c+4}:{c+5}] op_sel_hi:[1,0,0]')
        for n in range(8): a(f'v_rcp_f32 v{96+n}, v{96+n}')
        a('s_nop 0')
        o = 104 + 4*((2*ni + kp) % 4)
        for n, (mi, d) in enumerate(prs):
            g = T16(0, mi, ni) + d
            a(f'v_pk_mul_f32 v[{g}:{g+1}], v[{g}:{g+1}], v[{96+2*n}:{97+2*n}]')
        for n, (mi, d) in enumerate(prs):
            g = T16(0, mi, ni) + d
            a(f'v_cvt_pk_bf16_f32 v{o+n}, v{g}, v{g+1}')
        a(f'buffer_store_dwordx4 v[{o}:{o+3}], v1, s[12:15], s66 offen offset:{kp*1024} sc1')
    if ni < 3: a(f's_add_u32 s66, s66, {48*1024}')
a('s_branch L_signal')

a('L_dft:')
DACC = 176
def TD(part, mi, et): return DACC + 40*part + 20*mi + 4*et
DFR = 40
def dX(p, mi): return DFR + 48*p + 4*mi
def dC(p, part, et): return DFR + 48*p + 8 + 20*part + 4*et
DX, DC = 8, 10
FCOS, FSIN, FNS = 136, 144, 152
a('v_lshlrev_b32 v5, 7, v3')
a('s_lshl_b32 s66, s3, 12'); a('s_add_u32 s66, s66, 32768')
for ks in range(2):
    a(f'v_xor_b32 v7, {4*ks}, v6')
    a(f'v_lshl_add_u32 v{DC+ks}, v7, 4, v5')
    a(f'v_add_u32 v{DX+ks}, s66, v{DC+ks}')
for i in range(80): a(f'v_mov_b32 v{DACC+i}, 0')
a('v_lshrrev_b32 v12, 3, v3'); a('v_and_b32 v13, 7, v3'); a('v_lshlrev_b32 v13, 4, v13'); a('v_lshl_add_u32 v12, v12, 2, v13'); a('v_add_u32 v12, s3, v12')
a('v_lshlrev_b32 v13, 5, v2'); a('v_add_u32 v13, s28, v13'); a('v_cvt_f32_u32 v13, v13')
for mt in range(2):
    a(f'v_add_u32 v14, {8*mt}, v12'); a('v_cvt_f32_u32 v14, v14'); a(f'v_mul_f32 v14, {1.0/2048!r}, v14')
    for d in range(4):
        for h in range(2):
            a(f'v_add_f32 v{16+h}, {float(16*h + 128*d)!r}, v13')
            a(f'v_mul_f32 v{16+h}, v{16+h}, v14')
        a('v_cos_f32 v18, v16'); a('v_cos_f32 v19, v17'); a('v_sin_f32 v20, v16'); a('v_sin_f32 v21, v17')
        a(f'v_cvt_pk_bf16_f32 v{FCOS+4*mt+d}, v18, v19')
        a(f'v_cvt_pk_bf16_f32 v{FSIN+4*mt+d}, v20, v21')
        a(f'v_xor_b32 v{FNS+4*mt+d}, 0x80008000, v{FSIN+4*mt+d}')
def d_reads(p, ks):
    L = [f'ds_read_b128 v[{dX(p,mi)}:{dX(p,mi)+3}], v{DX+ks} offset:{mi*2048}' for mi in range(2)]
    for part in range(2):
        for et in range(5):
            L.append(f'ds_read_b128 v[{dC(p,part,et)}:{dC(p,part,et)+3}], v{DC+ks} offset:{part*16384 + et*2048}')
    return L
def d_mfmas(p):
    L = []
    i = 0
    for part in range(2):
        for et in range(5):
            for mi in ((0, 1) if i % 2 == 0 else (1, 0)):
                t = TD(part, mi, et)
                L.append(f'v_mfma_f32_16x16x32_bf16 v[{t}:{t+3}], v[{dX(p,mi)}:{dX(p,mi)+3}], v[{dC(p,part,et)}:{dC(p,part,et)+3}], v[{t}:{t+3}]')
            i += 1
    return L
a('s_barrier')
stamp(1)
for r in d_reads(0, 0): a(r)
a('L_dloop:')
a('s_waitcnt lgkmcnt(0)')
for ins in interleave(d_mfmas(0), d_reads(1, 1)): a(ins)
a('s_waitcnt lgkmcnt(0)')
a('s_barrier')
slot_advance()
for r in (DX, DC): a(f'v_add_u32 v{r}, s42, v{r}')
R = d_reads(0, 0) + [f'v_add_u32 v{r}, s42, v{r}' for r in (DX+1, DC+1)]
for ins in interleave(d_mfmas(1), R): a(ins)
a('s_add_u32 s47, s47, 1'); a('s_cmp_lt_u32 s47, 10'); a('s_cbranch_scc1 L_dloop')
stamp(2)
a('s_waitcnt lgkmcnt(0)')
a('s_lshl_b32 s66, s3, 7'); a(f's_add_u32 s66, s66, {L_R}')
a('v_lshlrev_b32 v4, 4, v2'); a('v_add_u32 v4, s66, v4')
for mi in range(2):
    a(f'ds_read_b128 v[{40+4*mi}:{43+4*mi}], v4 offset:{64*mi}')
    a(f'ds_read_b128 v[{48+4*mi}:{51+4*mi}], v4 offset:{512 + 64*mi}')
a('v_lshlrev_b32 v5, 2, v3'); a(f'v_add_u32 v5, {L_CS}, v5')
for part in range(2):
    for et in range(5): a(f'ds_read_b32 v{56+2*(5*part+et)}, v5 offset:{part*512 + et*64}')
a(f'v_mul_u32_u24 v8, {ZROW}, v3'); a('v_lshl_add_u32 v8, v2, 2, v8'); a('s_lshl_b32 s66, s3, 4'); a('v_add_u32 v8, s66, v8')
a('s_waitcnt lgkmcnt(0)')
for et in range(5):
    for mi in range(2):
        for part in range(2):
            t = TD(part, mi, et); c = 56 + 2*(5*part + et)
            for d in (0, 2):
                a(f'v_pk_fma_f32 v[{t+d}:{t+d+1}], v[{48+4*mi+d}:{49+4*mi+d}], v[{c}:{c+1}], v[{t+d}:{t+d+1}] op_sel_hi:[1,0,1] neg_lo:[1,0,0] neg_hi:[1,0,0]')
            for d in (0, 2):
                a(f'v_pk_mul_f32 v[{t+d}:{t+d+1}], v[{t+d}:{t+d+1}], v[{40+4*mi+d}:{41+4*mi+d}]')
        y = 80 + 16*mi
        for part in range(2):
            t = TD(part, mi, et)
            a(f'v_pk_add_f32 v[{y+4*part}:{y+4*part+1}], v[{t}:{t+1}], v[{t+2}:{t+3}]')
            a(f'v_pk_add_f32 v[{y+4*part+2}:{y+4*part+3}], v[{t}:{t+1}], v[{t+2}:{t+3}] neg_lo:[0,1] neg_hi:[0,1]')
        pa, qa, ra, sa, pb, qb, rb, sb = range(y, y+8); o = y + 8
        a(f'v_add_f32 v{o}, v{pa}, v{qa}'); a(f'v_add_f32 v{o+1}, v{pb}, v{qb}')
        a(f'v_add_f32 v{o+2}, v{ra}, v{sb}'); a(f'v_sub_f32 v{o+3}, v{rb}, v{sa}')
        a(f'v_sub_f32 v{o+4}, v{pa}, v{qa}'); a(f'v_sub_f32 v{o+5}, v{pb}, v{qb}')
        a(f'v_sub_f32 v{o+6}, v{ra}, v{sb}'); a(f'v_add_f32 v{o+7}, v{rb}, v{sa}')
    for cpart in range(8):
        a(f'v_cvt_pk_bf16_f32 v{112+cpart}, v{88+cpart}, v{104+cpart}')
    for cpart in range(8):
        a(f'ds_write_b32 v8, v{112+cpart} offset:{L_Z + (cpart*80 + 16*et)*ZROW}')
lds_arrive(4, 9)
lds_wait('L_zw', 4, 9)
a(f'v_mul_u32_u24 v8, {ZROW}, v3'); a('v_lshl_add_u32 v8, v2, 4, v8'); a(f's_mul_i32 s66, s3, {2*80*ZROW}'); a('v_add_u32 v8, s66, v8')
for part in range(2):
    for et in range(5):
        r = 40 + 20*part + 4*et
        a(f'ds_read_b128 v[{r}:{r+3}], v8 offset:{L_Z + (part*80 + 16*et)*ZROW}')
lds_arrive(8, 9)
def VR(mt, et): return DACC + 20*mt + 4*et
def VI(mt, et): return DACC + 40 + 20*mt + 4*et
for et in range(5):
    ya = 40 + 4*et; yb = 60 + 4*et
    for mt in range(2):
        a(f'v_mfma_f32_16x16x32_bf16 v[{VR(mt,et)}:{VR(mt,et)+3}], v[{FCOS+4*mt}:{FCOS+4*mt+3}], v[{ya}:{ya+3}], 0')
        a(f'v_mfma_f32_16x16x32_bf16 v[{VI(mt,et)}:{VI(mt,et)+3}], v[{FNS+4*mt}:{FNS+4*mt+3}], v[{ya}:{ya+3}], 0')
    for mt in range(2):
        a(f'v_mfma_f32_16x16x32_bf16 v[{VR(mt,et)}:{VR(mt,et)+3}], v[{FSIN+4*mt}:{FSIN+4*mt+3}], v[{yb}:{yb+3}], v[{VR(mt,et)}:{VR(mt,et)+3}]')
        a(f'v_mfma_f32_16x16x32_bf16 v[{VI(mt,et)}:{VI(mt,et)+3}], v[{FCOS+4*mt}:{FCOS+4*mt+3}], v[{yb}:{yb+3}], v[{VI(mt,et)}:{VI(mt,et)+3}]')
a('v_lshrrev_b32 v8, 1, v2'); a(f'v_mul_u32_u24 v8, {8*5120}, v8')
a('v_and_b32 v9, 1, v2'); a(f'v_mul_u32_u24 v10, 5120, v9'); a('v_add_u32 v8, v8, v10'); a('v_lshl_add_u32 v8, v3, 4, v8')
a('s_mul_i32 s66, s28, 17'); a('s_add_u32 s67, s66, s3'); a(f's_mul_i32 s67, s67, 10240'); a(f's_mul_i32 s68, s30, 1280')
a(f's_add_u32 s68, s68, {WS_V}'); a('s_add_u32 s67, s67, s68')
a('s_add_u32 s66, s66, 16'); a('s_mul_i32 s66, s66, 10240'); a('s_add_u32 s66, s66, s68')
a('s_nop 4')
for mt in range(2):
    for et in range(5):
        o = 80 + 20*mt + 4*et
        for i in range(4): a(f'v_cvt_pk_bf16_f32 v{o+i}, v{VR(mt,et)+i}, v{VI(mt,et)+i}')
        a(f'buffer_store_dwordx4 v[{o}:{o+3}], v8, s[12:15], s67 offen offset:{256*et} sc1')
    if mt == 0: a(f's_add_u32 s67, s67, {16*5120}')
a('s_cmp_lg_u32 s3, 0')
a('s_cbranch_scc1 L_signal')
a('v_cvt_f32_u32 v12, s28'); a('v_mul_f32 v12, 0.0625, v12'); a('v_cos_f32 v13, v12'); a('v_sin_f32 v14, v12')
a('v_cmp_gt_u32 vcc, 16, v0')
a('v_lshlrev_b32 v11, 4, v3'); a('v_add_u32 v9, v10, v11')
for et in range(5):
    o = 80 + 4*et; vr = VR(0, et); vi = VI(0, et); n = 40 + 4*et
    a(f'v_mul_f32 v15, v13, v{vr}'); a(f'v_fmac_f32 v15, v14, v{vi}')
    a(f'v_mul_f32 v16, v13, v{vi}'); a(f'v_fma_f32 v16, -v14, v{vr}, v16')
    a(f'v_cvt_pk_bf16_f32 v15, v15, v16')
    a(f'v_cndmask_b32 v15, v{o}, v15, vcc')
    a(f'v_mov_b32 v{n}, v{o+1}')
    a(f'v_mov_b32 v16, v15')
    a(f'v_mov_b32 v{n+1}, v{o+2}'); a(f'v_mov_b32 v{n+2}, v{o+3}')
    a(f'v_permlane16_swap_b32 v15, v16')
    a('s_nop 1')
    a(f'v_cndmask_b32 v{n+3}, v15, v16, vcc')
a('s_mov_b32 exec_hi, 0')
for et in range(5):
    a(f'buffer_store_dwordx4 v[{40+4*et}:{43+4*et}], v9, s[12:15], s66 offen offset:{256*et} sc1')
a('s_mov_b64 exec, -1')

a('L_signal:')
stamp(3)
a('s_waitcnt vmcnt(0)')
a(f'v_mov_b32 v4, {L_CNT}'); a('v_mov_b32 v5, 1')
a('s_mov_b64 exec, 1')
a('ds_add_rtn_u32 v6, v4, v5')
a('s_waitcnt lgkmcnt(0)')
a('v_readfirstlane_b32 s66, v6')
a('s_cmp_lg_u32 s66, 3')
a('s_cbranch_scc1 L_nosig')
a('v_mov_b32 v5, 2'); a('v_mov_b32 v4, 0')
a('buffer_store_dword v5, v4, s[12:15], s43 offen sc1')
a('L_nosig:')
a('s_mov_b64 exec, -1')
stamp(4)
a('s_cmp_ge_u32 s38, 4'); a('s_cselect_b32 s45, 1, 0')
a('v_lshrrev_b32 v4, 2, v3'); a('v_and_b32 v5, 3, v3'); a('v_lshl_add_u32 v7, v5, 2, v4')
a('s_mul_i32 s66, s45, 15'); a('v_xor_b32 v4, s66, v7')
a('v_cvt_f32_u32 v4, v4'); a('v_mul_f32 v4, 0.0625, v4')
a('v_lshlrev_b32 v5, 2, v2'); a('v_cvt_f32_u32 v5, v5')
for i in range(4):
    a(f'v_add_f32 v12, {float(i)!r}, v5'); a('v_mul_f32 v12, v12, v4')
    a('v_cos_f32 v13, v12'); a('v_sin_f32 v14, v12'); a('s_nop 0')
    a(f'v_cvt_pk_bf16_f32 v{8+i}, v13, v14')
a('s_lshl_b32 s66, s37, 6'); a('s_add_u32 s66, s66, s36'); a('s_mul_i32 s67, s45, 48'); a('s_add_u32 s66, s66, s67')
a('v_lshlrev_b32 v12, 7, v7'); a('v_add_u32 v12, s66, v12'); a(f'v_mul_u32_u24 v12, {D*2}, v12')
a('v_lshl_add_u32 v12, v2, 3, v12'); a('s_mul_i32 s66, s38, 160'); a('v_add_u32 v12, s66, v12')
a(f's_mov_b32 s46, {16*D*2}'); a(f's_mov_b32 s47, {PN}')
a('s_cmp_eq_u32 s45, 1')
a(f's_cselect_b32 s46, {(-16*D*2) & 0xffffffff}, s46'); a(f's_cselect_b32 s47, {(-PN) & 0xffffffff}, s47')
for k4 in range(1, 4): a(f'v_add_u32 v{12+k4}, s46, v{11+k4}')
a(f'v_mul_u32_u24 v16, {PQ}, v2'); a('v_lshl_add_u32 v16, v3, 4, v16'); a(f's_mul_i32 s66, s45, {3*PN}'); a(f's_add_u32 s66, s66, {L_SPEC}'); a('v_add_u32 v16, s66, v16')
for k4 in range(1, 4): a(f'v_add_u32 v{16+k4}, s47, v{15+k4}')
a('s_mul_i32 s66, s38, 80'); a('v_add_u32 v21, s66, v3')
a('v_add_u32 v22, -1, v21'); a('v_sub_u32 v23, 639, v21')
a('s_cmp_eq_u32 s45, 1'); a('s_cselect_b64 vcc, -1, 0')

a('s_nop 1')
a('v_cndmask_b32 v21, v22, v23, vcc')
a(f'v_mul_u32_u24 v20, {4*17*10240}, v2') if 4*17*10240 < (1 << 24) else None
a('v_lshl_add_u32 v20, v21, 4, v20')
a('s_sub_u32 s67, 16, s36'); a('s_xor_b32 s68, s37, 1')
a('s_cmp_eq_u32 s45, 1')
a('s_cselect_b32 s67, s67, s36'); a('s_cselect_b32 s68, s68, s37')

a('s_lshl_b32 s67, s67, 1'); a('s_add_u32 s67, s67, s68'); a('s_mul_i32 s67, s67, 5120'); a(f's_add_u32 s67, s67, {WS_V}')
a('s_lshl_b32 s68, s45, 9'); a('s_sub_u32 s68, 256, s68')
a('s_sub_u32 s69, 7, s38'); a('s_sub_u32 s70, s38, 1'); a('s_max_i32 s70, s70, 0')
a('s_cmp_eq_u32 s45, 1'); a('s_cselect_b32 s70, s69, s70'); a('s_cselect_b32 s69, s69, s38')
a('v_mov_b32 v24, s69'); a('v_mov_b32 v25, s70'); a('v_bfe_u32 v26, v0, 4, 1'); a('v_cmp_eq_u32 vcc, 0, v26'); a('s_nop 1')
a('v_cndmask_b32 v24, v25, v24, vcc'); a('v_lshlrev_b32 v24, 2, v24'); a('v_lshl_add_u32 v24, v3, 7, v24')
a(f's_mov_b32 s69, {WS_FLAG + 48}')
def spec_xloads(ei_sreg, base):
    for k4 in range(4):
        a(f'buffer_load_dwordx2 v[{base+2*k4}:{base+2*k4+1}], v{12+k4}, s[4:7], {ei_sreg} offen')
a('s_lshl_b32 s70, s3, 5')
spec_xloads('s70', 32)
a('s_mov_b32 s71, 128')
a('s_cmp_lg_u32 s3, 0'); a('s_cbranch_scc1 L_nox4')
spec_xloads('s71', 40)
a('L_nox4:')
spin_begin('L_pollv')
a('buffer_load_dword v25, v24, s[12:15], s69 offen sc1')
a('s_waitcnt vmcnt(0)')
a('v_cmp_ne_u32 vcc, 2, v25')
a('s_cmp_eq_u64 vcc, 0')
spin_end('L_pollv')
stamp(5)
def spec_tile(ei_s, xbase):
    a(f's_mul_i32 s72, {ei_s}, s68')
    a('v_add_u32 v27, s72, v20')
    a(f's_lshl_b32 s72, {ei_s}, 4'); a('v_add_u32 v26, s72, v21')
    a('v_cmp_gt_i32 vcc, 0, v26'); a('v_mov_b32 v26, 0x7fffffff'); a('s_mov_b32 s72, s67')
    a('v_cndmask_b32 v27, v27, v26, vcc')
    for i in range(4):
        a(f'buffer_load_dwordx4 v[{48+4*i}:{51+4*i}], v27, s[12:15], s72 offen sc1')
        if i < 3: a(f's_add_u32 s72, s72, {17*10240}')
    for k4 in range(4):
        x = xbase + 2*k4; c = 80 + 4*k4
        a(f'v_lshlrev_b32 v{c}, 16, v{x}'); a(f'v_and_b32 v{c+1}, 0xffff0000, v{x}')
        a(f'v_lshlrev_b32 v{c+2}, 16, v{x+1}'); a(f'v_and_b32 v{c+3}, 0xffff0000, v{x+1}')
    a('s_waitcnt vmcnt(0)')
    for k4 in range(4):
        for i in range(4): a(f'v_mov_b32 v{64+4*k4+i}, v{48+4*i+k4}')
    a('s_nop 1')
    for k4 in range(4):
        c = 80 + 4*k4
        a(f'v_mfma_f32_16x16x32_bf16 v[{c}:{c+3}], v[{64+4*k4}:{67+4*k4}], v[8:11], v[{c}:{c+3}]')
    a(f's_mul_i32 s72, {ei_s}, {PE}')
    for k4 in range(4): a(f'v_add_u32 v{28+k4}, s72, v{16+k4}')
    a('s_nop 4')
    for k4 in range(4):
        c = 80 + 4*k4
        a(f'ds_write_b128 v{28+k4}, v[{c}:{c+3}]')
spec_tile('s3', 32)
a('s_cmp_lg_u32 s3, 0'); a('s_cbranch_scc1 L_final')
a('s_mov_b32 s73, 4')
spec_tile('s73', 40)

a('L_final:')
def final_addr(tau_off):
    a('s_lshl_b32 s66, s3, 6'); a(f's_add_u32 s66, s66, {tau_off}')
    a('v_add_u32 v4, s66, v0')
    a('v_mul_u32_u24 v5, 6554, v4'); a('v_lshrrev_b32 v5, 16, v5')
    a('v_mul_u32_u24 v6, 10, v5'); a('v_sub_u32 v6, v4, v6')
    a('v_lshrrev_b32 v7, 4, v5'); a('v_and_b32 v5, 15, v5')
    a('v_lshrrev_b32 v4, 1, v6'); a(f'v_mul_u32_u24 v4, {PE}, v4')
    a('v_and_b32 v8, 1, v6'); a(f'v_mul_u32_u24 v8, {2*PQ}, v8'); a('v_add_u32 v4, v4, v8')
    a(f'v_mul_u32_u24 v8, {PN}, v7'); a('v_add_u32 v4, v4, v8'); a('v_lshl_add_u32 v4, v5, 4, v4')
    a('v_lshrrev_b32 v8, 2, v5'); a('v_and_b32 v5, 3, v5'); a('v_lshl_add_u32 v5, v5, 2, v8')
    a('v_lshlrev_b32 v5, 3, v5'); a('v_add_u32 v5, v5, v7'); a('v_lshlrev_b32 v5, 4, v5')
    a('s_lshl_b32 s66, s37, 6'); a('s_add_u32 s66, s66, s36'); a('v_add_u32 v5, s66, v5')
    a(f'v_mul_u32_u24 v5, {D*2}, v5'); a('v_lshl_add_u32 v5, v6, 4, v5'); a('s_mul_i32 s66, s38, 160'); a('v_add_u32 v5, s66, v5')
def final_body():
    a(f'v_add_u32 v6, {2*P2W}, v4'); a(f'v_add_u32 v7, {4*P2W}, v4')
    for p in range(5):
        reg = (4, 4, 6, 6, 7)[p]; off = (0, P2W, 0, P2W, 0)[p]
        a(f'ds_read_b128 v[{16+8*p}:{19+8*p}], v{reg} offset:{off}')
        a(f'ds_read_b128 v[{20+8*p}:{23+8*p}], v{reg} offset:{off+PQ}')
    a('s_waitcnt lgkmcnt(6)')
    for d in range(0, 8, 2): a(f'v_pk_add_f32 v[{16+d}:{17+d}], v[{16+d}:{17+d}], v[{24+d}:{25+d}]')
    a('s_waitcnt lgkmcnt(2)')
    for d in range(0, 8, 2): a(f'v_pk_add_f32 v[{32+d}:{33+d}], v[{32+d}:{33+d}], v[{40+d}:{41+d}]')
    a('s_waitcnt lgkmcnt(0)')
    for d in range(0, 8, 2): a(f'v_pk_add_f32 v[{16+d}:{17+d}], v[{16+d}:{17+d}], v[{48+d}:{49+d}]')
    for d in range(0, 8, 2): a(f'v_pk_add_f32 v[{16+d}:{17+d}], v[{16+d}:{17+d}], v[{32+d}:{33+d}]')
    for d in range(4): a(f'v_cvt_pk_bf16_f32 v{12+d}, v{16+2*d}, v{17+2*d}')
    a('buffer_store_dwordx4 v[12:15], v5, s[16:19], 0 offen')
final_addr(0)
a('s_waitcnt lgkmcnt(0)')
a('s_barrier')
stamp(6)
final_body()
a('s_cmp_ge_u32 s3, 2'); a('s_cbranch_scc1 L_fin2')
final_addr(512)
final_body()
a('L_fin2:')
stamp(7)
if STAMPS:
    a('s_waitcnt vmcnt(0)')
    a('s_memrealtime s[96:97]')
    a('s_waitcnt lgkmcnt(0)')
    for i in range(8): a(f'v_mov_b32 v{16+i}, s{80+2*i}')
    a('v_mov_b32 v24, s96')
    a('s_lshl_b32 s66, s2, 3'); a('s_add_u32 s66, s66, s3'); a('s_lshl_b32 s66, s66, 6'); a(f's_add_u32 s66, s66, {WS_TS}')
    a('v_mov_b32 v4, 0')
    a('s_mov_b64 exec, 1')
    a('buffer_store_dwordx4 v[16:19], v4, s[12:15], s66 offen')
    a('buffer_store_dwordx4 v[20:23], v4, s[12:15], s66 offen offset:16')
    a('buffer_store_dword v24, v4, s[12:15], s66 offen offset:32')
a('L_done:')
a.end(256, sgpr=102)
txt = a.text([])
txt = txt.replace('.amdgcn_target', f'; @launch grid=(256,1,1) block=(512,1,1) lds={LDS_BYTES}\n.amdgcn_target', 1)
open(sys.argv[1], 'w').write(txt)
```

```python
import sys, math
from asmlib import *
opts = dict(o.split('=') for o in sys.argv[2:])
def opt(k, d): return type(d)(opts.get(k, d))
STAMPS = opt('stamps', 0)
XR = [120, 124, 28]
FA = [16, 17, 18, 19, 20, 21, 22, 23, 24]; VA0, VA4, VFL = 25, 26, 27
NONIT = opt('nonit', 1)
WMODE = opt('wmode', 0)
STRICT = opt('strict', 1)
ZFIX = opt('zfix', 1)
FLAGA = opt('flaga', 1)
FAKEW = opt('fakew', 0)
FAKEH = opt('fakeh', 0)
P2MAP = opt('p2map', 0)
P2ROT = opt('p2rot', 1)
SPINMAX = opt('spinmax', 1 << 16)
CODEPF = opt('codepf', 1)
LDW = opts.get('ldw', 'sc1').replace('+', ' ').replace('-', '')
LDH = opts.get('ldh', 'sc1').replace('+', ' ').replace('-', '')
STP = opts.get('stp', 'sc1').replace('+', ' ').replace('-', '')
S, D, F = 2048, 640, 1536
KNAME = 'parallel_sum__spectral_fnet__swiglu_ffn__prompt_kernel'
STG = 49152
WS_H = 0
WS_WDT = 0x600000
WS_V = 0x800000
WS_XP = 0xB00000
WS_WP = 0xB20000
WS_FW = 0xB30000
WS_FH = 0xB31000
WS_FV = 0xB34000
WS_TS = 0xC00000
WS_SIZE = 0x1000000
L_AUX = 3*STG
L_R = L_AUX
L_M = L_AUX + 512
L_CS = L_AUX + 1024
L_CNT = L_AUX + 2048
L_NON = L_CNT + 32
L_WD = L_AUX + 4096
L_Z = 0
ZROW = 80
P2W = 10240
P2STEP = [STG, STG + 5120, 2*STG, 2*STG + 5120, 0, 5120]
PT = [STG, STG + 4416, 2*STG + 128, 2*STG + 128 + 4416, 0]
ST = [40960, STG + 40960 + 64, 2*STG + 40960 + 128, 3*STG + 4096 + 192, 3*STG + 4096 + 192 + 4416 ]
PQ, PN, PE = 272, 1088, 4416
LDS_BYTES = 163840

a = Asm()
stamp_n = [0]
def stamp(i):
    if STAMPS:
        if not ((FAKEW or FAKEH) and i >= 5): a(f's_memrealtime s[{80+2*i}:{81+2*i}]')
TICKS = opt('ticks', 0)
def tick(reg, idx):
    if TICKS:
        a('s_memrealtime s[98:99]'); a('s_waitcnt lgkmcnt(0)')
        if isinstance(idx, tuple):
            a(f's_add_u32 m0, {idx[0]}, {idx[1]}'); a('s_nop 3'); a(f'v_writelane_b32 v{reg}, s98, m0')
        else:
            a(f'v_writelane_b32 v{reg}, s98, {idx}')
def tick_dump(reg, tmp):
    if TICKS:
        a('s_lshl_b32 s98, s2, 3'); a('s_add_u32 s98, s98, s3'); a('s_lshl_b32 s98, s98, 8'); a(f's_add_u32 s98, s98, {WS_TS + 0x100000}')
        a(f'v_lshlrev_b32 v{tmp}, 2, v0')
        a(f'buffer_store_dword v{reg}, v{tmp}, s[12:15], s98 offen')
def rbf(v):
    a(f'v_cvt_pk_bf16_f32 v{v}, v{v}, v{v}')
    a(f'v_lshlrev_b32 v{v}, 16, v{v}')
def srd_from(d, b, nbytes):
    srd(a, d, b, nbytes)
def spin_begin(name):
    a(f's_mov_b32 s79, 0')
    a(f'{name}:')
def spin_end(name):
    a(f's_cbranch_scc1 {name}_ok')
    a('s_add_u32 s79, s79, 1')
    a(f's_cmp_ge_u32 s79, {SPINMAX}')
    a(f's_cbranch_scc1 {name}_ok')
    a('s_sleep 2')
    a(f's_branch {name}')
    a(f'{name}_ok:')

def lds_arrive(off, v):
    a(f'v_mov_b32 v{v}, {L_CNT}'); a(f'v_mov_b32 v{v+1}, 1')
    a('s_waitcnt lgkmcnt(0)')
    a('s_mov_b64 exec, 1')
    a(f'ds_add_u32 v{v}, v{v+1} offset:{off}')
    a('s_mov_b64 exec, -1')
def lds_wait(name, off, v, cnt=4):
    a(f'v_mov_b32 v{v}, {L_CNT}')
    a(f'{name}:')
    a(f'ds_read_b32 v{v+1}, v{v} offset:{off}')
    a('s_waitcnt lgkmcnt(0)')
    a(f'v_readfirstlane_b32 s78, v{v+1}')
    a(f's_cmp_lt_u32 s78, {cnt}')
    a(f's_cbranch_scc0 {name}_ok')
    a('s_sleep 1')
    a(f's_branch {name}')
    a(f'{name}_ok:')
a.begin(KNAME)
a('s_cmp_ge_u32 s2, 256')
a('s_cbranch_scc1 L_done')
stamp(0)
a('s_load_dwordx2 s[64:65], s[0:1], 0')
a('s_load_dwordx4 s[60:63], s[0:1], 24')
a('s_load_dwordx8 s[48:55], s[0:1], 48')
a('s_load_dwordx4 s[56:59], s[0:1], 80')
a('v_lshrrev_b32 v1, 6, v0')
a('v_and_b32 v0, 63, v0')
a('v_readfirstlane_b32 s3, v1')
a('s_and_b32 s40, s2, 7'); a('s_lshr_b32 s41, s2, 3')
a('s_and_b32 s31, s40, 1'); a('s_lshr_b32 s30, s40, 1')
a('s_and_b32 s32, s41, 7'); a('s_lshr_b32 s33, s41, 3')
a('s_lshl_b32 s28, s31, 3'); a('s_add_u32 s28, s28, s32')
a('s_mul_i32 s29, s30, 3'); a('s_add_u32 s29, s29, s33')
a('s_add_u32 s42, s30, 12')
a('s_cmp_eq_u32 s33, 3')
a('s_cselect_b32 s29, s42, s29')
a('s_cselect_b32 s35, 1, 0')
a('s_mul_i32 s34, s30, 5'); a('s_add_u32 s34, s34, 1'); a('s_lshr_b32 s34, s34, 1')
a('s_mul_i32 s42, s31, 5'); a('s_add_u32 s34, s34, s42')
a('s_cmp_ge_u32 s34, 10'); a('s_cselect_b32 s42, 10, 0'); a('s_sub_u32 s34, s34, s42')
if P2MAP == 0:
    a('s_lshl_b32 s42, s30, 3'); a('s_add_u32 s42, s42, s32')
    a('s_lshl_b32 s38, s31, 2'); a('s_add_u32 s38, s38, s33')
else:
    a('s_lshl_b32 s42, s40, 2'); a('s_add_u32 s42, s42, s33')
    a('s_mov_b32 s38, s32')
a('s_mul_i32 s39, s32, 3'); a('s_lshr_b32 s39, s39, 1'); a('s_mul_i32 s66, s33, 3'); a('s_add_u32 s39, s39, s66')
a('s_cmp_ge_u32 s39, 12'); a('s_cselect_b32 s66, 12, 0'); a('s_sub_u32 s39, s39, s66')
if not P2ROT: a('s_mov_b32 s39, 0')
a('s_lshr_b32 s36, s42, 1'); a('s_and_b32 s37, s42, 1')
a('s_waitcnt lgkmcnt(0)')
srd_from(4, 64, S*D*2)
WSOFF = opt('wsoff', 0)
srd(a, 12, 58, WS_SIZE, WSOFF << 20)
srd_from(16, 54, S*D*2)
srd_from(20, 52, F*D*2)
srd_from(24, 56, 256)
if FAKEW or FAKEH:
    a('s_load_dwordx2 s[90:91], s[0:1], 8'); a('s_waitcnt lgkmcnt(0)')
    a('s_mov_b32 s92, s90'); a('s_mov_b32 s93, s91'); a(f's_mov_b32 s94, {S*S*2}'); a('s_mov_b32 s95, 0x00020000')
WSRD = 's[92:95]' if FAKEW else 's[12:15]'
HSRD = 's[92:95]' if FAKEH else 's[12:15]'
a('s_cmp_lt_u32 s3, 4')
a('s_cbranch_scc1 L_compute')
a('s_sub_u32 s44, s3, 4')
a('s_cmp_eq_u32 s44, 3')
a('s_cbranch_scc1 L_aux')

W0 = 5
PT_ = [20, 21, 22, 23, 24, 25, 26, 27, 62, 63, 64, 65, 66, 67, 68, 69]
GT_ = [48, 49, 50, 51, 52, 53, 54, 55, 56, 57, 58, 59, 60, 61, 40, 41]
def dma_loop(name, npieces, srdn, vsel, stride):
    a('s_mov_b32 s45, s34'); a('s_mov_b32 s46, 0'); a('s_mov_b32 s47, 0')
    a(f's_mul_i32 s42, s34, {stride}'); a('v_add_u32 v4, s42, v4'); a('v_add_u32 v5, s42, v5')
    a(f'{name}_l:')
    for t in range(npieces):
        a(f's_add_u32 m0, s{PT_[t]}, s46'); a('s_nop 0')
        a(f'buffer_load_dwordx4 v{4 + vsel(t)}, s[{srdn}:{srdn+3}], s{GT_[t]} offen lds')
    a('s_add_u32 s45, s45, 1'); a('s_cmp_eq_u32 s45, 10'); a('s_cselect_b32 s45, 0, s45')
    a(f's_mov_b32 s42, {stride}'); a(f's_cselect_b32 s42, {(-9*stride) & 0xffffffff}, s42')
    a('v_add_u32 v4, s42, v4'); a('v_add_u32 v5, s42, v5')
    a(f's_add_u32 s46, s46, {STG}'); a(f's_cmp_eq_u32 s46, {3*STG}'); a('s_cselect_b32 s46, 0, s46')
    a('s_cmp_eq_u32 s47, 0')
    a(f's_cbranch_scc1 {name}_nx')
    a(f's_waitcnt vmcnt({npieces})')
    tick(7, ('s47', -1))
    a('s_barrier')
    tick(7, ('s47', 15))
    a(f's_cmp_lt_u32 s47, {W0}'); a(f's_cbranch_scc1 {name}_nx')
    a('s_call_b64 s[74:75], L_p2pre')
    a(f'{name}_nx:')
    a('s_add_u32 s47, s47, 1'); a(f's_branch {name}_l')

a('s_cmp_eq_u32 s44, 2')
a('s_cbranch_scc1 L_ldx')
a('s_cmp_eq_u32 s35, 1')
a('s_cbranch_scc1 L_ldc')
a('s_cmp_eq_u32 s44, 1')
a('s_cselect_b32 s8, s50, s48'); a('s_cselect_b32 s9, s51, s49'); a(f's_mov_b32 s10, {D*F*2}'); a('s_mov_b32 s11, 0x00020000')
a('v_lshrrev_b32 v1, 4, v0')
a('v_and_b32 v2, 15, v0')
a('v_lshlrev_b32 v3, 1, v1')
a('v_xor_b32 v2, v2, v3')
a('v_lshlrev_b32 v2, 4, v2')
a(f'v_mul_u32_u24 v3, {F*2}, v1')
a('v_add_u32 v2, v2, v3')
a('s_lshl_b32 s70, s29, 8')
a('v_add_u32 v2, s70, v2')
a('s_and_b32 s70, s32, 1'); a('s_lshl_b32 s70, s70, 7')
a('v_xor_b32 v4, s70, v2')
a('v_xor_b32 v5, 128, v4')
a('s_lshl_b32 s70, s32, 11')
a('s_lshl_b32 s71, s44, 14')
for t in range(16):
    if t: a('s_add_u32 s70, s70, 1024'); a('s_and_b32 s70, s70, 0x3c00')
    a(f's_or_b32 s{PT_[t]}, s70, s71'); a(f's_mul_i32 s{GT_[t]}, s70, {4*F*2//1024}')
dma_loop('L_ldw', 16, 8, lambda t: (t >> 1) & 1, 64*F*2)
a('L_ldc:')
a('s_cmp_eq_u32 s44, 1')
a('s_cselect_b32 s8, s62, s60'); a('s_cselect_b32 s9, s63, s61'); a(f's_mov_b32 s10, {D*D*2}'); a('s_mov_b32 s11, 0x00020000')
a('v_lshrrev_b32 v1, 3, v0')
a('v_and_b32 v2, 7, v0')
a('v_lshrrev_b32 v3, 1, v1')
a('v_xor_b32 v2, v2, v3')
a('v_lshlrev_b32 v2, 4, v2')
a('s_mul_i32 s70, s30, 80'); a('s_add_u32 s70, s70, 1')
a('v_add_u32 v1, s70, v1')
a(f'v_mul_u32_u24 v3, {D*2}, v1')
a('v_add_u32 v2, v2, v3')
a('s_and_b32 s70, s32, 1'); a('s_lshl_b32 s70, s70, 6')
a('v_xor_b32 v4, s70, v2')
a('v_xor_b32 v5, 64, v4')
a('s_lshl_b32 s70, s32, 10')
a('s_lshl_b32 s71, s44, 14')
for t in range(10):
    if t: a('s_add_u32 s70, s70, 1024'); a('s_cmp_eq_u32 s70, 10240'); a('s_cselect_b32 s70, 0, s70')
    a(f's_or_b32 s{PT_[t]}, s70, s71'); a(f's_mul_i32 s{GT_[t]}, s70, {8*D*2//1024}')
dma_loop('L_ldcl', 10, 8, lambda t: t & 1, 128)
a('L_ldx:')
a('v_lshrrev_b32 v1, 3, v0')
a('v_and_b32 v2, 7, v0')
a('v_lshrrev_b32 v3, 1, v1')
a('v_xor_b32 v2, v2, v3')
a('v_lshlrev_b32 v2, 4, v2')
a('v_lshrrev_b32 v3, 2, v1'); a('v_and_b32 v6, 3, v1'); a('v_lshl_add_u32 v3, v6, 2, v3')
a('v_lshlrev_b32 v3, 7, v3'); a('v_add_u32 v3, s28, v3')
a(f'v_mul_u32_u24 v3, {D*2}, v3')
a('v_add_u32 v4, v2, v3')
a('v_xor_b32 v5, 64, v4'); a(f'v_add_u32 v5, {256*D*2}, v5')
a('s_lshl_b32 s70, s33, 12')
for t in range(0, 16, 2):
    if t: a('s_add_u32 s70, s70, 2048'); a('s_and_b32 s70, s70, 0x3c00')
    a(f's_or_b32 s{PT_[t]}, s70, 0x8000'); a(f's_or_b32 s{PT_[t+1]}, s70, 0x8400')
    a(f's_mul_i32 s{GT_[t]}, s70, {16*D*2//2048}'); a(f's_mov_b32 s{GT_[t+1]}, s{GT_[t]}')
dma_loop('L_ldxl', 16, 4, lambda t: t & 1, 128)

P2ACC = 176; P2W_R = 56; P2H = 8
def p2_setup():
    a('v_lshlrev_b32 v1, 4, v0')
    a('s_mul_i32 s70, s38, 48'); a('s_mul_i32 s71, s44, 12'); a('s_add_u32 s70, s70, s71')
    a(f's_mul_i32 s70, s70, 5120'); a(f's_add_u32 s70, s70, {WS_WDT}')
    a(f's_mul_i32 s73, s44, {P2W}')
def kidx(step):
    a(f's_add_u32 s72, s39, {step}'); a('s_cmp_ge_u32 s72, 12'); a('s_cselect_b32 s71, 12, 0'); a('s_sub_u32 s72, s72, s71')
def wdt_reg(step):
    kidx(step)
    a('s_mul_i32 s72, s72, 5120'); a('s_add_u32 s72, s72, s70')
    for ei in range(5):
        r = P2W_R + 20*step + 4*ei
        if ei == 4: a('s_add_u32 s72, s72, 4096')
        a(f'buffer_load_dwordx4 v[{r}:{r+3}], v1, {WSRD}, s72 offen offset:{(ei % 4)*1024} {LDW}')
def wdt_lds(step):
    kidx(step)
    a('s_mul_i32 s72, s72, 5120'); a('s_add_u32 s72, s72, s70')
    for ei in range(5):
        a(f's_add_u32 m0, s73, {P2STEP[step-6] + ei*1024}')
        if ei: a('s_add_u32 s72, s72, 1024')
        else: a('s_nop 0')
        a(f'buffer_load_dwordx4 v1, {WSRD}, s72 offen {LDW} lds')
WORDER = {0: [[], [], [], []], 1: [[0, 1], [], [], []], 2: [[], [], [], [0, 1]], 3: [[], [], [0, 1], []], 4: [[], [0, 1], [], [2]]}[WMODE]
WLATE = [x for x in range(6) if not any(x in w for w in WORDER)]
POLLW = {0: 6, 1: 2, 2: 5, 3: 4, 4: 3}[WMODE]
NLATE = opt('nlate', 4)
def read_nonce(v):
    a(f'v_mov_b32 v{v}, {L_NON}'); a(f'ds_read_b32 v{v}, v{v}'); a('s_waitcnt lgkmcnt(0)'); a(f'v_readfirstlane_b32 s43, v{v}')
def final_addr(tau_off, d4, d5, d11, t):
    v4, v5, v6, v7, v8, v9, v10 = d4, d5, t, t+1, t+2, t+3, t+4
    a('s_lshl_b32 s66, s3, 6'); a(f's_add_u32 s66, s66, {tau_off}')
    a(f'v_add_u32 v{v4}, s66, v0')
    a(f'v_mul_u32_u24 v{v5}, 6554, v{v4}'); a(f'v_lshrrev_b32 v{v5}, 16, v{v5}')
    a(f'v_mul_u32_u24 v{v6}, 10, v{v5}'); a(f'v_sub_u32 v{v6}, v{v4}, v{v6}')
    a(f'v_lshrrev_b32 v{v7}, 4, v{v5}'); a(f'v_and_b32 v{v5}, 15, v{v5}')
    a(f'v_lshrrev_b32 v{v9}, 1, v{v6}')
    a(f'v_mov_b32 v{v10}, {PT[0]}'); a(f'v_mov_b32 v{d11}, {ST[0]}')
    for e in range(1, 5):
        a(f'v_cmp_eq_u32 vcc, {e}, v{v9}'); a(f'v_mov_b32 v{t+5}, {PT[e]}'); a(f'v_mov_b32 v{t+6}, {ST[e]}')
        a(f'v_cndmask_b32 v{v10}, v{v10}, v{t+5}, vcc'); a(f'v_cndmask_b32 v{d11}, v{d11}, v{t+6}, vcc')
    a(f'v_and_b32 v{v8}, 1, v{v6}'); a(f'v_mul_u32_u24 v{v4}, {2*PQ}, v{v8}')
    a(f'v_mul_u32_u24 v{v8}, {PN}, v{v7}'); a(f'v_add_u32 v{v4}, v{v4}, v{v8}'); a(f'v_lshl_add_u32 v{v4}, v{v5}, 4, v{v4}')
    a(f'v_add_u32 v{d11}, v{d11}, v{v4}'); a(f'v_add_u32 v{v4}, v{v10}, v{v4}')
    a(f'v_lshrrev_b32 v{v8}, 2, v{v5}'); a(f'v_and_b32 v{v5}, 3, v{v5}'); a(f'v_lshl_add_u32 v{v5}, v{v5}, 2, v{v8}')
    a(f'v_lshlrev_b32 v{v5}, 3, v{v5}'); a(f'v_add_u32 v{v5}, v{v5}, v{v7}'); a(f'v_lshlrev_b32 v{v5}, 4, v{v5}')
    a('s_lshl_b32 s66, s37, 6'); a('s_add_u32 s66, s66, s36'); a(f'v_add_u32 v{v5}, s66, v{v5}')
    a(f'v_mul_u32_u24 v{v5}, {D*2}, v{v5}'); a(f'v_lshl_add_u32 v{v5}, v{v6}, 4, v{v5}'); a('s_mul_i32 s66, s38, 160'); a(f'v_add_u32 v{v5}, s66, v{v5}')

a('L_p2pre:')
for i in range(1, 5): a(f's_cmp_eq_u32 s47, {W0+i}'); a(f's_cbranch_scc1 L_p2pre{i}')
p2_setup()
for i in range(4):
    if i: a(f'L_p2pre{i}:')
    for st in WORDER[i]: wdt_reg(st)
    a('s_setpc_b64 s[74:75]')
a('L_p2pre4:')
a('s_waitcnt vmcnt(0)')
lds_arrive(12, 2)
read_nonce(2)
a('L_p2join:')
tick(7, 27)
for st in WLATE: wdt_reg(st)
a('s_cmp_eq_u32 s35, 0')
a('s_cbranch_scc1 L_p2nz')
lds_wait('L_zc', 8, 4)
a('L_p2nz:')
for st in range(6, 8): wdt_lds(st)
if NLATE < 4:
    lds_wait('L_c8', 16, 4)
    for st in range(8, 12 - max(NLATE, 2)): wdt_lds(st)
if NLATE < 2:
    lds_wait('L_c9', 20, 4)
    for st in range(10, 12): wdt_lds(st)
tick(7, 28)
a(f'v_add_u32 v2, s73, v1')
a(f'v_add_u32 v3, {2*STG}, v2')
a('v_min_u32 v4, 5, v0'); a('v_lshrrev_b32 v5, 1, v4'); a('v_and_b32 v4, 1, v4'); a('v_lshlrev_b32 v4, 2, v4'); a('v_lshl_add_u32 v6, v5, 4, v4')
a('s_lshl_b32 s76, s36, 8'); a('s_mul_i32 s77, s44, 48'); a('s_add_u32 s76, s76, s77'); a('s_lshl_b32 s77, s37, 3'); a('s_add_u32 s76, s76, s77'); a(f's_add_u32 s76, s76, {WS_FH}')
a('s_lshl_b32 s74, s36, 3'); a('s_lshl_b32 s75, s37, 2'); a('s_add_u32 s74, s74, s75')
a('s_mul_i32 s74, s74, 48'); a('s_mul_i32 s75, s44, 12'); a('s_add_u32 s74, s74, s75'); a('s_lshl_b32 s74, s74, 10')
for i in range(80): a(f'v_mov_b32 v{P2ACC+i}, 0')
lds_wait('L_own', 0, 4)
tick(7, 29)
stamp(2)
for st in range(12 - NLATE, 12): wdt_lds(st)
tick(7, 32)
def hload(step):
    kidx(step)
    a('s_lshl_b32 s72, s72, 10'); a(f's_add_u32 s72, s72, s74')
    for ni in range(4):
        r = P2H + 16*(step % 3) + 4*ni
        if ni: a(f's_add_u32 s72, s72, {48*1024}')
        a(f'buffer_load_dwordx4 v[{r}:{r+3}], v1, {HSRD}, s72 offen {LDH}')
spin_begin('L_pollh')
a(f'buffer_load_dword v4, v6, s[12:15], s76 offen sc1')
a('s_waitcnt vmcnt(0)')
a(f'v_cmp_ne_u32 vcc, s43, v4')
a('s_cmp_eq_u64 vcc, 0')
spin_end('L_pollh')
stamp(3)
tick(7, 33)
for st in range(3): hload(st)
a('v_and_b32 v5, 15, v0'); a('v_lshrrev_b32 v4, 4, v0')
a(f'v_mul_u32_u24 v4, {PQ}, v4'); a('v_lshl_add_u32 v5, v5, 4, v4'); a('v_add_u32 v5, s73, v5'); a(f'v_add_u32 v6, {2*STG}, v5')
def pwrite(ei):
    return [f'ds_write_b128 v{5 if PT[ei] < 2*STG else 6}, v[{P2ACC+16*ei+4*ni}:{P2ACC+16*ei+4*ni+3}] offset:{PT[ei] + ni*PN - (0 if PT[ei] < 2*STG else 2*STG)}' for ni in range(4)]
for st in range(12):
    rem = min(2, 11 - st)
    a(f's_waitcnt vmcnt({4*rem})' + (' lgkmcnt(0)' if st >= 6 else ''))
    tick(7, 36 + st)
    hb = P2H + 16*(st % 3)
    w0 = P2W_R + 20*(st % 6)
    for ei in range(5):
        for ni in (range(4) if ei % 2 == 0 else range(3, -1, -1)):
            t = P2ACC + 16*ei + 4*ni
            h = hb + 4*ni
            a(f'v_mfma_f32_16x16x32_bf16 v[{t}:{t+3}], v[{w0+4*ei}:{w0+4*ei+3}], v[{h}:{h+3}], v[{t}:{t+3}]')
        if st == 11 and ei >= 2:
            for w in pwrite(ei - 2): a(w)
    if st < 9: hload(st + 3)
    if st < 6:
        for ei in range(5):
            o = P2STEP[st] + ei*1024
            a(f'ds_read_b128 v[{w0+4*ei}:{w0+4*ei+3}], v{2 if o < 2*STG else 3} offset:{o if o < 2*STG else o - 2*STG}')
for w in pwrite(3): a(w)
a('s_nop 3')
for w in pwrite(4): a(w)
stamp(4)
tick(7, 48)
a('s_waitcnt lgkmcnt(0)')
a('s_barrier')
tick_dump(7, 4)
a('s_branch L_fin2')

VB0, VB1 = 128, 144
def p2h_setup():
    a('s_cmp_ge_u32 s38, 4'); a('s_cselect_b32 s55, 1, 0')
    a('s_sub_u32 s67, 16, s36'); a('s_xor_b32 s68, s37, 1')
    a('s_cmp_eq_u32 s55, 1')
    a('s_cselect_b32 s67, s67, s36'); a('s_cselect_b32 s68, s68, s37')
    a('s_and_b32 s60, s67, 3'); a('s_lshl_b32 s60, s60, 7'); a(f's_add_u32 s60, s60, {WS_FV}')
    a('s_lshl_b32 s67, s67, 1'); a('s_add_u32 s67, s67, s68'); a('s_mul_i32 s67, s67, 5120'); a(f's_add_u32 s56, s67, {WS_V}')
    a('s_lshl_b32 s57, s55, 9'); a('s_sub_u32 s57, 256, s57')
def fv_addr(v, t):
    a('s_sub_u32 s66, 7, s38'); a('s_sub_u32 s67, s38, 1'); a('s_max_i32 s67, s67, 0')
    a('s_cmp_ge_u32 s38, 4'); a('s_cselect_b32 s67, s66, s67'); a('s_cselect_b32 s66, s66, s38')
    a(f'v_mov_b32 v{v}, s66'); a(f'v_mov_b32 v{t}, s67'); a(f'v_bfe_u32 v{t+1}, v0, 4, 1'); a(f'v_cmp_eq_u32 vcc, 0, v{t+1}'); a(f'v_and_b32 v{t+1}, 15, v0')
    a(f'v_cndmask_b32 v{v}, v{t}, v{v}, vcc'); a(f'v_lshlrev_b32 v{v}, 9, v{v}'); a(f'v_lshl_add_u32 v{v}, v{t+1}, 2, v{v}')
def pre_loop():
    for r in range(3):
        final_addr(256*r, FA[3*r], FA[3*r+1], FA[3*r+2], 40)
    a('s_cmp_ge_u32 s3, 2'); a('s_cselect_b32 s66, -1, 0'); a(f'v_or_b32 v{FA[7]}, s66, v{FA[7]}')
    fv_addr(VFL, 40)
    a('s_mul_i32 s66, s38, 80'); a('v_add_u32 v40, s66, v3')
    a('v_add_u32 v41, -1, v40'); a('v_sub_u32 v42, 639, v40')
    a('s_cmp_eq_u32 s55, 1'); a('s_cselect_b64 vcc, -1, 0')
    a(f'v_mul_u32_u24 v43, {4*17*10240}, v2')
    a('v_cndmask_b32 v40, v41, v42, vcc')
    a('v_lshl_add_u32 v43, v40, 4, v43')
    a('s_mul_i32 s66, s3, s57'); a(f'v_add_u32 v{VA0}, s66, v43')
    a('s_lshl_b32 s66, s57, 2'); a(f'v_add_u32 v{VA4}, s66, v43')
    a('s_lshl_b32 s66, s3, 4'); a('v_add_u32 v40, s66, v40')
    a('v_cmp_gt_i32 vcc, 0, v40'); a('v_mov_b32 v41, 0x7fffffff'); a('s_nop 0')
    a(f'v_cndmask_b32 v{VA0}, v{VA0}, v41, vcc')
def pre_epilogue():
    for r in range(3): a(f'buffer_load_dwordx4 v[{XR[r]}:{XR[r]+3}], v{FA[3*r+1]}, s[4:7], 0 offen')
def v_loads():
    L = a.label('L_vl')
    a('s_mov_b32 s72, s56')
    for i in range(4):
        a(f'buffer_load_dwordx4 v[{VB0+4*i}:{VB0+3+4*i}], v{VA0}, s[12:15], s72 offen {LDH}')
        if i < 3: a(f's_add_u32 s72, s72, {17*10240}')
    a('s_cmp_lg_u32 s3, 0'); a(f's_cbranch_scc1 {L}')
    a('s_mov_b32 s72, s56')
    for i in range(4):
        a(f'buffer_load_dwordx4 v[{VB1+4*i}:{VB1+3+4*i}], v{VA4}, s[12:15], s72 offen {LDH}')
        if i < 3: a(f's_add_u32 s72, s72, {17*10240}')
    a(f'{L}:')

a('L_aux:')
AB = 248
a('v_mov_b32 v1, 0'); a(f'v_mov_b32 v3, {L_CNT}')
a('s_mov_b64 exec, 1')
a('s_cmp_lg_u32 s2, 0'); a('s_cbranch_scc1 L_aux_n0')
a('s_memrealtime s[66:67]'); a('s_waitcnt lgkmcnt(0)'); a('s_or_b32 s66, s66, 1'); a('v_mov_b32 v2, s66')
a('buffer_store_dword v2, v1, s[24:27], 0 offen sc1')
a('L_aux_n0:')
[a(f'ds_write_b32 v3, v1 offset:{4*i}') for i in range(8)]
a('s_mov_b64 exec, -1')
if CODEPF:
    a('s_getpc_b64 s[66:67]')
    a('L_pcref:')
    a(f's_sub_u32 s66, s66, L_pcref-{KNAME}'); a('s_subb_u32 s67, s67, 0')
    a('s_lshl_b32 s68, s41, 3')
    a('v_and_b32 v4, 7, v0'); a('v_add_u32 v4, s68, v4'); a('v_lshlrev_b32 v4, 7, v4')
    a(f'v_min_u32 v4, L_done-{KNAME}, v4')
    a('s_mov_b64 exec, 0xff')
    a(f'global_load_dword v{AB+7}, v4, s[66:67]')
    a('s_mov_b64 exec, -1')
for i in range(40, 56): a(f'v_mov_b32 v{i}, 0')
a(f'v_lshlrev_b32 v{AB}, 4, v0'); a('s_lshl_b32 s66, s33, 12'); a('s_add_u32 s66, s66, 32768'); a(f'v_add_u32 v{AB}, s66, v{AB}')
a('v_lshrrev_b32 v4, 2, v0'); a('v_and_b32 v5, 3, v4'); a('v_bfe_u32 v6, v4, 3, 1'); a('v_lshl_or_b32 v5, v6, 2, v5'); a('v_lshlrev_b32 v5, 1, v5')
a('s_and_b32 s66, s32, 3'); a('s_lshl_b32 s66, s66, 2')
a('v_and_b32 v6, 3, v0'); a('v_add_u32 v6, s66, v6'); a('v_xor_b32 v5, v5, v6')
a('v_lshlrev_b32 v4, 8, v4'); a(f'v_lshl_add_u32 v{AB+1}, v5, 4, v4')
a('s_lshr_b32 s66, s32, 2'); a('s_lshl_b32 s66, s66, 14'); a(f'v_add_u32 v{AB+1}, s66, v{AB+1}')
a('s_cmp_eq_u32 s35, 0'); a('s_cbranch_scc1 L_aux_w')
a('s_and_b32 s67, s32, 3'); a(f's_mul_i32 s67, s67, {20*128}'); a('s_add_u32 s66, s66, s67')
a(f'v_lshlrev_b32 v{AB+1}, 4, v0'); a(f'v_add_u32 v{AB+1}, s66, v{AB+1}')
a('L_aux_w:')
a('s_and_b32 s45, s30, 1'); a('s_sub_u32 s45, 3, s45')
a('s_mov_b32 s46, 0')
a('s_lshl_b32 s76, s28, 2'); a('s_add_u32 s76, s76, s30'); a('s_lshl_b32 s76, s76, 11'); a('s_lshl_b32 s67, s33, 9'); a('s_add_u32 s76, s76, s67'); a(f's_add_u32 s76, s76, {WS_XP}')
a('s_lshl_b32 s77, s29, 1'); a('s_add_u32 s77, s77, s31'); a('s_lshl_b32 s77, s77, 11'); a('s_lshr_b32 s67, s32, 2'); a('s_lshl_b32 s67, s67, 10'); a('s_add_u32 s77, s77, s67'); a(f's_add_u32 s77, s77, {WS_WP}')
a('s_and_b32 s67, s32, 3'); a('s_cmp_eq_u32 s35, 1'); a('s_cselect_b32 s68, 20, 32'); a('s_mul_i32 s67, s67, s68'); a('s_lshl_b32 s67, s67, 3'); a('s_add_u32 s77, s77, s67')
a(f'v_min_u32 v{AB+6}, 47, v0'); a(f'v_lshlrev_b32 v{AB+6}, 2, v{AB+6}')
a('s_mul_i32 s74, s38, 80'); a('s_add_u32 s75, s74, 79'); a('s_lshr_b32 s74, s74, 7'); a('s_lshr_b32 s75, s75, 7')
a('s_lshl_b32 s74, s74, 8'); a('s_lshl_b32 s75, s75, 8'); a(f's_add_u32 s74, s74, {WS_FW}'); a(f's_add_u32 s75, s75, {WS_FW}')
a('s_mov_b32 s47, 0')
a('s_waitcnt lgkmcnt(0)')
a('L_aux_l:')
tick(7, ('s47', 0))
a('s_barrier')
tick(7, ('s47', 16))
a(f'v_add_u32 v{AB+2}, s46, v{AB}'); a(f'v_add_u32 v{AB+3}, s46, v{AB+1}')
for i in range(4): a(f'ds_read_b128 v[{8+4*i}:{11+4*i}], v{AB+2} offset:{i*1024}')
a(f's_cmp_lg_u32 s47, {NONIT-1}'); a('s_cbranch_scc1 L_aux_nb')
a('s_mov_b64 exec, 1'); a('buffer_load_dword v2, v1, s[24:27], 0 offen sc1'); a('s_mov_b64 exec, -1')
a('L_aux_nb:')
a(f's_cmp_lg_u32 s47, {NONIT}'); a('s_cbranch_scc1 L_aux_na')
a('s_mov_b32 s79, 0')
a('L_non:')
a('s_waitcnt vmcnt(0)')
a('v_readfirstlane_b32 s43, v2')
a('s_cmp_lg_u32 s43, 0'); a('s_cbranch_scc1 L_non_ok')
a('s_add_u32 s79, s79, 1'); a(f's_cmp_ge_u32 s79, {SPINMAX}'); a('s_cbranch_scc1 L_non_ok')
a('s_sleep 4')
a('s_mov_b64 exec, 1'); a('buffer_load_dword v2, v1, s[24:27], 0 offen sc1'); a('s_mov_b64 exec, -1')
a('s_branch L_non')
a('L_non_ok:')
a('v_mov_b32 v2, s43'); a(f'v_mov_b32 v3, {L_NON}'); a('ds_write_b32 v3, v2')
a('s_cmp_ge_u32 s2, 240'); a('s_cbranch_scc1 L_aux_na')
a(f's_mul_hi_u32 s66, s2, {-(-(1<<32)//5)}'); a('s_mul_i32 s67, s66, 5'); a('s_sub_u32 s67, s2, s67')
a('s_lshl_b32 s67, s67, 8'); a('s_lshl_b32 s66, s66, 2'); a('s_add_u32 s66, s66, s67'); a(f's_add_u32 s66, s66, {WS_FW}')
a('s_mov_b64 exec, 1'); a('buffer_store_dword v2, v1, s[12:15], s66 offen sc1'); a('s_mov_b64 exec, -1')
a('L_aux_na:')
def fw_ask():
    a(f'buffer_load_dword v{AB+2}, v{AB+6}, s[12:15], s74 offen sc1'); a(f'buffer_load_dword v{AB+3}, v{AB+6}, s[12:15], s75 offen sc1')
def fw_ask2():
    a(f'buffer_load_dword v62, v{AB+6}, s[12:15], s74 offen sc1'); a(f'buffer_load_dword v63, v{AB+6}, s[12:15], s75 offen sc1')
def fw_check():
    a('s_mov_b32 s79, 0')
    a('L_pollw:')
    a('s_waitcnt vmcnt(0)')
    a('v_cmp_ne_u32 vcc, s43, v62'); a('v_cmp_ne_u32 s[66:67], s43, v63'); a('s_or_b64 vcc, vcc, s[66:67]')
    a('s_cbranch_scc0 L_pollw_ok')
    a('s_add_u32 s79, s79, 1'); a(f's_cmp_ge_u32 s79, {SPINMAX}'); a('s_cbranch_scc1 L_pollw_ok')
    a('s_sleep 4')
    fw_ask2()
    a('s_branch L_pollw')
    a('L_pollw_ok:')
if POLLW <= 4:
    a(f's_cmp_lg_u32 s47, {POLLW}'); a('s_cbranch_scc1 L_aux_np')
    fw_ask2()
    a('L_aux_np:')
a('s_cmp_lg_u32 s47, 4'); a('s_cbranch_scc1 L_aux_nq')
p2_setup()
for st in WORDER[0]: wdt_reg(st)
a('L_aux_nq:')
T0, T1 = AB + 4, AB + 5
a('s_cmp_eq_u32 s35, 1'); a('s_cbranch_scc1 L_aux_c')
for i in range(4): a(f'ds_read_b128 v[{24+4*i}:{27+4*i}], v{AB+3} offset:{i*4096}')
a('s_waitcnt lgkmcnt(0)')
for i in range(4):
    for d in range(4):
        r = 24 + 4*i + d
        a(f'v_lshlrev_b32 v{T0}, 16, v{r}'); a(f'v_and_b32 v{T1}, 0xffff0000, v{r}')
        a(f'v_add_f32 v{48+2*d}, v{48+2*d}, v{T0}'); a(f'v_add_f32 v{49+2*d}, v{49+2*d}, v{T1}')
a('s_branch L_aux_x')
a('L_aux_c:')
for i in range(3): a(f'ds_read_b128 v[{24+4*i}:{27+4*i}], v{AB+3} offset:{i*1024}')
a('s_waitcnt lgkmcnt(0)')
for i in range(3):
    for d in range(4):
        r = 24 + 4*i + d
        a(f'v_lshlrev_b32 v{T0}, 16, v{r}'); a(f'v_and_b32 v{T1}, 0xffff0000, v{r}')
        a(f'v_add_f32 v{48+2*i}, v{48+2*i}, v{T0}'); a(f'v_add_f32 v{49+2*i}, v{49+2*i}, v{T1}')
a('L_aux_x:')
a('s_cmp_ge_u32 s47, s45'); a('s_cbranch_scc1 L_aux_nx')
for i in range(4):
    for d in range(4):
        r = 8 + 4*i + d
        a(f'v_lshlrev_b32 v{T0}, 16, v{r}'); a(f'v_and_b32 v{T1}, 0xffff0000, v{r}')
        a(f'v_add_f32 v{40+2*i}, v{40+2*i}, v{T0}'); a(f'v_fmac_f32 v{41+2*i}, v{T0}, v{T0}')
        a(f'v_add_f32 v{40+2*i}, v{40+2*i}, v{T1}'); a(f'v_fmac_f32 v{41+2*i}, v{T1}, v{T1}')
a('L_aux_nx:')
if POLLW + 1 <= 4:
    a(f's_cmp_lg_u32 s47, {POLLW+1}'); a('s_cbranch_scc1 L_pollw_ok')
    fw_check()
a(f's_add_u32 s46, s46, {STG}'); a(f's_cmp_eq_u32 s46, {3*STG}'); a('s_cselect_b32 s46, 0, s46')
a('s_add_u32 s47, s47, 1'); a('s_cmp_lt_u32 s47, 5'); a('s_cbranch_scc1 L_aux_l')
tick(7, 5)
a('s_barrier')
tick(7, 21)
if POLLW == 5: fw_ask2()
if POLLW + 1 == 5: fw_check()
def red8(regs):
    for mod in ('quad_perm:[1,0,3,2]', 'quad_perm:[2,3,0,1]', 'row_half_mirror'):
        a('s_nop 1')
        for r in regs: a(f'v_add_f32_dpp v{r}, v{r}, v{r} {mod} row_mask:0xf bank_mask:0xf')
red8(range(40, 48))
for i in range(4):
    a(f'v_mov_b32 v{8+4*i}, v{40+2*i}'); a(f'v_mov_b32 v{9+4*i}, v{41+2*i}'); a(f'v_mov_b32 v{10+4*i}, s43'); a(f'v_mov_b32 v{11+4*i}, s43')
a('v_lshlrev_b32 v4, 1, v0')
a('s_mov_b32 exec_lo, 0x01010101'); a('s_mov_b32 exec_hi, 0x01010101')
for i in range(4): a(f'buffer_store_dwordx4 v[{8+4*i}:{11+4*i}], v4, s[12:15], s76 offen offset:{i*128} sc1')
a('s_mov_b64 exec, -1')
a('s_cmp_eq_u32 s35, 1'); a('s_cbranch_scc1 L_aux_pc')
for mod in ('row_ror:4', 'row_ror:8'):
    a('s_nop 1')
    for r in range(48, 56): a(f'v_add_f32_dpp v{r}, v{r}, v{r} {mod} row_mask:0xf bank_mask:0xf')
for sw in ('v_permlane16_swap_b32', 'v_permlane32_swap_b32'):
    for r in range(48, 56): a(f'v_mov_b32 v{r-24}, v{r}')
    a('s_nop 1')
    for r in range(48, 56): a(f'{sw} v{r}, v{r-24}')
    a('s_nop 1')
    for r in range(48, 56): a(f'v_add_f32 v{r}, v{r}, v{r-24}')
for d in range(4):
    a(f'v_cmp_eq_u32 vcc, {d}, v6') if d else a('v_lshrrev_b32 v6, 2, v0')
    if d == 0:
        a('v_mov_b32 v24, v48'); a('v_mov_b32 v26, v49')
    else:
        a('s_nop 1'); a(f'v_cndmask_b32 v24, v24, v{48+2*d}, vcc'); a(f'v_cndmask_b32 v26, v26, v{49+2*d}, vcc')
a('v_mov_b32 v25, s43'); a('v_mov_b32 v27, s43')
a('v_and_b32 v4, 3, v0'); a('v_lshlrev_b32 v4, 6, v4'); a('v_lshl_add_u32 v4, v6, 4, v4')
a('s_mov_b64 exec, 0xffff')
a('buffer_store_dwordx4 v[24:27], v4, s[12:15], s77 offen sc1')
a('s_branch L_aux_pub')
a('L_aux_pc:')
for i in range(3): a(f'v_add_f32 v{48+i*2}, v{48+i*2}, v{49+i*2}')
red8([48, 50, 52])
for i in range(3): a(f'v_mov_b32 v{49+i*2}, s43')
a('s_mov_b32 exec_lo, 0x01010101'); a('s_mov_b32 exec_hi, 0x01010101')
a('buffer_store_dwordx2 v[48:49], v0, s[12:15], s77 offen sc1')
a('buffer_store_dwordx2 v[50:51], v0, s[12:15], s77 offen offset:64 sc1')
a('s_mov_b32 exec_hi, 0')
a('buffer_store_dwordx2 v[52:53], v0, s[12:15], s77 offen offset:128 sc1')
a('L_aux_pub:')
a('s_mov_b64 exec, -1')
for st in WORDER[1]: wdt_reg(st)
tick(7, 6)
a('s_barrier')
tick(7, 22)
if POLLW == 6: fw_ask2()
if POLLW + 1 == 6: fw_check()
for st in WORDER[2]: wdt_reg(st)
tick(7, 7)
a('s_barrier')
tick(7, 23)
if POLLW + 1 == 7: fw_check()
a('s_lshl_b32 s66, s28, 13'); a(f's_add_u32 s66, s66, {WS_XP}'); a('s_add_u32 s68, s66, 4096')
a('s_lshl_b32 s67, s29, 12'); a(f's_add_u32 s67, s67, {WS_WP}')
def gather():
    for i in range(8): a(f'buffer_load_dwordx4 v[{8+4*i}:{11+4*i}], v1, s[12:15], s{66 if i < 4 else 68} offen offset:{(i%4)*1024} sc1')
    for i in range(4): a(f'buffer_load_dwordx4 v[{40+4*i}:{43+4*i}], v1, s[12:15], s67 offen offset:{i*1024} sc1')
gather()
for st in WORDER[3]: wdt_reg(st)
a('s_cmp_eq_u32 s35, 1'); a('s_cselect_b32 s69, 40, 64'); a('v_cmp_gt_u32 s[76:77], s69, v0')
tick(7, 8)
a('s_barrier')
tick(7, 24)
a('s_mov_b32 s79, 0')
a(f's_waitcnt vmcnt({5*len(WORDER[3])})')
a('L_gchk:')
a('v_xor_b32 v2, s43, v10')
for i in range(1, 8): a(f'v_xor_b32 v3, s43, v{10+4*i}'); a('v_or_b32 v2, v2, v3')
a('v_xor_b32 v4, s43, v41')
for r in (43, 45, 47, 49, 51, 53, 55): a(f'v_xor_b32 v3, s43, v{r}'); a('v_or_b32 v4, v4, v3')
a('v_cmp_ne_u32 vcc, 0, v4'); a('s_and_b64 s[74:75], vcc, s[76:77]')
a('v_cmp_ne_u32 vcc, 0, v2'); a('s_or_b64 s[74:75], s[74:75], vcc')
a('s_cbranch_scc0 L_gok')
a('s_add_u32 s79, s79, 1'); a(f's_cmp_ge_u32 s79, {SPINMAX}'); a('s_cbranch_scc1 L_gok')
a('s_sleep 4')
gather()
a('s_waitcnt vmcnt(0)')
a('s_branch L_gchk')
a('L_gok:')
tick(7, 9)
for h in range(2):
    for d in range(2):
        b = 8 + 4*h + d
        a(f'v_add_f32 v{b}, v{b}, v{b+8}'); a(f'v_add_f32 v{b+16}, v{b+16}, v{b+24}'); a(f'v_add_f32 v{b}, v{b}, v{b+16}')
    a(f'v_add_f32 v{40+4*h}, v{40+4*h}, v{48+4*h}'); a(f'v_add_f32 v{41+4*h}, v{42+4*h}, v{50+4*h}')
a('v_lshlrev_b32 v2, 3, v0'); a(f'v_add_u32 v2, {L_CS}, v2')
a('ds_write_b64 v2, v[40:41]'); a('ds_write_b64 v2, v[44:45] offset:512')
for (s_, q_, ro, mo) in ((8, 9, 16, 18), (12, 13, 17, 19)):
    a(f'v_mul_f32 v{mo}, {1.0/D!r}, v{s_}')
    a(f'v_mul_f32 v{q_}, {1.0/D!r}, v{q_}')
    a(f'v_fma_f32 v{q_}, -v{mo}, v{mo}, v{q_}')
    a(f'v_max_f32 v{q_}, 0, v{q_}')
    rbf(mo); rbf(q_)
    a(f'v_add_f32 v{q_}, 0x3727c5ac, v{q_}')
    rbf(q_)
    a(f'v_sqrt_f32 v{q_}, v{q_}'); a('s_nop 0')
    rbf(q_)
    a(f'v_rcp_f32 v{ro}, v{q_}')
a('v_lshlrev_b32 v2, 2, v0'); a(f'v_add_u32 v2, {L_R}, v2')
a('ds_write_b32 v2, v16'); a('ds_write_b32 v2, v17 offset:256'); a('ds_write_b32 v2, v18 offset:512'); a('ds_write_b32 v2, v19 offset:768')
lds_arrive(24, 2)
tick(7, 10)
p2h_setup()
fv_addr(4, 5)
a('buffer_load_dword v5, v4, s[12:15], s60 offen sc1')
a('s_waitcnt vmcnt(0)')
a('v_cmp_ne_u32 vcc, s43, v5'); a('s_cmp_eq_u64 vcc, 0'); a('s_cbranch_scc0 L_p2join')
lds_arrive(28, 2)
a('s_branch L_p2join')

a('L_compute:')
a(f's_mov_b32 s50, {(-2*STG) & 0xffffffff}'); a(f's_mov_b32 s51, {STG}')
a('s_mov_b32 s46, 0'); a('s_mov_b32 s47, 0')
p2h_setup()
a('v_lshrrev_b32 v2, 4, v0')
a('v_and_b32 v3, 15, v0')
a('v_bfe_u32 v6, v0, 1, 3'); a('v_xor_b32 v6, v6, v2')
a('s_cmp_ge_u32 s2, 240')
a('s_cbranch_scc1 L_nowd')
a(f's_mul_hi_u32 s76, s2, {-(-(1<<32)//5)}'); a('s_mul_i32 s77, s76, 5'); a('s_sub_u32 s77, s2, s77')
a('v_lshrrev_b32 v36, 2, v0'); a('v_and_b32 v37, 3, v0')
a(f'v_mul_u32_u24 v38, {D*2}, v36'); a('v_lshl_add_u32 v38, v37, 4, v38')
a(f's_mul_i32 s68, s76, {32*D*2}'); a('s_lshl_b32 s69, s77, 8'); a('s_add_u32 s68, s68, s69'); a('s_lshl_b32 s69, s3, 6'); a('s_add_u32 s68, s68, s69')
a('s_lshl_b32 s70, s3, 11'); a(f's_add_u32 s70, s70, {L_WD}')
a('s_mov_b32 m0, s70'); a('s_nop 0')
a('buffer_load_dwordx4 v38, s[20:23], s68 offen lds')
a('s_add_u32 m0, s70, 1024'); a(f's_add_u32 s68, s68, {16*D*2}')
a('buffer_load_dwordx4 v38, s[20:23], s68 offen lds')
a('L_nowd:')
def wd_finish():
    L = a.label('L_wdf')
    a('s_cmp_ge_u32 s2, 240'); a(f's_cbranch_scc1 {L}')
    a('v_lshlrev_b32 v36, 6, v36'); a('v_lshl_add_u32 v36, v37, 3, v36'); a('v_add_u32 v36, s70, v36')
    a('v_lshlrev_b32 v37, 4, v0')
    a('s_lshl_b32 s77, s77, 3'); a('s_lshl_b32 s68, s3, 1'); a('s_add_u32 s77, s77, s68')
    a(f's_mul_i32 s76, s76, 5120'); a(f's_add_u32 s76, s76, {WS_WDT}')
    a('s_waitcnt vmcnt(0)')
    for e in range(2):
        for b in range(2):
            a(f'ds_read_b64_tr_b16 v[{48+4*e+2*b}:{49+4*e+2*b}], v36 offset:{32*e + 1024*b}')
    for e in range(2):
        a(f's_add_u32 s68, s77, {e}')
        a(f's_mul_hi_u32 s69, s68, {-(-(1<<32)//5)}')
        a('s_mul_i32 s70, s69, 5'); a('s_sub_u32 s70, s68, s70')
        a(f's_mul_i32 s69, s69, {48*5120}'); a('s_lshl_b32 s70, s70, 10')
        a('s_add_u32 s69, s69, s70'); a('s_add_u32 s69, s69, s76')
        a('s_waitcnt lgkmcnt(0)')
        a(f'buffer_store_dwordx4 v[{48+4*e}:{51+4*e}], v37, s[12:15], s69 offen sc1')
    a(f'{L}:')
pre_loop()
a('s_cmp_eq_u32 s35, 1')
a('s_cbranch_scc1 L_dft')
def interleave(M, R):
    out = []; R = list(R)
    for m in M:
        out.append(m)
        if R: out.append(R.pop(0))
    return out + R
tails = []
def mid_sync():
    L = a.label('L_ms')
    a('s_cmp_ge_u32 s47, 8'); a(f's_cbranch_scc1 {L}_t')
    a('s_barrier')
    a(f'{L}_b:')
    tails.append(L)
def emit_tails():
    for L in tails:
        a(f'{L}_t:')
        a('s_cmp_eq_u32 s47, 9'); a(f's_cbranch_scc1 {L}_9')
        lds_arrive(16, 14)
        lds_wait(f'{L}_w', 12, 14, 3)
        a(f's_branch {L}_b')
        a(f'{L}_9:')
        lds_arrive(20, 14)
        a(f's_branch {L}_b')
def slot_advance():
    a('s_add_u32 s46, s46, 1'); a('s_cmp_eq_u32 s46, 3'); a('s_cselect_b32 s42, s50, s51'); a('s_cselect_b32 s46, 0, s46')
ACC = 128
def T16(mat, mi, ni): return ACC + 64*mat + 16*mi + 4*ni
FR = 32
def fW(p, mat, mi): return FR + 48*p + 16*mat + 4*mi
def fX(p, ni): return FR + 48*p + 32 + 4*ni
AW, AX = 8, 12
a('s_and_b32 s44, s3, 1'); a('s_lshr_b32 s45, s3, 1')
a('v_bfe_u32 v7, v0, 2, 2')
a('v_lshl_add_u32 v4, v2, 3, v7'); a('v_lshlrev_b32 v4, 8, v4')
a('v_bfe_u32 v5, v0, 1, 1'); a('v_lshl_add_u32 v4, v5, 4, v4')
a('v_and_b32 v5, 1, v0'); a('v_lshl_add_u32 v4, v5, 3, v4')
a('v_and_b32 v5, 1, v2'); a('v_lshl_or_b32 v5, v5, 2, v7')
for mi in range(4):
    a('s_lshl_b32 s66, s44, 2'); a(f's_add_u32 s66, s66, {mi}')
    a('v_xor_b32 v7, s66, v5')
    a(f'v_lshl_add_u32 v{AW+mi}, v7, 5, v4')
a('s_lshl_b32 s66, s45, 13'); a('s_add_u32 s66, s66, 32768')
a('v_lshlrev_b32 v5, 7, v3'); a('v_add_u32 v5, s66, v5')
for ks in range(2):
    a(f'v_xor_b32 v7, {4*ks}, v6')
    a(f'v_lshl_add_u32 v{AX+ks}, v7, 4, v5')
for i in range(128): a(f'v_mov_b32 v{ACC+i}, 0')
def f_reads(p, ks):
    L = []
    def w(mat, mi):
        for b in range(2):
            L.append(f'ds_read_b64_tr_b16 v[{fW(p,mat,mi)+2*b}:{fW(p,mat,mi)+2*b+1}], v{AW+mi} offset:{mat*16384 + ks*8192 + b*1024}')
    w(0, 0)
    for ni in range(4): L.append(f'ds_read_b128 v[{fX(p,ni)}:{fX(p,ni)+3}], v{AX+ks} offset:{ni*2048}')
    for mat in range(2):
        for mi in range(4):
            if (mat, mi) != (0, 0): w(mat, mi)
    return L
def f_mfmas(p):
    L = []
    for i, (mat, mi) in enumerate([(mat, mi) for mat in range(2) for mi in range(4)]):
        for ni in (range(4) if i % 2 == 0 else range(3, -1, -1)):
            t = T16(mat, mi, ni)
            L.append(f'v_mfma_f32_16x16x32_bf16 v[{t}:{t+3}], v[{fW(p,mat,mi)}:{fW(p,mat,mi)+3}], v[{fX(p,ni)}:{fX(p,ni)+3}], v[{t}:{t+3}]')
    return L
wd_finish()
tick(7, 0)
a('s_barrier')
tick(7, 16)
stamp(1)
for r in f_reads(0, 0): a(r)
a('L_floop:')
a('s_waitcnt lgkmcnt(0)')
for ins in interleave(f_mfmas(0), f_reads(1, 1)): a(ins)
a('s_waitcnt vmcnt(0) lgkmcnt(0)')
tick(7, ('s47', 1))
mid_sync()
tick(7, ('s47', 17))
slot_advance()
for r in (AW, AX): a(f'v_add_u32 v{r}, s42, v{r}')
R = f_reads(0, 0)
R = R[:3] + [f'v_add_u32 v{r}, s42, v{r}' for r in (AW+1, AW+2, AW+3, AX+1)] + R[3:]
for ins in interleave(f_mfmas(1), R): a(ins)
a('s_add_u32 s47, s47, 1'); a('s_cmp_lt_u32 s47, 10'); a('s_cbranch_scc1 L_floop')
stamp(2)
a('s_waitcnt lgkmcnt(0)')
pre_epilogue()
lds_wait('L_fst', 24, 32, 1)
lds_wait('L_fc9', 20, 32)
read_nonce(32)
a('v_mov_b32 v8, s43'); a('v_mov_b32 v9, 0'); a(f'v_mov_b32 v10, {L_CNT}')
a('s_lshl_b32 s70, s28, 8'); a('s_lshl_b32 s71, s29, 4'); a('s_add_u32 s70, s70, s71'); a('s_lshl_b32 s71, s3, 2'); a('s_add_u32 s70, s70, s71'); a(f's_add_u32 s70, s70, {WS_FH}')
a('s_lshl_b32 s66, s45, 8'); a(f's_add_u32 s66, s66, {L_R}')
a('v_lshlrev_b32 v4, 2, v3'); a('v_add_u32 v4, s66, v4')
for ni in range(4):
    a(f'ds_read_b32 v{32+ni}, v4 offset:{64*ni}')
    a(f'ds_read_b32 v{36+ni}, v4 offset:{512 + 64*ni}')
a('s_lshl_b32 s66, s44, 8'); a(f's_add_u32 s66, s66, {L_CS}')
a('v_lshlrev_b32 v5, 4, v2'); a('v_add_u32 v5, s66, v5')
for mat in range(2):
    for mi in range(4):
        r = 64 + 16*mat + 4*mi
        a(f'ds_read_b128 v[{r}:{r+3}], v5 offset:{mat*512 + mi*64}')
a('v_lshlrev_b32 v1, 4, v0')
a('s_lshl_b32 s66, s28, 3'); a('s_lshl_b32 s67, s45, 2'); a('s_add_u32 s66, s66, s67'); a('s_mul_i32 s66, s66, 48')
a('s_lshl_b32 s67, s29, 2'); a('s_add_u32 s66, s66, s67'); a('s_lshl_b32 s67, s44, 1'); a('s_add_u32 s66, s66, s67'); a('s_lshl_b32 s66, s66, 10')
a('s_waitcnt lgkmcnt(8)')
for ni in range(4):
    c = 40 + 6*ni
    a(f'v_sub_f32 v{c}, 0, v{36+ni}')
    a(f'v_mul_f32 v{c+2}, {-1.4426950408889634!r}, v{32+ni}')
    a(f'v_mul_f32 v{c+4}, v{32+ni}, v{32+ni}')
for ni in range(4): a(f'v_rcp_f32 v{44+6*ni}, v{44+6*ni}')
a('s_waitcnt lgkmcnt(0)')
BC = 'op_sel_hi:[1,0,1]'
for ni in range(1, 4): a(f's_add_u32 s{66+ni}, s{65+ni}, {48*1024}')
for kp in range(2):
    if kp == 1:
        a('s_waitcnt lgkmcnt(0)'); a('v_readfirstlane_b32 s79, v11')
        a('s_cmp_lg_u32 s79, 1'); a('s_cbranch_scc1 L_fnov')
        v_loads()
        a('L_fnov:')
    for ni in range(4):
        if kp == 0 and ni == 3: a('ds_read_b32 v11, v10 offset:28')
        c = 40 + 6*ni
        seq = []
        prs = [(2*kp + h, d) for h in range(2) for d in (0, 2)]
        for n, (mi, d) in enumerate(prs):
            g = T16(0, mi, ni) + d; u = T16(1, mi, ni) + d
            a(f'v_pk_fma_f32 v[{g}:{g+1}], v[{64+4*mi+d}:{65+4*mi+d}], v[{c}:{c+1}], v[{g}:{g+1}] {BC}')
            a(f'v_pk_fma_f32 v[{u}:{u+1}], v[{80+4*mi+d}:{81+4*mi+d}], v[{c}:{c+1}], v[{u}:{u+1}] {BC}')
            a(f'v_pk_mul_f32 v[{96+2*n}:{97+2*n}], v[{g}:{g+1}], v[{c+2}:{c+3}] op_sel_hi:[1,0]')
        for n in range(8): a(f'v_exp_f32 v{96+n}, v{96+n}')
        for n, (mi, d) in enumerate(prs):
            g = T16(0, mi, ni) + d; u = T16(1, mi, ni) + d
            a(f'v_pk_mul_f32 v[{g}:{g+1}], v[{g}:{g+1}], v[{u}:{u+1}]')
            a(f'v_pk_fma_f32 v[{96+2*n}:{97+2*n}], v[{96+2*n}:{97+2*n}], v[{c+4}:{c+5}], v[{c+4}:{c+5}] op_sel_hi:[1,0,0]')
        for n in range(8): a(f'v_rcp_f32 v{96+n}, v{96+n}')
        a('s_nop 0')
        o = 104 + 4*ni
        for n, (mi, d) in enumerate(prs):
            g = T16(0, mi, ni) + d
            a(f'v_pk_mul_f32 v[{g}:{g+1}], v[{g}:{g+1}], v[{96+2*n}:{97+2*n}]')
        for n, (mi, d) in enumerate(prs):
            g = T16(0, mi, ni) + d
            a(f'v_cvt_pk_bf16_f32 v{o+n}, v{g}, v{g+1}')
        a(f'buffer_store_dwordx4 v[{o}:{o+3}], v1, s[12:15], s{66+ni} offen offset:{kp*1024} {STP}')
tick(7, 32)
stamp(3)
a('s_waitcnt vmcnt(0)'); a('s_mov_b64 exec, 1')
a('buffer_store_dword v8, v9, s[12:15], s70 offen sc1'); a('s_mov_b64 exec, -1')
tick_dump(7, 4)
a('s_branch L_helper')

a('L_dft:')
DACC = 176
def TD(part, mi, et): return DACC + 40*part + 20*mi + 4*et
DFR = 40
def dX(p, mi): return DFR + 48*p + 4*mi
def dC(p, part, et): return DFR + 48*p + 8 + 20*part + 4*et
DX, DC = 8, 10
FCOS, FSIN, FNS = 136, 144, 152
a('v_lshlrev_b32 v5, 7, v3')
a('s_lshl_b32 s66, s3, 12'); a('s_add_u32 s66, s66, 32768')
for ks in range(2):
    a(f'v_xor_b32 v7, {4*ks}, v6')
    a(f'v_lshl_add_u32 v{DC+ks}, v7, 4, v5')
    a(f'v_add_u32 v{DX+ks}, s66, v{DC+ks}')
for i in range(80): a(f'v_mov_b32 v{DACC+i}, 0')
a('v_lshrrev_b32 v12, 3, v3'); a('v_and_b32 v13, 7, v3'); a('v_lshlrev_b32 v13, 4, v13'); a('v_lshl_add_u32 v12, v12, 2, v13'); a('v_add_u32 v12, s3, v12')
a('v_lshlrev_b32 v13, 5, v2'); a('v_add_u32 v13, s28, v13'); a('v_cvt_f32_u32 v13, v13')
for mt in range(2):
    a(f'v_add_u32 v14, {8*mt}, v12'); a('v_cvt_f32_u32 v14, v14'); a(f'v_mul_f32 v14, {1.0/2048!r}, v14')
    for d in range(4):
        for h in range(2):
            a(f'v_add_f32 v{60+h}, {float(16*h + 128*d)!r}, v13')
            a(f'v_mul_f32 v{60+h}, v{60+h}, v14')
        a('v_cos_f32 v62, v60'); a('v_cos_f32 v63, v61'); a('v_sin_f32 v64, v60'); a('v_sin_f32 v65, v61')
        a(f'v_cvt_pk_bf16_f32 v{FCOS+4*mt+d}, v62, v63')
        a(f'v_cvt_pk_bf16_f32 v{FSIN+4*mt+d}, v64, v65')
        a(f'v_xor_b32 v{FNS+4*mt+d}, 0x80008000, v{FSIN+4*mt+d}')
def d_reads(p, ks):
    L = [f'ds_read_b128 v[{dX(p,mi)}:{dX(p,mi)+3}], v{DX+ks} offset:{mi*2048}' for mi in range(2)]
    for part in range(2):
        for et in range(5):
            L.append(f'ds_read_b128 v[{dC(p,part,et)}:{dC(p,part,et)+3}], v{DC+ks} offset:{part*16384 + et*2048}')
    return L
def d_mfmas(p):
    L = []
    i = 0
    for part in range(2):
        for et in range(5):
            for mi in ((0, 1) if i % 2 == 0 else (1, 0)):
                t = TD(part, mi, et)
                L.append(f'v_mfma_f32_16x16x32_bf16 v[{t}:{t+3}], v[{dX(p,mi)}:{dX(p,mi)+3}], v[{dC(p,part,et)}:{dC(p,part,et)+3}], v[{t}:{t+3}]')
            i += 1
    return L
wd_finish()
tick(7, 0)
a('s_barrier')
tick(7, 16)
stamp(1)
for r in d_reads(0, 0): a(r)
a('L_dloop:')
a('s_waitcnt lgkmcnt(0)')
for ins in interleave(d_mfmas(0), d_reads(1, 1)): a(ins)
a('s_waitcnt vmcnt(0) lgkmcnt(0)')
tick(7, ('s47', 1))
mid_sync()
tick(7, ('s47', 17))
slot_advance()
for r in (DX, DC): a(f'v_add_u32 v{r}, s42, v{r}')
R = d_reads(0, 0) + [f'v_add_u32 v{r}, s42, v{r}' for r in (DX+1, DC+1)]
for ins in interleave(d_mfmas(1), R): a(ins)
a('s_add_u32 s47, s47, 1'); a('s_cmp_lt_u32 s47, 10'); a('s_cbranch_scc1 L_dloop')
stamp(2)
a('s_waitcnt lgkmcnt(0)')
pre_epilogue()
lds_wait('L_dst', 24, 32, 1)
lds_wait('L_dc9', 20, 32)
read_nonce(32)
a('s_lshl_b32 s66, s3, 7'); a(f's_add_u32 s66, s66, {L_R}')
a('v_lshlrev_b32 v4, 4, v2'); a('v_add_u32 v4, s66, v4')
for mi in range(2):
    a(f'ds_read_b128 v[{40+4*mi}:{43+4*mi}], v4 offset:{64*mi}')
    a(f'ds_read_b128 v[{48+4*mi}:{51+4*mi}], v4 offset:{512 + 64*mi}')
a('v_lshlrev_b32 v5, 2, v3'); a(f'v_add_u32 v5, {L_CS}, v5')
for part in range(2):
    for et in range(5): a(f'ds_read_b32 v{56+2*(5*part+et)}, v5 offset:{part*512 + et*64}')
a(f'v_mul_u32_u24 v8, {ZROW}, v3'); a('v_lshl_add_u32 v8, v2, 2, v8'); a('s_lshl_b32 s66, s3, 4'); a('v_add_u32 v8, s66, v8')
a('s_waitcnt lgkmcnt(0)')
for et in range(5):
    for mi in range(2):
        for part in range(2):
            t = TD(part, mi, et); c = 56 + 2*(5*part + et)
            for d in (0, 2):
                a(f'v_pk_fma_f32 v[{t+d}:{t+d+1}], v[{48+4*mi+d}:{49+4*mi+d}], v[{c}:{c+1}], v[{t+d}:{t+d+1}] op_sel_hi:[1,0,1] neg_lo:[1,0,0] neg_hi:[1,0,0]')
            for d in (0, 2):
                a(f'v_pk_mul_f32 v[{t+d}:{t+d+1}], v[{t+d}:{t+d+1}], v[{40+4*mi+d}:{41+4*mi+d}]')
        y = 80 + 16*mi
        for part in range(2):
            t = TD(part, mi, et)
            a(f'v_pk_add_f32 v[{y+4*part}:{y+4*part+1}], v[{t}:{t+1}], v[{t+2}:{t+3}]')
            a(f'v_pk_add_f32 v[{y+4*part+2}:{y+4*part+3}], v[{t}:{t+1}], v[{t+2}:{t+3}] neg_lo:[0,1] neg_hi:[0,1]')
        pa, qa, ra, sa, pb, qb, rb, sb = range(y, y+8); o = y + 8
        a(f'v_add_f32 v{o}, v{pa}, v{qa}'); a(f'v_add_f32 v{o+1}, v{pb}, v{qb}')
        a(f'v_add_f32 v{o+2}, v{ra}, v{sb}'); a(f'v_sub_f32 v{o+3}, v{rb}, v{sa}')
        a(f'v_sub_f32 v{o+4}, v{pa}, v{qa}'); a(f'v_sub_f32 v{o+5}, v{pb}, v{qb}')
        a(f'v_sub_f32 v{o+6}, v{ra}, v{sb}'); a(f'v_add_f32 v{o+7}, v{rb}, v{sa}')
    for cpart in range(8):
        a(f'v_cvt_pk_bf16_f32 v{112+cpart}, v{88+cpart}, v{104+cpart}')
    for cpart in range(8):
        a(f'ds_write_b32 v8, v{112+cpart} offset:{L_Z + (cpart*80 + 16*et)*ZROW}')
lds_arrive(4, 9)
lds_wait('L_zw', 4, 9)
a(f'v_mul_u32_u24 v8, {ZROW}, v3'); a('v_lshl_add_u32 v8, v2, 4, v8'); a(f's_mul_i32 s66, s3, {2*80*ZROW}'); a('v_add_u32 v8, s66, v8')
for part in range(2):
    for et in range(5):
        r = 40 + 20*part + 4*et
        a(f'ds_read_b128 v[{r}:{r+3}], v8 offset:{L_Z + (part*80 + 16*et)*ZROW}')
lds_arrive(8, 9)
def VR(mt, et): return DACC + 20*mt + 4*et
def VI(mt, et): return DACC + 40 + 20*mt + 4*et
for et in range(5):
    ya = 40 + 4*et; yb = 60 + 4*et
    for mt in range(2):
        a(f'v_mfma_f32_16x16x32_bf16 v[{VR(mt,et)}:{VR(mt,et)+3}], v[{FCOS+4*mt}:{FCOS+4*mt+3}], v[{ya}:{ya+3}], 0')
        a(f'v_mfma_f32_16x16x32_bf16 v[{VI(mt,et)}:{VI(mt,et)+3}], v[{FNS+4*mt}:{FNS+4*mt+3}], v[{ya}:{ya+3}], 0')
    for mt in range(2):
        a(f'v_mfma_f32_16x16x32_bf16 v[{VR(mt,et)}:{VR(mt,et)+3}], v[{FSIN+4*mt}:{FSIN+4*mt+3}], v[{yb}:{yb+3}], v[{VR(mt,et)}:{VR(mt,et)+3}]')
        a(f'v_mfma_f32_16x16x32_bf16 v[{VI(mt,et)}:{VI(mt,et)+3}], v[{FCOS+4*mt}:{FCOS+4*mt+3}], v[{yb}:{yb+3}], v[{VI(mt,et)}:{VI(mt,et)+3}]')
a('v_lshrrev_b32 v8, 1, v2'); a(f'v_mul_u32_u24 v8, {8*5120}, v8')
a('v_and_b32 v9, 1, v2'); a(f'v_mul_u32_u24 v10, 5120, v9'); a('v_add_u32 v8, v8, v10'); a('v_lshl_add_u32 v8, v3, 4, v8')
a('s_mul_i32 s66, s28, 17'); a('s_add_u32 s67, s66, s3'); a(f's_mul_i32 s67, s67, 10240'); a(f's_mul_i32 s68, s30, 1280')
a(f's_add_u32 s68, s68, {WS_V}'); a('s_add_u32 s67, s67, s68')
a('s_add_u32 s66, s66, 16'); a('s_mul_i32 s66, s66, 10240'); a('s_add_u32 s66, s66, s68')
a('s_nop 4')
for mt in range(2):
    for et in range(5):
        o = 80 + 20*mt + 4*et
        for i in range(4): a(f'v_cvt_pk_bf16_f32 v{o+i}, v{VR(mt,et)+i}, v{VI(mt,et)+i}')
        a(f'buffer_store_dwordx4 v[{o}:{o+3}], v8, s[12:15], s67 offen offset:{256*et} {STP}')
    if mt == 0: a(f's_add_u32 s67, s67, {16*5120}')
a('s_cmp_lg_u32 s3, 0')
a('s_cbranch_scc1 L_signal')
a('v_cvt_f32_u32 v62, s28'); a('v_mul_f32 v62, 0.0625, v62'); a('v_cos_f32 v63, v62'); a('v_sin_f32 v64, v62')
a('v_cmp_gt_u32 vcc, 16, v0')
a('v_lshlrev_b32 v11, 4, v3'); a('v_add_u32 v9, v10, v11')
for et in range(5):
    o = 80 + 4*et; vr = VR(0, et); vi = VI(0, et); n = 40 + 4*et
    a(f'v_mul_f32 v65, v63, v{vr}'); a(f'v_fmac_f32 v65, v64, v{vi}')
    a(f'v_mul_f32 v66, v63, v{vi}'); a(f'v_fma_f32 v66, -v64, v{vr}, v66')
    a(f'v_cvt_pk_bf16_f32 v65, v65, v66')
    a(f'v_cndmask_b32 v65, v{o}, v65, vcc')
    a(f'v_mov_b32 v{n}, v{o+1}')
    a(f'v_mov_b32 v66, v65')
    a(f'v_mov_b32 v{n+1}, v{o+2}'); a(f'v_mov_b32 v{n+2}, v{o+3}')
    a(f'v_permlane16_swap_b32 v65, v66')
    a('s_nop 1')
    a(f'v_cndmask_b32 v{n+3}, v65, v66, vcc')
a('s_mov_b32 exec_hi, 0')
for et in range(5):
    a(f'buffer_store_dwordx4 v[{40+4*et}:{43+4*et}], v9, s[12:15], s66 offen offset:{256*et} {STP}')
a('s_mov_b64 exec, -1')

a('L_signal:')
a('s_mov_b32 s79, 0')
tick(7, 32)
stamp(3)
a('s_lshl_b32 s66, s30, 2'); a('s_add_u32 s66, s66, s3'); a('s_lshl_b32 s66, s66, 7'); a('s_lshl_b32 s67, s28, 2'); a('s_add_u32 s66, s66, s67'); a(f's_add_u32 s66, s66, {WS_FV}')
a('v_mov_b32 v4, s43'); a('v_mov_b32 v5, 0')
a('s_waitcnt vmcnt(0)'); a('s_mov_b64 exec, 1')
a('buffer_store_dword v4, v5, s[12:15], s66 offen sc1'); a('s_mov_b64 exec, -1')
tick_dump(7, 4)
a('L_helper:')
lds_arrive(0, 4)
stamp(4)

a('s_cmp_eq_u32 s79, 1'); a('s_cbranch_scc1 L_vdone')
spin_begin('L_pollv')
a(f'buffer_load_dword v33, v{VFL}, s[12:15], s60 offen sc1')
a('s_waitcnt vmcnt(0)')
a('v_cmp_ne_u32 vcc, s43, v33')
a('s_cmp_eq_u64 vcc, 0')
spin_end('L_pollv')
v_loads()
a('L_vdone:')
stamp(5)
a('v_lshrrev_b32 v4, 2, v3'); a('v_and_b32 v5, 3, v3'); a('v_lshl_add_u32 v7, v5, 2, v4')
a('s_mul_i32 s66, s55, 15'); a('v_xor_b32 v4, s66, v7')
a('v_cvt_f32_u32 v4, v4'); a('v_mul_f32 v4, 0.0625, v4')
a('v_lshlrev_b32 v5, 2, v2'); a('v_cvt_f32_u32 v5, v5')
for i in range(4):
    a(f'v_add_f32 v32, {float(i)!r}, v5'); a('v_mul_f32 v32, v32, v4')
    a('v_cos_f32 v33, v32'); a('v_sin_f32 v34, v32'); a('s_nop 0')
    a(f'v_cvt_pk_bf16_f32 v{8+i}, v33, v34')
a(f's_mov_b32 s47, {PN}'); a('s_cmp_eq_u32 s55, 1'); a(f's_cselect_b32 s47, {(-PN) & 0xffffffff}, s47')
a(f'v_mul_u32_u24 v36, {PQ}, v2'); a('v_lshl_add_u32 v36, v3, 4, v36'); a(f's_mul_i32 s66, s55, {3*PN}'); a('v_add_u32 v36, s66, v36')
for k4 in range(1, 4): a(f'v_add_u32 v{36+k4}, s47, v{35+k4}')
def spec_tile(off_s, vb):
    for k4 in range(4):
        for i in range(4): a(f'v_mov_b32 v{64+4*k4+i}, v{vb+4*i+k4}')
    a('s_nop 1')
    for k4 in range(4):
        c = 80 + 4*k4
        a(f'v_mfma_f32_16x16x32_bf16 v[{c}:{c+3}], v[{64+4*k4}:{67+4*k4}], v[8:11], 0')
    for k4 in range(4): a(f'v_add_u32 v{40+k4}, {off_s}, v{36+k4}')
    a('s_nop 5')
    for k4 in range(4):
        c = 80 + 4*k4
        a(f'ds_write_b128 v{40+k4}, v[{c}:{c+3}]')
a('s_cmp_eq_u32 s3, 1'); a(f's_mov_b32 s73, {ST[0]}'); a(f's_cselect_b32 s73, {ST[1]}, s73')
a('s_cmp_eq_u32 s3, 2'); a(f's_cselect_b32 s73, {ST[2]}, s73')
a('s_cmp_eq_u32 s3, 3'); a(f's_cselect_b32 s73, {ST[3]}, s73')
a('s_waitcnt vmcnt(0)')
a('s_cmp_lg_u32 s3, 0'); a('s_cbranch_scc1 L_spec1')
a('s_cmp_eq_u32 s35, 0'); a('s_cbranch_scc1 L_specz')
lds_wait('L_zc2', 8, 32)
a('L_specz:')
a(f's_mov_b32 s74, {ST[4]}')
spec_tile('s74', VB1)
a('L_spec1:')
spec_tile('s73', VB0)
for r in range(3):
    for d in range(4):
        a(f'v_lshlrev_b32 v{96+8*r+2*d}, 16, v{XR[r]+d}'); a(f'v_and_b32 v{97+8*r+2*d}, 0xffff0000, v{XR[r]+d}')

a('L_final:')
def final_reads(r, b):
    d4, d11 = FA[3*r], FA[3*r+2]
    for p in range(5):
        reg = (d4, d4, d4, d4, d11)[p]; off = (0, P2W, 2*P2W, 3*P2W, 0)[p]
        a(f'ds_read_b128 v[{b+8*p}:{b+3+8*p}], v{reg} offset:{off}')
        a(f'ds_read_b128 v[{b+4+8*p}:{b+7+8*p}], v{reg} offset:{off+PQ}')
def final_sum(r, b, cnt):
    x = 96 + 8*r
    for p in range(5):
        a(f's_waitcnt lgkmcnt({min(15, cnt + 8 - 2*p)})')
        for d in range(0, 8, 2): a(f'v_pk_add_f32 v[{x+d}:{x+d+1}], v[{x+d}:{x+d+1}], v[{b+8*p+d}:{b+8*p+d+1}]')
    for d in range(4): a(f'v_cvt_pk_bf16_f32 v{b+d}, v{x+2*d}, v{x+2*d+1}')
    a(f'buffer_store_dwordx4 v[{b}:{b+3}], v{FA[3*r+1]}, s[16:19], 0 offen')
a('s_waitcnt lgkmcnt(0)')
a('s_barrier')
stamp(6)
final_reads(0, 128)
final_reads(1, 168)
final_sum(0, 128, 10)
a('s_cmp_ge_u32 s3, 2'); a('s_cbranch_scc1 L_fin1')
final_reads(2, 208)
final_sum(1, 168, 10)
final_sum(2, 208, 0)
a('s_branch L_fin2')
a('L_fin1:')
final_sum(1, 168, 0)
a('L_fin2:')
stamp(7)
if STAMPS:
    a('s_waitcnt vmcnt(0)')
    a('s_memrealtime s[96:97]')
    a('s_waitcnt lgkmcnt(0)')
    for i in range(8): a(f'v_mov_b32 v{16+i}, s{80+2*i}')
    a('v_mov_b32 v24, s96')
    a('s_lshl_b32 s66, s2, 3'); a('s_add_u32 s66, s66, s3'); a('s_lshl_b32 s66, s66, 6'); a(f's_add_u32 s66, s66, {WS_TS}')
    a('v_mov_b32 v4, 0')
    a('s_mov_b64 exec, 1')
    a('buffer_store_dwordx4 v[16:19], v4, s[12:15], s66 offen')
    a('buffer_store_dwordx4 v[20:23], v4, s[12:15], s66 offen offset:16')
    a('buffer_store_dword v24, v4, s[12:15], s66 offen offset:32')
a('s_endpgm')
emit_tails()
a('L_done:')
a.end(256, sgpr=102)
txt = a.text([])
txt = txt.replace('.amdgcn_target', f'; @launch grid=(256,1,1) block=(512,1,1) lds={LDS_BYTES}\n.amdgcn_target', 1)
open(sys.argv[1], 'w').write(txt)
```

```python
import sys, math
from asmlib import *
opts = dict(o.split('=') for o in sys.argv[2:])
def opt(k, d): return type(d)(opts.get(k, d))
STAMPS = opt('stamps', 0)
XR = [120, 124, 28]
FA = [16, 17, 18, 19, 20, 21, 22, 23, 24]; VA0, VA4, VFL = 25, 26, 27
NONIT = opt('nonit', 1)
WMODE = opt('wmode', 0)
STRICT = opt('strict', 1)
ZFIX = opt('zfix', 1)
FLAGA = opt('flaga', 1)
FAKEW = opt('fakew', 0)
FAKEH = opt('fakeh', 0)
P2MAP = opt('p2map', 0)
P2ROT = opt('p2rot', 1)
SPINMAX = opt('spinmax', 1 << 16)
CODEPF = opt('codepf', 1)
LDW = opts.get('ldw', 'sc1').replace('+', ' ').replace('-', '')
LDH = opts.get('ldh', 'sc1').replace('+', ' ').replace('-', '')
STP = opts.get('stp', 'sc1').replace('+', ' ').replace('-', '')
S, D, F = 2048, 640, 1536
KNAME = 'parallel_sum__spectral_fnet__swiglu_ffn__prompt_kernel'
STG = 49152
WS_H = 0
WS_WDT = 0x600000
WS_V = 0x800000
WS_XP = 0xB00000
WS_WP = 0xB20000
WS_FW = 0xB30000
WS_FH = 0xB31000
WS_FV = 0xB34000
WS_TS = 0xC00000
WS_SIZE = 0x1000000
L_AUX = 3*STG
L_R = L_AUX
L_M = L_AUX + 512
L_CS = L_AUX + 1024
L_CNT = L_AUX + 2048
L_NON = L_CNT + 32
L_WD = L_AUX + 4096
L_Z = 0
ZROW = 80
P2W = 10240
P2STEP = [STG, STG + 5120, 2*STG, 2*STG + 5120, 0, 5120]
PT = [STG, STG + 4416, 2*STG + 128, 2*STG + 128 + 4416, 0]
ST = [40960, STG + 40960 + 64, 2*STG + 40960 + 128, 3*STG + 4096 + 192, 3*STG + 4096 + 192 + 4416 ]
PQ, PN, PE = 272, 1088, 4416
LDS_BYTES = 163840

a = Asm()
stamp_n = [0]
def stamp(i):
    if STAMPS:
        if not ((FAKEW or FAKEH) and i >= 5): a(f's_memrealtime s[{80+2*i}:{81+2*i}]')
TICKS = opt('ticks', 0)
def tick(reg, idx):
    if TICKS:
        a('s_memrealtime s[98:99]'); a('s_waitcnt lgkmcnt(0)')
        if isinstance(idx, tuple):
            a(f's_add_u32 m0, {idx[0]}, {idx[1]}'); a('s_nop 3'); a(f'v_writelane_b32 v{reg}, s98, m0')
        else:
            a(f'v_writelane_b32 v{reg}, s98, {idx}')
def tick_dump(reg, tmp):
    if TICKS:
        a('s_lshl_b32 s98, s2, 3'); a('s_add_u32 s98, s98, s3'); a('s_lshl_b32 s98, s98, 8'); a(f's_add_u32 s98, s98, {WS_TS + 0x100000}')
        a(f'v_lshlrev_b32 v{tmp}, 2, v0')
        a(f'buffer_store_dword v{reg}, v{tmp}, s[12:15], s98 offen')
def rbf(v):
    a(f'v_cvt_pk_bf16_f32 v{v}, v{v}, v{v}')
    a(f'v_lshlrev_b32 v{v}, 16, v{v}')
def srd_from(d, b, nbytes):
    srd(a, d, b, nbytes)
def spin_begin(name):
    a(f's_mov_b32 s79, 0')
    a(f'{name}:')
def spin_end(name):
    a(f's_cbranch_scc1 {name}_ok')
    a('s_add_u32 s79, s79, 1')
    a(f's_cmp_ge_u32 s79, {SPINMAX}')
    a(f's_cbranch_scc1 {name}_ok')
    a('s_sleep 2')
    a(f's_branch {name}')
    a(f'{name}_ok:')

def lds_arrive(off, v):
    a(f'v_mov_b32 v{v}, {L_CNT}'); a(f'v_mov_b32 v{v+1}, 1')
    a('s_waitcnt lgkmcnt(0)')
    a('s_mov_b64 exec, 1')
    a(f'ds_add_u32 v{v}, v{v+1} offset:{off}')
    a('s_mov_b64 exec, -1')
def lds_wait(name, off, v, cnt=4):
    a(f'v_mov_b32 v{v}, {L_CNT}')
    a(f'{name}:')
    a(f'ds_read_b32 v{v+1}, v{v} offset:{off}')
    a('s_waitcnt lgkmcnt(0)')
    a(f'v_readfirstlane_b32 s78, v{v+1}')
    a(f's_cmp_lt_u32 s78, {cnt}')
    a(f's_cbranch_scc0 {name}_ok')
    a('s_sleep 1')
    a(f's_branch {name}')
    a(f'{name}_ok:')
a.begin(KNAME)
a('s_cmp_ge_u32 s2, 256')
a('s_cbranch_scc1 L_done')
stamp(0)
a('s_load_dwordx2 s[64:65], s[0:1], 0')
a('s_load_dwordx4 s[60:63], s[0:1], 24')
a('s_load_dwordx8 s[48:55], s[0:1], 48')
a('s_load_dwordx4 s[56:59], s[0:1], 80')
a('v_lshrrev_b32 v1, 6, v0')
a('v_and_b32 v0, 63, v0')
a('v_readfirstlane_b32 s3, v1')
a('s_and_b32 s40, s2, 7'); a('s_lshr_b32 s41, s2, 3')
a('s_and_b32 s31, s40, 1'); a('s_lshr_b32 s30, s40, 1')
a('s_and_b32 s32, s41, 7'); a('s_lshr_b32 s33, s41, 3')
a('s_lshl_b32 s28, s31, 3'); a('s_add_u32 s28, s28, s32')
a('s_mul_i32 s29, s30, 3'); a('s_add_u32 s29, s29, s33')
a('s_add_u32 s42, s30, 12')
a('s_cmp_eq_u32 s33, 3')
a('s_cselect_b32 s29, s42, s29')
a('s_cselect_b32 s35, 1, 0')
a('s_mul_i32 s34, s30, 5'); a('s_add_u32 s34, s34, 1'); a('s_lshr_b32 s34, s34, 1')
a('s_mul_i32 s42, s31, 5'); a('s_add_u32 s34, s34, s42')
a('s_cmp_ge_u32 s34, 10'); a('s_cselect_b32 s42, 10, 0'); a('s_sub_u32 s34, s34, s42')
if P2MAP == 0:
    a('s_lshl_b32 s42, s30, 3'); a('s_add_u32 s42, s42, s32')
    a('s_lshl_b32 s38, s31, 2'); a('s_add_u32 s38, s38, s33')
else:
    a('s_lshl_b32 s42, s40, 2'); a('s_add_u32 s42, s42, s33')
    a('s_mov_b32 s38, s32')
a('s_mul_i32 s39, s32, 3'); a('s_lshr_b32 s39, s39, 1'); a('s_mul_i32 s66, s33, 3'); a('s_add_u32 s39, s39, s66')
a('s_cmp_ge_u32 s39, 12'); a('s_cselect_b32 s66, 12, 0'); a('s_sub_u32 s39, s39, s66')
if not P2ROT: a('s_mov_b32 s39, 0')
a('s_lshr_b32 s36, s42, 1'); a('s_and_b32 s37, s42, 1')
a('s_waitcnt lgkmcnt(0)')
srd_from(4, 64, S*D*2)
WSOFF = opt('wsoff', 0)
srd(a, 12, 58, WS_SIZE, WSOFF << 20)
srd_from(16, 54, S*D*2)
srd_from(20, 52, F*D*2)
srd_from(24, 56, 256)
if FAKEW or FAKEH:
    a('s_load_dwordx2 s[90:91], s[0:1], 8'); a('s_waitcnt lgkmcnt(0)')
    a('s_mov_b32 s92, s90'); a('s_mov_b32 s93, s91'); a(f's_mov_b32 s94, {S*S*2}'); a('s_mov_b32 s95, 0x00020000')
WSRD = 's[92:95]' if FAKEW else 's[12:15]'
HSRD = 's[92:95]' if FAKEH else 's[12:15]'
a('s_cmp_lt_u32 s3, 4')
a('s_cbranch_scc1 L_compute')
a('s_sub_u32 s44, s3, 4')
a('s_cmp_eq_u32 s44, 3')
a('s_cbranch_scc1 L_aux')

W0 = 5
PT_ = [20, 21, 22, 23, 24, 25, 26, 27, 62, 63, 64, 65, 66, 67, 68, 69]
GT_ = [48, 49, 50, 51, 52, 53, 54, 55, 56, 57, 58, 59, 60, 61, 40, 41]
def dma_loop(name, npieces, srdn, vsel, stride):
    a('s_mov_b32 s45, s34'); a('s_mov_b32 s46, 0'); a('s_mov_b32 s47, 0')
    a(f's_mul_i32 s42, s34, {stride}'); a('v_add_u32 v4, s42, v4'); a('v_add_u32 v5, s42, v5')
    a(f'{name}_l:')
    for t in range(npieces):
        a(f's_add_u32 m0, s{PT_[t]}, s46'); a('s_nop 0')
        a(f'buffer_load_dwordx4 v{4 + vsel(t)}, s[{srdn}:{srdn+3}], s{GT_[t]} offen lds')
    a('s_add_u32 s45, s45, 1'); a('s_cmp_eq_u32 s45, 10'); a('s_cselect_b32 s45, 0, s45')
    a(f's_mov_b32 s42, {stride}'); a(f's_cselect_b32 s42, {(-9*stride) & 0xffffffff}, s42')
    a('v_add_u32 v4, s42, v4'); a('v_add_u32 v5, s42, v5')
    a(f's_add_u32 s46, s46, {STG}'); a(f's_cmp_eq_u32 s46, {3*STG}'); a('s_cselect_b32 s46, 0, s46')
    a('s_cmp_eq_u32 s47, 0')
    a(f's_cbranch_scc1 {name}_nx')
    a(f's_waitcnt vmcnt({npieces})')
    tick(7, ('s47', -1))
    a('s_barrier')
    tick(7, ('s47', 15))
    a(f's_cmp_lt_u32 s47, {W0}'); a(f's_cbranch_scc1 {name}_nx')
    a('s_call_b64 s[74:75], L_p2pre')
    a(f'{name}_nx:')
    a('s_add_u32 s47, s47, 1'); a(f's_branch {name}_l')

a('s_cmp_eq_u32 s44, 2')
a('s_cbranch_scc1 L_ldx')
a('s_cmp_eq_u32 s35, 1')
a('s_cbranch_scc1 L_ldc')
a('s_cmp_eq_u32 s44, 1')
a('s_cselect_b32 s8, s50, s48'); a('s_cselect_b32 s9, s51, s49'); a(f's_mov_b32 s10, {D*F*2}'); a('s_mov_b32 s11, 0x00020000')
a('v_lshrrev_b32 v1, 4, v0')
a('v_and_b32 v2, 15, v0')
a('v_lshlrev_b32 v3, 1, v1')
a('v_xor_b32 v2, v2, v3')
a('v_lshlrev_b32 v2, 4, v2')
a(f'v_mul_u32_u24 v3, {F*2}, v1')
a('v_add_u32 v2, v2, v3')
a('s_lshl_b32 s70, s29, 8')
a('v_add_u32 v2, s70, v2')
a('s_and_b32 s70, s32, 1'); a('s_lshl_b32 s70, s70, 7')
a('v_xor_b32 v4, s70, v2')
a('v_xor_b32 v5, 128, v4')
a('s_lshl_b32 s70, s32, 11')
a('s_lshl_b32 s71, s44, 14')
for t in range(16):
    if t: a('s_add_u32 s70, s70, 1024'); a('s_and_b32 s70, s70, 0x3c00')
    a(f's_or_b32 s{PT_[t]}, s70, s71'); a(f's_mul_i32 s{GT_[t]}, s70, {4*F*2//1024}')
dma_loop('L_ldw', 16, 8, lambda t: (t >> 1) & 1, 64*F*2)
a('L_ldc:')
a('s_cmp_eq_u32 s44, 1')
a('s_cselect_b32 s8, s62, s60'); a('s_cselect_b32 s9, s63, s61'); a(f's_mov_b32 s10, {D*D*2}'); a('s_mov_b32 s11, 0x00020000')
a('v_lshrrev_b32 v1, 3, v0')
a('v_and_b32 v2, 7, v0')
a('v_lshrrev_b32 v3, 1, v1')
a('v_xor_b32 v2, v2, v3')
a('v_lshlrev_b32 v2, 4, v2')
a('s_mul_i32 s70, s30, 80'); a('s_add_u32 s70, s70, 1')
a('v_add_u32 v1, s70, v1')
a(f'v_mul_u32_u24 v3, {D*2}, v1')
a('v_add_u32 v2, v2, v3')
a('s_and_b32 s70, s32, 1'); a('s_lshl_b32 s70, s70, 6')
a('v_xor_b32 v4, s70, v2')
a('v_xor_b32 v5, 64, v4')
a('s_lshl_b32 s70, s32, 10')
a('s_lshl_b32 s71, s44, 14')
for t in range(10):
    if t: a('s_add_u32 s70, s70, 1024'); a('s_cmp_eq_u32 s70, 10240'); a('s_cselect_b32 s70, 0, s70')
    a(f's_or_b32 s{PT_[t]}, s70, s71'); a(f's_mul_i32 s{GT_[t]}, s70, {8*D*2//1024}')
dma_loop('L_ldcl', 10, 8, lambda t: t & 1, 128)
a('L_ldx:')
a('v_lshrrev_b32 v1, 3, v0')
a('v_and_b32 v2, 7, v0')
a('v_lshrrev_b32 v3, 1, v1')
a('v_xor_b32 v2, v2, v3')
a('v_lshlrev_b32 v2, 4, v2')
a('v_lshrrev_b32 v3, 2, v1'); a('v_and_b32 v6, 3, v1'); a('v_lshl_add_u32 v3, v6, 2, v3')
a('v_lshlrev_b32 v3, 7, v3'); a('v_add_u32 v3, s28, v3')
a(f'v_mul_u32_u24 v3, {D*2}, v3')
a('v_add_u32 v4, v2, v3')
a('v_xor_b32 v5, 64, v4'); a(f'v_add_u32 v5, {256*D*2}, v5')
a('s_lshl_b32 s70, s33, 12')
for t in range(0, 16, 2):
    if t: a('s_add_u32 s70, s70, 2048'); a('s_and_b32 s70, s70, 0x3c00')
    a(f's_or_b32 s{PT_[t]}, s70, 0x8000'); a(f's_or_b32 s{PT_[t+1]}, s70, 0x8400')
    a(f's_mul_i32 s{GT_[t]}, s70, {16*D*2//2048}'); a(f's_mov_b32 s{GT_[t+1]}, s{GT_[t]}')
dma_loop('L_ldxl', 16, 4, lambda t: t & 1, 128)

P2ACC = 176; P2W_R = 56; P2H = 8
def p2_setup():
    a('v_lshlrev_b32 v1, 4, v0')
    a('s_mul_i32 s70, s38, 48'); a('s_mul_i32 s71, s44, 12'); a('s_add_u32 s70, s70, s71')
    a(f's_mul_i32 s70, s70, 5120'); a(f's_add_u32 s70, s70, {WS_WDT}')
    a(f's_mul_i32 s73, s44, {P2W}')
def kidx(step):
    a(f's_add_u32 s72, s39, {step}'); a('s_cmp_ge_u32 s72, 12'); a('s_cselect_b32 s71, 12, 0'); a('s_sub_u32 s72, s72, s71')
def wdt_reg(step):
    kidx(step)
    a('s_mul_i32 s72, s72, 5120'); a('s_add_u32 s72, s72, s70')
    for ei in range(5):
        r = P2W_R + 20*step + 4*ei
        if ei == 4: a('s_add_u32 s72, s72, 4096')
        a(f'buffer_load_dwordx4 v[{r}:{r+3}], v1, {WSRD}, s72 offen offset:{(ei % 4)*1024} {LDW}')
def wdt_lds(step):
    kidx(step)
    a('s_mul_i32 s72, s72, 5120'); a('s_add_u32 s72, s72, s70')
    for ei in range(5):
        a(f's_add_u32 m0, s73, {P2STEP[step-6] + ei*1024}')
        if ei: a('s_add_u32 s72, s72, 1024')
        else: a('s_nop 0')
        a(f'buffer_load_dwordx4 v1, {WSRD}, s72 offen {LDW} lds')
WORDER = {0: [[], [], [], []], 1: [[0, 1], [], [], []], 2: [[], [], [], [0, 1]], 3: [[], [], [0, 1], []], 4: [[], [0, 1], [], [2]]}[WMODE]
WLATE = [x for x in range(6) if not any(x in w for w in WORDER)]
POLLW = {0: 6, 1: 2, 2: 5, 3: 4, 4: 3}[WMODE]
NLATE = opt('nlate', 4)
def read_nonce(v):
    a(f'v_mov_b32 v{v}, {L_NON}'); a(f'ds_read_b32 v{v}, v{v}'); a('s_waitcnt lgkmcnt(0)'); a(f'v_readfirstlane_b32 s43, v{v}')
def final_addr(tau_off, d4, d5, d11, t):
    v4, v5, v6, v7, v8, v9, v10 = d4, d5, t, t+1, t+2, t+3, t+4
    a('s_lshl_b32 s66, s3, 6'); a(f's_add_u32 s66, s66, {tau_off}')
    a(f'v_add_u32 v{v4}, s66, v0')
    a(f'v_mul_u32_u24 v{v5}, 6554, v{v4}'); a(f'v_lshrrev_b32 v{v5}, 16, v{v5}')
    a(f'v_mul_u32_u24 v{v6}, 10, v{v5}'); a(f'v_sub_u32 v{v6}, v{v4}, v{v6}')
    a(f'v_lshrrev_b32 v{v7}, 4, v{v5}'); a(f'v_and_b32 v{v5}, 15, v{v5}')
    a(f'v_lshrrev_b32 v{v9}, 1, v{v6}')
    a(f'v_mov_b32 v{v10}, {PT[0]}'); a(f'v_mov_b32 v{d11}, {ST[0]}')
    for e in range(1, 5):
        a(f'v_cmp_eq_u32 vcc, {e}, v{v9}'); a(f'v_mov_b32 v{t+5}, {PT[e]}'); a(f'v_mov_b32 v{t+6}, {ST[e]}')
        a(f'v_cndmask_b32 v{v10}, v{v10}, v{t+5}, vcc'); a(f'v_cndmask_b32 v{d11}, v{d11}, v{t+6}, vcc')
    a(f'v_and_b32 v{v8}, 1, v{v6}'); a(f'v_mul_u32_u24 v{v4}, {2*PQ}, v{v8}')
    a(f'v_mul_u32_u24 v{v8}, {PN}, v{v7}'); a(f'v_add_u32 v{v4}, v{v4}, v{v8}'); a(f'v_lshl_add_u32 v{v4}, v{v5}, 4, v{v4}')
    a(f'v_add_u32 v{d11}, v{d11}, v{v4}'); a(f'v_add_u32 v{v4}, v{v10}, v{v4}')
    a(f'v_lshrrev_b32 v{v8}, 2, v{v5}'); a(f'v_and_b32 v{v5}, 3, v{v5}'); a(f'v_lshl_add_u32 v{v5}, v{v5}, 2, v{v8}')
    a(f'v_lshlrev_b32 v{v5}, 3, v{v5}'); a(f'v_add_u32 v{v5}, v{v5}, v{v7}'); a(f'v_lshlrev_b32 v{v5}, 4, v{v5}')
    a('s_lshl_b32 s66, s37, 6'); a('s_add_u32 s66, s66, s36'); a(f'v_add_u32 v{v5}, s66, v{v5}')
    a(f'v_mul_u32_u24 v{v5}, {D*2}, v{v5}'); a(f'v_lshl_add_u32 v{v5}, v{v6}, 4, v{v5}'); a('s_mul_i32 s66, s38, 160'); a(f'v_add_u32 v{v5}, s66, v{v5}')

a('L_p2pre:')
for i in range(1, 5): a(f's_cmp_eq_u32 s47, {W0+i}'); a(f's_cbranch_scc1 L_p2pre{i}')
p2_setup()
for i in range(4):
    if i: a(f'L_p2pre{i}:')
    for st in WORDER[i]: wdt_reg(st)
    a('s_setpc_b64 s[74:75]')
a('L_p2pre4:')
a('s_waitcnt vmcnt(0)')
lds_arrive(12, 2)
read_nonce(2)
a('L_p2join:')
tick(7, 27)
for st in WLATE: wdt_reg(st)
a('s_cmp_eq_u32 s35, 0')
a('s_cbranch_scc1 L_p2nz')
lds_wait('L_zc', 8, 4)
a('L_p2nz:')
for st in range(6, 8): wdt_lds(st)
if NLATE < 4:
    lds_wait('L_c8', 16, 4)
    for st in range(8, 12 - max(NLATE, 2)): wdt_lds(st)
if NLATE < 2:
    lds_wait('L_c9', 20, 4)
    for st in range(10, 12): wdt_lds(st)
tick(7, 28)
a(f'v_add_u32 v2, s73, v1')
a(f'v_add_u32 v3, {2*STG}, v2')
a('v_min_u32 v4, 5, v0'); a('v_lshrrev_b32 v5, 1, v4'); a('v_and_b32 v4, 1, v4'); a('v_lshlrev_b32 v4, 2, v4'); a('v_lshl_add_u32 v6, v5, 4, v4')
a('s_lshl_b32 s76, s36, 8'); a('s_mul_i32 s77, s44, 48'); a('s_add_u32 s76, s76, s77'); a('s_lshl_b32 s77, s37, 3'); a('s_add_u32 s76, s76, s77'); a(f's_add_u32 s76, s76, {WS_FH}')
a('s_lshl_b32 s74, s36, 3'); a('s_lshl_b32 s75, s37, 2'); a('s_add_u32 s74, s74, s75')
a('s_mul_i32 s74, s74, 48'); a('s_mul_i32 s75, s44, 12'); a('s_add_u32 s74, s74, s75'); a('s_lshl_b32 s74, s74, 10')
for i in range(80): a(f'v_mov_b32 v{P2ACC+i}, 0')
lds_wait('L_own', 0, 4)
tick(7, 29)
stamp(2)
for st in range(12 - NLATE, 12): wdt_lds(st)
tick(7, 32)
def hload(step):
    kidx(step)
    a('s_lshl_b32 s72, s72, 10'); a(f's_add_u32 s72, s72, s74')
    for ni in range(4):
        r = P2H + 16*(step % 3) + 4*ni
        if ni: a(f's_add_u32 s72, s72, {48*1024}')
        a(f'buffer_load_dwordx4 v[{r}:{r+3}], v1, {HSRD}, s72 offen {LDH}')
spin_begin('L_pollh')
a(f'buffer_load_dword v4, v6, s[12:15], s76 offen sc1')
a('s_waitcnt vmcnt(0)')
a(f'v_cmp_ne_u32 vcc, s43, v4')
a('s_cmp_eq_u64 vcc, 0')
spin_end('L_pollh')
stamp(3)
tick(7, 33)
for st in range(3): hload(st)
a('v_and_b32 v5, 15, v0'); a('v_lshrrev_b32 v4, 4, v0')
a(f'v_mul_u32_u24 v4, {PQ}, v4'); a('v_lshl_add_u32 v5, v5, 4, v4'); a('v_add_u32 v5, s73, v5'); a(f'v_add_u32 v6, {2*STG}, v5')
def pwrite(ei):
    return [f'ds_write_b128 v{5 if PT[ei] < 2*STG else 6}, v[{P2ACC+16*ei+4*ni}:{P2ACC+16*ei+4*ni+3}] offset:{PT[ei] + ni*PN - (0 if PT[ei] < 2*STG else 2*STG)}' for ni in range(4)]
for st in range(12):
    rem = min(2, 11 - st)
    a(f's_waitcnt vmcnt({4*rem})' + (' lgkmcnt(0)' if st >= 6 else ''))
    tick(7, 36 + st)
    hb = P2H + 16*(st % 3)
    w0 = P2W_R + 20*(st % 6)
    for ei in range(5):
        for ni in (range(4) if ei % 2 == 0 else range(3, -1, -1)):
            t = P2ACC + 16*ei + 4*ni
            h = hb + 4*ni
            a(f'v_mfma_f32_16x16x32_bf16 v[{t}:{t+3}], v[{w0+4*ei}:{w0+4*ei+3}], v[{h}:{h+3}], v[{t}:{t+3}]')
        if st == 11 and ei >= 2:
            for w in pwrite(ei - 2): a(w)
    if st < 9: hload(st + 3)
    if st < 6:
        for ei in range(5):
            o = P2STEP[st] + ei*1024
            a(f'ds_read_b128 v[{w0+4*ei}:{w0+4*ei+3}], v{2 if o < 2*STG else 3} offset:{o if o < 2*STG else o - 2*STG}')
for w in pwrite(3): a(w)
a('s_nop 3')
for w in pwrite(4): a(w)
stamp(4)
tick(7, 48)
a('s_waitcnt lgkmcnt(0)')
a('s_barrier')
tick_dump(7, 4)
a('s_branch L_fin2')

VB0, VB1 = 128, 144
def p2h_setup():
    a('s_cmp_ge_u32 s38, 4'); a('s_cselect_b32 s55, 1, 0')
    a('s_sub_u32 s67, 16, s36'); a('s_xor_b32 s68, s37, 1')
    a('s_cmp_eq_u32 s55, 1')
    a('s_cselect_b32 s67, s67, s36'); a('s_cselect_b32 s68, s68, s37')
    a('s_and_b32 s60, s67, 3'); a('s_lshl_b32 s60, s60, 7'); a(f's_add_u32 s60, s60, {WS_FV}')
    a('s_lshl_b32 s67, s67, 1'); a('s_add_u32 s67, s67, s68'); a('s_mul_i32 s67, s67, 5120'); a(f's_add_u32 s56, s67, {WS_V}')
    a('s_lshl_b32 s57, s55, 9'); a('s_sub_u32 s57, 256, s57')
def fv_addr(v, t):
    a('s_sub_u32 s66, 7, s38'); a('s_sub_u32 s67, s38, 1'); a('s_max_i32 s67, s67, 0')
    a('s_cmp_ge_u32 s38, 4'); a('s_cselect_b32 s67, s66, s67'); a('s_cselect_b32 s66, s66, s38')
    a(f'v_mov_b32 v{v}, s66'); a(f'v_mov_b32 v{t}, s67'); a(f'v_bfe_u32 v{t+1}, v0, 4, 1'); a(f'v_cmp_eq_u32 vcc, 0, v{t+1}'); a(f'v_and_b32 v{t+1}, 15, v0')
    a(f'v_cndmask_b32 v{v}, v{t}, v{v}, vcc'); a(f'v_lshlrev_b32 v{v}, 9, v{v}'); a(f'v_lshl_add_u32 v{v}, v{t+1}, 2, v{v}')
def pre_loop():
    for r in range(3):
        final_addr(256*r, FA[3*r], FA[3*r+1], FA[3*r+2], 40)
    a('s_cmp_ge_u32 s3, 2'); a('s_cselect_b32 s66, -1, 0'); a(f'v_or_b32 v{FA[7]}, s66, v{FA[7]}')
    fv_addr(VFL, 40)
    a('s_mul_i32 s66, s38, 80'); a('v_add_u32 v40, s66, v3')
    a('v_add_u32 v41, -1, v40'); a('v_sub_u32 v42, 639, v40')
    a('s_cmp_eq_u32 s55, 1'); a('s_cselect_b64 vcc, -1, 0')
    a(f'v_mul_u32_u24 v43, {4*17*10240}, v2')
    a('v_cndmask_b32 v40, v41, v42, vcc')
    a('v_lshl_add_u32 v43, v40, 4, v43')
    a('s_mul_i32 s66, s3, s57'); a(f'v_add_u32 v{VA0}, s66, v43')
    a('s_lshl_b32 s66, s57, 2'); a(f'v_add_u32 v{VA4}, s66, v43')
    a('s_lshl_b32 s66, s3, 4'); a('v_add_u32 v40, s66, v40')
    a('v_cmp_gt_i32 vcc, 0, v40'); a('v_mov_b32 v41, 0x7fffffff'); a('s_nop 0')
    a(f'v_cndmask_b32 v{VA0}, v{VA0}, v41, vcc')
def pre_epilogue():
    for r in range(3): a(f'buffer_load_dwordx4 v[{XR[r]}:{XR[r]+3}], v{FA[3*r+1]}, s[4:7], 0 offen')
def v_loads():
    L = a.label('L_vl')
    a('s_mov_b32 s72, s56')
    for i in range(4):
        a(f'buffer_load_dwordx4 v[{VB0+4*i}:{VB0+3+4*i}], v{VA0}, s[12:15], s72 offen {LDH}')
        if i < 3: a(f's_add_u32 s72, s72, {17*10240}')
    a('s_cmp_lg_u32 s3, 0'); a(f's_cbranch_scc1 {L}')
    a('s_mov_b32 s72, s56')
    for i in range(4):
        a(f'buffer_load_dwordx4 v[{VB1+4*i}:{VB1+3+4*i}], v{VA4}, s[12:15], s72 offen {LDH}')
        if i < 3: a(f's_add_u32 s72, s72, {17*10240}')
    a(f'{L}:')

a('L_aux:')
AB = 248
a('v_mov_b32 v1, 0'); a(f'v_mov_b32 v3, {L_CNT}')
a('s_mov_b64 exec, 1')
a('s_cmp_lg_u32 s2, 0'); a('s_cbranch_scc1 L_aux_n0')
a('s_memrealtime s[66:67]'); a('s_waitcnt lgkmcnt(0)'); a('s_or_b32 s66, s66, 1'); a('v_mov_b32 v2, s66')
a('buffer_store_dword v2, v1, s[24:27], 0 offen sc1')
a('L_aux_n0:')
[a(f'ds_write_b32 v3, v1 offset:{4*i}') for i in range(8)]
a('s_mov_b64 exec, -1')
if CODEPF:
    a('s_getpc_b64 s[66:67]')
    a('L_pcref:')
    a(f's_sub_u32 s66, s66, L_pcref-{KNAME}'); a('s_subb_u32 s67, s67, 0')
    a('s_lshl_b32 s68, s41, 3')
    a('v_and_b32 v4, 7, v0'); a('v_add_u32 v4, s68, v4'); a('v_lshlrev_b32 v4, 7, v4')
    a(f'v_min_u32 v4, L_done-{KNAME}, v4')
    a('s_mov_b64 exec, 0xff')
    a(f'global_load_dword v{AB+7}, v4, s[66:67]')
    a('s_mov_b64 exec, -1')
for i in range(40, 56): a(f'v_mov_b32 v{i}, 0')
a(f'v_lshlrev_b32 v{AB}, 4, v0'); a('s_lshl_b32 s66, s33, 12'); a('s_add_u32 s66, s66, 32768'); a(f'v_add_u32 v{AB}, s66, v{AB}')
a('v_lshrrev_b32 v4, 2, v0'); a('v_and_b32 v5, 3, v4'); a('v_bfe_u32 v6, v4, 3, 1'); a('v_lshl_or_b32 v5, v6, 2, v5'); a('v_lshlrev_b32 v5, 1, v5')
a('s_and_b32 s66, s32, 3'); a('s_lshl_b32 s66, s66, 2')
a('v_and_b32 v6, 3, v0'); a('v_add_u32 v6, s66, v6'); a('v_xor_b32 v5, v5, v6')
a('v_lshlrev_b32 v4, 8, v4'); a(f'v_lshl_add_u32 v{AB+1}, v5, 4, v4')
a('s_lshr_b32 s66, s32, 2'); a('s_lshl_b32 s66, s66, 14'); a(f'v_add_u32 v{AB+1}, s66, v{AB+1}')
a('s_cmp_eq_u32 s35, 0'); a('s_cbranch_scc1 L_aux_w')
a('s_and_b32 s67, s32, 3'); a(f's_mul_i32 s67, s67, {20*128}'); a('s_add_u32 s66, s66, s67')
a(f'v_lshlrev_b32 v{AB+1}, 4, v0'); a(f'v_add_u32 v{AB+1}, s66, v{AB+1}')
a('L_aux_w:')
a('s_and_b32 s45, s30, 1'); a('s_sub_u32 s45, 3, s45')
a('s_mov_b32 s46, 0')
a('s_lshl_b32 s76, s28, 2'); a('s_add_u32 s76, s76, s30'); a('s_lshl_b32 s76, s76, 11'); a('s_lshl_b32 s67, s33, 9'); a('s_add_u32 s76, s76, s67'); a(f's_add_u32 s76, s76, {WS_XP}')
a('s_lshl_b32 s77, s29, 1'); a('s_add_u32 s77, s77, s31'); a('s_lshl_b32 s77, s77, 11'); a('s_lshr_b32 s67, s32, 2'); a('s_lshl_b32 s67, s67, 10'); a('s_add_u32 s77, s77, s67'); a(f's_add_u32 s77, s77, {WS_WP}')
a('s_and_b32 s67, s32, 3'); a('s_cmp_eq_u32 s35, 1'); a('s_cselect_b32 s68, 20, 32'); a('s_mul_i32 s67, s67, s68'); a('s_lshl_b32 s67, s67, 3'); a('s_add_u32 s77, s77, s67')
a(f'v_min_u32 v{AB+6}, 47, v0'); a(f'v_lshlrev_b32 v{AB+6}, 2, v{AB+6}')
a('s_mul_i32 s74, s38, 80'); a('s_add_u32 s75, s74, 79'); a('s_lshr_b32 s74, s74, 7'); a('s_lshr_b32 s75, s75, 7')
a('s_lshl_b32 s74, s74, 8'); a('s_lshl_b32 s75, s75, 8'); a(f's_add_u32 s74, s74, {WS_FW}'); a(f's_add_u32 s75, s75, {WS_FW}')
a('s_mov_b32 s47, 0')
a('s_waitcnt lgkmcnt(0)')
a('L_aux_l:')
tick(7, ('s47', 0))
a('s_barrier')
tick(7, ('s47', 16))
a(f'v_add_u32 v{AB+2}, s46, v{AB}'); a(f'v_add_u32 v{AB+3}, s46, v{AB+1}')
for i in range(4): a(f'ds_read_b128 v[{8+4*i}:{11+4*i}], v{AB+2} offset:{i*1024}')
a(f's_cmp_lg_u32 s47, {NONIT-1}'); a('s_cbranch_scc1 L_aux_nb')
a('s_mov_b64 exec, 1'); a('buffer_load_dword v2, v1, s[24:27], 0 offen sc1'); a('s_mov_b64 exec, -1')
a('L_aux_nb:')
a(f's_cmp_lg_u32 s47, {NONIT}'); a('s_cbranch_scc1 L_aux_na')
a('s_mov_b32 s79, 0')
a('L_non:')
a('s_waitcnt vmcnt(0)')
a('v_readfirstlane_b32 s43, v2')
a('s_cmp_lg_u32 s43, 0'); a('s_cbranch_scc1 L_non_ok')
a('s_add_u32 s79, s79, 1'); a(f's_cmp_ge_u32 s79, {SPINMAX}'); a('s_cbranch_scc1 L_non_ok')
a('s_sleep 4')
a('s_mov_b64 exec, 1'); a('buffer_load_dword v2, v1, s[24:27], 0 offen sc1'); a('s_mov_b64 exec, -1')
a('s_branch L_non')
a('L_non_ok:')
a('v_mov_b32 v2, s43'); a(f'v_mov_b32 v3, {L_NON}'); a('ds_write_b32 v3, v2')
a('s_cmp_ge_u32 s2, 240'); a('s_cbranch_scc1 L_aux_na')
a(f's_mul_hi_u32 s66, s2, {-(-(1<<32)//5)}'); a('s_mul_i32 s67, s66, 5'); a('s_sub_u32 s67, s2, s67')
a('s_lshl_b32 s67, s67, 8'); a('s_lshl_b32 s66, s66, 2'); a('s_add_u32 s66, s66, s67'); a(f's_add_u32 s66, s66, {WS_FW}')
a('s_mov_b64 exec, 1'); a('buffer_store_dword v2, v1, s[12:15], s66 offen sc1'); a('s_mov_b64 exec, -1')
a('L_aux_na:')
def fw_ask():
    a(f'buffer_load_dword v{AB+2}, v{AB+6}, s[12:15], s74 offen sc1'); a(f'buffer_load_dword v{AB+3}, v{AB+6}, s[12:15], s75 offen sc1')
def fw_ask2():
    a(f'buffer_load_dword v62, v{AB+6}, s[12:15], s74 offen sc1'); a(f'buffer_load_dword v63, v{AB+6}, s[12:15], s75 offen sc1')
def fw_check():
    a('s_mov_b32 s79, 0')
    a('L_pollw:')
    a('s_waitcnt vmcnt(0)')
    a('v_cmp_ne_u32 vcc, s43, v62'); a('v_cmp_ne_u32 s[66:67], s43, v63'); a('s_or_b64 vcc, vcc, s[66:67]')
    a('s_cbranch_scc0 L_pollw_ok')
    a('s_add_u32 s79, s79, 1'); a(f's_cmp_ge_u32 s79, {SPINMAX}'); a('s_cbranch_scc1 L_pollw_ok')
    a('s_sleep 4')
    fw_ask2()
    a('s_branch L_pollw')
    a('L_pollw_ok:')
if POLLW <= 4:
    a(f's_cmp_lg_u32 s47, {POLLW}'); a('s_cbranch_scc1 L_aux_np')
    fw_ask2()
    a('L_aux_np:')
a('s_cmp_lg_u32 s47, 4'); a('s_cbranch_scc1 L_aux_nq')
p2_setup()
for st in WORDER[0]: wdt_reg(st)
a('L_aux_nq:')
T0, T1 = AB + 4, AB + 5
a('s_cmp_eq_u32 s35, 1'); a('s_cbranch_scc1 L_aux_c')
for i in range(4): a(f'ds_read_b128 v[{24+4*i}:{27+4*i}], v{AB+3} offset:{i*4096}')
a('s_waitcnt lgkmcnt(0)')
for i in range(4):
    for d in range(4):
        r = 24 + 4*i + d
        a(f'v_lshlrev_b32 v{T0}, 16, v{r}'); a(f'v_and_b32 v{T1}, 0xffff0000, v{r}')
        a(f'v_add_f32 v{48+2*d}, v{48+2*d}, v{T0}'); a(f'v_add_f32 v{49+2*d}, v{49+2*d}, v{T1}')
a('s_branch L_aux_x')
a('L_aux_c:')
for i in range(3): a(f'ds_read_b128 v[{24+4*i}:{27+4*i}], v{AB+3} offset:{i*1024}')
a('s_waitcnt lgkmcnt(0)')
for i in range(3):
    for d in range(4):
        r = 24 + 4*i + d
        a(f'v_lshlrev_b32 v{T0}, 16, v{r}'); a(f'v_and_b32 v{T1}, 0xffff0000, v{r}')
        a(f'v_add_f32 v{48+2*i}, v{48+2*i}, v{T0}'); a(f'v_add_f32 v{49+2*i}, v{49+2*i}, v{T1}')
a('L_aux_x:')
a('s_cmp_ge_u32 s47, s45'); a('s_cbranch_scc1 L_aux_nx')
for i in range(4):
    for d in range(4):
        r = 8 + 4*i + d
        a(f'v_lshlrev_b32 v{T0}, 16, v{r}'); a(f'v_and_b32 v{T1}, 0xffff0000, v{r}')
        a(f'v_add_f32 v{40+2*i}, v{40+2*i}, v{T0}'); a(f'v_fmac_f32 v{41+2*i}, v{T0}, v{T0}')
        a(f'v_add_f32 v{40+2*i}, v{40+2*i}, v{T1}'); a(f'v_fmac_f32 v{41+2*i}, v{T1}, v{T1}')
a('L_aux_nx:')
if POLLW + 1 <= 4:
    a(f's_cmp_lg_u32 s47, {POLLW+1}'); a('s_cbranch_scc1 L_pollw_ok')
    fw_check()
a(f's_add_u32 s46, s46, {STG}'); a(f's_cmp_eq_u32 s46, {3*STG}'); a('s_cselect_b32 s46, 0, s46')
a('s_add_u32 s47, s47, 1'); a('s_cmp_lt_u32 s47, 5'); a('s_cbranch_scc1 L_aux_l')
tick(7, 5)
a('s_barrier')
tick(7, 21)
if POLLW == 5: fw_ask2()
if POLLW + 1 == 5: fw_check()
def red8(regs):
    for mod in ('quad_perm:[1,0,3,2]', 'quad_perm:[2,3,0,1]', 'row_half_mirror'):
        a('s_nop 1')
        for r in regs: a(f'v_add_f32_dpp v{r}, v{r}, v{r} {mod} row_mask:0xf bank_mask:0xf')
red8(range(40, 48))
for i in range(4):
    a(f'v_mov_b32 v{8+4*i}, v{40+2*i}'); a(f'v_mov_b32 v{9+4*i}, v{41+2*i}'); a(f'v_mov_b32 v{10+4*i}, s43'); a(f'v_mov_b32 v{11+4*i}, s43')
a('v_lshlrev_b32 v4, 1, v0')
a('s_mov_b32 exec_lo, 0x01010101'); a('s_mov_b32 exec_hi, 0x01010101')
for i in range(4): a(f'buffer_store_dwordx4 v[{8+4*i}:{11+4*i}], v4, s[12:15], s76 offen offset:{i*128} sc1')
a('s_mov_b64 exec, -1')
a('s_cmp_eq_u32 s35, 1'); a('s_cbranch_scc1 L_aux_pc')
for mod in ('row_ror:4', 'row_ror:8'):
    a('s_nop 1')
    for r in range(48, 56): a(f'v_add_f32_dpp v{r}, v{r}, v{r} {mod} row_mask:0xf bank_mask:0xf')
for sw in ('v_permlane16_swap_b32', 'v_permlane32_swap_b32'):
    for r in range(48, 56): a(f'v_mov_b32 v{r-24}, v{r}')
    a('s_nop 1')
    for r in range(48, 56): a(f'{sw} v{r}, v{r-24}')
    a('s_nop 1')
    for r in range(48, 56): a(f'v_add_f32 v{r}, v{r}, v{r-24}')
for d in range(4):
    a(f'v_cmp_eq_u32 vcc, {d}, v6') if d else a('v_lshrrev_b32 v6, 2, v0')
    if d == 0:
        a('v_mov_b32 v24, v48'); a('v_mov_b32 v26, v49')
    else:
        a('s_nop 1'); a(f'v_cndmask_b32 v24, v24, v{48+2*d}, vcc'); a(f'v_cndmask_b32 v26, v26, v{49+2*d}, vcc')
a('v_mov_b32 v25, s43'); a('v_mov_b32 v27, s43')
a('v_and_b32 v4, 3, v0'); a('v_lshlrev_b32 v4, 6, v4'); a('v_lshl_add_u32 v4, v6, 4, v4')
a('s_mov_b64 exec, 0xffff')
a('buffer_store_dwordx4 v[24:27], v4, s[12:15], s77 offen sc1')
a('s_branch L_aux_pub')
a('L_aux_pc:')
for i in range(3): a(f'v_add_f32 v{48+i*2}, v{48+i*2}, v{49+i*2}')
red8([48, 50, 52])
for i in range(3): a(f'v_mov_b32 v{49+i*2}, s43')
a('s_mov_b32 exec_lo, 0x01010101'); a('s_mov_b32 exec_hi, 0x01010101')
a('buffer_store_dwordx2 v[48:49], v0, s[12:15], s77 offen sc1')
a('buffer_store_dwordx2 v[50:51], v0, s[12:15], s77 offen offset:64 sc1')
a('s_mov_b32 exec_hi, 0')
a('buffer_store_dwordx2 v[52:53], v0, s[12:15], s77 offen offset:128 sc1')
a('L_aux_pub:')
a('s_mov_b64 exec, -1')
for st in WORDER[1]: wdt_reg(st)
tick(7, 6)
a('s_barrier')
tick(7, 22)
if POLLW == 6: fw_ask2()
if POLLW + 1 == 6: fw_check()
for st in WORDER[2]: wdt_reg(st)
tick(7, 7)
a('s_barrier')
tick(7, 23)
if POLLW + 1 == 7: fw_check()
a('s_lshl_b32 s66, s28, 13'); a(f's_add_u32 s66, s66, {WS_XP}'); a('s_add_u32 s68, s66, 4096')
a('s_lshl_b32 s67, s29, 12'); a(f's_add_u32 s67, s67, {WS_WP}')
def gather():
    for i in range(8): a(f'buffer_load_dwordx4 v[{8+4*i}:{11+4*i}], v1, s[12:15], s{66 if i < 4 else 68} offen offset:{(i%4)*1024} sc1')
    for i in range(4): a(f'buffer_load_dwordx4 v[{40+4*i}:{43+4*i}], v1, s[12:15], s67 offen offset:{i*1024} sc1')
gather()
for st in WORDER[3]: wdt_reg(st)
a('s_cmp_eq_u32 s35, 1'); a('s_cselect_b32 s69, 40, 64'); a('v_cmp_gt_u32 s[76:77], s69, v0')
tick(7, 8)
a('s_barrier')
tick(7, 24)
a('s_mov_b32 s79, 0')
a(f's_waitcnt vmcnt({5*len(WORDER[3])})')
a('L_gchk:')
a('v_xor_b32 v2, s43, v10')
for i in range(1, 8): a(f'v_xor_b32 v3, s43, v{10+4*i}'); a('v_or_b32 v2, v2, v3')
a('v_xor_b32 v4, s43, v41')
for r in (43, 45, 47, 49, 51, 53, 55): a(f'v_xor_b32 v3, s43, v{r}'); a('v_or_b32 v4, v4, v3')
a('v_cmp_ne_u32 vcc, 0, v4'); a('s_and_b64 s[74:75], vcc, s[76:77]')
a('v_cmp_ne_u32 vcc, 0, v2'); a('s_or_b64 s[74:75], s[74:75], vcc')
a('s_cbranch_scc0 L_gok')
a('s_add_u32 s79, s79, 1'); a(f's_cmp_ge_u32 s79, {SPINMAX}'); a('s_cbranch_scc1 L_gok')
a('s_sleep 4')
gather()
a('s_waitcnt vmcnt(0)')
a('s_branch L_gchk')
a('L_gok:')
tick(7, 9)
for h in range(2):
    for d in range(2):
        b = 8 + 4*h + d
        a(f'v_add_f32 v{b}, v{b}, v{b+8}'); a(f'v_add_f32 v{b+16}, v{b+16}, v{b+24}'); a(f'v_add_f32 v{b}, v{b}, v{b+16}')
    a(f'v_add_f32 v{40+4*h}, v{40+4*h}, v{48+4*h}'); a(f'v_add_f32 v{41+4*h}, v{42+4*h}, v{50+4*h}')
a('v_lshlrev_b32 v2, 3, v0'); a(f'v_add_u32 v2, {L_CS}, v2')
a('ds_write_b64 v2, v[40:41]'); a('ds_write_b64 v2, v[44:45] offset:512')
for (s_, q_, ro, mo) in ((8, 9, 16, 18), (12, 13, 17, 19)):
    a(f'v_mul_f32 v{mo}, {1.0/D!r}, v{s_}')
    a(f'v_mul_f32 v{q_}, {1.0/D!r}, v{q_}')
    a(f'v_fma_f32 v{q_}, -v{mo}, v{mo}, v{q_}')
    a(f'v_max_f32 v{q_}, 0, v{q_}')
    rbf(mo); rbf(q_)
    a(f'v_add_f32 v{q_}, 0x3727c5ac, v{q_}')
    rbf(q_)
    a(f'v_sqrt_f32 v{q_}, v{q_}'); a('s_nop 0')
    rbf(q_)
    a(f'v_rcp_f32 v{ro}, v{q_}')
a('v_lshlrev_b32 v2, 2, v0'); a(f'v_add_u32 v2, {L_R}, v2')
a('ds_write_b32 v2, v16'); a('ds_write_b32 v2, v17 offset:256'); a('ds_write_b32 v2, v18 offset:512'); a('ds_write_b32 v2, v19 offset:768')
lds_arrive(24, 2)
tick(7, 10)
p2h_setup()
fv_addr(4, 5)
a('buffer_load_dword v5, v4, s[12:15], s60 offen sc1')
a('s_waitcnt vmcnt(0)')
a('v_cmp_ne_u32 vcc, s43, v5'); a('s_cmp_eq_u64 vcc, 0'); a('s_cbranch_scc0 L_p2join')
lds_arrive(28, 2)
a('s_branch L_p2join')

a('L_compute:')
a(f's_mov_b32 s50, {(-2*STG) & 0xffffffff}'); a(f's_mov_b32 s51, {STG}')
a('s_mov_b32 s46, 0'); a('s_mov_b32 s47, 0')
p2h_setup()
a('v_lshrrev_b32 v2, 4, v0')
a('v_and_b32 v3, 15, v0')
a('v_bfe_u32 v6, v0, 1, 3'); a('v_xor_b32 v6, v6, v2')
a('s_cmp_ge_u32 s2, 240')
a('s_cbranch_scc1 L_nowd')
a(f's_mul_hi_u32 s76, s2, {-(-(1<<32)//5)}'); a('s_mul_i32 s77, s76, 5'); a('s_sub_u32 s77, s2, s77')
a('v_lshrrev_b32 v36, 2, v0'); a('v_and_b32 v37, 3, v0')
a(f'v_mul_u32_u24 v38, {D*2}, v36'); a('v_lshl_add_u32 v38, v37, 4, v38')
a(f's_mul_i32 s68, s76, {32*D*2}'); a('s_lshl_b32 s69, s77, 8'); a('s_add_u32 s68, s68, s69'); a('s_lshl_b32 s69, s3, 6'); a('s_add_u32 s68, s68, s69')
a('s_lshl_b32 s70, s3, 11'); a(f's_add_u32 s70, s70, {L_WD}')
a('s_mov_b32 m0, s70'); a('s_nop 0')
a('buffer_load_dwordx4 v38, s[20:23], s68 offen lds')
a('s_add_u32 m0, s70, 1024'); a(f's_add_u32 s68, s68, {16*D*2}')
a('buffer_load_dwordx4 v38, s[20:23], s68 offen lds')
a('L_nowd:')
def wd_finish():
    L = a.label('L_wdf')
    a('s_cmp_ge_u32 s2, 240'); a(f's_cbranch_scc1 {L}')
    a('v_lshlrev_b32 v36, 6, v36'); a('v_lshl_add_u32 v36, v37, 3, v36'); a('v_add_u32 v36, s70, v36')
    a('v_lshlrev_b32 v37, 4, v0')
    a('s_lshl_b32 s77, s77, 3'); a('s_lshl_b32 s68, s3, 1'); a('s_add_u32 s77, s77, s68')
    a(f's_mul_i32 s76, s76, 5120'); a(f's_add_u32 s76, s76, {WS_WDT}')
    a('s_waitcnt vmcnt(0)')
    for e in range(2):
        for b in range(2):
            a(f'ds_read_b64_tr_b16 v[{48+4*e+2*b}:{49+4*e+2*b}], v36 offset:{32*e + 1024*b}')
    for e in range(2):
        a(f's_add_u32 s68, s77, {e}')
        a(f's_mul_hi_u32 s69, s68, {-(-(1<<32)//5)}')
        a('s_mul_i32 s70, s69, 5'); a('s_sub_u32 s70, s68, s70')
        a(f's_mul_i32 s69, s69, {48*5120}'); a('s_lshl_b32 s70, s70, 10')
        a('s_add_u32 s69, s69, s70'); a('s_add_u32 s69, s69, s76')
        a('s_waitcnt lgkmcnt(0)')
        a(f'buffer_store_dwordx4 v[{48+4*e}:{51+4*e}], v37, s[12:15], s69 offen sc1')
    a(f'{L}:')
pre_loop()
a('s_cmp_eq_u32 s35, 1')
a('s_cbranch_scc1 L_dft')
def interleave(M, R):
    out = []; R = list(R)
    for m in M:
        out.append(m)
        if R: out.append(R.pop(0))
    return out + R
tails = []
def mid_sync():
    L = a.label('L_ms')
    a('s_cmp_ge_u32 s47, 8'); a(f's_cbranch_scc1 {L}_t')
    a('s_barrier')
    a(f'{L}_b:')
    tails.append(L)
def emit_tails():
    for L in tails:
        a(f'{L}_t:')
        a('s_cmp_eq_u32 s47, 9'); a(f's_cbranch_scc1 {L}_9')
        lds_arrive(16, 14)
        lds_wait(f'{L}_w', 12, 14, 3)
        a(f's_branch {L}_b')
        a(f'{L}_9:')
        lds_arrive(20, 14)
        a(f's_branch {L}_b')
def slot_advance():
    a('s_add_u32 s46, s46, 1'); a('s_cmp_eq_u32 s46, 3'); a('s_cselect_b32 s42, s50, s51'); a('s_cselect_b32 s46, 0, s46')
ACC = 128
def T16(mat, mi, ni): return ACC + 64*mat + 16*mi + 4*ni
FR = 32
def fW(p, mat, mi): return FR + 48*p + 16*mat + 4*mi
def fX(p, ni): return FR + 48*p + 32 + 4*ni
AW, AX = 8, 12
a('s_and_b32 s44, s3, 1'); a('s_lshr_b32 s45, s3, 1')
a('v_bfe_u32 v7, v0, 2, 2')
a('v_lshl_add_u32 v4, v2, 3, v7'); a('v_lshlrev_b32 v4, 8, v4')
a('v_bfe_u32 v5, v0, 1, 1'); a('v_lshl_add_u32 v4, v5, 4, v4')
a('v_and_b32 v5, 1, v0'); a('v_lshl_add_u32 v4, v5, 3, v4')
a('v_and_b32 v5, 1, v2'); a('v_lshl_or_b32 v5, v5, 2, v7')
for mi in range(4):
    a('s_lshl_b32 s66, s44, 2'); a(f's_add_u32 s66, s66, {mi}')
    a('v_xor_b32 v7, s66, v5')
    a(f'v_lshl_add_u32 v{AW+mi}, v7, 5, v4')
a('s_lshl_b32 s66, s45, 13'); a('s_add_u32 s66, s66, 32768')
a('v_lshlrev_b32 v5, 7, v3'); a('v_add_u32 v5, s66, v5')
for ks in range(2):
    a(f'v_xor_b32 v7, {4*ks}, v6')
    a(f'v_lshl_add_u32 v{AX+ks}, v7, 4, v5')
for i in range(128): a(f'v_mov_b32 v{ACC+i}, 0')
def f_reads(p, ks):
    L = []
    def w(mat, mi):
        for b in range(2):
            L.append(f'ds_read_b64_tr_b16 v[{fW(p,mat,mi)+2*b}:{fW(p,mat,mi)+2*b+1}], v{AW+mi} offset:{mat*16384 + ks*8192 + b*1024}')
    w(0, 0)
    for ni in range(4): L.append(f'ds_read_b128 v[{fX(p,ni)}:{fX(p,ni)+3}], v{AX+ks} offset:{ni*2048}')
    for mat in range(2):
        for mi in range(4):
            if (mat, mi) != (0, 0): w(mat, mi)
    return L
def f_mfmas(p):
    L = []
    for i, (mat, mi) in enumerate([(mat, mi) for mat in range(2) for mi in range(4)]):
        for ni in (range(4) if i % 2 == 0 else range(3, -1, -1)):
            t = T16(mat, mi, ni)
            L.append(f'v_mfma_f32_16x16x32_bf16 v[{t}:{t+3}], v[{fW(p,mat,mi)}:{fW(p,mat,mi)+3}], v[{fX(p,ni)}:{fX(p,ni)+3}], v[{t}:{t+3}]')
    return L
wd_finish()
tick(7, 0)
a('s_barrier')
tick(7, 16)
stamp(1)
for r in f_reads(0, 0): a(r)
a('L_floop:')
a('s_waitcnt lgkmcnt(0)')
for ins in interleave(f_mfmas(0), f_reads(1, 1)): a(ins)
a('s_waitcnt vmcnt(0) lgkmcnt(0)')
tick(7, ('s47', 1))
mid_sync()
tick(7, ('s47', 17))
slot_advance()
for r in (AW, AX): a(f'v_add_u32 v{r}, s42, v{r}')
R = f_reads(0, 0)
R = R[:3] + [f'v_add_u32 v{r}, s42, v{r}' for r in (AW+1, AW+2, AW+3, AX+1)] + R[3:]
for ins in interleave(f_mfmas(1), R): a(ins)
a('s_add_u32 s47, s47, 1'); a('s_cmp_lt_u32 s47, 10'); a('s_cbranch_scc1 L_floop')
stamp(2)
a('s_waitcnt lgkmcnt(0)')
pre_epilogue()
lds_wait('L_fst', 24, 32, 1)
lds_wait('L_fc9', 20, 32)
read_nonce(32)
a('v_mov_b32 v8, s43'); a('v_mov_b32 v9, 0'); a(f'v_mov_b32 v10, {L_CNT}')
a('s_lshl_b32 s70, s28, 8'); a('s_lshl_b32 s71, s29, 4'); a('s_add_u32 s70, s70, s71'); a('s_lshl_b32 s71, s3, 2'); a('s_add_u32 s70, s70, s71'); a(f's_add_u32 s70, s70, {WS_FH}')
a('s_lshl_b32 s66, s45, 8'); a(f's_add_u32 s66, s66, {L_R}')
a('v_lshlrev_b32 v4, 2, v3'); a('v_add_u32 v4, s66, v4')
for ni in range(4):
    a(f'ds_read_b32 v{32+ni}, v4 offset:{64*ni}')
    a(f'ds_read_b32 v{36+ni}, v4 offset:{512 + 64*ni}')
a('s_lshl_b32 s66, s44, 8'); a(f's_add_u32 s66, s66, {L_CS}')
a('v_lshlrev_b32 v5, 4, v2'); a('v_add_u32 v5, s66, v5')
for mat in range(2):
    for mi in range(4):
        r = 64 + 16*mat + 4*mi
        a(f'ds_read_b128 v[{r}:{r+3}], v5 offset:{mat*512 + mi*64}')
a('v_lshlrev_b32 v1, 4, v0')
a('s_lshl_b32 s66, s28, 3'); a('s_lshl_b32 s67, s45, 2'); a('s_add_u32 s66, s66, s67'); a('s_mul_i32 s66, s66, 48')
a('s_lshl_b32 s67, s29, 2'); a('s_add_u32 s66, s66, s67'); a('s_lshl_b32 s67, s44, 1'); a('s_add_u32 s66, s66, s67'); a('s_lshl_b32 s66, s66, 10')
a('s_waitcnt lgkmcnt(8)')
for ni in range(4):
    c = 40 + 6*ni
    a(f'v_sub_f32 v{c}, 0, v{36+ni}')
    a(f'v_mul_f32 v{c+2}, {-1.4426950408889634!r}, v{32+ni}')
    a(f'v_mul_f32 v{c+4}, v{32+ni}, v{32+ni}')
for ni in range(4): a(f'v_rcp_f32 v{44+6*ni}, v{44+6*ni}')
a('s_waitcnt lgkmcnt(0)')
BC = 'op_sel_hi:[1,0,1]'
for ni in range(1, 4): a(f's_add_u32 s{66+ni}, s{65+ni}, {48*1024}')
for kp in range(2):
    if kp == 1:
        a('s_waitcnt lgkmcnt(0)'); a('v_readfirstlane_b32 s79, v11')
        a('s_cmp_lg_u32 s79, 1'); a('s_cbranch_scc1 L_fnov')
        v_loads()
        a('L_fnov:')
    for ni in range(4):
        if kp == 0 and ni == 3: a('ds_read_b32 v11, v10 offset:28')
        c = 40 + 6*ni
        seq = []
        prs = [(2*kp + h, d) for h in range(2) for d in (0, 2)]
        for n, (mi, d) in enumerate(prs):
            g = T16(0, mi, ni) + d; u = T16(1, mi, ni) + d
            a(f'v_pk_fma_f32 v[{g}:{g+1}], v[{64+4*mi+d}:{65+4*mi+d}], v[{c}:{c+1}], v[{g}:{g+1}] {BC}')
            a(f'v_pk_fma_f32 v[{u}:{u+1}], v[{80+4*mi+d}:{81+4*mi+d}], v[{c}:{c+1}], v[{u}:{u+1}] {BC}')
            a(f'v_pk_mul_f32 v[{96+2*n}:{97+2*n}], v[{g}:{g+1}], v[{c+2}:{c+3}] op_sel_hi:[1,0]')
        for n in range(8): a(f'v_exp_f32 v{96+n}, v{96+n}')
        for n, (mi, d) in enumerate(prs):
            g = T16(0, mi, ni) + d; u = T16(1, mi, ni) + d
            a(f'v_pk_mul_f32 v[{g}:{g+1}], v[{g}:{g+1}], v[{u}:{u+1}]')
            a(f'v_pk_fma_f32 v[{96+2*n}:{97+2*n}], v[{96+2*n}:{97+2*n}], v[{c+4}:{c+5}], v[{c+4}:{c+5}] op_sel_hi:[1,0,0]')
        for n in range(8): a(f'v_rcp_f32 v{96+n}, v{96+n}')
        a('s_nop 0')
        o = 104 + 4*ni
        for n, (mi, d) in enumerate(prs):
            g = T16(0, mi, ni) + d
            a(f'v_pk_mul_f32 v[{g}:{g+1}], v[{g}:{g+1}], v[{96+2*n}:{97+2*n}]')
        for n, (mi, d) in enumerate(prs):
            g = T16(0, mi, ni) + d
            a(f'v_cvt_pk_bf16_f32 v{o+n}, v{g}, v{g+1}')
        a(f'buffer_store_dwordx4 v[{o}:{o+3}], v1, s[12:15], s{66+ni} offen offset:{kp*1024} {STP}')
tick(7, 32)
stamp(3)
a('s_waitcnt vmcnt(0)'); a('s_mov_b64 exec, 1')
a('buffer_store_dword v8, v9, s[12:15], s70 offen sc1'); a('s_mov_b64 exec, -1')
tick_dump(7, 4)
a('s_branch L_helper')

a('L_dft:')
DACC = 176
def TD(part, mi, et): return DACC + 40*part + 20*mi + 4*et
DFR = 40
def dX(p, mi): return DFR + 48*p + 4*mi
def dC(p, part, et): return DFR + 48*p + 8 + 20*part + 4*et
DX, DC = 8, 10
FCOS, FSIN, FNS = 136, 144, 152
a('v_lshlrev_b32 v5, 7, v3')
a('s_lshl_b32 s66, s3, 12'); a('s_add_u32 s66, s66, 32768')
for ks in range(2):
    a(f'v_xor_b32 v7, {4*ks}, v6')
    a(f'v_lshl_add_u32 v{DC+ks}, v7, 4, v5')
    a(f'v_add_u32 v{DX+ks}, s66, v{DC+ks}')
for i in range(80): a(f'v_mov_b32 v{DACC+i}, 0')
a('v_lshrrev_b32 v12, 3, v3'); a('v_and_b32 v13, 7, v3'); a('v_lshlrev_b32 v13, 4, v13'); a('v_lshl_add_u32 v12, v12, 2, v13'); a('v_add_u32 v12, s3, v12')
a('v_lshlrev_b32 v13, 5, v2'); a('v_add_u32 v13, s28, v13'); a('v_cvt_f32_u32 v13, v13')
for mt in range(2):
    a(f'v_add_u32 v14, {8*mt}, v12'); a('v_cvt_f32_u32 v14, v14'); a(f'v_mul_f32 v14, {1.0/2048!r}, v14')
    for d in range(4):
        for h in range(2):
            a(f'v_add_f32 v{60+h}, {float(16*h + 128*d)!r}, v13')
            a(f'v_mul_f32 v{60+h}, v{60+h}, v14')
        a('v_cos_f32 v62, v60'); a('v_cos_f32 v63, v61'); a('v_sin_f32 v64, v60'); a('v_sin_f32 v65, v61')
        a(f'v_cvt_pk_bf16_f32 v{FCOS+4*mt+d}, v62, v63')
        a(f'v_cvt_pk_bf16_f32 v{FSIN+4*mt+d}, v64, v65')
        a(f'v_xor_b32 v{FNS+4*mt+d}, 0x80008000, v{FSIN+4*mt+d}')
def d_reads(p, ks):
    L = [f'ds_read_b128 v[{dX(p,mi)}:{dX(p,mi)+3}], v{DX+ks} offset:{mi*2048}' for mi in range(2)]
    for part in range(2):
        for et in range(5):
            L.append(f'ds_read_b128 v[{dC(p,part,et)}:{dC(p,part,et)+3}], v{DC+ks} offset:{part*16384 + et*2048}')
    return L
def d_mfmas(p):
    L = []
    i = 0
    for part in range(2):
        for et in range(5):
            for mi in ((0, 1) if i % 2 == 0 else (1, 0)):
                t = TD(part, mi, et)
                L.append(f'v_mfma_f32_16x16x32_bf16 v[{t}:{t+3}], v[{dX(p,mi)}:{dX(p,mi)+3}], v[{dC(p,part,et)}:{dC(p,part,et)+3}], v[{t}:{t+3}]')
            i += 1
    return L
wd_finish()
tick(7, 0)
a('s_barrier')
tick(7, 16)
stamp(1)
for r in d_reads(0, 0): a(r)
a('L_dloop:')
a('s_waitcnt lgkmcnt(0)')
for ins in interleave(d_mfmas(0), d_reads(1, 1)): a(ins)
a('s_waitcnt vmcnt(0) lgkmcnt(0)')
tick(7, ('s47', 1))
mid_sync()
tick(7, ('s47', 17))
slot_advance()
for r in (DX, DC): a(f'v_add_u32 v{r}, s42, v{r}')
R = d_reads(0, 0) + [f'v_add_u32 v{r}, s42, v{r}' for r in (DX+1, DC+1)]
for ins in interleave(d_mfmas(1), R): a(ins)
a('s_add_u32 s47, s47, 1'); a('s_cmp_lt_u32 s47, 10'); a('s_cbranch_scc1 L_dloop')
stamp(2)
a('s_waitcnt lgkmcnt(0)')
pre_epilogue()
lds_wait('L_dst', 24, 32, 1)
lds_wait('L_dc9', 20, 32)
read_nonce(32)
a('s_lshl_b32 s66, s3, 7'); a(f's_add_u32 s66, s66, {L_R}')
a('v_lshlrev_b32 v4, 4, v2'); a('v_add_u32 v4, s66, v4')
for mi in range(2):
    a(f'ds_read_b128 v[{40+4*mi}:{43+4*mi}], v4 offset:{64*mi}')
    a(f'ds_read_b128 v[{48+4*mi}:{51+4*mi}], v4 offset:{512 + 64*mi}')
a('v_lshlrev_b32 v5, 2, v3'); a(f'v_add_u32 v5, {L_CS}, v5')
for part in range(2):
    for et in range(5): a(f'ds_read_b32 v{56+2*(5*part+et)}, v5 offset:{part*512 + et*64}')
a(f'v_mul_u32_u24 v8, {ZROW}, v3'); a('v_lshl_add_u32 v8, v2, 2, v8'); a('s_lshl_b32 s66, s3, 4'); a('v_add_u32 v8, s66, v8')
a('s_waitcnt lgkmcnt(0)')
for et in range(5):
    for mi in range(2):
        for part in range(2):
            t = TD(part, mi, et); c = 56 + 2*(5*part + et)
            for d in (0, 2):
                a(f'v_pk_fma_f32 v[{t+d}:{t+d+1}], v[{48+4*mi+d}:{49+4*mi+d}], v[{c}:{c+1}], v[{t+d}:{t+d+1}] op_sel_hi:[1,0,1] neg_lo:[1,0,0] neg_hi:[1,0,0]')
            for d in (0, 2):
                a(f'v_pk_mul_f32 v[{t+d}:{t+d+1}], v[{t+d}:{t+d+1}], v[{40+4*mi+d}:{41+4*mi+d}]')
        y = 80 + 16*mi
        for part in range(2):
            t = TD(part, mi, et)
            a(f'v_pk_add_f32 v[{y+4*part}:{y+4*part+1}], v[{t}:{t+1}], v[{t+2}:{t+3}]')
            a(f'v_pk_add_f32 v[{y+4*part+2}:{y+4*part+3}], v[{t}:{t+1}], v[{t+2}:{t+3}] neg_lo:[0,1] neg_hi:[0,1]')
        pa, qa, ra, sa, pb, qb, rb, sb = range(y, y+8); o = y + 8
        a(f'v_add_f32 v{o}, v{pa}, v{qa}'); a(f'v_add_f32 v{o+1}, v{pb}, v{qb}')
        a(f'v_add_f32 v{o+2}, v{ra}, v{sb}'); a(f'v_sub_f32 v{o+3}, v{rb}, v{sa}')
        a(f'v_sub_f32 v{o+4}, v{pa}, v{qa}'); a(f'v_sub_f32 v{o+5}, v{pb}, v{qb}')
        a(f'v_sub_f32 v{o+6}, v{ra}, v{sb}'); a(f'v_add_f32 v{o+7}, v{rb}, v{sa}')
    for cpart in range(8):
        a(f'v_cvt_pk_bf16_f32 v{112+cpart}, v{88+cpart}, v{104+cpart}')
    for cpart in range(8):
        a(f'ds_write_b32 v8, v{112+cpart} offset:{L_Z + (cpart*80 + 16*et)*ZROW}')
lds_arrive(4, 9)
lds_wait('L_zw', 4, 9)
a(f'v_mul_u32_u24 v8, {ZROW}, v3'); a('v_lshl_add_u32 v8, v2, 4, v8'); a(f's_mul_i32 s66, s3, {2*80*ZROW}'); a('v_add_u32 v8, s66, v8')
for part in range(2):
    for et in range(5):
        r = 40 + 20*part + 4*et
        a(f'ds_read_b128 v[{r}:{r+3}], v8 offset:{L_Z + (part*80 + 16*et)*ZROW}')
lds_arrive(8, 9)
def VR(mt, et): return DACC + 20*mt + 4*et
def VI(mt, et): return DACC + 40 + 20*mt + 4*et
for et in range(5):
    ya = 40 + 4*et; yb = 60 + 4*et
    for mt in range(2):
        a(f'v_mfma_f32_16x16x32_bf16 v[{VR(mt,et)}:{VR(mt,et)+3}], v[{FCOS+4*mt}:{FCOS+4*mt+3}], v[{ya}:{ya+3}], 0')
        a(f'v_mfma_f32_16x16x32_bf16 v[{VI(mt,et)}:{VI(mt,et)+3}], v[{FNS+4*mt}:{FNS+4*mt+3}], v[{ya}:{ya+3}], 0')
    for mt in range(2):
        a(f'v_mfma_f32_16x16x32_bf16 v[{VR(mt,et)}:{VR(mt,et)+3}], v[{FSIN+4*mt}:{FSIN+4*mt+3}], v[{yb}:{yb+3}], v[{VR(mt,et)}:{VR(mt,et)+3}]')
        a(f'v_mfma_f32_16x16x32_bf16 v[{VI(mt,et)}:{VI(mt,et)+3}], v[{FCOS+4*mt}:{FCOS+4*mt+3}], v[{yb}:{yb+3}], v[{VI(mt,et)}:{VI(mt,et)+3}]')
a('v_lshrrev_b32 v8, 1, v2'); a(f'v_mul_u32_u24 v8, {8*5120}, v8')
a('v_and_b32 v9, 1, v2'); a(f'v_mul_u32_u24 v10, 5120, v9'); a('v_add_u32 v8, v8, v10'); a('v_lshl_add_u32 v8, v3, 4, v8')
a('s_mul_i32 s66, s28, 17'); a('s_add_u32 s67, s66, s3'); a(f's_mul_i32 s67, s67, 10240'); a(f's_mul_i32 s68, s30, 1280')
a(f's_add_u32 s68, s68, {WS_V}'); a('s_add_u32 s67, s67, s68')
a('s_add_u32 s66, s66, 16'); a('s_mul_i32 s66, s66, 10240'); a('s_add_u32 s66, s66, s68')
a('s_nop 4')
for mt in range(2):
    for et in range(5):
        o = 80 + 20*mt + 4*et
        for i in range(4): a(f'v_cvt_pk_bf16_f32 v{o+i}, v{VR(mt,et)+i}, v{VI(mt,et)+i}')
        a(f'buffer_store_dwordx4 v[{o}:{o+3}], v8, s[12:15], s67 offen offset:{256*et} {STP}')
    if mt == 0: a(f's_add_u32 s67, s67, {16*5120}')
a('s_cmp_lg_u32 s3, 0')
a('s_cbranch_scc1 L_signal')
a('v_cvt_f32_u32 v62, s28'); a('v_mul_f32 v62, 0.0625, v62'); a('v_cos_f32 v63, v62'); a('v_sin_f32 v64, v62')
a('v_cmp_gt_u32 vcc, 16, v0')
a('v_lshlrev_b32 v11, 4, v3'); a('v_add_u32 v9, v10, v11')
for et in range(5):
    o = 80 + 4*et; vr = VR(0, et); vi = VI(0, et); n = 40 + 4*et
    a(f'v_mul_f32 v65, v63, v{vr}'); a(f'v_fmac_f32 v65, v64, v{vi}')
    a(f'v_mul_f32 v66, v63, v{vi}'); a(f'v_fma_f32 v66, -v64, v{vr}, v66')
    a(f'v_cvt_pk_bf16_f32 v65, v65, v66')
    a(f'v_cndmask_b32 v65, v{o}, v65, vcc')
    a(f'v_mov_b32 v{n}, v{o+1}')
    a(f'v_mov_b32 v66, v65')
    a(f'v_mov_b32 v{n+1}, v{o+2}'); a(f'v_mov_b32 v{n+2}, v{o+3}')
    a(f'v_permlane16_swap_b32 v65, v66')
    a('s_nop 1')
    a(f'v_cndmask_b32 v{n+3}, v65, v66, vcc')
a('s_mov_b32 exec_hi, 0')
for et in range(5):
    a(f'buffer_store_dwordx4 v[{40+4*et}:{43+4*et}], v9, s[12:15], s66 offen offset:{256*et} {STP}')
a('s_mov_b64 exec, -1')

a('L_signal:')
a('s_mov_b32 s79, 0')
tick(7, 32)
stamp(3)
a('s_lshl_b32 s66, s30, 2'); a('s_add_u32 s66, s66, s3'); a('s_lshl_b32 s66, s66, 7'); a('s_lshl_b32 s67, s28, 2'); a('s_add_u32 s66, s66, s67'); a(f's_add_u32 s66, s66, {WS_FV}')
a('v_mov_b32 v4, s43'); a('v_mov_b32 v5, 0')
a('s_waitcnt vmcnt(0)'); a('s_mov_b64 exec, 1')
a('buffer_store_dword v4, v5, s[12:15], s66 offen sc1'); a('s_mov_b64 exec, -1')
tick_dump(7, 4)
a('L_helper:')
lds_arrive(0, 4)
stamp(4)

a('s_cmp_eq_u32 s79, 1'); a('s_cbranch_scc1 L_vdone')
spin_begin('L_pollv')
a(f'buffer_load_dword v33, v{VFL}, s[12:15], s60 offen sc1')
a('s_waitcnt vmcnt(0)')
a('v_cmp_ne_u32 vcc, s43, v33')
a('s_cmp_eq_u64 vcc, 0')
spin_end('L_pollv')
v_loads()
a('L_vdone:')
stamp(5)
a('v_lshrrev_b32 v4, 2, v3'); a('v_and_b32 v5, 3, v3'); a('v_lshl_add_u32 v7, v5, 2, v4')
a('s_mul_i32 s66, s55, 15'); a('v_xor_b32 v4, s66, v7')
a('v_cvt_f32_u32 v4, v4'); a('v_mul_f32 v4, 0.0625, v4')
a('v_lshlrev_b32 v5, 2, v2'); a('v_cvt_f32_u32 v5, v5')
for i in range(4):
    a(f'v_add_f32 v32, {float(i)!r}, v5'); a('v_mul_f32 v32, v32, v4')
    a('v_cos_f32 v33, v32'); a('v_sin_f32 v34, v32'); a('s_nop 0')
    a(f'v_cvt_pk_bf16_f32 v{8+i}, v33, v34')
a(f's_mov_b32 s47, {PN}'); a('s_cmp_eq_u32 s55, 1'); a(f's_cselect_b32 s47, {(-PN) & 0xffffffff}, s47')
a(f'v_mul_u32_u24 v36, {PQ}, v2'); a('v_lshl_add_u32 v36, v3, 4, v36'); a(f's_mul_i32 s66, s55, {3*PN}'); a('v_add_u32 v36, s66, v36')
for k4 in range(1, 4): a(f'v_add_u32 v{36+k4}, s47, v{35+k4}')
def spec_tile(off_s, vb):
    for k4 in range(4):
        for i in range(4): a(f'v_mov_b32 v{64+4*k4+i}, v{vb+4*i+k4}')
    a('s_nop 1')
    for k4 in range(4):
        c = 80 + 4*k4
        a(f'v_mfma_f32_16x16x32_bf16 v[{c}:{c+3}], v[{64+4*k4}:{67+4*k4}], v[8:11], 0')
    for k4 in range(4): a(f'v_add_u32 v{40+k4}, {off_s}, v{36+k4}')
    a('s_nop 5')
    for k4 in range(4):
        c = 80 + 4*k4
        a(f'ds_write_b128 v{40+k4}, v[{c}:{c+3}]')
a('s_cmp_eq_u32 s3, 1'); a(f's_mov_b32 s73, {ST[0]}'); a(f's_cselect_b32 s73, {ST[1]}, s73')
a('s_cmp_eq_u32 s3, 2'); a(f's_cselect_b32 s73, {ST[2]}, s73')
a('s_cmp_eq_u32 s3, 3'); a(f's_cselect_b32 s73, {ST[3]}, s73')
a('s_waitcnt vmcnt(0)')
a('s_cmp_lg_u32 s3, 0'); a('s_cbranch_scc1 L_spec1')
a('s_cmp_eq_u32 s35, 0'); a('s_cbranch_scc1 L_specz')
lds_wait('L_zc2', 8, 32)
a('L_specz:')
a(f's_mov_b32 s74, {ST[4]}')
spec_tile('s74', VB1)
a('L_spec1:')
spec_tile('s73', VB0)
for r in range(3):
    for d in range(4):
        a(f'v_lshlrev_b32 v{96+8*r+2*d}, 16, v{XR[r]+d}'); a(f'v_and_b32 v{97+8*r+2*d}, 0xffff0000, v{XR[r]+d}')

a('L_final:')
def final_reads(r, b):
    d4, d11 = FA[3*r], FA[3*r+2]
    for p in range(5):
        reg = (d4, d4, d4, d4, d11)[p]; off = (0, P2W, 2*P2W, 3*P2W, 0)[p]
        a(f'ds_read_b128 v[{b+8*p}:{b+3+8*p}], v{reg} offset:{off}')
        a(f'ds_read_b128 v[{b+4+8*p}:{b+7+8*p}], v{reg} offset:{off+PQ}')
def final_sum(r, b, cnt):
    x = 96 + 8*r
    for p in range(5):
        a(f's_waitcnt lgkmcnt({min(15, cnt + 8 - 2*p)})')
        for d in range(0, 8, 2): a(f'v_pk_add_f32 v[{x+d}:{x+d+1}], v[{x+d}:{x+d+1}], v[{b+8*p+d}:{b+8*p+d+1}]')
    for d in range(4): a(f'v_cvt_pk_bf16_f32 v{b+d}, v{x+2*d}, v{x+2*d+1}')
    a(f'buffer_store_dwordx4 v[{b}:{b+3}], v{FA[3*r+1]}, s[16:19], 0 offen')
a('s_waitcnt lgkmcnt(0)')
a('s_barrier')
stamp(6)
final_reads(0, 128)
final_reads(1, 168)
final_sum(0, 128, 10)
a('s_cmp_ge_u32 s3, 2'); a('s_cbranch_scc1 L_fin1')
final_reads(2, 208)
final_sum(1, 168, 10)
final_sum(2, 208, 0)
a('s_branch L_fin2')
a('L_fin1:')
final_sum(1, 168, 0)
a('L_fin2:')
if opt('dbgt', 0):
    a('s_cmp_lg_u32 s3, 0'); a('s_cbranch_scc1 L_dbgt')
    a('s_waitcnt vmcnt(0)')
    a('s_memrealtime s[94:95]'); a('s_waitcnt lgkmcnt(0)')
    a('s_mov_b64 exec, 1')
    for i, r in enumerate((80, 82, 84, 86, 88, 90, 92, 94)):
        a(f's_sub_u32 s66, s{r}, s43'); a('s_add_u32 s66, s66, 1000'); a('v_mov_b32 v4, s66'); a(f'v_mov_b32 v5, {4 + 4*i}')
        a('buffer_atomic_umax v4, v5, s[24:27], 0 offen sc1')
        a('s_nop 2')
    a('s_endpgm')
    a('L_dbgt:')
stamp(7)
if STAMPS:
    a('s_waitcnt vmcnt(0)')
    a('s_memrealtime s[96:97]')
    a('s_waitcnt lgkmcnt(0)')
    for i in range(8): a(f'v_mov_b32 v{16+i}, s{80+2*i}')
    a('v_mov_b32 v24, s96')
    a('s_lshl_b32 s66, s2, 3'); a('s_add_u32 s66, s66, s3'); a('s_lshl_b32 s66, s66, 6'); a(f's_add_u32 s66, s66, {WS_TS}')
    a('v_mov_b32 v4, 0')
    a('s_mov_b64 exec, 1')
    a('buffer_store_dwordx4 v[16:19], v4, s[12:15], s66 offen')
    a('buffer_store_dwordx4 v[20:23], v4, s[12:15], s66 offen offset:16')
    a('buffer_store_dword v24, v4, s[12:15], s66 offen offset:32')
a('s_endpgm')
emit_tails()
a('L_done:')
a.end(256, sgpr=102)
txt = a.text([])
txt = txt.replace('.amdgcn_target', f'; @launch grid=(256,1,1) block=(512,1,1) lds={LDS_BYTES}\n.amdgcn_target', 1)
open(sys.argv[1], 'w').write(txt)
```

```python
import sys, math
from asmlib import *
opts = dict(o.split('=') for o in sys.argv[2:])
def opt(k, d): return type(d)(opts.get(k, d))
STAMPS = opt('stamps', 0)
AUXV = opt('auxv', 0)
VGO = opt('vgo', 1)
VCHK = opt('vchk', 4)
XR = [32, 36, 28]
FA = [16, 17, 18, 19, 20, 21, 22, 23, 24]; VA0, VA4, VFL = 25, 26, 27
NONIT = 1
WMODE = opt('wmode', 0)
STRICT = opt('strict', 1)
ZFIX = opt('zfix', 1)
FLAGA = opt('flaga', 0)
FAKEW = opt('fakew', 0)
FAKEH = opt('fakeh', 0)
P2MAP = opt('p2map', 0)
P2ROT = opt('p2rot', 1)
SPINMAX = opt('spinmax', 1 << 16)
CODEPF = opt('codepf', 1)
LDW = opts.get('ldw', 'sc1').replace('+', ' ').replace('-', '')
LDH = opts.get('ldh', 'sc1').replace('+', ' ').replace('-', '')
STP = opts.get('stp', 'sc1').replace('+', ' ').replace('-', '')
S, D, F = 2048, 640, 1536
KNAME = 'parallel_sum__spectral_fnet__swiglu_ffn__prompt_kernel'
STG = 49152
WS_H = 0
WS_WDT = 0x600000
WS_V = 0x800000
WS_XP = 0xB00000
WS_WP = 0xB20000
WS_FW = 0xB30000
WS_FH = 0xB31000
WS_FV = 0xB34000
WS_TS = 0xC00000
WS_SIZE = 0x1000000
L_AUX = 3*STG
L_R = L_AUX
L_M = L_AUX + 512
L_CS = L_AUX + 1024
L_CNT = L_AUX + 2048
L_NON = L_CNT + 32
L_WD = L_AUX + 4096
L_Z = 0
ZROW = 80
P2W = 10240
P2STEP = [STG, STG + 5120, 2*STG, 2*STG + 5120, 0, 5120]
PT = [STG, STG + 4416, 2*STG + 128, 2*STG + 128 + 4416, 0]
ST = [40960, STG + 40960 + 64, 2*STG + 40960 + 128, 3*STG + 4096 + 192, 3*STG + 4096 + 192 + 4416 ]
PQ, PN, PE = 272, 1088, 4416
LDS_BYTES = 163840

a = Asm()
stamp_n = [0]
def stamp(i):
    if STAMPS:
        if not ((FAKEW or FAKEH) and i >= 5): a(f's_memrealtime s[{80+2*i}:{81+2*i}]')
TICKS = opt('ticks', 0)
def tick(reg, idx):
    if TICKS:
        a('s_memrealtime s[98:99]'); a('s_waitcnt lgkmcnt(0)')
        if isinstance(idx, tuple):
            a(f's_add_u32 m0, {idx[0]}, {idx[1]}'); a('s_nop 3'); a(f'v_writelane_b32 v{reg}, s98, m0')
        else:
            a(f'v_writelane_b32 v{reg}, s98, {idx}')
def tick_dump(reg, tmp):
    if TICKS:
        a('s_lshl_b32 s98, s2, 3'); a('s_add_u32 s98, s98, s3'); a('s_lshl_b32 s98, s98, 8'); a(f's_add_u32 s98, s98, {WS_TS + 0x100000}')
        a(f'v_lshlrev_b32 v{tmp}, 2, v0')
        a(f'buffer_store_dword v{reg}, v{tmp}, s[12:15], s98 offen')
def rbf(v):
    a(f'v_cvt_pk_bf16_f32 v{v}, v{v}, v{v}')
    a(f'v_lshlrev_b32 v{v}, 16, v{v}')
def srd_from(d, b, nbytes):
    srd(a, d, b, nbytes)
def spin_begin(name):
    a(f's_mov_b32 s79, 0')
    a(f'{name}:')
def spin_end(name):
    a(f's_cbranch_scc1 {name}_ok')
    a('s_add_u32 s79, s79, 1')
    a(f's_cmp_ge_u32 s79, {SPINMAX}')
    a(f's_cbranch_scc1 {name}_ok')
    a('s_sleep 2')
    a(f's_branch {name}')
    a(f'{name}_ok:')

def lds_arrive(off, v):
    a(f'v_mov_b32 v{v}, {L_CNT}'); a(f'v_mov_b32 v{v+1}, 1')
    a('s_waitcnt lgkmcnt(0)')
    a('s_mov_b64 exec, 1')
    a(f'ds_add_u32 v{v}, v{v+1} offset:{off}')
    a('s_mov_b64 exec, -1')
def lds_wait(name, off, v, cnt=4):
    a(f'v_mov_b32 v{v}, {L_CNT}')
    a(f'{name}:')
    a(f'ds_read_b32 v{v+1}, v{v} offset:{off}')
    a('s_waitcnt lgkmcnt(0)')
    a(f'v_readfirstlane_b32 s78, v{v+1}')
    a(f's_cmp_lt_u32 s78, {cnt}')
    a(f's_cbranch_scc0 {name}_ok')
    a('s_sleep 1')
    a(f's_branch {name}')
    a(f'{name}_ok:')
a.begin(KNAME)
a('s_cmp_ge_u32 s2, 256')
a('s_cbranch_scc1 L_done')
stamp(0)
a('s_load_dwordx2 s[64:65], s[0:1], 0')
a('s_load_dwordx4 s[60:63], s[0:1], 24')
a('s_load_dwordx8 s[48:55], s[0:1], 48')
a('s_load_dwordx4 s[56:59], s[0:1], 80')
a('v_lshrrev_b32 v1, 6, v0')
a('v_and_b32 v0, 63, v0')
a('v_readfirstlane_b32 s3, v1')
a('s_and_b32 s40, s2, 7'); a('s_lshr_b32 s41, s2, 3')
a('s_and_b32 s31, s40, 1'); a('s_lshr_b32 s30, s40, 1')
a('s_and_b32 s32, s41, 7'); a('s_lshr_b32 s33, s41, 3')
a('s_lshl_b32 s28, s31, 3'); a('s_add_u32 s28, s28, s32')
a('s_mul_i32 s29, s30, 3'); a('s_add_u32 s29, s29, s33')
a('s_add_u32 s42, s30, 12')
a('s_cmp_eq_u32 s33, 3')
a('s_cselect_b32 s29, s42, s29')
a('s_cselect_b32 s35, 1, 0')
a('s_mul_i32 s34, s30, 5'); a('s_add_u32 s34, s34, 1'); a('s_lshr_b32 s34, s34, 1')
a('s_mul_i32 s42, s31, 5'); a('s_add_u32 s34, s34, s42')
a('s_cmp_ge_u32 s34, 10'); a('s_cselect_b32 s42, 10, 0'); a('s_sub_u32 s34, s34, s42')
if P2MAP == 0:
    a('s_lshl_b32 s42, s30, 3'); a('s_add_u32 s42, s42, s32')
    a('s_lshl_b32 s38, s31, 2'); a('s_add_u32 s38, s38, s33')
else:
    a('s_lshl_b32 s42, s40, 2'); a('s_add_u32 s42, s42, s33')
    a('s_mov_b32 s38, s32')
a('s_mul_i32 s39, s32, 3'); a('s_lshr_b32 s39, s39, 1'); a('s_mul_i32 s66, s33, 3'); a('s_add_u32 s39, s39, s66')
a('s_cmp_ge_u32 s39, 12'); a('s_cselect_b32 s66, 12, 0'); a('s_sub_u32 s39, s39, s66')
if not P2ROT: a('s_mov_b32 s39, 0')
a('s_lshr_b32 s36, s42, 1'); a('s_and_b32 s37, s42, 1')
WSOFF = opt('wsoff', 0)
WSRD = 's[12:15]'; HSRD = 's[12:15]'
def common_srds(loader=False):
    a('s_waitcnt lgkmcnt(0)')
    tick(7, 50)
    srd(a, 12, 58, WS_SIZE, WSOFF << 20)
    if not loader:
        srd_from(4, 64, S*D*2)
        srd_from(16, 54, S*D*2)
        srd_from(20, 52, F*D*2)
        srd_from(24, 56, 256)
a('s_cmp_lt_u32 s3, 4')
a('s_cbranch_scc1 L_compute')
a('s_sub_u32 s44, s3, 4')
a('s_cmp_eq_u32 s44, 3')
a('s_cbranch_scc1 L_aux')

W0 = 5
PT_ = [20, 21, 22, 23, 24, 25, 26, 27, 4, 5, 6, 7, 16, 17, 18, 19]
GT_ = [66, 67, 68, 69, 76, 77, 78, 79, 96, 97, 100, 101, 40, 41, 42, 43]
GT_ = [66, 67, 68, 69, 76, 77, 78, 79, 28, 29, 30, 31, 40, 41, 33, 43]
H0 = opt('h0', 8)
def dma_loop(name, npieces):
    h = npieces * H0 // 16
    def pieces(lo, hi):
        for t in range(lo, hi):
            a(f's_add_u32 m0, s{PT_[t]}, s46'); a('s_nop 0')
            a(f'buffer_load_dwordx4 v{4 + (t & 1)}, s[8:11], s{GT_[t]} offen lds')
    a('s_mov_b32 s45, s34'); a('s_mov_b32 s46, 0'); a('s_mov_b32 s47, 0')
    a('s_mul_i32 s42, s34, s48'); a('s_mul_i32 s49, s48, -9'); a('v_add_u32 v4, s42, v4'); a('v_add_u32 v5, s42, v5')
    tick(7, 51)
    a(f'{name}_l:')
    pieces(0, h)
    a('s_cmp_lg_u32 s47, 1'); a(f's_cbranch_scc1 {name}_m')
    a(f's_waitcnt vmcnt({h})')
    tick(7, 0)
    a('s_barrier')
    tick(7, 16)
    a(f'{name}_m:')
    pieces(h, npieces)
    a('s_add_u32 s45, s45, 1'); a('s_cmp_eq_u32 s45, 10'); a('s_cselect_b32 s45, 0, s45')
    a('s_cselect_b32 s42, s49, s48')
    a('v_add_u32 v4, s42, v4'); a('v_add_u32 v5, s42, v5')
    a(f's_add_u32 s46, s46, {STG}'); a(f's_cmp_eq_u32 s46, {3*STG}'); a('s_cselect_b32 s46, 0, s46')
    tick(7, ('s47', 52))
    a('s_cmp_lt_u32 s47, 2'); a(f's_cbranch_scc1 {name}_nx')
    a(f's_waitcnt vmcnt({npieces})')
    tick(7, ('s47', -1))
    a('s_barrier')
    tick(7, ('s47', 15))
    a('s_cmp_eq_u32 s47, 9'); a('s_cbranch_scc1 L_p2last')
    a(f'{name}_nx:')
    a('s_add_u32 s47, s47, 1'); a(f's_branch {name}_l')

a('s_cmp_eq_u32 s44, 2')
a('s_cbranch_scc1 L_ldx')
a('s_cmp_eq_u32 s35, 1')
a('s_cbranch_scc1 L_ldc')
a('v_lshrrev_b32 v1, 4, v0')
a('v_and_b32 v2, 15, v0')
a('v_lshlrev_b32 v3, 1, v1')
a('v_xor_b32 v2, v2, v3')
a('v_lshlrev_b32 v2, 4, v2')
a(f'v_mul_u32_u24 v3, {F*2}, v1')
a('v_add_u32 v2, v2, v3')
a('s_lshl_b32 s70, s29, 8')
a('v_add_u32 v2, s70, v2')
a('s_and_b32 s70, s32, 1'); a('s_lshl_b32 s70, s70, 7')
a('v_xor_b32 v4, s70, v2')
a('v_xor_b32 v5, 128, v4')
a('s_lshl_b32 s70, s32, 11')
a('s_lshl_b32 s71, s44, 14')
for g in range(4):
    if g: a('s_add_u32 s70, s70, 2048'); a('s_and_b32 s70, s70, 0x3c00')
    a(f's_or_b32 s{PT_[4*g]}, s70, s71'); a(f's_mul_i32 s{GT_[4*g]}, s70, 12')
    a(f's_add_u32 s{PT_[4*g+2]}, s{PT_[4*g]}, 1024'); a(f's_add_u32 s{GT_[4*g+2]}, s{GT_[4*g]}, {4*F*2}')
    a('s_add_u32 s70, s70, 2048'); a('s_and_b32 s70, s70, 0x3c00')
    a(f's_or_b32 s{PT_[4*g+1]}, s70, s71'); a(f's_mul_i32 s{GT_[4*g+1]}, s70, 12')
    a(f's_add_u32 s{PT_[4*g+3]}, s{PT_[4*g+1]}, 1024'); a(f's_add_u32 s{GT_[4*g+3]}, s{GT_[4*g+1]}, {4*F*2}')
a('s_cmp_eq_u32 s44, 1')
a('s_waitcnt lgkmcnt(0)')
a('s_cselect_b32 s8, s50, s48'); a('s_cselect_b32 s9, s51, s49'); a(f's_mov_b32 s10, {D*F*2}'); a('s_mov_b32 s11, 0x00020000')
a(f's_mov_b32 s48, {64*F*2}')
a('s_branch L_ld16')
a('L_ldx:')
a('v_lshrrev_b32 v1, 3, v0')
a('v_and_b32 v2, 7, v0')
a('v_lshrrev_b32 v3, 1, v1')
a('v_xor_b32 v2, v2, v3')
a('v_lshlrev_b32 v2, 4, v2')
a('v_lshrrev_b32 v3, 2, v1'); a('v_and_b32 v6, 3, v1'); a('v_lshl_add_u32 v3, v6, 2, v3')
XMAP = opt('xmap', 0)
if XMAP == 0:
    a('v_lshlrev_b32 v3, 7, v3'); a('v_add_u32 v3, s28, v3')
elif XMAP == 1:
    a('v_lshlrev_b32 v3, 7, v3'); a('s_lshl_b32 s70, s28, 3'); a('v_add_u32 v3, s70, v3')
else:
    a('v_lshlrev_b32 v3, 3, v3'); a('s_lshl_b32 s70, s28, 7'); a('v_add_u32 v3, s70, v3')
a(f'v_mul_u32_u24 v3, {D*2}, v3')
a('v_add_u32 v4, v2, v3')
a('v_xor_b32 v5, 64, v4'); a(f'v_add_u32 v5, {(256 if XMAP < 2 else 16)*D*2}, v5')
a('s_lshl_b32 s70, s33, 12')
for t in range(0, 16, 2):
    if t: a('s_add_u32 s70, s70, 2048'); a('s_and_b32 s70, s70, 0x3c00')
    a(f's_or_b32 s{PT_[t]}, s70, 0x8000'); a(f's_or_b32 s{PT_[t+1]}, s70, 0x8400')
    if XMAP == 0: a(f's_mul_i32 s{GT_[t]}, s70, {16*D*2//2048}')
    else: a(f's_mul_i32 s{GT_[t]}, s70, 5'); a(f's_lshr_b32 s{GT_[t]}, s{GT_[t]}, 3')
    a(f's_mov_b32 s{GT_[t+1]}, s{GT_[t]}')
a('s_waitcnt lgkmcnt(0)')
srd_from(8, 64, S*D*2)
a('s_movk_i32 s48, 128')
a('L_ld16:')
dma_loop('L_ldw', 16)
a('L_ldc:')
a('v_lshrrev_b32 v1, 3, v0')
a('v_and_b32 v2, 7, v0')
a('v_lshrrev_b32 v3, 1, v1')
a('v_xor_b32 v2, v2, v3')
a('v_lshlrev_b32 v2, 4, v2')
a('s_mul_i32 s70, s30, 80'); a('s_add_u32 s70, s70, 1')
a('v_add_u32 v1, s70, v1')
a(f'v_mul_u32_u24 v3, {D*2}, v1')
a('v_add_u32 v2, v2, v3')
a('s_and_b32 s70, s32, 1'); a('s_lshl_b32 s70, s70, 6')
a('v_xor_b32 v4, s70, v2')
a('v_xor_b32 v5, 64, v4')
a('s_lshl_b32 s70, s32, 10')
a('s_lshl_b32 s71, s44, 14')
for t in range(10):
    if t: a('s_add_u32 s70, s70, 1024'); a('s_cmp_eq_u32 s70, 10240'); a('s_cselect_b32 s70, 0, s70')
    a(f's_or_b32 s{PT_[t]}, s70, s71'); a(f's_mul_i32 s{GT_[t]}, s70, {8*D*2//1024}')
a('s_cmp_eq_u32 s44, 1')
a('s_waitcnt lgkmcnt(0)')
a('s_cselect_b32 s8, s62, s60'); a('s_cselect_b32 s9, s63, s61'); a(f's_mov_b32 s10, {D*D*2}'); a('s_mov_b32 s11, 0x00020000')
a('s_movk_i32 s48, 128')
dma_loop('L_ldcl', 10)

P2ACC = 176; P2W_R = 56; P2H = 8
def p2_setup():
    a('v_lshlrev_b32 v1, 4, v0')
    srd(a, 12, 58, WS_SIZE, WSOFF << 20)
    a('s_mul_i32 s70, s38, 48'); a('s_mul_i32 s71, s44, 12'); a('s_add_u32 s70, s70, s71')
    a(f's_mul_i32 s70, s70, 5120'); a(f's_add_u32 s70, s70, {WS_WDT}')
    a(f's_mul_i32 s73, s44, {P2W}')
def kidx(step):
    a(f's_add_u32 s72, s39, {step}'); a('s_cmp_ge_u32 s72, 12'); a('s_cselect_b32 s71, 12, 0'); a('s_sub_u32 s72, s72, s71')
def wdt_reg(step):
    kidx(step)
    a('s_mul_i32 s72, s72, 5120'); a('s_add_u32 s72, s72, s70')
    for ei in range(5):
        r = P2W_R + 20*step + 4*ei
        if ei == 4: a('s_add_u32 s72, s72, 4096')
        a(f'buffer_load_dwordx4 v[{r}:{r+3}], v1, {WSRD}, s72 offen offset:{(ei % 4)*1024} {LDW}')
def wdt_lds(step):
    kidx(step)
    a('s_mul_i32 s72, s72, 5120'); a('s_add_u32 s72, s72, s70')
    for ei in range(5):
        a(f's_add_u32 m0, s73, {P2STEP[step-6] + ei*1024}')
        if ei: a('s_add_u32 s72, s72, 1024')
        else: a('s_nop 0')
        a(f'buffer_load_dwordx4 v1, {WSRD}, s72 offen {LDW} lds')
WD = [[0, 1], [2, 3], [4, 5], []]
def read_nonce(v):
    a(f'v_mov_b32 v{v}, {L_NON}'); a(f'ds_read_b32 v{v}, v{v}'); a('s_waitcnt lgkmcnt(0)'); a(f'v_readfirstlane_b32 s43, v{v}')
def final_addr(tau_off, d4, d5, d11, t):
    v4, v5, v6, v7, v8, v9, v10 = d4, d5, t, t+1, t+2, t+3, t+4
    a('s_lshl_b32 s66, s3, 6'); a(f's_add_u32 s66, s66, {tau_off}')
    a(f'v_add_u32 v{v4}, s66, v0')
    a(f'v_mul_u32_u24 v{v5}, 6554, v{v4}'); a(f'v_lshrrev_b32 v{v5}, 16, v{v5}')
    a(f'v_mul_u32_u24 v{v6}, 10, v{v5}'); a(f'v_sub_u32 v{v6}, v{v4}, v{v6}')
    a(f'v_lshrrev_b32 v{v7}, 4, v{v5}'); a(f'v_and_b32 v{v5}, 15, v{v5}')
    a(f'v_lshrrev_b32 v{v9}, 1, v{v6}')
    a(f'v_mov_b32 v{v10}, {PT[0]}'); a(f'v_mov_b32 v{d11}, {ST[0]}')
    for e in range(1, 5):
        a(f'v_cmp_eq_u32 vcc, {e}, v{v9}'); a(f'v_mov_b32 v{t+5}, {PT[e]}'); a(f'v_mov_b32 v{t+6}, {ST[e]}')
        a(f'v_cndmask_b32 v{v10}, v{v10}, v{t+5}, vcc'); a(f'v_cndmask_b32 v{d11}, v{d11}, v{t+6}, vcc')
    a(f'v_and_b32 v{v8}, 1, v{v6}'); a(f'v_mul_u32_u24 v{v4}, {2*PQ}, v{v8}')
    a(f'v_mul_u32_u24 v{v8}, {PN}, v{v7}'); a(f'v_add_u32 v{v4}, v{v4}, v{v8}'); a(f'v_lshl_add_u32 v{v4}, v{v5}, 4, v{v4}')
    a(f'v_add_u32 v{d11}, v{d11}, v{v4}'); a(f'v_add_u32 v{v4}, v{v10}, v{v4}')
    a(f'v_lshrrev_b32 v{v8}, 2, v{v5}'); a(f'v_and_b32 v{v5}, 3, v{v5}'); a(f'v_lshl_add_u32 v{v5}, v{v5}, 2, v{v8}')
    a(f'v_lshlrev_b32 v{v5}, 3, v{v5}'); a(f'v_add_u32 v{v5}, v{v5}, v{v7}'); a(f'v_lshlrev_b32 v{v5}, 4, v{v5}')
    a('s_lshl_b32 s66, s37, 6'); a('s_add_u32 s66, s66, s36'); a(f'v_add_u32 v{v5}, s66, v{v5}')
    a(f'v_mul_u32_u24 v{v5}, {D*2}, v{v5}'); a(f'v_lshl_add_u32 v{v5}, v{v6}, 4, v{v5}'); a('s_mul_i32 s66, s38, 160'); a(f'v_add_u32 v{v5}, s66, v{v5}')

VB0, VB1 = 128, 144
def p2h_setup():
    a('s_cmp_ge_u32 s38, 4'); a('s_cselect_b32 s55, 1, 0')
    a('s_sub_u32 s67, 16, s36'); a('s_xor_b32 s68, s37, 1')
    a('s_cmp_eq_u32 s55, 1')
    a('s_cselect_b32 s67, s67, s36'); a('s_cselect_b32 s68, s68, s37')
    a('s_and_b32 s60, s67, 3'); a('s_lshl_b32 s60, s60, 7'); a(f's_add_u32 s60, s60, {WS_FV}')
    a('s_lshl_b32 s67, s67, 1'); a('s_add_u32 s67, s67, s68'); a('s_mul_i32 s67, s67, 5120'); a(f's_add_u32 s56, s67, {WS_V}')
    a('s_lshl_b32 s57, s55, 9'); a('s_sub_u32 s57, 256, s57')
def fv_addr(v, t):
    a('s_sub_u32 s66, 7, s38'); a('s_sub_u32 s67, s38, 1'); a('s_max_i32 s67, s67, 0')
    a('s_cmp_ge_u32 s38, 4'); a('s_cselect_b32 s67, s66, s67'); a('s_cselect_b32 s66, s66, s38')
    a(f'v_mov_b32 v{v}, s66'); a(f'v_mov_b32 v{t}, s67'); a(f'v_bfe_u32 v{t+1}, v0, 4, 1'); a(f'v_cmp_eq_u32 vcc, 0, v{t+1}'); a(f'v_and_b32 v{t+1}, 15, v0')
    a(f'v_cndmask_b32 v{v}, v{t}, v{v}, vcc'); a(f'v_lshlrev_b32 v{v}, 9, v{v}'); a(f'v_lshl_add_u32 v{v}, v{t+1}, 2, v{v}')
def pre_loop():
    for r in range(3):
        final_addr(256*r, FA[3*r], FA[3*r+1], FA[3*r+2], 40)
    a('s_cmp_ge_u32 s3, 2'); a('s_cselect_b32 s66, -1, 0'); a(f'v_or_b32 v{FA[7]}, s66, v{FA[7]}')
    fv_addr(VFL, 40)
    a('s_mul_i32 s66, s38, 80'); a('v_add_u32 v40, s66, v3')
    a('v_add_u32 v41, -1, v40'); a('v_sub_u32 v42, 639, v40')
    a('s_cmp_eq_u32 s55, 1'); a('s_cselect_b64 vcc, -1, 0')
    a(f'v_mul_u32_u24 v43, {4*17*10240}, v2')
    a('v_cndmask_b32 v40, v41, v42, vcc')
    a('v_lshl_add_u32 v43, v40, 4, v43')
    a('s_mul_i32 s66, s3, s57'); a(f'v_add_u32 v{VA0}, s66, v43')
    a('s_lshl_b32 s66, s57, 2'); a(f'v_add_u32 v{VA4}, s66, v43')
    a('s_lshl_b32 s66, s3, 4'); a('v_add_u32 v40, s66, v40')
    a('v_cmp_gt_i32 vcc, 0, v40'); a('v_mov_b32 v41, 0x7fffffff'); a('s_nop 0')
    a(f'v_cndmask_b32 v{VA0}, v{VA0}, v41, vcc')
def pre_epilogue():
    for r in range(3): a(f'buffer_load_dwordx4 v[{XR[r]}:{XR[r]+3}], v{FA[3*r+1]}, s[4:7], 0 offen')
def v_loads():
    L = a.label('L_vl')
    a('s_mov_b32 s72, s56')
    for i in range(4):
        a(f'buffer_load_dwordx4 v[{VB0+4*i}:{VB0+3+4*i}], v{VA0}, s[12:15], s72 offen {LDH}')
        if i < 3: a(f's_add_u32 s72, s72, {17*10240}')
    a('s_cmp_lg_u32 s3, 0'); a(f's_cbranch_scc1 {L}')
    a('s_mov_b32 s72, s56')
    for i in range(4):
        a(f'buffer_load_dwordx4 v[{VB1+4*i}:{VB1+3+4*i}], v{VA4}, s[12:15], s72 offen {LDH}')
        if i < 3: a(f's_add_u32 s72, s72, {17*10240}')
    a(f'{L}:')

a('L_p2last:')
a('s_waitcnt vmcnt(0)')
lds_arrive(12, 2)
read_nonce(2)
p2_setup()
a('L_p2join:')
tick(7, 27)
NLATE = opt('nlate', 4)
for st in range(6): wdt_reg(st)
a('s_cmp_eq_u32 s35, 1')
a('s_cbranch_scc1 L_p2d')
if NLATE < 6:
    for st in (6, 7): wdt_lds(st)
if NLATE < 4:
    lds_wait('L_c8', 16, 4)
    for st in (8, 9): wdt_lds(st)
if NLATE < 2:
    lds_wait('L_c9', 20, 4)
    for st in (10, 11): wdt_lds(st)
if AUXV:
    a('s_cmp_lg_u32 s44, 3'); a('s_cbranch_scc1 L_p2d')
    p2h_setup(); fv_addr(8, 9)
    a('s_mov_b32 s79, 0')
    a('L_av:')
    a('buffer_load_dword v9, v8, s[12:15], s60 offen sc1')
    a('s_waitcnt vmcnt(0)')
    a('v_cmp_ne_u32 vcc, s43, v9'); a('s_cmp_eq_u64 vcc, 0'); a('s_cbranch_scc1 L_av_ok')
    a('s_add_u32 s79, s79, 1'); a(f's_cmp_ge_u32 s79, {AUXV}'); a('s_cbranch_scc1 L_p2d')
    a('s_branch L_av')
    a('L_av_ok:')
    lds_arrive(28, 8)
a('L_p2d:')
tick(7, 28)
a(f'v_add_u32 v2, s73, v1')
a(f'v_add_u32 v3, {2*STG}, v2')
a('v_min_u32 v4, 5, v0'); a('v_lshrrev_b32 v5, 1, v4'); a('v_and_b32 v4, 1, v4'); a('v_lshlrev_b32 v4, 2, v4'); a('v_lshl_add_u32 v6, v5, 4, v4')
a('s_lshl_b32 s76, s36, 8'); a('s_mul_i32 s77, s44, 48'); a('s_add_u32 s76, s76, s77'); a('s_lshl_b32 s77, s37, 3'); a('s_add_u32 s76, s76, s77'); a(f's_add_u32 s76, s76, {WS_FH}')
a('s_lshl_b32 s74, s36, 3'); a('s_lshl_b32 s75, s37, 2'); a('s_add_u32 s74, s74, s75')
a('s_mul_i32 s74, s74, 48'); a('s_mul_i32 s75, s44, 12'); a('s_add_u32 s74, s74, s75'); a('s_lshl_b32 s74, s74, 10')
for i in range(80): a(f'v_mov_b32 v{P2ACC+i}, 0')
lds_wait('L_own', 0, 4)
tick(7, 29)
stamp(2)

tick(7, 32)
def hsoff(step):
    kidx(step)
    a('s_lshl_b32 s72, s72, 10'); a(f's_add_u32 s72, s72, s74')
def hld(step, ni):
    r = P2H + 16*(step % 3) + 4*ni
    L = []
    if ni: L.append(f's_add_u32 s72, s72, {48*1024}')
    L.append(f'buffer_load_dwordx4 v[{r}:{r+3}], v1, {HSRD}, s72 offen {LDH}')
    return L
def hpoll(name, kp):
    spin_begin(name)
    a(f'buffer_load_dword v4, v6, s[12:15], s76 offen sc1')
    a('s_waitcnt vmcnt(0)')
    a(f'v_cmp_ne_u32 vcc, s43, v{4+kp}')
    a('s_cmp_eq_u64 vcc, 0')
    spin_end(name)
hpoll('L_pollh0', 0)
if VGO:
    a(f'v_mov_b32 v4, {L_CNT}'); a('v_mov_b32 v5, 1'); a('ds_write_b32 v4, v5 offset:40')
stamp(3)
tick(7, 33)
for st in range(3):
    hsoff(st)
    for ni in range(4):
        for ins in hld(st, ni): a(ins)
def pwrite(ni):
    return [f'ds_write_b128 v{2 if PT[ei] < 2*STG else 3}, v[{P2ACC+16*ei+4*ni}:{P2ACC+16*ei+4*ni+3}] offset:{PT[ei] + ni*PN - (0 if PT[ei] < 2*STG else 2*STG)}' for ei in range(5)]
for st in range(12):
    rem = min(2, 11 - st)
    if st == 1:
        a('s_cmp_eq_u32 s35, 0'); a('s_cbranch_scc1 L_lw1_ok')
        lds_wait('L_lw1', 36, 4)
    if st == max(1, 7 - NLATE): lds_wait('L_lw', 36, 4)
    if st < 9: hsoff(st + 3)
    if st == 8:
        a('v_and_b32 v2, 15, v0'); a('v_lshrrev_b32 v4, 4, v0')
        a(f'v_mul_u32_u24 v4, {PQ}, v4'); a('v_lshl_add_u32 v2, v2, 4, v4'); a('v_add_u32 v2, s73, v2'); a(f'v_add_u32 v3, {2*STG}, v2')
    a(f's_waitcnt vmcnt({4*rem})' + (' lgkmcnt(0)' if st >= 6 else ''))
    tick(7, 36 + st)
    hb = P2H + 16*(st % 3)
    w0 = P2W_R + 20*(st % 6)
    rd = []
    if 1 <= st <= 6:
        wr = P2W_R + 20*((st - 1) % 6)
        for ei in range(5):
            o = P2STEP[st - 1] + ei*1024
            rd.append(f'ds_read_b128 v[{wr+4*ei}:{wr+4*ei+3}], v{2 if o < 2*STG else 3} offset:{o if o < 2*STG else o - 2*STG}')
    for ni in range(4):
        for ei in (range(5) if ni % 2 == 0 else range(4, -1, -1)):
            t = P2ACC + 16*ei + 4*ni
            h = hb + 4*ni
            a(f'v_mfma_f32_16x16x32_bf16 v[{t}:{t+3}], v[{w0+4*ei}:{w0+4*ei+3}], v[{h}:{h+3}], v[{t}:{t+3}]')
            if rd: a(rd.pop(0))
        if st < 9:
            for ins in hld(st + 3, ni): a(ins)
        if st == 11 and ni >= 2:
            for w in pwrite(ni - 2): a(w)
for w in pwrite(2): a(w)
a('s_nop 3')
for w in pwrite(3): a(w)
stamp(4)
tick(7, 48)
a('s_waitcnt lgkmcnt(0)')
a('s_barrier')
tick_dump(7, 4)
a('s_branch L_fin2')

a('L_aux:')
if opt('aprio', 0): a(f"s_setprio {opt('aprio', 0)}")
common_srds()
AB = 248
a('v_mov_b32 v1, 0'); a(f'v_mov_b32 v3, {L_CNT}')
a('s_mov_b64 exec, 1')
a('s_cmp_lg_u32 s2, 0'); a('s_cbranch_scc1 L_aux_n0')
a('s_memrealtime s[66:67]'); a('s_waitcnt lgkmcnt(0)'); a('s_or_b32 s66, s66, 1'); a('v_mov_b32 v2, s66')
a('buffer_store_dword v2, v1, s[24:27], 0 offen sc1')
a('L_aux_n0:')
[a(f'ds_write_b32 v3, v1 offset:{4*i}') for i in range(11)]
a('s_mov_b64 exec, -1')
if CODEPF:
    a('s_getpc_b64 s[66:67]')
    a('L_pcref:')
    a(f's_sub_u32 s66, s66, L_pcref-{KNAME}'); a('s_subb_u32 s67, s67, 0')
    a('s_lshl_b32 s68, s41, 3')
    a('v_and_b32 v4, 7, v0'); a('v_add_u32 v4, s68, v4'); a('v_lshlrev_b32 v4, 7, v4')
    a(f'v_min_u32 v4, L_done-{KNAME}, v4')
    a('s_mov_b64 exec, 0xff')
    a(f'global_load_dword v{AB+7}, v4, s[66:67]')
    a('s_mov_b64 exec, -1')
for i in range(48, 56): a(f'v_mov_b32 v{i}, 0')
a('v_lshrrev_b32 v4, 2, v0'); a('v_and_b32 v5, 3, v4'); a('v_bfe_u32 v6, v4, 3, 1'); a('v_lshl_or_b32 v5, v6, 2, v5'); a('v_lshlrev_b32 v5, 1, v5')
a('s_and_b32 s66, s32, 3'); a('s_lshl_b32 s66, s66, 2')
a('v_and_b32 v6, 3, v0'); a('v_add_u32 v6, s66, v6'); a('v_xor_b32 v5, v5, v6')
a('v_lshlrev_b32 v4, 8, v4'); a(f'v_lshl_add_u32 v{AB+1}, v5, 4, v4')
a('s_lshr_b32 s66, s32, 2'); a('s_lshl_b32 s66, s66, 14'); a(f'v_add_u32 v{AB+1}, s66, v{AB+1}')
a('s_cmp_eq_u32 s35, 0'); a('s_cbranch_scc1 L_aux_w')
a('s_and_b32 s67, s32, 3'); a(f's_mul_i32 s67, s67, {20*128}'); a('s_add_u32 s66, s66, s67')
a(f'v_lshlrev_b32 v{AB+1}, 4, v0'); a(f'v_add_u32 v{AB+1}, s66, v{AB+1}')
a('L_aux_w:')
a('s_mov_b32 s46, 0')
a('s_lshl_b32 s77, s29, 1'); a('s_add_u32 s77, s77, s31'); a('s_lshl_b32 s77, s77, 11'); a('s_lshr_b32 s67, s32, 2'); a('s_lshl_b32 s67, s67, 10'); a('s_add_u32 s77, s77, s67'); a(f's_add_u32 s77, s77, {WS_WP}')
a('s_and_b32 s67, s32, 3'); a('s_cmp_eq_u32 s35, 1'); a('s_cselect_b32 s68, 20, 32'); a('s_mul_i32 s67, s67, s68'); a('s_lshl_b32 s67, s67, 3'); a('s_add_u32 s77, s77, s67')
a(f'v_min_u32 v{AB+6}, 47, v0'); a(f'v_lshlrev_b32 v{AB+6}, 2, v{AB+6}')
a('s_mul_i32 s74, s38, 80'); a('s_add_u32 s75, s74, 79'); a('s_lshr_b32 s74, s74, 7'); a('s_lshr_b32 s75, s75, 7')
a('s_lshl_b32 s74, s74, 8'); a('s_lshl_b32 s75, s75, 8'); a(f's_add_u32 s74, s74, {WS_FW}'); a(f's_add_u32 s75, s75, {WS_FW}')
a('s_mov_b32 s47, 0')
a('s_waitcnt lgkmcnt(0)')
a('L_aux_l:')
tick(7, ('s47', 0))
a('s_barrier')
tick(7, ('s47', 16))
a(f'v_add_u32 v{AB+3}, s46, v{AB+1}')
a(f's_cmp_lg_u32 s47, {NONIT-1}'); a('s_cbranch_scc1 L_aux_nb')
a('s_mov_b64 exec, 1'); a('buffer_load_dword v2, v1, s[24:27], 0 offen sc1'); a('s_mov_b64 exec, -1')
a('L_aux_nb:')
a(f's_cmp_lg_u32 s47, {NONIT}'); a('s_cbranch_scc1 L_aux_na')
a('s_mov_b32 s79, 0')
a('L_non:')
a('s_waitcnt vmcnt(0)')
a('v_readfirstlane_b32 s43, v2')
a('s_cmp_lg_u32 s43, 0'); a('s_cbranch_scc1 L_non_ok')
a('s_add_u32 s79, s79, 1'); a(f's_cmp_ge_u32 s79, {SPINMAX}'); a('s_cbranch_scc1 L_non_ok')
a('s_sleep 4')
a('s_mov_b64 exec, 1'); a('buffer_load_dword v2, v1, s[24:27], 0 offen sc1'); a('s_mov_b64 exec, -1')
a('s_branch L_non')
a('L_non_ok:')
a('v_mov_b32 v2, s43'); a(f'v_mov_b32 v3, {L_NON}'); a('ds_write_b32 v3, v2')
a('s_cmp_ge_u32 s2, 240'); a('s_cbranch_scc1 L_aux_na')
a(f's_mul_hi_u32 s66, s2, {-(-(1<<32)//5)}'); a('s_mul_i32 s67, s66, 5'); a('s_sub_u32 s67, s2, s67')
a('s_lshl_b32 s67, s67, 8'); a('s_lshl_b32 s66, s66, 2'); a('s_add_u32 s66, s66, s67'); a(f's_add_u32 s66, s66, {WS_FW}')
a('s_mov_b64 exec, 1'); a('buffer_store_dword v2, v1, s[12:15], s66 offen sc1'); a('s_mov_b64 exec, -1')
a('L_aux_na:')
def fw_ask():
    a(f'buffer_load_dword v{AB+2}, v{AB+6}, s[12:15], s74 offen sc1'); a(f'buffer_load_dword v{AB+3}, v{AB+6}, s[12:15], s75 offen sc1')
def fw_ask2():
    a(f'buffer_load_dword v62, v{AB+6}, s[12:15], s74 offen sc1'); a(f'buffer_load_dword v63, v{AB+6}, s[12:15], s75 offen sc1')
def fw_check(nm):
    a('s_mov_b32 s79, 0')
    a(f'{nm}:')
    a('s_waitcnt vmcnt(0)')
    a('v_cmp_ne_u32 vcc, s43, v62'); a('v_cmp_ne_u32 s[66:67], s43, v63'); a('s_or_b64 vcc, vcc, s[66:67]')
    a(f's_cbranch_scc0 {nm}_ok')
    a('s_add_u32 s79, s79, 1'); a(f's_cmp_ge_u32 s79, {SPINMAX}'); a(f's_cbranch_scc1 {nm}_ok')
    a('s_sleep 4')
    fw_ask2()
    a(f's_branch {nm}')
    a(f'{nm}_ok:')

T0, T1 = AB + 4, AB + 5
a('s_cmp_eq_u32 s35, 1'); a('s_cbranch_scc1 L_aux_c')
for i in range(4): a(f'ds_read_b128 v[{24+4*i}:{27+4*i}], v{AB+3} offset:{i*4096}')
a('s_waitcnt lgkmcnt(0)')
for i in range(4):
    for d in range(4):
        r = 24 + 4*i + d
        a(f'v_lshlrev_b32 v{T0}, 16, v{r}'); a(f'v_and_b32 v{T1}, 0xffff0000, v{r}')
        a(f'v_add_f32 v{48+2*d}, v{48+2*d}, v{T0}'); a(f'v_add_f32 v{49+2*d}, v{49+2*d}, v{T1}')
a('s_branch L_aux_x')
a('L_aux_c:')
for i in range(3): a(f'ds_read_b128 v[{24+4*i}:{27+4*i}], v{AB+3} offset:{i*1024}')
a('s_waitcnt lgkmcnt(0)')
for i in range(3):
    for d in range(4):
        r = 24 + 4*i + d
        a(f'v_lshlrev_b32 v{T0}, 16, v{r}'); a(f'v_and_b32 v{T1}, 0xffff0000, v{r}')
        a(f'v_add_f32 v{48+2*i}, v{48+2*i}, v{T0}'); a(f'v_add_f32 v{49+2*i}, v{49+2*i}, v{T1}')
a('L_aux_x:')
a(f's_add_u32 s46, s46, {STG}'); a(f's_cmp_eq_u32 s46, {3*STG}'); a('s_cselect_b32 s46, 0, s46')
a('s_add_u32 s47, s47, 1'); a('s_cmp_lt_u32 s47, 5'); a('s_cbranch_scc1 L_aux_l')
tick(7, 5)
a('s_barrier')
tick(7, 21)
p2_setup()
def red8(regs):
    for mod in ('quad_perm:[1,0,3,2]', 'quad_perm:[2,3,0,1]', 'row_half_mirror'):
        a('s_nop 1')
        for r in regs: a(f'v_add_f32_dpp v{r}, v{r}, v{r} {mod} row_mask:0xf bank_mask:0xf')
a('s_cmp_eq_u32 s35, 1'); a('s_cbranch_scc1 L_aux_pc')
for mod in ('row_ror:4', 'row_ror:8'):
    a('s_nop 1')
    for r in range(48, 56): a(f'v_add_f32_dpp v{r}, v{r}, v{r} {mod} row_mask:0xf bank_mask:0xf')
for sw in ('v_permlane16_swap_b32', 'v_permlane32_swap_b32'):
    for r in range(48, 56): a(f'v_mov_b32 v{r-24}, v{r}')
    a('s_nop 1')
    for r in range(48, 56): a(f'{sw} v{r}, v{r-24}')
    a('s_nop 1')
    for r in range(48, 56): a(f'v_add_f32 v{r}, v{r}, v{r-24}')
for d in range(4):
    a(f'v_cmp_eq_u32 vcc, {d}, v6') if d else a('v_lshrrev_b32 v6, 2, v0')
    if d == 0:
        a('v_mov_b32 v24, v48'); a('v_mov_b32 v26, v49')
    else:
        a('s_nop 1'); a(f'v_cndmask_b32 v24, v24, v{48+2*d}, vcc'); a(f'v_cndmask_b32 v26, v26, v{49+2*d}, vcc')
a('v_mov_b32 v25, s43'); a('v_mov_b32 v27, s43')
a('v_and_b32 v4, 3, v0'); a('v_lshlrev_b32 v4, 6, v4'); a('v_lshl_add_u32 v4, v6, 4, v4')
a('s_mov_b64 exec, 0xffff')
a('buffer_store_dwordx4 v[24:27], v4, s[12:15], s77 offen sc1')
a('s_branch L_aux_pub')
a('L_aux_pc:')
for i in range(3): a(f'v_add_f32 v{48+i*2}, v{48+i*2}, v{49+i*2}')
red8([48, 50, 52])
for i in range(3): a(f'v_mov_b32 v{49+i*2}, s43')
a('s_mov_b32 exec_lo, 0x01010101'); a('s_mov_b32 exec_hi, 0x01010101')
a('buffer_store_dwordx2 v[48:49], v0, s[12:15], s77 offen sc1')
a('buffer_store_dwordx2 v[50:51], v0, s[12:15], s77 offen offset:64 sc1')
a('s_mov_b32 exec_hi, 0')
a('buffer_store_dwordx2 v[52:53], v0, s[12:15], s77 offen offset:128 sc1')
a('L_aux_pub:')
a('s_mov_b64 exec, -1')
tick(7, 6)
a('s_barrier')
tick(7, 22)
fw_ask2()
tick(7, 7)
a('s_barrier')
tick(7, 23)
fw_check('L_pollwf')
a('s_lshl_b32 s66, s28, 13'); a(f's_add_u32 s66, s66, {WS_XP}'); a('s_add_u32 s68, s66, 4096')
a('s_lshl_b32 s67, s29, 12'); a(f's_add_u32 s67, s67, {WS_WP}')
def gather():
    for i in range(8): a(f'buffer_load_dwordx4 v[{8+4*i}:{11+4*i}], v1, s[12:15], s{66 if i < 4 else 68} offen offset:{(i%4)*1024} sc1')
    for i in range(4): a(f'buffer_load_dwordx4 v[{40+4*i}:{43+4*i}], v1, s[12:15], s67 offen offset:{i*1024} sc1')
gather()
a('s_cmp_eq_u32 s35, 1'); a('s_cselect_b32 s69, 40, 64'); a('v_cmp_gt_u32 s[76:77], s69, v0')
tick(7, 8)
a('s_barrier')
tick(7, 24)
a('s_mov_b32 s79, 0')
a('s_waitcnt vmcnt(0)')
a('L_gchk:')
a('v_xor_b32 v2, s43, v10')
for i in range(1, 8): a(f'v_xor_b32 v3, s43, v{10+4*i}'); a('v_or_b32 v2, v2, v3')
a('v_xor_b32 v4, s43, v41')
for r in (43, 45, 47, 49, 51, 53, 55): a(f'v_xor_b32 v3, s43, v{r}'); a('v_or_b32 v4, v4, v3')
a('v_cmp_ne_u32 vcc, 0, v4'); a('s_and_b64 s[74:75], vcc, s[76:77]')
a('v_cmp_ne_u32 vcc, 0, v2'); a('s_or_b64 s[74:75], s[74:75], vcc')
a('s_cbranch_scc0 L_gok')
a('s_add_u32 s79, s79, 1'); a(f's_cmp_ge_u32 s79, {SPINMAX}'); a('s_cbranch_scc1 L_gok')
a('s_sleep 4')
gather()
a('s_waitcnt vmcnt(0)')
a('s_branch L_gchk')
a('L_gok:')
tick(7, 9)
for h in range(2):
    for d in range(2):
        b = 8 + 4*h + d
        a(f'v_add_f32 v{b}, v{b}, v{b+8}'); a(f'v_add_f32 v{b+16}, v{b+16}, v{b+24}'); a(f'v_add_f32 v{b}, v{b}, v{b+16}')
    a(f'v_add_f32 v{40+4*h}, v{40+4*h}, v{48+4*h}'); a(f'v_add_f32 v{41+4*h}, v{42+4*h}, v{50+4*h}')
a('v_lshlrev_b32 v2, 3, v0'); a(f'v_add_u32 v2, {L_CS}, v2')
a('ds_write_b64 v2, v[40:41]'); a('ds_write_b64 v2, v[44:45] offset:512')
for (s_, q_, ro, mo) in ((8, 9, 16, 18), (12, 13, 17, 19)):
    a(f'v_mul_f32 v{mo}, {1.0/D!r}, v{s_}')
    a(f'v_mul_f32 v{q_}, {1.0/D!r}, v{q_}')
    a(f'v_fma_f32 v{q_}, -v{mo}, v{mo}, v{q_}')
    a(f'v_max_f32 v{q_}, 0, v{q_}')
    rbf(mo); rbf(q_)
    a(f'v_add_f32 v{q_}, 0x3727c5ac, v{q_}')
    rbf(q_)
    a(f'v_sqrt_f32 v{q_}, v{q_}'); a('s_nop 0')
    rbf(q_)
    a(f'v_rcp_f32 v{ro}, v{q_}')
a('v_lshlrev_b32 v2, 2, v0'); a(f'v_add_u32 v2, {L_R}, v2')
a('ds_write_b32 v2, v16'); a('ds_write_b32 v2, v17 offset:256'); a('ds_write_b32 v2, v18 offset:512'); a('ds_write_b32 v2, v19 offset:768')
lds_arrive(24, 2)
tick(7, 10)
if opt('aprio', 0): a('s_setprio 0')
a('s_branch L_p2join')

a('L_compute:')
common_srds()
a(f's_mov_b32 s50, {(-2*STG) & 0xffffffff}'); a(f's_mov_b32 s51, {STG}')
a('s_mov_b32 s46, 0'); a('s_mov_b32 s47, 0')
p2h_setup()
a('v_lshrrev_b32 v2, 4, v0')
a('v_and_b32 v3, 15, v0')
a('v_bfe_u32 v6, v0, 1, 3'); a('v_xor_b32 v6, v6, v2')
a('s_cmp_ge_u32 s2, 240')
a('s_cbranch_scc1 L_nowd')
a(f's_mul_hi_u32 s76, s2, {-(-(1<<32)//5)}'); a('s_mul_i32 s77, s76, 5'); a('s_sub_u32 s77, s2, s77')
a('v_lshrrev_b32 v36, 2, v0'); a('v_and_b32 v37, 3, v0')
a(f'v_mul_u32_u24 v38, {D*2}, v36'); a('v_lshl_add_u32 v38, v37, 4, v38')
a(f's_mul_i32 s68, s76, {32*D*2}'); a('s_lshl_b32 s69, s77, 8'); a('s_add_u32 s68, s68, s69'); a('s_lshl_b32 s69, s3, 6'); a('s_add_u32 s68, s68, s69')
a('s_lshl_b32 s70, s3, 11'); a(f's_add_u32 s70, s70, {L_WD}')
a('s_mov_b32 m0, s70'); a('s_nop 0')
a('buffer_load_dwordx4 v38, s[20:23], s68 offen lds')
a('s_add_u32 m0, s70, 1024'); a(f's_add_u32 s68, s68, {16*D*2}')
a('buffer_load_dwordx4 v38, s[20:23], s68 offen lds')
a('L_nowd:')
def wd_finish():
    L = a.label('L_wdf')
    a('s_cmp_ge_u32 s2, 240'); a(f's_cbranch_scc1 {L}')
    a('v_lshlrev_b32 v36, 6, v36'); a('v_lshl_add_u32 v36, v37, 3, v36'); a('v_add_u32 v36, s70, v36')
    a('v_lshlrev_b32 v37, 4, v0')
    a('s_lshl_b32 s77, s77, 3'); a('s_lshl_b32 s68, s3, 1'); a('s_add_u32 s77, s77, s68')
    a(f's_mul_i32 s76, s76, 5120'); a(f's_add_u32 s76, s76, {WS_WDT}')
    a('s_waitcnt vmcnt(0)')
    for e in range(2):
        for b in range(2):
            a(f'ds_read_b64_tr_b16 v[{48+4*e+2*b}:{49+4*e+2*b}], v36 offset:{32*e + 1024*b}')
    for e in range(2):
        a(f's_add_u32 s68, s77, {e}')
        a(f's_mul_hi_u32 s69, s68, {-(-(1<<32)//5)}')
        a('s_mul_i32 s70, s69, 5'); a('s_sub_u32 s70, s68, s70')
        a(f's_mul_i32 s69, s69, {48*5120}'); a('s_lshl_b32 s70, s70, 10')
        a('s_add_u32 s69, s69, s70'); a('s_add_u32 s69, s69, s76')
        a('s_waitcnt lgkmcnt(0)')
        a(f'buffer_store_dwordx4 v[{48+4*e}:{51+4*e}], v37, s[12:15], s69 offen sc1')
    a(f'{L}:')
pre_loop()
a('s_cmp_eq_u32 s35, 1')
a('s_cbranch_scc1 L_dft')
def interleave(M, R):
    out = []; R = list(R)
    for m in M:
        out.append(m)
        if R: out.append(R.pop(0))
    return out + R
tails = []
def mid_sync(last):
    L = a.label('L_ms')
    a('s_cmp_ge_u32 s47, 8'); a(f's_cbranch_scc1 {L}_t')
    a('s_barrier')
    a(f'{L}_b:')
    tails.append((L, last))
CNTRD = 'ds_read2_b32 v[14:15], v6 offset0:3 offset1:6'
def emit_tails():
    for L, last in tails:
        a(f'{L}_t:')
        a('s_mov_b64 exec, 1')
        a('s_cmp_eq_u32 s47, 9'); a(f's_cbranch_scc1 {L}_9')
        a('ds_add_u32 v6, v5 offset:16')
        a('s_mov_b64 exec, -1')
        a('v_readfirstlane_b32 s78, v14')
        a('s_cmp_ge_u32 s78, 3'); a(f's_cbranch_scc1 {L}_b')
        lds_wait(f'{L}_w', 12, 14, 3)
        a(f's_branch {L}_b')
        a(f'{L}_9:')
        a('ds_add_u32 v6, v5 offset:20')
        a('s_mov_b64 exec, -1')
        a(f's_branch {last}')
def stats_wait(name):
    a('v_readfirstlane_b32 s78, v15')
    a('s_cmp_ge_u32 s78, 1'); a(f's_cbranch_scc1 {name}_ok')
    lds_wait(name, 24, 14, 1)
def slot_advance():
    a('s_add_u32 s46, s46, 1'); a('s_cmp_eq_u32 s46, 3'); a('s_cselect_b32 s42, s50, s51'); a('s_cselect_b32 s46, 0, s46')
ACC = 128
def T16(mat, mi, ni): return ACC + 64*mat + 16*mi + 4*ni
FR = 32
def fW(p, mat, mi): return FR + 48*p + 16*mat + 4*mi
def fX(p, ni): return FR + 48*p + 32 + 4*ni
AW, AX = 8, 12
a('s_and_b32 s44, s3, 1'); a('s_lshr_b32 s45, s3, 1')
a('v_bfe_u32 v7, v0, 2, 2')
a('v_lshl_add_u32 v4, v2, 3, v7'); a('v_lshlrev_b32 v4, 8, v4')
a('v_bfe_u32 v5, v0, 1, 1'); a('v_lshl_add_u32 v4, v5, 4, v4')
a('v_and_b32 v5, 1, v0'); a('v_lshl_add_u32 v4, v5, 3, v4')
a('v_and_b32 v5, 1, v2'); a('v_lshl_or_b32 v5, v5, 2, v7')
for mi in range(4):
    a('s_lshl_b32 s66, s44, 2'); a(f's_add_u32 s66, s66, {mi}')
    a('v_xor_b32 v7, s66, v5')
    a(f'v_lshl_add_u32 v{AW+mi}, v7, 5, v4')
a('s_lshl_b32 s66, s45, 13'); a('s_add_u32 s66, s66, 32768')
a('v_lshlrev_b32 v5, 7, v3'); a('v_add_u32 v5, s66, v5')
for ks in range(2):
    a(f'v_xor_b32 v7, {4*ks}, v6')
    a(f'v_lshl_add_u32 v{AX+ks}, v7, 4, v5')
for i in range(128): a(f'v_mov_b32 v{ACC+i}, 0')
def f_reads(p, ks):
    L = []
    def w(mat, mi):
        for b in range(2):
            L.append(f'ds_read_b64_tr_b16 v[{fW(p,mat,mi)+2*b}:{fW(p,mat,mi)+2*b+1}], v{AW+mi} offset:{mat*16384 + ks*8192 + b*1024}')
    w(0, 0)
    for ni in range(4): L.append(f'ds_read_b128 v[{fX(p,ni)}:{fX(p,ni)+3}], v{AX+ks} offset:{ni*2048}')
    for mat in range(2):
        for mi in range(4):
            if (mat, mi) != (0, 0): w(mat, mi)
    return L
def f_mfmas(p):
    L = []
    for i, (mat, mi) in enumerate([(mat, mi) for mat in range(2) for mi in range(4)]):
        for ni in (range(4) if i % 2 == 0 else range(3, -1, -1)):
            t = T16(mat, mi, ni)
            L.append(f'v_mfma_f32_16x16x32_bf16 v[{t}:{t+3}], v[{fW(p,mat,mi)}:{fW(p,mat,mi)+3}], v[{fX(p,ni)}:{fX(p,ni)+3}], v[{t}:{t+3}]')
    return L
wd_finish()
a('v_mov_b32 v5, 1'); a(f'v_mov_b32 v6, {L_CNT}')
tick(7, 0)
a('s_barrier')
tick(7, 16)
stamp(1)
for r in f_reads(0, 0): a(r)
a('L_floop:')
a('s_waitcnt lgkmcnt(0)')
for ins in interleave(f_mfmas(0), f_reads(1, 1) + [CNTRD]): a(ins)
a('s_waitcnt vmcnt(0) lgkmcnt(0)')
tick(7, ('s47', 1))
mid_sync('L_flast')
tick(7, ('s47', 17))
slot_advance()
for r in (AW, AX): a(f'v_add_u32 v{r}, s42, v{r}')
R = f_reads(0, 0)
R = R[:3] + [f'v_add_u32 v{r}, s42, v{r}' for r in (AW+1, AW+2, AW+3, AX+1)] + R[3:]
for ins in interleave(f_mfmas(1), R): a(ins)
a('s_add_u32 s47, s47, 1'); a('s_branch L_floop')
a('L_flast:')
pre_epilogue()
stats_wait('L_fst')
tick(7, 40)
CSB = 48
P = []
P += ['s_lshl_b32 s66, s45, 8', f's_add_u32 s66, s66, {L_R}', 'v_lshlrev_b32 v4, 2, v3', 'v_add_u32 v4, s66, v4']
for ni in range(4):
    P += [f'ds_read_b32 v{40+ni}, v4 offset:{64*ni}', f'ds_read_b32 v{44+ni}, v4 offset:{512 + 64*ni}']
P += [f'v_mov_b32 v10, {L_CNT}', 'ds_read_b32 v8, v10 offset:32']
P += ['s_lshl_b32 s66, s44, 8', f's_add_u32 s66, s66, {L_CS}', 'v_lshlrev_b32 v5, 4, v2', 'v_add_u32 v5, s66, v5']
for mat in range(2):
    for mi in range(4):
        r = CSB + 16*mat + 4*mi
        P.append(f'ds_read_b128 v[{r}:{r+3}], v5 offset:{mat*512 + mi*64}')
P += ['v_lshlrev_b32 v1, 4, v0', 'v_mov_b32 v9, 0']
P += ['s_lshl_b32 s66, s28, 3', 's_lshl_b32 s67, s45, 2', 's_add_u32 s66, s66, s67', 's_mul_i32 s66, s66, 48',
      's_lshl_b32 s67, s29, 2', 's_add_u32 s66, s66, s67', 's_lshl_b32 s67, s44, 1', 's_add_u32 s66, s66, s67', 's_lshl_b32 s66, s66, 10']
P += ['s_lshl_b32 s70, s28, 8', 's_lshl_b32 s71, s29, 4', 's_add_u32 s70, s70, s71', 's_lshl_b32 s71, s3, 2', 's_add_u32 s70, s70, s71', f's_add_u32 s70, s70, {WS_FH}']
M = f_mfmas(1)
for i, m in enumerate(M):
    a(m)
    for _ in range(2):
        if P: a(P.pop(0))
for x_ in P: a(x_)
stamp(2)
a('s_waitcnt lgkmcnt(0)')
a('v_readfirstlane_b32 s43, v8')
for ni in range(4):
    c = 80 + 6*ni
    a(f'v_sub_f32 v{c}, 0, v{44+ni}')
    a(f'v_mul_f32 v{c+2}, {-1.4426950408889634!r}, v{40+ni}')
    a(f'v_mul_f32 v{c+4}, v{40+ni}, v{40+ni}')
for ni in range(4): a(f'v_rcp_f32 v{84+6*ni}, v{84+6*ni}')
tick(7, 42)
BC = 'op_sel_hi:[1,0,1]'
for ni in range(1, 4): a(f's_add_u32 s{66+ni}, s{65+ni}, {48*1024}')
for kp in range(2):
    for ni in range(4):
        if kp == 1 and ni == VCHK - 1: a('ds_read_b32 v11, v10 offset:28')
        if kp == 1 and ni == VCHK:
            a('s_waitcnt lgkmcnt(0)'); a('v_readfirstlane_b32 s79, v11')
            a('s_cmp_lg_u32 s79, 1'); a('s_cbranch_scc1 L_fnov')
            v_loads()
            a('L_fnov:')
        c = 80 + 6*ni
        seq = []
        prs = [(2*kp + h, d) for h in range(2) for d in (0, 2)]
        for n, (mi, d) in enumerate(prs):
            g = T16(0, mi, ni) + d; u = T16(1, mi, ni) + d
            a(f'v_pk_fma_f32 v[{g}:{g+1}], v[{CSB+4*mi+d}:{CSB+1+4*mi+d}], v[{c}:{c+1}], v[{g}:{g+1}] {BC}')
            a(f'v_pk_fma_f32 v[{u}:{u+1}], v[{CSB+16+4*mi+d}:{CSB+17+4*mi+d}], v[{c}:{c+1}], v[{u}:{u+1}] {BC}')
            a(f'v_pk_mul_f32 v[{104+2*n}:{105+2*n}], v[{g}:{g+1}], v[{c+2}:{c+3}] op_sel_hi:[1,0]')
        for n in range(8): a(f'v_exp_f32 v{104+n}, v{104+n}')
        for n, (mi, d) in enumerate(prs):
            g = T16(0, mi, ni) + d; u = T16(1, mi, ni) + d
            a(f'v_pk_mul_f32 v[{g}:{g+1}], v[{g}:{g+1}], v[{u}:{u+1}]')
            a(f'v_pk_fma_f32 v[{104+2*n}:{105+2*n}], v[{104+2*n}:{105+2*n}], v[{c+4}:{c+5}], v[{c+4}:{c+5}] op_sel_hi:[1,0,0]')
        for n in range(8): a(f'v_rcp_f32 v{104+n}, v{104+n}')
        a('s_nop 0')
        o = 112 + 4*ni
        for n, (mi, d) in enumerate(prs):
            g = T16(0, mi, ni) + d
            a(f'v_pk_mul_f32 v[{g}:{g+1}], v[{g}:{g+1}], v[{104+2*n}:{105+2*n}]')
        for n, (mi, d) in enumerate(prs):
            g = T16(0, mi, ni) + d
            a(f'v_cvt_pk_bf16_f32 v{o+n}, v{g}, v{g+1}')
        a(f'buffer_store_dwordx4 v[{o}:{o+3}], v1, s[12:15], s{66+ni} offen offset:{kp*1024} {STP}')
        tick(7, 43 + 4*kp + ni)
tick(7, 32)
stamp(3)
a('s_waitcnt vmcnt(0)'); a('s_mov_b64 exec, 1')
a('buffer_store_dword v8, v9, s[12:15], s70 offen sc1'); a('s_mov_b64 exec, -1')
if VCHK == 4:
    a('s_waitcnt lgkmcnt(0)'); a('v_readfirstlane_b32 s79, v11')
    a('s_cmp_lg_u32 s79, 1'); a('s_cbranch_scc1 L_fnov')
    v_loads()
    a('L_fnov:')
tick_dump(7, 4)
a('s_branch L_helper')

a('L_dft:')
DACC = 176
def TD(part, mi, et): return DACC + 40*part + 20*mi + 4*et
DFR = 40
def dX(p, mi): return DFR + 48*p + 4*mi
def dC(p, part, et): return DFR + 48*p + 8 + 20*part + 4*et
DX, DC = 8, 10
FCOS, FSIN, FNS = 136, 144, 152
a('v_lshlrev_b32 v5, 7, v3')
a('s_lshl_b32 s66, s3, 12'); a('s_add_u32 s66, s66, 32768')
for ks in range(2):
    a(f'v_xor_b32 v7, {4*ks}, v6')
    a(f'v_lshl_add_u32 v{DC+ks}, v7, 4, v5')
    a(f'v_add_u32 v{DX+ks}, s66, v{DC+ks}')
for i in range(80): a(f'v_mov_b32 v{DACC+i}, 0')
a('s_and_b32 s45, s30, 1'); a('s_sub_u32 s45, 3, s45')
a('v_lshrrev_b32 v12, 3, v3'); a('v_and_b32 v13, 7, v3'); a('v_lshlrev_b32 v13, 4, v13'); a('v_lshl_add_u32 v12, v12, 2, v13'); a('v_add_u32 v12, s3, v12')
a('v_lshlrev_b32 v13, 5, v2'); a('v_add_u32 v13, s28, v13'); a('v_cvt_f32_u32 v13, v13')
for mt in range(2):
    a(f'v_add_u32 v14, {8*mt}, v12'); a('v_cvt_f32_u32 v14, v14'); a(f'v_mul_f32 v14, {1.0/2048!r}, v14')
    for d in range(4):
        for h in range(2):
            a(f'v_add_f32 v{60+h}, {float(16*h + 128*d)!r}, v13')
            a(f'v_mul_f32 v{60+h}, v{60+h}, v14')
        a('v_cos_f32 v62, v60'); a('v_cos_f32 v63, v61'); a('v_sin_f32 v64, v60'); a('v_sin_f32 v65, v61')
        a(f'v_cvt_pk_bf16_f32 v{FCOS+4*mt+d}, v62, v63')
        a(f'v_cvt_pk_bf16_f32 v{FSIN+4*mt+d}, v64, v65')
        a(f'v_xor_b32 v{FNS+4*mt+d}, 0x80008000, v{FSIN+4*mt+d}')
def d_reads(p, ks):
    L = [f'ds_read_b128 v[{dX(p,mi)}:{dX(p,mi)+3}], v{DX+ks} offset:{mi*2048}' for mi in range(2)]
    for part in range(2):
        for et in range(5):
            L.append(f'ds_read_b128 v[{dC(p,part,et)}:{dC(p,part,et)+3}], v{DC+ks} offset:{part*16384 + et*2048}')
    return L
def d_mfmas(p):
    L = []
    i = 0
    for part in range(2):
        for et in range(5):
            for mi in ((0, 1) if i % 2 == 0 else (1, 0)):
                t = TD(part, mi, et)
                L.append(f'v_mfma_f32_16x16x32_bf16 v[{t}:{t+3}], v[{dX(p,mi)}:{dX(p,mi)+3}], v[{dC(p,part,et)}:{dC(p,part,et)+3}], v[{t}:{t+3}]')
            i += 1
    return L
wd_finish()
a('v_mov_b32 v5, 1'); a(f'v_mov_b32 v6, {L_CNT}')
for i in range(32, 36): a(f'v_mov_b32 v{i}, 0')
tick(7, 0)
a('s_barrier')
tick(7, 16)
stamp(1)
for r in d_reads(0, 0): a(r)
def xstat(p):
    L = []
    for mi in range(2):
        for d in range(4):
            r = dX(p, mi) + d; t = 36 + 2*(d & 1)
            L += [f'v_lshlrev_b32 v{t}, 16, v{r}', f'v_and_b32 v{t+1}, 0xffff0000, v{r}',
                  f'v_add_f32 v{32+2*mi}, v{32+2*mi}, v{t}', f'v_fmac_f32 v{33+2*mi}, v{t}, v{t}',
                  f'v_add_f32 v{32+2*mi}, v{32+2*mi}, v{t+1}', f'v_fmac_f32 v{33+2*mi}, v{t+1}, v{t+1}']
    return L
def interleave2(M, R, per):
    out = []; R = list(R)
    for m in M:
        out.append(m)
        for _ in range(per):
            if R: out.append(R.pop(0))
    return out + R
def dloop(name, stats):
    a(f'{name}:')
    a('s_waitcnt lgkmcnt(0)')
    for ins in interleave2(d_mfmas(0), d_reads(1, 1) + (xstat(0) if stats else [CNTRD]), 3 if stats else 1): a(ins)
    a('s_waitcnt vmcnt(0) lgkmcnt(0)' if stats else 's_waitcnt lgkmcnt(0)')
    tick(7, ('s47', 1))
    if stats: a('s_barrier')
    else: mid_sync('L_dlast')
    tick(7, ('s47', 17))
    slot_advance()
    for r in (DX, DC): a(f'v_add_u32 v{r}, s42, v{r}')
    R = d_reads(0, 0) + [f'v_add_u32 v{r}, s42, v{r}' for r in (DX+1, DC+1)]
    for ins in interleave2(d_mfmas(1), R + (xstat(1) if stats else []), 3 if stats else 1): a(ins)
    a('s_add_u32 s47, s47, 1')
    if stats: a('s_cmp_lt_u32 s47, s45'); a(f's_cbranch_scc1 {name}')
    else: a(f's_branch {name}')
dloop('L_dloopA', True)
a(f'v_mov_b32 v36, {L_NON}'); a('ds_read_b32 v14, v36')
for sw in ('v_permlane16_swap_b32', 'v_permlane32_swap_b32'):
    for r in range(32, 36): a(f'v_mov_b32 v{r+4}, v{r}')
    a('s_nop 1')
    for r in range(32, 36): a(f'{sw} v{r}, v{r+4}')
    a('s_nop 1')
    for r in range(32, 36): a(f'v_add_f32 v{r}, v{r}, v{r+4}')
a('s_lshl_b32 s66, s28, 2'); a('s_add_u32 s66, s66, s30'); a('s_lshl_b32 s66, s66, 11'); a('s_lshl_b32 s67, s3, 9'); a('s_add_u32 s66, s66, s67'); a(f's_add_u32 s66, s66, {WS_XP}')
a('v_cmp_gt_u32 vcc, 16, v0'); a('v_lshlrev_b32 v38, 4, v0')
a('s_waitcnt lgkmcnt(0)')
a('v_cndmask_b32 v12, v34, v32, vcc'); a('v_cndmask_b32 v13, v35, v33, vcc'); a('v_mov_b32 v15, v14')
a('v_readfirstlane_b32 s43, v14')
a('s_mov_b32 exec_hi, 0')
a('buffer_store_dwordx4 v[12:15], v38, s[12:15], s66 offen sc1')
a('s_mov_b64 exec, -1')
a('s_nop 0')
dloop('L_dloopB', False)
a('L_dlast:')
pre_epilogue()
stats_wait('L_dst')
tick(7, 40)
DP = []
DP.append('s_lshl_b32 s66, s3, 7'); DP.append(f's_add_u32 s66, s66, {L_R}')
DP.append('v_lshlrev_b32 v4, 4, v2'); DP.append('v_add_u32 v4, s66, v4')
for mi in range(2):
    DP.append(f'ds_read_b128 v[{40+4*mi}:{43+4*mi}], v4 offset:{64*mi}')
    DP.append(f'ds_read_b128 v[{48+4*mi}:{51+4*mi}], v4 offset:{512 + 64*mi}')
DP.append('v_lshlrev_b32 v5, 2, v3'); DP.append(f'v_add_u32 v5, {L_CS}, v5')
for part in range(2):
    for et in range(5): DP.append(f'ds_read_b32 v{56+2*(5*part+et)}, v5 offset:{part*512 + et*64}')
DP.append(f'v_mul_u32_u24 v8, {ZROW}, v3'); DP.append('v_lshl_add_u32 v8, v2, 2, v8'); DP.append('s_lshl_b32 s66, s3, 4'); DP.append('v_add_u32 v8, s66, v8')
DP.append('ds_read_b32 v14, v6 offset:20')
for ins in interleave2(d_mfmas(1), DP, 2): a(ins)
stamp(2)
a('s_waitcnt lgkmcnt(0)')
a('v_readfirstlane_b32 s78, v14')
a('s_cmp_ge_u32 s78, 4'); a('s_cbranch_scc1 L_dc9_ok')
lds_wait('L_dc9', 20, 14)
tick(7, 41)
for et in range(5):
    for mi in range(2):
        for part in range(2):
            t = TD(part, mi, et); c = 56 + 2*(5*part + et)
            for d in (0, 2):
                a(f'v_pk_fma_f32 v[{t+d}:{t+d+1}], v[{48+4*mi+d}:{49+4*mi+d}], v[{c}:{c+1}], v[{t+d}:{t+d+1}] op_sel_hi:[1,0,1] neg_lo:[1,0,0] neg_hi:[1,0,0]')
            for d in (0, 2):
                a(f'v_pk_mul_f32 v[{t+d}:{t+d+1}], v[{t+d}:{t+d+1}], v[{40+4*mi+d}:{41+4*mi+d}]')
        y = 80 + 16*mi
        for part in range(2):
            t = TD(part, mi, et)
            a(f'v_pk_add_f32 v[{y+4*part}:{y+4*part+1}], v[{t}:{t+1}], v[{t+2}:{t+3}]')
            a(f'v_pk_add_f32 v[{y+4*part+2}:{y+4*part+3}], v[{t}:{t+1}], v[{t+2}:{t+3}] neg_lo:[0,1] neg_hi:[0,1]')
        pa, qa, ra, sa, pb, qb, rb, sb = range(y, y+8); o = y + 8
        a(f'v_add_f32 v{o}, v{pa}, v{qa}'); a(f'v_add_f32 v{o+1}, v{pb}, v{qb}')
        a(f'v_add_f32 v{o+2}, v{ra}, v{sb}'); a(f'v_sub_f32 v{o+3}, v{rb}, v{sa}')
        a(f'v_sub_f32 v{o+4}, v{pa}, v{qa}'); a(f'v_sub_f32 v{o+5}, v{pb}, v{qb}')
        a(f'v_sub_f32 v{o+6}, v{ra}, v{sb}'); a(f'v_add_f32 v{o+7}, v{rb}, v{sa}')
    for cpart in range(8):
        a(f'v_cvt_pk_bf16_f32 v{112+cpart}, v{88+cpart}, v{104+cpart}')
    for cpart in range(8):
        a(f'ds_write_b32 v8, v{112+cpart} offset:{L_Z + (cpart*80 + 16*et)*ZROW}')
tick(7, 42)
lds_arrive(4, 9)
lds_wait('L_zw', 4, 9)
tick(7, 43)
a(f'v_mul_u32_u24 v8, {ZROW}, v3'); a('v_lshl_add_u32 v8, v2, 4, v8'); a(f's_mul_i32 s66, s3, {2*80*ZROW}'); a('v_add_u32 v8, s66, v8')
for part in range(2):
    for et in range(5):
        r = 40 + 20*part + 4*et
        a(f'ds_read_b128 v[{r}:{r+3}], v8 offset:{L_Z + (part*80 + 16*et)*ZROW}')
lds_arrive(8, 9)
tick(7, 44)
def VR(mt, et): return DACC + 20*mt + 4*et
def VI(mt, et): return DACC + 40 + 20*mt + 4*et
for et in range(5):
    ya = 40 + 4*et; yb = 60 + 4*et
    for mt in range(2):
        a(f'v_mfma_f32_16x16x32_bf16 v[{VR(mt,et)}:{VR(mt,et)+3}], v[{FCOS+4*mt}:{FCOS+4*mt+3}], v[{ya}:{ya+3}], 0')
        a(f'v_mfma_f32_16x16x32_bf16 v[{VI(mt,et)}:{VI(mt,et)+3}], v[{FNS+4*mt}:{FNS+4*mt+3}], v[{ya}:{ya+3}], 0')
    for mt in range(2):
        a(f'v_mfma_f32_16x16x32_bf16 v[{VR(mt,et)}:{VR(mt,et)+3}], v[{FSIN+4*mt}:{FSIN+4*mt+3}], v[{yb}:{yb+3}], v[{VR(mt,et)}:{VR(mt,et)+3}]')
        a(f'v_mfma_f32_16x16x32_bf16 v[{VI(mt,et)}:{VI(mt,et)+3}], v[{FCOS+4*mt}:{FCOS+4*mt+3}], v[{yb}:{yb+3}], v[{VI(mt,et)}:{VI(mt,et)+3}]')
tick(7, 45)
a('v_lshrrev_b32 v8, 1, v2'); a(f'v_mul_u32_u24 v8, {8*5120}, v8')
a('v_and_b32 v9, 1, v2'); a(f'v_mul_u32_u24 v10, 5120, v9'); a('v_add_u32 v8, v8, v10'); a('v_lshl_add_u32 v8, v3, 4, v8')
a('s_mul_i32 s66, s28, 17'); a('s_add_u32 s67, s66, s3'); a(f's_mul_i32 s67, s67, 10240'); a(f's_mul_i32 s68, s30, 1280')
a(f's_add_u32 s68, s68, {WS_V}'); a('s_add_u32 s67, s67, s68')
a('s_add_u32 s66, s66, 16'); a('s_mul_i32 s66, s66, 10240'); a('s_add_u32 s66, s66, s68')
a('s_nop 4')
for mt in range(2):
    for et in range(5):
        o = 80 + 20*mt + 4*et
        for i in range(4): a(f'v_cvt_pk_bf16_f32 v{o+i}, v{VR(mt,et)+i}, v{VI(mt,et)+i}')
        a(f'buffer_store_dwordx4 v[{o}:{o+3}], v8, s[12:15], s67 offen offset:{256*et} {STP}')
    if mt == 0: a(f's_add_u32 s67, s67, {16*5120}')
tick(7, 46)
a('s_cmp_lg_u32 s3, 0')
a('s_cbranch_scc1 L_signal')
a('v_cvt_f32_u32 v62, s28'); a('v_mul_f32 v62, 0.0625, v62'); a('v_cos_f32 v63, v62'); a('v_sin_f32 v64, v62')
a('v_cmp_gt_u32 vcc, 16, v0')
a('v_lshlrev_b32 v11, 4, v3'); a('v_add_u32 v9, v10, v11')
for et in range(5):
    o = 80 + 4*et; vr = VR(0, et); vi = VI(0, et); n = 40 + 4*et
    a(f'v_mul_f32 v65, v63, v{vr}'); a(f'v_fmac_f32 v65, v64, v{vi}')
    a(f'v_mul_f32 v66, v63, v{vi}'); a(f'v_fma_f32 v66, -v64, v{vr}, v66')
    a(f'v_cvt_pk_bf16_f32 v65, v65, v66')
    a(f'v_cndmask_b32 v65, v{o}, v65, vcc')
    a(f'v_mov_b32 v{n}, v{o+1}')
    a(f'v_mov_b32 v66, v65')
    a(f'v_mov_b32 v{n+1}, v{o+2}'); a(f'v_mov_b32 v{n+2}, v{o+3}')
    a(f'v_permlane16_swap_b32 v65, v66')
    a('s_nop 1')
    a(f'v_cndmask_b32 v{n+3}, v65, v66, vcc')
a('s_mov_b32 exec_hi, 0')
for et in range(5):
    a(f'buffer_store_dwordx4 v[{40+4*et}:{43+4*et}], v9, s[12:15], s66 offen offset:{256*et} {STP}')
a('s_mov_b64 exec, -1')

a('L_signal:')
a('s_mov_b32 s79, 0')
tick(7, 32)
stamp(3)
a('s_lshl_b32 s66, s30, 2'); a('s_add_u32 s66, s66, s3'); a('s_lshl_b32 s66, s66, 7'); a('s_lshl_b32 s67, s28, 2'); a('s_add_u32 s66, s66, s67'); a(f's_add_u32 s66, s66, {WS_FV}')
a('v_mov_b32 v4, s43'); a('v_mov_b32 v5, 0')
a('s_waitcnt vmcnt(0)'); a('s_mov_b64 exec, 1')
a('buffer_store_dword v4, v5, s[12:15], s66 offen sc1'); a('s_mov_b64 exec, -1')
tick_dump(7, 4)
a('L_helper:')
lds_arrive(0, 4)
lds_wait('L_hc9', 20, 40)
a('s_cmp_eq_u32 s35, 0'); a('s_cbranch_scc1 L_hnz')
lds_wait('L_hzc', 8, 40)
a('L_hnz:')
a('s_mov_b32 s44, s3')
p2_setup()
a('s_cmp_eq_u32 s35, 0'); a('s_cbranch_scc1 L_hf')
for st in range(6, 12 - NLATE): wdt_lds(st)
a('L_hf:')
for st in range(12 - NLATE, 12): wdt_lds(st)
a('s_waitcnt vmcnt(0)')
lds_arrive(36, 4)
stamp(4)

a('s_cmp_eq_u32 s79, 1'); a('s_cbranch_scc1 L_vdone')
if VGO: a('s_cmp_lg_u32 s3, 3'); a('s_cbranch_scc1 L_vwait')
spin_begin('L_pollv')
a(f'buffer_load_dword v53, v{VFL}, s[12:15], s60 offen sc1')
a('s_waitcnt vmcnt(0)')
a('v_cmp_ne_u32 vcc, s43, v53')
a('s_cmp_eq_u64 vcc, 0')
spin_end('L_pollv')
if VGO:
    lds_arrive(28, 40)
    a('L_vwait:')
    lds_wait('L_vc', 28, 40, 1)
    lds_wait('L_vgo', 40, 40, 1)
v_loads()
a('L_vdone:')
stamp(5)
a('v_lshrrev_b32 v4, 2, v3'); a('v_and_b32 v5, 3, v3'); a('v_lshl_add_u32 v7, v5, 2, v4')
a('s_mul_i32 s66, s55, 15'); a('v_xor_b32 v4, s66, v7')
a('v_cvt_f32_u32 v4, v4'); a('v_mul_f32 v4, 0.0625, v4')
a('v_lshlrev_b32 v5, 2, v2'); a('v_cvt_f32_u32 v5, v5')
for i in range(4):
    a(f'v_add_f32 v52, {float(i)!r}, v5'); a('v_mul_f32 v52, v52, v4')
    a('v_cos_f32 v53, v52'); a('v_sin_f32 v54, v52'); a('s_nop 0')
    a(f'v_cvt_pk_bf16_f32 v{8+i}, v53, v54')
a(f's_mov_b32 s47, {PN}'); a('s_cmp_eq_u32 s55, 1'); a(f's_cselect_b32 s47, {(-PN) & 0xffffffff}, s47')
a(f'v_mul_u32_u24 v56, {PQ}, v2'); a('v_lshl_add_u32 v56, v3, 4, v56'); a(f's_mul_i32 s66, s55, {3*PN}'); a('v_add_u32 v56, s66, v56')
for k4 in range(1, 4): a(f'v_add_u32 v{56+k4}, s47, v{55+k4}')
def spec_tile(off_s, vb):
    for k4 in range(4):
        for i in range(4): a(f'v_mov_b32 v{64+4*k4+i}, v{vb+4*i+k4}')
    a('s_nop 1')
    for k4 in range(4):
        c = 80 + 4*k4
        a(f'v_mfma_f32_16x16x32_bf16 v[{c}:{c+3}], v[{64+4*k4}:{67+4*k4}], v[8:11], 0')
    for k4 in range(4): a(f'v_add_u32 v{40+k4}, {off_s}, v{56+k4}')
    a('s_nop 5')
    for k4 in range(4):
        c = 80 + 4*k4
        a(f'ds_write_b128 v{40+k4}, v[{c}:{c+3}]')
a('s_cmp_eq_u32 s3, 1'); a(f's_mov_b32 s73, {ST[0]}'); a(f's_cselect_b32 s73, {ST[1]}, s73')
a('s_cmp_eq_u32 s3, 2'); a(f's_cselect_b32 s73, {ST[2]}, s73')
a('s_cmp_eq_u32 s3, 3'); a(f's_cselect_b32 s73, {ST[3]}, s73')
a('s_waitcnt vmcnt(0)')
a('s_cmp_lg_u32 s3, 0'); a('s_cbranch_scc1 L_spec1')
a(f's_mov_b32 s74, {ST[4]}')
spec_tile('s74', VB1)
a('L_spec1:')
spec_tile('s73', VB0)
for r in range(3):
    for d in range(4):
        a(f'v_lshlrev_b32 v{96+8*r+2*d}, 16, v{XR[r]+d}'); a(f'v_and_b32 v{97+8*r+2*d}, 0xffff0000, v{XR[r]+d}')

a('L_final:')
def final_reads(r, b):
    d4, d11 = FA[3*r], FA[3*r+2]
    for p in range(5):
        reg = (d4, d4, d4, d4, d11)[p]; off = (0, P2W, 2*P2W, 3*P2W, 0)[p]
        a(f'ds_read_b128 v[{b+8*p}:{b+3+8*p}], v{reg} offset:{off}')
        a(f'ds_read_b128 v[{b+4+8*p}:{b+7+8*p}], v{reg} offset:{off+PQ}')
def final_sum(r, b, cnt):
    x = 96 + 8*r
    for p in range(5):
        a(f's_waitcnt lgkmcnt({min(15, cnt + 8 - 2*p)})')
        for d in range(0, 8, 2): a(f'v_pk_add_f32 v[{x+d}:{x+d+1}], v[{x+d}:{x+d+1}], v[{b+8*p+d}:{b+8*p+d+1}]')
    for d in range(4): a(f'v_cvt_pk_bf16_f32 v{b+d}, v{x+2*d}, v{x+2*d+1}')
    a(f'buffer_store_dwordx4 v[{b}:{b+3}], v{FA[3*r+1]}, s[16:19], 0 offen')
a('s_waitcnt lgkmcnt(0)')
a('s_barrier')
stamp(6)
final_reads(0, 128)
final_reads(1, 168)
final_sum(0, 128, 10)
a('s_cmp_ge_u32 s3, 2'); a('s_cbranch_scc1 L_fin1')
final_reads(2, 208)
final_sum(1, 168, 10)
final_sum(2, 208, 0)
a('s_branch L_fin2')
a('L_fin1:')
final_sum(1, 168, 0)
a('L_fin2:')
if opt('dbgt', 0):
    a('s_cmp_lg_u32 s3, 0'); a('s_cbranch_scc1 L_dbgt')
    a('s_waitcnt vmcnt(0)')
    a('s_memrealtime s[94:95]'); a('s_waitcnt lgkmcnt(0)')
    a('s_mov_b64 exec, 1')
    for i, r in enumerate((80, 82, 84, 86, 88, 90, 92, 94)):
        a(f's_sub_u32 s66, s{r}, s43'); a('s_add_u32 s66, s66, 1000'); a('v_mov_b32 v4, s66'); a(f'v_mov_b32 v5, {4 + 4*i}')
        a('buffer_atomic_umax v4, v5, s[24:27], 0 offen sc1')
        a('s_nop 2')
    a('s_endpgm')
    a('L_dbgt:')
stamp(7)
if STAMPS:
    a('s_waitcnt vmcnt(0)')
    a('s_memrealtime s[96:97]')
    a('s_waitcnt lgkmcnt(0)')
    for i in range(8): a(f'v_mov_b32 v{16+i}, s{80+2*i}')
    a('v_mov_b32 v24, s96')
    a('s_lshl_b32 s66, s2, 3'); a('s_add_u32 s66, s66, s3'); a('s_lshl_b32 s66, s66, 6'); a(f's_add_u32 s66, s66, {WS_TS}')
    a('v_mov_b32 v4, 0')
    a('s_mov_b64 exec, 1')
    a('buffer_store_dwordx4 v[16:19], v4, s[12:15], s66 offen')
    a('buffer_store_dwordx4 v[20:23], v4, s[12:15], s66 offen offset:16')
    a('buffer_store_dword v24, v4, s[12:15], s66 offen offset:32')
a('s_endpgm')
emit_tails()
a('L_done:')
a.end(256, sgpr=102)
txt = a.text([])
txt = txt.replace('.amdgcn_target', f'; @launch grid=(256,1,1) block=(512,1,1) lds={LDS_BYTES}\n.amdgcn_target', 1)
open(sys.argv[1], 'w').write(txt)
```

```python
import sys, math
from asmlib import *
opts = dict(o.split('=') for o in sys.argv[2:])
def opt(k, d): return type(d)(opts.get(k, d))
STAMPS = opt('stamps', 0)
OUTP = opts.get('outp', '-').replace('+', ' ').replace('-', '')
SENT = 1
RDFT = opt('rdft', 0)
RSL = opt('rsleep', 4)
AUXV = opt('auxv', 0)
VGO = opt('vgo', 1)
VCHK = opt('vchk', 4)
XR = [32, 36, 28]
FA = [16, 17, 18, 19, 20, 21, 22, 23, 24]; VA0, VA4, VFL = 25, 26, 27
NONIT = 1
WMODE = opt('wmode', 0)
STRICT = opt('strict', 1)
ZFIX = opt('zfix', 1)
FLAGA = opt('flaga', 0)
FAKEW = opt('fakew', 0)
FAKEH = opt('fakeh', 0)
P2MAP = opt('p2map', 0)
P2ROT = opt('p2rot', 1)
SPINMAX = opt('spinmax', 1 << 16)
CODEPF = opt('codepf', 1)
LDW = opts.get('ldw', 'sc1').replace('+', ' ').replace('-', '')
LDH = opts.get('ldh', 'sc1').replace('+', ' ').replace('-', '')
STP = opts.get('stp', 'sc1').replace('+', ' ').replace('-', '')
S, D, F = 2048, 640, 1536
KNAME = 'parallel_sum__spectral_fnet__swiglu_ffn__prompt_kernel'
STG = 49152
WS_H = 0
WS_WDT = 0x600000
WS_V = 0x800000
WS_XP = 0xB00000
WS_WP = 0xB20000
WS_FW = 0xB30000
WS_FH = 0xB31000
WS_FV = 0xB34000
WS_TS = 0xC00000
WS_SIZE = 0x1000000
L_AUX = 3*STG
L_R = L_AUX
L_M = L_AUX + 512
L_CS = L_AUX + 1024
L_CNT = L_AUX + 2048
L_NON = L_CNT + 32
L_WD = L_AUX + 4096
L_Z = 0
ZROW = 80
P2W = 10240
P2STEP = [STG, STG + 5120, 2*STG, 2*STG + 5120, 0, 5120]
PT = [STG, STG + 4416, 2*STG + 128, 2*STG + 128 + 4416, 0]
ST = [40960, STG + 40960 + 64, 2*STG + 40960 + 128, 3*STG + 4096 + 192, 3*STG + 4096 + 192 + 4416 ]
PQ, PN, PE = 272, 1088, 4416
LDS_BYTES = 163840

a = Asm()
stamp_n = [0]
def stamp(i):
    if STAMPS:
        if not ((FAKEW or FAKEH) and i >= 5): a(f's_memrealtime s[{80+2*i}:{81+2*i}]')
TICKS = opt('ticks', 0)
def tick(reg, idx):
    if TICKS:
        a('s_memrealtime s[98:99]'); a('s_waitcnt lgkmcnt(0)')
        if isinstance(idx, tuple):
            a(f's_add_u32 m0, {idx[0]}, {idx[1]}'); a('s_nop 3'); a(f'v_writelane_b32 v{reg}, s98, m0')
        else:
            a(f'v_writelane_b32 v{reg}, s98, {idx}')
def tick_dump(reg, tmp):
    if TICKS:
        a('s_lshl_b32 s98, s2, 3'); a('s_add_u32 s98, s98, s3'); a('s_lshl_b32 s98, s98, 8'); a(f's_add_u32 s98, s98, {WS_TS + 0x100000}')
        a(f'v_lshlrev_b32 v{tmp}, 2, v0')
        a(f'buffer_store_dword v{reg}, v{tmp}, s[12:15], s98 offen')
def rbf(v):
    a(f'v_cvt_pk_bf16_f32 v{v}, v{v}, v{v}')
    a(f'v_lshlrev_b32 v{v}, 16, v{v}')
def srd_from(d, b, nbytes):
    srd(a, d, b, nbytes)
def spin_begin(name):
    a(f's_mov_b32 s79, 0')
    a(f'{name}:')
def spin_end(name):
    a(f's_cbranch_scc1 {name}_ok')
    a('s_add_u32 s79, s79, 1')
    a(f's_cmp_ge_u32 s79, {SPINMAX}')
    a(f's_cbranch_scc1 {name}_ok')
    a('s_sleep 2')
    a(f's_branch {name}')
    a(f'{name}_ok:')

def lds_arrive(off, v):
    a(f'v_mov_b32 v{v}, {L_CNT}'); a(f'v_mov_b32 v{v+1}, 1')
    a('s_waitcnt lgkmcnt(0)')
    a('s_mov_b64 exec, 1')
    a(f'ds_add_u32 v{v}, v{v+1} offset:{off}')
    a('s_mov_b64 exec, -1')
def lds_wait(name, off, v, cnt=4):
    a(f'v_mov_b32 v{v}, {L_CNT}')
    a(f'{name}:')
    a(f'ds_read_b32 v{v+1}, v{v} offset:{off}')
    a('s_waitcnt lgkmcnt(0)')
    a(f'v_readfirstlane_b32 s78, v{v+1}')
    a(f's_cmp_lt_u32 s78, {cnt}')
    a(f's_cbranch_scc0 {name}_ok')
    a('s_sleep 1')
    a(f's_branch {name}')
    a(f'{name}_ok:')
a.begin(KNAME)
a('s_cmp_ge_u32 s2, 256')
a('s_cbranch_scc1 L_done')
stamp(0)
a('s_load_dwordx2 s[64:65], s[0:1], 0')
a('s_load_dwordx4 s[60:63], s[0:1], 24')
a('s_load_dwordx8 s[48:55], s[0:1], 48')
a('s_load_dwordx4 s[56:59], s[0:1], 80')
a('v_lshrrev_b32 v1, 6, v0')
a('v_and_b32 v0, 63, v0')
a('v_readfirstlane_b32 s3, v1')
a('s_and_b32 s40, s2, 7'); a('s_lshr_b32 s41, s2, 3')
a('s_and_b32 s31, s40, 1'); a('s_lshr_b32 s30, s40, 1')
a('s_and_b32 s32, s41, 7'); a('s_lshr_b32 s33, s41, 3')
a('s_lshl_b32 s28, s31, 3'); a('s_add_u32 s28, s28, s32')
a('s_mul_i32 s29, s30, 3'); a('s_add_u32 s29, s29, s33')
a('s_add_u32 s42, s30, 12')
a('s_cmp_eq_u32 s33, 3')
a('s_cselect_b32 s29, s42, s29')
a('s_cselect_b32 s35, 1, 0')
a('s_mul_i32 s34, s30, 5'); a('s_add_u32 s34, s34, 1'); a('s_lshr_b32 s34, s34, 1')
a('s_mul_i32 s42, s31, 5'); a('s_add_u32 s34, s34, s42')
a('s_cmp_ge_u32 s34, 10'); a('s_cselect_b32 s42, 10, 0'); a('s_sub_u32 s34, s34, s42')
if P2MAP == 0:
    a('s_lshl_b32 s42, s30, 3'); a('s_add_u32 s42, s42, s32')
    a('s_lshl_b32 s38, s31, 2'); a('s_add_u32 s38, s38, s33')
else:
    a('s_lshl_b32 s42, s40, 2'); a('s_add_u32 s42, s42, s33')
    a('s_mov_b32 s38, s32')
a('s_mul_i32 s39, s32, 3'); a('s_lshr_b32 s39, s39, 1'); a('s_mul_i32 s66, s33, 3'); a('s_add_u32 s39, s39, s66')
a('s_cmp_ge_u32 s39, 12'); a('s_cselect_b32 s66, 12, 0'); a('s_sub_u32 s39, s39, s66')
if not P2ROT: a('s_mov_b32 s39, 0')
a('s_lshr_b32 s36, s42, 1'); a('s_and_b32 s37, s42, 1')
WSOFF = opt('wsoff', 0)
WSRD = 's[12:15]'; HSRD = 's[12:15]'
def common_srds(loader=False):
    a('s_waitcnt lgkmcnt(0)')
    tick(7, 50)
    srd(a, 12, 58, WS_SIZE, WSOFF << 20)
    if not loader:
        srd_from(4, 64, S*D*2)
        srd_from(16, 54, S*D*2)
        srd_from(20, 52, F*D*2)
        srd_from(24, 56, 256)
a('s_cmp_lt_u32 s3, 4')
a('s_cbranch_scc1 L_compute')
a('s_sub_u32 s44, s3, 4')
a('s_cmp_eq_u32 s44, 3')
a('s_cbranch_scc1 L_aux')

W0 = 5
PT_ = [20, 21, 22, 23, 24, 25, 26, 27, 4, 5, 6, 7, 16, 17, 18, 19]
GT_ = [66, 67, 68, 69, 76, 77, 78, 79, 96, 97, 100, 101, 40, 41, 42, 43]
GT_ = [66, 67, 68, 69, 76, 77, 78, 79, 28, 29, 30, 31, 40, 41, 33, 43]
H0 = opt('h0', 8)
def dma_loop(name, npieces):
    h = npieces * H0 // 16
    def pieces(lo, hi):
        for t in range(lo, hi):
            a(f's_add_u32 m0, s{PT_[t]}, s46'); a('s_nop 0')
            a(f'buffer_load_dwordx4 v{4 + (t & 1)}, s[8:11], s{GT_[t]} offen lds')
    a('s_mov_b32 s45, s34'); a('s_mov_b32 s46, 0'); a('s_mov_b32 s47, 0')
    a('s_mul_i32 s42, s34, s48'); a('s_mul_i32 s49, s48, -9'); a('v_add_u32 v4, s42, v4'); a('v_add_u32 v5, s42, v5')
    tick(7, 51)
    a(f'{name}_l:')
    pieces(0, h)
    a('s_cmp_lg_u32 s47, 1'); a(f's_cbranch_scc1 {name}_m')
    a(f's_waitcnt vmcnt({h})')
    tick(7, 0)
    a('s_barrier')
    tick(7, 16)
    a(f'{name}_m:')
    pieces(h, npieces)
    a('s_add_u32 s45, s45, 1'); a('s_cmp_eq_u32 s45, 10'); a('s_cselect_b32 s45, 0, s45')
    a('s_cselect_b32 s42, s49, s48')
    a('v_add_u32 v4, s42, v4'); a('v_add_u32 v5, s42, v5')
    a(f's_add_u32 s46, s46, {STG}'); a(f's_cmp_eq_u32 s46, {3*STG}'); a('s_cselect_b32 s46, 0, s46')
    tick(7, ('s47', 52))
    a('s_cmp_lt_u32 s47, 2'); a(f's_cbranch_scc1 {name}_nx')
    a(f's_waitcnt vmcnt({npieces})')
    tick(7, ('s47', -1))
    a('s_barrier')
    tick(7, ('s47', 15))
    a('s_cmp_eq_u32 s47, 9'); a('s_cbranch_scc1 L_p2last')
    a(f'{name}_nx:')
    a('s_add_u32 s47, s47, 1'); a(f's_branch {name}_l')

a('s_cmp_eq_u32 s44, 2')
a('s_cbranch_scc1 L_ldx')
a('s_cmp_eq_u32 s35, 1')
a('s_cbranch_scc1 L_ldc')
a('v_lshrrev_b32 v1, 4, v0')
a('v_and_b32 v2, 15, v0')
a('v_lshlrev_b32 v3, 1, v1')
a('v_xor_b32 v2, v2, v3')
a('v_lshlrev_b32 v2, 4, v2')
a(f'v_mul_u32_u24 v3, {F*2}, v1')
a('v_add_u32 v2, v2, v3')
a('s_lshl_b32 s70, s29, 8')
a('v_add_u32 v2, s70, v2')
a('s_and_b32 s70, s32, 1'); a('s_lshl_b32 s70, s70, 7')
a('v_xor_b32 v4, s70, v2')
a('v_xor_b32 v5, 128, v4')
a('s_lshl_b32 s70, s32, 11')
a('s_lshl_b32 s71, s44, 14')
for g in range(4):
    if g: a('s_add_u32 s70, s70, 2048'); a('s_and_b32 s70, s70, 0x3c00')
    a(f's_or_b32 s{PT_[4*g]}, s70, s71'); a(f's_mul_i32 s{GT_[4*g]}, s70, 12')
    a(f's_add_u32 s{PT_[4*g+2]}, s{PT_[4*g]}, 1024'); a(f's_add_u32 s{GT_[4*g+2]}, s{GT_[4*g]}, {4*F*2}')
    a('s_add_u32 s70, s70, 2048'); a('s_and_b32 s70, s70, 0x3c00')
    a(f's_or_b32 s{PT_[4*g+1]}, s70, s71'); a(f's_mul_i32 s{GT_[4*g+1]}, s70, 12')
    a(f's_add_u32 s{PT_[4*g+3]}, s{PT_[4*g+1]}, 1024'); a(f's_add_u32 s{GT_[4*g+3]}, s{GT_[4*g+1]}, {4*F*2}')
a('s_cmp_eq_u32 s44, 1')
a('s_waitcnt lgkmcnt(0)')
a('s_cselect_b32 s8, s50, s48'); a('s_cselect_b32 s9, s51, s49'); a(f's_mov_b32 s10, {D*F*2}'); a('s_mov_b32 s11, 0x00020000')
a(f's_mov_b32 s48, {64*F*2}')
a('s_branch L_ld16')
a('L_ldx:')
a('v_lshrrev_b32 v1, 3, v0')
a('v_and_b32 v2, 7, v0')
a('v_lshrrev_b32 v3, 1, v1')
a('v_xor_b32 v2, v2, v3')
a('v_lshlrev_b32 v2, 4, v2')
a('v_lshrrev_b32 v3, 2, v1'); a('v_and_b32 v6, 3, v1'); a('v_lshl_add_u32 v3, v6, 2, v3')
XMAP = opt('xmap', 0)
if XMAP == 0:
    a('v_lshlrev_b32 v3, 7, v3'); a('v_add_u32 v3, s28, v3')
elif XMAP == 1:
    a('v_lshlrev_b32 v3, 7, v3'); a('s_lshl_b32 s70, s28, 3'); a('v_add_u32 v3, s70, v3')
else:
    a('v_lshlrev_b32 v3, 3, v3'); a('s_lshl_b32 s70, s28, 7'); a('v_add_u32 v3, s70, v3')
a(f'v_mul_u32_u24 v3, {D*2}, v3')
a('v_add_u32 v4, v2, v3')
a('v_xor_b32 v5, 64, v4'); a(f'v_add_u32 v5, {(256 if XMAP < 2 else 16)*D*2}, v5')
a('s_lshl_b32 s70, s33, 12')
for t in range(0, 16, 2):
    if t: a('s_add_u32 s70, s70, 2048'); a('s_and_b32 s70, s70, 0x3c00')
    a(f's_or_b32 s{PT_[t]}, s70, 0x8000'); a(f's_or_b32 s{PT_[t+1]}, s70, 0x8400')
    if XMAP == 0: a(f's_mul_i32 s{GT_[t]}, s70, {16*D*2//2048}')
    else: a(f's_mul_i32 s{GT_[t]}, s70, 5'); a(f's_lshr_b32 s{GT_[t]}, s{GT_[t]}, 3')
    a(f's_mov_b32 s{GT_[t+1]}, s{GT_[t]}')
a('s_waitcnt lgkmcnt(0)')
srd_from(8, 64, S*D*2)
a('s_movk_i32 s48, 128')
a('L_ld16:')
dma_loop('L_ldw', 16)
a('L_ldc:')
a('v_lshrrev_b32 v1, 3, v0')
a('v_and_b32 v2, 7, v0')
a('v_lshrrev_b32 v3, 1, v1')
a('v_xor_b32 v2, v2, v3')
a('v_lshlrev_b32 v2, 4, v2')
a('s_mul_i32 s70, s30, 80'); a('s_add_u32 s70, s70, 1')
a('v_add_u32 v1, s70, v1')
a(f'v_mul_u32_u24 v3, {D*2}, v1')
a('v_add_u32 v2, v2, v3')
a('s_and_b32 s70, s32, 1'); a('s_lshl_b32 s70, s70, 6')
a('v_xor_b32 v4, s70, v2')
a('v_xor_b32 v5, 64, v4')
a('s_lshl_b32 s70, s32, 10')
a('s_lshl_b32 s71, s44, 14')
for t in range(10):
    if t: a('s_add_u32 s70, s70, 1024'); a('s_cmp_eq_u32 s70, 10240'); a('s_cselect_b32 s70, 0, s70')
    a(f's_or_b32 s{PT_[t]}, s70, s71'); a(f's_mul_i32 s{GT_[t]}, s70, {8*D*2//1024}')
a('s_cmp_eq_u32 s44, 1')
a('s_waitcnt lgkmcnt(0)')
a('s_cselect_b32 s8, s62, s60'); a('s_cselect_b32 s9, s63, s61'); a(f's_mov_b32 s10, {D*D*2}'); a('s_mov_b32 s11, 0x00020000')
a('s_movk_i32 s48, 128')
dma_loop('L_ldcl', 10)

P2ACC = 176; P2W_R = 56; P2H = 8
def p2_setup():
    a('v_lshlrev_b32 v1, 4, v0')
    srd(a, 12, 58, WS_SIZE, WSOFF << 20)
    a('s_mul_i32 s70, s38, 48'); a('s_mul_i32 s71, s44, 12'); a('s_add_u32 s70, s70, s71')
    a(f's_mul_i32 s70, s70, 5120'); a(f's_add_u32 s70, s70, {WS_WDT}')
    a(f's_mul_i32 s73, s44, {P2W}')
def kidx(step):
    a(f's_add_u32 s72, s39, {step}'); a('s_cmp_ge_u32 s72, 12'); a('s_cselect_b32 s71, 12, 0'); a('s_sub_u32 s72, s72, s71')
def wdt_reg(step):
    kidx(step)
    a('s_mul_i32 s72, s72, 5120'); a('s_add_u32 s72, s72, s70')
    for ei in range(5):
        r = P2W_R + 20*step + 4*ei
        if ei == 4: a('s_add_u32 s72, s72, 4096')
        a(f'buffer_load_dwordx4 v[{r}:{r+3}], v1, {WSRD}, s72 offen offset:{(ei % 4)*1024} {LDW}')
def wdt_lds(step):
    kidx(step)
    a('s_mul_i32 s72, s72, 5120'); a('s_add_u32 s72, s72, s70')
    for ei in range(5):
        a(f's_add_u32 m0, s73, {P2STEP[step-6] + ei*1024}')
        if ei: a('s_add_u32 s72, s72, 1024')
        else: a('s_nop 0')
        a(f'buffer_load_dwordx4 v1, {WSRD}, s72 offen {LDW} lds')
WD = [[0, 1], [2, 3], [4, 5], []]
def read_nonce(v):
    a(f'v_mov_b32 v{v}, {L_NON}'); a(f'ds_read_b32 v{v}, v{v}'); a('s_waitcnt lgkmcnt(0)'); a(f'v_readfirstlane_b32 s43, v{v}')
def final_addr(tau_off, d4, d5, d11, t):
    v4, v5, v6, v7, v8, v9, v10 = d4, d5, t, t+1, t+2, t+3, t+4
    a('s_lshl_b32 s66, s3, 6'); a(f's_add_u32 s66, s66, {tau_off}')
    a(f'v_add_u32 v{v4}, s66, v0')
    a(f'v_mul_u32_u24 v{v5}, 6554, v{v4}'); a(f'v_lshrrev_b32 v{v5}, 16, v{v5}')
    a(f'v_mul_u32_u24 v{v6}, 10, v{v5}'); a(f'v_sub_u32 v{v6}, v{v4}, v{v6}')
    a(f'v_lshrrev_b32 v{v7}, 4, v{v5}'); a(f'v_and_b32 v{v5}, 15, v{v5}')
    a(f'v_lshrrev_b32 v{v9}, 1, v{v6}')
    a(f'v_mov_b32 v{v10}, {PT[0]}'); a(f'v_mov_b32 v{d11}, {ST[0]}')
    for e in range(1, 5):
        a(f'v_cmp_eq_u32 vcc, {e}, v{v9}'); a(f'v_mov_b32 v{t+5}, {PT[e]}'); a(f'v_mov_b32 v{t+6}, {ST[e]}')
        a(f'v_cndmask_b32 v{v10}, v{v10}, v{t+5}, vcc'); a(f'v_cndmask_b32 v{d11}, v{d11}, v{t+6}, vcc')
    a(f'v_and_b32 v{v8}, 1, v{v6}'); a(f'v_mul_u32_u24 v{v4}, {2*PQ}, v{v8}')
    a(f'v_mul_u32_u24 v{v8}, {PN}, v{v7}'); a(f'v_add_u32 v{v4}, v{v4}, v{v8}'); a(f'v_lshl_add_u32 v{v4}, v{v5}, 4, v{v4}')
    a(f'v_add_u32 v{d11}, v{d11}, v{v4}'); a(f'v_add_u32 v{v4}, v{v10}, v{v4}')
    a(f'v_lshrrev_b32 v{v8}, 2, v{v5}'); a(f'v_and_b32 v{v5}, 3, v{v5}'); a(f'v_lshl_add_u32 v{v5}, v{v5}, 2, v{v8}')
    a(f'v_lshlrev_b32 v{v5}, 3, v{v5}'); a(f'v_add_u32 v{v5}, v{v5}, v{v7}'); a(f'v_lshlrev_b32 v{v5}, 4, v{v5}')
    a('s_lshl_b32 s66, s37, 6'); a('s_add_u32 s66, s66, s36'); a(f'v_add_u32 v{v5}, s66, v{v5}')
    a(f'v_mul_u32_u24 v{v5}, {D*2}, v{v5}'); a(f'v_lshl_add_u32 v{v5}, v{v6}, 4, v{v5}'); a('s_mul_i32 s66, s38, 160'); a(f'v_add_u32 v{v5}, s66, v{v5}')

VB0, VB1 = 128, 144
def p2h_setup():
    a('s_cmp_ge_u32 s38, 4'); a('s_cselect_b32 s55, 1, 0')
    a('s_sub_u32 s67, 16, s36'); a('s_xor_b32 s68, s37, 1')
    a('s_cmp_eq_u32 s55, 1')
    a('s_cselect_b32 s67, s67, s36'); a('s_cselect_b32 s68, s68, s37')
    a('s_and_b32 s60, s67, 3'); a('s_lshl_b32 s60, s60, 7'); a(f's_add_u32 s60, s60, {WS_FV}')
    a('s_lshl_b32 s67, s67, 1'); a('s_add_u32 s67, s67, s68'); a('s_mul_i32 s67, s67, 5120'); a(f's_add_u32 s56, s67, {WS_V}')
    a('s_lshl_b32 s57, s55, 9'); a('s_sub_u32 s57, 256, s57')
def fv_addr(v, t):
    a('s_sub_u32 s66, 7, s38'); a('s_sub_u32 s67, s38, 1'); a('s_max_i32 s67, s67, 0')
    a('s_cmp_ge_u32 s38, 4'); a('s_cselect_b32 s67, s66, s67'); a('s_cselect_b32 s66, s66, s38')
    a(f'v_mov_b32 v{v}, s66'); a(f'v_mov_b32 v{t}, s67'); a(f'v_bfe_u32 v{t+1}, v0, 4, 1'); a(f'v_cmp_eq_u32 vcc, 0, v{t+1}'); a(f'v_and_b32 v{t+1}, 15, v0')
    a(f'v_cndmask_b32 v{v}, v{t}, v{v}, vcc'); a(f'v_lshlrev_b32 v{v}, 9, v{v}'); a(f'v_lshl_add_u32 v{v}, v{t+1}, 2, v{v}')
def pre_loop():
    for r in range(3):
        final_addr(256*r, FA[3*r], FA[3*r+1], FA[3*r+2], 40)
    a('s_cmp_ge_u32 s3, 2'); a('s_cselect_b32 s66, -1, 0'); a(f'v_or_b32 v{FA[7]}, s66, v{FA[7]}')
    fv_addr(VFL, 40)
    a('s_mul_i32 s66, s38, 80'); a('v_add_u32 v40, s66, v3')
    a('v_add_u32 v41, -1, v40'); a('v_sub_u32 v42, 639, v40')
    a('s_cmp_eq_u32 s55, 1'); a('s_cselect_b64 vcc, -1, 0')
    a(f'v_mul_u32_u24 v43, {4*17*10240}, v2')
    a('v_cndmask_b32 v40, v41, v42, vcc')
    a('v_lshl_add_u32 v43, v40, 4, v43')
    a('s_mul_i32 s66, s3, s57'); a(f'v_add_u32 v{VA0}, s66, v43')
    a('s_lshl_b32 s66, s57, 2'); a(f'v_add_u32 v{VA4}, s66, v43')
    a('s_lshl_b32 s66, s3, 4'); a('v_add_u32 v40, s66, v40')
    a('v_cmp_gt_i32 vcc, 0, v40'); a('v_mov_b32 v41, 0x7fffffff'); a('s_nop 0')
    a(f'v_cndmask_b32 v{VA0}, v{VA0}, v41, vcc')
def pre_epilogue():
    for r in range(3): a(f'buffer_load_dwordx4 v[{XR[r]}:{XR[r]+3}], v{FA[3*r+1]}, s[4:7], 0 offen')
def v_loads():
    L = a.label('L_vl')
    a('s_mov_b32 s72, s56')
    for i in range(4):
        a(f'buffer_load_dwordx4 v[{VB0+4*i}:{VB0+3+4*i}], v{VA0}, s[12:15], s72 offen {LDH}')
        if i < 3: a(f's_add_u32 s72, s72, {17*10240}')
    a('s_cmp_lg_u32 s3, 0'); a(f's_cbranch_scc1 {L}')
    a('s_mov_b32 s72, s56')
    for i in range(4):
        a(f'buffer_load_dwordx4 v[{VB1+4*i}:{VB1+3+4*i}], v{VA4}, s[12:15], s72 offen {LDH}')
        if i < 3: a(f's_add_u32 s72, s72, {17*10240}')
    a(f'{L}:')

a('L_p2last:')
a('s_waitcnt vmcnt(0)')
lds_arrive(12, 2)
read_nonce(2)
p2_setup()
a('L_p2join:')
tick(7, 27)
NLATE = opt('nlate', 4)
for st in range(6): wdt_reg(st)
a('s_cmp_eq_u32 s35, 1')
a('s_cbranch_scc1 L_p2d')
if NLATE < 6:
    for st in (6, 7): wdt_lds(st)
if NLATE < 4:
    lds_wait('L_c8', 16, 4)
    for st in (8, 9): wdt_lds(st)
if NLATE < 2:
    lds_wait('L_c9', 20, 4)
    for st in (10, 11): wdt_lds(st)
if AUXV:
    a('s_cmp_lg_u32 s44, 3'); a('s_cbranch_scc1 L_p2d')
    p2h_setup(); fv_addr(8, 9)
    a('s_mov_b32 s79, 0')
    a('L_av:')
    a('buffer_load_dword v9, v8, s[12:15], s60 offen sc1')
    a('s_waitcnt vmcnt(0)')
    a('v_cmp_ne_u32 vcc, s43, v9'); a('s_cmp_eq_u64 vcc, 0'); a('s_cbranch_scc1 L_av_ok')
    a('s_add_u32 s79, s79, 1'); a(f's_cmp_ge_u32 s79, {AUXV}'); a('s_cbranch_scc1 L_p2d')
    a('s_branch L_av')
    a('L_av_ok:')
    lds_arrive(28, 8)
a('L_p2d:')
tick(7, 28)
a(f'v_add_u32 v2, s73, v1')
a(f'v_add_u32 v3, {2*STG}, v2')
a('v_min_u32 v4, 5, v0'); a('v_lshrrev_b32 v5, 1, v4'); a('v_and_b32 v4, 1, v4'); a('v_lshlrev_b32 v4, 2, v4'); a('v_lshl_add_u32 v6, v5, 4, v4')
a('s_lshl_b32 s76, s36, 8'); a('s_mul_i32 s77, s44, 48'); a('s_add_u32 s76, s76, s77'); a('s_lshl_b32 s77, s37, 3'); a('s_add_u32 s76, s76, s77'); a(f's_add_u32 s76, s76, {WS_FH}')
a('s_lshl_b32 s74, s36, 3'); a('s_lshl_b32 s75, s37, 2'); a('s_add_u32 s74, s74, s75')
a('s_mul_i32 s74, s74, 48'); a('s_mul_i32 s75, s44, 12'); a('s_add_u32 s74, s74, s75'); a('s_lshl_b32 s74, s74, 10')
for i in range(80): a(f'v_mov_b32 v{P2ACC+i}, 0')
lds_wait('L_own', 0, 4, 5 if SENT else 4)
tick(7, 29)
stamp(2)

tick(7, 32)
def hsoff(step):
    kidx(step)
    a('s_lshl_b32 s72, s72, 10'); a(f's_add_u32 s72, s72, s74')
    if SENT: a(f's_mov_b32 s{66 + step % 4}, s72')
def hld(step, ni):
    r = P2H + 16*(step % 3) + 4*ni
    L = []
    if ni: L.append(f's_add_u32 s72, s72, {48*1024}')
    L.append(f'buffer_load_dwordx4 v[{r}:{r+3}], v1, {HSRD}, s72 offen {LDH}')
    return L
def hpoll(name, kp):
    spin_begin(name)
    a(f'buffer_load_dword v4, v6, s[12:15], s76 offen sc1')
    a('s_waitcnt vmcnt(0)')
    a(f'v_cmp_ne_u32 vcc, s43, v{4+kp}')
    a('s_cmp_eq_u64 vcc, 0')
    spin_end(name)
if not SENT: hpoll('L_pollh0', 0)
else: a('s_waitcnt vmcnt(0)'); a('s_mov_b32 s79, 0')
if VGO:
    a(f'v_mov_b32 v4, {L_CNT}'); a('v_mov_b32 v5, 1'); a('ds_write_b32 v4, v5 offset:40')
stamp(3)
tick(7, 33)
for st in range(3):
    hsoff(st)
    for ni in range(4):
        for ins in hld(st, ni): a(ins)
def pwrite(ni):
    return [f'ds_write_b128 v{2 if PT[ei] < 2*STG else 3}, v[{P2ACC+16*ei+4*ni}:{P2ACC+16*ei+4*ni+3}] offset:{PT[ei] + ni*PN - (0 if PT[ei] < 2*STG else 2*STG)}' for ei in range(5)]
for st in range(12):
    rem = min(2, 11 - st)
    if st == 1:
        a('s_cmp_eq_u32 s35, 0'); a('s_cbranch_scc1 L_lw1_ok')
        lds_wait('L_lw1', 36, 4)
    if st == max(1, 7 - NLATE): lds_wait('L_lw', 36, 4)
    if st < 9: hsoff(st + 3)
    if st == 8:
        a('v_and_b32 v2, 15, v0'); a('v_lshrrev_b32 v4, 4, v0')
        a(f'v_mul_u32_u24 v4, {PQ}, v4'); a('v_lshl_add_u32 v2, v2, 4, v4'); a('v_add_u32 v2, s73, v2'); a(f'v_add_u32 v3, {2*STG}, v2')
    a(f's_waitcnt vmcnt({4*rem})' + (' lgkmcnt(0)' if st >= 6 else ''))
    hb = P2H + 16*(st % 3)
    if SENT:
        a(f'L_hchk{st}:')
        a(f'v_max_u32 v4, v{hb}, v{hb+4}'); a(f'v_max3_u32 v4, v{hb+8}, v{hb+12}, v4')
        a('v_cmp_eq_u32 vcc, -1, v4'); a('s_cmp_lg_u64 vcc, 0')
        a(f's_cbranch_scc1 L_hretry{st}')
        a(f'L_hok{st}:')
    tick(7, 36 + st)
    w0 = P2W_R + 20*(st % 6)
    rd = []
    if 1 <= st <= 6:
        wr = P2W_R + 20*((st - 1) % 6)
        for ei in range(5):
            o = P2STEP[st - 1] + ei*1024
            rd.append(f'ds_read_b128 v[{wr+4*ei}:{wr+4*ei+3}], v{2 if o < 2*STG else 3} offset:{o if o < 2*STG else o - 2*STG}')
    for ni in range(4):
        for ei in (range(5) if ni % 2 == 0 else range(4, -1, -1)):
            t = P2ACC + 16*ei + 4*ni
            h = hb + 4*ni
            a(f'v_mfma_f32_16x16x32_bf16 v[{t}:{t+3}], v[{w0+4*ei}:{w0+4*ei+3}], v[{h}:{h+3}], v[{t}:{t+3}]')
            if rd: a(rd.pop(0))
        if st < 9:
            for ins in hld(st + 3, ni): a(ins)
        if st == 11 and ni >= 2:
            for w in pwrite(ni - 2): a(w)
for w in pwrite(2): a(w)
a('s_nop 3')
for w in pwrite(3): a(w)
stamp(4)
tick(7, 48)
a('s_waitcnt lgkmcnt(0)')
a('s_barrier')
tick_dump(7, 4)
a('s_branch L_fin2')
if SENT:
    for st in range(12):
        a(f'L_hretry{st}:')
        a('s_add_u32 s79, s79, 1'); a(f's_cmp_ge_u32 s79, {SPINMAX}'); a(f's_cbranch_scc1 L_hok{st}')
        if RSL: a(f's_sleep {RSL}')
        a(f's_mov_b32 s77, s{66 + st % 4}')
        for ni in range(4):
            r = P2H + 16*(st % 3) + 4*ni
            if ni: a(f's_add_u32 s77, s77, {48*1024}')
            a(f'buffer_load_dwordx4 v[{r}:{r+3}], v1, {HSRD}, s77 offen {LDH}')
        a('s_waitcnt vmcnt(0)')
        a(f's_branch L_hchk{st}')

a('L_aux:')
if opt('aprio', 0): a(f"s_setprio {opt('aprio', 0)}")
common_srds()
AB = 248
a('v_mov_b32 v1, 0'); a(f'v_mov_b32 v3, {L_CNT}')
a('s_mov_b64 exec, 1')
a('s_cmp_lg_u32 s2, 0'); a('s_cbranch_scc1 L_aux_n0')
a('s_memrealtime s[66:67]'); a('s_waitcnt lgkmcnt(0)'); a('s_or_b32 s66, s66, 1'); a('v_mov_b32 v2, s66')
a('buffer_store_dword v2, v1, s[24:27], 0 offen sc1')
a('L_aux_n0:')
[a(f'ds_write_b32 v3, v1 offset:{4*i}') for i in range(11)]
a('s_mov_b64 exec, -1')
if CODEPF:
    a('s_getpc_b64 s[66:67]')
    a('L_pcref:')
    a(f's_sub_u32 s66, s66, L_pcref-{KNAME}'); a('s_subb_u32 s67, s67, 0')
    a('s_lshl_b32 s68, s41, 3')
    a('v_and_b32 v4, 7, v0'); a('v_add_u32 v4, s68, v4'); a('v_lshlrev_b32 v4, 7, v4')
    a(f'v_min_u32 v4, L_done-{KNAME}, v4')
    a('s_mov_b64 exec, 0xff')
    a(f'global_load_dword v{AB+7}, v4, s[66:67]')
    a('s_mov_b64 exec, -1')
for i in range(48, 56): a(f'v_mov_b32 v{i}, 0')
a('v_lshrrev_b32 v4, 2, v0'); a('v_and_b32 v5, 3, v4'); a('v_bfe_u32 v6, v4, 3, 1'); a('v_lshl_or_b32 v5, v6, 2, v5'); a('v_lshlrev_b32 v5, 1, v5')
a('s_and_b32 s66, s32, 3'); a('s_lshl_b32 s66, s66, 2')
a('v_and_b32 v6, 3, v0'); a('v_add_u32 v6, s66, v6'); a('v_xor_b32 v5, v5, v6')
a('v_lshlrev_b32 v4, 8, v4'); a(f'v_lshl_add_u32 v{AB+1}, v5, 4, v4')
a('s_lshr_b32 s66, s32, 2'); a('s_lshl_b32 s66, s66, 14'); a(f'v_add_u32 v{AB+1}, s66, v{AB+1}')
a('s_cmp_eq_u32 s35, 0'); a('s_cbranch_scc1 L_aux_w')
a('s_and_b32 s67, s32, 3'); a(f's_mul_i32 s67, s67, {20*128}'); a('s_add_u32 s66, s66, s67')
a(f'v_lshlrev_b32 v{AB+1}, 4, v0'); a(f'v_add_u32 v{AB+1}, s66, v{AB+1}')
a('L_aux_w:')
a('s_mov_b32 s46, 0')
a('s_lshl_b32 s77, s29, 1'); a('s_add_u32 s77, s77, s31'); a('s_lshl_b32 s77, s77, 11'); a('s_lshr_b32 s67, s32, 2'); a('s_lshl_b32 s67, s67, 10'); a('s_add_u32 s77, s77, s67'); a(f's_add_u32 s77, s77, {WS_WP}')
a('s_and_b32 s67, s32, 3'); a('s_cmp_eq_u32 s35, 1'); a('s_cselect_b32 s68, 20, 32'); a('s_mul_i32 s67, s67, s68'); a('s_lshl_b32 s67, s67, 3'); a('s_add_u32 s77, s77, s67')
a(f'v_min_u32 v{AB+6}, 47, v0'); a(f'v_lshlrev_b32 v{AB+6}, 2, v{AB+6}')
a('s_mul_i32 s74, s38, 80'); a('s_add_u32 s75, s74, 79'); a('s_lshr_b32 s74, s74, 7'); a('s_lshr_b32 s75, s75, 7')
a('s_lshl_b32 s74, s74, 8'); a('s_lshl_b32 s75, s75, 8'); a(f's_add_u32 s74, s74, {WS_FW}'); a(f's_add_u32 s75, s75, {WS_FW}')
if SENT:
    for i in range(4): a(f'v_mov_b32 v{8+i}, -1')
    a('v_lshlrev_b32 v12, 4, v0')
    a(f's_mul_i32 s76, s28, {8*48*1024}')
    if RDFT: a('s_mul_i32 s67, s30, 12288')
    else: a('s_lshl_b32 s67, s29, 12')
    a('s_add_u32 s76, s76, s67')
a('s_mov_b32 s47, 0')
a('s_waitcnt lgkmcnt(0)')
a('L_aux_l:')
tick(7, ('s47', 0))
a('s_barrier')
tick(7, ('s47', 16))
a(f'v_add_u32 v{AB+3}, s46, v{AB+1}')
a(f's_cmp_lg_u32 s47, {NONIT-1}'); a('s_cbranch_scc1 L_aux_nb')
a('s_mov_b64 exec, 1'); a('buffer_load_dword v2, v1, s[24:27], 0 offen sc1'); a('s_mov_b64 exec, -1')
a('L_aux_nb:')
a(f's_cmp_lg_u32 s47, {NONIT}'); a('s_cbranch_scc1 L_aux_na')
a('s_mov_b32 s79, 0')
a('L_non:')
a('s_waitcnt vmcnt(0)')
a('v_readfirstlane_b32 s43, v2')
a('s_cmp_lg_u32 s43, 0'); a('s_cbranch_scc1 L_non_ok')
a('s_add_u32 s79, s79, 1'); a(f's_cmp_ge_u32 s79, {SPINMAX}'); a('s_cbranch_scc1 L_non_ok')
a('s_sleep 4')
a('s_mov_b64 exec, 1'); a('buffer_load_dword v2, v1, s[24:27], 0 offen sc1'); a('s_mov_b64 exec, -1')
a('s_branch L_non')
a('L_non_ok:')
a('v_mov_b32 v2, s43'); a(f'v_mov_b32 v3, {L_NON}'); a('ds_write_b32 v3, v2')
a('s_cmp_ge_u32 s2, 240'); a('s_cbranch_scc1 L_aux_na')
a(f's_mul_hi_u32 s66, s2, {-(-(1<<32)//5)}'); a('s_mul_i32 s67, s66, 5'); a('s_sub_u32 s67, s2, s67')
a('s_lshl_b32 s67, s67, 8'); a('s_lshl_b32 s66, s66, 2'); a('s_add_u32 s66, s66, s67'); a(f's_add_u32 s66, s66, {WS_FW}')
a('s_mov_b64 exec, 1'); a('buffer_store_dword v2, v1, s[12:15], s66 offen sc1'); a('s_mov_b64 exec, -1')
a('L_aux_na:')
def fw_ask():
    a(f'buffer_load_dword v{AB+2}, v{AB+6}, s[12:15], s74 offen sc1'); a(f'buffer_load_dword v{AB+3}, v{AB+6}, s[12:15], s75 offen sc1')
def fw_ask2():
    a(f'buffer_load_dword v62, v{AB+6}, s[12:15], s74 offen sc1'); a(f'buffer_load_dword v63, v{AB+6}, s[12:15], s75 offen sc1')
def fw_check(nm):
    a('s_mov_b32 s79, 0')
    a(f'{nm}:')
    a('s_waitcnt vmcnt(0)')
    a('v_cmp_ne_u32 vcc, s43, v62'); a('v_cmp_ne_u32 s[66:67], s43, v63'); a('s_or_b64 vcc, vcc, s[66:67]')
    a(f's_cbranch_scc0 {nm}_ok')
    a('s_add_u32 s79, s79, 1'); a(f's_cmp_ge_u32 s79, {SPINMAX}'); a(f's_cbranch_scc1 {nm}_ok')
    a('s_sleep 4')
    fw_ask2()
    a(f's_branch {nm}')
    a(f'{nm}_ok:')

T0, T1 = AB + 4, AB + 5
if SENT:
    RS0 = opt('rs0', 1 if RDFT else 3)
    def resets(n):
        L = a.label('L_rs')
        a(f's_cmp_eq_u32 s35, {0 if RDFT else 1}'); a(f's_cbranch_scc1 {L}')
        if RDFT:
            for t in range(n // 12):
                for g in range(3):
                    for i in range(4): a(f'buffer_store_dwordx4 v[8:11], v12, s[12:15], s76 offen offset:{i*1024} sc1')
                    a(f's_add_u32 s76, s76, {4096 if g < 2 else 48*1024 - 8192}')
        else:
            for i in range(n):
                a(f'buffer_store_dwordx4 v[8:11], v12, s[12:15], s76 offen offset:{(i % 4)*1024} sc1')
                if i % 4 == 3: a(f's_add_u32 s76, s76, {48*1024}')
        a(f'{L}:')
    a(f's_cmp_lt_u32 s47, {RS0}'); a('s_cbranch_scc1 L_aux_nr')
    resets(12 if RDFT else 8)
    a('L_aux_nr:')
a('s_cmp_eq_u32 s35, 1'); a('s_cbranch_scc1 L_aux_c')
for i in range(4): a(f'ds_read_b128 v[{24+4*i}:{27+4*i}], v{AB+3} offset:{i*4096}')
a('s_waitcnt lgkmcnt(0)')
for i in range(4):
    for d in range(4):
        r = 24 + 4*i + d
        a(f'v_lshlrev_b32 v{T0}, 16, v{r}'); a(f'v_and_b32 v{T1}, 0xffff0000, v{r}')
        a(f'v_add_f32 v{48+2*d}, v{48+2*d}, v{T0}'); a(f'v_add_f32 v{49+2*d}, v{49+2*d}, v{T1}')
a('s_branch L_aux_x')
a('L_aux_c:')
for i in range(3): a(f'ds_read_b128 v[{24+4*i}:{27+4*i}], v{AB+3} offset:{i*1024}')
a('s_waitcnt lgkmcnt(0)')
for i in range(3):
    for d in range(4):
        r = 24 + 4*i + d
        a(f'v_lshlrev_b32 v{T0}, 16, v{r}'); a(f'v_and_b32 v{T1}, 0xffff0000, v{r}')
        a(f'v_add_f32 v{48+2*i}, v{48+2*i}, v{T0}'); a(f'v_add_f32 v{49+2*i}, v{49+2*i}, v{T1}')
a('L_aux_x:')
a(f's_add_u32 s46, s46, {STG}'); a(f's_cmp_eq_u32 s46, {3*STG}'); a('s_cselect_b32 s46, 0, s46')
a('s_add_u32 s47, s47, 1'); a('s_cmp_lt_u32 s47, 5'); a('s_cbranch_scc1 L_aux_l')
tick(7, 5)
a('s_barrier')
tick(7, 21)
if RDFT: resets(12*(RS0 + 3 - (RS0 + 3)//2))
elif RS0 >= 2: resets(8)
p2_setup()
def red8(regs):
    for mod in ('quad_perm:[1,0,3,2]', 'quad_perm:[2,3,0,1]', 'row_half_mirror'):
        a('s_nop 1')
        for r in regs: a(f'v_add_f32_dpp v{r}, v{r}, v{r} {mod} row_mask:0xf bank_mask:0xf')
a('s_cmp_eq_u32 s35, 1'); a('s_cbranch_scc1 L_aux_pc')
for mod in ('row_ror:4', 'row_ror:8'):
    a('s_nop 1')
    for r in range(48, 56): a(f'v_add_f32_dpp v{r}, v{r}, v{r} {mod} row_mask:0xf bank_mask:0xf')
for sw in ('v_permlane16_swap_b32', 'v_permlane32_swap_b32'):
    for r in range(48, 56): a(f'v_mov_b32 v{r-24}, v{r}')
    a('s_nop 1')
    for r in range(48, 56): a(f'{sw} v{r}, v{r-24}')
    a('s_nop 1')
    for r in range(48, 56): a(f'v_add_f32 v{r}, v{r}, v{r-24}')
for d in range(4):
    a(f'v_cmp_eq_u32 vcc, {d}, v6') if d else a('v_lshrrev_b32 v6, 2, v0')
    if d == 0:
        a('v_mov_b32 v24, v48'); a('v_mov_b32 v26, v49')
    else:
        a('s_nop 1'); a(f'v_cndmask_b32 v24, v24, v{48+2*d}, vcc'); a(f'v_cndmask_b32 v26, v26, v{49+2*d}, vcc')
a('v_mov_b32 v25, s43'); a('v_mov_b32 v27, s43')
a('v_and_b32 v4, 3, v0'); a('v_lshlrev_b32 v4, 6, v4'); a('v_lshl_add_u32 v4, v6, 4, v4')
a('s_mov_b64 exec, 0xffff')
a('buffer_store_dwordx4 v[24:27], v4, s[12:15], s77 offen sc1')
a('s_branch L_aux_pub')
a('L_aux_pc:')
for i in range(3): a(f'v_add_f32 v{48+i*2}, v{48+i*2}, v{49+i*2}')
red8([48, 50, 52])
for i in range(3): a(f'v_mov_b32 v{49+i*2}, s43')
a('s_mov_b32 exec_lo, 0x01010101'); a('s_mov_b32 exec_hi, 0x01010101')
a('buffer_store_dwordx2 v[48:49], v0, s[12:15], s77 offen sc1')
a('buffer_store_dwordx2 v[50:51], v0, s[12:15], s77 offen offset:64 sc1')
a('s_mov_b32 exec_hi, 0')
a('buffer_store_dwordx2 v[52:53], v0, s[12:15], s77 offen offset:128 sc1')
a('L_aux_pub:')
a('s_mov_b64 exec, -1')
tick(7, 6)
a('s_barrier')
tick(7, 22)
if RDFT: resets(12*((RS0 + 3)//2))
elif RS0 >= 3: resets(8)
fw_ask2()
tick(7, 7)
a('s_barrier')
tick(7, 23)
fw_check('L_pollwf')
if SENT:
    a('s_lshl_b32 s66, s28, 8'); a('s_lshl_b32 s67, s29, 2'); a('s_add_u32 s66, s66, s67'); a(f's_add_u32 s66, s66, {WS_FH}')
    a('v_mov_b32 v4, s43'); a('v_mov_b32 v5, 0')
    a('s_waitcnt vmcnt(0)')
    a('s_mov_b64 exec, 1'); a('buffer_store_dword v4, v5, s[12:15], s66 offen sc1'); a('s_mov_b64 exec, -1')
a('s_lshl_b32 s66, s28, 13'); a(f's_add_u32 s66, s66, {WS_XP}'); a('s_add_u32 s68, s66, 4096')
a('s_lshl_b32 s67, s29, 12'); a(f's_add_u32 s67, s67, {WS_WP}')
def gather():
    for i in range(8): a(f'buffer_load_dwordx4 v[{8+4*i}:{11+4*i}], v1, s[12:15], s{66 if i < 4 else 68} offen offset:{(i%4)*1024} sc1')
    for i in range(4): a(f'buffer_load_dwordx4 v[{40+4*i}:{43+4*i}], v1, s[12:15], s67 offen offset:{i*1024} sc1')
    a(f'buffer_load_dword v{AB+1}, v{AB}, s[12:15], s65 offen sc1')
a(f's_mov_b32 s65, {WS_FH}')
if RDFT:
    a(f'v_and_b32 v{AB}, 3, v0'); a(f'v_lshlrev_b32 v{AB}, 2, v{AB}'); a('s_lshl_b32 s69, s36, 8'); a('s_add_u32 s69, s69, 48'); a(f'v_add_u32 v{AB}, s69, v{AB}')
    a('s_lshl_b32 s69, s28, 8'); a('s_lshl_b32 s64, s30, 2'); a('s_add_u32 s69, s69, s64'); a('s_add_u32 s69, s69, 48'); a('v_mov_b32 v4, s69')
    a('v_cmp_gt_u32 vcc, 16, v0'); a('s_nop 1'); a(f'v_cndmask_b32 v{AB}, v4, v{AB}, vcc')
else:
    a(f'v_min_u32 v{AB}, 11, v0'); a(f'v_lshlrev_b32 v{AB}, 2, v{AB}'); a('s_lshl_b32 s69, s36, 8'); a(f'v_add_u32 v{AB}, s69, v{AB}')
gather()
a('s_cmp_eq_u32 s35, 1'); a('s_cselect_b32 s69, 40, 64'); a('v_cmp_gt_u32 s[76:77], s69, v0')
tick(7, 8)
a('s_barrier')
tick(7, 24)
a('s_mov_b32 s79, 0')
a('s_waitcnt vmcnt(0)')
a('L_gchk:')
a(f'v_xor_b32 v2, s43, v{AB+1}'); a('s_sub_u32 s64, s35, 1' if RDFT else 's_mov_b32 s64, 0'); a('v_and_b32 v2, s64, v2')
for i in range(0, 8): a(f'v_xor_b32 v3, s43, v{10+4*i}'); a('v_or_b32 v2, v2, v3')
a('v_xor_b32 v4, s43, v41')
for r in (43, 45, 47, 49, 51, 53, 55): a(f'v_xor_b32 v3, s43, v{r}'); a('v_or_b32 v4, v4, v3')
a('v_cmp_ne_u32 vcc, 0, v4'); a('s_and_b64 s[74:75], vcc, s[76:77]')
a('v_cmp_ne_u32 vcc, 0, v2'); a('s_or_b64 s[74:75], s[74:75], vcc')
a('s_cbranch_scc0 L_gok')
a('s_add_u32 s79, s79, 1'); a(f's_cmp_ge_u32 s79, {SPINMAX}'); a('s_cbranch_scc1 L_gok')
a('s_sleep 4')
gather()
a('s_waitcnt vmcnt(0)')
a('s_branch L_gchk')
a('L_gok:')
tick(7, 9)
for h in range(2):
    for d in range(2):
        b = 8 + 4*h + d
        a(f'v_add_f32 v{b}, v{b}, v{b+8}'); a(f'v_add_f32 v{b+16}, v{b+16}, v{b+24}'); a(f'v_add_f32 v{b}, v{b}, v{b+16}')
    a(f'v_add_f32 v{40+4*h}, v{40+4*h}, v{48+4*h}'); a(f'v_add_f32 v{41+4*h}, v{42+4*h}, v{50+4*h}')
a('v_lshlrev_b32 v2, 3, v0'); a(f'v_add_u32 v2, {L_CS}, v2')
a('ds_write_b64 v2, v[40:41]'); a('ds_write_b64 v2, v[44:45] offset:512')
for (s_, q_, ro, mo) in ((8, 9, 16, 18), (12, 13, 17, 19)):
    a(f'v_mul_f32 v{mo}, {1.0/D!r}, v{s_}')
    a(f'v_mul_f32 v{q_}, {1.0/D!r}, v{q_}')
    a(f'v_fma_f32 v{q_}, -v{mo}, v{mo}, v{q_}')
    a(f'v_max_f32 v{q_}, 0, v{q_}')
    rbf(mo); rbf(q_)
    a(f'v_add_f32 v{q_}, 0x3727c5ac, v{q_}')
    rbf(q_)
    a(f'v_sqrt_f32 v{q_}, v{q_}'); a('s_nop 0')
    rbf(q_)
    a(f'v_rcp_f32 v{ro}, v{q_}')
a('v_lshlrev_b32 v2, 2, v0'); a(f'v_add_u32 v2, {L_R}, v2')
a('ds_write_b32 v2, v16'); a('ds_write_b32 v2, v17 offset:256'); a('ds_write_b32 v2, v18 offset:512'); a('ds_write_b32 v2, v19 offset:768')
lds_arrive(24, 2)
tick(7, 10)
a(f'v_cmp_ne_u32 vcc, s43, v{AB+1}'); a('s_cmp_eq_u64 vcc, 0'); a('s_cbranch_scc1 L_pollr_ok')
spin_begin('L_pollr')
a(f'buffer_load_dword v{AB+1}, v{AB}, s[12:15], s65 offen sc1')
a('s_waitcnt vmcnt(0)')
a(f'v_cmp_ne_u32 vcc, s43, v{AB+1}'); a('s_cmp_eq_u64 vcc, 0')
spin_end('L_pollr')
lds_arrive(0, 2)
if opt('aprio', 0): a('s_setprio 0')
a('s_branch L_p2join')

a('L_compute:')
common_srds()
a(f's_mov_b32 s50, {(-2*STG) & 0xffffffff}'); a(f's_mov_b32 s51, {STG}')
a('s_mov_b32 s46, 0'); a('s_mov_b32 s47, 0')
p2h_setup()
a('v_lshrrev_b32 v2, 4, v0')
a('v_and_b32 v3, 15, v0')
a('v_bfe_u32 v6, v0, 1, 3'); a('v_xor_b32 v6, v6, v2')
a('s_cmp_ge_u32 s2, 240')
a('s_cbranch_scc1 L_nowd')
a(f's_mul_hi_u32 s76, s2, {-(-(1<<32)//5)}'); a('s_mul_i32 s77, s76, 5'); a('s_sub_u32 s77, s2, s77')
a('v_lshrrev_b32 v36, 2, v0'); a('v_and_b32 v37, 3, v0')
a(f'v_mul_u32_u24 v38, {D*2}, v36'); a('v_lshl_add_u32 v38, v37, 4, v38')
a(f's_mul_i32 s68, s76, {32*D*2}'); a('s_lshl_b32 s69, s77, 8'); a('s_add_u32 s68, s68, s69'); a('s_lshl_b32 s69, s3, 6'); a('s_add_u32 s68, s68, s69')
a('s_lshl_b32 s70, s3, 11'); a(f's_add_u32 s70, s70, {L_WD}')
a('s_mov_b32 m0, s70'); a('s_nop 0')
a('buffer_load_dwordx4 v38, s[20:23], s68 offen lds')
a('s_add_u32 m0, s70, 1024'); a(f's_add_u32 s68, s68, {16*D*2}')
a('buffer_load_dwordx4 v38, s[20:23], s68 offen lds')
a('L_nowd:')
def wd_finish():
    L = a.label('L_wdf')
    a('s_cmp_ge_u32 s2, 240'); a(f's_cbranch_scc1 {L}')
    a('v_lshlrev_b32 v36, 6, v36'); a('v_lshl_add_u32 v36, v37, 3, v36'); a('v_add_u32 v36, s70, v36')
    a('v_lshlrev_b32 v37, 4, v0')
    a('s_lshl_b32 s77, s77, 3'); a('s_lshl_b32 s68, s3, 1'); a('s_add_u32 s77, s77, s68')
    a(f's_mul_i32 s76, s76, 5120'); a(f's_add_u32 s76, s76, {WS_WDT}')
    a('s_waitcnt vmcnt(0)')
    for e in range(2):
        for b in range(2):
            a(f'ds_read_b64_tr_b16 v[{48+4*e+2*b}:{49+4*e+2*b}], v36 offset:{32*e + 1024*b}')
    for e in range(2):
        a(f's_add_u32 s68, s77, {e}')
        a(f's_mul_hi_u32 s69, s68, {-(-(1<<32)//5)}')
        a('s_mul_i32 s70, s69, 5'); a('s_sub_u32 s70, s68, s70')
        a(f's_mul_i32 s69, s69, {48*5120}'); a('s_lshl_b32 s70, s70, 10')
        a('s_add_u32 s69, s69, s70'); a('s_add_u32 s69, s69, s76')
        a('s_waitcnt lgkmcnt(0)')
        a(f'buffer_store_dwordx4 v[{48+4*e}:{51+4*e}], v37, s[12:15], s69 offen sc1')
    a(f'{L}:')
pre_loop()
a('s_cmp_eq_u32 s35, 1')
a('s_cbranch_scc1 L_dft')
def interleave(M, R):
    out = []; R = list(R)
    for m in M:
        out.append(m)
        if R: out.append(R.pop(0))
    return out + R
tails = []
def mid_sync(last):
    L = a.label('L_ms')
    a('s_cmp_ge_u32 s47, 8'); a(f's_cbranch_scc1 {L}_t')
    a('s_barrier')
    a(f'{L}_b:')
    tails.append((L, last))
CNTRD = 'ds_read2_b32 v[14:15], v6 offset0:3 offset1:6'
def emit_tails():
    for L, last in tails:
        a(f'{L}_t:')
        a('s_mov_b64 exec, 1')
        a('s_cmp_eq_u32 s47, 9'); a(f's_cbranch_scc1 {L}_9')
        a('ds_add_u32 v6, v5 offset:16')
        a('s_mov_b64 exec, -1')
        a('v_readfirstlane_b32 s78, v14')
        a('s_cmp_ge_u32 s78, 3'); a(f's_cbranch_scc1 {L}_b')
        lds_wait(f'{L}_w', 12, 14, 3)
        a(f's_branch {L}_b')
        a(f'{L}_9:')
        a('ds_add_u32 v6, v5 offset:20')
        a('s_mov_b64 exec, -1')
        a(f's_branch {last}')
def stats_wait(name):
    a('v_readfirstlane_b32 s78, v15')
    a('s_cmp_ge_u32 s78, 1'); a(f's_cbranch_scc1 {name}_ok')
    lds_wait(name, 24, 14, 1)
def slot_advance():
    a('s_add_u32 s46, s46, 1'); a('s_cmp_eq_u32 s46, 3'); a('s_cselect_b32 s42, s50, s51'); a('s_cselect_b32 s46, 0, s46')
ACC = 128
def T16(mat, mi, ni): return ACC + 64*mat + 16*mi + 4*ni
FR = 32
def fW(p, mat, mi): return FR + 48*p + 16*mat + 4*mi
def fX(p, ni): return FR + 48*p + 32 + 4*ni
AW, AX = 8, 12
a('s_and_b32 s44, s3, 1'); a('s_lshr_b32 s45, s3, 1')
a('v_bfe_u32 v7, v0, 2, 2')
a('v_lshl_add_u32 v4, v2, 3, v7'); a('v_lshlrev_b32 v4, 8, v4')
a('v_bfe_u32 v5, v0, 1, 1'); a('v_lshl_add_u32 v4, v5, 4, v4')
a('v_and_b32 v5, 1, v0'); a('v_lshl_add_u32 v4, v5, 3, v4')
a('v_and_b32 v5, 1, v2'); a('v_lshl_or_b32 v5, v5, 2, v7')
for mi in range(4):
    a('s_lshl_b32 s66, s44, 2'); a(f's_add_u32 s66, s66, {mi}')
    a('v_xor_b32 v7, s66, v5')
    a(f'v_lshl_add_u32 v{AW+mi}, v7, 5, v4')
a('s_lshl_b32 s66, s45, 13'); a('s_add_u32 s66, s66, 32768')
a('v_lshlrev_b32 v5, 7, v3'); a('v_add_u32 v5, s66, v5')
for ks in range(2):
    a(f'v_xor_b32 v7, {4*ks}, v6')
    a(f'v_lshl_add_u32 v{AX+ks}, v7, 4, v5')
for i in range(128): a(f'v_mov_b32 v{ACC+i}, 0')
def f_reads(p, ks):
    L = []
    def w(mat, mi):
        for b in range(2):
            L.append(f'ds_read_b64_tr_b16 v[{fW(p,mat,mi)+2*b}:{fW(p,mat,mi)+2*b+1}], v{AW+mi} offset:{mat*16384 + ks*8192 + b*1024}')
    w(0, 0)
    for ni in range(4): L.append(f'ds_read_b128 v[{fX(p,ni)}:{fX(p,ni)+3}], v{AX+ks} offset:{ni*2048}')
    for mat in range(2):
        for mi in range(4):
            if (mat, mi) != (0, 0): w(mat, mi)
    return L
def f_mfmas(p):
    L = []
    for i, (mat, mi) in enumerate([(mat, mi) for mat in range(2) for mi in range(4)]):
        for ni in (range(4) if i % 2 == 0 else range(3, -1, -1)):
            t = T16(mat, mi, ni)
            L.append(f'v_mfma_f32_16x16x32_bf16 v[{t}:{t+3}], v[{fW(p,mat,mi)}:{fW(p,mat,mi)+3}], v[{fX(p,ni)}:{fX(p,ni)+3}], v[{t}:{t+3}]')
    return L
wd_finish()
a('v_mov_b32 v5, 1'); a(f'v_mov_b32 v6, {L_CNT}')
tick(7, 0)
a('s_barrier')
tick(7, 16)
stamp(1)
for r in f_reads(0, 0): a(r)
a('L_floop:')
a('s_waitcnt lgkmcnt(0)')
for ins in interleave(f_mfmas(0), f_reads(1, 1) + [CNTRD]): a(ins)
a('s_waitcnt vmcnt(0) lgkmcnt(0)')
tick(7, ('s47', 1))
mid_sync('L_flast')
tick(7, ('s47', 17))
slot_advance()
for r in (AW, AX): a(f'v_add_u32 v{r}, s42, v{r}')
R = f_reads(0, 0)
R = R[:3] + [f'v_add_u32 v{r}, s42, v{r}' for r in (AW+1, AW+2, AW+3, AX+1)] + R[3:]
for ins in interleave(f_mfmas(1), R): a(ins)
a('s_add_u32 s47, s47, 1'); a('s_branch L_floop')
a('L_flast:')
pre_epilogue()
stats_wait('L_fst')
tick(7, 40)
CSB = 48
P = []
P += ['s_lshl_b32 s66, s45, 8', f's_add_u32 s66, s66, {L_R}', 'v_lshlrev_b32 v4, 2, v3', 'v_add_u32 v4, s66, v4']
for ni in range(4):
    P += [f'ds_read_b32 v{40+ni}, v4 offset:{64*ni}', f'ds_read_b32 v{44+ni}, v4 offset:{512 + 64*ni}']
P += [f'v_mov_b32 v10, {L_CNT}', 'ds_read_b32 v8, v10 offset:32']
P += ['s_lshl_b32 s66, s44, 8', f's_add_u32 s66, s66, {L_CS}', 'v_lshlrev_b32 v5, 4, v2', 'v_add_u32 v5, s66, v5']
for mat in range(2):
    for mi in range(4):
        r = CSB + 16*mat + 4*mi
        P.append(f'ds_read_b128 v[{r}:{r+3}], v5 offset:{mat*512 + mi*64}')
P += ['v_lshlrev_b32 v1, 4, v0', 'v_mov_b32 v9, 0']
P += ['s_lshl_b32 s66, s28, 3', 's_lshl_b32 s67, s45, 2', 's_add_u32 s66, s66, s67', 's_mul_i32 s66, s66, 48',
      's_lshl_b32 s67, s29, 2', 's_add_u32 s66, s66, s67', 's_lshl_b32 s67, s44, 1', 's_add_u32 s66, s66, s67', 's_lshl_b32 s66, s66, 10']
P += ['s_lshl_b32 s70, s28, 8', 's_lshl_b32 s71, s29, 4', 's_add_u32 s70, s70, s71', 's_lshl_b32 s71, s3, 2', 's_add_u32 s70, s70, s71', f's_add_u32 s70, s70, {WS_FH}']
M = f_mfmas(1)
for i, m in enumerate(M):
    a(m)
    for _ in range(2):
        if P: a(P.pop(0))
for x_ in P: a(x_)
stamp(2)
a('s_waitcnt lgkmcnt(0)')
a('v_readfirstlane_b32 s43, v8')
for ni in range(4):
    c = 80 + 6*ni
    a(f'v_sub_f32 v{c}, 0, v{44+ni}')
    a(f'v_mul_f32 v{c+2}, {-1.4426950408889634!r}, v{40+ni}')
    a(f'v_mul_f32 v{c+4}, v{40+ni}, v{40+ni}')
for ni in range(4): a(f'v_rcp_f32 v{84+6*ni}, v{84+6*ni}')
tick(7, 42)
BC = 'op_sel_hi:[1,0,1]'
for ni in range(1, 4): a(f's_add_u32 s{66+ni}, s{65+ni}, {48*1024}')
for kp in range(2):
    for ni in range(4):
        if kp == 1 and ni == VCHK - 1: a('ds_read_b32 v11, v10 offset:28')
        if kp == 1 and ni == VCHK:
            a('s_waitcnt lgkmcnt(0)'); a('v_readfirstlane_b32 s79, v11')
            a('s_cmp_lg_u32 s79, 1'); a('s_cbranch_scc1 L_fnov')
            v_loads()
            a('L_fnov:')
        c = 80 + 6*ni
        seq = []
        prs = [(2*kp + h, d) for h in range(2) for d in (0, 2)]
        for n, (mi, d) in enumerate(prs):
            g = T16(0, mi, ni) + d; u = T16(1, mi, ni) + d
            a(f'v_pk_fma_f32 v[{g}:{g+1}], v[{CSB+4*mi+d}:{CSB+1+4*mi+d}], v[{c}:{c+1}], v[{g}:{g+1}] {BC}')
            a(f'v_pk_fma_f32 v[{u}:{u+1}], v[{CSB+16+4*mi+d}:{CSB+17+4*mi+d}], v[{c}:{c+1}], v[{u}:{u+1}] {BC}')
            a(f'v_pk_mul_f32 v[{104+2*n}:{105+2*n}], v[{g}:{g+1}], v[{c+2}:{c+3}] op_sel_hi:[1,0]')
        for n in range(8): a(f'v_exp_f32 v{104+n}, v{104+n}')
        for n, (mi, d) in enumerate(prs):
            g = T16(0, mi, ni) + d; u = T16(1, mi, ni) + d
            a(f'v_pk_mul_f32 v[{g}:{g+1}], v[{g}:{g+1}], v[{u}:{u+1}]')
            a(f'v_pk_fma_f32 v[{104+2*n}:{105+2*n}], v[{104+2*n}:{105+2*n}], v[{c+4}:{c+5}], v[{c+4}:{c+5}] op_sel_hi:[1,0,0]')
        for n in range(8): a(f'v_rcp_f32 v{104+n}, v{104+n}')
        a('s_nop 0')
        o = 112 + 4*ni
        for n, (mi, d) in enumerate(prs):
            g = T16(0, mi, ni) + d
            a(f'v_pk_mul_f32 v[{g}:{g+1}], v[{g}:{g+1}], v[{104+2*n}:{105+2*n}]')
        for n, (mi, d) in enumerate(prs):
            g = T16(0, mi, ni) + d
            a(f'v_cvt_pk_bf16_f32 v{o+n}, v{g}, v{g+1}')
        a(f'buffer_store_dwordx4 v[{o}:{o+3}], v1, s[12:15], s{66+ni} offen offset:{kp*1024} {STP}')
        tick(7, 43 + 4*kp + ni)
tick(7, 32)
stamp(3)
a('s_waitcnt vmcnt(0)')
if not SENT:
    a('s_mov_b64 exec, 1'); a('buffer_store_dword v8, v9, s[12:15], s70 offen sc1'); a('s_mov_b64 exec, -1')
if VCHK == 4:
    a('s_waitcnt lgkmcnt(0)'); a('v_readfirstlane_b32 s79, v11')
    a('s_cmp_lg_u32 s79, 1'); a('s_cbranch_scc1 L_fnov')
    v_loads()
    a('L_fnov:')
tick_dump(7, 4)
a('s_branch L_helper')

a('L_dft:')
DACC = 176
def TD(part, mi, et): return DACC + 40*part + 20*mi + 4*et
DFR = 40
def dX(p, mi): return DFR + 48*p + 4*mi
def dC(p, part, et): return DFR + 48*p + 8 + 20*part + 4*et
DX, DC = 8, 10
FCOS, FSIN, FNS = 136, 144, 152
a('v_lshlrev_b32 v5, 7, v3')
a('s_lshl_b32 s66, s3, 12'); a('s_add_u32 s66, s66, 32768')
for ks in range(2):
    a(f'v_xor_b32 v7, {4*ks}, v6')
    a(f'v_lshl_add_u32 v{DC+ks}, v7, 4, v5')
    a(f'v_add_u32 v{DX+ks}, s66, v{DC+ks}')
for i in range(80): a(f'v_mov_b32 v{DACC+i}, 0')
a('s_and_b32 s45, s30, 1'); a('s_sub_u32 s45, 3, s45')
a('v_lshrrev_b32 v12, 3, v3'); a('v_and_b32 v13, 7, v3'); a('v_lshlrev_b32 v13, 4, v13'); a('v_lshl_add_u32 v12, v12, 2, v13'); a('v_add_u32 v12, s3, v12')
a('v_lshlrev_b32 v13, 5, v2'); a('v_add_u32 v13, s28, v13'); a('v_cvt_f32_u32 v13, v13')
for mt in range(2):
    a(f'v_add_u32 v14, {8*mt}, v12'); a('v_cvt_f32_u32 v14, v14'); a(f'v_mul_f32 v14, {1.0/2048!r}, v14')
    for d in range(4):
        for h in range(2):
            a(f'v_add_f32 v{60+h}, {float(16*h + 128*d)!r}, v13')
            a(f'v_mul_f32 v{60+h}, v{60+h}, v14')
        a('v_cos_f32 v62, v60'); a('v_cos_f32 v63, v61'); a('v_sin_f32 v64, v60'); a('v_sin_f32 v65, v61')
        a(f'v_cvt_pk_bf16_f32 v{FCOS+4*mt+d}, v62, v63')
        a(f'v_cvt_pk_bf16_f32 v{FSIN+4*mt+d}, v64, v65')
        a(f'v_xor_b32 v{FNS+4*mt+d}, 0x80008000, v{FSIN+4*mt+d}')
def d_reads(p, ks):
    L = [f'ds_read_b128 v[{dX(p,mi)}:{dX(p,mi)+3}], v{DX+ks} offset:{mi*2048}' for mi in range(2)]
    for part in range(2):
        for et in range(5):
            L.append(f'ds_read_b128 v[{dC(p,part,et)}:{dC(p,part,et)+3}], v{DC+ks} offset:{part*16384 + et*2048}')
    return L
def d_mfmas(p):
    L = []
    i = 0
    for part in range(2):
        for et in range(5):
            for mi in ((0, 1) if i % 2 == 0 else (1, 0)):
                t = TD(part, mi, et)
                L.append(f'v_mfma_f32_16x16x32_bf16 v[{t}:{t+3}], v[{dX(p,mi)}:{dX(p,mi)+3}], v[{dC(p,part,et)}:{dC(p,part,et)+3}], v[{t}:{t+3}]')
            i += 1
    return L
wd_finish()
a('v_mov_b32 v5, 1'); a(f'v_mov_b32 v6, {L_CNT}')
for i in range(32, 36): a(f'v_mov_b32 v{i}, 0')
tick(7, 0)
a('s_barrier')
tick(7, 16)
stamp(1)
for r in d_reads(0, 0): a(r)
def xstat(p):
    L = []
    for mi in range(2):
        for d in range(4):
            r = dX(p, mi) + d; t = 36 + 2*(d & 1)
            L += [f'v_lshlrev_b32 v{t}, 16, v{r}', f'v_and_b32 v{t+1}, 0xffff0000, v{r}',
                  f'v_add_f32 v{32+2*mi}, v{32+2*mi}, v{t}', f'v_fmac_f32 v{33+2*mi}, v{t}, v{t}',
                  f'v_add_f32 v{32+2*mi}, v{32+2*mi}, v{t+1}', f'v_fmac_f32 v{33+2*mi}, v{t+1}, v{t+1}']
    return L
def interleave2(M, R, per):
    out = []; R = list(R)
    for m in M:
        out.append(m)
        for _ in range(per):
            if R: out.append(R.pop(0))
    return out + R
def dloop(name, stats):
    a(f'{name}:')
    a('s_waitcnt lgkmcnt(0)')
    for ins in interleave2(d_mfmas(0), d_reads(1, 1) + (xstat(0) if stats else [CNTRD]), 3 if stats else 1): a(ins)
    a('s_waitcnt vmcnt(0) lgkmcnt(0)' if stats else 's_waitcnt lgkmcnt(0)')
    tick(7, ('s47', 1))
    if stats: a('s_barrier')
    else: mid_sync('L_dlast')
    tick(7, ('s47', 17))
    slot_advance()
    for r in (DX, DC): a(f'v_add_u32 v{r}, s42, v{r}')
    R = d_reads(0, 0) + [f'v_add_u32 v{r}, s42, v{r}' for r in (DX+1, DC+1)]
    for ins in interleave2(d_mfmas(1), R + (xstat(1) if stats else []), 3 if stats else 1): a(ins)
    a('s_add_u32 s47, s47, 1')
    if stats: a('s_cmp_lt_u32 s47, s45'); a(f's_cbranch_scc1 {name}')
    else: a(f's_branch {name}')
dloop('L_dloopA', True)
a(f'v_mov_b32 v36, {L_NON}'); a('ds_read_b32 v14, v36')
for sw in ('v_permlane16_swap_b32', 'v_permlane32_swap_b32'):
    for r in range(32, 36): a(f'v_mov_b32 v{r+4}, v{r}')
    a('s_nop 1')
    for r in range(32, 36): a(f'{sw} v{r}, v{r+4}')
    a('s_nop 1')
    for r in range(32, 36): a(f'v_add_f32 v{r}, v{r}, v{r+4}')
a('s_lshl_b32 s66, s28, 2'); a('s_add_u32 s66, s66, s30'); a('s_lshl_b32 s66, s66, 11'); a('s_lshl_b32 s67, s3, 9'); a('s_add_u32 s66, s66, s67'); a(f's_add_u32 s66, s66, {WS_XP}')
a('v_cmp_gt_u32 vcc, 16, v0'); a('v_lshlrev_b32 v38, 4, v0')
a('s_waitcnt lgkmcnt(0)')
a('v_cndmask_b32 v12, v34, v32, vcc'); a('v_cndmask_b32 v13, v35, v33, vcc'); a('v_mov_b32 v15, v14')
a('v_readfirstlane_b32 s43, v14')
a('s_mov_b32 exec_hi, 0')
a('buffer_store_dwordx4 v[12:15], v38, s[12:15], s66 offen sc1')
a('s_mov_b64 exec, -1')
a('s_nop 0')
dloop('L_dloopB', False)
a('L_dlast:')
pre_epilogue()
stats_wait('L_dst')
tick(7, 40)
DP = []
DP.append('s_lshl_b32 s66, s3, 7'); DP.append(f's_add_u32 s66, s66, {L_R}')
DP.append('v_lshlrev_b32 v4, 4, v2'); DP.append('v_add_u32 v4, s66, v4')
for mi in range(2):
    DP.append(f'ds_read_b128 v[{40+4*mi}:{43+4*mi}], v4 offset:{64*mi}')
    DP.append(f'ds_read_b128 v[{48+4*mi}:{51+4*mi}], v4 offset:{512 + 64*mi}')
DP.append('v_lshlrev_b32 v5, 2, v3'); DP.append(f'v_add_u32 v5, {L_CS}, v5')
for part in range(2):
    for et in range(5): DP.append(f'ds_read_b32 v{56+2*(5*part+et)}, v5 offset:{part*512 + et*64}')
DP.append(f'v_mul_u32_u24 v8, {ZROW}, v3'); DP.append('v_lshl_add_u32 v8, v2, 2, v8'); DP.append('s_lshl_b32 s66, s3, 4'); DP.append('v_add_u32 v8, s66, v8')
DP.append('ds_read_b32 v14, v6 offset:20')
for ins in interleave2(d_mfmas(1), DP, 2): a(ins)
stamp(2)
a('s_waitcnt lgkmcnt(0)')
a('v_readfirstlane_b32 s78, v14')
a('s_cmp_ge_u32 s78, 4'); a('s_cbranch_scc1 L_dc9_ok')
lds_wait('L_dc9', 20, 14)
tick(7, 41)
for et in range(5):
    for mi in range(2):
        for part in range(2):
            t = TD(part, mi, et); c = 56 + 2*(5*part + et)
            for d in (0, 2):
                a(f'v_pk_fma_f32 v[{t+d}:{t+d+1}], v[{48+4*mi+d}:{49+4*mi+d}], v[{c}:{c+1}], v[{t+d}:{t+d+1}] op_sel_hi:[1,0,1] neg_lo:[1,0,0] neg_hi:[1,0,0]')
            for d in (0, 2):
                a(f'v_pk_mul_f32 v[{t+d}:{t+d+1}], v[{t+d}:{t+d+1}], v[{40+4*mi+d}:{41+4*mi+d}]')
        y = 80 + 16*mi
        for part in range(2):
            t = TD(part, mi, et)
            a(f'v_pk_add_f32 v[{y+4*part}:{y+4*part+1}], v[{t}:{t+1}], v[{t+2}:{t+3}]')
            a(f'v_pk_add_f32 v[{y+4*part+2}:{y+4*part+3}], v[{t}:{t+1}], v[{t+2}:{t+3}] neg_lo:[0,1] neg_hi:[0,1]')
        pa, qa, ra, sa, pb, qb, rb, sb = range(y, y+8); o = y + 8
        a(f'v_add_f32 v{o}, v{pa}, v{qa}'); a(f'v_add_f32 v{o+1}, v{pb}, v{qb}')
        a(f'v_add_f32 v{o+2}, v{ra}, v{sb}'); a(f'v_sub_f32 v{o+3}, v{rb}, v{sa}')
        a(f'v_sub_f32 v{o+4}, v{pa}, v{qa}'); a(f'v_sub_f32 v{o+5}, v{pb}, v{qb}')
        a(f'v_sub_f32 v{o+6}, v{ra}, v{sb}'); a(f'v_add_f32 v{o+7}, v{rb}, v{sa}')
    for cpart in range(8):
        a(f'v_cvt_pk_bf16_f32 v{112+cpart}, v{88+cpart}, v{104+cpart}')
    for cpart in range(8):
        a(f'ds_write_b32 v8, v{112+cpart} offset:{L_Z + (cpart*80 + 16*et)*ZROW}')
tick(7, 42)
lds_arrive(4, 9)
lds_wait('L_zw', 4, 9)
tick(7, 43)
a(f'v_mul_u32_u24 v8, {ZROW}, v3'); a('v_lshl_add_u32 v8, v2, 4, v8'); a(f's_mul_i32 s66, s3, {2*80*ZROW}'); a('v_add_u32 v8, s66, v8')
for part in range(2):
    for et in range(5):
        r = 40 + 20*part + 4*et
        a(f'ds_read_b128 v[{r}:{r+3}], v8 offset:{L_Z + (part*80 + 16*et)*ZROW}')
lds_arrive(8, 9)
tick(7, 44)
def VR(mt, et): return DACC + 20*mt + 4*et
def VI(mt, et): return DACC + 40 + 20*mt + 4*et
for et in range(5):
    ya = 40 + 4*et; yb = 60 + 4*et
    for mt in range(2):
        a(f'v_mfma_f32_16x16x32_bf16 v[{VR(mt,et)}:{VR(mt,et)+3}], v[{FCOS+4*mt}:{FCOS+4*mt+3}], v[{ya}:{ya+3}], 0')
        a(f'v_mfma_f32_16x16x32_bf16 v[{VI(mt,et)}:{VI(mt,et)+3}], v[{FNS+4*mt}:{FNS+4*mt+3}], v[{ya}:{ya+3}], 0')
    for mt in range(2):
        a(f'v_mfma_f32_16x16x32_bf16 v[{VR(mt,et)}:{VR(mt,et)+3}], v[{FSIN+4*mt}:{FSIN+4*mt+3}], v[{yb}:{yb+3}], v[{VR(mt,et)}:{VR(mt,et)+3}]')
        a(f'v_mfma_f32_16x16x32_bf16 v[{VI(mt,et)}:{VI(mt,et)+3}], v[{FCOS+4*mt}:{FCOS+4*mt+3}], v[{yb}:{yb+3}], v[{VI(mt,et)}:{VI(mt,et)+3}]')
tick(7, 45)
a('v_lshrrev_b32 v8, 1, v2'); a(f'v_mul_u32_u24 v8, {8*5120}, v8')
a('v_and_b32 v9, 1, v2'); a(f'v_mul_u32_u24 v10, 5120, v9'); a('v_add_u32 v8, v8, v10'); a('v_lshl_add_u32 v8, v3, 4, v8')
a('s_mul_i32 s66, s28, 17'); a('s_add_u32 s67, s66, s3'); a(f's_mul_i32 s67, s67, 10240'); a(f's_mul_i32 s68, s30, 1280')
a(f's_add_u32 s68, s68, {WS_V}'); a('s_add_u32 s67, s67, s68')
a('s_add_u32 s66, s66, 16'); a('s_mul_i32 s66, s66, 10240'); a('s_add_u32 s66, s66, s68')
a('s_nop 4')
for mt in range(2):
    for et in range(5):
        o = 80 + 20*mt + 4*et
        for i in range(4): a(f'v_cvt_pk_bf16_f32 v{o+i}, v{VR(mt,et)+i}, v{VI(mt,et)+i}')
        a(f'buffer_store_dwordx4 v[{o}:{o+3}], v8, s[12:15], s67 offen offset:{256*et} {STP}')
    if mt == 0: a(f's_add_u32 s67, s67, {16*5120}')
tick(7, 46)
a('s_cmp_lg_u32 s3, 0')
a('s_cbranch_scc1 L_signal')
a('v_cvt_f32_u32 v62, s28'); a('v_mul_f32 v62, 0.0625, v62'); a('v_cos_f32 v63, v62'); a('v_sin_f32 v64, v62')
a('v_cmp_gt_u32 vcc, 16, v0')
a('v_lshlrev_b32 v11, 4, v3'); a('v_add_u32 v9, v10, v11')
for et in range(5):
    o = 80 + 4*et; vr = VR(0, et); vi = VI(0, et); n = 40 + 4*et
    a(f'v_mul_f32 v65, v63, v{vr}'); a(f'v_fmac_f32 v65, v64, v{vi}')
    a(f'v_mul_f32 v66, v63, v{vi}'); a(f'v_fma_f32 v66, -v64, v{vr}, v66')
    a(f'v_cvt_pk_bf16_f32 v65, v65, v66')
    a(f'v_cndmask_b32 v65, v{o}, v65, vcc')
    a(f'v_mov_b32 v{n}, v{o+1}')
    a(f'v_mov_b32 v66, v65')
    a(f'v_mov_b32 v{n+1}, v{o+2}'); a(f'v_mov_b32 v{n+2}, v{o+3}')
    a(f'v_permlane16_swap_b32 v65, v66')
    a('s_nop 1')
    a(f'v_cndmask_b32 v{n+3}, v65, v66, vcc')
a('s_mov_b32 exec_hi, 0')
for et in range(5):
    a(f'buffer_store_dwordx4 v[{40+4*et}:{43+4*et}], v9, s[12:15], s66 offen offset:{256*et} {STP}')
a('s_mov_b64 exec, -1')

a('L_signal:')
a('s_mov_b32 s79, 0')
tick(7, 32)
stamp(3)
a('s_lshl_b32 s66, s30, 2'); a('s_add_u32 s66, s66, s3'); a('s_lshl_b32 s66, s66, 7'); a('s_lshl_b32 s67, s28, 2'); a('s_add_u32 s66, s66, s67'); a(f's_add_u32 s66, s66, {WS_FV}')
a('v_mov_b32 v4, s43'); a('v_mov_b32 v5, 0')
a('s_waitcnt vmcnt(0)'); a('s_mov_b64 exec, 1')
a('buffer_store_dword v4, v5, s[12:15], s66 offen sc1'); a('s_mov_b64 exec, -1')
tick_dump(7, 4)
a('L_helper:')
lds_arrive(0, 4)
lds_wait('L_hc9', 20, 40)
a('s_cmp_eq_u32 s35, 0'); a('s_cbranch_scc1 L_hnz')
lds_wait('L_hzc', 8, 40)
a('L_hnz:')
a('s_mov_b32 s44, s3')
p2_setup()
a('s_cmp_eq_u32 s35, 0'); a('s_cbranch_scc1 L_hf')
for st in range(6, 12 - NLATE): wdt_lds(st)
a('L_hf:')
for st in range(12 - NLATE, 12): wdt_lds(st)
a('s_waitcnt vmcnt(0)')
lds_arrive(36, 4)
stamp(4)

a('s_cmp_eq_u32 s79, 1'); a('s_cbranch_scc1 L_vdone')
if VGO: a('s_cmp_lg_u32 s3, 3'); a('s_cbranch_scc1 L_vwait')
spin_begin('L_pollv')
a(f'buffer_load_dword v53, v{VFL}, s[12:15], s60 offen sc1')
a('s_waitcnt vmcnt(0)')
a('v_cmp_ne_u32 vcc, s43, v53')
a('s_cmp_eq_u64 vcc, 0')
spin_end('L_pollv')
if VGO:
    lds_arrive(28, 40)
    a('L_vwait:')
    lds_wait('L_vc', 28, 40, 1)
    lds_wait('L_vgo', 40, 40, 1)
v_loads()
a('L_vdone:')
stamp(5)
a('v_lshrrev_b32 v4, 2, v3'); a('v_and_b32 v5, 3, v3'); a('v_lshl_add_u32 v7, v5, 2, v4')
a('s_mul_i32 s66, s55, 15'); a('v_xor_b32 v4, s66, v7')
a('v_cvt_f32_u32 v4, v4'); a('v_mul_f32 v4, 0.0625, v4')
a('v_lshlrev_b32 v5, 2, v2'); a('v_cvt_f32_u32 v5, v5')
for i in range(4):
    a(f'v_add_f32 v52, {float(i)!r}, v5'); a('v_mul_f32 v52, v52, v4')
    a('v_cos_f32 v53, v52'); a('v_sin_f32 v54, v52'); a('s_nop 0')
    a(f'v_cvt_pk_bf16_f32 v{8+i}, v53, v54')
a(f's_mov_b32 s47, {PN}'); a('s_cmp_eq_u32 s55, 1'); a(f's_cselect_b32 s47, {(-PN) & 0xffffffff}, s47')
a(f'v_mul_u32_u24 v56, {PQ}, v2'); a('v_lshl_add_u32 v56, v3, 4, v56'); a(f's_mul_i32 s66, s55, {3*PN}'); a('v_add_u32 v56, s66, v56')
for k4 in range(1, 4): a(f'v_add_u32 v{56+k4}, s47, v{55+k4}')
def spec_tile(off_s, vb):
    for k4 in range(4):
        for i in range(4): a(f'v_mov_b32 v{64+4*k4+i}, v{vb+4*i+k4}')
    a('s_nop 1')
    for k4 in range(4):
        c = 80 + 4*k4
        a(f'v_mfma_f32_16x16x32_bf16 v[{c}:{c+3}], v[{64+4*k4}:{67+4*k4}], v[8:11], 0')
    for k4 in range(4): a(f'v_add_u32 v{40+k4}, {off_s}, v{56+k4}')
    a('s_nop 5')
    for k4 in range(4):
        c = 80 + 4*k4
        a(f'ds_write_b128 v{40+k4}, v[{c}:{c+3}]')
a('s_cmp_eq_u32 s3, 1'); a(f's_mov_b32 s73, {ST[0]}'); a(f's_cselect_b32 s73, {ST[1]}, s73')
a('s_cmp_eq_u32 s3, 2'); a(f's_cselect_b32 s73, {ST[2]}, s73')
a('s_cmp_eq_u32 s3, 3'); a(f's_cselect_b32 s73, {ST[3]}, s73')
a('s_waitcnt vmcnt(0)')
a('s_cmp_lg_u32 s3, 0'); a('s_cbranch_scc1 L_spec1')
a(f's_mov_b32 s74, {ST[4]}')
spec_tile('s74', VB1)
a('L_spec1:')
spec_tile('s73', VB0)
for r in range(3):
    for d in range(4):
        a(f'v_lshlrev_b32 v{96+8*r+2*d}, 16, v{XR[r]+d}'); a(f'v_and_b32 v{97+8*r+2*d}, 0xffff0000, v{XR[r]+d}')

a('L_final:')
def final_reads(r, b):
    d4, d11 = FA[3*r], FA[3*r+2]
    for p in range(5):
        reg = (d4, d4, d4, d4, d11)[p]; off = (0, P2W, 2*P2W, 3*P2W, 0)[p]
        a(f'ds_read_b128 v[{b+8*p}:{b+3+8*p}], v{reg} offset:{off}')
        a(f'ds_read_b128 v[{b+4+8*p}:{b+7+8*p}], v{reg} offset:{off+PQ}')
def final_sum(r, b, cnt):
    x = 96 + 8*r
    for p in range(5):
        a(f's_waitcnt lgkmcnt({min(15, cnt + 8 - 2*p)})')
        for d in range(0, 8, 2): a(f'v_pk_add_f32 v[{x+d}:{x+d+1}], v[{x+d}:{x+d+1}], v[{b+8*p+d}:{b+8*p+d+1}]')
    for d in range(4): a(f'v_cvt_pk_bf16_f32 v{b+d}, v{x+2*d}, v{x+2*d+1}')
    a(f'buffer_store_dwordx4 v[{b}:{b+3}], v{FA[3*r+1]}, s[16:19], 0 offen {OUTP}')
a('s_waitcnt lgkmcnt(0)')
a('s_barrier')
stamp(6)
final_reads(0, 128)
final_reads(1, 168)
final_sum(0, 128, 10)
a('s_cmp_ge_u32 s3, 2'); a('s_cbranch_scc1 L_fin1')
final_reads(2, 208)
final_sum(1, 168, 10)
final_sum(2, 208, 0)
a('s_branch L_fin2')
a('L_fin1:')
final_sum(1, 168, 0)
a('L_fin2:')
if opt('dbgt', 0):
    a('s_cmp_lg_u32 s3, 0'); a('s_cbranch_scc1 L_dbgt')
    a('s_waitcnt vmcnt(0)')
    a('s_memrealtime s[94:95]'); a('s_waitcnt lgkmcnt(0)')
    a('s_mov_b64 exec, 1')
    for i, r in enumerate((80, 82, 84, 86, 88, 90, 92, 94)):
        a(f's_sub_u32 s66, s{r}, s43'); a('s_add_u32 s66, s66, 1000'); a('v_mov_b32 v4, s66'); a(f'v_mov_b32 v5, {4 + 4*i}')
        a('buffer_atomic_umax v4, v5, s[24:27], 0 offen sc1')
        a('s_nop 2')
    a('s_endpgm')
    a('L_dbgt:')
stamp(7)
if STAMPS:
    a('s_waitcnt vmcnt(0)')
    a('s_memrealtime s[96:97]')
    a('s_waitcnt lgkmcnt(0)')
    for i in range(8): a(f'v_mov_b32 v{16+i}, s{80+2*i}')
    a('v_mov_b32 v24, s96')
    a('s_lshl_b32 s66, s2, 3'); a('s_add_u32 s66, s66, s3'); a('s_lshl_b32 s66, s66, 6'); a(f's_add_u32 s66, s66, {WS_TS}')
    a('v_mov_b32 v4, 0')
    a('s_mov_b64 exec, 1')
    a('buffer_store_dwordx4 v[16:19], v4, s[12:15], s66 offen')
    a('buffer_store_dwordx4 v[20:23], v4, s[12:15], s66 offen offset:16')
    a('buffer_store_dword v24, v4, s[12:15], s66 offen offset:32')
a('s_endpgm')
emit_tails()
a('L_done:')
a.end(256, sgpr=102)
txt = a.text([])
txt = txt.replace('.amdgcn_target', f'; @launch grid=(256,1,1) block=(512,1,1) lds={LDS_BYTES}\n.amdgcn_target', 1)
open(sys.argv[1], 'w').write(txt)
```

```python
import sys, math
from asmlib import *
opts = dict(o.split('=') for o in sys.argv[2:])
def opt(k, d): return type(d)(opts.get(k, d))
STAMPS = opt('stamps', 0)
NTM = [sum(1 << int(c) for c in m) for m in opts['ntm'].split(',')] if 'ntm' in opts else None
RP = opts.get('rp', '-').replace('+', ' ').replace('-', '')
WP_ = opts.get('wp', 'nt').replace('+', ' ').replace('-', '')
XP_ = opts.get('xp', '-').replace('+', ' ').replace('-', '')
TONE = opt('t1', 0)
HDLY = opt('hdly', 0)
OUTP = opts.get('outp', 'sc1').replace('+', ' ').replace('-', '')
SENT = 1
RDFT = opt('rdft', 0)
RSL = opt('rsleep', 4)
AUXV = opt('auxv', 0)
VGO = opt('vgo', 1)
VCHK = opt('vchk', 4)
XR = [32, 36, 28]
FA = [16, 17, 18, 19, 20, 21, 22, 23, 24]; VA0, VA4, VFL = 25, 26, 27
NONIT = 1
WMODE = opt('wmode', 0)
STRICT = opt('strict', 1)
ZFIX = opt('zfix', 1)
FLAGA = opt('flaga', 0)
FAKEW = opt('fakew', 0)
FAKEH = opt('fakeh', 0)
P2MAP = opt('p2map', 0)
P2ROT = opt('p2rot', 1)
SPINMAX = opt('spinmax', 1 << 16)
CODEPF = opt('codepf', 1)
LDW = opts.get('ldw', 'sc1').replace('+', ' ').replace('-', '')
LDH = opts.get('ldh', 'sc1').replace('+', ' ').replace('-', '')
STP = opts.get('stp', 'sc1').replace('+', ' ').replace('-', '')
S, D, F = 2048, 640, 1536
KNAME = 'parallel_sum__spectral_fnet__swiglu_ffn__prompt_kernel'
STG = 49152
WS_H = 0
WS_WDT = 0x600000
WS_V = 0x800000
WS_XP = 0xB00000
WS_WP = 0xB20000
WS_FW = 0xB30000
WS_FH = 0xB31000
WS_FV = 0xB34000
WS_TS = 0xC00000
WS_SIZE = 0x1000000
L_AUX = 3*STG
L_R = L_AUX
L_M = L_AUX + 512
L_CS = L_AUX + 1024
L_CNT = L_AUX + 2048
L_NON = L_CNT + 32
L_A0 = L_AUX + 2560
L_WD = L_AUX + 4096
L_Z = 0
ZROW = 80; ZB = 96
VROW = 5248
P2W = 10240
P2STEP = [STG, STG + 5120, 2*STG, 2*STG + 5120, 0, 5120]
PT = [STG, STG + 4416, 2*STG + 128, 2*STG + 128 + 4416, 0]
ST = [40960, STG + 40960 + 64, 2*STG + 40960 + 128, 3*STG + 4096 + 192, 3*STG + 4096 + 192 + 4416 ]
PQ, PN, PE = 272, 1088, 4416
LDS_BYTES = 163840

a = Asm()
stamp_n = [0]
def stamp(i):
    if STAMPS:
        if not ((FAKEW or FAKEH) and i >= 5): a(f's_memrealtime s[{80+2*i}:{81+2*i}]')
TICKS = opt('ticks', 0)
def tick(reg, idx):
    if TICKS:
        a('s_memrealtime s[98:99]'); a('s_waitcnt lgkmcnt(0)')
        if isinstance(idx, tuple):
            a(f's_add_u32 m0, {idx[0]}, {idx[1]}'); a('s_nop 3'); a(f'v_writelane_b32 v{reg}, s98, m0')
        else:
            a(f'v_writelane_b32 v{reg}, s98, {idx}')
def tick_dump(reg, tmp):
    if TICKS:
        a('s_lshl_b32 s98, s2, 3'); a('s_add_u32 s98, s98, s3'); a('s_lshl_b32 s98, s98, 8'); a(f's_add_u32 s98, s98, {WS_TS + 0x100000}')
        a(f'v_lshlrev_b32 v{tmp}, 2, v0')
        a(f'buffer_store_dword v{reg}, v{tmp}, s[12:15], s98 offen')
def rbf(v):
    a(f'v_cvt_pk_bf16_f32 v{v}, v{v}, v{v}')
    a(f'v_lshlrev_b32 v{v}, 16, v{v}')
def srd_from(d, b, nbytes):
    srd(a, d, b, nbytes)
def spin_begin(name):
    a(f's_mov_b32 s79, 0')
    a(f'{name}:')
def spin_end(name):
    a(f's_cbranch_scc1 {name}_ok')
    a('s_add_u32 s79, s79, 1')
    a(f's_cmp_ge_u32 s79, {SPINMAX}')
    a(f's_cbranch_scc1 {name}_ok')
    a('s_sleep 2')
    a(f's_branch {name}')
    a(f'{name}_ok:')

def lds_arrive(off, v):
    a(f'v_mov_b32 v{v}, {L_CNT}'); a(f'v_mov_b32 v{v+1}, 1')
    a('s_waitcnt lgkmcnt(0)')
    a('s_mov_b64 exec, 1')
    a(f'ds_add_u32 v{v}, v{v+1} offset:{off}')
    a('s_mov_b64 exec, -1')
wait_ids = {}
def lds_wait(name, off, v, cnt=4):
    wait_ids[name] = len(wait_ids) + 1
    a(f'v_mov_b32 v{v}, {L_CNT}')
    a('s_mov_b32 s100, 0')
    a(f'{name}:')
    a(f'ds_read_b32 v{v+1}, v{v} offset:{off}')
    a('s_waitcnt lgkmcnt(0)')
    a(f'v_readfirstlane_b32 s78, v{v+1}')
    a(f's_cmp_lt_u32 s78, {cnt}')
    a(f's_cbranch_scc0 {name}_ok')
    a('s_add_u32 s100, s100, 1')
    a(f's_cmp_lt_u32 s100, {SPINMAX*8}')
    a('s_sleep 1')
    a(f's_cbranch_scc1 {name}')
    if STAMPS: a(f's_mov_b32 s101, {wait_ids[name]}')
    a(f'{name}_ok:')
a.begin(KNAME)
a('s_cmp_ge_u32 s2, 256')
a('s_cbranch_scc1 L_done')
stamp(0)
if STAMPS: a('s_mov_b32 s101, 0')
a('s_load_dwordx2 s[64:65], s[0:1], 0')
a('s_load_dwordx4 s[60:63], s[0:1], 24')
a('s_load_dwordx8 s[48:55], s[0:1], 48')
a('s_load_dwordx4 s[56:59], s[0:1], 80')
a('v_lshrrev_b32 v1, 6, v0')
a('v_and_b32 v0, 63, v0')
a('v_readfirstlane_b32 s3, v1')
a('s_and_b32 s40, s2, 7'); a('s_lshr_b32 s41, s2, 3')
a('s_and_b32 s31, s40, 1'); a('s_lshr_b32 s30, s40, 1')
a('s_and_b32 s32, s41, 7'); a('s_lshr_b32 s33, s41, 3')
a('s_lshl_b32 s28, s31, 3'); a('s_add_u32 s28, s28, s32')
a('s_mul_i32 s29, s30, 3'); a('s_add_u32 s29, s29, s33')
a('s_add_u32 s42, s30, 12')
a('s_cmp_eq_u32 s33, 3')
a('s_cselect_b32 s29, s42, s29')
a('s_cselect_b32 s35, 1, 0')
a('s_mul_i32 s34, s30, 5'); a('s_add_u32 s34, s34, 1'); a('s_lshr_b32 s34, s34, 1')
a('s_mul_i32 s42, s31, 5'); a('s_add_u32 s34, s34, s42')
a('s_cmp_ge_u32 s34, 10'); a('s_cselect_b32 s42, 10, 0'); a('s_sub_u32 s34, s34, s42')
if P2MAP == 0:
    a('s_lshl_b32 s42, s30, 3'); a('s_add_u32 s42, s42, s32')
    a('s_lshl_b32 s38, s31, 2'); a('s_add_u32 s38, s38, s33')
else:
    a('s_lshl_b32 s42, s40, 2'); a('s_add_u32 s42, s42, s33')
    a('s_mov_b32 s38, s32')
a('s_mul_i32 s39, s32, 3'); a('s_lshr_b32 s39, s39, 1'); a('s_mul_i32 s66, s33, 3'); a('s_add_u32 s39, s39, s66')
a('s_cmp_ge_u32 s39, 12'); a('s_cselect_b32 s66, 12, 0'); a('s_sub_u32 s39, s39, s66')
if not P2ROT: a('s_mov_b32 s39, 0')
a('s_lshr_b32 s36, s42, 1'); a('s_and_b32 s37, s42, 1')
WSOFF = opt('wsoff', 0)
WSRD = 's[12:15]'; HSRD = 's[12:15]'
def common_srds(loader=False):
    a('s_waitcnt lgkmcnt(0)')
    tick(7, 50)
    srd(a, 12, 58, WS_SIZE, WSOFF << 20)
    if not loader:
        srd_from(4, 64, S*D*2)
        srd_from(16, 54, S*D*2)
        srd_from(20, 52, F*D*2)
        srd_from(24, 56, 256)
a('s_cmp_lt_u32 s3, 4')
a('s_cbranch_scc1 L_compute')
a('s_sub_u32 s44, s3, 4')
a('s_cmp_eq_u32 s44, 3')
a('s_cbranch_scc1 L_aux')

W0 = 5
PT_ = [20, 21, 22, 23, 24, 25, 26, 27, 4, 5, 6, 7, 16, 17, 18, 19]
GT_ = [66, 67, 68, 69, 76, 77, 78, 79, 96, 97, 100, 101, 40, 41, 42, 43]
GT_ = [66, 67, 68, 69, 76, 77, 78, 79, 28, 29, 30, 31, 40, 41, 33, 43]
H0 = opt('h0', 8)
def dma_loop(name, npieces):
    h = npieces * H0 // 16
    def pieces1(lo, hi, pol):
        for t in range(lo, hi):
            a(f's_add_u32 m0, s{PT_[t]}, s46'); a('s_nop 0')
            a(f'buffer_load_dwordx4 v{4 + (t & 1)}, s[8:11], s{GT_[t]} offen {pol} lds')
    def pieces(lo, hi):
        if not NTM: return pieces1(lo, hi, RP)
        L = a.label('L_pc')
        a('s_bitcmp1_b32 s50, s47'); a(f's_cbranch_scc1 {L}_n')
        pieces1(lo, hi, ''); a(f's_branch {L}_e')
        a(f'{L}_n:'); pieces1(lo, hi, 'nt'); a(f'{L}_e:')
    a('s_mov_b32 s45, s34'); a('s_mov_b32 s46, 0'); a('s_mov_b32 s47, 0')
    a('s_mul_i32 s42, s34, s48'); a('s_mul_i32 s49, s48, -9'); a('v_add_u32 v4, s42, v4'); a('v_add_u32 v5, s42, v5')
    tick(7, 51)
    if opt('uni', 0):
        pieces(0, h)
        a(f'{name}_l:')
        pieces(h, npieces)
        a('s_cmp_eq_u32 s47, 9'); a('s_cbranch_scc1 L_p2last')
        a('s_add_u32 s45, s45, 1'); a('s_cmp_eq_u32 s45, 10'); a('s_cselect_b32 s45, 0, s45')
        a('s_cselect_b32 s42, s49, s48')
        a('v_add_u32 v4, s42, v4'); a('v_add_u32 v5, s42, v5')
        a(f's_add_u32 s46, s46, {STG}'); a(f's_cmp_eq_u32 s46, {3*STG}'); a('s_cselect_b32 s46, 0, s46')
        pieces(0, h)
        a(f's_waitcnt vmcnt({h})')
        tick(7, ('s47', 0))
        a('s_barrier')
        tick(7, ('s47', 16))
        a('s_add_u32 s47, s47, 1'); a(f's_branch {name}_l')
        return
    a(f'{name}_l:')
    pieces(0, h)
    a('s_cmp_lg_u32 s47, 1'); a(f's_cbranch_scc1 {name}_m')
    a(f's_waitcnt vmcnt({h})')
    tick(7, 0)
    a('s_barrier')
    tick(7, 16)
    a(f'{name}_m:')
    pieces(h, npieces)
    a('s_add_u32 s45, s45, 1'); a('s_cmp_eq_u32 s45, 10'); a('s_cselect_b32 s45, 0, s45')
    a('s_cselect_b32 s42, s49, s48')
    a('v_add_u32 v4, s42, v4'); a('v_add_u32 v5, s42, v5')
    a(f's_add_u32 s46, s46, {STG}'); a(f's_cmp_eq_u32 s46, {3*STG}'); a('s_cselect_b32 s46, 0, s46')
    tick(7, ('s47', 52))
    a('s_cmp_lt_u32 s47, 2'); a(f's_cbranch_scc1 {name}_nx')
    a(f's_waitcnt vmcnt({npieces})')
    tick(7, ('s47', -1))
    a('s_barrier')
    tick(7, ('s47', 15))
    a('s_cmp_eq_u32 s47, 9'); a('s_cbranch_scc1 L_p2last')
    a(f'{name}_nx:')
    a('s_add_u32 s47, s47, 1'); a(f's_branch {name}_l')

a('s_cmp_eq_u32 s44, 2')
a('s_cbranch_scc1 L_ldx')
a('s_cmp_eq_u32 s35, 1')
a('s_cbranch_scc1 L_ldc')
a('v_lshrrev_b32 v1, 4, v0')
a('v_and_b32 v2, 15, v0')
a('v_lshlrev_b32 v3, 1, v1')
a('v_xor_b32 v2, v2, v3')
a('v_lshlrev_b32 v2, 4, v2')
a(f'v_mul_u32_u24 v3, {F*2}, v1')
a('v_add_u32 v2, v2, v3')
a('s_lshl_b32 s70, s29, 8')
a('v_add_u32 v2, s70, v2')
a('s_and_b32 s70, s32, 1'); a('s_lshl_b32 s70, s70, 7')
a('v_xor_b32 v4, s70, v2')
a('v_xor_b32 v5, 128, v4')
a('s_lshl_b32 s70, s32, 11')
a('s_lshl_b32 s71, s44, 14')
for g in range(4):
    if g: a('s_add_u32 s70, s70, 2048'); a('s_and_b32 s70, s70, 0x3c00')
    a(f's_or_b32 s{PT_[4*g]}, s70, s71'); a(f's_mul_i32 s{GT_[4*g]}, s70, 12')
    a(f's_add_u32 s{PT_[4*g+2]}, s{PT_[4*g]}, 1024'); a(f's_add_u32 s{GT_[4*g+2]}, s{GT_[4*g]}, {4*F*2}')
    a('s_add_u32 s70, s70, 2048'); a('s_and_b32 s70, s70, 0x3c00')
    a(f's_or_b32 s{PT_[4*g+1]}, s70, s71'); a(f's_mul_i32 s{GT_[4*g+1]}, s70, 12')
    a(f's_add_u32 s{PT_[4*g+3]}, s{PT_[4*g+1]}, 1024'); a(f's_add_u32 s{GT_[4*g+3]}, s{GT_[4*g+1]}, {4*F*2}')
a('s_cmp_eq_u32 s44, 1')
a('s_waitcnt lgkmcnt(0)')
a('s_cselect_b32 s8, s50, s48'); a('s_cselect_b32 s9, s51, s49'); a(f's_mov_b32 s10, {D*F*2}'); a('s_mov_b32 s11, 0x00020000')
a(f's_mov_b32 s48, {64*F*2}')
if NTM: a(f's_mov_b32 s50, {NTM[0]}')
a('s_branch L_ld16')
a('L_ldx:')
a('v_lshrrev_b32 v1, 3, v0')
a('v_and_b32 v2, 7, v0')
a('v_lshrrev_b32 v3, 1, v1')
a('v_xor_b32 v2, v2, v3')
a('v_lshlrev_b32 v2, 4, v2')
a('v_lshrrev_b32 v3, 2, v1'); a('v_and_b32 v6, 3, v1'); a('v_lshl_add_u32 v3, v6, 2, v3')
XMAP = opt('xmap', 0)
if XMAP == 0:
    a('v_lshlrev_b32 v3, 7, v3'); a('v_add_u32 v3, s28, v3')
elif XMAP == 1:
    a('v_lshlrev_b32 v3, 7, v3'); a('s_lshl_b32 s70, s28, 3'); a('v_add_u32 v3, s70, v3')
else:
    a('v_lshlrev_b32 v3, 3, v3'); a('s_lshl_b32 s70, s28, 7'); a('v_add_u32 v3, s70, v3')
a(f'v_mul_u32_u24 v3, {D*2}, v3')
a('v_add_u32 v4, v2, v3')
a('v_xor_b32 v5, 64, v4'); a(f'v_add_u32 v5, {(256 if XMAP < 2 else 16)*D*2}, v5')
a('s_lshl_b32 s70, s33, 12')
for t in range(0, 16, 2):
    if t: a('s_add_u32 s70, s70, 2048'); a('s_and_b32 s70, s70, 0x3c00')
    a(f's_or_b32 s{PT_[t]}, s70, 0x8000'); a(f's_or_b32 s{PT_[t+1]}, s70, 0x8400')
    if XMAP == 0: a(f's_mul_i32 s{GT_[t]}, s70, {16*D*2//2048}')
    else: a(f's_mul_i32 s{GT_[t]}, s70, 5'); a(f's_lshr_b32 s{GT_[t]}, s{GT_[t]}, 3')
    a(f's_mov_b32 s{GT_[t+1]}, s{GT_[t]}')
a('s_waitcnt lgkmcnt(0)')
srd_from(8, 64, S*D*2)
a('s_movk_i32 s48, 128')
if NTM: a(f's_mov_b32 s50, {NTM[1]}')
a('L_ld16:')
dma_loop('L_ldw', 16)
a('L_ldc:')
a('v_lshrrev_b32 v1, 3, v0')
a('v_and_b32 v2, 7, v0')
a('v_lshrrev_b32 v3, 1, v1')
a('v_xor_b32 v2, v2, v3')
a('v_lshlrev_b32 v2, 4, v2')
a('s_mul_i32 s70, s30, 80'); a('s_add_u32 s70, s70, 1')
a('v_add_u32 v1, s70, v1')
a(f'v_mul_u32_u24 v3, {D*2}, v1')
a('v_add_u32 v2, v2, v3')
a('s_and_b32 s70, s32, 1'); a('s_lshl_b32 s70, s70, 6')
a('v_xor_b32 v4, s70, v2')
a('v_xor_b32 v5, 64, v4')
a('s_lshl_b32 s70, s32, 10')
a('s_lshl_b32 s71, s44, 14')
for t in range(10):
    if t: a('s_add_u32 s70, s70, 1024'); a('s_cmp_eq_u32 s70, 10240'); a('s_cselect_b32 s70, 0, s70')
    a(f's_or_b32 s{PT_[t]}, s70, s71'); a(f's_mul_i32 s{GT_[t]}, s70, {8*D*2//1024}')
a('s_cmp_eq_u32 s44, 1')
a('s_waitcnt lgkmcnt(0)')
a('s_cselect_b32 s8, s62, s60'); a('s_cselect_b32 s9, s63, s61'); a(f's_mov_b32 s10, {D*D*2}'); a('s_mov_b32 s11, 0x00020000')
a('s_movk_i32 s48, 128')
if NTM: a(f's_mov_b32 s50, {NTM[0]}')
dma_loop('L_ldcl', 10)

P2ACC = 176; P2W_R = 56; P2H = 8
def p2_setup():
    a('v_lshlrev_b32 v1, 4, v0')
    srd(a, 12, 58, WS_SIZE, WSOFF << 20)
    a('s_mul_i32 s70, s38, 48'); a('s_mul_i32 s71, s44, 12'); a('s_add_u32 s70, s70, s71')
    a(f's_mul_i32 s70, s70, 5120'); a(f's_add_u32 s70, s70, {WS_WDT}')
    a(f's_mul_i32 s73, s44, {P2W}')
def kidx(step):
    a(f's_add_u32 s72, s39, {step}'); a('s_cmp_ge_u32 s72, 12'); a('s_cselect_b32 s71, 12, 0'); a('s_sub_u32 s72, s72, s71')
def wdt_reg(step):
    kidx(step)
    a('s_mul_i32 s72, s72, 5120'); a('s_add_u32 s72, s72, s70')
    for ei in range(5):
        r = P2W_R + 20*step + 4*ei
        if ei == 4: a('s_add_u32 s72, s72, 4096')
        a(f'buffer_load_dwordx4 v[{r}:{r+3}], v1, {WSRD}, s72 offen offset:{(ei % 4)*1024} {LDW}')
def wdt_lds(step):
    kidx(step)
    a('s_mul_i32 s72, s72, 5120'); a('s_add_u32 s72, s72, s70')
    for ei in range(5):
        a(f's_add_u32 m0, s73, {P2STEP[step-6] + ei*1024}')
        if ei: a('s_add_u32 s72, s72, 1024')
        else: a('s_nop 0')
        a(f'buffer_load_dwordx4 v1, {WSRD}, s72 offen {LDW} lds')
WD = [[0, 1], [2, 3], [4, 5], []]
def read_nonce(v):
    a(f'v_mov_b32 v{v}, {L_NON}'); a(f'ds_read_b32 v{v}, v{v}'); a('s_waitcnt lgkmcnt(0)'); a(f'v_readfirstlane_b32 s43, v{v}')
def final_addr(tau_off, d4, d5, d11, t):
    v4, v5, v6, v7, v8, v9, v10 = d4, d5, t, t+1, t+2, t+3, t+4
    a('s_lshl_b32 s66, s3, 6'); a(f's_add_u32 s66, s66, {tau_off}')
    a(f'v_add_u32 v{v4}, s66, v0')
    a(f'v_mul_u32_u24 v{v5}, 6554, v{v4}'); a(f'v_lshrrev_b32 v{v5}, 16, v{v5}')
    a(f'v_mul_u32_u24 v{v6}, 10, v{v5}'); a(f'v_sub_u32 v{v6}, v{v4}, v{v6}')
    a(f'v_lshrrev_b32 v{v7}, 4, v{v5}'); a(f'v_and_b32 v{v5}, 15, v{v5}')
    a(f'v_lshrrev_b32 v{v9}, 1, v{v6}')
    a(f'v_mov_b32 v{v10}, {PT[0]}'); a(f'v_mov_b32 v{d11}, {ST[0]}')
    for e in range(1, 5):
        a(f'v_cmp_eq_u32 vcc, {e}, v{v9}'); a(f'v_mov_b32 v{t+5}, {PT[e]}'); a(f'v_mov_b32 v{t+6}, {ST[e]}')
        a(f'v_cndmask_b32 v{v10}, v{v10}, v{t+5}, vcc'); a(f'v_cndmask_b32 v{d11}, v{d11}, v{t+6}, vcc')
    a(f'v_and_b32 v{v8}, 1, v{v6}'); a(f'v_mul_u32_u24 v{v4}, {2*PQ}, v{v8}')
    a(f'v_mul_u32_u24 v{v8}, {PN}, v{v7}'); a(f'v_add_u32 v{v4}, v{v4}, v{v8}'); a(f'v_lshl_add_u32 v{v4}, v{v5}, 4, v{v4}')
    a(f'v_add_u32 v{d11}, v{d11}, v{v4}'); a(f'v_add_u32 v{v4}, v{v10}, v{v4}')
    a(f'v_lshrrev_b32 v{v8}, 2, v{v5}'); a(f'v_and_b32 v{v5}, 3, v{v5}'); a(f'v_lshl_add_u32 v{v5}, v{v5}, 2, v{v8}')
    a(f'v_lshlrev_b32 v{v5}, 3, v{v5}'); a(f'v_add_u32 v{v5}, v{v5}, v{v7}'); a(f'v_lshlrev_b32 v{v5}, 4, v{v5}')
    a('s_lshl_b32 s66, s37, 6'); a('s_add_u32 s66, s66, s36'); a(f'v_add_u32 v{v5}, s66, v{v5}')
    a(f'v_mul_u32_u24 v{v5}, {D*2}, v{v5}'); a(f'v_lshl_add_u32 v{v5}, v{v6}, 4, v{v5}'); a('s_mul_i32 s66, s38, 160'); a(f'v_add_u32 v{v5}, s66, v{v5}')

VB0, VB1 = 128, 144
def p2h_setup():
    a('s_cmp_ge_u32 s38, 4'); a('s_cselect_b32 s55, 1, 0')
    a('s_sub_u32 s67, 16, s36'); a('s_xor_b32 s68, s37, 1')
    a('s_cmp_eq_u32 s55, 1')
    a('s_cselect_b32 s67, s67, s36'); a('s_cselect_b32 s68, s68, s37')
    a('s_and_b32 s60, s67, 3'); a('s_lshl_b32 s60, s60, 7'); a(f's_add_u32 s60, s60, {WS_FV}')
    a('s_lshl_b32 s67, s67, 1'); a('s_add_u32 s67, s67, s68'); a(f's_mul_i32 s67, s67, {VROW}'); a(f's_add_u32 s56, s67, {WS_V}')
    a('s_lshl_b32 s57, s55, 9'); a('s_sub_u32 s57, 256, s57')
def fv_addr(v, t):
    a('s_sub_u32 s66, 7, s38'); a('s_sub_u32 s67, s38, 1'); a('s_max_i32 s67, s67, 0')
    a('s_cmp_ge_u32 s38, 4'); a('s_cselect_b32 s67, s66, s67'); a('s_cselect_b32 s66, s66, s38')
    a(f'v_mov_b32 v{v}, s66'); a(f'v_mov_b32 v{t}, s67'); a(f'v_bfe_u32 v{t+1}, v0, 4, 1'); a(f'v_cmp_eq_u32 vcc, 0, v{t+1}'); a(f'v_and_b32 v{t+1}, 15, v0')
    a(f'v_cndmask_b32 v{v}, v{t}, v{v}, vcc'); a(f'v_lshlrev_b32 v{v}, 9, v{v}'); a(f'v_lshl_add_u32 v{v}, v{t+1}, 2, v{v}')
def pre_loop():
    for r in range(3):
        final_addr(256*r, FA[3*r], FA[3*r+1], FA[3*r+2], 40)
    a('s_cmp_ge_u32 s3, 2'); a('s_cselect_b32 s66, -1, 0'); a(f'v_or_b32 v{FA[7]}, s66, v{FA[7]}')
    fv_addr(VFL, 40)
    a('s_mul_i32 s66, s38, 80'); a('v_add_u32 v40, s66, v3')
    a('v_add_u32 v41, 7, v40'); a('v_sub_u32 v42, 647, v40')
    a('s_cmp_eq_u32 s55, 1'); a('s_cselect_b64 vcc, -1, 0')
    a(f'v_mul_u32_u24 v43, {4*17*2*VROW}, v2')
    a('v_cndmask_b32 v40, v41, v42, vcc')
    a('v_lshl_add_u32 v43, v40, 4, v43')
    a('s_mul_i32 s66, s3, s57'); a(f'v_add_u32 v{VA0}, s66, v43')
    a('s_lshl_b32 s66, s57, 2'); a(f'v_add_u32 v{VA4}, s66, v43')
def pre_epilogue():
    for r in range(3): a(f'buffer_load_dwordx4 v[{XR[r]}:{XR[r]+3}], v{FA[3*r+1]}, s[4:7], 0 offen {XP_}')
def v_loads():
    L = a.label('L_vl')
    a('s_mov_b32 s72, s56')
    for i in range(4):
        a(f'buffer_load_dwordx4 v[{VB0+4*i}:{VB0+3+4*i}], v{VA0}, s[12:15], s72 offen {LDH}')
        if i < 3: a(f's_add_u32 s72, s72, {17*2*VROW}')
    a('s_cmp_lg_u32 s3, 0'); a(f's_cbranch_scc1 {L}')
    a('s_mov_b32 s72, s56')
    for i in range(4):
        a(f'buffer_load_dwordx4 v[{VB1+4*i}:{VB1+3+4*i}], v{VA4}, s[12:15], s72 offen {LDH}')
        if i < 3: a(f's_add_u32 s72, s72, {17*2*VROW}')
    a(f'{L}:')

a('L_p2last:')
a('s_waitcnt vmcnt(0)')
lds_arrive(12, 2)
read_nonce(2)
p2_setup()
a('L_p2join:')
tick(7, 27)
NLATE = opt('nlate', 6)
for st in range(6): wdt_reg(st)
a('s_cmp_eq_u32 s35, 1')
a('s_cbranch_scc1 L_p2d')
if NLATE < 6:
    for st in (6, 7): wdt_lds(st)
if NLATE < 4:
    lds_wait('L_c8', 16, 4)
    for st in (8, 9): wdt_lds(st)
if NLATE < 2:
    lds_wait('L_c9', 20, 4)
    for st in (10, 11): wdt_lds(st)
if AUXV:
    a('s_cmp_lg_u32 s44, 3'); a('s_cbranch_scc1 L_p2d')
    p2h_setup(); fv_addr(8, 9)
    a('s_mov_b32 s79, 0')
    a('L_av:')
    a('buffer_load_dword v9, v8, s[12:15], s60 offen sc1')
    a('s_waitcnt vmcnt(0)')
    a('v_cmp_ne_u32 vcc, s43, v9'); a('s_cmp_eq_u64 vcc, 0'); a('s_cbranch_scc1 L_av_ok')
    a('s_add_u32 s79, s79, 1'); a(f's_cmp_ge_u32 s79, {AUXV}'); a('s_cbranch_scc1 L_p2d')
    a('s_branch L_av')
    a('L_av_ok:')
    lds_arrive(28, 8)
a('L_p2d:')
tick(7, 28)
a(f'v_add_u32 v2, s73, v1')
a(f'v_add_u32 v3, {2*STG}, v2')
a('v_min_u32 v4, 5, v0'); a('v_lshrrev_b32 v5, 1, v4'); a('v_and_b32 v4, 1, v4'); a('v_lshlrev_b32 v4, 2, v4'); a('v_lshl_add_u32 v6, v5, 4, v4')
a('s_lshl_b32 s76, s36, 8'); a('s_mul_i32 s77, s44, 48'); a('s_add_u32 s76, s76, s77'); a('s_lshl_b32 s77, s37, 3'); a('s_add_u32 s76, s76, s77'); a(f's_add_u32 s76, s76, {WS_FH}')
a('s_lshl_b32 s74, s36, 3'); a('s_lshl_b32 s75, s37, 2'); a('s_add_u32 s74, s74, s75')
a('s_mul_i32 s74, s74, 48'); a('s_mul_i32 s75, s44, 12'); a('s_add_u32 s74, s74, s75'); a('s_lshl_b32 s74, s74, 10')
for i in range(80): a(f'v_mov_b32 v{P2ACC+i}, 0')
lds_wait('L_own', 0, 4, 5 if SENT else 4)
tick(7, 29)
stamp(2)
if TONE:
    a('s_cmp_eq_u32 s35, 0'); a('s_cbranch_scc1 L_p2f')
    for st in range(6, 12 - NLATE): wdt_lds(st)
    a('L_p2f:')
    for st in range(12 - NLATE, 12): wdt_lds(st)
    if HDLY: a(f's_sleep {HDLY}')

tick(7, 32)
def hsoff(step):
    kidx(step)
    a('s_lshl_b32 s72, s72, 10'); a(f's_add_u32 s72, s72, s74')
    if SENT: a(f's_mov_b32 s{66 + step % 4}, s72')
def hld(step, ni):
    r = P2H + 16*(step % 3) + 4*ni
    L = []
    if ni: L.append(f's_add_u32 s72, s72, {48*1024}')
    L.append(f'buffer_load_dwordx4 v[{r}:{r+3}], v1, {HSRD}, s72 offen {LDH}')
    return L
def hpoll(name, kp):
    spin_begin(name)
    a(f'buffer_load_dword v4, v6, s[12:15], s76 offen sc1')
    a('s_waitcnt vmcnt(0)')
    a(f'v_cmp_ne_u32 vcc, s43, v{4+kp}')
    a('s_cmp_eq_u64 vcc, 0')
    spin_end(name)
if not SENT: hpoll('L_pollh0', 0)
else: a('s_waitcnt vmcnt(0)'); a('s_mov_b32 s79, 0')
if VGO:
    a(f'v_mov_b32 v4, {L_CNT}'); a('v_mov_b32 v5, 1'); a('ds_write_b32 v4, v5 offset:40')
stamp(3)
tick(7, 33)
for st in range(3):
    hsoff(st)
    for ni in range(4):
        for ins in hld(st, ni): a(ins)
def pwrite(ni):
    return [f'ds_write_b128 v{2 if PT[ei] < 2*STG else 3}, v[{P2ACC+16*ei+4*ni}:{P2ACC+16*ei+4*ni+3}] offset:{PT[ei] + ni*PN - (0 if PT[ei] < 2*STG else 2*STG)}' for ei in range(5)]
for st in range(12):
    rem = min(2, 11 - st)
    if st == 1 and not TONE:
        a('s_cmp_eq_u32 s35, 0'); a('s_cbranch_scc1 L_lw1_ok')
        lds_wait('L_lw1', 36, 4)
    if st == max(1, 7 - NLATE) and not TONE: lds_wait('L_lw', 36, 4)
    if st < 9: hsoff(st + 3)
    if st == 8:
        a('v_and_b32 v2, 15, v0'); a('v_lshrrev_b32 v4, 4, v0')
        a(f'v_mul_u32_u24 v4, {PQ}, v4'); a('v_lshl_add_u32 v2, v2, 4, v4'); a('v_add_u32 v2, s73, v2'); a(f'v_add_u32 v3, {2*STG}, v2')
    a(f's_waitcnt vmcnt({4*rem})' + (' lgkmcnt(0)' if st >= 6 else ''))
    hb = P2H + 16*(st % 3)
    if SENT:
        a(f'L_hchk{st}:')
        a(f'v_max_u32 v4, v{hb}, v{hb+4}'); a(f'v_max3_u32 v4, v{hb+8}, v{hb+12}, v4')
        a('v_cmp_eq_u32 vcc, -1, v4'); a('s_cmp_lg_u64 vcc, 0')
        a(f's_cbranch_scc1 L_hretry{st}')
        a(f'L_hok{st}:')
    tick(7, 36 + st)
    w0 = P2W_R + 20*(st % 6)
    rd = []
    if 1 <= st <= 6:
        wr = P2W_R + 20*((st - 1) % 6)
        for ei in range(5):
            o = P2STEP[st - 1] + ei*1024
            rd.append(f'ds_read_b128 v[{wr+4*ei}:{wr+4*ei+3}], v{2 if o < 2*STG else 3} offset:{o if o < 2*STG else o - 2*STG}')
    for ni in range(4):
        for ei in (range(5) if ni % 2 == 0 else range(4, -1, -1)):
            t = P2ACC + 16*ei + 4*ni
            h = hb + 4*ni
            a(f'v_mfma_f32_16x16x32_bf16 v[{t}:{t+3}], v[{w0+4*ei}:{w0+4*ei+3}], v[{h}:{h+3}], v[{t}:{t+3}]')
            if rd: a(rd.pop(0))
        if st < 9:
            for ins in hld(st + 3, ni): a(ins)
        if st == 11 and ni >= 2:
            for w in pwrite(ni - 2): a(w)
for w in pwrite(2): a(w)
a('s_nop 3')
for w in pwrite(3): a(w)
stamp(4)
tick(7, 48)
a('s_waitcnt lgkmcnt(0)')
a('s_barrier')
tick_dump(7, 4)
a('s_branch L_fin2')
if SENT:
    for st in range(12):
        a(f'L_hretry{st}:')
        a('s_add_u32 s79, s79, 1'); a(f's_cmp_ge_u32 s79, {SPINMAX}'); a(f's_cbranch_scc1 L_hok{st}')
        if RSL: a(f's_sleep {RSL}')
        a(f's_mov_b32 s77, s{66 + st % 4}')
        for ni in range(4):
            r = P2H + 16*(st % 3) + 4*ni
            if ni: a(f's_add_u32 s77, s77, {48*1024}')
            a(f'buffer_load_dwordx4 v[{r}:{r+3}], v1, {HSRD}, s77 offen {LDH}')
        a('s_waitcnt vmcnt(0)')
        a(f's_branch L_hchk{st}')

a('L_aux:')
if opt('aprio', 0): a(f"s_setprio {opt('aprio', 0)}")
common_srds()
AB = 248
a('v_mov_b32 v1, 0'); a(f'v_mov_b32 v3, {L_CNT}')
a('s_mov_b64 exec, 1')
a('s_cmp_lg_u32 s2, 0'); a('s_cbranch_scc1 L_aux_n0')
a('s_memrealtime s[66:67]'); a('s_waitcnt lgkmcnt(0)'); a('s_or_b32 s66, s66, 1'); a('v_mov_b32 v2, s66')
a('buffer_store_dword v2, v1, s[24:27], 0 offen sc1')
a('L_aux_n0:')
[a(f'ds_write_b32 v3, v1 offset:{4*i}') for i in range(11)]
a('s_mov_b64 exec, -1')
if CODEPF:
    a('s_getpc_b64 s[66:67]')
    a('L_pcref:')
    a(f's_sub_u32 s66, s66, L_pcref-{KNAME}'); a('s_subb_u32 s67, s67, 0')
    a('s_lshl_b32 s68, s41, 3')
    a('v_and_b32 v4, 7, v0'); a('v_add_u32 v4, s68, v4'); a('v_lshlrev_b32 v4, 7, v4')
    a(f'v_min_u32 v4, L_done-{KNAME}, v4')
    a('s_mov_b64 exec, 0xff')
    a(f'global_load_dword v{AB+7}, v4, s[66:67]')
    a('s_mov_b64 exec, -1')
for i in range(48, 56): a(f'v_mov_b32 v{i}, 0')
a('v_lshrrev_b32 v4, 2, v0'); a('v_and_b32 v5, 3, v4'); a('v_bfe_u32 v6, v4, 3, 1'); a('v_lshl_or_b32 v5, v6, 2, v5'); a('v_lshlrev_b32 v5, 1, v5')
a('s_and_b32 s66, s32, 3'); a('s_lshl_b32 s66, s66, 2')
a('v_and_b32 v6, 3, v0'); a('v_add_u32 v6, s66, v6'); a('v_xor_b32 v5, v5, v6')
a('v_lshlrev_b32 v4, 8, v4'); a(f'v_lshl_add_u32 v{AB+1}, v5, 4, v4')
a('s_lshr_b32 s66, s32, 2'); a('s_lshl_b32 s66, s66, 14'); a(f'v_add_u32 v{AB+1}, s66, v{AB+1}')
a('s_cmp_eq_u32 s35, 0'); a('s_cbranch_scc1 L_aux_w')
a('s_and_b32 s67, s32, 3'); a(f's_mul_i32 s67, s67, {20*128}'); a('s_add_u32 s66, s66, s67')
a(f'v_lshlrev_b32 v{AB+1}, 4, v0'); a(f'v_add_u32 v{AB+1}, s66, v{AB+1}')
a('L_aux_w:')
a('s_mov_b32 s46, 0')
a('s_lshl_b32 s77, s29, 1'); a('s_add_u32 s77, s77, s31'); a('s_lshl_b32 s77, s77, 11'); a('s_lshr_b32 s67, s32, 2'); a('s_lshl_b32 s67, s67, 10'); a('s_add_u32 s77, s77, s67'); a(f's_add_u32 s77, s77, {WS_WP}')
a('s_and_b32 s67, s32, 3'); a('s_cmp_eq_u32 s35, 1'); a('s_cselect_b32 s68, 20, 32'); a('s_mul_i32 s67, s67, s68'); a('s_lshl_b32 s67, s67, 3'); a('s_add_u32 s77, s77, s67')
a(f'v_min_u32 v{AB+6}, 47, v0'); a(f'v_lshlrev_b32 v{AB+6}, 2, v{AB+6}')
a('s_mul_i32 s74, s38, 80'); a('s_add_u32 s75, s74, 79'); a('s_lshr_b32 s74, s74, 7'); a('s_lshr_b32 s75, s75, 7')
a('s_lshl_b32 s74, s74, 8'); a('s_lshl_b32 s75, s75, 8'); a(f's_add_u32 s74, s74, {WS_FW}'); a(f's_add_u32 s75, s75, {WS_FW}')
if SENT:
    for i in range(4): a(f'v_mov_b32 v{8+i}, -1')
    a('v_lshlrev_b32 v12, 4, v0')
    a(f's_mul_i32 s76, s28, {8*48*1024}')
    if RDFT: a('s_mul_i32 s67, s30, 12288')
    else: a('s_lshl_b32 s67, s29, 12')
    a('s_add_u32 s76, s76, s67')
a('s_mov_b32 s47, 0')
a('s_waitcnt lgkmcnt(0)')
a('L_aux_l:')
tick(7, ('s47', 0))
a('s_barrier')
tick(7, ('s47', 16))
a(f'v_add_u32 v{AB+3}, s46, v{AB+1}')
a(f's_cmp_lg_u32 s47, {NONIT-1}'); a('s_cbranch_scc1 L_aux_nb')
a('s_mov_b64 exec, 1'); a('buffer_load_dword v2, v1, s[24:27], 0 offen sc1'); a('s_mov_b64 exec, -1')
a('L_aux_nb:')
a(f's_cmp_lg_u32 s47, {NONIT}'); a('s_cbranch_scc1 L_aux_na')
a('s_mov_b32 s79, 0')
a('L_non:')
a('s_waitcnt vmcnt(0)')
a('v_readfirstlane_b32 s43, v2')
a('s_cmp_lg_u32 s43, 0'); a('s_cbranch_scc1 L_non_ok')
a('s_add_u32 s79, s79, 1'); a(f's_cmp_ge_u32 s79, {SPINMAX}'); a('s_cbranch_scc1 L_non_ok')
a('s_sleep 4')
a('s_mov_b64 exec, 1'); a('buffer_load_dword v2, v1, s[24:27], 0 offen sc1'); a('s_mov_b64 exec, -1')
a('s_branch L_non')
a('L_non_ok:')
a('v_mov_b32 v2, s43'); a(f'v_mov_b32 v3, {L_NON}'); a('ds_write_b32 v3, v2')
a('s_cmp_ge_u32 s2, 240'); a('s_cbranch_scc1 L_aux_na')
a(f's_mul_hi_u32 s66, s2, {-(-(1<<32)//5)}'); a('s_mul_i32 s67, s66, 5'); a('s_sub_u32 s67, s2, s67')
a('s_lshl_b32 s67, s67, 8'); a('s_lshl_b32 s66, s66, 2'); a('s_add_u32 s66, s66, s67'); a(f's_add_u32 s66, s66, {WS_FW}')
a('s_mov_b64 exec, 1'); a('buffer_store_dword v2, v1, s[12:15], s66 offen sc1'); a('s_mov_b64 exec, -1')
a('L_aux_na:')
def fw_ask():
    a(f'buffer_load_dword v{AB+2}, v{AB+6}, s[12:15], s74 offen sc1'); a(f'buffer_load_dword v{AB+3}, v{AB+6}, s[12:15], s75 offen sc1')
def fw_ask2():
    a(f'buffer_load_dword v62, v{AB+6}, s[12:15], s74 offen sc1'); a(f'buffer_load_dword v63, v{AB+6}, s[12:15], s75 offen sc1')
def fw_check(nm):
    a('s_mov_b32 s79, 0')
    a(f'{nm}:')
    a('s_waitcnt vmcnt(0)')
    a('v_cmp_ne_u32 vcc, s43, v62'); a('v_cmp_ne_u32 s[66:67], s43, v63'); a('s_or_b64 vcc, vcc, s[66:67]')
    a(f's_cbranch_scc0 {nm}_ok')
    a('s_add_u32 s79, s79, 1'); a(f's_cmp_ge_u32 s79, {SPINMAX}'); a(f's_cbranch_scc1 {nm}_ok')
    a('s_sleep 4')
    fw_ask2()
    a(f's_branch {nm}')
    a(f'{nm}_ok:')

T0, T1 = AB + 4, AB + 5
if SENT:
    RS0 = opt('rs0', 1 if RDFT else 3)
    def resets(n):
        L = a.label('L_rs')
        a(f's_cmp_eq_u32 s35, {0 if RDFT else 1}'); a(f's_cbranch_scc1 {L}')
        if RDFT:
            for t in range(n // 12):
                for g in range(3):
                    for i in range(4): a(f'buffer_store_dwordx4 v[8:11], v12, s[12:15], s76 offen offset:{i*1024} sc1')
                    a(f's_add_u32 s76, s76, {4096 if g < 2 else 48*1024 - 8192}')
        else:
            for i in range(n):
                a(f'buffer_store_dwordx4 v[8:11], v12, s[12:15], s76 offen offset:{(i % 4)*1024} sc1')
                if i % 4 == 3: a(f's_add_u32 s76, s76, {48*1024}')
        a(f'{L}:')
    a(f's_cmp_lt_u32 s47, {RS0}'); a('s_cbranch_scc1 L_aux_nr')
    resets(12 if RDFT else 8)
    a('L_aux_nr:')
a('s_cmp_eq_u32 s35, 1'); a('s_cbranch_scc1 L_aux_c')
for i in range(4): a(f'ds_read_b128 v[{24+4*i}:{27+4*i}], v{AB+3} offset:{i*4096}')
a('s_waitcnt lgkmcnt(0)')
for i in range(4):
    for d in range(4):
        r = 24 + 4*i + d
        a(f'v_lshlrev_b32 v{T0}, 16, v{r}'); a(f'v_and_b32 v{T1}, 0xffff0000, v{r}')
        a(f'v_add_f32 v{48+2*d}, v{48+2*d}, v{T0}'); a(f'v_add_f32 v{49+2*d}, v{49+2*d}, v{T1}')
a('s_branch L_aux_x')
a('L_aux_c:')
for i in range(3): a(f'ds_read_b128 v[{24+4*i}:{27+4*i}], v{AB+3} offset:{i*1024}')
a('s_waitcnt lgkmcnt(0)')
for i in range(3):
    for d in range(4):
        r = 24 + 4*i + d
        a(f'v_lshlrev_b32 v{T0}, 16, v{r}'); a(f'v_and_b32 v{T1}, 0xffff0000, v{r}')
        a(f'v_add_f32 v{48+2*i}, v{48+2*i}, v{T0}'); a(f'v_add_f32 v{49+2*i}, v{49+2*i}, v{T1}')
a('L_aux_x:')
a(f's_add_u32 s46, s46, {STG}'); a(f's_cmp_eq_u32 s46, {3*STG}'); a('s_cselect_b32 s46, 0, s46')
a('s_add_u32 s47, s47, 1'); a('s_cmp_lt_u32 s47, 5'); a('s_cbranch_scc1 L_aux_l')
tick(7, 5)
a('s_barrier')
tick(7, 21)
if RDFT: resets(12*(RS0 + 3 - (RS0 + 3)//2))
elif RS0 >= 2: resets(8)
p2_setup()
def red8(regs):
    for mod in ('quad_perm:[1,0,3,2]', 'quad_perm:[2,3,0,1]', 'row_half_mirror'):
        a('s_nop 1')
        for r in regs: a(f'v_add_f32_dpp v{r}, v{r}, v{r} {mod} row_mask:0xf bank_mask:0xf')
a('s_cmp_eq_u32 s35, 1'); a('s_cbranch_scc1 L_aux_pc')
for mod in ('row_ror:4', 'row_ror:8'):
    a('s_nop 1')
    for r in range(48, 56): a(f'v_add_f32_dpp v{r}, v{r}, v{r} {mod} row_mask:0xf bank_mask:0xf')
for sw in ('v_permlane16_swap_b32', 'v_permlane32_swap_b32'):
    for r in range(48, 56): a(f'v_mov_b32 v{r-24}, v{r}')
    a('s_nop 1')
    for r in range(48, 56): a(f'{sw} v{r}, v{r-24}')
    a('s_nop 1')
    for r in range(48, 56): a(f'v_add_f32 v{r}, v{r}, v{r-24}')
for d in range(4):
    a(f'v_cmp_eq_u32 vcc, {d}, v6') if d else a('v_lshrrev_b32 v6, 2, v0')
    if d == 0:
        a('v_mov_b32 v24, v48'); a('v_mov_b32 v26, v49')
    else:
        a('s_nop 1'); a(f'v_cndmask_b32 v24, v24, v{48+2*d}, vcc'); a(f'v_cndmask_b32 v26, v26, v{49+2*d}, vcc')
a('v_mov_b32 v25, s43'); a('v_mov_b32 v27, s43')
a('v_and_b32 v4, 3, v0'); a('v_lshlrev_b32 v4, 6, v4'); a('v_lshl_add_u32 v4, v6, 4, v4')
a('s_mov_b64 exec, 0xffff')
a('buffer_store_dwordx4 v[24:27], v4, s[12:15], s77 offen sc1')
a('s_branch L_aux_pub')
a('L_aux_pc:')
for i in range(3): a(f'v_add_f32 v{48+i*2}, v{48+i*2}, v{49+i*2}')
red8([48, 50, 52])
for i in range(3): a(f'v_mov_b32 v{49+i*2}, s43')
a('s_mov_b32 exec_lo, 0x01010101'); a('s_mov_b32 exec_hi, 0x01010101')
a('buffer_store_dwordx2 v[48:49], v0, s[12:15], s77 offen sc1')
a('buffer_store_dwordx2 v[50:51], v0, s[12:15], s77 offen offset:64 sc1')
a('s_mov_b32 exec_hi, 0')
a('buffer_store_dwordx2 v[52:53], v0, s[12:15], s77 offen offset:128 sc1')
a('L_aux_pub:')
a('s_mov_b64 exec, -1')
tick(7, 6)
a('s_barrier')
tick(7, 22)
if RDFT: resets(12*((RS0 + 3)//2))
elif RS0 >= 3: resets(8)
fw_ask2()
tick(7, 7)
a('s_barrier')
tick(7, 23)
fw_check('L_pollwf')
if SENT:
    a('s_lshl_b32 s66, s28, 8'); a('s_lshl_b32 s67, s29, 2'); a('s_add_u32 s66, s66, s67'); a(f's_add_u32 s66, s66, {WS_FH}')
    a('v_mov_b32 v4, s43'); a('v_mov_b32 v5, 0')
    a('s_waitcnt vmcnt(0)')
    a('s_mov_b64 exec, 1'); a('buffer_store_dword v4, v5, s[12:15], s66 offen sc1'); a('s_mov_b64 exec, -1')
a('s_lshl_b32 s66, s28, 13'); a(f's_add_u32 s66, s66, {WS_XP}'); a('s_add_u32 s68, s66, 4096')
a('s_lshl_b32 s67, s29, 12'); a(f's_add_u32 s67, s67, {WS_WP}')
def gather():
    for i in range(8): a(f'buffer_load_dwordx4 v[{8+4*i}:{11+4*i}], v1, s[12:15], s{66 if i < 4 else 68} offen offset:{(i%4)*1024} sc1')
    for i in range(4): a(f'buffer_load_dwordx4 v[{40+4*i}:{43+4*i}], v1, s[12:15], s67 offen offset:{i*1024} sc1')
    a(f'buffer_load_dword v{AB+1}, v{AB}, s[12:15], s65 offen sc1')
a(f's_mov_b32 s65, {WS_FH}')
if RDFT:
    a(f'v_and_b32 v{AB}, 3, v0'); a(f'v_lshlrev_b32 v{AB}, 2, v{AB}'); a('s_lshl_b32 s69, s36, 8'); a('s_add_u32 s69, s69, 48'); a(f'v_add_u32 v{AB}, s69, v{AB}')
    a('s_lshl_b32 s69, s28, 8'); a('s_lshl_b32 s64, s30, 2'); a('s_add_u32 s69, s69, s64'); a('s_add_u32 s69, s69, 48'); a('v_mov_b32 v4, s69')
    a('v_cmp_gt_u32 vcc, 16, v0'); a('s_nop 1'); a(f'v_cndmask_b32 v{AB}, v4, v{AB}, vcc')
else:
    a(f'v_min_u32 v{AB}, 11, v0'); a(f'v_lshlrev_b32 v{AB}, 2, v{AB}'); a('s_lshl_b32 s69, s36, 8'); a(f'v_add_u32 v{AB}, s69, v{AB}')
gather()
a('s_cmp_eq_u32 s35, 1'); a('s_cselect_b32 s69, 40, 64'); a('v_cmp_gt_u32 s[76:77], s69, v0')
tick(7, 8)
a('s_barrier')
tick(7, 24)
a('s_mov_b32 s79, 0')
a('s_waitcnt vmcnt(0)')
a('L_gchk:')
a(f'v_xor_b32 v2, s43, v{AB+1}'); a('s_sub_u32 s64, s35, 1' if RDFT else 's_mov_b32 s64, 0'); a('v_and_b32 v2, s64, v2')
for i in range(0, 8): a(f'v_xor_b32 v3, s43, v{10+4*i}'); a('v_or_b32 v2, v2, v3')
a('v_xor_b32 v4, s43, v41')
for r in (43, 45, 47, 49, 51, 53, 55): a(f'v_xor_b32 v3, s43, v{r}'); a('v_or_b32 v4, v4, v3')
a('v_cmp_ne_u32 vcc, 0, v4'); a('s_and_b64 s[74:75], vcc, s[76:77]')
a('v_cmp_ne_u32 vcc, 0, v2'); a('s_or_b64 s[74:75], s[74:75], vcc')
a('s_cbranch_scc0 L_gok')
a('s_add_u32 s79, s79, 1'); a(f's_cmp_ge_u32 s79, {SPINMAX}'); a('s_cbranch_scc1 L_gok')
a('s_sleep 4')
gather()
a('s_waitcnt vmcnt(0)')
a('s_branch L_gchk')
a('L_gok:')
tick(7, 9)
for h in range(2):
    for d in range(2):
        b = 8 + 4*h + d
        a(f'v_add_f32 v{b}, v{b}, v{b+8}'); a(f'v_add_f32 v{b+16}, v{b+16}, v{b+24}'); a(f'v_add_f32 v{b}, v{b}, v{b+16}')
    a(f'v_add_f32 v{40+4*h}, v{40+4*h}, v{48+4*h}'); a(f'v_add_f32 v{41+4*h}, v{42+4*h}, v{50+4*h}')
a('v_lshlrev_b32 v2, 3, v0'); a(f'v_add_u32 v2, {L_CS}, v2')
a('ds_write_b64 v2, v[40:41]'); a('ds_write_b64 v2, v[44:45] offset:512')
for (s_, q_, ro, mo) in ((8, 9, 16, 18), (12, 13, 17, 19)):
    a(f'v_mul_f32 v{mo}, {1.0/D!r}, v{s_}')
    a(f'v_mul_f32 v{q_}, {1.0/D!r}, v{q_}')
    a(f'v_fma_f32 v{q_}, -v{mo}, v{mo}, v{q_}')
    a(f'v_max_f32 v{q_}, 0, v{q_}')
    rbf(mo); rbf(q_)
    a(f'v_add_f32 v{q_}, 0x3727c5ac, v{q_}')
    rbf(q_)
    a(f'v_sqrt_f32 v{q_}, v{q_}'); a('s_nop 0')
    rbf(q_)
    a(f'v_rcp_f32 v{ro}, v{q_}')
    a(f'v_fmac_f32 v{s_}, {-float(D)!r}, v{mo}')
    a(f'v_mul_f32 v{s_}, v{s_}, v{ro}')
a('v_lshlrev_b32 v2, 2, v0'); a(f'v_add_u32 v2, {L_R}, v2')
a(f'ds_write_b32 v2, v8 offset:{L_A0 - L_R}'); a(f'ds_write_b32 v2, v12 offset:{L_A0 - L_R + 256}')
a('ds_write_b32 v2, v16'); a('ds_write_b32 v2, v17 offset:256'); a('ds_write_b32 v2, v18 offset:512'); a('ds_write_b32 v2, v19 offset:768')
lds_arrive(24, 2)
tick(7, 10)
a(f'v_cmp_ne_u32 vcc, s43, v{AB+1}'); a('s_cmp_eq_u64 vcc, 0'); a('s_cbranch_scc1 L_pollr_ok')
spin_begin('L_pollr')
a(f'buffer_load_dword v{AB+1}, v{AB}, s[12:15], s65 offen sc1')
a('s_waitcnt vmcnt(0)')
a(f'v_cmp_ne_u32 vcc, s43, v{AB+1}'); a('s_cmp_eq_u64 vcc, 0')
spin_end('L_pollr')
lds_arrive(0, 2)
if opt('aprio', 0): a('s_setprio 0')
a('s_branch L_p2join')

a('L_compute:')
common_srds()
a(f's_mov_b32 s50, {(-2*STG) & 0xffffffff}'); a(f's_mov_b32 s51, {STG}')
a('s_mov_b32 s46, 0'); a('s_mov_b32 s47, 0')
p2h_setup()
a('v_lshrrev_b32 v2, 4, v0')
a('v_and_b32 v3, 15, v0')
a('v_bfe_u32 v6, v0, 1, 3'); a('v_xor_b32 v6, v6, v2')
a(f"s_cmp_ge_u32 s2, {0 if opt('nowd', 0) else 240}")
a('s_cbranch_scc1 L_nowd')
a(f's_mul_hi_u32 s76, s2, {-(-(1<<32)//5)}'); a('s_mul_i32 s77, s76, 5'); a('s_sub_u32 s77, s2, s77')
a('v_lshrrev_b32 v36, 2, v0'); a('v_and_b32 v37, 3, v0')
a(f'v_mul_u32_u24 v38, {D*2}, v36'); a('v_lshl_add_u32 v38, v37, 4, v38')
a(f's_mul_i32 s68, s76, {32*D*2}'); a('s_lshl_b32 s69, s77, 8'); a('s_add_u32 s68, s68, s69'); a('s_lshl_b32 s69, s3, 6'); a('s_add_u32 s68, s68, s69')
a('s_lshl_b32 s70, s3, 11'); a(f's_add_u32 s70, s70, {L_WD}')
a('s_mov_b32 m0, s70'); a('s_nop 0')
a(f'buffer_load_dwordx4 v38, s[20:23], s68 offen {WP_} lds')
a('s_add_u32 m0, s70, 1024'); a(f's_add_u32 s68, s68, {16*D*2}')
a(f'buffer_load_dwordx4 v38, s[20:23], s68 offen {WP_} lds')
a('L_nowd:')
def wd_finish():
    L = a.label('L_wdf')
    a(f"s_cmp_ge_u32 s2, {0 if opt('nowd', 0) else 240}"); a(f's_cbranch_scc1 {L}')
    a('v_lshlrev_b32 v36, 6, v36'); a('v_lshl_add_u32 v36, v37, 3, v36'); a('v_add_u32 v36, s70, v36')
    a('v_lshlrev_b32 v37, 4, v0')
    a('s_lshl_b32 s77, s77, 3'); a('s_lshl_b32 s68, s3, 1'); a('s_add_u32 s77, s77, s68')
    a(f's_mul_i32 s76, s76, 5120'); a(f's_add_u32 s76, s76, {WS_WDT}')
    a('s_waitcnt vmcnt(0)')
    for e in range(2):
        for b in range(2):
            a(f'ds_read_b64_tr_b16 v[{48+4*e+2*b}:{49+4*e+2*b}], v36 offset:{32*e + 1024*b}')
    for e in range(2):
        a(f's_add_u32 s68, s77, {e}')
        a(f's_mul_hi_u32 s69, s68, {-(-(1<<32)//5)}')
        a('s_mul_i32 s70, s69, 5'); a('s_sub_u32 s70, s68, s70')
        a(f's_mul_i32 s69, s69, {48*5120}'); a('s_lshl_b32 s70, s70, 10')
        a('s_add_u32 s69, s69, s70'); a('s_add_u32 s69, s69, s76')
        a('s_waitcnt lgkmcnt(0)')
        a(f'buffer_store_dwordx4 v[{48+4*e}:{51+4*e}], v37, s[12:15], s69 offen sc1')
    a(f'{L}:')
pre_loop()
a('s_cmp_eq_u32 s35, 1')
a('s_cbranch_scc1 L_dft')
def interleave(M, R):
    out = []; R = list(R)
    for m in M:
        out.append(m)
        if R: out.append(R.pop(0))
    return out + R
tails = []
def mid_sync(last):
    L = a.label('L_ms')
    a('s_cmp_ge_u32 s47, 8'); a(f's_cbranch_scc1 {L}_t')
    a('s_barrier')
    a(f'{L}_b:')
    tails.append((L, last))
CNTRD = 'ds_read2_b32 v[14:15], v6 offset0:3 offset1:6'
def emit_tails():
    for L, last in tails:
        a(f'{L}_t:')
        a('s_mov_b64 exec, 1')
        a('s_cmp_eq_u32 s47, 9'); a(f's_cbranch_scc1 {L}_9')
        a('ds_add_u32 v6, v5 offset:16')
        a('s_mov_b64 exec, -1')
        a('v_readfirstlane_b32 s78, v14')
        a('s_cmp_ge_u32 s78, 3'); a(f's_cbranch_scc1 {L}_b')
        lds_wait(f'{L}_w', 12, 14, 3)
        a(f's_branch {L}_b')
        a(f'{L}_9:')
        a('ds_add_u32 v6, v5 offset:20')
        a('s_mov_b64 exec, -1')
        a(f's_branch {last}')
def stats_wait(name):
    a('v_readfirstlane_b32 s78, v15')
    a('s_cmp_ge_u32 s78, 1'); a(f's_cbranch_scc1 {name}_ok')
    lds_wait(name, 24, 14, 1)
def slot_advance():
    a('s_add_u32 s46, s46, 1'); a('s_cmp_eq_u32 s46, 3'); a('s_cselect_b32 s42, s50, s51'); a('s_cselect_b32 s46, 0, s46')
ACC = 128
def T16(mat, mi, ni): return ACC + 64*mat + 16*mi + 4*ni
FR = 32
def fW(p, mat, mi): return FR + 48*p + 16*mat + 4*mi
def fX(p, ni): return FR + 48*p + 32 + 4*ni
AW, AX = 8, 12
a('s_and_b32 s44, s3, 1'); a('s_lshr_b32 s45, s3, 1')
SPF = opts.get('spf', '')
if SPF:
    a('s_load_dwordx4 s[80:83], s[0:1], 48') if STAMPS == 0 else a('s_load_dwordx4 s[72:75], s[0:1], 48')
    wb = 80 if STAMPS == 0 else 72
    a('s_waitcnt lgkmcnt(0)')
    a('s_cmp_ge_u32 s3, 2'); a('s_cbranch_scc1 L_spx')
    a('s_cmp_eq_u32 s3, 1'); a(f's_cselect_b32 s62, s{wb+2}, s{wb}'); a(f's_cselect_b32 s63, s{wb+3}, s{wb+1}')
    a(f's_mul_i32 s66, s32, {8*F*2}'); a('s_lshl_b32 s67, s29, 8'); a('s_add_u32 s66, s66, s67'); a('s_add_u32 s62, s62, s66'); a('s_addc_u32 s63, s63, 0')
    for dc in map(int, SPF.split(',')):
        a(f's_add_u32 s66, s34, {dc}'); a('s_cmp_ge_u32 s66, 10'); a('s_cselect_b32 s67, 10, 0'); a('s_sub_u32 s66, s66, s67'); a(f's_mul_i32 s66, s66, {64*F*2}')
        a('s_add_u32 s52, s62, s66'); a('s_addc_u32 s53, s63, 0')
        for i in range(16): a(f's_load_dword s54, s[52:53], {(i >> 1)*F*2 + (i & 1)*128}')
    a('s_branch L_spd')
    a('L_spx:')
    a('s_lshl_b32 s66, s33, 1'); a('s_add_u32 s66, s66, s44'); a('s_lshl_b32 s66, s66, 4'); a('s_add_u32 s66, s66, s28'); a(f's_mul_i32 s66, s66, {D*2}')
    a(f's_add_u32 s66, s66, {4*128*D*2}'); a('s_add_u32 s62, s64, s66'); a('s_addc_u32 s63, s65, 0')
    for dc in map(int, SPF.split(',')):
        a(f's_add_u32 s66, s34, {dc}'); a('s_cmp_ge_u32 s66, 10'); a('s_cselect_b32 s67, 10, 0'); a('s_sub_u32 s66, s66, s67'); a('s_lshl_b32 s66, s66, 7')
        a('s_add_u32 s52, s62, s66'); a('s_addc_u32 s53, s63, 0')
        for i in range(8): a(f's_load_dword s54, s[52:53], {(i-4)*128*D*2}')
        a(f's_add_u32 s52, s52, {8*128*D*2}'); a('s_addc_u32 s53, s53, 0')
        for i in range(8): a(f's_load_dword s54, s[52:53], {(i-4)*128*D*2}')
    a('L_spd:')
a('v_bfe_u32 v7, v0, 2, 2')
a('v_lshl_add_u32 v4, v2, 3, v7'); a('v_lshlrev_b32 v4, 8, v4')
a('v_bfe_u32 v5, v0, 1, 1'); a('v_lshl_add_u32 v4, v5, 4, v4')
a('v_and_b32 v5, 1, v0'); a('v_lshl_add_u32 v4, v5, 3, v4')
a('v_and_b32 v5, 1, v2'); a('v_lshl_or_b32 v5, v5, 2, v7')
for mi in range(4):
    a('s_lshl_b32 s66, s44, 2'); a(f's_add_u32 s66, s66, {mi}')
    a('v_xor_b32 v7, s66, v5')
    a(f'v_lshl_add_u32 v{AW+mi}, v7, 5, v4')
a('s_lshl_b32 s66, s45, 13'); a('s_add_u32 s66, s66, 32768')
a('v_lshlrev_b32 v5, 7, v3'); a('v_add_u32 v5, s66, v5')
for ks in range(2):
    a(f'v_xor_b32 v7, {4*ks}, v6')
    a(f'v_lshl_add_u32 v{AX+ks}, v7, 4, v5')
for i in range(128): a(f'v_mov_b32 v{ACC+i}, 0')
def f_reads(p, ks):
    L = []
    def w(mat, mi):
        for b in range(2):
            L.append(f'ds_read_b64_tr_b16 v[{fW(p,mat,mi)+2*b}:{fW(p,mat,mi)+2*b+1}], v{AW+mi} offset:{mat*16384 + ks*8192 + b*1024}')
    w(0, 0)
    for ni in range(4): L.append(f'ds_read_b128 v[{fX(p,ni)}:{fX(p,ni)+3}], v{AX+ks} offset:{ni*2048}')
    for mat in range(2):
        for mi in range(4):
            if (mat, mi) != (0, 0): w(mat, mi)
    return L
def f_mfmas(p):
    L = []
    for i, (mat, mi) in enumerate([(mat, mi) for mat in range(2) for mi in range(4)]):
        for ni in (range(4) if i % 2 == 0 else range(3, -1, -1)):
            t = T16(mat, mi, ni)
            L.append(f'v_mfma_f32_16x16x32_bf16 v[{t}:{t+3}], v[{fW(p,mat,mi)}:{fW(p,mat,mi)+3}], v[{fX(p,ni)}:{fX(p,ni)+3}], v[{t}:{t+3}]')
    return L
wd_finish()
a('v_mov_b32 v5, 1'); a(f'v_mov_b32 v6, {L_CNT}')
tick(7, 0)
a('s_barrier')
tick(7, 16)
stamp(1)
for r in f_reads(0, 0): a(r)
a('L_floop:')
a('s_waitcnt lgkmcnt(0)')
for ins in interleave(f_mfmas(0), f_reads(1, 1) + [CNTRD]): a(ins)
a('s_waitcnt vmcnt(0) lgkmcnt(0)')
tick(7, ('s47', 1))
mid_sync('L_flast')
tick(7, ('s47', 17))
slot_advance()
for r in (AW, AX): a(f'v_add_u32 v{r}, s42, v{r}')
R = f_reads(0, 0)
R = R[:3] + [f'v_add_u32 v{r}, s42, v{r}' for r in (AW+1, AW+2, AW+3, AX+1)] + R[3:]
for ins in interleave(f_mfmas(1), R): a(ins)
a('s_add_u32 s47, s47, 1'); a('s_branch L_floop')
a('L_flast:')
pre_epilogue()
stats_wait('L_fst')
tick(7, 40)
CSB = 48
P = []
P += ['s_lshl_b32 s66, s45, 8', f's_add_u32 s66, s66, {L_R}', 'v_lshlrev_b32 v4, 2, v3', 'v_add_u32 v4, s66, v4']
for ni in range(4):
    P += [f'ds_read_b32 v{40+ni}, v4 offset:{64*ni}', f'ds_read_b32 v{44+ni}, v4 offset:{512 + 64*ni}']
P += [f'v_mov_b32 v10, {L_CNT}', 'ds_read_b32 v8, v10 offset:32']
P += ['s_lshl_b32 s66, s44, 8', f's_add_u32 s66, s66, {L_CS}', 'v_lshlrev_b32 v5, 4, v2', 'v_add_u32 v5, s66, v5']
for mat in range(2):
    for mi in range(4):
        r = CSB + 16*mat + 4*mi
        P.append(f'ds_read_b128 v[{r}:{r+3}], v5 offset:{mat*512 + mi*64}')
P += ['v_lshlrev_b32 v1, 4, v0', 'v_mov_b32 v9, 0']
P += ['s_lshl_b32 s66, s28, 3', 's_lshl_b32 s67, s45, 2', 's_add_u32 s66, s66, s67', 's_mul_i32 s66, s66, 48',
      's_lshl_b32 s67, s29, 2', 's_add_u32 s66, s66, s67', 's_lshl_b32 s67, s44, 1', 's_add_u32 s66, s66, s67', 's_lshl_b32 s66, s66, 10']
P += ['s_lshl_b32 s70, s28, 8', 's_lshl_b32 s71, s29, 4', 's_add_u32 s70, s70, s71', 's_lshl_b32 s71, s3, 2', 's_add_u32 s70, s70, s71', f's_add_u32 s70, s70, {WS_FH}']
M = f_mfmas(1)
for i, m in enumerate(M):
    a(m)
    for _ in range(2):
        if P: a(P.pop(0))
for x_ in P: a(x_)
stamp(2)
a('s_waitcnt lgkmcnt(0)')
a('v_readfirstlane_b32 s43, v8')
for ni in range(4):
    c = 80 + 6*ni
    a(f'v_sub_f32 v{c}, 0, v{44+ni}')
    a(f'v_mul_f32 v{c+2}, {-1.4426950408889634!r}, v{40+ni}')
    a(f'v_mul_f32 v{c+4}, v{40+ni}, v{40+ni}')
for ni in range(4): a(f'v_rcp_f32 v{84+6*ni}, v{84+6*ni}')
tick(7, 42)
BC = 'op_sel_hi:[1,0,1]'
for ni in range(1, 4): a(f's_add_u32 s{66+ni}, s{65+ni}, {48*1024}')
for kp in range(2):
    for ni in range(4):
        if kp == 1 and ni == VCHK - 1: a('ds_read_b32 v11, v10 offset:28')
        if kp == 1 and ni == VCHK:
            a('s_waitcnt lgkmcnt(0)'); a('v_readfirstlane_b32 s79, v11')
            a('s_cmp_lg_u32 s79, 1'); a('s_cbranch_scc1 L_fnov')
            v_loads()
            a('L_fnov:')
        c = 80 + 6*ni
        prs = [(2*kp + h, d) for h in range(2) for d in (0, 2)]
        G_ = [T16(0, mi, ni) + d for mi, d in prs]; U_ = [T16(1, mi, ni) + d for mi, d in prs]
        for n, (mi, d) in enumerate(prs): a(f'v_pk_fma_f32 v[{G_[n]}:{G_[n]+1}], v[{CSB+4*mi+d}:{CSB+1+4*mi+d}], v[{c}:{c+1}], v[{G_[n]}:{G_[n]+1}] {BC}')
        for n, (mi, d) in enumerate(prs): a(f'v_pk_fma_f32 v[{U_[n]}:{U_[n]+1}], v[{CSB+16+4*mi+d}:{CSB+17+4*mi+d}], v[{c}:{c+1}], v[{U_[n]}:{U_[n]+1}] {BC}')
        for n in range(4): a(f'v_pk_mul_f32 v[{104+2*n}:{105+2*n}], v[{G_[n]}:{G_[n]+1}], v[{c+2}:{c+3}] op_sel_hi:[1,0]')
        for n in range(4): a(f'v_pk_mul_f32 v[{G_[n]}:{G_[n]+1}], v[{G_[n]}:{G_[n]+1}], v[{U_[n]}:{U_[n]+1}]')
        for n in range(8): a(f'v_exp_f32 v{104+n}, v{104+n}')
        a('s_nop 0')
        for n in range(4): a(f'v_pk_fma_f32 v[{104+2*n}:{105+2*n}], v[{104+2*n}:{105+2*n}], v[{c+4}:{c+5}], v[{c+4}:{c+5}] op_sel_hi:[1,0,0]')
        for n in range(8): a(f'v_rcp_f32 v{104+n}, v{104+n}')
        a('s_nop 0')
        o = 112 + 4*ni
        for n in range(4): a(f'v_pk_mul_f32 v[{G_[n]}:{G_[n]+1}], v[{G_[n]}:{G_[n]+1}], v[{104+2*n}:{105+2*n}]')
        for n in range(4): a(f'v_cvt_pk_bf16_f32 v{o+n}, v{G_[n]}, v{G_[n]+1}')
        a(f'buffer_store_dwordx4 v[{o}:{o+3}], v1, s[12:15], s{66+ni} offen offset:{kp*1024} {STP}')
        tick(7, 43 + 4*kp + ni)
tick(7, 32)
stamp(3)
if TONE: lds_arrive(0, 4)
else: a('s_waitcnt vmcnt(0)')
if not SENT:
    a('s_mov_b64 exec, 1'); a('buffer_store_dword v8, v9, s[12:15], s70 offen sc1'); a('s_mov_b64 exec, -1')
if VCHK == 4:
    a('s_waitcnt lgkmcnt(0)'); a('v_readfirstlane_b32 s79, v11')
    a('s_cmp_lg_u32 s79, 1'); a('s_cbranch_scc1 L_fnov')
    v_loads()
    a('L_fnov:')
tick_dump(7, 4)
a('s_branch L_helper')

a('L_dft:')
DACC = 176
def TD(part, mi, et): return DACC + 40*part + 20*mi + 4*et
DFR = 40
def dX(p, mi): return DFR + 48*p + 4*mi
def dC(p, part, et): return DFR + 48*p + 8 + 20*part + 4*et
DX, DC = 8, 10
FCOS, FSIN, FNS = 136, 144, 152
a('v_lshlrev_b32 v5, 7, v3')
a('s_lshl_b32 s66, s3, 12'); a('s_add_u32 s66, s66, 32768')
for ks in range(2):
    a(f'v_xor_b32 v7, {4*ks}, v6')
    a(f'v_lshl_add_u32 v{DC+ks}, v7, 4, v5')
    a(f'v_add_u32 v{DX+ks}, s66, v{DC+ks}')
for i in range(80): a(f'v_mov_b32 v{DACC+i}, 0')
a('s_and_b32 s45, s30, 1'); a('s_sub_u32 s45, 3, s45')
a('v_lshrrev_b32 v12, 3, v3'); a('v_and_b32 v13, 7, v3'); a('v_lshlrev_b32 v13, 4, v13'); a('v_lshl_add_u32 v12, v12, 2, v13'); a('v_add_u32 v12, s3, v12')
a('v_lshlrev_b32 v13, 5, v2'); a('v_add_u32 v13, s28, v13'); a('v_cvt_f32_u32 v13, v13')
for mt in range(2):
    a(f'v_add_u32 v14, {8*mt}, v12'); a('v_cvt_f32_u32 v14, v14'); a(f'v_mul_f32 v14, {1.0/2048!r}, v14')
    for d in range(4):
        for h in range(2):
            a(f'v_add_f32 v{60+h}, {float(16*h + 128*d)!r}, v13')
            a(f'v_mul_f32 v{60+h}, v{60+h}, v14')
        a('v_cos_f32 v62, v60'); a('v_cos_f32 v63, v61'); a('v_sin_f32 v64, v60'); a('v_sin_f32 v65, v61')
        a(f'v_cvt_pk_bf16_f32 v{FCOS+4*mt+d}, v62, v63')
        a(f'v_cvt_pk_bf16_f32 v{FSIN+4*mt+d}, v64, v65')
        a(f'v_xor_b32 v{FNS+4*mt+d}, 0x80008000, v{FSIN+4*mt+d}')
def d_reads(p, ks):
    L = [f'ds_read_b128 v[{dX(p,mi)}:{dX(p,mi)+3}], v{DX+ks} offset:{mi*2048}' for mi in range(2)]
    for part in range(2):
        for et in range(5):
            L.append(f'ds_read_b128 v[{dC(p,part,et)}:{dC(p,part,et)+3}], v{DC+ks} offset:{part*16384 + et*2048}')
    return L
def d_mfmas(p):
    L = []
    i = 0
    for part in range(2):
        for et in range(5):
            for mi in ((0, 1) if i % 2 == 0 else (1, 0)):
                t = TD(part, mi, et)
                L.append(f'v_mfma_f32_16x16x32_bf16 v[{t}:{t+3}], v[{dX(p,mi)}:{dX(p,mi)+3}], v[{dC(p,part,et)}:{dC(p,part,et)+3}], v[{t}:{t+3}]')
            i += 1
    return L
wd_finish()
a('v_mov_b32 v5, 1'); a(f'v_mov_b32 v6, {L_CNT}')
for i in range(32, 36): a(f'v_mov_b32 v{i}, 0')
tick(7, 0)
a('s_barrier')
tick(7, 16)
stamp(1)
for r in d_reads(0, 0): a(r)
def xstat(p):
    L = []
    for mi in range(2):
        for d in range(4):
            r = dX(p, mi) + d; t = 36 + 2*(d & 1)
            L += [f'v_lshlrev_b32 v{t}, 16, v{r}', f'v_and_b32 v{t+1}, 0xffff0000, v{r}',
                  f'v_add_f32 v{32+2*mi}, v{32+2*mi}, v{t}', f'v_fmac_f32 v{33+2*mi}, v{t}, v{t}',
                  f'v_add_f32 v{32+2*mi}, v{32+2*mi}, v{t+1}', f'v_fmac_f32 v{33+2*mi}, v{t+1}, v{t+1}']
    return L
def interleave2(M, R, per):
    out = []; R = list(R)
    for m in M:
        out.append(m)
        for _ in range(per):
            if R: out.append(R.pop(0))
    return out + R
def dloop(name, stats):
    a(f'{name}:')
    a('s_waitcnt lgkmcnt(0)')
    for ins in interleave2(d_mfmas(0), d_reads(1, 1) + (xstat(0) if stats else [CNTRD]), 3 if stats else 1): a(ins)
    a('s_waitcnt vmcnt(0) lgkmcnt(0)' if stats else 's_waitcnt lgkmcnt(0)')
    tick(7, ('s47', 1))
    if stats: a('s_barrier')
    else: mid_sync('L_dlast')
    tick(7, ('s47', 17))
    slot_advance()
    for r in (DX, DC): a(f'v_add_u32 v{r}, s42, v{r}')
    R = d_reads(0, 0) + [f'v_add_u32 v{r}, s42, v{r}' for r in (DX+1, DC+1)]
    for ins in interleave2(d_mfmas(1), R + (xstat(1) if stats else []), 3 if stats else 1): a(ins)
    a('s_add_u32 s47, s47, 1')
    if stats: a('s_cmp_lt_u32 s47, s45'); a(f's_cbranch_scc1 {name}')
    else: a(f's_branch {name}')
dloop('L_dloopA', True)
a(f'v_mov_b32 v36, {L_NON}'); a('ds_read_b32 v14, v36')
for sw in ('v_permlane16_swap_b32', 'v_permlane32_swap_b32'):
    for r in range(32, 36): a(f'v_mov_b32 v{r+4}, v{r}')
    a('s_nop 1')
    for r in range(32, 36): a(f'{sw} v{r}, v{r+4}')
    a('s_nop 1')
    for r in range(32, 36): a(f'v_add_f32 v{r}, v{r}, v{r+4}')
a('s_lshl_b32 s66, s28, 2'); a('s_add_u32 s66, s66, s30'); a('s_lshl_b32 s66, s66, 11'); a('s_lshl_b32 s67, s3, 9'); a('s_add_u32 s66, s66, s67'); a(f's_add_u32 s66, s66, {WS_XP}')
a('v_cmp_gt_u32 vcc, 16, v0'); a('v_lshlrev_b32 v38, 4, v0')
a('s_waitcnt lgkmcnt(0)')
a('v_cndmask_b32 v12, v34, v32, vcc'); a('v_cndmask_b32 v13, v35, v33, vcc'); a('v_mov_b32 v15, v14')
a('v_readfirstlane_b32 s43, v14')
a('s_mov_b32 exec_hi, 0')
a('buffer_store_dwordx4 v[12:15], v38, s[12:15], s66 offen sc1')
a('s_mov_b64 exec, -1')
a('s_nop 0')
dloop('L_dloopB', False)
a('L_dlast:')
pre_epilogue()
stats_wait('L_dst')
tick(7, 40)
DP = []
DP.append('s_lshl_b32 s66, s3, 7'); DP.append(f's_add_u32 s66, s66, {L_R}')
DP.append('v_lshlrev_b32 v4, 4, v2'); DP.append('v_add_u32 v4, s66, v4')
for mi in range(2):
    DP.append(f'ds_read_b128 v[{40+4*mi}:{43+4*mi}], v4 offset:{64*mi}')
    DP.append(f'ds_read_b128 v[{48+4*mi}:{51+4*mi}], v4 offset:{512 + 64*mi}')
    DP.append(f'ds_read_b128 v[{160+4*mi}:{163+4*mi}], v4 offset:{L_A0 - L_R + 64*mi}')
DP.append('v_lshlrev_b32 v5, 2, v3'); DP.append(f'v_add_u32 v5, {L_CS}, v5')
for part in range(2):
    for et in range(5): DP.append(f'ds_read_b32 v{56+2*(5*part+et)}, v5 offset:{part*512 + et*64}')
DP.append(f'v_mul_u32_u24 v8, {ZROW}, v3'); DP.append('v_lshl_add_u32 v8, v2, 2, v8'); DP.append('s_lshl_b32 s66, s3, 4'); DP.append('v_add_u32 v8, s66, v8')
DP.append('ds_read_b32 v14, v6 offset:20')
for ins in interleave2(d_mfmas(1), DP, 2): a(ins)
stamp(2)
a('s_waitcnt lgkmcnt(0)')
a('v_readfirstlane_b32 s78, v14')
a('s_cmp_ge_u32 s78, 4'); a('s_cbranch_scc1 L_dc9_ok')
lds_wait('L_dc9', 20, 14)
tick(7, 41)
for et in range(5):
    for mi in range(2):
        for part in range(2):
            t = TD(part, mi, et); c = 56 + 2*(5*part + et)
            for d in (0, 2):
                a(f'v_pk_fma_f32 v[{t+d}:{t+d+1}], v[{48+4*mi+d}:{49+4*mi+d}], v[{c}:{c+1}], v[{t+d}:{t+d+1}] op_sel_hi:[1,0,1] neg_lo:[1,0,0] neg_hi:[1,0,0]')
            for d in (0, 2):
                a(f'v_pk_mul_f32 v[{t+d}:{t+d+1}], v[{t+d}:{t+d+1}], v[{40+4*mi+d}:{41+4*mi+d}]')
        y = 80 + 16*mi
        for part in range(2):
            t = TD(part, mi, et)
            a(f'v_pk_add_f32 v[{y+4*part}:{y+4*part+1}], v[{t}:{t+1}], v[{t+2}:{t+3}]')
            a(f'v_pk_add_f32 v[{y+4*part+2}:{y+4*part+3}], v[{t}:{t+1}], v[{t+2}:{t+3}] neg_lo:[0,1] neg_hi:[0,1]')
        pa, qa, ra, sa, pb, qb, rb, sb = range(y, y+8); o = y + 8
        a(f'v_add_f32 v{o}, v{pa}, v{qa}'); a(f'v_add_f32 v{o+1}, v{pb}, v{qb}')
        a(f'v_add_f32 v{o+2}, v{ra}, v{sb}'); a(f'v_sub_f32 v{o+3}, v{rb}, v{sa}')
        a(f'v_sub_f32 v{o+4}, v{pa}, v{qa}'); a(f'v_sub_f32 v{o+5}, v{pb}, v{qb}')
        a(f'v_sub_f32 v{o+6}, v{ra}, v{sb}'); a(f'v_add_f32 v{o+7}, v{rb}, v{sa}')
    for cpart in range(8):
        a(f'v_cvt_pk_bf16_f32 v{112+cpart}, v{88+cpart}, v{104+cpart}')
    for cpart in range(8):
        a(f'ds_write_b32 v8, v{112+cpart} offset:{L_Z + (cpart*ZB + 16*et)*ZROW}')
a('s_cmp_lg_u32 s30, 0'); a('s_cbranch_scc1 L_z0')
for mi in range(2):
    t = 160 + 4*mi; y = 80 + 4*mi
    a(f'v_pk_add_f32 v[{y}:{y+1}], v[{t}:{t+1}], v[{t+2}:{t+3}]')
    a(f'v_pk_add_f32 v[{y+2}:{y+3}], v[{t}:{t+1}], v[{t+2}:{t+3}] neg_lo:[0,1] neg_hi:[0,1]')
    a(f'v_add_f32 v{88+mi}, v{y}, v{y+1}'); a(f'v_sub_f32 v{90+mi}, v{y}, v{y+1}')
a('v_cvt_pk_bf16_f32 v120, v88, v89'); a('v_mov_b32 v121, 0')
a('v_cvt_pk_bf16_f32 v122, v82, v86'); a('v_cvt_pk_bf16_f32 v127, v83, v87'); a('v_xor_b32 v123, 0x80008000, v127')
a('v_cvt_pk_bf16_f32 v124, v90, v91')
for cpart, r in enumerate((120, 121, 122, 123, 124, 121, 122, 127)):
    a(f'ds_write_b32 v8, v{r} offset:{L_Z + (cpart*ZB + 80)*ZROW}')
a('L_z0:')
tick(7, 42)
lds_arrive(4, 9)
lds_wait('L_zw', 4, 9)
tick(7, 43)
a(f'v_mul_u32_u24 v8, {ZROW}, v3'); a('v_lshl_add_u32 v8, v2, 4, v8'); a(f's_mul_i32 s66, s3, {2*ZB*ZROW}'); a('v_add_u32 v8, s66, v8')
for part in range(2):
    for et in range(5):
        r = 40 + 20*part + 4*et
        a(f'ds_read_b128 v[{r}:{r+3}], v8 offset:{L_Z + (part*ZB + 16*et)*ZROW}')
for part in range(2): a(f'ds_read_b128 v[{120+4*part}:{123+4*part}], v8 offset:{L_Z + (part*ZB + 80)*ZROW}')
lds_arrive(8, 9)
tick(7, 44)
def VR(mt, et): return DACC + 20*mt + 4*et
def VI(mt, et): return DACC + 40 + 20*mt + 4*et
for et in range(5):
    ya = 40 + 4*et; yb = 60 + 4*et
    for mt in range(2):
        a(f'v_mfma_f32_16x16x32_bf16 v[{VR(mt,et)}:{VR(mt,et)+3}], v[{FCOS+4*mt}:{FCOS+4*mt+3}], v[{ya}:{ya+3}], 0')
        a(f'v_mfma_f32_16x16x32_bf16 v[{VI(mt,et)}:{VI(mt,et)+3}], v[{FNS+4*mt}:{FNS+4*mt+3}], v[{ya}:{ya+3}], 0')
    for mt in range(2):
        a(f'v_mfma_f32_16x16x32_bf16 v[{VR(mt,et)}:{VR(mt,et)+3}], v[{FSIN+4*mt}:{FSIN+4*mt+3}], v[{yb}:{yb+3}], v[{VR(mt,et)}:{VR(mt,et)+3}]')
        a(f'v_mfma_f32_16x16x32_bf16 v[{VI(mt,et)}:{VI(mt,et)+3}], v[{FCOS+4*mt}:{FCOS+4*mt+3}], v[{yb}:{yb+3}], v[{VI(mt,et)}:{VI(mt,et)+3}]')
a('s_cmp_lg_u32 s30, 0'); a('s_cbranch_scc1 L_v0a')
for mt in range(2):
    a(f'v_mfma_f32_16x16x32_bf16 v[{160+4*mt}:{163+4*mt}], v[{FCOS+4*mt}:{FCOS+4*mt+3}], v[120:123], 0')
    a(f'v_mfma_f32_16x16x32_bf16 v[{168+4*mt}:{171+4*mt}], v[{FNS+4*mt}:{FNS+4*mt+3}], v[120:123], 0')
for mt in range(2):
    a(f'v_mfma_f32_16x16x32_bf16 v[{160+4*mt}:{163+4*mt}], v[{FSIN+4*mt}:{FSIN+4*mt+3}], v[124:127], v[{160+4*mt}:{163+4*mt}]')
    a(f'v_mfma_f32_16x16x32_bf16 v[{168+4*mt}:{171+4*mt}], v[{FCOS+4*mt}:{FCOS+4*mt+3}], v[124:127], v[{168+4*mt}:{171+4*mt}]')
a('L_v0a:')
tick(7, 45)
a('v_lshrrev_b32 v8, 1, v2'); a(f'v_mul_u32_u24 v8, {8*VROW}, v8')
a('v_and_b32 v9, 1, v2'); a(f'v_mul_u32_u24 v10, {VROW}, v9'); a('v_add_u32 v8, v8, v10'); a('v_lshl_add_u32 v8, v3, 4, v8')
a('s_mul_i32 s66, s28, 17'); a('s_add_u32 s67, s66, s3'); a(f's_mul_i32 s67, s67, {2*VROW}'); a(f's_mul_i32 s68, s30, 1280')
a(f's_add_u32 s68, s68, {WS_V + 128}'); a('s_add_u32 s67, s67, s68'); a('s_sub_u32 s69, s67, 16')
a('s_add_u32 s66, s66, 16'); a(f's_mul_i32 s66, s66, {2*VROW}'); a('s_add_u32 s66, s66, s68')
a('s_nop 4')
for mt in range(2):
    for et in range(5):
        o = 80 + 20*mt + 4*et
        for i in range(4): a(f'v_cvt_pk_bf16_f32 v{o+i}, v{VR(mt,et)+i}, v{VI(mt,et)+i}')
        a(f'buffer_store_dwordx4 v[{o}:{o+3}], v8, s[12:15], s67 offen offset:{256*et} {STP}')
    if mt == 0: a(f's_add_u32 s67, s67, {16*VROW}')
a('s_cmp_lg_u32 s30, 0'); a('s_cbranch_scc1 L_v0b')
for mt in range(2):
    for i in range(4): a(f'v_cvt_pk_bf16_f32 v{120+4*mt+i}, v{160+4*mt+i}, v{168+4*mt+i}')
a('s_mov_b32 exec_lo, 0x00010001'); a('s_mov_b32 exec_hi, 0x00010001')
a(f'buffer_store_dwordx4 v[120:123], v8, s[12:15], s69 offen {STP}')
a(f's_add_u32 s69, s69, {16*VROW}')
a(f'buffer_store_dwordx4 v[124:127], v8, s[12:15], s69 offen {STP}')
a('s_mov_b64 exec, -1')
a('L_v0b:')
tick(7, 46)
a('s_cmp_lg_u32 s3, 0')
a('s_cbranch_scc1 L_signal')
a('v_cvt_f32_u32 v62, s28'); a('v_mul_f32 v62, 0.0625, v62'); a('v_cos_f32 v63, v62'); a('v_sin_f32 v64, v62')
a('v_cmp_gt_u32 vcc, 16, v0')
a('v_lshlrev_b32 v11, 4, v3'); a('v_add_u32 v9, v10, v11')
for et in range(5):
    o = 80 + 4*et; vr = VR(0, et); vi = VI(0, et); n = 40 + 4*et
    a(f'v_mul_f32 v65, v63, v{vr}'); a(f'v_fmac_f32 v65, v64, v{vi}')
    a(f'v_mul_f32 v66, v63, v{vi}'); a(f'v_fma_f32 v66, -v64, v{vr}, v66')
    a(f'v_cvt_pk_bf16_f32 v65, v65, v66')
    a(f'v_cndmask_b32 v65, v{o}, v65, vcc')
    a(f'v_mov_b32 v{n}, v{o+1}')
    a(f'v_mov_b32 v66, v65')
    a(f'v_mov_b32 v{n+1}, v{o+2}'); a(f'v_mov_b32 v{n+2}, v{o+3}')
    a(f'v_permlane16_swap_b32 v65, v66')
    a('s_nop 1')
    a(f'v_cndmask_b32 v{n+3}, v65, v66, vcc')
a('s_mov_b32 exec_hi, 0')
for et in range(5):
    a(f'buffer_store_dwordx4 v[{40+4*et}:{43+4*et}], v9, s[12:15], s66 offen offset:{256*et} {STP}')
a('s_mov_b64 exec, -1')

a('L_signal:')
a('s_mov_b32 s79, 0')
tick(7, 32)
stamp(3)
a('s_lshl_b32 s66, s30, 2'); a('s_add_u32 s66, s66, s3'); a('s_lshl_b32 s66, s66, 7'); a('s_lshl_b32 s67, s28, 2'); a('s_add_u32 s66, s66, s67'); a(f's_add_u32 s66, s66, {WS_FV}')
a('v_mov_b32 v4, s43'); a('v_mov_b32 v5, 0')
a('s_waitcnt vmcnt(0)'); a('s_mov_b64 exec, 1')
a('buffer_store_dword v4, v5, s[12:15], s66 offen sc1'); a('s_mov_b64 exec, -1')
if TONE: lds_arrive(0, 4)
tick_dump(7, 4)
a('L_helper:')
if TONE:
    lds_wait('L_hc9', 20, 40)
    a('s_cmp_eq_u32 s35, 0'); a('s_cbranch_scc1 L_hnz')
    lds_wait('L_hzc', 8, 40)
    a('L_hnz:')
else:
    lds_arrive(0, 4)
    lds_wait('L_hc9', 20, 40)
    a('s_cmp_eq_u32 s35, 0'); a('s_cbranch_scc1 L_hnz')
    lds_wait('L_hzc', 8, 40)
    a('L_hnz:')
    a('s_mov_b32 s44, s3')
    p2_setup()
    a('s_cmp_eq_u32 s35, 0'); a('s_cbranch_scc1 L_hf')
    for st in range(6, 12 - NLATE): wdt_lds(st)
    a('L_hf:')
    for st in range(12 - NLATE, 12): wdt_lds(st)
    a('s_waitcnt vmcnt(0)')
    lds_arrive(36, 4)
stamp(4)

a('s_cmp_eq_u32 s79, 1'); a('s_cbranch_scc1 L_vdone')
if VGO: a('s_cmp_lg_u32 s3, 3'); a('s_cbranch_scc1 L_vwait')
spin_begin('L_pollv')
a(f'buffer_load_dword v53, v{VFL}, s[12:15], s60 offen sc1')
a('s_waitcnt vmcnt(0)')
a('v_cmp_ne_u32 vcc, s43, v53')
a('s_cmp_eq_u64 vcc, 0')
spin_end('L_pollv')
if VGO:
    lds_arrive(28, 40)
    a('L_vwait:')
    lds_wait('L_vc', 28, 40, 1)
    lds_wait('L_vgo', 40, 40, 1)
v_loads()
a('L_vdone:')
stamp(5)
a('v_lshrrev_b32 v4, 2, v3'); a('v_and_b32 v5, 3, v3'); a('v_lshl_add_u32 v7, v5, 2, v4')
a('s_mul_i32 s66, s55, 15'); a('v_xor_b32 v4, s66, v7')
a('v_cvt_f32_u32 v4, v4'); a('v_mul_f32 v4, 0.0625, v4')
a('v_lshlrev_b32 v5, 2, v2'); a('v_cvt_f32_u32 v5, v5')
for i in range(4):
    a(f'v_add_f32 v52, {float(i)!r}, v5'); a('v_mul_f32 v52, v52, v4')
    a('v_cos_f32 v53, v52'); a('v_sin_f32 v54, v52'); a('s_nop 0')
    a(f'v_cvt_pk_bf16_f32 v{8+i}, v53, v54')
a(f's_mov_b32 s47, {PN}'); a('s_cmp_eq_u32 s55, 1'); a(f's_cselect_b32 s47, {(-PN) & 0xffffffff}, s47')
a(f'v_mul_u32_u24 v56, {PQ}, v2'); a('v_lshl_add_u32 v56, v3, 4, v56'); a(f's_mul_i32 s66, s55, {3*PN}'); a('v_add_u32 v56, s66, v56')
for k4 in range(1, 4): a(f'v_add_u32 v{56+k4}, s47, v{55+k4}')
def spec_tile(off_s, vb):
    for k4 in range(4):
        for i in range(4): a(f'v_mov_b32 v{64+4*k4+i}, v{vb+4*i+k4}')
    a('s_nop 1')
    for k4 in range(4):
        c = 80 + 4*k4
        a(f'v_mfma_f32_16x16x32_bf16 v[{c}:{c+3}], v[{64+4*k4}:{67+4*k4}], v[8:11], 0')
    for k4 in range(4): a(f'v_add_u32 v{40+k4}, {off_s}, v{56+k4}')
    a('s_nop 5')
    for k4 in range(4):
        c = 80 + 4*k4
        a(f'ds_write_b128 v{40+k4}, v[{c}:{c+3}]')
a('s_cmp_eq_u32 s3, 1'); a(f's_mov_b32 s73, {ST[0]}'); a(f's_cselect_b32 s73, {ST[1]}, s73')
a('s_cmp_eq_u32 s3, 2'); a(f's_cselect_b32 s73, {ST[2]}, s73')
a('s_cmp_eq_u32 s3, 3'); a(f's_cselect_b32 s73, {ST[3]}, s73')
a('s_waitcnt vmcnt(0)')
a('s_cmp_lg_u32 s3, 0'); a('s_cbranch_scc1 L_spec1')
a(f's_mov_b32 s74, {ST[4]}')
spec_tile('s74', VB1)
a('L_spec1:')
spec_tile('s73', VB0)
for r in range(3):
    for d in range(4):
        a(f'v_lshlrev_b32 v{96+8*r+2*d}, 16, v{XR[r]+d}'); a(f'v_and_b32 v{97+8*r+2*d}, 0xffff0000, v{XR[r]+d}')

a('L_final:')
def final_reads(r, b):
    d4, d11 = FA[3*r], FA[3*r+2]
    for p in range(5):
        reg = (d4, d4, d4, d4, d11)[p]; off = (0, P2W, 2*P2W, 3*P2W, 0)[p]
        a(f'ds_read_b128 v[{b+8*p}:{b+3+8*p}], v{reg} offset:{off}')
        a(f'ds_read_b128 v[{b+4+8*p}:{b+7+8*p}], v{reg} offset:{off+PQ}')
def final_sum(r, b, cnt):
    x = 96 + 8*r
    for p in range(5):
        a(f's_waitcnt lgkmcnt({min(15, cnt + 8 - 2*p)})')
        for d in range(0, 8, 2): a(f'v_pk_add_f32 v[{x+d}:{x+d+1}], v[{x+d}:{x+d+1}], v[{b+8*p+d}:{b+8*p+d+1}]')
    for d in range(4): a(f'v_cvt_pk_bf16_f32 v{b+d}, v{x+2*d}, v{x+2*d+1}')
    a(f'buffer_store_dwordx4 v[{b}:{b+3}], v{FA[3*r+1]}, s[16:19], 0 offen {OUTP}')
a('s_waitcnt lgkmcnt(0)')
a('s_barrier')
stamp(6)
final_reads(0, 128)
final_reads(1, 168)
final_sum(0, 128, 10)
a('s_cmp_ge_u32 s3, 2'); a('s_cbranch_scc1 L_fin1')
final_reads(2, 208)
final_sum(1, 168, 10)
final_sum(2, 208, 0)
a('s_branch L_fin2')
a('L_fin1:')
final_sum(1, 168, 0)
a('L_fin2:')
if opt('dbgt', 0):
    a('s_cmp_lg_u32 s3, 0'); a('s_cbranch_scc1 L_dbgt')
    a('s_waitcnt vmcnt(0)')
    a('s_memrealtime s[94:95]'); a('s_waitcnt lgkmcnt(0)')
    a('s_mov_b64 exec, 1')
    for i, r in enumerate((80, 82, 84, 86, 88, 90, 92, 94)):
        a(f's_sub_u32 s66, s{r}, s43'); a('s_add_u32 s66, s66, 1000'); a('v_mov_b32 v4, s66'); a(f'v_mov_b32 v5, {4 + 4*i}')
        a('buffer_atomic_umax v4, v5, s[24:27], 0 offen sc1')
        a('s_nop 2')
    a('s_endpgm')
    a('L_dbgt:')
stamp(7)
if STAMPS:
    a('s_waitcnt vmcnt(0)')
    a('s_memrealtime s[96:97]')
    a('s_waitcnt lgkmcnt(0)')
    for i in range(8): a(f'v_mov_b32 v{16+i}, s{80+2*i}')
    a('v_mov_b32 v24, s96'); a('v_mov_b32 v25, s101')
    a('s_lshl_b32 s66, s2, 3'); a('s_add_u32 s66, s66, s3'); a('s_lshl_b32 s66, s66, 6'); a(f's_add_u32 s66, s66, {WS_TS}')
    a('v_mov_b32 v4, 0')
    a('s_mov_b64 exec, 1')
    a('buffer_store_dwordx4 v[16:19], v4, s[12:15], s66 offen')
    a('buffer_store_dwordx4 v[20:23], v4, s[12:15], s66 offen offset:16')
    a('buffer_store_dwordx2 v[24:25], v4, s[12:15], s66 offen offset:32')
a('s_endpgm')
emit_tails()
a('L_done:')
a.end(256, sgpr=102)
txt = a.text([])
txt = txt.replace('.amdgcn_target', f'; @launch grid=(256,1,1) block=(512,1,1) lds={LDS_BYTES}\n.amdgcn_target', 1)
open(sys.argv[1], 'w').write(txt)
if opt('ids', 0): print(wait_ids)
```

```python
import sys, math
from asmlib import *
opts = dict(o.split('=') for o in sys.argv[2:])
def opt(k, d): return type(d)(opts.get(k, d))
STAMPS = opt('stamps', 0)
NTM = [sum(1 << int(c) for c in m) for m in opts['ntm'].split(',')] if 'ntm' in opts else None
RP = opts.get('rp', '-').replace('+', ' ').replace('-', '')
WP_ = opts.get('wp', 'nt').replace('+', ' ').replace('-', '')
XP_ = opts.get('xp', '-').replace('+', ' ').replace('-', '')
TONE = opt('t1', 0)
HDLY = opt('hdly', 0)
OUTP = opts.get('outp', 'sc1').replace('+', ' ').replace('-', '')
SENT = 1
RDFT = opt('rdft', 0)
RSL = opt('rsleep', 4)
AUXV = opt('auxv', 0)
VGO = opt('vgo', 1)
VCHK = opt('vchk', 4)
XR = [32, 36, 28]
FA = [16, 17, 18, 19, 20, 21, 22, 23, 24]; VA0, VA4, VFL = 25, 26, 27
NONIT = 1
WMODE = opt('wmode', 0)
STRICT = opt('strict', 1)
ZFIX = opt('zfix', 1)
FLAGA = opt('flaga', 0)
FAKEW = opt('fakew', 0)
FAKEH = opt('fakeh', 0)
P2MAP = opt('p2map', 0)
P2ROT = opt('p2rot', 1)
SPINMAX = opt('spinmax', 1 << 16)
CODEPF = opt('codepf', 1)
LDW = opts.get('ldw', 'sc1').replace('+', ' ').replace('-', '')
LDH = opts.get('ldh', 'sc1').replace('+', ' ').replace('-', '')
STP = opts.get('stp', 'sc1').replace('+', ' ').replace('-', '')
S, D, F = 2048, 640, 1536
KNAME = 'parallel_sum__spectral_fnet__swiglu_ffn__prompt_kernel'
STG = 49152
WS_H = 0
WS_WDT = 0x600000
WS_V = 0x800000
WS_XP = 0xB00000
WS_WP = 0xB20000
WS_FW = 0xB30000
WS_FH = 0xB31000
WS_FV = 0xB34000
WS_TS = 0xC00000
WS_SIZE = 0x1000000
L_AUX = 3*STG
L_R = L_AUX
L_M = L_AUX + 512
L_CS = L_AUX + 1024
L_CNT = L_AUX + 2048
L_NON = L_CNT + 32
L_A0 = L_AUX + 2560
L_WD = L_AUX + 4096
L_Z = 0
ZROW = 80; ZB = 96
VROW = 5248
P2W = 10240
P2STEP = [STG, STG + 5120, 2*STG, 2*STG + 5120, 0, 5120]
PT = [STG, STG + 4416, 2*STG + 128, 2*STG + 128 + 4416, 0]
ST = [40960, STG + 40960 + 64, 2*STG + 40960 + 128, 3*STG + 4096 + 192, 3*STG + 4096 + 192 + 4416 ]
PQ, PN, PE = 272, 1088, 4416
LDS_BYTES = 163840

a = Asm()
stamp_n = [0]
def stamp(i):
    if STAMPS:
        if not ((FAKEW or FAKEH) and i >= 5): a(f's_memrealtime s[{80+2*i}:{81+2*i}]')
TICKS = opt('ticks', 0)
def tick(reg, idx):
    if TICKS:
        a('s_memrealtime s[98:99]'); a('s_waitcnt lgkmcnt(0)')
        if isinstance(idx, tuple):
            a(f's_add_u32 m0, {idx[0]}, {idx[1]}'); a('s_nop 3'); a(f'v_writelane_b32 v{reg}, s98, m0')
        else:
            a(f'v_writelane_b32 v{reg}, s98, {idx}')
def tick_dump(reg, tmp):
    if TICKS:
        a('s_lshl_b32 s98, s2, 3'); a('s_add_u32 s98, s98, s3'); a('s_lshl_b32 s98, s98, 8'); a(f's_add_u32 s98, s98, {WS_TS + 0x100000}')
        a(f'v_lshlrev_b32 v{tmp}, 2, v0')
        a(f'buffer_store_dword v{reg}, v{tmp}, s[12:15], s98 offen')
def rbf(v):
    a(f'v_cvt_pk_bf16_f32 v{v}, v{v}, v{v}')
    a(f'v_lshlrev_b32 v{v}, 16, v{v}')
def srd_from(d, b, nbytes):
    srd(a, d, b, nbytes)
def spin_begin(name):
    a(f's_mov_b32 s79, 0')
    a(f'{name}:')
def spin_end(name):
    a(f's_cbranch_scc1 {name}_ok')
    a('s_add_u32 s79, s79, 1')
    a(f's_cmp_ge_u32 s79, {SPINMAX}')
    a(f's_cbranch_scc1 {name}_ok')
    a('s_sleep 2')
    a(f's_branch {name}')
    a(f'{name}_ok:')

def lds_arrive(off, v):
    a(f'v_mov_b32 v{v}, {L_CNT}'); a(f'v_mov_b32 v{v+1}, 1')
    a('s_waitcnt lgkmcnt(0)')
    a('s_mov_b64 exec, 1')
    a(f'ds_add_u32 v{v}, v{v+1} offset:{off}')
    a('s_mov_b64 exec, -1')
wait_ids = {}
def lds_wait(name, off, v, cnt=4):
    wait_ids[name] = len(wait_ids) + 1
    a(f'v_mov_b32 v{v}, {L_CNT}')
    a('s_mov_b32 s100, 0')
    a(f'{name}:')
    a(f'ds_read_b32 v{v+1}, v{v} offset:{off}')
    a('s_waitcnt lgkmcnt(0)')
    a(f'v_readfirstlane_b32 s78, v{v+1}')
    a(f's_cmp_lt_u32 s78, {cnt}')
    a(f's_cbranch_scc0 {name}_ok')
    a('s_add_u32 s100, s100, 1')
    a(f's_cmp_lt_u32 s100, {SPINMAX*8}')
    a('s_sleep 1')
    a(f's_cbranch_scc1 {name}')
    if STAMPS: a(f's_mov_b32 s101, {wait_ids[name]}')
    a(f'{name}_ok:')
a.begin(KNAME)
a('s_cmp_ge_u32 s2, 256')
a('s_cbranch_scc1 L_done')
stamp(0)
if STAMPS: a('s_mov_b32 s101, 0')
a('s_load_dwordx2 s[64:65], s[0:1], 0')
a('s_load_dwordx4 s[60:63], s[0:1], 24')
a('s_load_dwordx8 s[48:55], s[0:1], 48')
a('s_load_dwordx4 s[56:59], s[0:1], 80')
a('v_lshrrev_b32 v1, 6, v0')
a('v_and_b32 v0, 63, v0')
a('v_readfirstlane_b32 s3, v1')
a('s_and_b32 s40, s2, 7'); a('s_lshr_b32 s41, s2, 3')
a('s_and_b32 s31, s40, 1'); a('s_lshr_b32 s30, s40, 1')
a('s_and_b32 s32, s41, 7'); a('s_lshr_b32 s33, s41, 3')
a('s_lshl_b32 s28, s31, 3'); a('s_add_u32 s28, s28, s32')
a('s_mul_i32 s29, s30, 3'); a('s_add_u32 s29, s29, s33')
a('s_add_u32 s42, s30, 12')
a('s_cmp_eq_u32 s33, 3')
a('s_cselect_b32 s29, s42, s29')
a('s_cselect_b32 s35, 1, 0')
a('s_mul_i32 s34, s30, 5'); a('s_add_u32 s34, s34, 1'); a('s_lshr_b32 s34, s34, 1')
a('s_mul_i32 s42, s31, 5'); a('s_add_u32 s34, s34, s42')
a('s_cmp_ge_u32 s34, 10'); a('s_cselect_b32 s42, 10, 0'); a('s_sub_u32 s34, s34, s42')
if P2MAP == 0:
    a('s_lshl_b32 s42, s30, 3'); a('s_add_u32 s42, s42, s32')
    a('s_lshl_b32 s38, s31, 2'); a('s_add_u32 s38, s38, s33')
else:
    a('s_lshl_b32 s42, s40, 2'); a('s_add_u32 s42, s42, s33')
    a('s_mov_b32 s38, s32')
a('s_mul_i32 s39, s32, 3'); a('s_lshr_b32 s39, s39, 1'); a('s_mul_i32 s66, s33, 3'); a('s_add_u32 s39, s39, s66')
a('s_cmp_ge_u32 s39, 12'); a('s_cselect_b32 s66, 12, 0'); a('s_sub_u32 s39, s39, s66')
if not P2ROT: a('s_mov_b32 s39, 0')
a('s_lshr_b32 s36, s42, 1'); a('s_and_b32 s37, s42, 1')
WSOFF = opt('wsoff', 0)
WSRD = 's[12:15]'; HSRD = 's[12:15]'
def common_srds(loader=False):
    a('s_waitcnt lgkmcnt(0)')
    tick(7, 50)
    srd(a, 12, 58, WS_SIZE, WSOFF << 20)
    if not loader:
        srd_from(4, 64, S*D*2)
        srd_from(16, 54, S*D*2)
        srd_from(20, 52, F*D*2)
        srd_from(24, 56, 256)
a('s_cmp_lt_u32 s3, 4')
a('s_cbranch_scc1 L_compute')
a('s_sub_u32 s44, s3, 4')
a('s_cmp_eq_u32 s44, 3')
a('s_cbranch_scc1 L_aux')

W0 = 5
PT_ = [20, 21, 22, 23, 24, 25, 26, 27, 4, 5, 6, 7, 16, 17, 18, 19]
GT_ = [66, 67, 68, 69, 76, 77, 78, 79, 96, 97, 100, 101, 40, 41, 42, 43]
GT_ = [66, 67, 68, 69, 76, 77, 78, 79, 28, 29, 30, 31, 40, 41, 33, 43]
H0 = opt('h0', 8)
def dma_loop(name, npieces):
    h = npieces * H0 // 16
    def pieces1(lo, hi, pol):
        for t in range(lo, hi):
            a(f's_add_u32 m0, s{PT_[t]}, s46'); a('s_nop 0')
            a(f'buffer_load_dwordx4 v{4 + (t & 1)}, s[8:11], s{GT_[t]} offen {pol} lds')
    def pieces(lo, hi):
        if not NTM: return pieces1(lo, hi, RP)
        L = a.label('L_pc')
        a('s_bitcmp1_b32 s50, s47'); a(f's_cbranch_scc1 {L}_n')
        pieces1(lo, hi, ''); a(f's_branch {L}_e')
        a(f'{L}_n:'); pieces1(lo, hi, 'nt'); a(f'{L}_e:')
    a('s_mov_b32 s45, s34'); a('s_mov_b32 s46, 0'); a('s_mov_b32 s47, 0')
    a('s_mul_i32 s42, s34, s48'); a('s_mul_i32 s49, s48, -9'); a('v_add_u32 v4, s42, v4'); a('v_add_u32 v5, s42, v5')
    tick(7, 51)
    if opt('uni', 0):
        pieces(0, h)
        a(f'{name}_l:')
        pieces(h, npieces)
        a('s_cmp_eq_u32 s47, 9'); a('s_cbranch_scc1 L_p2last')
        a('s_add_u32 s45, s45, 1'); a('s_cmp_eq_u32 s45, 10'); a('s_cselect_b32 s45, 0, s45')
        a('s_cselect_b32 s42, s49, s48')
        a('v_add_u32 v4, s42, v4'); a('v_add_u32 v5, s42, v5')
        a(f's_add_u32 s46, s46, {STG}'); a(f's_cmp_eq_u32 s46, {3*STG}'); a('s_cselect_b32 s46, 0, s46')
        pieces(0, h)
        a(f's_waitcnt vmcnt({h})')
        tick(7, ('s47', 0))
        a('s_barrier')
        tick(7, ('s47', 16))
        a('s_add_u32 s47, s47, 1'); a(f's_branch {name}_l')
        return
    a(f'{name}_l:')
    pieces(0, h)
    a('s_cmp_lg_u32 s47, 1'); a(f's_cbranch_scc1 {name}_m')
    a(f's_waitcnt vmcnt({h})')
    tick(7, 0)
    a('s_barrier')
    tick(7, 16)
    a(f'{name}_m:')
    pieces(h, npieces)
    a('s_add_u32 s45, s45, 1'); a('s_cmp_eq_u32 s45, 10'); a('s_cselect_b32 s45, 0, s45')
    a('s_cselect_b32 s42, s49, s48')
    a('v_add_u32 v4, s42, v4'); a('v_add_u32 v5, s42, v5')
    a(f's_add_u32 s46, s46, {STG}'); a(f's_cmp_eq_u32 s46, {3*STG}'); a('s_cselect_b32 s46, 0, s46')
    tick(7, ('s47', 52))
    a('s_cmp_lt_u32 s47, 2'); a(f's_cbranch_scc1 {name}_nx')
    a(f's_waitcnt vmcnt({npieces})')
    tick(7, ('s47', -1))
    a('s_barrier')
    tick(7, ('s47', 15))
    a('s_cmp_eq_u32 s47, 9'); a('s_cbranch_scc1 L_p2last')
    a(f'{name}_nx:')
    a('s_add_u32 s47, s47, 1'); a(f's_branch {name}_l')

a('s_cmp_eq_u32 s44, 2')
a('s_cbranch_scc1 L_ldx')
a('s_cmp_eq_u32 s35, 1')
a('s_cbranch_scc1 L_ldc')
a('v_lshrrev_b32 v1, 4, v0')
a('v_and_b32 v2, 15, v0')
a('v_lshlrev_b32 v3, 1, v1')
a('v_xor_b32 v2, v2, v3')
a('v_lshlrev_b32 v2, 4, v2')
a(f'v_mul_u32_u24 v3, {F*2}, v1')
a('v_add_u32 v2, v2, v3')
a('s_lshl_b32 s70, s29, 8')
a('v_add_u32 v2, s70, v2')
a('s_and_b32 s70, s32, 1'); a('s_lshl_b32 s70, s70, 7')
a('v_xor_b32 v4, s70, v2')
a('v_xor_b32 v5, 128, v4')
a('s_lshl_b32 s70, s32, 11')
a('s_lshl_b32 s71, s44, 14')
for g in range(4):
    if g: a('s_add_u32 s70, s70, 2048'); a('s_and_b32 s70, s70, 0x3c00')
    a(f's_or_b32 s{PT_[4*g]}, s70, s71'); a(f's_mul_i32 s{GT_[4*g]}, s70, 12')
    a(f's_add_u32 s{PT_[4*g+2]}, s{PT_[4*g]}, 1024'); a(f's_add_u32 s{GT_[4*g+2]}, s{GT_[4*g]}, {4*F*2}')
    a('s_add_u32 s70, s70, 2048'); a('s_and_b32 s70, s70, 0x3c00')
    a(f's_or_b32 s{PT_[4*g+1]}, s70, s71'); a(f's_mul_i32 s{GT_[4*g+1]}, s70, 12')
    a(f's_add_u32 s{PT_[4*g+3]}, s{PT_[4*g+1]}, 1024'); a(f's_add_u32 s{GT_[4*g+3]}, s{GT_[4*g+1]}, {4*F*2}')
a('s_cmp_eq_u32 s44, 1')
a('s_waitcnt lgkmcnt(0)')
a('s_cselect_b32 s8, s50, s48'); a('s_cselect_b32 s9, s51, s49'); a(f's_mov_b32 s10, {D*F*2}'); a('s_mov_b32 s11, 0x00020000')
a(f's_mov_b32 s48, {64*F*2}')
if NTM: a(f's_mov_b32 s50, {NTM[0]}')
a('s_branch L_ld16')
a('L_ldx:')
a('v_lshrrev_b32 v1, 3, v0')
a('v_and_b32 v2, 7, v0')
a('v_lshrrev_b32 v3, 1, v1')
a('v_xor_b32 v2, v2, v3')
a('v_lshlrev_b32 v2, 4, v2')
a('v_lshrrev_b32 v3, 2, v1'); a('v_and_b32 v6, 3, v1'); a('v_lshl_add_u32 v3, v6, 2, v3')
XMAP = opt('xmap', 0)
if XMAP == 0:
    a('v_lshlrev_b32 v3, 7, v3'); a('v_add_u32 v3, s28, v3')
elif XMAP == 1:
    a('v_lshlrev_b32 v3, 7, v3'); a('s_lshl_b32 s70, s28, 3'); a('v_add_u32 v3, s70, v3')
else:
    a('v_lshlrev_b32 v3, 3, v3'); a('s_lshl_b32 s70, s28, 7'); a('v_add_u32 v3, s70, v3')
a(f'v_mul_u32_u24 v3, {D*2}, v3')
a('v_add_u32 v4, v2, v3')
a('v_xor_b32 v5, 64, v4'); a(f'v_add_u32 v5, {(256 if XMAP < 2 else 16)*D*2}, v5')
a('s_lshl_b32 s70, s33, 12')
for t in range(0, 16, 2):
    if t: a('s_add_u32 s70, s70, 2048'); a('s_and_b32 s70, s70, 0x3c00')
    a(f's_or_b32 s{PT_[t]}, s70, 0x8000'); a(f's_or_b32 s{PT_[t+1]}, s70, 0x8400')
    if XMAP == 0: a(f's_mul_i32 s{GT_[t]}, s70, {16*D*2//2048}')
    else: a(f's_mul_i32 s{GT_[t]}, s70, 5'); a(f's_lshr_b32 s{GT_[t]}, s{GT_[t]}, 3')
    a(f's_mov_b32 s{GT_[t+1]}, s{GT_[t]}')
a('s_waitcnt lgkmcnt(0)')
srd_from(8, 64, S*D*2)
a('s_movk_i32 s48, 128')
if NTM: a(f's_mov_b32 s50, {NTM[1]}')
a('L_ld16:')
dma_loop('L_ldw', 16)
a('L_ldc:')
a('v_lshrrev_b32 v1, 3, v0')
a('v_and_b32 v2, 7, v0')
a('v_lshrrev_b32 v3, 1, v1')
a('v_xor_b32 v2, v2, v3')
a('v_lshlrev_b32 v2, 4, v2')
a('s_mul_i32 s70, s30, 80'); a('s_add_u32 s70, s70, 1')
a('v_add_u32 v1, s70, v1')
a(f'v_mul_u32_u24 v3, {D*2}, v1')
a('v_add_u32 v2, v2, v3')
a('s_and_b32 s70, s32, 1'); a('s_lshl_b32 s70, s70, 6')
a('v_xor_b32 v4, s70, v2')
a('v_xor_b32 v5, 64, v4')
a('s_lshl_b32 s70, s32, 10')
a('s_lshl_b32 s71, s44, 14')
for t in range(10):
    if t: a('s_add_u32 s70, s70, 1024'); a('s_cmp_eq_u32 s70, 10240'); a('s_cselect_b32 s70, 0, s70')
    a(f's_or_b32 s{PT_[t]}, s70, s71'); a(f's_mul_i32 s{GT_[t]}, s70, {8*D*2//1024}')
a('s_cmp_eq_u32 s44, 1')
a('s_waitcnt lgkmcnt(0)')
a('s_cselect_b32 s8, s62, s60'); a('s_cselect_b32 s9, s63, s61'); a(f's_mov_b32 s10, {D*D*2}'); a('s_mov_b32 s11, 0x00020000')
a('s_movk_i32 s48, 128')
if NTM: a(f's_mov_b32 s50, {NTM[0]}')
dma_loop('L_ldcl', 10)

P2ACC = 176; P2W_R = 56; P2H = 8
def p2_setup():
    a('v_lshlrev_b32 v1, 4, v0')
    srd(a, 12, 58, WS_SIZE, WSOFF << 20)
    a('s_mul_i32 s70, s38, 48'); a('s_mul_i32 s71, s44, 12'); a('s_add_u32 s70, s70, s71')
    a(f's_mul_i32 s70, s70, 5120'); a(f's_add_u32 s70, s70, {WS_WDT}')
    a(f's_mul_i32 s73, s44, {P2W}')
def kidx(step):
    a(f's_add_u32 s72, s39, {step}'); a('s_cmp_ge_u32 s72, 12'); a('s_cselect_b32 s71, 12, 0'); a('s_sub_u32 s72, s72, s71')
def wdt_reg(step):
    kidx(step)
    a('s_mul_i32 s72, s72, 5120'); a('s_add_u32 s72, s72, s70')
    for ei in range(5):
        r = P2W_R + 20*step + 4*ei
        if ei == 4: a('s_add_u32 s72, s72, 4096')
        a(f'buffer_load_dwordx4 v[{r}:{r+3}], v1, {WSRD}, s72 offen offset:{(ei % 4)*1024} {LDW}')
def wdt_lds(step):
    kidx(step)
    a('s_mul_i32 s72, s72, 5120'); a('s_add_u32 s72, s72, s70')
    for ei in range(5):
        a(f's_add_u32 m0, s73, {P2STEP[step-6] + ei*1024}')
        if ei: a('s_add_u32 s72, s72, 1024')
        else: a('s_nop 0')
        a(f'buffer_load_dwordx4 v1, {WSRD}, s72 offen {LDW} lds')
WD = [[0, 1], [2, 3], [4, 5], []]
def read_nonce(v):
    a(f'v_mov_b32 v{v}, {L_NON}'); a(f'ds_read_b32 v{v}, v{v}'); a('s_waitcnt lgkmcnt(0)'); a(f'v_readfirstlane_b32 s43, v{v}')
def final_addr(tau_off, d4, d5, d11, t):
    v4, v5, v6, v7, v8, v9, v10 = d4, d5, t, t+1, t+2, t+3, t+4
    a('s_lshl_b32 s66, s3, 6'); a(f's_add_u32 s66, s66, {tau_off}')
    a(f'v_add_u32 v{v4}, s66, v0')
    a(f'v_mul_u32_u24 v{v5}, 6554, v{v4}'); a(f'v_lshrrev_b32 v{v5}, 16, v{v5}')
    a(f'v_mul_u32_u24 v{v6}, 10, v{v5}'); a(f'v_sub_u32 v{v6}, v{v4}, v{v6}')
    a(f'v_lshrrev_b32 v{v7}, 4, v{v5}'); a(f'v_and_b32 v{v5}, 15, v{v5}')
    a(f'v_lshrrev_b32 v{v9}, 1, v{v6}')
    a(f'v_mov_b32 v{v10}, {PT[0]}'); a(f'v_mov_b32 v{d11}, {ST[0]}')
    for e in range(1, 5):
        a(f'v_cmp_eq_u32 vcc, {e}, v{v9}'); a(f'v_mov_b32 v{t+5}, {PT[e]}'); a(f'v_mov_b32 v{t+6}, {ST[e]}')
        a(f'v_cndmask_b32 v{v10}, v{v10}, v{t+5}, vcc'); a(f'v_cndmask_b32 v{d11}, v{d11}, v{t+6}, vcc')
    a(f'v_and_b32 v{v8}, 1, v{v6}'); a(f'v_mul_u32_u24 v{v4}, {2*PQ}, v{v8}')
    a(f'v_mul_u32_u24 v{v8}, {PN}, v{v7}'); a(f'v_add_u32 v{v4}, v{v4}, v{v8}'); a(f'v_lshl_add_u32 v{v4}, v{v5}, 4, v{v4}')
    a(f'v_add_u32 v{d11}, v{d11}, v{v4}'); a(f'v_add_u32 v{v4}, v{v10}, v{v4}')
    a(f'v_lshrrev_b32 v{v8}, 2, v{v5}'); a(f'v_and_b32 v{v5}, 3, v{v5}'); a(f'v_lshl_add_u32 v{v5}, v{v5}, 2, v{v8}')
    a(f'v_lshlrev_b32 v{v5}, 3, v{v5}'); a(f'v_add_u32 v{v5}, v{v5}, v{v7}'); a(f'v_lshlrev_b32 v{v5}, 4, v{v5}')
    a('s_lshl_b32 s66, s37, 6'); a('s_add_u32 s66, s66, s36'); a(f'v_add_u32 v{v5}, s66, v{v5}')
    a(f'v_mul_u32_u24 v{v5}, {D*2}, v{v5}'); a(f'v_lshl_add_u32 v{v5}, v{v6}, 4, v{v5}'); a('s_mul_i32 s66, s38, 160'); a(f'v_add_u32 v{v5}, s66, v{v5}')

VB0, VB1 = 128, 144
def p2h_setup():
    a('s_cmp_ge_u32 s38, 4'); a('s_cselect_b32 s55, 1, 0')
    a('s_sub_u32 s67, 16, s36'); a('s_xor_b32 s68, s37, 1')
    a('s_cmp_eq_u32 s55, 1')
    a('s_cselect_b32 s67, s67, s36'); a('s_cselect_b32 s68, s68, s37')
    a('s_and_b32 s60, s67, 3'); a('s_lshl_b32 s60, s60, 7'); a(f's_add_u32 s60, s60, {WS_FV}')
    a('s_lshl_b32 s67, s67, 1'); a('s_add_u32 s67, s67, s68'); a(f's_mul_i32 s67, s67, {VROW}'); a(f's_add_u32 s56, s67, {WS_V}')
    a('s_lshl_b32 s57, s55, 9'); a('s_sub_u32 s57, 256, s57')
def fv_addr(v, t):
    a('s_sub_u32 s66, 7, s38'); a('s_sub_u32 s67, s38, 1'); a('s_max_i32 s67, s67, 0')
    a('s_cmp_ge_u32 s38, 4'); a('s_cselect_b32 s67, s66, s67'); a('s_cselect_b32 s66, s66, s38')
    a(f'v_mov_b32 v{v}, s66'); a(f'v_mov_b32 v{t}, s67'); a(f'v_bfe_u32 v{t+1}, v0, 4, 1'); a(f'v_cmp_eq_u32 vcc, 0, v{t+1}'); a(f'v_and_b32 v{t+1}, 15, v0')
    a(f'v_cndmask_b32 v{v}, v{t}, v{v}, vcc'); a(f'v_lshlrev_b32 v{v}, 9, v{v}'); a(f'v_lshl_add_u32 v{v}, v{t+1}, 2, v{v}')
def pre_loop():
    for r in range(3):
        final_addr(256*r, FA[3*r], FA[3*r+1], FA[3*r+2], 40)
    a('s_cmp_ge_u32 s3, 2'); a('s_cselect_b32 s66, -1, 0'); a(f'v_or_b32 v{FA[7]}, s66, v{FA[7]}')
    fv_addr(VFL, 40)
    a('s_mul_i32 s66, s38, 80'); a('v_add_u32 v40, s66, v3')
    a('v_add_u32 v41, 7, v40'); a('v_sub_u32 v42, 647, v40')
    a('s_cmp_eq_u32 s55, 1'); a('s_cselect_b64 vcc, -1, 0')
    a(f'v_mul_u32_u24 v43, {4*17*2*VROW}, v2')
    a('v_cndmask_b32 v40, v41, v42, vcc')
    a('v_lshl_add_u32 v43, v40, 4, v43')
    a('s_mul_i32 s66, s3, s57'); a(f'v_add_u32 v{VA0}, s66, v43')
    a('s_lshl_b32 s66, s57, 2'); a(f'v_add_u32 v{VA4}, s66, v43')
def pre_epilogue():
    for r in range(3): a(f'buffer_load_dwordx4 v[{XR[r]}:{XR[r]+3}], v{FA[3*r+1]}, s[4:7], 0 offen {XP_}')
def v_loads():
    L = a.label('L_vl')
    a('s_mov_b32 s72, s56')
    for i in range(4):
        a(f'buffer_load_dwordx4 v[{VB0+4*i}:{VB0+3+4*i}], v{VA0}, s[12:15], s72 offen {LDH}')
        if i < 3: a(f's_add_u32 s72, s72, {17*2*VROW}')
    a('s_cmp_lg_u32 s3, 0'); a(f's_cbranch_scc1 {L}')
    a('s_mov_b32 s72, s56')
    for i in range(4):
        a(f'buffer_load_dwordx4 v[{VB1+4*i}:{VB1+3+4*i}], v{VA4}, s[12:15], s72 offen {LDH}')
        if i < 3: a(f's_add_u32 s72, s72, {17*2*VROW}')
    a(f'{L}:')

a('L_p2last:')
a('s_waitcnt vmcnt(0)')
lds_arrive(12, 2)
read_nonce(2)
p2_setup()
a('L_p2join:')
tick(7, 27)
NLATE = opt('nlate', 6)
for st in range(6): wdt_reg(st)
a('s_cmp_eq_u32 s35, 1')
a('s_cbranch_scc1 L_p2d')
if NLATE < 6:
    for st in (6, 7): wdt_lds(st)
if NLATE < 4:
    lds_wait('L_c8', 16, 4)
    for st in (8, 9): wdt_lds(st)
if NLATE < 2:
    lds_wait('L_c9', 20, 4)
    for st in (10, 11): wdt_lds(st)
if AUXV:
    a('s_cmp_lg_u32 s44, 3'); a('s_cbranch_scc1 L_p2d')
    p2h_setup(); fv_addr(8, 9)
    a('s_mov_b32 s79, 0')
    a('L_av:')
    a('buffer_load_dword v9, v8, s[12:15], s60 offen sc1')
    a('s_waitcnt vmcnt(0)')
    a('v_cmp_ne_u32 vcc, s43, v9'); a('s_cmp_eq_u64 vcc, 0'); a('s_cbranch_scc1 L_av_ok')
    a('s_add_u32 s79, s79, 1'); a(f's_cmp_ge_u32 s79, {AUXV}'); a('s_cbranch_scc1 L_p2d')
    a('s_branch L_av')
    a('L_av_ok:')
    lds_arrive(28, 8)
a('L_p2d:')
tick(7, 28)
a(f'v_add_u32 v2, s73, v1')
a(f'v_add_u32 v3, {2*STG}, v2')
a('v_min_u32 v4, 5, v0'); a('v_lshrrev_b32 v5, 1, v4'); a('v_and_b32 v4, 1, v4'); a('v_lshlrev_b32 v4, 2, v4'); a('v_lshl_add_u32 v6, v5, 4, v4')
a('s_lshl_b32 s76, s36, 8'); a('s_mul_i32 s77, s44, 48'); a('s_add_u32 s76, s76, s77'); a('s_lshl_b32 s77, s37, 3'); a('s_add_u32 s76, s76, s77'); a(f's_add_u32 s76, s76, {WS_FH}')
a('s_lshl_b32 s74, s36, 3'); a('s_lshl_b32 s75, s37, 2'); a('s_add_u32 s74, s74, s75')
a('s_mul_i32 s74, s74, 48'); a('s_mul_i32 s75, s44, 12'); a('s_add_u32 s74, s74, s75'); a('s_lshl_b32 s74, s74, 10')
for i in range(80): a(f'v_mov_b32 v{P2ACC+i}, 0')
lds_wait('L_own', 0, 4, 5 if SENT else 4)
tick(7, 29)
stamp(2)
if TONE:
    a('s_cmp_eq_u32 s35, 0'); a('s_cbranch_scc1 L_p2f')
    for st in range(6, 12 - NLATE): wdt_lds(st)
    a('L_p2f:')
    for st in range(12 - NLATE, 12): wdt_lds(st)
    if HDLY: a(f's_sleep {HDLY}')

tick(7, 32)
def hsoff(step):
    kidx(step)
    a('s_lshl_b32 s72, s72, 10'); a(f's_add_u32 s72, s72, s74')
    if SENT: a(f's_mov_b32 s{66 + step % 4}, s72')
def hld(step, ni):
    r = P2H + 16*(step % 3) + 4*ni
    L = []
    if ni: L.append(f's_add_u32 s72, s72, {48*1024}')
    L.append(f'buffer_load_dwordx4 v[{r}:{r+3}], v1, {HSRD}, s72 offen {LDH}')
    return L
def hpoll(name, kp):
    spin_begin(name)
    a(f'buffer_load_dword v4, v6, s[12:15], s76 offen sc1')
    a('s_waitcnt vmcnt(0)')
    a(f'v_cmp_ne_u32 vcc, s43, v{4+kp}')
    a('s_cmp_eq_u64 vcc, 0')
    spin_end(name)
if not SENT: hpoll('L_pollh0', 0)
else: a('s_waitcnt vmcnt(0)'); a('s_mov_b32 s79, 0')
if VGO:
    a(f'v_mov_b32 v4, {L_CNT}'); a('v_mov_b32 v5, 1'); a('ds_write_b32 v4, v5 offset:40')
stamp(3)
tick(7, 33)
for st in range(3):
    hsoff(st)
    for ni in range(4):
        for ins in hld(st, ni): a(ins)
def pwrite(ni):
    return [f'ds_write_b128 v{2 if PT[ei] < 2*STG else 3}, v[{P2ACC+16*ei+4*ni}:{P2ACC+16*ei+4*ni+3}] offset:{PT[ei] + ni*PN - (0 if PT[ei] < 2*STG else 2*STG)}' for ei in range(5)]
for st in range(12):
    rem = min(2, 11 - st)
    if st == 1 and not TONE:
        a('s_cmp_eq_u32 s35, 0'); a('s_cbranch_scc1 L_lw1_ok')
        lds_wait('L_lw1', 36, 4)
    if st == max(1, 7 - NLATE) and not TONE: lds_wait('L_lw', 36, 4)
    if st < 9: hsoff(st + 3)
    if st == 8:
        a('v_and_b32 v2, 15, v0'); a('v_lshrrev_b32 v4, 4, v0')
        a(f'v_mul_u32_u24 v4, {PQ}, v4'); a('v_lshl_add_u32 v2, v2, 4, v4'); a('v_add_u32 v2, s73, v2'); a(f'v_add_u32 v3, {2*STG}, v2')
    a(f's_waitcnt vmcnt({4*rem})' + (' lgkmcnt(0)' if st >= 6 else ''))
    hb = P2H + 16*(st % 3)
    if SENT:
        a(f'L_hchk{st}:')
        a(f'v_max_u32 v4, v{hb}, v{hb+4}'); a(f'v_max3_u32 v4, v{hb+8}, v{hb+12}, v4')
        a('v_cmp_eq_u32 vcc, -1, v4'); a('s_cmp_lg_u64 vcc, 0')
        a(f's_cbranch_scc1 L_hretry{st}')
        a(f'L_hok{st}:')
    tick(7, 36 + st)
    w0 = P2W_R + 20*(st % 6)
    rd = []
    if 1 <= st <= 6:
        wr = P2W_R + 20*((st - 1) % 6)
        for ei in range(5):
            o = P2STEP[st - 1] + ei*1024
            rd.append(f'ds_read_b128 v[{wr+4*ei}:{wr+4*ei+3}], v{2 if o < 2*STG else 3} offset:{o if o < 2*STG else o - 2*STG}')
    for ni in range(4):
        for ei in (range(5) if ni % 2 == 0 else range(4, -1, -1)):
            t = P2ACC + 16*ei + 4*ni
            h = hb + 4*ni
            a(f'v_mfma_f32_16x16x32_bf16 v[{t}:{t+3}], v[{w0+4*ei}:{w0+4*ei+3}], v[{h}:{h+3}], v[{t}:{t+3}]')
            if rd: a(rd.pop(0))
        if st < 9:
            for ins in hld(st + 3, ni): a(ins)
        if st == 11 and ni >= 2:
            for w in pwrite(ni - 2): a(w)
for w in pwrite(2): a(w)
a('s_nop 3')
for w in pwrite(3): a(w)
stamp(4)
tick(7, 48)
a('s_waitcnt lgkmcnt(0)')
a('s_barrier')
tick_dump(7, 4)
a('s_branch L_fin2')
if SENT:
    for st in range(12):
        a(f'L_hretry{st}:')
        a('s_add_u32 s79, s79, 1'); a(f's_cmp_ge_u32 s79, {SPINMAX}'); a(f's_cbranch_scc1 L_hok{st}')
        if RSL: a(f's_sleep {RSL}')
        a(f's_mov_b32 s77, s{66 + st % 4}')
        for ni in range(4):
            r = P2H + 16*(st % 3) + 4*ni
            if ni: a(f's_add_u32 s77, s77, {48*1024}')
            a(f'buffer_load_dwordx4 v[{r}:{r+3}], v1, {HSRD}, s77 offen {LDH}')
        a('s_waitcnt vmcnt(0)')
        a(f's_branch L_hchk{st}')

a('L_aux:')
if opt('aprio', 0): a(f"s_setprio {opt('aprio', 0)}")
common_srds()
AB = 248
a('v_mov_b32 v1, 0'); a(f'v_mov_b32 v3, {L_CNT}')
a('s_mov_b64 exec, 1')
a('s_cmp_lg_u32 s2, 0'); a('s_cbranch_scc1 L_aux_n0')
a('s_memrealtime s[66:67]'); a('s_waitcnt lgkmcnt(0)'); a('s_or_b32 s66, s66, 1'); a('v_mov_b32 v2, s66')
a('buffer_store_dword v2, v1, s[24:27], 0 offen sc1')
a('L_aux_n0:')
[a(f'ds_write_b32 v3, v1 offset:{4*i}') for i in range(11)]
a('s_mov_b64 exec, -1')
if CODEPF:
    a('s_getpc_b64 s[66:67]')
    a('L_pcref:')
    a(f's_sub_u32 s66, s66, L_pcref-{KNAME}'); a('s_subb_u32 s67, s67, 0')
    a('s_lshl_b32 s68, s41, 3')
    a('v_and_b32 v4, 7, v0'); a('v_add_u32 v4, s68, v4'); a('v_lshlrev_b32 v4, 7, v4')
    a(f'v_min_u32 v4, L_done-{KNAME}, v4')
    a('s_mov_b64 exec, 0xff')
    a(f'global_load_dword v{AB+7}, v4, s[66:67]')
    a('s_mov_b64 exec, -1')
for i in range(48, 56): a(f'v_mov_b32 v{i}, 0')
a('v_lshrrev_b32 v4, 2, v0'); a('v_and_b32 v5, 3, v4'); a('v_bfe_u32 v6, v4, 3, 1'); a('v_lshl_or_b32 v5, v6, 2, v5'); a('v_lshlrev_b32 v5, 1, v5')
a('s_and_b32 s66, s32, 3'); a('s_lshl_b32 s66, s66, 2')
a('v_and_b32 v6, 3, v0'); a('v_add_u32 v6, s66, v6'); a('v_xor_b32 v5, v5, v6')
a('v_lshlrev_b32 v4, 8, v4'); a(f'v_lshl_add_u32 v{AB+1}, v5, 4, v4')
a('s_lshr_b32 s66, s32, 2'); a('s_lshl_b32 s66, s66, 14'); a(f'v_add_u32 v{AB+1}, s66, v{AB+1}')
a('s_cmp_eq_u32 s35, 0'); a('s_cbranch_scc1 L_aux_w')
a('s_and_b32 s67, s32, 3'); a(f's_mul_i32 s67, s67, {20*128}'); a('s_add_u32 s66, s66, s67')
a(f'v_lshlrev_b32 v{AB+1}, 4, v0'); a(f'v_add_u32 v{AB+1}, s66, v{AB+1}')
a('L_aux_w:')
a('s_mov_b32 s46, 0')
a('s_lshl_b32 s77, s29, 1'); a('s_add_u32 s77, s77, s31'); a('s_lshl_b32 s77, s77, 11'); a('s_lshr_b32 s67, s32, 2'); a('s_lshl_b32 s67, s67, 10'); a('s_add_u32 s77, s77, s67'); a(f's_add_u32 s77, s77, {WS_WP}')
a('s_and_b32 s67, s32, 3'); a('s_cmp_eq_u32 s35, 1'); a('s_cselect_b32 s68, 20, 32'); a('s_mul_i32 s67, s67, s68'); a('s_lshl_b32 s67, s67, 3'); a('s_add_u32 s77, s77, s67')
a(f'v_min_u32 v{AB+6}, 47, v0'); a(f'v_lshlrev_b32 v{AB+6}, 2, v{AB+6}')
a('s_mul_i32 s74, s38, 80'); a('s_add_u32 s75, s74, 79'); a('s_lshr_b32 s74, s74, 7'); a('s_lshr_b32 s75, s75, 7')
a('s_lshl_b32 s74, s74, 8'); a('s_lshl_b32 s75, s75, 8'); a(f's_add_u32 s74, s74, {WS_FW}'); a(f's_add_u32 s75, s75, {WS_FW}')
if SENT:
    for i in range(4): a(f'v_mov_b32 v{8+i}, -1')
    a('v_lshlrev_b32 v12, 4, v0')
    a(f's_mul_i32 s76, s28, {8*48*1024}')
    if RDFT: a('s_mul_i32 s67, s30, 12288')
    else: a('s_lshl_b32 s67, s29, 12')
    a('s_add_u32 s76, s76, s67')
a('s_mov_b32 s47, 0')
a('s_waitcnt lgkmcnt(0)')
a('L_aux_l:')
tick(7, ('s47', 0))
a('s_barrier')
tick(7, ('s47', 16))
a(f'v_add_u32 v{AB+3}, s46, v{AB+1}')
a(f's_cmp_lg_u32 s47, {NONIT-1}'); a('s_cbranch_scc1 L_aux_nb')
a('s_mov_b64 exec, 1'); a('buffer_load_dword v2, v1, s[24:27], 0 offen sc1'); a('s_mov_b64 exec, -1')
a('L_aux_nb:')
a(f's_cmp_lg_u32 s47, {NONIT}'); a('s_cbranch_scc1 L_aux_na')
a('s_mov_b32 s79, 0')
a('L_non:')
a('s_waitcnt vmcnt(0)')
a('v_readfirstlane_b32 s43, v2')
a('s_cmp_lg_u32 s43, 0'); a('s_cbranch_scc1 L_non_ok')
a('s_add_u32 s79, s79, 1'); a(f's_cmp_ge_u32 s79, {SPINMAX}'); a('s_cbranch_scc1 L_non_ok')
a('s_sleep 4')
a('s_mov_b64 exec, 1'); a('buffer_load_dword v2, v1, s[24:27], 0 offen sc1'); a('s_mov_b64 exec, -1')
a('s_branch L_non')
a('L_non_ok:')
a('v_mov_b32 v2, s43'); a(f'v_mov_b32 v3, {L_NON}'); a('ds_write_b32 v3, v2')
a('s_cmp_ge_u32 s2, 240'); a('s_cbranch_scc1 L_aux_na')
a(f's_mul_hi_u32 s66, s2, {-(-(1<<32)//5)}'); a('s_mul_i32 s67, s66, 5'); a('s_sub_u32 s67, s2, s67')
a('s_lshl_b32 s67, s67, 8'); a('s_lshl_b32 s66, s66, 2'); a('s_add_u32 s66, s66, s67'); a(f's_add_u32 s66, s66, {WS_FW}')
a('s_mov_b64 exec, 1'); a('buffer_store_dword v2, v1, s[12:15], s66 offen sc1'); a('s_mov_b64 exec, -1')
a('L_aux_na:')
def fw_ask():
    a(f'buffer_load_dword v{AB+2}, v{AB+6}, s[12:15], s74 offen sc1'); a(f'buffer_load_dword v{AB+3}, v{AB+6}, s[12:15], s75 offen sc1')
def fw_ask2():
    a(f'buffer_load_dword v62, v{AB+6}, s[12:15], s74 offen sc1'); a(f'buffer_load_dword v63, v{AB+6}, s[12:15], s75 offen sc1')
def fw_check(nm):
    a('s_mov_b32 s79, 0')
    a(f'{nm}:')
    a('s_waitcnt vmcnt(0)')
    a('v_cmp_ne_u32 vcc, s43, v62'); a('v_cmp_ne_u32 s[66:67], s43, v63'); a('s_or_b64 vcc, vcc, s[66:67]')
    a(f's_cbranch_scc0 {nm}_ok')
    a('s_add_u32 s79, s79, 1'); a(f's_cmp_ge_u32 s79, {SPINMAX}'); a(f's_cbranch_scc1 {nm}_ok')
    a('s_sleep 4')
    fw_ask2()
    a(f's_branch {nm}')
    a(f'{nm}_ok:')

T0, T1 = AB + 4, AB + 5
if SENT:
    RS0 = opt('rs0', 1 if RDFT else 3)
    def resets(n):
        L = a.label('L_rs')
        a(f's_cmp_eq_u32 s35, {0 if RDFT else 1}'); a(f's_cbranch_scc1 {L}')
        if RDFT:
            for t in range(n // 12):
                for g in range(3):
                    for i in range(4): a(f'buffer_store_dwordx4 v[8:11], v12, s[12:15], s76 offen offset:{i*1024} sc1')
                    a(f's_add_u32 s76, s76, {4096 if g < 2 else 48*1024 - 8192}')
        else:
            for i in range(n):
                a(f'buffer_store_dwordx4 v[8:11], v12, s[12:15], s76 offen offset:{(i % 4)*1024} sc1')
                if i % 4 == 3: a(f's_add_u32 s76, s76, {48*1024}')
        a(f'{L}:')
    a(f's_cmp_lt_u32 s47, {RS0}'); a('s_cbranch_scc1 L_aux_nr')
    resets(12 if RDFT else 8)
    a('L_aux_nr:')
a('s_cmp_eq_u32 s35, 1'); a('s_cbranch_scc1 L_aux_c')
for i in range(4): a(f'ds_read_b128 v[{24+4*i}:{27+4*i}], v{AB+3} offset:{i*4096}')
a('s_waitcnt lgkmcnt(0)')
for i in range(4):
    for d in range(4):
        r = 24 + 4*i + d
        a(f'v_lshlrev_b32 v{T0}, 16, v{r}'); a(f'v_and_b32 v{T1}, 0xffff0000, v{r}')
        a(f'v_add_f32 v{48+2*d}, v{48+2*d}, v{T0}'); a(f'v_add_f32 v{49+2*d}, v{49+2*d}, v{T1}')
a('s_branch L_aux_x')
a('L_aux_c:')
for i in range(3): a(f'ds_read_b128 v[{24+4*i}:{27+4*i}], v{AB+3} offset:{i*1024}')
a('s_waitcnt lgkmcnt(0)')
for i in range(3):
    for d in range(4):
        r = 24 + 4*i + d
        a(f'v_lshlrev_b32 v{T0}, 16, v{r}'); a(f'v_and_b32 v{T1}, 0xffff0000, v{r}')
        a(f'v_add_f32 v{48+2*i}, v{48+2*i}, v{T0}'); a(f'v_add_f32 v{49+2*i}, v{49+2*i}, v{T1}')
a('L_aux_x:')
a(f's_add_u32 s46, s46, {STG}'); a(f's_cmp_eq_u32 s46, {3*STG}'); a('s_cselect_b32 s46, 0, s46')
a('s_add_u32 s47, s47, 1'); a('s_cmp_lt_u32 s47, 5'); a('s_cbranch_scc1 L_aux_l')
tick(7, 5)
a('s_barrier')
tick(7, 21)
if RDFT: resets(12*(RS0 + 3 - (RS0 + 3)//2))
elif RS0 >= 2: resets(8)
p2_setup()
def red8(regs):
    for mod in ('quad_perm:[1,0,3,2]', 'quad_perm:[2,3,0,1]', 'row_half_mirror'):
        a('s_nop 1')
        for r in regs: a(f'v_add_f32_dpp v{r}, v{r}, v{r} {mod} row_mask:0xf bank_mask:0xf')
a('s_cmp_eq_u32 s35, 1'); a('s_cbranch_scc1 L_aux_pc')
for mod in ('row_ror:4', 'row_ror:8'):
    a('s_nop 1')
    for r in range(48, 56): a(f'v_add_f32_dpp v{r}, v{r}, v{r} {mod} row_mask:0xf bank_mask:0xf')
for sw in ('v_permlane16_swap_b32', 'v_permlane32_swap_b32'):
    for r in range(48, 56): a(f'v_mov_b32 v{r-24}, v{r}')
    a('s_nop 1')
    for r in range(48, 56): a(f'{sw} v{r}, v{r-24}')
    a('s_nop 1')
    for r in range(48, 56): a(f'v_add_f32 v{r}, v{r}, v{r-24}')
for d in range(4):
    a(f'v_cmp_eq_u32 vcc, {d}, v6') if d else a('v_lshrrev_b32 v6, 2, v0')
    if d == 0:
        a('v_mov_b32 v24, v48'); a('v_mov_b32 v26, v49')
    else:
        a('s_nop 1'); a(f'v_cndmask_b32 v24, v24, v{48+2*d}, vcc'); a(f'v_cndmask_b32 v26, v26, v{49+2*d}, vcc')
a('v_mov_b32 v25, s43'); a('v_mov_b32 v27, s43')
a('v_and_b32 v4, 3, v0'); a('v_lshlrev_b32 v4, 6, v4'); a('v_lshl_add_u32 v4, v6, 4, v4')
a('s_mov_b64 exec, 0xffff')
a('buffer_store_dwordx4 v[24:27], v4, s[12:15], s77 offen sc1')
a('s_branch L_aux_pub')
a('L_aux_pc:')
for i in range(3): a(f'v_add_f32 v{48+i*2}, v{48+i*2}, v{49+i*2}')
red8([48, 50, 52])
for i in range(3): a(f'v_mov_b32 v{49+i*2}, s43')
a('s_mov_b32 exec_lo, 0x01010101'); a('s_mov_b32 exec_hi, 0x01010101')
a('buffer_store_dwordx2 v[48:49], v0, s[12:15], s77 offen sc1')
a('buffer_store_dwordx2 v[50:51], v0, s[12:15], s77 offen offset:64 sc1')
a('s_mov_b32 exec_hi, 0')
a('buffer_store_dwordx2 v[52:53], v0, s[12:15], s77 offen offset:128 sc1')
a('L_aux_pub:')
a('s_mov_b64 exec, -1')
tick(7, 6)
a('s_barrier')
tick(7, 22)
if RDFT: resets(12*((RS0 + 3)//2))
elif RS0 >= 3: resets(8)
fw_ask2()
tick(7, 7)
a('s_barrier')
tick(7, 23)
fw_check('L_pollwf')
if SENT:
    a('s_lshl_b32 s66, s28, 8'); a('s_lshl_b32 s67, s29, 2'); a('s_add_u32 s66, s66, s67'); a(f's_add_u32 s66, s66, {WS_FH}')
    a('v_mov_b32 v4, s43'); a('v_mov_b32 v5, 0')
    a('s_waitcnt vmcnt(0)')
    a('s_mov_b64 exec, 1'); a('buffer_store_dword v4, v5, s[12:15], s66 offen sc1'); a('s_mov_b64 exec, -1')
a('s_lshl_b32 s66, s28, 13'); a(f's_add_u32 s66, s66, {WS_XP}'); a('s_add_u32 s68, s66, 4096')
a('s_lshl_b32 s67, s29, 12'); a(f's_add_u32 s67, s67, {WS_WP}')
def gather():
    for i in range(8): a(f'buffer_load_dwordx4 v[{8+4*i}:{11+4*i}], v1, s[12:15], s{66 if i < 4 else 68} offen offset:{(i%4)*1024} sc1')
    for i in range(4): a(f'buffer_load_dwordx4 v[{40+4*i}:{43+4*i}], v1, s[12:15], s67 offen offset:{i*1024} sc1')
    a(f'buffer_load_dword v{AB+1}, v{AB}, s[12:15], s65 offen sc1')
a(f's_mov_b32 s65, {WS_FH}')
if RDFT:
    a(f'v_and_b32 v{AB}, 3, v0'); a(f'v_lshlrev_b32 v{AB}, 2, v{AB}'); a('s_lshl_b32 s69, s36, 8'); a('s_add_u32 s69, s69, 48'); a(f'v_add_u32 v{AB}, s69, v{AB}')
    a('s_lshl_b32 s69, s28, 8'); a('s_lshl_b32 s64, s30, 2'); a('s_add_u32 s69, s69, s64'); a('s_add_u32 s69, s69, 48'); a('v_mov_b32 v4, s69')
    a('v_cmp_gt_u32 vcc, 16, v0'); a('s_nop 1'); a(f'v_cndmask_b32 v{AB}, v4, v{AB}, vcc')
else:
    a(f'v_min_u32 v{AB}, 11, v0'); a(f'v_lshlrev_b32 v{AB}, 2, v{AB}'); a('s_lshl_b32 s69, s36, 8'); a(f'v_add_u32 v{AB}, s69, v{AB}')
gather()
a('s_cmp_eq_u32 s35, 1'); a('s_cselect_b32 s69, 40, 64'); a('v_cmp_gt_u32 s[76:77], s69, v0')
tick(7, 8)
a('s_barrier')
tick(7, 24)
a('s_mov_b32 s79, 0')
a('s_waitcnt vmcnt(0)')
a('L_gchk:')
a(f'v_xor_b32 v2, s43, v{AB+1}'); a('s_sub_u32 s64, s35, 1' if RDFT else 's_mov_b32 s64, 0'); a('v_and_b32 v2, s64, v2')
for i in range(0, 8): a(f'v_xor_b32 v3, s43, v{10+4*i}'); a('v_or_b32 v2, v2, v3')
a('v_xor_b32 v4, s43, v41')
for r in (43, 45, 47, 49, 51, 53, 55): a(f'v_xor_b32 v3, s43, v{r}'); a('v_or_b32 v4, v4, v3')
a('v_cmp_ne_u32 vcc, 0, v4'); a('s_and_b64 s[74:75], vcc, s[76:77]')
a('v_cmp_ne_u32 vcc, 0, v2'); a('s_or_b64 s[74:75], s[74:75], vcc')
a('s_cbranch_scc0 L_gok')
a('s_add_u32 s79, s79, 1'); a(f's_cmp_ge_u32 s79, {SPINMAX}'); a('s_cbranch_scc1 L_gok')
a('s_sleep 4')
gather()
a('s_waitcnt vmcnt(0)')
a('s_branch L_gchk')
a('L_gok:')
tick(7, 9)
for h in range(2):
    for d in range(2):
        b = 8 + 4*h + d
        a(f'v_add_f32 v{b}, v{b}, v{b+8}'); a(f'v_add_f32 v{b+16}, v{b+16}, v{b+24}'); a(f'v_add_f32 v{b}, v{b}, v{b+16}')
    a(f'v_add_f32 v{40+4*h}, v{40+4*h}, v{48+4*h}'); a(f'v_add_f32 v{41+4*h}, v{42+4*h}, v{50+4*h}')
a('v_lshlrev_b32 v2, 3, v0'); a(f'v_add_u32 v2, {L_CS}, v2')
a('ds_write_b64 v2, v[40:41]'); a('ds_write_b64 v2, v[44:45] offset:512')
for (s_, q_, ro, mo) in ((8, 9, 16, 18), (12, 13, 17, 19)):
    a(f'v_mul_f32 v{mo}, {1.0/D!r}, v{s_}')
    a(f'v_mul_f32 v{q_}, {1.0/D!r}, v{q_}')
    a(f'v_fma_f32 v{q_}, -v{mo}, v{mo}, v{q_}')
    a(f'v_max_f32 v{q_}, 0, v{q_}')
    rbf(mo); rbf(q_)
    a(f'v_add_f32 v{q_}, 0x3727c5ac, v{q_}')
    rbf(q_)
    a(f'v_sqrt_f32 v{q_}, v{q_}'); a('s_nop 0')
    rbf(q_)
    a(f'v_rcp_f32 v{ro}, v{q_}')
    a(f'v_fmac_f32 v{s_}, {-float(D)!r}, v{mo}')
    a(f'v_mul_f32 v{s_}, v{s_}, v{ro}')
a('v_lshlrev_b32 v2, 2, v0'); a(f'v_add_u32 v2, {L_R}, v2')
a(f'ds_write_b32 v2, v8 offset:{L_A0 - L_R}'); a(f'ds_write_b32 v2, v12 offset:{L_A0 - L_R + 256}')
a('ds_write_b32 v2, v16'); a('ds_write_b32 v2, v17 offset:256'); a('ds_write_b32 v2, v18 offset:512'); a('ds_write_b32 v2, v19 offset:768')
lds_arrive(24, 2)
tick(7, 10)
a(f'v_cmp_ne_u32 vcc, s43, v{AB+1}'); a('s_cmp_eq_u64 vcc, 0'); a('s_cbranch_scc1 L_pollr_ok')
spin_begin('L_pollr')
a(f'buffer_load_dword v{AB+1}, v{AB}, s[12:15], s65 offen sc1')
a('s_waitcnt vmcnt(0)')
a(f'v_cmp_ne_u32 vcc, s43, v{AB+1}'); a('s_cmp_eq_u64 vcc, 0')
spin_end('L_pollr')
lds_arrive(0, 2)
if opt('aprio', 0): a('s_setprio 0')
a('s_branch L_p2join')

a('L_compute:')
common_srds()
a(f's_mov_b32 s50, {(-2*STG) & 0xffffffff}'); a(f's_mov_b32 s51, {STG}')
a('s_mov_b32 s46, 0'); a('s_mov_b32 s47, 0')
p2h_setup()
a('v_lshrrev_b32 v2, 4, v0')
a('v_and_b32 v3, 15, v0')
a('v_bfe_u32 v6, v0, 1, 3'); a('v_xor_b32 v6, v6, v2')
a(f"s_cmp_ge_u32 s2, {0 if opt('nowd', 0) else 240}")
a('s_cbranch_scc1 L_nowd')
a(f's_mul_hi_u32 s76, s2, {-(-(1<<32)//5)}'); a('s_mul_i32 s77, s76, 5'); a('s_sub_u32 s77, s2, s77')
a('v_lshrrev_b32 v36, 2, v0'); a('v_and_b32 v37, 3, v0')
a(f'v_mul_u32_u24 v38, {D*2}, v36'); a('v_lshl_add_u32 v38, v37, 4, v38')
a(f's_mul_i32 s68, s76, {32*D*2}'); a('s_lshl_b32 s69, s77, 8'); a('s_add_u32 s68, s68, s69'); a('s_lshl_b32 s69, s3, 6'); a('s_add_u32 s68, s68, s69')
a('s_lshl_b32 s70, s3, 11'); a(f's_add_u32 s70, s70, {L_WD}')
a('s_mov_b32 m0, s70'); a('s_nop 0')
a(f'buffer_load_dwordx4 v38, s[20:23], s68 offen {WP_} lds')
a('s_add_u32 m0, s70, 1024'); a(f's_add_u32 s68, s68, {16*D*2}')
a(f'buffer_load_dwordx4 v38, s[20:23], s68 offen {WP_} lds')
a('L_nowd:')
def wd_finish():
    L = a.label('L_wdf')
    a(f"s_cmp_ge_u32 s2, {0 if opt('nowd', 0) else 240}"); a(f's_cbranch_scc1 {L}')
    a('v_lshlrev_b32 v36, 6, v36'); a('v_lshl_add_u32 v36, v37, 3, v36'); a('v_add_u32 v36, s70, v36')
    a('v_lshlrev_b32 v37, 4, v0')
    a('s_lshl_b32 s77, s77, 3'); a('s_lshl_b32 s68, s3, 1'); a('s_add_u32 s77, s77, s68')
    a(f's_mul_i32 s76, s76, 5120'); a(f's_add_u32 s76, s76, {WS_WDT}')
    a('s_waitcnt vmcnt(0)')
    for e in range(2):
        for b in range(2):
            a(f'ds_read_b64_tr_b16 v[{48+4*e+2*b}:{49+4*e+2*b}], v36 offset:{32*e + 1024*b}')
    for e in range(2):
        a(f's_add_u32 s68, s77, {e}')
        a(f's_mul_hi_u32 s69, s68, {-(-(1<<32)//5)}')
        a('s_mul_i32 s70, s69, 5'); a('s_sub_u32 s70, s68, s70')
        a(f's_mul_i32 s69, s69, {48*5120}'); a('s_lshl_b32 s70, s70, 10')
        a('s_add_u32 s69, s69, s70'); a('s_add_u32 s69, s69, s76')
        a('s_waitcnt lgkmcnt(0)')
        a(f'buffer_store_dwordx4 v[{48+4*e}:{51+4*e}], v37, s[12:15], s69 offen sc1')
    a(f'{L}:')
pre_loop()
a('s_cmp_eq_u32 s35, 1')
a('s_cbranch_scc1 L_dft')
def interleave(M, R):
    out = []; R = list(R)
    for m in M:
        out.append(m)
        if R: out.append(R.pop(0))
    return out + R
tails = []
def mid_sync(last):
    L = a.label('L_ms')
    a('s_cmp_ge_u32 s47, 8'); a(f's_cbranch_scc1 {L}_t')
    a('s_barrier')
    a(f'{L}_b:')
    tails.append((L, last))
CNTRD = 'ds_read2_b32 v[14:15], v6 offset0:3 offset1:6'
def emit_tails():
    for L, last in tails:
        a(f'{L}_t:')
        a('s_mov_b64 exec, 1')
        a('s_cmp_eq_u32 s47, 9'); a(f's_cbranch_scc1 {L}_9')
        a('ds_add_u32 v6, v5 offset:16')
        a('s_mov_b64 exec, -1')
        a('v_readfirstlane_b32 s78, v14')
        a('s_cmp_ge_u32 s78, 3'); a(f's_cbranch_scc1 {L}_b')
        lds_wait(f'{L}_w', 12, 14, 3)
        a(f's_branch {L}_b')
        a(f'{L}_9:')
        a('ds_add_u32 v6, v5 offset:20')
        a('s_mov_b64 exec, -1')
        a(f's_branch {last}')
def stats_wait(name):
    a('v_readfirstlane_b32 s78, v15')
    a('s_cmp_ge_u32 s78, 1'); a(f's_cbranch_scc1 {name}_ok')
    lds_wait(name, 24, 14, 1)
def slot_advance():
    a('s_add_u32 s46, s46, 1'); a('s_cmp_eq_u32 s46, 3'); a('s_cselect_b32 s42, s50, s51'); a('s_cselect_b32 s46, 0, s46')
ACC = 128
def T16(mat, mi, ni): return ACC + 64*mat + 16*mi + 4*ni
FR = 32
def fW(p, mat, mi): return FR + 48*p + 16*mat + 4*mi
def fX(p, ni): return FR + 48*p + 32 + 4*ni
AW, AX = 8, 12
a('s_and_b32 s44, s3, 1'); a('s_lshr_b32 s45, s3, 1')
SPF = opts.get('spf', '')
if SPF:
    a('s_load_dwordx4 s[80:83], s[0:1], 48') if STAMPS == 0 else a('s_load_dwordx4 s[72:75], s[0:1], 48')
    wb = 80 if STAMPS == 0 else 72
    a('s_waitcnt lgkmcnt(0)')
    a('s_cmp_ge_u32 s3, 2'); a('s_cbranch_scc1 L_spx')
    a('s_cmp_eq_u32 s3, 1'); a(f's_cselect_b32 s62, s{wb+2}, s{wb}'); a(f's_cselect_b32 s63, s{wb+3}, s{wb+1}')
    a(f's_mul_i32 s66, s32, {8*F*2}'); a('s_lshl_b32 s67, s29, 8'); a('s_add_u32 s66, s66, s67'); a('s_add_u32 s62, s62, s66'); a('s_addc_u32 s63, s63, 0')
    for dc in map(int, SPF.split(',')):
        a(f's_add_u32 s66, s34, {dc}'); a('s_cmp_ge_u32 s66, 10'); a('s_cselect_b32 s67, 10, 0'); a('s_sub_u32 s66, s66, s67'); a(f's_mul_i32 s66, s66, {64*F*2}')
        a('s_add_u32 s52, s62, s66'); a('s_addc_u32 s53, s63, 0')
        for i in range(16): a(f's_load_dword s54, s[52:53], {(i >> 1)*F*2 + (i & 1)*128}')
    a('s_branch L_spd')
    a('L_spx:')
    a('s_lshl_b32 s66, s33, 1'); a('s_add_u32 s66, s66, s44'); a('s_lshl_b32 s66, s66, 4'); a('s_add_u32 s66, s66, s28'); a(f's_mul_i32 s66, s66, {D*2}')
    a(f's_add_u32 s66, s66, {4*128*D*2}'); a('s_add_u32 s62, s64, s66'); a('s_addc_u32 s63, s65, 0')
    for dc in map(int, SPF.split(',')):
        a(f's_add_u32 s66, s34, {dc}'); a('s_cmp_ge_u32 s66, 10'); a('s_cselect_b32 s67, 10, 0'); a('s_sub_u32 s66, s66, s67'); a('s_lshl_b32 s66, s66, 7')
        a('s_add_u32 s52, s62, s66'); a('s_addc_u32 s53, s63, 0')
        for i in range(8): a(f's_load_dword s54, s[52:53], {(i-4)*128*D*2}')
        a(f's_add_u32 s52, s52, {8*128*D*2}'); a('s_addc_u32 s53, s53, 0')
        for i in range(8): a(f's_load_dword s54, s[52:53], {(i-4)*128*D*2}')
    a('L_spd:')
a('v_bfe_u32 v7, v0, 2, 2')
a('v_lshl_add_u32 v4, v2, 3, v7'); a('v_lshlrev_b32 v4, 8, v4')
a('v_bfe_u32 v5, v0, 1, 1'); a('v_lshl_add_u32 v4, v5, 4, v4')
a('v_and_b32 v5, 1, v0'); a('v_lshl_add_u32 v4, v5, 3, v4')
a('v_and_b32 v5, 1, v2'); a('v_lshl_or_b32 v5, v5, 2, v7')
for mi in range(4):
    a('s_lshl_b32 s66, s44, 2'); a(f's_add_u32 s66, s66, {mi}')
    a('v_xor_b32 v7, s66, v5')
    a(f'v_lshl_add_u32 v{AW+mi}, v7, 5, v4')
a('s_lshl_b32 s66, s45, 13'); a('s_add_u32 s66, s66, 32768')
a('v_lshlrev_b32 v5, 7, v3'); a('v_add_u32 v5, s66, v5')
for ks in range(2):
    a(f'v_xor_b32 v7, {4*ks}, v6')
    a(f'v_lshl_add_u32 v{AX+ks}, v7, 4, v5')
for i in range(128): a(f'v_mov_b32 v{ACC+i}, 0')
def f_reads(p, ks):
    L = []
    def w(mat, mi):
        for b in range(2):
            L.append(f'ds_read_b64_tr_b16 v[{fW(p,mat,mi)+2*b}:{fW(p,mat,mi)+2*b+1}], v{AW+mi} offset:{mat*16384 + ks*8192 + b*1024}')
    w(0, 0)
    for ni in range(4): L.append(f'ds_read_b128 v[{fX(p,ni)}:{fX(p,ni)+3}], v{AX+ks} offset:{ni*2048}')
    for mat in range(2):
        for mi in range(4):
            if (mat, mi) != (0, 0): w(mat, mi)
    return L
def f_mfmas(p):
    L = []
    for i, (mat, mi) in enumerate([(mat, mi) for mat in range(2) for mi in range(4)]):
        for ni in (range(4) if i % 2 == 0 else range(3, -1, -1)):
            t = T16(mat, mi, ni)
            L.append(f'v_mfma_f32_16x16x32_bf16 v[{t}:{t+3}], v[{fW(p,mat,mi)}:{fW(p,mat,mi)+3}], v[{fX(p,ni)}:{fX(p,ni)+3}], v[{t}:{t+3}]')
    return L
wd_finish()
a('v_mov_b32 v5, 1'); a(f'v_mov_b32 v6, {L_CNT}')
tick(7, 0)
a('s_barrier')
tick(7, 16)
stamp(1)
for r in f_reads(0, 0): a(r)
a('L_floop:')
a('s_waitcnt lgkmcnt(0)')
for ins in interleave(f_mfmas(0), f_reads(1, 1) + [CNTRD]): a(ins)
a('s_waitcnt vmcnt(0) lgkmcnt(0)')
tick(7, ('s47', 1))
mid_sync('L_flast')
tick(7, ('s47', 17))
slot_advance()
for r in (AW, AX): a(f'v_add_u32 v{r}, s42, v{r}')
R = f_reads(0, 0)
R = R[:3] + [f'v_add_u32 v{r}, s42, v{r}' for r in (AW+1, AW+2, AW+3, AX+1)] + R[3:]
for ins in interleave(f_mfmas(1), R): a(ins)
a('s_add_u32 s47, s47, 1'); a('s_branch L_floop')
a('L_flast:')
pre_epilogue()
stats_wait('L_fst')
tick(7, 40)
CSB = 48
P = []
P += ['s_lshl_b32 s66, s45, 8', f's_add_u32 s66, s66, {L_R}', 'v_lshlrev_b32 v4, 2, v3', 'v_add_u32 v4, s66, v4']
for ni in range(4):
    P += [f'ds_read_b32 v{40+ni}, v4 offset:{64*ni}', f'ds_read_b32 v{44+ni}, v4 offset:{512 + 64*ni}']
P += [f'v_mov_b32 v10, {L_CNT}', 'ds_read_b32 v8, v10 offset:32']
P += ['s_lshl_b32 s66, s44, 8', f's_add_u32 s66, s66, {L_CS}', 'v_lshlrev_b32 v5, 4, v2', 'v_add_u32 v5, s66, v5']
for mat in range(2):
    for mi in range(4):
        r = CSB + 16*mat + 4*mi
        P.append(f'ds_read_b128 v[{r}:{r+3}], v5 offset:{mat*512 + mi*64}')
P += ['v_lshlrev_b32 v1, 4, v0', 'v_mov_b32 v9, 0']
P += ['s_lshl_b32 s66, s28, 3', 's_lshl_b32 s67, s45, 2', 's_add_u32 s66, s66, s67', 's_mul_i32 s66, s66, 48',
      's_lshl_b32 s67, s29, 2', 's_add_u32 s66, s66, s67', 's_lshl_b32 s67, s44, 1', 's_add_u32 s66, s66, s67', 's_lshl_b32 s66, s66, 10']
P += ['s_lshl_b32 s70, s28, 8', 's_lshl_b32 s71, s29, 4', 's_add_u32 s70, s70, s71', 's_lshl_b32 s71, s3, 2', 's_add_u32 s70, s70, s71', f's_add_u32 s70, s70, {WS_FH}']
M = f_mfmas(1)
for i, m in enumerate(M):
    a(m)
    for _ in range(2):
        if P: a(P.pop(0))
for x_ in P: a(x_)
stamp(2)
a('s_waitcnt lgkmcnt(0)')
a('v_readfirstlane_b32 s43, v8')
for ni in range(4):
    c = 80 + 6*ni
    a(f'v_sub_f32 v{c}, 0, v{44+ni}')
    a(f'v_mul_f32 v{c+2}, {-1.4426950408889634!r}, v{40+ni}')
    a(f'v_mul_f32 v{c+4}, v{40+ni}, v{40+ni}')
for ni in range(4): a(f'v_rcp_f32 v{84+6*ni}, v{84+6*ni}')
tick(7, 42)
BC = 'op_sel_hi:[1,0,1]'
for ni in range(1, 4): a(f's_add_u32 s{66+ni}, s{65+ni}, {48*1024}')
for kp in range(2):
    for ni in range(4):
        if kp == 1 and ni == VCHK - 1: a('ds_read_b32 v11, v10 offset:28')
        if kp == 1 and ni == VCHK:
            a('s_waitcnt lgkmcnt(0)'); a('v_readfirstlane_b32 s79, v11')
            a('s_cmp_lg_u32 s79, 1'); a('s_cbranch_scc1 L_fnov')
            v_loads()
            a('L_fnov:')
        c = 80 + 6*ni
        prs = [(2*kp + h, d) for h in range(2) for d in (0, 2)]
        G_ = [T16(0, mi, ni) + d for mi, d in prs]; U_ = [T16(1, mi, ni) + d for mi, d in prs]
        for n, (mi, d) in enumerate(prs): a(f'v_pk_fma_f32 v[{G_[n]}:{G_[n]+1}], v[{CSB+4*mi+d}:{CSB+1+4*mi+d}], v[{c}:{c+1}], v[{G_[n]}:{G_[n]+1}] {BC}')
        for n, (mi, d) in enumerate(prs): a(f'v_pk_fma_f32 v[{U_[n]}:{U_[n]+1}], v[{CSB+16+4*mi+d}:{CSB+17+4*mi+d}], v[{c}:{c+1}], v[{U_[n]}:{U_[n]+1}] {BC}')
        for n in range(4): a(f'v_pk_mul_f32 v[{104+2*n}:{105+2*n}], v[{G_[n]}:{G_[n]+1}], v[{c+2}:{c+3}] op_sel_hi:[1,0]')
        for n in range(4): a(f'v_pk_mul_f32 v[{G_[n]}:{G_[n]+1}], v[{G_[n]}:{G_[n]+1}], v[{U_[n]}:{U_[n]+1}]')
        for n in range(8): a(f'v_exp_f32 v{104+n}, v{104+n}')
        a('s_nop 0')
        for n in range(4): a(f'v_pk_fma_f32 v[{104+2*n}:{105+2*n}], v[{104+2*n}:{105+2*n}], v[{c+4}:{c+5}], v[{c+4}:{c+5}] op_sel_hi:[1,0,0]')
        for n in range(8): a(f'v_rcp_f32 v{104+n}, v{104+n}')
        a('s_nop 0')
        o = 112 + 4*ni
        for n in range(4): a(f'v_pk_mul_f32 v[{G_[n]}:{G_[n]+1}], v[{G_[n]}:{G_[n]+1}], v[{104+2*n}:{105+2*n}]')
        for n in range(4): a(f'v_cvt_pk_bf16_f32 v{o+n}, v{G_[n]}, v{G_[n]+1}')
        a(f'buffer_store_dwordx4 v[{o}:{o+3}], v1, s[12:15], s{66+ni} offen offset:{kp*1024} {STP}')
        tick(7, 43 + 4*kp + ni)
tick(7, 32)
stamp(3)
if TONE: lds_arrive(0, 4)
else: a('s_waitcnt vmcnt(0)')
if not SENT:
    a('s_mov_b64 exec, 1'); a('buffer_store_dword v8, v9, s[12:15], s70 offen sc1'); a('s_mov_b64 exec, -1')
if VCHK == 4:
    a('s_waitcnt lgkmcnt(0)'); a('v_readfirstlane_b32 s79, v11')
    a('s_cmp_lg_u32 s79, 1'); a('s_cbranch_scc1 L_fnov')
    v_loads()
    a('L_fnov:')
tick_dump(7, 4)
a('s_branch L_helper')

a('L_dft:')
DACC = 176
def TD(part, mi, et): return DACC + 40*part + 20*mi + 4*et
DFR = 40
def dX(p, mi): return DFR + 48*p + 4*mi
def dC(p, part, et): return DFR + 48*p + 8 + 20*part + 4*et
DX, DC = 8, 10
FCOS, FSIN, FNS = 136, 144, 152
a('v_lshlrev_b32 v5, 7, v3')
a('s_lshl_b32 s66, s3, 12'); a('s_add_u32 s66, s66, 32768')
for ks in range(2):
    a(f'v_xor_b32 v7, {4*ks}, v6')
    a(f'v_lshl_add_u32 v{DC+ks}, v7, 4, v5')
    a(f'v_add_u32 v{DX+ks}, s66, v{DC+ks}')
for i in range(80): a(f'v_mov_b32 v{DACC+i}, 0')
a('s_and_b32 s45, s30, 1'); a('s_sub_u32 s45, 3, s45')
a('v_lshrrev_b32 v12, 3, v3'); a('v_and_b32 v13, 7, v3'); a('v_lshlrev_b32 v13, 4, v13'); a('v_lshl_add_u32 v12, v12, 2, v13'); a('v_add_u32 v12, s3, v12')
a('v_lshlrev_b32 v13, 5, v2'); a('v_add_u32 v13, s28, v13'); a('v_cvt_f32_u32 v13, v13')
for mt in range(2):
    a(f'v_add_u32 v14, {8*mt}, v12'); a('v_cvt_f32_u32 v14, v14'); a(f'v_mul_f32 v14, {1.0/2048!r}, v14')
    for d in range(4):
        for h in range(2):
            a(f'v_add_f32 v{60+h}, {float(16*h + 128*d)!r}, v13')
            a(f'v_mul_f32 v{60+h}, v{60+h}, v14')
        a('v_cos_f32 v62, v60'); a('v_cos_f32 v63, v61'); a('v_sin_f32 v64, v60'); a('v_sin_f32 v65, v61')
        a(f'v_cvt_pk_bf16_f32 v{FCOS+4*mt+d}, v62, v63')
        a(f'v_cvt_pk_bf16_f32 v{FSIN+4*mt+d}, v64, v65')
        a(f'v_xor_b32 v{FNS+4*mt+d}, 0x80008000, v{FSIN+4*mt+d}')
def d_reads(p, ks):
    L = [f'ds_read_b128 v[{dX(p,mi)}:{dX(p,mi)+3}], v{DX+ks} offset:{mi*2048}' for mi in range(2)]
    for part in range(2):
        for et in range(5):
            L.append(f'ds_read_b128 v[{dC(p,part,et)}:{dC(p,part,et)+3}], v{DC+ks} offset:{part*16384 + et*2048}')
    return L
def d_mfmas(p):
    L = []
    i = 0
    for part in range(2):
        for et in range(5):
            for mi in ((0, 1) if i % 2 == 0 else (1, 0)):
                t = TD(part, mi, et)
                L.append(f'v_mfma_f32_16x16x32_bf16 v[{t}:{t+3}], v[{dX(p,mi)}:{dX(p,mi)+3}], v[{dC(p,part,et)}:{dC(p,part,et)+3}], v[{t}:{t+3}]')
            i += 1
    return L
wd_finish()
a('v_mov_b32 v5, 1'); a(f'v_mov_b32 v6, {L_CNT}')
for i in range(32, 36): a(f'v_mov_b32 v{i}, 0')
tick(7, 0)
a('s_barrier')
tick(7, 16)
stamp(1)
for r in d_reads(0, 0): a(r)
def xstat(p):
    L = []
    for mi in range(2):
        for d in range(4):
            r = dX(p, mi) + d; t = 36 + 2*(d & 1)
            L += [f'v_lshlrev_b32 v{t}, 16, v{r}', f'v_and_b32 v{t+1}, 0xffff0000, v{r}',
                  f'v_add_f32 v{32+2*mi}, v{32+2*mi}, v{t}', f'v_fmac_f32 v{33+2*mi}, v{t}, v{t}',
                  f'v_add_f32 v{32+2*mi}, v{32+2*mi}, v{t+1}', f'v_fmac_f32 v{33+2*mi}, v{t+1}, v{t+1}']
    return L
def interleave2(M, R, per):
    out = []; R = list(R)
    for m in M:
        out.append(m)
        for _ in range(per):
            if R: out.append(R.pop(0))
    return out + R
def dloop(name, stats):
    a(f'{name}:')
    a('s_waitcnt lgkmcnt(0)')
    for ins in interleave2(d_mfmas(0), d_reads(1, 1) + (xstat(0) if stats else [CNTRD]), 3 if stats else 1): a(ins)
    a('s_waitcnt vmcnt(0) lgkmcnt(0)' if stats else 's_waitcnt lgkmcnt(0)')
    tick(7, ('s47', 1))
    if stats: a('s_barrier')
    else: mid_sync('L_dlast')
    tick(7, ('s47', 17))
    slot_advance()
    for r in (DX, DC): a(f'v_add_u32 v{r}, s42, v{r}')
    R = d_reads(0, 0) + [f'v_add_u32 v{r}, s42, v{r}' for r in (DX+1, DC+1)]
    for ins in interleave2(d_mfmas(1), R + (xstat(1) if stats else []), 3 if stats else 1): a(ins)
    a('s_add_u32 s47, s47, 1')
    if stats: a('s_cmp_lt_u32 s47, s45'); a(f's_cbranch_scc1 {name}')
    else: a(f's_branch {name}')
dloop('L_dloopA', True)
a(f'v_mov_b32 v36, {L_NON}'); a('ds_read_b32 v14, v36')
for sw in ('v_permlane16_swap_b32', 'v_permlane32_swap_b32'):
    for r in range(32, 36): a(f'v_mov_b32 v{r+4}, v{r}')
    a('s_nop 1')
    for r in range(32, 36): a(f'{sw} v{r}, v{r+4}')
    a('s_nop 1')
    for r in range(32, 36): a(f'v_add_f32 v{r}, v{r}, v{r+4}')
a('s_lshl_b32 s66, s28, 2'); a('s_add_u32 s66, s66, s30'); a('s_lshl_b32 s66, s66, 11'); a('s_lshl_b32 s67, s3, 9'); a('s_add_u32 s66, s66, s67'); a(f's_add_u32 s66, s66, {WS_XP}')
a('v_cmp_gt_u32 vcc, 16, v0'); a('v_lshlrev_b32 v38, 4, v0')
a('s_waitcnt lgkmcnt(0)')
a('v_cndmask_b32 v12, v34, v32, vcc'); a('v_cndmask_b32 v13, v35, v33, vcc'); a('v_mov_b32 v15, v14')
a('v_readfirstlane_b32 s43, v14')
a('s_mov_b32 exec_hi, 0')
a('buffer_store_dwordx4 v[12:15], v38, s[12:15], s66 offen sc1')
a('s_mov_b64 exec, -1')
a('s_nop 0')
dloop('L_dloopB', False)
a('L_dlast:')
pre_epilogue()
stats_wait('L_dst')
tick(7, 40)
DP = []
DP.append('s_lshl_b32 s66, s3, 7'); DP.append(f's_add_u32 s66, s66, {L_R}')
DP.append('v_lshlrev_b32 v4, 4, v2'); DP.append('v_add_u32 v4, s66, v4')
for mi in range(2):
    DP.append(f'ds_read_b128 v[{40+4*mi}:{43+4*mi}], v4 offset:{64*mi}')
    DP.append(f'ds_read_b128 v[{48+4*mi}:{51+4*mi}], v4 offset:{512 + 64*mi}')
    DP.append(f'ds_read_b128 v[{160+4*mi}:{163+4*mi}], v4 offset:{L_A0 - L_R + 64*mi}')
DP.append('v_lshlrev_b32 v5, 2, v3'); DP.append(f'v_add_u32 v5, {L_CS}, v5')
for part in range(2):
    for et in range(5): DP.append(f'ds_read_b32 v{56+2*(5*part+et)}, v5 offset:{part*512 + et*64}')
DP.append(f'v_mul_u32_u24 v8, {ZROW}, v3'); DP.append('v_lshl_add_u32 v8, v2, 2, v8'); DP.append('s_lshl_b32 s66, s3, 4'); DP.append('v_add_u32 v8, s66, v8')
DP.append('ds_read_b32 v14, v6 offset:20')
for ins in interleave2(d_mfmas(1), DP, 2): a(ins)
stamp(2)
a('s_waitcnt lgkmcnt(0)')
a('v_readfirstlane_b32 s78, v14')
a('s_cmp_ge_u32 s78, 4'); a('s_cbranch_scc1 L_dc9_ok')
lds_wait('L_dc9', 20, 14)
tick(7, 41)
for et in range(5):
    for mi in range(2):
        for part in range(2):
            t = TD(part, mi, et); c = 56 + 2*(5*part + et)
            for d in (0, 2):
                a(f'v_pk_fma_f32 v[{t+d}:{t+d+1}], v[{48+4*mi+d}:{49+4*mi+d}], v[{c}:{c+1}], v[{t+d}:{t+d+1}] op_sel_hi:[1,0,1] neg_lo:[1,0,0] neg_hi:[1,0,0]')
            for d in (0, 2):
                a(f'v_pk_mul_f32 v[{t+d}:{t+d+1}], v[{t+d}:{t+d+1}], v[{40+4*mi+d}:{41+4*mi+d}]')
        y = 80 + 16*mi
        for part in range(2):
            t = TD(part, mi, et)
            a(f'v_pk_add_f32 v[{y+4*part}:{y+4*part+1}], v[{t}:{t+1}], v[{t+2}:{t+3}]')
            a(f'v_pk_add_f32 v[{y+4*part+2}:{y+4*part+3}], v[{t}:{t+1}], v[{t+2}:{t+3}] neg_lo:[0,1] neg_hi:[0,1]')
        pa, qa, ra, sa, pb, qb, rb, sb = range(y, y+8); o = y + 8
        a(f'v_add_f32 v{o}, v{pa}, v{qa}'); a(f'v_add_f32 v{o+1}, v{pb}, v{qb}')
        a(f'v_add_f32 v{o+2}, v{ra}, v{sb}'); a(f'v_sub_f32 v{o+3}, v{rb}, v{sa}')
        a(f'v_sub_f32 v{o+4}, v{pa}, v{qa}'); a(f'v_sub_f32 v{o+5}, v{pb}, v{qb}')
        a(f'v_sub_f32 v{o+6}, v{ra}, v{sb}'); a(f'v_add_f32 v{o+7}, v{rb}, v{sa}')
    for cpart in range(8):
        a(f'v_cvt_pk_bf16_f32 v{112+cpart}, v{88+cpart}, v{104+cpart}')
    for cpart in range(8):
        a(f'ds_write_b32 v8, v{112+cpart} offset:{L_Z + (cpart*ZB + 16*et)*ZROW}')
a('s_cmp_lg_u32 s30, 0'); a('s_cbranch_scc1 L_z0')
for mi in range(2):
    t = 160 + 4*mi; y = 80 + 4*mi
    a(f'v_pk_add_f32 v[{y}:{y+1}], v[{t}:{t+1}], v[{t+2}:{t+3}]')
    a(f'v_pk_add_f32 v[{y+2}:{y+3}], v[{t}:{t+1}], v[{t+2}:{t+3}] neg_lo:[0,1] neg_hi:[0,1]')
    a(f'v_add_f32 v{88+mi}, v{y}, v{y+1}'); a(f'v_sub_f32 v{90+mi}, v{y}, v{y+1}')
a('v_cvt_pk_bf16_f32 v120, v88, v89'); a('v_mov_b32 v121, 0')
a('v_cvt_pk_bf16_f32 v122, v82, v86'); a('v_cvt_pk_bf16_f32 v127, v83, v87'); a('v_xor_b32 v123, 0x80008000, v127')
a('v_cvt_pk_bf16_f32 v124, v90, v91')
for cpart, r in enumerate((120, 121, 122, 123, 124, 121, 122, 127)):
    a(f'ds_write_b32 v8, v{r} offset:{L_Z + (cpart*ZB + 80)*ZROW}')
a('L_z0:')
tick(7, 42)
lds_arrive(4, 9)
lds_wait('L_zw', 4, 9)
tick(7, 43)
a(f'v_mul_u32_u24 v8, {ZROW}, v3'); a('v_lshl_add_u32 v8, v2, 4, v8'); a(f's_mul_i32 s66, s3, {2*ZB*ZROW}'); a('v_add_u32 v8, s66, v8')
for part in range(2):
    for et in range(5):
        r = 40 + 20*part + 4*et
        a(f'ds_read_b128 v[{r}:{r+3}], v8 offset:{L_Z + (part*ZB + 16*et)*ZROW}')
for part in range(2): a(f'ds_read_b128 v[{120+4*part}:{123+4*part}], v8 offset:{L_Z + (part*ZB + 80)*ZROW}')
lds_arrive(8, 9)
tick(7, 44)
def VR(mt, et): return DACC + 20*mt + 4*et
def VI(mt, et): return DACC + 40 + 20*mt + 4*et
for et in range(5):
    ya = 40 + 4*et; yb = 60 + 4*et
    for mt in range(2):
        a(f'v_mfma_f32_16x16x32_bf16 v[{VR(mt,et)}:{VR(mt,et)+3}], v[{FCOS+4*mt}:{FCOS+4*mt+3}], v[{ya}:{ya+3}], 0')
        a(f'v_mfma_f32_16x16x32_bf16 v[{VI(mt,et)}:{VI(mt,et)+3}], v[{FNS+4*mt}:{FNS+4*mt+3}], v[{ya}:{ya+3}], 0')
    for mt in range(2):
        a(f'v_mfma_f32_16x16x32_bf16 v[{VR(mt,et)}:{VR(mt,et)+3}], v[{FSIN+4*mt}:{FSIN+4*mt+3}], v[{yb}:{yb+3}], v[{VR(mt,et)}:{VR(mt,et)+3}]')
        a(f'v_mfma_f32_16x16x32_bf16 v[{VI(mt,et)}:{VI(mt,et)+3}], v[{FCOS+4*mt}:{FCOS+4*mt+3}], v[{yb}:{yb+3}], v[{VI(mt,et)}:{VI(mt,et)+3}]')
a('s_cmp_lg_u32 s30, 0'); a('s_cbranch_scc1 L_v0a')
for mt in range(2):
    a(f'v_mfma_f32_16x16x32_bf16 v[{160+4*mt}:{163+4*mt}], v[{FCOS+4*mt}:{FCOS+4*mt+3}], v[120:123], 0')
    a(f'v_mfma_f32_16x16x32_bf16 v[{168+4*mt}:{171+4*mt}], v[{FNS+4*mt}:{FNS+4*mt+3}], v[120:123], 0')
for mt in range(2):
    a(f'v_mfma_f32_16x16x32_bf16 v[{160+4*mt}:{163+4*mt}], v[{FSIN+4*mt}:{FSIN+4*mt+3}], v[124:127], v[{160+4*mt}:{163+4*mt}]')
    a(f'v_mfma_f32_16x16x32_bf16 v[{168+4*mt}:{171+4*mt}], v[{FCOS+4*mt}:{FCOS+4*mt+3}], v[124:127], v[{168+4*mt}:{171+4*mt}]')
a('L_v0a:')
tick(7, 45)
a('v_lshrrev_b32 v8, 1, v2'); a(f'v_mul_u32_u24 v8, {8*VROW}, v8')
a('v_and_b32 v9, 1, v2'); a(f'v_mul_u32_u24 v10, {VROW}, v9'); a('v_add_u32 v8, v8, v10'); a('v_lshl_add_u32 v8, v3, 4, v8')
a('s_mul_i32 s66, s28, 17'); a('s_add_u32 s67, s66, s3'); a(f's_mul_i32 s67, s67, {2*VROW}'); a(f's_mul_i32 s68, s30, 1280')
a(f's_add_u32 s68, s68, {WS_V + 128}'); a('s_add_u32 s67, s67, s68'); a('s_sub_u32 s69, s67, 16')
a('s_add_u32 s66, s66, 16'); a(f's_mul_i32 s66, s66, {2*VROW}'); a('s_add_u32 s66, s66, s68')
a('s_nop 4')
for mt in range(2):
    for et in range(5):
        o = 80 + 20*mt + 4*et
        for i in range(4): a(f'v_cvt_pk_bf16_f32 v{o+i}, v{VR(mt,et)+i}, v{VI(mt,et)+i}')
        a(f'buffer_store_dwordx4 v[{o}:{o+3}], v8, s[12:15], s67 offen offset:{256*et} {STP}')
    if mt == 0: a(f's_add_u32 s67, s67, {16*VROW}')
a('s_cmp_lg_u32 s30, 0'); a('s_cbranch_scc1 L_v0b')
for mt in range(2):
    for i in range(4): a(f'v_cvt_pk_bf16_f32 v{120+4*mt+i}, v{160+4*mt+i}, v{168+4*mt+i}')
a('s_mov_b32 exec_lo, 0x00010001'); a('s_mov_b32 exec_hi, 0x00010001')
a(f'buffer_store_dwordx4 v[120:123], v8, s[12:15], s69 offen {STP}')
a(f's_add_u32 s69, s69, {16*VROW}')
a(f'buffer_store_dwordx4 v[124:127], v8, s[12:15], s69 offen {STP}')
a('s_mov_b64 exec, -1')
a('L_v0b:')
tick(7, 46)
a('s_cmp_lg_u32 s3, 0')
a('s_cbranch_scc1 L_signal')
a('v_cvt_f32_u32 v62, s28'); a('v_mul_f32 v62, 0.0625, v62'); a('v_cos_f32 v63, v62'); a('v_sin_f32 v64, v62')
a('v_cmp_gt_u32 vcc, 16, v0')
a('v_lshlrev_b32 v11, 4, v3'); a('v_add_u32 v9, v10, v11')
for et in range(5):
    o = 80 + 4*et; vr = VR(0, et); vi = VI(0, et); n = 40 + 4*et
    a(f'v_mul_f32 v65, v63, v{vr}'); a(f'v_fmac_f32 v65, v64, v{vi}')
    a(f'v_mul_f32 v66, v63, v{vi}'); a(f'v_fma_f32 v66, -v64, v{vr}, v66')
    a(f'v_cvt_pk_bf16_f32 v65, v65, v66')
    a(f'v_cndmask_b32 v65, v{o}, v65, vcc')
    a(f'v_mov_b32 v{n}, v{o+1}')
    a(f'v_mov_b32 v66, v65')
    a(f'v_mov_b32 v{n+1}, v{o+2}'); a(f'v_mov_b32 v{n+2}, v{o+3}')
    a(f'v_permlane16_swap_b32 v65, v66')
    a('s_nop 1')
    a(f'v_cndmask_b32 v{n+3}, v65, v66, vcc')
a('s_mov_b32 exec_hi, 0')
for et in range(5):
    a(f'buffer_store_dwordx4 v[{40+4*et}:{43+4*et}], v9, s[12:15], s66 offen offset:{256*et} {STP}')
a('s_mov_b64 exec, -1')

a('L_signal:')
a('s_mov_b32 s79, 0')
tick(7, 32)
stamp(3)
a('s_lshl_b32 s66, s30, 2'); a('s_add_u32 s66, s66, s3'); a('s_lshl_b32 s66, s66, 7'); a('s_lshl_b32 s67, s28, 2'); a('s_add_u32 s66, s66, s67'); a(f's_add_u32 s66, s66, {WS_FV}')
a('v_mov_b32 v4, s43'); a('v_mov_b32 v5, 0')
a('s_waitcnt vmcnt(0)'); a('s_mov_b64 exec, 1')
a('buffer_store_dword v4, v5, s[12:15], s66 offen sc1'); a('s_mov_b64 exec, -1')
if TONE: lds_arrive(0, 4)
tick_dump(7, 4)
a('L_helper:')
if TONE:
    lds_wait('L_hc9', 20, 40)
    a('s_cmp_eq_u32 s35, 0'); a('s_cbranch_scc1 L_hnz')
    lds_wait('L_hzc', 8, 40)
    a('L_hnz:')
else:
    lds_arrive(0, 4)
    lds_wait('L_hc9', 20, 40)
    a('s_cmp_eq_u32 s35, 0'); a('s_cbranch_scc1 L_hnz')
    lds_wait('L_hzc', 8, 40)
    a('L_hnz:')
    a('s_mov_b32 s44, s3')
    p2_setup()
    a('s_cmp_eq_u32 s35, 0'); a('s_cbranch_scc1 L_hf')
    for st in range(6, 12 - NLATE): wdt_lds(st)
    a('L_hf:')
    for st in range(12 - NLATE, 12): wdt_lds(st)
    a('s_waitcnt vmcnt(0)')
    lds_arrive(36, 4)
stamp(4)

a('s_cmp_eq_u32 s79, 1'); a('s_cbranch_scc1 L_vdone')
if VGO: a('s_cmp_lg_u32 s3, 3'); a('s_cbranch_scc1 L_vwait')
spin_begin('L_pollv')
a(f'buffer_load_dword v53, v{VFL}, s[12:15], s60 offen sc1')
a('s_waitcnt vmcnt(0)')
a('v_cmp_ne_u32 vcc, s43, v53')
a('s_cmp_eq_u64 vcc, 0')
spin_end('L_pollv')
if VGO:
    lds_arrive(28, 40)
    a('L_vwait:')
    lds_wait('L_vc', 28, 40, 1)
    lds_wait('L_vgo', 40, 40, 1)
v_loads()
a('L_vdone:')
stamp(5)
a('v_lshrrev_b32 v4, 2, v3'); a('v_and_b32 v5, 3, v3'); a('v_lshl_add_u32 v7, v5, 2, v4')
a('s_mul_i32 s66, s55, 15'); a('v_xor_b32 v4, s66, v7')
a('v_cvt_f32_u32 v4, v4'); a('v_mul_f32 v4, 0.0625, v4')
a('v_lshlrev_b32 v5, 2, v2'); a('v_cvt_f32_u32 v5, v5')
for i in range(4):
    a(f'v_add_f32 v52, {float(i)!r}, v5'); a('v_mul_f32 v52, v52, v4')
    a('v_cos_f32 v53, v52'); a('v_sin_f32 v54, v52'); a('s_nop 0')
    a(f'v_cvt_pk_bf16_f32 v{8+i}, v53, v54')
a(f's_mov_b32 s47, {PN}'); a('s_cmp_eq_u32 s55, 1'); a(f's_cselect_b32 s47, {(-PN) & 0xffffffff}, s47')
a(f'v_mul_u32_u24 v56, {PQ}, v2'); a('v_lshl_add_u32 v56, v3, 4, v56'); a(f's_mul_i32 s66, s55, {3*PN}'); a('v_add_u32 v56, s66, v56')
for k4 in range(1, 4): a(f'v_add_u32 v{56+k4}, s47, v{55+k4}')
def spec_tile(off_s, vb):
    for k4 in range(4):
        for i in range(4): a(f'v_mov_b32 v{64+4*k4+i}, v{vb+4*i+k4}')
    a('s_nop 1')
    for k4 in range(4):
        c = 80 + 4*k4
        a(f'v_mfma_f32_16x16x32_bf16 v[{c}:{c+3}], v[{64+4*k4}:{67+4*k4}], v[8:11], 0')
    for k4 in range(4): a(f'v_add_u32 v{40+k4}, {off_s}, v{56+k4}')
    a('s_nop 5')
    for k4 in range(4):
        c = 80 + 4*k4
        a(f'ds_write_b128 v{40+k4}, v[{c}:{c+3}]')
a('s_cmp_eq_u32 s3, 1'); a(f's_mov_b32 s73, {ST[0]}'); a(f's_cselect_b32 s73, {ST[1]}, s73')
a('s_cmp_eq_u32 s3, 2'); a(f's_cselect_b32 s73, {ST[2]}, s73')
a('s_cmp_eq_u32 s3, 3'); a(f's_cselect_b32 s73, {ST[3]}, s73')
a('s_waitcnt vmcnt(0)')
a('s_cmp_lg_u32 s3, 0'); a('s_cbranch_scc1 L_spec1')
a(f's_mov_b32 s74, {ST[4]}')
spec_tile('s74', VB1)
a('L_spec1:')
spec_tile('s73', VB0)
for r in range(3):
    for d in range(4):
        a(f'v_lshlrev_b32 v{96+8*r+2*d}, 16, v{XR[r]+d}'); a(f'v_and_b32 v{97+8*r+2*d}, 0xffff0000, v{XR[r]+d}')

a('L_final:')
def final_reads(r, b):
    d4, d11 = FA[3*r], FA[3*r+2]
    for p in range(5):
        reg = (d4, d4, d4, d4, d11)[p]; off = (0, P2W, 2*P2W, 3*P2W, 0)[p]
        a(f'ds_read_b128 v[{b+8*p}:{b+3+8*p}], v{reg} offset:{off}')
        a(f'ds_read_b128 v[{b+4+8*p}:{b+7+8*p}], v{reg} offset:{off+PQ}')
def final_sum(r, b, cnt):
    x = 96 + 8*r
    for p in range(5):
        a(f's_waitcnt lgkmcnt({min(15, cnt + 8 - 2*p)})')
        for d in range(0, 8, 2): a(f'v_pk_add_f32 v[{x+d}:{x+d+1}], v[{x+d}:{x+d+1}], v[{b+8*p+d}:{b+8*p+d+1}]')
    for d in range(4): a(f'v_cvt_pk_bf16_f32 v{b+d}, v{x+2*d}, v{x+2*d+1}')
    a(f'buffer_store_dwordx4 v[{b}:{b+3}], v{FA[3*r+1]}, s[16:19], 0 offen {OUTP}')
a('s_waitcnt lgkmcnt(0)')
a('s_barrier')
stamp(6)
final_reads(0, 128)
final_reads(1, 168)
final_sum(0, 128, 10)
a('s_cmp_ge_u32 s3, 2'); a('s_cbranch_scc1 L_fin1')
final_reads(2, 208)
final_sum(1, 168, 10)
final_sum(2, 208, 0)
a('s_branch L_fin2')
a('L_fin1:')
final_sum(1, 168, 0)
a('L_fin2:')
if 'diag' in opts:
    a('s_cmp_lg_u32 s3, 0'); a('s_cbranch_scc1 L_diag')
    a('s_waitcnt vmcnt(0)')
    a('s_memrealtime s[94:95]'); a('s_waitcnt lgkmcnt(0)')
    a(f"s_sub_u32 s66, s{80 + 2*int(opts['diag'])}, s43"); a('s_max_i32 s66, s66, 0'); a('s_min_u32 s66, s66, 5000'); a('s_lshl_b32 s66, s66, 2')
    a('L_dsp:')
    a('s_memrealtime s[68:69]'); a('s_waitcnt lgkmcnt(0)'); a('s_sub_u32 s68, s68, s94'); a('s_cmp_lt_u32 s68, s66'); a('s_cbranch_scc1 L_dsp')
    a('s_endpgm')
    a('L_diag:')
if opt('dbgt', 0):
    a('s_cmp_lg_u32 s3, 0'); a('s_cbranch_scc1 L_dbgt')
    a('s_waitcnt vmcnt(0)')
    a('s_memrealtime s[94:95]'); a('s_waitcnt lgkmcnt(0)')
    a('s_mov_b64 exec, 1')
    for i, r in enumerate((80, 82, 84, 86, 88, 90, 92, 94)):
        a(f's_sub_u32 s66, s{r}, s43'); a('s_add_u32 s66, s66, 1000'); a('v_mov_b32 v4, s66'); a(f'v_mov_b32 v5, {4 + 4*i}')
        a('buffer_atomic_umax v4, v5, s[24:27], 0 offen sc1')
        a('s_nop 2')
    a('s_endpgm')
    a('L_dbgt:')
stamp(7)
if STAMPS:
    a('s_waitcnt vmcnt(0)')
    a('s_memrealtime s[96:97]')
    a('s_waitcnt lgkmcnt(0)')
    for i in range(8): a(f'v_mov_b32 v{16+i}, s{80+2*i}')
    a('v_mov_b32 v24, s96'); a('v_mov_b32 v25, s101')
    a('s_lshl_b32 s66, s2, 3'); a('s_add_u32 s66, s66, s3'); a('s_lshl_b32 s66, s66, 6'); a(f's_add_u32 s66, s66, {WS_TS}')
    a('v_mov_b32 v4, 0')
    a('s_mov_b64 exec, 1')
    a('buffer_store_dwordx4 v[16:19], v4, s[12:15], s66 offen')
    a('buffer_store_dwordx4 v[20:23], v4, s[12:15], s66 offen offset:16')
    a('buffer_store_dwordx2 v[24:25], v4, s[12:15], s66 offen offset:32')
a('s_endpgm')
emit_tails()
a('L_done:')
a.end(256, sgpr=102)
txt = a.text([])
txt = txt.replace('.amdgcn_target', f'; @launch grid=(256,1,1) block=(512,1,1) lds={LDS_BYTES}\n.amdgcn_target', 1)
open(sys.argv[1], 'w').write(txt)
if opt('ids', 0): print(wait_ids)
```

```python
import sys, math
from asmlib import *
opts = dict(o.split('=') for o in sys.argv[2:])
def opt(k, d): return type(d)(opts.get(k, d))
STAMPS = opt('stamps', 0)
PFW = opts.get('pfw', '3,0').replace('-', '')
PFP = opts.get('pfp', '-').replace('-', '')
EARLY = opt('early', -1)
NTM = [sum(1 << int(c) for c in m) for m in opts['ntm'].split(',')] if 'ntm' in opts else None
RP = opts.get('rp', '-').replace('+', ' ').replace('-', '')
WP_ = opts.get('wp', 'nt').replace('+', ' ').replace('-', '')
XP_ = opts.get('xp', '-').replace('+', ' ').replace('-', '')
TONE = opt('t1', 0)
HDLY = opt('hdly', 0)
OUTP = opts.get('outp', 'sc1').replace('+', ' ').replace('-', '')
SENT = 1
RDFT = opt('rdft', 0)
RSL = opt('rsleep', 4)
AUXV = opt('auxv', 0)
VGO = opt('vgo', 1)
VCHK = opt('vchk', 4)
XR = [32, 36, 28]
FA = [16, 17, 18, 19, 20, 21, 22, 23, 24]; VA0, VA4, VFL = 25, 26, 27
NONIT = 1
WMODE = opt('wmode', 0)
STRICT = opt('strict', 1)
ZFIX = opt('zfix', 1)
FLAGA = opt('flaga', 0)
FAKEW = opt('fakew', 0)
FAKEH = opt('fakeh', 0)
P2MAP = opt('p2map', 0)
P2ROT = opt('p2rot', 1)
SPINMAX = opt('spinmax', 1 << 16)
CODEPF = opt('codepf', 1)
LDW = opts.get('ldw', 'sc1').replace('+', ' ').replace('-', '')
LDH = opts.get('ldh', 'sc1').replace('+', ' ').replace('-', '')
STP = opts.get('stp', 'sc1').replace('+', ' ').replace('-', '')
S, D, F = 2048, 640, 1536
KNAME = 'parallel_sum__spectral_fnet__swiglu_ffn__prompt_kernel'
STG = 49152
WS_H = 0
WS_WDT = 0x600000
WS_V = 0x800000
WS_XP = 0xB00000
WS_WP = 0xB20000
WS_FW = 0xB30000
WS_FH = 0xB31000
WS_FV = 0xB34000
WS_TS = 0xC00000
WS_SIZE = 0x1000000
L_AUX = 3*STG
L_R = L_AUX
L_M = L_AUX + 512
L_CS = L_AUX + 1024
L_CNT = L_AUX + 2048
L_NON = L_CNT + 32
L_A0 = L_AUX + 2560
L_WD = L_AUX + 4096
L_Z = 0
ZROW = 64; ZB = 96
VROW = 5248
P2W = 10240
P2STEP = [STG, STG + 5120, 2*STG, 2*STG + 5120, 0, 5120]
PT = [STG, STG + 4416, 2*STG + 128, 2*STG + 128 + 4416, 0]
ST = [40960, STG + 40960 + 64, 2*STG + 40960 + 128, 3*STG + 4096 + 192, 3*STG + 4096 + 192 + 4416 ]
PQ, PN, PE = 272, 1088, 4416
LDS_BYTES = 163840

a = Asm()
stamp_n = [0]
def stamp(i):
    if STAMPS:
        if not ((FAKEW or FAKEH) and i >= 5): a(f's_memrealtime s[{80+2*i}:{81+2*i}]')
TICKS = opt('ticks', 0)
def tick(reg, idx):
    if TICKS:
        a('s_memrealtime s[98:99]'); a('s_waitcnt lgkmcnt(0)')
        if isinstance(idx, tuple):
            a(f's_add_u32 m0, {idx[0]}, {idx[1]}'); a('s_nop 3'); a(f'v_writelane_b32 v{reg}, s98, m0')
        else:
            a(f'v_writelane_b32 v{reg}, s98, {idx}')
def tick_dump(reg, tmp):
    if TICKS:
        a('s_lshl_b32 s98, s2, 3'); a('s_add_u32 s98, s98, s3'); a('s_lshl_b32 s98, s98, 8'); a(f's_add_u32 s98, s98, {WS_TS + 0x100000}')
        a(f'v_lshlrev_b32 v{tmp}, 2, v0')
        a(f'buffer_store_dword v{reg}, v{tmp}, s[12:15], s98 offen')
def rbf(v):
    a(f'v_cvt_pk_bf16_f32 v{v}, v{v}, v{v}')
    a(f'v_lshlrev_b32 v{v}, 16, v{v}')
def srd_from(d, b, nbytes):
    srd(a, d, b, nbytes)
def spin_begin(name):
    a(f's_mov_b32 s79, 0')
    a(f'{name}:')
def spin_end(name):
    a(f's_cbranch_scc1 {name}_ok')
    a('s_add_u32 s79, s79, 1')
    a(f's_cmp_ge_u32 s79, {SPINMAX}')
    a(f's_cbranch_scc1 {name}_ok')
    a('s_sleep 2')
    a(f's_branch {name}')
    a(f'{name}_ok:')

def lds_arrive(off, v):
    a(f'v_mov_b32 v{v}, {L_CNT}'); a(f'v_mov_b32 v{v+1}, 1')
    a('s_waitcnt lgkmcnt(0)')
    a('s_mov_b64 exec, 1')
    a(f'ds_add_u32 v{v}, v{v+1} offset:{off}')
    a('s_mov_b64 exec, -1')
wait_ids = {}
def lds_wait(name, off, v, cnt=4):
    wait_ids[name] = len(wait_ids) + 1
    a(f'v_mov_b32 v{v}, {L_CNT}')
    a('s_mov_b32 s100, 0')
    a(f'{name}:')
    a(f'ds_read_b32 v{v+1}, v{v} offset:{off}')
    a('s_waitcnt lgkmcnt(0)')
    a(f'v_readfirstlane_b32 s78, v{v+1}')
    a(f's_cmp_lt_u32 s78, {cnt}')
    a(f's_cbranch_scc0 {name}_ok')
    a('s_add_u32 s100, s100, 1')
    a(f's_cmp_lt_u32 s100, {SPINMAX*8}')
    a('s_sleep 1')
    a(f's_cbranch_scc1 {name}')
    if STAMPS: a(f's_mov_b32 s101, {wait_ids[name]}')
    a(f'{name}_ok:')
a.begin(KNAME)
a('s_cmp_ge_u32 s2, 256')
a('s_cbranch_scc1 L_done')
stamp(0)
if STAMPS: a('s_mov_b32 s101, 0')
a('s_load_dwordx2 s[64:65], s[0:1], 0')
a('s_load_dwordx4 s[60:63], s[0:1], 24')
a('s_load_dwordx8 s[48:55], s[0:1], 48')
a('s_load_dwordx4 s[56:59], s[0:1], 80')
a('v_lshrrev_b32 v1, 6, v0')
a('v_and_b32 v0, 63, v0')
a('v_readfirstlane_b32 s3, v1')
a('s_and_b32 s40, s2, 7'); a('s_lshr_b32 s41, s2, 3')
a('s_and_b32 s31, s40, 1'); a('s_lshr_b32 s30, s40, 1')
a('s_and_b32 s32, s41, 7'); a('s_lshr_b32 s33, s41, 3')
a('s_lshl_b32 s28, s31, 3'); a('s_add_u32 s28, s28, s32')
a('s_mul_i32 s29, s30, 3'); a('s_add_u32 s29, s29, s33')
a('s_add_u32 s42, s30, 12')
a('s_cmp_eq_u32 s33, 3')
a('s_cselect_b32 s29, s42, s29')
a('s_cselect_b32 s35, 1, 0')
a('s_mul_i32 s34, s30, 5'); a('s_add_u32 s34, s34, 1'); a('s_lshr_b32 s34, s34, 1')
a('s_mul_i32 s42, s31, 5'); a('s_add_u32 s34, s34, s42')
a('s_cmp_ge_u32 s34, 10'); a('s_cselect_b32 s42, 10, 0'); a('s_sub_u32 s34, s34, s42')
if P2MAP == 0:
    a('s_lshl_b32 s42, s30, 3'); a('s_add_u32 s42, s42, s32')
    a('s_lshl_b32 s38, s31, 2'); a('s_add_u32 s38, s38, s33')
else:
    a('s_lshl_b32 s42, s40, 2'); a('s_add_u32 s42, s42, s33')
    a('s_mov_b32 s38, s32')
if EARLY < 0:
    a('s_mul_i32 s39, s32, 3'); a('s_lshr_b32 s39, s39, 1'); a('s_mul_i32 s66, s33, 3'); a('s_add_u32 s39, s39, s66')
    a('s_cmp_ge_u32 s39, 12'); a('s_cselect_b32 s66, 12, 0'); a('s_sub_u32 s39, s39, s66')
else:
    a('s_lshl_b32 s39, s33, 1'); a('s_add_u32 s39, s39, s32'); a('s_mul_i32 s39, s39, 3'); a('s_lshr_b32 s39, s39, 2')
    a('s_cmp_ge_u32 s39, 6'); a('s_cselect_b32 s66, 6, 0'); a('s_sub_u32 s39, s39, s66')
if not P2ROT: a('s_mov_b32 s39, 0')
a('s_lshr_b32 s36, s42, 1'); a('s_and_b32 s37, s42, 1')
WSOFF = opt('wsoff', 0)
WSRD = 's[12:15]'; HSRD = 's[12:15]'
def common_srds(loader=False):
    a('s_waitcnt lgkmcnt(0)')
    tick(7, 50)
    srd(a, 12, 58, WS_SIZE, WSOFF << 20)
    if not loader:
        srd_from(4, 64, S*D*2)
        srd_from(16, 54, S*D*2)
        srd_from(20, 52, F*D*2)
        srd_from(24, 56, 256)
a('s_cmp_lt_u32 s3, 4')
a('s_cbranch_scc1 L_compute')
a('s_sub_u32 s44, s3, 4')
a('s_cmp_eq_u32 s44, 3')
a('s_cbranch_scc1 L_aux')

W0 = 5
PT_ = [20, 21, 22, 23, 24, 25, 26, 27, 4, 5, 6, 7, 16, 17, 18, 19]
GT_ = [66, 67, 68, 69, 76, 77, 78, 79, 96, 97, 100, 101, 40, 41, 42, 43]
GT_ = [66, 67, 68, 69, 76, 77, 78, 79, 28, 29, 30, 31, 40, 41, 33, 43]
H0 = opt('h0', 8)
def dma_loop(name, npieces):
    h = npieces * H0 // 16
    def pieces1(lo, hi, pol):
        for t in range(lo, hi):
            a(f's_add_u32 m0, s{PT_[t]}, s46'); a('s_nop 0')
            a(f'buffer_load_dwordx4 v{4 + (t & 1)}, s[8:11], s{GT_[t]} offen {pol} lds')
    def pieces(lo, hi):
        if not NTM: return pieces1(lo, hi, RP)
        L = a.label('L_pc')
        a('s_bitcmp1_b32 s50, s47'); a(f's_cbranch_scc1 {L}_n')
        pieces1(lo, hi, ''); a(f's_branch {L}_e')
        a(f'{L}_n:'); pieces1(lo, hi, 'nt'); a(f'{L}_e:')
    a('s_mov_b32 s45, s34'); a('s_mov_b32 s46, 0'); a('s_mov_b32 s47, 0')
    a('s_mul_i32 s42, s34, s48'); a('s_mul_i32 s49, s48, -9'); a('v_add_u32 v4, s42, v4'); a('v_add_u32 v5, s42, v5')
    tick(7, 51)
    if opt('uni', 0):
        pieces(0, h)
        a(f'{name}_l:')
        pieces(h, npieces)
        a('s_cmp_eq_u32 s47, 9'); a('s_cbranch_scc1 L_p2last')
        a('s_add_u32 s45, s45, 1'); a('s_cmp_eq_u32 s45, 10'); a('s_cselect_b32 s45, 0, s45')
        a('s_cselect_b32 s42, s49, s48')
        a('v_add_u32 v4, s42, v4'); a('v_add_u32 v5, s42, v5')
        a(f's_add_u32 s46, s46, {STG}'); a(f's_cmp_eq_u32 s46, {3*STG}'); a('s_cselect_b32 s46, 0, s46')
        pieces(0, h)
        a(f's_waitcnt vmcnt({h})')
        tick(7, ('s47', 0))
        a('s_barrier')
        tick(7, ('s47', 16))
        a('s_add_u32 s47, s47, 1'); a(f's_branch {name}_l')
        return
    a(f'{name}_l:')
    pieces(0, h)
    a('s_cmp_lg_u32 s47, 1'); a(f's_cbranch_scc1 {name}_m')
    a(f's_waitcnt vmcnt({h})')
    tick(7, 0)
    a('s_barrier')
    tick(7, 16)
    a(f'{name}_m:')
    pieces(h, npieces)
    a('s_add_u32 s45, s45, 1'); a('s_cmp_eq_u32 s45, 10'); a('s_cselect_b32 s45, 0, s45')
    a('s_cselect_b32 s42, s49, s48')
    a('v_add_u32 v4, s42, v4'); a('v_add_u32 v5, s42, v5')
    a(f's_add_u32 s46, s46, {STG}'); a(f's_cmp_eq_u32 s46, {3*STG}'); a('s_cselect_b32 s46, 0, s46')
    tick(7, ('s47', 52))
    a('s_cmp_lt_u32 s47, 2'); a(f's_cbranch_scc1 {name}_nx')
    a(f's_waitcnt vmcnt({npieces})')
    tick(7, ('s47', -1))
    a('s_barrier')
    tick(7, ('s47', 15))
    a('s_cmp_eq_u32 s47, 9'); a('s_cbranch_scc1 L_p2last')
    a(f'{name}_nx:')
    a('s_add_u32 s47, s47, 1'); a(f's_branch {name}_l')

a('s_cmp_eq_u32 s44, 2')
a('s_cbranch_scc1 L_ldx')
a('s_cmp_eq_u32 s35, 1')
a('s_cbranch_scc1 L_ldc')
a('v_lshrrev_b32 v1, 4, v0')
a('v_and_b32 v2, 15, v0')
a('v_lshlrev_b32 v3, 1, v1')
a('v_xor_b32 v2, v2, v3')
a('v_lshlrev_b32 v2, 4, v2')
a(f'v_mul_u32_u24 v3, {F*2}, v1')
a('v_add_u32 v2, v2, v3')
a('s_lshl_b32 s70, s29, 8')
a('v_add_u32 v2, s70, v2')
a('s_and_b32 s70, s32, 1'); a('s_lshl_b32 s70, s70, 7')
a('v_xor_b32 v4, s70, v2')
a('v_xor_b32 v5, 128, v4')
a('s_lshl_b32 s70, s32, 11')
a('s_lshl_b32 s71, s44, 14')
for g in range(4):
    if g: a('s_add_u32 s70, s70, 2048'); a('s_and_b32 s70, s70, 0x3c00')
    a(f's_or_b32 s{PT_[4*g]}, s70, s71'); a(f's_mul_i32 s{GT_[4*g]}, s70, 12')
    a(f's_add_u32 s{PT_[4*g+2]}, s{PT_[4*g]}, 1024'); a(f's_add_u32 s{GT_[4*g+2]}, s{GT_[4*g]}, {4*F*2}')
    a('s_add_u32 s70, s70, 2048'); a('s_and_b32 s70, s70, 0x3c00')
    a(f's_or_b32 s{PT_[4*g+1]}, s70, s71'); a(f's_mul_i32 s{GT_[4*g+1]}, s70, 12')
    a(f's_add_u32 s{PT_[4*g+3]}, s{PT_[4*g+1]}, 1024'); a(f's_add_u32 s{GT_[4*g+3]}, s{GT_[4*g+1]}, {4*F*2}')
a('s_cmp_eq_u32 s44, 1')
a('s_waitcnt lgkmcnt(0)')
a('s_cselect_b32 s8, s50, s48'); a('s_cselect_b32 s9, s51, s49'); a(f's_mov_b32 s10, {D*F*2}'); a('s_mov_b32 s11, 0x00020000')
a(f's_mov_b32 s48, {64*F*2}')
if NTM: a(f's_mov_b32 s50, {NTM[0]}')
a('s_branch L_ld16')
a('L_ldx:')
a('v_lshrrev_b32 v1, 3, v0')
a('v_and_b32 v2, 7, v0')
a('v_lshrrev_b32 v3, 1, v1')
a('v_xor_b32 v2, v2, v3')
a('v_lshlrev_b32 v2, 4, v2')
a('v_lshrrev_b32 v3, 2, v1'); a('v_and_b32 v6, 3, v1'); a('v_lshl_add_u32 v3, v6, 2, v3')
XMAP = opt('xmap', 0)
if XMAP == 0:
    a('v_lshlrev_b32 v3, 7, v3'); a('v_add_u32 v3, s28, v3')
elif XMAP == 1:
    a('v_lshlrev_b32 v3, 7, v3'); a('s_lshl_b32 s70, s28, 3'); a('v_add_u32 v3, s70, v3')
else:
    a('v_lshlrev_b32 v3, 3, v3'); a('s_lshl_b32 s70, s28, 7'); a('v_add_u32 v3, s70, v3')
a(f'v_mul_u32_u24 v3, {D*2}, v3')
a('v_add_u32 v4, v2, v3')
a('v_xor_b32 v5, 64, v4'); a(f'v_add_u32 v5, {(256 if XMAP < 2 else 16)*D*2}, v5')
a('s_lshl_b32 s70, s33, 12')
for t in range(0, 16, 2):
    if t: a('s_add_u32 s70, s70, 2048'); a('s_and_b32 s70, s70, 0x3c00')
    a(f's_or_b32 s{PT_[t]}, s70, 0x8000'); a(f's_or_b32 s{PT_[t+1]}, s70, 0x8400')
    if XMAP == 0: a(f's_mul_i32 s{GT_[t]}, s70, {16*D*2//2048}')
    else: a(f's_mul_i32 s{GT_[t]}, s70, 5'); a(f's_lshr_b32 s{GT_[t]}, s{GT_[t]}, 3')
    a(f's_mov_b32 s{GT_[t+1]}, s{GT_[t]}')
a('s_waitcnt lgkmcnt(0)')
srd_from(8, 64, S*D*2)
a('s_movk_i32 s48, 128')
if NTM: a(f's_mov_b32 s50, {NTM[1]}')
a('L_ld16:')
dma_loop('L_ldw', 16)
a('L_ldc:')
a('v_lshrrev_b32 v1, 3, v0')
a('v_and_b32 v2, 7, v0')
a('v_lshrrev_b32 v3, 1, v1')
a('v_xor_b32 v2, v2, v3')
a('v_lshlrev_b32 v2, 4, v2')
a('s_mul_i32 s70, s30, 80'); a('s_add_u32 s70, s70, 1')
a('v_add_u32 v1, s70, v1')
a(f'v_mul_u32_u24 v3, {D*2}, v1')
a('v_add_u32 v2, v2, v3')
a('s_and_b32 s70, s32, 1'); a('s_lshl_b32 s70, s70, 6')
a('v_xor_b32 v4, s70, v2')
a('v_xor_b32 v5, 64, v4')
a('s_lshl_b32 s70, s32, 10')
a('s_lshl_b32 s71, s44, 14')
for t in range(10):
    if t: a('s_add_u32 s70, s70, 1024'); a('s_cmp_eq_u32 s70, 10240'); a('s_cselect_b32 s70, 0, s70')
    a(f's_or_b32 s{PT_[t]}, s70, s71'); a(f's_mul_i32 s{GT_[t]}, s70, {8*D*2//1024}')
a('s_cmp_eq_u32 s44, 1')
a('s_waitcnt lgkmcnt(0)')
a('s_cselect_b32 s8, s62, s60'); a('s_cselect_b32 s9, s63, s61'); a(f's_mov_b32 s10, {D*D*2}'); a('s_mov_b32 s11, 0x00020000')
a('s_movk_i32 s48, 128')
if NTM: a(f's_mov_b32 s50, {NTM[0]}')
dma_loop('L_ldcl', 10)

P2ACC = 176; P2W_R = 56; P2H = 8
def p2_setup():
    a('v_lshlrev_b32 v1, 4, v0')
    srd(a, 12, 58, WS_SIZE, WSOFF << 20)
    a('s_mul_i32 s70, s38, 48'); a('s_mul_i32 s71, s44, 12'); a('s_add_u32 s70, s70, s71')
    a(f's_mul_i32 s70, s70, 5120'); a(f's_add_u32 s70, s70, {WS_WDT}')
    a(f's_mul_i32 s73, s44, {P2W}')
def kidx(step):
    if EARLY < 0:
        a(f's_add_u32 s72, s39, {step}'); a('s_cmp_ge_u32 s72, 12'); a('s_cselect_b32 s71, 12, 0'); a('s_sub_u32 s72, s72, s71')
    else:
        a(f's_add_u32 s72, s39, {step % 6}'); a('s_cmp_ge_u32 s72, 6'); a('s_cselect_b32 s71, 6, 0'); a('s_sub_u32 s72, s72, s71')
        a('s_lshl_b32 s72, s72, 1')
        if step >= 6: a('s_add_u32 s72, s72, 1')
def wdt_reg(step):
    kidx(step)
    a('s_mul_i32 s72, s72, 5120'); a('s_add_u32 s72, s72, s70')
    for ei in range(5):
        r = P2W_R + 20*step + 4*ei
        if ei == 4: a('s_add_u32 s72, s72, 4096')
        a(f'buffer_load_dwordx4 v[{r}:{r+3}], v1, {WSRD}, s72 offen offset:{(ei % 4)*1024} {LDW}')
def wdt_lds(step):
    kidx(step)
    a('s_mul_i32 s72, s72, 5120'); a('s_add_u32 s72, s72, s70')
    for ei in range(5):
        a(f's_add_u32 m0, s73, {P2STEP[step-6] + ei*1024}')
        if ei: a('s_add_u32 s72, s72, 1024')
        else: a('s_nop 0')
        a(f'buffer_load_dwordx4 v1, {WSRD}, s72 offen {LDW} lds')
WD = [[0, 1], [2, 3], [4, 5], []]
def read_nonce(v):
    a(f'v_mov_b32 v{v}, {L_NON}'); a(f'ds_read_b32 v{v}, v{v}'); a('s_waitcnt lgkmcnt(0)'); a(f'v_readfirstlane_b32 s43, v{v}')
def final_addr(tau_off, d4, d5, d11, t):
    v4, v5, v6, v7, v8, v9, v10 = d4, d5, t, t+1, t+2, t+3, t+4
    a('s_lshl_b32 s66, s3, 6'); a(f's_add_u32 s66, s66, {tau_off}')
    a(f'v_add_u32 v{v4}, s66, v0')
    a(f'v_mul_u32_u24 v{v5}, 6554, v{v4}'); a(f'v_lshrrev_b32 v{v5}, 16, v{v5}')
    a(f'v_mul_u32_u24 v{v6}, 10, v{v5}'); a(f'v_sub_u32 v{v6}, v{v4}, v{v6}')
    a(f'v_lshrrev_b32 v{v7}, 4, v{v5}'); a(f'v_and_b32 v{v5}, 15, v{v5}')
    a(f'v_lshrrev_b32 v{v9}, 1, v{v6}')
    a(f'v_mov_b32 v{v10}, {PT[0]}'); a(f'v_mov_b32 v{d11}, {ST[0]}')
    for e in range(1, 5):
        a(f'v_cmp_eq_u32 vcc, {e}, v{v9}'); a(f'v_mov_b32 v{t+5}, {PT[e]}'); a(f'v_mov_b32 v{t+6}, {ST[e]}')
        a(f'v_cndmask_b32 v{v10}, v{v10}, v{t+5}, vcc'); a(f'v_cndmask_b32 v{d11}, v{d11}, v{t+6}, vcc')
    a(f'v_and_b32 v{v8}, 1, v{v6}'); a(f'v_mul_u32_u24 v{v4}, {2*PQ}, v{v8}')
    a(f'v_mul_u32_u24 v{v8}, {PN}, v{v7}'); a(f'v_add_u32 v{v4}, v{v4}, v{v8}'); a(f'v_lshl_add_u32 v{v4}, v{v5}, 4, v{v4}')
    a(f'v_add_u32 v{d11}, v{d11}, v{v4}'); a(f'v_add_u32 v{v4}, v{v10}, v{v4}')
    a(f'v_lshrrev_b32 v{v8}, 2, v{v5}'); a(f'v_and_b32 v{v5}, 3, v{v5}'); a(f'v_lshl_add_u32 v{v5}, v{v5}, 2, v{v8}')
    a(f'v_lshlrev_b32 v{v5}, 3, v{v5}'); a(f'v_add_u32 v{v5}, v{v5}, v{v7}'); a(f'v_lshlrev_b32 v{v5}, 4, v{v5}')
    a('s_lshl_b32 s66, s37, 6'); a('s_add_u32 s66, s66, s36'); a(f'v_add_u32 v{v5}, s66, v{v5}')
    a(f'v_mul_u32_u24 v{v5}, {D*2}, v{v5}'); a(f'v_lshl_add_u32 v{v5}, v{v6}, 4, v{v5}'); a('s_mul_i32 s66, s38, 160'); a(f'v_add_u32 v{v5}, s66, v{v5}')

VB0, VB1 = 128, 144
def p2h_setup():
    a('s_cmp_ge_u32 s38, 4'); a('s_cselect_b32 s55, 1, 0')
    a('s_sub_u32 s67, 16, s36'); a('s_xor_b32 s68, s37, 1')
    a('s_cmp_eq_u32 s55, 1')
    a('s_cselect_b32 s67, s67, s36'); a('s_cselect_b32 s68, s68, s37')
    a('s_and_b32 s60, s67, 3'); a('s_lshl_b32 s60, s60, 7'); a(f's_add_u32 s60, s60, {WS_FV}')
    a('s_lshl_b32 s67, s67, 1'); a('s_add_u32 s67, s67, s68'); a(f's_mul_i32 s67, s67, {VROW}'); a(f's_add_u32 s56, s67, {WS_V}')
    a('s_lshl_b32 s57, s55, 9'); a('s_sub_u32 s57, 256, s57')
def fv_addr(v, t):
    a('s_sub_u32 s66, 7, s38'); a('s_sub_u32 s67, s38, 1'); a('s_max_i32 s67, s67, 0')
    a('s_cmp_ge_u32 s38, 4'); a('s_cselect_b32 s67, s66, s67'); a('s_cselect_b32 s66, s66, s38')
    a(f'v_mov_b32 v{v}, s66'); a(f'v_mov_b32 v{t}, s67'); a(f'v_bfe_u32 v{t+1}, v0, 4, 1'); a(f'v_cmp_eq_u32 vcc, 0, v{t+1}'); a(f'v_and_b32 v{t+1}, 15, v0')
    a(f'v_cndmask_b32 v{v}, v{t}, v{v}, vcc'); a(f'v_lshlrev_b32 v{v}, 9, v{v}'); a(f'v_lshl_add_u32 v{v}, v{t+1}, 2, v{v}')
def pre_loop():
    for r in range(3):
        final_addr(256*r, FA[3*r], FA[3*r+1], FA[3*r+2], 40)
    a('s_cmp_ge_u32 s3, 2'); a('s_cselect_b32 s66, -1, 0'); a(f'v_or_b32 v{FA[7]}, s66, v{FA[7]}')
    fv_addr(VFL, 40)
    a('s_mul_i32 s66, s38, 80'); a('v_add_u32 v40, s66, v3')
    a('v_add_u32 v41, 7, v40'); a('v_sub_u32 v42, 647, v40')
    a('s_cmp_eq_u32 s55, 1'); a('s_cselect_b64 vcc, -1, 0')
    a(f'v_mul_u32_u24 v43, {4*17*2*VROW}, v2')
    a('v_cndmask_b32 v40, v41, v42, vcc')
    a('v_lshl_add_u32 v43, v40, 4, v43')
    a('s_mul_i32 s66, s3, s57'); a(f'v_add_u32 v{VA0}, s66, v43')
    a('s_lshl_b32 s66, s57, 2'); a(f'v_add_u32 v{VA4}, s66, v43')
def pre_epilogue():
    for r in range(3): a(f'buffer_load_dwordx4 v[{XR[r]}:{XR[r]+3}], v{FA[3*r+1]}, s[4:7], 0 offen {XP_}')
def v_loads():
    L = a.label('L_vl')
    a('s_mov_b32 s72, s56')
    for i in range(4):
        a(f'buffer_load_dwordx4 v[{VB0+4*i}:{VB0+3+4*i}], v{VA0}, s[12:15], s72 offen {LDH}')
        if i < 3: a(f's_add_u32 s72, s72, {17*2*VROW}')
    a('s_cmp_lg_u32 s3, 0'); a(f's_cbranch_scc1 {L}')
    a('s_mov_b32 s72, s56')
    for i in range(4):
        a(f'buffer_load_dwordx4 v[{VB1+4*i}:{VB1+3+4*i}], v{VA4}, s[12:15], s72 offen {LDH}')
        if i < 3: a(f's_add_u32 s72, s72, {17*2*VROW}')
    a(f'{L}:')

a('L_p2last:')
a('s_waitcnt vmcnt(0)')
lds_arrive(12, 2)
read_nonce(2)
p2_setup()
a('L_p2join:')
tick(7, 27)
NLATE = opt('nlate', 6)
WTOUCH = opt('wtouch', 0)
if WTOUCH:
    a('s_cmp_eq_u32 s35, 0'); a('s_cbranch_scc1 L_nwt')
    a('s_lshl_b32 s66, s32, 2'); a('s_add_u32 s66, s66, s44'); a('s_mul_i32 s66, s66, 23040')
    a('s_and_b32 s67, s38, 4'); a(f's_mul_i32 s67, s67, {48*5120}'); a('s_add_u32 s66, s66, s67'); a(f's_add_u32 s66, s66, {WS_WDT}')
    a('v_lshlrev_b32 v4, 7, v0')
    if WTOUCH == 2:
        for st in range(6): wdt_reg(st)
    for i in range(3):
        a(f'buffer_load_dword v8, v4, s[12:15], s66 offen {LDW}')
        if i < 2: a('s_add_u32 s66, s66, 8192')
    if WTOUCH == 2: a('s_branch L_p2d')
    a('L_nwt:')
for st in range(6): wdt_reg(st)
NLD = opt('nld', 2)
a('s_cmp_eq_u32 s35, 0')
a('s_cbranch_scc1 L_p2ffn')
if NLD < 6:
    for st in (6, 7): wdt_lds(st)
if NLD < 4:
    lds_wait('L_c8d', 16, 4)
    for st in (8, 9): wdt_lds(st)
a('s_branch L_p2d')
a('L_p2ffn:')
if NLATE < 6:
    for st in (6, 7): wdt_lds(st)
if NLATE < 4:
    lds_wait('L_c8', 16, 4)
    for st in (8, 9): wdt_lds(st)
if NLATE < 2:
    lds_wait('L_c9', 20, 4)
    for st in (10, 11): wdt_lds(st)
if AUXV:
    a('s_cmp_lg_u32 s44, 3'); a('s_cbranch_scc1 L_p2d')
    p2h_setup(); fv_addr(8, 9)
    a('s_mov_b32 s79, 0')
    a('L_av:')
    a('buffer_load_dword v9, v8, s[12:15], s60 offen sc1')
    a('s_waitcnt vmcnt(0)')
    a('v_cmp_ne_u32 vcc, s43, v9'); a('s_cmp_eq_u64 vcc, 0'); a('s_cbranch_scc1 L_av_ok')
    a('s_add_u32 s79, s79, 1'); a(f's_cmp_ge_u32 s79, {AUXV}'); a('s_cbranch_scc1 L_p2d')
    a('s_branch L_av')
    a('L_av_ok:')
    lds_arrive(28, 8)
a('L_p2d:')
tick(7, 28)
a(f'v_add_u32 v2, s73, v1')
a(f'v_add_u32 v3, {2*STG}, v2')
a('v_min_u32 v4, 5, v0'); a('v_lshrrev_b32 v5, 1, v4'); a('v_and_b32 v4, 1, v4'); a('v_lshlrev_b32 v4, 2, v4'); a('v_lshl_add_u32 v6, v5, 4, v4')
a('s_lshl_b32 s76, s36, 8'); a('s_mul_i32 s77, s44, 48'); a('s_add_u32 s76, s76, s77'); a('s_lshl_b32 s77, s37, 3'); a('s_add_u32 s76, s76, s77'); a(f's_add_u32 s76, s76, {WS_FH}')
a('s_lshl_b32 s74, s36, 3'); a('s_lshl_b32 s75, s37, 2'); a('s_add_u32 s74, s74, s75')
a('s_mul_i32 s74, s74, 48'); a('s_mul_i32 s75, s44, 12'); a('s_add_u32 s74, s74, s75'); a('s_lshl_b32 s74, s74, 10')
for i in range(80): a(f'v_mov_b32 v{P2ACC+i}, 0')
lds_wait('L_own', 0, 4, 5 if SENT else 4)
tick(7, 29)
stamp(2)
if TONE:
    a('s_cmp_eq_u32 s35, 0'); a('s_cbranch_scc1 L_p2f')
    for st in range(6, 12 - NLATE): wdt_lds(st)
    a('L_p2f:')
    for st in range(12 - NLATE, 12): wdt_lds(st)
    if HDLY: a(f's_sleep {HDLY}')

tick(7, 32)
def hsoff(step):
    kidx(step)
    a('s_lshl_b32 s72, s72, 10'); a(f's_add_u32 s72, s72, s74')
    if SENT: a(f's_mov_b32 s{66 + step % 4}, s72')
def hld(step, ni):
    r = P2H + 16*(step % 3) + 4*ni
    L = []
    if ni: L.append(f's_add_u32 s72, s72, {48*1024}')
    L.append(f'buffer_load_dwordx4 v[{r}:{r+3}], v1, {HSRD}, s72 offen {LDH}')
    return L
def hpoll(name, kp):
    spin_begin(name)
    a(f'buffer_load_dword v4, v6, s[12:15], s76 offen sc1')
    a('s_waitcnt vmcnt(0)')
    a(f'v_cmp_ne_u32 vcc, s43, v{4+kp}')
    a('s_cmp_eq_u64 vcc, 0')
    spin_end(name)
if not SENT: hpoll('L_pollh0', 0)
else: a('s_waitcnt vmcnt(0)'); a('s_mov_b32 s79, 0')
if VGO:
    a(f'v_mov_b32 v4, {L_CNT}'); a('v_mov_b32 v5, 1'); a('ds_write_b32 v4, v5 offset:40')
stamp(3)
tick(7, 33)
for st in range(3):
    hsoff(st)
    for ni in range(4):
        for ins in hld(st, ni): a(ins)
def pwrite(ni):
    return [f'ds_write_b128 v{2 if PT[ei] < 2*STG else 3}, v[{P2ACC+16*ei+4*ni}:{P2ACC+16*ei+4*ni+3}] offset:{PT[ei] + ni*PN - (0 if PT[ei] < 2*STG else 2*STG)}' for ei in range(5)]
for st in range(12):
    rem = min(2, 11 - st)
    RDD = opt('rdd', 2)
    if st == 6 - RDD: lds_wait('L_lw', 36, 4)
    if st < 9: hsoff(st + 3)
    if st == 11:
        a('v_and_b32 v2, 15, v0'); a('v_lshrrev_b32 v4, 4, v0')
        a(f'v_mul_u32_u24 v4, {PQ}, v4'); a('v_lshl_add_u32 v2, v2, 4, v4'); a('v_add_u32 v2, s73, v2'); a(f'v_add_u32 v3, {2*STG}, v2')
    a(f's_waitcnt vmcnt({4*rem})' + (' lgkmcnt(0)' if st >= 6 else ''))
    hb = P2H + 16*(st % 3)
    if SENT:
        a(f'L_hchk{st}:')
        a(f'v_max_u32 v4, v{hb}, v{hb+4}'); a(f'v_max3_u32 v4, v{hb+8}, v{hb+12}, v4')
        a('v_cmp_eq_u32 vcc, -1, v4'); a('s_cmp_lg_u64 vcc, 0')
        a(f's_cbranch_scc1 L_hretry{st}')
        a(f'L_hok{st}:')
    tick(7, 36 + st)
    w0 = P2W_R + 20*(st % 6)
    rd = []
    if 6 <= st + RDD <= 11:
        wr = P2W_R + 20*((st + RDD) % 6)
        for ei in range(5):
            o = P2STEP[st + RDD - 6] + ei*1024
            rd.append(f'ds_read_b128 v[{wr+4*ei}:{wr+4*ei+3}], v{2 if o < 2*STG else 3} offset:{o if o < 2*STG else o - 2*STG}')
    for ni in range(4):
        for ei in (range(5) if ni % 2 == 0 else range(4, -1, -1)):
            t = P2ACC + 16*ei + 4*ni
            h = hb + 4*ni
            a(f'v_mfma_f32_16x16x32_bf16 v[{t}:{t+3}], v[{w0+4*ei}:{w0+4*ei+3}], v[{h}:{h+3}], v[{t}:{t+3}]')
            if rd: a(rd.pop(0))
        if st < 9:
            for ins in hld(st + 3, ni): a(ins)
        if st == 11 and ni >= 2:
            for w in pwrite(ni - 2): a(w)
for w in pwrite(2): a(w)
a('s_nop 3')
for w in pwrite(3): a(w)
stamp(4)
tick(7, 48)
a('s_waitcnt lgkmcnt(0)')
a('s_barrier')
tick_dump(7, 4)
a('s_branch L_fin2')
if SENT:
    for st in range(12):
        a(f'L_hretry{st}:')
        a('s_add_u32 s79, s79, 1'); a(f's_cmp_ge_u32 s79, {SPINMAX}'); a(f's_cbranch_scc1 L_hok{st}')
        if RSL: a(f's_sleep {RSL}')
        a(f's_mov_b32 s77, s{66 + st % 4}')
        for ni in range(4):
            r = P2H + 16*(st % 3) + 4*ni
            if ni: a(f's_add_u32 s77, s77, {48*1024}')
            a(f'buffer_load_dwordx4 v[{r}:{r+3}], v1, {HSRD}, s77 offen {LDH}')
        a('s_waitcnt vmcnt(0)')
        a(f's_branch L_hchk{st}')

a('L_aux:')
if opt('aprio', 0): a(f"s_setprio {opt('aprio', 0)}")
common_srds()
AB = 248
a('v_mov_b32 v1, 0'); a(f'v_mov_b32 v3, {L_CNT}')
a('s_mov_b64 exec, 1')
a('s_cmp_lg_u32 s2, 0'); a('s_cbranch_scc1 L_aux_n0')
a('s_memrealtime s[66:67]'); a('s_waitcnt lgkmcnt(0)'); a('s_or_b32 s66, s66, 1'); a('v_mov_b32 v2, s66')
a('buffer_store_dword v2, v1, s[24:27], 0 offen sc1')
a('L_aux_n0:')
[a(f'ds_write_b32 v3, v1 offset:{4*i}') for i in range(11)]
a('s_mov_b64 exec, -1')
if CODEPF:
    a('s_getpc_b64 s[66:67]')
    a('L_pcref:')
    a(f's_sub_u32 s66, s66, L_pcref-{KNAME}'); a('s_subb_u32 s67, s67, 0')
    a('s_lshl_b32 s68, s41, 3')
    a('v_and_b32 v4, 7, v0'); a('v_add_u32 v4, s68, v4'); a('v_lshlrev_b32 v4, 7, v4')
    a(f'v_min_u32 v4, L_done-{KNAME}, v4')
    a('s_mov_b64 exec, 0xff')
    a(f'global_load_dword v{AB+7}, v4, s[66:67]')
    a('s_mov_b64 exec, -1')
if PFW:
    pf_first, pf_n0 = map(int, PFW.split(','))
    a('v_lshrrev_b32 v14, 4, v0'); a('s_mul_i32 s66, s30, 3'); a('v_add_u32 v14, s66, v14'); a('v_lshlrev_b32 v14, 8, v14')
    a('v_bfe_u32 v15, v0, 1, 3'); a('s_lshl_b32 s66, s32, 3'); a('v_add_u32 v15, s66, v15'); a(f'v_mul_u32_u24 v15, {F*2}, v15'); a('v_add_u32 v14, v14, v15')
    a('v_and_b32 v15, 1, v0'); a('v_lshl_add_u32 v14, v15, 7, v14')
    srd(a, 8, 48, D*F*2); srd(a, 52, 50, D*F*2)
    a(f's_add_u32 s64, s34, {pf_first}'); a(f's_mov_b32 s61, {pf_first}')
    def pfw():
        L = a.label('L_pf')
        a('s_cmp_eq_u32 s35, 0'); a(f's_cbranch_scc1 {L}')
        a(f"s_cmp_ge_u32 s61, {opt('pfl', 5)}"); a(f's_cbranch_scc1 {L}')
        a('s_cmp_ge_u32 s64, 10'); a('s_cselect_b32 s66, 10, 0'); a('s_sub_u32 s64, s64, s66'); a(f's_mul_i32 s66, s64, {64*F*2}')
        a('s_mov_b32 exec_hi, 0xffff')
        a(f'buffer_load_dword v15, v14, s[8:11], s66 offen {PFP}'); a(f'buffer_load_dword v15, v14, s[52:55], s66 offen {PFP}')
        a('s_mov_b64 exec, -1')
        a('s_add_u32 s64, s64, 1'); a('s_add_u32 s61, s61, 1')
        a(f'{L}:')
    for _ in range(pf_n0): pfw()
else:
    def pfw(): pass
for i in range(48, 56): a(f'v_mov_b32 v{i}, 0')
a('v_lshrrev_b32 v4, 2, v0'); a('v_and_b32 v5, 3, v4'); a('v_bfe_u32 v6, v4, 3, 1'); a('v_lshl_or_b32 v5, v6, 2, v5'); a('v_lshlrev_b32 v5, 1, v5')
a('s_and_b32 s66, s32, 3'); a('s_lshl_b32 s66, s66, 2')
a('v_and_b32 v6, 3, v0'); a('v_add_u32 v6, s66, v6'); a('v_xor_b32 v5, v5, v6')
a('v_lshlrev_b32 v4, 8, v4'); a(f'v_lshl_add_u32 v{AB+1}, v5, 4, v4')
a('s_lshr_b32 s66, s32, 2'); a('s_lshl_b32 s66, s66, 14'); a(f'v_add_u32 v{AB+1}, s66, v{AB+1}')
a('s_cmp_eq_u32 s35, 0'); a('s_cbranch_scc1 L_aux_w')
a('s_and_b32 s67, s32, 3'); a(f's_mul_i32 s67, s67, {20*128}'); a('s_add_u32 s66, s66, s67')
a(f'v_lshlrev_b32 v{AB+1}, 4, v0'); a(f'v_add_u32 v{AB+1}, s66, v{AB+1}')
a('L_aux_w:')
a('s_mov_b32 s46, 0')
a('s_lshl_b32 s77, s29, 1'); a('s_add_u32 s77, s77, s31'); a('s_lshl_b32 s77, s77, 11'); a('s_lshr_b32 s67, s32, 2'); a('s_lshl_b32 s67, s67, 10'); a('s_add_u32 s77, s77, s67'); a(f's_add_u32 s77, s77, {WS_WP}')
a('s_and_b32 s67, s32, 3'); a('s_cmp_eq_u32 s35, 1'); a('s_cselect_b32 s68, 20, 32'); a('s_mul_i32 s67, s67, s68'); a('s_lshl_b32 s67, s67, 3'); a('s_add_u32 s77, s77, s67')
a(f'v_min_u32 v{AB+6}, 47, v0'); a(f'v_lshlrev_b32 v{AB+6}, 2, v{AB+6}')
a('s_mul_i32 s74, s38, 80'); a('s_add_u32 s75, s74, 79'); a('s_lshr_b32 s74, s74, 7'); a('s_lshr_b32 s75, s75, 7')
a('s_lshl_b32 s74, s74, 8'); a('s_lshl_b32 s75, s75, 8'); a(f's_add_u32 s74, s74, {WS_FW}'); a(f's_add_u32 s75, s75, {WS_FW}')
if SENT:
    for i in range(4): a(f'v_mov_b32 v{8+i}, -1')
    a('v_lshlrev_b32 v12, 4, v0')
    a(f's_mul_i32 s76, s28, {8*48*1024}')
    if RDFT: a('s_mul_i32 s67, s30, 12288')
    else: a('s_lshl_b32 s67, s29, 12')
    a('s_add_u32 s76, s76, s67')
a('s_mov_b32 s47, 0')
a('s_waitcnt lgkmcnt(0)')
a('L_aux_l:')
tick(7, ('s47', 0))
a('s_barrier')
tick(7, ('s47', 16))
pfw()
a(f'v_add_u32 v{AB+3}, s46, v{AB+1}')
a(f's_cmp_lg_u32 s47, {NONIT-1}'); a('s_cbranch_scc1 L_aux_nb')
a('s_mov_b64 exec, 1'); a('buffer_load_dword v2, v1, s[24:27], 0 offen sc1'); a('s_mov_b64 exec, -1')
a('L_aux_nb:')
a(f's_cmp_lg_u32 s47, {NONIT}'); a('s_cbranch_scc1 L_aux_na')
a('s_mov_b32 s79, 0')
a('L_non:')
a('s_waitcnt vmcnt(0)')
a('v_readfirstlane_b32 s43, v2')
a('s_cmp_lg_u32 s43, 0'); a('s_cbranch_scc1 L_non_ok')
a('s_add_u32 s79, s79, 1'); a(f's_cmp_ge_u32 s79, {SPINMAX}'); a('s_cbranch_scc1 L_non_ok')
a('s_sleep 4')
a('s_mov_b64 exec, 1'); a('buffer_load_dword v2, v1, s[24:27], 0 offen sc1'); a('s_mov_b64 exec, -1')
a('s_branch L_non')
a('L_non_ok:')
a('v_mov_b32 v2, s43'); a(f'v_mov_b32 v3, {L_NON}'); a('ds_write_b32 v3, v2')
a('s_cmp_ge_u32 s2, 240'); a('s_cbranch_scc1 L_aux_na')
a(f's_mul_hi_u32 s66, s2, {-(-(1<<32)//5)}'); a('s_mul_i32 s67, s66, 5'); a('s_sub_u32 s67, s2, s67')
a('s_lshl_b32 s67, s67, 8'); a('s_lshl_b32 s66, s66, 2'); a('s_add_u32 s66, s66, s67'); a(f's_add_u32 s66, s66, {WS_FW}')
a('s_mov_b64 exec, 1'); a('buffer_store_dword v2, v1, s[12:15], s66 offen sc1'); a('s_mov_b64 exec, -1')
a('L_aux_na:')
def fw_ask():
    a(f'buffer_load_dword v{AB+2}, v{AB+6}, s[12:15], s74 offen sc1'); a(f'buffer_load_dword v{AB+3}, v{AB+6}, s[12:15], s75 offen sc1')
def fw_ask2():
    a(f'buffer_load_dword v62, v{AB+6}, s[12:15], s74 offen sc1'); a(f'buffer_load_dword v63, v{AB+6}, s[12:15], s75 offen sc1')
def fw_check(nm):
    a('s_mov_b32 s79, 0')
    a(f'{nm}:')
    a('s_waitcnt vmcnt(0)')
    a('v_cmp_ne_u32 vcc, s43, v62'); a('v_cmp_ne_u32 s[66:67], s43, v63'); a('s_or_b64 vcc, vcc, s[66:67]')
    a(f's_cbranch_scc0 {nm}_ok')
    a('s_add_u32 s79, s79, 1'); a(f's_cmp_ge_u32 s79, {SPINMAX}'); a(f's_cbranch_scc1 {nm}_ok')
    a('s_sleep 4')
    fw_ask2()
    a(f's_branch {nm}')
    a(f'{nm}_ok:')

T0, T1 = AB + 4, AB + 5
if SENT:
    RS0 = opt('rs0', 4)
    def resets(n):
        L = a.label('L_rs')
        a(f's_cmp_eq_u32 s35, {0 if RDFT else 1}'); a(f's_cbranch_scc1 {L}')
        if RDFT:
            for t in range(n // 12):
                for g in range(3):
                    for i in range(4): a(f'buffer_store_dwordx4 v[8:11], v12, s[12:15], s76 offen offset:{i*1024} sc1')
                    a(f's_add_u32 s76, s76, {4096 if g < 2 else 48*1024 - 8192}')
        else:
            for i in range(n):
                a(f'buffer_store_dwordx4 v[8:11], v12, s[12:15], s76 offen offset:{(i % 4)*1024} sc1')
                if i % 4 == 3: a(f's_add_u32 s76, s76, {48*1024}')
        a(f'{L}:')
    a(f's_cmp_lt_u32 s47, {RS0}'); a('s_cbranch_scc1 L_aux_nr')
    resets(12 if RDFT else 8)
    a('L_aux_nr:')
a('s_cmp_eq_u32 s35, 1'); a('s_cbranch_scc1 L_aux_c')
for i in range(4): a(f'ds_read_b128 v[{24+4*i}:{27+4*i}], v{AB+3} offset:{i*4096}')
a('s_waitcnt lgkmcnt(0)')
for i in range(4):
    for d in range(4):
        r = 24 + 4*i + d
        a(f'v_lshlrev_b32 v{T0}, 16, v{r}'); a(f'v_and_b32 v{T1}, 0xffff0000, v{r}')
        a(f'v_add_f32 v{48+2*d}, v{48+2*d}, v{T0}'); a(f'v_add_f32 v{49+2*d}, v{49+2*d}, v{T1}')
a('s_branch L_aux_x')
a('L_aux_c:')
for i in range(3): a(f'ds_read_b128 v[{24+4*i}:{27+4*i}], v{AB+3} offset:{i*1024}')
a('s_waitcnt lgkmcnt(0)')
for i in range(3):
    for d in range(4):
        r = 24 + 4*i + d
        a(f'v_lshlrev_b32 v{T0}, 16, v{r}'); a(f'v_and_b32 v{T1}, 0xffff0000, v{r}')
        a(f'v_add_f32 v{48+2*i}, v{48+2*i}, v{T0}'); a(f'v_add_f32 v{49+2*i}, v{49+2*i}, v{T1}')
a('L_aux_x:')
a(f's_add_u32 s46, s46, {STG}'); a(f's_cmp_eq_u32 s46, {3*STG}'); a('s_cselect_b32 s46, 0, s46')
a('s_add_u32 s47, s47, 1'); a('s_cmp_lt_u32 s47, 5'); a('s_cbranch_scc1 L_aux_l')
tick(7, 5)
a('s_barrier')
tick(7, 21)
pfw()
if RDFT: resets(12*(RS0 + 3 - (RS0 + 3)//2))
elif RS0 >= 2: resets(12 if RS0 == 4 else 8)
p2_setup()
def red8(regs):
    for mod in ('quad_perm:[1,0,3,2]', 'quad_perm:[2,3,0,1]', 'row_half_mirror'):
        a('s_nop 1')
        for r in regs: a(f'v_add_f32_dpp v{r}, v{r}, v{r} {mod} row_mask:0xf bank_mask:0xf')
a('s_cmp_eq_u32 s35, 1'); a('s_cbranch_scc1 L_aux_pc')
for mod in ('row_ror:4', 'row_ror:8'):
    a('s_nop 1')
    for r in range(48, 56): a(f'v_add_f32_dpp v{r}, v{r}, v{r} {mod} row_mask:0xf bank_mask:0xf')
for sw in ('v_permlane16_swap_b32', 'v_permlane32_swap_b32'):
    for r in range(48, 56): a(f'v_mov_b32 v{r-24}, v{r}')
    a('s_nop 1')
    for r in range(48, 56): a(f'{sw} v{r}, v{r-24}')
    a('s_nop 1')
    for r in range(48, 56): a(f'v_add_f32 v{r}, v{r}, v{r-24}')
for d in range(4):
    a(f'v_cmp_eq_u32 vcc, {d}, v6') if d else a('v_lshrrev_b32 v6, 2, v0')
    if d == 0:
        a('v_mov_b32 v24, v48'); a('v_mov_b32 v26, v49')
    else:
        a('s_nop 1'); a(f'v_cndmask_b32 v24, v24, v{48+2*d}, vcc'); a(f'v_cndmask_b32 v26, v26, v{49+2*d}, vcc')
a('v_mov_b32 v25, s43'); a('v_mov_b32 v27, s43')
a('v_and_b32 v4, 3, v0'); a('v_lshlrev_b32 v4, 6, v4'); a('v_lshl_add_u32 v4, v6, 4, v4')
a('s_mov_b64 exec, 0xffff')
a('buffer_store_dwordx4 v[24:27], v4, s[12:15], s77 offen sc1')
a('s_branch L_aux_pub')
a('L_aux_pc:')
for i in range(3): a(f'v_add_f32 v{48+i*2}, v{48+i*2}, v{49+i*2}')
red8([48, 50, 52])
for i in range(3): a(f'v_mov_b32 v{49+i*2}, s43')
a('s_mov_b32 exec_lo, 0x01010101'); a('s_mov_b32 exec_hi, 0x01010101')
a('buffer_store_dwordx2 v[48:49], v0, s[12:15], s77 offen sc1')
a('buffer_store_dwordx2 v[50:51], v0, s[12:15], s77 offen offset:64 sc1')
a('s_mov_b32 exec_hi, 0')
a('buffer_store_dwordx2 v[52:53], v0, s[12:15], s77 offen offset:128 sc1')
a('L_aux_pub:')
a('s_mov_b64 exec, -1')
tick(7, 6)
a('s_barrier')
tick(7, 22)
pfw()
if RDFT: resets(12*((RS0 + 3)//2))
elif RS0 >= 3: resets(12 if RS0 == 4 else 8)
fw_ask2()
tick(7, 7)
a('s_barrier')
tick(7, 23)
fw_check('L_pollwf')
if SENT:
    a('s_lshl_b32 s66, s28, 8'); a('s_lshl_b32 s67, s29, 2'); a('s_add_u32 s66, s66, s67'); a(f's_add_u32 s66, s66, {WS_FH}')
    a('v_mov_b32 v4, s43'); a('v_mov_b32 v5, 0')
    a('s_waitcnt vmcnt(0)')
    a('s_mov_b64 exec, 1'); a('buffer_store_dword v4, v5, s[12:15], s66 offen sc1'); a('s_mov_b64 exec, -1')
a('s_lshl_b32 s66, s28, 13'); a(f's_add_u32 s66, s66, {WS_XP}'); a('s_add_u32 s68, s66, 4096')
a('s_lshl_b32 s67, s29, 12'); a(f's_add_u32 s67, s67, {WS_WP}')
def gather():
    for i in range(8): a(f'buffer_load_dwordx4 v[{8+4*i}:{11+4*i}], v1, s[12:15], s{66 if i < 4 else 68} offen offset:{(i%4)*1024} sc1')
    for i in range(4): a(f'buffer_load_dwordx4 v[{40+4*i}:{43+4*i}], v1, s[12:15], s67 offen offset:{i*1024} sc1')
    a(f'buffer_load_dword v{AB+1}, v{AB}, s[12:15], s65 offen sc1')
a(f's_mov_b32 s65, {WS_FH}')
if RDFT:
    a(f'v_and_b32 v{AB}, 3, v0'); a(f'v_lshlrev_b32 v{AB}, 2, v{AB}'); a('s_lshl_b32 s69, s36, 8'); a('s_add_u32 s69, s69, 48'); a(f'v_add_u32 v{AB}, s69, v{AB}')
    a('s_lshl_b32 s69, s28, 8'); a('s_lshl_b32 s64, s30, 2'); a('s_add_u32 s69, s69, s64'); a('s_add_u32 s69, s69, 48'); a('v_mov_b32 v4, s69')
    a('v_cmp_gt_u32 vcc, 16, v0'); a('s_nop 1'); a(f'v_cndmask_b32 v{AB}, v4, v{AB}, vcc')
else:
    a(f'v_min_u32 v{AB}, 11, v0'); a(f'v_lshlrev_b32 v{AB}, 2, v{AB}'); a('s_lshl_b32 s69, s36, 8'); a(f'v_add_u32 v{AB}, s69, v{AB}')
gather()
a('s_cmp_eq_u32 s35, 1'); a('s_cselect_b32 s69, 40, 64'); a('v_cmp_gt_u32 s[76:77], s69, v0')
tick(7, 8)
a('s_barrier')
tick(7, 24)
a('s_mov_b32 s79, 0')
a('s_waitcnt vmcnt(0)')
a('L_gchk:')
a(f'v_xor_b32 v2, s43, v{AB+1}'); a('s_sub_u32 s64, s35, 1' if RDFT else 's_mov_b32 s64, 0'); a('v_and_b32 v2, s64, v2')
for i in range(0, 8): a(f'v_xor_b32 v3, s43, v{10+4*i}'); a('v_or_b32 v2, v2, v3')
a('v_xor_b32 v4, s43, v41')
for r in (43, 45, 47, 49, 51, 53, 55): a(f'v_xor_b32 v3, s43, v{r}'); a('v_or_b32 v4, v4, v3')
a('v_cmp_ne_u32 vcc, 0, v4'); a('s_and_b64 s[74:75], vcc, s[76:77]')
a('v_cmp_ne_u32 vcc, 0, v2'); a('s_or_b64 s[74:75], s[74:75], vcc')
a('s_cbranch_scc0 L_gok')
a('s_add_u32 s79, s79, 1'); a(f's_cmp_ge_u32 s79, {SPINMAX}'); a('s_cbranch_scc1 L_gok')
a('s_sleep 4')
gather()
a('s_waitcnt vmcnt(0)')
a('s_branch L_gchk')
a('L_gok:')
tick(7, 9)
for h in range(2):
    for d in range(2):
        b = 8 + 4*h + d
        a(f'v_add_f32 v{b}, v{b}, v{b+8}'); a(f'v_add_f32 v{b+16}, v{b+16}, v{b+24}'); a(f'v_add_f32 v{b}, v{b}, v{b+16}')
    a(f'v_add_f32 v{40+4*h}, v{40+4*h}, v{48+4*h}'); a(f'v_add_f32 v{41+4*h}, v{42+4*h}, v{50+4*h}')
a('v_lshlrev_b32 v2, 3, v0'); a(f'v_add_u32 v2, {L_CS}, v2')
a('ds_write_b64 v2, v[40:41]'); a('ds_write_b64 v2, v[44:45] offset:512')
for (s_, q_, ro, mo) in ((8, 9, 16, 18), (12, 13, 17, 19)):
    a(f'v_mul_f32 v{mo}, {1.0/D!r}, v{s_}')
    a(f'v_mul_f32 v{q_}, {1.0/D!r}, v{q_}')
    a(f'v_fma_f32 v{q_}, -v{mo}, v{mo}, v{q_}')
    a(f'v_max_f32 v{q_}, 0, v{q_}')
    rbf(mo); rbf(q_)
    a(f'v_add_f32 v{q_}, 0x3727c5ac, v{q_}')
    rbf(q_)
    a(f'v_sqrt_f32 v{q_}, v{q_}'); a('s_nop 0')
    rbf(q_)
    a(f'v_rcp_f32 v{ro}, v{q_}')
    a(f'v_fmac_f32 v{s_}, {-float(D)!r}, v{mo}')
    a(f'v_mul_f32 v{s_}, v{s_}, v{ro}')
a('v_lshlrev_b32 v2, 2, v0'); a(f'v_add_u32 v2, {L_R}, v2')
a(f'ds_write_b32 v2, v8 offset:{L_A0 - L_R}'); a(f'ds_write_b32 v2, v12 offset:{L_A0 - L_R + 256}')
a('ds_write_b32 v2, v16'); a('ds_write_b32 v2, v17 offset:256'); a('ds_write_b32 v2, v18 offset:512'); a('ds_write_b32 v2, v19 offset:768')
lds_arrive(24, 2)
tick(7, 10)
a(f'v_cmp_ne_u32 vcc, s43, v{AB+1}'); a('s_cmp_eq_u64 vcc, 0'); a('s_cbranch_scc1 L_pollr_ok')
spin_begin('L_pollr')
a(f'buffer_load_dword v{AB+1}, v{AB}, s[12:15], s65 offen sc1')
a('s_waitcnt vmcnt(0)')
a(f'v_cmp_ne_u32 vcc, s43, v{AB+1}'); a('s_cmp_eq_u64 vcc, 0')
spin_end('L_pollr')
lds_arrive(0, 2)
if opt('aprio', 0): a('s_setprio 0')
a('s_branch L_p2join')

a('L_compute:')
common_srds()
a(f's_mov_b32 s50, {(-2*STG) & 0xffffffff}'); a(f's_mov_b32 s51, {STG}')
a('s_mov_b32 s46, 0'); a('s_mov_b32 s47, 0')
p2h_setup()
a('v_lshrrev_b32 v2, 4, v0')
a('v_and_b32 v3, 15, v0')
a('v_bfe_u32 v6, v0, 1, 3'); a('v_xor_b32 v6, v6, v2')
def wd_issue():
    Lw = a.label('L_nowd')
    a(f"s_cmp_ge_u32 s2, {0 if opt('nowd', 0) else 240}")
    a(f's_cbranch_scc1 {Lw}')
    a(f's_mul_hi_u32 s76, s2, {-(-(1<<32)//5)}'); a('s_mul_i32 s77, s76, 5'); a('s_sub_u32 s77, s2, s77')
    a('v_lshrrev_b32 v36, 2, v0'); a('v_and_b32 v37, 3, v0')
    a(f'v_mul_u32_u24 v38, {D*2}, v36'); a('v_lshl_add_u32 v38, v37, 4, v38')
    a(f's_mul_i32 s68, s76, {32*D*2}'); a('s_lshl_b32 s69, s77, 8'); a('s_add_u32 s68, s68, s69'); a('s_lshl_b32 s69, s3, 6'); a('s_add_u32 s68, s68, s69')
    a('s_lshl_b32 s70, s3, 11'); a(f's_add_u32 s70, s70, {L_WD}')
    a('s_mov_b32 m0, s70'); a('s_nop 0')
    a(f'buffer_load_dwordx4 v38, s[20:23], s68 offen {WP_} lds')
    a('s_add_u32 m0, s70, 1024'); a(f's_add_u32 s68, s68, {16*D*2}')
    a(f'buffer_load_dwordx4 v38, s[20:23], s68 offen {WP_} lds')
    a(f'{Lw}:')
WDL = opt('wdlate', 1)
if WDL == 0: wd_issue()
def wd_finish():
    if WDL == 2: wd_issue()
    L = a.label('L_wdf')
    a(f"s_cmp_ge_u32 s2, {0 if opt('nowd', 0) else 240}"); a(f's_cbranch_scc1 {L}')
    a('v_lshlrev_b32 v36, 6, v36'); a('v_lshl_add_u32 v36, v37, 3, v36'); a('v_add_u32 v36, s70, v36')
    a('v_lshlrev_b32 v37, 4, v0')
    a('s_lshl_b32 s77, s77, 3'); a('s_lshl_b32 s68, s3, 1'); a('s_add_u32 s77, s77, s68')
    a(f's_mul_i32 s76, s76, 5120'); a(f's_add_u32 s76, s76, {WS_WDT}')
    a('s_waitcnt vmcnt(0)')
    for e in range(2):
        for b in range(2):
            a(f'ds_read_b64_tr_b16 v[{48+4*e+2*b}:{49+4*e+2*b}], v36 offset:{32*e + 1024*b}')
    for e in range(2):
        a(f's_add_u32 s68, s77, {e}')
        a(f's_mul_hi_u32 s69, s68, {-(-(1<<32)//5)}')
        a('s_mul_i32 s70, s69, 5'); a('s_sub_u32 s70, s68, s70')
        a(f's_mul_i32 s69, s69, {48*5120}'); a('s_lshl_b32 s70, s70, 10')
        a('s_add_u32 s69, s69, s70'); a('s_add_u32 s69, s69, s76')
        a('s_waitcnt lgkmcnt(0)')
        a(f'buffer_store_dwordx4 v[{48+4*e}:{51+4*e}], v37, s[12:15], s69 offen sc1')
    a(f'{L}:')
pre_loop()
if WDL == 1: wd_issue()
a('s_cmp_eq_u32 s35, 1')
a('s_cbranch_scc1 L_dft')
def interleave(M, R):
    out = []; R = list(R)
    for m in M:
        out.append(m)
        if R: out.append(R.pop(0))
    return out + R
tails = []
def mid_sync(last):
    L = a.label('L_ms')
    a('s_cmp_ge_u32 s47, 8'); a(f's_cbranch_scc1 {L}_t')
    a('s_barrier')
    a(f'{L}_b:')
    tails.append((L, last))
CNTRD = 'ds_read2_b32 v[14:15], v6 offset0:3 offset1:6'
def emit_tails():
    for L, last in tails:
        a(f'{L}_t:')
        a('s_mov_b64 exec, 1')
        a('s_cmp_eq_u32 s47, 9'); a(f's_cbranch_scc1 {L}_9')
        a('ds_add_u32 v6, v5 offset:16')
        a('s_mov_b64 exec, -1')
        a('v_readfirstlane_b32 s78, v14')
        a('s_cmp_ge_u32 s78, 3'); a(f's_cbranch_scc1 {L}_b')
        lds_wait(f'{L}_w', 12, 14, 3)
        a(f's_branch {L}_b')
        a(f'{L}_9:')
        a('ds_add_u32 v6, v5 offset:20')
        a('s_mov_b64 exec, -1')
        a(f's_branch {last}')
def stats_wait(name):
    a('v_readfirstlane_b32 s78, v15')
    a('s_cmp_ge_u32 s78, 1'); a(f's_cbranch_scc1 {name}_ok')
    lds_wait(name, 24, 14, 1)
def slot_advance():
    a('s_add_u32 s46, s46, 1'); a('s_cmp_eq_u32 s46, 3'); a('s_cselect_b32 s42, s50, s51'); a('s_cselect_b32 s46, 0, s46')
ACC = 128
def T16(mat, mi, ni): return ACC + 64*mat + 16*mi + 4*ni
FR = 32
def fW(p, mat, mi): return FR + 48*p + 16*mat + 4*mi
def fX(p, ni): return FR + 48*p + 32 + 4*ni
AW, AX = 8, 12
a('s_and_b32 s44, s3, 1'); a('s_lshr_b32 s45, s3, 1')
SPF = opts.get('spf', '')
if SPF:
    a('s_load_dwordx4 s[80:83], s[0:1], 48') if STAMPS == 0 else a('s_load_dwordx4 s[72:75], s[0:1], 48')
    wb = 80 if STAMPS == 0 else 72
    a('s_waitcnt lgkmcnt(0)')
    a('s_cmp_ge_u32 s3, 2'); a('s_cbranch_scc1 L_spx')
    a('s_cmp_eq_u32 s3, 1'); a(f's_cselect_b32 s62, s{wb+2}, s{wb}'); a(f's_cselect_b32 s63, s{wb+3}, s{wb+1}')
    a(f's_mul_i32 s66, s32, {8*F*2}'); a('s_lshl_b32 s67, s29, 8'); a('s_add_u32 s66, s66, s67'); a('s_add_u32 s62, s62, s66'); a('s_addc_u32 s63, s63, 0')
    for dc in map(int, SPF.split(',')):
        a(f's_add_u32 s66, s34, {dc}'); a('s_cmp_ge_u32 s66, 10'); a('s_cselect_b32 s67, 10, 0'); a('s_sub_u32 s66, s66, s67'); a(f's_mul_i32 s66, s66, {64*F*2}')
        a('s_add_u32 s52, s62, s66'); a('s_addc_u32 s53, s63, 0')
        for i in range(16): a(f's_load_dword s54, s[52:53], {(i >> 1)*F*2 + (i & 1)*128}')
    a('s_branch L_spd')
    a('L_spx:')
    a('s_lshl_b32 s66, s33, 1'); a('s_add_u32 s66, s66, s44'); a('s_lshl_b32 s66, s66, 4'); a('s_add_u32 s66, s66, s28'); a(f's_mul_i32 s66, s66, {D*2}')
    a(f's_add_u32 s66, s66, {4*128*D*2}'); a('s_add_u32 s62, s64, s66'); a('s_addc_u32 s63, s65, 0')
    for dc in map(int, SPF.split(',')):
        a(f's_add_u32 s66, s34, {dc}'); a('s_cmp_ge_u32 s66, 10'); a('s_cselect_b32 s67, 10, 0'); a('s_sub_u32 s66, s66, s67'); a('s_lshl_b32 s66, s66, 7')
        a('s_add_u32 s52, s62, s66'); a('s_addc_u32 s53, s63, 0')
        for i in range(8): a(f's_load_dword s54, s[52:53], {(i-4)*128*D*2}')
        a(f's_add_u32 s52, s52, {8*128*D*2}'); a('s_addc_u32 s53, s53, 0')
        for i in range(8): a(f's_load_dword s54, s[52:53], {(i-4)*128*D*2}')
    a('L_spd:')
a('v_bfe_u32 v7, v0, 2, 2')
a('v_lshl_add_u32 v4, v2, 3, v7'); a('v_lshlrev_b32 v4, 8, v4')
a('v_bfe_u32 v5, v0, 1, 1'); a('v_lshl_add_u32 v4, v5, 4, v4')
a('v_and_b32 v5, 1, v0'); a('v_lshl_add_u32 v4, v5, 3, v4')
a('v_and_b32 v5, 1, v2'); a('v_lshl_or_b32 v5, v5, 2, v7')
for mi in range(4):
    a('s_lshl_b32 s66, s44, 2'); a(f's_add_u32 s66, s66, {mi}')
    a('v_xor_b32 v7, s66, v5')
    a(f'v_lshl_add_u32 v{AW+mi}, v7, 5, v4')
a('s_lshl_b32 s66, s45, 13'); a('s_add_u32 s66, s66, 32768')
a('v_lshlrev_b32 v5, 7, v3'); a('v_add_u32 v5, s66, v5')
for ks in range(2):
    a(f'v_xor_b32 v7, {4*ks}, v6')
    a(f'v_lshl_add_u32 v{AX+ks}, v7, 4, v5')
for i in range(128): a(f'v_mov_b32 v{ACC+i}, 0')
def f_reads(p, ks):
    L = []
    def w(mat, mi):
        for b in range(2):
            L.append(f'ds_read_b64_tr_b16 v[{fW(p,mat,mi)+2*b}:{fW(p,mat,mi)+2*b+1}], v{AW+mi} offset:{mat*16384 + ks*8192 + b*1024}')
    w(0, 0)
    for ni in range(4): L.append(f'ds_read_b128 v[{fX(p,ni)}:{fX(p,ni)+3}], v{AX+ks} offset:{ni*2048}')
    for mat in range(2):
        for mi in range(4):
            if (mat, mi) != (0, 0): w(mat, mi)
    return L
def f_mfmas(p):
    L = []
    for i, (mat, mi) in enumerate([(mat, mi) for mat in range(2) for mi in range(4)]):
        for ni in (range(4) if i % 2 == 0 else range(3, -1, -1)):
            t = T16(mat, mi, ni)
            L.append(f'v_mfma_f32_16x16x32_bf16 v[{t}:{t+3}], v[{fW(p,mat,mi)}:{fW(p,mat,mi)+3}], v[{fX(p,ni)}:{fX(p,ni)+3}], v[{t}:{t+3}]')
    return L
wd_finish()
a('v_mov_b32 v5, 1'); a(f'v_mov_b32 v6, {L_CNT}')
tick(7, 0)
a('s_barrier')
tick(7, 16)
stamp(1)
for r in f_reads(0, 0): a(r)
a('L_floop:')
a('s_waitcnt lgkmcnt(0)')
UPD = ['s_add_u32 s46, s46, 1', 's_cmp_eq_u32 s46, 3', 's_cselect_b32 s42, s50, s51', 's_cselect_b32 s46, 0, s46'] + [f'v_add_u32 v{r}, s42, v{r}' for r in (AW, AW+1, AW+2, AW+3, AX, AX+1)]
for ins in interleave(f_mfmas(0), f_reads(1, 1) + [CNTRD] + UPD): a(ins)
a('s_waitcnt vmcnt(0) lgkmcnt(0)')
tick(7, ('s47', 1))
mid_sync('L_flast')
tick(7, ('s47', 17))
for ins in interleave(f_mfmas(1), f_reads(0, 0) + ['s_add_u32 s47, s47, 1']): a(ins)
a('s_branch L_floop')
a('L_flast:')
pre_epilogue()
stats_wait('L_fst')
tick(7, 40)
CSB = 48
P = []
P += ['s_lshl_b32 s66, s45, 8', f's_add_u32 s66, s66, {L_R}', 'v_lshlrev_b32 v4, 2, v3', 'v_add_u32 v4, s66, v4']
for ni in range(4):
    P += [f'ds_read_b32 v{40+ni}, v4 offset:{64*ni}', f'ds_read_b32 v{44+ni}, v4 offset:{512 + 64*ni}']
P += [f'v_mov_b32 v10, {L_CNT}', 'ds_read_b32 v8, v10 offset:32']
P += ['s_lshl_b32 s66, s44, 8', f's_add_u32 s66, s66, {L_CS}', 'v_lshlrev_b32 v5, 4, v2', 'v_add_u32 v5, s66, v5']
for mat in range(2):
    for mi in range(4):
        r = CSB + 16*mat + 4*mi
        P.append(f'ds_read_b128 v[{r}:{r+3}], v5 offset:{mat*512 + mi*64}')
P += ['v_lshlrev_b32 v1, 4, v0', 'v_mov_b32 v9, 0']
P += ['s_lshl_b32 s66, s28, 3', 's_lshl_b32 s67, s45, 2', 's_add_u32 s66, s66, s67', 's_mul_i32 s66, s66, 48',
      's_lshl_b32 s67, s29, 2', 's_add_u32 s66, s66, s67', 's_lshl_b32 s67, s44, 1', 's_add_u32 s66, s66, s67', 's_lshl_b32 s66, s66, 10']
P += ['s_lshl_b32 s70, s28, 8', 's_lshl_b32 s71, s29, 4', 's_add_u32 s70, s70, s71', 's_lshl_b32 s71, s3, 2', 's_add_u32 s70, s70, s71', f's_add_u32 s70, s70, {WS_FH}']
M = f_mfmas(1)
for i, m in enumerate(M):
    a(m)
    for _ in range(2):
        if P: a(P.pop(0))
for x_ in P: a(x_)
stamp(2)
a('s_waitcnt lgkmcnt(0)')
a('v_readfirstlane_b32 s43, v8')
for ni in range(4):
    c = 80 + 6*ni
    a(f'v_sub_f32 v{c}, 0, v{44+ni}')
    a(f'v_mul_f32 v{c+2}, {-1.4426950408889634!r}, v{40+ni}')
    a(f'v_mul_f32 v{c+4}, v{40+ni}, v{40+ni}')
for ni in range(4): a(f'v_rcp_f32 v{84+6*ni}, v{84+6*ni}')
tick(7, 42)
BC = 'op_sel_hi:[1,0,1]'
for ni in range(1, 4): a(f's_add_u32 s{66+ni}, s{65+ni}, {48*1024}')
for kp in range(2):
    for ni in range(4):
        if kp == 1 and ni == VCHK - 1: a('ds_read_b32 v11, v10 offset:28')
        if kp == 1 and ni == VCHK:
            a('s_waitcnt lgkmcnt(0)'); a('v_readfirstlane_b32 s79, v11')
            a('s_cmp_lg_u32 s79, 1'); a('s_cbranch_scc1 L_fnov')
            v_loads()
            a('L_fnov:')
        c = 80 + 6*ni
        prs = [(2*kp + h, d) for h in range(2) for d in (0, 2)]
        G_ = [T16(0, mi, ni) + d for mi, d in prs]; U_ = [T16(1, mi, ni) + d for mi, d in prs]
        for n, (mi, d) in enumerate(prs): a(f'v_pk_fma_f32 v[{G_[n]}:{G_[n]+1}], v[{CSB+4*mi+d}:{CSB+1+4*mi+d}], v[{c}:{c+1}], v[{G_[n]}:{G_[n]+1}] {BC}')
        for n, (mi, d) in enumerate(prs): a(f'v_pk_fma_f32 v[{U_[n]}:{U_[n]+1}], v[{CSB+16+4*mi+d}:{CSB+17+4*mi+d}], v[{c}:{c+1}], v[{U_[n]}:{U_[n]+1}] {BC}')
        for n in range(4): a(f'v_pk_mul_f32 v[{104+2*n}:{105+2*n}], v[{G_[n]}:{G_[n]+1}], v[{c+2}:{c+3}] op_sel_hi:[1,0]')
        for n in range(4): a(f'v_pk_mul_f32 v[{G_[n]}:{G_[n]+1}], v[{G_[n]}:{G_[n]+1}], v[{U_[n]}:{U_[n]+1}]')
        for n in range(8): a(f'v_exp_f32 v{104+n}, v{104+n}')
        a('s_nop 0')
        for n in range(4): a(f'v_pk_fma_f32 v[{104+2*n}:{105+2*n}], v[{104+2*n}:{105+2*n}], v[{c+4}:{c+5}], v[{c+4}:{c+5}] op_sel_hi:[1,0,0]')
        for n in range(8): a(f'v_rcp_f32 v{104+n}, v{104+n}')
        a('s_nop 0')
        o = 112 + 4*ni
        for n in range(4): a(f'v_pk_mul_f32 v[{G_[n]}:{G_[n]+1}], v[{G_[n]}:{G_[n]+1}], v[{104+2*n}:{105+2*n}]')
        for n in range(4): a(f'v_cvt_pk_bf16_f32 v{o+n}, v{G_[n]}, v{G_[n]+1}')
        a(f'buffer_store_dwordx4 v[{o}:{o+3}], v1, s[12:15], s{66+ni} offen offset:{kp*1024} {STP}')
        if 4*kp + ni == EARLY:
            a('v_mov_b32 v12, 1'); a('s_mov_b64 exec, 1'); a('ds_add_u32 v10, v12'); a('s_mov_b64 exec, -1')
        tick(7, 43 + 4*kp + ni)
tick(7, 32)
stamp(3)
if TONE: lds_arrive(0, 4)
else: a('s_waitcnt vmcnt(0)')
if not SENT:
    a('s_mov_b64 exec, 1'); a('buffer_store_dword v8, v9, s[12:15], s70 offen sc1'); a('s_mov_b64 exec, -1')
if VCHK == 4:
    a('s_waitcnt lgkmcnt(0)'); a('v_readfirstlane_b32 s79, v11')
    a('s_cmp_lg_u32 s79, 1'); a('s_cbranch_scc1 L_fnov')
    v_loads()
    a('L_fnov:')
tick_dump(7, 4)
a('s_branch L_helper')

a('L_dft:')
DACC = 176
def TD(part, mi, et): return DACC + 40*part + 20*mi + 4*et
DFR = 40
def dX(p, mi): return DFR + 48*p + 4*mi
def dC(p, part, et): return DFR + 48*p + 8 + 20*part + 4*et
DX, DC = 8, 10
FCOS, FSIN, FNS = 136, 144, 152
a('v_lshlrev_b32 v5, 7, v3')
a('s_lshl_b32 s66, s3, 12'); a('s_add_u32 s66, s66, 32768')
for ks in range(2):
    a(f'v_xor_b32 v7, {4*ks}, v6')
    a(f'v_lshl_add_u32 v{DC+ks}, v7, 4, v5')
    a(f'v_add_u32 v{DX+ks}, s66, v{DC+ks}')
for i in range(80): a(f'v_mov_b32 v{DACC+i}, 0')
a('s_and_b32 s45, s30, 1'); a('s_sub_u32 s45, 3, s45')
a('v_lshrrev_b32 v12, 3, v3'); a('v_and_b32 v13, 7, v3'); a('v_lshlrev_b32 v13, 4, v13'); a('v_lshl_add_u32 v12, v12, 2, v13'); a('v_add_u32 v12, s3, v12')
a('v_lshlrev_b32 v13, 5, v2'); a('v_add_u32 v13, s28, v13'); a('v_cvt_f32_u32 v13, v13')
for mt in range(2):
    a(f'v_add_u32 v14, {8*mt}, v12'); a('v_cvt_f32_u32 v14, v14'); a(f'v_mul_f32 v14, {1.0/2048!r}, v14')
    for d in range(4):
        for h in range(2):
            a(f'v_add_f32 v{60+h}, {float(16*h + 128*d)!r}, v13')
            a(f'v_mul_f32 v{60+h}, v{60+h}, v14')
        a('v_cos_f32 v62, v60'); a('v_cos_f32 v63, v61'); a('v_sin_f32 v64, v60'); a('v_sin_f32 v65, v61')
        a(f'v_cvt_pk_bf16_f32 v{FCOS+4*mt+d}, v62, v63')
        a(f'v_cvt_pk_bf16_f32 v{FSIN+4*mt+d}, v64, v65')
        a(f'v_xor_b32 v{FNS+4*mt+d}, 0x80008000, v{FSIN+4*mt+d}')
def d_reads(p, ks):
    L = [f'ds_read_b128 v[{dX(p,mi)}:{dX(p,mi)+3}], v{DX+ks} offset:{mi*2048}' for mi in range(2)]
    for part in range(2):
        for et in range(5):
            L.append(f'ds_read_b128 v[{dC(p,part,et)}:{dC(p,part,et)+3}], v{DC+ks} offset:{part*16384 + et*2048}')
    return L
def d_mfmas(p):
    L = []
    i = 0
    for part in range(2):
        for et in range(5):
            for mi in ((0, 1) if i % 2 == 0 else (1, 0)):
                t = TD(part, mi, et)
                L.append(f'v_mfma_f32_16x16x32_bf16 v[{t}:{t+3}], v[{dX(p,mi)}:{dX(p,mi)+3}], v[{dC(p,part,et)}:{dC(p,part,et)+3}], v[{t}:{t+3}]')
            i += 1
    return L
wd_finish()
a('v_mov_b32 v5, 1'); a(f'v_mov_b32 v6, {L_CNT}')
for i in range(32, 36): a(f'v_mov_b32 v{i}, 0')
tick(7, 0)
a('s_barrier')
tick(7, 16)
stamp(1)
for r in d_reads(0, 0): a(r)
def xstat(p):
    L = []
    for mi in range(2):
        for d in range(4):
            r = dX(p, mi) + d; t = 36 + 2*(d & 1)
            L += [f'v_lshlrev_b32 v{t}, 16, v{r}', f'v_and_b32 v{t+1}, 0xffff0000, v{r}',
                  f'v_add_f32 v{32+2*mi}, v{32+2*mi}, v{t}', f'v_fmac_f32 v{33+2*mi}, v{t}, v{t}',
                  f'v_add_f32 v{32+2*mi}, v{32+2*mi}, v{t+1}', f'v_fmac_f32 v{33+2*mi}, v{t+1}, v{t+1}']
    return L
def interleave2(M, R, per):
    out = []; R = list(R)
    for m in M:
        out.append(m)
        for _ in range(per):
            if R: out.append(R.pop(0))
    return out + R
def dloop(name, stats):
    a(f'{name}:')
    a('s_waitcnt lgkmcnt(0)')
    for ins in interleave2(d_mfmas(0), d_reads(1, 1) + (xstat(0) if stats else [CNTRD]), 3 if stats else 1): a(ins)
    a('s_waitcnt vmcnt(0) lgkmcnt(0)' if stats else 's_waitcnt lgkmcnt(0)')
    tick(7, ('s47', 1))
    if stats: a('s_barrier')
    else: mid_sync('L_dlast')
    tick(7, ('s47', 17))
    slot_advance()
    for r in (DX, DC): a(f'v_add_u32 v{r}, s42, v{r}')
    R = d_reads(0, 0) + [f'v_add_u32 v{r}, s42, v{r}' for r in (DX+1, DC+1)]
    for ins in interleave2(d_mfmas(1), R + (xstat(1) if stats else []), 3 if stats else 1): a(ins)
    a('s_add_u32 s47, s47, 1')
    if stats: a('s_cmp_lt_u32 s47, s45'); a(f's_cbranch_scc1 {name}')
    else: a(f's_branch {name}')
dloop('L_dloopA', True)
a(f'v_mov_b32 v36, {L_NON}'); a('ds_read_b32 v14, v36')
for sw in ('v_permlane16_swap_b32', 'v_permlane32_swap_b32'):
    for r in range(32, 36): a(f'v_mov_b32 v{r+4}, v{r}')
    a('s_nop 1')
    for r in range(32, 36): a(f'{sw} v{r}, v{r+4}')
    a('s_nop 1')
    for r in range(32, 36): a(f'v_add_f32 v{r}, v{r}, v{r+4}')
a('s_lshl_b32 s66, s28, 2'); a('s_add_u32 s66, s66, s30'); a('s_lshl_b32 s66, s66, 11'); a('s_lshl_b32 s67, s3, 9'); a('s_add_u32 s66, s66, s67'); a(f's_add_u32 s66, s66, {WS_XP}')
a('v_cmp_gt_u32 vcc, 16, v0'); a('v_lshlrev_b32 v38, 4, v0')
a('s_waitcnt lgkmcnt(0)')
a('v_cndmask_b32 v12, v34, v32, vcc'); a('v_cndmask_b32 v13, v35, v33, vcc'); a('v_mov_b32 v15, v14')
a('v_readfirstlane_b32 s43, v14')
a('s_mov_b32 exec_hi, 0')
a('buffer_store_dwordx4 v[12:15], v38, s[12:15], s66 offen sc1')
a('s_mov_b64 exec, -1')
a('s_nop 0')
dloop('L_dloopB', False)
a('L_dlast:')
pre_epilogue()
stats_wait('L_dst')
tick(7, 40)
DP = []
DP.append('s_lshl_b32 s66, s3, 7'); DP.append(f's_add_u32 s66, s66, {L_R}')
DP.append('v_lshlrev_b32 v4, 4, v2'); DP.append('v_add_u32 v4, s66, v4')
for mi in range(2):
    DP.append(f'ds_read_b128 v[{40+4*mi}:{43+4*mi}], v4 offset:{64*mi}')
    DP.append(f'ds_read_b128 v[{48+4*mi}:{51+4*mi}], v4 offset:{512 + 64*mi}')
    DP.append(f'ds_read_b128 v[{160+4*mi}:{163+4*mi}], v4 offset:{L_A0 - L_R + 64*mi}')
DP.append('v_lshlrev_b32 v5, 2, v3'); DP.append(f'v_add_u32 v5, {L_CS}, v5')
for part in range(2):
    for et in range(5): DP.append(f'ds_read_b32 v{56+2*(5*part+et)}, v5 offset:{part*512 + et*64}')
DP.append('v_bfe_u32 v9, v3, 1, 2'); DP.append('v_xor_b32 v8, s3, v9'); DP.append('v_lshlrev_b32 v8, 4, v8'); DP.append('v_lshl_add_u32 v8, v3, 6, v8'); DP.append('v_lshl_add_u32 v8, v2, 2, v8')
DP.append('ds_read_b32 v14, v6 offset:20')
for ins in interleave2(d_mfmas(1), DP, 2): a(ins)
stamp(2)
a('s_waitcnt lgkmcnt(0)')
a('v_readfirstlane_b32 s78, v14')
a('s_cmp_ge_u32 s78, 4'); a('s_cbranch_scc1 L_dc9_ok')
lds_wait('L_dc9', 20, 14)
tick(7, 41)
for et in range(5):
    for mi in range(2):
        for part in range(2):
            t = TD(part, mi, et); c = 56 + 2*(5*part + et)
            for d in (0, 2):
                a(f'v_pk_fma_f32 v[{t+d}:{t+d+1}], v[{48+4*mi+d}:{49+4*mi+d}], v[{c}:{c+1}], v[{t+d}:{t+d+1}] op_sel_hi:[1,0,1] neg_lo:[1,0,0] neg_hi:[1,0,0]')
            for d in (0, 2):
                a(f'v_pk_mul_f32 v[{t+d}:{t+d+1}], v[{t+d}:{t+d+1}], v[{40+4*mi+d}:{41+4*mi+d}]')
        y = 80 + 16*mi
        for part in range(2):
            t = TD(part, mi, et)
            a(f'v_pk_add_f32 v[{y+4*part}:{y+4*part+1}], v[{t}:{t+1}], v[{t+2}:{t+3}]')
            a(f'v_pk_add_f32 v[{y+4*part+2}:{y+4*part+3}], v[{t}:{t+1}], v[{t+2}:{t+3}] neg_lo:[0,1] neg_hi:[0,1]')
        pa, qa, ra, sa, pb, qb, rb, sb = range(y, y+8); o = y + 8
        a(f'v_add_f32 v{o}, v{pa}, v{qa}'); a(f'v_add_f32 v{o+1}, v{pb}, v{qb}')
        a(f'v_add_f32 v{o+2}, v{ra}, v{sb}'); a(f'v_sub_f32 v{o+3}, v{rb}, v{sa}')
        a(f'v_sub_f32 v{o+4}, v{pa}, v{qa}'); a(f'v_sub_f32 v{o+5}, v{pb}, v{qb}')
        a(f'v_sub_f32 v{o+6}, v{ra}, v{sb}'); a(f'v_add_f32 v{o+7}, v{rb}, v{sa}')
    for cpart in range(8):
        a(f'v_cvt_pk_bf16_f32 v{112+cpart}, v{88+cpart}, v{104+cpart}')
    for cpart in range(8):
        a(f'ds_write_b32 v8, v{112+cpart} offset:{L_Z + (cpart*ZB + 16*et)*ZROW}')
a('s_cmp_lg_u32 s30, 0'); a('s_cbranch_scc1 L_z0')
for mi in range(2):
    t = 160 + 4*mi; y = 80 + 4*mi
    a(f'v_pk_add_f32 v[{y}:{y+1}], v[{t}:{t+1}], v[{t+2}:{t+3}]')
    a(f'v_pk_add_f32 v[{y+2}:{y+3}], v[{t}:{t+1}], v[{t+2}:{t+3}] neg_lo:[0,1] neg_hi:[0,1]')
    a(f'v_add_f32 v{88+mi}, v{y}, v{y+1}'); a(f'v_sub_f32 v{90+mi}, v{y}, v{y+1}')
a('v_cvt_pk_bf16_f32 v120, v88, v89'); a('v_mov_b32 v121, 0')
a('v_cvt_pk_bf16_f32 v122, v82, v86'); a('v_cvt_pk_bf16_f32 v127, v83, v87'); a('v_xor_b32 v123, 0x80008000, v127')
a('v_cvt_pk_bf16_f32 v124, v90, v91')
for cpart, r in enumerate((120, 121, 122, 123, 124, 121, 122, 127)):
    a(f'ds_write_b32 v8, v{r} offset:{L_Z + (cpart*ZB + 80)*ZROW}')
a('L_z0:')
tick(7, 42)
lds_arrive(4, 9)
lds_wait('L_zw', 4, 9)
tick(7, 43)
a('v_bfe_u32 v8, v3, 1, 2'); a('v_xor_b32 v8, v8, v2'); a('v_lshlrev_b32 v8, 4, v8'); a('v_lshl_add_u32 v8, v3, 6, v8'); a(f's_mul_i32 s66, s3, {2*ZB*ZROW}'); a('v_add_u32 v8, s66, v8')
for part in range(2):
    for et in range(5):
        r = 40 + 20*part + 4*et
        a(f'ds_read_b128 v[{r}:{r+3}], v8 offset:{L_Z + (part*ZB + 16*et)*ZROW}')
for part in range(2): a(f'ds_read_b128 v[{120+4*part}:{123+4*part}], v8 offset:{L_Z + (part*ZB + 80)*ZROW}')
lds_arrive(8, 9)
tick(7, 44)
def VR(mt, et): return DACC + 20*mt + 4*et
def VI(mt, et): return DACC + 40 + 20*mt + 4*et
for et in range(5):
    ya = 40 + 4*et; yb = 60 + 4*et
    for mt in range(2):
        a(f'v_mfma_f32_16x16x32_bf16 v[{VR(mt,et)}:{VR(mt,et)+3}], v[{FCOS+4*mt}:{FCOS+4*mt+3}], v[{ya}:{ya+3}], 0')
        a(f'v_mfma_f32_16x16x32_bf16 v[{VI(mt,et)}:{VI(mt,et)+3}], v[{FNS+4*mt}:{FNS+4*mt+3}], v[{ya}:{ya+3}], 0')
    for mt in range(2):
        a(f'v_mfma_f32_16x16x32_bf16 v[{VR(mt,et)}:{VR(mt,et)+3}], v[{FSIN+4*mt}:{FSIN+4*mt+3}], v[{yb}:{yb+3}], v[{VR(mt,et)}:{VR(mt,et)+3}]')
        a(f'v_mfma_f32_16x16x32_bf16 v[{VI(mt,et)}:{VI(mt,et)+3}], v[{FCOS+4*mt}:{FCOS+4*mt+3}], v[{yb}:{yb+3}], v[{VI(mt,et)}:{VI(mt,et)+3}]')
a('s_cmp_lg_u32 s30, 0'); a('s_cbranch_scc1 L_v0a')
for mt in range(2):
    a(f'v_mfma_f32_16x16x32_bf16 v[{160+4*mt}:{163+4*mt}], v[{FCOS+4*mt}:{FCOS+4*mt+3}], v[120:123], 0')
    a(f'v_mfma_f32_16x16x32_bf16 v[{168+4*mt}:{171+4*mt}], v[{FNS+4*mt}:{FNS+4*mt+3}], v[120:123], 0')
for mt in range(2):
    a(f'v_mfma_f32_16x16x32_bf16 v[{160+4*mt}:{163+4*mt}], v[{FSIN+4*mt}:{FSIN+4*mt+3}], v[124:127], v[{160+4*mt}:{163+4*mt}]')
    a(f'v_mfma_f32_16x16x32_bf16 v[{168+4*mt}:{171+4*mt}], v[{FCOS+4*mt}:{FCOS+4*mt+3}], v[124:127], v[{168+4*mt}:{171+4*mt}]')
a('L_v0a:')
tick(7, 45)
a('v_lshrrev_b32 v8, 1, v2'); a(f'v_mul_u32_u24 v8, {8*VROW}, v8')
a('v_and_b32 v9, 1, v2'); a(f'v_mul_u32_u24 v10, {VROW}, v9'); a('v_add_u32 v8, v8, v10'); a('v_lshl_add_u32 v8, v3, 4, v8')
a('s_mul_i32 s66, s28, 17'); a('s_add_u32 s67, s66, s3'); a(f's_mul_i32 s67, s67, {2*VROW}'); a(f's_mul_i32 s68, s30, 1280')
a(f's_add_u32 s68, s68, {WS_V + 128}'); a('s_add_u32 s67, s67, s68'); a('s_sub_u32 s69, s67, 16')
a('s_add_u32 s66, s66, 16'); a(f's_mul_i32 s66, s66, {2*VROW}'); a('s_add_u32 s66, s66, s68')
a('s_nop 4')
for mt in range(2):
    for et in range(5):
        o = 80 + 20*mt + 4*et
        for i in range(4): a(f'v_cvt_pk_bf16_f32 v{o+i}, v{VR(mt,et)+i}, v{VI(mt,et)+i}')
        a(f'buffer_store_dwordx4 v[{o}:{o+3}], v8, s[12:15], s67 offen offset:{256*et} {STP}')
    if mt == 0: a(f's_add_u32 s67, s67, {16*VROW}')
a('s_cmp_lg_u32 s30, 0'); a('s_cbranch_scc1 L_v0b')
for mt in range(2):
    for i in range(4): a(f'v_cvt_pk_bf16_f32 v{120+4*mt+i}, v{160+4*mt+i}, v{168+4*mt+i}')
a('s_mov_b32 exec_lo, 0x00010001'); a('s_mov_b32 exec_hi, 0x00010001')
a(f'buffer_store_dwordx4 v[120:123], v8, s[12:15], s69 offen {STP}')
a(f's_add_u32 s69, s69, {16*VROW}')
a(f'buffer_store_dwordx4 v[124:127], v8, s[12:15], s69 offen {STP}')
a('s_mov_b64 exec, -1')
a('L_v0b:')
tick(7, 46)
a('s_cmp_lg_u32 s3, 0')
a('s_cbranch_scc1 L_signal')
a('v_cvt_f32_u32 v62, s28'); a('v_mul_f32 v62, 0.0625, v62'); a('v_cos_f32 v63, v62'); a('v_sin_f32 v64, v62')
a('v_cmp_gt_u32 vcc, 16, v0')
a('v_lshlrev_b32 v11, 4, v3'); a('v_add_u32 v9, v10, v11')
for et in range(5):
    o = 80 + 4*et; vr = VR(0, et); vi = VI(0, et); n = 40 + 4*et
    a(f'v_mul_f32 v65, v63, v{vr}'); a(f'v_fmac_f32 v65, v64, v{vi}')
    a(f'v_mul_f32 v66, v63, v{vi}'); a(f'v_fma_f32 v66, -v64, v{vr}, v66')
    a(f'v_cvt_pk_bf16_f32 v65, v65, v66')
    a(f'v_cndmask_b32 v65, v{o}, v65, vcc')
    a(f'v_mov_b32 v{n}, v{o+1}')
    a(f'v_mov_b32 v66, v65')
    a(f'v_mov_b32 v{n+1}, v{o+2}'); a(f'v_mov_b32 v{n+2}, v{o+3}')
    a(f'v_permlane16_swap_b32 v65, v66')
    a('s_nop 1')
    a(f'v_cndmask_b32 v{n+3}, v65, v66, vcc')
a('s_mov_b32 exec_hi, 0')
for et in range(5):
    a(f'buffer_store_dwordx4 v[{40+4*et}:{43+4*et}], v9, s[12:15], s66 offen offset:{256*et} {STP}')
a('s_mov_b64 exec, -1')

a('L_signal:')
a('s_mov_b32 s79, 0')
tick(7, 32)
stamp(3)
a('s_lshl_b32 s66, s30, 2'); a('s_add_u32 s66, s66, s3'); a('s_lshl_b32 s66, s66, 7'); a('s_lshl_b32 s67, s28, 2'); a('s_add_u32 s66, s66, s67'); a(f's_add_u32 s66, s66, {WS_FV}')
a('v_mov_b32 v4, s43'); a('v_mov_b32 v5, 0')
a('s_waitcnt vmcnt(0)'); a('s_mov_b64 exec, 1')
a('buffer_store_dword v4, v5, s[12:15], s66 offen sc1'); a('s_mov_b64 exec, -1')
if TONE: lds_arrive(0, 4)
tick_dump(7, 4)
a('L_helper:')
if TONE:
    lds_wait('L_hc9', 20, 40)
    a('s_cmp_eq_u32 s35, 0'); a('s_cbranch_scc1 L_hnz')
    lds_wait('L_hzc', 8, 40)
    a('L_hnz:')
else:
    if EARLY >= 0: a('s_cmp_eq_u32 s35, 0'); a('s_cbranch_scc1 L_hea')
    lds_arrive(0, 4)
    a('L_hea:')
    lds_wait('L_hc9', 20, 40)
    a('s_cmp_eq_u32 s35, 0'); a('s_cbranch_scc1 L_hnz')
    lds_wait('L_hzc', 8, 40)
    a('L_hnz:')
    a('s_mov_b32 s44, s3')
    p2_setup()
    a('s_cmp_eq_u32 s35, 1'); a('s_cbranch_scc1 L_hd')
    for st in range(12 - NLATE, 12): wdt_lds(st)
    a('s_branch L_hf')
    a('L_hd:')
    for st in range(12 - NLD, 12): wdt_lds(st)
    a('L_hf:')
    VT = opt('vtouch', 0)
    def vtouch():
        a('s_cmp_eq_u32 s35, 0'); a('s_cbranch_scc1 L_nvt')
        a('v_lshrrev_b32 v40, 2, v0'); a('v_lshlrev_b32 v40, 7, v40'); a('v_and_b32 v41, 3, v0'); a('v_lshl_add_u32 v40, v41, 4, v40')
        a(f's_mov_b32 s66, {WS_FV}')
        spin_begin('L_pollva')
        a('buffer_load_dwordx4 v[44:47], v40, s[12:15], s66 offen sc1')
        a('s_waitcnt vmcnt(0)')
        for i in range(4): a(f'v_xor_b32 v{44+i}, s43, v{44+i}')
        a('v_or_b32 v44, v44, v45'); a('v_or3_b32 v44, v46, v47, v44')
        a('v_cmp_ne_u32 vcc, 0, v44'); a('s_cmp_eq_u64 vcc, 0')
        spin_end('L_pollva')
        a('s_lshl_b32 s66, s30, 2'); a('s_sub_u32 s67, 13, s66'); a('s_cmp_eq_u32 s31, 1'); a('s_cselect_b32 s66, s67, s66')
        a('s_lshl_b32 s67, s32, 1'); a('s_lshr_b32 s68, s3, 1'); a('s_add_u32 s67, s67, s68'); a('s_mul_i32 s67, s67, 17'); a('s_add_u32 s66, s66, s67')
        a(f's_mul_i32 s66, s66, {2*VROW}'); a('s_and_b32 s67, s3, 1'); a(f's_mul_i32 s67, s67, {164*128}'); a('s_add_u32 s66, s66, s67'); a(f's_add_u32 s66, s66, {WS_V}')
        a('v_lshlrev_b32 v40, 7, v0')
        for i in range(3):
            if i == 2: a('s_mov_b32 exec_hi, 0xf')
            a(f'buffer_load_dword v41, v40, s[12:15], s66 offen sc1')
            if i < 2: a('s_add_u32 s66, s66, 8192')
        a('s_mov_b64 exec, -1')
        a('s_mov_b32 s79, 0')
        a('s_waitcnt vmcnt(0)')
        a('L_nvt:')
    if VT == 2: vtouch()
    a('s_waitcnt vmcnt(0)')
    lds_arrive(36, 4)
    if VT == 1: vtouch()
stamp(4)

a('s_cmp_eq_u32 s79, 1'); a('s_cbranch_scc1 L_vdone')
if VGO: a('s_cmp_lg_u32 s3, 3'); a('s_cbranch_scc1 L_vwait')
spin_begin('L_pollv')
a(f'buffer_load_dword v53, v{VFL}, s[12:15], s60 offen sc1')
a('s_waitcnt vmcnt(0)')
a('v_cmp_ne_u32 vcc, s43, v53')
a('s_cmp_eq_u64 vcc, 0')
spin_end('L_pollv')
if VGO:
    lds_arrive(28, 40)
    a('L_vwait:')
    lds_wait('L_vc', 28, 40, 1)
    lds_wait('L_vgo', 40, 40, 1)
v_loads()
a('L_vdone:')
stamp(5)
a('v_lshrrev_b32 v4, 2, v3'); a('v_and_b32 v5, 3, v3'); a('v_lshl_add_u32 v7, v5, 2, v4')
a('s_mul_i32 s66, s55, 15'); a('v_xor_b32 v4, s66, v7')
a('v_cvt_f32_u32 v4, v4'); a('v_mul_f32 v4, 0.0625, v4')
a('v_lshlrev_b32 v5, 2, v2'); a('v_cvt_f32_u32 v5, v5')
for i in range(4):
    a(f'v_add_f32 v52, {float(i)!r}, v5'); a('v_mul_f32 v52, v52, v4')
    a('v_cos_f32 v53, v52'); a('v_sin_f32 v54, v52'); a('s_nop 0')
    a(f'v_cvt_pk_bf16_f32 v{8+i}, v53, v54')
a(f's_mov_b32 s47, {PN}'); a('s_cmp_eq_u32 s55, 1'); a(f's_cselect_b32 s47, {(-PN) & 0xffffffff}, s47')
a(f'v_mul_u32_u24 v56, {PQ}, v2'); a('v_lshl_add_u32 v56, v3, 4, v56'); a(f's_mul_i32 s66, s55, {3*PN}'); a('v_add_u32 v56, s66, v56')
for k4 in range(1, 4): a(f'v_add_u32 v{56+k4}, s47, v{55+k4}')
def spec_tile(off_s, vb):
    for k4 in range(4):
        for i in range(4): a(f'v_mov_b32 v{64+4*k4+i}, v{vb+4*i+k4}')
    a('s_nop 1')
    for k4 in range(4):
        c = 80 + 4*k4
        a(f'v_mfma_f32_16x16x32_bf16 v[{c}:{c+3}], v[{64+4*k4}:{67+4*k4}], v[8:11], 0')
    for k4 in range(4): a(f'v_add_u32 v{40+k4}, {off_s}, v{56+k4}')
    a('s_nop 5')
    for k4 in range(4):
        c = 80 + 4*k4
        a(f'ds_write_b128 v{40+k4}, v[{c}:{c+3}]')
a('s_cmp_eq_u32 s3, 1'); a(f's_mov_b32 s73, {ST[0]}'); a(f's_cselect_b32 s73, {ST[1]}, s73')
a('s_cmp_eq_u32 s3, 2'); a(f's_cselect_b32 s73, {ST[2]}, s73')
a('s_cmp_eq_u32 s3, 3'); a(f's_cselect_b32 s73, {ST[3]}, s73')
a('s_waitcnt vmcnt(0)')
a('s_cmp_lg_u32 s3, 0'); a('s_cbranch_scc1 L_spec1')
a(f's_mov_b32 s74, {ST[4]}')
spec_tile('s74', VB1)
a('L_spec1:')
spec_tile('s73', VB0)
for r in range(3):
    for d in range(4):
        a(f'v_lshlrev_b32 v{96+8*r+2*d}, 16, v{XR[r]+d}'); a(f'v_and_b32 v{97+8*r+2*d}, 0xffff0000, v{XR[r]+d}')

a('L_final:')
def final_reads(r, b):
    d4, d11 = FA[3*r], FA[3*r+2]
    for p in range(5):
        reg = (d4, d4, d4, d4, d11)[p]; off = (0, P2W, 2*P2W, 3*P2W, 0)[p]
        a(f'ds_read_b128 v[{b+8*p}:{b+3+8*p}], v{reg} offset:{off}')
        a(f'ds_read_b128 v[{b+4+8*p}:{b+7+8*p}], v{reg} offset:{off+PQ}')
def final_sum(r, b, cnt):
    x = 96 + 8*r
    for p in range(5):
        a(f's_waitcnt lgkmcnt({min(15, cnt + 8 - 2*p)})')
        for d in range(0, 8, 2): a(f'v_pk_add_f32 v[{x+d}:{x+d+1}], v[{x+d}:{x+d+1}], v[{b+8*p+d}:{b+8*p+d+1}]')
    for d in range(4): a(f'v_cvt_pk_bf16_f32 v{b+d}, v{x+2*d}, v{x+2*d+1}')
    a(f'buffer_store_dwordx4 v[{b}:{b+3}], v{FA[3*r+1]}, s[16:19], 0 offen {OUTP}')
a('s_waitcnt lgkmcnt(0)')
a('s_barrier')
stamp(6)
final_reads(0, 128)
final_reads(1, 168)
final_sum(0, 128, 10)
a('s_cmp_ge_u32 s3, 2'); a('s_cbranch_scc1 L_fin1')
final_reads(2, 208)
final_sum(1, 168, 10)
final_sum(2, 208, 0)
a('s_branch L_fin2')
a('L_fin1:')
final_sum(1, 168, 0)
a('L_fin2:')
if 'diag' in opts:
    a('s_cmp_lg_u32 s3, 0'); a('s_cbranch_scc1 L_diag')
    a('s_waitcnt vmcnt(0)')
    a('s_memrealtime s[94:95]'); a('s_waitcnt lgkmcnt(0)')
    if opts['diag'] == 'r': a('s_sub_u32 s66, s43, s80'); a('s_max_i32 s66, s66, 0'); a('s_min_u32 s66, s66, 5000'); a('s_lshl_b32 s66, s66, 4')
    elif opts['diag'] == 'b': a('s_sub_u32 s66, s82, s80'); a('s_max_i32 s66, s66, 0'); a('s_min_u32 s66, s66, 5000'); a('s_lshl_b32 s66, s66, 3')
    elif opts['diag'] == 'e': a('s_sub_u32 s66, s94, s80'); a('s_max_i32 s66, s66, 0'); a('s_min_u32 s66, s66, 5000'); a('s_lshl_b32 s66, s66, 2')
    else: a(f"s_sub_u32 s66, s{80 + 2*int(opts['diag'])}, s43"); a('s_max_i32 s66, s66, 0'); a('s_min_u32 s66, s66, 5000'); a('s_lshl_b32 s66, s66, 2')
    a('L_dsp:')
    a('s_memrealtime s[68:69]'); a('s_waitcnt lgkmcnt(0)'); a('s_sub_u32 s68, s68, s94'); a('s_cmp_lt_u32 s68, s66'); a('s_cbranch_scc1 L_dsp')
    a('s_endpgm')
    a('L_diag:')
if opt('dbgt', 0):
    a('s_cmp_lg_u32 s3, 0'); a('s_cbranch_scc1 L_dbgt')
    a('s_waitcnt vmcnt(0)')
    a('s_memrealtime s[94:95]'); a('s_waitcnt lgkmcnt(0)')
    a('s_mov_b64 exec, 1')
    for i, r in enumerate((80, 82, 84, 86, 88, 90, 92, 94)):
        a(f's_sub_u32 s66, s{r}, s43'); a('s_add_u32 s66, s66, 1000'); a('v_mov_b32 v4, s66'); a(f'v_mov_b32 v5, {4 + 4*i}')
        a('buffer_atomic_umax v4, v5, s[24:27], 0 offen sc1')
        a('s_nop 2')
    a('s_endpgm')
    a('L_dbgt:')
stamp(7)
if STAMPS:
    a('s_waitcnt vmcnt(0)')
    a('s_memrealtime s[96:97]')
    a('s_waitcnt lgkmcnt(0)')
    for i in range(8): a(f'v_mov_b32 v{16+i}, s{80+2*i}')
    a('v_mov_b32 v24, s96'); a('v_mov_b32 v25, s101')
    a('s_lshl_b32 s66, s2, 3'); a('s_add_u32 s66, s66, s3'); a('s_lshl_b32 s66, s66, 6'); a(f's_add_u32 s66, s66, {WS_TS}')
    a('v_mov_b32 v4, 0')
    a('s_mov_b64 exec, 1')
    a('buffer_store_dwordx4 v[16:19], v4, s[12:15], s66 offen')
    a('buffer_store_dwordx4 v[20:23], v4, s[12:15], s66 offen offset:16')
    a('buffer_store_dwordx2 v[24:25], v4, s[12:15], s66 offen offset:32')
a('s_endpgm')
emit_tails()
a('L_done:')
a.end(256, sgpr=102)
txt = a.text([])
txt = txt.replace('.amdgcn_target', f'; @launch grid=(256,1,1) block=(512,1,1) lds={LDS_BYTES}\n.amdgcn_target', 1)
open(sys.argv[1], 'w').write(txt)
if opt('ids', 0): print(wait_ids)
```

```python
import sys, math
from asmlib import *
opts = dict(o.split('=') for o in sys.argv[2:])
def opt(k, d): return type(d)(opts.get(k, d))
STAMPS = opt('stamps', 0)
PFW = opts.get('pfw', '3,0').replace('-', '')
PFP = opts.get('pfp', '-').replace('-', '')
EARLY = opt('early', -1)
NTM = [sum(1 << int(c) for c in m) for m in opts['ntm'].split(',')] if 'ntm' in opts else None
RP = opts.get('rp', '-').replace('+', ' ').replace('-', '')
WP_ = opts.get('wp', 'nt').replace('+', ' ').replace('-', '')
XP_ = opts.get('xp', '-').replace('+', ' ').replace('-', '')
TONE = opt('t1', 0)
HDLY = opt('hdly', 0)
OUTP = opts.get('outp', 'sc1').replace('+', ' ').replace('-', '')
SENT = 1
RDFT = opt('rdft', 0)
RSL = opt('rsleep', 4)
AUXV = opt('auxv', 0)
VGO = opt('vgo', 1)
VCHK = opt('vchk', 4)
XR = [32, 36, 28]
FA = [16, 17, 18, 19, 20, 21, 22, 23, 24]; VA0, VA4, VFL = 25, 26, 27
NONIT = 1
WMODE = opt('wmode', 0)
STRICT = opt('strict', 1)
ZFIX = opt('zfix', 1)
FLAGA = opt('flaga', 0)
FAKEW = opt('fakew', 0)
FAKEH = opt('fakeh', 0)
P2MAP = opt('p2map', 1)
P2ROT = opt('p2rot', 5)
SPINMAX = opt('spinmax', 1 << 16)
CODEPF = opt('codepf', 1)
LDW = opts.get('ldw', 'sc1').replace('+', ' ').replace('-', '')
LDH = opts.get('ldh', 'sc1').replace('+', ' ').replace('-', '')
STP = opts.get('stp', 'sc1').replace('+', ' ').replace('-', '')
S, D, F = 2048, 640, 1536
KNAME = 'parallel_sum__spectral_fnet__swiglu_ffn__prompt_kernel'
STG = 49152
WS_H = 0
WS_WDT = 0x600000
WS_V = 0x800000
WS_XP = 0xB00000
WS_WP = 0xB20000
WS_FW = 0xB30000
WS_FH = 0xB31000
WS_FV = 0xB34000
WS_TS = 0xC00000
WS_SIZE = 0x1000000
L_AUX = 3*STG
L_R = L_AUX
L_M = L_AUX + 512
L_CS = L_AUX + 1024
L_CNT = L_AUX + 2048
L_NON = L_CNT + 32
L_A0 = L_AUX + 2560
L_WD = L_AUX + 4096
L_Z = 0
ZROW = 64; ZB = 96
VROW = 5248
P2W = 10240
P2STEP = [STG, STG + 5120, 2*STG, 2*STG + 5120, 0, 5120]
PT = [STG, STG + 4416, 2*STG + 128, 2*STG + 128 + 4416, 0]
ST = [40960, STG + 40960 + 64, 2*STG + 40960 + 128, 3*STG + 4096 + 192, 3*STG + 4096 + 192 + 4416 ]
PQ, PN, PE = 272, 1088, 4416
LDS_BYTES = 163840

a = Asm()
stamp_n = [0]
def stamp(i):
    if STAMPS:
        if not ((FAKEW or FAKEH) and i >= 5): a(f's_memrealtime s[{80+2*i}:{81+2*i}]')
TICKS = opt('ticks', 0)
def tick(reg, idx):
    if TICKS:
        a('s_memrealtime s[98:99]'); a('s_waitcnt lgkmcnt(0)')
        if isinstance(idx, tuple):
            a(f's_add_u32 m0, {idx[0]}, {idx[1]}'); a('s_nop 3'); a(f'v_writelane_b32 v{reg}, s98, m0')
        else:
            a(f'v_writelane_b32 v{reg}, s98, {idx}')
def tick_dump(reg, tmp):
    if TICKS:
        a('s_lshl_b32 s98, s2, 3'); a('s_add_u32 s98, s98, s3'); a('s_lshl_b32 s98, s98, 8'); a(f's_add_u32 s98, s98, {WS_TS + 0x100000}')
        a(f'v_lshlrev_b32 v{tmp}, 2, v0')
        a(f'buffer_store_dword v{reg}, v{tmp}, s[12:15], s98 offen')
def rbf(v):
    a(f'v_cvt_pk_bf16_f32 v{v}, v{v}, v{v}')
    a(f'v_lshlrev_b32 v{v}, 16, v{v}')
def srd_from(d, b, nbytes):
    srd(a, d, b, nbytes)
spin_ids = {}
def spin_begin(name):
    a(f's_mov_b32 s79, 0')
    a(f'{name}:')
def spin_end(name):
    a(f's_cbranch_scc1 {name}_ok')
    a('s_add_u32 s79, s79, 1')
    a(f's_cmp_ge_u32 s79, {SPINMAX}')
    if STAMPS: spin_ids[name] = 100 + len(spin_ids); a(f's_cselect_b32 s101, {spin_ids[name]}, s101')
    a(f's_cbranch_scc1 {name}_ok')
    a('s_sleep 2')
    a(f's_branch {name}')
    a(f'{name}_ok:')

def lds_arrive(off, v):
    a(f'v_mov_b32 v{v}, {L_CNT}'); a(f'v_mov_b32 v{v+1}, 1')
    a('s_waitcnt lgkmcnt(0)')
    a('s_mov_b64 exec, 1')
    a(f'ds_add_u32 v{v}, v{v+1} offset:{off}')
    a('s_mov_b64 exec, -1')
wait_ids = {}
def lds_wait(name, off, v, cnt=4):
    wait_ids[name] = len(wait_ids) + 1
    a(f'v_mov_b32 v{v}, {L_CNT}')
    a('s_mov_b32 s100, 0')
    a(f'{name}:')
    a(f'ds_read_b32 v{v+1}, v{v} offset:{off}')
    a('s_waitcnt lgkmcnt(0)')
    a(f'v_readfirstlane_b32 s78, v{v+1}')
    a(f's_cmp_lt_u32 s78, {cnt}')
    a(f's_cbranch_scc0 {name}_ok')
    a('s_add_u32 s100, s100, 1')
    a(f's_cmp_lt_u32 s100, {SPINMAX*8}')
    a('s_sleep 1')
    a(f's_cbranch_scc1 {name}')
    if STAMPS: a(f's_mov_b32 s101, {wait_ids[name]}')
    a(f'{name}_ok:')
a.begin(KNAME)
a('s_cmp_ge_u32 s2, 256')
a('s_cbranch_scc1 L_done')
stamp(0)
if STAMPS: a('s_mov_b32 s101, 0')
a('s_load_dwordx2 s[64:65], s[0:1], 0')
a('s_load_dwordx4 s[60:63], s[0:1], 24')
a('s_load_dwordx8 s[48:55], s[0:1], 48')
a('s_load_dwordx4 s[56:59], s[0:1], 80')
a('v_lshrrev_b32 v1, 6, v0')
a('v_and_b32 v0, 63, v0')
a('v_readfirstlane_b32 s3, v1')
a('s_and_b32 s40, s2, 7'); a('s_lshr_b32 s41, s2, 3')
a('s_and_b32 s31, s40, 1'); a('s_lshr_b32 s30, s40, 1')
a('s_and_b32 s32, s41, 7'); a('s_lshr_b32 s33, s41, 3')
a('s_lshl_b32 s28, s31, 3'); a('s_add_u32 s28, s28, s32')
a('s_mul_i32 s29, s30, 3'); a('s_add_u32 s29, s29, s33')
a('s_add_u32 s42, s30, 12')
a('s_cmp_eq_u32 s33, 3')
a('s_cselect_b32 s29, s42, s29')
a('s_cselect_b32 s35, 1, 0')
a('s_mul_i32 s34, s30, 5'); a('s_add_u32 s34, s34, 1'); a('s_lshr_b32 s34, s34, 1')
a('s_mul_i32 s42, s31, 5'); a('s_add_u32 s34, s34, s42')
a('s_cmp_ge_u32 s34, 10'); a('s_cselect_b32 s42, 10, 0'); a('s_sub_u32 s34, s34, s42')
if P2MAP == 0:
    a('s_lshl_b32 s42, s30, 3'); a('s_add_u32 s42, s42, s32')
    a('s_lshl_b32 s38, s31, 2'); a('s_add_u32 s38, s38, s33')
else:
    a('s_lshl_b32 s42, s40, 2'); a('s_add_u32 s42, s42, s33')
    a('s_mov_b32 s38, s32')
if EARLY < 0:
    a('s_mul_i32 s39, s32, 3'); a('s_lshr_b32 s39, s39, 1'); a('s_mul_i32 s66, s33, 3'); a('s_add_u32 s39, s39, s66')
    a('s_cmp_ge_u32 s39, 12'); a('s_cselect_b32 s66, 12, 0'); a('s_sub_u32 s39, s39, s66')
else:
    a('s_lshl_b32 s39, s33, 1'); a('s_add_u32 s39, s39, s32'); a('s_mul_i32 s39, s39, 3'); a('s_lshr_b32 s39, s39, 2')
    a('s_cmp_ge_u32 s39, 6'); a('s_cselect_b32 s66, 6, 0'); a('s_sub_u32 s39, s39, s66')
if not P2ROT: a('s_mov_b32 s39, 0')
if P2ROT == 2: a('s_mul_i32 s39, s32, 3'); a('s_lshr_b32 s39, s39, 1')
if P2ROT == 3: a('s_mul_i32 s39, s33, 3')
if P2ROT == 4: a('s_add_u32 s39, s32, s33'); a('s_and_b32 s39, s39, 1'); a('s_mul_i32 s39, s39, 6')
if P2ROT == 5: a('s_and_b32 s39, s2, 7'); a('s_mul_i32 s39, s39, 3'); a(f's_lshr_b32 s39, s39, {1 if EARLY < 0 else 2}')
a('s_lshr_b32 s36, s42, 1'); a('s_and_b32 s37, s42, 1')
WSOFF = opt('wsoff', 0)
WSRD = 's[12:15]'; HSRD = 's[12:15]'
def common_srds(loader=False):
    a('s_waitcnt lgkmcnt(0)')
    tick(7, 50)
    srd(a, 12, 58, WS_SIZE, WSOFF << 20)
    if not loader:
        srd_from(4, 64, S*D*2)
        srd_from(16, 54, S*D*2)
        srd_from(20, 52, F*D*2)
        srd_from(24, 56, 256)
a('s_cmp_lt_u32 s3, 4')
a('s_cbranch_scc1 L_compute')
a('s_sub_u32 s44, s3, 4')
a('s_cmp_eq_u32 s44, 3')
a('s_cbranch_scc1 L_aux')

W0 = 5
PT_ = [20, 21, 22, 23, 24, 25, 26, 27, 4, 5, 6, 7, 16, 17, 18, 19]
GT_ = [66, 67, 68, 69, 76, 77, 78, 79, 96, 97, 100, 101, 40, 41, 42, 43]
GT_ = [66, 67, 68, 69, 76, 77, 78, 79, 28, 29, 30, 31, 40, 41, 33, 43]
H0 = opt('h0', 8)
def dma_loop(name, npieces):
    h = npieces * H0 // 16
    def pieces1(lo, hi, pol):
        for t in range(lo, hi):
            a(f's_add_u32 m0, s{PT_[t]}, s46'); a('s_nop 0')
            a(f'buffer_load_dwordx4 v{4 + (t & 1)}, s[8:11], s{GT_[t]} offen {pol} lds')
    def pieces(lo, hi):
        if not NTM: return pieces1(lo, hi, RP)
        L = a.label('L_pc')
        a('s_bitcmp1_b32 s50, s47'); a(f's_cbranch_scc1 {L}_n')
        pieces1(lo, hi, ''); a(f's_branch {L}_e')
        a(f'{L}_n:'); pieces1(lo, hi, 'nt'); a(f'{L}_e:')
    a('s_mov_b32 s45, s34'); a('s_mov_b32 s46, 0'); a('s_mov_b32 s47, 0')
    a('s_mul_i32 s42, s34, s48'); a('s_mul_i32 s49, s48, -9'); a('v_add_u32 v4, s42, v4'); a('v_add_u32 v5, s42, v5')
    tick(7, 51)
    if opt('uni', 0):
        pieces(0, h)
        a(f'{name}_l:')
        pieces(h, npieces)
        a('s_cmp_eq_u32 s47, 9'); a('s_cbranch_scc1 L_p2last')
        a('s_add_u32 s45, s45, 1'); a('s_cmp_eq_u32 s45, 10'); a('s_cselect_b32 s45, 0, s45')
        a('s_cselect_b32 s42, s49, s48')
        a('v_add_u32 v4, s42, v4'); a('v_add_u32 v5, s42, v5')
        a(f's_add_u32 s46, s46, {STG}'); a(f's_cmp_eq_u32 s46, {3*STG}'); a('s_cselect_b32 s46, 0, s46')
        pieces(0, h)
        a(f's_waitcnt vmcnt({h})')
        tick(7, ('s47', 0))
        a('s_barrier')
        tick(7, ('s47', 16))
        a('s_add_u32 s47, s47, 1'); a(f's_branch {name}_l')
        return
    a(f'{name}_l:')
    pieces(0, h)
    a('s_cmp_lg_u32 s47, 1'); a(f's_cbranch_scc1 {name}_m')
    a(f's_waitcnt vmcnt({h})')
    tick(7, 0)
    a('s_barrier')
    tick(7, 16)
    a(f'{name}_m:')
    pieces(h, npieces)
    a('s_add_u32 s45, s45, 1'); a('s_cmp_eq_u32 s45, 10'); a('s_cselect_b32 s45, 0, s45')
    a('s_cselect_b32 s42, s49, s48')
    a('v_add_u32 v4, s42, v4'); a('v_add_u32 v5, s42, v5')
    a(f's_add_u32 s46, s46, {STG}'); a(f's_cmp_eq_u32 s46, {3*STG}'); a('s_cselect_b32 s46, 0, s46')
    tick(7, ('s47', 52))
    a('s_cmp_lt_u32 s47, 2'); a(f's_cbranch_scc1 {name}_nx')
    a(f's_waitcnt vmcnt({npieces})')
    tick(7, ('s47', -1))
    a('s_barrier')
    tick(7, ('s47', 15))
    a('s_cmp_eq_u32 s47, 9'); a('s_cbranch_scc1 L_p2last')
    a(f'{name}_nx:')
    a('s_add_u32 s47, s47, 1'); a(f's_branch {name}_l')

a('s_cmp_eq_u32 s44, 2')
a('s_cbranch_scc1 L_ldx')
a('s_cmp_eq_u32 s35, 1')
a('s_cbranch_scc1 L_ldc')
a('v_lshrrev_b32 v1, 4, v0')
a('v_and_b32 v2, 15, v0')
a('v_lshlrev_b32 v3, 1, v1')
a('v_xor_b32 v2, v2, v3')
a('v_lshlrev_b32 v2, 4, v2')
a(f'v_mul_u32_u24 v3, {F*2}, v1')
a('v_add_u32 v2, v2, v3')
a('s_lshl_b32 s70, s29, 8')
a('v_add_u32 v2, s70, v2')
a('s_and_b32 s70, s32, 1'); a('s_lshl_b32 s70, s70, 7')
a('v_xor_b32 v4, s70, v2')
a('v_xor_b32 v5, 128, v4')
a('s_lshl_b32 s70, s32, 11')
a('s_lshl_b32 s71, s44, 14')
for g in range(4):
    if g: a('s_add_u32 s70, s70, 2048'); a('s_and_b32 s70, s70, 0x3c00')
    a(f's_or_b32 s{PT_[4*g]}, s70, s71'); a(f's_mul_i32 s{GT_[4*g]}, s70, 12')
    a(f's_add_u32 s{PT_[4*g+2]}, s{PT_[4*g]}, 1024'); a(f's_add_u32 s{GT_[4*g+2]}, s{GT_[4*g]}, {4*F*2}')
    a('s_add_u32 s70, s70, 2048'); a('s_and_b32 s70, s70, 0x3c00')
    a(f's_or_b32 s{PT_[4*g+1]}, s70, s71'); a(f's_mul_i32 s{GT_[4*g+1]}, s70, 12')
    a(f's_add_u32 s{PT_[4*g+3]}, s{PT_[4*g+1]}, 1024'); a(f's_add_u32 s{GT_[4*g+3]}, s{GT_[4*g+1]}, {4*F*2}')
a('s_cmp_eq_u32 s44, 1')
a('s_waitcnt lgkmcnt(0)')
a('s_cselect_b32 s8, s50, s48'); a('s_cselect_b32 s9, s51, s49'); a(f's_mov_b32 s10, {D*F*2}'); a('s_mov_b32 s11, 0x00020000')
a(f's_mov_b32 s48, {64*F*2}')
if NTM: a(f's_mov_b32 s50, {NTM[0]}')
a('s_branch L_ld16')
a('L_ldx:')
a('v_lshrrev_b32 v1, 3, v0')
a('v_and_b32 v2, 7, v0')
a('v_lshrrev_b32 v3, 1, v1')
a('v_xor_b32 v2, v2, v3')
a('v_lshlrev_b32 v2, 4, v2')
a('v_lshrrev_b32 v3, 2, v1'); a('v_and_b32 v6, 3, v1'); a('v_lshl_add_u32 v3, v6, 2, v3')
XMAP = opt('xmap', 0)
if XMAP == 0:
    a('v_lshlrev_b32 v3, 7, v3'); a('v_add_u32 v3, s28, v3')
elif XMAP == 1:
    a('v_lshlrev_b32 v3, 7, v3'); a('s_lshl_b32 s70, s28, 3'); a('v_add_u32 v3, s70, v3')
else:
    a('v_lshlrev_b32 v3, 3, v3'); a('s_lshl_b32 s70, s28, 7'); a('v_add_u32 v3, s70, v3')
a(f'v_mul_u32_u24 v3, {D*2}, v3')
a('v_add_u32 v4, v2, v3')
a('v_xor_b32 v5, 64, v4'); a(f'v_add_u32 v5, {(256 if XMAP < 2 else 16)*D*2}, v5')
a('s_lshl_b32 s70, s33, 12')
for t in range(0, 16, 2):
    if t: a('s_add_u32 s70, s70, 2048'); a('s_and_b32 s70, s70, 0x3c00')
    a(f's_or_b32 s{PT_[t]}, s70, 0x8000'); a(f's_or_b32 s{PT_[t+1]}, s70, 0x8400')
    if XMAP == 0: a(f's_mul_i32 s{GT_[t]}, s70, {16*D*2//2048}')
    else: a(f's_mul_i32 s{GT_[t]}, s70, 5'); a(f's_lshr_b32 s{GT_[t]}, s{GT_[t]}, 3')
    a(f's_mov_b32 s{GT_[t+1]}, s{GT_[t]}')
a('s_waitcnt lgkmcnt(0)')
srd_from(8, 64, S*D*2)
a('s_movk_i32 s48, 128')
if NTM: a(f's_mov_b32 s50, {NTM[1]}')
a('L_ld16:')
dma_loop('L_ldw', 16)
a('L_ldc:')
a('v_lshrrev_b32 v1, 3, v0')
a('v_and_b32 v2, 7, v0')
a('v_lshrrev_b32 v3, 1, v1')
a('v_xor_b32 v2, v2, v3')
a('v_lshlrev_b32 v2, 4, v2')
a('s_mul_i32 s70, s30, 80'); a('s_add_u32 s70, s70, 1')
a('v_add_u32 v1, s70, v1')
a(f'v_mul_u32_u24 v3, {D*2}, v1')
a('v_add_u32 v2, v2, v3')
a('s_and_b32 s70, s32, 1'); a('s_lshl_b32 s70, s70, 6')
a('v_xor_b32 v4, s70, v2')
a('v_xor_b32 v5, 64, v4')
a('s_lshl_b32 s70, s32, 10')
a('s_lshl_b32 s71, s44, 14')
for t in range(10):
    if t: a('s_add_u32 s70, s70, 1024'); a('s_cmp_eq_u32 s70, 10240'); a('s_cselect_b32 s70, 0, s70')
    a(f's_or_b32 s{PT_[t]}, s70, s71'); a(f's_mul_i32 s{GT_[t]}, s70, {8*D*2//1024}')
a('s_cmp_eq_u32 s44, 1')
a('s_waitcnt lgkmcnt(0)')
a('s_cselect_b32 s8, s62, s60'); a('s_cselect_b32 s9, s63, s61'); a(f's_mov_b32 s10, {D*D*2}'); a('s_mov_b32 s11, 0x00020000')
a('s_movk_i32 s48, 128')
if NTM: a(f's_mov_b32 s50, {NTM[0]}')
dma_loop('L_ldcl', 10)

P2ACC = 176; P2W_R = 56; P2H = 8
def p2_setup():
    a('v_lshlrev_b32 v1, 4, v0')
    srd(a, 12, 58, WS_SIZE, WSOFF << 20)
    a('s_mul_i32 s70, s38, 48'); a('s_mul_i32 s71, s44, 12'); a('s_add_u32 s70, s70, s71')
    a(f's_mul_i32 s70, s70, 5120'); a(f's_add_u32 s70, s70, {WS_WDT}')
    a(f's_mul_i32 s73, s44, {P2W}')
def kidx(step):
    if EARLY < 0:
        a(f's_add_u32 s72, s39, {step}'); a('s_cmp_ge_u32 s72, 12'); a('s_cselect_b32 s71, 12, 0'); a('s_sub_u32 s72, s72, s71')
    else:
        a(f's_add_u32 s72, s39, {step % 6}'); a('s_cmp_ge_u32 s72, 6'); a('s_cselect_b32 s71, 6, 0'); a('s_sub_u32 s72, s72, s71')
        a('s_lshl_b32 s72, s72, 1')
        if step >= 6: a('s_add_u32 s72, s72, 1')
def wdt_reg(step):
    kidx(step)
    a('s_mul_i32 s72, s72, 5120'); a('s_add_u32 s72, s72, s70')
    for ei in range(5):
        r = P2W_R + 20*step + 4*ei
        if ei == 4: a('s_add_u32 s72, s72, 4096')
        a(f'buffer_load_dwordx4 v[{r}:{r+3}], v1, {WSRD}, s72 offen offset:{(ei % 4)*1024} {LDW}')
def wdt_lds(step):
    kidx(step)
    a('s_mul_i32 s72, s72, 5120'); a('s_add_u32 s72, s72, s70')
    for ei in range(5):
        a(f's_add_u32 m0, s73, {P2STEP[step-6] + ei*1024}')
        if ei: a('s_add_u32 s72, s72, 1024')
        else: a('s_nop 0')
        a(f'buffer_load_dwordx4 v1, {WSRD}, s72 offen {LDW} lds')
WD = [[0, 1], [2, 3], [4, 5], []]
def read_nonce(v):
    a(f'v_mov_b32 v{v}, {L_NON}'); a(f'ds_read_b32 v{v}, v{v}'); a('s_waitcnt lgkmcnt(0)'); a(f'v_readfirstlane_b32 s43, v{v}')
def final_addr(tau_off, d4, d5, d11, t):
    v4, v5, v6, v7, v8, v9, v10 = d4, d5, t, t+1, t+2, t+3, t+4
    a('s_lshl_b32 s66, s3, 6'); a(f's_add_u32 s66, s66, {tau_off}')
    a(f'v_add_u32 v{v4}, s66, v0')
    a(f'v_mul_u32_u24 v{v5}, 6554, v{v4}'); a(f'v_lshrrev_b32 v{v5}, 16, v{v5}')
    a(f'v_mul_u32_u24 v{v6}, 10, v{v5}'); a(f'v_sub_u32 v{v6}, v{v4}, v{v6}')
    a(f'v_lshrrev_b32 v{v7}, 4, v{v5}'); a(f'v_and_b32 v{v5}, 15, v{v5}')
    a(f'v_lshrrev_b32 v{v9}, 1, v{v6}')
    a(f'v_mov_b32 v{v10}, {PT[0]}'); a(f'v_mov_b32 v{d11}, {ST[0]}')
    for e in range(1, 5):
        a(f'v_cmp_eq_u32 vcc, {e}, v{v9}'); a(f'v_mov_b32 v{t+5}, {PT[e]}'); a(f'v_mov_b32 v{t+6}, {ST[e]}')
        a(f'v_cndmask_b32 v{v10}, v{v10}, v{t+5}, vcc'); a(f'v_cndmask_b32 v{d11}, v{d11}, v{t+6}, vcc')
    a(f'v_and_b32 v{v8}, 1, v{v6}'); a(f'v_mul_u32_u24 v{v4}, {2*PQ}, v{v8}')
    a(f'v_mul_u32_u24 v{v8}, {PN}, v{v7}'); a(f'v_add_u32 v{v4}, v{v4}, v{v8}'); a(f'v_lshl_add_u32 v{v4}, v{v5}, 4, v{v4}')
    a(f'v_add_u32 v{d11}, v{d11}, v{v4}'); a(f'v_add_u32 v{v4}, v{v10}, v{v4}')
    a(f'v_lshrrev_b32 v{v8}, 2, v{v5}'); a(f'v_and_b32 v{v5}, 3, v{v5}'); a(f'v_lshl_add_u32 v{v5}, v{v5}, 2, v{v8}')
    a(f'v_lshlrev_b32 v{v5}, 3, v{v5}'); a(f'v_add_u32 v{v5}, v{v5}, v{v7}'); a(f'v_lshlrev_b32 v{v5}, 4, v{v5}')
    a('s_lshl_b32 s66, s37, 6'); a('s_add_u32 s66, s66, s36'); a(f'v_add_u32 v{v5}, s66, v{v5}')
    a(f'v_mul_u32_u24 v{v5}, {D*2}, v{v5}'); a(f'v_lshl_add_u32 v{v5}, v{v6}, 4, v{v5}'); a('s_mul_i32 s66, s38, 160'); a(f'v_add_u32 v{v5}, s66, v{v5}')

VB0, VB1 = 128, 144
def p2h_setup():
    a('s_cmp_ge_u32 s38, 4'); a('s_cselect_b32 s55, 1, 0')
    a('s_sub_u32 s67, 16, s36'); a('s_xor_b32 s68, s37, 1')
    a('s_cmp_eq_u32 s55, 1')
    a('s_cselect_b32 s67, s67, s36'); a('s_cselect_b32 s68, s68, s37')
    a('s_and_b32 s60, s67, 3'); a('s_lshl_b32 s60, s60, 7'); a(f's_add_u32 s60, s60, {WS_FV}')
    a('s_lshl_b32 s67, s67, 1'); a('s_add_u32 s67, s67, s68'); a(f's_mul_i32 s67, s67, {VROW}'); a(f's_add_u32 s56, s67, {WS_V}')
    a('s_lshl_b32 s57, s55, 9'); a('s_sub_u32 s57, 256, s57')
def fv_addr(v, t):
    a('s_sub_u32 s66, 7, s38'); a('s_sub_u32 s67, s38, 1'); a('s_max_i32 s67, s67, 0')
    a('s_cmp_ge_u32 s38, 4'); a('s_cselect_b32 s67, s66, s67'); a('s_cselect_b32 s66, s66, s38')
    a(f'v_mov_b32 v{v}, s66'); a(f'v_mov_b32 v{t}, s67'); a(f'v_bfe_u32 v{t+1}, v0, 4, 1'); a(f'v_cmp_eq_u32 vcc, 0, v{t+1}'); a(f'v_and_b32 v{t+1}, 15, v0')
    a(f'v_cndmask_b32 v{v}, v{t}, v{v}, vcc'); a(f'v_lshlrev_b32 v{v}, 9, v{v}'); a(f'v_lshl_add_u32 v{v}, v{t+1}, 2, v{v}')
def pre_loop():
    for r in range(3):
        final_addr(256*r, FA[3*r], FA[3*r+1], FA[3*r+2], 40)
    a('s_cmp_ge_u32 s3, 2'); a('s_cselect_b32 s66, -1, 0'); a(f'v_or_b32 v{FA[7]}, s66, v{FA[7]}')
    fv_addr(VFL, 40)
    a('s_mul_i32 s66, s38, 80'); a('v_add_u32 v40, s66, v3')
    a('v_add_u32 v41, 7, v40'); a('v_sub_u32 v42, 647, v40')
    a('s_cmp_eq_u32 s55, 1'); a('s_cselect_b64 vcc, -1, 0')
    a(f'v_mul_u32_u24 v43, {4*17*2*VROW}, v2')
    a('v_cndmask_b32 v40, v41, v42, vcc')
    a('v_lshl_add_u32 v43, v40, 4, v43')
    a('s_mul_i32 s66, s3, s57'); a(f'v_add_u32 v{VA0}, s66, v43')
    a('s_lshl_b32 s66, s57, 2'); a(f'v_add_u32 v{VA4}, s66, v43')
def pre_epilogue():
    for r in range(3): a(f'buffer_load_dwordx4 v[{XR[r]}:{XR[r]+3}], v{FA[3*r+1]}, s[4:7], 0 offen {XP_}')
def v_loads():
    L = a.label('L_vl')
    a('s_mov_b32 s72, s56')
    for i in range(4):
        a(f'buffer_load_dwordx4 v[{VB0+4*i}:{VB0+3+4*i}], v{VA0}, s[12:15], s72 offen {LDH}')
        if i < 3: a(f's_add_u32 s72, s72, {17*2*VROW}')
    a('s_cmp_lg_u32 s3, 0'); a(f's_cbranch_scc1 {L}')
    a('s_mov_b32 s72, s56')
    for i in range(4):
        a(f'buffer_load_dwordx4 v[{VB1+4*i}:{VB1+3+4*i}], v{VA4}, s[12:15], s72 offen {LDH}')
        if i < 3: a(f's_add_u32 s72, s72, {17*2*VROW}')
    a(f'{L}:')

a('L_p2last:')
a('s_waitcnt vmcnt(0)')
lds_arrive(12, 2)
read_nonce(2)
p2_setup()
a('L_p2join:')
tick(7, 27)
NLATE = opt('nlate', 6)
WTOUCH = opt('wtouch', 0)
if WTOUCH:
    a('s_cmp_eq_u32 s35, 0'); a('s_cbranch_scc1 L_nwt')
    a('s_lshl_b32 s66, s32, 2'); a('s_add_u32 s66, s66, s44'); a('s_mul_i32 s66, s66, 23040')
    a('s_and_b32 s67, s38, 4'); a(f's_mul_i32 s67, s67, {48*5120}'); a('s_add_u32 s66, s66, s67'); a(f's_add_u32 s66, s66, {WS_WDT}')
    a('v_lshlrev_b32 v4, 7, v0')
    if WTOUCH == 2:
        for st in range(6): wdt_reg(st)
    for i in range(3):
        a(f'buffer_load_dword v8, v4, s[12:15], s66 offen {LDW}')
        if i < 2: a('s_add_u32 s66, s66, 8192')
    if WTOUCH == 2: a('s_branch L_p2d')
    a('L_nwt:')
for st in range(6): wdt_reg(st)
NLD = opt('nld', 2)
a('s_cmp_eq_u32 s35, 0')
a('s_cbranch_scc1 L_p2ffn')
if NLD < 6:
    for st in (6, 7): wdt_lds(st)
if NLD < 4:
    lds_wait('L_c8d', 16, 4)
    for st in (8, 9): wdt_lds(st)
a('s_branch L_p2d')
a('L_p2ffn:')
if NLATE < 6:
    for st in (6, 7): wdt_lds(st)
if NLATE < 4:
    lds_wait('L_c8', 16, 4)
    for st in (8, 9): wdt_lds(st)
if NLATE < 2:
    lds_wait('L_c9', 20, 4)
    for st in (10, 11): wdt_lds(st)
if AUXV:
    a('s_cmp_lg_u32 s44, 3'); a('s_cbranch_scc1 L_p2d')
    p2h_setup(); fv_addr(8, 9)
    a('s_mov_b32 s79, 0')
    a('L_av:')
    a('buffer_load_dword v9, v8, s[12:15], s60 offen sc1')
    a('s_waitcnt vmcnt(0)')
    a('v_cmp_ne_u32 vcc, s43, v9'); a('s_cmp_eq_u64 vcc, 0'); a('s_cbranch_scc1 L_av_ok')
    a('s_add_u32 s79, s79, 1'); a(f's_cmp_ge_u32 s79, {AUXV}'); a('s_cbranch_scc1 L_p2d')
    a('s_branch L_av')
    a('L_av_ok:')
    lds_arrive(28, 8)
a('L_p2d:')
tick(7, 28)
a(f'v_add_u32 v2, s73, v1')
a(f'v_add_u32 v3, {2*STG}, v2')
a('v_min_u32 v4, 5, v0'); a('v_lshrrev_b32 v5, 1, v4'); a('v_and_b32 v4, 1, v4'); a('v_lshlrev_b32 v4, 2, v4'); a('v_lshl_add_u32 v6, v5, 4, v4')
a('s_lshl_b32 s76, s36, 8'); a('s_mul_i32 s77, s44, 48'); a('s_add_u32 s76, s76, s77'); a('s_lshl_b32 s77, s37, 3'); a('s_add_u32 s76, s76, s77'); a(f's_add_u32 s76, s76, {WS_FH}')
a('s_lshl_b32 s74, s36, 3'); a('s_lshl_b32 s75, s37, 2'); a('s_add_u32 s74, s74, s75')
a('s_mul_i32 s74, s74, 48'); a('s_mul_i32 s75, s44, 12'); a('s_add_u32 s74, s74, s75'); a('s_lshl_b32 s74, s74, 10')
for i in range(80): a(f'v_mov_b32 v{P2ACC+i}, 0')
lds_wait('L_own', 0, 4, 5 if SENT else 4)
tick(7, 29)
stamp(2)
if TONE:
    a('s_cmp_eq_u32 s35, 0'); a('s_cbranch_scc1 L_p2f')
    for st in range(6, 12 - NLATE): wdt_lds(st)
    a('L_p2f:')
    for st in range(12 - NLATE, 12): wdt_lds(st)
    if HDLY: a(f's_sleep {HDLY}')

tick(7, 32)
def hsoff(step):
    kidx(step)
    a('s_lshl_b32 s72, s72, 10'); a(f's_add_u32 s72, s72, s74')
    if SENT: a(f's_mov_b32 s{66 + step % 4}, s72')
def hld(step, ni):
    r = P2H + 16*(step % 3) + 4*ni
    L = []
    if ni: L.append(f's_add_u32 s72, s72, {48*1024}')
    L.append(f'buffer_load_dwordx4 v[{r}:{r+3}], v1, {HSRD}, s72 offen {LDH}')
    return L
def hpoll(name, kp):
    spin_begin(name)
    a(f'buffer_load_dword v4, v6, s[12:15], s76 offen sc1')
    a('s_waitcnt vmcnt(0)')
    a(f'v_cmp_ne_u32 vcc, s43, v{4+kp}')
    a('s_cmp_eq_u64 vcc, 0')
    spin_end(name)
if not SENT: hpoll('L_pollh0', 0)
else: a('s_waitcnt vmcnt(0)'); a('s_mov_b32 s79, 0')
if VGO:
    a(f'v_mov_b32 v4, {L_CNT}'); a('v_mov_b32 v5, 1'); a('ds_write_b32 v4, v5 offset:40')
stamp(3)
tick(7, 33)
for st in range(3):
    hsoff(st)
    for ni in range(4):
        for ins in hld(st, ni): a(ins)
def pwrite(ni):
    return [f'ds_write_b128 v{2 if PT[ei] < 2*STG else 3}, v[{P2ACC+16*ei+4*ni}:{P2ACC+16*ei+4*ni+3}] offset:{PT[ei] + ni*PN - (0 if PT[ei] < 2*STG else 2*STG)}' for ei in range(5)]
for st in range(12):
    rem = min(2, 11 - st)
    RDD = opt('rdd', 2)
    if st == 6 - RDD: lds_wait('L_lw', 36, 4)
    if st < 9: hsoff(st + 3)
    if st == 11:
        a('v_and_b32 v2, 15, v0'); a('v_lshrrev_b32 v4, 4, v0')
        a(f'v_mul_u32_u24 v4, {PQ}, v4'); a('v_lshl_add_u32 v2, v2, 4, v4'); a('v_add_u32 v2, s73, v2'); a(f'v_add_u32 v3, {2*STG}, v2')
    a(f's_waitcnt vmcnt({4*rem})' + (' lgkmcnt(0)' if st >= 6 else ''))
    hb = P2H + 16*(st % 3)
    if SENT:
        a(f'L_hchk{st}:')
        a(f'v_max_u32 v4, v{hb}, v{hb+4}'); a(f'v_max3_u32 v4, v{hb+8}, v{hb+12}, v4')
        a('v_cmp_eq_u32 vcc, -1, v4'); a('s_cmp_lg_u64 vcc, 0')
        a(f's_cbranch_scc1 L_hretry{st}')
        a(f'L_hok{st}:')
    tick(7, 36 + st)
    w0 = P2W_R + 20*(st % 6)
    rd = []
    if 6 <= st + RDD <= 11:
        wr = P2W_R + 20*((st + RDD) % 6)
        for ei in range(5):
            o = P2STEP[st + RDD - 6] + ei*1024
            rd.append(f'ds_read_b128 v[{wr+4*ei}:{wr+4*ei+3}], v{2 if o < 2*STG else 3} offset:{o if o < 2*STG else o - 2*STG}')
    for ni in range(4):
        for ei in (range(5) if ni % 2 == 0 else range(4, -1, -1)):
            t = P2ACC + 16*ei + 4*ni
            h = hb + 4*ni
            a(f'v_mfma_f32_16x16x32_bf16 v[{t}:{t+3}], v[{w0+4*ei}:{w0+4*ei+3}], v[{h}:{h+3}], v[{t}:{t+3}]')
            if rd: a(rd.pop(0))
        if st < 9:
            for ins in hld(st + 3, ni): a(ins)
        if st == 11 and ni >= 2:
            for w in pwrite(ni - 2): a(w)
for w in pwrite(2): a(w)
a('s_nop 3')
for w in pwrite(3): a(w)
stamp(4)
tick(7, 48)
a('s_waitcnt lgkmcnt(0)')
a('s_barrier')
tick_dump(7, 4)
a('s_branch L_fin2')
if SENT:
    for st in range(12):
        a(f'L_hretry{st}:')
        a('s_add_u32 s79, s79, 1'); a(f's_cmp_ge_u32 s79, {SPINMAX}')
        if STAMPS: a(f's_cselect_b32 s101, {60 + st}, s101')
        a(f's_cbranch_scc1 L_hok{st}')
        if RSL: a(f's_sleep {RSL}')
        a(f's_mov_b32 s77, s{66 + st % 4}')
        for ni in range(4):
            r = P2H + 16*(st % 3) + 4*ni
            if ni: a(f's_add_u32 s77, s77, {48*1024}')
            a(f'buffer_load_dwordx4 v[{r}:{r+3}], v1, {HSRD}, s77 offen {LDH}')
        a('s_waitcnt vmcnt(0)')
        a(f's_branch L_hchk{st}')

a('L_aux:')
if opt('aprio', 0): a(f"s_setprio {opt('aprio', 0)}")
common_srds()
AB = 248
a('v_mov_b32 v1, 0'); a(f'v_mov_b32 v3, {L_CNT}')
a('s_mov_b64 exec, 1')
a('s_cmp_lg_u32 s2, 0'); a('s_cbranch_scc1 L_aux_n0')
a('s_memrealtime s[66:67]'); a('s_waitcnt lgkmcnt(0)'); a('s_or_b32 s66, s66, 1'); a('v_mov_b32 v2, s66')
a('buffer_store_dword v2, v1, s[24:27], 0 offen sc1')
a('L_aux_n0:')
[a(f'ds_write_b32 v3, v1 offset:{4*i}') for i in range(11)]
a('s_mov_b64 exec, -1')
if CODEPF:
    a('s_getpc_b64 s[66:67]')
    a('L_pcref:')
    a(f's_sub_u32 s66, s66, L_pcref-{KNAME}'); a('s_subb_u32 s67, s67, 0')
    a('s_lshl_b32 s68, s41, 3')
    a('v_and_b32 v4, 7, v0'); a('v_add_u32 v4, s68, v4'); a('v_lshlrev_b32 v4, 7, v4')
    a(f'v_min_u32 v4, L_done-{KNAME}, v4')
    a('s_mov_b64 exec, 0xff')
    a(f'global_load_dword v{AB+7}, v4, s[66:67]')
    a('s_mov_b64 exec, -1')
if PFW:
    pf_first, pf_n0 = map(int, PFW.split(','))
    a('v_lshrrev_b32 v14, 4, v0'); a('s_mul_i32 s66, s30, 3'); a('v_add_u32 v14, s66, v14'); a('v_lshlrev_b32 v14, 8, v14')
    a('v_bfe_u32 v15, v0, 1, 3'); a('s_lshl_b32 s66, s32, 3'); a('v_add_u32 v15, s66, v15'); a(f'v_mul_u32_u24 v15, {F*2}, v15'); a('v_add_u32 v14, v14, v15')
    a('v_and_b32 v15, 1, v0'); a('v_lshl_add_u32 v14, v15, 7, v14')
    srd(a, 8, 48, D*F*2); srd(a, 52, 50, D*F*2)
    a(f's_add_u32 s64, s34, {pf_first}'); a(f's_mov_b32 s61, {pf_first}')
    def pfw():
        L = a.label('L_pf')
        a('s_cmp_eq_u32 s35, 0'); a(f's_cbranch_scc1 {L}')
        a(f"s_cmp_ge_u32 s61, {opt('pfl', 6)}"); a(f's_cbranch_scc1 {L}')
        a('s_cmp_ge_u32 s64, 10'); a('s_cselect_b32 s66, 10, 0'); a('s_sub_u32 s64, s64, s66'); a(f's_mul_i32 s66, s64, {64*F*2}')
        a('s_mov_b32 exec_hi, 0xffff')
        a(f'buffer_load_dword v15, v14, s[8:11], s66 offen {PFP}'); a(f'buffer_load_dword v15, v14, s[52:55], s66 offen {PFP}')
        a('s_mov_b64 exec, -1')
        a('s_add_u32 s64, s64, 1'); a('s_add_u32 s61, s61, 1')
        a(f'{L}:')
    for _ in range(pf_n0): pfw()
else:
    def pfw(): pass
for i in range(48, 56): a(f'v_mov_b32 v{i}, 0')
a('v_lshrrev_b32 v4, 2, v0'); a('v_and_b32 v5, 3, v4'); a('v_bfe_u32 v6, v4, 3, 1'); a('v_lshl_or_b32 v5, v6, 2, v5'); a('v_lshlrev_b32 v5, 1, v5')
a('s_and_b32 s66, s32, 3'); a('s_lshl_b32 s66, s66, 2')
a('v_and_b32 v6, 3, v0'); a('v_add_u32 v6, s66, v6'); a('v_xor_b32 v5, v5, v6')
a('v_lshlrev_b32 v4, 8, v4'); a(f'v_lshl_add_u32 v{AB+1}, v5, 4, v4')
a('s_lshr_b32 s66, s32, 2'); a('s_lshl_b32 s66, s66, 14'); a(f'v_add_u32 v{AB+1}, s66, v{AB+1}')
a('s_cmp_eq_u32 s35, 0'); a('s_cbranch_scc1 L_aux_w')
a('s_and_b32 s67, s32, 3'); a(f's_mul_i32 s67, s67, {20*128}'); a('s_add_u32 s66, s66, s67')
a(f'v_lshlrev_b32 v{AB+1}, 4, v0'); a(f'v_add_u32 v{AB+1}, s66, v{AB+1}')
a('L_aux_w:')
a('s_mov_b32 s46, 0')
a('s_lshl_b32 s77, s29, 1'); a('s_add_u32 s77, s77, s31'); a('s_lshl_b32 s77, s77, 11'); a('s_lshr_b32 s67, s32, 2'); a('s_lshl_b32 s67, s67, 10'); a('s_add_u32 s77, s77, s67'); a(f's_add_u32 s77, s77, {WS_WP}')
a('s_and_b32 s67, s32, 3'); a('s_cmp_eq_u32 s35, 1'); a('s_cselect_b32 s68, 20, 32'); a('s_mul_i32 s67, s67, s68'); a('s_lshl_b32 s67, s67, 3'); a('s_add_u32 s77, s77, s67')
a(f'v_min_u32 v{AB+6}, 47, v0'); a(f'v_lshlrev_b32 v{AB+6}, 2, v{AB+6}')
a('s_mul_i32 s74, s38, 80'); a('s_add_u32 s75, s74, 79'); a('s_lshr_b32 s74, s74, 7'); a('s_lshr_b32 s75, s75, 7')
a('s_lshl_b32 s74, s74, 8'); a('s_lshl_b32 s75, s75, 8'); a(f's_add_u32 s74, s74, {WS_FW}'); a(f's_add_u32 s75, s75, {WS_FW}')
if SENT:
    for i in range(4): a(f'v_mov_b32 v{8+i}, -1')
    a('v_lshlrev_b32 v12, 4, v0')
    a(f's_mul_i32 s76, s28, {8*48*1024}')
    if RDFT: a('s_mul_i32 s67, s30, 12288')
    else: a('s_lshl_b32 s67, s29, 12')
    a('s_add_u32 s76, s76, s67')
a('s_mov_b32 s47, 0')
a('s_waitcnt lgkmcnt(0)')
a('L_aux_l:')
tick(7, ('s47', 0))
a('s_barrier')
tick(7, ('s47', 16))
pfw()
a(f'v_add_u32 v{AB+3}, s46, v{AB+1}')
a(f's_cmp_lg_u32 s47, {NONIT-1}'); a('s_cbranch_scc1 L_aux_nb')
a('s_mov_b64 exec, 1'); a('buffer_load_dword v2, v1, s[24:27], 0 offen sc1'); a('s_mov_b64 exec, -1')
a('L_aux_nb:')
a(f's_cmp_lg_u32 s47, {NONIT}'); a('s_cbranch_scc1 L_aux_na')
a('s_mov_b32 s79, 0')
a('L_non:')
a('s_waitcnt vmcnt(0)')
a('v_readfirstlane_b32 s43, v2')
a('s_cmp_lg_u32 s43, 0'); a('s_cbranch_scc1 L_non_ok')
a('s_add_u32 s79, s79, 1'); a(f's_cmp_ge_u32 s79, {SPINMAX}'); (a('s_cselect_b32 s101, 51, s101') if STAMPS else None); a('s_cbranch_scc1 L_non_ok')
a('s_sleep 4')
a('s_mov_b64 exec, 1'); a('buffer_load_dword v2, v1, s[24:27], 0 offen sc1'); a('s_mov_b64 exec, -1')
a('s_branch L_non')
a('L_non_ok:')
a('v_mov_b32 v2, s43'); a(f'v_mov_b32 v3, {L_NON}'); a('ds_write_b32 v3, v2')
a('s_cmp_ge_u32 s2, 240'); a('s_cbranch_scc1 L_aux_na')
a(f's_mul_hi_u32 s66, s2, {-(-(1<<32)//5)}'); a('s_mul_i32 s67, s66, 5'); a('s_sub_u32 s67, s2, s67')
a('s_lshl_b32 s67, s67, 8'); a('s_lshl_b32 s66, s66, 2'); a('s_add_u32 s66, s66, s67'); a(f's_add_u32 s66, s66, {WS_FW}')
a('s_mov_b64 exec, 1'); a('buffer_store_dword v2, v1, s[12:15], s66 offen sc1'); a('s_mov_b64 exec, -1')
a('L_aux_na:')
def fw_ask():
    a(f'buffer_load_dword v{AB+2}, v{AB+6}, s[12:15], s74 offen sc1'); a(f'buffer_load_dword v{AB+3}, v{AB+6}, s[12:15], s75 offen sc1')
def fw_ask2():
    a(f'buffer_load_dword v62, v{AB+6}, s[12:15], s74 offen sc1'); a(f'buffer_load_dword v63, v{AB+6}, s[12:15], s75 offen sc1')
def fw_check(nm):
    a('s_mov_b32 s79, 0')
    a(f'{nm}:')
    a('s_waitcnt vmcnt(0)')
    a('v_cmp_ne_u32 vcc, s43, v62'); a('v_cmp_ne_u32 s[66:67], s43, v63'); a('s_or_b64 vcc, vcc, s[66:67]')
    a(f's_cbranch_scc0 {nm}_ok')
    a('s_add_u32 s79, s79, 1'); a(f's_cmp_ge_u32 s79, {SPINMAX}'); (a('s_cselect_b32 s101, 52, s101') if STAMPS else None); a(f's_cbranch_scc1 {nm}_ok')
    a('s_sleep 4')
    fw_ask2()
    a(f's_branch {nm}')
    a(f'{nm}_ok:')

T0, T1 = AB + 4, AB + 5
if SENT:
    RS0 = opt('rs0', 4)
    def resets(n):
        L = a.label('L_rs')
        a(f's_cmp_eq_u32 s35, {0 if RDFT else 1}'); a(f's_cbranch_scc1 {L}')
        if RDFT:
            for t in range(n // 12):
                for g in range(3):
                    for i in range(4): a(f'buffer_store_dwordx4 v[8:11], v12, s[12:15], s76 offen offset:{i*1024} sc1')
                    a(f's_add_u32 s76, s76, {4096 if g < 2 else 48*1024 - 8192}')
        else:
            for i in range(n):
                a(f'buffer_store_dwordx4 v[8:11], v12, s[12:15], s76 offen offset:{(i % 4)*1024} sc1')
                if i % 4 == 3: a(f's_add_u32 s76, s76, {48*1024}')
        a(f'{L}:')
    a(f's_cmp_lt_u32 s47, {RS0}'); a('s_cbranch_scc1 L_aux_nr')
    resets(12 if RDFT else 8)
    a('L_aux_nr:')
a('s_cmp_eq_u32 s35, 1'); a('s_cbranch_scc1 L_aux_c')
for i in range(4): a(f'ds_read_b128 v[{24+4*i}:{27+4*i}], v{AB+3} offset:{i*4096}')
a('s_waitcnt lgkmcnt(0)')
for i in range(4):
    for d in range(4):
        r = 24 + 4*i + d
        a(f'v_lshlrev_b32 v{T0}, 16, v{r}'); a(f'v_and_b32 v{T1}, 0xffff0000, v{r}')
        a(f'v_add_f32 v{48+2*d}, v{48+2*d}, v{T0}'); a(f'v_add_f32 v{49+2*d}, v{49+2*d}, v{T1}')
a('s_branch L_aux_x')
a('L_aux_c:')
for i in range(3): a(f'ds_read_b128 v[{24+4*i}:{27+4*i}], v{AB+3} offset:{i*1024}')
a('s_waitcnt lgkmcnt(0)')
for i in range(3):
    for d in range(4):
        r = 24 + 4*i + d
        a(f'v_lshlrev_b32 v{T0}, 16, v{r}'); a(f'v_and_b32 v{T1}, 0xffff0000, v{r}')
        a(f'v_add_f32 v{48+2*i}, v{48+2*i}, v{T0}'); a(f'v_add_f32 v{49+2*i}, v{49+2*i}, v{T1}')
a('L_aux_x:')
a(f's_add_u32 s46, s46, {STG}'); a(f's_cmp_eq_u32 s46, {3*STG}'); a('s_cselect_b32 s46, 0, s46')
a('s_add_u32 s47, s47, 1'); a('s_cmp_lt_u32 s47, 5'); a('s_cbranch_scc1 L_aux_l')
tick(7, 5)
a('s_barrier')
tick(7, 21)
pfw()
if RDFT: resets(12*(RS0 + 3 - (RS0 + 3)//2))
elif RS0 >= 2: resets(12 if RS0 == 4 else 8)
p2_setup()
def red8(regs):
    for mod in ('quad_perm:[1,0,3,2]', 'quad_perm:[2,3,0,1]', 'row_half_mirror'):
        a('s_nop 1')
        for r in regs: a(f'v_add_f32_dpp v{r}, v{r}, v{r} {mod} row_mask:0xf bank_mask:0xf')
a('s_cmp_eq_u32 s35, 1'); a('s_cbranch_scc1 L_aux_pc')
for mod in ('row_ror:4', 'row_ror:8'):
    a('s_nop 1')
    for r in range(48, 56): a(f'v_add_f32_dpp v{r}, v{r}, v{r} {mod} row_mask:0xf bank_mask:0xf')
for sw in ('v_permlane16_swap_b32', 'v_permlane32_swap_b32'):
    for r in range(48, 56): a(f'v_mov_b32 v{r-24}, v{r}')
    a('s_nop 1')
    for r in range(48, 56): a(f'{sw} v{r}, v{r-24}')
    a('s_nop 1')
    for r in range(48, 56): a(f'v_add_f32 v{r}, v{r}, v{r-24}')
for d in range(4):
    a(f'v_cmp_eq_u32 vcc, {d}, v6') if d else a('v_lshrrev_b32 v6, 2, v0')
    if d == 0:
        a('v_mov_b32 v24, v48'); a('v_mov_b32 v26, v49')
    else:
        a('s_nop 1'); a(f'v_cndmask_b32 v24, v24, v{48+2*d}, vcc'); a(f'v_cndmask_b32 v26, v26, v{49+2*d}, vcc')
a('v_mov_b32 v25, s43'); a('v_mov_b32 v27, s43')
a('v_and_b32 v4, 3, v0'); a('v_lshlrev_b32 v4, 6, v4'); a('v_lshl_add_u32 v4, v6, 4, v4')
a('s_mov_b64 exec, 0xffff')
a('buffer_store_dwordx4 v[24:27], v4, s[12:15], s77 offen sc1')
a('s_branch L_aux_pub')
a('L_aux_pc:')
for i in range(3): a(f'v_add_f32 v{48+i*2}, v{48+i*2}, v{49+i*2}')
red8([48, 50, 52])
for i in range(3): a(f'v_mov_b32 v{49+i*2}, s43')
a('s_mov_b32 exec_lo, 0x01010101'); a('s_mov_b32 exec_hi, 0x01010101')
a('buffer_store_dwordx2 v[48:49], v0, s[12:15], s77 offen sc1')
a('buffer_store_dwordx2 v[50:51], v0, s[12:15], s77 offen offset:64 sc1')
a('s_mov_b32 exec_hi, 0')
a('buffer_store_dwordx2 v[52:53], v0, s[12:15], s77 offen offset:128 sc1')
a('L_aux_pub:')
a('s_mov_b64 exec, -1')
tick(7, 6)
a('s_barrier')
tick(7, 22)
pfw()
if RDFT: resets(12*((RS0 + 3)//2))
elif RS0 >= 3: resets(12 if RS0 == 4 else 8)
fw_ask2()
tick(7, 7)
a('s_barrier')
tick(7, 23)
fw_check('L_pollwf')
if SENT:
    a('s_lshl_b32 s66, s28, 8'); a('s_lshl_b32 s67, s29, 2'); a('s_add_u32 s66, s66, s67'); a(f's_add_u32 s66, s66, {WS_FH}')
    a('v_mov_b32 v4, s43'); a('v_mov_b32 v5, 0')
    a('s_waitcnt vmcnt(0)')
    a('s_mov_b64 exec, 1'); a('buffer_store_dword v4, v5, s[12:15], s66 offen sc1'); a('s_mov_b64 exec, -1')
a('s_lshl_b32 s66, s28, 13'); a(f's_add_u32 s66, s66, {WS_XP}'); a('s_add_u32 s68, s66, 4096')
a('s_lshl_b32 s67, s29, 12'); a(f's_add_u32 s67, s67, {WS_WP}')
def gather():
    for i in range(8): a(f'buffer_load_dwordx4 v[{8+4*i}:{11+4*i}], v1, s[12:15], s{66 if i < 4 else 68} offen offset:{(i%4)*1024} sc1')
    for i in range(4): a(f'buffer_load_dwordx4 v[{40+4*i}:{43+4*i}], v1, s[12:15], s67 offen offset:{i*1024} sc1')
    a(f'buffer_load_dword v{AB+1}, v{AB}, s[12:15], s65 offen sc1')
a(f's_mov_b32 s65, {WS_FH}')
if RDFT:
    a(f'v_and_b32 v{AB}, 3, v0'); a(f'v_lshlrev_b32 v{AB}, 2, v{AB}'); a('s_lshl_b32 s69, s36, 8'); a('s_add_u32 s69, s69, 48'); a(f'v_add_u32 v{AB}, s69, v{AB}')
    a('s_lshl_b32 s69, s28, 8'); a('s_lshl_b32 s64, s30, 2'); a('s_add_u32 s69, s69, s64'); a('s_add_u32 s69, s69, 48'); a('v_mov_b32 v4, s69')
    a('v_cmp_gt_u32 vcc, 16, v0'); a('s_nop 1'); a(f'v_cndmask_b32 v{AB}, v4, v{AB}, vcc')
else:
    a(f'v_min_u32 v{AB}, 11, v0'); a(f'v_lshlrev_b32 v{AB}, 2, v{AB}'); a('s_lshl_b32 s69, s36, 8'); a(f'v_add_u32 v{AB}, s69, v{AB}')
gather()
a('s_cmp_eq_u32 s35, 1'); a('s_cselect_b32 s69, 40, 64'); a('v_cmp_gt_u32 s[76:77], s69, v0')
tick(7, 8)
a('s_barrier')
tick(7, 24)
a('s_mov_b32 s79, 0')
a('s_waitcnt vmcnt(0)')
a('L_gchk:')
a(f'v_xor_b32 v2, s43, v{AB+1}'); a('s_sub_u32 s64, s35, 1' if RDFT else 's_mov_b32 s64, 0'); a('v_and_b32 v2, s64, v2')
for i in range(0, 8): a(f'v_xor_b32 v3, s43, v{10+4*i}'); a('v_or_b32 v2, v2, v3')
a('v_xor_b32 v4, s43, v41')
for r in (43, 45, 47, 49, 51, 53, 55): a(f'v_xor_b32 v3, s43, v{r}'); a('v_or_b32 v4, v4, v3')
a('v_cmp_ne_u32 vcc, 0, v4'); a('s_and_b64 s[74:75], vcc, s[76:77]')
a('v_cmp_ne_u32 vcc, 0, v2'); a('s_or_b64 s[74:75], s[74:75], vcc')
a('s_cbranch_scc0 L_gok')
a('s_add_u32 s79, s79, 1'); a(f's_cmp_ge_u32 s79, {SPINMAX}'); (a('s_cselect_b32 s101, 50, s101') if STAMPS else None); a('s_cbranch_scc1 L_gok')
a('s_sleep 4')
gather()
a('s_waitcnt vmcnt(0)')
a('s_branch L_gchk')
a('L_gok:')
tick(7, 9)
for h in range(2):
    for d in range(2):
        b = 8 + 4*h + d
        a(f'v_add_f32 v{b}, v{b}, v{b+8}'); a(f'v_add_f32 v{b+16}, v{b+16}, v{b+24}'); a(f'v_add_f32 v{b}, v{b}, v{b+16}')
    a(f'v_add_f32 v{40+4*h}, v{40+4*h}, v{48+4*h}'); a(f'v_add_f32 v{41+4*h}, v{42+4*h}, v{50+4*h}')
a('v_lshlrev_b32 v2, 3, v0'); a(f'v_add_u32 v2, {L_CS}, v2')
a('ds_write_b64 v2, v[40:41]'); a('ds_write_b64 v2, v[44:45] offset:512')
for (s_, q_, ro, mo) in ((8, 9, 16, 18), (12, 13, 17, 19)):
    a(f'v_mul_f32 v{mo}, {1.0/D!r}, v{s_}')
    a(f'v_mul_f32 v{q_}, {1.0/D!r}, v{q_}')
    a(f'v_fma_f32 v{q_}, -v{mo}, v{mo}, v{q_}')
    a(f'v_max_f32 v{q_}, 0, v{q_}')
    rbf(mo); rbf(q_)
    a(f'v_add_f32 v{q_}, 0x3727c5ac, v{q_}')
    rbf(q_)
    a(f'v_sqrt_f32 v{q_}, v{q_}'); a('s_nop 0')
    rbf(q_)
    a(f'v_rcp_f32 v{ro}, v{q_}')
    a(f'v_fmac_f32 v{s_}, {-float(D)!r}, v{mo}')
    a(f'v_mul_f32 v{s_}, v{s_}, v{ro}')
a('v_lshlrev_b32 v2, 2, v0'); a(f'v_add_u32 v2, {L_R}, v2')
a(f'ds_write_b32 v2, v8 offset:{L_A0 - L_R}'); a(f'ds_write_b32 v2, v12 offset:{L_A0 - L_R + 256}')
a('ds_write_b32 v2, v16'); a('ds_write_b32 v2, v17 offset:256'); a('ds_write_b32 v2, v18 offset:512'); a('ds_write_b32 v2, v19 offset:768')
lds_arrive(24, 2)
tick(7, 10)
a(f'v_cmp_ne_u32 vcc, s43, v{AB+1}'); a('s_cmp_eq_u64 vcc, 0'); a('s_cbranch_scc1 L_pollr_ok')
spin_begin('L_pollr')
a(f'buffer_load_dword v{AB+1}, v{AB}, s[12:15], s65 offen sc1')
a('s_waitcnt vmcnt(0)')
a(f'v_cmp_ne_u32 vcc, s43, v{AB+1}'); a('s_cmp_eq_u64 vcc, 0')
spin_end('L_pollr')
lds_arrive(0, 2)
if opt('aprio', 0): a('s_setprio 0')
a('s_branch L_p2join')

a('L_compute:')
common_srds()
a(f's_mov_b32 s50, {(-2*STG) & 0xffffffff}'); a(f's_mov_b32 s51, {STG}')
a('s_mov_b32 s46, 0'); a('s_mov_b32 s47, 0')
p2h_setup()
a('v_lshrrev_b32 v2, 4, v0')
a('v_and_b32 v3, 15, v0')
a('v_bfe_u32 v6, v0, 1, 3'); a('v_xor_b32 v6, v6, v2')
def wd_issue():
    Lw = a.label('L_nowd')
    a(f"s_cmp_ge_u32 s2, {0 if opt('nowd', 0) else 240}")
    a(f's_cbranch_scc1 {Lw}')
    a(f's_mul_hi_u32 s76, s2, {-(-(1<<32)//5)}'); a('s_mul_i32 s77, s76, 5'); a('s_sub_u32 s77, s2, s77')
    a('v_lshrrev_b32 v36, 2, v0'); a('v_and_b32 v37, 3, v0')
    a(f'v_mul_u32_u24 v38, {D*2}, v36'); a('v_lshl_add_u32 v38, v37, 4, v38')
    a(f's_mul_i32 s68, s76, {32*D*2}'); a('s_lshl_b32 s69, s77, 8'); a('s_add_u32 s68, s68, s69'); a('s_lshl_b32 s69, s3, 6'); a('s_add_u32 s68, s68, s69')
    a('s_lshl_b32 s70, s3, 11'); a(f's_add_u32 s70, s70, {L_WD}')
    a('s_mov_b32 m0, s70'); a('s_nop 0')
    a(f'buffer_load_dwordx4 v38, s[20:23], s68 offen {WP_} lds')
    a('s_add_u32 m0, s70, 1024'); a(f's_add_u32 s68, s68, {16*D*2}')
    a(f'buffer_load_dwordx4 v38, s[20:23], s68 offen {WP_} lds')
    a(f'{Lw}:')
WDL = opt('wdlate', 1)
if WDL == 0: wd_issue()
def wd_finish():
    if WDL == 2: wd_issue()
    L = a.label('L_wdf')
    a(f"s_cmp_ge_u32 s2, {0 if opt('nowd', 0) else 240}"); a(f's_cbranch_scc1 {L}')
    a('v_lshlrev_b32 v36, 6, v36'); a('v_lshl_add_u32 v36, v37, 3, v36'); a('v_add_u32 v36, s70, v36')
    a('v_lshlrev_b32 v37, 4, v0')
    a('s_lshl_b32 s77, s77, 3'); a('s_lshl_b32 s68, s3, 1'); a('s_add_u32 s77, s77, s68')
    a(f's_mul_i32 s76, s76, 5120'); a(f's_add_u32 s76, s76, {WS_WDT}')
    a('s_waitcnt vmcnt(0)')
    for e in range(2):
        for b in range(2):
            a(f'ds_read_b64_tr_b16 v[{48+4*e+2*b}:{49+4*e+2*b}], v36 offset:{32*e + 1024*b}')
    for e in range(2):
        a(f's_add_u32 s68, s77, {e}')
        a(f's_mul_hi_u32 s69, s68, {-(-(1<<32)//5)}')
        a('s_mul_i32 s70, s69, 5'); a('s_sub_u32 s70, s68, s70')
        a(f's_mul_i32 s69, s69, {48*5120}'); a('s_lshl_b32 s70, s70, 10')
        a('s_add_u32 s69, s69, s70'); a('s_add_u32 s69, s69, s76')
        a('s_waitcnt lgkmcnt(0)')
        a(f'buffer_store_dwordx4 v[{48+4*e}:{51+4*e}], v37, s[12:15], s69 offen sc1')
    a(f'{L}:')
pre_loop()
if WDL == 1: wd_issue()
a('s_cmp_eq_u32 s35, 1')
a('s_cbranch_scc1 L_dft')
def interleave(M, R):
    out = []; R = list(R)
    for m in M:
        out.append(m)
        if R: out.append(R.pop(0))
    return out + R
tails = []
def mid_sync(last):
    L = a.label('L_ms')
    a('s_cmp_ge_u32 s47, 8'); a(f's_cbranch_scc1 {L}_t')
    a('s_barrier')
    a(f'{L}_b:')
    tails.append((L, last))
CNTRD = 'ds_read2_b32 v[14:15], v6 offset0:3 offset1:6'
def emit_tails():
    for L, last in tails:
        a(f'{L}_t:')
        a('s_mov_b64 exec, 1')
        a('s_cmp_eq_u32 s47, 9'); a(f's_cbranch_scc1 {L}_9')
        a('ds_add_u32 v6, v5 offset:16')
        a('s_mov_b64 exec, -1')
        a('v_readfirstlane_b32 s78, v14')
        a('s_cmp_ge_u32 s78, 3'); a(f's_cbranch_scc1 {L}_b')
        lds_wait(f'{L}_w', 12, 14, 3)
        a(f's_branch {L}_b')
        a(f'{L}_9:')
        a('ds_add_u32 v6, v5 offset:20')
        a('s_mov_b64 exec, -1')
        a(f's_branch {last}')
def stats_wait(name):
    a('v_readfirstlane_b32 s78, v15')
    a('s_cmp_ge_u32 s78, 1'); a(f's_cbranch_scc1 {name}_ok')
    lds_wait(name, 24, 14, 1)
def slot_advance():
    a('s_add_u32 s46, s46, 1'); a('s_cmp_eq_u32 s46, 3'); a('s_cselect_b32 s42, s50, s51'); a('s_cselect_b32 s46, 0, s46')
ACC = 128
def T16(mat, mi, ni): return ACC + 64*mat + 16*mi + 4*ni
FR = 32
def fW(p, mat, mi): return FR + 48*p + 16*mat + 4*mi
def fX(p, ni): return FR + 48*p + 32 + 4*ni
AW, AX = 8, 12
a('s_and_b32 s44, s3, 1'); a('s_lshr_b32 s45, s3, 1')
SPF = opts.get('spf', '')
if SPF:
    a('s_load_dwordx4 s[80:83], s[0:1], 48') if STAMPS == 0 else a('s_load_dwordx4 s[72:75], s[0:1], 48')
    wb = 80 if STAMPS == 0 else 72
    a('s_waitcnt lgkmcnt(0)')
    a('s_cmp_ge_u32 s3, 2'); a('s_cbranch_scc1 L_spx')
    a('s_cmp_eq_u32 s3, 1'); a(f's_cselect_b32 s62, s{wb+2}, s{wb}'); a(f's_cselect_b32 s63, s{wb+3}, s{wb+1}')
    a(f's_mul_i32 s66, s32, {8*F*2}'); a('s_lshl_b32 s67, s29, 8'); a('s_add_u32 s66, s66, s67'); a('s_add_u32 s62, s62, s66'); a('s_addc_u32 s63, s63, 0')
    for dc in map(int, SPF.split(',')):
        a(f's_add_u32 s66, s34, {dc}'); a('s_cmp_ge_u32 s66, 10'); a('s_cselect_b32 s67, 10, 0'); a('s_sub_u32 s66, s66, s67'); a(f's_mul_i32 s66, s66, {64*F*2}')
        a('s_add_u32 s52, s62, s66'); a('s_addc_u32 s53, s63, 0')
        for i in range(16): a(f's_load_dword s54, s[52:53], {(i >> 1)*F*2 + (i & 1)*128}')
    a('s_branch L_spd')
    a('L_spx:')
    a('s_lshl_b32 s66, s33, 1'); a('s_add_u32 s66, s66, s44'); a('s_lshl_b32 s66, s66, 4'); a('s_add_u32 s66, s66, s28'); a(f's_mul_i32 s66, s66, {D*2}')
    a(f's_add_u32 s66, s66, {4*128*D*2}'); a('s_add_u32 s62, s64, s66'); a('s_addc_u32 s63, s65, 0')
    for dc in map(int, SPF.split(',')):
        a(f's_add_u32 s66, s34, {dc}'); a('s_cmp_ge_u32 s66, 10'); a('s_cselect_b32 s67, 10, 0'); a('s_sub_u32 s66, s66, s67'); a('s_lshl_b32 s66, s66, 7')
        a('s_add_u32 s52, s62, s66'); a('s_addc_u32 s53, s63, 0')
        for i in range(8): a(f's_load_dword s54, s[52:53], {(i-4)*128*D*2}')
        a(f's_add_u32 s52, s52, {8*128*D*2}'); a('s_addc_u32 s53, s53, 0')
        for i in range(8): a(f's_load_dword s54, s[52:53], {(i-4)*128*D*2}')
    a('L_spd:')
a('v_bfe_u32 v7, v0, 2, 2')
a('v_lshl_add_u32 v4, v2, 3, v7'); a('v_lshlrev_b32 v4, 8, v4')
a('v_bfe_u32 v5, v0, 1, 1'); a('v_lshl_add_u32 v4, v5, 4, v4')
a('v_and_b32 v5, 1, v0'); a('v_lshl_add_u32 v4, v5, 3, v4')
a('v_and_b32 v5, 1, v2'); a('v_lshl_or_b32 v5, v5, 2, v7')
for mi in range(4):
    a('s_lshl_b32 s66, s44, 2'); a(f's_add_u32 s66, s66, {mi}')
    a('v_xor_b32 v7, s66, v5')
    a(f'v_lshl_add_u32 v{AW+mi}, v7, 5, v4')
a('s_lshl_b32 s66, s45, 13'); a('s_add_u32 s66, s66, 32768')
a('v_lshlrev_b32 v5, 7, v3'); a('v_add_u32 v5, s66, v5')
for ks in range(2):
    a(f'v_xor_b32 v7, {4*ks}, v6')
    a(f'v_lshl_add_u32 v{AX+ks}, v7, 4, v5')
for i in range(128): a(f'v_mov_b32 v{ACC+i}, 0')
def f_reads(p, ks):
    L = []
    def w(mat, mi):
        for b in range(2):
            L.append(f'ds_read_b64_tr_b16 v[{fW(p,mat,mi)+2*b}:{fW(p,mat,mi)+2*b+1}], v{AW+mi} offset:{mat*16384 + ks*8192 + b*1024}')
    w(0, 0)
    for ni in range(4): L.append(f'ds_read_b128 v[{fX(p,ni)}:{fX(p,ni)+3}], v{AX+ks} offset:{ni*2048}')
    for mat in range(2):
        for mi in range(4):
            if (mat, mi) != (0, 0): w(mat, mi)
    return L
def f_mfmas(p):
    L = []
    for i, (mat, mi) in enumerate([(mat, mi) for mat in range(2) for mi in range(4)]):
        for ni in (range(4) if i % 2 == 0 else range(3, -1, -1)):
            t = T16(mat, mi, ni)
            L.append(f'v_mfma_f32_16x16x32_bf16 v[{t}:{t+3}], v[{fW(p,mat,mi)}:{fW(p,mat,mi)+3}], v[{fX(p,ni)}:{fX(p,ni)+3}], v[{t}:{t+3}]')
    return L
wd_finish()
a('v_mov_b32 v5, 1'); a(f'v_mov_b32 v6, {L_CNT}')
tick(7, 0)
a('s_barrier')
tick(7, 16)
stamp(1)
for r in f_reads(0, 0): a(r)
a('L_floop:')
a('s_waitcnt lgkmcnt(0)')
UPD = ['s_add_u32 s46, s46, 1', 's_cmp_eq_u32 s46, 3', 's_cselect_b32 s42, s50, s51', 's_cselect_b32 s46, 0, s46'] + [f'v_add_u32 v{r}, s42, v{r}' for r in (AW, AW+1, AW+2, AW+3, AX, AX+1)]
for ins in interleave(f_mfmas(0), f_reads(1, 1) + [CNTRD] + UPD): a(ins)
a('s_waitcnt vmcnt(0) lgkmcnt(0)')
tick(7, ('s47', 1))
mid_sync('L_flast')
tick(7, ('s47', 17))
for ins in interleave(f_mfmas(1), f_reads(0, 0) + ['s_add_u32 s47, s47, 1']): a(ins)
a('s_branch L_floop')
a('L_flast:')
pre_epilogue()
stats_wait('L_fst')
tick(7, 40)
CSB = 48
P = []
P += ['s_lshl_b32 s66, s45, 8', f's_add_u32 s66, s66, {L_R}', 'v_lshlrev_b32 v4, 2, v3', 'v_add_u32 v4, s66, v4']
for ni in range(4):
    P += [f'ds_read_b32 v{40+ni}, v4 offset:{64*ni}', f'ds_read_b32 v{44+ni}, v4 offset:{512 + 64*ni}']
P += [f'v_mov_b32 v10, {L_CNT}', 'ds_read_b32 v8, v10 offset:32']
P += ['s_lshl_b32 s66, s44, 8', f's_add_u32 s66, s66, {L_CS}', 'v_lshlrev_b32 v5, 4, v2', 'v_add_u32 v5, s66, v5']
for mat in range(2):
    for mi in range(4):
        r = CSB + 16*mat + 4*mi
        P.append(f'ds_read_b128 v[{r}:{r+3}], v5 offset:{mat*512 + mi*64}')
P += ['v_lshlrev_b32 v1, 4, v0', 'v_mov_b32 v9, 0']
P += ['s_lshl_b32 s66, s28, 3', 's_lshl_b32 s67, s45, 2', 's_add_u32 s66, s66, s67', 's_mul_i32 s66, s66, 48',
      's_lshl_b32 s67, s29, 2', 's_add_u32 s66, s66, s67', 's_lshl_b32 s67, s44, 1', 's_add_u32 s66, s66, s67', 's_lshl_b32 s66, s66, 10']
P += ['s_lshl_b32 s70, s28, 8', 's_lshl_b32 s71, s29, 4', 's_add_u32 s70, s70, s71', 's_lshl_b32 s71, s3, 2', 's_add_u32 s70, s70, s71', f's_add_u32 s70, s70, {WS_FH}']
M = f_mfmas(1)
for i, m in enumerate(M):
    a(m)
    for _ in range(2):
        if P: a(P.pop(0))
for x_ in P: a(x_)
stamp(2)
a('s_waitcnt lgkmcnt(0)')
a('v_readfirstlane_b32 s43, v8')
for ni in range(4):
    c = 80 + 6*ni
    a(f'v_sub_f32 v{c}, 0, v{44+ni}')
    a(f'v_mul_f32 v{c+2}, {-1.4426950408889634!r}, v{40+ni}')
    a(f'v_mul_f32 v{c+4}, v{40+ni}, v{40+ni}')
for ni in range(4): a(f'v_rcp_f32 v{84+6*ni}, v{84+6*ni}')
tick(7, 42)
BC = 'op_sel_hi:[1,0,1]'
for ni in range(1, 4): a(f's_add_u32 s{66+ni}, s{65+ni}, {48*1024}')
for kp in range(2):
    for ni in range(4):
        if kp == 1 and ni == VCHK - 1: a('ds_read_b32 v11, v10 offset:28')
        if kp == 1 and ni == VCHK:
            a('s_waitcnt lgkmcnt(0)'); a('v_readfirstlane_b32 s79, v11')
            a('s_cmp_lg_u32 s79, 1'); a('s_cbranch_scc1 L_fnov')
            v_loads()
            a('L_fnov:')
        c = 80 + 6*ni
        prs = [(2*kp + h, d) for h in range(2) for d in (0, 2)]
        G_ = [T16(0, mi, ni) + d for mi, d in prs]; U_ = [T16(1, mi, ni) + d for mi, d in prs]
        for n, (mi, d) in enumerate(prs): a(f'v_pk_fma_f32 v[{G_[n]}:{G_[n]+1}], v[{CSB+4*mi+d}:{CSB+1+4*mi+d}], v[{c}:{c+1}], v[{G_[n]}:{G_[n]+1}] {BC}')
        for n, (mi, d) in enumerate(prs): a(f'v_pk_fma_f32 v[{U_[n]}:{U_[n]+1}], v[{CSB+16+4*mi+d}:{CSB+17+4*mi+d}], v[{c}:{c+1}], v[{U_[n]}:{U_[n]+1}] {BC}')
        for n in range(4): a(f'v_pk_mul_f32 v[{104+2*n}:{105+2*n}], v[{G_[n]}:{G_[n]+1}], v[{c+2}:{c+3}] op_sel_hi:[1,0]')
        for n in range(4): a(f'v_pk_mul_f32 v[{G_[n]}:{G_[n]+1}], v[{G_[n]}:{G_[n]+1}], v[{U_[n]}:{U_[n]+1}]')
        for n in range(8): a(f'v_exp_f32 v{104+n}, v{104+n}')
        a('s_nop 0')
        for n in range(4): a(f'v_pk_fma_f32 v[{104+2*n}:{105+2*n}], v[{104+2*n}:{105+2*n}], v[{c+4}:{c+5}], v[{c+4}:{c+5}] op_sel_hi:[1,0,0]')
        for n in range(8): a(f'v_rcp_f32 v{104+n}, v{104+n}')
        a('s_nop 0')
        o = 112 + 4*ni
        for n in range(4): a(f'v_pk_mul_f32 v[{G_[n]}:{G_[n]+1}], v[{G_[n]}:{G_[n]+1}], v[{104+2*n}:{105+2*n}]')
        for n in range(4): a(f'v_cvt_pk_bf16_f32 v{o+n}, v{G_[n]}, v{G_[n]+1}')
        a(f'buffer_store_dwordx4 v[{o}:{o+3}], v1, s[12:15], s{66+ni} offen offset:{kp*1024} {STP}')
        if 4*kp + ni == EARLY:
            a('v_mov_b32 v12, 1'); a('s_mov_b64 exec, 1'); a('ds_add_u32 v10, v12'); a('s_mov_b64 exec, -1')
        tick(7, 43 + 4*kp + ni)
tick(7, 32)
stamp(3)
if TONE: lds_arrive(0, 4)
else: a('s_waitcnt vmcnt(0)')
if not SENT:
    a('s_mov_b64 exec, 1'); a('buffer_store_dword v8, v9, s[12:15], s70 offen sc1'); a('s_mov_b64 exec, -1')
if VCHK == 4:
    a('s_waitcnt lgkmcnt(0)'); a('v_readfirstlane_b32 s79, v11')
    a('s_cmp_lg_u32 s79, 1'); a('s_cbranch_scc1 L_fnov')
    v_loads()
    a('L_fnov:')
tick_dump(7, 4)
a('s_branch L_helper')

a('L_dft:')
DACC = 176
def TD(part, mi, et): return DACC + 40*part + 20*mi + 4*et
DFR = 40
def dX(p, mi): return DFR + 48*p + 4*mi
def dC(p, part, et): return DFR + 48*p + 8 + 20*part + 4*et
DX, DC = 8, 10
FCOS, FSIN, FNS = 136, 144, 152
a('v_lshlrev_b32 v5, 7, v3')
a('s_lshl_b32 s66, s3, 12'); a('s_add_u32 s66, s66, 32768')
for ks in range(2):
    a(f'v_xor_b32 v7, {4*ks}, v6')
    a(f'v_lshl_add_u32 v{DC+ks}, v7, 4, v5')
    a(f'v_add_u32 v{DX+ks}, s66, v{DC+ks}')
for i in range(80): a(f'v_mov_b32 v{DACC+i}, 0')
a('s_and_b32 s45, s30, 1'); a('s_sub_u32 s45, 3, s45')
a('v_lshrrev_b32 v12, 3, v3'); a('v_and_b32 v13, 7, v3'); a('v_lshlrev_b32 v13, 4, v13'); a('v_lshl_add_u32 v12, v12, 2, v13'); a('v_add_u32 v12, s3, v12')
a('v_lshlrev_b32 v13, 5, v2'); a('v_add_u32 v13, s28, v13'); a('v_cvt_f32_u32 v13, v13')
for mt in range(2):
    a(f'v_add_u32 v14, {8*mt}, v12'); a('v_cvt_f32_u32 v14, v14'); a(f'v_mul_f32 v14, {1.0/2048!r}, v14')
    for d in range(4):
        for h in range(2):
            a(f'v_add_f32 v{60+h}, {float(16*h + 128*d)!r}, v13')
            a(f'v_mul_f32 v{60+h}, v{60+h}, v14')
        a('v_cos_f32 v62, v60'); a('v_cos_f32 v63, v61'); a('v_sin_f32 v64, v60'); a('v_sin_f32 v65, v61')
        a(f'v_cvt_pk_bf16_f32 v{FCOS+4*mt+d}, v62, v63')
        a(f'v_cvt_pk_bf16_f32 v{FSIN+4*mt+d}, v64, v65')
        a(f'v_xor_b32 v{FNS+4*mt+d}, 0x80008000, v{FSIN+4*mt+d}')
def d_reads(p, ks):
    L = [f'ds_read_b128 v[{dX(p,mi)}:{dX(p,mi)+3}], v{DX+ks} offset:{mi*2048}' for mi in range(2)]
    for part in range(2):
        for et in range(5):
            L.append(f'ds_read_b128 v[{dC(p,part,et)}:{dC(p,part,et)+3}], v{DC+ks} offset:{part*16384 + et*2048}')
    return L
def d_mfmas(p):
    L = []
    i = 0
    for part in range(2):
        for et in range(5):
            for mi in ((0, 1) if i % 2 == 0 else (1, 0)):
                t = TD(part, mi, et)
                L.append(f'v_mfma_f32_16x16x32_bf16 v[{t}:{t+3}], v[{dX(p,mi)}:{dX(p,mi)+3}], v[{dC(p,part,et)}:{dC(p,part,et)+3}], v[{t}:{t+3}]')
            i += 1
    return L
wd_finish()
a('v_mov_b32 v5, 1'); a(f'v_mov_b32 v6, {L_CNT}')
for i in range(32, 36): a(f'v_mov_b32 v{i}, 0')
tick(7, 0)
a('s_barrier')
tick(7, 16)
stamp(1)
for r in d_reads(0, 0): a(r)
def xstat(p):
    L = []
    for mi in range(2):
        for d in range(4):
            r = dX(p, mi) + d; t = 36 + 2*(d & 1)
            L += [f'v_lshlrev_b32 v{t}, 16, v{r}', f'v_and_b32 v{t+1}, 0xffff0000, v{r}',
                  f'v_add_f32 v{32+2*mi}, v{32+2*mi}, v{t}', f'v_fmac_f32 v{33+2*mi}, v{t}, v{t}',
                  f'v_add_f32 v{32+2*mi}, v{32+2*mi}, v{t+1}', f'v_fmac_f32 v{33+2*mi}, v{t+1}, v{t+1}']
    return L
def interleave2(M, R, per):
    out = []; R = list(R)
    for m in M:
        out.append(m)
        for _ in range(per):
            if R: out.append(R.pop(0))
    return out + R
def dloop(name, stats):
    a(f'{name}:')
    a('s_waitcnt lgkmcnt(0)')
    for ins in interleave2(d_mfmas(0), d_reads(1, 1) + (xstat(0) if stats else [CNTRD]), 3 if stats else 1): a(ins)
    a('s_waitcnt vmcnt(0) lgkmcnt(0)' if stats else 's_waitcnt lgkmcnt(0)')
    tick(7, ('s47', 1))
    if stats: a('s_barrier')
    else: mid_sync('L_dlast')
    tick(7, ('s47', 17))
    slot_advance()
    for r in (DX, DC): a(f'v_add_u32 v{r}, s42, v{r}')
    R = d_reads(0, 0) + [f'v_add_u32 v{r}, s42, v{r}' for r in (DX+1, DC+1)]
    for ins in interleave2(d_mfmas(1), R + (xstat(1) if stats else []), 3 if stats else 1): a(ins)
    a('s_add_u32 s47, s47, 1')
    if stats: a('s_cmp_lt_u32 s47, s45'); a(f's_cbranch_scc1 {name}')
    else: a(f's_branch {name}')
dloop('L_dloopA', True)
a(f'v_mov_b32 v36, {L_NON}'); a('ds_read_b32 v14, v36')
for sw in ('v_permlane16_swap_b32', 'v_permlane32_swap_b32'):
    for r in range(32, 36): a(f'v_mov_b32 v{r+4}, v{r}')
    a('s_nop 1')
    for r in range(32, 36): a(f'{sw} v{r}, v{r+4}')
    a('s_nop 1')
    for r in range(32, 36): a(f'v_add_f32 v{r}, v{r}, v{r+4}')
a('s_lshl_b32 s66, s28, 2'); a('s_add_u32 s66, s66, s30'); a('s_lshl_b32 s66, s66, 11'); a('s_lshl_b32 s67, s3, 9'); a('s_add_u32 s66, s66, s67'); a(f's_add_u32 s66, s66, {WS_XP}')
a('v_cmp_gt_u32 vcc, 16, v0'); a('v_lshlrev_b32 v38, 4, v0')
a('s_waitcnt lgkmcnt(0)')
a('v_cndmask_b32 v12, v34, v32, vcc'); a('v_cndmask_b32 v13, v35, v33, vcc'); a('v_mov_b32 v15, v14')
a('v_readfirstlane_b32 s43, v14')
a('s_mov_b32 exec_hi, 0')
a('buffer_store_dwordx4 v[12:15], v38, s[12:15], s66 offen sc1')
a('s_mov_b64 exec, -1')
a('s_nop 0')
dloop('L_dloopB', False)
a('L_dlast:')
pre_epilogue()
stats_wait('L_dst')
tick(7, 40)
DP = []
DP.append('s_lshl_b32 s66, s3, 7'); DP.append(f's_add_u32 s66, s66, {L_R}')
DP.append('v_lshlrev_b32 v4, 4, v2'); DP.append('v_add_u32 v4, s66, v4')
for mi in range(2):
    DP.append(f'ds_read_b128 v[{40+4*mi}:{43+4*mi}], v4 offset:{64*mi}')
    DP.append(f'ds_read_b128 v[{48+4*mi}:{51+4*mi}], v4 offset:{512 + 64*mi}')
    DP.append(f'ds_read_b128 v[{160+4*mi}:{163+4*mi}], v4 offset:{L_A0 - L_R + 64*mi}')
DP.append('v_lshlrev_b32 v5, 2, v3'); DP.append(f'v_add_u32 v5, {L_CS}, v5')
for part in range(2):
    for et in range(5): DP.append(f'ds_read_b32 v{56+2*(5*part+et)}, v5 offset:{part*512 + et*64}')
DP.append('v_bfe_u32 v9, v3, 1, 2'); DP.append('v_xor_b32 v8, s3, v9'); DP.append('v_lshlrev_b32 v8, 4, v8'); DP.append('v_lshl_add_u32 v8, v3, 6, v8'); DP.append('v_lshl_add_u32 v8, v2, 2, v8')
DP.append('ds_read_b32 v14, v6 offset:20')
for ins in interleave2(d_mfmas(1), DP, 2): a(ins)
stamp(2)
a('s_waitcnt lgkmcnt(0)')
a('v_readfirstlane_b32 s78, v14')
a('s_cmp_ge_u32 s78, 4'); a('s_cbranch_scc1 L_dc9_ok')
lds_wait('L_dc9', 20, 14)
tick(7, 41)
for et in range(5):
    for mi in range(2):
        for part in range(2):
            t = TD(part, mi, et); c = 56 + 2*(5*part + et)
            for d in (0, 2):
                a(f'v_pk_fma_f32 v[{t+d}:{t+d+1}], v[{48+4*mi+d}:{49+4*mi+d}], v[{c}:{c+1}], v[{t+d}:{t+d+1}] op_sel_hi:[1,0,1] neg_lo:[1,0,0] neg_hi:[1,0,0]')
            for d in (0, 2):
                a(f'v_pk_mul_f32 v[{t+d}:{t+d+1}], v[{t+d}:{t+d+1}], v[{40+4*mi+d}:{41+4*mi+d}]')
        y = 80 + 16*mi
        for part in range(2):
            t = TD(part, mi, et)
            a(f'v_pk_add_f32 v[{y+4*part}:{y+4*part+1}], v[{t}:{t+1}], v[{t+2}:{t+3}]')
            a(f'v_pk_add_f32 v[{y+4*part+2}:{y+4*part+3}], v[{t}:{t+1}], v[{t+2}:{t+3}] neg_lo:[0,1] neg_hi:[0,1]')
        pa, qa, ra, sa, pb, qb, rb, sb = range(y, y+8); o = y + 8
        a(f'v_add_f32 v{o}, v{pa}, v{qa}'); a(f'v_add_f32 v{o+1}, v{pb}, v{qb}')
        a(f'v_add_f32 v{o+2}, v{ra}, v{sb}'); a(f'v_sub_f32 v{o+3}, v{rb}, v{sa}')
        a(f'v_sub_f32 v{o+4}, v{pa}, v{qa}'); a(f'v_sub_f32 v{o+5}, v{pb}, v{qb}')
        a(f'v_sub_f32 v{o+6}, v{ra}, v{sb}'); a(f'v_add_f32 v{o+7}, v{rb}, v{sa}')
    for cpart in range(8):
        a(f'v_cvt_pk_bf16_f32 v{112+cpart}, v{88+cpart}, v{104+cpart}')
    for cpart in range(8):
        a(f'ds_write_b32 v8, v{112+cpart} offset:{L_Z + (cpart*ZB + 16*et)*ZROW}')
a('s_cmp_lg_u32 s30, 0'); a('s_cbranch_scc1 L_z0')
for mi in range(2):
    t = 160 + 4*mi; y = 80 + 4*mi
    a(f'v_pk_add_f32 v[{y}:{y+1}], v[{t}:{t+1}], v[{t+2}:{t+3}]')
    a(f'v_pk_add_f32 v[{y+2}:{y+3}], v[{t}:{t+1}], v[{t+2}:{t+3}] neg_lo:[0,1] neg_hi:[0,1]')
    a(f'v_add_f32 v{88+mi}, v{y}, v{y+1}'); a(f'v_sub_f32 v{90+mi}, v{y}, v{y+1}')
a('v_cvt_pk_bf16_f32 v120, v88, v89'); a('v_mov_b32 v121, 0')
a('v_cvt_pk_bf16_f32 v122, v82, v86'); a('v_cvt_pk_bf16_f32 v127, v83, v87'); a('v_xor_b32 v123, 0x80008000, v127')
a('v_cvt_pk_bf16_f32 v124, v90, v91')
for cpart, r in enumerate((120, 121, 122, 123, 124, 121, 122, 127)):
    a(f'ds_write_b32 v8, v{r} offset:{L_Z + (cpart*ZB + 80)*ZROW}')
a('L_z0:')
tick(7, 42)
VADDR = []
VADDR += ['v_lshrrev_b32 v12, 1, v2', f'v_mul_u32_u24 v12, {8*VROW}, v12', 'v_and_b32 v13, 1, v2', f'v_mul_u32_u24 v11, {VROW}, v13', 'v_add_u32 v12, v12, v11', 'v_lshl_add_u32 v12, v3, 4, v12']
VADDR += ['s_mul_i32 s66, s28, 17', 's_add_u32 s67, s66, s3', f's_mul_i32 s67, s67, {2*VROW}', 's_mul_i32 s68, s30, 1280', f's_add_u32 s68, s68, {WS_V + 128}', 's_add_u32 s67, s67, s68', 's_sub_u32 s69, s67, 16']
VADDR += ['s_add_u32 s66, s66, 16', f's_mul_i32 s66, s66, {2*VROW}', 's_add_u32 s66, s66, s68', f's_add_u32 s70, s67, {16*VROW}']
a('v_mov_b32 v10, 1')
a('s_waitcnt lgkmcnt(0)')
a('s_mov_b64 exec, 1'); a('ds_add_u32 v6, v10 offset:4'); a('s_mov_b64 exec, -1')
a('v_bfe_u32 v8, v3, 1, 2'); a('v_xor_b32 v8, v8, v2'); a('v_lshlrev_b32 v8, 4, v8'); a('v_lshl_add_u32 v8, v3, 6, v8'); a(f's_mul_i32 s66, s3, {2*ZB*ZROW}'); a('v_add_u32 v8, s66, v8')
for ins in VADDR: a(ins)
lds_wait('L_zw', 4, 14)
tick(7, 43)
for part in range(2):
    for et in range(5):
        r = 40 + 20*part + 4*et
        a(f'ds_read_b128 v[{r}:{r+3}], v8 offset:{L_Z + (part*ZB + 16*et)*ZROW}')
for part in range(2): a(f'ds_read_b128 v[{120+4*part}:{123+4*part}], v8 offset:{L_Z + (part*ZB + 80)*ZROW}')
a('s_waitcnt lgkmcnt(0)')
a('s_mov_b64 exec, 1'); a('ds_add_u32 v6, v10 offset:8'); a('s_mov_b64 exec, -1')
a('v_mov_b32 v8, v12'); a('v_mov_b32 v10, v11')
tick(7, 44)
def VR(mt, et): return DACC + 20*mt + 4*et
def VI(mt, et): return DACC + 40 + 20*mt + 4*et
def vpack(et):
    L = []
    for mt in range(2):
        o = 80 + 20*mt + 4*et
        for i in range(4): L.append(f'v_cvt_pk_bf16_f32 v{o+i}, v{VR(mt,et)+i}, v{VI(mt,et)+i}')
        L.append(f'buffer_store_dwordx4 v[{o}:{o+3}], v8, s[12:15], s{67 + 3*mt} offen offset:{256*et} {STP}')
    return L
def vm(vr, vi, ya, yb):
    L = []
    for mt in range(2):
        L.append(f'v_mfma_f32_16x16x32_bf16 v[{vr(mt)}:{vr(mt)+3}], v[{FCOS+4*mt}:{FCOS+4*mt+3}], v[{ya}:{ya+3}], 0')
        L.append(f'v_mfma_f32_16x16x32_bf16 v[{vi(mt)}:{vi(mt)+3}], v[{FNS+4*mt}:{FNS+4*mt+3}], v[{ya}:{ya+3}], 0')
    for mt in range(2):
        L.append(f'v_mfma_f32_16x16x32_bf16 v[{vr(mt)}:{vr(mt)+3}], v[{FSIN+4*mt}:{FSIN+4*mt+3}], v[{yb}:{yb+3}], v[{vr(mt)}:{vr(mt)+3}]')
        L.append(f'v_mfma_f32_16x16x32_bf16 v[{vi(mt)}:{vi(mt)+3}], v[{FCOS+4*mt}:{FCOS+4*mt+3}], v[{yb}:{yb+3}], v[{vi(mt)}:{vi(mt)+3}]')
    return L
for et in range(5):
    M = vm(lambda mt: VR(mt, et), lambda mt: VI(mt, et), 40 + 4*et, 60 + 4*et)
    for ins in interleave2(M, vpack(et - 2) if et >= 2 else [], 2): a(ins)
a('s_cmp_lg_u32 s30, 0'); a('s_cbranch_scc1 L_v0a')
for ins in vm(lambda mt: 160 + 4*mt, lambda mt: 168 + 4*mt, 120, 124): a(ins)
a('L_v0a:')
tick(7, 45)
for ins in vpack(3): a(ins)
for ins in vpack(4): a(ins)
a('s_cmp_lg_u32 s30, 0'); a('s_cbranch_scc1 L_v0b')
for mt in range(2):
    for i in range(4): a(f'v_cvt_pk_bf16_f32 v{120+4*mt+i}, v{160+4*mt+i}, v{168+4*mt+i}')
a('s_mov_b32 exec_lo, 0x00010001'); a('s_mov_b32 exec_hi, 0x00010001')
a(f'buffer_store_dwordx4 v[120:123], v8, s[12:15], s69 offen {STP}')
a(f's_add_u32 s69, s69, {16*VROW}')
a(f'buffer_store_dwordx4 v[124:127], v8, s[12:15], s69 offen {STP}')
a('s_mov_b64 exec, -1')
a('L_v0b:')
tick(7, 46)
a('s_cmp_lg_u32 s3, 0')
a('s_cbranch_scc1 L_signal')
a('v_cvt_f32_u32 v62, s28'); a('v_mul_f32 v62, 0.0625, v62'); a('v_cos_f32 v63, v62'); a('v_sin_f32 v64, v62')
a('v_cmp_gt_u32 vcc, 16, v0')
a('v_lshlrev_b32 v11, 4, v3'); a('v_add_u32 v9, v10, v11')
for et in range(5):
    o = 80 + 4*et; vr = VR(0, et); vi = VI(0, et); n = 40 + 4*et
    a(f'v_mul_f32 v65, v63, v{vr}'); a(f'v_fmac_f32 v65, v64, v{vi}')
    a(f'v_mul_f32 v66, v63, v{vi}'); a(f'v_fma_f32 v66, -v64, v{vr}, v66')
    a(f'v_cvt_pk_bf16_f32 v65, v65, v66')
    a(f'v_cndmask_b32 v65, v{o}, v65, vcc')
    a(f'v_mov_b32 v{n}, v{o+1}')
    a(f'v_mov_b32 v66, v65')
    a(f'v_mov_b32 v{n+1}, v{o+2}'); a(f'v_mov_b32 v{n+2}, v{o+3}')
    a(f'v_permlane16_swap_b32 v65, v66')
    a('s_nop 1')
    a(f'v_cndmask_b32 v{n+3}, v65, v66, vcc')
a('s_mov_b32 exec_hi, 0')
for et in range(5):
    a(f'buffer_store_dwordx4 v[{40+4*et}:{43+4*et}], v9, s[12:15], s66 offen offset:{256*et} {STP}')
a('s_mov_b64 exec, -1')

a('L_signal:')
a('s_mov_b32 s79, 0')
tick(7, 32)
stamp(3)
a('s_lshl_b32 s66, s30, 2'); a('s_add_u32 s66, s66, s3'); a('s_lshl_b32 s66, s66, 7'); a('s_lshl_b32 s67, s28, 2'); a('s_add_u32 s66, s66, s67'); a(f's_add_u32 s66, s66, {WS_FV}')
a('v_mov_b32 v4, s43'); a('v_mov_b32 v5, 0')
a('s_waitcnt vmcnt(0)'); a('s_mov_b64 exec, 1')
a('buffer_store_dword v4, v5, s[12:15], s66 offen sc1'); a('s_mov_b64 exec, -1')
if TONE: lds_arrive(0, 4)
tick_dump(7, 4)
a('L_helper:')
if TONE:
    lds_wait('L_hc9', 20, 40)
    a('s_cmp_eq_u32 s35, 0'); a('s_cbranch_scc1 L_hnz')
    lds_wait('L_hzc', 8, 40)
    a('L_hnz:')
else:
    if EARLY >= 0: a('s_cmp_eq_u32 s35, 0'); a('s_cbranch_scc1 L_hea')
    lds_arrive(0, 4)
    a('L_hea:')
    lds_wait('L_hc9', 20, 40)
    a('s_cmp_eq_u32 s35, 0'); a('s_cbranch_scc1 L_hnz')
    lds_wait('L_hzc', 8, 40)
    a('L_hnz:')
    a('s_mov_b32 s44, s3')
    p2_setup()
    a('s_cmp_eq_u32 s35, 1'); a('s_cbranch_scc1 L_hd')
    for st in range(12 - NLATE, 12): wdt_lds(st)
    a('s_branch L_hf')
    a('L_hd:')
    for st in range(12 - NLD, 12): wdt_lds(st)
    a('L_hf:')
    VT = opt('vtouch', 0)
    def vtouch():
        a('s_cmp_eq_u32 s35, 0'); a('s_cbranch_scc1 L_nvt')
        a('v_lshrrev_b32 v40, 2, v0'); a('v_lshlrev_b32 v40, 7, v40'); a('v_and_b32 v41, 3, v0'); a('v_lshl_add_u32 v40, v41, 4, v40')
        a(f's_mov_b32 s66, {WS_FV}')
        spin_begin('L_pollva')
        a('buffer_load_dwordx4 v[44:47], v40, s[12:15], s66 offen sc1')
        a('s_waitcnt vmcnt(0)')
        for i in range(4): a(f'v_xor_b32 v{44+i}, s43, v{44+i}')
        a('v_or_b32 v44, v44, v45'); a('v_or3_b32 v44, v46, v47, v44')
        a('v_cmp_ne_u32 vcc, 0, v44'); a('s_cmp_eq_u64 vcc, 0')
        spin_end('L_pollva')
        a('s_lshl_b32 s66, s30, 2'); a('s_sub_u32 s67, 13, s66'); a('s_cmp_eq_u32 s31, 1'); a('s_cselect_b32 s66, s67, s66')
        a('s_lshl_b32 s67, s32, 1'); a('s_lshr_b32 s68, s3, 1'); a('s_add_u32 s67, s67, s68'); a('s_mul_i32 s67, s67, 17'); a('s_add_u32 s66, s66, s67')
        a(f's_mul_i32 s66, s66, {2*VROW}'); a('s_and_b32 s67, s3, 1'); a(f's_mul_i32 s67, s67, {164*128}'); a('s_add_u32 s66, s66, s67'); a(f's_add_u32 s66, s66, {WS_V}')
        a('v_lshlrev_b32 v40, 7, v0')
        for i in range(3):
            if i == 2: a('s_mov_b32 exec_hi, 0xf')
            a(f'buffer_load_dword v41, v40, s[12:15], s66 offen sc1')
            if i < 2: a('s_add_u32 s66, s66, 8192')
        a('s_mov_b64 exec, -1')
        a('s_mov_b32 s79, 0')
        a('s_waitcnt vmcnt(0)')
        a('L_nvt:')
    if VT == 2: vtouch()
    a('s_waitcnt vmcnt(0)')
    lds_arrive(36, 4)
    if VT == 1: vtouch()
stamp(4)

a('s_cmp_eq_u32 s79, 1'); a('s_cbranch_scc1 L_vdone')
if VGO: a('s_cmp_lg_u32 s3, 3'); a('s_cbranch_scc1 L_vwait')
spin_begin('L_pollv')
a(f'buffer_load_dword v53, v{VFL}, s[12:15], s60 offen sc1')
a('s_waitcnt vmcnt(0)')
a('v_cmp_ne_u32 vcc, s43, v53')
a('s_cmp_eq_u64 vcc, 0')
spin_end('L_pollv')
if VGO:
    lds_arrive(28, 40)
    a('L_vwait:')
    lds_wait('L_vc', 28, 40, 1)
    lds_wait('L_vgo', 40, 40, 1)
v_loads()
a('L_vdone:')
stamp(5)
a('v_lshrrev_b32 v4, 2, v3'); a('v_and_b32 v5, 3, v3'); a('v_lshl_add_u32 v7, v5, 2, v4')
a('s_mul_i32 s66, s55, 15'); a('v_xor_b32 v4, s66, v7')
a('v_cvt_f32_u32 v4, v4'); a('v_mul_f32 v4, 0.0625, v4')
a('v_lshlrev_b32 v5, 2, v2'); a('v_cvt_f32_u32 v5, v5')
for i in range(4):
    a(f'v_add_f32 v52, {float(i)!r}, v5'); a('v_mul_f32 v52, v52, v4')
    a('v_cos_f32 v53, v52'); a('v_sin_f32 v54, v52'); a('s_nop 0')
    a(f'v_cvt_pk_bf16_f32 v{8+i}, v53, v54')
a(f's_mov_b32 s47, {PN}'); a('s_cmp_eq_u32 s55, 1'); a(f's_cselect_b32 s47, {(-PN) & 0xffffffff}, s47')
a(f'v_mul_u32_u24 v56, {PQ}, v2'); a('v_lshl_add_u32 v56, v3, 4, v56'); a(f's_mul_i32 s66, s55, {3*PN}'); a('v_add_u32 v56, s66, v56')
for k4 in range(1, 4): a(f'v_add_u32 v{56+k4}, s47, v{55+k4}')
def spec_tile(off_s, vb):
    for k4 in range(4):
        for i in range(4): a(f'v_mov_b32 v{64+4*k4+i}, v{vb+4*i+k4}')
    a('s_nop 1')
    for k4 in range(4):
        c = 80 + 4*k4
        a(f'v_mfma_f32_16x16x32_bf16 v[{c}:{c+3}], v[{64+4*k4}:{67+4*k4}], v[8:11], 0')
    for k4 in range(4): a(f'v_add_u32 v{40+k4}, {off_s}, v{56+k4}')
    a('s_nop 5')
    for k4 in range(4):
        c = 80 + 4*k4
        a(f'ds_write_b128 v{40+k4}, v[{c}:{c+3}]')
a('s_cmp_eq_u32 s3, 1'); a(f's_mov_b32 s73, {ST[0]}'); a(f's_cselect_b32 s73, {ST[1]}, s73')
a('s_cmp_eq_u32 s3, 2'); a(f's_cselect_b32 s73, {ST[2]}, s73')
a('s_cmp_eq_u32 s3, 3'); a(f's_cselect_b32 s73, {ST[3]}, s73')
a('s_waitcnt vmcnt(0)')
a('s_cmp_lg_u32 s3, 0'); a('s_cbranch_scc1 L_spec1')
a(f's_mov_b32 s74, {ST[4]}')
spec_tile('s74', VB1)
a('L_spec1:')
spec_tile('s73', VB0)
for r in range(3):
    for d in range(4):
        a(f'v_lshlrev_b32 v{96+8*r+2*d}, 16, v{XR[r]+d}'); a(f'v_and_b32 v{97+8*r+2*d}, 0xffff0000, v{XR[r]+d}')

a('L_final:')
def final_reads(r, b):
    d4, d11 = FA[3*r], FA[3*r+2]
    for p in range(5):
        reg = (d4, d4, d4, d4, d11)[p]; off = (0, P2W, 2*P2W, 3*P2W, 0)[p]
        a(f'ds_read_b128 v[{b+8*p}:{b+3+8*p}], v{reg} offset:{off}')
        a(f'ds_read_b128 v[{b+4+8*p}:{b+7+8*p}], v{reg} offset:{off+PQ}')
def final_sum(r, b, cnt):
    x = 96 + 8*r
    for p in range(5):
        a(f's_waitcnt lgkmcnt({min(15, cnt + 8 - 2*p)})')
        for d in range(0, 8, 2): a(f'v_pk_add_f32 v[{x+d}:{x+d+1}], v[{x+d}:{x+d+1}], v[{b+8*p+d}:{b+8*p+d+1}]')
    for d in range(4): a(f'v_cvt_pk_bf16_f32 v{b+d}, v{x+2*d}, v{x+2*d+1}')
    a(f'buffer_store_dwordx4 v[{b}:{b+3}], v{FA[3*r+1]}, s[16:19], 0 offen {OUTP}')
a('s_waitcnt lgkmcnt(0)')
a('s_barrier')
stamp(6)
final_reads(0, 128)
final_reads(1, 168)
final_sum(0, 128, 10)
a('s_cmp_ge_u32 s3, 2'); a('s_cbranch_scc1 L_fin1')
final_reads(2, 208)
final_sum(1, 168, 10)
final_sum(2, 208, 0)
a('s_branch L_fin2')
a('L_fin1:')
final_sum(1, 168, 0)
a('L_fin2:')
if 'diag' in opts:
    a('s_cmp_lg_u32 s3, 0'); a('s_cbranch_scc1 L_diag')
    a('s_waitcnt vmcnt(0)')
    a('s_memrealtime s[94:95]'); a('s_waitcnt lgkmcnt(0)')
    if opts['diag'] == 'r': a('s_sub_u32 s66, s43, s80'); a('s_max_i32 s66, s66, 0'); a('s_min_u32 s66, s66, 5000'); a('s_lshl_b32 s66, s66, 4')
    elif opts['diag'] == 'b': a('s_sub_u32 s66, s82, s80'); a('s_max_i32 s66, s66, 0'); a('s_min_u32 s66, s66, 5000'); a('s_lshl_b32 s66, s66, 3')
    elif opts['diag'] == 'e': a('s_sub_u32 s66, s94, s80'); a('s_max_i32 s66, s66, 0'); a('s_min_u32 s66, s66, 5000'); a('s_lshl_b32 s66, s66, 2')
    else: a(f"s_sub_u32 s66, s{80 + 2*int(opts['diag'])}, s43"); a('s_max_i32 s66, s66, 0'); a('s_min_u32 s66, s66, 5000'); a('s_lshl_b32 s66, s66, 2')
    a('L_dsp:')
    a('s_memrealtime s[68:69]'); a('s_waitcnt lgkmcnt(0)'); a('s_sub_u32 s68, s68, s94'); a('s_cmp_lt_u32 s68, s66'); a('s_cbranch_scc1 L_dsp')
    a('s_endpgm')
    a('L_diag:')
if opt('dbgt', 0):
    a('s_cmp_lg_u32 s3, 0'); a('s_cbranch_scc1 L_dbgt')
    a('s_waitcnt vmcnt(0)')
    a('s_memrealtime s[94:95]'); a('s_waitcnt lgkmcnt(0)')
    a('s_mov_b64 exec, 1')
    for i, r in enumerate((80, 82, 84, 86, 88, 90, 92, 94)):
        a(f's_sub_u32 s66, s{r}, s43'); a('s_add_u32 s66, s66, 1000'); a('v_mov_b32 v4, s66'); a(f'v_mov_b32 v5, {4 + 4*i}')
        a('buffer_atomic_umax v4, v5, s[24:27], 0 offen sc1')
        a('s_nop 2')
    a('s_endpgm')
    a('L_dbgt:')
stamp(7)
if STAMPS:
    a('s_waitcnt vmcnt(0)')
    a('s_memrealtime s[96:97]')
    a('s_waitcnt lgkmcnt(0)')
    for i in range(8): a(f'v_mov_b32 v{16+i}, s{80+2*i}')
    a('v_mov_b32 v24, s96'); a('v_mov_b32 v25, s101')
    a('s_lshl_b32 s66, s2, 3'); a('s_add_u32 s66, s66, s3'); a('s_lshl_b32 s66, s66, 6'); a(f's_add_u32 s66, s66, {WS_TS}')
    a('v_mov_b32 v4, 0')
    a('s_mov_b64 exec, 1')
    a('buffer_store_dwordx4 v[16:19], v4, s[12:15], s66 offen')
    a('buffer_store_dwordx4 v[20:23], v4, s[12:15], s66 offen offset:16')
    a('buffer_store_dwordx2 v[24:25], v4, s[12:15], s66 offen offset:32')
a('s_endpgm')
emit_tails()
a('L_done:')
a.end(256, sgpr=102)
txt = a.text([])
txt = txt.replace('.amdgcn_target', f'; @launch grid=(256,1,1) block=(512,1,1) lds={LDS_BYTES}\n.amdgcn_target', 1)
open(sys.argv[1], 'w').write(txt)
if opt('ids', 0): print(wait_ids, spin_ids)
```

```python
import sys, math
from asmlib import *
opts = dict(o.split('=') for o in sys.argv[2:])
def opt(k, d): return type(d)(opts.get(k, d))
STAMPS = opt('stamps', 0)
FWL = opt('fwl', 0)
DF = opt('df', 1)
PFW = opts.get('pfw', '3,0').replace('-', '')
PFP = opts.get('pfp', '-').replace('-', '')
EARLY = opt('early', -1)
NTM = [sum(1 << int(c) for c in m) for m in opts['ntm'].split(',')] if 'ntm' in opts else None
RP = opts.get('rp', '-').replace('+', ' ').replace('-', '')
WP_ = opts.get('wp', 'nt').replace('+', ' ').replace('-', '')
XP_ = opts.get('xp', '-').replace('+', ' ').replace('-', '')
TONE = opt('t1', 0)
HDLY = opt('hdly', 0)
OUTP = opts.get('outp', 'sc1').replace('+', ' ').replace('-', '')
SENT = 1
RDFT = opt('rdft', 0)
RSL = opt('rsleep', 4)
AUXV = opt('auxv', 0)
VGO = opt('vgo', 1)
VCHK = opt('vchk', 4)
XR = [32, 36, 28]
FA = [16, 17, 18, 19, 20, 21, 22, 23, 24]; VA0, VA4, VFL = 25, 26, 27
NONIT = 1
WMODE = opt('wmode', 0)
STRICT = opt('strict', 1)
ZFIX = opt('zfix', 1)
FLAGA = opt('flaga', 0)
FAKEW = opt('fakew', 0)
FAKEH = opt('fakeh', 0)
P2MAP = opt('p2map', 1)
P2ROT = opt('p2rot', 5)
SPINMAX = opt('spinmax', 1 << 16)
CODEPF = opt('codepf', 1)
LDW = opts.get('ldw', 'sc1').replace('+', ' ').replace('-', '')
LDH = opts.get('ldh', 'sc1').replace('+', ' ').replace('-', '')
STP = opts.get('stp', 'sc1').replace('+', ' ').replace('-', '')
S, D, F = 2048, 640, 1536
KNAME = 'parallel_sum__spectral_fnet__swiglu_ffn__prompt_kernel'
STG = 49152
WS_H = 0
WS_WDT = 0x600000
WS_V = 0x800000
WS_XP = 0xB00000
WS_WP = 0xB20000
WS_FW = 0xB30000
WS_FH = 0xB31000
WS_FV = 0xB34000
WS_TS = 0xC00000
WS_SIZE = 0x1000000
L_AUX = 3*STG
L_R = L_AUX
L_M = L_AUX + 512
L_CS = L_AUX + 1024
L_CNT = L_AUX + 2048
L_NON = L_CNT + 32
L_A0 = L_AUX + 2560
L_CH = L_AUX + 3072
L_WD = L_AUX + 4096
L_Z = 0
ZROW = 64; ZB = 96
VROW = 5248
P2W = 10240
P2STEP = [STG, STG + 5120, 2*STG, 2*STG + 5120, 0, 5120]
PT = [STG, STG + 4416, 2*STG + 128, 2*STG + 128 + 4416, 0]
ST = [40960, STG + 40960 + 64, 2*STG + 40960 + 128, 3*STG + 4096 + 192, 3*STG + 4096 + 192 + 4416 ]
PQ, PN, PE = 272, 1088, 4416
LDS_BYTES = 163840

a = Asm()
stamp_n = [0]
def stamp(i):
    if STAMPS:
        if not ((FAKEW or FAKEH) and i >= 5): a(f's_memrealtime s[{80+2*i}:{81+2*i}]')
TICKS = opt('ticks', 0)
def tick(reg, idx):
    if TICKS:
        a('s_memrealtime s[98:99]'); a('s_waitcnt lgkmcnt(0)')
        if isinstance(idx, tuple):
            a(f's_add_u32 m0, {idx[0]}, {idx[1]}'); a('s_nop 3'); a(f'v_writelane_b32 v{reg}, s98, m0')
        else:
            a(f'v_writelane_b32 v{reg}, s98, {idx}')
def tick_dump(reg, tmp):
    if TICKS:
        a('s_lshl_b32 s98, s2, 3'); a('s_add_u32 s98, s98, s3'); a('s_lshl_b32 s98, s98, 8'); a(f's_add_u32 s98, s98, {WS_TS + 0x100000}')
        a(f'v_lshlrev_b32 v{tmp}, 2, v0')
        a(f'buffer_store_dword v{reg}, v{tmp}, s[12:15], s98 offen')
def rbf(v):
    a(f'v_cvt_pk_bf16_f32 v{v}, v{v}, v{v}')
    a(f'v_lshlrev_b32 v{v}, 16, v{v}')
def srd_from(d, b, nbytes):
    srd(a, d, b, nbytes)
spin_ids = {}
def spin_begin(name):
    a(f's_mov_b32 s79, 0')
    a(f'{name}:')
def spin_end(name):
    a(f's_cbranch_scc1 {name}_ok')
    a('s_add_u32 s79, s79, 1')
    a(f's_cmp_ge_u32 s79, {SPINMAX}')
    if STAMPS: spin_ids[name] = 100 + len(spin_ids); a(f's_cselect_b32 s101, {spin_ids[name]}, s101')
    a(f's_cbranch_scc1 {name}_ok')
    a('s_sleep 2')
    a(f's_branch {name}')
    a(f'{name}_ok:')

def lds_arrive(off, v):
    a(f'v_mov_b32 v{v}, {L_CNT}'); a(f'v_mov_b32 v{v+1}, 1')
    a('s_waitcnt lgkmcnt(0)')
    a('s_mov_b64 exec, 1')
    a(f'ds_add_u32 v{v}, v{v+1} offset:{off}')
    a('s_mov_b64 exec, -1')
wait_ids = {}
def lds_wait(name, off, v, cnt=4):
    wait_ids[name] = len(wait_ids) + 1
    a(f'v_mov_b32 v{v}, {L_CNT}')
    a('s_mov_b32 s100, 0')
    a(f'{name}:')
    a(f'ds_read_b32 v{v+1}, v{v} offset:{off}')
    a('s_waitcnt lgkmcnt(0)')
    a(f'v_readfirstlane_b32 s78, v{v+1}')
    a(f's_cmp_lt_u32 s78, {cnt}')
    a(f's_cbranch_scc0 {name}_ok')
    a('s_add_u32 s100, s100, 1')
    a(f's_cmp_lt_u32 s100, {SPINMAX*8}')
    a('s_sleep 1')
    a(f's_cbranch_scc1 {name}')
    if STAMPS: a(f's_mov_b32 s101, {wait_ids[name]}')
    a(f'{name}_ok:')
a.begin(KNAME)
a('s_cmp_ge_u32 s2, 256')
a('s_cbranch_scc1 L_done')
stamp(0)
if STAMPS: a('s_mov_b32 s101, 0')
a('s_load_dwordx2 s[64:65], s[0:1], 0')
a('s_load_dwordx4 s[60:63], s[0:1], 24')
a('s_load_dwordx8 s[48:55], s[0:1], 48')
a('s_load_dwordx4 s[56:59], s[0:1], 80')
a('v_lshrrev_b32 v1, 6, v0')
a('v_and_b32 v0, 63, v0')
a('v_readfirstlane_b32 s3, v1')
a('s_and_b32 s40, s2, 7'); a('s_lshr_b32 s41, s2, 3')
a('s_and_b32 s31, s40, 1'); a('s_lshr_b32 s30, s40, 1')
a('s_and_b32 s32, s41, 7'); a('s_lshr_b32 s33, s41, 3')
a('s_lshl_b32 s28, s31, 3'); a('s_add_u32 s28, s28, s32')
a('s_mul_i32 s29, s30, 3'); a('s_add_u32 s29, s29, s33')
a('s_add_u32 s42, s30, 12')
a('s_cmp_eq_u32 s33, 3')
a('s_cselect_b32 s29, s42, s29')
a('s_cselect_b32 s35, 1, 0')
OFFA = opt('offa', 0)
assert DF or OFFA == 0
if OFFA == 0: a('s_mul_i32 s34, s30, 5'); a('s_add_u32 s34, s34, 1'); a('s_lshr_b32 s34, s34, 1')
elif OFFA == 1: a('s_min_u32 s34, s30, 1'); a('s_add_u32 s34, s34, s30')
elif OFFA == 2: a('s_mov_b32 s34, 0')
elif OFFA == 3: a('s_min_u32 s34, s30, 1'); a('s_add_u32 s34, s34, s30'); a('s_and_b32 s42, s30, 1'); a('s_mul_i32 s42, s42, 5'); a('s_add_u32 s34, s34, s42')
a('s_mul_i32 s42, s31, 5'); a('s_add_u32 s34, s34, s42')
a('s_cmp_ge_u32 s34, 10'); a('s_cselect_b32 s42, 10, 0'); a('s_sub_u32 s34, s34, s42')
if P2MAP == 0:
    a('s_lshl_b32 s42, s30, 3'); a('s_add_u32 s42, s42, s32')
    a('s_lshl_b32 s38, s31, 2'); a('s_add_u32 s38, s38, s33')
else:
    a('s_lshl_b32 s42, s40, 2'); a('s_add_u32 s42, s42, s33')
    a('s_mov_b32 s38, s32')
if EARLY < 0:
    a('s_mul_i32 s39, s32, 3'); a('s_lshr_b32 s39, s39, 1'); a('s_mul_i32 s66, s33, 3'); a('s_add_u32 s39, s39, s66')
    a('s_cmp_ge_u32 s39, 12'); a('s_cselect_b32 s66, 12, 0'); a('s_sub_u32 s39, s39, s66')
else:
    a('s_lshl_b32 s39, s33, 1'); a('s_add_u32 s39, s39, s32'); a('s_mul_i32 s39, s39, 3'); a('s_lshr_b32 s39, s39, 2')
    a('s_cmp_ge_u32 s39, 6'); a('s_cselect_b32 s66, 6, 0'); a('s_sub_u32 s39, s39, s66')
if not P2ROT: a('s_mov_b32 s39, 0')
if P2ROT == 2: a('s_mul_i32 s39, s32, 3'); a('s_lshr_b32 s39, s39, 1')
if P2ROT == 3: a('s_mul_i32 s39, s33, 3')
if P2ROT == 4: a('s_add_u32 s39, s32, s33'); a('s_and_b32 s39, s39, 1'); a('s_mul_i32 s39, s39, 6')
if P2ROT == 5: a('s_and_b32 s39, s2, 7'); a('s_mul_i32 s39, s39, 3'); a(f's_lshr_b32 s39, s39, {1 if EARLY < 0 else 2}')
a('s_lshr_b32 s36, s42, 1'); a('s_and_b32 s37, s42, 1')
WSOFF = opt('wsoff', 0)
WSRD = 's[12:15]'; HSRD = 's[12:15]'
def common_srds(loader=False):
    a('s_waitcnt lgkmcnt(0)')
    tick(7, 50)
    srd(a, 12, 58, WS_SIZE, WSOFF << 20)
    if not loader:
        srd_from(4, 64, S*D*2)
        srd_from(16, 54, S*D*2)
        srd_from(20, 52, F*D*2)
        srd_from(24, 56, 256)
a('s_cmp_lt_u32 s3, 4')
a('s_cbranch_scc1 L_compute')
a('s_sub_u32 s44, s3, 4')
a('s_cmp_eq_u32 s44, 3')
a('s_cbranch_scc1 L_aux')

W0 = 5
PT_ = [20, 21, 22, 23, 24, 25, 26, 27, 4, 5, 6, 7, 16, 17, 18, 19]
GT_ = [66, 67, 68, 69, 76, 77, 78, 79, 96, 97, 100, 101, 40, 41, 42, 43]
GT_ = [66, 67, 68, 69, 76, 77, 78, 79, 28, 29, 30, 31, 40, 41, 33, 43]
def emit_p0(dst, t):
    a(f's_min_u32 s{t}, s30, 1'); a(f's_add_u32 s{dst}, s30, s{t}'); a(f's_mul_i32 s{t}, s31, 3'); a(f's_add_u32 s{dst}, s{dst}, s{t}')
    a(f's_cmp_ge_u32 s{dst}, 5'); a(f's_cselect_b32 s{t}, 5, 0'); a(f's_sub_u32 s{dst}, s{dst}, s{t}')
H0 = opt('h0', 8)
def dma_loop(name, npieces):
    h = npieces * H0 // 16
    def pieces1(lo, hi, pol):
        for t in range(lo, hi):
            a(f's_add_u32 m0, s{PT_[t]}, s46'); a('s_nop 0')
            a(f'buffer_load_dwordx4 v{4 + (t & 1)}, s[8:11], s{GT_[t]} offen {pol} lds')
    def pieces(lo, hi):
        if not NTM: return pieces1(lo, hi, RP)
        L = a.label('L_pc')
        a('s_bitcmp1_b32 s50, s47'); a(f's_cbranch_scc1 {L}_n')
        pieces1(lo, hi, ''); a(f's_branch {L}_e')
        a(f'{L}_n:'); pieces1(lo, hi, 'nt'); a(f'{L}_e:')
    a('s_mov_b32 s46, 0'); a('s_mov_b32 s47, 0')
    a('v_add_u32 v4, s42, v4'); a('v_add_u32 v5, s42, v5')
    tick(7, 51)
    if opt('uni', 0):
        pieces(0, h)
        a(f'{name}_l:')
        pieces(h, npieces)
        a('s_cmp_eq_u32 s47, 9'); a('s_cbranch_scc1 L_p2last')
        a('s_add_u32 s45, s45, 1'); a('s_cmp_eq_u32 s45, 10'); a('s_cselect_b32 s45, 0, s45')
        a('s_cselect_b32 s42, s49, s48')
        a('v_add_u32 v4, s42, v4'); a('v_add_u32 v5, s42, v5')
        a(f's_add_u32 s46, s46, {STG}'); a(f's_cmp_eq_u32 s46, {3*STG}'); a('s_cselect_b32 s46, 0, s46')
        pieces(0, h)
        a(f's_waitcnt vmcnt({h})')
        tick(7, ('s47', 0))
        a('s_barrier')
        tick(7, ('s47', 16))
        a('s_add_u32 s47, s47, 1'); a(f's_branch {name}_l')
        return
    a(f'{name}_l:')
    pieces(0, h)
    a('s_cmp_lg_u32 s47, 1'); a(f's_cbranch_scc1 {name}_m')
    a(f's_waitcnt vmcnt({h})')
    tick(7, 0)
    a('s_barrier')
    tick(7, 16)
    a(f'{name}_m:')
    pieces(h, npieces)
    a('s_add_u32 s45, s45, 1'); a('s_cmp_eq_u32 s45, 10'); a('s_cselect_b32 s45, 0, s45')
    a('s_cselect_b32 s42, s49, s48')
    a('s_mov_b32 s70, s48'); a('s_mov_b32 s48, s51'); a('s_mov_b32 s51, s70')
    a('v_add_u32 v4, s42, v4'); a('v_add_u32 v5, s42, v5')
    a(f's_add_u32 s46, s46, {STG}'); a(f's_cmp_eq_u32 s46, {3*STG}'); a('s_cselect_b32 s46, 0, s46')
    tick(7, ('s47', 52))
    a('s_cmp_lt_u32 s47, 2'); a(f's_cbranch_scc1 {name}_nx')
    a(f's_waitcnt vmcnt({npieces})')
    tick(7, ('s47', -1))
    a('s_barrier')
    tick(7, ('s47', 15))
    a('s_cmp_eq_u32 s47, 9'); a('s_cbranch_scc1 L_p2last')
    a(f'{name}_nx:')
    a('s_add_u32 s47, s47, 1'); a(f's_branch {name}_l')

a('s_cmp_eq_u32 s44, 2')
a('s_cbranch_scc1 L_ldx')
a('s_cmp_eq_u32 s35, 1')
a('s_cbranch_scc1 L_ldc')
a('v_lshrrev_b32 v1, 4, v0')
a('v_and_b32 v2, 15, v0')
a('v_lshlrev_b32 v3, 1, v1')
a('v_xor_b32 v2, v2, v3')
a('v_lshlrev_b32 v2, 4, v2')
a(f'v_mul_u32_u24 v3, {F*2}, v1')
a('v_add_u32 v2, v2, v3')
a('s_lshl_b32 s70, s29, 8')
a('v_add_u32 v2, s70, v2')
a('s_and_b32 s70, s32, 1'); a('s_lshl_b32 s70, s70, 7')
a('v_xor_b32 v4, s70, v2')
a('v_xor_b32 v5, 128, v4')
a('s_lshl_b32 s70, s32, 11')
a('s_lshl_b32 s71, s44, 14')
for g in range(4):
    if g: a('s_add_u32 s70, s70, 2048'); a('s_and_b32 s70, s70, 0x3c00')
    a(f's_or_b32 s{PT_[4*g]}, s70, s71'); a(f's_mul_i32 s{GT_[4*g]}, s70, 12')
    a(f's_add_u32 s{PT_[4*g+2]}, s{PT_[4*g]}, 1024'); a(f's_add_u32 s{GT_[4*g+2]}, s{GT_[4*g]}, {4*F*2}')
    a('s_add_u32 s70, s70, 2048'); a('s_and_b32 s70, s70, 0x3c00')
    a(f's_or_b32 s{PT_[4*g+1]}, s70, s71'); a(f's_mul_i32 s{GT_[4*g+1]}, s70, 12')
    a(f's_add_u32 s{PT_[4*g+3]}, s{PT_[4*g+1]}, 1024'); a(f's_add_u32 s{GT_[4*g+3]}, s{GT_[4*g+1]}, {4*F*2}')
a('s_cmp_eq_u32 s44, 1')
a('s_waitcnt lgkmcnt(0)')
a('s_cselect_b32 s8, s50, s48'); a('s_cselect_b32 s9, s51, s49'); a(f's_mov_b32 s10, {D*F*2}'); a('s_mov_b32 s11, 0x00020000')
a(f's_mov_b32 s48, {64*F*2}'); a('s_mov_b32 s51, s48'); a('s_mov_b32 s45, s34'); a('s_mul_i32 s42, s34, s48'); a('s_mul_i32 s49, s48, -9')
if NTM: a(f's_mov_b32 s50, {NTM[0]}')
a('s_branch L_ld16')
a('L_ldx:')
if DF: emit_p0(71, 72)
a('v_lshrrev_b32 v1, 3, v0')
a('v_and_b32 v2, 7, v0')
a('v_lshrrev_b32 v3, 1, v1')
a('v_xor_b32 v2, v2, v3')
a('v_lshlrev_b32 v2, 4, v2')
a('v_lshrrev_b32 v3, 2, v1'); a('v_and_b32 v6, 3, v1'); a('v_lshl_add_u32 v3, v6, 2, v3')
XMAP = opt('xmap', 0)
if XMAP == 0:
    a('v_lshlrev_b32 v3, 7, v3'); a('v_add_u32 v3, s28, v3')
elif XMAP == 1:
    a('v_lshlrev_b32 v3, 7, v3'); a('s_lshl_b32 s70, s28, 3'); a('v_add_u32 v3, s70, v3')
else:
    a('v_lshlrev_b32 v3, 3, v3'); a('s_lshl_b32 s70, s28, 7'); a('v_add_u32 v3, s70, v3')
a(f'v_mul_u32_u24 v3, {D*2}, v3')
a('v_add_u32 v4, v2, v3')
a('v_xor_b32 v5, 64, v4'); a(f'v_add_u32 v5, {(256 if XMAP < 2 else 16)*D*2}, v5')
a('s_lshl_b32 s70, s33, 12')
for t in range(0, 16, 2):
    if t: a('s_add_u32 s70, s70, 2048'); a('s_and_b32 s70, s70, 0x3c00')
    a(f's_or_b32 s{PT_[t]}, s70, 0x8000'); a(f's_or_b32 s{PT_[t+1]}, s70, 0x8400')
    if XMAP == 0: a(f's_mul_i32 s{GT_[t]}, s70, {16*D*2//2048}')
    else: a(f's_mul_i32 s{GT_[t]}, s70, 5'); a(f's_lshr_b32 s{GT_[t]}, s{GT_[t]}, 3')
    a(f's_mov_b32 s{GT_[t+1]}, s{GT_[t]}')
a('s_waitcnt lgkmcnt(0)')
srd_from(8, 64, S*D*2)
a('s_movk_i32 s48, 128'); a('s_movk_i32 s51, 128'); a('s_mov_b32 s45, s34'); a('s_lshl_b32 s42, s34, 7'); a('s_movk_i32 s49, -1152')
if DF:
    a('s_cmp_eq_u32 s35, 0'); a('s_cbranch_scc1 L_ld16')
    a('s_movk_i32 s48, 640'); a('s_movk_i32 s51, -512'); a('s_lshl_b32 s45, s71, 1'); a('s_lshl_b32 s42, s71, 7')
if NTM: a(f's_mov_b32 s50, {NTM[1]}')
a('L_ld16:')
dma_loop('L_ldw', 16)
a('L_ldc:')
a('v_lshrrev_b32 v1, 3, v0')
a('v_and_b32 v2, 7, v0')
a('v_lshrrev_b32 v3, 1, v1')
a('v_xor_b32 v2, v2, v3')
a('v_lshlrev_b32 v2, 4, v2')
if DF:
    emit_p0(45, 72)
    a('s_lshr_b32 s70, s30, 1'); a('s_mul_i32 s70, s70, 160'); a('s_and_b32 s71, s30, 1'); a('s_add_u32 s70, s70, s71'); a('s_add_u32 s70, s70, 1')
    a('v_lshlrev_b32 v1, 1, v1')
else:
    a('s_mul_i32 s70, s30, 80'); a('s_add_u32 s70, s70, 1')
a('v_add_u32 v1, s70, v1')
a(f'v_mul_u32_u24 v3, {D*2}, v1')
a('v_add_u32 v2, v2, v3')
a('s_and_b32 s70, s32, 1'); a('s_lshl_b32 s70, s70, 6')
a('v_xor_b32 v4, s70, v2')
a('v_xor_b32 v5, 64, v4')
a('s_lshl_b32 s70, s32, 10')
a('s_lshl_b32 s71, s44, 14')
for t in range(10):
    if t: a('s_add_u32 s70, s70, 1024'); a('s_cmp_eq_u32 s70, 10240'); a('s_cselect_b32 s70, 0, s70')
    a(f's_or_b32 s{PT_[t]}, s70, s71'); a(f's_mul_i32 s{GT_[t]}, s70, {(16 if DF else 8)*D*2//1024}')
a('s_cmp_eq_u32 s44, 1')
a('s_waitcnt lgkmcnt(0)')
a('s_cselect_b32 s8, s62, s60'); a('s_cselect_b32 s9, s63, s61'); a(f's_mov_b32 s10, {D*D*2}'); a('s_mov_b32 s11, 0x00020000')
if not DF:
    a('s_movk_i32 s48, 128'); a('s_movk_i32 s51, 128'); a('s_mov_b32 s45, s34'); a('s_lshl_b32 s42, s34, 7'); a('s_movk_i32 s49, -1152')
    if NTM: a(f's_mov_b32 s50, {NTM[0]}')
    dma_loop('L_ldcl', 10)
else:
    a('s_lshl_b32 s42, s45, 7'); a('v_add_u32 v4, s42, v4'); a('v_add_u32 v5, s42, v5')
    a(f's_mov_b32 s46, {STG}'); a('s_mov_b32 s47, 1')
    a('L_ldcl:')
    for t in range(10):
        a(f's_add_u32 m0, s{PT_[t]}, s46'); a('s_nop 0')
        a(f'buffer_load_dwordx4 v{4 + (t & 1)}, s[8:11], s{GT_[t]} offen lds')
    a('s_add_u32 s45, s45, 1'); a('s_cmp_eq_u32 s45, 5'); a('s_cselect_b32 s45, 0, s45')
    a('s_movk_i32 s42, 128'); a('s_cselect_b32 s42, -512, s42')
    a('v_add_u32 v4, s42, v4'); a('v_add_u32 v5, s42, v5')
    a(f's_sub_u32 s46, s46, {STG}'); a(f's_cselect_b32 s46, {2*STG}, s46')
    a('s_barrier')
    a('s_cmp_eq_u32 s47, 9'); a('s_cbranch_scc1 L_p2last')
    a('s_waitcnt vmcnt(0)')
    a('s_barrier')
    a('s_add_u32 s47, s47, 2'); a('s_branch L_ldcl')

P2ACC = 176; P2W_R = 56; P2H = 8
def p2_setup():
    a('v_lshlrev_b32 v1, 4, v0')
    srd(a, 12, 58, WS_SIZE, WSOFF << 20)
    a('s_mul_i32 s70, s38, 48'); a('s_mul_i32 s71, s44, 12'); a('s_add_u32 s70, s70, s71')
    a(f's_mul_i32 s70, s70, 5120'); a(f's_add_u32 s70, s70, {WS_WDT}')
    a(f's_mul_i32 s73, s44, {P2W}')
def kidx(step):
    if EARLY < 0:
        a(f's_add_u32 s72, s39, {step}'); a('s_cmp_ge_u32 s72, 12'); a('s_cselect_b32 s71, 12, 0'); a('s_sub_u32 s72, s72, s71')
    else:
        a(f's_add_u32 s72, s39, {step % 6}'); a('s_cmp_ge_u32 s72, 6'); a('s_cselect_b32 s71, 6, 0'); a('s_sub_u32 s72, s72, s71')
        a('s_lshl_b32 s72, s72, 1')
        if step >= 6: a('s_add_u32 s72, s72, 1')
def wdt_reg(step):
    kidx(step)
    a('s_mul_i32 s72, s72, 5120'); a('s_add_u32 s72, s72, s70')
    for ei in range(5):
        r = P2W_R + 20*step + 4*ei
        if ei == 4: a('s_add_u32 s72, s72, 4096')
        a(f'buffer_load_dwordx4 v[{r}:{r+3}], v1, {WSRD}, s72 offen offset:{(ei % 4)*1024} {LDW}')
def wdt_lds(step):
    kidx(step)
    a('s_mul_i32 s72, s72, 5120'); a('s_add_u32 s72, s72, s70')
    for ei in range(5):
        a(f's_add_u32 m0, s73, {P2STEP[step-6] + ei*1024}')
        if ei: a('s_add_u32 s72, s72, 1024')
        else: a('s_nop 0')
        a(f'buffer_load_dwordx4 v1, {WSRD}, s72 offen {LDW} lds')
WD = [[0, 1], [2, 3], [4, 5], []]
def read_nonce(v):
    a(f'v_mov_b32 v{v}, {L_NON}'); a(f'ds_read_b32 v{v}, v{v}'); a('s_waitcnt lgkmcnt(0)'); a(f'v_readfirstlane_b32 s43, v{v}')
def final_addr(tau_off, d4, d5, d11, t):
    v4, v5, v6, v7, v8, v9, v10 = d4, d5, t, t+1, t+2, t+3, t+4
    a('s_lshl_b32 s66, s3, 6'); a(f's_add_u32 s66, s66, {tau_off}')
    a(f'v_add_u32 v{v4}, s66, v0')
    a(f'v_mul_u32_u24 v{v5}, 6554, v{v4}'); a(f'v_lshrrev_b32 v{v5}, 16, v{v5}')
    a(f'v_mul_u32_u24 v{v6}, 10, v{v5}'); a(f'v_sub_u32 v{v6}, v{v4}, v{v6}')
    a(f'v_lshrrev_b32 v{v7}, 4, v{v5}'); a(f'v_and_b32 v{v5}, 15, v{v5}')
    a(f'v_lshrrev_b32 v{v9}, 1, v{v6}')
    a(f'v_mov_b32 v{v10}, {PT[0]}'); a(f'v_mov_b32 v{d11}, {ST[0]}')
    for e in range(1, 5):
        a(f'v_cmp_eq_u32 vcc, {e}, v{v9}'); a(f'v_mov_b32 v{t+5}, {PT[e]}'); a(f'v_mov_b32 v{t+6}, {ST[e]}')
        a(f'v_cndmask_b32 v{v10}, v{v10}, v{t+5}, vcc'); a(f'v_cndmask_b32 v{d11}, v{d11}, v{t+6}, vcc')
    a(f'v_and_b32 v{v8}, 1, v{v6}'); a(f'v_mul_u32_u24 v{v4}, {2*PQ}, v{v8}')
    a(f'v_mul_u32_u24 v{v8}, {PN}, v{v7}'); a(f'v_add_u32 v{v4}, v{v4}, v{v8}'); a(f'v_lshl_add_u32 v{v4}, v{v5}, 4, v{v4}')
    a(f'v_add_u32 v{d11}, v{d11}, v{v4}'); a(f'v_add_u32 v{v4}, v{v10}, v{v4}')
    a(f'v_lshrrev_b32 v{v8}, 2, v{v5}'); a(f'v_and_b32 v{v5}, 3, v{v5}'); a(f'v_lshl_add_u32 v{v5}, v{v5}, 2, v{v8}')
    a(f'v_lshlrev_b32 v{v5}, 3, v{v5}'); a(f'v_add_u32 v{v5}, v{v5}, v{v7}'); a(f'v_lshlrev_b32 v{v5}, 4, v{v5}')
    a('s_lshl_b32 s66, s37, 6'); a('s_add_u32 s66, s66, s36'); a(f'v_add_u32 v{v5}, s66, v{v5}')
    a(f'v_mul_u32_u24 v{v5}, {D*2}, v{v5}'); a(f'v_lshl_add_u32 v{v5}, v{v6}, 4, v{v5}'); a('s_mul_i32 s66, s38, 160'); a(f'v_add_u32 v{v5}, s66, v{v5}')

VB0, VB1 = 128, 144
def p2h_setup():
    a('s_cmp_ge_u32 s38, 4'); a('s_cselect_b32 s55, 1, 0')
    a('s_sub_u32 s67, 16, s36'); a('s_xor_b32 s68, s37, 1')
    a('s_cmp_eq_u32 s55, 1')
    a('s_cselect_b32 s67, s67, s36'); a('s_cselect_b32 s68, s68, s37')
    a('s_and_b32 s60, s67, 3'); a('s_lshl_b32 s60, s60, 7'); a(f's_add_u32 s60, s60, {WS_FV}')
    a('s_lshl_b32 s67, s67, 1'); a('s_add_u32 s67, s67, s68'); a(f's_mul_i32 s67, s67, {VROW}'); a(f's_add_u32 s56, s67, {WS_V}')
    a('s_lshl_b32 s57, s55, 9'); a('s_sub_u32 s57, 256, s57')
def fv_addr(v, t):
    if DF:
        a(f'v_lshrrev_b32 v{v}, 4, v0'); a(f'v_lshlrev_b32 v{v}, 9, v{v}'); a(f'v_and_b32 v{t}, 15, v0'); a(f'v_lshl_add_u32 v{v}, v{t}, 2, v{v}')
        return
    a('s_sub_u32 s66, 7, s38'); a('s_sub_u32 s67, s38, 1'); a('s_max_i32 s67, s67, 0')
    a('s_cmp_ge_u32 s38, 4'); a('s_cselect_b32 s67, s66, s67'); a('s_cselect_b32 s66, s66, s38')
    a(f'v_mov_b32 v{v}, s66'); a(f'v_mov_b32 v{t}, s67'); a(f'v_bfe_u32 v{t+1}, v0, 4, 1'); a(f'v_cmp_eq_u32 vcc, 0, v{t+1}'); a(f'v_and_b32 v{t+1}, 15, v0')
    a(f'v_cndmask_b32 v{v}, v{t}, v{v}, vcc'); a(f'v_lshlrev_b32 v{v}, 9, v{v}'); a(f'v_lshl_add_u32 v{v}, v{t+1}, 2, v{v}')
def pre_loop():
    for r in range(3):
        final_addr(256*r, FA[3*r], FA[3*r+1], FA[3*r+2], 40)
    a('s_cmp_ge_u32 s3, 2'); a('s_cselect_b32 s66, -1, 0'); a(f'v_or_b32 v{FA[7]}, s66, v{FA[7]}')
    fv_addr(VFL, 40)
    if DF:
        for dst, ei in ((VA0, 's3'), (VA4, '4')):
            a('s_mul_i32 s66, s38, 80'); a(f's_lshl_b32 s67, {ei}, 4'); a('s_add_u32 s66, s66, s67'); a('v_add_u32 v40, s66, v3')
            a('v_sub_u32 v41, 640, v40'); a('s_cmp_eq_u32 s55, 1'); a('s_cselect_b64 vcc, -1, 0'); a('s_nop 1')
            a('v_cndmask_b32 v40, v40, v41, vcc')
            a('v_and_b32 v41, 1, v40'); a('v_mul_u32_u24 v41, 160, v41'); a('v_add_u32 v42, 335, v40'); a('v_lshrrev_b32 v42, 1, v42'); a('v_sub_u32 v42, v42, v41')
            a('v_cmp_eq_u32 vcc, 0, v40'); a(f'v_mul_u32_u24 v43, {4*17*2*VROW}, v2'); a('s_nop 0')
            a('v_cndmask_b32 v42, v42, 7, vcc')
            a(f'v_lshl_add_u32 v{dst}, v42, 4, v43')
        return
    a('s_mul_i32 s66, s38, 80'); a('v_add_u32 v40, s66, v3')
    a('v_add_u32 v41, 7, v40'); a('v_sub_u32 v42, 647, v40')
    a('s_cmp_eq_u32 s55, 1'); a('s_cselect_b64 vcc, -1, 0')
    a(f'v_mul_u32_u24 v43, {4*17*2*VROW}, v2')
    a('v_cndmask_b32 v40, v41, v42, vcc')
    a('v_lshl_add_u32 v43, v40, 4, v43')
    a('s_mul_i32 s66, s3, s57'); a(f'v_add_u32 v{VA0}, s66, v43')
    a('s_lshl_b32 s66, s57, 2'); a(f'v_add_u32 v{VA4}, s66, v43')
def pre_epilogue():
    for r in range(3): a(f'buffer_load_dwordx4 v[{XR[r]}:{XR[r]+3}], v{FA[3*r+1]}, s[4:7], 0 offen {XP_}')
def v_loads():
    L = a.label('L_vl')
    a('s_mov_b32 s72, s56')
    for i in range(4):
        a(f'buffer_load_dwordx4 v[{VB0+4*i}:{VB0+3+4*i}], v{VA0}, s[12:15], s72 offen {LDH}')
        if i < 3: a(f's_add_u32 s72, s72, {17*2*VROW}')
    a('s_cmp_lg_u32 s3, 0'); a(f's_cbranch_scc1 {L}')
    a('s_mov_b32 s72, s56')
    for i in range(4):
        a(f'buffer_load_dwordx4 v[{VB1+4*i}:{VB1+3+4*i}], v{VA4}, s[12:15], s72 offen {LDH}')
        if i < 3: a(f's_add_u32 s72, s72, {17*2*VROW}')
    a(f'{L}:')

a('L_p2last:')
a('s_waitcnt vmcnt(0)')
lds_arrive(12, 2)
read_nonce(2)
p2_setup()
if FWL: lds_wait('L_fwok', 44, 2, 1)
a('L_p2join:')
tick(7, 27)
NLATE = opt('nlate', 6)
WTOUCH = opt('wtouch', 0)
if WTOUCH:
    a('s_cmp_eq_u32 s35, 0'); a('s_cbranch_scc1 L_nwt')
    a('s_lshl_b32 s66, s32, 2'); a('s_add_u32 s66, s66, s44'); a('s_mul_i32 s66, s66, 23040')
    a('s_and_b32 s67, s38, 4'); a(f's_mul_i32 s67, s67, {48*5120}'); a('s_add_u32 s66, s66, s67'); a(f's_add_u32 s66, s66, {WS_WDT}')
    a('v_lshlrev_b32 v4, 7, v0')
    if WTOUCH == 2:
        for st in range(6): wdt_reg(st)
    for i in range(3):
        a(f'buffer_load_dword v8, v4, s[12:15], s66 offen {LDW}')
        if i < 2: a('s_add_u32 s66, s66, 8192')
    if WTOUCH == 2: a('s_branch L_p2d')
    a('L_nwt:')
for st in range(6): wdt_reg(st)
NLD = opt('nld', 2)
a('s_cmp_eq_u32 s35, 0')
a('s_cbranch_scc1 L_p2ffn')
if NLD < 6:
    for st in (6, 7): wdt_lds(st)
if NLD < 4:
    lds_wait('L_c8d', 16, 4)
    for st in (8, 9): wdt_lds(st)
a('s_branch L_p2d')
a('L_p2ffn:')
if NLATE < 6:
    for st in (6, 7): wdt_lds(st)
if NLATE < 4:
    lds_wait('L_c8', 16, 4)
    for st in (8, 9): wdt_lds(st)
if NLATE < 2:
    lds_wait('L_c9', 20, 4)
    for st in (10, 11): wdt_lds(st)
if AUXV:
    a('s_cmp_lg_u32 s44, 3'); a('s_cbranch_scc1 L_p2d')
    p2h_setup(); fv_addr(8, 9)
    a('s_mov_b32 s79, 0')
    a('L_av:')
    a('buffer_load_dword v9, v8, s[12:15], s60 offen sc1')
    a('s_waitcnt vmcnt(0)')
    a('v_cmp_ne_u32 vcc, s43, v9'); a('s_cmp_eq_u64 vcc, 0'); a('s_cbranch_scc1 L_av_ok')
    a('s_add_u32 s79, s79, 1'); a(f's_cmp_ge_u32 s79, {AUXV}'); a('s_cbranch_scc1 L_p2d')
    a('s_branch L_av')
    a('L_av_ok:')
    lds_arrive(28, 8)
a('L_p2d:')
tick(7, 28)
a(f'v_add_u32 v2, s73, v1')
a(f'v_add_u32 v3, {2*STG}, v2')
a('v_min_u32 v4, 5, v0'); a('v_lshrrev_b32 v5, 1, v4'); a('v_and_b32 v4, 1, v4'); a('v_lshlrev_b32 v4, 2, v4'); a('v_lshl_add_u32 v6, v5, 4, v4')
a('s_lshl_b32 s76, s36, 8'); a('s_mul_i32 s77, s44, 48'); a('s_add_u32 s76, s76, s77'); a('s_lshl_b32 s77, s37, 3'); a('s_add_u32 s76, s76, s77'); a(f's_add_u32 s76, s76, {WS_FH}')
a('s_lshl_b32 s74, s36, 3'); a('s_lshl_b32 s75, s37, 2'); a('s_add_u32 s74, s74, s75')
a('s_mul_i32 s74, s74, 48'); a('s_mul_i32 s75, s44, 12'); a('s_add_u32 s74, s74, s75'); a('s_lshl_b32 s74, s74, 10')
for i in range(80): a(f'v_mov_b32 v{P2ACC+i}, 0')
lds_wait('L_own', 0, 4, 5 if SENT else 4)
tick(7, 29)
stamp(2)
if TONE:
    a('s_cmp_eq_u32 s35, 0'); a('s_cbranch_scc1 L_p2f')
    for st in range(6, 12 - NLATE): wdt_lds(st)
    a('L_p2f:')
    for st in range(12 - NLATE, 12): wdt_lds(st)
    if HDLY: a(f's_sleep {HDLY}')

tick(7, 32)
def hsoff(step):
    kidx(step)
    a('s_lshl_b32 s72, s72, 10'); a(f's_add_u32 s72, s72, s74')
    if SENT: a(f's_mov_b32 s{66 + step % 4}, s72')
def hld(step, ni):
    r = P2H + 16*(step % 3) + 4*ni
    L = []
    if ni: L.append(f's_add_u32 s72, s72, {48*1024}')
    L.append(f'buffer_load_dwordx4 v[{r}:{r+3}], v1, {HSRD}, s72 offen {LDH}')
    return L
def hpoll(name, kp):
    spin_begin(name)
    a(f'buffer_load_dword v4, v6, s[12:15], s76 offen sc1')
    a('s_waitcnt vmcnt(0)')
    a(f'v_cmp_ne_u32 vcc, s43, v{4+kp}')
    a('s_cmp_eq_u64 vcc, 0')
    spin_end(name)
if not SENT: hpoll('L_pollh0', 0)
else: a('s_waitcnt vmcnt(0)'); a('s_mov_b32 s79, 0')
if VGO:
    a(f'v_mov_b32 v4, {L_CNT}'); a('v_mov_b32 v5, 1'); a('ds_write_b32 v4, v5 offset:40')
stamp(3)
tick(7, 33)
for st in range(3):
    hsoff(st)
    for ni in range(4):
        for ins in hld(st, ni): a(ins)
def pwrite(ni):
    return [f'ds_write_b128 v{2 if PT[ei] < 2*STG else 3}, v[{P2ACC+16*ei+4*ni}:{P2ACC+16*ei+4*ni+3}] offset:{PT[ei] + ni*PN - (0 if PT[ei] < 2*STG else 2*STG)}' for ei in range(5)]
for st in range(12):
    rem = min(2, 11 - st)
    RDD = opt('rdd', 2)
    if st == 6 - RDD: lds_wait('L_lw', 36, 4)
    if st < 9: hsoff(st + 3)
    if st == 11:
        a('v_and_b32 v2, 15, v0'); a('v_lshrrev_b32 v4, 4, v0')
        a(f'v_mul_u32_u24 v4, {PQ}, v4'); a('v_lshl_add_u32 v2, v2, 4, v4'); a('v_add_u32 v2, s73, v2'); a(f'v_add_u32 v3, {2*STG}, v2')
    a(f's_waitcnt vmcnt({4*rem})' + (' lgkmcnt(0)' if st >= 6 else ''))
    hb = P2H + 16*(st % 3)
    if SENT:
        a(f'L_hchk{st}:')
        a(f'v_max_u32 v4, v{hb}, v{hb+4}'); a(f'v_max3_u32 v4, v{hb+8}, v{hb+12}, v4')
        a('v_cmp_eq_u32 vcc, -1, v4'); a('s_cmp_lg_u64 vcc, 0')
        a(f's_cbranch_scc1 L_hretry{st}')
        a(f'L_hok{st}:')
    tick(7, 36 + st)
    w0 = P2W_R + 20*(st % 6)
    rd = []
    if 6 <= st + RDD <= 11:
        wr = P2W_R + 20*((st + RDD) % 6)
        for ei in range(5):
            o = P2STEP[st + RDD - 6] + ei*1024
            rd.append(f'ds_read_b128 v[{wr+4*ei}:{wr+4*ei+3}], v{2 if o < 2*STG else 3} offset:{o if o < 2*STG else o - 2*STG}')
    for ni in range(4):
        for ei in (range(5) if ni % 2 == 0 else range(4, -1, -1)):
            t = P2ACC + 16*ei + 4*ni
            h = hb + 4*ni
            a(f'v_mfma_f32_16x16x32_bf16 v[{t}:{t+3}], v[{w0+4*ei}:{w0+4*ei+3}], v[{h}:{h+3}], v[{t}:{t+3}]')
            if rd: a(rd.pop(0))
        if st < 9:
            for ins in hld(st + 3, ni): a(ins)
        if st == 11 and ni >= 2:
            for w in pwrite(ni - 2): a(w)
for w in pwrite(2): a(w)
a('s_nop 3')
for w in pwrite(3): a(w)
stamp(4)
tick(7, 48)
a('s_waitcnt lgkmcnt(0)')
a('s_barrier')
tick_dump(7, 4)
a('s_branch L_fin2')
if SENT:
    for st in range(12):
        a(f'L_hretry{st}:')
        a('s_add_u32 s79, s79, 1'); a(f's_cmp_ge_u32 s79, {SPINMAX}')
        if STAMPS: a(f's_cselect_b32 s101, {60 + st}, s101')
        a(f's_cbranch_scc1 L_hok{st}')
        if RSL: a(f's_sleep {RSL}')
        a(f's_mov_b32 s77, s{66 + st % 4}')
        for ni in range(4):
            r = P2H + 16*(st % 3) + 4*ni
            if ni: a(f's_add_u32 s77, s77, {48*1024}')
            a(f'buffer_load_dwordx4 v[{r}:{r+3}], v1, {HSRD}, s77 offen {LDH}')
        a('s_waitcnt vmcnt(0)')
        a(f's_branch L_hchk{st}')

a('L_aux:')
if opt('aprio', 0): a(f"s_setprio {opt('aprio', 0)}")
common_srds()
AB = 248
a('v_mov_b32 v1, 0'); a(f'v_mov_b32 v3, {L_CNT}')
a('s_mov_b64 exec, 1')
a('s_cmp_lg_u32 s2, 0'); a('s_cbranch_scc1 L_aux_n0')
a('s_memrealtime s[66:67]'); a('s_waitcnt lgkmcnt(0)'); a('s_or_b32 s66, s66, 1'); a('v_mov_b32 v2, s66')
a('buffer_store_dword v2, v1, s[24:27], 0 offen sc1')
a('L_aux_n0:')
[a(f'ds_write_b32 v3, v1 offset:{4*i}') for i in range(12)]
a('s_mov_b64 exec, -1')
if CODEPF:
    a('s_getpc_b64 s[66:67]')
    a('L_pcref:')
    a(f's_sub_u32 s66, s66, L_pcref-{KNAME}'); a('s_subb_u32 s67, s67, 0')
    a('s_mul_i32 s68, s41, 9')
    a('v_add_u32 v4, s68, v0'); a('v_lshlrev_b32 v4, 7, v4')
    a(f'v_min_u32 v4, L_done-{KNAME}, v4')
    a('s_mov_b64 exec, 0x1ff')
    a(f'global_load_dword v{AB+7}, v4, s[66:67]')
    a('s_mov_b64 exec, -1')
if PFW:
    pf_first, pf_n0 = map(int, PFW.split(','))
    a('v_lshrrev_b32 v14, 4, v0'); a('s_mul_i32 s66, s30, 3'); a('v_add_u32 v14, s66, v14'); a('v_lshlrev_b32 v14, 8, v14')
    a('v_bfe_u32 v15, v0, 1, 3'); a('s_lshl_b32 s66, s32, 3'); a('v_add_u32 v15, s66, v15'); a(f'v_mul_u32_u24 v15, {F*2}, v15'); a('v_add_u32 v14, v14, v15')
    a('v_and_b32 v15, 1, v0'); a('v_lshl_add_u32 v14, v15, 7, v14')
    srd(a, 8, 48, D*F*2); srd(a, 52, 50, D*F*2)
    a(f's_add_u32 s64, s34, {pf_first}'); a(f's_mov_b32 s61, {pf_first}')
    PFC = opts.get('pfc', '1111111')
    a(f's_mov_b32 s60, {sum(int(c) << (4*i) for i, c in enumerate(PFC))}')
    def pfw():
        L = a.label('L_pf')
        a('s_and_b32 s62, s60, 15'); a('s_lshr_b32 s60, s60, 4')
        a(f'{L}_n:')
        a('s_cmp_eq_u32 s62, 0'); a(f's_cbranch_scc1 {L}')
        pfw1(L)
        a('s_sub_u32 s62, s62, 1'); a(f's_branch {L}_n')
        a(f'{L}:')
    def pfw0():
        L = a.label('L_pf')
        pfw1(L)
        a(f'{L}:')
    def pfw1(L):
        a('s_cmp_eq_u32 s35, 0'); a(f's_cbranch_scc1 {L}')
        a(f"s_cmp_ge_u32 s61, {opt('pfl', 6)}"); a(f's_cbranch_scc1 {L}')
        a('s_cmp_ge_u32 s64, 10'); a('s_cselect_b32 s66, 10, 0'); a('s_sub_u32 s64, s64, s66'); a(f's_mul_i32 s66, s64, {64*F*2}')
        a('s_mov_b32 exec_hi, 0xffff')
        a(f'buffer_load_dword v15, v14, s[8:11], s66 offen {PFP}'); a(f'buffer_load_dword v15, v14, s[52:55], s66 offen {PFP}')
        a('s_mov_b64 exec, -1')
        a('s_add_u32 s64, s64, 1'); a('s_add_u32 s61, s61, 1')
    for _ in range(pf_n0): pfw0()
else:
    def pfw(): pass
for i in range(48, 56): a(f'v_mov_b32 v{i}, 0')
a('v_lshrrev_b32 v4, 2, v0'); a('v_and_b32 v5, 3, v4'); a('v_bfe_u32 v6, v4, 3, 1'); a('v_lshl_or_b32 v5, v6, 2, v5'); a('v_lshlrev_b32 v5, 1, v5')
a('s_and_b32 s66, s32, 3'); a('s_lshl_b32 s66, s66, 2')
a('v_and_b32 v6, 3, v0'); a('v_add_u32 v6, s66, v6'); a('v_xor_b32 v5, v5, v6')
a('v_lshlrev_b32 v4, 8, v4'); a(f'v_lshl_add_u32 v{AB+1}, v5, 4, v4')
a('s_lshr_b32 s66, s32, 2'); a('s_lshl_b32 s66, s66, 14'); a(f'v_add_u32 v{AB+1}, s66, v{AB+1}')
a('s_cmp_eq_u32 s35, 0'); a('s_cbranch_scc1 L_aux_w')
a('s_and_b32 s67, s32, 3'); a(f's_mul_i32 s67, s67, {20*128}'); a('s_add_u32 s66, s66, s67')
a(f'v_lshlrev_b32 v{AB+1}, 4, v0'); a(f'v_add_u32 v{AB+1}, s66, v{AB+1}')
a('L_aux_w:')
a('s_mov_b32 s46, 0')
a('s_lshl_b32 s77, s29, 1'); a('s_add_u32 s77, s77, s31'); a('s_lshl_b32 s77, s77, 11'); a('s_lshr_b32 s67, s32, 2'); a('s_lshl_b32 s67, s67, 10'); a('s_add_u32 s77, s77, s67'); a(f's_add_u32 s77, s77, {WS_WP}')
a('s_and_b32 s67, s32, 3'); a('s_cmp_eq_u32 s35, 1'); a('s_cselect_b32 s68, 20, 32'); a('s_mul_i32 s67, s67, s68'); a('s_lshl_b32 s67, s67, 3'); a('s_add_u32 s77, s77, s67')
a(f'v_min_u32 v{AB+6}, 47, v0'); a(f'v_lshlrev_b32 v{AB+6}, 2, v{AB+6}')
a('s_mul_i32 s74, s38, 80'); a('s_add_u32 s75, s74, 79'); a('s_lshr_b32 s74, s74, 7'); a('s_lshr_b32 s75, s75, 7')
a('s_lshl_b32 s74, s74, 8'); a('s_lshl_b32 s75, s75, 8'); a(f's_add_u32 s74, s74, {WS_FW}'); a(f's_add_u32 s75, s75, {WS_FW}')
if SENT:
    for i in range(4): a(f'v_mov_b32 v{8+i}, -1')
    a('v_lshlrev_b32 v12, 4, v0')
    a(f's_mul_i32 s76, s28, {8*48*1024}')
    if RDFT: a('s_mul_i32 s67, s30, 12288')
    else: a('s_lshl_b32 s67, s29, 12')
    a('s_add_u32 s76, s76, s67')
a('s_mov_b32 s47, 0')
a('s_waitcnt lgkmcnt(0)')
a('L_aux_l:')
tick(7, ('s47', 0))
a('s_barrier')
tick(7, ('s47', 16))
pfw()
a(f'v_add_u32 v{AB+3}, s46, v{AB+1}')
a(f's_cmp_lg_u32 s47, {NONIT-1}'); a('s_cbranch_scc1 L_aux_nb')
a('s_mov_b64 exec, 1'); a('buffer_load_dword v2, v1, s[24:27], 0 offen sc1'); a('s_mov_b64 exec, -1')
a('L_aux_nb:')
a(f's_cmp_lg_u32 s47, {NONIT}'); a('s_cbranch_scc1 L_aux_na')
a('s_mov_b32 s79, 0')
a('L_non:')
a('s_waitcnt vmcnt(0)')
a('v_readfirstlane_b32 s43, v2')
a('s_cmp_lg_u32 s43, 0'); a('s_cbranch_scc1 L_non_ok')
a('s_add_u32 s79, s79, 1'); a(f's_cmp_ge_u32 s79, {SPINMAX}'); (a('s_cselect_b32 s101, 51, s101') if STAMPS else None); a('s_cbranch_scc1 L_non_ok')
a('s_sleep 4')
a('s_mov_b64 exec, 1'); a('buffer_load_dword v2, v1, s[24:27], 0 offen sc1'); a('s_mov_b64 exec, -1')
a('s_branch L_non')
a('L_non_ok:')
a('v_mov_b32 v2, s43'); a(f'v_mov_b32 v3, {L_NON}'); a('ds_write_b32 v3, v2')
a('s_cmp_ge_u32 s2, 240'); a('s_cbranch_scc1 L_aux_na')
a(f's_mul_hi_u32 s66, s2, {-(-(1<<32)//5)}'); a('s_mul_i32 s67, s66, 5'); a('s_sub_u32 s67, s2, s67')
a('s_lshl_b32 s67, s67, 8'); a('s_lshl_b32 s66, s66, 2'); a('s_add_u32 s66, s66, s67'); a(f's_add_u32 s66, s66, {WS_FW}')
a('s_mov_b64 exec, 1'); a('buffer_store_dword v2, v1, s[12:15], s66 offen sc1'); a('s_mov_b64 exec, -1')
a('L_aux_na:')
def fw_ask():
    a(f'buffer_load_dword v{AB+2}, v{AB+6}, s[12:15], s74 offen sc1'); a(f'buffer_load_dword v{AB+3}, v{AB+6}, s[12:15], s75 offen sc1')
def fw_ask2():
    a(f'buffer_load_dword v62, v{AB+6}, s[12:15], s74 offen sc1'); a(f'buffer_load_dword v63, v{AB+6}, s[12:15], s75 offen sc1')
def fw_check(nm):
    a('s_mov_b32 s79, 0')
    a(f'{nm}:')
    a('s_waitcnt vmcnt(0)')
    a('v_cmp_ne_u32 vcc, s43, v62'); a('v_cmp_ne_u32 s[66:67], s43, v63'); a('s_or_b64 vcc, vcc, s[66:67]')
    a(f's_cbranch_scc0 {nm}_ok')
    a('s_add_u32 s79, s79, 1'); a(f's_cmp_ge_u32 s79, {SPINMAX}'); (a('s_cselect_b32 s101, 52, s101') if STAMPS else None); a(f's_cbranch_scc1 {nm}_ok')
    a('s_sleep 4')
    fw_ask2()
    a(f's_branch {nm}')
    a(f'{nm}_ok:')

T0, T1 = AB + 4, AB + 5
if SENT:
    RS0 = opt('rs0', 3)
    def resets(n):
        L = a.label('L_rs')
        a(f's_cmp_eq_u32 s35, {0 if RDFT else 1}'); a(f's_cbranch_scc1 {L}')
        if RDFT:
            for t in range(n // 12):
                for g in range(3):
                    for i in range(4): a(f'buffer_store_dwordx4 v[8:11], v12, s[12:15], s76 offen offset:{i*1024} sc1')
                    a(f's_add_u32 s76, s76, {4096 if g < 2 else 48*1024 - 8192}')
        else:
            for i in range(n):
                a(f'buffer_store_dwordx4 v[8:11], v12, s[12:15], s76 offen offset:{(i % 4)*1024} sc1')
                if i % 4 == 3: a(f's_add_u32 s76, s76, {48*1024}')
        a(f'{L}:')
    a(f's_cmp_lt_u32 s47, {RS0}'); a('s_cbranch_scc1 L_aux_nr')
    resets(12 if RDFT else 8)
    a('L_aux_nr:')
a('s_cmp_eq_u32 s35, 1'); a('s_cbranch_scc1 L_aux_c')
for i in range(4): a(f'ds_read_b128 v[{24+4*i}:{27+4*i}], v{AB+3} offset:{i*4096}')
a('s_waitcnt lgkmcnt(0)')
for i in range(4):
    for d in range(4):
        r = 24 + 4*i + d
        a(f'v_lshlrev_b32 v{T0}, 16, v{r}'); a(f'v_and_b32 v{T1}, 0xffff0000, v{r}')
        a(f'v_add_f32 v{48+2*d}, v{48+2*d}, v{T0}'); a(f'v_add_f32 v{49+2*d}, v{49+2*d}, v{T1}')
a('s_branch L_aux_x')
a('L_aux_c:')
if DF: a('s_bitcmp1_b32 s47, 0'); a('s_cbranch_scc0 L_aux_x')
def csum():
    for i in range(3): a(f'ds_read_b128 v[{24+4*i}:{27+4*i}], v{AB+3} offset:{i*1024}')
    a('s_waitcnt lgkmcnt(0)')
    for i in range(3):
        for d in range(4):
            r = 24 + 4*i + d
            a(f'v_lshlrev_b32 v{T0}, 16, v{r}'); a(f'v_and_b32 v{T1}, 0xffff0000, v{r}')
            a(f'v_add_f32 v{48+2*i}, v{48+2*i}, v{T0}'); a(f'v_add_f32 v{49+2*i}, v{49+2*i}, v{T1}')
for i in range(3): a(f'ds_read_b128 v[{24+4*i}:{27+4*i}], v{AB+3} offset:{i*1024}')
a('s_waitcnt lgkmcnt(0)')
for i in range(3):
    for d in range(4):
        r = 24 + 4*i + d
        a(f'v_lshlrev_b32 v{T0}, 16, v{r}'); a(f'v_and_b32 v{T1}, 0xffff0000, v{r}')
        a(f'v_add_f32 v{48+2*i}, v{48+2*i}, v{T0}'); a(f'v_add_f32 v{49+2*i}, v{49+2*i}, v{T1}')
a('L_aux_x:')
a(f's_add_u32 s46, s46, {STG}'); a(f's_cmp_eq_u32 s46, {3*STG}'); a('s_cselect_b32 s46, 0, s46')
a('s_add_u32 s47, s47, 1'); a('s_cmp_lt_u32 s47, 5'); a('s_cbranch_scc1 L_aux_l')
tick(7, 5)
a('s_barrier')
tick(7, 21)
pfw()
if RDFT: resets(12*(RS0 + 3 - (RS0 + 3)//2))
elif RS0 >= 2: resets(12 if RS0 == 4 else 8)
p2_setup()
def red8(regs):
    for mod in ('quad_perm:[1,0,3,2]', 'quad_perm:[2,3,0,1]', 'row_half_mirror'):
        a('s_nop 1')
        for r in regs: a(f'v_add_f32_dpp v{r}, v{r}, v{r} {mod} row_mask:0xf bank_mask:0xf')
a('s_cmp_eq_u32 s35, 1'); a('s_cbranch_scc1 L_aux_pc')
for mod in ('row_ror:4', 'row_ror:8'):
    a('s_nop 1')
    for r in range(48, 56): a(f'v_add_f32_dpp v{r}, v{r}, v{r} {mod} row_mask:0xf bank_mask:0xf')
for sw in ('v_permlane16_swap_b32', 'v_permlane32_swap_b32'):
    for r in range(48, 56): a(f'v_mov_b32 v{r-24}, v{r}')
    a('s_nop 1')
    for r in range(48, 56): a(f'{sw} v{r}, v{r-24}')
    a('s_nop 1')
    for r in range(48, 56): a(f'v_add_f32 v{r}, v{r}, v{r-24}')
for d in range(4):
    a(f'v_cmp_eq_u32 vcc, {d}, v6') if d else a('v_lshrrev_b32 v6, 2, v0')
    if d == 0:
        a('v_mov_b32 v24, v48'); a('v_mov_b32 v26, v49')
    else:
        a('s_nop 1'); a(f'v_cndmask_b32 v24, v24, v{48+2*d}, vcc'); a(f'v_cndmask_b32 v26, v26, v{49+2*d}, vcc')
a('v_mov_b32 v25, s43'); a('v_mov_b32 v27, s43')
a('v_and_b32 v4, 3, v0'); a('v_lshlrev_b32 v4, 6, v4'); a('v_lshl_add_u32 v4, v6, 4, v4')
a('s_mov_b64 exec, 0xffff')
a('buffer_store_dwordx4 v[24:27], v4, s[12:15], s77 offen sc1')
a('s_branch L_aux_pub')
a('L_aux_pc:')
if DF:
    a('s_cmp_eq_u32 s31, 1'); a('s_cbranch_scc1 L_aux_c5')
    a(f'v_add_u32 v{AB+3}, s46, v{AB+1}')
    csum()
    a('L_aux_c5:')
    a('s_and_b32 s66, s30, 1'); a('s_lshl_b32 s66, s66, 30')
for i in range(3):
    a(f'v_add_f32 v{48+i*2}, v{48+i*2}, v{49+i*2}')
    if DF: a(f'v_mul_f32 v{48+i*2}, s66, v{48+i*2}')
red8([48, 50, 52])
for i in range(3): a(f'v_mov_b32 v{49+i*2}, s43')
a('s_mov_b32 exec_lo, 0x01010101'); a('s_mov_b32 exec_hi, 0x01010101')
a('buffer_store_dwordx2 v[48:49], v0, s[12:15], s77 offen sc1')
a('buffer_store_dwordx2 v[50:51], v0, s[12:15], s77 offen offset:64 sc1')
a('s_mov_b32 exec_hi, 0')
a('buffer_store_dwordx2 v[52:53], v0, s[12:15], s77 offen offset:128 sc1')
a('L_aux_pub:')
a('s_mov_b64 exec, -1')
tick(7, 6)
a('s_barrier')
tick(7, 22)
pfw()
if RDFT: resets(12*((RS0 + 3)//2))
elif RS0 >= 3: resets(12 if RS0 == 4 else 8)
if not FWL: fw_ask2()
tick(7, 7)
a('s_barrier')
tick(7, 23)
if not FWL: fw_check('L_pollwf')
else: a('s_waitcnt vmcnt(0)')
if SENT:
    a('s_lshl_b32 s66, s28, 8'); a('s_lshl_b32 s67, s29, 2'); a('s_add_u32 s66, s66, s67'); a(f's_add_u32 s66, s66, {WS_FH}')
    a('v_mov_b32 v4, s43'); a('v_mov_b32 v5, 0')
    a('s_waitcnt vmcnt(0)')
    a('s_mov_b64 exec, 1'); a('buffer_store_dword v4, v5, s[12:15], s66 offen sc1'); a('s_mov_b64 exec, -1')
a('s_lshl_b32 s66, s28, 13'); a(f's_add_u32 s66, s66, {WS_XP}'); a('s_add_u32 s68, s66, 4096')
a('s_lshl_b32 s67, s29, 12'); a(f's_add_u32 s67, s67, {WS_WP}')
def gather():
    for i in range(8): a(f'buffer_load_dwordx4 v[{8+4*i}:{11+4*i}], v1, s[12:15], s{66 if i < 4 else 68} offen offset:{(i%4)*1024} sc1')
    for i in range(4): a(f'buffer_load_dwordx4 v[{40+4*i}:{43+4*i}], v1, s[12:15], s67 offen offset:{i*1024} sc1')
    a(f'buffer_load_dword v{AB+1}, v{AB}, s[12:15], s65 offen sc1')
    if FWL: fw_ask2()
a(f's_mov_b32 s65, {WS_FH}')
if RDFT:
    a(f'v_and_b32 v{AB}, 3, v0'); a(f'v_lshlrev_b32 v{AB}, 2, v{AB}'); a('s_lshl_b32 s69, s36, 8'); a('s_add_u32 s69, s69, 48'); a(f'v_add_u32 v{AB}, s69, v{AB}')
    a('s_lshl_b32 s69, s28, 8'); a('s_lshl_b32 s64, s30, 2'); a('s_add_u32 s69, s69, s64'); a('s_add_u32 s69, s69, 48'); a('v_mov_b32 v4, s69')
    a('v_cmp_gt_u32 vcc, 16, v0'); a('s_nop 1'); a(f'v_cndmask_b32 v{AB}, v4, v{AB}, vcc')
else:
    a(f'v_min_u32 v{AB}, 11, v0'); a(f'v_lshlrev_b32 v{AB}, 2, v{AB}'); a('s_lshl_b32 s69, s36, 8'); a(f'v_add_u32 v{AB}, s69, v{AB}')
GAT = opt('gat', 78)
if GAT == 7: gather()
if GAT == 78:
    a('s_cmp_eq_u32 s35, 0'); a('s_cbranch_scc1 L_g7'); gather(); a('L_g7:')
a('s_cmp_eq_u32 s35, 1'); a('s_cselect_b32 s69, 40, 64'); a('v_cmp_gt_u32 s[76:77], s69, v0')
tick(7, 8)
a('s_barrier')
tick(7, 24)
if GAT == 8: gather()
if GAT == 78:
    a('s_cmp_eq_u32 s35, 1'); a('s_cbranch_scc1 L_g8'); gather(); a('L_g8:')
a('s_mov_b32 s79, 0')
a('s_waitcnt vmcnt(0)')
a('L_gchk:')
a(f'v_xor_b32 v2, s43, v{AB+1}'); a('s_sub_u32 s64, s35, 1' if RDFT else 's_mov_b32 s64, 0'); a('v_and_b32 v2, s64, v2')
for i in range(0, 8): a(f'v_xor_b32 v3, s43, v{10+4*i}'); a('v_or_b32 v2, v2, v3')
a('v_xor_b32 v4, s43, v41')
for r in (43, 45, 47, 49, 51, 53, 55): a(f'v_xor_b32 v3, s43, v{r}'); a('v_or_b32 v4, v4, v3')
if FWL: a('v_xor_b32 v3, s43, v62'); a('v_or_b32 v2, v2, v3'); a('v_xor_b32 v3, s43, v63'); a('v_or_b32 v2, v2, v3')
a('v_cmp_ne_u32 vcc, 0, v4'); a('s_and_b64 s[62:63], vcc, s[76:77]')
a('v_cmp_ne_u32 vcc, 0, v2'); a('s_or_b64 s[62:63], s[62:63], vcc')
a('s_cbranch_scc0 L_gok')
a('s_add_u32 s79, s79, 1'); a(f's_cmp_ge_u32 s79, {SPINMAX}'); (a('s_cselect_b32 s101, 50, s101') if STAMPS else None); a('s_cbranch_scc1 L_gok')
a('s_sleep 4')
gather()
a('s_waitcnt vmcnt(0)')
a('s_branch L_gchk')
a('L_gok:')
if FWL: lds_arrive(44, 2)
tick(7, 9)
for h in range(2):
    for d in range(2):
        b = 8 + 4*h + d
        a(f'v_add_f32 v{b}, v{b}, v{b+8}'); a(f'v_add_f32 v{b+16}, v{b+16}, v{b+24}'); a(f'v_add_f32 v{b}, v{b}, v{b+16}')
    a(f'v_add_f32 v{40+4*h}, v{40+4*h}, v{48+4*h}'); a(f'v_add_f32 v{41+4*h}, v{42+4*h}, v{50+4*h}')
a('v_lshlrev_b32 v2, 3, v0'); a(f'v_add_u32 v2, {L_CS}, v2')
a('ds_write_b64 v2, v[40:41]'); a('ds_write_b64 v2, v[44:45] offset:512')
for (s_, q_, ro, mo) in ((8, 9, 16, 18), (12, 13, 17, 19)):
    a(f'v_mul_f32 v{mo}, {1.0/D!r}, v{s_}')
    a(f'v_mul_f32 v{q_}, {1.0/D!r}, v{q_}')
    a(f'v_fma_f32 v{q_}, -v{mo}, v{mo}, v{q_}')
    a(f'v_max_f32 v{q_}, 0, v{q_}')
    rbf(mo); rbf(q_)
    a(f'v_add_f32 v{q_}, 0x3727c5ac, v{q_}')
    rbf(q_)
    a(f'v_sqrt_f32 v{q_}, v{q_}'); a('s_nop 0')
    rbf(q_)
    a(f'v_rcp_f32 v{ro}, v{q_}')
    a(f'v_fmac_f32 v{s_}, {-float(D)!r}, v{mo}')
    a(f'v_mul_f32 v{s_}, v{s_}, v{ro}')
a('v_lshlrev_b32 v2, 2, v0'); a(f'v_add_u32 v2, {L_R}, v2')
a(f'ds_write_b32 v2, v8 offset:{L_A0 - L_R}'); a(f'ds_write_b32 v2, v12 offset:{L_A0 - L_R + 256}')
a('ds_write_b32 v2, v16'); a('ds_write_b32 v2, v17 offset:256'); a('ds_write_b32 v2, v18 offset:512'); a('ds_write_b32 v2, v19 offset:768')
lds_arrive(24, 2)
tick(7, 10)
a(f'v_cmp_ne_u32 vcc, s43, v{AB+1}'); a('s_cmp_eq_u64 vcc, 0'); a('s_cbranch_scc1 L_pollr_ok')
spin_begin('L_pollr')
a(f'buffer_load_dword v{AB+1}, v{AB}, s[12:15], s65 offen sc1')
a('s_waitcnt vmcnt(0)')
a(f'v_cmp_ne_u32 vcc, s43, v{AB+1}'); a('s_cmp_eq_u64 vcc, 0')
spin_end('L_pollr')
lds_arrive(0, 2)
if opt('aprio', 0): a('s_setprio 0')
a('s_branch L_p2join')

a('L_compute:')
common_srds()
a(f's_mov_b32 s50, {(-2*STG) & 0xffffffff}'); a(f's_mov_b32 s51, {STG}')
a('s_mov_b32 s46, 0'); a('s_mov_b32 s47, 0')
p2h_setup()
a('v_lshrrev_b32 v2, 4, v0')
a('v_and_b32 v3, 15, v0')
a('v_bfe_u32 v6, v0, 1, 3'); a('v_xor_b32 v6, v6, v2')
def wd_issue():
    Lw = a.label('L_nowd')
    a(f"s_cmp_ge_u32 s2, {0 if opt('nowd', 0) else 240}")
    a(f's_cbranch_scc1 {Lw}')
    a(f's_mul_hi_u32 s76, s2, {-(-(1<<32)//5)}'); a('s_mul_i32 s77, s76, 5'); a('s_sub_u32 s77, s2, s77')
    a('v_lshrrev_b32 v36, 2, v0'); a('v_and_b32 v37, 3, v0')
    a(f'v_mul_u32_u24 v38, {D*2}, v36'); a('v_lshl_add_u32 v38, v37, 4, v38')
    a(f's_mul_i32 s68, s76, {32*D*2}'); a('s_lshl_b32 s69, s77, 8'); a('s_add_u32 s68, s68, s69'); a('s_lshl_b32 s69, s3, 6'); a('s_add_u32 s68, s68, s69')
    a('s_lshl_b32 s70, s3, 11'); a(f's_add_u32 s70, s70, {L_WD}')
    a('s_mov_b32 m0, s70'); a('s_nop 0')
    a(f'buffer_load_dwordx4 v38, s[20:23], s68 offen {WP_} lds')
    a('s_add_u32 m0, s70, 1024'); a(f's_add_u32 s68, s68, {16*D*2}')
    a(f'buffer_load_dwordx4 v38, s[20:23], s68 offen {WP_} lds')
    a(f'{Lw}:')
WDL = opt('wdlate', 1)
if WDL == 0: wd_issue()
def wd_finish():
    if WDL == 2: wd_issue()
    L = a.label('L_wdf')
    a(f"s_cmp_ge_u32 s2, {0 if opt('nowd', 0) else 240}"); a(f's_cbranch_scc1 {L}')
    a('v_lshlrev_b32 v36, 6, v36'); a('v_lshl_add_u32 v36, v37, 3, v36'); a('v_add_u32 v36, s70, v36')
    a('v_lshlrev_b32 v37, 4, v0')
    a('s_lshl_b32 s77, s77, 3'); a('s_lshl_b32 s68, s3, 1'); a('s_add_u32 s77, s77, s68')
    a(f's_mul_i32 s76, s76, 5120'); a(f's_add_u32 s76, s76, {WS_WDT}')
    a('s_waitcnt vmcnt(0)')
    for e in range(2):
        for b in range(2):
            a(f'ds_read_b64_tr_b16 v[{48+4*e+2*b}:{49+4*e+2*b}], v36 offset:{32*e + 1024*b}')
    for e in range(2):
        a(f's_add_u32 s68, s77, {e}')
        a(f's_mul_hi_u32 s69, s68, {-(-(1<<32)//5)}')
        a('s_mul_i32 s70, s69, 5'); a('s_sub_u32 s70, s68, s70')
        a(f's_mul_i32 s69, s69, {48*5120}'); a('s_lshl_b32 s70, s70, 10')
        a('s_add_u32 s69, s69, s70'); a('s_add_u32 s69, s69, s76')
        a('s_waitcnt lgkmcnt(0)')
        a(f'buffer_store_dwordx4 v[{48+4*e}:{51+4*e}], v37, s[12:15], s69 offen sc1')
    a(f'{L}:')
pre_loop()
if WDL == 1: wd_issue()
a('s_cmp_eq_u32 s35, 1')
a('s_cbranch_scc1 L_dft')
def interleave(M, R):
    out = []; R = list(R)
    for m in M:
        out.append(m)
        if R: out.append(R.pop(0))
    return out + R
tails = []
def mid_sync(last):
    L = a.label('L_ms')
    a('s_cmp_ge_u32 s47, 8'); a(f's_cbranch_scc1 {L}_t')
    a('s_barrier')
    a(f'{L}_b:')
    tails.append((L, last))
CNTRD = 'ds_read2_b32 v[14:15], v6 offset0:3 offset1:6'
def emit_tails():
    for L, last in tails:
        a(f'{L}_t:')
        a('s_mov_b64 exec, 1')
        a('s_cmp_eq_u32 s47, 9'); a(f's_cbranch_scc1 {L}_9')
        a('ds_add_u32 v6, v5 offset:16')
        a('s_mov_b64 exec, -1')
        a('v_readfirstlane_b32 s78, v14')
        a('s_cmp_ge_u32 s78, 3'); a(f's_cbranch_scc1 {L}_b')
        lds_wait(f'{L}_w', 12, 14, 3)
        a(f's_branch {L}_b')
        a(f'{L}_9:')
        a('ds_add_u32 v6, v5 offset:20')
        a('s_mov_b64 exec, -1')
        a(f's_branch {last}')
def stats_wait(name):
    a('v_readfirstlane_b32 s78, v15')
    a('s_cmp_ge_u32 s78, 1'); a(f's_cbranch_scc1 {name}_ok')
    lds_wait(name, 24, 14, 1)
def slot_advance():
    a('s_add_u32 s46, s46, 1'); a('s_cmp_eq_u32 s46, 3'); a('s_cselect_b32 s42, s50, s51'); a('s_cselect_b32 s46, 0, s46')
ACC = 128
def T16(mat, mi, ni): return ACC + 64*mat + 16*mi + 4*ni
FR = 32
def fW(p, mat, mi): return FR + 48*p + 16*mat + 4*mi
def fX(p, ni): return FR + 48*p + 32 + 4*ni
AW, AX = 8, 12
a('s_and_b32 s44, s3, 1'); a('s_lshr_b32 s45, s3, 1')
SPF = opts.get('spf', '')
if SPF:
    a('s_load_dwordx4 s[80:83], s[0:1], 48') if STAMPS == 0 else a('s_load_dwordx4 s[72:75], s[0:1], 48')
    wb = 80 if STAMPS == 0 else 72
    a('s_waitcnt lgkmcnt(0)')
    a('s_cmp_ge_u32 s3, 2'); a('s_cbranch_scc1 L_spx')
    a('s_cmp_eq_u32 s3, 1'); a(f's_cselect_b32 s62, s{wb+2}, s{wb}'); a(f's_cselect_b32 s63, s{wb+3}, s{wb+1}')
    a(f's_mul_i32 s66, s32, {8*F*2}'); a('s_lshl_b32 s67, s29, 8'); a('s_add_u32 s66, s66, s67'); a('s_add_u32 s62, s62, s66'); a('s_addc_u32 s63, s63, 0')
    for dc in map(int, SPF.split(',')):
        a(f's_add_u32 s66, s34, {dc}'); a('s_cmp_ge_u32 s66, 10'); a('s_cselect_b32 s67, 10, 0'); a('s_sub_u32 s66, s66, s67'); a(f's_mul_i32 s66, s66, {64*F*2}')
        a('s_add_u32 s52, s62, s66'); a('s_addc_u32 s53, s63, 0')
        for i in range(16): a(f's_load_dword s54, s[52:53], {(i >> 1)*F*2 + (i & 1)*128}')
    a('s_branch L_spd')
    a('L_spx:')
    a('s_lshl_b32 s66, s33, 1'); a('s_add_u32 s66, s66, s44'); a('s_lshl_b32 s66, s66, 4'); a('s_add_u32 s66, s66, s28'); a(f's_mul_i32 s66, s66, {D*2}')
    a(f's_add_u32 s66, s66, {4*128*D*2}'); a('s_add_u32 s62, s64, s66'); a('s_addc_u32 s63, s65, 0')
    for dc in map(int, SPF.split(',')):
        a(f's_add_u32 s66, s34, {dc}'); a('s_cmp_ge_u32 s66, 10'); a('s_cselect_b32 s67, 10, 0'); a('s_sub_u32 s66, s66, s67'); a('s_lshl_b32 s66, s66, 7')
        a('s_add_u32 s52, s62, s66'); a('s_addc_u32 s53, s63, 0')
        for i in range(8): a(f's_load_dword s54, s[52:53], {(i-4)*128*D*2}')
        a(f's_add_u32 s52, s52, {8*128*D*2}'); a('s_addc_u32 s53, s53, 0')
        for i in range(8): a(f's_load_dword s54, s[52:53], {(i-4)*128*D*2}')
    a('L_spd:')
a('v_bfe_u32 v7, v0, 2, 2')
a('v_lshl_add_u32 v4, v2, 3, v7'); a('v_lshlrev_b32 v4, 8, v4')
a('v_bfe_u32 v5, v0, 1, 1'); a('v_lshl_add_u32 v4, v5, 4, v4')
a('v_and_b32 v5, 1, v0'); a('v_lshl_add_u32 v4, v5, 3, v4')
a('v_and_b32 v5, 1, v2'); a('v_lshl_or_b32 v5, v5, 2, v7')
for mi in range(4):
    a('s_lshl_b32 s66, s44, 2'); a(f's_add_u32 s66, s66, {mi}')
    a('v_xor_b32 v7, s66, v5')
    a(f'v_lshl_add_u32 v{AW+mi}, v7, 5, v4')
a('s_lshl_b32 s66, s45, 13'); a('s_add_u32 s66, s66, 32768')
a('v_lshlrev_b32 v5, 7, v3'); a('v_add_u32 v5, s66, v5')
for ks in range(2):
    a(f'v_xor_b32 v7, {4*ks}, v6')
    a(f'v_lshl_add_u32 v{AX+ks}, v7, 4, v5')
for i in range(128): a(f'v_mov_b32 v{ACC+i}, 0')
def f_reads(p, ks):
    L = []
    def w(mat, mi):
        for b in range(2):
            L.append(f'ds_read_b64_tr_b16 v[{fW(p,mat,mi)+2*b}:{fW(p,mat,mi)+2*b+1}], v{AW+mi} offset:{mat*16384 + ks*8192 + b*1024}')
    w(0, 0)
    for ni in range(4): L.append(f'ds_read_b128 v[{fX(p,ni)}:{fX(p,ni)+3}], v{AX+ks} offset:{ni*2048}')
    for mat in range(2):
        for mi in range(4):
            if (mat, mi) != (0, 0): w(mat, mi)
    return L
def f_mfmas(p):
    L = []
    for i, (mat, mi) in enumerate([(mat, mi) for mat in range(2) for mi in range(4)]):
        for ni in (range(4) if i % 2 == 0 else range(3, -1, -1)):
            t = T16(mat, mi, ni)
            L.append(f'v_mfma_f32_16x16x32_bf16 v[{t}:{t+3}], v[{fW(p,mat,mi)}:{fW(p,mat,mi)+3}], v[{fX(p,ni)}:{fX(p,ni)+3}], v[{t}:{t+3}]')
    return L
wd_finish()
a('v_mov_b32 v5, 1'); a(f'v_mov_b32 v6, {L_CNT}')
tick(7, 0)
a('s_barrier')
tick(7, 16)
stamp(1)
for r in f_reads(0, 0): a(r)
a('L_floop:')
a('s_waitcnt lgkmcnt(0)')
UPD = ['s_add_u32 s46, s46, 1', 's_cmp_eq_u32 s46, 3', 's_cselect_b32 s42, s50, s51', 's_cselect_b32 s46, 0, s46'] + [f'v_add_u32 v{r}, s42, v{r}' for r in (AW, AW+1, AW+2, AW+3, AX, AX+1)]
for ins in interleave(f_mfmas(0), f_reads(1, 1) + [CNTRD] + UPD): a(ins)
a('s_waitcnt vmcnt(0) lgkmcnt(0)')
tick(7, ('s47', 1))
mid_sync('L_flast')
tick(7, ('s47', 17))
for ins in interleave(f_mfmas(1), f_reads(0, 0) + ['s_add_u32 s47, s47, 1']): a(ins)
a('s_branch L_floop')
a('L_flast:')
pre_epilogue()
stats_wait('L_fst')
tick(7, 40)
CSB = 48
P = []
P += ['s_lshl_b32 s66, s45, 8', f's_add_u32 s66, s66, {L_R}', 'v_lshlrev_b32 v4, 2, v3', 'v_add_u32 v4, s66, v4']
for ni in range(4):
    P += [f'ds_read_b32 v{40+ni}, v4 offset:{64*ni}', f'ds_read_b32 v{44+ni}, v4 offset:{512 + 64*ni}']
P += [f'v_mov_b32 v10, {L_CNT}', 'ds_read_b32 v8, v10 offset:32']
P += ['s_lshl_b32 s66, s44, 8', f's_add_u32 s66, s66, {L_CS}', 'v_lshlrev_b32 v5, 4, v2', 'v_add_u32 v5, s66, v5']
for mat in range(2):
    for mi in range(4):
        r = CSB + 16*mat + 4*mi
        P.append(f'ds_read_b128 v[{r}:{r+3}], v5 offset:{mat*512 + mi*64}')
P += ['v_lshlrev_b32 v1, 4, v0', 'v_mov_b32 v9, 0']
P += ['s_lshl_b32 s66, s28, 3', 's_lshl_b32 s67, s45, 2', 's_add_u32 s66, s66, s67', 's_mul_i32 s66, s66, 48',
      's_lshl_b32 s67, s29, 2', 's_add_u32 s66, s66, s67', 's_lshl_b32 s67, s44, 1', 's_add_u32 s66, s66, s67', 's_lshl_b32 s66, s66, 10']
P += ['s_lshl_b32 s70, s28, 8', 's_lshl_b32 s71, s29, 4', 's_add_u32 s70, s70, s71', 's_lshl_b32 s71, s3, 2', 's_add_u32 s70, s70, s71', f's_add_u32 s70, s70, {WS_FH}']
M = f_mfmas(1)
for i, m in enumerate(M):
    a(m)
    for _ in range(2):
        if P: a(P.pop(0))
for x_ in P: a(x_)
stamp(2)
a('s_waitcnt lgkmcnt(0)')
a('v_readfirstlane_b32 s43, v8')
for ni in range(4):
    c = 80 + 6*ni
    a(f'v_sub_f32 v{c}, 0, v{44+ni}')
    a(f'v_mul_f32 v{c+2}, {-1.4426950408889634!r}, v{40+ni}')
    a(f'v_mul_f32 v{c+4}, v{40+ni}, v{40+ni}')
for ni in range(4): a(f'v_rcp_f32 v{84+6*ni}, v{84+6*ni}')
tick(7, 42)
BC = 'op_sel_hi:[1,0,1]'
for ni in range(1, 4): a(f's_add_u32 s{66+ni}, s{65+ni}, {48*1024}')
for kp in range(2):
    for ni in range(4):
        if kp == 1 and ni == VCHK - 1: a('ds_read_b32 v11, v10 offset:28')
        if kp == 1 and ni == VCHK:
            a('s_waitcnt lgkmcnt(0)'); a('v_readfirstlane_b32 s79, v11')
            a('s_cmp_lg_u32 s79, 1'); a('s_cbranch_scc1 L_fnov')
            v_loads()
            a('L_fnov:')
        c = 80 + 6*ni
        prs = [(2*kp + h, d) for h in range(2) for d in (0, 2)]
        G_ = [T16(0, mi, ni) + d for mi, d in prs]; U_ = [T16(1, mi, ni) + d for mi, d in prs]
        for n, (mi, d) in enumerate(prs): a(f'v_pk_fma_f32 v[{G_[n]}:{G_[n]+1}], v[{CSB+4*mi+d}:{CSB+1+4*mi+d}], v[{c}:{c+1}], v[{G_[n]}:{G_[n]+1}] {BC}')
        for n, (mi, d) in enumerate(prs): a(f'v_pk_fma_f32 v[{U_[n]}:{U_[n]+1}], v[{CSB+16+4*mi+d}:{CSB+17+4*mi+d}], v[{c}:{c+1}], v[{U_[n]}:{U_[n]+1}] {BC}')
        for n in range(4): a(f'v_pk_mul_f32 v[{104+2*n}:{105+2*n}], v[{G_[n]}:{G_[n]+1}], v[{c+2}:{c+3}] op_sel_hi:[1,0]')
        for n in range(4): a(f'v_pk_mul_f32 v[{G_[n]}:{G_[n]+1}], v[{G_[n]}:{G_[n]+1}], v[{U_[n]}:{U_[n]+1}]')
        for n in range(8): a(f'v_exp_f32 v{104+n}, v{104+n}')
        a('s_nop 0')
        for n in range(4): a(f'v_pk_fma_f32 v[{104+2*n}:{105+2*n}], v[{104+2*n}:{105+2*n}], v[{c+4}:{c+5}], v[{c+4}:{c+5}] op_sel_hi:[1,0,0]')
        for n in range(8): a(f'v_rcp_f32 v{104+n}, v{104+n}')
        a('s_nop 0')
        o = 112 + 4*ni
        for n in range(4): a(f'v_pk_mul_f32 v[{G_[n]}:{G_[n]+1}], v[{G_[n]}:{G_[n]+1}], v[{104+2*n}:{105+2*n}]')
        for n in range(4): a(f'v_cvt_pk_bf16_f32 v{o+n}, v{G_[n]}, v{G_[n]+1}')
        a(f'buffer_store_dwordx4 v[{o}:{o+3}], v1, s[12:15], s{66+ni} offen offset:{kp*1024} {STP}')
        if 4*kp + ni == EARLY:
            a('v_mov_b32 v12, 1'); a('s_mov_b64 exec, 1'); a('ds_add_u32 v10, v12'); a('s_mov_b64 exec, -1')
        tick(7, 43 + 4*kp + ni)
tick(7, 32)
stamp(3)
if TONE: lds_arrive(0, 4)
else: a('s_waitcnt vmcnt(0)')
if not SENT:
    a('s_mov_b64 exec, 1'); a('buffer_store_dword v8, v9, s[12:15], s70 offen sc1'); a('s_mov_b64 exec, -1')
if VCHK == 4:
    a('s_waitcnt lgkmcnt(0)'); a('v_readfirstlane_b32 s79, v11')
    a('s_cmp_lg_u32 s79, 1'); a('s_cbranch_scc1 L_fnov')
    v_loads()
    a('L_fnov:')
tick_dump(7, 4)
a('s_branch L_helper')

a('L_dft:')
DACC = 176
def TD(part, mi, et): return DACC + 40*part + 20*mi + 4*et
DFR = 40
def dX(p, mi): return DFR + 48*p + 4*mi
def dC(p, part, et): return DFR + 48*p + 8 + 20*part + 4*et
DX, DC = 8, 10
FCOS, FSIN, FNS = 136, 144, 152
a('v_lshlrev_b32 v5, 7, v3')
a('s_lshl_b32 s66, s3, 12'); a('s_add_u32 s66, s66, 32768')
for ks in range(2):
    a(f'v_xor_b32 v7, {4*ks}, v6')
    a(f'v_lshl_add_u32 v{DC+ks}, v7, 4, v5')
    a(f'v_add_u32 v{DX+ks}, s66, v{DC+ks}')
for i in range(80): a(f'v_mov_b32 v{DACC+i}, 0')
if DF:
    a('s_cmp_eq_u32 s30, 0'); a('s_cselect_b32 s45, 4, 2')
    a('s_bitcmp1_b32 s30, 0'); a('s_cselect_b32 s53, 1.0, -1.0')
else:
    a('s_and_b32 s45, s30, 1'); a('s_sub_u32 s45, 3, s45')
a('v_lshrrev_b32 v12, 3, v3'); a('v_and_b32 v13, 7, v3'); a('v_lshlrev_b32 v13, 4, v13'); a('v_lshl_add_u32 v12, v12, 2, v13'); a('v_add_u32 v12, s3, v12')
a('v_lshlrev_b32 v13, 5, v2'); a('v_add_u32 v13, s28, v13'); a('v_cvt_f32_u32 v13, v13')
for mt in range(2):
    a(f'v_add_u32 v14, {8*mt}, v12'); a('v_cvt_f32_u32 v14, v14'); a(f'v_mul_f32 v14, {1.0/2048!r}, v14')
    for d in range(4):
        for h in range(2):
            a(f'v_add_f32 v{60+h}, {float(16*h + 128*d)!r}, v13')
            a(f'v_mul_f32 v{60+h}, v{60+h}, v14')
        a('v_cos_f32 v62, v60'); a('v_cos_f32 v63, v61'); a('v_sin_f32 v64, v60'); a('v_sin_f32 v65, v61')
        a(f'v_cvt_pk_bf16_f32 v{FCOS+4*mt+d}, v62, v63')
        a(f'v_cvt_pk_bf16_f32 v{FSIN+4*mt+d}, v64, v65')
        a(f'v_xor_b32 v{FNS+4*mt+d}, 0x80008000, v{FSIN+4*mt+d}')
def d_reads(p, ks):
    L = [f'ds_read_b128 v[{dX(p,mi)}:{dX(p,mi)+3}], v{DX+ks} offset:{mi*2048}' for mi in range(2)]
    for part in range(2):
        for et in range(5):
            L.append(f'ds_read_b128 v[{dC(p,part,et)}:{dC(p,part,et)+3}], v{DC+ks} offset:{part*16384 + et*2048}')
    return L
def d_mfmas(p):
    L = []
    i = 0
    for part in range(2):
        for et in range(5):
            for mi in ((0, 1) if i % 2 == 0 else (1, 0)):
                t = TD(part, mi, et)
                L.append(f'v_mfma_f32_16x16x32_bf16 v[{t}:{t+3}], v[{dX(p,mi)}:{dX(p,mi)+3}], v[{dC(p,part,et)}:{dC(p,part,et)+3}], v[{t}:{t+3}]')
            i += 1
    return L
wd_finish()
a('v_mov_b32 v5, 1'); a(f'v_mov_b32 v6, {L_CNT}')
for i in range(32, 36): a(f'v_mov_b32 v{i}, 0')
tick(7, 0)
a('s_barrier')
tick(7, 16)
stamp(1)
if DF:
    for ks in range(2):
        for mi in range(2): a(f'ds_read_b128 v[{40+8*ks+4*mi}:{43+8*ks+4*mi}], v{DX+ks} offset:{mi*2048}')
else:
    for r in d_reads(0, 0): a(r)
if not DF:
    def xstat(p):
        L = []
        for mi in range(2):
            for d in range(4):
                r = dX(p, mi) + d; t = 36 + 2*(d & 1)
                L += [f'v_lshlrev_b32 v{t}, 16, v{r}', f'v_and_b32 v{t+1}, 0xffff0000, v{r}',
                      f'v_add_f32 v{32+2*mi}, v{32+2*mi}, v{t}', f'v_fmac_f32 v{33+2*mi}, v{t}, v{t}',
                      f'v_add_f32 v{32+2*mi}, v{32+2*mi}, v{t+1}', f'v_fmac_f32 v{33+2*mi}, v{t+1}, v{t+1}']
        return L
    def interleave2(M, R, per):
        out = []; R = list(R)
        for m in M:
            out.append(m)
            for _ in range(per):
                if R: out.append(R.pop(0))
        return out + R
    def dloop(name, stats):
        a(f'{name}:')
        a('s_waitcnt lgkmcnt(0)')
        for ins in interleave2(d_mfmas(0), d_reads(1, 1) + (xstat(0) if stats else [CNTRD]), 3 if stats else 1): a(ins)
        a('s_waitcnt vmcnt(0) lgkmcnt(0)' if stats else 's_waitcnt lgkmcnt(0)')
        tick(7, ('s47', 1))
        if stats: a('s_barrier')
        else: mid_sync('L_dlast')
        tick(7, ('s47', 17))
        slot_advance()
        for r in (DX, DC): a(f'v_add_u32 v{r}, s42, v{r}')
        R = d_reads(0, 0) + [f'v_add_u32 v{r}, s42, v{r}' for r in (DX+1, DC+1)]
        for ins in interleave2(d_mfmas(1), R + (xstat(1) if stats else []), 3 if stats else 1): a(ins)
        a('s_add_u32 s47, s47, 1')
        if stats: a('s_cmp_lt_u32 s47, s45'); a(f's_cbranch_scc1 {name}')
        else: a(f's_branch {name}')
    dloop('L_dloopA', True)
else:
    def interleave2(M, R, per):
        out = []; R = list(R)
        for m in M:
            out.append(m)
            for _ in range(per):
                if R: out.append(R.pop(0))
        return out + R
    XA = [40, 48]; XB = [56, 104]
    CF = [[64 + 4*i for i in range(10)], [112 + 4*i for i in range(6)] + [160 + 4*i for i in range(4)]]
    def xa_reads(): return [f'ds_read_b128 v[{XA[ks]+4*mi}:{XA[ks]+4*mi+3}], v{DX+ks} offset:{mi*2048}' for ks in range(2) for mi in range(2)]
    def xb_reads(ks): return [f'ds_read_b128 v[{XB[ks]+4*mi}:{XB[ks]+4*mi+3}], v{DX+ks} offset:{mi*2048}' for mi in range(2)]
    def c_reads(ks): return [f'ds_read_b128 v[{CF[ks][5*part+et]}:{CF[ks][5*part+et]+3}], v{DC+ks} offset:{part*16384 + et*2048}' for part in range(2) for et in range(5)]
    def fold(ks, stats):
        L = []
        for mi in range(2):
            for d in range(4):
                ra = XA[ks] + 4*mi + d; rb = XB[ks] + 4*mi + d; sm, sq = 32 + 2*mi, 33 + 2*mi
                L += [f'v_lshlrev_b32 v36, 16, v{ra}', f'v_and_b32 v37, 0xffff0000, v{ra}', f'v_lshlrev_b32 v38, 16, v{rb}', f'v_and_b32 v39, 0xffff0000, v{rb}']
                if stats:
                    for t in (36, 37, 38, 39): L += [f'v_add_f32 v{sm}, v{sm}, v{t}', f'v_fmac_f32 v{sq}, v{t}, v{t}']
                L += [f'v_add_f32 v36, v{28+mi}, v36', f'v_add_f32 v37, v{28+mi}, v37']
                L += ['v_fmac_f32 v36, s53, v38', 'v_fmac_f32 v37, s53, v39', f'v_cvt_pk_bf16_f32 v{rb}, v36, v37']
        return L
    def f2_mfmas(ks):
        L = []
        for i in range(10):
            part, et = divmod(i, 5)
            for mi in ((0, 1) if i % 2 == 0 else (1, 0)):
                t = TD(part, mi, et); x = XB[ks] + 4*mi; c = CF[ks][i]
                L.append(f'v_mfma_f32_16x16x32_bf16 v[{t}:{t+3}], v[{x}:{x+3}], v[{c}:{c+3}], v[{t}:{t+3}]')
        return L
    DUPD = ['s_add_u32 s46, s46, 1', 's_cmp_eq_u32 s46, 3', 's_cselect_b32 s42, s50, s51', 's_cselect_b32 s46, 0, s46'] + [f'v_add_u32 v{r}, s42, v{r}' for r in (DX, DX+1, DC, DC+1)]
    def dloop2(name, stats):
        a(f'{name}:')
        for ins in DUPD: a(ins)
        a('s_waitcnt vmcnt(0) lgkmcnt(0)' if stats else 's_waitcnt lgkmcnt(0)')
        tick(7, ('s47', 1))
        if stats: a('s_barrier')
        else: mid_sync('L_dlast')
        tick(7, ('s47', 17))
        a('s_add_u32 s47, s47, 1')
        for ins in xb_reads(0) + xb_reads(1) + c_reads(0): a(ins)
        a('s_waitcnt lgkmcnt(12)')
        for ins in fold(0, stats): a(ins)
        a('s_waitcnt lgkmcnt(0)')
        a('s_nop 0')
        for ins in interleave2(f2_mfmas(0), c_reads(1) + ([] if stats else [CNTRD]) + fold(1, stats) + DUPD, 3): a(ins)
        a('s_waitcnt lgkmcnt(0)')
        tick(7, ('s47', 1))
        if stats: a('s_barrier')
        else: mid_sync('L_dlast')
        tick(7, ('s47', 17))
        a('s_add_u32 s47, s47, 1')
        for ins in interleave2(f2_mfmas(1), xa_reads() + ([] if stats else [CNTRD]), 1): a(ins)
        if stats: a('s_cmp_lt_u32 s47, s45'); a(f's_cbranch_scc1 {name}')
        else: a(f's_branch {name}')
    a('s_waitcnt lgkmcnt(0)')
    for mi in range(2):
        for d in range(4):
            r = XA[0] + 4*mi + d
            a(f'v_lshlrev_b32 v36, 16, v{r}'); a(f'v_and_b32 v37, 0xffff0000, v{r}')
            if d == 0: a(f'v_add_f32 v{28+mi}, v36, v37')
            else: a(f'v_add_f32 v{28+mi}, v{28+mi}, v36'); a(f'v_add_f32 v{28+mi}, v{28+mi}, v37')
    for sw in ('v_permlane16_swap_b32', 'v_permlane32_swap_b32'):
        for mi in range(2): a(f'v_mov_b32 v{36+mi}, v{28+mi}')
        a('s_nop 1')
        for mi in range(2): a(f'{sw} v{28+mi}, v{36+mi}')
        a('s_nop 1')
        for mi in range(2): a(f'v_add_f32 v{28+mi}, v{28+mi}, v{36+mi}')
    a('s_bitcmp1_b32 s30, 0'); a(f's_cselect_b32 s66, 0x3d000000, 0')
    a('s_lshl_b32 s67, s3, 7'); a(f's_add_u32 s67, s67, {L_CH}'); a('v_lshlrev_b32 v38, 2, v3'); a('v_add_u32 v38, s67, v38')
    for mi in range(2):
        a(f'v_mul_f32 v{36+mi}, s66, v{28+mi}'); a(f'v_mul_f32 v{28+mi}, -2.0, v{36+mi}')
        a(f'ds_write_b32 v38, v{36+mi} offset:{64*mi}')
    dloop2('L_dloopA', True)
a(f'v_mov_b32 v36, {L_NON}'); a('ds_read_b32 v14, v36')
for sw in ('v_permlane16_swap_b32', 'v_permlane32_swap_b32'):
    for r in range(32, 36): a(f'v_mov_b32 v{r+4}, v{r}')
    a('s_nop 1')
    for r in range(32, 36): a(f'{sw} v{r}, v{r+4}')
    a('s_nop 1')
    for r in range(32, 36): a(f'v_add_f32 v{r}, v{r}, v{r+4}')
a('s_lshl_b32 s66, s28, 2'); a('s_add_u32 s66, s66, s30'); a('s_lshl_b32 s66, s66, 11'); a('s_lshl_b32 s67, s3, 9'); a('s_add_u32 s66, s66, s67'); a(f's_add_u32 s66, s66, {WS_XP}')
a('v_cmp_gt_u32 vcc, 16, v0'); a('v_lshlrev_b32 v38, 4, v0')
a('s_waitcnt lgkmcnt(0)')
a('v_cndmask_b32 v12, v34, v32, vcc'); a('v_cndmask_b32 v13, v35, v33, vcc'); a('v_mov_b32 v15, v14')
a('v_readfirstlane_b32 s43, v14')
a('s_mov_b32 exec_hi, 0')
a('buffer_store_dwordx4 v[12:15], v38, s[12:15], s66 offen sc1')
a('s_mov_b64 exec, -1')
a('s_nop 0')
dloop2('L_dloopB', False) if DF else dloop('L_dloopB', False)
a('L_dlast:')
pre_epilogue()
stats_wait('L_dst')
tick(7, 40)
DP = []
DP.append('s_lshl_b32 s66, s3, 7'); DP.append(f's_add_u32 s66, s66, {L_R}')
DP.append('v_lshlrev_b32 v4, 4, v2'); DP.append('v_add_u32 v4, s66, v4')
for mi in range(2):
    DP.append(f'ds_read_b128 v[{40+4*mi}:{43+4*mi}], v4 offset:{64*mi}')
    DP.append(f'ds_read_b128 v[{48+4*mi}:{51+4*mi}], v4 offset:{512 + 64*mi}')
    DP.append(f'ds_read_b128 v[{76+4*mi}:{79+4*mi}], v4 offset:{L_A0 - L_R + 64*mi}')
    if DF: DP.append(f'ds_read_b128 v[{84+4*mi}:{87+4*mi}], v4 offset:{L_CH - L_R + 64*mi}')
DP.append('v_lshlrev_b32 v5, 2, v3'); DP.append(f'v_add_u32 v5, {L_CS}, v5')
for part in range(2):
    for et in range(5): DP.append(f'ds_read_b32 v{56+2*(5*part+et)}, v5 offset:{part*512 + et*64}')
DP.append('v_bfe_u32 v9, v3, 1, 2'); DP.append('v_xor_b32 v8, s3, v9'); DP.append('v_lshlrev_b32 v8, 4, v8'); DP.append('v_lshl_add_u32 v8, v3, 6, v8'); DP.append('v_lshl_add_u32 v8, v2, 2, v8')
DP.append('ds_read_b32 v14, v6 offset:20')
for ins in interleave2(f2_mfmas(1) if DF else d_mfmas(1), DP, 2): a(ins)
stamp(2)
a('s_waitcnt lgkmcnt(0)')
a('v_readfirstlane_b32 s78, v14')
a('s_cmp_ge_u32 s78, 4'); a('s_cbranch_scc1 L_dc9_ok')
lds_wait('L_dc9', 20, 14)
tick(7, 41)
if DF:
    for i in range(8): a(f'v_sub_f32 v{48+i}, v{48+i}, v{84+i}')
a('s_cmp_lg_u32 s30, 0'); a('s_cbranch_scc1 L_z0')
for mi in range(2):
    t = 76 + 4*mi; y = 84 + 4*mi
    a(f'v_pk_add_f32 v[{y}:{y+1}], v[{t}:{t+1}], v[{t+2}:{t+3}]')
    a(f'v_pk_add_f32 v[{y+2}:{y+3}], v[{t}:{t+1}], v[{t+2}:{t+3}] neg_lo:[0,1] neg_hi:[0,1]')
    a(f'v_add_f32 v{92+mi}, v{y}, v{y+1}'); a(f'v_sub_f32 v{94+mi}, v{y}, v{y+1}')
a('v_cvt_pk_bf16_f32 v96, v92, v93'); a('v_mov_b32 v97, 0')
a('v_cvt_pk_bf16_f32 v98, v86, v90'); a('v_cvt_pk_bf16_f32 v101, v87, v91'); a('v_xor_b32 v99, 0x80008000, v101')
a('v_cvt_pk_bf16_f32 v100, v94, v95')
for cpart, r in enumerate((96, 97, 98, 99, 100, 97, 98, 101)):
    a(f'ds_write_b32 v8, v{r} offset:{L_Z + (cpart*ZB + 80)*ZROW}')
a('L_z0:')
for et in range(5):
    for mi in range(2):
        for part in range(2):
            t = TD(part, mi, et); c = 56 + 2*(5*part + et)
            for d in (0, 2):
                a(f'v_pk_fma_f32 v[{t+d}:{t+d+1}], v[{48+4*mi+d}:{49+4*mi+d}], v[{c}:{c+1}], v[{t+d}:{t+d+1}] op_sel_hi:[1,0,1] neg_lo:[1,0,0] neg_hi:[1,0,0]')
            for d in (0, 2):
                a(f'v_pk_mul_f32 v[{t+d}:{t+d+1}], v[{t+d}:{t+d+1}], v[{40+4*mi+d}:{41+4*mi+d}]')
        y = 80 + 16*mi
        for part in range(2):
            t = TD(part, mi, et)
            a(f'v_pk_add_f32 v[{y+4*part}:{y+4*part+1}], v[{t}:{t+1}], v[{t+2}:{t+3}]')
            a(f'v_pk_add_f32 v[{y+4*part+2}:{y+4*part+3}], v[{t}:{t+1}], v[{t+2}:{t+3}] neg_lo:[0,1] neg_hi:[0,1]')
        pa, qa, ra, sa, pb, qb, rb, sb = range(y, y+8); o = y + 8
        a(f'v_add_f32 v{o}, v{pa}, v{qa}'); a(f'v_add_f32 v{o+1}, v{pb}, v{qb}')
        a(f'v_add_f32 v{o+2}, v{ra}, v{sb}'); a(f'v_sub_f32 v{o+3}, v{rb}, v{sa}')
        a(f'v_sub_f32 v{o+4}, v{pa}, v{qa}'); a(f'v_sub_f32 v{o+5}, v{pb}, v{qb}')
        a(f'v_sub_f32 v{o+6}, v{ra}, v{sb}'); a(f'v_add_f32 v{o+7}, v{rb}, v{sa}')
    for cpart in range(8):
        a(f'v_cvt_pk_bf16_f32 v{112+cpart}, v{88+cpart}, v{104+cpart}')
    for cpart in range(8):
        a(f'ds_write_b32 v8, v{112+cpart} offset:{L_Z + (cpart*ZB + 16*et)*ZROW}')
tick(7, 42)
VADDR = []
VADDR += ['v_lshrrev_b32 v12, 1, v2', f'v_mul_u32_u24 v12, {8*VROW}, v12', 'v_and_b32 v13, 1, v2', f'v_mul_u32_u24 v11, {VROW}, v13', 'v_add_u32 v12, v12, v11', 'v_lshl_add_u32 v12, v3, 4, v12']
VADDR += ['s_mul_i32 s66, s28, 17', 's_add_u32 s67, s66, s3', f's_mul_i32 s67, s67, {2*VROW}', *(['s_and_b32 s68, s30, 1', 's_lshl_b32 s68, s68, 1', 's_lshr_b32 s69, s30, 1', 's_add_u32 s68, s68, s69', 's_mul_i32 s68, s68, 1280'] if DF else ['s_mul_i32 s68, s30, 1280']), f's_add_u32 s68, s68, {WS_V + 128}', 's_add_u32 s67, s67, s68', 's_sub_u32 s69, s67, 16']
VADDR += ['s_add_u32 s66, s66, 16', f's_mul_i32 s66, s66, {2*VROW}', 's_add_u32 s66, s66, s68', f's_add_u32 s70, s67, {16*VROW}']
a('v_mov_b32 v10, 1')
a('s_waitcnt lgkmcnt(0)')
a('s_mov_b64 exec, 1'); a('ds_add_u32 v6, v10 offset:4'); a('s_mov_b64 exec, -1')
a('v_bfe_u32 v8, v3, 1, 2'); a('v_xor_b32 v8, v8, v2'); a('v_lshlrev_b32 v8, 4, v8'); a('v_lshl_add_u32 v8, v3, 6, v8'); a(f's_mul_i32 s66, s3, {2*ZB*ZROW}'); a('v_add_u32 v8, s66, v8')
for ins in VADDR: a(ins)
lds_wait('L_zw', 4, 14)
tick(7, 43)
for part in range(2):
    for et in range(5):
        r = 40 + 20*part + 4*et
        a(f'ds_read_b128 v[{r}:{r+3}], v8 offset:{L_Z + (part*ZB + 16*et)*ZROW}')
for part in range(2): a(f'ds_read_b128 v[{120+4*part}:{123+4*part}], v8 offset:{L_Z + (part*ZB + 80)*ZROW}')
a('s_waitcnt lgkmcnt(0)')
a('s_mov_b64 exec, 1'); a('ds_add_u32 v6, v10 offset:8'); a('s_mov_b64 exec, -1')
a('v_mov_b32 v8, v12'); a('v_mov_b32 v10, v11')
tick(7, 44)
def VR(mt, et): return DACC + 20*mt + 4*et
def VI(mt, et): return DACC + 40 + 20*mt + 4*et
def vpack(et):
    L = []
    for mt in range(2):
        o = 80 + 20*mt + 4*et
        for i in range(4): L.append(f'v_cvt_pk_bf16_f32 v{o+i}, v{VR(mt,et)+i}, v{VI(mt,et)+i}')
        L.append(f'buffer_store_dwordx4 v[{o}:{o+3}], v8, s[12:15], s{67 + 3*mt} offen offset:{256*et} {STP}')
    return L
def vm(vr, vi, ya, yb):
    L = []
    for mt in range(2):
        L.append(f'v_mfma_f32_16x16x32_bf16 v[{vr(mt)}:{vr(mt)+3}], v[{FCOS+4*mt}:{FCOS+4*mt+3}], v[{ya}:{ya+3}], 0')
        L.append(f'v_mfma_f32_16x16x32_bf16 v[{vi(mt)}:{vi(mt)+3}], v[{FNS+4*mt}:{FNS+4*mt+3}], v[{ya}:{ya+3}], 0')
    for mt in range(2):
        L.append(f'v_mfma_f32_16x16x32_bf16 v[{vr(mt)}:{vr(mt)+3}], v[{FSIN+4*mt}:{FSIN+4*mt+3}], v[{yb}:{yb+3}], v[{vr(mt)}:{vr(mt)+3}]')
        L.append(f'v_mfma_f32_16x16x32_bf16 v[{vi(mt)}:{vi(mt)+3}], v[{FCOS+4*mt}:{FCOS+4*mt+3}], v[{yb}:{yb+3}], v[{vi(mt)}:{vi(mt)+3}]')
    return L
for et in range(5):
    M = vm(lambda mt: VR(mt, et), lambda mt: VI(mt, et), 40 + 4*et, 60 + 4*et)
    for ins in interleave2(M, vpack(et - 2) if et >= 2 else [], 2): a(ins)
a('s_cmp_lg_u32 s30, 0'); a('s_cbranch_scc1 L_v0a')
for ins in vm(lambda mt: 160 + 4*mt, lambda mt: 168 + 4*mt, 120, 124): a(ins)
a('L_v0a:')
tick(7, 45)
for ins in vpack(3): a(ins)
for ins in vpack(4): a(ins)
a('s_cmp_lg_u32 s30, 0'); a('s_cbranch_scc1 L_v0b')
for mt in range(2):
    for i in range(4): a(f'v_cvt_pk_bf16_f32 v{120+4*mt+i}, v{160+4*mt+i}, v{168+4*mt+i}')
a('s_mov_b32 exec_lo, 0x00010001'); a('s_mov_b32 exec_hi, 0x00010001')
a(f'buffer_store_dwordx4 v[120:123], v8, s[12:15], s69 offen {STP}')
a(f's_add_u32 s69, s69, {16*VROW}')
a(f'buffer_store_dwordx4 v[124:127], v8, s[12:15], s69 offen {STP}')
a('s_mov_b64 exec, -1')
a('L_v0b:')
tick(7, 46)
a('s_cmp_lg_u32 s3, 0')
a('s_cbranch_scc1 L_signal')
a('v_cvt_f32_u32 v62, s28'); a('v_mul_f32 v62, 0.0625, v62'); a('v_cos_f32 v63, v62'); a('v_sin_f32 v64, v62')
a('v_cmp_gt_u32 vcc, 16, v0')
a('v_lshlrev_b32 v11, 4, v3'); a('v_add_u32 v9, v10, v11')
for et in range(5):
    o = 80 + 4*et; vr = VR(0, et); vi = VI(0, et); n = 40 + 4*et
    a(f'v_mul_f32 v65, v63, v{vr}'); a(f'v_fmac_f32 v65, v64, v{vi}')
    a(f'v_mul_f32 v66, v63, v{vi}'); a(f'v_fma_f32 v66, -v64, v{vr}, v66')
    a(f'v_cvt_pk_bf16_f32 v65, v65, v66')
    a(f'v_cndmask_b32 v65, v{o}, v65, vcc')
    a(f'v_mov_b32 v{n}, v{o+1}')
    a(f'v_mov_b32 v66, v65')
    a(f'v_mov_b32 v{n+1}, v{o+2}'); a(f'v_mov_b32 v{n+2}, v{o+3}')
    a(f'v_permlane16_swap_b32 v65, v66')
    a('s_nop 1')
    a(f'v_cndmask_b32 v{n+3}, v65, v66, vcc')
a('s_mov_b32 exec_hi, 0')
for et in range(5):
    a(f'buffer_store_dwordx4 v[{40+4*et}:{43+4*et}], v9, s[12:15], s66 offen offset:{256*et} {STP}')
a('s_mov_b64 exec, -1')

a('L_signal:')
a('s_mov_b32 s79, 0')
tick(7, 32)
stamp(3)
a('s_lshl_b32 s66, s30, 2'); a('s_add_u32 s66, s66, s3'); a('s_lshl_b32 s66, s66, 7'); a('s_lshl_b32 s67, s28, 2'); a('s_add_u32 s66, s66, s67'); a(f's_add_u32 s66, s66, {WS_FV}')
a('v_mov_b32 v4, s43'); a('v_mov_b32 v5, 0')
a('s_waitcnt vmcnt(0)'); a('s_mov_b64 exec, 1')
a('buffer_store_dword v4, v5, s[12:15], s66 offen sc1'); a('s_mov_b64 exec, -1')
if TONE: lds_arrive(0, 4)
tick_dump(7, 4)
a('L_helper:')
if TONE:
    lds_wait('L_hc9', 20, 40)
    a('s_cmp_eq_u32 s35, 0'); a('s_cbranch_scc1 L_hnz')
    lds_wait('L_hzc', 8, 40)
    a('L_hnz:')
else:
    if EARLY >= 0: a('s_cmp_eq_u32 s35, 0'); a('s_cbranch_scc1 L_hea')
    lds_arrive(0, 4)
    a('L_hea:')
    lds_wait('L_hc9', 20, 40)
    a('s_cmp_eq_u32 s35, 0'); a('s_cbranch_scc1 L_hnz')
    lds_wait('L_hzc', 8, 40)
    a('L_hnz:')
    a('s_mov_b32 s44, s3')
    p2_setup()
    a('s_cmp_eq_u32 s35, 1'); a('s_cbranch_scc1 L_hd')
    for st in range(12 - NLATE, 12): wdt_lds(st)
    a('s_branch L_hf')
    a('L_hd:')
    for st in range(12 - NLD, 12): wdt_lds(st)
    a('L_hf:')
    VT = opt('vtouch', 0)
    def vtouch():
        a('s_cmp_eq_u32 s35, 0'); a('s_cbranch_scc1 L_nvt')
        a('v_lshrrev_b32 v40, 2, v0'); a('v_lshlrev_b32 v40, 7, v40'); a('v_and_b32 v41, 3, v0'); a('v_lshl_add_u32 v40, v41, 4, v40')
        a(f's_mov_b32 s66, {WS_FV}')
        spin_begin('L_pollva')
        a('buffer_load_dwordx4 v[44:47], v40, s[12:15], s66 offen sc1')
        a('s_waitcnt vmcnt(0)')
        for i in range(4): a(f'v_xor_b32 v{44+i}, s43, v{44+i}')
        a('v_or_b32 v44, v44, v45'); a('v_or3_b32 v44, v46, v47, v44')
        a('v_cmp_ne_u32 vcc, 0, v44'); a('s_cmp_eq_u64 vcc, 0')
        spin_end('L_pollva')
        a('s_lshl_b32 s66, s30, 2'); a('s_sub_u32 s67, 13, s66'); a('s_cmp_eq_u32 s31, 1'); a('s_cselect_b32 s66, s67, s66')
        a('s_lshl_b32 s67, s32, 1'); a('s_lshr_b32 s68, s3, 1'); a('s_add_u32 s67, s67, s68'); a('s_mul_i32 s67, s67, 17'); a('s_add_u32 s66, s66, s67')
        a(f's_mul_i32 s66, s66, {2*VROW}'); a('s_and_b32 s67, s3, 1'); a(f's_mul_i32 s67, s67, {164*128}'); a('s_add_u32 s66, s66, s67'); a(f's_add_u32 s66, s66, {WS_V}')
        a('v_lshlrev_b32 v40, 7, v0')
        for i in range(3):
            if i == 2: a('s_mov_b32 exec_hi, 0xf')
            a(f'buffer_load_dword v41, v40, s[12:15], s66 offen sc1')
            if i < 2: a('s_add_u32 s66, s66, 8192')
        a('s_mov_b64 exec, -1')
        a('s_mov_b32 s79, 0')
        a('s_waitcnt vmcnt(0)')
        a('L_nvt:')
    if VT == 2: vtouch()
    a('s_waitcnt vmcnt(0)')
    lds_arrive(36, 4)
    if VT == 1: vtouch()
stamp(4)

a('s_cmp_eq_u32 s79, 1'); a('s_cbranch_scc1 L_vdone')
if VGO: a('s_cmp_lg_u32 s3, 3'); a('s_cbranch_scc1 L_vwait')
spin_begin('L_pollv')
a(f'buffer_load_dword v53, v{VFL}, s[12:15], s60 offen sc1')
a('s_waitcnt vmcnt(0)')
a('v_cmp_ne_u32 vcc, s43, v53')
a('s_cmp_eq_u64 vcc, 0')
spin_end('L_pollv')
if VGO:
    lds_arrive(28, 40)
    a('L_vwait:')
    lds_wait('L_vc', 28, 40, 1)
    lds_wait('L_vgo', 40, 40, 1)
v_loads()
a('L_vdone:')
stamp(5)
a('v_lshrrev_b32 v4, 2, v3'); a('v_and_b32 v5, 3, v3'); a('v_lshl_add_u32 v7, v5, 2, v4')
a('s_mul_i32 s66, s55, 15'); a('v_xor_b32 v4, s66, v7')
a('v_cvt_f32_u32 v4, v4'); a('v_mul_f32 v4, 0.0625, v4')
a('v_lshlrev_b32 v5, 2, v2'); a('v_cvt_f32_u32 v5, v5')
for i in range(4):
    a(f'v_add_f32 v52, {float(i)!r}, v5'); a('v_mul_f32 v52, v52, v4')
    a('v_cos_f32 v53, v52'); a('v_sin_f32 v54, v52'); a('s_nop 0')
    a(f'v_cvt_pk_bf16_f32 v{8+i}, v53, v54')
a(f's_mov_b32 s47, {PN}'); a('s_cmp_eq_u32 s55, 1'); a(f's_cselect_b32 s47, {(-PN) & 0xffffffff}, s47')
a(f'v_mul_u32_u24 v56, {PQ}, v2'); a('v_lshl_add_u32 v56, v3, 4, v56'); a(f's_mul_i32 s66, s55, {3*PN}'); a('v_add_u32 v56, s66, v56')
for k4 in range(1, 4): a(f'v_add_u32 v{56+k4}, s47, v{55+k4}')
def spec_tile(off_s, vb):
    for k4 in range(4):
        for i in range(4): a(f'v_mov_b32 v{64+4*k4+i}, v{vb+4*i+k4}')
    a('s_nop 1')
    for k4 in range(4):
        c = 80 + 4*k4
        a(f'v_mfma_f32_16x16x32_bf16 v[{c}:{c+3}], v[{64+4*k4}:{67+4*k4}], v[8:11], 0')
    for k4 in range(4): a(f'v_add_u32 v{40+k4}, {off_s}, v{56+k4}')
    a('s_nop 5')
    for k4 in range(4):
        c = 80 + 4*k4
        a(f'ds_write_b128 v{40+k4}, v[{c}:{c+3}]')
a('s_cmp_eq_u32 s3, 1'); a(f's_mov_b32 s73, {ST[0]}'); a(f's_cselect_b32 s73, {ST[1]}, s73')
a('s_cmp_eq_u32 s3, 2'); a(f's_cselect_b32 s73, {ST[2]}, s73')
a('s_cmp_eq_u32 s3, 3'); a(f's_cselect_b32 s73, {ST[3]}, s73')
a('s_waitcnt vmcnt(0)')
a('s_cmp_lg_u32 s3, 0'); a('s_cbranch_scc1 L_spec1')
a(f's_mov_b32 s74, {ST[4]}')
spec_tile('s74', VB1)
a('L_spec1:')
spec_tile('s73', VB0)
for r in range(3):
    for d in range(4):
        a(f'v_lshlrev_b32 v{96+8*r+2*d}, 16, v{XR[r]+d}'); a(f'v_and_b32 v{97+8*r+2*d}, 0xffff0000, v{XR[r]+d}')

a('L_final:')
def final_reads(r, b):
    d4, d11 = FA[3*r], FA[3*r+2]
    for p in range(5):
        reg = (d4, d4, d4, d4, d11)[p]; off = (0, P2W, 2*P2W, 3*P2W, 0)[p]
        a(f'ds_read_b128 v[{b+8*p}:{b+3+8*p}], v{reg} offset:{off}')
        a(f'ds_read_b128 v[{b+4+8*p}:{b+7+8*p}], v{reg} offset:{off+PQ}')
def final_sum(r, b, cnt):
    x = 96 + 8*r
    for p in range(5):
        a(f's_waitcnt lgkmcnt({min(15, cnt + 8 - 2*p)})')
        for d in range(0, 8, 2): a(f'v_pk_add_f32 v[{x+d}:{x+d+1}], v[{x+d}:{x+d+1}], v[{b+8*p+d}:{b+8*p+d+1}]')
    for d in range(4): a(f'v_cvt_pk_bf16_f32 v{b+d}, v{x+2*d}, v{x+2*d+1}')
    a(f'buffer_store_dwordx4 v[{b}:{b+3}], v{FA[3*r+1]}, s[16:19], 0 offen {OUTP}')
a('s_waitcnt lgkmcnt(0)')
a('s_barrier')
stamp(6)
final_reads(0, 128)
final_reads(1, 168)
final_sum(0, 128, 10)
a('s_cmp_ge_u32 s3, 2'); a('s_cbranch_scc1 L_fin1')
final_reads(2, 208)
final_sum(1, 168, 10)
final_sum(2, 208, 0)
a('s_branch L_fin2')
a('L_fin1:')
final_sum(1, 168, 0)
a('L_fin2:')
if 'diag' in opts:
    a('s_cmp_lg_u32 s3, 0'); a('s_cbranch_scc1 L_diag')
    a('s_waitcnt vmcnt(0)')
    a('s_memrealtime s[94:95]'); a('s_waitcnt lgkmcnt(0)')
    if opts['diag'] == 'r': a('s_sub_u32 s66, s43, s80'); a('s_max_i32 s66, s66, 0'); a('s_min_u32 s66, s66, 5000'); a('s_lshl_b32 s66, s66, 4')
    elif opts['diag'] == 'b': a('s_sub_u32 s66, s82, s80'); a('s_max_i32 s66, s66, 0'); a('s_min_u32 s66, s66, 5000'); a('s_lshl_b32 s66, s66, 3')
    elif opts['diag'] == 'e': a('s_sub_u32 s66, s94, s80'); a('s_max_i32 s66, s66, 0'); a('s_min_u32 s66, s66, 5000'); a('s_lshl_b32 s66, s66, 2')
    else: a(f"s_sub_u32 s66, s{80 + 2*int(opts['diag'])}, s43"); a('s_max_i32 s66, s66, 0'); a('s_min_u32 s66, s66, 5000'); a('s_lshl_b32 s66, s66, 2')
    a('L_dsp:')
    a('s_memrealtime s[68:69]'); a('s_waitcnt lgkmcnt(0)'); a('s_sub_u32 s68, s68, s94'); a('s_cmp_lt_u32 s68, s66'); a('s_cbranch_scc1 L_dsp')
    a('s_endpgm')
    a('L_diag:')
if opt('dbgt', 0):
    a('s_cmp_lg_u32 s3, 0'); a('s_cbranch_scc1 L_dbgt')
    a('s_waitcnt vmcnt(0)')
    a('s_memrealtime s[94:95]'); a('s_waitcnt lgkmcnt(0)')
    a('s_mov_b64 exec, 1')
    for i, r in enumerate((80, 82, 84, 86, 88, 90, 92, 94)):
        a(f's_sub_u32 s66, s{r}, s43'); a('s_add_u32 s66, s66, 1000'); a('v_mov_b32 v4, s66'); a(f'v_mov_b32 v5, {4 + 4*i}')
        a('buffer_atomic_umax v4, v5, s[24:27], 0 offen sc1')
        a('s_nop 2')
    a('s_endpgm')
    a('L_dbgt:')
stamp(7)
if STAMPS:
    a('s_waitcnt vmcnt(0)')
    a('s_memrealtime s[96:97]')
    a('s_waitcnt lgkmcnt(0)')
    for i in range(8): a(f'v_mov_b32 v{16+i}, s{80+2*i}')
    a('v_mov_b32 v24, s96'); a('v_mov_b32 v25, s101')
    a('s_lshl_b32 s66, s2, 3'); a('s_add_u32 s66, s66, s3'); a('s_lshl_b32 s66, s66, 6'); a(f's_add_u32 s66, s66, {WS_TS}')
    a('v_mov_b32 v4, 0')
    a('s_mov_b64 exec, 1')
    a('buffer_store_dwordx4 v[16:19], v4, s[12:15], s66 offen')
    a('buffer_store_dwordx4 v[20:23], v4, s[12:15], s66 offen offset:16')
    a('buffer_store_dwordx2 v[24:25], v4, s[12:15], s66 offen offset:32')
a('s_endpgm')
emit_tails()
a('L_done:')
a.end(256, sgpr=102)
txt = a.text([])
txt = txt.replace('.amdgcn_target', f'; @launch grid=(256,1,1) block=(512,1,1) lds={LDS_BYTES}\n.amdgcn_target', 1)
open(sys.argv[1], 'w').write(txt)
if opt('ids', 0): print(wait_ids, spin_ids)
```

```python
import sys, math
from asmlib import *
opts = dict(o.split('=') for o in sys.argv[2:])
def opt(k, d): return type(d)(opts.get(k, d))
STAMPS = opt('stamps', 0)
F8 = opt('f8', 1)
RSP = opts.get('rsp', 'sc1').replace('+', ' ')
RSEQ = opts.get('rseq', '')
FRB = opt('frb', 7)
FRSEP = opt('frsep', 1)
NOCS = opt('nocs', 1)
FWL = opt('fwl', 0)
DF = opt('df', 1)
PFW = opts.get('pfw', '3,0').replace('-', '')
PFP = opts.get('pfp', '-').replace('-', '')
EARLY = opt('early', -1)
NTM = [sum(1 << int(c) for c in m) for m in opts['ntm'].split(',')] if 'ntm' in opts else None
RP = opts.get('rp', '-').replace('+', ' ').replace('-', '')
WP_ = opts.get('wp', 'nt').replace('+', ' ').replace('-', '')
XP_ = opts.get('xp', '-').replace('+', ' ').replace('-', '')
TONE = opt('t1', 0)
HDLY = opt('hdly', 0)
OUTP = opts.get('outp', 'sc1').replace('+', ' ').replace('-', '')
SENT = 1
RDFT = opt('rdft', 0)
RSL = opt('rsleep', 4)
AUXV = opt('auxv', 0)
VGO = opt('vgo', 1)
VCHK = opt('vchk', 4)
XR = [32, 36, 28]
FA = [16, 17, 18, 19, 20, 21, 22, 23, 24]; VA0, VA4, VFL = 25, 26, 27
NONIT = 1
WMODE = opt('wmode', 0)
STRICT = opt('strict', 1)
ZFIX = opt('zfix', 1)
FLAGA = opt('flaga', 0)
FAKEW = opt('fakew', 0)
FAKEH = opt('fakeh', 0)
P2MAP = opt('p2map', 1)
P2ROT = opt('p2rot', 5)
SPINMAX = opt('spinmax', 1 << 16)
CODEPF = opt('codepf', 1)
LDW = opts.get('ldw', 'sc1').replace('+', ' ').replace('-', '')
LDH = opts.get('ldh', 'sc1').replace('+', ' ').replace('-', '')
STP = opts.get('stp', 'sc1').replace('+', ' ').replace('-', '')
S, D, F = 2048, 640, 1536
KNAME = 'parallel_sum__spectral_fnet__swiglu_ffn__prompt_kernel'
STG = 49152
WS_H = 0
WS_WDT = 0x600000
WS_V = 0x800000
WS_XP = 0xB00000
WS_WP = 0xB20000
WS_FW = 0xB30000
WS_FH = 0xB31000
WS_FV = 0xB34000
WS_TS = 0xC00000
WS_SIZE = 0x1000000
L_AUX = 3*STG
L_R = L_AUX
L_M = L_AUX + 512
L_CS = L_AUX + 1024
L_CNT = L_AUX + 2048
L_NON = L_CNT + 32
L_A0 = L_AUX + 2560
L_CH = L_AUX + 3072
L_WD = L_AUX + 4096
L_Z = 0
ZROW = 64; ZB = 96
VROW = 5248
P2W = 10240
P2STEP = [STG, STG + 5120, 2*STG, 2*STG + 5120, 0, 5120]
PT = [STG, STG + 4416, 2*STG + 128, 2*STG + 128 + 4416, 0]
ST = [40960, STG + 40960 + 64, 2*STG + 40960 + 128, 3*STG + 4096 + 192, 3*STG + 4096 + 192 + 4416 ]
PQ, PN, PE = 272, 1088, 4416
LDS_BYTES = 163840

a = Asm()
stamp_n = [0]
def stamp(i):
    if STAMPS:
        if not ((FAKEW or FAKEH) and i >= 5): a(f's_memrealtime s[{80+2*i}:{81+2*i}]')
TICKS = opt('ticks', 0)
def tick(reg, idx):
    if TICKS:
        a('s_memrealtime s[98:99]'); a('s_waitcnt lgkmcnt(0)')
        if isinstance(idx, tuple):
            a(f's_add_u32 m0, {idx[0]}, {idx[1]}'); a('s_nop 3'); a(f'v_writelane_b32 v{reg}, s98, m0')
        else:
            a(f'v_writelane_b32 v{reg}, s98, {idx}')
def tick_dump(reg, tmp):
    if TICKS:
        a('s_lshl_b32 s98, s2, 3'); a('s_add_u32 s98, s98, s3'); a('s_lshl_b32 s98, s98, 8'); a(f's_add_u32 s98, s98, {WS_TS + 0x100000}')
        a(f'v_lshlrev_b32 v{tmp}, 2, v0')
        a(f'buffer_store_dword v{reg}, v{tmp}, s[12:15], s98 offen')
def rbf(v):
    a(f'v_cvt_pk_bf16_f32 v{v}, v{v}, v{v}')
    a(f'v_lshlrev_b32 v{v}, 16, v{v}')
def srd_from(d, b, nbytes):
    srd(a, d, b, nbytes)
spin_ids = {}
def spin_begin(name):
    a(f's_mov_b32 s79, 0')
    a(f'{name}:')
def spin_end(name):
    a(f's_cbranch_scc1 {name}_ok')
    a('s_add_u32 s79, s79, 1')
    a(f's_cmp_ge_u32 s79, {SPINMAX}')
    if STAMPS: spin_ids[name] = 100 + len(spin_ids); a(f's_cselect_b32 s101, {spin_ids[name]}, s101')
    a(f's_cbranch_scc1 {name}_ok')
    a('s_sleep 2')
    a(f's_branch {name}')
    a(f'{name}_ok:')

def lds_arrive(off, v):
    a(f'v_mov_b32 v{v}, {L_CNT}'); a(f'v_mov_b32 v{v+1}, 1')
    a('s_waitcnt lgkmcnt(0)')
    a('s_mov_b64 exec, 1')
    a(f'ds_add_u32 v{v}, v{v+1} offset:{off}')
    a('s_mov_b64 exec, -1')
wait_ids = {}
def lds_wait(name, off, v, cnt=4):
    wait_ids[name] = len(wait_ids) + 1
    a(f'v_mov_b32 v{v}, {L_CNT}')
    a('s_mov_b32 s100, 0')
    a(f'{name}:')
    a(f'ds_read_b32 v{v+1}, v{v} offset:{off}')
    a('s_waitcnt lgkmcnt(0)')
    a(f'v_readfirstlane_b32 s78, v{v+1}')
    a(f's_cmp_lt_u32 s78, {cnt}')
    a(f's_cbranch_scc0 {name}_ok')
    a('s_add_u32 s100, s100, 1')
    a(f's_cmp_lt_u32 s100, {SPINMAX*8}')
    a('s_sleep 1')
    a(f's_cbranch_scc1 {name}')
    if STAMPS: a(f's_mov_b32 s101, {wait_ids[name]}')
    a(f'{name}_ok:')
a.begin(KNAME)
a('s_cmp_ge_u32 s2, 256')
a('s_cbranch_scc1 L_done')
stamp(0)
if STAMPS: a('s_mov_b32 s101, 0')
a('s_load_dwordx2 s[64:65], s[0:1], 0')
a('s_load_dwordx4 s[60:63], s[0:1], 24')
a('s_load_dwordx8 s[48:55], s[0:1], 48')
a('s_load_dwordx4 s[56:59], s[0:1], 80')
a('v_lshrrev_b32 v1, 6, v0')
a('v_and_b32 v0, 63, v0')
a('v_readfirstlane_b32 s3, v1')
a('s_and_b32 s40, s2, 7'); a('s_lshr_b32 s41, s2, 3')
a('s_and_b32 s31, s40, 1'); a('s_lshr_b32 s30, s40, 1')
a('s_and_b32 s32, s41, 7'); a('s_lshr_b32 s33, s41, 3')
a('s_lshl_b32 s28, s31, 3'); a('s_add_u32 s28, s28, s32')
a('s_mul_i32 s29, s30, 3'); a('s_add_u32 s29, s29, s33')
a('s_add_u32 s42, s30, 12')
a('s_cmp_eq_u32 s33, 3')
a('s_cselect_b32 s29, s42, s29')
a('s_cselect_b32 s35, 1, 0')
OFFA = opt('offa', 0)
assert DF or OFFA == 0
if OFFA == 0: a('s_mul_i32 s34, s30, 5'); a('s_add_u32 s34, s34, 1'); a('s_lshr_b32 s34, s34, 1')
elif OFFA == 1: a('s_min_u32 s34, s30, 1'); a('s_add_u32 s34, s34, s30')
elif OFFA == 2: a('s_mov_b32 s34, 0')
elif OFFA == 3: a('s_min_u32 s34, s30, 1'); a('s_add_u32 s34, s34, s30'); a('s_and_b32 s42, s30, 1'); a('s_mul_i32 s42, s42, 5'); a('s_add_u32 s34, s34, s42')
a('s_mul_i32 s42, s31, 5'); a('s_add_u32 s34, s34, s42')
a('s_cmp_ge_u32 s34, 10'); a('s_cselect_b32 s42, 10, 0'); a('s_sub_u32 s34, s34, s42')
if P2MAP == 0:
    a('s_lshl_b32 s42, s30, 3'); a('s_add_u32 s42, s42, s32')
    a('s_lshl_b32 s38, s31, 2'); a('s_add_u32 s38, s38, s33')
else:
    a('s_lshl_b32 s42, s40, 2'); a('s_add_u32 s42, s42, s33')
    a('s_mov_b32 s38, s32')
if EARLY < 0:
    a('s_mul_i32 s39, s32, 3'); a('s_lshr_b32 s39, s39, 1'); a('s_mul_i32 s66, s33, 3'); a('s_add_u32 s39, s39, s66')
    a('s_cmp_ge_u32 s39, 12'); a('s_cselect_b32 s66, 12, 0'); a('s_sub_u32 s39, s39, s66')
else:
    a('s_lshl_b32 s39, s33, 1'); a('s_add_u32 s39, s39, s32'); a('s_mul_i32 s39, s39, 3'); a('s_lshr_b32 s39, s39, 2')
    a('s_cmp_ge_u32 s39, 6'); a('s_cselect_b32 s66, 6, 0'); a('s_sub_u32 s39, s39, s66')
if not P2ROT: a('s_mov_b32 s39, 0')
if P2ROT == 2: a('s_mul_i32 s39, s32, 3'); a('s_lshr_b32 s39, s39, 1')
if P2ROT == 3: a('s_mul_i32 s39, s33, 3')
if P2ROT == 4: a('s_add_u32 s39, s32, s33'); a('s_and_b32 s39, s39, 1'); a('s_mul_i32 s39, s39, 6')
if P2ROT == 5: a('s_and_b32 s39, s2, 7'); a('s_mul_i32 s39, s39, 3'); a(f's_lshr_b32 s39, s39, {1 if EARLY < 0 else 2}')
a('s_lshr_b32 s36, s42, 1'); a('s_and_b32 s37, s42, 1')
WSOFF = opt('wsoff', 0)
WSRD = 's[12:15]'; HSRD = 's[12:15]'
def common_srds(loader=False):
    a('s_waitcnt lgkmcnt(0)')
    tick(7, 50)
    srd(a, 12, 58, WS_SIZE, WSOFF << 20)
    if not loader:
        srd_from(4, 64, S*D*2)
        srd_from(16, 54, S*D*2)
        srd_from(20, 52, F*D*2)
        srd_from(24, 56, 256)
a('s_cmp_lt_u32 s3, 4')
a('s_cbranch_scc1 L_compute')
a('s_sub_u32 s44, s3, 4')
a('s_cmp_eq_u32 s44, 3')
a('s_cbranch_scc1 L_aux')

W0 = 5
PT_ = [20, 21, 22, 23, 24, 25, 26, 27, 4, 5, 6, 7, 16, 17, 18, 19]
GT_ = [66, 67, 68, 69, 76, 77, 78, 79, 96, 97, 100, 101, 40, 41, 42, 43]
GT_ = [66, 67, 68, 69, 76, 77, 78, 79, 28, 29, 30, 31, 40, 41, 33, 43]
def emit_p0(dst, t):
    a(f's_min_u32 s{t}, s30, 1'); a(f's_add_u32 s{dst}, s30, s{t}'); a(f's_mul_i32 s{t}, s31, 3'); a(f's_add_u32 s{dst}, s{dst}, s{t}')
    a(f's_cmp_ge_u32 s{dst}, 5'); a(f's_cselect_b32 s{t}, 5, 0'); a(f's_sub_u32 s{dst}, s{dst}, s{t}')
H0 = opt('h0', 8)
def dma_loop(name, npieces):
    h = npieces * H0 // 16
    def pieces1(lo, hi, pol):
        for t in range(lo, hi):
            a(f's_add_u32 m0, s{PT_[t]}, s46'); a('s_nop 0')
            a(f'buffer_load_dwordx4 v{4 + (t & 1)}, s[8:11], s{GT_[t]} offen {pol} lds')
    def pieces(lo, hi):
        if not NTM: return pieces1(lo, hi, RP)
        L = a.label('L_pc')
        a('s_bitcmp1_b32 s50, s47'); a(f's_cbranch_scc1 {L}_n')
        pieces1(lo, hi, ''); a(f's_branch {L}_e')
        a(f'{L}_n:'); pieces1(lo, hi, 'nt'); a(f'{L}_e:')
    a('s_mov_b32 s46, 0'); a('s_mov_b32 s47, 0')
    a('v_add_u32 v4, s42, v4'); a('v_add_u32 v5, s42, v5')
    tick(7, 51)
    if opt('uni', 0):
        pieces(0, h)
        a(f'{name}_l:')
        pieces(h, npieces)
        a('s_cmp_eq_u32 s47, 9'); a('s_cbranch_scc1 L_p2last')
        a('s_add_u32 s45, s45, 1'); a('s_cmp_eq_u32 s45, 10'); a('s_cselect_b32 s45, 0, s45')
        a('s_cselect_b32 s42, s49, s48')
        a('v_add_u32 v4, s42, v4'); a('v_add_u32 v5, s42, v5')
        a(f's_add_u32 s46, s46, {STG}'); a(f's_cmp_eq_u32 s46, {3*STG}'); a('s_cselect_b32 s46, 0, s46')
        pieces(0, h)
        a(f's_waitcnt vmcnt({h})')
        tick(7, ('s47', 0))
        a('s_barrier')
        tick(7, ('s47', 16))
        a('s_add_u32 s47, s47, 1'); a(f's_branch {name}_l')
        return
    a(f'{name}_l:')
    pieces(0, h)
    a('s_cmp_lg_u32 s47, 1'); a(f's_cbranch_scc1 {name}_m')
    a(f's_waitcnt vmcnt({h})')
    tick(7, 0)
    a('s_barrier')
    tick(7, 16)
    a(f'{name}_m:')
    pieces(h, npieces)
    a('s_add_u32 s45, s45, 1'); a('s_cmp_eq_u32 s45, 10'); a('s_cselect_b32 s45, 0, s45')
    a('s_cselect_b32 s42, s49, s48')
    a('s_mov_b32 s70, s48'); a('s_mov_b32 s48, s51'); a('s_mov_b32 s51, s70')
    a('v_add_u32 v4, s42, v4'); a('v_add_u32 v5, s42, v5')
    a(f's_add_u32 s46, s46, {STG}'); a(f's_cmp_eq_u32 s46, {3*STG}'); a('s_cselect_b32 s46, 0, s46')
    tick(7, ('s47', 52))
    a('s_cmp_lt_u32 s47, 2'); a(f's_cbranch_scc1 {name}_nx')
    a(f's_waitcnt vmcnt({npieces})')
    tick(7, ('s47', -1))
    a('s_barrier')
    tick(7, ('s47', 15))
    a('s_cmp_eq_u32 s47, 9'); a('s_cbranch_scc1 L_p2last')
    a(f'{name}_nx:')
    a('s_add_u32 s47, s47, 1'); a(f's_branch {name}_l')

a('s_cmp_eq_u32 s44, 2')
a('s_cbranch_scc1 L_ldx')
a('s_cmp_eq_u32 s35, 1')
a('s_cbranch_scc1 L_ldc')
a('v_lshrrev_b32 v1, 4, v0')
a('v_and_b32 v2, 15, v0')
a('v_lshlrev_b32 v3, 1, v1')
a('v_xor_b32 v2, v2, v3')
a('v_lshlrev_b32 v2, 4, v2')
a(f'v_mul_u32_u24 v3, {F*2}, v1')
a('v_add_u32 v2, v2, v3')
a('s_lshl_b32 s70, s29, 8')
a('v_add_u32 v2, s70, v2')
a('s_and_b32 s70, s32, 1'); a('s_lshl_b32 s70, s70, 7')
a('v_xor_b32 v4, s70, v2')
a('v_xor_b32 v5, 128, v4')
a('s_lshl_b32 s70, s32, 11')
a('s_lshl_b32 s71, s44, 14')
for g in range(4):
    if g: a('s_add_u32 s70, s70, 2048'); a('s_and_b32 s70, s70, 0x3c00')
    a(f's_or_b32 s{PT_[4*g]}, s70, s71'); a(f's_mul_i32 s{GT_[4*g]}, s70, 12')
    a(f's_add_u32 s{PT_[4*g+2]}, s{PT_[4*g]}, 1024'); a(f's_add_u32 s{GT_[4*g+2]}, s{GT_[4*g]}, {4*F*2}')
    a('s_add_u32 s70, s70, 2048'); a('s_and_b32 s70, s70, 0x3c00')
    a(f's_or_b32 s{PT_[4*g+1]}, s70, s71'); a(f's_mul_i32 s{GT_[4*g+1]}, s70, 12')
    a(f's_add_u32 s{PT_[4*g+3]}, s{PT_[4*g+1]}, 1024'); a(f's_add_u32 s{GT_[4*g+3]}, s{GT_[4*g+1]}, {4*F*2}')
a('s_cmp_eq_u32 s44, 1')
a('s_waitcnt lgkmcnt(0)')
a('s_cselect_b32 s8, s50, s48'); a('s_cselect_b32 s9, s51, s49'); a(f's_mov_b32 s10, {D*F*2}'); a('s_mov_b32 s11, 0x00020000')
a(f's_mov_b32 s48, {64*F*2}'); a('s_mov_b32 s51, s48'); a('s_mov_b32 s45, s34'); a('s_mul_i32 s42, s34, s48'); a('s_mul_i32 s49, s48, -9')
if NTM: a(f's_mov_b32 s50, {NTM[0]}')
a('s_branch L_ld16')
a('L_ldx:')
if DF: emit_p0(71, 72)
a('v_lshrrev_b32 v1, 3, v0')
a('v_and_b32 v2, 7, v0')
a('v_lshrrev_b32 v3, 1, v1')
a('v_xor_b32 v2, v2, v3')
a('v_lshlrev_b32 v2, 4, v2')
a('v_lshrrev_b32 v3, 2, v1'); a('v_and_b32 v6, 3, v1'); a('v_lshl_add_u32 v3, v6, 2, v3')
XMAP = opt('xmap', 0)
if XMAP == 0:
    a('v_lshlrev_b32 v3, 7, v3'); a('v_add_u32 v3, s28, v3')
elif XMAP == 1:
    a('v_lshlrev_b32 v3, 7, v3'); a('s_lshl_b32 s70, s28, 3'); a('v_add_u32 v3, s70, v3')
else:
    a('v_lshlrev_b32 v3, 3, v3'); a('s_lshl_b32 s70, s28, 7'); a('v_add_u32 v3, s70, v3')
a(f'v_mul_u32_u24 v3, {D*2}, v3')
a('v_add_u32 v4, v2, v3')
a('v_xor_b32 v5, 64, v4'); a(f'v_add_u32 v5, {(256 if XMAP < 2 else 16)*D*2}, v5')
a('s_lshl_b32 s70, s33, 12')
for t in range(0, 16, 2):
    if t: a('s_add_u32 s70, s70, 2048'); a('s_and_b32 s70, s70, 0x3c00')
    a(f's_or_b32 s{PT_[t]}, s70, 0x8000'); a(f's_or_b32 s{PT_[t+1]}, s70, 0x8400')
    if XMAP == 0: a(f's_mul_i32 s{GT_[t]}, s70, {16*D*2//2048}')
    else: a(f's_mul_i32 s{GT_[t]}, s70, 5'); a(f's_lshr_b32 s{GT_[t]}, s{GT_[t]}, 3')
    a(f's_mov_b32 s{GT_[t+1]}, s{GT_[t]}')
a('s_waitcnt lgkmcnt(0)')
srd_from(8, 64, S*D*2)
a('s_movk_i32 s48, 128'); a('s_movk_i32 s51, 128'); a('s_mov_b32 s45, s34'); a('s_lshl_b32 s42, s34, 7'); a('s_movk_i32 s49, -1152')
if DF:
    a('s_cmp_eq_u32 s35, 0'); a('s_cbranch_scc1 L_ld16')
    a('s_movk_i32 s48, 640'); a('s_movk_i32 s51, -512'); a('s_lshl_b32 s45, s71, 1'); a('s_lshl_b32 s42, s71, 7')
if NTM: a(f's_mov_b32 s50, {NTM[1]}')
a('L_ld16:')
dma_loop('L_ldw', 16)
a('L_ldc:')
a('v_lshrrev_b32 v1, 3, v0')
a('v_and_b32 v2, 7, v0')
a('v_lshrrev_b32 v3, 1, v1')
a('v_xor_b32 v2, v2, v3')
a('v_lshlrev_b32 v2, 4, v2')
if DF:
    emit_p0(45, 72)
    a('s_lshr_b32 s70, s30, 1'); a('s_mul_i32 s70, s70, 160'); a('s_and_b32 s71, s30, 1'); a('s_add_u32 s70, s70, s71'); a('s_add_u32 s70, s70, 1')
    a('v_lshlrev_b32 v1, 1, v1')
else:
    a('s_mul_i32 s70, s30, 80'); a('s_add_u32 s70, s70, 1')
a('v_add_u32 v1, s70, v1')
a(f'v_mul_u32_u24 v3, {D*2}, v1')
a('v_add_u32 v2, v2, v3')
a('s_and_b32 s70, s32, 1'); a('s_lshl_b32 s70, s70, 6')
a('v_xor_b32 v4, s70, v2')
a('v_xor_b32 v5, 64, v4')
a('s_lshl_b32 s70, s32, 10')
a('s_lshl_b32 s71, s44, 14')
for t in range(10):
    if t: a('s_add_u32 s70, s70, 1024'); a('s_cmp_eq_u32 s70, 10240'); a('s_cselect_b32 s70, 0, s70')
    a(f's_or_b32 s{PT_[t]}, s70, s71'); a(f's_mul_i32 s{GT_[t]}, s70, {(16 if DF else 8)*D*2//1024}')
a('s_cmp_eq_u32 s44, 1')
a('s_waitcnt lgkmcnt(0)')
a('s_cselect_b32 s8, s62, s60'); a('s_cselect_b32 s9, s63, s61'); a(f's_mov_b32 s10, {D*D*2}'); a('s_mov_b32 s11, 0x00020000')
if not DF:
    a('s_movk_i32 s48, 128'); a('s_movk_i32 s51, 128'); a('s_mov_b32 s45, s34'); a('s_lshl_b32 s42, s34, 7'); a('s_movk_i32 s49, -1152')
    if NTM: a(f's_mov_b32 s50, {NTM[0]}')
    dma_loop('L_ldcl', 10)
else:
    a('s_lshl_b32 s42, s45, 7'); a('v_add_u32 v4, s42, v4'); a('v_add_u32 v5, s42, v5')
    a(f's_mov_b32 s46, {STG}'); a('s_mov_b32 s47, 1')
    a('L_ldcl:')
    for t in range(10):
        a(f's_add_u32 m0, s{PT_[t]}, s46'); a('s_nop 0')
        a(f'buffer_load_dwordx4 v{4 + (t & 1)}, s[8:11], s{GT_[t]} offen lds')
    a('s_add_u32 s45, s45, 1'); a('s_cmp_eq_u32 s45, 5'); a('s_cselect_b32 s45, 0, s45')
    a('s_movk_i32 s42, 128'); a('s_cselect_b32 s42, -512, s42')
    a('v_add_u32 v4, s42, v4'); a('v_add_u32 v5, s42, v5')
    a(f's_sub_u32 s46, s46, {STG}'); a(f's_cselect_b32 s46, {2*STG}, s46')
    a('s_barrier')
    a('s_cmp_eq_u32 s47, 9'); a('s_cbranch_scc1 L_p2last')
    a('s_waitcnt vmcnt(0)')
    a('s_barrier')
    a('s_add_u32 s47, s47, 2'); a('s_branch L_ldcl')

P2ACC = 176; P2W_R = 56; P2H = 8
def p2_setup():
    a('v_lshlrev_b32 v1, 4, v0')
    srd(a, 12, 58, WS_SIZE, WSOFF << 20)
    a('s_mul_i32 s70, s38, 48'); a('s_mul_i32 s71, s44, 12'); a('s_add_u32 s70, s70, s71')
    a(f's_mul_i32 s70, s70, 5120'); a(f's_add_u32 s70, s70, {WS_WDT}')
    a(f's_mul_i32 s73, s44, {P2W}')
def kidx(step):
    if EARLY < 0:
        a(f's_add_u32 s72, s39, {step}'); a('s_cmp_ge_u32 s72, 12'); a('s_cselect_b32 s71, 12, 0'); a('s_sub_u32 s72, s72, s71')
    else:
        a(f's_add_u32 s72, s39, {step % 6}'); a('s_cmp_ge_u32 s72, 6'); a('s_cselect_b32 s71, 6, 0'); a('s_sub_u32 s72, s72, s71')
        a('s_lshl_b32 s72, s72, 1')
        if step >= 6: a('s_add_u32 s72, s72, 1')
def wdt_reg(step):
    kidx(step)
    a('s_mul_i32 s72, s72, 5120'); a('s_add_u32 s72, s72, s70')
    for ei in range(5):
        r = P2W_R + 20*step + 4*ei
        if ei == 4: a('s_add_u32 s72, s72, 4096')
        a(f'buffer_load_dwordx4 v[{r}:{r+3}], v1, {WSRD}, s72 offen offset:{(ei % 4)*1024} {LDW}')
def wdt_lds(step):
    kidx(step)
    a('s_mul_i32 s72, s72, 5120'); a('s_add_u32 s72, s72, s70')
    for ei in range(5):
        a(f's_add_u32 m0, s73, {P2STEP[step-6] + ei*1024}')
        if ei: a('s_add_u32 s72, s72, 1024')
        else: a('s_nop 0')
        a(f'buffer_load_dwordx4 v1, {WSRD}, s72 offen {LDW} lds')
WD = [[0, 1], [2, 3], [4, 5], []]
def read_nonce(v):
    a(f'v_mov_b32 v{v}, {L_NON}'); a(f'ds_read_b32 v{v}, v{v}'); a('s_waitcnt lgkmcnt(0)'); a(f'v_readfirstlane_b32 s43, v{v}')
def final_addr(tau_off, d4, d5, d11, t, a=a):
    v4, v5, v6, v7, v8, v9, v10 = d4, d5, t, t+1, t+2, t+3, t+4
    a('s_lshl_b32 s66, s3, 6'); a(f's_add_u32 s66, s66, {tau_off}')
    a(f'v_add_u32 v{v4}, s66, v0')
    a(f'v_mul_u32_u24 v{v5}, 6554, v{v4}'); a(f'v_lshrrev_b32 v{v5}, 16, v{v5}')
    a(f'v_mul_u32_u24 v{v6}, 10, v{v5}'); a(f'v_sub_u32 v{v6}, v{v4}, v{v6}')
    a(f'v_lshrrev_b32 v{v7}, 4, v{v5}'); a(f'v_and_b32 v{v5}, 15, v{v5}')
    a(f'v_lshrrev_b32 v{v9}, 1, v{v6}')
    a(f'v_mov_b32 v{v10}, {PT[0]}'); a(f'v_mov_b32 v{d11}, {ST[0]}')
    for e in range(1, 5):
        a(f'v_cmp_eq_u32 vcc, {e}, v{v9}'); a(f'v_mov_b32 v{t+5}, {PT[e]}'); a(f'v_mov_b32 v{t+6}, {ST[e]}')
        a(f'v_cndmask_b32 v{v10}, v{v10}, v{t+5}, vcc'); a(f'v_cndmask_b32 v{d11}, v{d11}, v{t+6}, vcc')
    a(f'v_and_b32 v{v8}, 1, v{v6}'); a(f'v_mul_u32_u24 v{v4}, {2*PQ}, v{v8}')
    a(f'v_mul_u32_u24 v{v8}, {PN}, v{v7}'); a(f'v_add_u32 v{v4}, v{v4}, v{v8}'); a(f'v_lshl_add_u32 v{v4}, v{v5}, 4, v{v4}')
    a(f'v_add_u32 v{d11}, v{d11}, v{v4}'); a(f'v_add_u32 v{v4}, v{v10}, v{v4}')
    a(f'v_lshrrev_b32 v{v8}, 2, v{v5}'); a(f'v_and_b32 v{v5}, 3, v{v5}'); a(f'v_lshl_add_u32 v{v5}, v{v5}, 2, v{v8}')
    a(f'v_lshlrev_b32 v{v5}, 3, v{v5}'); a(f'v_add_u32 v{v5}, v{v5}, v{v7}'); a(f'v_lshlrev_b32 v{v5}, 4, v{v5}')
    a('s_lshl_b32 s66, s37, 6'); a('s_add_u32 s66, s66, s36'); a(f'v_add_u32 v{v5}, s66, v{v5}')
    a(f'v_mul_u32_u24 v{v5}, {D*2}, v{v5}'); a(f'v_lshl_add_u32 v{v5}, v{v6}, 4, v{v5}'); a('s_mul_i32 s66, s38, 160'); a(f'v_add_u32 v{v5}, s66, v{v5}')

VB0, VB1 = 128, 144
def p2h_setup():
    a('s_cmp_ge_u32 s38, 4'); a('s_cselect_b32 s55, 1, 0')
    a('s_sub_u32 s67, 16, s36'); a('s_xor_b32 s68, s37, 1')
    a('s_cmp_eq_u32 s55, 1')
    a('s_cselect_b32 s67, s67, s36'); a('s_cselect_b32 s68, s68, s37')
    a('s_and_b32 s60, s67, 3'); a('s_lshl_b32 s60, s60, 7'); a(f's_add_u32 s60, s60, {WS_FV}')
    a('s_lshl_b32 s67, s67, 1'); a('s_add_u32 s67, s67, s68'); a(f's_mul_i32 s67, s67, {VROW}'); a(f's_add_u32 s56, s67, {WS_V}')
    a('s_lshl_b32 s57, s55, 9'); a('s_sub_u32 s57, 256, s57')
def fv_addr(v, t):
    if DF:
        a(f'v_lshrrev_b32 v{v}, 4, v0'); a(f'v_lshlrev_b32 v{v}, 9, v{v}'); a(f'v_and_b32 v{t}, 15, v0'); a(f'v_lshl_add_u32 v{v}, v{t}, 2, v{v}')
        return
    a('s_sub_u32 s66, 7, s38'); a('s_sub_u32 s67, s38, 1'); a('s_max_i32 s67, s67, 0')
    a('s_cmp_ge_u32 s38, 4'); a('s_cselect_b32 s67, s66, s67'); a('s_cselect_b32 s66, s66, s38')
    a(f'v_mov_b32 v{v}, s66'); a(f'v_mov_b32 v{t}, s67'); a(f'v_bfe_u32 v{t+1}, v0, 4, 1'); a(f'v_cmp_eq_u32 vcc, 0, v{t+1}'); a(f'v_and_b32 v{t+1}, 15, v0')
    a(f'v_cndmask_b32 v{v}, v{t}, v{v}, vcc'); a(f'v_lshlrev_b32 v{v}, 9, v{v}'); a(f'v_lshl_add_u32 v{v}, v{t+1}, 2, v{v}')
def pre_loop():
    for r in range(3):
        final_addr(256*r, FA[3*r], FA[3*r+1], FA[3*r+2], 40)
    a('s_cmp_ge_u32 s3, 2'); a('s_cselect_b32 s66, -1, 0'); a(f'v_or_b32 v{FA[7]}, s66, v{FA[7]}')
    fv_addr(VFL, 40)
    if DF:
        for dst, ei in ((VA0, 's3'), (VA4, '4')):
            a('s_mul_i32 s66, s38, 80'); a(f's_lshl_b32 s67, {ei}, 4'); a('s_add_u32 s66, s66, s67'); a('v_add_u32 v40, s66, v3')
            a('v_sub_u32 v41, 640, v40'); a('s_cmp_eq_u32 s55, 1'); a('s_cselect_b64 vcc, -1, 0'); a('s_nop 1')
            a('v_cndmask_b32 v40, v40, v41, vcc')
            a('v_and_b32 v41, 1, v40'); a('v_mul_u32_u24 v41, 160, v41'); a('v_add_u32 v42, 335, v40'); a('v_lshrrev_b32 v42, 1, v42'); a('v_sub_u32 v42, v42, v41')
            a('v_cmp_eq_u32 vcc, 0, v40'); a(f'v_mul_u32_u24 v43, {4*17*2*VROW}, v2'); a('s_nop 0')
            a('v_cndmask_b32 v42, v42, 7, vcc')
            a(f'v_lshl_add_u32 v{dst}, v42, 4, v43')
        return
    a('s_mul_i32 s66, s38, 80'); a('v_add_u32 v40, s66, v3')
    a('v_add_u32 v41, 7, v40'); a('v_sub_u32 v42, 647, v40')
    a('s_cmp_eq_u32 s55, 1'); a('s_cselect_b64 vcc, -1, 0')
    a(f'v_mul_u32_u24 v43, {4*17*2*VROW}, v2')
    a('v_cndmask_b32 v40, v41, v42, vcc')
    a('v_lshl_add_u32 v43, v40, 4, v43')
    a('s_mul_i32 s66, s3, s57'); a(f'v_add_u32 v{VA0}, s66, v43')
    a('s_lshl_b32 s66, s57, 2'); a(f'v_add_u32 v{VA4}, s66, v43')
def pre_epilogue():
    for r in range(3): a(f'buffer_load_dwordx4 v[{XR[r]}:{XR[r]+3}], v{FA[3*r+1]}, s[4:7], 0 offen {XP_}')
def v_loads():
    L = a.label('L_vl')
    a('s_mov_b32 s72, s56')
    for i in range(4):
        a(f'buffer_load_dwordx4 v[{VB0+4*i}:{VB0+3+4*i}], v{VA0}, s[12:15], s72 offen {LDH}')
        if i < 3: a(f's_add_u32 s72, s72, {17*2*VROW}')
    a('s_cmp_lg_u32 s3, 0'); a(f's_cbranch_scc1 {L}')
    a('s_mov_b32 s72, s56')
    for i in range(4):
        a(f'buffer_load_dwordx4 v[{VB1+4*i}:{VB1+3+4*i}], v{VA4}, s[12:15], s72 offen {LDH}')
        if i < 3: a(f's_add_u32 s72, s72, {17*2*VROW}')
    a(f'{L}:')

a('L_p2last:')
a('s_waitcnt vmcnt(0)')
lds_arrive(12, 2)
read_nonce(2)
p2_setup()
srd_from(16, 54, S*D*2)
if FWL: lds_wait('L_fwok', 44, 2, 1)
a('L_p2join:')
tick(7, 27)
NLATE = opt('nlate', 6)
WTOUCH = opt('wtouch', 0)
if WTOUCH:
    a('s_cmp_eq_u32 s35, 0'); a('s_cbranch_scc1 L_nwt')
    a('s_lshl_b32 s66, s32, 2'); a('s_add_u32 s66, s66, s44'); a('s_mul_i32 s66, s66, 23040')
    a('s_and_b32 s67, s38, 4'); a(f's_mul_i32 s67, s67, {48*5120}'); a('s_add_u32 s66, s66, s67'); a(f's_add_u32 s66, s66, {WS_WDT}')
    a('v_lshlrev_b32 v4, 7, v0')
    if WTOUCH == 2:
        for st in range(6): wdt_reg(st)
    for i in range(3):
        a(f'buffer_load_dword v8, v4, s[12:15], s66 offen {LDW}')
        if i < 2: a('s_add_u32 s66, s66, 8192')
    if WTOUCH == 2: a('s_branch L_p2d')
    a('L_nwt:')
for st in range(6): wdt_reg(st)
NLD = opt('nld', 2)
a('s_cmp_eq_u32 s35, 0')
a('s_cbranch_scc1 L_p2ffn')
if NLD < 6:
    for st in (6, 7): wdt_lds(st)
if NLD < 4:
    lds_wait('L_c8d', 16, 4)
    for st in (8, 9): wdt_lds(st)
a('s_branch L_p2d')
a('L_p2ffn:')
if NLATE < 6:
    for st in (6, 7): wdt_lds(st)
if NLATE < 4:
    lds_wait('L_c8', 16, 4)
    for st in (8, 9): wdt_lds(st)
if NLATE < 2:
    lds_wait('L_c9', 20, 4)
    for st in (10, 11): wdt_lds(st)
if AUXV:
    a('s_cmp_lg_u32 s44, 3'); a('s_cbranch_scc1 L_p2d')
    p2h_setup(); fv_addr(8, 9)
    a('s_mov_b32 s79, 0')
    a('L_av:')
    a('buffer_load_dword v9, v8, s[12:15], s60 offen sc1')
    a('s_waitcnt vmcnt(0)')
    a('v_cmp_ne_u32 vcc, s43, v9'); a('s_cmp_eq_u64 vcc, 0'); a('s_cbranch_scc1 L_av_ok')
    a('s_add_u32 s79, s79, 1'); a(f's_cmp_ge_u32 s79, {AUXV}'); a('s_cbranch_scc1 L_p2d')
    a('s_branch L_av')
    a('L_av_ok:')
    lds_arrive(28, 8)
a('L_p2d:')
tick(7, 28)
a(f'v_add_u32 v2, s73, v1')
a(f'v_add_u32 v3, {2*STG}, v2')
a('v_min_u32 v4, 5, v0'); a('v_lshrrev_b32 v5, 1, v4'); a('v_and_b32 v4, 1, v4'); a('v_lshlrev_b32 v4, 2, v4'); a('v_lshl_add_u32 v6, v5, 4, v4')
a('s_lshl_b32 s76, s36, 8'); a('s_mul_i32 s77, s44, 48'); a('s_add_u32 s76, s76, s77'); a('s_lshl_b32 s77, s37, 3'); a('s_add_u32 s76, s76, s77'); a(f's_add_u32 s76, s76, {WS_FH}')
a('s_lshl_b32 s74, s36, 3'); a('s_lshl_b32 s75, s37, 2'); a('s_add_u32 s74, s74, s75')
a('s_mul_i32 s74, s74, 48'); a('s_mul_i32 s75, s44, 12'); a('s_add_u32 s74, s74, s75'); a('s_lshl_b32 s74, s74, 10')
for i in range(80): a(f'v_mov_b32 v{P2ACC+i}, 0')
lds_wait('L_own', 0, 4, 5 if SENT else 4)
tick(7, 29)
stamp(2)
if TONE:
    a('s_cmp_eq_u32 s35, 0'); a('s_cbranch_scc1 L_p2f')
    for st in range(6, 12 - NLATE): wdt_lds(st)
    a('L_p2f:')
    for st in range(12 - NLATE, 12): wdt_lds(st)
    if HDLY: a(f's_sleep {HDLY}')

tick(7, 32)
def hsoff(step):
    kidx(step)
    a('s_lshl_b32 s72, s72, 10'); a(f's_add_u32 s72, s72, s74')
    if SENT: a(f's_mov_b32 s{66 + step % 4}, s72')
def hld(step, ni):
    r = P2H + 16*(step % 3) + 4*ni
    L = []
    if ni: L.append(f's_add_u32 s72, s72, {48*1024}')
    L.append(f'buffer_load_dwordx4 v[{r}:{r+3}], v1, {HSRD}, s72 offen {LDH}')
    return L
def hpoll(name, kp):
    spin_begin(name)
    a(f'buffer_load_dword v4, v6, s[12:15], s76 offen sc1')
    a('s_waitcnt vmcnt(0)')
    a(f'v_cmp_ne_u32 vcc, s43, v{4+kp}')
    a('s_cmp_eq_u64 vcc, 0')
    spin_end(name)
if not SENT: hpoll('L_pollh0', 0)
else: a('s_waitcnt vmcnt(0)'); a('s_mov_b32 s79, 0')
if VGO:
    a(f'v_mov_b32 v4, {L_CNT}'); a('v_mov_b32 v5, 1'); a('ds_write_b32 v4, v5 offset:40')
stamp(3)
tick(7, 33)
for st in range(3):
    hsoff(st)
    for ni in range(4):
        for ins in hld(st, ni): a(ins)
def pwrite(ni):
    return [f'ds_write_b128 v{2 if PT[ei] < 2*STG else 3}, v[{P2ACC+16*ei+4*ni}:{P2ACC+16*ei+4*ni+3}] offset:{PT[ei] + ni*PN - (0 if PT[ei] < 2*STG else 2*STG)}' for ei in range(5)]
for st in range(12):
    rem = min(2, 11 - st)
    RDD = opt('rdd', 2)
    if st == 6 - RDD: lds_wait('L_lw', 36, 4)
    if st < 9: hsoff(st + 3)
    if st == 11:
        a('v_and_b32 v2, 15, v0'); a('v_lshrrev_b32 v4, 4, v0')
        a(f'v_mul_u32_u24 v4, {PQ}, v4'); a('v_lshl_add_u32 v2, v2, 4, v4'); a('v_add_u32 v2, s73, v2'); a(f'v_add_u32 v3, {2*STG}, v2')
    a(f's_waitcnt vmcnt({4*rem})' + (' lgkmcnt(0)' if st >= 6 else ''))
    hb = P2H + 16*(st % 3)
    if SENT:
        a(f'L_hchk{st}:')
        a(f'v_max_u32 v4, v{hb}, v{hb+4}'); a(f'v_max3_u32 v4, v{hb+8}, v{hb+12}, v4')
        a('v_cmp_eq_u32 vcc, -1, v4'); a('s_cmp_lg_u64 vcc, 0')
        a(f's_cbranch_scc1 L_hretry{st}')
        a(f'L_hok{st}:')
    tick(7, 36 + st)
    w0 = P2W_R + 20*(st % 6)
    rd = []
    if 6 <= st + RDD <= 11:
        wr = P2W_R + 20*((st + RDD) % 6)
        for ei in range(5):
            o = P2STEP[st + RDD - 6] + ei*1024
            rd.append(f'ds_read_b128 v[{wr+4*ei}:{wr+4*ei+3}], v{2 if o < 2*STG else 3} offset:{o if o < 2*STG else o - 2*STG}')
    if F8 and st == 10:
        final_addr(0, 8, 9, 10, 11, rd.append)
    for ni in range(4):
        for ei in (range(5) if ni % 2 == 0 else range(4, -1, -1)):
            t = P2ACC + 16*ei + 4*ni
            h = hb + 4*ni
            a(f'v_mfma_f32_16x16x32_bf16 v[{t}:{t+3}], v[{w0+4*ei}:{w0+4*ei+3}], v[{h}:{h+3}], v[{t}:{t+3}]')
            for _ in range(3 if st == 10 else 1):
                if rd: a(rd.pop(0))
        if st < 9:
            for ins in hld(st + 3, ni): a(ins)
        if st == 11 and ni >= 2:
            for w in pwrite(ni - 2): a(w)
for w in pwrite(2): a(w)
a('s_nop 3')
for w in pwrite(3): a(w)
stamp(4)
tick(7, 48)
a('s_waitcnt lgkmcnt(0)')
a('s_barrier')
if F8:
    for p in range(5):
        reg = (8, 8, 8, 8, 10)[p]; off = (0, P2W, 2*P2W, 3*P2W, 0)[p]
        a(f'ds_read_b128 v[{56+8*p}:{59+8*p}], v{reg} offset:{off}')
        a(f'ds_read_b128 v[{60+8*p}:{63+8*p}], v{reg} offset:{off+PQ}')
    for p in range(1, 5):
        a(f's_waitcnt lgkmcnt({8 - 2*p})')
        for d in range(0, 8, 2): a(f'v_pk_add_f32 v[{56+d}:{57+d}], v[{56+d}:{57+d}], v[{56+8*p+d}:{57+8*p+d}]')
    for d in range(4): a(f'v_cvt_pk_bf16_f32 v{64+d}, v{56+2*d}, v{57+2*d}')
    a(f'buffer_store_dwordx4 v[64:67], v9, s[16:19], 0 offen {OUTP}')
tick_dump(7, 4)
a('s_branch L_fin2')
if SENT:
    for st in range(12):
        a(f'L_hretry{st}:')
        a('s_add_u32 s79, s79, 1'); a(f's_cmp_ge_u32 s79, {SPINMAX}')
        if STAMPS: a(f's_cselect_b32 s101, {60 + st}, s101')
        a(f's_cbranch_scc1 L_hok{st}')
        if RSL: a(f's_sleep {RSL}')
        a(f's_mov_b32 s77, s{66 + st % 4}')
        for ni in range(4):
            r = P2H + 16*(st % 3) + 4*ni
            if ni: a(f's_add_u32 s77, s77, {48*1024}')
            a(f'buffer_load_dwordx4 v[{r}:{r+3}], v1, {HSRD}, s77 offen {LDH}')
        a('s_waitcnt vmcnt(0)')
        a(f's_branch L_hchk{st}')

a('L_aux:')
if opt('aprio', 0): a(f"s_setprio {opt('aprio', 0)}")
common_srds()
AB = 248
a('v_mov_b32 v1, 0'); a(f'v_mov_b32 v3, {L_CNT}')
a('s_mov_b64 exec, 1')
a('s_cmp_lg_u32 s2, 0'); a('s_cbranch_scc1 L_aux_n0')
a('s_memrealtime s[66:67]'); a('s_waitcnt lgkmcnt(0)'); a('s_or_b32 s66, s66, 1'); a('v_mov_b32 v2, s66')
a('buffer_store_dword v2, v1, s[24:27], 0 offen sc1')
a('L_aux_n0:')
[a(f'ds_write_b32 v3, v1 offset:{4*i}') for i in range(14)]
a('s_mov_b64 exec, -1')
if CODEPF:
    a('s_getpc_b64 s[66:67]')
    a('L_pcref:')
    a(f's_sub_u32 s66, s66, L_pcref-{KNAME}'); a('s_subb_u32 s67, s67, 0')
    a('s_mul_i32 s68, s41, 9')
    a('v_add_u32 v4, s68, v0'); a('v_lshlrev_b32 v4, 7, v4')
    a(f'v_min_u32 v4, L_done-{KNAME}, v4')
    a('s_mov_b64 exec, 0x1ff')
    a(f'global_load_dword v{AB+7}, v4, s[66:67]')
    a('s_mov_b64 exec, -1')
if PFW:
    pf_first, pf_n0 = map(int, PFW.split(','))
    a('v_lshrrev_b32 v14, 4, v0'); a('s_mul_i32 s66, s30, 3'); a('v_add_u32 v14, s66, v14'); a('v_lshlrev_b32 v14, 8, v14')
    a('v_bfe_u32 v15, v0, 1, 3'); a('s_lshl_b32 s66, s32, 3'); a('v_add_u32 v15, s66, v15'); a(f'v_mul_u32_u24 v15, {F*2}, v15'); a('v_add_u32 v14, v14, v15')
    a('v_and_b32 v15, 1, v0'); a('v_lshl_add_u32 v14, v15, 7, v14')
    srd(a, 8, 48, D*F*2); srd(a, 52, 50, D*F*2)
    a(f's_add_u32 s64, s34, {pf_first}'); a(f's_mov_b32 s61, {pf_first}')
    PFC = opts.get('pfc', '1111111')
    a(f's_mov_b32 s60, {sum(int(c) << (4*i) for i, c in enumerate(PFC))}')
    def pfw():
        L = a.label('L_pf')
        a('s_and_b32 s62, s60, 15'); a('s_lshr_b32 s60, s60, 4')
        a(f'{L}_n:')
        a('s_cmp_eq_u32 s62, 0'); a(f's_cbranch_scc1 {L}')
        pfw1(L)
        a('s_sub_u32 s62, s62, 1'); a(f's_branch {L}_n')
        a(f'{L}:')
    def pfw0():
        L = a.label('L_pf')
        pfw1(L)
        a(f'{L}:')
    def pfw1(L):
        a('s_cmp_eq_u32 s35, 0'); a(f's_cbranch_scc1 {L}')
        a(f"s_cmp_ge_u32 s61, {opt('pfl', 6)}"); a(f's_cbranch_scc1 {L}')
        a('s_cmp_ge_u32 s64, 10'); a('s_cselect_b32 s66, 10, 0'); a('s_sub_u32 s64, s64, s66'); a(f's_mul_i32 s66, s64, {64*F*2}')
        a('s_mov_b32 exec_hi, 0xffff')
        a(f'buffer_load_dword v15, v14, s[8:11], s66 offen {PFP}'); a(f'buffer_load_dword v15, v14, s[52:55], s66 offen {PFP}')
        a('s_mov_b64 exec, -1')
        a('s_add_u32 s64, s64, 1'); a('s_add_u32 s61, s61, 1')
    for _ in range(pf_n0): pfw0()
else:
    def pfw(): pass
for i in range(48, 56): a(f'v_mov_b32 v{i}, 0')
a('v_lshrrev_b32 v4, 2, v0'); a('v_and_b32 v5, 3, v4'); a('v_bfe_u32 v6, v4, 3, 1'); a('v_lshl_or_b32 v5, v6, 2, v5'); a('v_lshlrev_b32 v5, 1, v5')
a('s_and_b32 s66, s32, 3'); a('s_lshl_b32 s66, s66, 2')
a('v_and_b32 v6, 3, v0'); a('v_add_u32 v6, s66, v6'); a('v_xor_b32 v5, v5, v6')
a('v_lshlrev_b32 v4, 8, v4'); a(f'v_lshl_add_u32 v{AB+1}, v5, 4, v4')
a('s_lshr_b32 s66, s32, 2'); a('s_lshl_b32 s66, s66, 14'); a(f'v_add_u32 v{AB+1}, s66, v{AB+1}')
a('s_cmp_eq_u32 s35, 0'); a('s_cbranch_scc1 L_aux_w')
a('s_and_b32 s67, s32, 3'); a(f's_mul_i32 s67, s67, {20*128}'); a('s_add_u32 s66, s66, s67')
a(f'v_lshlrev_b32 v{AB+1}, 4, v0'); a(f'v_add_u32 v{AB+1}, s66, v{AB+1}')
a('L_aux_w:')
a('s_mov_b32 s46, 0')
a('s_lshl_b32 s77, s29, 1'); a('s_add_u32 s77, s77, s31'); a('s_lshl_b32 s77, s77, 11'); a('s_lshr_b32 s67, s32, 2'); a('s_lshl_b32 s67, s67, 10'); a('s_add_u32 s77, s77, s67'); a(f's_add_u32 s77, s77, {WS_WP}')
a('s_and_b32 s67, s32, 3'); a('s_cmp_eq_u32 s35, 1'); a('s_cselect_b32 s68, 20, 32'); a('s_mul_i32 s67, s67, s68'); a('s_lshl_b32 s67, s67, 3'); a('s_add_u32 s77, s77, s67')
a(f'v_min_u32 v{AB+6}, 47, v0'); a(f'v_lshlrev_b32 v{AB+6}, 2, v{AB+6}')
a('s_mul_i32 s74, s38, 80'); a('s_add_u32 s75, s74, 79'); a('s_lshr_b32 s74, s74, 7'); a('s_lshr_b32 s75, s75, 7')
a('s_lshl_b32 s74, s74, 8'); a('s_lshl_b32 s75, s75, 8'); a(f's_add_u32 s74, s74, {WS_FW}'); a(f's_add_u32 s75, s75, {WS_FW}')
if SENT:
    for i in range(4): a(f'v_mov_b32 v{8+i}, -1')
    a('v_lshlrev_b32 v12, 4, v0')
    a(f's_mul_i32 s76, s28, {8*48*1024}')
    if RDFT: a('s_mul_i32 s67, s30, 12288')
    else: a('s_lshl_b32 s67, s29, 12')
    a('s_add_u32 s76, s76, s67')
a('s_mov_b32 s47, 0'); a('s_mov_b32 s42, 0')
a('s_waitcnt lgkmcnt(0)')
a('L_aux_l:')
tick(7, ('s47', 0))
a('s_barrier')
tick(7, ('s47', 16))
pfw()
a(f'v_add_u32 v{AB+3}, s46, v{AB+1}')
a(f's_cmp_lg_u32 s47, {NONIT-1}'); a('s_cbranch_scc1 L_aux_nb')
a('s_mov_b64 exec, 1'); a('buffer_load_dword v2, v1, s[24:27], 0 offen sc1'); a('s_mov_b64 exec, -1')
a('L_aux_nb:')
a(f's_cmp_lg_u32 s47, {NONIT}'); a('s_cbranch_scc1 L_aux_na')
a('s_mov_b32 s79, 0')
a('L_non:')
a('s_waitcnt vmcnt(0)')
a('v_readfirstlane_b32 s43, v2')
a('s_cmp_lg_u32 s43, 0'); a('s_cbranch_scc1 L_non_ok')
a('s_add_u32 s79, s79, 1'); a(f's_cmp_ge_u32 s79, {SPINMAX}'); (a('s_cselect_b32 s101, 51, s101') if STAMPS else None); a('s_cbranch_scc1 L_non_ok')
a('s_sleep 4')
a('s_mov_b64 exec, 1'); a('buffer_load_dword v2, v1, s[24:27], 0 offen sc1'); a('s_mov_b64 exec, -1')
a('s_branch L_non')
a('L_non_ok:')
a('v_mov_b32 v2, s43'); a(f'v_mov_b32 v3, {L_NON}'); a('ds_write_b32 v3, v2')
a('s_cmp_ge_u32 s2, 240'); a('s_cbranch_scc1 L_aux_na')
a(f's_mul_hi_u32 s66, s2, {-(-(1<<32)//5)}'); a('s_mul_i32 s67, s66, 5'); a('s_sub_u32 s67, s2, s67')
a('s_lshl_b32 s67, s67, 8'); a('s_lshl_b32 s66, s66, 2'); a('s_add_u32 s66, s66, s67'); a(f's_add_u32 s66, s66, {WS_FW}')
a('s_mov_b64 exec, 1'); a('buffer_store_dword v2, v1, s[12:15], s66 offen sc1'); a('s_mov_b64 exec, -1')
a('L_aux_na:')
def fw_ask():
    a(f'buffer_load_dword v{AB+2}, v{AB+6}, s[12:15], s74 offen sc1'); a(f'buffer_load_dword v{AB+3}, v{AB+6}, s[12:15], s75 offen sc1')
def fw_ask2():
    a(f'buffer_load_dword v62, v{AB+6}, s[12:15], s74 offen sc1'); a(f'buffer_load_dword v63, v{AB+6}, s[12:15], s75 offen sc1')
def fw_check(nm):
    a('s_mov_b32 s79, 0')
    a(f'{nm}:')
    a('s_waitcnt vmcnt(0)')
    a('v_cmp_ne_u32 vcc, s43, v62'); a('v_cmp_ne_u32 s[66:67], s43, v63'); a('s_or_b64 vcc, vcc, s[66:67]')
    a(f's_cbranch_scc0 {nm}_ok')
    a('s_add_u32 s79, s79, 1'); a(f's_cmp_ge_u32 s79, {SPINMAX}'); (a('s_cselect_b32 s101, 52, s101') if STAMPS else None); a(f's_cbranch_scc1 {nm}_ok')
    a('s_sleep 4')
    fw_ask2()
    a(f's_branch {nm}')
    a(f'{nm}_ok:')

T0, T1 = AB + 4, AB + 5
if SENT:
    RS0 = opt('rs0', 2)
    def resets(n):
        L = a.label('L_rs')
        a(f's_cmp_eq_u32 s35, {0 if RDFT else 1}'); a(f's_cbranch_scc1 {L}')
        if RDFT:
            for t in range(n // 12):
                for g in range(3):
                    for i in range(4): a(f'buffer_store_dwordx4 v[8:11], v12, s[12:15], s76 offen offset:{i*1024} sc1')
                    a(f's_add_u32 s76, s76, {4096 if g < 2 else 48*1024 - 8192}')
        else:
            for i in range(n):
                a(f'buffer_store_dwordx4 v[8:11], v12, s[12:15], s76 offen offset:{(i % 4)*1024} {RSP}')
                if i % 4 == 3: a(f's_add_u32 s76, s76, {48*1024}')
        a(f'{L}:')
    if RSEQ:
        assert sum(map(int, RSEQ)) == 8
        a(f's_lshr_b32 s63, {sum(int(c) << (4*i) for i, c in enumerate(RSEQ[:5]))}, s42'); a('s_and_b32 s63, s63, 15'); a('s_add_u32 s42, s42, 4')
        a('L_aux_rr:')
        a('s_cmp_eq_u32 s63, 0'); a('s_cbranch_scc1 L_aux_nr')
        resets(12)
        a('s_sub_u32 s63, s63, 1'); a('s_branch L_aux_rr')
    else:
        a(f's_cmp_lt_u32 s47, {RS0}'); a('s_cbranch_scc1 L_aux_nr')
        resets(12 if RDFT else 8)
    a('L_aux_nr:')
a('s_cmp_eq_u32 s35, 1'); a('s_cbranch_scc1 L_aux_c')
for i in range(4): a(f'ds_read_b128 v[{24+4*i}:{27+4*i}], v{AB+3} offset:{i*4096}')
a('s_waitcnt lgkmcnt(0)')
for i in range(4):
    for d in range(4):
        r = 24 + 4*i + d
        a(f'v_lshlrev_b32 v{T0}, 16, v{r}'); a(f'v_and_b32 v{T1}, 0xffff0000, v{r}')
        a(f'v_add_f32 v{48+2*d}, v{48+2*d}, v{T0}'); a(f'v_add_f32 v{49+2*d}, v{49+2*d}, v{T1}')
a('s_branch L_aux_x')
a('L_aux_c:')
if NOCS: a('s_branch L_aux_x')
if DF: a('s_bitcmp1_b32 s47, 0'); a('s_cbranch_scc0 L_aux_x')
def csum():
    for i in range(3): a(f'ds_read_b128 v[{24+4*i}:{27+4*i}], v{AB+3} offset:{i*1024}')
    a('s_waitcnt lgkmcnt(0)')
    for i in range(3):
        for d in range(4):
            r = 24 + 4*i + d
            a(f'v_lshlrev_b32 v{T0}, 16, v{r}'); a(f'v_and_b32 v{T1}, 0xffff0000, v{r}')
            a(f'v_add_f32 v{48+2*i}, v{48+2*i}, v{T0}'); a(f'v_add_f32 v{49+2*i}, v{49+2*i}, v{T1}')
if not NOCS: csum()
a('L_aux_x:')
a(f's_add_u32 s46, s46, {STG}'); a(f's_cmp_eq_u32 s46, {3*STG}'); a('s_cselect_b32 s46, 0, s46')
a('s_add_u32 s47, s47, 1'); a('s_cmp_lt_u32 s47, 5'); a('s_cbranch_scc1 L_aux_l')
def fr_pub():
    a('s_lshl_b32 s66, s28, 8'); a('s_lshl_b32 s67, s29, 2'); a('s_add_u32 s66, s66, s67'); a(f's_add_u32 s66, s66, {WS_FH}')
    a('v_mov_b32 v4, s43'); a('v_mov_b32 v5, 0')
    a('s_waitcnt vmcnt(0)')
    a('s_mov_b64 exec, 1'); a('buffer_store_dword v4, v5, s[12:15], s66 offen sc1'); a('s_mov_b64 exec, -1')
tick(7, 5)
a('s_barrier')
tick(7, 21)
if FRB == 5: fr_pub()
pfw()
if RSEQ: resets(12*int(RSEQ[5]))
elif RDFT: resets(12*(RS0 + 3 - (RS0 + 3)//2))
elif RS0 >= 2: resets(12 if RS0 == 4 else 8)
p2_setup()
def red8(regs):
    for mod in ('quad_perm:[1,0,3,2]', 'quad_perm:[2,3,0,1]', 'row_half_mirror'):
        a('s_nop 1')
        for r in regs: a(f'v_add_f32_dpp v{r}, v{r}, v{r} {mod} row_mask:0xf bank_mask:0xf')
a('s_cmp_eq_u32 s35, 1'); a('s_cbranch_scc1 L_aux_pc')
for mod in ('row_ror:4', 'row_ror:8'):
    a('s_nop 1')
    for r in range(48, 56): a(f'v_add_f32_dpp v{r}, v{r}, v{r} {mod} row_mask:0xf bank_mask:0xf')
for sw in ('v_permlane16_swap_b32', 'v_permlane32_swap_b32'):
    for r in range(48, 56): a(f'v_mov_b32 v{r-24}, v{r}')
    a('s_nop 1')
    for r in range(48, 56): a(f'{sw} v{r}, v{r-24}')
    a('s_nop 1')
    for r in range(48, 56): a(f'v_add_f32 v{r}, v{r}, v{r-24}')
for d in range(4):
    a(f'v_cmp_eq_u32 vcc, {d}, v6') if d else a('v_lshrrev_b32 v6, 2, v0')
    if d == 0:
        a('v_mov_b32 v24, v48'); a('v_mov_b32 v26, v49')
    else:
        a('s_nop 1'); a(f'v_cndmask_b32 v24, v24, v{48+2*d}, vcc'); a(f'v_cndmask_b32 v26, v26, v{49+2*d}, vcc')
a('v_mov_b32 v25, s43'); a('v_mov_b32 v27, s43')
a('v_and_b32 v4, 3, v0'); a('v_lshlrev_b32 v4, 6, v4'); a('v_lshl_add_u32 v4, v6, 4, v4')
a('s_mov_b64 exec, 0xffff')
a('buffer_store_dwordx4 v[24:27], v4, s[12:15], s77 offen sc1')
a('s_branch L_aux_pub')
a('L_aux_pc:')
if NOCS: a('s_branch L_aux_pub')
if not NOCS:
    if DF:
        a('s_cmp_eq_u32 s31, 1'); a('s_cbranch_scc1 L_aux_c5')
        a(f'v_add_u32 v{AB+3}, s46, v{AB+1}')
        csum()
        a('L_aux_c5:')
        a('s_and_b32 s66, s30, 1'); a('s_lshl_b32 s66, s66, 30')
    for i in range(3):
        a(f'v_add_f32 v{48+i*2}, v{48+i*2}, v{49+i*2}')
        if DF: a(f'v_mul_f32 v{48+i*2}, s66, v{48+i*2}')
    red8([48, 50, 52])
    for i in range(3): a(f'v_mov_b32 v{49+i*2}, s43')
    a('s_mov_b32 exec_lo, 0x01010101'); a('s_mov_b32 exec_hi, 0x01010101')
    a('buffer_store_dwordx2 v[48:49], v0, s[12:15], s77 offen sc1')
    a('buffer_store_dwordx2 v[50:51], v0, s[12:15], s77 offen offset:64 sc1')
    a('s_mov_b32 exec_hi, 0')
    a('buffer_store_dwordx2 v[52:53], v0, s[12:15], s77 offen offset:128 sc1')
a('L_aux_pub:')
a('s_mov_b64 exec, -1')
a('s_lshl_b32 s48, s28, 13'); a(f's_add_u32 s48, s48, {WS_XP}'); a('s_add_u32 s50, s48, 4096')
a('s_lshl_b32 s49, s29, 12'); a(f's_add_u32 s49, s49, {WS_WP}')
def gather():
    for i in range(8): a(f'buffer_load_dwordx4 v[{8+4*i}:{11+4*i}], v1, s[12:15], s{48 if i < 4 else 50} offen offset:{(i%4)*1024} sc1')
    Lg = a.label('L_gw')
    if NOCS: a('s_cmp_eq_u32 s35, 1'); a(f's_cbranch_scc1 {Lg}')
    for i in range(4): a(f'buffer_load_dwordx4 v[{40+4*i}:{43+4*i}], v1, s[12:15], s49 offen offset:{i*1024} sc1')
    a(f'{Lg}:')
    a(f'buffer_load_dword v{AB+1}, v{AB}, s[12:15], s65 offen sc1')
    if FWL: fw_ask2()
a(f's_mov_b32 s65, {WS_FH}')
if RDFT:
    a(f'v_and_b32 v{AB}, 3, v0'); a(f'v_lshlrev_b32 v{AB}, 2, v{AB}'); a('s_lshl_b32 s69, s36, 8'); a('s_add_u32 s69, s69, 48'); a(f'v_add_u32 v{AB}, s69, v{AB}')
    a('s_lshl_b32 s69, s28, 8'); a('s_lshl_b32 s63, s30, 2'); a('s_add_u32 s69, s69, s63'); a('s_add_u32 s69, s69, 48'); a('v_mov_b32 v4, s69')
    a('v_cmp_gt_u32 vcc, 16, v0'); a('s_nop 1'); a(f'v_cndmask_b32 v{AB}, v4, v{AB}, vcc')
else:
    a(f'v_min_u32 v{AB}, 11, v0'); a(f'v_lshlrev_b32 v{AB}, 2, v{AB}'); a('s_lshl_b32 s69, s36, 8'); a(f'v_add_u32 v{AB}, s69, v{AB}')
GAT = opt('gat', 78)
tick(7, 6)
a('s_barrier')
tick(7, 22)
if FRB == 6: fr_pub()
pfw()
if RSEQ: resets(12*int(RSEQ[6]))
elif RDFT: resets(12*((RS0 + 3)//2))
elif RS0 >= 3: resets(12 if RS0 == 4 else 8)
if not FWL: fw_ask2()
if GAT == 68:
    a('s_cmp_eq_u32 s35, 0'); a('s_cbranch_scc1 L_g6'); gather(); a('L_g6:')
tick(7, 7)
a('s_barrier')
tick(7, 23)
if not FWL: fw_check('L_pollwf')
else: a('s_waitcnt vmcnt(0)')
if FRB == 7: fr_pub()
if GAT == 7: gather()
if GAT == 78:
    a('s_cmp_eq_u32 s35, 0'); a('s_cbranch_scc1 L_g7'); gather(); a('L_g7:')
a('s_cmp_eq_u32 s35, 1'); a(f's_cselect_b32 s69, {0 if NOCS else 40}, 64'); a('v_cmp_gt_u32 s[76:77], s69, v0')
if GAT == 68: a('s_cmp_eq_u32 s35, 1'); a('s_cbranch_scc1 L_g8x')
tick(7, 8)
a('s_barrier')
tick(7, 24)
if GAT in (8, 68): gather()
a('L_g8x:')
if GAT == 78:
    a('s_cmp_eq_u32 s35, 1'); a('s_cbranch_scc1 L_g8'); gather(); a('L_g8:')
a('s_mov_b32 s79, 0')
a('s_waitcnt vmcnt(0)')
a('L_gchk:')
a(f'v_xor_b32 v2, s43, v{AB+1}'); a('s_sub_u32 s64, s35, 1' if RDFT and not FRSEP else 's_mov_b32 s64, 0'); a('v_and_b32 v2, s64, v2')
for i in range(0, 8): a(f'v_xor_b32 v3, s43, v{10+4*i}'); a('v_or_b32 v2, v2, v3')
a('v_xor_b32 v4, s43, v41')
for r in (43, 45, 47, 49, 51, 53, 55): a(f'v_xor_b32 v3, s43, v{r}'); a('v_or_b32 v4, v4, v3')
if FWL: a('v_xor_b32 v3, s43, v62'); a('v_or_b32 v2, v2, v3'); a('v_xor_b32 v3, s43, v63'); a('v_or_b32 v2, v2, v3')
a('v_cmp_ne_u32 vcc, 0, v4'); a('s_and_b64 s[62:63], vcc, s[76:77]')
a('v_cmp_ne_u32 vcc, 0, v2'); a('s_or_b64 s[62:63], s[62:63], vcc')
a('s_cbranch_scc0 L_gok')
a('s_add_u32 s79, s79, 1'); a(f's_cmp_ge_u32 s79, {SPINMAX}'); (a('s_cselect_b32 s101, 50, s101') if STAMPS else None); a('s_cbranch_scc1 L_gok')
a('s_sleep 4')
gather()
a('s_waitcnt vmcnt(0)')
a('s_branch L_gchk')
a('L_gok:')
if FWL: lds_arrive(44, 2)
tick(7, 9)
for h in range(2):
    for d in range(2):
        b = 8 + 4*h + d
        a(f'v_add_f32 v{b}, v{b}, v{b+8}'); a(f'v_add_f32 v{b+16}, v{b+16}, v{b+24}'); a(f'v_add_f32 v{b}, v{b}, v{b+16}')
    a(f'v_add_f32 v{40+4*h}, v{40+4*h}, v{48+4*h}'); a(f'v_add_f32 v{41+4*h}, v{42+4*h}, v{50+4*h}')
a('v_lshlrev_b32 v2, 3, v0'); a(f'v_add_u32 v2, {L_CS}, v2')
a('ds_write_b64 v2, v[40:41]'); a('ds_write_b64 v2, v[44:45] offset:512')
for (s_, q_, ro, mo) in ((8, 9, 16, 18), (12, 13, 17, 19)):
    a(f'v_mul_f32 v{mo}, {1.0/D!r}, v{s_}')
    a(f'v_mul_f32 v{q_}, {1.0/D!r}, v{q_}')
    a(f'v_fma_f32 v{q_}, -v{mo}, v{mo}, v{q_}')
    a(f'v_max_f32 v{q_}, 0, v{q_}')
    rbf(mo); rbf(q_)
    a(f'v_add_f32 v{q_}, 0x3727c5ac, v{q_}')
    rbf(q_)
    a(f'v_sqrt_f32 v{q_}, v{q_}'); a('s_nop 0')
    rbf(q_)
    a(f'v_rcp_f32 v{ro}, v{q_}')
    a(f'v_fmac_f32 v{s_}, {-float(D)!r}, v{mo}')
    a(f'v_mul_f32 v{s_}, v{s_}, v{ro}')
a('v_lshlrev_b32 v2, 2, v0'); a(f'v_add_u32 v2, {L_R}, v2')
a(f'ds_write_b32 v2, v8 offset:{L_A0 - L_R}'); a(f'ds_write_b32 v2, v12 offset:{L_A0 - L_R + 256}')
a('ds_write_b32 v2, v16'); a('ds_write_b32 v2, v17 offset:256'); a('ds_write_b32 v2, v18 offset:512'); a('ds_write_b32 v2, v19 offset:768')
lds_arrive(24, 2)
tick(7, 10)
if GAT == 68:
    a('s_cmp_eq_u32 s35, 0'); a('s_cbranch_scc1 L_g8y')
    a('s_barrier')
    a('L_g8y:')
a(f'v_cmp_ne_u32 vcc, s43, v{AB+1}'); a('s_cmp_eq_u64 vcc, 0'); a('s_cbranch_scc1 L_pollr_ok')
spin_begin('L_pollr')
a(f'buffer_load_dword v{AB+1}, v{AB}, s[12:15], s65 offen sc1')
a('s_waitcnt vmcnt(0)')
a(f'v_cmp_ne_u32 vcc, s43, v{AB+1}'); a('s_cmp_eq_u64 vcc, 0')
spin_end('L_pollr')
lds_arrive(0, 2)
if RDFT and FRSEP: lds_arrive(48, 2)
if opt('aprio', 0): a('s_setprio 0')
a('s_branch L_p2join')

a('L_compute:')
common_srds()
a(f's_mov_b32 s50, {(-2*STG) & 0xffffffff}'); a(f's_mov_b32 s51, {STG}')
a('s_mov_b32 s46, 0'); a('s_mov_b32 s47, 0')
p2h_setup()
a('v_lshrrev_b32 v2, 4, v0')
a('v_and_b32 v3, 15, v0')
a('v_bfe_u32 v6, v0, 1, 3'); a('v_xor_b32 v6, v6, v2')
def wd_issue():
    Lw = a.label('L_nowd')
    a(f"s_cmp_ge_u32 s2, {0 if opt('nowd', 0) else 240}")
    a(f's_cbranch_scc1 {Lw}')
    a(f's_mul_hi_u32 s76, s2, {-(-(1<<32)//5)}'); a('s_mul_i32 s77, s76, 5'); a('s_sub_u32 s77, s2, s77')
    a('v_lshrrev_b32 v36, 2, v0'); a('v_and_b32 v37, 3, v0')
    a(f'v_mul_u32_u24 v38, {D*2}, v36'); a('v_lshl_add_u32 v38, v37, 4, v38')
    a(f's_mul_i32 s68, s76, {32*D*2}'); a('s_lshl_b32 s69, s77, 8'); a('s_add_u32 s68, s68, s69'); a('s_lshl_b32 s69, s3, 6'); a('s_add_u32 s68, s68, s69')
    a('s_lshl_b32 s70, s3, 11'); a(f's_add_u32 s70, s70, {L_WD}')
    a('s_mov_b32 m0, s70'); a('s_nop 0')
    a(f'buffer_load_dwordx4 v38, s[20:23], s68 offen {WP_} lds')
    a('s_add_u32 m0, s70, 1024'); a(f's_add_u32 s68, s68, {16*D*2}')
    a(f'buffer_load_dwordx4 v38, s[20:23], s68 offen {WP_} lds')
    a(f'{Lw}:')
WDL = opt('wdlate', 1)
if WDL == 0: wd_issue()
def wd_finish():
    if WDL == 2: wd_issue()
    L = a.label('L_wdf')
    a(f"s_cmp_ge_u32 s2, {0 if opt('nowd', 0) else 240}"); a(f's_cbranch_scc1 {L}')
    a('v_lshlrev_b32 v36, 6, v36'); a('v_lshl_add_u32 v36, v37, 3, v36'); a('v_add_u32 v36, s70, v36')
    a('v_lshlrev_b32 v37, 4, v0')
    a('s_lshl_b32 s77, s77, 3'); a('s_lshl_b32 s68, s3, 1'); a('s_add_u32 s77, s77, s68')
    a(f's_mul_i32 s76, s76, 5120'); a(f's_add_u32 s76, s76, {WS_WDT}')
    a('s_waitcnt vmcnt(0)')
    for e in range(2):
        for b in range(2):
            a(f'ds_read_b64_tr_b16 v[{48+4*e+2*b}:{49+4*e+2*b}], v36 offset:{32*e + 1024*b}')
    for e in range(2):
        a(f's_add_u32 s68, s77, {e}')
        a(f's_mul_hi_u32 s69, s68, {-(-(1<<32)//5)}')
        a('s_mul_i32 s70, s69, 5'); a('s_sub_u32 s70, s68, s70')
        a(f's_mul_i32 s69, s69, {48*5120}'); a('s_lshl_b32 s70, s70, 10')
        a('s_add_u32 s69, s69, s70'); a('s_add_u32 s69, s69, s76')
        a('s_waitcnt lgkmcnt(0)')
        a(f'buffer_store_dwordx4 v[{48+4*e}:{51+4*e}], v37, s[12:15], s69 offen sc1')
    a(f'{L}:')
pre_loop()
if WDL == 1: wd_issue()
a('s_cmp_eq_u32 s35, 1')
a('s_cbranch_scc1 L_dft')
def interleave(M, R):
    out = []; R = list(R)
    for m in M:
        out.append(m)
        if R: out.append(R.pop(0))
    return out + R
tails = []
def mid_sync(last):
    L = a.label('L_ms')
    a('s_cmp_ge_u32 s47, 8'); a(f's_cbranch_scc1 {L}_t')
    a('s_barrier')
    a(f'{L}_b:')
    tails.append((L, last))
CNTRD = 'ds_read2_b32 v[14:15], v6 offset0:3 offset1:6'
def emit_tails():
    for L, last in tails:
        a(f'{L}_t:')
        a('s_mov_b64 exec, 1')
        a('s_cmp_eq_u32 s47, 9'); a(f's_cbranch_scc1 {L}_9')
        a('ds_add_u32 v6, v5 offset:16')
        a('s_mov_b64 exec, -1')
        a('v_readfirstlane_b32 s78, v14')
        a('s_cmp_ge_u32 s78, 3'); a(f's_cbranch_scc1 {L}_b')
        lds_wait(f'{L}_w', 12, 14, 3)
        a(f's_branch {L}_b')
        a(f'{L}_9:')
        a('ds_add_u32 v6, v5 offset:20')
        a('s_mov_b64 exec, -1')
        a(f's_branch {last}')
def stats_wait(name):
    a('v_readfirstlane_b32 s78, v15')
    a('s_cmp_ge_u32 s78, 1'); a(f's_cbranch_scc1 {name}_ok')
    lds_wait(name, 24, 14, 1)
def slot_advance():
    a('s_add_u32 s46, s46, 1'); a('s_cmp_eq_u32 s46, 3'); a('s_cselect_b32 s42, s50, s51'); a('s_cselect_b32 s46, 0, s46')
ACC = 128
def T16(mat, mi, ni): return ACC + 64*mat + 16*mi + 4*ni
FR = 32
def fW(p, mat, mi): return FR + 48*p + 16*mat + 4*mi
def fX(p, ni): return FR + 48*p + 32 + 4*ni
AW, AX = 8, 12
a('s_and_b32 s44, s3, 1'); a('s_lshr_b32 s45, s3, 1')
SPF = opts.get('spf', '')
if SPF:
    a('s_load_dwordx4 s[80:83], s[0:1], 48') if STAMPS == 0 else a('s_load_dwordx4 s[72:75], s[0:1], 48')
    wb = 80 if STAMPS == 0 else 72
    a('s_waitcnt lgkmcnt(0)')
    a('s_cmp_ge_u32 s3, 2'); a('s_cbranch_scc1 L_spx')
    a('s_cmp_eq_u32 s3, 1'); a(f's_cselect_b32 s62, s{wb+2}, s{wb}'); a(f's_cselect_b32 s63, s{wb+3}, s{wb+1}')
    a(f's_mul_i32 s66, s32, {8*F*2}'); a('s_lshl_b32 s67, s29, 8'); a('s_add_u32 s66, s66, s67'); a('s_add_u32 s62, s62, s66'); a('s_addc_u32 s63, s63, 0')
    for dc in map(int, SPF.split(',')):
        a(f's_add_u32 s66, s34, {dc}'); a('s_cmp_ge_u32 s66, 10'); a('s_cselect_b32 s67, 10, 0'); a('s_sub_u32 s66, s66, s67'); a(f's_mul_i32 s66, s66, {64*F*2}')
        a('s_add_u32 s52, s62, s66'); a('s_addc_u32 s53, s63, 0')
        for i in range(16): a(f's_load_dword s54, s[52:53], {(i >> 1)*F*2 + (i & 1)*128}')
    a('s_branch L_spd')
    a('L_spx:')
    a('s_lshl_b32 s66, s33, 1'); a('s_add_u32 s66, s66, s44'); a('s_lshl_b32 s66, s66, 4'); a('s_add_u32 s66, s66, s28'); a(f's_mul_i32 s66, s66, {D*2}')
    a(f's_add_u32 s66, s66, {4*128*D*2}'); a('s_add_u32 s62, s64, s66'); a('s_addc_u32 s63, s65, 0')
    for dc in map(int, SPF.split(',')):
        a(f's_add_u32 s66, s34, {dc}'); a('s_cmp_ge_u32 s66, 10'); a('s_cselect_b32 s67, 10, 0'); a('s_sub_u32 s66, s66, s67'); a('s_lshl_b32 s66, s66, 7')
        a('s_add_u32 s52, s62, s66'); a('s_addc_u32 s53, s63, 0')
        for i in range(8): a(f's_load_dword s54, s[52:53], {(i-4)*128*D*2}')
        a(f's_add_u32 s52, s52, {8*128*D*2}'); a('s_addc_u32 s53, s53, 0')
        for i in range(8): a(f's_load_dword s54, s[52:53], {(i-4)*128*D*2}')
    a('L_spd:')
a('v_bfe_u32 v7, v0, 2, 2')
a('v_lshl_add_u32 v4, v2, 3, v7'); a('v_lshlrev_b32 v4, 8, v4')
a('v_bfe_u32 v5, v0, 1, 1'); a('v_lshl_add_u32 v4, v5, 4, v4')
a('v_and_b32 v5, 1, v0'); a('v_lshl_add_u32 v4, v5, 3, v4')
a('v_and_b32 v5, 1, v2'); a('v_lshl_or_b32 v5, v5, 2, v7')
for mi in range(4):
    a('s_lshl_b32 s66, s44, 2'); a(f's_add_u32 s66, s66, {mi}')
    a('v_xor_b32 v7, s66, v5')
    a(f'v_lshl_add_u32 v{AW+mi}, v7, 5, v4')
a('s_lshl_b32 s66, s45, 13'); a('s_add_u32 s66, s66, 32768')
a('v_lshlrev_b32 v5, 7, v3'); a('v_add_u32 v5, s66, v5')
for ks in range(2):
    a(f'v_xor_b32 v7, {4*ks}, v6')
    a(f'v_lshl_add_u32 v{AX+ks}, v7, 4, v5')
for i in range(128): a(f'v_mov_b32 v{ACC+i}, 0')
def f_reads(p, ks):
    L = []
    def w(mat, mi):
        for b in range(2):
            L.append(f'ds_read_b64_tr_b16 v[{fW(p,mat,mi)+2*b}:{fW(p,mat,mi)+2*b+1}], v{AW+mi} offset:{mat*16384 + ks*8192 + b*1024}')
    w(0, 0)
    for ni in range(4): L.append(f'ds_read_b128 v[{fX(p,ni)}:{fX(p,ni)+3}], v{AX+ks} offset:{ni*2048}')
    for mat in range(2):
        for mi in range(4):
            if (mat, mi) != (0, 0): w(mat, mi)
    return L
def f_mfmas(p):
    L = []
    for i, (mat, mi) in enumerate([(mat, mi) for mat in range(2) for mi in range(4)]):
        for ni in (range(4) if i % 2 == 0 else range(3, -1, -1)):
            t = T16(mat, mi, ni)
            L.append(f'v_mfma_f32_16x16x32_bf16 v[{t}:{t+3}], v[{fW(p,mat,mi)}:{fW(p,mat,mi)+3}], v[{fX(p,ni)}:{fX(p,ni)+3}], v[{t}:{t+3}]')
    return L
wd_finish()
a('v_mov_b32 v5, 1'); a(f'v_mov_b32 v6, {L_CNT}')
tick(7, 0)
a('s_barrier')
tick(7, 16)
stamp(1)
for r in f_reads(0, 0): a(r)
a('L_floop:')
a('s_waitcnt lgkmcnt(0)')
UPD = ['s_add_u32 s46, s46, 1', 's_cmp_eq_u32 s46, 3', 's_cselect_b32 s42, s50, s51', 's_cselect_b32 s46, 0, s46'] + [f'v_add_u32 v{r}, s42, v{r}' for r in (AW, AW+1, AW+2, AW+3, AX, AX+1)]
for ins in interleave(f_mfmas(0), f_reads(1, 1) + [CNTRD] + UPD): a(ins)
a('s_waitcnt vmcnt(0) lgkmcnt(0)')
tick(7, ('s47', 1))
mid_sync('L_flast')
tick(7, ('s47', 17))
for ins in interleave(f_mfmas(1), f_reads(0, 0) + ['s_add_u32 s47, s47, 1']): a(ins)
a('s_branch L_floop')
a('L_flast:')
pre_epilogue()
stats_wait('L_fst')
tick(7, 40)
CSB = 48
P = []
P += ['s_lshl_b32 s66, s45, 8', f's_add_u32 s66, s66, {L_R}', 'v_lshlrev_b32 v4, 2, v3', 'v_add_u32 v4, s66, v4']
for ni in range(4):
    P += [f'ds_read_b32 v{40+ni}, v4 offset:{64*ni}', f'ds_read_b32 v{44+ni}, v4 offset:{512 + 64*ni}']
P += [f'v_mov_b32 v10, {L_CNT}', 'ds_read_b32 v8, v10 offset:32', 'ds_read_b32 v11, v10 offset:48']
P += ['s_lshl_b32 s66, s44, 8', f's_add_u32 s66, s66, {L_CS}', 'v_lshlrev_b32 v5, 4, v2', 'v_add_u32 v5, s66, v5']
for mat in range(2):
    for mi in range(4):
        r = CSB + 16*mat + 4*mi
        P.append(f'ds_read_b128 v[{r}:{r+3}], v5 offset:{mat*512 + mi*64}')
P += ['v_lshlrev_b32 v1, 4, v0', 'v_mov_b32 v9, 0']
P += ['s_lshl_b32 s66, s28, 3', 's_lshl_b32 s67, s45, 2', 's_add_u32 s66, s66, s67', 's_mul_i32 s66, s66, 48',
      's_lshl_b32 s67, s29, 2', 's_add_u32 s66, s66, s67', 's_lshl_b32 s67, s44, 1', 's_add_u32 s66, s66, s67', 's_lshl_b32 s66, s66, 10']
P += ['s_lshl_b32 s70, s28, 8', 's_lshl_b32 s71, s29, 4', 's_add_u32 s70, s70, s71', 's_lshl_b32 s71, s3, 2', 's_add_u32 s70, s70, s71', f's_add_u32 s70, s70, {WS_FH}']
M = f_mfmas(1)
for i, m in enumerate(M):
    a(m)
    for _ in range(2):
        if P: a(P.pop(0))
for x_ in P: a(x_)
stamp(2)
a('s_waitcnt lgkmcnt(0)')
a('v_readfirstlane_b32 s43, v8')
for ni in range(4):
    c = 80 + 6*ni
    a(f'v_sub_f32 v{c}, 0, v{44+ni}')
    a(f'v_mul_f32 v{c+2}, {-1.4426950408889634!r}, v{40+ni}')
    a(f'v_mul_f32 v{c+4}, v{40+ni}, v{40+ni}')
for ni in range(4): a(f'v_rcp_f32 v{84+6*ni}, v{84+6*ni}')
tick(7, 42)
BC = 'op_sel_hi:[1,0,1]'
for ni in range(1, 4): a(f's_add_u32 s{66+ni}, s{65+ni}, {48*1024}')
for kp in range(2):
    for ni in range(4):
        if kp == 1 and ni == VCHK - 1: a('ds_read_b32 v11, v10 offset:28')
        if kp == 1 and ni == VCHK:
            a('s_waitcnt lgkmcnt(0)'); a('v_readfirstlane_b32 s79, v11')
            a('s_cmp_lg_u32 s79, 1'); a('s_cbranch_scc1 L_fnov')
            v_loads()
            a('L_fnov:')
        c = 80 + 6*ni
        prs = [(2*kp + h, d) for h in range(2) for d in (0, 2)]
        G_ = [T16(0, mi, ni) + d for mi, d in prs]; U_ = [T16(1, mi, ni) + d for mi, d in prs]
        for n, (mi, d) in enumerate(prs): a(f'v_pk_fma_f32 v[{G_[n]}:{G_[n]+1}], v[{CSB+4*mi+d}:{CSB+1+4*mi+d}], v[{c}:{c+1}], v[{G_[n]}:{G_[n]+1}] {BC}')
        for n, (mi, d) in enumerate(prs): a(f'v_pk_fma_f32 v[{U_[n]}:{U_[n]+1}], v[{CSB+16+4*mi+d}:{CSB+17+4*mi+d}], v[{c}:{c+1}], v[{U_[n]}:{U_[n]+1}] {BC}')
        for n in range(4): a(f'v_pk_mul_f32 v[{104+2*n}:{105+2*n}], v[{G_[n]}:{G_[n]+1}], v[{c+2}:{c+3}] op_sel_hi:[1,0]')
        for n in range(4): a(f'v_pk_mul_f32 v[{G_[n]}:{G_[n]+1}], v[{G_[n]}:{G_[n]+1}], v[{U_[n]}:{U_[n]+1}]')
        for n in range(8): a(f'v_exp_f32 v{104+n}, v{104+n}')
        a('s_nop 0')
        for n in range(4): a(f'v_pk_fma_f32 v[{104+2*n}:{105+2*n}], v[{104+2*n}:{105+2*n}], v[{c+4}:{c+5}], v[{c+4}:{c+5}] op_sel_hi:[1,0,0]')
        for n in range(8): a(f'v_rcp_f32 v{104+n}, v{104+n}')
        a('s_nop 0')
        o = 112 + 4*ni
        for n in range(4): a(f'v_pk_mul_f32 v[{G_[n]}:{G_[n]+1}], v[{G_[n]}:{G_[n]+1}], v[{104+2*n}:{105+2*n}]')
        for n in range(4): a(f'v_cvt_pk_bf16_f32 v{o+n}, v{G_[n]}, v{G_[n]+1}')
        if RDFT and FRSEP and kp == 0 and ni == 0:
            a('v_readfirstlane_b32 s78, v11'); a('s_cmp_ge_u32 s78, 1'); a('s_cbranch_scc1 L_frw_ok')
            lds_wait('L_frw', 48, 14, 1)
        a(f'buffer_store_dwordx4 v[{o}:{o+3}], v1, s[12:15], s{66+ni} offen offset:{kp*1024} {STP}')
        if 4*kp + ni == EARLY:
            a('v_mov_b32 v12, 1'); a('s_mov_b64 exec, 1'); a('ds_add_u32 v10, v12'); a('s_mov_b64 exec, -1')
        tick(7, 43 + 4*kp + ni)
tick(7, 32)
stamp(3)
if TONE: lds_arrive(0, 4)
else: a('s_waitcnt vmcnt(0)')
if not SENT:
    a('s_mov_b64 exec, 1'); a('buffer_store_dword v8, v9, s[12:15], s70 offen sc1'); a('s_mov_b64 exec, -1')
if VCHK == 4:
    a('s_waitcnt lgkmcnt(0)'); a('v_readfirstlane_b32 s79, v11')
    a('s_cmp_lg_u32 s79, 1'); a('s_cbranch_scc1 L_fnov')
    v_loads()
    a('L_fnov:')
tick_dump(7, 4)
a('s_branch L_helper')

a('L_dft:')
DACC = 176
def TD(part, mi, et): return DACC + 40*part + 20*mi + 4*et
DFR = 40
def dX(p, mi): return DFR + 48*p + 4*mi
def dC(p, part, et): return DFR + 48*p + 8 + 20*part + 4*et
DX, DC = 8, 10
FCOS, FSIN, FNS = 136, 144, 152
a('v_lshlrev_b32 v5, 7, v3')
a('s_lshl_b32 s66, s3, 12'); a('s_add_u32 s66, s66, 32768')
for ks in range(2):
    a(f'v_xor_b32 v7, {4*ks}, v6')
    a(f'v_lshl_add_u32 v{DC+ks}, v7, 4, v5')
    a(f'v_add_u32 v{DX+ks}, s66, v{DC+ks}')
for i in range(80): a(f'v_mov_b32 v{DACC+i}, 0')
if DF:
    for i in list(range(104, 136)) + list(range(160, 176)): a(f'v_mov_b32 v{i}, 0')
if DF:
    a('s_cmp_eq_u32 s30, 0'); a('s_cselect_b32 s45, 4, 2')
    a('s_bitcmp1_b32 s30, 0'); a('s_cselect_b32 s53, 1.0, -1.0')
else:
    a('s_and_b32 s45, s30, 1'); a('s_sub_u32 s45, 3, s45')
a('v_lshrrev_b32 v12, 3, v3'); a('v_and_b32 v13, 7, v3'); a('v_lshlrev_b32 v13, 4, v13'); a('v_lshl_add_u32 v12, v12, 2, v13'); a('v_add_u32 v12, s3, v12')
a('v_lshlrev_b32 v13, 5, v2'); a('v_add_u32 v13, s28, v13'); a('v_cvt_f32_u32 v13, v13')
for mt in range(2):
    a(f'v_add_u32 v14, {8*mt}, v12'); a('v_cvt_f32_u32 v14, v14'); a(f'v_mul_f32 v14, {1.0/2048!r}, v14')
    for d in range(4):
        for h in range(2):
            a(f'v_add_f32 v{60+h}, {float(16*h + 128*d)!r}, v13')
            a(f'v_mul_f32 v{60+h}, v{60+h}, v14')
        a('v_cos_f32 v62, v60'); a('v_cos_f32 v63, v61'); a('v_sin_f32 v64, v60'); a('v_sin_f32 v65, v61')
        a(f'v_cvt_pk_bf16_f32 v{FCOS+4*mt+d}, v62, v63')
        a(f'v_cvt_pk_bf16_f32 v{FSIN+4*mt+d}, v64, v65')
        a(f'v_xor_b32 v{FNS+4*mt+d}, 0x80008000, v{FSIN+4*mt+d}')
def d_reads(p, ks):
    L = [f'ds_read_b128 v[{dX(p,mi)}:{dX(p,mi)+3}], v{DX+ks} offset:{mi*2048}' for mi in range(2)]
    for part in range(2):
        for et in range(5):
            L.append(f'ds_read_b128 v[{dC(p,part,et)}:{dC(p,part,et)+3}], v{DC+ks} offset:{part*16384 + et*2048}')
    return L
def d_mfmas(p):
    L = []
    i = 0
    for part in range(2):
        for et in range(5):
            for mi in ((0, 1) if i % 2 == 0 else (1, 0)):
                t = TD(part, mi, et)
                L.append(f'v_mfma_f32_16x16x32_bf16 v[{t}:{t+3}], v[{dX(p,mi)}:{dX(p,mi)+3}], v[{dC(p,part,et)}:{dC(p,part,et)+3}], v[{t}:{t+3}]')
            i += 1
    return L
wd_finish()
a('v_mov_b32 v5, 1'); a(f'v_mov_b32 v6, {L_CNT}')
for i in range(32, 36): a(f'v_mov_b32 v{i}, 0')
tick(7, 0)
a('s_barrier')
tick(7, 16)
stamp(1)
if DF:
    for ks in range(2):
        for mi in range(2): a(f'ds_read_b128 v[{40+8*ks+4*mi}:{43+8*ks+4*mi}], v{DX+ks} offset:{mi*2048}')
else:
    for r in d_reads(0, 0): a(r)
if not DF:
    def xstat(p):
        L = []
        for mi in range(2):
            for d in range(4):
                r = dX(p, mi) + d; t = 36 + 2*(d & 1)
                L += [f'v_lshlrev_b32 v{t}, 16, v{r}', f'v_and_b32 v{t+1}, 0xffff0000, v{r}',
                      f'v_add_f32 v{32+2*mi}, v{32+2*mi}, v{t}', f'v_fmac_f32 v{33+2*mi}, v{t}, v{t}',
                      f'v_add_f32 v{32+2*mi}, v{32+2*mi}, v{t+1}', f'v_fmac_f32 v{33+2*mi}, v{t+1}, v{t+1}']
        return L
    def interleave2(M, R, per):
        out = []; R = list(R)
        for m in M:
            out.append(m)
            for _ in range(per):
                if R: out.append(R.pop(0))
        return out + R
    def dloop(name, stats):
        a(f'{name}:')
        a('s_waitcnt lgkmcnt(0)')
        for ins in interleave2(d_mfmas(0), d_reads(1, 1) + (xstat(0) if stats else [CNTRD]), 3 if stats else 1): a(ins)
        a('s_waitcnt vmcnt(0) lgkmcnt(0)' if stats else 's_waitcnt lgkmcnt(0)')
        tick(7, ('s47', 1))
        if stats: a('s_barrier')
        else: mid_sync('L_dlast')
        tick(7, ('s47', 17))
        slot_advance()
        for r in (DX, DC): a(f'v_add_u32 v{r}, s42, v{r}')
        R = d_reads(0, 0) + [f'v_add_u32 v{r}, s42, v{r}' for r in (DX+1, DC+1)]
        for ins in interleave2(d_mfmas(1), R + (xstat(1) if stats else []), 3 if stats else 1): a(ins)
        a('s_add_u32 s47, s47, 1')
        if stats: a('s_cmp_lt_u32 s47, s45'); a(f's_cbranch_scc1 {name}')
        else: a(f's_branch {name}')
    dloop('L_dloopA', True)
else:
    def interleave2(M, R, per):
        out = []; R = list(R)
        for m in M:
            out.append(m)
            for _ in range(per):
                if R: out.append(R.pop(0))
        return out + R
    XA = [40, 48]; XB = [56, 104]
    CF = [[64 + 4*i for i in range(10)], [112 + 4*i for i in range(6)] + [160 + 4*i for i in range(4)]]
    def xa_reads(): return [f'ds_read_b128 v[{XA[ks]+4*mi}:{XA[ks]+4*mi+3}], v{DX+ks} offset:{mi*2048}' for ks in range(2) for mi in range(2)]
    def xb_reads(ks): return [f'ds_read_b128 v[{XB[ks]+4*mi}:{XB[ks]+4*mi+3}], v{DX+ks} offset:{mi*2048}' for mi in range(2)]
    def c_reads(ks): return [f'ds_read_b128 v[{CF[ks][5*part+et]}:{CF[ks][5*part+et]+3}], v{DC+ks} offset:{part*16384 + et*2048}' for part in range(2) for et in range(5)]
    def fold(ks, stats):
        L = []
        for mi in range(2):
            for d in range(4):
                ra = XA[ks] + 4*mi + d; rb = XB[ks] + 4*mi + d; sm, sq = 32 + 2*mi, 33 + 2*mi
                L += [f'v_lshlrev_b32 v36, 16, v{ra}', f'v_and_b32 v37, 0xffff0000, v{ra}', f'v_lshlrev_b32 v38, 16, v{rb}', f'v_and_b32 v39, 0xffff0000, v{rb}']
                if stats:
                    for t in (36, 37, 38, 39): L += [f'v_add_f32 v{sm}, v{sm}, v{t}', f'v_fmac_f32 v{sq}, v{t}, v{t}']
                L += [f'v_add_f32 v36, v{28+mi}, v36', f'v_add_f32 v37, v{28+mi}, v37']
                L += ['v_fmac_f32 v36, s53, v38', 'v_fmac_f32 v37, s53, v39', f'v_cvt_pk_bf16_f32 v{rb}, v36, v37']
        return L
    def f2_mfmas(ks):
        L = []
        for i in range(10):
            part, et = divmod(i, 5)
            for mi in ((0, 1) if i % 2 == 0 else (1, 0)):
                t = TD(part, mi, et); x = XB[ks] + 4*mi; c = CF[ks][i]
                L.append(f'v_mfma_f32_16x16x32_bf16 v[{t}:{t+3}], v[{x}:{x+3}], v[{c}:{c+3}], v[{t}:{t+3}]')
        return L
    DUPD = ['s_add_u32 s46, s46, 1', 's_cmp_eq_u32 s46, 3', 's_cselect_b32 s42, s50, s51', 's_cselect_b32 s46, 0, s46'] + [f'v_add_u32 v{r}, s42, v{r}' for r in (DX, DX+1, DC, DC+1)]
    def dloop3(name, stats):
        M1 = f2_mfmas(1); M0 = f2_mfmas(0)
        a(f'{name}:')
        for ins in interleave2(M1[:6], DUPD, 2): a(ins)
        a('s_waitcnt vmcnt(0) lgkmcnt(0)' if stats else 's_waitcnt lgkmcnt(0)')
        tick(7, ('s47', 1))
        if stats: a('s_barrier')
        else: mid_sync('L_dlast')
        tick(7, ('s47', 17))
        for ins in interleave2(M1[6:10], xb_reads(0) + c_reads(0) + ['s_add_u32 s47, s47, 1'], 3): a(ins)
        a('s_waitcnt lgkmcnt(10)')
        for ins in interleave2(M1[10:], fold(0, stats), 5): a(ins)
        a('s_waitcnt lgkmcnt(0)')
        a('s_nop 0')
        for ins in interleave2(M0[:7], xb_reads(1) + c_reads(1) + ([] if stats else [CNTRD]), 2): a(ins)
        a(f's_waitcnt lgkmcnt({10 if stats else 11})')
        for ins in interleave2(M0[7:], fold(1, stats) + DUPD, 5): a(ins)
        a('s_waitcnt lgkmcnt(0)')
        tick(7, ('s47', 1))
        if stats: a('s_barrier')
        else: mid_sync('L_dlast')
        tick(7, ('s47', 17))
        a('s_add_u32 s47, s47, 1')
        for ins in xa_reads() + ([] if stats else [CNTRD]): a(ins)
        if stats: a('s_cmp_lt_u32 s47, s45'); a(f's_cbranch_scc1 {name}')
        else: a(f's_branch {name}')
    def dloop2(name, stats):
        if opt('dp', 1): return dloop3(name, stats)
        a(f'{name}:')
        for ins in DUPD: a(ins)
        a('s_waitcnt vmcnt(0) lgkmcnt(0)' if stats else 's_waitcnt lgkmcnt(0)')
        tick(7, ('s47', 1))
        if stats: a('s_barrier')
        else: mid_sync('L_dlast')
        tick(7, ('s47', 17))
        a('s_add_u32 s47, s47, 1')
        for ins in xb_reads(0) + xb_reads(1) + c_reads(0): a(ins)
        a('s_waitcnt lgkmcnt(12)')
        for ins in fold(0, stats): a(ins)
        a('s_waitcnt lgkmcnt(0)')
        a('s_nop 0')
        for ins in interleave2(f2_mfmas(0), c_reads(1) + ([] if stats else [CNTRD]) + fold(1, stats) + DUPD, 3): a(ins)
        a('s_waitcnt lgkmcnt(0)')
        tick(7, ('s47', 1))
        if stats: a('s_barrier')
        else: mid_sync('L_dlast')
        tick(7, ('s47', 17))
        a('s_add_u32 s47, s47, 1')
        for ins in interleave2(f2_mfmas(1), xa_reads() + ([] if stats else [CNTRD]), 1): a(ins)
        if stats: a('s_cmp_lt_u32 s47, s45'); a(f's_cbranch_scc1 {name}')
        else: a(f's_branch {name}')
    a('s_waitcnt lgkmcnt(0)')
    for mi in range(2):
        for d in range(4):
            r = XA[0] + 4*mi + d
            a(f'v_lshlrev_b32 v36, 16, v{r}'); a(f'v_and_b32 v37, 0xffff0000, v{r}')
            if d == 0: a(f'v_add_f32 v{28+mi}, v36, v37')
            else: a(f'v_add_f32 v{28+mi}, v{28+mi}, v36'); a(f'v_add_f32 v{28+mi}, v{28+mi}, v37')
    for sw in ('v_permlane16_swap_b32', 'v_permlane32_swap_b32'):
        for mi in range(2): a(f'v_mov_b32 v{36+mi}, v{28+mi}')
        a('s_nop 1')
        for mi in range(2): a(f'{sw} v{28+mi}, v{36+mi}')
        a('s_nop 1')
        for mi in range(2): a(f'v_add_f32 v{28+mi}, v{28+mi}, v{36+mi}')
    a('s_bitcmp1_b32 s30, 0'); a(f's_cselect_b32 s66, 0x3d000000, 0')
    a('s_lshl_b32 s67, s3, 7'); a(f's_add_u32 s67, s67, {L_CH}'); a('v_lshlrev_b32 v38, 2, v3'); a('v_add_u32 v38, s67, v38')
    for mi in range(2):
        a(f'v_mul_f32 v{36+mi}, s66, v{28+mi}'); a(f'v_mul_f32 v{28+mi}, -2.0, v{36+mi}')
        if not NOCS: a(f'ds_write_b32 v38, v{36+mi} offset:{64*mi}')
    dloop2('L_dloopA', True)
a(f'v_mov_b32 v36, {L_NON}'); a('ds_read_b32 v14, v36')
for sw in ('v_permlane16_swap_b32', 'v_permlane32_swap_b32'):
    for r in range(32, 36): a(f'v_mov_b32 v{r+4}, v{r}')
    a('s_nop 1')
    for r in range(32, 36): a(f'{sw} v{r}, v{r+4}')
    a('s_nop 1')
    for r in range(32, 36): a(f'v_add_f32 v{r}, v{r}, v{r+4}')
a('s_lshl_b32 s66, s28, 2'); a('s_add_u32 s66, s66, s30'); a('s_lshl_b32 s66, s66, 11'); a('s_lshl_b32 s67, s3, 9'); a('s_add_u32 s66, s66, s67'); a(f's_add_u32 s66, s66, {WS_XP}')
a('v_cmp_gt_u32 vcc, 16, v0'); a('v_lshlrev_b32 v38, 4, v0')
a('s_waitcnt lgkmcnt(0)')
a('v_cndmask_b32 v12, v34, v32, vcc'); a('v_cndmask_b32 v13, v35, v33, vcc'); a('v_mov_b32 v15, v14')
a('v_readfirstlane_b32 s43, v14')
a('s_mov_b32 exec_hi, 0')
a('buffer_store_dwordx4 v[12:15], v38, s[12:15], s66 offen sc1')
a('s_mov_b64 exec, -1')
a('s_nop 0')
dloop2('L_dloopB', False) if DF else dloop('L_dloopB', False)
a('L_dlast:')
pre_epilogue()
stats_wait('L_dst')
tick(7, 40)
DP = []
DP.append('s_lshl_b32 s66, s3, 7'); DP.append(f's_add_u32 s66, s66, {L_R}')
DP.append('v_lshlrev_b32 v4, 4, v2'); DP.append('v_add_u32 v4, s66, v4')
for mi in range(2):
    DP.append(f'ds_read_b128 v[{40+4*mi}:{43+4*mi}], v4 offset:{64*mi}')
    if not NOCS: DP.append(f'ds_read_b128 v[{48+4*mi}:{51+4*mi}], v4 offset:{512 + 64*mi}')
    DP.append(f'ds_read_b128 v[{76+4*mi}:{79+4*mi}], v4 offset:{L_A0 - L_R + 64*mi}')
    if DF and not NOCS: DP.append(f'ds_read_b128 v[{84+4*mi}:{87+4*mi}], v4 offset:{L_CH - L_R + 64*mi}')
DP.append('v_lshlrev_b32 v5, 2, v3'); DP.append(f'v_add_u32 v5, {L_CS}, v5')
for part in range(2):
    for et in range(0 if NOCS else 5): DP.append(f'ds_read_b32 v{56+2*(5*part+et)}, v5 offset:{part*512 + et*64}')
DP.append('v_bfe_u32 v9, v3, 1, 2'); DP.append('v_xor_b32 v8, s3, v9'); DP.append('v_lshlrev_b32 v8, 4, v8'); DP.append('v_lshl_add_u32 v8, v3, 6, v8'); DP.append('v_lshl_add_u32 v8, v2, 2, v8')
DP.append('ds_read_b32 v14, v6 offset:20')
for ins in interleave2(f2_mfmas(1) if DF else d_mfmas(1), DP, 2): a(ins)
stamp(2)
a('s_waitcnt lgkmcnt(0)')
a('v_readfirstlane_b32 s78, v14')
a('s_cmp_ge_u32 s78, 4'); a('s_cbranch_scc1 L_dc9_ok')
lds_wait('L_dc9', 20, 14)
tick(7, 41)
if DF and not NOCS:
    for i in range(8): a(f'v_sub_f32 v{48+i}, v{48+i}, v{84+i}')
a('s_cmp_lg_u32 s30, 0'); a('s_cbranch_scc1 L_z0')
for mi in range(2):
    t = 76 + 4*mi; y = 84 + 4*mi
    a(f'v_pk_add_f32 v[{y}:{y+1}], v[{t}:{t+1}], v[{t+2}:{t+3}]')
    a(f'v_pk_add_f32 v[{y+2}:{y+3}], v[{t}:{t+1}], v[{t+2}:{t+3}] neg_lo:[0,1] neg_hi:[0,1]')
    a(f'v_add_f32 v{92+mi}, v{y}, v{y+1}'); a(f'v_sub_f32 v{94+mi}, v{y}, v{y+1}')
a('v_cvt_pk_bf16_f32 v96, v92, v93'); a('v_mov_b32 v97, 0')
a('v_cvt_pk_bf16_f32 v98, v86, v90'); a('v_cvt_pk_bf16_f32 v101, v87, v91'); a('v_xor_b32 v99, 0x80008000, v101')
a('v_cvt_pk_bf16_f32 v100, v94, v95')
for cpart, r in enumerate((96, 97, 98, 99, 100, 97, 98, 101)):
    a(f'ds_write_b32 v8, v{r} offset:{L_Z + (cpart*ZB + 80)*ZROW}')
a('L_z0:')
for et in range(5):
    for mi in range(2):
        for part in range(2):
            t = TD(part, mi, et); c = 56 + 2*(5*part + et)
            for d in (() if NOCS else (0, 2)):
                a(f'v_pk_fma_f32 v[{t+d}:{t+d+1}], v[{48+4*mi+d}:{49+4*mi+d}], v[{c}:{c+1}], v[{t+d}:{t+d+1}] op_sel_hi:[1,0,1] neg_lo:[1,0,0] neg_hi:[1,0,0]')
            for d in (0, 2):
                a(f'v_pk_mul_f32 v[{t+d}:{t+d+1}], v[{t+d}:{t+d+1}], v[{40+4*mi+d}:{41+4*mi+d}]')
        y = 80 + 16*mi
        for part in range(2):
            t = TD(part, mi, et)
            a(f'v_pk_add_f32 v[{y+4*part}:{y+4*part+1}], v[{t}:{t+1}], v[{t+2}:{t+3}]')
            a(f'v_pk_add_f32 v[{y+4*part+2}:{y+4*part+3}], v[{t}:{t+1}], v[{t+2}:{t+3}] neg_lo:[0,1] neg_hi:[0,1]')
        pa, qa, ra, sa, pb, qb, rb, sb = range(y, y+8); o = y + 8
        a(f'v_add_f32 v{o}, v{pa}, v{qa}'); a(f'v_add_f32 v{o+1}, v{pb}, v{qb}')
        a(f'v_add_f32 v{o+2}, v{ra}, v{sb}'); a(f'v_sub_f32 v{o+3}, v{rb}, v{sa}')
        a(f'v_sub_f32 v{o+4}, v{pa}, v{qa}'); a(f'v_sub_f32 v{o+5}, v{pb}, v{qb}')
        a(f'v_sub_f32 v{o+6}, v{ra}, v{sb}'); a(f'v_add_f32 v{o+7}, v{rb}, v{sa}')
    for cpart in range(8):
        a(f'v_cvt_pk_bf16_f32 v{112+cpart}, v{88+cpart}, v{104+cpart}')
    for cpart in range(8):
        a(f'ds_write_b32 v8, v{112+cpart} offset:{L_Z + (cpart*ZB + 16*et)*ZROW}')
tick(7, 42)
VADDR = []
VADDR += ['v_lshrrev_b32 v12, 1, v2', f'v_mul_u32_u24 v12, {8*VROW}, v12', 'v_and_b32 v13, 1, v2', f'v_mul_u32_u24 v11, {VROW}, v13', 'v_add_u32 v12, v12, v11', 'v_lshl_add_u32 v12, v3, 4, v12']
VADDR += ['s_mul_i32 s66, s28, 17', 's_add_u32 s67, s66, s3', f's_mul_i32 s67, s67, {2*VROW}', *(['s_and_b32 s68, s30, 1', 's_lshl_b32 s68, s68, 1', 's_lshr_b32 s69, s30, 1', 's_add_u32 s68, s68, s69', 's_mul_i32 s68, s68, 1280'] if DF else ['s_mul_i32 s68, s30, 1280']), f's_add_u32 s68, s68, {WS_V + 128}', 's_add_u32 s67, s67, s68', 's_sub_u32 s69, s67, 16']
VADDR += ['s_add_u32 s66, s66, 16', f's_mul_i32 s66, s66, {2*VROW}', 's_add_u32 s66, s66, s68', f's_add_u32 s70, s67, {16*VROW}']
a('v_mov_b32 v10, 1')
a('s_waitcnt lgkmcnt(0)')
a('s_mov_b64 exec, 1'); a('ds_add_u32 v6, v10 offset:4'); a('s_mov_b64 exec, -1')
a('v_bfe_u32 v8, v3, 1, 2'); a('v_xor_b32 v8, v8, v2'); a('v_lshlrev_b32 v8, 4, v8'); a('v_lshl_add_u32 v8, v3, 6, v8'); a(f's_mul_i32 s66, s3, {2*ZB*ZROW}'); a('v_add_u32 v8, s66, v8')
for ins in VADDR: a(ins)
lds_wait('L_zw', 4, 14)
tick(7, 43)
for part in range(2):
    for et in range(5):
        r = 40 + 20*part + 4*et
        a(f'ds_read_b128 v[{r}:{r+3}], v8 offset:{L_Z + (part*ZB + 16*et)*ZROW}')
for part in range(2): a(f'ds_read_b128 v[{120+4*part}:{123+4*part}], v8 offset:{L_Z + (part*ZB + 80)*ZROW}')
a('s_waitcnt lgkmcnt(0)')
a('s_mov_b64 exec, 1'); a('ds_add_u32 v6, v10 offset:8'); a('s_mov_b64 exec, -1')
a('v_mov_b32 v8, v12'); a('v_mov_b32 v10, v11')
tick(7, 44)
def VR(mt, et): return DACC + 20*mt + 4*et
def VI(mt, et): return DACC + 40 + 20*mt + 4*et
def vpack(et):
    L = []
    for mt in range(2):
        o = 80 + 20*mt + 4*et
        for i in range(4): L.append(f'v_cvt_pk_bf16_f32 v{o+i}, v{VR(mt,et)+i}, v{VI(mt,et)+i}')
        L.append(f'buffer_store_dwordx4 v[{o}:{o+3}], v8, s[12:15], s{67 + 3*mt} offen offset:{256*et} {STP}')
    return L
def vm(vr, vi, ya, yb):
    L = []
    for mt in range(2):
        L.append(f'v_mfma_f32_16x16x32_bf16 v[{vr(mt)}:{vr(mt)+3}], v[{FCOS+4*mt}:{FCOS+4*mt+3}], v[{ya}:{ya+3}], 0')
        L.append(f'v_mfma_f32_16x16x32_bf16 v[{vi(mt)}:{vi(mt)+3}], v[{FNS+4*mt}:{FNS+4*mt+3}], v[{ya}:{ya+3}], 0')
    for mt in range(2):
        L.append(f'v_mfma_f32_16x16x32_bf16 v[{vr(mt)}:{vr(mt)+3}], v[{FSIN+4*mt}:{FSIN+4*mt+3}], v[{yb}:{yb+3}], v[{vr(mt)}:{vr(mt)+3}]')
        L.append(f'v_mfma_f32_16x16x32_bf16 v[{vi(mt)}:{vi(mt)+3}], v[{FCOS+4*mt}:{FCOS+4*mt+3}], v[{yb}:{yb+3}], v[{vi(mt)}:{vi(mt)+3}]')
    return L
for et in range(5):
    M = vm(lambda mt: VR(mt, et), lambda mt: VI(mt, et), 40 + 4*et, 60 + 4*et)
    for ins in interleave2(M, vpack(et - 2) if et >= 2 else [], 2): a(ins)
a('s_cmp_lg_u32 s30, 0'); a('s_cbranch_scc1 L_v0a')
for ins in vm(lambda mt: 160 + 4*mt, lambda mt: 168 + 4*mt, 120, 124): a(ins)
a('L_v0a:')
tick(7, 45)
for ins in vpack(3): a(ins)
for ins in vpack(4): a(ins)
a('s_cmp_lg_u32 s30, 0'); a('s_cbranch_scc1 L_v0b')
for mt in range(2):
    for i in range(4): a(f'v_cvt_pk_bf16_f32 v{120+4*mt+i}, v{160+4*mt+i}, v{168+4*mt+i}')
a('s_mov_b32 exec_lo, 0x00010001'); a('s_mov_b32 exec_hi, 0x00010001')
a(f'buffer_store_dwordx4 v[120:123], v8, s[12:15], s69 offen {STP}')
a(f's_add_u32 s69, s69, {16*VROW}')
a(f'buffer_store_dwordx4 v[124:127], v8, s[12:15], s69 offen {STP}')
a('s_mov_b64 exec, -1')
a('L_v0b:')
tick(7, 46)
a('s_cmp_lg_u32 s3, 0')
a('s_cbranch_scc1 L_signal')
a('v_cvt_f32_u32 v62, s28'); a('v_mul_f32 v62, 0.0625, v62'); a('v_cos_f32 v63, v62'); a('v_sin_f32 v64, v62')
a('v_cmp_gt_u32 vcc, 16, v0')
a('v_lshlrev_b32 v11, 4, v3'); a('v_add_u32 v9, v10, v11')
for et in range(5):
    o = 80 + 4*et; vr = VR(0, et); vi = VI(0, et); n = 40 + 4*et
    a(f'v_mul_f32 v65, v63, v{vr}'); a(f'v_fmac_f32 v65, v64, v{vi}')
    a(f'v_mul_f32 v66, v63, v{vi}'); a(f'v_fma_f32 v66, -v64, v{vr}, v66')
    a(f'v_cvt_pk_bf16_f32 v65, v65, v66')
    a(f'v_cndmask_b32 v65, v{o}, v65, vcc')
    a(f'v_mov_b32 v{n}, v{o+1}')
    a(f'v_mov_b32 v66, v65')
    a(f'v_mov_b32 v{n+1}, v{o+2}'); a(f'v_mov_b32 v{n+2}, v{o+3}')
    a(f'v_permlane16_swap_b32 v65, v66')
    a('s_nop 1')
    a(f'v_cndmask_b32 v{n+3}, v65, v66, vcc')
a('s_mov_b32 exec_hi, 0')
for et in range(5):
    a(f'buffer_store_dwordx4 v[{40+4*et}:{43+4*et}], v9, s[12:15], s66 offen offset:{256*et} {STP}')
a('s_mov_b64 exec, -1')

a('L_signal:')
a('s_mov_b32 s79, 0')
tick(7, 32)
stamp(3)
a('s_lshl_b32 s66, s30, 2'); a('s_add_u32 s66, s66, s3'); a('s_lshl_b32 s66, s66, 7'); a('s_lshl_b32 s67, s28, 2'); a('s_add_u32 s66, s66, s67'); a(f's_add_u32 s66, s66, {WS_FV}')
a('v_mov_b32 v4, s43'); a('v_mov_b32 v5, 0')
a('s_waitcnt vmcnt(0)'); a('s_mov_b64 exec, 1')
a('buffer_store_dword v4, v5, s[12:15], s66 offen sc1'); a('s_mov_b64 exec, -1')
if TONE: lds_arrive(0, 4)
tick_dump(7, 4)
a('L_helper:')
if TONE:
    lds_wait('L_hc9', 20, 40)
    a('s_cmp_eq_u32 s35, 0'); a('s_cbranch_scc1 L_hnz')
    lds_wait('L_hzc', 8, 40)
    a('L_hnz:')
else:
    if 0 <= EARLY < 8: a('s_cmp_eq_u32 s35, 0'); a('s_cbranch_scc1 L_hea')
    lds_arrive(0, 4)
    a('L_hea:')
    lds_wait('L_hc9', 20, 40)
    a('s_cmp_eq_u32 s35, 0'); a('s_cbranch_scc1 L_hnz')
    lds_wait('L_hzc', 8, 40)
    a('L_hnz:')
    a('s_mov_b32 s44, s3')
    p2_setup()
    a('s_cmp_eq_u32 s35, 1'); a('s_cbranch_scc1 L_hd')
    for st in range(12 - NLATE, 12): wdt_lds(st)
    a('s_branch L_hf')
    a('L_hd:')
    for st in range(12 - NLD, 12): wdt_lds(st)
    a('L_hf:')
    VT = opt('vtouch', 0)
    def vtouch():
        a('s_cmp_eq_u32 s35, 0'); a('s_cbranch_scc1 L_nvt')
        a('v_lshrrev_b32 v40, 2, v0'); a('v_lshlrev_b32 v40, 7, v40'); a('v_and_b32 v41, 3, v0'); a('v_lshl_add_u32 v40, v41, 4, v40')
        a(f's_mov_b32 s66, {WS_FV}')
        spin_begin('L_pollva')
        a('buffer_load_dwordx4 v[44:47], v40, s[12:15], s66 offen sc1')
        a('s_waitcnt vmcnt(0)')
        for i in range(4): a(f'v_xor_b32 v{44+i}, s43, v{44+i}')
        a('v_or_b32 v44, v44, v45'); a('v_or3_b32 v44, v46, v47, v44')
        a('v_cmp_ne_u32 vcc, 0, v44'); a('s_cmp_eq_u64 vcc, 0')
        spin_end('L_pollva')
        a('s_lshl_b32 s66, s30, 2'); a('s_sub_u32 s67, 13, s66'); a('s_cmp_eq_u32 s31, 1'); a('s_cselect_b32 s66, s67, s66')
        a('s_lshl_b32 s67, s32, 1'); a('s_lshr_b32 s68, s3, 1'); a('s_add_u32 s67, s67, s68'); a('s_mul_i32 s67, s67, 17'); a('s_add_u32 s66, s66, s67')
        a(f's_mul_i32 s66, s66, {2*VROW}'); a('s_and_b32 s67, s3, 1'); a(f's_mul_i32 s67, s67, {164*128}'); a('s_add_u32 s66, s66, s67'); a(f's_add_u32 s66, s66, {WS_V}')
        a('v_lshlrev_b32 v40, 7, v0')
        for i in range(3):
            if i == 2: a('s_mov_b32 exec_hi, 0xf')
            a(f'buffer_load_dword v41, v40, s[12:15], s66 offen sc1')
            if i < 2: a('s_add_u32 s66, s66, 8192')
        a('s_mov_b64 exec, -1')
        a('s_mov_b32 s79, 0')
        a('s_waitcnt vmcnt(0)')
        a('L_nvt:')
    if VT == 2: vtouch()
    a('s_waitcnt vmcnt(0)')
    lds_arrive(36, 4)
    if VT == 1: vtouch()
stamp(4)

a('s_cmp_eq_u32 s79, 1'); a('s_cbranch_scc1 L_vdone')
if VGO: a('s_cmp_lg_u32 s3, 3'); a('s_cbranch_scc1 L_vwait')
spin_begin('L_pollv')
a(f'buffer_load_dword v53, v{VFL}, s[12:15], s60 offen sc1')
a('s_waitcnt vmcnt(0)')
a('v_cmp_ne_u32 vcc, s43, v53')
a('s_cmp_eq_u64 vcc, 0')
spin_end('L_pollv')
if VGO:
    lds_arrive(28, 40)
    a('L_vwait:')
    lds_wait('L_vc', 28, 40, 1)
    lds_wait('L_vgo', 40, 40, 1)
v_loads()
a('L_vdone:')
stamp(5)
a('v_lshrrev_b32 v4, 2, v3'); a('v_and_b32 v5, 3, v3'); a('v_lshl_add_u32 v7, v5, 2, v4')
a('s_mul_i32 s66, s55, 15'); a('v_xor_b32 v4, s66, v7')
a('v_cvt_f32_u32 v4, v4'); a('v_mul_f32 v4, 0.0625, v4')
a('v_lshlrev_b32 v5, 2, v2'); a('v_cvt_f32_u32 v5, v5')
for i in range(4):
    a(f'v_add_f32 v52, {float(i)!r}, v5'); a('v_mul_f32 v52, v52, v4')
    a('v_cos_f32 v53, v52'); a('v_sin_f32 v54, v52'); a('s_nop 0')
    a(f'v_cvt_pk_bf16_f32 v{8+i}, v53, v54')
a(f's_mov_b32 s47, {PN}'); a('s_cmp_eq_u32 s55, 1'); a(f's_cselect_b32 s47, {(-PN) & 0xffffffff}, s47')
a(f'v_mul_u32_u24 v56, {PQ}, v2'); a('v_lshl_add_u32 v56, v3, 4, v56'); a(f's_mul_i32 s66, s55, {3*PN}'); a('v_add_u32 v56, s66, v56')
for k4 in range(1, 4): a(f'v_add_u32 v{56+k4}, s47, v{55+k4}')
def spec_tile(off_s, vb):
    for k4 in range(4):
        for i in range(4): a(f'v_mov_b32 v{64+4*k4+i}, v{vb+4*i+k4}')
    a('s_nop 1')
    for k4 in range(4):
        c = 80 + 4*k4
        a(f'v_mfma_f32_16x16x32_bf16 v[{c}:{c+3}], v[{64+4*k4}:{67+4*k4}], v[8:11], 0')
    for k4 in range(4): a(f'v_add_u32 v{40+k4}, {off_s}, v{56+k4}')
    a('s_nop 5')
    for k4 in range(4):
        c = 80 + 4*k4
        a(f'ds_write_b128 v{40+k4}, v[{c}:{c+3}]')
a('s_cmp_eq_u32 s3, 1'); a(f's_mov_b32 s73, {ST[0]}'); a(f's_cselect_b32 s73, {ST[1]}, s73')
a('s_cmp_eq_u32 s3, 2'); a(f's_cselect_b32 s73, {ST[2]}, s73')
a('s_cmp_eq_u32 s3, 3'); a(f's_cselect_b32 s73, {ST[3]}, s73')
a('s_waitcnt vmcnt(0)')
a('s_cmp_lg_u32 s3, 0'); a('s_cbranch_scc1 L_spec1')
a(f's_mov_b32 s74, {ST[4]}')
spec_tile('s74', VB1)
a('L_spec1:')
spec_tile('s73', VB0)
for r in range(3):
    for d in range(4):
        a(f'v_lshlrev_b32 v{96+8*r+2*d}, 16, v{XR[r]+d}'); a(f'v_and_b32 v{97+8*r+2*d}, 0xffff0000, v{XR[r]+d}')
if F8:
    lds_arrive(52, 40)
    lds_wait('L_spw', 52, 40)
    a(f'ds_read_b128 v[128:131], v{FA[5]}'); a(f'ds_read_b128 v[132:135], v{FA[5]} offset:{PQ}')
    a('s_waitcnt lgkmcnt(0)')
    for d in range(0, 8, 2): a(f'v_pk_add_f32 v[{128+d}:{129+d}], v[{128+d}:{129+d}], v[{104+d}:{105+d}]')
    a(f'ds_write_b128 v{FA[5]}, v[128:131]'); a(f'ds_write_b128 v{FA[5]}, v[132:135] offset:{PQ}')

a('L_final:')
def final_reads(r, b):
    d4, d11 = FA[3*r], FA[3*r+2]
    for p in range(5):
        reg = (d4, d4, d4, d4, d11)[p]; off = (0, P2W, 2*P2W, 3*P2W, 0)[p]
        a(f'ds_read_b128 v[{b+8*p}:{b+3+8*p}], v{reg} offset:{off}')
        a(f'ds_read_b128 v[{b+4+8*p}:{b+7+8*p}], v{reg} offset:{off+PQ}')
def final_sum(r, b, cnt):
    x = 96 + 8*r
    for p in range(5):
        a(f's_waitcnt lgkmcnt({min(15, cnt + 8 - 2*p)})')
        for d in range(0, 8, 2): a(f'v_pk_add_f32 v[{x+d}:{x+d+1}], v[{x+d}:{x+d+1}], v[{b+8*p+d}:{b+8*p+d+1}]')
    for d in range(4): a(f'v_cvt_pk_bf16_f32 v{b+d}, v{x+2*d}, v{x+2*d+1}')
    a(f'buffer_store_dwordx4 v[{b}:{b+3}], v{FA[3*r+1]}, s[16:19], 0 offen {OUTP}')
a('s_waitcnt lgkmcnt(0)')
a('s_barrier')
stamp(6)
if F8:
    final_reads(0, 128)
    a('s_cmp_ge_u32 s3, 2'); a('s_cbranch_scc1 L_fin8')
    final_reads(2, 168)
    final_sum(0, 128, 10)
    final_sum(2, 168, 0)
    a('s_branch L_fin2')
    a('L_fin8:')
    final_sum(0, 128, 0)
    a('s_branch L_fin2')
final_reads(0, 128)
final_reads(1, 168)
final_sum(0, 128, 10)
a('s_cmp_ge_u32 s3, 2'); a('s_cbranch_scc1 L_fin1')
final_reads(2, 208)
final_sum(1, 168, 10)
final_sum(2, 208, 0)
a('s_branch L_fin2')
a('L_fin1:')
final_sum(1, 168, 0)
a('L_fin2:')
if 'diag' in opts:
    a('s_cmp_lg_u32 s3, 0'); a('s_cbranch_scc1 L_diag')
    a('s_waitcnt vmcnt(0)')
    a('s_memrealtime s[94:95]'); a('s_waitcnt lgkmcnt(0)')
    if opts['diag'] == 'r': a('s_sub_u32 s66, s43, s80'); a('s_max_i32 s66, s66, 0'); a('s_min_u32 s66, s66, 5000'); a('s_lshl_b32 s66, s66, 4')
    elif opts['diag'] == 'b': a('s_sub_u32 s66, s82, s80'); a('s_max_i32 s66, s66, 0'); a('s_min_u32 s66, s66, 5000'); a('s_lshl_b32 s66, s66, 3')
    elif opts['diag'] == 'e': a('s_sub_u32 s66, s94, s80'); a('s_max_i32 s66, s66, 0'); a('s_min_u32 s66, s66, 5000'); a('s_lshl_b32 s66, s66, 2')
    else: a(f"s_sub_u32 s66, s{80 + 2*int(opts['diag'])}, s43"); a('s_max_i32 s66, s66, 0'); a('s_min_u32 s66, s66, 5000'); a('s_lshl_b32 s66, s66, 2')
    a('L_dsp:')
    a('s_memrealtime s[68:69]'); a('s_waitcnt lgkmcnt(0)'); a('s_sub_u32 s68, s68, s94'); a('s_cmp_lt_u32 s68, s66'); a('s_cbranch_scc1 L_dsp')
    a('s_endpgm')
    a('L_diag:')
if opt('dbgt', 0):
    a('s_cmp_lg_u32 s3, 0'); a('s_cbranch_scc1 L_dbgt')
    a('s_waitcnt vmcnt(0)')
    a('s_memrealtime s[94:95]'); a('s_waitcnt lgkmcnt(0)')
    a('s_mov_b64 exec, 1')
    for i, r in enumerate((80, 82, 84, 86, 88, 90, 92, 94)):
        a(f's_sub_u32 s66, s{r}, s43'); a('s_add_u32 s66, s66, 1000'); a('v_mov_b32 v4, s66'); a(f'v_mov_b32 v5, {4 + 4*i}')
        a('buffer_atomic_umax v4, v5, s[24:27], 0 offen sc1')
        a('s_nop 2')
    a('s_endpgm')
    a('L_dbgt:')
stamp(7)
if STAMPS:
    a('s_waitcnt vmcnt(0)')
    a('s_memrealtime s[96:97]')
    a('s_waitcnt lgkmcnt(0)')
    for i in range(8): a(f'v_mov_b32 v{16+i}, s{80+2*i}')
    a('v_mov_b32 v24, s96'); a('v_mov_b32 v25, s101')
    a('s_lshl_b32 s66, s2, 3'); a('s_add_u32 s66, s66, s3'); a('s_lshl_b32 s66, s66, 6'); a(f's_add_u32 s66, s66, {WS_TS}')
    a('v_mov_b32 v4, 0')
    a('s_mov_b64 exec, 1')
    a('buffer_store_dwordx4 v[16:19], v4, s[12:15], s66 offen')
    a('buffer_store_dwordx4 v[20:23], v4, s[12:15], s66 offen offset:16')
    a('buffer_store_dwordx2 v[24:25], v4, s[12:15], s66 offen offset:32')
a('s_endpgm')
emit_tails()
a('L_done:')
a.end(256, sgpr=102)
txt = a.text([])
txt = txt.replace('.amdgcn_target', f'; @launch grid=(256,1,1) block=(512,1,1) lds={LDS_BYTES}\n.amdgcn_target', 1)
open(sys.argv[1], 'w').write(txt)
if opt('ids', 0): print(wait_ids, spin_ids)
```

```python
import sys, math
from asmlib import *
opts = dict(o.split('=') for o in sys.argv[2:])
def opt(k, d): return type(d)(opts.get(k, d))
STAMPS = opt('stamps', 0)
F8 = opt('f8', 1)
RSP = opts.get('rsp', 'sc1').replace('+', ' ')
RSEQ = opts.get('rseq', '')
FRB = opt('frb', 7)
FRSEP = opt('frsep', 1)
NOCS = opt('nocs', 1)
FWL = opt('fwl', 0)
DF = opt('df', 1)
PFW = opts.get('pfw', '3,0').replace('-', '')
PFP = opts.get('pfp', '-').replace('-', '')
HALF = opt('half', 1)
EARLY = opt('early', 8 if HALF else -1)
NTM = [sum(1 << int(c) for c in m) for m in opts['ntm'].split(',')] if 'ntm' in opts else None
RP = opts.get('rp', '-').replace('+', ' ').replace('-', '')
WP_ = opts.get('wp', 'nt').replace('+', ' ').replace('-', '')
XP_ = opts.get('xp', '-').replace('+', ' ').replace('-', '')
TONE = opt('t1', 0)
HDLY = opt('hdly', 0)
OUTP = opts.get('outp', 'sc1').replace('+', ' ').replace('-', '')
SENT = 1
RDFT = opt('rdft', 0)
RSL = opt('rsleep', 4)
AUXV = opt('auxv', 0)
VGO = opt('vgo', 1)
VCHK = opt('vchk', 4)
XR = [32, 36, 28]
FA = [16, 17, 18, 19, 20, 21, 22, 23, 24]; VA0, VA4, VFL = 25, 26, 27
NONIT = 1
WMODE = opt('wmode', 0)
STRICT = opt('strict', 1)
ZFIX = opt('zfix', 1)
FLAGA = opt('flaga', 0)
FAKEW = opt('fakew', 0)
FAKEH = opt('fakeh', 0)
P2MAP = opt('p2map', 1)
P2ROT = opt('p2rot', 5)
SPINMAX = opt('spinmax', 1 << 16)
CODEPF = opt('codepf', 1)
LDW = opts.get('ldw', 'sc1').replace('+', ' ').replace('-', '')
LDH = opts.get('ldh', 'sc1').replace('+', ' ').replace('-', '')
STP = opts.get('stp', 'sc1').replace('+', ' ').replace('-', '')
S, D, F = 2048, 640, 1536
KNAME = 'parallel_sum__spectral_fnet__swiglu_ffn__prompt_kernel'
STG = 49152
WS_H = 0
WS_WDT = 0x600000
WS_V = 0x800000
WS_XP = 0xB00000
WS_WP = 0xB20000
WS_FW = 0xB30000
WS_FH = 0xB31000
WS_FV = 0xB34000
WS_TS = 0xC00000
WS_SIZE = 0x1000000
L_AUX = 3*STG
L_R = L_AUX
L_M = L_AUX + 512
L_CS = L_AUX + 1024
L_CNT = L_AUX + 2048
L_NON = L_CNT + 32
L_A0 = L_AUX + 2560
L_CH = L_AUX + 3072
L_WD = L_AUX + 4096
L_Z = 0
ZROW = 64; ZB = 96
VROW = 5248
P2W = 10240
P2STEP = [STG, STG + 5120, 2*STG, 2*STG + 5120, 0, 5120]
PT = [STG, STG + 4416, 2*STG + 128, 2*STG + 128 + 4416, 0]
ST = [40960, STG + 40960 + 64, 2*STG + 40960 + 128, 3*STG + 4096 + 192, 3*STG + 4096 + 192 + 4416 ]
PQ, PN, PE = 272, 1088, 4416
LDS_BYTES = 163840

a = Asm()
stamp_n = [0]
def stamp(i):
    if STAMPS:
        if not ((FAKEW or FAKEH) and i >= 5): a(f's_memrealtime s[{80+2*i}:{81+2*i}]')
TICKS = opt('ticks', 0)
def tick(reg, idx):
    if TICKS:
        a('s_memrealtime s[98:99]'); a('s_waitcnt lgkmcnt(0)')
        if isinstance(idx, tuple):
            a(f's_add_u32 m0, {idx[0]}, {idx[1]}'); a('s_nop 3'); a(f'v_writelane_b32 v{reg}, s98, m0')
        else:
            a(f'v_writelane_b32 v{reg}, s98, {idx}')
def tick_dump(reg, tmp):
    if TICKS:
        a('s_lshl_b32 s98, s2, 3'); a('s_add_u32 s98, s98, s3'); a('s_lshl_b32 s98, s98, 8'); a(f's_add_u32 s98, s98, {WS_TS + 0x100000}')
        a(f'v_lshlrev_b32 v{tmp}, 2, v0')
        a(f'buffer_store_dword v{reg}, v{tmp}, s[12:15], s98 offen')
def rbf(v):
    a(f'v_cvt_pk_bf16_f32 v{v}, v{v}, v{v}')
    a(f'v_lshlrev_b32 v{v}, 16, v{v}')
def srd_from(d, b, nbytes):
    srd(a, d, b, nbytes)
spin_ids = {}
def spin_begin(name):
    a(f's_mov_b32 s79, 0')
    a(f'{name}:')
def spin_end(name):
    a(f's_cbranch_scc1 {name}_ok')
    a('s_add_u32 s79, s79, 1')
    a(f's_cmp_ge_u32 s79, {SPINMAX}')
    if STAMPS: spin_ids[name] = 100 + len(spin_ids); a(f's_cselect_b32 s101, {spin_ids[name]}, s101')
    a(f's_cbranch_scc1 {name}_ok')
    a('s_sleep 2')
    a(f's_branch {name}')
    a(f'{name}_ok:')

def lds_arrive(off, v):
    a(f'v_mov_b32 v{v}, {L_CNT}'); a(f'v_mov_b32 v{v+1}, 1')
    a('s_waitcnt lgkmcnt(0)')
    a('s_mov_b64 exec, 1')
    a(f'ds_add_u32 v{v}, v{v+1} offset:{off}')
    a('s_mov_b64 exec, -1')
wait_ids = {}
def lds_wait(name, off, v, cnt=4):
    wait_ids[name] = len(wait_ids) + 1
    a(f'v_mov_b32 v{v}, {L_CNT}')
    a('s_mov_b32 s100, 0')
    a(f'{name}:')
    a(f'ds_read_b32 v{v+1}, v{v} offset:{off}')
    a('s_waitcnt lgkmcnt(0)')
    a(f'v_readfirstlane_b32 s78, v{v+1}')
    a(f's_cmp_lt_u32 s78, {cnt}')
    a(f's_cbranch_scc0 {name}_ok')
    a('s_add_u32 s100, s100, 1')
    a(f's_cmp_lt_u32 s100, {SPINMAX*8}')
    a('s_sleep 1')
    a(f's_cbranch_scc1 {name}')
    if STAMPS: a(f's_mov_b32 s101, {wait_ids[name]}')
    a(f'{name}_ok:')
a.begin(KNAME)
a('s_cmp_ge_u32 s2, 256')
a('s_cbranch_scc1 L_done')
stamp(0)
if STAMPS: a('s_mov_b32 s101, 0')
a('s_load_dwordx2 s[64:65], s[0:1], 0')
a('s_load_dwordx4 s[60:63], s[0:1], 24')
a('s_load_dwordx8 s[48:55], s[0:1], 48')
a('s_load_dwordx4 s[56:59], s[0:1], 80')
a('v_lshrrev_b32 v1, 6, v0')
a('v_and_b32 v0, 63, v0')
a('v_readfirstlane_b32 s3, v1')
a('s_and_b32 s40, s2, 7'); a('s_lshr_b32 s41, s2, 3')
a('s_and_b32 s31, s40, 1'); a('s_lshr_b32 s30, s40, 1')
a('s_and_b32 s32, s41, 7'); a('s_lshr_b32 s33, s41, 3')
a('s_lshl_b32 s28, s31, 3'); a('s_add_u32 s28, s28, s32')
a('s_mul_i32 s29, s30, 3'); a('s_add_u32 s29, s29, s33')
a('s_add_u32 s42, s30, 12')
a('s_cmp_eq_u32 s33, 3')
a('s_cselect_b32 s29, s42, s29')
a('s_cselect_b32 s35, 1, 0')
OFFA = opt('offa', 0)
assert DF or OFFA == 0
if OFFA == 0: a('s_mul_i32 s34, s30, 5'); a('s_add_u32 s34, s34, 1'); a('s_lshr_b32 s34, s34, 1')
elif OFFA == 1: a('s_min_u32 s34, s30, 1'); a('s_add_u32 s34, s34, s30')
elif OFFA == 2: a('s_mov_b32 s34, 0')
elif OFFA == 3: a('s_min_u32 s34, s30, 1'); a('s_add_u32 s34, s34, s30'); a('s_and_b32 s42, s30, 1'); a('s_mul_i32 s42, s42, 5'); a('s_add_u32 s34, s34, s42')
a('s_mul_i32 s42, s31, 5'); a('s_add_u32 s34, s34, s42')
a('s_cmp_ge_u32 s34, 10'); a('s_cselect_b32 s42, 10, 0'); a('s_sub_u32 s34, s34, s42')
if P2MAP == 0:
    a('s_lshl_b32 s42, s30, 3'); a('s_add_u32 s42, s42, s32')
    a('s_lshl_b32 s38, s31, 2'); a('s_add_u32 s38, s38, s33')
else:
    a('s_lshl_b32 s42, s40, 2'); a('s_add_u32 s42, s42, s33')
    a('s_mov_b32 s38, s32')
if EARLY < 0:
    a('s_mul_i32 s39, s32, 3'); a('s_lshr_b32 s39, s39, 1'); a('s_mul_i32 s66, s33, 3'); a('s_add_u32 s39, s39, s66')
    a('s_cmp_ge_u32 s39, 12'); a('s_cselect_b32 s66, 12, 0'); a('s_sub_u32 s39, s39, s66')
else:
    a('s_lshl_b32 s39, s33, 1'); a('s_add_u32 s39, s39, s32'); a('s_mul_i32 s39, s39, 3'); a('s_lshr_b32 s39, s39, 2')
    a('s_cmp_ge_u32 s39, 6'); a('s_cselect_b32 s66, 6, 0'); a('s_sub_u32 s39, s39, s66')
if not P2ROT: a('s_mov_b32 s39, 0')
if P2ROT == 2: a('s_mul_i32 s39, s32, 3'); a('s_lshr_b32 s39, s39, 1')
if P2ROT == 3: a('s_mul_i32 s39, s33, 3')
if P2ROT == 4: a('s_add_u32 s39, s32, s33'); a('s_and_b32 s39, s39, 1'); a('s_mul_i32 s39, s39, 6')
if P2ROT == 5: a('s_and_b32 s39, s2, 7'); a('s_mul_i32 s39, s39, 3'); a(f's_lshr_b32 s39, s39, {1 if EARLY < 0 else 2}')
a('s_lshr_b32 s36, s42, 1'); a('s_and_b32 s37, s42, 1')
WSOFF = opt('wsoff', 0)
WSRD = 's[12:15]'; HSRD = 's[12:15]'
def common_srds(loader=False):
    a('s_waitcnt lgkmcnt(0)')
    tick(7, 50)
    srd(a, 12, 58, WS_SIZE, WSOFF << 20)
    if not loader:
        srd_from(4, 64, S*D*2)
        srd_from(16, 54, S*D*2)
        srd_from(20, 52, F*D*2)
        srd_from(24, 56, 256)
a('s_cmp_lt_u32 s3, 4')
a('s_cbranch_scc1 L_compute')
a('s_sub_u32 s44, s3, 4')
a('s_cmp_eq_u32 s44, 3')
a('s_cbranch_scc1 L_aux')

W0 = 5
PT_ = [20, 21, 22, 23, 24, 25, 26, 27, 4, 5, 6, 7, 16, 17, 18, 19]
GT_ = [66, 67, 68, 69, 76, 77, 78, 79, 96, 97, 100, 101, 40, 41, 42, 43]
GT_ = [66, 67, 68, 69, 76, 77, 78, 79, 28, 29, 30, 31, 40, 41, 33, 43]
def emit_p0(dst, t):
    a(f's_min_u32 s{t}, s30, 1'); a(f's_add_u32 s{dst}, s30, s{t}'); a(f's_mul_i32 s{t}, s31, 3'); a(f's_add_u32 s{dst}, s{dst}, s{t}')
    a(f's_cmp_ge_u32 s{dst}, 5'); a(f's_cselect_b32 s{t}, 5, 0'); a(f's_sub_u32 s{dst}, s{dst}, s{t}')
H0 = opt('h0', 12)
def dma_loop(name, npieces):
    h = npieces * H0 // 16
    def pieces1(lo, hi, pol):
        for t in range(lo, hi):
            a(f's_add_u32 m0, s{PT_[t]}, s46'); a('s_nop 0')
            a(f'buffer_load_dwordx4 v{4 + (t & 1)}, s[8:11], s{GT_[t]} offen {pol} lds')
    def pieces(lo, hi):
        if not NTM: return pieces1(lo, hi, RP)
        L = a.label('L_pc')
        a('s_bitcmp1_b32 s50, s47'); a(f's_cbranch_scc1 {L}_n')
        pieces1(lo, hi, ''); a(f's_branch {L}_e')
        a(f'{L}_n:'); pieces1(lo, hi, 'nt'); a(f'{L}_e:')
    a('s_mov_b32 s46, 0'); a('s_mov_b32 s47, 0')
    a('v_add_u32 v4, s42, v4'); a('v_add_u32 v5, s42, v5')
    tick(7, 51)
    if opt('uni', 0):
        pieces(0, h)
        a(f'{name}_l:')
        pieces(h, npieces)
        a('s_cmp_eq_u32 s47, 9'); a('s_cbranch_scc1 L_p2last')
        a('s_add_u32 s45, s45, 1'); a('s_cmp_eq_u32 s45, 10'); a('s_cselect_b32 s45, 0, s45')
        a('s_cselect_b32 s42, s49, s48')
        a('v_add_u32 v4, s42, v4'); a('v_add_u32 v5, s42, v5')
        a(f's_add_u32 s46, s46, {STG}'); a(f's_cmp_eq_u32 s46, {3*STG}'); a('s_cselect_b32 s46, 0, s46')
        pieces(0, h)
        a(f's_waitcnt vmcnt({h})')
        tick(7, ('s47', 0))
        a('s_barrier')
        tick(7, ('s47', 16))
        a('s_add_u32 s47, s47, 1'); a(f's_branch {name}_l')
        return
    a(f'{name}_l:')
    pieces(0, h)
    a('s_cmp_lg_u32 s47, 1'); a(f's_cbranch_scc1 {name}_m')
    a(f's_waitcnt vmcnt({h})')
    tick(7, 0)
    a('s_barrier')
    tick(7, 16)
    a(f'{name}_m:')
    pieces(h, npieces)
    a('s_add_u32 s45, s45, 1'); a('s_cmp_eq_u32 s45, 10'); a('s_cselect_b32 s45, 0, s45')
    a('s_cselect_b32 s42, s49, s48')
    a('s_mov_b32 s70, s48'); a('s_mov_b32 s48, s51'); a('s_mov_b32 s51, s70')
    a('v_add_u32 v4, s42, v4'); a('v_add_u32 v5, s42, v5')
    a(f's_add_u32 s46, s46, {STG}'); a(f's_cmp_eq_u32 s46, {3*STG}'); a('s_cselect_b32 s46, 0, s46')
    tick(7, ('s47', 52))
    a('s_cmp_lt_u32 s47, 2'); a(f's_cbranch_scc1 {name}_nx')
    a(f's_waitcnt vmcnt({npieces})')
    tick(7, ('s47', -1))
    a('s_barrier')
    tick(7, ('s47', 15))
    a('s_cmp_eq_u32 s47, 9'); a('s_cbranch_scc1 L_p2last')
    a(f'{name}_nx:')
    a('s_add_u32 s47, s47, 1'); a(f's_branch {name}_l')

a('s_cmp_eq_u32 s44, 2')
a('s_cbranch_scc1 L_ldx')
a('s_cmp_eq_u32 s35, 1')
a('s_cbranch_scc1 L_ldc')
a('v_lshrrev_b32 v1, 4, v0')
a('v_and_b32 v2, 15, v0')
a('v_lshlrev_b32 v3, 1, v1')
a('v_xor_b32 v2, v2, v3')
a('v_lshlrev_b32 v2, 4, v2')
a(f'v_mul_u32_u24 v3, {F*2}, v1')
a('v_add_u32 v2, v2, v3')
a('s_lshl_b32 s70, s29, 8')
a('v_add_u32 v2, s70, v2')
a('s_and_b32 s70, s32, 1'); a('s_lshl_b32 s70, s70, 7')
a('v_xor_b32 v4, s70, v2')
a('v_xor_b32 v5, 128, v4')
a('s_lshl_b32 s70, s32, 11')
a('s_lshl_b32 s71, s44, 14')
for g in range(4):
    if g: a('s_add_u32 s70, s70, 2048'); a('s_and_b32 s70, s70, 0x3c00')
    a(f's_or_b32 s{PT_[4*g]}, s70, s71'); a(f's_mul_i32 s{GT_[4*g]}, s70, 12')
    a(f's_add_u32 s{PT_[4*g+2]}, s{PT_[4*g]}, 1024'); a(f's_add_u32 s{GT_[4*g+2]}, s{GT_[4*g]}, {4*F*2}')
    a('s_add_u32 s70, s70, 2048'); a('s_and_b32 s70, s70, 0x3c00')
    a(f's_or_b32 s{PT_[4*g+1]}, s70, s71'); a(f's_mul_i32 s{GT_[4*g+1]}, s70, 12')
    a(f's_add_u32 s{PT_[4*g+3]}, s{PT_[4*g+1]}, 1024'); a(f's_add_u32 s{GT_[4*g+3]}, s{GT_[4*g+1]}, {4*F*2}')
a('s_cmp_eq_u32 s44, 1')
a('s_waitcnt lgkmcnt(0)')
a('s_cselect_b32 s8, s50, s48'); a('s_cselect_b32 s9, s51, s49'); a(f's_mov_b32 s10, {D*F*2}'); a('s_mov_b32 s11, 0x00020000')
a(f's_mov_b32 s48, {64*F*2}'); a('s_mov_b32 s51, s48'); a('s_mov_b32 s45, s34'); a('s_mul_i32 s42, s34, s48'); a('s_mul_i32 s49, s48, -9')
if NTM: a(f's_mov_b32 s50, {NTM[0]}')
a('s_branch L_ld16')
a('L_ldx:')
if DF: emit_p0(71, 72)
a('v_lshrrev_b32 v1, 3, v0')
a('v_and_b32 v2, 7, v0')
a('v_lshrrev_b32 v3, 1, v1')
a('v_xor_b32 v2, v2, v3')
a('v_lshlrev_b32 v2, 4, v2')
a('v_lshrrev_b32 v3, 2, v1'); a('v_and_b32 v6, 3, v1'); a('v_lshl_add_u32 v3, v6, 2, v3')
XMAP = opt('xmap', 0)
if XMAP == 0:
    a('v_lshlrev_b32 v3, 7, v3'); a('v_add_u32 v3, s28, v3')
elif XMAP == 1:
    a('v_lshlrev_b32 v3, 7, v3'); a('s_lshl_b32 s70, s28, 3'); a('v_add_u32 v3, s70, v3')
else:
    a('v_lshlrev_b32 v3, 3, v3'); a('s_lshl_b32 s70, s28, 7'); a('v_add_u32 v3, s70, v3')
a(f'v_mul_u32_u24 v3, {D*2}, v3')
a('v_add_u32 v4, v2, v3')
a('v_xor_b32 v5, 64, v4'); a(f'v_add_u32 v5, {(256 if XMAP < 2 else 16)*D*2}, v5')
a('s_lshl_b32 s70, s33, 12')
for t in range(0, 16, 2):
    if t: a('s_add_u32 s70, s70, 2048'); a('s_and_b32 s70, s70, 0x3c00')
    a(f's_or_b32 s{PT_[t]}, s70, 0x8000'); a(f's_or_b32 s{PT_[t+1]}, s70, 0x8400')
    if XMAP == 0: a(f's_mul_i32 s{GT_[t]}, s70, {16*D*2//2048}')
    else: a(f's_mul_i32 s{GT_[t]}, s70, 5'); a(f's_lshr_b32 s{GT_[t]}, s{GT_[t]}, 3')
    a(f's_mov_b32 s{GT_[t+1]}, s{GT_[t]}')
a('s_waitcnt lgkmcnt(0)')
srd_from(8, 64, S*D*2)
a('s_movk_i32 s48, 128'); a('s_movk_i32 s51, 128'); a('s_mov_b32 s45, s34'); a('s_lshl_b32 s42, s34, 7'); a('s_movk_i32 s49, -1152')
if DF:
    a('s_cmp_eq_u32 s35, 0'); a('s_cbranch_scc1 L_ld16')
    a('s_movk_i32 s48, 640'); a('s_movk_i32 s51, -512'); a('s_lshl_b32 s45, s71, 1'); a('s_lshl_b32 s42, s71, 7')
if NTM: a(f's_mov_b32 s50, {NTM[1]}')
a('L_ld16:')
dma_loop('L_ldw', 16)
a('L_ldc:')
a('v_lshrrev_b32 v1, 3, v0')
a('v_and_b32 v2, 7, v0')
a('v_lshrrev_b32 v3, 1, v1')
a('v_xor_b32 v2, v2, v3')
a('v_lshlrev_b32 v2, 4, v2')
if DF:
    emit_p0(45, 72)
    a('s_lshr_b32 s70, s30, 1'); a('s_mul_i32 s70, s70, 160'); a('s_and_b32 s71, s30, 1'); a('s_add_u32 s70, s70, s71'); a('s_add_u32 s70, s70, 1')
    a('v_lshlrev_b32 v1, 1, v1')
else:
    a('s_mul_i32 s70, s30, 80'); a('s_add_u32 s70, s70, 1')
a('v_add_u32 v1, s70, v1')
a(f'v_mul_u32_u24 v3, {D*2}, v1')
a('v_add_u32 v2, v2, v3')
a('s_and_b32 s70, s32, 1'); a('s_lshl_b32 s70, s70, 6')
a('v_xor_b32 v4, s70, v2')
a('v_xor_b32 v5, 64, v4')
a('s_lshl_b32 s70, s32, 10')
a('s_lshl_b32 s71, s44, 14')
for t in range(10):
    if t: a('s_add_u32 s70, s70, 1024'); a('s_cmp_eq_u32 s70, 10240'); a('s_cselect_b32 s70, 0, s70')
    a(f's_or_b32 s{PT_[t]}, s70, s71'); a(f's_mul_i32 s{GT_[t]}, s70, {(16 if DF else 8)*D*2//1024}')
a('s_cmp_eq_u32 s44, 1')
a('s_waitcnt lgkmcnt(0)')
a('s_cselect_b32 s8, s62, s60'); a('s_cselect_b32 s9, s63, s61'); a(f's_mov_b32 s10, {D*D*2}'); a('s_mov_b32 s11, 0x00020000')
if not DF:
    a('s_movk_i32 s48, 128'); a('s_movk_i32 s51, 128'); a('s_mov_b32 s45, s34'); a('s_lshl_b32 s42, s34, 7'); a('s_movk_i32 s49, -1152')
    if NTM: a(f's_mov_b32 s50, {NTM[0]}')
    dma_loop('L_ldcl', 10)
else:
    a('s_lshl_b32 s42, s45, 7'); a('v_add_u32 v4, s42, v4'); a('v_add_u32 v5, s42, v5')
    a(f's_mov_b32 s46, {STG}'); a('s_mov_b32 s47, 1')
    a('L_ldcl:')
    for t in range(10):
        a(f's_add_u32 m0, s{PT_[t]}, s46'); a('s_nop 0')
        a(f'buffer_load_dwordx4 v{4 + (t & 1)}, s[8:11], s{GT_[t]} offen lds')
    a('s_add_u32 s45, s45, 1'); a('s_cmp_eq_u32 s45, 5'); a('s_cselect_b32 s45, 0, s45')
    a('s_movk_i32 s42, 128'); a('s_cselect_b32 s42, -512, s42')
    a('v_add_u32 v4, s42, v4'); a('v_add_u32 v5, s42, v5')
    a(f's_sub_u32 s46, s46, {STG}'); a(f's_cselect_b32 s46, {2*STG}, s46')
    a('s_barrier')
    a('s_cmp_eq_u32 s47, 9'); a('s_cbranch_scc1 L_p2last')
    a('s_waitcnt vmcnt(0)')
    a('s_barrier')
    a('s_add_u32 s47, s47, 2'); a('s_branch L_ldcl')

P2ACC = 176; P2W_R = 56; P2H = 8
def p2_setup():
    a('v_lshlrev_b32 v1, 4, v0')
    srd(a, 12, 58, WS_SIZE, WSOFF << 20)
    a('s_mul_i32 s70, s38, 48'); a('s_mul_i32 s71, s44, 12'); a('s_add_u32 s70, s70, s71')
    a(f's_mul_i32 s70, s70, 5120'); a(f's_add_u32 s70, s70, {WS_WDT}')
    a(f's_mul_i32 s73, s44, {P2W}')
def kidx(step):
    if EARLY < 0:
        a(f's_add_u32 s72, s39, {step}'); a('s_cmp_ge_u32 s72, 12'); a('s_cselect_b32 s71, 12, 0'); a('s_sub_u32 s72, s72, s71')
    else:
        a(f's_add_u32 s72, s39, {step % 6}'); a('s_cmp_ge_u32 s72, 6'); a('s_cselect_b32 s71, 6, 0'); a('s_sub_u32 s72, s72, s71')
        a('s_lshl_b32 s72, s72, 1')
        if (step >= 6) != bool(HALF): a('s_add_u32 s72, s72, 1')
def wdt_reg(step):
    kidx(step)
    a('s_mul_i32 s72, s72, 5120'); a('s_add_u32 s72, s72, s70')
    for ei in range(5):
        r = P2W_R + 20*step + 4*ei
        if ei == 4: a('s_add_u32 s72, s72, 4096')
        a(f'buffer_load_dwordx4 v[{r}:{r+3}], v1, {WSRD}, s72 offen offset:{(ei % 4)*1024} {LDW}')
def wdt_lds(step):
    kidx(step)
    a('s_mul_i32 s72, s72, 5120'); a('s_add_u32 s72, s72, s70')
    for ei in range(5):
        a(f's_add_u32 m0, s73, {P2STEP[step-6] + ei*1024}')
        if ei: a('s_add_u32 s72, s72, 1024')
        else: a('s_nop 0')
        a(f'buffer_load_dwordx4 v1, {WSRD}, s72 offen {LDW} lds')
WD = [[0, 1], [2, 3], [4, 5], []]
def read_nonce(v):
    a(f'v_mov_b32 v{v}, {L_NON}'); a(f'ds_read_b32 v{v}, v{v}'); a('s_waitcnt lgkmcnt(0)'); a(f'v_readfirstlane_b32 s43, v{v}')
def final_addr(tau_off, d4, d5, d11, t, a=a):
    v4, v5, v6, v7, v8, v9, v10 = d4, d5, t, t+1, t+2, t+3, t+4
    a('s_lshl_b32 s66, s3, 6'); a(f's_add_u32 s66, s66, {tau_off}')
    a(f'v_add_u32 v{v4}, s66, v0')
    a(f'v_mul_u32_u24 v{v5}, 6554, v{v4}'); a(f'v_lshrrev_b32 v{v5}, 16, v{v5}')
    a(f'v_mul_u32_u24 v{v6}, 10, v{v5}'); a(f'v_sub_u32 v{v6}, v{v4}, v{v6}')
    a(f'v_lshrrev_b32 v{v7}, 4, v{v5}'); a(f'v_and_b32 v{v5}, 15, v{v5}')
    a(f'v_lshrrev_b32 v{v9}, 1, v{v6}')
    a(f'v_mov_b32 v{v10}, {PT[0]}'); a(f'v_mov_b32 v{d11}, {ST[0]}')
    for e in range(1, 5):
        a(f'v_cmp_eq_u32 vcc, {e}, v{v9}'); a(f'v_mov_b32 v{t+5}, {PT[e]}'); a(f'v_mov_b32 v{t+6}, {ST[e]}')
        a(f'v_cndmask_b32 v{v10}, v{v10}, v{t+5}, vcc'); a(f'v_cndmask_b32 v{d11}, v{d11}, v{t+6}, vcc')
    a(f'v_and_b32 v{v8}, 1, v{v6}'); a(f'v_mul_u32_u24 v{v4}, {2*PQ}, v{v8}')
    a(f'v_mul_u32_u24 v{v8}, {PN}, v{v7}'); a(f'v_add_u32 v{v4}, v{v4}, v{v8}'); a(f'v_lshl_add_u32 v{v4}, v{v5}, 4, v{v4}')
    a(f'v_add_u32 v{d11}, v{d11}, v{v4}'); a(f'v_add_u32 v{v4}, v{v10}, v{v4}')
    a(f'v_lshrrev_b32 v{v8}, 2, v{v5}'); a(f'v_and_b32 v{v5}, 3, v{v5}'); a(f'v_lshl_add_u32 v{v5}, v{v5}, 2, v{v8}')
    a(f'v_lshlrev_b32 v{v5}, 3, v{v5}'); a(f'v_add_u32 v{v5}, v{v5}, v{v7}'); a(f'v_lshlrev_b32 v{v5}, 4, v{v5}')
    a('s_lshl_b32 s66, s37, 6'); a('s_add_u32 s66, s66, s36'); a(f'v_add_u32 v{v5}, s66, v{v5}')
    a(f'v_mul_u32_u24 v{v5}, {D*2}, v{v5}'); a(f'v_lshl_add_u32 v{v5}, v{v6}, 4, v{v5}'); a('s_mul_i32 s66, s38, 160'); a(f'v_add_u32 v{v5}, s66, v{v5}')

VB0, VB1 = 128, 144
def p2h_setup():
    a('s_cmp_ge_u32 s38, 4'); a('s_cselect_b32 s55, 1, 0')
    a('s_sub_u32 s67, 16, s36'); a('s_xor_b32 s68, s37, 1')
    a('s_cmp_eq_u32 s55, 1')
    a('s_cselect_b32 s67, s67, s36'); a('s_cselect_b32 s68, s68, s37')
    a('s_and_b32 s60, s67, 3'); a('s_lshl_b32 s60, s60, 7'); a(f's_add_u32 s60, s60, {WS_FV}')
    a('s_lshl_b32 s67, s67, 1'); a('s_add_u32 s67, s67, s68'); a(f's_mul_i32 s67, s67, {VROW}'); a(f's_add_u32 s56, s67, {WS_V}')
    a('s_lshl_b32 s57, s55, 9'); a('s_sub_u32 s57, 256, s57')
def fv_addr(v, t):
    if DF:
        a(f'v_lshrrev_b32 v{v}, 4, v0'); a(f'v_lshlrev_b32 v{v}, 9, v{v}'); a(f'v_and_b32 v{t}, 15, v0'); a(f'v_lshl_add_u32 v{v}, v{t}, 2, v{v}')
        return
    a('s_sub_u32 s66, 7, s38'); a('s_sub_u32 s67, s38, 1'); a('s_max_i32 s67, s67, 0')
    a('s_cmp_ge_u32 s38, 4'); a('s_cselect_b32 s67, s66, s67'); a('s_cselect_b32 s66, s66, s38')
    a(f'v_mov_b32 v{v}, s66'); a(f'v_mov_b32 v{t}, s67'); a(f'v_bfe_u32 v{t+1}, v0, 4, 1'); a(f'v_cmp_eq_u32 vcc, 0, v{t+1}'); a(f'v_and_b32 v{t+1}, 15, v0')
    a(f'v_cndmask_b32 v{v}, v{t}, v{v}, vcc'); a(f'v_lshlrev_b32 v{v}, 9, v{v}'); a(f'v_lshl_add_u32 v{v}, v{t+1}, 2, v{v}')
def pre_loop():
    for r in range(3):
        final_addr(256*r, FA[3*r], FA[3*r+1], FA[3*r+2], 40)
    a('s_cmp_ge_u32 s3, 2'); a('s_cselect_b32 s66, -1, 0'); a(f'v_or_b32 v{FA[7]}, s66, v{FA[7]}')
    fv_addr(VFL, 40)
    if DF:
        for dst, ei in ((VA0, 's3'), (VA4, '4')):
            a('s_mul_i32 s66, s38, 80'); a(f's_lshl_b32 s67, {ei}, 4'); a('s_add_u32 s66, s66, s67'); a('v_add_u32 v40, s66, v3')
            a('v_sub_u32 v41, 640, v40'); a('s_cmp_eq_u32 s55, 1'); a('s_cselect_b64 vcc, -1, 0'); a('s_nop 1')
            a('v_cndmask_b32 v40, v40, v41, vcc')
            a('v_and_b32 v41, 1, v40'); a('v_mul_u32_u24 v41, 160, v41'); a('v_add_u32 v42, 335, v40'); a('v_lshrrev_b32 v42, 1, v42'); a('v_sub_u32 v42, v42, v41')
            a('v_cmp_eq_u32 vcc, 0, v40'); a(f'v_mul_u32_u24 v43, {4*17*2*VROW}, v2'); a('s_nop 0')
            a('v_cndmask_b32 v42, v42, 7, vcc')
            a(f'v_lshl_add_u32 v{dst}, v42, 4, v43')
        return
    a('s_mul_i32 s66, s38, 80'); a('v_add_u32 v40, s66, v3')
    a('v_add_u32 v41, 7, v40'); a('v_sub_u32 v42, 647, v40')
    a('s_cmp_eq_u32 s55, 1'); a('s_cselect_b64 vcc, -1, 0')
    a(f'v_mul_u32_u24 v43, {4*17*2*VROW}, v2')
    a('v_cndmask_b32 v40, v41, v42, vcc')
    a('v_lshl_add_u32 v43, v40, 4, v43')
    a('s_mul_i32 s66, s3, s57'); a(f'v_add_u32 v{VA0}, s66, v43')
    a('s_lshl_b32 s66, s57, 2'); a(f'v_add_u32 v{VA4}, s66, v43')
def pre_epilogue():
    for r in range(3): a(f'buffer_load_dwordx4 v[{XR[r]}:{XR[r]+3}], v{FA[3*r+1]}, s[4:7], 0 offen {XP_}')
def v_loads():
    L = a.label('L_vl')
    a('s_mov_b32 s72, s56')
    for i in range(4):
        a(f'buffer_load_dwordx4 v[{VB0+4*i}:{VB0+3+4*i}], v{VA0}, s[12:15], s72 offen {LDH}')
        if i < 3: a(f's_add_u32 s72, s72, {17*2*VROW}')
    a('s_cmp_lg_u32 s3, 0'); a(f's_cbranch_scc1 {L}')
    a('s_mov_b32 s72, s56')
    for i in range(4):
        a(f'buffer_load_dwordx4 v[{VB1+4*i}:{VB1+3+4*i}], v{VA4}, s[12:15], s72 offen {LDH}')
        if i < 3: a(f's_add_u32 s72, s72, {17*2*VROW}')
    a(f'{L}:')

a('L_p2last:')
a('s_waitcnt vmcnt(0)')
lds_arrive(12, 2)
read_nonce(2)
p2_setup()
srd_from(16, 54, S*D*2)
if FWL: lds_wait('L_fwok', 44, 2, 1)
a('L_p2join:')
tick(7, 27)
NLATE = opt('nlate', 6)
WTOUCH = opt('wtouch', 0)
if WTOUCH:
    a('s_cmp_eq_u32 s35, 0'); a('s_cbranch_scc1 L_nwt')
    a('s_lshl_b32 s66, s32, 2'); a('s_add_u32 s66, s66, s44'); a('s_mul_i32 s66, s66, 23040')
    a('s_and_b32 s67, s38, 4'); a(f's_mul_i32 s67, s67, {48*5120}'); a('s_add_u32 s66, s66, s67'); a(f's_add_u32 s66, s66, {WS_WDT}')
    a('v_lshlrev_b32 v4, 7, v0')
    if WTOUCH == 2:
        for st in range(6): wdt_reg(st)
    for i in range(3):
        a(f'buffer_load_dword v8, v4, s[12:15], s66 offen {LDW}')
        if i < 2: a('s_add_u32 s66, s66, 8192')
    if WTOUCH == 2: a('s_branch L_p2d')
    a('L_nwt:')
for st in range(6): wdt_reg(st)
NLD = opt('nld', 2)
a('s_cmp_eq_u32 s35, 0')
a('s_cbranch_scc1 L_p2ffn')
if NLD < 6:
    for st in (6, 7): wdt_lds(st)
if NLD < 4:
    lds_wait('L_c8d', 16, 4)
    for st in (8, 9): wdt_lds(st)
a('s_branch L_p2d')
a('L_p2ffn:')
if NLATE < 6:
    for st in (6, 7): wdt_lds(st)
if NLATE < 4:
    lds_wait('L_c8', 16, 4)
    for st in (8, 9): wdt_lds(st)
if NLATE < 2:
    lds_wait('L_c9', 20, 4)
    for st in (10, 11): wdt_lds(st)
if AUXV:
    a('s_cmp_lg_u32 s44, 3'); a('s_cbranch_scc1 L_p2d')
    p2h_setup(); fv_addr(8, 9)
    a('s_mov_b32 s79, 0')
    a('L_av:')
    a('buffer_load_dword v9, v8, s[12:15], s60 offen sc1')
    a('s_waitcnt vmcnt(0)')
    a('v_cmp_ne_u32 vcc, s43, v9'); a('s_cmp_eq_u64 vcc, 0'); a('s_cbranch_scc1 L_av_ok')
    a('s_add_u32 s79, s79, 1'); a(f's_cmp_ge_u32 s79, {AUXV}'); a('s_cbranch_scc1 L_p2d')
    a('s_branch L_av')
    a('L_av_ok:')
    lds_arrive(28, 8)
a('L_p2d:')
tick(7, 28)
a(f'v_add_u32 v2, s73, v1')
a(f'v_add_u32 v3, {2*STG}, v2')
a('v_min_u32 v4, 5, v0'); a('v_lshrrev_b32 v5, 1, v4'); a('v_and_b32 v4, 1, v4'); a('v_lshlrev_b32 v4, 2, v4'); a('v_lshl_add_u32 v6, v5, 4, v4')
a('s_lshl_b32 s76, s36, 8'); a('s_mul_i32 s77, s44, 48'); a('s_add_u32 s76, s76, s77'); a('s_lshl_b32 s77, s37, 3'); a('s_add_u32 s76, s76, s77'); a(f's_add_u32 s76, s76, {WS_FH}')
a('s_lshl_b32 s74, s36, 3'); a('s_lshl_b32 s75, s37, 2'); a('s_add_u32 s74, s74, s75')
a('s_mul_i32 s74, s74, 48'); a('s_mul_i32 s75, s44, 12'); a('s_add_u32 s74, s74, s75'); a('s_lshl_b32 s74, s74, 10')
for i in range(80): a(f'v_mov_b32 v{P2ACC+i}, 0')
lds_wait('L_own', 0, 4, 5 if SENT else 4)
tick(7, 29)
stamp(2)
if TONE:
    a('s_cmp_eq_u32 s35, 0'); a('s_cbranch_scc1 L_p2f')
    for st in range(6, 12 - NLATE): wdt_lds(st)
    a('L_p2f:')
    for st in range(12 - NLATE, 12): wdt_lds(st)
    if HDLY: a(f's_sleep {HDLY}')

tick(7, 32)
def hsoff(step):
    kidx(step)
    a('s_lshl_b32 s72, s72, 10'); a(f's_add_u32 s72, s72, s74')
    if SENT: a(f's_mov_b32 s{66 + step % 4}, s72')
def hld(step, ni):
    r = P2H + 16*(step % 3) + 4*ni
    L = []
    if ni: L.append(f's_add_u32 s72, s72, {48*1024}')
    L.append(f'buffer_load_dwordx4 v[{r}:{r+3}], v1, {HSRD}, s72 offen {LDH}')
    return L
def hpoll(name, kp):
    spin_begin(name)
    a(f'buffer_load_dword v4, v6, s[12:15], s76 offen sc1')
    a('s_waitcnt vmcnt(0)')
    a(f'v_cmp_ne_u32 vcc, s43, v{4+kp}')
    a('s_cmp_eq_u64 vcc, 0')
    spin_end(name)
if not SENT: hpoll('L_pollh0', 0)
else: a('s_waitcnt vmcnt(0)'); a('s_mov_b32 s79, 0')
if VGO:
    a(f'v_mov_b32 v4, {L_CNT}'); a('v_mov_b32 v5, 1'); a('ds_write_b32 v4, v5 offset:40')
stamp(3)
tick(7, 33)
for st in range(3):
    hsoff(st)
    for ni in range(4):
        for ins in hld(st, ni): a(ins)
def pwrite(ni):
    return [f'ds_write_b128 v{2 if PT[ei] < 2*STG else 3}, v[{P2ACC+16*ei+4*ni}:{P2ACC+16*ei+4*ni+3}] offset:{PT[ei] + ni*PN - (0 if PT[ei] < 2*STG else 2*STG)}' for ei in range(5)]
for st in range(12):
    rem = min(2, 11 - st)
    RDD = opt('rdd', 2)
    if st == 6 - RDD: lds_wait('L_lw', 36, 4)
    if st < 9: hsoff(st + 3)
    if st == 11:
        a('v_and_b32 v2, 15, v0'); a('v_lshrrev_b32 v4, 4, v0')
        a(f'v_mul_u32_u24 v4, {PQ}, v4'); a('v_lshl_add_u32 v2, v2, 4, v4'); a('v_add_u32 v2, s73, v2'); a(f'v_add_u32 v3, {2*STG}, v2')
    a(f's_waitcnt vmcnt({4*rem})' + (' lgkmcnt(0)' if st >= 6 else ''))
    hb = P2H + 16*(st % 3)
    if SENT and not (HALF and st >= 6):
        a(f'L_hchk{st}:')
        a(f'v_max_u32 v4, v{hb}, v{hb+4}'); a(f'v_max3_u32 v4, v{hb+8}, v{hb+12}, v4')
        a('v_cmp_eq_u32 vcc, -1, v4'); a('s_cmp_lg_u64 vcc, 0')
        a(f's_cbranch_scc1 L_hretry{st}')
        a(f'L_hok{st}:')
    tick(7, 36 + st)
    w0 = P2W_R + 20*(st % 6)
    rd = []
    if 6 <= st + RDD <= 11:
        wr = P2W_R + 20*((st + RDD) % 6)
        for ei in range(5):
            o = P2STEP[st + RDD - 6] + ei*1024
            rd.append(f'ds_read_b128 v[{wr+4*ei}:{wr+4*ei+3}], v{2 if o < 2*STG else 3} offset:{o if o < 2*STG else o - 2*STG}')
    if F8 and st == 10:
        final_addr(0, 8, 9, 10, 11, rd.append)
    for ni in range(4):
        for ei in (range(5) if ni % 2 == 0 else range(4, -1, -1)):
            t = P2ACC + 16*ei + 4*ni
            h = hb + 4*ni
            a(f'v_mfma_f32_16x16x32_bf16 v[{t}:{t+3}], v[{w0+4*ei}:{w0+4*ei+3}], v[{h}:{h+3}], v[{t}:{t+3}]')
            for _ in range(3 if st == 10 else 1):
                if rd: a(rd.pop(0))
        if st < 9:
            for ins in hld(st + 3, ni): a(ins)
        if st == 11 and ni >= 2:
            for w in pwrite(ni - 2): a(w)
for w in pwrite(2): a(w)
a('s_nop 3')
for w in pwrite(3): a(w)
stamp(4)
tick(7, 48)
a('s_waitcnt lgkmcnt(0)')
a('s_barrier')
if F8:
    for p in range(5):
        reg = (8, 8, 8, 8, 10)[p]; off = (0, P2W, 2*P2W, 3*P2W, 0)[p]
        a(f'ds_read_b128 v[{56+8*p}:{59+8*p}], v{reg} offset:{off}')
        a(f'ds_read_b128 v[{60+8*p}:{63+8*p}], v{reg} offset:{off+PQ}')
    for p in range(1, 5):
        a(f's_waitcnt lgkmcnt({8 - 2*p})')
        for d in range(0, 8, 2): a(f'v_pk_add_f32 v[{56+d}:{57+d}], v[{56+d}:{57+d}], v[{56+8*p+d}:{57+8*p+d}]')
    for d in range(4): a(f'v_cvt_pk_bf16_f32 v{64+d}, v{56+2*d}, v{57+2*d}')
    a(f'buffer_store_dwordx4 v[64:67], v9, s[16:19], 0 offen {OUTP}')
tick_dump(7, 4)
a('s_branch L_fin2')
if SENT:
    for st in range(6 if HALF else 12):
        a(f'L_hretry{st}:')
        a('s_add_u32 s79, s79, 1'); a(f's_cmp_ge_u32 s79, {SPINMAX}')
        if STAMPS: a(f's_cselect_b32 s101, {60 + st}, s101')
        a(f's_cbranch_scc1 L_hok{st}')
        if RSL: a(f's_sleep {RSL}')
        a(f's_mov_b32 s77, s{66 + st % 4}')
        for ni in range(4):
            r = P2H + 16*(st % 3) + 4*ni
            if ni: a(f's_add_u32 s77, s77, {48*1024}')
            a(f'buffer_load_dwordx4 v[{r}:{r+3}], v1, {HSRD}, s77 offen {LDH}')
        a('s_waitcnt vmcnt(0)')
        a(f's_branch L_hchk{st}')

a('L_aux:')
if opt('aprio', 0): a(f"s_setprio {opt('aprio', 0)}")
common_srds()
AB = 248
a('v_mov_b32 v1, 0'); a(f'v_mov_b32 v3, {L_CNT}')
a('s_mov_b64 exec, 1')
a('s_cmp_lg_u32 s2, 0'); a('s_cbranch_scc1 L_aux_n0')
a('s_memrealtime s[66:67]'); a('s_waitcnt lgkmcnt(0)'); a('s_or_b32 s66, s66, 1'); a('v_mov_b32 v2, s66')
a('buffer_store_dword v2, v1, s[24:27], 0 offen sc1')
a('L_aux_n0:')
[a(f'ds_write_b32 v3, v1 offset:{4*i}') for i in range(14)]
a('s_mov_b64 exec, -1')
if CODEPF:
    a('s_getpc_b64 s[66:67]')
    a('L_pcref:')
    a(f's_sub_u32 s66, s66, L_pcref-{KNAME}'); a('s_subb_u32 s67, s67, 0')
    a('s_mul_i32 s68, s41, 9')
    a('v_add_u32 v4, s68, v0'); a('v_lshlrev_b32 v4, 7, v4')
    a(f'v_min_u32 v4, L_done-{KNAME}, v4')
    a('s_mov_b64 exec, 0x1ff')
    a(f'global_load_dword v{AB+7}, v4, s[66:67]')
    a('s_mov_b64 exec, -1')
if PFW:
    pf_first, pf_n0 = map(int, PFW.split(','))
    a('v_lshrrev_b32 v14, 4, v0'); a('s_mul_i32 s66, s30, 3'); a('v_add_u32 v14, s66, v14'); a('v_lshlrev_b32 v14, 8, v14')
    a('v_bfe_u32 v15, v0, 1, 3'); a('s_lshl_b32 s66, s32, 3'); a('v_add_u32 v15, s66, v15'); a(f'v_mul_u32_u24 v15, {F*2}, v15'); a('v_add_u32 v14, v14, v15')
    a('v_and_b32 v15, 1, v0'); a('v_lshl_add_u32 v14, v15, 7, v14')
    srd(a, 8, 48, D*F*2); srd(a, 52, 50, D*F*2)
    a(f's_add_u32 s64, s34, {pf_first}'); a(f's_mov_b32 s61, {pf_first}')
    PFC = opts.get('pfc', '1111111')
    a(f's_mov_b32 s60, {sum(int(c) << (4*i) for i, c in enumerate(PFC))}')
    def pfw():
        L = a.label('L_pf')
        a('s_and_b32 s62, s60, 15'); a('s_lshr_b32 s60, s60, 4')
        a(f'{L}_n:')
        a('s_cmp_eq_u32 s62, 0'); a(f's_cbranch_scc1 {L}')
        pfw1(L)
        a('s_sub_u32 s62, s62, 1'); a(f's_branch {L}_n')
        a(f'{L}:')
    def pfw0():
        L = a.label('L_pf')
        pfw1(L)
        a(f'{L}:')
    def pfw1(L):
        a('s_cmp_eq_u32 s35, 0'); a(f's_cbranch_scc1 {L}')
        a(f"s_cmp_ge_u32 s61, {opt('pfl', 6)}"); a(f's_cbranch_scc1 {L}')
        a('s_cmp_ge_u32 s64, 10'); a('s_cselect_b32 s66, 10, 0'); a('s_sub_u32 s64, s64, s66'); a(f's_mul_i32 s66, s64, {64*F*2}')
        a('s_mov_b32 exec_hi, 0xffff')
        a(f'buffer_load_dword v15, v14, s[8:11], s66 offen {PFP}'); a(f'buffer_load_dword v15, v14, s[52:55], s66 offen {PFP}')
        a('s_mov_b64 exec, -1')
        a('s_add_u32 s64, s64, 1'); a('s_add_u32 s61, s61, 1')
    for _ in range(pf_n0): pfw0()
else:
    def pfw(): pass
for i in range(48, 56): a(f'v_mov_b32 v{i}, 0')
a('v_lshrrev_b32 v4, 2, v0'); a('v_and_b32 v5, 3, v4'); a('v_bfe_u32 v6, v4, 3, 1'); a('v_lshl_or_b32 v5, v6, 2, v5'); a('v_lshlrev_b32 v5, 1, v5')
a('s_and_b32 s66, s32, 3'); a('s_lshl_b32 s66, s66, 2')
a('v_and_b32 v6, 3, v0'); a('v_add_u32 v6, s66, v6'); a('v_xor_b32 v5, v5, v6')
a('v_lshlrev_b32 v4, 8, v4'); a(f'v_lshl_add_u32 v{AB+1}, v5, 4, v4')
a('s_lshr_b32 s66, s32, 2'); a('s_lshl_b32 s66, s66, 14'); a(f'v_add_u32 v{AB+1}, s66, v{AB+1}')
a('s_cmp_eq_u32 s35, 0'); a('s_cbranch_scc1 L_aux_w')
a('s_and_b32 s67, s32, 3'); a(f's_mul_i32 s67, s67, {20*128}'); a('s_add_u32 s66, s66, s67')
a(f'v_lshlrev_b32 v{AB+1}, 4, v0'); a(f'v_add_u32 v{AB+1}, s66, v{AB+1}')
a('L_aux_w:')
a('s_mov_b32 s46, 0')
a('s_lshl_b32 s77, s29, 1'); a('s_add_u32 s77, s77, s31'); a('s_lshl_b32 s77, s77, 11'); a('s_lshr_b32 s67, s32, 2'); a('s_lshl_b32 s67, s67, 10'); a('s_add_u32 s77, s77, s67'); a(f's_add_u32 s77, s77, {WS_WP}')
a('s_and_b32 s67, s32, 3'); a('s_cmp_eq_u32 s35, 1'); a('s_cselect_b32 s68, 20, 32'); a('s_mul_i32 s67, s67, s68'); a('s_lshl_b32 s67, s67, 3'); a('s_add_u32 s77, s77, s67')
a(f'v_min_u32 v{AB+6}, 47, v0'); a(f'v_lshlrev_b32 v{AB+6}, 2, v{AB+6}')
a('s_mul_i32 s74, s38, 80'); a('s_add_u32 s75, s74, 79'); a('s_lshr_b32 s74, s74, 7'); a('s_lshr_b32 s75, s75, 7')
a('s_lshl_b32 s74, s74, 8'); a('s_lshl_b32 s75, s75, 8'); a(f's_add_u32 s74, s74, {WS_FW}'); a(f's_add_u32 s75, s75, {WS_FW}')
if SENT:
    for i in range(4): a(f'v_mov_b32 v{8+i}, -1')
    a('v_lshlrev_b32 v12, 4, v0')
    a(f's_mul_i32 s76, s28, {8*48*1024}')
    if RDFT: a('s_mul_i32 s67, s30, 12288')
    else: a('s_lshl_b32 s67, s29, 12')
    a('s_add_u32 s76, s76, s67')
a('s_mov_b32 s47, 0'); a('s_mov_b32 s42, 0')
a('s_waitcnt lgkmcnt(0)')
a('L_aux_l:')
tick(7, ('s47', 0))
a('s_barrier')
tick(7, ('s47', 16))
pfw()
a(f'v_add_u32 v{AB+3}, s46, v{AB+1}')
a('s_add_u32 s66, s47, s35') if opt('non2', 1) else a('s_add_u32 s66, s47, 1')
a(f's_cmp_lg_u32 s47, {NONIT-1}'); a('s_cbranch_scc1 L_aux_nb')
a('s_mov_b64 exec, 1'); a('buffer_load_dword v2, v1, s[24:27], 0 offen sc1'); a('s_mov_b64 exec, -1')
a('L_aux_nb:')
a(f's_cmp_lg_u32 s66, {NONIT+1}'); a('s_cbranch_scc1 L_aux_na')
a('s_mov_b32 s79, 0')
a('L_non:')
a('s_waitcnt vmcnt(0)')
a('v_readfirstlane_b32 s43, v2')
a('s_cmp_lg_u32 s43, 0'); a('s_cbranch_scc1 L_non_ok')
a('s_add_u32 s79, s79, 1'); a(f's_cmp_ge_u32 s79, {SPINMAX}'); (a('s_cselect_b32 s101, 51, s101') if STAMPS else None); a('s_cbranch_scc1 L_non_ok')
a('s_sleep 4')
a('s_mov_b64 exec, 1'); a('buffer_load_dword v2, v1, s[24:27], 0 offen sc1'); a('s_mov_b64 exec, -1')
a('s_branch L_non')
a('L_non_ok:')
a('v_mov_b32 v2, s43'); a(f'v_mov_b32 v3, {L_NON}'); a('ds_write_b32 v3, v2')
a('s_cmp_ge_u32 s2, 240'); a('s_cbranch_scc1 L_aux_na')
a(f's_mul_hi_u32 s66, s2, {-(-(1<<32)//5)}'); a('s_mul_i32 s67, s66, 5'); a('s_sub_u32 s67, s2, s67')
a('s_lshl_b32 s67, s67, 8'); a('s_lshl_b32 s66, s66, 2'); a('s_add_u32 s66, s66, s67'); a(f's_add_u32 s66, s66, {WS_FW}')
a('s_mov_b64 exec, 1'); a('buffer_store_dword v2, v1, s[12:15], s66 offen sc1'); a('s_mov_b64 exec, -1')
a('L_aux_na:')
def fw_ask():
    a(f'buffer_load_dword v{AB+2}, v{AB+6}, s[12:15], s74 offen sc1'); a(f'buffer_load_dword v{AB+3}, v{AB+6}, s[12:15], s75 offen sc1')
def fw_ask2():
    a(f'buffer_load_dword v62, v{AB+6}, s[12:15], s74 offen sc1'); a(f'buffer_load_dword v63, v{AB+6}, s[12:15], s75 offen sc1')
def fw_check(nm):
    a('s_mov_b32 s79, 0')
    a(f'{nm}:')
    a('s_waitcnt vmcnt(0)')
    a('v_cmp_ne_u32 vcc, s43, v62'); a('v_cmp_ne_u32 s[66:67], s43, v63'); a('s_or_b64 vcc, vcc, s[66:67]')
    a(f's_cbranch_scc0 {nm}_ok')
    a('s_add_u32 s79, s79, 1'); a(f's_cmp_ge_u32 s79, {SPINMAX}'); (a('s_cselect_b32 s101, 52, s101') if STAMPS else None); a(f's_cbranch_scc1 {nm}_ok')
    a('s_sleep 4')
    fw_ask2()
    a(f's_branch {nm}')
    a(f'{nm}_ok:')

T0, T1 = AB + 4, AB + 5
if SENT:
    RS0 = opt('rs0', 3)
    def resets(n):
        L = a.label('L_rs')
        a(f's_cmp_eq_u32 s35, {0 if RDFT else 1}'); a(f's_cbranch_scc1 {L}')
        if RDFT:
            for t in range(n // 12):
                for g in range(3):
                    for i in ((1, 3) if HALF else range(4)): a(f'buffer_store_dwordx4 v[8:11], v12, s[12:15], s76 offen offset:{i*1024} sc1')
                    a(f's_add_u32 s76, s76, {4096 if g < 2 else 48*1024 - 8192}')
        else:
            for i in range(n):
                if not (HALF and i % 2 == 0): a(f'buffer_store_dwordx4 v[8:11], v12, s[12:15], s76 offen offset:{(i % 4)*1024} {RSP}')
                if i % 4 == 3: a(f's_add_u32 s76, s76, {48*1024}')
        a(f'{L}:')
    if RSEQ:
        assert sum(map(int, RSEQ)) == 8
        a(f's_lshr_b32 s63, {sum(int(c) << (4*i) for i, c in enumerate(RSEQ[:5]))}, s42'); a('s_and_b32 s63, s63, 15'); a('s_add_u32 s42, s42, 4')
        a('L_aux_rr:')
        a('s_cmp_eq_u32 s63, 0'); a('s_cbranch_scc1 L_aux_nr')
        resets(12)
        a('s_sub_u32 s63, s63, 1'); a('s_branch L_aux_rr')
    else:
        a(f's_cmp_lt_u32 s47, {RS0}'); a('s_cbranch_scc1 L_aux_nr')
        resets(12 if RDFT else 8)
    a('L_aux_nr:')
a('s_cmp_eq_u32 s35, 1'); a('s_cbranch_scc1 L_aux_c')
for i in range(4): a(f'ds_read_b128 v[{24+4*i}:{27+4*i}], v{AB+3} offset:{i*4096}')
a('s_waitcnt lgkmcnt(0)')
for i in range(4):
    for d in range(4):
        r = 24 + 4*i + d
        a(f'v_lshlrev_b32 v{T0}, 16, v{r}'); a(f'v_and_b32 v{T1}, 0xffff0000, v{r}')
        a(f'v_add_f32 v{48+2*d}, v{48+2*d}, v{T0}'); a(f'v_add_f32 v{49+2*d}, v{49+2*d}, v{T1}')
a('s_branch L_aux_x')
a('L_aux_c:')
if NOCS: a('s_branch L_aux_x')
if DF: a('s_bitcmp1_b32 s47, 0'); a('s_cbranch_scc0 L_aux_x')
def csum():
    for i in range(3): a(f'ds_read_b128 v[{24+4*i}:{27+4*i}], v{AB+3} offset:{i*1024}')
    a('s_waitcnt lgkmcnt(0)')
    for i in range(3):
        for d in range(4):
            r = 24 + 4*i + d
            a(f'v_lshlrev_b32 v{T0}, 16, v{r}'); a(f'v_and_b32 v{T1}, 0xffff0000, v{r}')
            a(f'v_add_f32 v{48+2*i}, v{48+2*i}, v{T0}'); a(f'v_add_f32 v{49+2*i}, v{49+2*i}, v{T1}')
if not NOCS: csum()
a('L_aux_x:')
a(f's_add_u32 s46, s46, {STG}'); a(f's_cmp_eq_u32 s46, {3*STG}'); a('s_cselect_b32 s46, 0, s46')
a('s_add_u32 s47, s47, 1'); a('s_cmp_lt_u32 s47, 5'); a('s_cbranch_scc1 L_aux_l')
def fr_pub():
    a('s_lshl_b32 s66, s28, 8'); a('s_lshl_b32 s67, s29, 2'); a('s_add_u32 s66, s66, s67'); a(f's_add_u32 s66, s66, {WS_FH}')
    a('v_mov_b32 v4, s43'); a('v_mov_b32 v5, 0')
    a('s_waitcnt vmcnt(0)')
    a('s_mov_b64 exec, 1'); a('buffer_store_dword v4, v5, s[12:15], s66 offen sc1'); a('s_mov_b64 exec, -1')
tick(7, 5)
a('s_barrier')
tick(7, 21)
if FRB == 5: fr_pub()
pfw()
if RSEQ: resets(12*int(RSEQ[5]))
elif RDFT: resets(12*(RS0 + 3 - (RS0 + 3)//2))
elif RS0 >= 2: resets(12 if RS0 == 4 else 8)
p2_setup()
def red8(regs):
    for mod in ('quad_perm:[1,0,3,2]', 'quad_perm:[2,3,0,1]', 'row_half_mirror'):
        a('s_nop 1')
        for r in regs: a(f'v_add_f32_dpp v{r}, v{r}, v{r} {mod} row_mask:0xf bank_mask:0xf')
a('s_cmp_eq_u32 s35, 1'); a('s_cbranch_scc1 L_aux_pc')
for mod in ('row_ror:4', 'row_ror:8'):
    a('s_nop 1')
    for r in range(48, 56): a(f'v_add_f32_dpp v{r}, v{r}, v{r} {mod} row_mask:0xf bank_mask:0xf')
for sw in ('v_permlane16_swap_b32', 'v_permlane32_swap_b32'):
    for r in range(48, 56): a(f'v_mov_b32 v{r-24}, v{r}')
    a('s_nop 1')
    for r in range(48, 56): a(f'{sw} v{r}, v{r-24}')
    a('s_nop 1')
    for r in range(48, 56): a(f'v_add_f32 v{r}, v{r}, v{r-24}')
for d in range(4):
    a(f'v_cmp_eq_u32 vcc, {d}, v6') if d else a('v_lshrrev_b32 v6, 2, v0')
    if d == 0:
        a('v_mov_b32 v24, v48'); a('v_mov_b32 v26, v49')
    else:
        a('s_nop 1'); a(f'v_cndmask_b32 v24, v24, v{48+2*d}, vcc'); a(f'v_cndmask_b32 v26, v26, v{49+2*d}, vcc')
a('v_mov_b32 v25, s43'); a('v_mov_b32 v27, s43')
a('v_and_b32 v4, 3, v0'); a('v_lshlrev_b32 v4, 6, v4'); a('v_lshl_add_u32 v4, v6, 4, v4')
a('s_mov_b64 exec, 0xffff')
a('buffer_store_dwordx4 v[24:27], v4, s[12:15], s77 offen sc1')
a('s_branch L_aux_pub')
a('L_aux_pc:')
if NOCS: a('s_branch L_aux_pub')
if not NOCS:
    if DF:
        a('s_cmp_eq_u32 s31, 1'); a('s_cbranch_scc1 L_aux_c5')
        a(f'v_add_u32 v{AB+3}, s46, v{AB+1}')
        csum()
        a('L_aux_c5:')
        a('s_and_b32 s66, s30, 1'); a('s_lshl_b32 s66, s66, 30')
    for i in range(3):
        a(f'v_add_f32 v{48+i*2}, v{48+i*2}, v{49+i*2}')
        if DF: a(f'v_mul_f32 v{48+i*2}, s66, v{48+i*2}')
    red8([48, 50, 52])
    for i in range(3): a(f'v_mov_b32 v{49+i*2}, s43')
    a('s_mov_b32 exec_lo, 0x01010101'); a('s_mov_b32 exec_hi, 0x01010101')
    a('buffer_store_dwordx2 v[48:49], v0, s[12:15], s77 offen sc1')
    a('buffer_store_dwordx2 v[50:51], v0, s[12:15], s77 offen offset:64 sc1')
    a('s_mov_b32 exec_hi, 0')
    a('buffer_store_dwordx2 v[52:53], v0, s[12:15], s77 offen offset:128 sc1')
a('L_aux_pub:')
a('s_mov_b64 exec, -1')
a('s_lshl_b32 s48, s28, 13'); a(f's_add_u32 s48, s48, {WS_XP}'); a('s_add_u32 s50, s48, 4096')
a('s_lshl_b32 s49, s29, 12'); a(f's_add_u32 s49, s49, {WS_WP}')
def gather():
    for i in range(8): a(f'buffer_load_dwordx4 v[{8+4*i}:{11+4*i}], v1, s[12:15], s{48 if i < 4 else 50} offen offset:{(i%4)*1024} sc1')
    Lg = a.label('L_gw')
    if NOCS: a('s_cmp_eq_u32 s35, 1'); a(f's_cbranch_scc1 {Lg}')
    for i in range(4): a(f'buffer_load_dwordx4 v[{40+4*i}:{43+4*i}], v1, s[12:15], s49 offen offset:{i*1024} sc1')
    a(f'{Lg}:')
    a(f'buffer_load_dword v{AB+1}, v{AB}, s[12:15], s65 offen sc1')
    if FWL: fw_ask2()
a(f's_mov_b32 s65, {WS_FH}')
if RDFT:
    a(f'v_and_b32 v{AB}, 3, v0'); a(f'v_lshlrev_b32 v{AB}, 2, v{AB}'); a('s_lshl_b32 s69, s36, 8'); a('s_add_u32 s69, s69, 48'); a(f'v_add_u32 v{AB}, s69, v{AB}')
    a('s_lshl_b32 s69, s28, 8'); a('s_lshl_b32 s63, s30, 2'); a('s_add_u32 s69, s69, s63'); a('s_add_u32 s69, s69, 48'); a('v_mov_b32 v4, s69')
    a('v_cmp_gt_u32 vcc, 16, v0'); a('s_nop 1'); a(f'v_cndmask_b32 v{AB}, v4, v{AB}, vcc')
else:
    a(f'v_min_u32 v{AB}, 11, v0'); a(f'v_lshlrev_b32 v{AB}, 2, v{AB}'); a('s_lshl_b32 s69, s36, 8'); a(f'v_add_u32 v{AB}, s69, v{AB}')
GAT = opt('gat', 78)
tick(7, 6)
a('s_barrier')
tick(7, 22)
if FRB == 6: fr_pub()
pfw()
if RSEQ: resets(12*int(RSEQ[6]))
elif RDFT: resets(12*((RS0 + 3)//2))
elif RS0 >= 3: resets(12 if RS0 == 4 else 8)
if not FWL: fw_ask2()
if GAT == 68:
    a('s_cmp_eq_u32 s35, 0'); a('s_cbranch_scc1 L_g6'); gather(); a('L_g6:')
tick(7, 7)
a('s_barrier')
tick(7, 23)
if not FWL: fw_check('L_pollwf')
else: a('s_waitcnt vmcnt(0)')
if FRB == 7: fr_pub()
if GAT == 7: gather()
if GAT == 78:
    a('s_cmp_eq_u32 s35, 0'); a('s_cbranch_scc1 L_g7'); gather(); a('L_g7:')
a('s_cmp_eq_u32 s35, 1'); a(f's_cselect_b32 s69, {0 if NOCS else 40}, 64'); a('v_cmp_gt_u32 s[76:77], s69, v0')
if GAT == 68: a('s_cmp_eq_u32 s35, 1'); a('s_cbranch_scc1 L_g8x')
tick(7, 8)
a('s_barrier')
tick(7, 24)
if GAT in (8, 68): gather()
a('L_g8x:')
if GAT == 78:
    a('s_cmp_eq_u32 s35, 1'); a('s_cbranch_scc1 L_g8'); gather(); a('L_g8:')
a('s_mov_b32 s79, 0')
a('s_waitcnt vmcnt(0)')
a('L_gchk:')
a(f'v_xor_b32 v2, s43, v{AB+1}'); a('s_sub_u32 s64, s35, 1' if RDFT and not FRSEP else 's_mov_b32 s64, 0'); a('v_and_b32 v2, s64, v2')
for i in range(0, 8): a(f'v_xor_b32 v3, s43, v{10+4*i}'); a('v_or_b32 v2, v2, v3')
a('v_xor_b32 v4, s43, v41')
for r in (43, 45, 47, 49, 51, 53, 55): a(f'v_xor_b32 v3, s43, v{r}'); a('v_or_b32 v4, v4, v3')
if FWL: a('v_xor_b32 v3, s43, v62'); a('v_or_b32 v2, v2, v3'); a('v_xor_b32 v3, s43, v63'); a('v_or_b32 v2, v2, v3')
a('v_cmp_ne_u32 vcc, 0, v4'); a('s_and_b64 s[62:63], vcc, s[76:77]')
a('v_cmp_ne_u32 vcc, 0, v2'); a('s_or_b64 s[62:63], s[62:63], vcc')
a('s_cbranch_scc0 L_gok')
a('s_add_u32 s79, s79, 1'); a(f's_cmp_ge_u32 s79, {SPINMAX}'); (a('s_cselect_b32 s101, 50, s101') if STAMPS else None); a('s_cbranch_scc1 L_gok')
a('s_sleep 4')
gather()
a('s_waitcnt vmcnt(0)')
a('s_branch L_gchk')
a('L_gok:')
if FWL: lds_arrive(44, 2)
tick(7, 9)
for h in range(2):
    for d in range(2):
        b = 8 + 4*h + d
        a(f'v_add_f32 v{b}, v{b}, v{b+8}'); a(f'v_add_f32 v{b+16}, v{b+16}, v{b+24}'); a(f'v_add_f32 v{b}, v{b}, v{b+16}')
    a(f'v_add_f32 v{40+4*h}, v{40+4*h}, v{48+4*h}'); a(f'v_add_f32 v{41+4*h}, v{42+4*h}, v{50+4*h}')
a('v_lshlrev_b32 v2, 3, v0'); a(f'v_add_u32 v2, {L_CS}, v2')
a('ds_write_b64 v2, v[40:41]'); a('ds_write_b64 v2, v[44:45] offset:512')
for (s_, q_, ro, mo) in ((8, 9, 16, 18), (12, 13, 17, 19)):
    a(f'v_mul_f32 v{mo}, {1.0/D!r}, v{s_}')
    a(f'v_mul_f32 v{q_}, {1.0/D!r}, v{q_}')
    a(f'v_fma_f32 v{q_}, -v{mo}, v{mo}, v{q_}')
    a(f'v_max_f32 v{q_}, 0, v{q_}')
    rbf(mo); rbf(q_)
    a(f'v_add_f32 v{q_}, 0x3727c5ac, v{q_}')
    rbf(q_)
    a(f'v_sqrt_f32 v{q_}, v{q_}'); a('s_nop 0')
    rbf(q_)
    a(f'v_rcp_f32 v{ro}, v{q_}')
    a(f'v_fmac_f32 v{s_}, {-float(D)!r}, v{mo}')
    a(f'v_mul_f32 v{s_}, v{s_}, v{ro}')
a('v_lshlrev_b32 v2, 2, v0'); a(f'v_add_u32 v2, {L_R}, v2')
a(f'ds_write_b32 v2, v8 offset:{L_A0 - L_R}'); a(f'ds_write_b32 v2, v12 offset:{L_A0 - L_R + 256}')
a('ds_write_b32 v2, v16'); a('ds_write_b32 v2, v17 offset:256'); a('ds_write_b32 v2, v18 offset:512'); a('ds_write_b32 v2, v19 offset:768')
lds_arrive(24, 2)
tick(7, 10)
if GAT == 68:
    a('s_cmp_eq_u32 s35, 0'); a('s_cbranch_scc1 L_g8y')
    a('s_barrier')
    a('L_g8y:')
a(f'v_cmp_ne_u32 vcc, s43, v{AB+1}'); a('s_cmp_eq_u64 vcc, 0'); a('s_cbranch_scc1 L_pollr_ok')
spin_begin('L_pollr')
a(f'buffer_load_dword v{AB+1}, v{AB}, s[12:15], s65 offen sc1')
a('s_waitcnt vmcnt(0)')
a(f'v_cmp_ne_u32 vcc, s43, v{AB+1}'); a('s_cmp_eq_u64 vcc, 0')
spin_end('L_pollr')
lds_arrive(0, 2)
if RDFT and FRSEP: lds_arrive(48, 2)
if opt('aprio', 0): a('s_setprio 0')
a('s_branch L_p2join')

a('L_compute:')
common_srds()
a(f's_mov_b32 s50, {(-2*STG) & 0xffffffff}'); a(f's_mov_b32 s51, {STG}')
a('s_mov_b32 s46, 0'); a('s_mov_b32 s47, 0')
p2h_setup()
a('v_lshrrev_b32 v2, 4, v0')
a('v_and_b32 v3, 15, v0')
a('v_bfe_u32 v6, v0, 1, 3'); a('v_xor_b32 v6, v6, v2')
def wd_issue():
    Lw = a.label('L_nowd')
    a(f"s_cmp_ge_u32 s2, {0 if opt('nowd', 0) else 240}")
    a(f's_cbranch_scc1 {Lw}')
    a(f's_mul_hi_u32 s76, s2, {-(-(1<<32)//5)}'); a('s_mul_i32 s77, s76, 5'); a('s_sub_u32 s77, s2, s77')
    a('v_lshrrev_b32 v36, 2, v0'); a('v_and_b32 v37, 3, v0')
    a(f'v_mul_u32_u24 v38, {D*2}, v36'); a('v_lshl_add_u32 v38, v37, 4, v38')
    a(f's_mul_i32 s68, s76, {32*D*2}'); a('s_lshl_b32 s69, s77, 8'); a('s_add_u32 s68, s68, s69'); a('s_lshl_b32 s69, s3, 6'); a('s_add_u32 s68, s68, s69')
    a('s_lshl_b32 s70, s3, 11'); a(f's_add_u32 s70, s70, {L_WD}')
    a('s_mov_b32 m0, s70'); a('s_nop 0')
    a(f'buffer_load_dwordx4 v38, s[20:23], s68 offen {WP_} lds')
    a('s_add_u32 m0, s70, 1024'); a(f's_add_u32 s68, s68, {16*D*2}')
    a(f'buffer_load_dwordx4 v38, s[20:23], s68 offen {WP_} lds')
    a(f'{Lw}:')
WDL = opt('wdlate', 1)
if WDL == 0: wd_issue()
def wd_finish():
    if WDL == 2: wd_issue()
    L = a.label('L_wdf')
    a(f"s_cmp_ge_u32 s2, {0 if opt('nowd', 0) else 240}"); a(f's_cbranch_scc1 {L}')
    a('v_lshlrev_b32 v36, 6, v36'); a('v_lshl_add_u32 v36, v37, 3, v36'); a('v_add_u32 v36, s70, v36')
    a('v_lshlrev_b32 v37, 4, v0')
    a('s_lshl_b32 s77, s77, 3'); a('s_lshl_b32 s68, s3, 1'); a('s_add_u32 s77, s77, s68')
    a(f's_mul_i32 s76, s76, 5120'); a(f's_add_u32 s76, s76, {WS_WDT}')
    a('s_waitcnt vmcnt(0)')
    for e in range(2):
        for b in range(2):
            a(f'ds_read_b64_tr_b16 v[{48+4*e+2*b}:{49+4*e+2*b}], v36 offset:{32*e + 1024*b}')
    for e in range(2):
        a(f's_add_u32 s68, s77, {e}')
        a(f's_mul_hi_u32 s69, s68, {-(-(1<<32)//5)}')
        a('s_mul_i32 s70, s69, 5'); a('s_sub_u32 s70, s68, s70')
        a(f's_mul_i32 s69, s69, {48*5120}'); a('s_lshl_b32 s70, s70, 10')
        a('s_add_u32 s69, s69, s70'); a('s_add_u32 s69, s69, s76')
        a('s_waitcnt lgkmcnt(0)')
        a(f'buffer_store_dwordx4 v[{48+4*e}:{51+4*e}], v37, s[12:15], s69 offen sc1')
    a(f'{L}:')
pre_loop()
if WDL == 1: wd_issue()
a('s_cmp_eq_u32 s35, 1')
a('s_cbranch_scc1 L_dft')
def interleave(M, R):
    out = []; R = list(R)
    for m in M:
        out.append(m)
        if R: out.append(R.pop(0))
    return out + R
tails = []
def mid_sync(last):
    L = a.label('L_ms')
    a('s_cmp_ge_u32 s47, 8'); a(f's_cbranch_scc1 {L}_t')
    a('s_barrier')
    a(f'{L}_b:')
    tails.append((L, last))
CNTRD = 'ds_read2_b32 v[14:15], v6 offset0:3 offset1:6'
def emit_tails():
    for L, last in tails:
        a(f'{L}_t:')
        a('s_mov_b64 exec, 1')
        a('s_cmp_eq_u32 s47, 9'); a(f's_cbranch_scc1 {L}_9')
        a('ds_add_u32 v6, v5 offset:16')
        a('s_mov_b64 exec, -1')
        a('v_readfirstlane_b32 s78, v14')
        a('s_cmp_ge_u32 s78, 3'); a(f's_cbranch_scc1 {L}_b')
        lds_wait(f'{L}_w', 12, 14, 3)
        a(f's_branch {L}_b')
        a(f'{L}_9:')
        a('ds_add_u32 v6, v5 offset:20')
        a('s_mov_b64 exec, -1')
        a(f's_branch {last}')
    tails.clear()
def stats_wait(name):
    a('v_readfirstlane_b32 s78, v15')
    a('s_cmp_ge_u32 s78, 1'); a(f's_cbranch_scc1 {name}_ok')
    lds_wait(name, 24, 14, 1)
def slot_advance():
    a('s_add_u32 s46, s46, 1'); a('s_cmp_eq_u32 s46, 3'); a('s_cselect_b32 s42, s50, s51'); a('s_cselect_b32 s46, 0, s46')
ACC = 128
def T16(mat, mi, ni): return ACC + 64*mat + 16*mi + 4*ni
FR = 32
def fW(p, mat, mi): return FR + 48*p + 16*mat + 4*mi
def fX(p, ni): return FR + 48*p + 32 + 4*ni
AW, AX = 8, 12
a('s_and_b32 s44, s3, 1'); a('s_lshr_b32 s45, s3, 1')
SPF = opts.get('spf', '')
if SPF:
    a('s_load_dwordx4 s[80:83], s[0:1], 48') if STAMPS == 0 else a('s_load_dwordx4 s[72:75], s[0:1], 48')
    wb = 80 if STAMPS == 0 else 72
    a('s_waitcnt lgkmcnt(0)')
    a('s_cmp_ge_u32 s3, 2'); a('s_cbranch_scc1 L_spx')
    a('s_cmp_eq_u32 s3, 1'); a(f's_cselect_b32 s62, s{wb+2}, s{wb}'); a(f's_cselect_b32 s63, s{wb+3}, s{wb+1}')
    a(f's_mul_i32 s66, s32, {8*F*2}'); a('s_lshl_b32 s67, s29, 8'); a('s_add_u32 s66, s66, s67'); a('s_add_u32 s62, s62, s66'); a('s_addc_u32 s63, s63, 0')
    for dc in map(int, SPF.split(',')):
        a(f's_add_u32 s66, s34, {dc}'); a('s_cmp_ge_u32 s66, 10'); a('s_cselect_b32 s67, 10, 0'); a('s_sub_u32 s66, s66, s67'); a(f's_mul_i32 s66, s66, {64*F*2}')
        a('s_add_u32 s52, s62, s66'); a('s_addc_u32 s53, s63, 0')
        for i in range(16): a(f's_load_dword s54, s[52:53], {(i >> 1)*F*2 + (i & 1)*128}')
    a('s_branch L_spd')
    a('L_spx:')
    a('s_lshl_b32 s66, s33, 1'); a('s_add_u32 s66, s66, s44'); a('s_lshl_b32 s66, s66, 4'); a('s_add_u32 s66, s66, s28'); a(f's_mul_i32 s66, s66, {D*2}')
    a(f's_add_u32 s66, s66, {4*128*D*2}'); a('s_add_u32 s62, s64, s66'); a('s_addc_u32 s63, s65, 0')
    for dc in map(int, SPF.split(',')):
        a(f's_add_u32 s66, s34, {dc}'); a('s_cmp_ge_u32 s66, 10'); a('s_cselect_b32 s67, 10, 0'); a('s_sub_u32 s66, s66, s67'); a('s_lshl_b32 s66, s66, 7')
        a('s_add_u32 s52, s62, s66'); a('s_addc_u32 s53, s63, 0')
        for i in range(8): a(f's_load_dword s54, s[52:53], {(i-4)*128*D*2}')
        a(f's_add_u32 s52, s52, {8*128*D*2}'); a('s_addc_u32 s53, s53, 0')
        for i in range(8): a(f's_load_dword s54, s[52:53], {(i-4)*128*D*2}')
    a('L_spd:')
a('v_bfe_u32 v7, v0, 2, 2')
a('v_lshl_add_u32 v4, v2, 3, v7'); a('v_lshlrev_b32 v4, 8, v4')
a('v_bfe_u32 v5, v0, 1, 1'); a('v_lshl_add_u32 v4, v5, 4, v4')
a('v_and_b32 v5, 1, v0'); a('v_lshl_add_u32 v4, v5, 3, v4')
a('v_and_b32 v5, 1, v2'); a('v_lshl_or_b32 v5, v5, 2, v7')
for mi in range(4):
    a('s_lshl_b32 s66, s44, 2'); a(f's_add_u32 s66, s66, {mi}')
    a('v_xor_b32 v7, s66, v5')
    a(f'v_lshl_add_u32 v{AW+mi}, v7, 5, v4')
a('s_lshl_b32 s66, s45, 13'); a('s_add_u32 s66, s66, 32768')
a('v_lshlrev_b32 v5, 7, v3'); a('v_add_u32 v5, s66, v5')
for ks in range(2):
    a(f'v_xor_b32 v7, {4*ks}, v6')
    a(f'v_lshl_add_u32 v{AX+ks}, v7, 4, v5')
for i in range(128): a(f'v_mov_b32 v{ACC+i}, 0')
def f_reads(p, ks):
    L = []
    def w(mat, mi):
        for b in range(2):
            L.append(f'ds_read_b64_tr_b16 v[{fW(p,mat,mi)+2*b}:{fW(p,mat,mi)+2*b+1}], v{AW+mi} offset:{mat*16384 + ks*8192 + b*1024}')
    w(0, 0)
    for ni in range(4): L.append(f'ds_read_b128 v[{fX(p,ni)}:{fX(p,ni)+3}], v{AX+ks} offset:{ni*2048}')
    for mat in range(2):
        for mi in range(4):
            if (mat, mi) != (0, 0): w(mat, mi)
    return L
def f_mfmas(p):
    L = []
    for i, (mat, mi) in enumerate([(mat, mi) for mat in range(2) for mi in range(4)]):
        for ni in (range(4) if i % 2 == 0 else range(3, -1, -1)):
            t = T16(mat, mi, ni)
            L.append(f'v_mfma_f32_16x16x32_bf16 v[{t}:{t+3}], v[{fW(p,mat,mi)}:{fW(p,mat,mi)+3}], v[{fX(p,ni)}:{fX(p,ni)+3}], v[{t}:{t+3}]')
    return L
wd_finish()
a('v_mov_b32 v5, 1'); a(f'v_mov_b32 v6, {L_CNT}')
tick(7, 0)
a('s_barrier')
tick(7, 16)
stamp(1)
for r in f_reads(0, 0): a(r)
a('L_floop:')
a('s_waitcnt lgkmcnt(0)')
UPD = ['s_add_u32 s46, s46, 1', 's_cmp_eq_u32 s46, 3', 's_cselect_b32 s42, s50, s51', 's_cselect_b32 s46, 0, s46'] + [f'v_add_u32 v{r}, s42, v{r}' for r in (AW, AW+1, AW+2, AW+3, AX, AX+1)]
for ins in interleave(f_mfmas(0), f_reads(1, 1) + [CNTRD] + UPD): a(ins)
a('s_waitcnt vmcnt(0) lgkmcnt(0)')
tick(7, ('s47', 1))
mid_sync('L_flast')
tick(7, ('s47', 17))
for ins in interleave(f_mfmas(1), f_reads(0, 0) + ['s_add_u32 s47, s47, 1']): a(ins)
a('s_branch L_floop')
if opt('inl', 1): emit_tails()
a('L_flast:')
pre_epilogue()
stats_wait('L_fst')
tick(7, 40)
CSB = 48
P = []
P += ['s_lshl_b32 s66, s45, 8', f's_add_u32 s66, s66, {L_R}', 'v_lshlrev_b32 v4, 2, v3', 'v_add_u32 v4, s66, v4']
for ni in range(4):
    P += [f'ds_read_b32 v{40+ni}, v4 offset:{64*ni}', f'ds_read_b32 v{44+ni}, v4 offset:{512 + 64*ni}']
P += [f'v_mov_b32 v10, {L_CNT}', 'ds_read_b32 v8, v10 offset:32', 'ds_read_b32 v11, v10 offset:48']
P += ['s_lshl_b32 s66, s44, 8', f's_add_u32 s66, s66, {L_CS}', 'v_lshlrev_b32 v5, 4, v2', 'v_add_u32 v5, s66, v5']
for mat in range(2):
    for mi in range(4):
        r = CSB + 16*mat + 4*mi
        P.append(f'ds_read_b128 v[{r}:{r+3}], v5 offset:{mat*512 + mi*64}')
P += ['v_lshlrev_b32 v1, 4, v0', 'v_mov_b32 v9, 0']
P += ['s_lshl_b32 s66, s28, 3', 's_lshl_b32 s67, s45, 2', 's_add_u32 s66, s66, s67', 's_mul_i32 s66, s66, 48',
      's_lshl_b32 s67, s29, 2', 's_add_u32 s66, s66, s67', 's_lshl_b32 s67, s44, 1', 's_add_u32 s66, s66, s67', 's_lshl_b32 s66, s66, 10']
P += ['s_lshl_b32 s70, s28, 8', 's_lshl_b32 s71, s29, 4', 's_add_u32 s70, s70, s71', 's_lshl_b32 s71, s3, 2', 's_add_u32 s70, s70, s71', f's_add_u32 s70, s70, {WS_FH}']
M = f_mfmas(1)
for i, m in enumerate(M):
    a(m)
    for _ in range(2):
        if P: a(P.pop(0))
for x_ in P: a(x_)
stamp(2)
a('s_waitcnt lgkmcnt(0)')
a('v_readfirstlane_b32 s43, v8')
for ni in range(4):
    c = 80 + 6*ni
    a(f'v_sub_f32 v{c}, 0, v{44+ni}')
    a(f'v_mul_f32 v{c+2}, {-1.4426950408889634!r}, v{40+ni}')
    a(f'v_mul_f32 v{c+4}, v{40+ni}, v{40+ni}')
for ni in range(4): a(f'v_rcp_f32 v{84+6*ni}, v{84+6*ni}')
tick(7, 42)
BC = 'op_sel_hi:[1,0,1]'
for ni in range(1, 4): a(f's_add_u32 s{66+ni}, s{65+ni}, {48*1024}')
for kp in range(2):
    for ni in range(4):
        if kp == 1 and ni == VCHK - 1: a('ds_read_b32 v11, v10 offset:28')
        if kp == 1 and ni == VCHK:
            a('s_waitcnt lgkmcnt(0)'); a('v_readfirstlane_b32 s79, v11')
            a('s_cmp_lg_u32 s79, 1'); a('s_cbranch_scc1 L_fnov')
            v_loads()
            a('L_fnov:')
        c = 80 + 6*ni
        prs = [(2*kp + h, d) for h in range(2) for d in (0, 2)]
        G_ = [T16(0, mi, ni) + d for mi, d in prs]; U_ = [T16(1, mi, ni) + d for mi, d in prs]
        for n, (mi, d) in enumerate(prs): a(f'v_pk_fma_f32 v[{G_[n]}:{G_[n]+1}], v[{CSB+4*mi+d}:{CSB+1+4*mi+d}], v[{c}:{c+1}], v[{G_[n]}:{G_[n]+1}] {BC}')
        for n, (mi, d) in enumerate(prs): a(f'v_pk_fma_f32 v[{U_[n]}:{U_[n]+1}], v[{CSB+16+4*mi+d}:{CSB+17+4*mi+d}], v[{c}:{c+1}], v[{U_[n]}:{U_[n]+1}] {BC}')
        for n in range(4): a(f'v_pk_mul_f32 v[{104+2*n}:{105+2*n}], v[{G_[n]}:{G_[n]+1}], v[{c+2}:{c+3}] op_sel_hi:[1,0]')
        for n in range(4): a(f'v_pk_mul_f32 v[{G_[n]}:{G_[n]+1}], v[{G_[n]}:{G_[n]+1}], v[{U_[n]}:{U_[n]+1}]')
        for n in range(8): a(f'v_exp_f32 v{104+n}, v{104+n}')
        a('s_nop 0')
        for n in range(4): a(f'v_pk_fma_f32 v[{104+2*n}:{105+2*n}], v[{104+2*n}:{105+2*n}], v[{c+4}:{c+5}], v[{c+4}:{c+5}] op_sel_hi:[1,0,0]')
        for n in range(8): a(f'v_rcp_f32 v{104+n}, v{104+n}')
        a('s_nop 0')
        o = 112 + 4*ni
        for n in range(4): a(f'v_pk_mul_f32 v[{G_[n]}:{G_[n]+1}], v[{G_[n]}:{G_[n]+1}], v[{104+2*n}:{105+2*n}]')
        for n in range(4): a(f'v_cvt_pk_bf16_f32 v{o+n}, v{G_[n]}, v{G_[n]+1}')
        if RDFT and FRSEP and kp == 0 and ni == 0:
            a('v_readfirstlane_b32 s78, v11'); a('s_cmp_ge_u32 s78, 1'); a('s_cbranch_scc1 L_frw_ok')
            lds_wait('L_frw', 48, 14, 1)
        if HALF and kp == 1 and ni == 3: a('s_waitcnt vmcnt(3)')
        a(f'buffer_store_dwordx4 v[{o}:{o+3}], v1, s[12:15], s{66+ni} offen offset:{kp*1024} {STP}')
        if 4*kp + ni == EARLY:
            a('v_mov_b32 v12, 1'); a('s_mov_b64 exec, 1'); a('ds_add_u32 v10, v12'); a('s_mov_b64 exec, -1')
        tick(7, 43 + 4*kp + ni)
tick(7, 32)
stamp(3)
if TONE: lds_arrive(0, 4)
else: a('s_waitcnt vmcnt(0)')
if not SENT:
    a('s_mov_b64 exec, 1'); a('buffer_store_dword v8, v9, s[12:15], s70 offen sc1'); a('s_mov_b64 exec, -1')
if VCHK == 4:
    a('s_waitcnt lgkmcnt(0)'); a('v_readfirstlane_b32 s79, v11')
    a('s_cmp_lg_u32 s79, 1'); a('s_cbranch_scc1 L_fnov')
    v_loads()
    a('L_fnov:')
tick_dump(7, 4)
a('s_branch L_helper')

a('L_dft:')
DACC = 176
def TD(part, mi, et): return DACC + 40*part + 20*mi + 4*et
DFR = 40
def dX(p, mi): return DFR + 48*p + 4*mi
def dC(p, part, et): return DFR + 48*p + 8 + 20*part + 4*et
DX, DC = 8, 10
FCOS, FSIN, FNS = 136, 144, 152
a('v_lshlrev_b32 v5, 7, v3')
a('s_lshl_b32 s66, s3, 12'); a('s_add_u32 s66, s66, 32768')
for ks in range(2):
    a(f'v_xor_b32 v7, {4*ks}, v6')
    a(f'v_lshl_add_u32 v{DC+ks}, v7, 4, v5')
    a(f'v_add_u32 v{DX+ks}, s66, v{DC+ks}')
for i in range(80): a(f'v_mov_b32 v{DACC+i}, 0')
if DF:
    for i in list(range(104, 136)) + list(range(160, 176)): a(f'v_mov_b32 v{i}, 0')
if DF:
    a('s_cmp_eq_u32 s30, 0'); a('s_cselect_b32 s45, 4, 2')
    a('s_bitcmp1_b32 s30, 0'); a('s_cselect_b32 s53, 1.0, -1.0')
else:
    a('s_and_b32 s45, s30, 1'); a('s_sub_u32 s45, 3, s45')
a('v_lshrrev_b32 v12, 3, v3'); a('v_and_b32 v13, 7, v3'); a('v_lshlrev_b32 v13, 4, v13'); a('v_lshl_add_u32 v12, v12, 2, v13'); a('v_add_u32 v12, s3, v12')
a('v_lshlrev_b32 v13, 5, v2'); a('v_add_u32 v13, s28, v13'); a('v_cvt_f32_u32 v13, v13')
for mt in range(2):
    a(f'v_add_u32 v14, {8*mt}, v12'); a('v_cvt_f32_u32 v14, v14'); a(f'v_mul_f32 v14, {1.0/2048!r}, v14')
    for d in range(4):
        for h in range(2):
            a(f'v_add_f32 v{60+h}, {float(16*h + 128*d)!r}, v13')
            a(f'v_mul_f32 v{60+h}, v{60+h}, v14')
        a('v_cos_f32 v62, v60'); a('v_cos_f32 v63, v61'); a('v_sin_f32 v64, v60'); a('v_sin_f32 v65, v61')
        a(f'v_cvt_pk_bf16_f32 v{FCOS+4*mt+d}, v62, v63')
        a(f'v_cvt_pk_bf16_f32 v{FSIN+4*mt+d}, v64, v65')
        a(f'v_xor_b32 v{FNS+4*mt+d}, 0x80008000, v{FSIN+4*mt+d}')
def d_reads(p, ks):
    L = [f'ds_read_b128 v[{dX(p,mi)}:{dX(p,mi)+3}], v{DX+ks} offset:{mi*2048}' for mi in range(2)]
    for part in range(2):
        for et in range(5):
            L.append(f'ds_read_b128 v[{dC(p,part,et)}:{dC(p,part,et)+3}], v{DC+ks} offset:{part*16384 + et*2048}')
    return L
def d_mfmas(p):
    L = []
    i = 0
    for part in range(2):
        for et in range(5):
            for mi in ((0, 1) if i % 2 == 0 else (1, 0)):
                t = TD(part, mi, et)
                L.append(f'v_mfma_f32_16x16x32_bf16 v[{t}:{t+3}], v[{dX(p,mi)}:{dX(p,mi)+3}], v[{dC(p,part,et)}:{dC(p,part,et)+3}], v[{t}:{t+3}]')
            i += 1
    return L
wd_finish()
a('v_mov_b32 v5, 1'); a(f'v_mov_b32 v6, {L_CNT}')
for i in range(32, 36): a(f'v_mov_b32 v{i}, 0')
tick(7, 0)
a('s_barrier')
tick(7, 16)
stamp(1)
if DF:
    for ks in range(2):
        for mi in range(2): a(f'ds_read_b128 v[{40+8*ks+4*mi}:{43+8*ks+4*mi}], v{DX+ks} offset:{mi*2048}')
else:
    for r in d_reads(0, 0): a(r)
if not DF:
    def xstat(p):
        L = []
        for mi in range(2):
            for d in range(4):
                r = dX(p, mi) + d; t = 36 + 2*(d & 1)
                L += [f'v_lshlrev_b32 v{t}, 16, v{r}', f'v_and_b32 v{t+1}, 0xffff0000, v{r}',
                      f'v_add_f32 v{32+2*mi}, v{32+2*mi}, v{t}', f'v_fmac_f32 v{33+2*mi}, v{t}, v{t}',
                      f'v_add_f32 v{32+2*mi}, v{32+2*mi}, v{t+1}', f'v_fmac_f32 v{33+2*mi}, v{t+1}, v{t+1}']
        return L
    def interleave2(M, R, per):
        out = []; R = list(R)
        for m in M:
            out.append(m)
            for _ in range(per):
                if R: out.append(R.pop(0))
        return out + R
    def dloop(name, stats):
        a(f'{name}:')
        a('s_waitcnt lgkmcnt(0)')
        for ins in interleave2(d_mfmas(0), d_reads(1, 1) + (xstat(0) if stats else [CNTRD]), 3 if stats else 1): a(ins)
        a('s_waitcnt vmcnt(0) lgkmcnt(0)' if stats else 's_waitcnt lgkmcnt(0)')
        tick(7, ('s47', 1))
        if stats: a('s_barrier')
        else: mid_sync('L_dlast')
        tick(7, ('s47', 17))
        slot_advance()
        for r in (DX, DC): a(f'v_add_u32 v{r}, s42, v{r}')
        R = d_reads(0, 0) + [f'v_add_u32 v{r}, s42, v{r}' for r in (DX+1, DC+1)]
        for ins in interleave2(d_mfmas(1), R + (xstat(1) if stats else []), 3 if stats else 1): a(ins)
        a('s_add_u32 s47, s47, 1')
        if stats: a('s_cmp_lt_u32 s47, s45'); a(f's_cbranch_scc1 {name}')
        else: a(f's_branch {name}')
    dloop('L_dloopA', True)
else:
    def interleave2(M, R, per):
        out = []; R = list(R)
        for m in M:
            out.append(m)
            for _ in range(per):
                if R: out.append(R.pop(0))
        return out + R
    XA = [40, 48]; XB = [56, 104]
    CF = [[64 + 4*i for i in range(10)], [112 + 4*i for i in range(6)] + [160 + 4*i for i in range(4)]]
    def xa_reads(): return [f'ds_read_b128 v[{XA[ks]+4*mi}:{XA[ks]+4*mi+3}], v{DX+ks} offset:{mi*2048}' for ks in range(2) for mi in range(2)]
    def xb_reads(ks): return [f'ds_read_b128 v[{XB[ks]+4*mi}:{XB[ks]+4*mi+3}], v{DX+ks} offset:{mi*2048}' for mi in range(2)]
    def c_reads(ks): return [f'ds_read_b128 v[{CF[ks][5*part+et]}:{CF[ks][5*part+et]+3}], v{DC+ks} offset:{part*16384 + et*2048}' for part in range(2) for et in range(5)]
    def fold(ks, stats):
        L = []
        for mi in range(2):
            for d in range(4):
                ra = XA[ks] + 4*mi + d; rb = XB[ks] + 4*mi + d; sm, sq = 32 + 2*mi, 33 + 2*mi
                L += [f'v_lshlrev_b32 v36, 16, v{ra}', f'v_and_b32 v37, 0xffff0000, v{ra}', f'v_lshlrev_b32 v38, 16, v{rb}', f'v_and_b32 v39, 0xffff0000, v{rb}']
                if stats:
                    for t in (36, 37, 38, 39): L += [f'v_add_f32 v{sm}, v{sm}, v{t}', f'v_fmac_f32 v{sq}, v{t}, v{t}']
                L += [f'v_add_f32 v36, v{28+mi}, v36', f'v_add_f32 v37, v{28+mi}, v37']
                L += ['v_fmac_f32 v36, s53, v38', 'v_fmac_f32 v37, s53, v39', f'v_cvt_pk_bf16_f32 v{rb}, v36, v37']
        return L
    def f2_mfmas(ks):
        L = []
        for i in range(10):
            part, et = divmod(i, 5)
            for mi in ((0, 1) if i % 2 == 0 else (1, 0)):
                t = TD(part, mi, et); x = XB[ks] + 4*mi; c = CF[ks][i]
                L.append(f'v_mfma_f32_16x16x32_bf16 v[{t}:{t+3}], v[{x}:{x+3}], v[{c}:{c+3}], v[{t}:{t+3}]')
        return L
    DUPD = ['s_add_u32 s46, s46, 1', 's_cmp_eq_u32 s46, 3', 's_cselect_b32 s42, s50, s51', 's_cselect_b32 s46, 0, s46'] + [f'v_add_u32 v{r}, s42, v{r}' for r in (DX, DX+1, DC, DC+1)]
    def dloop3(name, stats):
        M1 = f2_mfmas(1); M0 = f2_mfmas(0)
        a(f'{name}:')
        for ins in interleave2(M1[:6], DUPD, 2): a(ins)
        a('s_waitcnt vmcnt(0) lgkmcnt(0)' if stats else 's_waitcnt lgkmcnt(0)')
        tick(7, ('s47', 1))
        if stats: a('s_barrier')
        else: mid_sync('L_dlast')
        tick(7, ('s47', 17))
        for ins in interleave2(M1[6:10], xb_reads(0) + c_reads(0) + ['s_add_u32 s47, s47, 1'], 3): a(ins)
        a('s_waitcnt lgkmcnt(10)')
        for ins in interleave2(M1[10:], fold(0, stats), 5): a(ins)
        a('s_waitcnt lgkmcnt(0)')
        a('s_nop 0')
        for ins in interleave2(M0[:7], xb_reads(1) + c_reads(1) + ([] if stats else [CNTRD]), 2): a(ins)
        a(f's_waitcnt lgkmcnt({10 if stats else 11})')
        for ins in interleave2(M0[7:], fold(1, stats) + DUPD, 5): a(ins)
        a('s_waitcnt lgkmcnt(0)')
        tick(7, ('s47', 1))
        if stats: a('s_barrier')
        else: mid_sync('L_dlast')
        tick(7, ('s47', 17))
        a('s_add_u32 s47, s47, 1')
        for ins in xa_reads() + ([] if stats else [CNTRD]): a(ins)
        if stats: a('s_cmp_lt_u32 s47, s45'); a(f's_cbranch_scc1 {name}')
        else: a(f's_branch {name}')
    def dloop2(name, stats):
        if opt('dp', 1): return dloop3(name, stats)
        a(f'{name}:')
        for ins in DUPD: a(ins)
        a('s_waitcnt vmcnt(0) lgkmcnt(0)' if stats else 's_waitcnt lgkmcnt(0)')
        tick(7, ('s47', 1))
        if stats: a('s_barrier')
        else: mid_sync('L_dlast')
        tick(7, ('s47', 17))
        a('s_add_u32 s47, s47, 1')
        for ins in xb_reads(0) + xb_reads(1) + c_reads(0): a(ins)
        a('s_waitcnt lgkmcnt(12)')
        for ins in fold(0, stats): a(ins)
        a('s_waitcnt lgkmcnt(0)')
        a('s_nop 0')
        for ins in interleave2(f2_mfmas(0), c_reads(1) + ([] if stats else [CNTRD]) + fold(1, stats) + DUPD, 3): a(ins)
        a('s_waitcnt lgkmcnt(0)')
        tick(7, ('s47', 1))
        if stats: a('s_barrier')
        else: mid_sync('L_dlast')
        tick(7, ('s47', 17))
        a('s_add_u32 s47, s47, 1')
        for ins in interleave2(f2_mfmas(1), xa_reads() + ([] if stats else [CNTRD]), 1): a(ins)
        if stats: a('s_cmp_lt_u32 s47, s45'); a(f's_cbranch_scc1 {name}')
        else: a(f's_branch {name}')
    a('s_waitcnt lgkmcnt(0)')
    for mi in range(2):
        for d in range(4):
            r = XA[0] + 4*mi + d
            a(f'v_lshlrev_b32 v36, 16, v{r}'); a(f'v_and_b32 v37, 0xffff0000, v{r}')
            if d == 0: a(f'v_add_f32 v{28+mi}, v36, v37')
            else: a(f'v_add_f32 v{28+mi}, v{28+mi}, v36'); a(f'v_add_f32 v{28+mi}, v{28+mi}, v37')
    for sw in ('v_permlane16_swap_b32', 'v_permlane32_swap_b32'):
        for mi in range(2): a(f'v_mov_b32 v{36+mi}, v{28+mi}')
        a('s_nop 1')
        for mi in range(2): a(f'{sw} v{28+mi}, v{36+mi}')
        a('s_nop 1')
        for mi in range(2): a(f'v_add_f32 v{28+mi}, v{28+mi}, v{36+mi}')
    a('s_bitcmp1_b32 s30, 0'); a(f's_cselect_b32 s66, 0x3d000000, 0')
    a('s_lshl_b32 s67, s3, 7'); a(f's_add_u32 s67, s67, {L_CH}'); a('v_lshlrev_b32 v38, 2, v3'); a('v_add_u32 v38, s67, v38')
    for mi in range(2):
        a(f'v_mul_f32 v{36+mi}, s66, v{28+mi}'); a(f'v_mul_f32 v{28+mi}, -2.0, v{36+mi}')
        if not NOCS: a(f'ds_write_b32 v38, v{36+mi} offset:{64*mi}')
    dloop2('L_dloopA', True)
a(f'v_mov_b32 v36, {L_NON}'); a('ds_read_b32 v14, v36')
for sw in ('v_permlane16_swap_b32', 'v_permlane32_swap_b32'):
    for r in range(32, 36): a(f'v_mov_b32 v{r+4}, v{r}')
    a('s_nop 1')
    for r in range(32, 36): a(f'{sw} v{r}, v{r+4}')
    a('s_nop 1')
    for r in range(32, 36): a(f'v_add_f32 v{r}, v{r}, v{r+4}')
a('s_lshl_b32 s66, s28, 2'); a('s_add_u32 s66, s66, s30'); a('s_lshl_b32 s66, s66, 11'); a('s_lshl_b32 s67, s3, 9'); a('s_add_u32 s66, s66, s67'); a(f's_add_u32 s66, s66, {WS_XP}')
a('v_cmp_gt_u32 vcc, 16, v0'); a('v_lshlrev_b32 v38, 4, v0')
a('s_waitcnt lgkmcnt(0)')
a('v_cndmask_b32 v12, v34, v32, vcc'); a('v_cndmask_b32 v13, v35, v33, vcc'); a('v_mov_b32 v15, v14')
a('v_readfirstlane_b32 s43, v14')
a('s_mov_b32 exec_hi, 0')
a('buffer_store_dwordx4 v[12:15], v38, s[12:15], s66 offen sc1')
a('s_mov_b64 exec, -1')
a('s_nop 0')
dloop2('L_dloopB', False) if DF else dloop('L_dloopB', False)
if opt('inl', 1): emit_tails()
a('L_dlast:')
pre_epilogue()
stats_wait('L_dst')
tick(7, 40)
DP = []
DP.append('s_lshl_b32 s66, s3, 7'); DP.append(f's_add_u32 s66, s66, {L_R}')
DP.append('v_lshlrev_b32 v4, 4, v2'); DP.append('v_add_u32 v4, s66, v4')
for mi in range(2):
    DP.append(f'ds_read_b128 v[{40+4*mi}:{43+4*mi}], v4 offset:{64*mi}')
    if not NOCS: DP.append(f'ds_read_b128 v[{48+4*mi}:{51+4*mi}], v4 offset:{512 + 64*mi}')
    DP.append(f'ds_read_b128 v[{76+4*mi}:{79+4*mi}], v4 offset:{L_A0 - L_R + 64*mi}')
    if DF and not NOCS: DP.append(f'ds_read_b128 v[{84+4*mi}:{87+4*mi}], v4 offset:{L_CH - L_R + 64*mi}')
DP.append('v_lshlrev_b32 v5, 2, v3'); DP.append(f'v_add_u32 v5, {L_CS}, v5')
for part in range(2):
    for et in range(0 if NOCS else 5): DP.append(f'ds_read_b32 v{56+2*(5*part+et)}, v5 offset:{part*512 + et*64}')
DP.append('v_bfe_u32 v9, v3, 1, 2'); DP.append('v_xor_b32 v8, s3, v9'); DP.append('v_lshlrev_b32 v8, 4, v8'); DP.append('v_lshl_add_u32 v8, v3, 6, v8'); DP.append('v_lshl_add_u32 v8, v2, 2, v8')
DP.append('ds_read_b32 v14, v6 offset:20')
for ins in interleave2(f2_mfmas(1) if DF else d_mfmas(1), DP, 2): a(ins)
stamp(2)
a('s_waitcnt lgkmcnt(0)')
a('v_readfirstlane_b32 s78, v14')
a('s_cmp_ge_u32 s78, 4'); a('s_cbranch_scc1 L_dc9_ok')
lds_wait('L_dc9', 20, 14)
tick(7, 41)
if DF and not NOCS:
    for i in range(8): a(f'v_sub_f32 v{48+i}, v{48+i}, v{84+i}')
a('s_cmp_lg_u32 s30, 0'); a('s_cbranch_scc1 L_z0')
for mi in range(2):
    t = 76 + 4*mi; y = 84 + 4*mi
    a(f'v_pk_add_f32 v[{y}:{y+1}], v[{t}:{t+1}], v[{t+2}:{t+3}]')
    a(f'v_pk_add_f32 v[{y+2}:{y+3}], v[{t}:{t+1}], v[{t+2}:{t+3}] neg_lo:[0,1] neg_hi:[0,1]')
    a(f'v_add_f32 v{92+mi}, v{y}, v{y+1}'); a(f'v_sub_f32 v{94+mi}, v{y}, v{y+1}')
a('v_cvt_pk_bf16_f32 v96, v92, v93'); a('v_mov_b32 v97, 0')
a('v_cvt_pk_bf16_f32 v98, v86, v90'); a('v_cvt_pk_bf16_f32 v101, v87, v91'); a('v_xor_b32 v99, 0x80008000, v101')
a('v_cvt_pk_bf16_f32 v100, v94, v95')
for cpart, r in enumerate((96, 97, 98, 99, 100, 97, 98, 101)):
    a(f'ds_write_b32 v8, v{r} offset:{L_Z + (cpart*ZB + 80)*ZROW}')
a('L_z0:')
for et in range(5):
    for mi in range(2):
        for part in range(2):
            t = TD(part, mi, et); c = 56 + 2*(5*part + et)
            for d in (() if NOCS else (0, 2)):
                a(f'v_pk_fma_f32 v[{t+d}:{t+d+1}], v[{48+4*mi+d}:{49+4*mi+d}], v[{c}:{c+1}], v[{t+d}:{t+d+1}] op_sel_hi:[1,0,1] neg_lo:[1,0,0] neg_hi:[1,0,0]')
            for d in (0, 2):
                a(f'v_pk_mul_f32 v[{t+d}:{t+d+1}], v[{t+d}:{t+d+1}], v[{40+4*mi+d}:{41+4*mi+d}]')
        y = 80 + 16*mi
        for part in range(2):
            t = TD(part, mi, et)
            a(f'v_pk_add_f32 v[{y+4*part}:{y+4*part+1}], v[{t}:{t+1}], v[{t+2}:{t+3}]')
            a(f'v_pk_add_f32 v[{y+4*part+2}:{y+4*part+3}], v[{t}:{t+1}], v[{t+2}:{t+3}] neg_lo:[0,1] neg_hi:[0,1]')
        pa, qa, ra, sa, pb, qb, rb, sb = range(y, y+8); o = y + 8
        a(f'v_add_f32 v{o}, v{pa}, v{qa}'); a(f'v_add_f32 v{o+1}, v{pb}, v{qb}')
        a(f'v_add_f32 v{o+2}, v{ra}, v{sb}'); a(f'v_sub_f32 v{o+3}, v{rb}, v{sa}')
        a(f'v_sub_f32 v{o+4}, v{pa}, v{qa}'); a(f'v_sub_f32 v{o+5}, v{pb}, v{qb}')
        a(f'v_sub_f32 v{o+6}, v{ra}, v{sb}'); a(f'v_add_f32 v{o+7}, v{rb}, v{sa}')
    for cpart in range(8):
        a(f'v_cvt_pk_bf16_f32 v{112+cpart}, v{88+cpart}, v{104+cpart}')
    for cpart in range(8):
        a(f'ds_write_b32 v8, v{112+cpart} offset:{L_Z + (cpart*ZB + 16*et)*ZROW}')
tick(7, 42)
VADDR = []
VADDR += ['v_lshrrev_b32 v12, 1, v2', f'v_mul_u32_u24 v12, {8*VROW}, v12', 'v_and_b32 v13, 1, v2', f'v_mul_u32_u24 v11, {VROW}, v13', 'v_add_u32 v12, v12, v11', 'v_lshl_add_u32 v12, v3, 4, v12']
VADDR += ['s_mul_i32 s66, s28, 17', 's_add_u32 s67, s66, s3', f's_mul_i32 s67, s67, {2*VROW}', *(['s_and_b32 s68, s30, 1', 's_lshl_b32 s68, s68, 1', 's_lshr_b32 s69, s30, 1', 's_add_u32 s68, s68, s69', 's_mul_i32 s68, s68, 1280'] if DF else ['s_mul_i32 s68, s30, 1280']), f's_add_u32 s68, s68, {WS_V + 128}', 's_add_u32 s67, s67, s68', 's_sub_u32 s69, s67, 16']
VADDR += ['s_add_u32 s66, s66, 16', f's_mul_i32 s66, s66, {2*VROW}', 's_add_u32 s66, s66, s68', f's_add_u32 s70, s67, {16*VROW}']
a('v_mov_b32 v10, 1')
a('s_waitcnt lgkmcnt(0)')
a('s_mov_b64 exec, 1'); a('ds_add_u32 v6, v10 offset:4'); a('s_mov_b64 exec, -1')
a('v_bfe_u32 v8, v3, 1, 2'); a('v_xor_b32 v8, v8, v2'); a('v_lshlrev_b32 v8, 4, v8'); a('v_lshl_add_u32 v8, v3, 6, v8'); a(f's_mul_i32 s66, s3, {2*ZB*ZROW}'); a('v_add_u32 v8, s66, v8')
for ins in VADDR: a(ins)
lds_wait('L_zw', 4, 14)
tick(7, 43)
for part in range(2):
    for et in range(5):
        r = 40 + 20*part + 4*et
        a(f'ds_read_b128 v[{r}:{r+3}], v8 offset:{L_Z + (part*ZB + 16*et)*ZROW}')
for part in range(2): a(f'ds_read_b128 v[{120+4*part}:{123+4*part}], v8 offset:{L_Z + (part*ZB + 80)*ZROW}')
a('s_waitcnt lgkmcnt(0)')
a('s_mov_b64 exec, 1'); a('ds_add_u32 v6, v10 offset:8'); a('s_mov_b64 exec, -1')
a('v_mov_b32 v8, v12'); a('v_mov_b32 v10, v11')
tick(7, 44)
def VR(mt, et): return DACC + 20*mt + 4*et
def VI(mt, et): return DACC + 40 + 20*mt + 4*et
def vpack(et):
    L = []
    for mt in range(2):
        o = 80 + 20*mt + 4*et
        for i in range(4): L.append(f'v_cvt_pk_bf16_f32 v{o+i}, v{VR(mt,et)+i}, v{VI(mt,et)+i}')
        L.append(f'buffer_store_dwordx4 v[{o}:{o+3}], v8, s[12:15], s{67 + 3*mt} offen offset:{256*et} {STP}')
    return L
def vm(vr, vi, ya, yb):
    L = []
    for mt in range(2):
        L.append(f'v_mfma_f32_16x16x32_bf16 v[{vr(mt)}:{vr(mt)+3}], v[{FCOS+4*mt}:{FCOS+4*mt+3}], v[{ya}:{ya+3}], 0')
        L.append(f'v_mfma_f32_16x16x32_bf16 v[{vi(mt)}:{vi(mt)+3}], v[{FNS+4*mt}:{FNS+4*mt+3}], v[{ya}:{ya+3}], 0')
    for mt in range(2):
        L.append(f'v_mfma_f32_16x16x32_bf16 v[{vr(mt)}:{vr(mt)+3}], v[{FSIN+4*mt}:{FSIN+4*mt+3}], v[{yb}:{yb+3}], v[{vr(mt)}:{vr(mt)+3}]')
        L.append(f'v_mfma_f32_16x16x32_bf16 v[{vi(mt)}:{vi(mt)+3}], v[{FCOS+4*mt}:{FCOS+4*mt+3}], v[{yb}:{yb+3}], v[{vi(mt)}:{vi(mt)+3}]')
    return L
for et in range(5):
    M = vm(lambda mt: VR(mt, et), lambda mt: VI(mt, et), 40 + 4*et, 60 + 4*et)
    for ins in interleave2(M, vpack(et - 2) if et >= 2 else [], 2): a(ins)
a('s_cmp_lg_u32 s30, 0'); a('s_cbranch_scc1 L_v0a')
for ins in vm(lambda mt: 160 + 4*mt, lambda mt: 168 + 4*mt, 120, 124): a(ins)
a('L_v0a:')
tick(7, 45)
for ins in vpack(3): a(ins)
for ins in vpack(4): a(ins)
a('s_cmp_lg_u32 s30, 0'); a('s_cbranch_scc1 L_v0b')
for mt in range(2):
    for i in range(4): a(f'v_cvt_pk_bf16_f32 v{120+4*mt+i}, v{160+4*mt+i}, v{168+4*mt+i}')
a('s_mov_b32 exec_lo, 0x00010001'); a('s_mov_b32 exec_hi, 0x00010001')
a(f'buffer_store_dwordx4 v[120:123], v8, s[12:15], s69 offen {STP}')
a(f's_add_u32 s69, s69, {16*VROW}')
a(f'buffer_store_dwordx4 v[124:127], v8, s[12:15], s69 offen {STP}')
a('s_mov_b64 exec, -1')
a('L_v0b:')
tick(7, 46)
a('s_cmp_lg_u32 s3, 0')
a('s_cbranch_scc1 L_signal')
a('v_cvt_f32_u32 v62, s28'); a('v_mul_f32 v62, 0.0625, v62'); a('v_cos_f32 v63, v62'); a('v_sin_f32 v64, v62')
a('v_cmp_gt_u32 vcc, 16, v0')
a('v_lshlrev_b32 v11, 4, v3'); a('v_add_u32 v9, v10, v11')
for et in range(5):
    o = 80 + 4*et; vr = VR(0, et); vi = VI(0, et); n = 40 + 4*et
    a(f'v_mul_f32 v65, v63, v{vr}'); a(f'v_fmac_f32 v65, v64, v{vi}')
    a(f'v_mul_f32 v66, v63, v{vi}'); a(f'v_fma_f32 v66, -v64, v{vr}, v66')
    a(f'v_cvt_pk_bf16_f32 v65, v65, v66')
    a(f'v_cndmask_b32 v65, v{o}, v65, vcc')
    a(f'v_mov_b32 v{n}, v{o+1}')
    a(f'v_mov_b32 v66, v65')
    a(f'v_mov_b32 v{n+1}, v{o+2}'); a(f'v_mov_b32 v{n+2}, v{o+3}')
    a(f'v_permlane16_swap_b32 v65, v66')
    a('s_nop 1')
    a(f'v_cndmask_b32 v{n+3}, v65, v66, vcc')
a('s_mov_b32 exec_hi, 0')
for et in range(5):
    a(f'buffer_store_dwordx4 v[{40+4*et}:{43+4*et}], v9, s[12:15], s66 offen offset:{256*et} {STP}')
a('s_mov_b64 exec, -1')

a('L_signal:')
a('s_mov_b32 s79, 0')
tick(7, 32)
stamp(3)
a('s_lshl_b32 s66, s30, 2'); a('s_add_u32 s66, s66, s3'); a('s_lshl_b32 s66, s66, 7'); a('s_lshl_b32 s67, s28, 2'); a('s_add_u32 s66, s66, s67'); a(f's_add_u32 s66, s66, {WS_FV}')
a('v_mov_b32 v4, s43'); a('v_mov_b32 v5, 0')
a('s_waitcnt vmcnt(0)'); a('s_mov_b64 exec, 1')
a('buffer_store_dword v4, v5, s[12:15], s66 offen sc1'); a('s_mov_b64 exec, -1')
if TONE: lds_arrive(0, 4)
tick_dump(7, 4)
a('L_helper:')
if TONE:
    lds_wait('L_hc9', 20, 40)
    a('s_cmp_eq_u32 s35, 0'); a('s_cbranch_scc1 L_hnz')
    lds_wait('L_hzc', 8, 40)
    a('L_hnz:')
else:
    if 0 <= EARLY < 8: a('s_cmp_eq_u32 s35, 0'); a('s_cbranch_scc1 L_hea')
    lds_arrive(0, 4)
    a('L_hea:')
    lds_wait('L_hc9', 20, 40)
    a('s_cmp_eq_u32 s35, 0'); a('s_cbranch_scc1 L_hnz')
    lds_wait('L_hzc', 8, 40)
    a('L_hnz:')
    a('s_mov_b32 s44, s3')
    p2_setup()
    a('s_cmp_eq_u32 s35, 1'); a('s_cbranch_scc1 L_hd')
    for st in range(12 - NLATE, 12): wdt_lds(st)
    a('s_branch L_hf')
    a('L_hd:')
    for st in range(12 - NLD, 12): wdt_lds(st)
    a('L_hf:')
    VT = opt('vtouch', 0)
    def vtouch():
        a('s_cmp_eq_u32 s35, 0'); a('s_cbranch_scc1 L_nvt')
        a('v_lshrrev_b32 v40, 2, v0'); a('v_lshlrev_b32 v40, 7, v40'); a('v_and_b32 v41, 3, v0'); a('v_lshl_add_u32 v40, v41, 4, v40')
        a(f's_mov_b32 s66, {WS_FV}')
        spin_begin('L_pollva')
        a('buffer_load_dwordx4 v[44:47], v40, s[12:15], s66 offen sc1')
        a('s_waitcnt vmcnt(0)')
        for i in range(4): a(f'v_xor_b32 v{44+i}, s43, v{44+i}')
        a('v_or_b32 v44, v44, v45'); a('v_or3_b32 v44, v46, v47, v44')
        a('v_cmp_ne_u32 vcc, 0, v44'); a('s_cmp_eq_u64 vcc, 0')
        spin_end('L_pollva')
        a('s_lshl_b32 s66, s30, 2'); a('s_sub_u32 s67, 13, s66'); a('s_cmp_eq_u32 s31, 1'); a('s_cselect_b32 s66, s67, s66')
        a('s_lshl_b32 s67, s32, 1'); a('s_lshr_b32 s68, s3, 1'); a('s_add_u32 s67, s67, s68'); a('s_mul_i32 s67, s67, 17'); a('s_add_u32 s66, s66, s67')
        a(f's_mul_i32 s66, s66, {2*VROW}'); a('s_and_b32 s67, s3, 1'); a(f's_mul_i32 s67, s67, {164*128}'); a('s_add_u32 s66, s66, s67'); a(f's_add_u32 s66, s66, {WS_V}')
        a('v_lshlrev_b32 v40, 7, v0')
        for i in range(3):
            if i == 2: a('s_mov_b32 exec_hi, 0xf')
            a(f'buffer_load_dword v41, v40, s[12:15], s66 offen sc1')
            if i < 2: a('s_add_u32 s66, s66, 8192')
        a('s_mov_b64 exec, -1')
        a('s_mov_b32 s79, 0')
        a('s_waitcnt vmcnt(0)')
        a('L_nvt:')
    if VT == 2: vtouch()
    a('s_waitcnt vmcnt(0)')
    lds_arrive(36, 4)
    if VT == 1: vtouch()
stamp(4)

a('s_cmp_eq_u32 s79, 1'); a('s_cbranch_scc1 L_vdone')
if VGO: a('s_cmp_lg_u32 s3, 3'); a('s_cbranch_scc1 L_vwait')
spin_begin('L_pollv')
a(f'buffer_load_dword v53, v{VFL}, s[12:15], s60 offen sc1')
a('s_waitcnt vmcnt(0)')
a('v_cmp_ne_u32 vcc, s43, v53')
a('s_cmp_eq_u64 vcc, 0')
spin_end('L_pollv')
if VGO:
    lds_arrive(28, 40)
    a('L_vwait:')
    lds_wait('L_vc', 28, 40, 1)
    lds_wait('L_vgo', 40, 40, 1)
v_loads()
a('L_vdone:')
stamp(5)
a('v_lshrrev_b32 v4, 2, v3'); a('v_and_b32 v5, 3, v3'); a('v_lshl_add_u32 v7, v5, 2, v4')
a('s_mul_i32 s66, s55, 15'); a('v_xor_b32 v4, s66, v7')
a('v_cvt_f32_u32 v4, v4'); a('v_mul_f32 v4, 0.0625, v4')
a('v_lshlrev_b32 v5, 2, v2'); a('v_cvt_f32_u32 v5, v5')
for i in range(4):
    a(f'v_add_f32 v52, {float(i)!r}, v5'); a('v_mul_f32 v52, v52, v4')
    a('v_cos_f32 v53, v52'); a('v_sin_f32 v54, v52'); a('s_nop 0')
    a(f'v_cvt_pk_bf16_f32 v{8+i}, v53, v54')
a(f's_mov_b32 s47, {PN}'); a('s_cmp_eq_u32 s55, 1'); a(f's_cselect_b32 s47, {(-PN) & 0xffffffff}, s47')
a(f'v_mul_u32_u24 v56, {PQ}, v2'); a('v_lshl_add_u32 v56, v3, 4, v56'); a(f's_mul_i32 s66, s55, {3*PN}'); a('v_add_u32 v56, s66, v56')
for k4 in range(1, 4): a(f'v_add_u32 v{56+k4}, s47, v{55+k4}')
def spec_tile(off_s, vb):
    for k4 in range(4):
        for i in range(4): a(f'v_mov_b32 v{64+4*k4+i}, v{vb+4*i+k4}')
    a('s_nop 1')
    for k4 in range(4):
        c = 80 + 4*k4
        a(f'v_mfma_f32_16x16x32_bf16 v[{c}:{c+3}], v[{64+4*k4}:{67+4*k4}], v[8:11], 0')
    for k4 in range(4): a(f'v_add_u32 v{40+k4}, {off_s}, v{56+k4}')
    a('s_nop 5')
    for k4 in range(4):
        c = 80 + 4*k4
        a(f'ds_write_b128 v{40+k4}, v[{c}:{c+3}]')
a('s_cmp_eq_u32 s3, 1'); a(f's_mov_b32 s73, {ST[0]}'); a(f's_cselect_b32 s73, {ST[1]}, s73')
a('s_cmp_eq_u32 s3, 2'); a(f's_cselect_b32 s73, {ST[2]}, s73')
a('s_cmp_eq_u32 s3, 3'); a(f's_cselect_b32 s73, {ST[3]}, s73')
a('s_waitcnt vmcnt(0)')
a('s_cmp_lg_u32 s3, 0'); a('s_cbranch_scc1 L_spec1')
a(f's_mov_b32 s74, {ST[4]}')
spec_tile('s74', VB1)
a('L_spec1:')
spec_tile('s73', VB0)
for r in range(3):
    for d in range(4):
        a(f'v_lshlrev_b32 v{96+8*r+2*d}, 16, v{XR[r]+d}'); a(f'v_and_b32 v{97+8*r+2*d}, 0xffff0000, v{XR[r]+d}')
if F8:
    lds_arrive(52, 40)
    lds_wait('L_spw', 52, 40)
    a(f'ds_read_b128 v[128:131], v{FA[5]}'); a(f'ds_read_b128 v[132:135], v{FA[5]} offset:{PQ}')
    a('s_waitcnt lgkmcnt(0)')
    for d in range(0, 8, 2): a(f'v_pk_add_f32 v[{128+d}:{129+d}], v[{128+d}:{129+d}], v[{104+d}:{105+d}]')
    a(f'ds_write_b128 v{FA[5]}, v[128:131]'); a(f'ds_write_b128 v{FA[5]}, v[132:135] offset:{PQ}')

a('L_final:')
def final_reads(r, b):
    d4, d11 = FA[3*r], FA[3*r+2]
    for p in range(5):
        reg = (d4, d4, d4, d4, d11)[p]; off = (0, P2W, 2*P2W, 3*P2W, 0)[p]
        a(f'ds_read_b128 v[{b+8*p}:{b+3+8*p}], v{reg} offset:{off}')
        a(f'ds_read_b128 v[{b+4+8*p}:{b+7+8*p}], v{reg} offset:{off+PQ}')
def final_sum(r, b, cnt):
    x = 96 + 8*r
    for p in range(5):
        a(f's_waitcnt lgkmcnt({min(15, cnt + 8 - 2*p)})')
        for d in range(0, 8, 2): a(f'v_pk_add_f32 v[{x+d}:{x+d+1}], v[{x+d}:{x+d+1}], v[{b+8*p+d}:{b+8*p+d+1}]')
    for d in range(4): a(f'v_cvt_pk_bf16_f32 v{b+d}, v{x+2*d}, v{x+2*d+1}')
    a(f'buffer_store_dwordx4 v[{b}:{b+3}], v{FA[3*r+1]}, s[16:19], 0 offen {OUTP}')
a('s_waitcnt lgkmcnt(0)')
a('s_barrier')
stamp(6)
if F8:
    final_reads(0, 128)
    a('s_cmp_ge_u32 s3, 2'); a('s_cbranch_scc1 L_fin8')
    final_reads(2, 168)
    final_sum(0, 128, 10)
    final_sum(2, 168, 0)
    a('s_branch L_fin2')
    a('L_fin8:')
    final_sum(0, 128, 0)
    a('s_branch L_fin2')
final_reads(0, 128)
final_reads(1, 168)
final_sum(0, 128, 10)
a('s_cmp_ge_u32 s3, 2'); a('s_cbranch_scc1 L_fin1')
final_reads(2, 208)
final_sum(1, 168, 10)
final_sum(2, 208, 0)
a('s_branch L_fin2')
a('L_fin1:')
final_sum(1, 168, 0)
a('L_fin2:')
if 'diag' in opts:
    a('s_cmp_lg_u32 s3, 0'); a('s_cbranch_scc1 L_diag')
    a('s_waitcnt vmcnt(0)')
    a('s_memrealtime s[94:95]'); a('s_waitcnt lgkmcnt(0)')
    if opts['diag'] == 'r': a('s_sub_u32 s66, s43, s80'); a('s_max_i32 s66, s66, 0'); a('s_min_u32 s66, s66, 5000'); a('s_lshl_b32 s66, s66, 4')
    elif opts['diag'] == 'b': a('s_sub_u32 s66, s82, s80'); a('s_max_i32 s66, s66, 0'); a('s_min_u32 s66, s66, 5000'); a('s_lshl_b32 s66, s66, 3')
    elif opts['diag'] == 'e': a('s_sub_u32 s66, s94, s80'); a('s_max_i32 s66, s66, 0'); a('s_min_u32 s66, s66, 5000'); a('s_lshl_b32 s66, s66, 2')
    else: a(f"s_sub_u32 s66, s{80 + 2*int(opts['diag'])}, s43"); a('s_max_i32 s66, s66, 0'); a('s_min_u32 s66, s66, 5000'); a('s_lshl_b32 s66, s66, 2')
    a('L_dsp:')
    a('s_memrealtime s[68:69]'); a('s_waitcnt lgkmcnt(0)'); a('s_sub_u32 s68, s68, s94'); a('s_cmp_lt_u32 s68, s66'); a('s_cbranch_scc1 L_dsp')
    a('s_endpgm')
    a('L_diag:')
if opt('dbgt', 0):
    a('s_cmp_lg_u32 s3, 0'); a('s_cbranch_scc1 L_dbgt')
    a('s_waitcnt vmcnt(0)')
    a('s_memrealtime s[94:95]'); a('s_waitcnt lgkmcnt(0)')
    a('s_mov_b64 exec, 1')
    for i, r in enumerate((80, 82, 84, 86, 88, 90, 92, 94)):
        a(f's_sub_u32 s66, s{r}, s43'); a('s_add_u32 s66, s66, 1000'); a('v_mov_b32 v4, s66'); a(f'v_mov_b32 v5, {4 + 4*i}')
        a('buffer_atomic_umax v4, v5, s[24:27], 0 offen sc1')
        a('s_nop 2')
    a('s_endpgm')
    a('L_dbgt:')
stamp(7)
if STAMPS:
    a('s_waitcnt vmcnt(0)')
    a('s_memrealtime s[96:97]')
    a('s_waitcnt lgkmcnt(0)')
    for i in range(8): a(f'v_mov_b32 v{16+i}, s{80+2*i}')
    a('v_mov_b32 v24, s96'); a('v_mov_b32 v25, s101')
    a('s_lshl_b32 s66, s2, 3'); a('s_add_u32 s66, s66, s3'); a('s_lshl_b32 s66, s66, 6'); a(f's_add_u32 s66, s66, {WS_TS}')
    a('v_mov_b32 v4, 0')
    a('s_mov_b64 exec, 1')
    a('buffer_store_dwordx4 v[16:19], v4, s[12:15], s66 offen')
    a('buffer_store_dwordx4 v[20:23], v4, s[12:15], s66 offen offset:16')
    a('buffer_store_dwordx2 v[24:25], v4, s[12:15], s66 offen offset:32')
a('s_endpgm')
emit_tails()
a('L_done:')
a.end(256, sgpr=102)
txt = a.text([])
txt = txt.replace('.amdgcn_target', f'; @launch grid=(256,1,1) block=(512,1,1) lds={LDS_BYTES}\n.amdgcn_target', 1)
open(sys.argv[1], 'w').write(txt)
if opt('ids', 0): print(wait_ids, spin_ids)
```

```python
import sys, math
from asmlib import *
opts = dict(o.split('=') for o in sys.argv[2:])
def opt(k, d): return type(d)(opts.get(k, d))
STAMPS = opt('stamps', 0)
WDA = opts.get('wda', '')
F8 = opt('f8', 1)
RSP = opts.get('rsp', 'sc1').replace('+', ' ')
RSEQ = opts.get('rseq', '')
FRB = opt('frb', 7)
FRSEP = opt('frsep', 1)
NOCS = opt('nocs', 1)
FWL = opt('fwl', 0)
DF = opt('df', 1)
PFW = opts.get('pfw', '3,0').replace('-', '')
PFP = opts.get('pfp', '-').replace('-', '')
HALF = opt('half', 1)
EARLY = opt('early', 8 if HALF else -1)
NTM = [sum(1 << int(c) for c in m) for m in opts['ntm'].split(',')] if 'ntm' in opts else None
RP = opts.get('rp', '-').replace('+', ' ').replace('-', '')
WP_ = opts.get('wp', 'nt').replace('+', ' ').replace('-', '')
XP_ = opts.get('xp', '-').replace('+', ' ').replace('-', '')
TONE = opt('t1', 0)
HDLY = opt('hdly', 0)
OUTP = opts.get('outp', 'sc1').replace('+', ' ').replace('-', '')
SENT = 1
RDFT = opt('rdft', 0)
RSL = opt('rsleep', 4)
AUXV = opt('auxv', 0)
VGO = opt('vgo', 1)
VCHK = opt('vchk', 4)
XR = [32, 36, 28]
FA = [16, 17, 18, 19, 20, 21, 22, 23, 24]; VA0, VA4, VFL = 25, 26, 27
NONIT = 1
WMODE = opt('wmode', 0)
STRICT = opt('strict', 1)
ZFIX = opt('zfix', 1)
FLAGA = opt('flaga', 0)
FAKEW = opt('fakew', 0)
FAKEH = opt('fakeh', 0)
P2MAP = opt('p2map', 1)
P2ROT = opt('p2rot', 5)
SPINMAX = opt('spinmax', 1 << 16)
CODEPF = opt('codepf', 1)
LDW = opts.get('ldw', 'sc1').replace('+', ' ').replace('-', '')
LDH = opts.get('ldh', 'sc1').replace('+', ' ').replace('-', '')
STP = opts.get('stp', 'sc1').replace('+', ' ').replace('-', '')
S, D, F = 2048, 640, 1536
KNAME = 'parallel_sum__spectral_fnet__swiglu_ffn__prompt_kernel'
STG = 49152
WS_H = 0
WS_WDT = 0x600000
WS_V = 0x800000
WS_XP = 0xB00000
WS_WP = 0xB20000
WS_FW = 0xB30000
WS_FH = 0xB31000
WS_FV = 0xB34000
WS_TS = 0xC00000
WS_SIZE = 0x1000000
L_AUX = 3*STG
L_R = L_AUX
L_M = L_AUX + 512
L_CS = L_AUX + 1024
L_CNT = L_AUX + 2048
L_NON = L_CNT + 32
L_A0 = L_AUX + 2560
L_CH = L_AUX + 3072
L_WD = L_AUX + 4096
L_Z = 0
ZROW = 64; ZB = 96
VROW = 5248
P2W = 10240
P2STEP = [STG, STG + 5120, 2*STG, 2*STG + 5120, 0, 5120]
PT = [STG, STG + 4416, 2*STG + 128, 2*STG + 128 + 4416, 0]
ST = [40960, STG + 40960 + 64, 2*STG + 40960 + 128, 3*STG + 4096 + 192, 3*STG + 4096 + 192 + 4416 ]
PQ, PN, PE = 272, 1088, 4416
LDS_BYTES = 163840

a = Asm()
stamp_n = [0]
def stamp(i):
    if STAMPS:
        if not ((FAKEW or FAKEH) and i >= 5): a(f's_memrealtime s[{80+2*i}:{81+2*i}]')
TICKS = opt('ticks', 0)
def tick(reg, idx):
    if TICKS:
        a('s_memrealtime s[98:99]'); a('s_waitcnt lgkmcnt(0)')
        if isinstance(idx, tuple):
            a(f's_add_u32 m0, {idx[0]}, {idx[1]}'); a('s_nop 3'); a(f'v_writelane_b32 v{reg}, s98, m0')
        else:
            a(f'v_writelane_b32 v{reg}, s98, {idx}')
def tick_dump(reg, tmp):
    if TICKS:
        a('s_lshl_b32 s98, s2, 3'); a('s_add_u32 s98, s98, s3'); a('s_lshl_b32 s98, s98, 8'); a(f's_add_u32 s98, s98, {WS_TS + 0x100000}')
        a(f'v_lshlrev_b32 v{tmp}, 2, v0')
        a(f'buffer_store_dword v{reg}, v{tmp}, s[12:15], s98 offen')
def rbf(v):
    a(f'v_cvt_pk_bf16_f32 v{v}, v{v}, v{v}')
    a(f'v_lshlrev_b32 v{v}, 16, v{v}')
def srd_from(d, b, nbytes):
    srd(a, d, b, nbytes)
spin_ids = {}
def spin_begin(name):
    a(f's_mov_b32 s79, 0')
    a(f'{name}:')
def spin_end(name):
    a(f's_cbranch_scc1 {name}_ok')
    a('s_add_u32 s79, s79, 1')
    a(f's_cmp_ge_u32 s79, {SPINMAX}')
    if STAMPS: spin_ids[name] = 100 + len(spin_ids); a(f's_cselect_b32 s101, {spin_ids[name]}, s101')
    a(f's_cbranch_scc1 {name}_ok')
    a('s_sleep 2')
    a(f's_branch {name}')
    a(f'{name}_ok:')

def lds_arrive(off, v):
    a(f'v_mov_b32 v{v}, {L_CNT}'); a(f'v_mov_b32 v{v+1}, 1')
    a('s_waitcnt lgkmcnt(0)')
    a('s_mov_b64 exec, 1')
    a(f'ds_add_u32 v{v}, v{v+1} offset:{off}')
    a('s_mov_b64 exec, -1')
wait_ids = {}
def lds_wait(name, off, v, cnt=4):
    wait_ids[name] = len(wait_ids) + 1
    a(f'v_mov_b32 v{v}, {L_CNT}')
    a('s_mov_b32 s100, 0')
    a(f'{name}:')
    a(f'ds_read_b32 v{v+1}, v{v} offset:{off}')
    a('s_waitcnt lgkmcnt(0)')
    a(f'v_readfirstlane_b32 s78, v{v+1}')
    a(f's_cmp_lt_u32 s78, {cnt}')
    a(f's_cbranch_scc0 {name}_ok')
    a('s_add_u32 s100, s100, 1')
    a(f's_cmp_lt_u32 s100, {SPINMAX*8}')
    a('s_sleep 1')
    a(f's_cbranch_scc1 {name}')
    if STAMPS: a(f's_mov_b32 s101, {wait_ids[name]}')
    a(f'{name}_ok:')
a.begin(KNAME)
a('s_cmp_ge_u32 s2, 256')
a('s_cbranch_scc1 L_done')
stamp(0)
if STAMPS: a('s_mov_b32 s101, 0')
a('s_load_dwordx2 s[64:65], s[0:1], 0')
a('s_load_dwordx4 s[60:63], s[0:1], 24')
a('s_load_dwordx8 s[48:55], s[0:1], 48')
a('s_load_dwordx4 s[56:59], s[0:1], 80')
a('v_lshrrev_b32 v1, 6, v0')
a('v_and_b32 v0, 63, v0')
a('v_readfirstlane_b32 s3, v1')
a('s_and_b32 s40, s2, 7'); a('s_lshr_b32 s41, s2, 3')
a('s_and_b32 s31, s40, 1'); a('s_lshr_b32 s30, s40, 1')
a('s_and_b32 s32, s41, 7'); a('s_lshr_b32 s33, s41, 3')
a('s_lshl_b32 s28, s31, 3'); a('s_add_u32 s28, s28, s32')
a('s_mul_i32 s29, s30, 3'); a('s_add_u32 s29, s29, s33')
a('s_add_u32 s42, s30, 12')
a('s_cmp_eq_u32 s33, 3')
a('s_cselect_b32 s29, s42, s29')
a('s_cselect_b32 s35, 1, 0')
OFFA = opt('offa', 0)
assert DF or OFFA == 0
if OFFA == 0: a('s_mul_i32 s34, s30, 5'); a('s_add_u32 s34, s34, 1'); a('s_lshr_b32 s34, s34, 1')
elif OFFA == 1: a('s_min_u32 s34, s30, 1'); a('s_add_u32 s34, s34, s30')
elif OFFA == 2: a('s_mov_b32 s34, 0')
elif OFFA == 3: a('s_min_u32 s34, s30, 1'); a('s_add_u32 s34, s34, s30'); a('s_and_b32 s42, s30, 1'); a('s_mul_i32 s42, s42, 5'); a('s_add_u32 s34, s34, s42')
a('s_mul_i32 s42, s31, 5'); a('s_add_u32 s34, s34, s42')
a('s_cmp_ge_u32 s34, 10'); a('s_cselect_b32 s42, 10, 0'); a('s_sub_u32 s34, s34, s42')
if P2MAP == 0:
    a('s_lshl_b32 s42, s30, 3'); a('s_add_u32 s42, s42, s32')
    a('s_lshl_b32 s38, s31, 2'); a('s_add_u32 s38, s38, s33')
else:
    a('s_lshl_b32 s42, s40, 2'); a('s_add_u32 s42, s42, s33')
    a('s_mov_b32 s38, s32')
if EARLY < 0:
    a('s_mul_i32 s39, s32, 3'); a('s_lshr_b32 s39, s39, 1'); a('s_mul_i32 s66, s33, 3'); a('s_add_u32 s39, s39, s66')
    a('s_cmp_ge_u32 s39, 12'); a('s_cselect_b32 s66, 12, 0'); a('s_sub_u32 s39, s39, s66')
else:
    a('s_lshl_b32 s39, s33, 1'); a('s_add_u32 s39, s39, s32'); a('s_mul_i32 s39, s39, 3'); a('s_lshr_b32 s39, s39, 2')
    a('s_cmp_ge_u32 s39, 6'); a('s_cselect_b32 s66, 6, 0'); a('s_sub_u32 s39, s39, s66')
if not P2ROT: a('s_mov_b32 s39, 0')
if P2ROT == 2: a('s_mul_i32 s39, s32, 3'); a('s_lshr_b32 s39, s39, 1')
if P2ROT == 3: a('s_mul_i32 s39, s33, 3')
if P2ROT == 4: a('s_add_u32 s39, s32, s33'); a('s_and_b32 s39, s39, 1'); a('s_mul_i32 s39, s39, 6')
if P2ROT == 5: a('s_and_b32 s39, s2, 7'); a('s_mul_i32 s39, s39, 3'); a(f's_lshr_b32 s39, s39, {1 if EARLY < 0 else 2}')
a('s_lshr_b32 s36, s42, 1'); a('s_and_b32 s37, s42, 1')
WSOFF = opt('wsoff', 0)
WSRD = 's[12:15]'; HSRD = 's[12:15]'
def common_srds(loader=False):
    a('s_waitcnt lgkmcnt(0)')
    tick(7, 50)
    srd(a, 12, 58, WS_SIZE, WSOFF << 20)
    if not loader:
        srd_from(4, 64, S*D*2)
        srd_from(16, 54, S*D*2)
        srd_from(20, 52, F*D*2)
        srd_from(24, 56, 256)
a('s_cmp_lt_u32 s3, 4')
a('s_cbranch_scc1 L_compute')
a('s_sub_u32 s44, s3, 4')
a('s_cmp_eq_u32 s44, 3')
a('s_cbranch_scc1 L_aux')

W0 = 5
PT_ = [20, 21, 22, 23, 24, 25, 26, 27, 4, 5, 6, 7, 16, 17, 18, 19]
GT_ = [66, 67, 68, 69, 76, 77, 78, 79, 96, 97, 100, 101, 40, 41, 42, 43]
GT_ = [66, 67, 68, 69, 76, 77, 78, 79, 28, 29, 30, 31, 40, 41, 33, 43]
def emit_p0(dst, t):
    a(f's_min_u32 s{t}, s30, 1'); a(f's_add_u32 s{dst}, s30, s{t}'); a(f's_mul_i32 s{t}, s31, 3'); a(f's_add_u32 s{dst}, s{dst}, s{t}')
    a(f's_cmp_ge_u32 s{dst}, 5'); a(f's_cselect_b32 s{t}, 5, 0'); a(f's_sub_u32 s{dst}, s{dst}, s{t}')
H0 = opt('h0', 12)
def dma_loop(name, npieces):
    h = npieces * H0 // 16
    def pieces1(lo, hi, pol):
        for t in range(lo, hi):
            a(f's_add_u32 m0, s{PT_[t]}, s46'); a('s_nop 0')
            a(f'buffer_load_dwordx4 v{4 + (t & 1)}, s[8:11], s{GT_[t]} offen {pol} lds')
    def pieces(lo, hi):
        if not NTM: return pieces1(lo, hi, RP)
        L = a.label('L_pc')
        a('s_bitcmp1_b32 s50, s47'); a(f's_cbranch_scc1 {L}_n')
        pieces1(lo, hi, ''); a(f's_branch {L}_e')
        a(f'{L}_n:'); pieces1(lo, hi, 'nt'); a(f'{L}_e:')
    a('s_mov_b32 s46, 0'); a('s_mov_b32 s47, 0')
    a('v_add_u32 v4, s42, v4'); a('v_add_u32 v5, s42, v5')
    tick(7, 51)
    if opt('uni', 0):
        pieces(0, h)
        a(f'{name}_l:')
        pieces(h, npieces)
        a('s_cmp_eq_u32 s47, 9'); a('s_cbranch_scc1 L_p2last')
        a('s_add_u32 s45, s45, 1'); a('s_cmp_eq_u32 s45, 10'); a('s_cselect_b32 s45, 0, s45')
        a('s_cselect_b32 s42, s49, s48')
        a('v_add_u32 v4, s42, v4'); a('v_add_u32 v5, s42, v5')
        a(f's_add_u32 s46, s46, {STG}'); a(f's_cmp_eq_u32 s46, {3*STG}'); a('s_cselect_b32 s46, 0, s46')
        pieces(0, h)
        a(f's_waitcnt vmcnt({h})')
        tick(7, ('s47', 0))
        a('s_barrier')
        tick(7, ('s47', 16))
        a('s_add_u32 s47, s47, 1'); a(f's_branch {name}_l')
        return
    a(f'{name}_l:')
    pieces(0, h)
    a('s_cmp_lg_u32 s47, 1'); a(f's_cbranch_scc1 {name}_m')
    a(f's_waitcnt vmcnt({h})')
    tick(7, 0)
    a('s_barrier')
    tick(7, 16)
    a(f'{name}_m:')
    pieces(h, npieces)
    a('s_add_u32 s45, s45, 1'); a('s_cmp_eq_u32 s45, 10'); a('s_cselect_b32 s45, 0, s45')
    a('s_cselect_b32 s42, s49, s48')
    a('s_mov_b32 s70, s48'); a('s_mov_b32 s48, s51'); a('s_mov_b32 s51, s70')
    a('v_add_u32 v4, s42, v4'); a('v_add_u32 v5, s42, v5')
    a(f's_add_u32 s46, s46, {STG}'); a(f's_cmp_eq_u32 s46, {3*STG}'); a('s_cselect_b32 s46, 0, s46')
    tick(7, ('s47', 52))
    a('s_cmp_lt_u32 s47, 2'); a(f's_cbranch_scc1 {name}_nx')
    a(f's_waitcnt vmcnt({npieces})')
    tick(7, ('s47', -1))
    a('s_barrier')
    tick(7, ('s47', 15))
    a('s_cmp_eq_u32 s47, 9'); a('s_cbranch_scc1 L_p2last')
    a(f'{name}_nx:')
    a('s_add_u32 s47, s47, 1'); a(f's_branch {name}_l')

a('s_cmp_eq_u32 s44, 2')
a('s_cbranch_scc1 L_ldx')
a('s_cmp_eq_u32 s35, 1')
a('s_cbranch_scc1 L_ldc')
a('v_lshrrev_b32 v1, 4, v0')
a('v_and_b32 v2, 15, v0')
a('v_lshlrev_b32 v3, 1, v1')
a('v_xor_b32 v2, v2, v3')
a('v_lshlrev_b32 v2, 4, v2')
a(f'v_mul_u32_u24 v3, {F*2}, v1')
a('v_add_u32 v2, v2, v3')
a('s_lshl_b32 s70, s29, 8')
a('v_add_u32 v2, s70, v2')
a('s_and_b32 s70, s32, 1'); a('s_lshl_b32 s70, s70, 7')
a('v_xor_b32 v4, s70, v2')
a('v_xor_b32 v5, 128, v4')
a('s_lshl_b32 s70, s32, 11')
a('s_lshl_b32 s71, s44, 14')
for g in range(4):
    if g: a('s_add_u32 s70, s70, 2048'); a('s_and_b32 s70, s70, 0x3c00')
    a(f's_or_b32 s{PT_[4*g]}, s70, s71'); a(f's_mul_i32 s{GT_[4*g]}, s70, 12')
    a(f's_add_u32 s{PT_[4*g+2]}, s{PT_[4*g]}, 1024'); a(f's_add_u32 s{GT_[4*g+2]}, s{GT_[4*g]}, {4*F*2}')
    a('s_add_u32 s70, s70, 2048'); a('s_and_b32 s70, s70, 0x3c00')
    a(f's_or_b32 s{PT_[4*g+1]}, s70, s71'); a(f's_mul_i32 s{GT_[4*g+1]}, s70, 12')
    a(f's_add_u32 s{PT_[4*g+3]}, s{PT_[4*g+1]}, 1024'); a(f's_add_u32 s{GT_[4*g+3]}, s{GT_[4*g+1]}, {4*F*2}')
a('s_cmp_eq_u32 s44, 1')
a('s_waitcnt lgkmcnt(0)')
a('s_cselect_b32 s8, s50, s48'); a('s_cselect_b32 s9, s51, s49'); a(f's_mov_b32 s10, {D*F*2}'); a('s_mov_b32 s11, 0x00020000')
a(f's_mov_b32 s48, {64*F*2}'); a('s_mov_b32 s51, s48'); a('s_mov_b32 s45, s34'); a('s_mul_i32 s42, s34, s48'); a('s_mul_i32 s49, s48, -9')
if NTM: a(f's_mov_b32 s50, {NTM[0]}')
a('s_branch L_ld16')
a('L_ldx:')
if DF: emit_p0(71, 72)
a('v_lshrrev_b32 v1, 3, v0')
a('v_and_b32 v2, 7, v0')
a('v_lshrrev_b32 v3, 1, v1')
a('v_xor_b32 v2, v2, v3')
a('v_lshlrev_b32 v2, 4, v2')
a('v_lshrrev_b32 v3, 2, v1'); a('v_and_b32 v6, 3, v1'); a('v_lshl_add_u32 v3, v6, 2, v3')
XMAP = opt('xmap', 0)
if XMAP == 0:
    a('v_lshlrev_b32 v3, 7, v3'); a('v_add_u32 v3, s28, v3')
elif XMAP == 1:
    a('v_lshlrev_b32 v3, 7, v3'); a('s_lshl_b32 s70, s28, 3'); a('v_add_u32 v3, s70, v3')
else:
    a('v_lshlrev_b32 v3, 3, v3'); a('s_lshl_b32 s70, s28, 7'); a('v_add_u32 v3, s70, v3')
a(f'v_mul_u32_u24 v3, {D*2}, v3')
a('v_add_u32 v4, v2, v3')
a('v_xor_b32 v5, 64, v4'); a(f'v_add_u32 v5, {(256 if XMAP < 2 else 16)*D*2}, v5')
a('s_lshl_b32 s70, s33, 12')
for t in range(0, 16, 2):
    if t: a('s_add_u32 s70, s70, 2048'); a('s_and_b32 s70, s70, 0x3c00')
    a(f's_or_b32 s{PT_[t]}, s70, 0x8000'); a(f's_or_b32 s{PT_[t+1]}, s70, 0x8400')
    if XMAP == 0: a(f's_mul_i32 s{GT_[t]}, s70, {16*D*2//2048}')
    else: a(f's_mul_i32 s{GT_[t]}, s70, 5'); a(f's_lshr_b32 s{GT_[t]}, s{GT_[t]}, 3')
    a(f's_mov_b32 s{GT_[t+1]}, s{GT_[t]}')
a('s_waitcnt lgkmcnt(0)')
srd_from(8, 64, S*D*2)
a('s_movk_i32 s48, 128'); a('s_movk_i32 s51, 128'); a('s_mov_b32 s45, s34'); a('s_lshl_b32 s42, s34, 7'); a('s_movk_i32 s49, -1152')
if DF:
    a('s_cmp_eq_u32 s35, 0'); a('s_cbranch_scc1 L_ld16')
    a('s_movk_i32 s48, 640'); a('s_movk_i32 s51, -512'); a('s_lshl_b32 s45, s71, 1'); a('s_lshl_b32 s42, s71, 7')
if NTM: a(f's_mov_b32 s50, {NTM[1]}')
a('L_ld16:')
dma_loop('L_ldw', 16)
a('L_ldc:')
a('v_lshrrev_b32 v1, 3, v0')
a('v_and_b32 v2, 7, v0')
a('v_lshrrev_b32 v3, 1, v1')
a('v_xor_b32 v2, v2, v3')
a('v_lshlrev_b32 v2, 4, v2')
if DF:
    emit_p0(45, 72)
    a('s_lshr_b32 s70, s30, 1'); a('s_mul_i32 s70, s70, 160'); a('s_and_b32 s71, s30, 1'); a('s_add_u32 s70, s70, s71'); a('s_add_u32 s70, s70, 1')
    a('v_lshlrev_b32 v1, 1, v1')
else:
    a('s_mul_i32 s70, s30, 80'); a('s_add_u32 s70, s70, 1')
a('v_add_u32 v1, s70, v1')
a(f'v_mul_u32_u24 v3, {D*2}, v1')
a('v_add_u32 v2, v2, v3')
a('s_and_b32 s70, s32, 1'); a('s_lshl_b32 s70, s70, 6')
a('v_xor_b32 v4, s70, v2')
a('v_xor_b32 v5, 64, v4')
a('s_lshl_b32 s70, s32, 10')
a('s_lshl_b32 s71, s44, 14')
for t in range(10):
    if t: a('s_add_u32 s70, s70, 1024'); a('s_cmp_eq_u32 s70, 10240'); a('s_cselect_b32 s70, 0, s70')
    a(f's_or_b32 s{PT_[t]}, s70, s71'); a(f's_mul_i32 s{GT_[t]}, s70, {(16 if DF else 8)*D*2//1024}')
a('s_cmp_eq_u32 s44, 1')
a('s_waitcnt lgkmcnt(0)')
a('s_cselect_b32 s8, s62, s60'); a('s_cselect_b32 s9, s63, s61'); a(f's_mov_b32 s10, {D*D*2}'); a('s_mov_b32 s11, 0x00020000')
if not DF:
    a('s_movk_i32 s48, 128'); a('s_movk_i32 s51, 128'); a('s_mov_b32 s45, s34'); a('s_lshl_b32 s42, s34, 7'); a('s_movk_i32 s49, -1152')
    if NTM: a(f's_mov_b32 s50, {NTM[0]}')
    dma_loop('L_ldcl', 10)
else:
    a('s_lshl_b32 s42, s45, 7'); a('v_add_u32 v4, s42, v4'); a('v_add_u32 v5, s42, v5')
    a(f's_mov_b32 s46, {STG}'); a('s_mov_b32 s47, 1')
    a('L_ldcl:')
    for t in range(10):
        a(f's_add_u32 m0, s{PT_[t]}, s46'); a('s_nop 0')
        a(f'buffer_load_dwordx4 v{4 + (t & 1)}, s[8:11], s{GT_[t]} offen lds')
    a('s_add_u32 s45, s45, 1'); a('s_cmp_eq_u32 s45, 5'); a('s_cselect_b32 s45, 0, s45')
    a('s_movk_i32 s42, 128'); a('s_cselect_b32 s42, -512, s42')
    a('v_add_u32 v4, s42, v4'); a('v_add_u32 v5, s42, v5')
    a(f's_sub_u32 s46, s46, {STG}'); a(f's_cselect_b32 s46, {2*STG}, s46')
    a('s_barrier')
    a('s_cmp_eq_u32 s47, 9'); a('s_cbranch_scc1 L_p2last')
    a('s_waitcnt vmcnt(0)')
    a('s_barrier')
    a('s_add_u32 s47, s47, 2'); a('s_branch L_ldcl')

P2ACC = 176; P2W_R = 56; P2H = 8
def p2_setup():
    a('v_lshlrev_b32 v1, 4, v0')
    srd(a, 12, 58, WS_SIZE, WSOFF << 20)
    a('s_mul_i32 s70, s38, 48'); a('s_mul_i32 s71, s44, 12'); a('s_add_u32 s70, s70, s71')
    a(f's_mul_i32 s70, s70, 5120'); a(f's_add_u32 s70, s70, {WS_WDT}')
    a(f's_mul_i32 s73, s44, {P2W}')
def kidx(step):
    if EARLY < 0:
        a(f's_add_u32 s72, s39, {step}'); a('s_cmp_ge_u32 s72, 12'); a('s_cselect_b32 s71, 12, 0'); a('s_sub_u32 s72, s72, s71')
    else:
        a(f's_add_u32 s72, s39, {step % 6}'); a('s_cmp_ge_u32 s72, 6'); a('s_cselect_b32 s71, 6, 0'); a('s_sub_u32 s72, s72, s71')
        a('s_lshl_b32 s72, s72, 1')
        if (step >= 6) != bool(HALF): a('s_add_u32 s72, s72, 1')
def wdt_reg(step):
    kidx(step)
    a('s_mul_i32 s72, s72, 5120'); a('s_add_u32 s72, s72, s70')
    for ei in range(5):
        r = P2W_R + 20*step + 4*ei
        if ei == 4: a('s_add_u32 s72, s72, 4096')
        a(f'buffer_load_dwordx4 v[{r}:{r+3}], v1, {WSRD}, s72 offen offset:{(ei % 4)*1024} {LDW}')
def wdt_lds(step):
    kidx(step)
    a('s_mul_i32 s72, s72, 5120'); a('s_add_u32 s72, s72, s70')
    for ei in range(5):
        a(f's_add_u32 m0, s73, {P2STEP[step-6] + ei*1024}')
        if ei: a('s_add_u32 s72, s72, 1024')
        else: a('s_nop 0')
        a(f'buffer_load_dwordx4 v1, {WSRD}, s72 offen {LDW} lds')
WD = [[0, 1], [2, 3], [4, 5], []]
def read_nonce(v):
    a(f'v_mov_b32 v{v}, {L_NON}'); a(f'ds_read_b32 v{v}, v{v}'); a('s_waitcnt lgkmcnt(0)'); a(f'v_readfirstlane_b32 s43, v{v}')
def final_addr(tau_off, d4, d5, d11, t, a=a):
    v4, v5, v6, v7, v8, v9, v10 = d4, d5, t, t+1, t+2, t+3, t+4
    a('s_lshl_b32 s66, s3, 6'); a(f's_add_u32 s66, s66, {tau_off}')
    a(f'v_add_u32 v{v4}, s66, v0')
    a(f'v_mul_u32_u24 v{v5}, 6554, v{v4}'); a(f'v_lshrrev_b32 v{v5}, 16, v{v5}')
    a(f'v_mul_u32_u24 v{v6}, 10, v{v5}'); a(f'v_sub_u32 v{v6}, v{v4}, v{v6}')
    a(f'v_lshrrev_b32 v{v7}, 4, v{v5}'); a(f'v_and_b32 v{v5}, 15, v{v5}')
    a(f'v_lshrrev_b32 v{v9}, 1, v{v6}')
    a(f'v_mov_b32 v{v10}, {PT[0]}'); a(f'v_mov_b32 v{d11}, {ST[0]}')
    for e in range(1, 5):
        a(f'v_cmp_eq_u32 vcc, {e}, v{v9}'); a(f'v_mov_b32 v{t+5}, {PT[e]}'); a(f'v_mov_b32 v{t+6}, {ST[e]}')
        a(f'v_cndmask_b32 v{v10}, v{v10}, v{t+5}, vcc'); a(f'v_cndmask_b32 v{d11}, v{d11}, v{t+6}, vcc')
    a(f'v_and_b32 v{v8}, 1, v{v6}'); a(f'v_mul_u32_u24 v{v4}, {2*PQ}, v{v8}')
    a(f'v_mul_u32_u24 v{v8}, {PN}, v{v7}'); a(f'v_add_u32 v{v4}, v{v4}, v{v8}'); a(f'v_lshl_add_u32 v{v4}, v{v5}, 4, v{v4}')
    a(f'v_add_u32 v{d11}, v{d11}, v{v4}'); a(f'v_add_u32 v{v4}, v{v10}, v{v4}')
    a(f'v_lshrrev_b32 v{v8}, 2, v{v5}'); a(f'v_and_b32 v{v5}, 3, v{v5}'); a(f'v_lshl_add_u32 v{v5}, v{v5}, 2, v{v8}')
    a(f'v_lshlrev_b32 v{v5}, 3, v{v5}'); a(f'v_add_u32 v{v5}, v{v5}, v{v7}'); a(f'v_lshlrev_b32 v{v5}, 4, v{v5}')
    a('s_lshl_b32 s66, s37, 6'); a('s_add_u32 s66, s66, s36'); a(f'v_add_u32 v{v5}, s66, v{v5}')
    a(f'v_mul_u32_u24 v{v5}, {D*2}, v{v5}'); a(f'v_lshl_add_u32 v{v5}, v{v6}, 4, v{v5}'); a('s_mul_i32 s66, s38, 160'); a(f'v_add_u32 v{v5}, s66, v{v5}')

VB0, VB1 = 128, 144
def p2h_setup():
    a('s_cmp_ge_u32 s38, 4'); a('s_cselect_b32 s55, 1, 0')
    a('s_sub_u32 s67, 16, s36'); a('s_xor_b32 s68, s37, 1')
    a('s_cmp_eq_u32 s55, 1')
    a('s_cselect_b32 s67, s67, s36'); a('s_cselect_b32 s68, s68, s37')
    a('s_and_b32 s60, s67, 3'); a('s_lshl_b32 s60, s60, 7'); a(f's_add_u32 s60, s60, {WS_FV}')
    a('s_lshl_b32 s67, s67, 1'); a('s_add_u32 s67, s67, s68'); a(f's_mul_i32 s67, s67, {VROW}'); a(f's_add_u32 s56, s67, {WS_V}')
    a('s_lshl_b32 s57, s55, 9'); a('s_sub_u32 s57, 256, s57')
def fv_addr(v, t):
    if DF:
        a(f'v_lshrrev_b32 v{v}, 4, v0'); a(f'v_lshlrev_b32 v{v}, 9, v{v}'); a(f'v_and_b32 v{t}, 15, v0'); a(f'v_lshl_add_u32 v{v}, v{t}, 2, v{v}')
        return
    a('s_sub_u32 s66, 7, s38'); a('s_sub_u32 s67, s38, 1'); a('s_max_i32 s67, s67, 0')
    a('s_cmp_ge_u32 s38, 4'); a('s_cselect_b32 s67, s66, s67'); a('s_cselect_b32 s66, s66, s38')
    a(f'v_mov_b32 v{v}, s66'); a(f'v_mov_b32 v{t}, s67'); a(f'v_bfe_u32 v{t+1}, v0, 4, 1'); a(f'v_cmp_eq_u32 vcc, 0, v{t+1}'); a(f'v_and_b32 v{t+1}, 15, v0')
    a(f'v_cndmask_b32 v{v}, v{t}, v{v}, vcc'); a(f'v_lshlrev_b32 v{v}, 9, v{v}'); a(f'v_lshl_add_u32 v{v}, v{t+1}, 2, v{v}')
def pre_loop():
    for r in range(3):
        final_addr(256*r, FA[3*r], FA[3*r+1], FA[3*r+2], 40)
    a('s_cmp_ge_u32 s3, 2'); a('s_cselect_b32 s66, -1, 0'); a(f'v_or_b32 v{FA[7]}, s66, v{FA[7]}')
    fv_addr(VFL, 40)
    if DF:
        for dst, ei in ((VA0, 's3'), (VA4, '4')):
            a('s_mul_i32 s66, s38, 80'); a(f's_lshl_b32 s67, {ei}, 4'); a('s_add_u32 s66, s66, s67'); a('v_add_u32 v40, s66, v3')
            a('v_sub_u32 v41, 640, v40'); a('s_cmp_eq_u32 s55, 1'); a('s_cselect_b64 vcc, -1, 0'); a('s_nop 1')
            a('v_cndmask_b32 v40, v40, v41, vcc')
            a('v_and_b32 v41, 1, v40'); a('v_mul_u32_u24 v41, 160, v41'); a('v_add_u32 v42, 335, v40'); a('v_lshrrev_b32 v42, 1, v42'); a('v_sub_u32 v42, v42, v41')
            a('v_cmp_eq_u32 vcc, 0, v40'); a(f'v_mul_u32_u24 v43, {4*17*2*VROW}, v2'); a('s_nop 0')
            a('v_cndmask_b32 v42, v42, 7, vcc')
            a(f'v_lshl_add_u32 v{dst}, v42, 4, v43')
        return
    a('s_mul_i32 s66, s38, 80'); a('v_add_u32 v40, s66, v3')
    a('v_add_u32 v41, 7, v40'); a('v_sub_u32 v42, 647, v40')
    a('s_cmp_eq_u32 s55, 1'); a('s_cselect_b64 vcc, -1, 0')
    a(f'v_mul_u32_u24 v43, {4*17*2*VROW}, v2')
    a('v_cndmask_b32 v40, v41, v42, vcc')
    a('v_lshl_add_u32 v43, v40, 4, v43')
    a('s_mul_i32 s66, s3, s57'); a(f'v_add_u32 v{VA0}, s66, v43')
    a('s_lshl_b32 s66, s57, 2'); a(f'v_add_u32 v{VA4}, s66, v43')
def pre_epilogue():
    for r in range(3): a(f'buffer_load_dwordx4 v[{XR[r]}:{XR[r]+3}], v{FA[3*r+1]}, s[4:7], 0 offen {XP_}')
def v_loads():
    L = a.label('L_vl')
    a('s_mov_b32 s72, s56')
    for i in range(4):
        a(f'buffer_load_dwordx4 v[{VB0+4*i}:{VB0+3+4*i}], v{VA0}, s[12:15], s72 offen {LDH}')
        if i < 3: a(f's_add_u32 s72, s72, {17*2*VROW}')
    a('s_cmp_lg_u32 s3, 0'); a(f's_cbranch_scc1 {L}')
    a('s_mov_b32 s72, s56')
    for i in range(4):
        a(f'buffer_load_dwordx4 v[{VB1+4*i}:{VB1+3+4*i}], v{VA4}, s[12:15], s72 offen {LDH}')
        if i < 3: a(f's_add_u32 s72, s72, {17*2*VROW}')
    a(f'{L}:')

a('L_p2last:')
a('s_waitcnt vmcnt(0)')
lds_arrive(12, 2)
read_nonce(2)
p2_setup()
srd_from(16, 54, S*D*2)
if FWL: lds_wait('L_fwok', 44, 2, 1)
a('L_p2join:')
tick(7, 27)
NLATE = opt('nlate', 6)
WTOUCH = opt('wtouch', 0)
if WTOUCH:
    a('s_cmp_eq_u32 s35, 0'); a('s_cbranch_scc1 L_nwt')
    a('s_lshl_b32 s66, s32, 2'); a('s_add_u32 s66, s66, s44'); a('s_mul_i32 s66, s66, 23040')
    a('s_and_b32 s67, s38, 4'); a(f's_mul_i32 s67, s67, {48*5120}'); a('s_add_u32 s66, s66, s67'); a(f's_add_u32 s66, s66, {WS_WDT}')
    a('v_lshlrev_b32 v4, 7, v0')
    if WTOUCH == 2:
        for st in range(6): wdt_reg(st)
    for i in range(3):
        a(f'buffer_load_dword v8, v4, s[12:15], s66 offen {LDW}')
        if i < 2: a('s_add_u32 s66, s66, 8192')
    if WTOUCH == 2: a('s_branch L_p2d')
    a('L_nwt:')
for st in range(6): wdt_reg(st)
NLD = opt('nld', 2)
a('s_cmp_eq_u32 s35, 0')
a('s_cbranch_scc1 L_p2ffn')
if NLD < 6:
    for st in (6, 7): wdt_lds(st)
if NLD < 4:
    lds_wait('L_c8d', 16, 4)
    for st in (8, 9): wdt_lds(st)
a('s_branch L_p2d')
a('L_p2ffn:')
if NLATE < 6:
    for st in (6, 7): wdt_lds(st)
if NLATE < 4:
    lds_wait('L_c8', 16, 4)
    for st in (8, 9): wdt_lds(st)
if NLATE < 2:
    lds_wait('L_c9', 20, 4)
    for st in (10, 11): wdt_lds(st)
if AUXV:
    a('s_cmp_lg_u32 s44, 3'); a('s_cbranch_scc1 L_p2d')
    p2h_setup(); fv_addr(8, 9)
    a('s_mov_b32 s79, 0')
    a('L_av:')
    a('buffer_load_dword v9, v8, s[12:15], s60 offen sc1')
    a('s_waitcnt vmcnt(0)')
    a('v_cmp_ne_u32 vcc, s43, v9'); a('s_cmp_eq_u64 vcc, 0'); a('s_cbranch_scc1 L_av_ok')
    a('s_add_u32 s79, s79, 1'); a(f's_cmp_ge_u32 s79, {AUXV}'); a('s_cbranch_scc1 L_p2d')
    a('s_branch L_av')
    a('L_av_ok:')
    lds_arrive(28, 8)
a('L_p2d:')
tick(7, 28)
a(f'v_add_u32 v2, s73, v1')
a(f'v_add_u32 v3, {2*STG}, v2')
a('v_min_u32 v4, 5, v0'); a('v_lshrrev_b32 v5, 1, v4'); a('v_and_b32 v4, 1, v4'); a('v_lshlrev_b32 v4, 2, v4'); a('v_lshl_add_u32 v6, v5, 4, v4')
a('s_lshl_b32 s76, s36, 8'); a('s_mul_i32 s77, s44, 48'); a('s_add_u32 s76, s76, s77'); a('s_lshl_b32 s77, s37, 3'); a('s_add_u32 s76, s76, s77'); a(f's_add_u32 s76, s76, {WS_FH}')
a('s_lshl_b32 s74, s36, 3'); a('s_lshl_b32 s75, s37, 2'); a('s_add_u32 s74, s74, s75')
a('s_mul_i32 s74, s74, 48'); a('s_mul_i32 s75, s44, 12'); a('s_add_u32 s74, s74, s75'); a('s_lshl_b32 s74, s74, 10')
for i in range(80): a(f'v_mov_b32 v{P2ACC+i}, 0')
lds_wait('L_own', 0, 4, 5 if SENT else 4)
tick(7, 29)
stamp(2)
if TONE:
    a('s_cmp_eq_u32 s35, 0'); a('s_cbranch_scc1 L_p2f')
    for st in range(6, 12 - NLATE): wdt_lds(st)
    a('L_p2f:')
    for st in range(12 - NLATE, 12): wdt_lds(st)
    if HDLY: a(f's_sleep {HDLY}')

tick(7, 32)
def hsoff(step):
    kidx(step)
    a('s_lshl_b32 s72, s72, 10'); a(f's_add_u32 s72, s72, s74')
    if SENT: a(f's_mov_b32 s{66 + step % 4}, s72')
def hld(step, ni):
    r = P2H + 16*(step % 3) + 4*ni
    L = []
    if ni: L.append(f's_add_u32 s72, s72, {48*1024}')
    L.append(f'buffer_load_dwordx4 v[{r}:{r+3}], v1, {HSRD}, s72 offen {LDH}')
    return L
def hpoll(name, kp):
    spin_begin(name)
    a(f'buffer_load_dword v4, v6, s[12:15], s76 offen sc1')
    a('s_waitcnt vmcnt(0)')
    a(f'v_cmp_ne_u32 vcc, s43, v{4+kp}')
    a('s_cmp_eq_u64 vcc, 0')
    spin_end(name)
if not SENT: hpoll('L_pollh0', 0)
else: a('s_waitcnt vmcnt(0)'); a('s_mov_b32 s79, 0')
if VGO:
    a(f'v_mov_b32 v4, {L_CNT}'); a('v_mov_b32 v5, 1'); a('ds_write_b32 v4, v5 offset:40')
stamp(3)
tick(7, 33)
for st in range(3):
    hsoff(st)
    for ni in range(4):
        for ins in hld(st, ni): a(ins)
def pwrite(ni):
    return [f'ds_write_b128 v{2 if PT[ei] < 2*STG else 3}, v[{P2ACC+16*ei+4*ni}:{P2ACC+16*ei+4*ni+3}] offset:{PT[ei] + ni*PN - (0 if PT[ei] < 2*STG else 2*STG)}' for ei in range(5)]
for st in range(12):
    rem = min(2, 11 - st)
    RDD = opt('rdd', 2)
    if st == 6 - RDD: lds_wait('L_lw', 36, 4)
    if st < 9: hsoff(st + 3)
    if st == 11:
        a('v_and_b32 v2, 15, v0'); a('v_lshrrev_b32 v4, 4, v0')
        a(f'v_mul_u32_u24 v4, {PQ}, v4'); a('v_lshl_add_u32 v2, v2, 4, v4'); a('v_add_u32 v2, s73, v2'); a(f'v_add_u32 v3, {2*STG}, v2')
    a(f's_waitcnt vmcnt({4*rem})' + (' lgkmcnt(0)' if st >= 6 else ''))
    hb = P2H + 16*(st % 3)
    if SENT and not (HALF and st >= 6):
        a(f'L_hchk{st}:')
        a(f'v_max_u32 v4, v{hb}, v{hb+4}'); a(f'v_max3_u32 v4, v{hb+8}, v{hb+12}, v4')
        a('v_cmp_eq_u32 vcc, -1, v4'); a('s_cmp_lg_u64 vcc, 0')
        a(f's_cbranch_scc1 L_hretry{st}')
        a(f'L_hok{st}:')
    tick(7, 36 + st)
    w0 = P2W_R + 20*(st % 6)
    rd = []
    if 6 <= st + RDD <= 11:
        wr = P2W_R + 20*((st + RDD) % 6)
        for ei in range(5):
            o = P2STEP[st + RDD - 6] + ei*1024
            rd.append(f'ds_read_b128 v[{wr+4*ei}:{wr+4*ei+3}], v{2 if o < 2*STG else 3} offset:{o if o < 2*STG else o - 2*STG}')
    if F8 and st == 10:
        final_addr(0, 8, 9, 10, 11, rd.append)
    for ni in range(4):
        for ei in (range(5) if ni % 2 == 0 else range(4, -1, -1)):
            t = P2ACC + 16*ei + 4*ni
            h = hb + 4*ni
            a(f'v_mfma_f32_16x16x32_bf16 v[{t}:{t+3}], v[{w0+4*ei}:{w0+4*ei+3}], v[{h}:{h+3}], v[{t}:{t+3}]')
            for _ in range(3 if st == 10 else 1):
                if rd: a(rd.pop(0))
        if st < 9:
            for ins in hld(st + 3, ni): a(ins)
        if st == 11 and ni >= 2:
            for w in pwrite(ni - 2): a(w)
for w in pwrite(2): a(w)
a('s_nop 3')
for w in pwrite(3): a(w)
stamp(4)
tick(7, 48)
a('s_waitcnt lgkmcnt(0)')
a('s_barrier')
if F8:
    for p in range(5):
        reg = (8, 8, 8, 8, 10)[p]; off = (0, P2W, 2*P2W, 3*P2W, 0)[p]
        a(f'ds_read_b128 v[{56+8*p}:{59+8*p}], v{reg} offset:{off}')
        a(f'ds_read_b128 v[{60+8*p}:{63+8*p}], v{reg} offset:{off+PQ}')
    for p in range(1, 5):
        a(f's_waitcnt lgkmcnt({8 - 2*p})')
        for d in range(0, 8, 2): a(f'v_pk_add_f32 v[{56+d}:{57+d}], v[{56+d}:{57+d}], v[{56+8*p+d}:{57+8*p+d}]')
    for d in range(4): a(f'v_cvt_pk_bf16_f32 v{64+d}, v{56+2*d}, v{57+2*d}')
    a(f'buffer_store_dwordx4 v[64:67], v9, s[16:19], 0 offen {OUTP}')
tick_dump(7, 4)
a('s_branch L_fin2')
if SENT:
    for st in range(6 if HALF else 12):
        a(f'L_hretry{st}:')
        a('s_add_u32 s79, s79, 1'); a(f's_cmp_ge_u32 s79, {SPINMAX}')
        if STAMPS: a(f's_cselect_b32 s101, {60 + st}, s101')
        a(f's_cbranch_scc1 L_hok{st}')
        if RSL: a(f's_sleep {RSL}')
        a(f's_mov_b32 s77, s{66 + st % 4}')
        for ni in range(4):
            r = P2H + 16*(st % 3) + 4*ni
            if ni: a(f's_add_u32 s77, s77, {48*1024}')
            a(f'buffer_load_dwordx4 v[{r}:{r+3}], v1, {HSRD}, s77 offen {LDH}')
        a('s_waitcnt vmcnt(0)')
        a(f's_branch L_hchk{st}')

a('L_aux:')
if opt('aprio', 0): a(f"s_setprio {opt('aprio', 0)}")
common_srds()
AB = 248
a('v_mov_b32 v1, 0'); a(f'v_mov_b32 v3, {L_CNT}')
a('s_mov_b64 exec, 1')
a('s_cmp_lg_u32 s2, 0'); a('s_cbranch_scc1 L_aux_n0')
a('s_memrealtime s[66:67]'); a('s_waitcnt lgkmcnt(0)'); a('s_or_b32 s66, s66, 1'); a('v_mov_b32 v2, s66')
a('buffer_store_dword v2, v1, s[24:27], 0 offen sc1')
a('L_aux_n0:')
[a(f'ds_write_b32 v3, v1 offset:{4*i}') for i in range(14)]
a('s_mov_b64 exec, -1')
if CODEPF:
    a('s_getpc_b64 s[66:67]')
    a('L_pcref:')
    a(f's_sub_u32 s66, s66, L_pcref-{KNAME}'); a('s_subb_u32 s67, s67, 0')
    a('s_mul_i32 s68, s41, 9')
    a('v_add_u32 v4, s68, v0'); a('v_lshlrev_b32 v4, 7, v4')
    a(f'v_min_u32 v4, L_done-{KNAME}, v4')
    a('s_mov_b64 exec, 0x1ff')
    a(f'global_load_dword v{AB+7}, v4, s[66:67]')
    a('s_mov_b64 exec, -1')
if PFW:
    pf_first, pf_n0 = map(int, PFW.split(','))
    a('v_lshrrev_b32 v14, 4, v0'); a('s_mul_i32 s66, s30, 3'); a('v_add_u32 v14, s66, v14'); a('v_lshlrev_b32 v14, 8, v14')
    a('v_bfe_u32 v15, v0, 1, 3'); a('s_lshl_b32 s66, s32, 3'); a('v_add_u32 v15, s66, v15'); a(f'v_mul_u32_u24 v15, {F*2}, v15'); a('v_add_u32 v14, v14, v15')
    a('v_and_b32 v15, 1, v0'); a('v_lshl_add_u32 v14, v15, 7, v14')
    srd(a, 8, 48, D*F*2); srd(a, 52, 50, D*F*2)
    a(f's_add_u32 s64, s34, {pf_first}'); a(f's_mov_b32 s61, {pf_first}')
    PFC = opts.get('pfc', '1111111')
    a(f's_mov_b32 s60, {sum(int(c) << (4*i) for i, c in enumerate(PFC))}')
    def pfw():
        L = a.label('L_pf')
        a('s_and_b32 s62, s60, 15'); a('s_lshr_b32 s60, s60, 4')
        a(f'{L}_n:')
        a('s_cmp_eq_u32 s62, 0'); a(f's_cbranch_scc1 {L}')
        pfw1(L)
        a('s_sub_u32 s62, s62, 1'); a(f's_branch {L}_n')
        a(f'{L}:')
    def pfw0():
        L = a.label('L_pf')
        pfw1(L)
        a(f'{L}:')
    def pfw1(L):
        a('s_cmp_eq_u32 s35, 0'); a(f's_cbranch_scc1 {L}')
        a(f"s_cmp_ge_u32 s61, {opt('pfl', 6)}"); a(f's_cbranch_scc1 {L}')
        a('s_cmp_ge_u32 s64, 10'); a('s_cselect_b32 s66, 10, 0'); a('s_sub_u32 s64, s64, s66'); a(f's_mul_i32 s66, s64, {64*F*2}')
        a('s_mov_b32 exec_hi, 0xffff')
        a(f'buffer_load_dword v15, v14, s[8:11], s66 offen {PFP}'); a(f'buffer_load_dword v15, v14, s[52:55], s66 offen {PFP}')
        a('s_mov_b64 exec, -1')
        a('s_add_u32 s64, s64, 1'); a('s_add_u32 s61, s61, 1')
    for _ in range(pf_n0): pfw0()
else:
    def pfw(): pass
def wda_load():
    a('v_lshrrev_b32 v4, 4, v0'); a('v_and_b32 v5, 15, v0')
    a(f'v_mul_u32_u24 v4, {D*2}, v4'); a('v_lshl_add_u32 v4, v5, 4, v4')
    a(f's_mul_i32 s68, s56, {32*D*2}'); a('s_lshl_b32 s69, s57, 8'); a('s_add_u32 s68, s68, s69')
    for i in range(8):
        a(f's_mov_b32 m0, {L_WD + i*1024}')
        if i: a(f's_add_u32 s68, s68, {4*D*2}')
        else: a('s_nop 0')
        a(f'buffer_load_dwordx4 v4, s[20:23], s68 offen {WP_} lds')
if WDA:
    wi, wj, wk = map(int, WDA.split(','))
    a(f's_mul_hi_u32 s56, s2, {-(-(1<<32)//5)}'); a('s_mul_i32 s57, s56, 5'); a('s_sub_u32 s57, s2, s57')
    if wi < 0:
        a('s_cmp_ge_u32 s2, 240'); a('s_cbranch_scc1 L_wda0'); wda_load(); a('L_wda0:')
for i in range(48, 56): a(f'v_mov_b32 v{i}, 0')
a('v_lshrrev_b32 v4, 2, v0'); a('v_and_b32 v5, 3, v4'); a('v_bfe_u32 v6, v4, 3, 1'); a('v_lshl_or_b32 v5, v6, 2, v5'); a('v_lshlrev_b32 v5, 1, v5')
a('s_and_b32 s66, s32, 3'); a('s_lshl_b32 s66, s66, 2')
a('v_and_b32 v6, 3, v0'); a('v_add_u32 v6, s66, v6'); a('v_xor_b32 v5, v5, v6')
a('v_lshlrev_b32 v4, 8, v4'); a(f'v_lshl_add_u32 v{AB+1}, v5, 4, v4')
a('s_lshr_b32 s66, s32, 2'); a('s_lshl_b32 s66, s66, 14'); a(f'v_add_u32 v{AB+1}, s66, v{AB+1}')
a('s_cmp_eq_u32 s35, 0'); a('s_cbranch_scc1 L_aux_w')
a('s_and_b32 s67, s32, 3'); a(f's_mul_i32 s67, s67, {20*128}'); a('s_add_u32 s66, s66, s67')
a(f'v_lshlrev_b32 v{AB+1}, 4, v0'); a(f'v_add_u32 v{AB+1}, s66, v{AB+1}')
a('L_aux_w:')
a('s_mov_b32 s46, 0')
a('s_lshl_b32 s77, s29, 1'); a('s_add_u32 s77, s77, s31'); a('s_lshl_b32 s77, s77, 11'); a('s_lshr_b32 s67, s32, 2'); a('s_lshl_b32 s67, s67, 10'); a('s_add_u32 s77, s77, s67'); a(f's_add_u32 s77, s77, {WS_WP}')
a('s_and_b32 s67, s32, 3'); a('s_cmp_eq_u32 s35, 1'); a('s_cselect_b32 s68, 20, 32'); a('s_mul_i32 s67, s67, s68'); a('s_lshl_b32 s67, s67, 3'); a('s_add_u32 s77, s77, s67')
a(f'v_min_u32 v{AB+6}, 47, v0'); a(f'v_lshlrev_b32 v{AB+6}, 2, v{AB+6}')
a('s_mul_i32 s74, s38, 80'); a('s_add_u32 s75, s74, 79'); a('s_lshr_b32 s74, s74, 7'); a('s_lshr_b32 s75, s75, 7')
a('s_lshl_b32 s74, s74, 8'); a('s_lshl_b32 s75, s75, 8'); a(f's_add_u32 s74, s74, {WS_FW}'); a(f's_add_u32 s75, s75, {WS_FW}')
if SENT:
    for i in range(4): a(f'v_mov_b32 v{8+i}, -1')
    a('v_lshlrev_b32 v12, 4, v0')
    a(f's_mul_i32 s76, s28, {8*48*1024}')
    if RDFT: a('s_mul_i32 s67, s30, 12288')
    else: a('s_lshl_b32 s67, s29, 12')
    a('s_add_u32 s76, s76, s67')
a('s_mov_b32 s47, 0'); a('s_mov_b32 s42, 0')
a('s_waitcnt lgkmcnt(0)')
a('L_aux_l:')
tick(7, ('s47', 0))
a('s_barrier')
tick(7, ('s47', 16))
pfw()
a(f'v_add_u32 v{AB+3}, s46, v{AB+1}')
a('s_add_u32 s66, s47, s35') if opt('non2', 1) else a('s_add_u32 s66, s47, 1')
a(f's_cmp_lg_u32 s47, {NONIT-1}'); a('s_cbranch_scc1 L_aux_nb')
a('s_mov_b64 exec, 1'); a('buffer_load_dword v2, v1, s[24:27], 0 offen sc1'); a('s_mov_b64 exec, -1')
a('L_aux_nb:')
a(f's_cmp_lg_u32 s66, {NONIT+1}'); a('s_cbranch_scc1 L_aux_na')
a('s_mov_b32 s79, 0')
a('L_non:')
a('s_waitcnt vmcnt(0)')
a('v_readfirstlane_b32 s43, v2')
a('s_cmp_lg_u32 s43, 0'); a('s_cbranch_scc1 L_non_ok')
a('s_add_u32 s79, s79, 1'); a(f's_cmp_ge_u32 s79, {SPINMAX}'); (a('s_cselect_b32 s101, 51, s101') if STAMPS else None); a('s_cbranch_scc1 L_non_ok')
a('s_sleep 4')
a('s_mov_b64 exec, 1'); a('buffer_load_dword v2, v1, s[24:27], 0 offen sc1'); a('s_mov_b64 exec, -1')
a('s_branch L_non')
a('L_non_ok:')
a('v_mov_b32 v2, s43'); a(f'v_mov_b32 v3, {L_NON}'); a('ds_write_b32 v3, v2')
if not WDA:
    a('s_cmp_ge_u32 s2, 240'); a('s_cbranch_scc1 L_aux_na')
    a(f's_mul_hi_u32 s66, s2, {-(-(1<<32)//5)}'); a('s_mul_i32 s67, s66, 5'); a('s_sub_u32 s67, s2, s67')
    a('s_lshl_b32 s67, s67, 8'); a('s_lshl_b32 s66, s66, 2'); a('s_add_u32 s66, s66, s67'); a(f's_add_u32 s66, s66, {WS_FW}')
    a('s_mov_b64 exec, 1'); a('buffer_store_dword v2, v1, s[12:15], s66 offen sc1'); a('s_mov_b64 exec, -1')
a('L_aux_na:')
if WDA:
    a('s_cmp_ge_u32 s2, 240'); a('s_cbranch_scc1 L_aux_nw')
    if wi >= 0:
        a(f's_cmp_lg_u32 s47, {wi}'); a('s_cbranch_scc1 L_aux_w1'); wda_load(); a('L_aux_w1:')
    a(f's_cmp_lg_u32 s47, {wj}'); a('s_cbranch_scc1 L_aux_w2')
    a('v_lshrrev_b32 v4, 2, v0'); a('v_lshlrev_b32 v4, 8, v4'); a('v_and_b32 v5, 3, v0'); a('v_lshl_add_u32 v4, v5, 3, v4')
    a(f'v_add_u32 v4, {L_WD}, v4')
    a('v_lshlrev_b32 v6, 4, v0')
    a('s_waitcnt vmcnt(0)')
    for e in range(8):
        for b in range(2):
            a(f'ds_read_b64_tr_b16 v[{64+4*e+2*b}:{65+4*e+2*b}], v4 offset:{32*e + 4096*b}')
    a('s_lshl_b32 s63, s57, 3')
    a(f's_mul_i32 s65, s56, 5120'); a(f's_add_u32 s65, s65, {WS_WDT}')
    a('s_waitcnt lgkmcnt(0)')
    for e in range(8):
        a(f's_add_u32 s68, s63, {e}')
        a(f's_mul_hi_u32 s69, s68, {-(-(1<<32)//5)}')
        a('s_mul_i32 s70, s69, 5'); a('s_sub_u32 s70, s68, s70')
        a(f's_mul_i32 s69, s69, {48*5120}'); a('s_lshl_b32 s70, s70, 10')
        a('s_add_u32 s69, s69, s70'); a('s_add_u32 s69, s69, s65')
        a(f'buffer_store_dwordx4 v[{64+4*e}:{67+4*e}], v6, s[12:15], s69 offen sc1')
    a('L_aux_w2:')
    a(f's_cmp_lg_u32 s47, {wk}'); a('s_cbranch_scc1 L_aux_nw')
    a('s_lshl_b32 s67, s57, 8'); a('s_lshl_b32 s66, s56, 2'); a('s_add_u32 s66, s66, s67'); a(f's_add_u32 s66, s66, {WS_FW}')
    a('s_waitcnt vmcnt(0)')
    a('s_mov_b64 exec, 1'); a('buffer_store_dword v2, v1, s[12:15], s66 offen sc1'); a('s_mov_b64 exec, -1')
    a('L_aux_nw:')
def fw_ask():
    a(f'buffer_load_dword v{AB+2}, v{AB+6}, s[12:15], s74 offen sc1'); a(f'buffer_load_dword v{AB+3}, v{AB+6}, s[12:15], s75 offen sc1')
def fw_ask2():
    a(f'buffer_load_dword v62, v{AB+6}, s[12:15], s74 offen sc1'); a(f'buffer_load_dword v63, v{AB+6}, s[12:15], s75 offen sc1')
def fw_check(nm):
    a('s_mov_b32 s79, 0')
    a(f'{nm}:')
    a('s_waitcnt vmcnt(0)')
    a('v_cmp_ne_u32 vcc, s43, v62'); a('v_cmp_ne_u32 s[66:67], s43, v63'); a('s_or_b64 vcc, vcc, s[66:67]')
    a(f's_cbranch_scc0 {nm}_ok')
    a('s_add_u32 s79, s79, 1'); a(f's_cmp_ge_u32 s79, {SPINMAX}'); (a('s_cselect_b32 s101, 52, s101') if STAMPS else None); a(f's_cbranch_scc1 {nm}_ok')
    a('s_sleep 4')
    fw_ask2()
    a(f's_branch {nm}')
    a(f'{nm}_ok:')

T0, T1 = AB + 4, AB + 5
if SENT:
    RS0 = opt('rs0', 3)
    def resets(n):
        L = a.label('L_rs')
        a(f's_cmp_eq_u32 s35, {0 if RDFT else 1}'); a(f's_cbranch_scc1 {L}')
        if RDFT:
            for t in range(n // 12):
                for g in range(3):
                    for i in ((1, 3) if HALF else range(4)): a(f'buffer_store_dwordx4 v[8:11], v12, s[12:15], s76 offen offset:{i*1024} sc1')
                    a(f's_add_u32 s76, s76, {4096 if g < 2 else 48*1024 - 8192}')
        else:
            for i in range(n):
                if not (HALF and i % 2 == 0): a(f'buffer_store_dwordx4 v[8:11], v12, s[12:15], s76 offen offset:{(i % 4)*1024} {RSP}')
                if i % 4 == 3: a(f's_add_u32 s76, s76, {48*1024}')
        a(f'{L}:')
    if RSEQ:
        assert sum(map(int, RSEQ)) == 8
        a(f's_lshr_b32 s63, {sum(int(c) << (4*i) for i, c in enumerate(RSEQ[:5]))}, s42'); a('s_and_b32 s63, s63, 15'); a('s_add_u32 s42, s42, 4')
        a('L_aux_rr:')
        a('s_cmp_eq_u32 s63, 0'); a('s_cbranch_scc1 L_aux_nr')
        resets(12)
        a('s_sub_u32 s63, s63, 1'); a('s_branch L_aux_rr')
    else:
        a(f's_cmp_lt_u32 s47, {RS0}'); a('s_cbranch_scc1 L_aux_nr')
        resets(12 if RDFT else 8)
    a('L_aux_nr:')
a('s_cmp_eq_u32 s35, 1'); a('s_cbranch_scc1 L_aux_c')
for i in range(4): a(f'ds_read_b128 v[{24+4*i}:{27+4*i}], v{AB+3} offset:{i*4096}')
a('s_waitcnt lgkmcnt(0)')
for i in range(4):
    for d in range(4):
        r = 24 + 4*i + d
        a(f'v_lshlrev_b32 v{T0}, 16, v{r}'); a(f'v_and_b32 v{T1}, 0xffff0000, v{r}')
        a(f'v_add_f32 v{48+2*d}, v{48+2*d}, v{T0}'); a(f'v_add_f32 v{49+2*d}, v{49+2*d}, v{T1}')
a('s_branch L_aux_x')
a('L_aux_c:')
if NOCS: a('s_branch L_aux_x')
if DF: a('s_bitcmp1_b32 s47, 0'); a('s_cbranch_scc0 L_aux_x')
def csum():
    for i in range(3): a(f'ds_read_b128 v[{24+4*i}:{27+4*i}], v{AB+3} offset:{i*1024}')
    a('s_waitcnt lgkmcnt(0)')
    for i in range(3):
        for d in range(4):
            r = 24 + 4*i + d
            a(f'v_lshlrev_b32 v{T0}, 16, v{r}'); a(f'v_and_b32 v{T1}, 0xffff0000, v{r}')
            a(f'v_add_f32 v{48+2*i}, v{48+2*i}, v{T0}'); a(f'v_add_f32 v{49+2*i}, v{49+2*i}, v{T1}')
if not NOCS: csum()
a('L_aux_x:')
a(f's_add_u32 s46, s46, {STG}'); a(f's_cmp_eq_u32 s46, {3*STG}'); a('s_cselect_b32 s46, 0, s46')
a('s_add_u32 s47, s47, 1'); a('s_cmp_lt_u32 s47, 5'); a('s_cbranch_scc1 L_aux_l')
def fr_pub():
    a('s_lshl_b32 s66, s28, 8'); a('s_lshl_b32 s67, s29, 2'); a('s_add_u32 s66, s66, s67'); a(f's_add_u32 s66, s66, {WS_FH}')
    a('v_mov_b32 v4, s43'); a('v_mov_b32 v5, 0')
    a('s_waitcnt vmcnt(0)')
    a('s_mov_b64 exec, 1'); a('buffer_store_dword v4, v5, s[12:15], s66 offen sc1'); a('s_mov_b64 exec, -1')
tick(7, 5)
a('s_barrier')
tick(7, 21)
if FRB == 5: fr_pub()
pfw()
if RSEQ: resets(12*int(RSEQ[5]))
elif RDFT: resets(12*(RS0 + 3 - (RS0 + 3)//2))
elif RS0 >= 2: resets(12 if RS0 == 4 else 8)
p2_setup()
def red8(regs):
    for mod in ('quad_perm:[1,0,3,2]', 'quad_perm:[2,3,0,1]', 'row_half_mirror'):
        a('s_nop 1')
        for r in regs: a(f'v_add_f32_dpp v{r}, v{r}, v{r} {mod} row_mask:0xf bank_mask:0xf')
a('s_cmp_eq_u32 s35, 1'); a('s_cbranch_scc1 L_aux_pc')
for mod in ('row_ror:4', 'row_ror:8'):
    a('s_nop 1')
    for r in range(48, 56): a(f'v_add_f32_dpp v{r}, v{r}, v{r} {mod} row_mask:0xf bank_mask:0xf')
for sw in ('v_permlane16_swap_b32', 'v_permlane32_swap_b32'):
    for r in range(48, 56): a(f'v_mov_b32 v{r-24}, v{r}')
    a('s_nop 1')
    for r in range(48, 56): a(f'{sw} v{r}, v{r-24}')
    a('s_nop 1')
    for r in range(48, 56): a(f'v_add_f32 v{r}, v{r}, v{r-24}')
for d in range(4):
    a(f'v_cmp_eq_u32 vcc, {d}, v6') if d else a('v_lshrrev_b32 v6, 2, v0')
    if d == 0:
        a('v_mov_b32 v24, v48'); a('v_mov_b32 v26, v49')
    else:
        a('s_nop 1'); a(f'v_cndmask_b32 v24, v24, v{48+2*d}, vcc'); a(f'v_cndmask_b32 v26, v26, v{49+2*d}, vcc')
a('v_mov_b32 v25, s43'); a('v_mov_b32 v27, s43')
a('v_and_b32 v4, 3, v0'); a('v_lshlrev_b32 v4, 6, v4'); a('v_lshl_add_u32 v4, v6, 4, v4')
a('s_mov_b64 exec, 0xffff')
a('buffer_store_dwordx4 v[24:27], v4, s[12:15], s77 offen sc1')
a('s_branch L_aux_pub')
a('L_aux_pc:')
if NOCS: a('s_branch L_aux_pub')
if not NOCS:
    if DF:
        a('s_cmp_eq_u32 s31, 1'); a('s_cbranch_scc1 L_aux_c5')
        a(f'v_add_u32 v{AB+3}, s46, v{AB+1}')
        csum()
        a('L_aux_c5:')
        a('s_and_b32 s66, s30, 1'); a('s_lshl_b32 s66, s66, 30')
    for i in range(3):
        a(f'v_add_f32 v{48+i*2}, v{48+i*2}, v{49+i*2}')
        if DF: a(f'v_mul_f32 v{48+i*2}, s66, v{48+i*2}')
    red8([48, 50, 52])
    for i in range(3): a(f'v_mov_b32 v{49+i*2}, s43')
    a('s_mov_b32 exec_lo, 0x01010101'); a('s_mov_b32 exec_hi, 0x01010101')
    a('buffer_store_dwordx2 v[48:49], v0, s[12:15], s77 offen sc1')
    a('buffer_store_dwordx2 v[50:51], v0, s[12:15], s77 offen offset:64 sc1')
    a('s_mov_b32 exec_hi, 0')
    a('buffer_store_dwordx2 v[52:53], v0, s[12:15], s77 offen offset:128 sc1')
a('L_aux_pub:')
a('s_mov_b64 exec, -1')
a('s_lshl_b32 s48, s28, 13'); a(f's_add_u32 s48, s48, {WS_XP}'); a('s_add_u32 s50, s48, 4096')
a('s_lshl_b32 s49, s29, 12'); a(f's_add_u32 s49, s49, {WS_WP}')
def gather():
    for i in range(8): a(f'buffer_load_dwordx4 v[{8+4*i}:{11+4*i}], v1, s[12:15], s{48 if i < 4 else 50} offen offset:{(i%4)*1024} sc1')
    Lg = a.label('L_gw')
    if NOCS: a('s_cmp_eq_u32 s35, 1'); a(f's_cbranch_scc1 {Lg}')
    for i in range(4): a(f'buffer_load_dwordx4 v[{40+4*i}:{43+4*i}], v1, s[12:15], s49 offen offset:{i*1024} sc1')
    a(f'{Lg}:')
    a(f'buffer_load_dword v{AB+1}, v{AB}, s[12:15], s65 offen sc1')
    if FWL: fw_ask2()
a(f's_mov_b32 s65, {WS_FH}')
if RDFT:
    a(f'v_and_b32 v{AB}, 3, v0'); a(f'v_lshlrev_b32 v{AB}, 2, v{AB}'); a('s_lshl_b32 s69, s36, 8'); a('s_add_u32 s69, s69, 48'); a(f'v_add_u32 v{AB}, s69, v{AB}')
    a('s_lshl_b32 s69, s28, 8'); a('s_lshl_b32 s63, s30, 2'); a('s_add_u32 s69, s69, s63'); a('s_add_u32 s69, s69, 48'); a('v_mov_b32 v4, s69')
    a('v_cmp_gt_u32 vcc, 16, v0'); a('s_nop 1'); a(f'v_cndmask_b32 v{AB}, v4, v{AB}, vcc')
else:
    a(f'v_min_u32 v{AB}, 11, v0'); a(f'v_lshlrev_b32 v{AB}, 2, v{AB}'); a('s_lshl_b32 s69, s36, 8'); a(f'v_add_u32 v{AB}, s69, v{AB}')
GAT = opt('gat', 78)
tick(7, 6)
a('s_barrier')
tick(7, 22)
if FRB == 6: fr_pub()
pfw()
if RSEQ: resets(12*int(RSEQ[6]))
elif RDFT: resets(12*((RS0 + 3)//2))
elif RS0 >= 3: resets(12 if RS0 == 4 else 8)
if not FWL: fw_ask2()
if GAT == 68:
    a('s_cmp_eq_u32 s35, 0'); a('s_cbranch_scc1 L_g6'); gather(); a('L_g6:')
tick(7, 7)
a('s_barrier')
tick(7, 23)
if not FWL: fw_check('L_pollwf')
else: a('s_waitcnt vmcnt(0)')
if FRB == 7: fr_pub()
if GAT == 7: gather()
if GAT == 78:
    a('s_cmp_eq_u32 s35, 0'); a('s_cbranch_scc1 L_g7'); gather(); a('L_g7:')
a('s_cmp_eq_u32 s35, 1'); a(f's_cselect_b32 s69, {0 if NOCS else 40}, 64'); a('v_cmp_gt_u32 s[76:77], s69, v0')
if GAT == 68: a('s_cmp_eq_u32 s35, 1'); a('s_cbranch_scc1 L_g8x')
tick(7, 8)
a('s_barrier')
tick(7, 24)
if GAT in (8, 68): gather()
a('L_g8x:')
if GAT == 78:
    a('s_cmp_eq_u32 s35, 1'); a('s_cbranch_scc1 L_g8'); gather(); a('L_g8:')
a('s_mov_b32 s79, 0')
a('s_waitcnt vmcnt(0)')
a('L_gchk:')
a(f'v_xor_b32 v2, s43, v{AB+1}'); a('s_sub_u32 s64, s35, 1' if RDFT and not FRSEP else 's_mov_b32 s64, 0'); a('v_and_b32 v2, s64, v2')
for i in range(0, 8): a(f'v_xor_b32 v3, s43, v{10+4*i}'); a('v_or_b32 v2, v2, v3')
a('v_xor_b32 v4, s43, v41')
for r in (43, 45, 47, 49, 51, 53, 55): a(f'v_xor_b32 v3, s43, v{r}'); a('v_or_b32 v4, v4, v3')
if FWL: a('v_xor_b32 v3, s43, v62'); a('v_or_b32 v2, v2, v3'); a('v_xor_b32 v3, s43, v63'); a('v_or_b32 v2, v2, v3')
a('v_cmp_ne_u32 vcc, 0, v4'); a('s_and_b64 s[62:63], vcc, s[76:77]')
a('v_cmp_ne_u32 vcc, 0, v2'); a('s_or_b64 s[62:63], s[62:63], vcc')
a('s_cbranch_scc0 L_gok')
a('s_add_u32 s79, s79, 1'); a(f's_cmp_ge_u32 s79, {SPINMAX}'); (a('s_cselect_b32 s101, 50, s101') if STAMPS else None); a('s_cbranch_scc1 L_gok')
a('s_sleep 4')
gather()
a('s_waitcnt vmcnt(0)')
a('s_branch L_gchk')
a('L_gok:')
if FWL: lds_arrive(44, 2)
tick(7, 9)
for h in range(2):
    for d in range(2):
        b = 8 + 4*h + d
        a(f'v_add_f32 v{b}, v{b}, v{b+8}'); a(f'v_add_f32 v{b+16}, v{b+16}, v{b+24}'); a(f'v_add_f32 v{b}, v{b}, v{b+16}')
    a(f'v_add_f32 v{40+4*h}, v{40+4*h}, v{48+4*h}'); a(f'v_add_f32 v{41+4*h}, v{42+4*h}, v{50+4*h}')
a('v_lshlrev_b32 v2, 3, v0'); a(f'v_add_u32 v2, {L_CS}, v2')
a('ds_write_b64 v2, v[40:41]'); a('ds_write_b64 v2, v[44:45] offset:512')
for (s_, q_, ro, mo) in ((8, 9, 16, 18), (12, 13, 17, 19)):
    a(f'v_mul_f32 v{mo}, {1.0/D!r}, v{s_}')
    a(f'v_mul_f32 v{q_}, {1.0/D!r}, v{q_}')
    a(f'v_fma_f32 v{q_}, -v{mo}, v{mo}, v{q_}')
    a(f'v_max_f32 v{q_}, 0, v{q_}')
    rbf(mo); rbf(q_)
    a(f'v_add_f32 v{q_}, 0x3727c5ac, v{q_}')
    rbf(q_)
    a(f'v_sqrt_f32 v{q_}, v{q_}'); a('s_nop 0')
    rbf(q_)
    a(f'v_rcp_f32 v{ro}, v{q_}')
    a(f'v_fmac_f32 v{s_}, {-float(D)!r}, v{mo}')
    a(f'v_mul_f32 v{s_}, v{s_}, v{ro}')
a('v_lshlrev_b32 v2, 2, v0'); a(f'v_add_u32 v2, {L_R}, v2')
a(f'ds_write_b32 v2, v8 offset:{L_A0 - L_R}'); a(f'ds_write_b32 v2, v12 offset:{L_A0 - L_R + 256}')
a('ds_write_b32 v2, v16'); a('ds_write_b32 v2, v17 offset:256'); a('ds_write_b32 v2, v18 offset:512'); a('ds_write_b32 v2, v19 offset:768')
lds_arrive(24, 2)
tick(7, 10)
if GAT == 68:
    a('s_cmp_eq_u32 s35, 0'); a('s_cbranch_scc1 L_g8y')
    a('s_barrier')
    a('L_g8y:')
a(f'v_cmp_ne_u32 vcc, s43, v{AB+1}'); a('s_cmp_eq_u64 vcc, 0'); a('s_cbranch_scc1 L_pollr_ok')
spin_begin('L_pollr')
a(f'buffer_load_dword v{AB+1}, v{AB}, s[12:15], s65 offen sc1')
a('s_waitcnt vmcnt(0)')
a(f'v_cmp_ne_u32 vcc, s43, v{AB+1}'); a('s_cmp_eq_u64 vcc, 0')
spin_end('L_pollr')
lds_arrive(0, 2)
if RDFT and FRSEP: lds_arrive(48, 2)
if opt('aprio', 0): a('s_setprio 0')
a('s_branch L_p2join')

a('L_compute:')
common_srds()
a(f's_mov_b32 s50, {(-2*STG) & 0xffffffff}'); a(f's_mov_b32 s51, {STG}')
a('s_mov_b32 s46, 0'); a('s_mov_b32 s47, 0')
p2h_setup()
a('v_lshrrev_b32 v2, 4, v0')
a('v_and_b32 v3, 15, v0')
a('v_bfe_u32 v6, v0, 1, 3'); a('v_xor_b32 v6, v6, v2')
def wd_issue():
    Lw = a.label('L_nowd')
    a(f"s_cmp_ge_u32 s2, {0 if opt('nowd', 0) else 240}")
    a(f's_cbranch_scc1 {Lw}')
    a(f's_mul_hi_u32 s76, s2, {-(-(1<<32)//5)}'); a('s_mul_i32 s77, s76, 5'); a('s_sub_u32 s77, s2, s77')
    a('v_lshrrev_b32 v36, 2, v0'); a('v_and_b32 v37, 3, v0')
    a(f'v_mul_u32_u24 v38, {D*2}, v36'); a('v_lshl_add_u32 v38, v37, 4, v38')
    a(f's_mul_i32 s68, s76, {32*D*2}'); a('s_lshl_b32 s69, s77, 8'); a('s_add_u32 s68, s68, s69'); a('s_lshl_b32 s69, s3, 6'); a('s_add_u32 s68, s68, s69')
    a('s_lshl_b32 s70, s3, 11'); a(f's_add_u32 s70, s70, {L_WD}')
    a('s_mov_b32 m0, s70'); a('s_nop 0')
    a(f'buffer_load_dwordx4 v38, s[20:23], s68 offen {WP_} lds')
    a('s_add_u32 m0, s70, 1024'); a(f's_add_u32 s68, s68, {16*D*2}')
    a(f'buffer_load_dwordx4 v38, s[20:23], s68 offen {WP_} lds')
    a(f'{Lw}:')
WDL = opt('wdlate', 1) if not WDA else 9
if WDL == 0: wd_issue()
def wd_finish():
    if WDA: return
    if WDL == 2: wd_issue()
    L = a.label('L_wdf')
    a(f"s_cmp_ge_u32 s2, {0 if opt('nowd', 0) else 240}"); a(f's_cbranch_scc1 {L}')
    a('v_lshlrev_b32 v36, 6, v36'); a('v_lshl_add_u32 v36, v37, 3, v36'); a('v_add_u32 v36, s70, v36')
    a('v_lshlrev_b32 v37, 4, v0')
    a('s_lshl_b32 s77, s77, 3'); a('s_lshl_b32 s68, s3, 1'); a('s_add_u32 s77, s77, s68')
    a(f's_mul_i32 s76, s76, 5120'); a(f's_add_u32 s76, s76, {WS_WDT}')
    a('s_waitcnt vmcnt(0)')
    for e in range(2):
        for b in range(2):
            a(f'ds_read_b64_tr_b16 v[{48+4*e+2*b}:{49+4*e+2*b}], v36 offset:{32*e + 1024*b}')
    for e in range(2):
        a(f's_add_u32 s68, s77, {e}')
        a(f's_mul_hi_u32 s69, s68, {-(-(1<<32)//5)}')
        a('s_mul_i32 s70, s69, 5'); a('s_sub_u32 s70, s68, s70')
        a(f's_mul_i32 s69, s69, {48*5120}'); a('s_lshl_b32 s70, s70, 10')
        a('s_add_u32 s69, s69, s70'); a('s_add_u32 s69, s69, s76')
        a('s_waitcnt lgkmcnt(0)')
        a(f'buffer_store_dwordx4 v[{48+4*e}:{51+4*e}], v37, s[12:15], s69 offen sc1')
    a(f'{L}:')
pre_loop()
if WDL == 1: wd_issue()
a('s_cmp_eq_u32 s35, 1')
a('s_cbranch_scc1 L_dft')
def interleave(M, R):
    out = []; R = list(R)
    for m in M:
        out.append(m)
        if R: out.append(R.pop(0))
    return out + R
tails = []
def mid_sync(last):
    L = a.label('L_ms')
    a('s_cmp_ge_u32 s47, 8'); a(f's_cbranch_scc1 {L}_t')
    a('s_barrier')
    a(f'{L}_b:')
    tails.append((L, last))
CNTRD = 'ds_read2_b32 v[14:15], v6 offset0:3 offset1:6'
def emit_tails():
    for L, last in tails:
        a(f'{L}_t:')
        a('s_mov_b64 exec, 1')
        a('s_cmp_eq_u32 s47, 9'); a(f's_cbranch_scc1 {L}_9')
        a('ds_add_u32 v6, v5 offset:16')
        a('s_mov_b64 exec, -1')
        a('v_readfirstlane_b32 s78, v14')
        a('s_cmp_ge_u32 s78, 3'); a(f's_cbranch_scc1 {L}_b')
        lds_wait(f'{L}_w', 12, 14, 3)
        a(f's_branch {L}_b')
        a(f'{L}_9:')
        a('ds_add_u32 v6, v5 offset:20')
        a('s_mov_b64 exec, -1')
        a(f's_branch {last}')
    tails.clear()
def stats_wait(name):
    a('v_readfirstlane_b32 s78, v15')
    a('s_cmp_ge_u32 s78, 1'); a(f's_cbranch_scc1 {name}_ok')
    lds_wait(name, 24, 14, 1)
def slot_advance():
    a('s_add_u32 s46, s46, 1'); a('s_cmp_eq_u32 s46, 3'); a('s_cselect_b32 s42, s50, s51'); a('s_cselect_b32 s46, 0, s46')
ACC = 128
def T16(mat, mi, ni): return ACC + 64*mat + 16*mi + 4*ni
FR = 32
def fW(p, mat, mi): return FR + 48*p + 16*mat + 4*mi
def fX(p, ni): return FR + 48*p + 32 + 4*ni
AW, AX = 8, 12
a('s_and_b32 s44, s3, 1'); a('s_lshr_b32 s45, s3, 1')
SPF = opts.get('spf', '')
if SPF:
    a('s_load_dwordx4 s[80:83], s[0:1], 48') if STAMPS == 0 else a('s_load_dwordx4 s[72:75], s[0:1], 48')
    wb = 80 if STAMPS == 0 else 72
    a('s_waitcnt lgkmcnt(0)')
    a('s_cmp_ge_u32 s3, 2'); a('s_cbranch_scc1 L_spx')
    a('s_cmp_eq_u32 s3, 1'); a(f's_cselect_b32 s62, s{wb+2}, s{wb}'); a(f's_cselect_b32 s63, s{wb+3}, s{wb+1}')
    a(f's_mul_i32 s66, s32, {8*F*2}'); a('s_lshl_b32 s67, s29, 8'); a('s_add_u32 s66, s66, s67'); a('s_add_u32 s62, s62, s66'); a('s_addc_u32 s63, s63, 0')
    for dc in map(int, SPF.split(',')):
        a(f's_add_u32 s66, s34, {dc}'); a('s_cmp_ge_u32 s66, 10'); a('s_cselect_b32 s67, 10, 0'); a('s_sub_u32 s66, s66, s67'); a(f's_mul_i32 s66, s66, {64*F*2}')
        a('s_add_u32 s52, s62, s66'); a('s_addc_u32 s53, s63, 0')
        for i in range(16): a(f's_load_dword s54, s[52:53], {(i >> 1)*F*2 + (i & 1)*128}')
    a('s_branch L_spd')
    a('L_spx:')
    a('s_lshl_b32 s66, s33, 1'); a('s_add_u32 s66, s66, s44'); a('s_lshl_b32 s66, s66, 4'); a('s_add_u32 s66, s66, s28'); a(f's_mul_i32 s66, s66, {D*2}')
    a(f's_add_u32 s66, s66, {4*128*D*2}'); a('s_add_u32 s62, s64, s66'); a('s_addc_u32 s63, s65, 0')
    for dc in map(int, SPF.split(',')):
        a(f's_add_u32 s66, s34, {dc}'); a('s_cmp_ge_u32 s66, 10'); a('s_cselect_b32 s67, 10, 0'); a('s_sub_u32 s66, s66, s67'); a('s_lshl_b32 s66, s66, 7')
        a('s_add_u32 s52, s62, s66'); a('s_addc_u32 s53, s63, 0')
        for i in range(8): a(f's_load_dword s54, s[52:53], {(i-4)*128*D*2}')
        a(f's_add_u32 s52, s52, {8*128*D*2}'); a('s_addc_u32 s53, s53, 0')
        for i in range(8): a(f's_load_dword s54, s[52:53], {(i-4)*128*D*2}')
    a('L_spd:')
a('v_bfe_u32 v7, v0, 2, 2')
a('v_lshl_add_u32 v4, v2, 3, v7'); a('v_lshlrev_b32 v4, 8, v4')
a('v_bfe_u32 v5, v0, 1, 1'); a('v_lshl_add_u32 v4, v5, 4, v4')
a('v_and_b32 v5, 1, v0'); a('v_lshl_add_u32 v4, v5, 3, v4')
a('v_and_b32 v5, 1, v2'); a('v_lshl_or_b32 v5, v5, 2, v7')
for mi in range(4):
    a('s_lshl_b32 s66, s44, 2'); a(f's_add_u32 s66, s66, {mi}')
    a('v_xor_b32 v7, s66, v5')
    a(f'v_lshl_add_u32 v{AW+mi}, v7, 5, v4')
a('s_lshl_b32 s66, s45, 13'); a('s_add_u32 s66, s66, 32768')
a('v_lshlrev_b32 v5, 7, v3'); a('v_add_u32 v5, s66, v5')
for ks in range(2):
    a(f'v_xor_b32 v7, {4*ks}, v6')
    a(f'v_lshl_add_u32 v{AX+ks}, v7, 4, v5')
for i in range(128): a(f'v_mov_b32 v{ACC+i}, 0')
def f_reads(p, ks):
    L = []
    def w(mat, mi):
        for b in range(2):
            L.append(f'ds_read_b64_tr_b16 v[{fW(p,mat,mi)+2*b}:{fW(p,mat,mi)+2*b+1}], v{AW+mi} offset:{mat*16384 + ks*8192 + b*1024}')
    w(0, 0)
    for ni in range(4): L.append(f'ds_read_b128 v[{fX(p,ni)}:{fX(p,ni)+3}], v{AX+ks} offset:{ni*2048}')
    for mat in range(2):
        for mi in range(4):
            if (mat, mi) != (0, 0): w(mat, mi)
    return L
def f_mfmas(p):
    L = []
    for i, (mat, mi) in enumerate([(mat, mi) for mat in range(2) for mi in range(4)]):
        for ni in (range(4) if i % 2 == 0 else range(3, -1, -1)):
            t = T16(mat, mi, ni)
            L.append(f'v_mfma_f32_16x16x32_bf16 v[{t}:{t+3}], v[{fW(p,mat,mi)}:{fW(p,mat,mi)+3}], v[{fX(p,ni)}:{fX(p,ni)+3}], v[{t}:{t+3}]')
    return L
wd_finish()
a('v_mov_b32 v5, 1'); a(f'v_mov_b32 v6, {L_CNT}')
tick(7, 0)
a('s_barrier')
tick(7, 16)
stamp(1)
for r in f_reads(0, 0): a(r)
a('L_floop:')
a('s_waitcnt lgkmcnt(0)')
UPD = ['s_add_u32 s46, s46, 1', 's_cmp_eq_u32 s46, 3', 's_cselect_b32 s42, s50, s51', 's_cselect_b32 s46, 0, s46'] + [f'v_add_u32 v{r}, s42, v{r}' for r in (AW, AW+1, AW+2, AW+3, AX, AX+1)]
for ins in interleave(f_mfmas(0), f_reads(1, 1) + [CNTRD] + UPD): a(ins)
a('s_waitcnt vmcnt(0) lgkmcnt(0)')
tick(7, ('s47', 1))
mid_sync('L_flast')
tick(7, ('s47', 17))
for ins in interleave(f_mfmas(1), f_reads(0, 0) + ['s_add_u32 s47, s47, 1']): a(ins)
a('s_branch L_floop')
if opt('inl', 1): emit_tails()
a('L_flast:')
pre_epilogue()
stats_wait('L_fst')
tick(7, 40)
CSB = 48
P = []
P += ['s_lshl_b32 s66, s45, 8', f's_add_u32 s66, s66, {L_R}', 'v_lshlrev_b32 v4, 2, v3', 'v_add_u32 v4, s66, v4']
for ni in range(4):
    P += [f'ds_read_b32 v{40+ni}, v4 offset:{64*ni}', f'ds_read_b32 v{44+ni}, v4 offset:{512 + 64*ni}']
P += [f'v_mov_b32 v10, {L_CNT}', 'ds_read_b32 v8, v10 offset:32', 'ds_read_b32 v11, v10 offset:48']
P += ['s_lshl_b32 s66, s44, 8', f's_add_u32 s66, s66, {L_CS}', 'v_lshlrev_b32 v5, 4, v2', 'v_add_u32 v5, s66, v5']
for mat in range(2):
    for mi in range(4):
        r = CSB + 16*mat + 4*mi
        P.append(f'ds_read_b128 v[{r}:{r+3}], v5 offset:{mat*512 + mi*64}')
P += ['v_lshlrev_b32 v1, 4, v0', 'v_mov_b32 v9, 0']
P += ['s_lshl_b32 s66, s28, 3', 's_lshl_b32 s67, s45, 2', 's_add_u32 s66, s66, s67', 's_mul_i32 s66, s66, 48',
      's_lshl_b32 s67, s29, 2', 's_add_u32 s66, s66, s67', 's_lshl_b32 s67, s44, 1', 's_add_u32 s66, s66, s67', 's_lshl_b32 s66, s66, 10']
P += ['s_lshl_b32 s70, s28, 8', 's_lshl_b32 s71, s29, 4', 's_add_u32 s70, s70, s71', 's_lshl_b32 s71, s3, 2', 's_add_u32 s70, s70, s71', f's_add_u32 s70, s70, {WS_FH}']
M = f_mfmas(1)
for i, m in enumerate(M):
    a(m)
    for _ in range(2):
        if P: a(P.pop(0))
for x_ in P: a(x_)
stamp(2)
a('s_waitcnt lgkmcnt(0)')
a('v_readfirstlane_b32 s43, v8')
for ni in range(4):
    c = 80 + 6*ni
    a(f'v_sub_f32 v{c}, 0, v{44+ni}')
    a(f'v_mul_f32 v{c+2}, {-1.4426950408889634!r}, v{40+ni}')
    a(f'v_mul_f32 v{c+4}, v{40+ni}, v{40+ni}')
for ni in range(4): a(f'v_rcp_f32 v{84+6*ni}, v{84+6*ni}')
tick(7, 42)
BC = 'op_sel_hi:[1,0,1]'
for ni in range(1, 4): a(f's_add_u32 s{66+ni}, s{65+ni}, {48*1024}')
for kp in range(2):
    for ni in range(4):
        if kp == 1 and ni == VCHK - 1: a('ds_read_b32 v11, v10 offset:28')
        if kp == 1 and ni == VCHK:
            a('s_waitcnt lgkmcnt(0)'); a('v_readfirstlane_b32 s79, v11')
            a('s_cmp_lg_u32 s79, 1'); a('s_cbranch_scc1 L_fnov')
            v_loads()
            a('L_fnov:')
        c = 80 + 6*ni
        prs = [(2*kp + h, d) for h in range(2) for d in (0, 2)]
        G_ = [T16(0, mi, ni) + d for mi, d in prs]; U_ = [T16(1, mi, ni) + d for mi, d in prs]
        for n, (mi, d) in enumerate(prs): a(f'v_pk_fma_f32 v[{G_[n]}:{G_[n]+1}], v[{CSB+4*mi+d}:{CSB+1+4*mi+d}], v[{c}:{c+1}], v[{G_[n]}:{G_[n]+1}] {BC}')
        for n, (mi, d) in enumerate(prs): a(f'v_pk_fma_f32 v[{U_[n]}:{U_[n]+1}], v[{CSB+16+4*mi+d}:{CSB+17+4*mi+d}], v[{c}:{c+1}], v[{U_[n]}:{U_[n]+1}] {BC}')
        for n in range(4): a(f'v_pk_mul_f32 v[{104+2*n}:{105+2*n}], v[{G_[n]}:{G_[n]+1}], v[{c+2}:{c+3}] op_sel_hi:[1,0]')
        for n in range(4): a(f'v_pk_mul_f32 v[{G_[n]}:{G_[n]+1}], v[{G_[n]}:{G_[n]+1}], v[{U_[n]}:{U_[n]+1}]')
        for n in range(8): a(f'v_exp_f32 v{104+n}, v{104+n}')
        a('s_nop 0')
        for n in range(4): a(f'v_pk_fma_f32 v[{104+2*n}:{105+2*n}], v[{104+2*n}:{105+2*n}], v[{c+4}:{c+5}], v[{c+4}:{c+5}] op_sel_hi:[1,0,0]')
        for n in range(8): a(f'v_rcp_f32 v{104+n}, v{104+n}')
        a('s_nop 0')
        o = 112 + 4*ni
        for n in range(4): a(f'v_pk_mul_f32 v[{G_[n]}:{G_[n]+1}], v[{G_[n]}:{G_[n]+1}], v[{104+2*n}:{105+2*n}]')
        for n in range(4): a(f'v_cvt_pk_bf16_f32 v{o+n}, v{G_[n]}, v{G_[n]+1}')
        if RDFT and FRSEP and kp == 0 and ni == 0:
            a('v_readfirstlane_b32 s78, v11'); a('s_cmp_ge_u32 s78, 1'); a('s_cbranch_scc1 L_frw_ok')
            lds_wait('L_frw', 48, 14, 1)
        if HALF and kp == 1 and ni == 3: a('s_waitcnt vmcnt(3)')
        a(f'buffer_store_dwordx4 v[{o}:{o+3}], v1, s[12:15], s{66+ni} offen offset:{kp*1024} {STP}')
        if 4*kp + ni == EARLY:
            a('v_mov_b32 v12, 1'); a('s_mov_b64 exec, 1'); a('ds_add_u32 v10, v12'); a('s_mov_b64 exec, -1')
        tick(7, 43 + 4*kp + ni)
tick(7, 32)
stamp(3)
if TONE: lds_arrive(0, 4)
else: a('s_waitcnt vmcnt(0)')
if not SENT:
    a('s_mov_b64 exec, 1'); a('buffer_store_dword v8, v9, s[12:15], s70 offen sc1'); a('s_mov_b64 exec, -1')
if VCHK == 4:
    a('s_waitcnt lgkmcnt(0)'); a('v_readfirstlane_b32 s79, v11')
    a('s_cmp_lg_u32 s79, 1'); a('s_cbranch_scc1 L_fnov')
    v_loads()
    a('L_fnov:')
tick_dump(7, 4)
a('s_branch L_helper')

a('L_dft:')
DACC = 176
def TD(part, mi, et): return DACC + 40*part + 20*mi + 4*et
DFR = 40
def dX(p, mi): return DFR + 48*p + 4*mi
def dC(p, part, et): return DFR + 48*p + 8 + 20*part + 4*et
DX, DC = 8, 10
FCOS, FSIN, FNS = 136, 144, 152
a('v_lshlrev_b32 v5, 7, v3')
a('s_lshl_b32 s66, s3, 12'); a('s_add_u32 s66, s66, 32768')
for ks in range(2):
    a(f'v_xor_b32 v7, {4*ks}, v6')
    a(f'v_lshl_add_u32 v{DC+ks}, v7, 4, v5')
    a(f'v_add_u32 v{DX+ks}, s66, v{DC+ks}')
for i in range(80): a(f'v_mov_b32 v{DACC+i}, 0')
if DF:
    for i in list(range(104, 136)) + list(range(160, 176)): a(f'v_mov_b32 v{i}, 0')
if DF:
    a('s_cmp_eq_u32 s30, 0'); a('s_cselect_b32 s45, 4, 2')
    a('s_bitcmp1_b32 s30, 0'); a('s_cselect_b32 s53, 1.0, -1.0')
else:
    a('s_and_b32 s45, s30, 1'); a('s_sub_u32 s45, 3, s45')
a('v_lshrrev_b32 v12, 3, v3'); a('v_and_b32 v13, 7, v3'); a('v_lshlrev_b32 v13, 4, v13'); a('v_lshl_add_u32 v12, v12, 2, v13'); a('v_add_u32 v12, s3, v12')
a('v_lshlrev_b32 v13, 5, v2'); a('v_add_u32 v13, s28, v13'); a('v_cvt_f32_u32 v13, v13')
for mt in range(2):
    a(f'v_add_u32 v14, {8*mt}, v12'); a('v_cvt_f32_u32 v14, v14'); a(f'v_mul_f32 v14, {1.0/2048!r}, v14')
    for d in range(4):
        for h in range(2):
            a(f'v_add_f32 v{60+h}, {float(16*h + 128*d)!r}, v13')
            a(f'v_mul_f32 v{60+h}, v{60+h}, v14')
        a('v_cos_f32 v62, v60'); a('v_cos_f32 v63, v61'); a('v_sin_f32 v64, v60'); a('v_sin_f32 v65, v61')
        a(f'v_cvt_pk_bf16_f32 v{FCOS+4*mt+d}, v62, v63')
        a(f'v_cvt_pk_bf16_f32 v{FSIN+4*mt+d}, v64, v65')
        a(f'v_xor_b32 v{FNS+4*mt+d}, 0x80008000, v{FSIN+4*mt+d}')
def d_reads(p, ks):
    L = [f'ds_read_b128 v[{dX(p,mi)}:{dX(p,mi)+3}], v{DX+ks} offset:{mi*2048}' for mi in range(2)]
    for part in range(2):
        for et in range(5):
            L.append(f'ds_read_b128 v[{dC(p,part,et)}:{dC(p,part,et)+3}], v{DC+ks} offset:{part*16384 + et*2048}')
    return L
def d_mfmas(p):
    L = []
    i = 0
    for part in range(2):
        for et in range(5):
            for mi in ((0, 1) if i % 2 == 0 else (1, 0)):
                t = TD(part, mi, et)
                L.append(f'v_mfma_f32_16x16x32_bf16 v[{t}:{t+3}], v[{dX(p,mi)}:{dX(p,mi)+3}], v[{dC(p,part,et)}:{dC(p,part,et)+3}], v[{t}:{t+3}]')
            i += 1
    return L
wd_finish()
a('v_mov_b32 v5, 1'); a(f'v_mov_b32 v6, {L_CNT}')
for i in range(32, 36): a(f'v_mov_b32 v{i}, 0')
tick(7, 0)
a('s_barrier')
tick(7, 16)
stamp(1)
if DF:
    for ks in range(2):
        for mi in range(2): a(f'ds_read_b128 v[{40+8*ks+4*mi}:{43+8*ks+4*mi}], v{DX+ks} offset:{mi*2048}')
else:
    for r in d_reads(0, 0): a(r)
if not DF:
    def xstat(p):
        L = []
        for mi in range(2):
            for d in range(4):
                r = dX(p, mi) + d; t = 36 + 2*(d & 1)
                L += [f'v_lshlrev_b32 v{t}, 16, v{r}', f'v_and_b32 v{t+1}, 0xffff0000, v{r}',
                      f'v_add_f32 v{32+2*mi}, v{32+2*mi}, v{t}', f'v_fmac_f32 v{33+2*mi}, v{t}, v{t}',
                      f'v_add_f32 v{32+2*mi}, v{32+2*mi}, v{t+1}', f'v_fmac_f32 v{33+2*mi}, v{t+1}, v{t+1}']
        return L
    def interleave2(M, R, per):
        out = []; R = list(R)
        for m in M:
            out.append(m)
            for _ in range(per):
                if R: out.append(R.pop(0))
        return out + R
    def dloop(name, stats):
        a(f'{name}:')
        a('s_waitcnt lgkmcnt(0)')
        for ins in interleave2(d_mfmas(0), d_reads(1, 1) + (xstat(0) if stats else [CNTRD]), 3 if stats else 1): a(ins)
        a('s_waitcnt vmcnt(0) lgkmcnt(0)' if stats else 's_waitcnt lgkmcnt(0)')
        tick(7, ('s47', 1))
        if stats: a('s_barrier')
        else: mid_sync('L_dlast')
        tick(7, ('s47', 17))
        slot_advance()
        for r in (DX, DC): a(f'v_add_u32 v{r}, s42, v{r}')
        R = d_reads(0, 0) + [f'v_add_u32 v{r}, s42, v{r}' for r in (DX+1, DC+1)]
        for ins in interleave2(d_mfmas(1), R + (xstat(1) if stats else []), 3 if stats else 1): a(ins)
        a('s_add_u32 s47, s47, 1')
        if stats: a('s_cmp_lt_u32 s47, s45'); a(f's_cbranch_scc1 {name}')
        else: a(f's_branch {name}')
    dloop('L_dloopA', True)
else:
    def interleave2(M, R, per):
        out = []; R = list(R)
        for m in M:
            out.append(m)
            for _ in range(per):
                if R: out.append(R.pop(0))
        return out + R
    XA = [40, 48]; XB = [56, 104]
    CF = [[64 + 4*i for i in range(10)], [112 + 4*i for i in range(6)] + [160 + 4*i for i in range(4)]]
    def xa_reads(): return [f'ds_read_b128 v[{XA[ks]+4*mi}:{XA[ks]+4*mi+3}], v{DX+ks} offset:{mi*2048}' for ks in range(2) for mi in range(2)]
    def xb_reads(ks): return [f'ds_read_b128 v[{XB[ks]+4*mi}:{XB[ks]+4*mi+3}], v{DX+ks} offset:{mi*2048}' for mi in range(2)]
    def c_reads(ks): return [f'ds_read_b128 v[{CF[ks][5*part+et]}:{CF[ks][5*part+et]+3}], v{DC+ks} offset:{part*16384 + et*2048}' for part in range(2) for et in range(5)]
    def fold(ks, stats):
        L = []
        for mi in range(2):
            for d in range(4):
                ra = XA[ks] + 4*mi + d; rb = XB[ks] + 4*mi + d; sm, sq = 32 + 2*mi, 33 + 2*mi
                L += [f'v_lshlrev_b32 v36, 16, v{ra}', f'v_and_b32 v37, 0xffff0000, v{ra}', f'v_lshlrev_b32 v38, 16, v{rb}', f'v_and_b32 v39, 0xffff0000, v{rb}']
                if stats:
                    for t in (36, 37, 38, 39): L += [f'v_add_f32 v{sm}, v{sm}, v{t}', f'v_fmac_f32 v{sq}, v{t}, v{t}']
                L += [f'v_add_f32 v36, v{28+mi}, v36', f'v_add_f32 v37, v{28+mi}, v37']
                L += ['v_fmac_f32 v36, s53, v38', 'v_fmac_f32 v37, s53, v39', f'v_cvt_pk_bf16_f32 v{rb}, v36, v37']
        return L
    def f2_mfmas(ks):
        L = []
        for i in range(10):
            part, et = divmod(i, 5)
            for mi in ((0, 1) if i % 2 == 0 else (1, 0)):
                t = TD(part, mi, et); x = XB[ks] + 4*mi; c = CF[ks][i]
                L.append(f'v_mfma_f32_16x16x32_bf16 v[{t}:{t+3}], v[{x}:{x+3}], v[{c}:{c+3}], v[{t}:{t+3}]')
        return L
    DUPD = ['s_add_u32 s46, s46, 1', 's_cmp_eq_u32 s46, 3', 's_cselect_b32 s42, s50, s51', 's_cselect_b32 s46, 0, s46'] + [f'v_add_u32 v{r}, s42, v{r}' for r in (DX, DX+1, DC, DC+1)]
    def dloop3(name, stats):
        M1 = f2_mfmas(1); M0 = f2_mfmas(0)
        a(f'{name}:')
        for ins in interleave2(M1[:6], DUPD, 2): a(ins)
        a('s_waitcnt vmcnt(0) lgkmcnt(0)' if stats else 's_waitcnt lgkmcnt(0)')
        tick(7, ('s47', 1))
        if stats: a('s_barrier')
        else: mid_sync('L_dlast')
        tick(7, ('s47', 17))
        for ins in interleave2(M1[6:10], xb_reads(0) + c_reads(0) + ['s_add_u32 s47, s47, 1'], 3): a(ins)
        a('s_waitcnt lgkmcnt(10)')
        for ins in interleave2(M1[10:], fold(0, stats), 5): a(ins)
        a('s_waitcnt lgkmcnt(0)')
        a('s_nop 0')
        for ins in interleave2(M0[:7], xb_reads(1) + c_reads(1) + ([] if stats else [CNTRD]), 2): a(ins)
        a(f's_waitcnt lgkmcnt({10 if stats else 11})')
        for ins in interleave2(M0[7:], fold(1, stats) + DUPD, 5): a(ins)
        a('s_waitcnt lgkmcnt(0)')
        tick(7, ('s47', 1))
        if stats: a('s_barrier')
        else: mid_sync('L_dlast')
        tick(7, ('s47', 17))
        a('s_add_u32 s47, s47, 1')
        for ins in xa_reads() + ([] if stats else [CNTRD]): a(ins)
        if stats: a('s_cmp_lt_u32 s47, s45'); a(f's_cbranch_scc1 {name}')
        else: a(f's_branch {name}')
    def dloop2(name, stats):
        if opt('dp', 1): return dloop3(name, stats)
        a(f'{name}:')
        for ins in DUPD: a(ins)
        a('s_waitcnt vmcnt(0) lgkmcnt(0)' if stats else 's_waitcnt lgkmcnt(0)')
        tick(7, ('s47', 1))
        if stats: a('s_barrier')
        else: mid_sync('L_dlast')
        tick(7, ('s47', 17))
        a('s_add_u32 s47, s47, 1')
        for ins in xb_reads(0) + xb_reads(1) + c_reads(0): a(ins)
        a('s_waitcnt lgkmcnt(12)')
        for ins in fold(0, stats): a(ins)
        a('s_waitcnt lgkmcnt(0)')
        a('s_nop 0')
        for ins in interleave2(f2_mfmas(0), c_reads(1) + ([] if stats else [CNTRD]) + fold(1, stats) + DUPD, 3): a(ins)
        a('s_waitcnt lgkmcnt(0)')
        tick(7, ('s47', 1))
        if stats: a('s_barrier')
        else: mid_sync('L_dlast')
        tick(7, ('s47', 17))
        a('s_add_u32 s47, s47, 1')
        for ins in interleave2(f2_mfmas(1), xa_reads() + ([] if stats else [CNTRD]), 1): a(ins)
        if stats: a('s_cmp_lt_u32 s47, s45'); a(f's_cbranch_scc1 {name}')
        else: a(f's_branch {name}')
    a('s_waitcnt lgkmcnt(0)')
    for mi in range(2):
        for d in range(4):
            r = XA[0] + 4*mi + d
            a(f'v_lshlrev_b32 v36, 16, v{r}'); a(f'v_and_b32 v37, 0xffff0000, v{r}')
            if d == 0: a(f'v_add_f32 v{28+mi}, v36, v37')
            else: a(f'v_add_f32 v{28+mi}, v{28+mi}, v36'); a(f'v_add_f32 v{28+mi}, v{28+mi}, v37')
    for sw in ('v_permlane16_swap_b32', 'v_permlane32_swap_b32'):
        for mi in range(2): a(f'v_mov_b32 v{36+mi}, v{28+mi}')
        a('s_nop 1')
        for mi in range(2): a(f'{sw} v{28+mi}, v{36+mi}')
        a('s_nop 1')
        for mi in range(2): a(f'v_add_f32 v{28+mi}, v{28+mi}, v{36+mi}')
    a('s_bitcmp1_b32 s30, 0'); a(f's_cselect_b32 s66, 0x3d000000, 0')
    a('s_lshl_b32 s67, s3, 7'); a(f's_add_u32 s67, s67, {L_CH}'); a('v_lshlrev_b32 v38, 2, v3'); a('v_add_u32 v38, s67, v38')
    for mi in range(2):
        a(f'v_mul_f32 v{36+mi}, s66, v{28+mi}'); a(f'v_mul_f32 v{28+mi}, -2.0, v{36+mi}')
        if not NOCS: a(f'ds_write_b32 v38, v{36+mi} offset:{64*mi}')
    dloop2('L_dloopA', True)
a(f'v_mov_b32 v36, {L_NON}'); a('ds_read_b32 v14, v36')
for sw in ('v_permlane16_swap_b32', 'v_permlane32_swap_b32'):
    for r in range(32, 36): a(f'v_mov_b32 v{r+4}, v{r}')
    a('s_nop 1')
    for r in range(32, 36): a(f'{sw} v{r}, v{r+4}')
    a('s_nop 1')
    for r in range(32, 36): a(f'v_add_f32 v{r}, v{r}, v{r+4}')
a('s_lshl_b32 s66, s28, 2'); a('s_add_u32 s66, s66, s30'); a('s_lshl_b32 s66, s66, 11'); a('s_lshl_b32 s67, s3, 9'); a('s_add_u32 s66, s66, s67'); a(f's_add_u32 s66, s66, {WS_XP}')
a('v_cmp_gt_u32 vcc, 16, v0'); a('v_lshlrev_b32 v38, 4, v0')
a('s_waitcnt lgkmcnt(0)')
a('v_cndmask_b32 v12, v34, v32, vcc'); a('v_cndmask_b32 v13, v35, v33, vcc'); a('v_mov_b32 v15, v14')
a('v_readfirstlane_b32 s43, v14')
a('s_mov_b32 exec_hi, 0')
a('buffer_store_dwordx4 v[12:15], v38, s[12:15], s66 offen sc1')
a('s_mov_b64 exec, -1')
a('s_nop 0')
dloop2('L_dloopB', False) if DF else dloop('L_dloopB', False)
if opt('inl', 1): emit_tails()
a('L_dlast:')
pre_epilogue()
stats_wait('L_dst')
tick(7, 40)
DP = []
DP.append('s_lshl_b32 s66, s3, 7'); DP.append(f's_add_u32 s66, s66, {L_R}')
DP.append('v_lshlrev_b32 v4, 4, v2'); DP.append('v_add_u32 v4, s66, v4')
for mi in range(2):
    DP.append(f'ds_read_b128 v[{40+4*mi}:{43+4*mi}], v4 offset:{64*mi}')
    if not NOCS: DP.append(f'ds_read_b128 v[{48+4*mi}:{51+4*mi}], v4 offset:{512 + 64*mi}')
    DP.append(f'ds_read_b128 v[{76+4*mi}:{79+4*mi}], v4 offset:{L_A0 - L_R + 64*mi}')
    if DF and not NOCS: DP.append(f'ds_read_b128 v[{84+4*mi}:{87+4*mi}], v4 offset:{L_CH - L_R + 64*mi}')
DP.append('v_lshlrev_b32 v5, 2, v3'); DP.append(f'v_add_u32 v5, {L_CS}, v5')
for part in range(2):
    for et in range(0 if NOCS else 5): DP.append(f'ds_read_b32 v{56+2*(5*part+et)}, v5 offset:{part*512 + et*64}')
DP.append('v_bfe_u32 v9, v3, 1, 2'); DP.append('v_xor_b32 v8, s3, v9'); DP.append('v_lshlrev_b32 v8, 4, v8'); DP.append('v_lshl_add_u32 v8, v3, 6, v8'); DP.append('v_lshl_add_u32 v8, v2, 2, v8')
DP.append('ds_read_b32 v14, v6 offset:20')
for ins in interleave2(f2_mfmas(1) if DF else d_mfmas(1), DP, 2): a(ins)
stamp(2)
a('s_waitcnt lgkmcnt(0)')
a('v_readfirstlane_b32 s78, v14')
a('s_cmp_ge_u32 s78, 4'); a('s_cbranch_scc1 L_dc9_ok')
lds_wait('L_dc9', 20, 14)
tick(7, 41)
if DF and not NOCS:
    for i in range(8): a(f'v_sub_f32 v{48+i}, v{48+i}, v{84+i}')
a('s_cmp_lg_u32 s30, 0'); a('s_cbranch_scc1 L_z0')
for mi in range(2):
    t = 76 + 4*mi; y = 84 + 4*mi
    a(f'v_pk_add_f32 v[{y}:{y+1}], v[{t}:{t+1}], v[{t+2}:{t+3}]')
    a(f'v_pk_add_f32 v[{y+2}:{y+3}], v[{t}:{t+1}], v[{t+2}:{t+3}] neg_lo:[0,1] neg_hi:[0,1]')
    a(f'v_add_f32 v{92+mi}, v{y}, v{y+1}'); a(f'v_sub_f32 v{94+mi}, v{y}, v{y+1}')
a('v_cvt_pk_bf16_f32 v96, v92, v93'); a('v_mov_b32 v97, 0')
a('v_cvt_pk_bf16_f32 v98, v86, v90'); a('v_cvt_pk_bf16_f32 v101, v87, v91'); a('v_xor_b32 v99, 0x80008000, v101')
a('v_cvt_pk_bf16_f32 v100, v94, v95')
for cpart, r in enumerate((96, 97, 98, 99, 100, 97, 98, 101)):
    a(f'ds_write_b32 v8, v{r} offset:{L_Z + (cpart*ZB + 80)*ZROW}')
a('L_z0:')
for et in range(5):
    for mi in range(2):
        for part in range(2):
            t = TD(part, mi, et); c = 56 + 2*(5*part + et)
            for d in (() if NOCS else (0, 2)):
                a(f'v_pk_fma_f32 v[{t+d}:{t+d+1}], v[{48+4*mi+d}:{49+4*mi+d}], v[{c}:{c+1}], v[{t+d}:{t+d+1}] op_sel_hi:[1,0,1] neg_lo:[1,0,0] neg_hi:[1,0,0]')
            for d in (0, 2):
                a(f'v_pk_mul_f32 v[{t+d}:{t+d+1}], v[{t+d}:{t+d+1}], v[{40+4*mi+d}:{41+4*mi+d}]')
        y = 80 + 16*mi
        for part in range(2):
            t = TD(part, mi, et)
            a(f'v_pk_add_f32 v[{y+4*part}:{y+4*part+1}], v[{t}:{t+1}], v[{t+2}:{t+3}]')
            a(f'v_pk_add_f32 v[{y+4*part+2}:{y+4*part+3}], v[{t}:{t+1}], v[{t+2}:{t+3}] neg_lo:[0,1] neg_hi:[0,1]')
        pa, qa, ra, sa, pb, qb, rb, sb = range(y, y+8); o = y + 8
        a(f'v_add_f32 v{o}, v{pa}, v{qa}'); a(f'v_add_f32 v{o+1}, v{pb}, v{qb}')
        a(f'v_add_f32 v{o+2}, v{ra}, v{sb}'); a(f'v_sub_f32 v{o+3}, v{rb}, v{sa}')
        a(f'v_sub_f32 v{o+4}, v{pa}, v{qa}'); a(f'v_sub_f32 v{o+5}, v{pb}, v{qb}')
        a(f'v_sub_f32 v{o+6}, v{ra}, v{sb}'); a(f'v_add_f32 v{o+7}, v{rb}, v{sa}')
    for cpart in range(8):
        a(f'v_cvt_pk_bf16_f32 v{112+cpart}, v{88+cpart}, v{104+cpart}')
    for cpart in range(8):
        a(f'ds_write_b32 v8, v{112+cpart} offset:{L_Z + (cpart*ZB + 16*et)*ZROW}')
tick(7, 42)
VADDR = []
VADDR += ['v_lshrrev_b32 v12, 1, v2', f'v_mul_u32_u24 v12, {8*VROW}, v12', 'v_and_b32 v13, 1, v2', f'v_mul_u32_u24 v11, {VROW}, v13', 'v_add_u32 v12, v12, v11', 'v_lshl_add_u32 v12, v3, 4, v12']
VADDR += ['s_mul_i32 s66, s28, 17', 's_add_u32 s67, s66, s3', f's_mul_i32 s67, s67, {2*VROW}', *(['s_and_b32 s68, s30, 1', 's_lshl_b32 s68, s68, 1', 's_lshr_b32 s69, s30, 1', 's_add_u32 s68, s68, s69', 's_mul_i32 s68, s68, 1280'] if DF else ['s_mul_i32 s68, s30, 1280']), f's_add_u32 s68, s68, {WS_V + 128}', 's_add_u32 s67, s67, s68', 's_sub_u32 s69, s67, 16']
VADDR += ['s_add_u32 s66, s66, 16', f's_mul_i32 s66, s66, {2*VROW}', 's_add_u32 s66, s66, s68', f's_add_u32 s70, s67, {16*VROW}']
a('v_mov_b32 v10, 1')
a('s_waitcnt lgkmcnt(0)')
a('s_mov_b64 exec, 1'); a('ds_add_u32 v6, v10 offset:4'); a('s_mov_b64 exec, -1')
a('v_bfe_u32 v8, v3, 1, 2'); a('v_xor_b32 v8, v8, v2'); a('v_lshlrev_b32 v8, 4, v8'); a('v_lshl_add_u32 v8, v3, 6, v8'); a(f's_mul_i32 s66, s3, {2*ZB*ZROW}'); a('v_add_u32 v8, s66, v8')
for ins in VADDR: a(ins)
lds_wait('L_zw', 4, 14)
tick(7, 43)
for part in range(2):
    for et in range(5):
        r = 40 + 20*part + 4*et
        a(f'ds_read_b128 v[{r}:{r+3}], v8 offset:{L_Z + (part*ZB + 16*et)*ZROW}')
for part in range(2): a(f'ds_read_b128 v[{120+4*part}:{123+4*part}], v8 offset:{L_Z + (part*ZB + 80)*ZROW}')
a('s_waitcnt lgkmcnt(0)')
a('s_mov_b64 exec, 1'); a('ds_add_u32 v6, v10 offset:8'); a('s_mov_b64 exec, -1')
a('v_mov_b32 v8, v12'); a('v_mov_b32 v10, v11')
tick(7, 44)
def VR(mt, et): return DACC + 20*mt + 4*et
def VI(mt, et): return DACC + 40 + 20*mt + 4*et
def vpack(et):
    L = []
    for mt in range(2):
        o = 80 + 20*mt + 4*et
        for i in range(4): L.append(f'v_cvt_pk_bf16_f32 v{o+i}, v{VR(mt,et)+i}, v{VI(mt,et)+i}')
        L.append(f'buffer_store_dwordx4 v[{o}:{o+3}], v8, s[12:15], s{67 + 3*mt} offen offset:{256*et} {STP}')
    return L
def vm(vr, vi, ya, yb):
    L = []
    for mt in range(2):
        L.append(f'v_mfma_f32_16x16x32_bf16 v[{vr(mt)}:{vr(mt)+3}], v[{FCOS+4*mt}:{FCOS+4*mt+3}], v[{ya}:{ya+3}], 0')
        L.append(f'v_mfma_f32_16x16x32_bf16 v[{vi(mt)}:{vi(mt)+3}], v[{FNS+4*mt}:{FNS+4*mt+3}], v[{ya}:{ya+3}], 0')
    for mt in range(2):
        L.append(f'v_mfma_f32_16x16x32_bf16 v[{vr(mt)}:{vr(mt)+3}], v[{FSIN+4*mt}:{FSIN+4*mt+3}], v[{yb}:{yb+3}], v[{vr(mt)}:{vr(mt)+3}]')
        L.append(f'v_mfma_f32_16x16x32_bf16 v[{vi(mt)}:{vi(mt)+3}], v[{FCOS+4*mt}:{FCOS+4*mt+3}], v[{yb}:{yb+3}], v[{vi(mt)}:{vi(mt)+3}]')
    return L
for et in range(5):
    M = vm(lambda mt: VR(mt, et), lambda mt: VI(mt, et), 40 + 4*et, 60 + 4*et)
    for ins in interleave2(M, vpack(et - 2) if et >= 2 else [], 2): a(ins)
a('s_cmp_lg_u32 s30, 0'); a('s_cbranch_scc1 L_v0a')
for ins in vm(lambda mt: 160 + 4*mt, lambda mt: 168 + 4*mt, 120, 124): a(ins)
a('L_v0a:')
tick(7, 45)
for ins in vpack(3): a(ins)
for ins in vpack(4): a(ins)
a('s_cmp_lg_u32 s30, 0'); a('s_cbranch_scc1 L_v0b')
for mt in range(2):
    for i in range(4): a(f'v_cvt_pk_bf16_f32 v{120+4*mt+i}, v{160+4*mt+i}, v{168+4*mt+i}')
a('s_mov_b32 exec_lo, 0x00010001'); a('s_mov_b32 exec_hi, 0x00010001')
a(f'buffer_store_dwordx4 v[120:123], v8, s[12:15], s69 offen {STP}')
a(f's_add_u32 s69, s69, {16*VROW}')
a(f'buffer_store_dwordx4 v[124:127], v8, s[12:15], s69 offen {STP}')
a('s_mov_b64 exec, -1')
a('L_v0b:')
tick(7, 46)
a('s_cmp_lg_u32 s3, 0')
a('s_cbranch_scc1 L_signal')
a('v_cvt_f32_u32 v62, s28'); a('v_mul_f32 v62, 0.0625, v62'); a('v_cos_f32 v63, v62'); a('v_sin_f32 v64, v62')
a('v_cmp_gt_u32 vcc, 16, v0')
a('v_lshlrev_b32 v11, 4, v3'); a('v_add_u32 v9, v10, v11')
for et in range(5):
    o = 80 + 4*et; vr = VR(0, et); vi = VI(0, et); n = 40 + 4*et
    a(f'v_mul_f32 v65, v63, v{vr}'); a(f'v_fmac_f32 v65, v64, v{vi}')
    a(f'v_mul_f32 v66, v63, v{vi}'); a(f'v_fma_f32 v66, -v64, v{vr}, v66')
    a(f'v_cvt_pk_bf16_f32 v65, v65, v66')
    a(f'v_cndmask_b32 v65, v{o}, v65, vcc')
    a(f'v_mov_b32 v{n}, v{o+1}')
    a(f'v_mov_b32 v66, v65')
    a(f'v_mov_b32 v{n+1}, v{o+2}'); a(f'v_mov_b32 v{n+2}, v{o+3}')
    a(f'v_permlane16_swap_b32 v65, v66')
    a('s_nop 1')
    a(f'v_cndmask_b32 v{n+3}, v65, v66, vcc')
a('s_mov_b32 exec_hi, 0')
for et in range(5):
    a(f'buffer_store_dwordx4 v[{40+4*et}:{43+4*et}], v9, s[12:15], s66 offen offset:{256*et} {STP}')
a('s_mov_b64 exec, -1')

a('L_signal:')
a('s_mov_b32 s79, 0')
tick(7, 32)
stamp(3)
a('s_lshl_b32 s66, s30, 2'); a('s_add_u32 s66, s66, s3'); a('s_lshl_b32 s66, s66, 7'); a('s_lshl_b32 s67, s28, 2'); a('s_add_u32 s66, s66, s67'); a(f's_add_u32 s66, s66, {WS_FV}')
a('v_mov_b32 v4, s43'); a('v_mov_b32 v5, 0')
a('s_waitcnt vmcnt(0)'); a('s_mov_b64 exec, 1')
a('buffer_store_dword v4, v5, s[12:15], s66 offen sc1'); a('s_mov_b64 exec, -1')
if TONE: lds_arrive(0, 4)
tick_dump(7, 4)
a('L_helper:')
if TONE:
    lds_wait('L_hc9', 20, 40)
    a('s_cmp_eq_u32 s35, 0'); a('s_cbranch_scc1 L_hnz')
    lds_wait('L_hzc', 8, 40)
    a('L_hnz:')
else:
    if 0 <= EARLY < 8: a('s_cmp_eq_u32 s35, 0'); a('s_cbranch_scc1 L_hea')
    lds_arrive(0, 4)
    a('L_hea:')
    lds_wait('L_hc9', 20, 40)
    a('s_cmp_eq_u32 s35, 0'); a('s_cbranch_scc1 L_hnz')
    lds_wait('L_hzc', 8, 40)
    a('L_hnz:')
    a('s_mov_b32 s44, s3')
    p2_setup()
    a('s_cmp_eq_u32 s35, 1'); a('s_cbranch_scc1 L_hd')
    for st in range(12 - NLATE + opt('skipl', 0), 12): wdt_lds(st)
    a('s_branch L_hf')
    a('L_hd:')
    for st in range(12 - NLD, 12): wdt_lds(st)
    a('L_hf:')
    VT = opt('vtouch', 0)
    def vtouch():
        a('s_cmp_eq_u32 s35, 0'); a('s_cbranch_scc1 L_nvt')
        a('v_lshrrev_b32 v40, 2, v0'); a('v_lshlrev_b32 v40, 7, v40'); a('v_and_b32 v41, 3, v0'); a('v_lshl_add_u32 v40, v41, 4, v40')
        a(f's_mov_b32 s66, {WS_FV}')
        spin_begin('L_pollva')
        a('buffer_load_dwordx4 v[44:47], v40, s[12:15], s66 offen sc1')
        a('s_waitcnt vmcnt(0)')
        for i in range(4): a(f'v_xor_b32 v{44+i}, s43, v{44+i}')
        a('v_or_b32 v44, v44, v45'); a('v_or3_b32 v44, v46, v47, v44')
        a('v_cmp_ne_u32 vcc, 0, v44'); a('s_cmp_eq_u64 vcc, 0')
        spin_end('L_pollva')
        a('s_lshl_b32 s66, s30, 2'); a('s_sub_u32 s67, 13, s66'); a('s_cmp_eq_u32 s31, 1'); a('s_cselect_b32 s66, s67, s66')
        a('s_lshl_b32 s67, s32, 1'); a('s_lshr_b32 s68, s3, 1'); a('s_add_u32 s67, s67, s68'); a('s_mul_i32 s67, s67, 17'); a('s_add_u32 s66, s66, s67')
        a(f's_mul_i32 s66, s66, {2*VROW}'); a('s_and_b32 s67, s3, 1'); a(f's_mul_i32 s67, s67, {164*128}'); a('s_add_u32 s66, s66, s67'); a(f's_add_u32 s66, s66, {WS_V}')
        a('v_lshlrev_b32 v40, 7, v0')
        for i in range(3):
            if i == 2: a('s_mov_b32 exec_hi, 0xf')
            a(f'buffer_load_dword v41, v40, s[12:15], s66 offen sc1')
            if i < 2: a('s_add_u32 s66, s66, 8192')
        a('s_mov_b64 exec, -1')
        a('s_mov_b32 s79, 0')
        a('s_waitcnt vmcnt(0)')
        a('L_nvt:')
    if VT == 2: vtouch()
    a('s_waitcnt vmcnt(0)')
    lds_arrive(36, 4)
    if VT == 1: vtouch()
stamp(4)

a('s_cmp_eq_u32 s79, 1'); a('s_cbranch_scc1 L_vdone')
if VGO: a('s_cmp_lg_u32 s3, 3'); a('s_cbranch_scc1 L_vwait')
spin_begin('L_pollv')
a(f'buffer_load_dword v53, v{VFL}, s[12:15], s60 offen sc1')
a('s_waitcnt vmcnt(0)')
a('v_cmp_ne_u32 vcc, s43, v53')
a('s_cmp_eq_u64 vcc, 0')
spin_end('L_pollv')
if VGO:
    lds_arrive(28, 40)
    a('L_vwait:')
    lds_wait('L_vc', 28, 40, 1)
    lds_wait('L_vgo', 40, 40, 1)
v_loads()
a('L_vdone:')
stamp(5)
a('v_lshrrev_b32 v4, 2, v3'); a('v_and_b32 v5, 3, v3'); a('v_lshl_add_u32 v7, v5, 2, v4')
a('s_mul_i32 s66, s55, 15'); a('v_xor_b32 v4, s66, v7')
a('v_cvt_f32_u32 v4, v4'); a('v_mul_f32 v4, 0.0625, v4')
a('v_lshlrev_b32 v5, 2, v2'); a('v_cvt_f32_u32 v5, v5')
for i in range(4):
    a(f'v_add_f32 v52, {float(i)!r}, v5'); a('v_mul_f32 v52, v52, v4')
    a('v_cos_f32 v53, v52'); a('v_sin_f32 v54, v52'); a('s_nop 0')
    a(f'v_cvt_pk_bf16_f32 v{8+i}, v53, v54')
a(f's_mov_b32 s47, {PN}'); a('s_cmp_eq_u32 s55, 1'); a(f's_cselect_b32 s47, {(-PN) & 0xffffffff}, s47')
a(f'v_mul_u32_u24 v56, {PQ}, v2'); a('v_lshl_add_u32 v56, v3, 4, v56'); a(f's_mul_i32 s66, s55, {3*PN}'); a('v_add_u32 v56, s66, v56')
for k4 in range(1, 4): a(f'v_add_u32 v{56+k4}, s47, v{55+k4}')
def spec_tile(off_s, vb):
    for k4 in range(4):
        for i in range(4): a(f'v_mov_b32 v{64+4*k4+i}, v{vb+4*i+k4}')
    a('s_nop 1')
    for k4 in range(4):
        c = 80 + 4*k4
        a(f'v_mfma_f32_16x16x32_bf16 v[{c}:{c+3}], v[{64+4*k4}:{67+4*k4}], v[8:11], 0')
    for k4 in range(4): a(f'v_add_u32 v{40+k4}, {off_s}, v{56+k4}')
    a('s_nop 5')
    for k4 in range(4):
        c = 80 + 4*k4
        a(f'ds_write_b128 v{40+k4}, v[{c}:{c+3}]')
a('s_cmp_eq_u32 s3, 1'); a(f's_mov_b32 s73, {ST[0]}'); a(f's_cselect_b32 s73, {ST[1]}, s73')
a('s_cmp_eq_u32 s3, 2'); a(f's_cselect_b32 s73, {ST[2]}, s73')
a('s_cmp_eq_u32 s3, 3'); a(f's_cselect_b32 s73, {ST[3]}, s73')
a('s_waitcnt vmcnt(0)')
a('s_cmp_lg_u32 s3, 0'); a('s_cbranch_scc1 L_spec1')
a(f's_mov_b32 s74, {ST[4]}')
spec_tile('s74', VB1)
a('L_spec1:')
spec_tile('s73', VB0)
for r in range(3):
    for d in range(4):
        a(f'v_lshlrev_b32 v{96+8*r+2*d}, 16, v{XR[r]+d}'); a(f'v_and_b32 v{97+8*r+2*d}, 0xffff0000, v{XR[r]+d}')
if F8:
    lds_arrive(52, 40)
    lds_wait('L_spw', 52, 40)
    a(f'ds_read_b128 v[128:131], v{FA[5]}'); a(f'ds_read_b128 v[132:135], v{FA[5]} offset:{PQ}')
    a('s_waitcnt lgkmcnt(0)')
    for d in range(0, 8, 2): a(f'v_pk_add_f32 v[{128+d}:{129+d}], v[{128+d}:{129+d}], v[{104+d}:{105+d}]')
    a(f'ds_write_b128 v{FA[5]}, v[128:131]'); a(f'ds_write_b128 v{FA[5]}, v[132:135] offset:{PQ}')

a('L_final:')
def final_reads(r, b):
    d4, d11 = FA[3*r], FA[3*r+2]
    for p in range(5):
        reg = (d4, d4, d4, d4, d11)[p]; off = (0, P2W, 2*P2W, 3*P2W, 0)[p]
        a(f'ds_read_b128 v[{b+8*p}:{b+3+8*p}], v{reg} offset:{off}')
        a(f'ds_read_b128 v[{b+4+8*p}:{b+7+8*p}], v{reg} offset:{off+PQ}')
def final_sum(r, b, cnt):
    x = 96 + 8*r
    for p in range(5):
        a(f's_waitcnt lgkmcnt({min(15, cnt + 8 - 2*p)})')
        for d in range(0, 8, 2): a(f'v_pk_add_f32 v[{x+d}:{x+d+1}], v[{x+d}:{x+d+1}], v[{b+8*p+d}:{b+8*p+d+1}]')
    for d in range(4): a(f'v_cvt_pk_bf16_f32 v{b+d}, v{x+2*d}, v{x+2*d+1}')
    a(f'buffer_store_dwordx4 v[{b}:{b+3}], v{FA[3*r+1]}, s[16:19], 0 offen {OUTP}')
a('s_waitcnt lgkmcnt(0)')
a('s_barrier')
stamp(6)
if F8:
    final_reads(0, 128)
    a('s_cmp_ge_u32 s3, 2'); a('s_cbranch_scc1 L_fin8')
    final_reads(2, 168)
    final_sum(0, 128, 10)
    final_sum(2, 168, 0)
    a('s_branch L_fin2')
    a('L_fin8:')
    final_sum(0, 128, 0)
    a('s_branch L_fin2')
final_reads(0, 128)
final_reads(1, 168)
final_sum(0, 128, 10)
a('s_cmp_ge_u32 s3, 2'); a('s_cbranch_scc1 L_fin1')
final_reads(2, 208)
final_sum(1, 168, 10)
final_sum(2, 208, 0)
a('s_branch L_fin2')
a('L_fin1:')
final_sum(1, 168, 0)
a('L_fin2:')
if 'diag' in opts:
    a('s_cmp_lg_u32 s3, 0'); a('s_cbranch_scc1 L_diag')
    a('s_waitcnt vmcnt(0)')
    a('s_memrealtime s[94:95]'); a('s_waitcnt lgkmcnt(0)')
    if opts['diag'] == 'r': a('s_sub_u32 s66, s43, s80'); a('s_max_i32 s66, s66, 0'); a('s_min_u32 s66, s66, 5000'); a('s_lshl_b32 s66, s66, 4')
    elif opts['diag'] == 'b': a('s_sub_u32 s66, s82, s80'); a('s_max_i32 s66, s66, 0'); a('s_min_u32 s66, s66, 5000'); a('s_lshl_b32 s66, s66, 3')
    elif opts['diag'] == 'e': a('s_sub_u32 s66, s94, s80'); a('s_max_i32 s66, s66, 0'); a('s_min_u32 s66, s66, 5000'); a('s_lshl_b32 s66, s66, 2')
    else: a(f"s_sub_u32 s66, s{80 + 2*int(opts['diag'])}, s43"); a('s_max_i32 s66, s66, 0'); a('s_min_u32 s66, s66, 5000'); a('s_lshl_b32 s66, s66, 2')
    a('L_dsp:')
    a('s_memrealtime s[68:69]'); a('s_waitcnt lgkmcnt(0)'); a('s_sub_u32 s68, s68, s94'); a('s_cmp_lt_u32 s68, s66'); a('s_cbranch_scc1 L_dsp')
    a('s_endpgm')
    a('L_diag:')
if opt('dbgt', 0):
    a('s_cmp_lg_u32 s3, 0'); a('s_cbranch_scc1 L_dbgt')
    a('s_waitcnt vmcnt(0)')
    a('s_memrealtime s[94:95]'); a('s_waitcnt lgkmcnt(0)')
    a('s_mov_b64 exec, 1')
    for i, r in enumerate((80, 82, 84, 86, 88, 90, 92, 94)):
        a(f's_sub_u32 s66, s{r}, s43'); a('s_add_u32 s66, s66, 1000'); a('v_mov_b32 v4, s66'); a(f'v_mov_b32 v5, {4 + 4*i}')
        a('buffer_atomic_umax v4, v5, s[24:27], 0 offen sc1')
        a('s_nop 2')
    a('s_endpgm')
    a('L_dbgt:')
stamp(7)
if STAMPS:
    a('s_waitcnt vmcnt(0)')
    a('s_memrealtime s[96:97]')
    a('s_waitcnt lgkmcnt(0)')
    for i in range(8): a(f'v_mov_b32 v{16+i}, s{80+2*i}')
    a('v_mov_b32 v24, s96'); a('v_mov_b32 v25, s101')
    a('s_lshl_b32 s66, s2, 3'); a('s_add_u32 s66, s66, s3'); a('s_lshl_b32 s66, s66, 6'); a(f's_add_u32 s66, s66, {WS_TS}')
    a('v_mov_b32 v4, 0')
    a('s_mov_b64 exec, 1')
    a('buffer_store_dwordx4 v[16:19], v4, s[12:15], s66 offen')
    a('buffer_store_dwordx4 v[20:23], v4, s[12:15], s66 offen offset:16')
    a('buffer_store_dwordx2 v[24:25], v4, s[12:15], s66 offen offset:32')
a('s_endpgm')
emit_tails()
a('L_done:')
a.end(256, sgpr=102)
txt = a.text([])
txt = txt.replace('.amdgcn_target', f'; @launch grid=(256,1,1) block=(512,1,1) lds={LDS_BYTES}\n.amdgcn_target', 1)
open(sys.argv[1], 'w').write(txt)
if opt('ids', 0): print(wait_ids, spin_ids)
```

```python
import sys, math
from asmlib import *
opts = dict(o.split('=') for o in sys.argv[2:])
def opt(k, d): return type(d)(opts.get(k, d))
STAMPS = opt('stamps', 0)
CBAR = opt('cbar', 1)
HF1 = opt('hf1', 0)
WDA = opts.get('wda', '')
F8 = opt('f8', 1)
RSP = opts.get('rsp', 'sc1').replace('+', ' ')
RSEQ = opts.get('rseq', '')
FRB = opt('frb', 7)
FRSEP = opt('frsep', 1)
NOCS = opt('nocs', 1)
FWL = opt('fwl', 0)
DF = opt('df', 1)
PFW = opts.get('pfw', '3,0').replace('-', '')
PFP = opts.get('pfp', '-').replace('-', '')
HALF = opt('half', 1)
EARLY = opt('early', 8 if HALF else -1)
NTM = [sum(1 << int(c) for c in m) for m in opts['ntm'].split(',')] if 'ntm' in opts else None
RP = opts.get('rp', '-').replace('+', ' ').replace('-', '')
WP_ = opts.get('wp', '-').replace('+', ' ').replace('-', '')
XP_ = opts.get('xp', '-').replace('+', ' ').replace('-', '')
TONE = opt('t1', 0)
HDLY = opt('hdly', 0)
OUTP = opts.get('outp', 'sc1').replace('+', ' ').replace('-', '')
SENT = 1
RDFT = opt('rdft', 0)
RSL = opt('rsleep', 4)
AUXV = opt('auxv', 0)
VGO = opt('vgo', 1)
VCHK = opt('vchk', 4)
XR = [32, 36, 28]
FA = [16, 17, 18, 19, 20, 21, 22, 23, 24]; VA0, VA4, VFL = 25, 26, 27
NONIT = 1
WMODE = opt('wmode', 0)
STRICT = opt('strict', 1)
ZFIX = opt('zfix', 1)
FLAGA = opt('flaga', 0)
FAKEW = opt('fakew', 0)
FAKEH = opt('fakeh', 0)
P2MAP = opt('p2map', 1)
P2ROT = opt('p2rot', 5)
SPINMAX = opt('spinmax', 1 << 16)
CODEPF = opt('codepf', 1)
LDW = opts.get('ldw', 'sc1').replace('+', ' ').replace('-', '')
LDH = opts.get('ldh', 'sc1').replace('+', ' ').replace('-', '')
STP = opts.get('stp', 'sc1').replace('+', ' ').replace('-', '')
S, D, F = 2048, 640, 1536
KNAME = 'parallel_sum__spectral_fnet__swiglu_ffn__prompt_kernel'
STG = 49152
WS_H = 0
WS_WDT = 0x600000
WS_V = 0x800000
WS_XP = 0xB00000
WS_WP = 0xB20000
WS_FW = 0xB30000
WS_FH = 0xB31000
WS_FV = 0xB34000
WS_TS = 0xC00000
WS_SIZE = 0x1000000
L_AUX = 3*STG
L_R = L_AUX
L_M = L_AUX + 512
L_CS = L_AUX + 1024
L_CNT = L_AUX + 2048
L_NON = L_CNT + 32
L_A0 = L_AUX + 2560
L_CH = L_AUX + 3072
L_WD = L_AUX + 4096
L_Z = 0
ZROW = 64; ZB = 96
VROW = 5248
P2W = 10240
P2STEP = [STG, STG + 5120, 2*STG, 2*STG + 5120, 0, 5120]
PT = [STG, STG + 4416, 2*STG + 128, 2*STG + 128 + 4416, 0]
ST = [40960, STG + 40960 + 64, 2*STG + 40960 + 128, 3*STG + 4096 + 192, 3*STG + 4096 + 192 + 4416 ]
PQ, PN, PE = 272, 1088, 4416
LDS_BYTES = 163840

a = Asm()
stamp_n = [0]
def stamp(i):
    if STAMPS and opts.get('diag') == 'c' and i in (1, 2): a(f's_memtime s[{88 + 2*i}:{89 + 2*i}]'); return
    if STAMPS and opts.get('diag') == 'c' and i in (5, 6): return
    if STAMPS:
        if not ((FAKEW or FAKEH) and i >= 5): a(f's_memrealtime s[{80+2*i}:{81+2*i}]')
TICKS = opt('ticks', 0)
def tick(reg, idx):
    if TICKS:
        a('s_memrealtime s[98:99]'); a('s_waitcnt lgkmcnt(0)')
        if isinstance(idx, tuple):
            a(f's_add_u32 m0, {idx[0]}, {idx[1]}'); a('s_nop 3'); a(f'v_writelane_b32 v{reg}, s98, m0')
        else:
            a(f'v_writelane_b32 v{reg}, s98, {idx}')
def tick_dump(reg, tmp):
    if TICKS:
        a('s_lshl_b32 s98, s2, 3'); a('s_add_u32 s98, s98, s3'); a('s_lshl_b32 s98, s98, 8'); a(f's_add_u32 s98, s98, {WS_TS + 0x100000}')
        a(f'v_lshlrev_b32 v{tmp}, 2, v0')
        a(f'buffer_store_dword v{reg}, v{tmp}, s[12:15], s98 offen')
def rbf(v):
    a(f'v_cvt_pk_bf16_f32 v{v}, v{v}, v{v}')
    a(f'v_lshlrev_b32 v{v}, 16, v{v}')
def srd_from(d, b, nbytes):
    srd(a, d, b, nbytes)
spin_ids = {}
def spin_begin(name):
    a(f's_mov_b32 s79, 0')
    a(f'{name}:')
def spin_end(name):
    a(f's_cbranch_scc1 {name}_ok')
    a('s_add_u32 s79, s79, 1')
    a(f's_cmp_ge_u32 s79, {SPINMAX}')
    if STAMPS: spin_ids[name] = 100 + len(spin_ids); a(f's_cselect_b32 s101, {spin_ids[name]}, s101')
    a(f's_cbranch_scc1 {name}_ok')
    a('s_sleep 2')
    a(f's_branch {name}')
    a(f'{name}_ok:')

def lds_arrive(off, v):
    a(f'v_mov_b32 v{v}, {L_CNT}'); a(f'v_mov_b32 v{v+1}, 1')
    a('s_waitcnt lgkmcnt(0)')
    a('s_mov_b64 exec, 1')
    a(f'ds_add_u32 v{v}, v{v+1} offset:{off}')
    a('s_mov_b64 exec, -1')
wait_ids = {}
def lds_wait(name, off, v, cnt=4):
    wait_ids[name] = len(wait_ids) + 1
    a(f'v_mov_b32 v{v}, {L_CNT}')
    a('s_mov_b32 s100, 0')
    a(f'{name}:')
    a(f'ds_read_b32 v{v+1}, v{v} offset:{off}')
    a('s_waitcnt lgkmcnt(0)')
    a(f'v_readfirstlane_b32 s78, v{v+1}')
    a(f's_cmp_lt_u32 s78, {cnt}')
    a(f's_cbranch_scc0 {name}_ok')
    a('s_add_u32 s100, s100, 1')
    a(f's_cmp_lt_u32 s100, {SPINMAX*8}')
    a(f"s_sleep {opt('lsl', 1)}")
    a(f's_cbranch_scc1 {name}')
    if STAMPS: a(f's_mov_b32 s101, {wait_ids[name]}')
    a(f'{name}_ok:')
a.begin(KNAME)
a('s_cmp_ge_u32 s2, 256')
a('s_cbranch_scc1 L_done')
stamp(0)
if STAMPS: a('s_mov_b32 s101, 0')
a('s_load_dwordx2 s[64:65], s[0:1], 0')
a('s_load_dwordx4 s[60:63], s[0:1], 24')
a('s_load_dwordx8 s[48:55], s[0:1], 48')
a('s_load_dwordx4 s[56:59], s[0:1], 80')
a('v_lshrrev_b32 v1, 6, v0')
a('v_and_b32 v0, 63, v0')
a('v_readfirstlane_b32 s3, v1')
a('s_and_b32 s40, s2, 7'); a('s_lshr_b32 s41, s2, 3')
a('s_and_b32 s31, s40, 1'); a('s_lshr_b32 s30, s40, 1')
a('s_and_b32 s32, s41, 7'); a('s_lshr_b32 s33, s41, 3')
a('s_lshl_b32 s28, s31, 3'); a('s_add_u32 s28, s28, s32')
a('s_mul_i32 s29, s30, 3'); a('s_add_u32 s29, s29, s33')
a('s_add_u32 s42, s30, 12')
a('s_cmp_eq_u32 s33, 3')
a('s_cselect_b32 s29, s42, s29')
a('s_cselect_b32 s35, 1, 0')
OFFA = opt('offa', 0)
assert DF or OFFA == 0
if OFFA == 0: a('s_mul_i32 s34, s30, 5'); a('s_add_u32 s34, s34, 1'); a('s_lshr_b32 s34, s34, 1')
elif OFFA == 1: a('s_min_u32 s34, s30, 1'); a('s_add_u32 s34, s34, s30')
elif OFFA == 2: a('s_mov_b32 s34, 0')
elif OFFA == 3: a('s_min_u32 s34, s30, 1'); a('s_add_u32 s34, s34, s30'); a('s_and_b32 s42, s30, 1'); a('s_mul_i32 s42, s42, 5'); a('s_add_u32 s34, s34, s42')
a('s_mul_i32 s42, s31, 5'); a('s_add_u32 s34, s34, s42')
a('s_cmp_ge_u32 s34, 10'); a('s_cselect_b32 s42, 10, 0'); a('s_sub_u32 s34, s34, s42')
if P2MAP == 0:
    a('s_lshl_b32 s42, s30, 3'); a('s_add_u32 s42, s42, s32')
    a('s_lshl_b32 s38, s31, 2'); a('s_add_u32 s38, s38, s33')
else:
    a('s_lshl_b32 s42, s40, 2'); a('s_add_u32 s42, s42, s33')
    a('s_mov_b32 s38, s32')
if EARLY < 0:
    a('s_mul_i32 s39, s32, 3'); a('s_lshr_b32 s39, s39, 1'); a('s_mul_i32 s66, s33, 3'); a('s_add_u32 s39, s39, s66')
    a('s_cmp_ge_u32 s39, 12'); a('s_cselect_b32 s66, 12, 0'); a('s_sub_u32 s39, s39, s66')
else:
    a('s_lshl_b32 s39, s33, 1'); a('s_add_u32 s39, s39, s32'); a('s_mul_i32 s39, s39, 3'); a('s_lshr_b32 s39, s39, 2')
    a('s_cmp_ge_u32 s39, 6'); a('s_cselect_b32 s66, 6, 0'); a('s_sub_u32 s39, s39, s66')
if not P2ROT: a('s_mov_b32 s39, 0')
if P2ROT == 2: a('s_mul_i32 s39, s32, 3'); a('s_lshr_b32 s39, s39, 1')
if P2ROT == 3: a('s_mul_i32 s39, s33, 3')
if P2ROT == 4: a('s_add_u32 s39, s32, s33'); a('s_and_b32 s39, s39, 1'); a('s_mul_i32 s39, s39, 6')
if P2ROT == 5: a('s_and_b32 s39, s2, 7'); a('s_mul_i32 s39, s39, 3'); a(f's_lshr_b32 s39, s39, {1 if EARLY < 0 else 2}')
a('s_lshr_b32 s36, s42, 1'); a('s_and_b32 s37, s42, 1')
WSOFF = opt('wsoff', 0)
WSRD = 's[12:15]'; HSRD = 's[12:15]'
def common_srds(loader=False):
    a('s_waitcnt lgkmcnt(0)')
    tick(7, 50)
    srd(a, 12, 58, WS_SIZE, WSOFF << 20)
    if not loader:
        srd_from(4, 64, S*D*2)
        srd_from(16, 54, S*D*2)
        srd_from(20, 52, F*D*2)
        srd_from(24, 56, 256)
a('s_cmp_lt_u32 s3, 4')
a('s_cbranch_scc1 L_compute')
a('s_sub_u32 s44, s3, 4')
a('s_cmp_eq_u32 s44, 3')
a('s_cbranch_scc1 L_aux')

W0 = 5
PT_ = [20, 21, 22, 23, 24, 25, 26, 27, 4, 5, 6, 7, 16, 17, 18, 19]
GT_ = [66, 67, 68, 69, 76, 77, 78, 79, 96, 97, 100, 101, 40, 41, 42, 43]
GT_ = [66, 67, 68, 69, 76, 77, 78, 79, 28, 29, 30, 31, 40, 41, 33, 43]
def emit_p0(dst, t):
    a(f's_min_u32 s{t}, s30, 1'); a(f's_add_u32 s{dst}, s30, s{t}'); a(f's_mul_i32 s{t}, s31, 3'); a(f's_add_u32 s{dst}, s{dst}, s{t}')
    a(f's_cmp_ge_u32 s{dst}, 5'); a(f's_cselect_b32 s{t}, 5, 0'); a(f's_sub_u32 s{dst}, s{dst}, s{t}')
H0 = opt('h0', 12)
def dma_loop(name, npieces):
    h = npieces * H0 // 16
    def pieces1(lo, hi, pol):
        for t in range(lo, hi):
            a(f's_add_u32 m0, s{PT_[t]}, s46'); a('s_nop 0')
            a(f'buffer_load_dwordx4 v{4 + (t & 1)}, s[8:11], s{GT_[t]} offen {pol} lds')
    def pieces(lo, hi):
        if not NTM: return pieces1(lo, hi, RP)
        L = a.label('L_pc')
        a('s_bitcmp1_b32 s50, s47'); a(f's_cbranch_scc1 {L}_n')
        pieces1(lo, hi, ''); a(f's_branch {L}_e')
        a(f'{L}_n:'); pieces1(lo, hi, 'nt'); a(f'{L}_e:')
    a('s_mov_b32 s46, 0'); a('s_mov_b32 s47, 0')
    a('v_add_u32 v4, s42, v4'); a('v_add_u32 v5, s42, v5')
    tick(7, 51)
    if opt('uni', 0):
        pieces(0, h)
        a(f'{name}_l:')
        pieces(h, npieces)
        a('s_cmp_eq_u32 s47, 9'); a('s_cbranch_scc1 L_p2last')
        a('s_add_u32 s45, s45, 1'); a('s_cmp_eq_u32 s45, 10'); a('s_cselect_b32 s45, 0, s45')
        a('s_cselect_b32 s42, s49, s48')
        a('v_add_u32 v4, s42, v4'); a('v_add_u32 v5, s42, v5')
        a(f's_add_u32 s46, s46, {STG}'); a(f's_cmp_eq_u32 s46, {3*STG}'); a('s_cselect_b32 s46, 0, s46')
        pieces(0, h)
        a(f's_waitcnt vmcnt({h})')
        tick(7, ('s47', 0))
        a('s_barrier')
        tick(7, ('s47', 16))
        a('s_add_u32 s47, s47, 1'); a(f's_branch {name}_l')
        return
    a(f'{name}_l:')
    pieces(0, h)
    a('s_cmp_lg_u32 s47, 1'); a(f's_cbranch_scc1 {name}_m')
    a(f's_waitcnt vmcnt({h})')
    tick(7, 0)
    a('s_barrier')
    tick(7, 16)
    a(f'{name}_m:')
    pieces(h, npieces)
    a('s_add_u32 s45, s45, 1'); a('s_cmp_eq_u32 s45, 10'); a('s_cselect_b32 s45, 0, s45')
    a('s_cselect_b32 s42, s49, s48')
    a('s_mov_b32 s70, s48'); a('s_mov_b32 s48, s51'); a('s_mov_b32 s51, s70')
    a('v_add_u32 v4, s42, v4'); a('v_add_u32 v5, s42, v5')
    a(f's_add_u32 s46, s46, {STG}'); a(f's_cmp_eq_u32 s46, {3*STG}'); a('s_cselect_b32 s46, 0, s46')
    tick(7, ('s47', 52))
    a('s_cmp_lt_u32 s47, 2'); a(f's_cbranch_scc1 {name}_nx')
    a(f's_waitcnt vmcnt({npieces})')
    tick(7, ('s47', -1))
    a('s_barrier')
    tick(7, ('s47', 15))
    a('s_cmp_eq_u32 s47, 9'); a('s_cbranch_scc1 L_p2last')
    a(f'{name}_nx:')
    a('s_add_u32 s47, s47, 1'); a(f's_branch {name}_l')

a('s_cmp_eq_u32 s44, 2')
a('s_cbranch_scc1 L_ldx')
a('s_cmp_eq_u32 s35, 1')
a('s_cbranch_scc1 L_ldc')
a('v_lshrrev_b32 v1, 4, v0')
a('v_and_b32 v2, 15, v0')
a('v_lshlrev_b32 v3, 1, v1')
a('v_xor_b32 v2, v2, v3')
a('v_lshlrev_b32 v2, 4, v2')
a(f'v_mul_u32_u24 v3, {F*2}, v1')
a('v_add_u32 v2, v2, v3')
a('s_lshl_b32 s70, s29, 8')
a('v_add_u32 v2, s70, v2')
a('s_and_b32 s70, s32, 1'); a('s_lshl_b32 s70, s70, 7')
a('v_xor_b32 v4, s70, v2')
a('v_xor_b32 v5, 128, v4')
a('s_lshl_b32 s70, s32, 11')
a('s_lshl_b32 s71, s44, 14')
for g in range(4):
    if g: a('s_add_u32 s70, s70, 2048'); a('s_and_b32 s70, s70, 0x3c00')
    a(f's_or_b32 s{PT_[4*g]}, s70, s71'); a(f's_mul_i32 s{GT_[4*g]}, s70, 12')
    a(f's_add_u32 s{PT_[4*g+2]}, s{PT_[4*g]}, 1024'); a(f's_add_u32 s{GT_[4*g+2]}, s{GT_[4*g]}, {4*F*2}')
    a('s_add_u32 s70, s70, 2048'); a('s_and_b32 s70, s70, 0x3c00')
    a(f's_or_b32 s{PT_[4*g+1]}, s70, s71'); a(f's_mul_i32 s{GT_[4*g+1]}, s70, 12')
    a(f's_add_u32 s{PT_[4*g+3]}, s{PT_[4*g+1]}, 1024'); a(f's_add_u32 s{GT_[4*g+3]}, s{GT_[4*g+1]}, {4*F*2}')
a('s_cmp_eq_u32 s44, 1')
a('s_waitcnt lgkmcnt(0)')
a('s_cselect_b32 s8, s50, s48'); a('s_cselect_b32 s9, s51, s49'); a(f's_mov_b32 s10, {D*F*2}'); a('s_mov_b32 s11, 0x00020000')
a(f's_mov_b32 s48, {64*F*2}'); a('s_mov_b32 s51, s48'); a('s_mov_b32 s45, s34'); a('s_mul_i32 s42, s34, s48'); a('s_mul_i32 s49, s48, -9')
if NTM: a(f's_mov_b32 s50, {NTM[0]}')
a('s_branch L_ld16')
a('L_ldx:')
if DF: emit_p0(71, 72)
a('v_lshrrev_b32 v1, 3, v0')
a('v_and_b32 v2, 7, v0')
a('v_lshrrev_b32 v3, 1, v1')
a('v_xor_b32 v2, v2, v3')
a('v_lshlrev_b32 v2, 4, v2')
a('v_lshrrev_b32 v3, 2, v1'); a('v_and_b32 v6, 3, v1'); a('v_lshl_add_u32 v3, v6, 2, v3')
XMAP = opt('xmap', 0)
if XMAP == 0:
    a('v_lshlrev_b32 v3, 7, v3'); a('v_add_u32 v3, s28, v3')
elif XMAP == 1:
    a('v_lshlrev_b32 v3, 7, v3'); a('s_lshl_b32 s70, s28, 3'); a('v_add_u32 v3, s70, v3')
else:
    a('v_lshlrev_b32 v3, 3, v3'); a('s_lshl_b32 s70, s28, 7'); a('v_add_u32 v3, s70, v3')
a(f'v_mul_u32_u24 v3, {D*2}, v3')
a('v_add_u32 v4, v2, v3')
a('v_xor_b32 v5, 64, v4'); a(f'v_add_u32 v5, {(256 if XMAP < 2 else 16)*D*2}, v5')
a('s_lshl_b32 s70, s33, 12')
for t in range(0, 16, 2):
    if t: a('s_add_u32 s70, s70, 2048'); a('s_and_b32 s70, s70, 0x3c00')
    a(f's_or_b32 s{PT_[t]}, s70, 0x8000'); a(f's_or_b32 s{PT_[t+1]}, s70, 0x8400')
    if XMAP == 0: a(f's_mul_i32 s{GT_[t]}, s70, {16*D*2//2048}')
    else: a(f's_mul_i32 s{GT_[t]}, s70, 5'); a(f's_lshr_b32 s{GT_[t]}, s{GT_[t]}, 3')
    a(f's_mov_b32 s{GT_[t+1]}, s{GT_[t]}')
a('s_waitcnt lgkmcnt(0)')
srd_from(8, 64, S*D*2)
a('s_movk_i32 s48, 128'); a('s_movk_i32 s51, 128'); a('s_mov_b32 s45, s34'); a('s_lshl_b32 s42, s34, 7'); a('s_movk_i32 s49, -1152')
if DF:
    a('s_cmp_eq_u32 s35, 0'); a('s_cbranch_scc1 L_ld16')
    a('s_movk_i32 s48, 640'); a('s_movk_i32 s51, -512'); a('s_lshl_b32 s45, s71, 1'); a('s_lshl_b32 s42, s71, 7')
if NTM: a(f's_mov_b32 s50, {NTM[1]}')
a('L_ld16:')
dma_loop('L_ldw', 16)
a('L_ldc:')
a('v_lshrrev_b32 v1, 3, v0')
a('v_and_b32 v2, 7, v0')
a('v_lshrrev_b32 v3, 1, v1')
a('v_xor_b32 v2, v2, v3')
a('v_lshlrev_b32 v2, 4, v2')
if DF:
    emit_p0(45, 72)
    a('s_lshr_b32 s70, s30, 1'); a('s_mul_i32 s70, s70, 160'); a('s_and_b32 s71, s30, 1'); a('s_add_u32 s70, s70, s71'); a('s_add_u32 s70, s70, 1')
    a('v_lshlrev_b32 v1, 1, v1')
else:
    a('s_mul_i32 s70, s30, 80'); a('s_add_u32 s70, s70, 1')
a('v_add_u32 v1, s70, v1')
a(f'v_mul_u32_u24 v3, {D*2}, v1')
a('v_add_u32 v2, v2, v3')
a('s_and_b32 s70, s32, 1'); a('s_lshl_b32 s70, s70, 6')
a('v_xor_b32 v4, s70, v2')
a('v_xor_b32 v5, 64, v4')
a('s_lshl_b32 s70, s32, 10')
a('s_lshl_b32 s71, s44, 14')
for t in range(10):
    if t: a('s_add_u32 s70, s70, 1024'); a('s_cmp_eq_u32 s70, 10240'); a('s_cselect_b32 s70, 0, s70')
    a(f's_or_b32 s{PT_[t]}, s70, s71'); a(f's_mul_i32 s{GT_[t]}, s70, {(16 if DF else 8)*D*2//1024}')
a('s_cmp_eq_u32 s44, 1')
a('s_waitcnt lgkmcnt(0)')
a('s_cselect_b32 s8, s62, s60'); a('s_cselect_b32 s9, s63, s61'); a(f's_mov_b32 s10, {D*D*2}'); a('s_mov_b32 s11, 0x00020000')
if not DF:
    a('s_movk_i32 s48, 128'); a('s_movk_i32 s51, 128'); a('s_mov_b32 s45, s34'); a('s_lshl_b32 s42, s34, 7'); a('s_movk_i32 s49, -1152')
    if NTM: a(f's_mov_b32 s50, {NTM[0]}')
    dma_loop('L_ldcl', 10)
else:
    a('s_lshl_b32 s42, s45, 7'); a('v_add_u32 v4, s42, v4'); a('v_add_u32 v5, s42, v5')
    a(f's_mov_b32 s46, {STG}'); a('s_mov_b32 s47, 1')
    a('L_ldcl:')
    for t in range(10):
        a(f's_add_u32 m0, s{PT_[t]}, s46'); a('s_nop 0')
        a(f'buffer_load_dwordx4 v{4 + (t & 1)}, s[8:11], s{GT_[t]} offen lds')
    a('s_add_u32 s45, s45, 1'); a('s_cmp_eq_u32 s45, 5'); a('s_cselect_b32 s45, 0, s45')
    a('s_movk_i32 s42, 128'); a('s_cselect_b32 s42, -512, s42')
    a('v_add_u32 v4, s42, v4'); a('v_add_u32 v5, s42, v5')
    a(f's_sub_u32 s46, s46, {STG}'); a(f's_cselect_b32 s46, {2*STG}, s46')
    a('s_barrier')
    a('s_cmp_eq_u32 s47, 9'); a('s_cbranch_scc1 L_p2last')
    a('s_waitcnt vmcnt(0)')
    a('s_barrier')
    a('s_add_u32 s47, s47, 2'); a('s_branch L_ldcl')

P2ACC = 176; P2W_R = 56; P2H = 8
def p2_setup():
    a('v_lshlrev_b32 v1, 4, v0')
    srd(a, 12, 58, WS_SIZE, WSOFF << 20)
    a('s_mul_i32 s70, s38, 48'); a('s_mul_i32 s71, s44, 12'); a('s_add_u32 s70, s70, s71')
    a(f's_mul_i32 s70, s70, 5120'); a(f's_add_u32 s70, s70, {WS_WDT}')
    a(f's_mul_i32 s73, s44, {P2W}')
def kidx(step):
    if EARLY < 0:
        a(f's_add_u32 s72, s39, {step}'); a('s_cmp_ge_u32 s72, 12'); a('s_cselect_b32 s71, 12, 0'); a('s_sub_u32 s72, s72, s71')
    else:
        a(f's_add_u32 s72, s39, {step % 6}'); a('s_cmp_ge_u32 s72, 6'); a('s_cselect_b32 s71, 6, 0'); a('s_sub_u32 s72, s72, s71')
        a('s_lshl_b32 s72, s72, 1')
        if (step >= 6) != bool(HALF): a('s_add_u32 s72, s72, 1')
def wdt_reg(step):
    kidx(step)
    a('s_mul_i32 s72, s72, 5120'); a('s_add_u32 s72, s72, s70')
    for ei in range(5):
        r = P2W_R + 20*step + 4*ei
        if ei == 4: a('s_add_u32 s72, s72, 4096')
        a(f'buffer_load_dwordx4 v[{r}:{r+3}], v1, {WSRD}, s72 offen offset:{(ei % 4)*1024} {LDW}')
def wdt_lds(step):
    kidx(step)
    a('s_mul_i32 s72, s72, 5120'); a('s_add_u32 s72, s72, s70')
    for ei in range(5):
        a(f's_add_u32 m0, s73, {P2STEP[step-6] + ei*1024}')
        if ei: a('s_add_u32 s72, s72, 1024')
        else: a('s_nop 0')
        a(f'buffer_load_dwordx4 v1, {WSRD}, s72 offen {LDW} lds')
WD = [[0, 1], [2, 3], [4, 5], []]
def read_nonce(v):
    a(f'v_mov_b32 v{v}, {L_NON}'); a(f'ds_read_b32 v{v}, v{v}'); a('s_waitcnt lgkmcnt(0)'); a(f'v_readfirstlane_b32 s43, v{v}')
def final_addr(tau_off, d4, d5, d11, t, a=a):
    v4, v5, v6, v7, v8, v9, v10 = d4, d5, t, t+1, t+2, t+3, t+4
    a('s_lshl_b32 s66, s3, 6'); a(f's_add_u32 s66, s66, {tau_off}')
    a(f'v_add_u32 v{v4}, s66, v0')
    a(f'v_mul_u32_u24 v{v5}, 6554, v{v4}'); a(f'v_lshrrev_b32 v{v5}, 16, v{v5}')
    a(f'v_mul_u32_u24 v{v6}, 10, v{v5}'); a(f'v_sub_u32 v{v6}, v{v4}, v{v6}')
    a(f'v_lshrrev_b32 v{v7}, 4, v{v5}'); a(f'v_and_b32 v{v5}, 15, v{v5}')
    a(f'v_lshrrev_b32 v{v9}, 1, v{v6}')
    a(f'v_mov_b32 v{v10}, {PT[0]}'); a(f'v_mov_b32 v{d11}, {ST[0]}')
    for e in range(1, 5):
        a(f'v_cmp_eq_u32 vcc, {e}, v{v9}'); a(f'v_mov_b32 v{t+5}, {PT[e]}'); a(f'v_mov_b32 v{t+6}, {ST[e]}')
        a(f'v_cndmask_b32 v{v10}, v{v10}, v{t+5}, vcc'); a(f'v_cndmask_b32 v{d11}, v{d11}, v{t+6}, vcc')
    a(f'v_and_b32 v{v8}, 1, v{v6}'); a(f'v_mul_u32_u24 v{v4}, {2*PQ}, v{v8}')
    a(f'v_mul_u32_u24 v{v8}, {PN}, v{v7}'); a(f'v_add_u32 v{v4}, v{v4}, v{v8}'); a(f'v_lshl_add_u32 v{v4}, v{v5}, 4, v{v4}')
    a(f'v_add_u32 v{d11}, v{d11}, v{v4}'); a(f'v_add_u32 v{v4}, v{v10}, v{v4}')
    a(f'v_lshrrev_b32 v{v8}, 2, v{v5}'); a(f'v_and_b32 v{v5}, 3, v{v5}'); a(f'v_lshl_add_u32 v{v5}, v{v5}, 2, v{v8}')
    a(f'v_lshlrev_b32 v{v5}, 3, v{v5}'); a(f'v_add_u32 v{v5}, v{v5}, v{v7}'); a(f'v_lshlrev_b32 v{v5}, 4, v{v5}')
    a('s_lshl_b32 s66, s37, 6'); a('s_add_u32 s66, s66, s36'); a(f'v_add_u32 v{v5}, s66, v{v5}')
    a(f'v_mul_u32_u24 v{v5}, {D*2}, v{v5}'); a(f'v_lshl_add_u32 v{v5}, v{v6}, 4, v{v5}'); a('s_mul_i32 s66, s38, 160'); a(f'v_add_u32 v{v5}, s66, v{v5}')

VB0, VB1 = 128, 144
def p2h_setup():
    a('s_cmp_ge_u32 s38, 4'); a('s_cselect_b32 s55, 1, 0')
    a('s_sub_u32 s67, 16, s36'); a('s_xor_b32 s68, s37, 1')
    a('s_cmp_eq_u32 s55, 1')
    a('s_cselect_b32 s67, s67, s36'); a('s_cselect_b32 s68, s68, s37')
    a('s_and_b32 s60, s67, 3'); a('s_lshl_b32 s60, s60, 7'); a(f's_add_u32 s60, s60, {WS_FV}')
    a('s_lshl_b32 s67, s67, 1'); a('s_add_u32 s67, s67, s68'); a(f's_mul_i32 s67, s67, {VROW}'); a(f's_add_u32 s56, s67, {WS_V}')
    a('s_lshl_b32 s57, s55, 9'); a('s_sub_u32 s57, 256, s57')
def fv_addr(v, t):
    if DF:
        a(f'v_lshrrev_b32 v{v}, 4, v0'); a(f'v_lshlrev_b32 v{v}, 9, v{v}'); a(f'v_and_b32 v{t}, 15, v0'); a(f'v_lshl_add_u32 v{v}, v{t}, 2, v{v}')
        return
    a('s_sub_u32 s66, 7, s38'); a('s_sub_u32 s67, s38, 1'); a('s_max_i32 s67, s67, 0')
    a('s_cmp_ge_u32 s38, 4'); a('s_cselect_b32 s67, s66, s67'); a('s_cselect_b32 s66, s66, s38')
    a(f'v_mov_b32 v{v}, s66'); a(f'v_mov_b32 v{t}, s67'); a(f'v_bfe_u32 v{t+1}, v0, 4, 1'); a(f'v_cmp_eq_u32 vcc, 0, v{t+1}'); a(f'v_and_b32 v{t+1}, 15, v0')
    a(f'v_cndmask_b32 v{v}, v{t}, v{v}, vcc'); a(f'v_lshlrev_b32 v{v}, 9, v{v}'); a(f'v_lshl_add_u32 v{v}, v{t+1}, 2, v{v}')
def pre_loop():
    for r in range(3):
        final_addr(256*r, FA[3*r], FA[3*r+1], FA[3*r+2], 40)
    a('s_cmp_ge_u32 s3, 2'); a('s_cselect_b32 s66, -1, 0'); a(f'v_or_b32 v{FA[7]}, s66, v{FA[7]}')
    fv_addr(VFL, 40)
    if DF:
        for dst, ei in ((VA0, 's3'), (VA4, '4')):
            a('s_mul_i32 s66, s38, 80'); a(f's_lshl_b32 s67, {ei}, 4'); a('s_add_u32 s66, s66, s67'); a('v_add_u32 v40, s66, v3')
            a('v_sub_u32 v41, 640, v40'); a('s_cmp_eq_u32 s55, 1'); a('s_cselect_b64 vcc, -1, 0'); a('s_nop 1')
            a('v_cndmask_b32 v40, v40, v41, vcc')
            a('v_and_b32 v41, 1, v40'); a('v_mul_u32_u24 v41, 160, v41'); a('v_add_u32 v42, 335, v40'); a('v_lshrrev_b32 v42, 1, v42'); a('v_sub_u32 v42, v42, v41')
            a('v_cmp_eq_u32 vcc, 0, v40'); a(f'v_mul_u32_u24 v43, {4*17*2*VROW}, v2'); a('s_nop 0')
            a('v_cndmask_b32 v42, v42, 7, vcc')
            a(f'v_lshl_add_u32 v{dst}, v42, 4, v43')
        return
    a('s_mul_i32 s66, s38, 80'); a('v_add_u32 v40, s66, v3')
    a('v_add_u32 v41, 7, v40'); a('v_sub_u32 v42, 647, v40')
    a('s_cmp_eq_u32 s55, 1'); a('s_cselect_b64 vcc, -1, 0')
    a(f'v_mul_u32_u24 v43, {4*17*2*VROW}, v2')
    a('v_cndmask_b32 v40, v41, v42, vcc')
    a('v_lshl_add_u32 v43, v40, 4, v43')
    a('s_mul_i32 s66, s3, s57'); a(f'v_add_u32 v{VA0}, s66, v43')
    a('s_lshl_b32 s66, s57, 2'); a(f'v_add_u32 v{VA4}, s66, v43')
def pre_epilogue():
    for r in range(3): a(f'buffer_load_dwordx4 v[{XR[r]}:{XR[r]+3}], v{FA[3*r+1]}, s[4:7], 0 offen {XP_}')
def v_loads():
    L = a.label('L_vl')
    a('s_mov_b32 s72, s56')
    for i in range(4):
        a(f'buffer_load_dwordx4 v[{VB0+4*i}:{VB0+3+4*i}], v{VA0}, s[12:15], s72 offen {LDH}')
        if i < 3: a(f's_add_u32 s72, s72, {17*2*VROW}')
    a('s_cmp_lg_u32 s3, 0'); a(f's_cbranch_scc1 {L}')
    a('s_mov_b32 s72, s56')
    for i in range(4):
        a(f'buffer_load_dwordx4 v[{VB1+4*i}:{VB1+3+4*i}], v{VA4}, s[12:15], s72 offen {LDH}')
        if i < 3: a(f's_add_u32 s72, s72, {17*2*VROW}')
    a(f'{L}:')

a('L_p2last:')
a('s_waitcnt vmcnt(0)')
lds_arrive(12, 2)
read_nonce(2)
p2_setup()
srd_from(16, 54, S*D*2)
if FWL: lds_wait('L_fwok', 44, 2, 1)
a('L_p2join:')
tick(7, 27)
NLATE = opt('nlate', 6)
WTOUCH = opt('wtouch', 0)
if WTOUCH:
    a('s_cmp_eq_u32 s35, 0'); a('s_cbranch_scc1 L_nwt')
    a('s_lshl_b32 s66, s32, 2'); a('s_add_u32 s66, s66, s44'); a('s_mul_i32 s66, s66, 23040')
    a('s_and_b32 s67, s38, 4'); a(f's_mul_i32 s67, s67, {48*5120}'); a('s_add_u32 s66, s66, s67'); a(f's_add_u32 s66, s66, {WS_WDT}')
    a('v_lshlrev_b32 v4, 7, v0')
    if WTOUCH == 2:
        for st in range(6): wdt_reg(st)
    for i in range(3):
        a(f'buffer_load_dword v8, v4, s[12:15], s66 offen {LDW}')
        if i < 2: a('s_add_u32 s66, s66, 8192')
    if WTOUCH == 2: a('s_branch L_p2d')
    a('L_nwt:')
for st in range(6): wdt_reg(st)
NLD = opt('nld', 2)
a('s_cmp_eq_u32 s35, 0')
a('s_cbranch_scc1 L_p2ffn')
if NLD < 6:
    for st in (6, 7): wdt_lds(st)
if NLD < 4:
    lds_wait('L_c8d', 16, 4)
    for st in (8, 9): wdt_lds(st)
a('s_branch L_p2d')
a('L_p2ffn:')
if NLATE < 6:
    for st in (6, 7): wdt_lds(st)
if NLATE < 4:
    lds_wait('L_c8', 16, 4)
    for st in (8, 9): wdt_lds(st)
if NLATE < 2:
    lds_wait('L_c9', 20, 4)
    for st in (10, 11): wdt_lds(st)
if AUXV:
    a('s_cmp_lg_u32 s44, 3'); a('s_cbranch_scc1 L_p2d')
    p2h_setup(); fv_addr(8, 9)
    a('s_mov_b32 s79, 0')
    a('L_av:')
    a('buffer_load_dword v9, v8, s[12:15], s60 offen sc1')
    a('s_waitcnt vmcnt(0)')
    a('v_cmp_ne_u32 vcc, s43, v9'); a('s_cmp_eq_u64 vcc, 0'); a('s_cbranch_scc1 L_av_ok')
    a('s_add_u32 s79, s79, 1'); a(f's_cmp_ge_u32 s79, {AUXV}'); a('s_cbranch_scc1 L_p2d')
    a('s_branch L_av')
    a('L_av_ok:')
    lds_arrive(28, 8)
a('L_p2d:')
tick(7, 28)
a(f'v_add_u32 v2, s73, v1')
a(f'v_add_u32 v3, {2*STG}, v2')
a('v_min_u32 v4, 5, v0'); a('v_lshrrev_b32 v5, 1, v4'); a('v_and_b32 v4, 1, v4'); a('v_lshlrev_b32 v4, 2, v4'); a('v_lshl_add_u32 v6, v5, 4, v4')
a('s_lshl_b32 s76, s36, 8'); a('s_mul_i32 s77, s44, 48'); a('s_add_u32 s76, s76, s77'); a('s_lshl_b32 s77, s37, 3'); a('s_add_u32 s76, s76, s77'); a(f's_add_u32 s76, s76, {WS_FH}')
a('s_lshl_b32 s74, s36, 3'); a('s_lshl_b32 s75, s37, 2'); a('s_add_u32 s74, s74, s75')
a('s_mul_i32 s74, s74, 48'); a('s_mul_i32 s75, s44, 12'); a('s_add_u32 s74, s74, s75'); a('s_lshl_b32 s74, s74, 10')
for i in range(80): a(f'v_mov_b32 v{P2ACC+i}, 0')
a('s_barrier') if CBAR else lds_wait('L_own', 0, 4, 5 if SENT else 4)
tick(7, 29)
stamp(2)
if TONE:
    a('s_cmp_eq_u32 s35, 0'); a('s_cbranch_scc1 L_p2f')
    for st in range(6, 12 - NLATE): wdt_lds(st)
    a('L_p2f:')
    for st in range(12 - NLATE, 12): wdt_lds(st)
    if HDLY: a(f's_sleep {HDLY}')

tick(7, 32)
def hsoff(step):
    kidx(step)
    a('s_lshl_b32 s72, s72, 10'); a(f's_add_u32 s72, s72, s74')
    if SENT: a(f's_mov_b32 s{66 + step % 4}, s72')
def hld(step, ni):
    r = P2H + 16*(step % 3) + 4*ni
    L = []
    if ni: L.append(f's_add_u32 s72, s72, {48*1024}')
    L.append(f'buffer_load_dwordx4 v[{r}:{r+3}], v1, {HSRD}, s72 offen {LDH}')
    return L
def hpoll(name, kp):
    spin_begin(name)
    a(f'buffer_load_dword v4, v6, s[12:15], s76 offen sc1')
    a('s_waitcnt vmcnt(0)')
    a(f'v_cmp_ne_u32 vcc, s43, v{4+kp}')
    a('s_cmp_eq_u64 vcc, 0')
    spin_end(name)
if not SENT: hpoll('L_pollh0', 0)
else: a('s_waitcnt vmcnt(0)'); a('s_mov_b32 s79, 0')
if VGO and not HF1:
    a(f'v_mov_b32 v4, {L_CNT}'); a('v_mov_b32 v5, 1'); a('ds_write_b32 v4, v5 offset:40')
stamp(3)
tick(7, 33)
for st in range(3):
    hsoff(st)
    for ni in range(4):
        for ins in hld(st, ni): a(ins)
if HF1: lds_arrive(40, 4)
def pwrite(ni):
    return [f'ds_write_b128 v{2 if PT[ei] < 2*STG else 3}, v[{P2ACC+16*ei+4*ni}:{P2ACC+16*ei+4*ni+3}] offset:{PT[ei] + ni*PN - (0 if PT[ei] < 2*STG else 2*STG)}' for ei in range(5)]
for st in range(12):
    rem = min(2, 11 - st)
    RDD = opt('rdd', 2)
    if st == 6 - RDD: lds_wait('L_lw', 36, 4)
    if st < 9: hsoff(st + 3)
    if st == 11:
        a('v_and_b32 v2, 15, v0'); a('v_lshrrev_b32 v4, 4, v0')
        a(f'v_mul_u32_u24 v4, {PQ}, v4'); a('v_lshl_add_u32 v2, v2, 4, v4'); a('v_add_u32 v2, s73, v2'); a(f'v_add_u32 v3, {2*STG}, v2')
    a(f's_waitcnt vmcnt({4*rem})' + (' lgkmcnt(0)' if st >= 6 else ''))
    hb = P2H + 16*(st % 3)
    if SENT and not (HALF and st >= 6):
        a(f'L_hchk{st}:')
        a(f'v_max_u32 v4, v{hb}, v{hb+4}'); a(f'v_max3_u32 v4, v{hb+8}, v{hb+12}, v4')
        a('v_cmp_eq_u32 vcc, -1, v4'); a('s_cmp_lg_u64 vcc, 0')
        a(f's_cbranch_scc1 L_hretry{st}')
        a(f'L_hok{st}:')
    tick(7, 36 + st)
    w0 = P2W_R + 20*(st % 6)
    rd = []
    if 6 <= st + RDD <= 11:
        wr = P2W_R + 20*((st + RDD) % 6)
        for ei in range(5):
            o = P2STEP[st + RDD - 6] + ei*1024
            rd.append(f'ds_read_b128 v[{wr+4*ei}:{wr+4*ei+3}], v{2 if o < 2*STG else 3} offset:{o if o < 2*STG else o - 2*STG}')
    if F8 and st == 10:
        final_addr(0, 8, 9, 10, 11, rd.append)
    for ni in range(4):
        for ei in (range(5) if ni % 2 == 0 else range(4, -1, -1)):
            t = P2ACC + 16*ei + 4*ni
            h = hb + 4*ni
            a(f'v_mfma_f32_16x16x32_bf16 v[{t}:{t+3}], v[{w0+4*ei}:{w0+4*ei+3}], v[{h}:{h+3}], v[{t}:{t+3}]')
            for _ in range(3 if st == 10 else 1):
                if rd: a(rd.pop(0))
        if st < 9:
            for ins in hld(st + 3, ni): a(ins)
        if st == 11 and ni >= 2:
            for w in pwrite(ni - 2): a(w)
for w in pwrite(2): a(w)
a('s_nop 3')
for w in pwrite(3): a(w)
stamp(4)
tick(7, 48)
a('s_waitcnt lgkmcnt(0)')
a('s_barrier')
if F8:
    for p in range(5):
        reg = (8, 8, 8, 8, 10)[p]; off = (0, P2W, 2*P2W, 3*P2W, 0)[p]
        a(f'ds_read_b128 v[{56+8*p}:{59+8*p}], v{reg} offset:{off}')
        a(f'ds_read_b128 v[{60+8*p}:{63+8*p}], v{reg} offset:{off+PQ}')
    for p in range(1, 5):
        a(f's_waitcnt lgkmcnt({8 - 2*p})')
        for d in range(0, 8, 2): a(f'v_pk_add_f32 v[{56+d}:{57+d}], v[{56+d}:{57+d}], v[{56+8*p+d}:{57+8*p+d}]')
    for d in range(4): a(f'v_cvt_pk_bf16_f32 v{64+d}, v{56+2*d}, v{57+2*d}')
    a(f'buffer_store_dwordx4 v[64:67], v9, s[16:19], 0 offen {OUTP}')
tick_dump(7, 4)
a('s_branch L_fin2')
if SENT:
    for st in range(6 if HALF else 12):
        a(f'L_hretry{st}:')
        a('s_add_u32 s79, s79, 1'); a(f's_cmp_ge_u32 s79, {SPINMAX}')
        if STAMPS: a(f's_cselect_b32 s101, {60 + st}, s101')
        a(f's_cbranch_scc1 L_hok{st}')
        if RSL: a(f's_sleep {RSL}')
        a(f's_mov_b32 s77, s{66 + st % 4}')
        for ni in range(4):
            r = P2H + 16*(st % 3) + 4*ni
            if ni: a(f's_add_u32 s77, s77, {48*1024}')
            a(f'buffer_load_dwordx4 v[{r}:{r+3}], v1, {HSRD}, s77 offen {LDH}')
        a('s_waitcnt vmcnt(0)')
        a(f's_branch L_hchk{st}')

a('L_aux:')
if opt('aprio', 0): a(f"s_setprio {opt('aprio', 0)}")
common_srds()
AB = 248
a('v_mov_b32 v1, 0'); a(f'v_mov_b32 v3, {L_CNT}')
a('s_mov_b64 exec, 1')
a('s_cmp_lg_u32 s2, 0'); a('s_cbranch_scc1 L_aux_n0')
a('s_memrealtime s[66:67]'); a('s_waitcnt lgkmcnt(0)'); a('s_or_b32 s66, s66, 1'); a('v_mov_b32 v2, s66')
a('buffer_store_dword v2, v1, s[24:27], 0 offen sc1')
a('L_aux_n0:')
[a(f'ds_write_b32 v3, v1 offset:{4*i}') for i in range(14)]
a('s_mov_b64 exec, -1')
if CODEPF:
    a('s_getpc_b64 s[66:67]')
    a('L_pcref:')
    a(f's_sub_u32 s66, s66, L_pcref-{KNAME}'); a('s_subb_u32 s67, s67, 0')
    a('s_mul_i32 s68, s41, 9')
    a('v_add_u32 v4, s68, v0'); a('v_lshlrev_b32 v4, 7, v4')
    a(f'v_min_u32 v4, L_done-{KNAME}, v4')
    a('s_mov_b64 exec, 0x1ff')
    a(f'global_load_dword v{AB+7}, v4, s[66:67]')
    a('s_mov_b64 exec, -1')
if PFW:
    pf_first, pf_n0 = map(int, PFW.split(','))
    a('v_lshrrev_b32 v14, 4, v0'); a('s_mul_i32 s66, s30, 3'); a('v_add_u32 v14, s66, v14'); a('v_lshlrev_b32 v14, 8, v14')
    a('v_bfe_u32 v15, v0, 1, 3'); a('s_lshl_b32 s66, s32, 3'); a('v_add_u32 v15, s66, v15'); a(f'v_mul_u32_u24 v15, {F*2}, v15'); a('v_add_u32 v14, v14, v15')
    a('v_and_b32 v15, 1, v0'); a('v_lshl_add_u32 v14, v15, 7, v14')
    srd(a, 8, 48, D*F*2); srd(a, 52, 50, D*F*2)
    a(f's_add_u32 s64, s34, {pf_first}'); a(f's_mov_b32 s61, {pf_first}')
    PFC = opts.get('pfc', '1111111')
    a(f's_mov_b32 s60, {sum(int(c) << (4*i) for i, c in enumerate(PFC))}')
    def pfw():
        L = a.label('L_pf')
        a('s_and_b32 s62, s60, 15'); a('s_lshr_b32 s60, s60, 4')
        a(f'{L}_n:')
        a('s_cmp_eq_u32 s62, 0'); a(f's_cbranch_scc1 {L}')
        pfw1(L)
        a('s_sub_u32 s62, s62, 1'); a(f's_branch {L}_n')
        a(f'{L}:')
    def pfw0():
        L = a.label('L_pf')
        pfw1(L)
        a(f'{L}:')
    def pfw1(L):
        a('s_cmp_eq_u32 s35, 0'); a(f's_cbranch_scc1 {L}')
        a(f"s_cmp_ge_u32 s61, {opt('pfl', 6)}"); a(f's_cbranch_scc1 {L}')
        a('s_cmp_ge_u32 s64, 10'); a('s_cselect_b32 s66, 10, 0'); a('s_sub_u32 s64, s64, s66'); a(f's_mul_i32 s66, s64, {64*F*2}')
        a('s_mov_b32 exec_hi, 0xffff')
        a(f'buffer_load_dword v15, v14, s[8:11], s66 offen {PFP}'); a(f'buffer_load_dword v15, v14, s[52:55], s66 offen {PFP}')
        a('s_mov_b64 exec, -1')
        a('s_add_u32 s64, s64, 1'); a('s_add_u32 s61, s61, 1')
    for _ in range(pf_n0): pfw0()
else:
    def pfw(): pass
def wda_load():
    a('v_lshrrev_b32 v4, 4, v0'); a('v_and_b32 v5, 15, v0')
    a(f'v_mul_u32_u24 v4, {D*2}, v4'); a('v_lshl_add_u32 v4, v5, 4, v4')
    a(f's_mul_i32 s68, s56, {32*D*2}'); a('s_lshl_b32 s69, s57, 8'); a('s_add_u32 s68, s68, s69')
    for i in range(8):
        a(f's_mov_b32 m0, {L_WD + i*1024}')
        if i: a(f's_add_u32 s68, s68, {4*D*2}')
        else: a('s_nop 0')
        a(f'buffer_load_dwordx4 v4, s[20:23], s68 offen {WP_} lds')
if WDA:
    wi, wj, wk = map(int, WDA.split(','))
    a(f's_mul_hi_u32 s56, s2, {-(-(1<<32)//5)}'); a('s_mul_i32 s57, s56, 5'); a('s_sub_u32 s57, s2, s57')
    if wi < 0:
        a('s_cmp_ge_u32 s2, 240'); a('s_cbranch_scc1 L_wda0'); wda_load(); a('L_wda0:')
for i in range(48, 56): a(f'v_mov_b32 v{i}, 0')
a('v_lshrrev_b32 v4, 2, v0'); a('v_and_b32 v5, 3, v4'); a('v_bfe_u32 v6, v4, 3, 1'); a('v_lshl_or_b32 v5, v6, 2, v5'); a('v_lshlrev_b32 v5, 1, v5')
a('s_and_b32 s66, s32, 3'); a('s_lshl_b32 s66, s66, 2')
a('v_and_b32 v6, 3, v0'); a('v_add_u32 v6, s66, v6'); a('v_xor_b32 v5, v5, v6')
a('v_lshlrev_b32 v4, 8, v4'); a(f'v_lshl_add_u32 v{AB+1}, v5, 4, v4')
a('s_lshr_b32 s66, s32, 2'); a('s_lshl_b32 s66, s66, 14'); a(f'v_add_u32 v{AB+1}, s66, v{AB+1}')
a('s_cmp_eq_u32 s35, 0'); a('s_cbranch_scc1 L_aux_w')
a('s_and_b32 s67, s32, 3'); a(f's_mul_i32 s67, s67, {20*128}'); a('s_add_u32 s66, s66, s67')
a(f'v_lshlrev_b32 v{AB+1}, 4, v0'); a(f'v_add_u32 v{AB+1}, s66, v{AB+1}')
a('L_aux_w:')
a('s_mov_b32 s46, 0')
a('s_lshl_b32 s77, s29, 1'); a('s_add_u32 s77, s77, s31'); a('s_lshl_b32 s77, s77, 11'); a('s_lshr_b32 s67, s32, 2'); a('s_lshl_b32 s67, s67, 10'); a('s_add_u32 s77, s77, s67'); a(f's_add_u32 s77, s77, {WS_WP}')
a('s_and_b32 s67, s32, 3'); a('s_cmp_eq_u32 s35, 1'); a('s_cselect_b32 s68, 20, 32'); a('s_mul_i32 s67, s67, s68'); a('s_lshl_b32 s67, s67, 3'); a('s_add_u32 s77, s77, s67')
a(f'v_min_u32 v{AB+6}, 47, v0'); a(f'v_lshlrev_b32 v{AB+6}, 2, v{AB+6}')
a('s_mul_i32 s74, s38, 80'); a('s_add_u32 s75, s74, 79'); a('s_lshr_b32 s74, s74, 7'); a('s_lshr_b32 s75, s75, 7')
a('s_lshl_b32 s74, s74, 8'); a('s_lshl_b32 s75, s75, 8'); a(f's_add_u32 s74, s74, {WS_FW}'); a(f's_add_u32 s75, s75, {WS_FW}')
if SENT:
    for i in range(4): a(f'v_mov_b32 v{8+i}, -1')
    a('v_lshlrev_b32 v12, 4, v0')
    a(f's_mul_i32 s76, s28, {8*48*1024}')
    if RDFT: a('s_mul_i32 s67, s30, 12288')
    else: a('s_lshl_b32 s67, s29, 12')
    a('s_add_u32 s76, s76, s67')
a('s_mov_b32 s47, 0'); a('s_mov_b32 s42, 0')
a('s_waitcnt lgkmcnt(0)')
a('L_aux_l:')
tick(7, ('s47', 0))
a('s_barrier')
tick(7, ('s47', 16))
pfw()
a(f'v_add_u32 v{AB+3}, s46, v{AB+1}')
a('s_add_u32 s66, s47, s35') if opt('non2', 0) else a('s_add_u32 s66, s47, 1')
a(f's_cmp_lg_u32 s47, {NONIT-1}'); a('s_cbranch_scc1 L_aux_nb')
a('s_mov_b64 exec, 1'); a('buffer_load_dword v2, v1, s[24:27], 0 offen sc1'); a('s_mov_b64 exec, -1')
a('L_aux_nb:')
a(f's_cmp_lg_u32 s66, {NONIT+1}'); a('s_cbranch_scc1 L_aux_na')
a('s_mov_b32 s79, 0')
a('L_non:')
a('s_waitcnt vmcnt(0)')
a('v_readfirstlane_b32 s43, v2')
a('s_cmp_lg_u32 s43, 0'); a('s_cbranch_scc1 L_non_ok')
a('s_add_u32 s79, s79, 1'); a(f's_cmp_ge_u32 s79, {SPINMAX}'); (a('s_cselect_b32 s101, 51, s101') if STAMPS else None); a('s_cbranch_scc1 L_non_ok')
a('s_sleep 4')
a('s_mov_b64 exec, 1'); a('buffer_load_dword v2, v1, s[24:27], 0 offen sc1'); a('s_mov_b64 exec, -1')
a('s_branch L_non')
a('L_non_ok:')
a('v_mov_b32 v2, s43'); a(f'v_mov_b32 v3, {L_NON}'); a('ds_write_b32 v3, v2')
if not WDA:
    a('s_cmp_ge_u32 s2, 240'); a('s_cbranch_scc1 L_aux_na')
    a(f's_mul_hi_u32 s66, s2, {-(-(1<<32)//5)}'); a('s_mul_i32 s67, s66, 5'); a('s_sub_u32 s67, s2, s67')
    a('s_lshl_b32 s67, s67, 8'); a('s_lshl_b32 s66, s66, 2'); a('s_add_u32 s66, s66, s67'); a(f's_add_u32 s66, s66, {WS_FW}')
    a('s_mov_b64 exec, 1'); a('buffer_store_dword v2, v1, s[12:15], s66 offen sc1'); a('s_mov_b64 exec, -1')
a('L_aux_na:')
if WDA:
    a('s_cmp_ge_u32 s2, 240'); a('s_cbranch_scc1 L_aux_nw')
    if wi >= 0:
        a(f's_cmp_lg_u32 s47, {wi}'); a('s_cbranch_scc1 L_aux_w1'); wda_load(); a('L_aux_w1:')
    a(f's_cmp_lg_u32 s47, {wj}'); a('s_cbranch_scc1 L_aux_w2')
    a('v_lshrrev_b32 v4, 2, v0'); a('v_lshlrev_b32 v4, 8, v4'); a('v_and_b32 v5, 3, v0'); a('v_lshl_add_u32 v4, v5, 3, v4')
    a(f'v_add_u32 v4, {L_WD}, v4')
    a('v_lshlrev_b32 v6, 4, v0')
    a('s_waitcnt vmcnt(0)')
    for e in range(8):
        for b in range(2):
            a(f'ds_read_b64_tr_b16 v[{64+4*e+2*b}:{65+4*e+2*b}], v4 offset:{32*e + 4096*b}')
    a('s_lshl_b32 s63, s57, 3')
    a(f's_mul_i32 s65, s56, 5120'); a(f's_add_u32 s65, s65, {WS_WDT}')
    a('s_waitcnt lgkmcnt(0)')
    for e in range(8):
        a(f's_add_u32 s68, s63, {e}')
        a(f's_mul_hi_u32 s69, s68, {-(-(1<<32)//5)}')
        a('s_mul_i32 s70, s69, 5'); a('s_sub_u32 s70, s68, s70')
        a(f's_mul_i32 s69, s69, {48*5120}'); a('s_lshl_b32 s70, s70, 10')
        a('s_add_u32 s69, s69, s70'); a('s_add_u32 s69, s69, s65')
        a(f'buffer_store_dwordx4 v[{64+4*e}:{67+4*e}], v6, s[12:15], s69 offen sc1')
    a('L_aux_w2:')
    a(f's_cmp_lg_u32 s47, {wk}'); a('s_cbranch_scc1 L_aux_nw')
    a('s_lshl_b32 s67, s57, 8'); a('s_lshl_b32 s66, s56, 2'); a('s_add_u32 s66, s66, s67'); a(f's_add_u32 s66, s66, {WS_FW}')
    a('s_waitcnt vmcnt(0)')
    a('s_mov_b64 exec, 1'); a('buffer_store_dword v2, v1, s[12:15], s66 offen sc1'); a('s_mov_b64 exec, -1')
    a('L_aux_nw:')
def fw_ask():
    a(f'buffer_load_dword v{AB+2}, v{AB+6}, s[12:15], s74 offen sc1'); a(f'buffer_load_dword v{AB+3}, v{AB+6}, s[12:15], s75 offen sc1')
def fw_ask2():
    a(f'buffer_load_dword v62, v{AB+6}, s[12:15], s74 offen sc1'); a(f'buffer_load_dword v63, v{AB+6}, s[12:15], s75 offen sc1')
def fw_check(nm):
    a('s_mov_b32 s79, 0')
    a(f'{nm}:')
    a('s_waitcnt vmcnt(0)')
    a('v_cmp_ne_u32 vcc, s43, v62'); a('v_cmp_ne_u32 s[66:67], s43, v63'); a('s_or_b64 vcc, vcc, s[66:67]')
    a(f's_cbranch_scc0 {nm}_ok')
    a('s_add_u32 s79, s79, 1'); a(f's_cmp_ge_u32 s79, {SPINMAX}'); (a('s_cselect_b32 s101, 52, s101') if STAMPS else None); a(f's_cbranch_scc1 {nm}_ok')
    a('s_sleep 4')
    fw_ask2()
    a(f's_branch {nm}')
    a(f'{nm}_ok:')

T0, T1 = AB + 4, AB + 5
if SENT:
    RS0 = opt('rs0', 2)
    def resets(n):
        L = a.label('L_rs')
        a(f's_cmp_eq_u32 s35, {0 if RDFT else 1}'); a(f's_cbranch_scc1 {L}')
        if RDFT:
            for t in range(n // 12):
                for g in range(3):
                    for i in ((1, 3) if HALF else range(4)): a(f'buffer_store_dwordx4 v[8:11], v12, s[12:15], s76 offen offset:{i*1024} sc1')
                    a(f's_add_u32 s76, s76, {4096 if g < 2 else 48*1024 - 8192}')
        else:
            for i in range(n):
                if not (HALF and i % 2 == 0): a(f'buffer_store_dwordx4 v[8:11], v12, s[12:15], s76 offen offset:{(i % 4)*1024} {RSP}')
                if i % 4 == 3: a(f's_add_u32 s76, s76, {48*1024}')
        a(f'{L}:')
    if RSEQ:
        assert sum(map(int, RSEQ)) == 8
        a(f's_lshr_b32 s63, {sum(int(c) << (4*i) for i, c in enumerate(RSEQ[:5]))}, s42'); a('s_and_b32 s63, s63, 15'); a('s_add_u32 s42, s42, 4')
        a('L_aux_rr:')
        a('s_cmp_eq_u32 s63, 0'); a('s_cbranch_scc1 L_aux_nr')
        resets(12)
        a('s_sub_u32 s63, s63, 1'); a('s_branch L_aux_rr')
    else:
        a(f's_cmp_lt_u32 s47, {RS0}'); a('s_cbranch_scc1 L_aux_nr')
        resets(12 if RDFT else 8)
    a('L_aux_nr:')
a('s_cmp_eq_u32 s35, 1'); a('s_cbranch_scc1 L_aux_c')
for i in range(4): a(f'ds_read_b128 v[{24+4*i}:{27+4*i}], v{AB+3} offset:{i*4096}')
a('s_waitcnt lgkmcnt(0)')
for i in range(4):
    for d in range(4):
        r = 24 + 4*i + d
        a(f'v_lshlrev_b32 v{T0}, 16, v{r}'); a(f'v_and_b32 v{T1}, 0xffff0000, v{r}')
        a(f'v_add_f32 v{48+2*d}, v{48+2*d}, v{T0}'); a(f'v_add_f32 v{49+2*d}, v{49+2*d}, v{T1}')
a('s_branch L_aux_x')
a('L_aux_c:')
if NOCS: a('s_branch L_aux_x')
if DF: a('s_bitcmp1_b32 s47, 0'); a('s_cbranch_scc0 L_aux_x')
def csum():
    for i in range(3): a(f'ds_read_b128 v[{24+4*i}:{27+4*i}], v{AB+3} offset:{i*1024}')
    a('s_waitcnt lgkmcnt(0)')
    for i in range(3):
        for d in range(4):
            r = 24 + 4*i + d
            a(f'v_lshlrev_b32 v{T0}, 16, v{r}'); a(f'v_and_b32 v{T1}, 0xffff0000, v{r}')
            a(f'v_add_f32 v{48+2*i}, v{48+2*i}, v{T0}'); a(f'v_add_f32 v{49+2*i}, v{49+2*i}, v{T1}')
if not NOCS: csum()
a('L_aux_x:')
a(f's_add_u32 s46, s46, {STG}'); a(f's_cmp_eq_u32 s46, {3*STG}'); a('s_cselect_b32 s46, 0, s46')
a('s_add_u32 s47, s47, 1'); a('s_cmp_lt_u32 s47, 5'); a('s_cbranch_scc1 L_aux_l')
def fr_pub():
    a('s_lshl_b32 s66, s28, 8'); a('s_lshl_b32 s67, s29, 2'); a('s_add_u32 s66, s66, s67'); a(f's_add_u32 s66, s66, {WS_FH}')
    a('v_mov_b32 v4, s43'); a('v_mov_b32 v5, 0')
    a('s_waitcnt vmcnt(0)')
    a('s_mov_b64 exec, 1'); a('buffer_store_dword v4, v5, s[12:15], s66 offen sc1'); a('s_mov_b64 exec, -1')
tick(7, 5)
a('s_barrier')
tick(7, 21)
if FRB == 5: fr_pub()
pfw()
if RSEQ: resets(12*int(RSEQ[5]))
elif RDFT: resets(12*(RS0 + 3 - (RS0 + 3)//2))
elif RS0 >= 2: resets(12 if RS0 == 4 else 8)
p2_setup()
def red8(regs):
    for mod in ('quad_perm:[1,0,3,2]', 'quad_perm:[2,3,0,1]', 'row_half_mirror'):
        a('s_nop 1')
        for r in regs: a(f'v_add_f32_dpp v{r}, v{r}, v{r} {mod} row_mask:0xf bank_mask:0xf')
a('s_cmp_eq_u32 s35, 1'); a('s_cbranch_scc1 L_aux_pc')
for mod in ('row_ror:4', 'row_ror:8'):
    a('s_nop 1')
    for r in range(48, 56): a(f'v_add_f32_dpp v{r}, v{r}, v{r} {mod} row_mask:0xf bank_mask:0xf')
for sw in ('v_permlane16_swap_b32', 'v_permlane32_swap_b32'):
    for r in range(48, 56): a(f'v_mov_b32 v{r-24}, v{r}')
    a('s_nop 1')
    for r in range(48, 56): a(f'{sw} v{r}, v{r-24}')
    a('s_nop 1')
    for r in range(48, 56): a(f'v_add_f32 v{r}, v{r}, v{r-24}')
for d in range(4):
    a(f'v_cmp_eq_u32 vcc, {d}, v6') if d else a('v_lshrrev_b32 v6, 2, v0')
    if d == 0:
        a('v_mov_b32 v24, v48'); a('v_mov_b32 v26, v49')
    else:
        a('s_nop 1'); a(f'v_cndmask_b32 v24, v24, v{48+2*d}, vcc'); a(f'v_cndmask_b32 v26, v26, v{49+2*d}, vcc')
a('v_mov_b32 v25, s43'); a('v_mov_b32 v27, s43')
a('v_and_b32 v4, 3, v0'); a('v_lshlrev_b32 v4, 6, v4'); a('v_lshl_add_u32 v4, v6, 4, v4')
a('s_mov_b64 exec, 0xffff')
a('buffer_store_dwordx4 v[24:27], v4, s[12:15], s77 offen sc1')
a('s_branch L_aux_pub')
a('L_aux_pc:')
if NOCS: a('s_branch L_aux_pub')
if not NOCS:
    if DF:
        a('s_cmp_eq_u32 s31, 1'); a('s_cbranch_scc1 L_aux_c5')
        a(f'v_add_u32 v{AB+3}, s46, v{AB+1}')
        csum()
        a('L_aux_c5:')
        a('s_and_b32 s66, s30, 1'); a('s_lshl_b32 s66, s66, 30')
    for i in range(3):
        a(f'v_add_f32 v{48+i*2}, v{48+i*2}, v{49+i*2}')
        if DF: a(f'v_mul_f32 v{48+i*2}, s66, v{48+i*2}')
    red8([48, 50, 52])
    for i in range(3): a(f'v_mov_b32 v{49+i*2}, s43')
    a('s_mov_b32 exec_lo, 0x01010101'); a('s_mov_b32 exec_hi, 0x01010101')
    a('buffer_store_dwordx2 v[48:49], v0, s[12:15], s77 offen sc1')
    a('buffer_store_dwordx2 v[50:51], v0, s[12:15], s77 offen offset:64 sc1')
    a('s_mov_b32 exec_hi, 0')
    a('buffer_store_dwordx2 v[52:53], v0, s[12:15], s77 offen offset:128 sc1')
a('L_aux_pub:')
a('s_mov_b64 exec, -1')
a('s_lshl_b32 s48, s28, 13'); a(f's_add_u32 s48, s48, {WS_XP}'); a('s_add_u32 s50, s48, 4096')
a('s_lshl_b32 s49, s29, 12'); a(f's_add_u32 s49, s49, {WS_WP}')
def gather():
    for i in range(8): a(f'buffer_load_dwordx4 v[{8+4*i}:{11+4*i}], v1, s[12:15], s{48 if i < 4 else 50} offen offset:{(i%4)*1024} sc1')
    Lg = a.label('L_gw')
    if NOCS: a('s_cmp_eq_u32 s35, 1'); a(f's_cbranch_scc1 {Lg}')
    for i in range(4): a(f'buffer_load_dwordx4 v[{40+4*i}:{43+4*i}], v1, s[12:15], s49 offen offset:{i*1024} sc1')
    a(f'{Lg}:')
    a(f'buffer_load_dword v{AB+1}, v{AB}, s[12:15], s65 offen sc1')
    if FWL: fw_ask2()
a(f's_mov_b32 s65, {WS_FH}')
if RDFT:
    a(f'v_and_b32 v{AB}, 3, v0'); a(f'v_lshlrev_b32 v{AB}, 2, v{AB}'); a('s_lshl_b32 s69, s36, 8'); a('s_add_u32 s69, s69, 48'); a(f'v_add_u32 v{AB}, s69, v{AB}')
    a('s_lshl_b32 s69, s28, 8'); a('s_lshl_b32 s63, s30, 2'); a('s_add_u32 s69, s69, s63'); a('s_add_u32 s69, s69, 48'); a('v_mov_b32 v4, s69')
    a('v_cmp_gt_u32 vcc, 16, v0'); a('s_nop 1'); a(f'v_cndmask_b32 v{AB}, v4, v{AB}, vcc')
else:
    a(f'v_min_u32 v{AB}, 11, v0'); a(f'v_lshlrev_b32 v{AB}, 2, v{AB}'); a('s_lshl_b32 s69, s36, 8'); a(f'v_add_u32 v{AB}, s69, v{AB}')
GAT = opt('gat', 78)
tick(7, 6)
a('s_barrier')
tick(7, 22)
if FRB == 6: fr_pub()
pfw()
if RSEQ: resets(12*int(RSEQ[6]))
elif RDFT: resets(12*((RS0 + 3)//2))
elif RS0 >= 3: resets(12 if RS0 == 4 else 8)
if not FWL: fw_ask2()
if GAT == 68:
    a('s_cmp_eq_u32 s35, 0'); a('s_cbranch_scc1 L_g6'); gather(); a('L_g6:')
tick(7, 7)
a('s_barrier')
tick(7, 23)
if not FWL: fw_check('L_pollwf')
else: a('s_waitcnt vmcnt(0)')
if FRB == 7: fr_pub()
if GAT == 7: gather()
if GAT == 78:
    a('s_cmp_eq_u32 s35, 0'); a('s_cbranch_scc1 L_g7'); gather(); a('L_g7:')
a('s_cmp_eq_u32 s35, 1'); a(f's_cselect_b32 s69, {0 if NOCS else 40}, 64'); a('v_cmp_gt_u32 s[76:77], s69, v0')
if GAT == 68: a('s_cmp_eq_u32 s35, 1'); a('s_cbranch_scc1 L_g8x')
tick(7, 8)
a('s_barrier')
tick(7, 24)
if GAT in (8, 68): gather()
a('L_g8x:')
if GAT == 78:
    a('s_cmp_eq_u32 s35, 1'); a('s_cbranch_scc1 L_g8'); gather(); a('L_g8:')
a('s_mov_b32 s79, 0')
a('s_waitcnt vmcnt(0)')
a('L_gchk:')
a(f'v_xor_b32 v2, s43, v{AB+1}'); a('s_sub_u32 s64, s35, 1' if RDFT and not FRSEP else 's_mov_b32 s64, 0'); a('v_and_b32 v2, s64, v2')
for i in range(0, 8): a(f'v_xor_b32 v3, s43, v{10+4*i}'); a('v_or_b32 v2, v2, v3')
a('v_xor_b32 v4, s43, v41')
for r in (43, 45, 47, 49, 51, 53, 55): a(f'v_xor_b32 v3, s43, v{r}'); a('v_or_b32 v4, v4, v3')
if FWL: a('v_xor_b32 v3, s43, v62'); a('v_or_b32 v2, v2, v3'); a('v_xor_b32 v3, s43, v63'); a('v_or_b32 v2, v2, v3')
a('v_cmp_ne_u32 vcc, 0, v4'); a('s_and_b64 s[62:63], vcc, s[76:77]')
a('v_cmp_ne_u32 vcc, 0, v2'); a('s_or_b64 s[62:63], s[62:63], vcc')
a('s_cbranch_scc0 L_gok')
a('s_add_u32 s79, s79, 1'); a(f's_cmp_ge_u32 s79, {SPINMAX}'); (a('s_cselect_b32 s101, 50, s101') if STAMPS else None); a('s_cbranch_scc1 L_gok')
a('s_sleep 4')
gather()
a('s_waitcnt vmcnt(0)')
a('s_branch L_gchk')
a('L_gok:')
if FWL: lds_arrive(44, 2)
tick(7, 9)
for h in range(2):
    for d in range(2):
        b = 8 + 4*h + d
        a(f'v_add_f32 v{b}, v{b}, v{b+8}'); a(f'v_add_f32 v{b+16}, v{b+16}, v{b+24}'); a(f'v_add_f32 v{b}, v{b}, v{b+16}')
    a(f'v_add_f32 v{40+4*h}, v{40+4*h}, v{48+4*h}'); a(f'v_add_f32 v{41+4*h}, v{42+4*h}, v{50+4*h}')
a('v_lshlrev_b32 v2, 3, v0'); a(f'v_add_u32 v2, {L_CS}, v2')
a('ds_write_b64 v2, v[40:41]'); a('ds_write_b64 v2, v[44:45] offset:512')
for (s_, q_, ro, mo) in ((8, 9, 16, 18), (12, 13, 17, 19)):
    a(f'v_mul_f32 v{mo}, {1.0/D!r}, v{s_}')
    a(f'v_mul_f32 v{q_}, {1.0/D!r}, v{q_}')
    a(f'v_fma_f32 v{q_}, -v{mo}, v{mo}, v{q_}')
    a(f'v_max_f32 v{q_}, 0, v{q_}')
    rbf(mo); rbf(q_)
    a(f'v_add_f32 v{q_}, 0x3727c5ac, v{q_}')
    rbf(q_)
    a(f'v_sqrt_f32 v{q_}, v{q_}'); a('s_nop 0')
    rbf(q_)
    a(f'v_rcp_f32 v{ro}, v{q_}')
    a(f'v_fmac_f32 v{s_}, {-float(D)!r}, v{mo}')
    a(f'v_mul_f32 v{s_}, v{s_}, v{ro}')
a('v_lshlrev_b32 v2, 2, v0'); a(f'v_add_u32 v2, {L_R}, v2')
a(f'ds_write_b32 v2, v8 offset:{L_A0 - L_R}'); a(f'ds_write_b32 v2, v12 offset:{L_A0 - L_R + 256}')
a('ds_write_b32 v2, v16'); a('ds_write_b32 v2, v17 offset:256'); a('ds_write_b32 v2, v18 offset:512'); a('ds_write_b32 v2, v19 offset:768')
lds_arrive(24, 2)
tick(7, 10)
if GAT == 68:
    a('s_cmp_eq_u32 s35, 0'); a('s_cbranch_scc1 L_g8y')
    a('s_barrier')
    a('L_g8y:')
a(f'v_cmp_ne_u32 vcc, s43, v{AB+1}'); a('s_cmp_eq_u64 vcc, 0'); a('s_cbranch_scc1 L_pollr_ok')
spin_begin('L_pollr')
a(f'buffer_load_dword v{AB+1}, v{AB}, s[12:15], s65 offen sc1')
a('s_waitcnt vmcnt(0)')
a(f'v_cmp_ne_u32 vcc, s43, v{AB+1}'); a('s_cmp_eq_u64 vcc, 0')
spin_end('L_pollr')
if not CBAR: lds_arrive(0, 2)
if RDFT and FRSEP: lds_arrive(48, 2)
if opt('aprio', 0): a('s_setprio 0')
a('s_branch L_p2join')

a('L_compute:')
common_srds()
a(f's_mov_b32 s50, {(-2*STG) & 0xffffffff}'); a(f's_mov_b32 s51, {STG}')
a('s_mov_b32 s46, 0'); a('s_mov_b32 s47, 0')
p2h_setup()
a('v_lshrrev_b32 v2, 4, v0')
a('v_and_b32 v3, 15, v0')
a('v_bfe_u32 v6, v0, 1, 3'); a('v_xor_b32 v6, v6, v2')
def wd_issue():
    Lw = a.label('L_nowd')
    a(f"s_cmp_ge_u32 s2, {0 if opt('nowd', 0) else 240}")
    a(f's_cbranch_scc1 {Lw}')
    a(f's_mul_hi_u32 s76, s2, {-(-(1<<32)//5)}'); a('s_mul_i32 s77, s76, 5'); a('s_sub_u32 s77, s2, s77')
    a('v_lshrrev_b32 v36, 2, v0'); a('v_and_b32 v37, 3, v0')
    a(f'v_mul_u32_u24 v38, {D*2}, v36'); a('v_lshl_add_u32 v38, v37, 4, v38')
    a(f's_mul_i32 s68, s76, {32*D*2}'); a('s_lshl_b32 s69, s77, 8'); a('s_add_u32 s68, s68, s69'); a('s_lshl_b32 s69, s3, 6'); a('s_add_u32 s68, s68, s69')
    a('s_lshl_b32 s70, s3, 11'); a(f's_add_u32 s70, s70, {L_WD}')
    a('s_mov_b32 m0, s70'); a('s_nop 0')
    a(f'buffer_load_dwordx4 v38, s[20:23], s68 offen {WP_} lds')
    a('s_add_u32 m0, s70, 1024'); a(f's_add_u32 s68, s68, {16*D*2}')
    a(f'buffer_load_dwordx4 v38, s[20:23], s68 offen {WP_} lds')
    a(f'{Lw}:')
WDL = opt('wdlate', 0) if not WDA else 9
if WDL == 0: wd_issue()
def wd_finish():
    if WDA: return
    if WDL == 2: wd_issue()
    L = a.label('L_wdf')
    a(f"s_cmp_ge_u32 s2, {0 if opt('nowd', 0) else 240}"); a(f's_cbranch_scc1 {L}')
    a('v_lshlrev_b32 v36, 6, v36'); a('v_lshl_add_u32 v36, v37, 3, v36'); a('v_add_u32 v36, s70, v36')
    a('v_lshlrev_b32 v37, 4, v0')
    a('s_lshl_b32 s77, s77, 3'); a('s_lshl_b32 s68, s3, 1'); a('s_add_u32 s77, s77, s68')
    a(f's_mul_i32 s76, s76, 5120'); a(f's_add_u32 s76, s76, {WS_WDT}')
    a('s_waitcnt vmcnt(0)')
    for e in range(2):
        for b in range(2):
            a(f'ds_read_b64_tr_b16 v[{48+4*e+2*b}:{49+4*e+2*b}], v36 offset:{32*e + 1024*b}')
    for e in range(2):
        a(f's_add_u32 s68, s77, {e}')
        a(f's_mul_hi_u32 s69, s68, {-(-(1<<32)//5)}')
        a('s_mul_i32 s70, s69, 5'); a('s_sub_u32 s70, s68, s70')
        a(f's_mul_i32 s69, s69, {48*5120}'); a('s_lshl_b32 s70, s70, 10')
        a('s_add_u32 s69, s69, s70'); a('s_add_u32 s69, s69, s76')
        a('s_waitcnt lgkmcnt(0)')
        a(f'buffer_store_dwordx4 v[{48+4*e}:{51+4*e}], v37, s[12:15], s69 offen sc1')
    a(f'{L}:')
pre_loop()
if WDL == 1: wd_issue()
a('s_cmp_eq_u32 s35, 1')
a('s_cbranch_scc1 L_dft')
def interleave(M, R):
    out = []; R = list(R)
    for m in M:
        out.append(m)
        if R: out.append(R.pop(0))
    return out + R
tails = []
def mid_sync(last):
    L = a.label('L_ms')
    a('s_cmp_ge_u32 s47, 8'); a(f's_cbranch_scc1 {L}_t')
    a('s_barrier')
    a(f'{L}_b:')
    tails.append((L, last))
CNTRD = 'ds_read2_b32 v[14:15], v6 offset0:3 offset1:6'
def emit_tails():
    for L, last in tails:
        a(f'{L}_t:')
        a('s_mov_b64 exec, 1')
        a('s_cmp_eq_u32 s47, 9'); a(f's_cbranch_scc1 {L}_9')
        a('ds_add_u32 v6, v5 offset:16')
        a('s_mov_b64 exec, -1')
        a('v_readfirstlane_b32 s78, v14')
        a('s_cmp_ge_u32 s78, 3'); a(f's_cbranch_scc1 {L}_b')
        lds_wait(f'{L}_w', 12, 14, 3)
        a(f's_branch {L}_b')
        a(f'{L}_9:')
        a('ds_add_u32 v6, v5 offset:20')
        a('s_mov_b64 exec, -1')
        a(f's_branch {last}')
    tails.clear()
def stats_wait(name):
    a('v_readfirstlane_b32 s78, v15')
    a('s_cmp_ge_u32 s78, 1'); a(f's_cbranch_scc1 {name}_ok')
    lds_wait(name, 24, 14, 1)
def slot_advance():
    a('s_add_u32 s46, s46, 1'); a('s_cmp_eq_u32 s46, 3'); a('s_cselect_b32 s42, s50, s51'); a('s_cselect_b32 s46, 0, s46')
ACC = 128
def T16(mat, mi, ni): return ACC + 64*mat + 16*mi + 4*ni
FR = 32
def fW(p, mat, mi): return FR + 48*p + 16*mat + 4*mi
def fX(p, ni): return FR + 48*p + 32 + 4*ni
AW, AX = 8, 12
a('s_and_b32 s44, s3, 1'); a('s_lshr_b32 s45, s3, 1')
SPF = opts.get('spf', '')
if SPF:
    a('s_load_dwordx4 s[80:83], s[0:1], 48') if STAMPS == 0 else a('s_load_dwordx4 s[72:75], s[0:1], 48')
    wb = 80 if STAMPS == 0 else 72
    a('s_waitcnt lgkmcnt(0)')
    a('s_cmp_ge_u32 s3, 2'); a('s_cbranch_scc1 L_spx')
    a('s_cmp_eq_u32 s3, 1'); a(f's_cselect_b32 s62, s{wb+2}, s{wb}'); a(f's_cselect_b32 s63, s{wb+3}, s{wb+1}')
    a(f's_mul_i32 s66, s32, {8*F*2}'); a('s_lshl_b32 s67, s29, 8'); a('s_add_u32 s66, s66, s67'); a('s_add_u32 s62, s62, s66'); a('s_addc_u32 s63, s63, 0')
    for dc in map(int, SPF.split(',')):
        a(f's_add_u32 s66, s34, {dc}'); a('s_cmp_ge_u32 s66, 10'); a('s_cselect_b32 s67, 10, 0'); a('s_sub_u32 s66, s66, s67'); a(f's_mul_i32 s66, s66, {64*F*2}')
        a('s_add_u32 s52, s62, s66'); a('s_addc_u32 s53, s63, 0')
        for i in range(16): a(f's_load_dword s54, s[52:53], {(i >> 1)*F*2 + (i & 1)*128}')
    a('s_branch L_spd')
    a('L_spx:')
    a('s_lshl_b32 s66, s33, 1'); a('s_add_u32 s66, s66, s44'); a('s_lshl_b32 s66, s66, 4'); a('s_add_u32 s66, s66, s28'); a(f's_mul_i32 s66, s66, {D*2}')
    a(f's_add_u32 s66, s66, {4*128*D*2}'); a('s_add_u32 s62, s64, s66'); a('s_addc_u32 s63, s65, 0')
    for dc in map(int, SPF.split(',')):
        a(f's_add_u32 s66, s34, {dc}'); a('s_cmp_ge_u32 s66, 10'); a('s_cselect_b32 s67, 10, 0'); a('s_sub_u32 s66, s66, s67'); a('s_lshl_b32 s66, s66, 7')
        a('s_add_u32 s52, s62, s66'); a('s_addc_u32 s53, s63, 0')
        for i in range(8): a(f's_load_dword s54, s[52:53], {(i-4)*128*D*2}')
        a(f's_add_u32 s52, s52, {8*128*D*2}'); a('s_addc_u32 s53, s53, 0')
        for i in range(8): a(f's_load_dword s54, s[52:53], {(i-4)*128*D*2}')
    a('L_spd:')
a('v_bfe_u32 v7, v0, 2, 2')
a('v_lshl_add_u32 v4, v2, 3, v7'); a('v_lshlrev_b32 v4, 8, v4')
a('v_bfe_u32 v5, v0, 1, 1'); a('v_lshl_add_u32 v4, v5, 4, v4')
a('v_and_b32 v5, 1, v0'); a('v_lshl_add_u32 v4, v5, 3, v4')
a('v_and_b32 v5, 1, v2'); a('v_lshl_or_b32 v5, v5, 2, v7')
for mi in range(4):
    a('s_lshl_b32 s66, s44, 2'); a(f's_add_u32 s66, s66, {mi}')
    a('v_xor_b32 v7, s66, v5')
    a(f'v_lshl_add_u32 v{AW+mi}, v7, 5, v4')
a('s_lshl_b32 s66, s45, 13'); a('s_add_u32 s66, s66, 32768')
a('v_lshlrev_b32 v5, 7, v3'); a('v_add_u32 v5, s66, v5')
for ks in range(2):
    a(f'v_xor_b32 v7, {4*ks}, v6')
    a(f'v_lshl_add_u32 v{AX+ks}, v7, 4, v5')
for i in range(128): a(f'v_mov_b32 v{ACC+i}, 0')
def f_reads(p, ks):
    L = []
    def w(mat, mi):
        for b in range(2):
            L.append(f'ds_read_b64_tr_b16 v[{fW(p,mat,mi)+2*b}:{fW(p,mat,mi)+2*b+1}], v{AW+mi} offset:{mat*16384 + ks*8192 + b*1024}')
    w(0, 0)
    for ni in range(4): L.append(f'ds_read_b128 v[{fX(p,ni)}:{fX(p,ni)+3}], v{AX+ks} offset:{ni*2048}')
    for mat in range(2):
        for mi in range(4):
            if (mat, mi) != (0, 0): w(mat, mi)
    return L
def f_mfmas(p):
    L = []
    for i, (mat, mi) in enumerate([(mat, mi) for mat in range(2) for mi in range(4)]):
        for ni in (range(4) if i % 2 == 0 else range(3, -1, -1)):
            t = T16(mat, mi, ni)
            L.append(f'v_mfma_f32_16x16x32_bf16 v[{t}:{t+3}], v[{fW(p,mat,mi)}:{fW(p,mat,mi)+3}], v[{fX(p,ni)}:{fX(p,ni)+3}], v[{t}:{t+3}]')
    return L
wd_finish()
a('v_mov_b32 v5, 1'); a(f'v_mov_b32 v6, {L_CNT}')
tick(7, 0)
a('s_barrier')
tick(7, 16)
stamp(1)
for r in f_reads(0, 0): a(r)
a('L_floop:')
a('s_waitcnt lgkmcnt(0)')
UPD = ['s_add_u32 s46, s46, 1', 's_cmp_eq_u32 s46, 3', 's_cselect_b32 s42, s50, s51', 's_cselect_b32 s46, 0, s46'] + [f'v_add_u32 v{r}, s42, v{r}' for r in (AW, AW+1, AW+2, AW+3, AX, AX+1)]
for ins in interleave(f_mfmas(0), f_reads(1, 1) + [CNTRD] + UPD): a(ins)
a('s_waitcnt vmcnt(0) lgkmcnt(0)')
tick(7, ('s47', 1))
mid_sync('L_flast')
if opts.get('diag', '').startswith('k'):
    a(f"s_cmp_lg_u32 s47, {int(opts['diag'][1:])}"); a('s_cbranch_scc1 L_dk'); a('s_memrealtime s[96:97]'); a('L_dk:')
tick(7, ('s47', 17))
for ins in interleave(f_mfmas(1), f_reads(0, 0) + ['s_add_u32 s47, s47, 1']): a(ins)
a('s_branch L_floop')
if opt('inl', 1): emit_tails()
a('L_flast:')
pre_epilogue()
stats_wait('L_fst')
tick(7, 40)
CSB = 48
P = []
P += ['s_lshl_b32 s66, s45, 8', f's_add_u32 s66, s66, {L_R}', 'v_lshlrev_b32 v4, 2, v3', 'v_add_u32 v4, s66, v4']
for ni in range(4):
    P += [f'ds_read_b32 v{40+ni}, v4 offset:{64*ni}', f'ds_read_b32 v{44+ni}, v4 offset:{512 + 64*ni}']
P += [f'v_mov_b32 v10, {L_CNT}', 'ds_read_b32 v8, v10 offset:32', 'ds_read_b32 v11, v10 offset:48']
P += ['s_lshl_b32 s66, s44, 8', f's_add_u32 s66, s66, {L_CS}', 'v_lshlrev_b32 v5, 4, v2', 'v_add_u32 v5, s66, v5']
for mat in range(2):
    for mi in range(4):
        r = CSB + 16*mat + 4*mi
        P.append(f'ds_read_b128 v[{r}:{r+3}], v5 offset:{mat*512 + mi*64}')
P += ['v_lshlrev_b32 v1, 4, v0', 'v_mov_b32 v9, 0']
P += ['s_lshl_b32 s66, s28, 3', 's_lshl_b32 s67, s45, 2', 's_add_u32 s66, s66, s67', 's_mul_i32 s66, s66, 48',
      's_lshl_b32 s67, s29, 2', 's_add_u32 s66, s66, s67', 's_lshl_b32 s67, s44, 1', 's_add_u32 s66, s66, s67', 's_lshl_b32 s66, s66, 10']
P += ['s_lshl_b32 s70, s28, 8', 's_lshl_b32 s71, s29, 4', 's_add_u32 s70, s70, s71', 's_lshl_b32 s71, s3, 2', 's_add_u32 s70, s70, s71', f's_add_u32 s70, s70, {WS_FH}']
M = f_mfmas(1)
for i, m in enumerate(M):
    a(m)
    for _ in range(2):
        if P: a(P.pop(0))
for x_ in P: a(x_)
stamp(2)
a('s_waitcnt lgkmcnt(0)')
a('v_readfirstlane_b32 s43, v8')
for ni in range(4):
    c = 80 + 6*ni
    a(f'v_sub_f32 v{c}, 0, v{44+ni}')
    a(f'v_mul_f32 v{c+2}, {-1.4426950408889634!r}, v{40+ni}')
    a(f'v_mul_f32 v{c+4}, v{40+ni}, v{40+ni}')
for ni in range(4): a(f'v_rcp_f32 v{84+6*ni}, v{84+6*ni}')
tick(7, 42)
BC = 'op_sel_hi:[1,0,1]'
for ni in range(1, 4): a(f's_add_u32 s{66+ni}, s{65+ni}, {48*1024}')
for kp in range(2):
    for ni in range(4):
        if kp == 1 and ni == VCHK - 1: a('ds_read_b32 v11, v10 offset:28')
        if kp == 1 and ni == VCHK:
            a('s_waitcnt lgkmcnt(0)'); a('v_readfirstlane_b32 s79, v11')
            a('s_cmp_lg_u32 s79, 1'); a('s_cbranch_scc1 L_fnov')
            v_loads()
            a('L_fnov:')
        c = 80 + 6*ni
        prs = [(2*kp + h, d) for h in range(2) for d in (0, 2)]
        G_ = [T16(0, mi, ni) + d for mi, d in prs]; U_ = [T16(1, mi, ni) + d for mi, d in prs]
        for n, (mi, d) in enumerate(prs): a(f'v_pk_fma_f32 v[{G_[n]}:{G_[n]+1}], v[{CSB+4*mi+d}:{CSB+1+4*mi+d}], v[{c}:{c+1}], v[{G_[n]}:{G_[n]+1}] {BC}')
        for n, (mi, d) in enumerate(prs): a(f'v_pk_fma_f32 v[{U_[n]}:{U_[n]+1}], v[{CSB+16+4*mi+d}:{CSB+17+4*mi+d}], v[{c}:{c+1}], v[{U_[n]}:{U_[n]+1}] {BC}')
        for n in range(4): a(f'v_pk_mul_f32 v[{104+2*n}:{105+2*n}], v[{G_[n]}:{G_[n]+1}], v[{c+2}:{c+3}] op_sel_hi:[1,0]')
        for n in range(4): a(f'v_pk_mul_f32 v[{G_[n]}:{G_[n]+1}], v[{G_[n]}:{G_[n]+1}], v[{U_[n]}:{U_[n]+1}]')
        for n in range(8): a(f'v_exp_f32 v{104+n}, v{104+n}')
        a('s_nop 0')
        for n in range(4): a(f'v_pk_fma_f32 v[{104+2*n}:{105+2*n}], v[{104+2*n}:{105+2*n}], v[{c+4}:{c+5}], v[{c+4}:{c+5}] op_sel_hi:[1,0,0]')
        for n in range(8): a(f'v_rcp_f32 v{104+n}, v{104+n}')
        a('s_nop 0')
        o = 112 + 4*ni
        for n in range(4): a(f'v_pk_mul_f32 v[{G_[n]}:{G_[n]+1}], v[{G_[n]}:{G_[n]+1}], v[{104+2*n}:{105+2*n}]')
        for n in range(4): a(f'v_cvt_pk_bf16_f32 v{o+n}, v{G_[n]}, v{G_[n]+1}')
        if RDFT and FRSEP and kp == 0 and ni == 0:
            a('v_readfirstlane_b32 s78, v11'); a('s_cmp_ge_u32 s78, 1'); a('s_cbranch_scc1 L_frw_ok')
            lds_wait('L_frw', 48, 14, 1)
        if HALF and kp == 1 and ni == 3: a('s_waitcnt vmcnt(3)')
        a(f'buffer_store_dwordx4 v[{o}:{o+3}], v1, s[12:15], s{66+ni} offen offset:{kp*1024} {STP}')
        if 4*kp + ni == EARLY:
            a('v_mov_b32 v12, 1'); a('s_mov_b64 exec, 1'); a('ds_add_u32 v10, v12'); a('s_mov_b64 exec, -1')
        tick(7, 43 + 4*kp + ni)
tick(7, 32)
stamp(3)
if TONE: lds_arrive(0, 4)
else: a('s_waitcnt vmcnt(0)')
if not SENT:
    a('s_mov_b64 exec, 1'); a('buffer_store_dword v8, v9, s[12:15], s70 offen sc1'); a('s_mov_b64 exec, -1')
if VCHK == 4:
    a('s_waitcnt lgkmcnt(0)'); a('v_readfirstlane_b32 s79, v11')
    a('s_cmp_lg_u32 s79, 1'); a('s_cbranch_scc1 L_fnov')
    v_loads()
    a('L_fnov:')
tick_dump(7, 4)
a('s_branch L_helper')

a('L_dft:')
DACC = 176
def TD(part, mi, et): return DACC + 40*part + 20*mi + 4*et
DFR = 40
def dX(p, mi): return DFR + 48*p + 4*mi
def dC(p, part, et): return DFR + 48*p + 8 + 20*part + 4*et
DX, DC = 8, 10
FCOS, FSIN, FNS = 136, 144, 152
a('v_lshlrev_b32 v5, 7, v3')
a('s_lshl_b32 s66, s3, 12'); a('s_add_u32 s66, s66, 32768')
for ks in range(2):
    a(f'v_xor_b32 v7, {4*ks}, v6')
    a(f'v_lshl_add_u32 v{DC+ks}, v7, 4, v5')
    a(f'v_add_u32 v{DX+ks}, s66, v{DC+ks}')
for i in range(80): a(f'v_mov_b32 v{DACC+i}, 0')
if DF:
    for i in list(range(104, 136)) + list(range(160, 176)): a(f'v_mov_b32 v{i}, 0')
if DF:
    a('s_cmp_eq_u32 s30, 0'); a('s_cselect_b32 s45, 4, 2')
    a('s_bitcmp1_b32 s30, 0'); a('s_cselect_b32 s53, 1.0, -1.0')
else:
    a('s_and_b32 s45, s30, 1'); a('s_sub_u32 s45, 3, s45')
a('v_lshrrev_b32 v12, 3, v3'); a('v_and_b32 v13, 7, v3'); a('v_lshlrev_b32 v13, 4, v13'); a('v_lshl_add_u32 v12, v12, 2, v13'); a('v_add_u32 v12, s3, v12')
a('v_lshlrev_b32 v13, 5, v2'); a('v_add_u32 v13, s28, v13'); a('v_cvt_f32_u32 v13, v13')
for mt in range(2):
    a(f'v_add_u32 v14, {8*mt}, v12'); a('v_cvt_f32_u32 v14, v14'); a(f'v_mul_f32 v14, {1.0/2048!r}, v14')
    for d in range(4):
        for h in range(2):
            a(f'v_add_f32 v{60+h}, {float(16*h + 128*d)!r}, v13')
            a(f'v_mul_f32 v{60+h}, v{60+h}, v14')
        a('v_cos_f32 v62, v60'); a('v_cos_f32 v63, v61'); a('v_sin_f32 v64, v60'); a('v_sin_f32 v65, v61')
        a(f'v_cvt_pk_bf16_f32 v{FCOS+4*mt+d}, v62, v63')
        a(f'v_cvt_pk_bf16_f32 v{FSIN+4*mt+d}, v64, v65')
        a(f'v_xor_b32 v{FNS+4*mt+d}, 0x80008000, v{FSIN+4*mt+d}')
def d_reads(p, ks):
    L = [f'ds_read_b128 v[{dX(p,mi)}:{dX(p,mi)+3}], v{DX+ks} offset:{mi*2048}' for mi in range(2)]
    for part in range(2):
        for et in range(5):
            L.append(f'ds_read_b128 v[{dC(p,part,et)}:{dC(p,part,et)+3}], v{DC+ks} offset:{part*16384 + et*2048}')
    return L
def d_mfmas(p):
    L = []
    i = 0
    for part in range(2):
        for et in range(5):
            for mi in ((0, 1) if i % 2 == 0 else (1, 0)):
                t = TD(part, mi, et)
                L.append(f'v_mfma_f32_16x16x32_bf16 v[{t}:{t+3}], v[{dX(p,mi)}:{dX(p,mi)+3}], v[{dC(p,part,et)}:{dC(p,part,et)+3}], v[{t}:{t+3}]')
            i += 1
    return L
wd_finish()
a('v_mov_b32 v5, 1'); a(f'v_mov_b32 v6, {L_CNT}')
for i in range(32, 36): a(f'v_mov_b32 v{i}, 0')
tick(7, 0)
a('s_barrier')
tick(7, 16)
stamp(1)
if DF:
    for ks in range(2):
        for mi in range(2): a(f'ds_read_b128 v[{40+8*ks+4*mi}:{43+8*ks+4*mi}], v{DX+ks} offset:{mi*2048}')
else:
    for r in d_reads(0, 0): a(r)
if not DF:
    def xstat(p):
        L = []
        for mi in range(2):
            for d in range(4):
                r = dX(p, mi) + d; t = 36 + 2*(d & 1)
                L += [f'v_lshlrev_b32 v{t}, 16, v{r}', f'v_and_b32 v{t+1}, 0xffff0000, v{r}',
                      f'v_add_f32 v{32+2*mi}, v{32+2*mi}, v{t}', f'v_fmac_f32 v{33+2*mi}, v{t}, v{t}',
                      f'v_add_f32 v{32+2*mi}, v{32+2*mi}, v{t+1}', f'v_fmac_f32 v{33+2*mi}, v{t+1}, v{t+1}']
        return L
    def interleave2(M, R, per):
        out = []; R = list(R)
        for m in M:
            out.append(m)
            for _ in range(per):
                if R: out.append(R.pop(0))
        return out + R
    def dloop(name, stats):
        a(f'{name}:')
        a('s_waitcnt lgkmcnt(0)')
        for ins in interleave2(d_mfmas(0), d_reads(1, 1) + (xstat(0) if stats else [CNTRD]), 3 if stats else 1): a(ins)
        a('s_waitcnt vmcnt(0) lgkmcnt(0)' if stats else 's_waitcnt lgkmcnt(0)')
        tick(7, ('s47', 1))
        if stats: a('s_barrier')
        else: mid_sync('L_dlast')
        tick(7, ('s47', 17))
        slot_advance()
        for r in (DX, DC): a(f'v_add_u32 v{r}, s42, v{r}')
        R = d_reads(0, 0) + [f'v_add_u32 v{r}, s42, v{r}' for r in (DX+1, DC+1)]
        for ins in interleave2(d_mfmas(1), R + (xstat(1) if stats else []), 3 if stats else 1): a(ins)
        a('s_add_u32 s47, s47, 1')
        if stats: a('s_cmp_lt_u32 s47, s45'); a(f's_cbranch_scc1 {name}')
        else: a(f's_branch {name}')
    dloop('L_dloopA', True)
else:
    def interleave2(M, R, per):
        out = []; R = list(R)
        for m in M:
            out.append(m)
            for _ in range(per):
                if R: out.append(R.pop(0))
        return out + R
    XA = [40, 48]; XB = [56, 104]
    CF = [[64 + 4*i for i in range(10)], [112 + 4*i for i in range(6)] + [160 + 4*i for i in range(4)]]
    def xa_reads(): return [f'ds_read_b128 v[{XA[ks]+4*mi}:{XA[ks]+4*mi+3}], v{DX+ks} offset:{mi*2048}' for ks in range(2) for mi in range(2)]
    def xb_reads(ks): return [f'ds_read_b128 v[{XB[ks]+4*mi}:{XB[ks]+4*mi+3}], v{DX+ks} offset:{mi*2048}' for mi in range(2)]
    def c_reads(ks): return [f'ds_read_b128 v[{CF[ks][5*part+et]}:{CF[ks][5*part+et]+3}], v{DC+ks} offset:{part*16384 + et*2048}' for part in range(2) for et in range(5)]
    def fold(ks, stats):
        L = []
        for mi in range(2):
            for d in range(4):
                ra = XA[ks] + 4*mi + d; rb = XB[ks] + 4*mi + d; sm, sq = 32 + 2*mi, 33 + 2*mi
                L += [f'v_lshlrev_b32 v36, 16, v{ra}', f'v_and_b32 v37, 0xffff0000, v{ra}', f'v_lshlrev_b32 v38, 16, v{rb}', f'v_and_b32 v39, 0xffff0000, v{rb}']
                if stats:
                    for t in (36, 37, 38, 39): L += [f'v_add_f32 v{sm}, v{sm}, v{t}', f'v_fmac_f32 v{sq}, v{t}, v{t}']
                L += [f'v_add_f32 v36, v{28+mi}, v36', f'v_add_f32 v37, v{28+mi}, v37']
                L += ['v_fmac_f32 v36, s53, v38', 'v_fmac_f32 v37, s53, v39', f'v_cvt_pk_bf16_f32 v{rb}, v36, v37']
        return L
    def f2_mfmas(ks):
        L = []
        for i in range(10):
            part, et = divmod(i, 5)
            for mi in ((0, 1) if i % 2 == 0 else (1, 0)):
                t = TD(part, mi, et); x = XB[ks] + 4*mi; c = CF[ks][i]
                L.append(f'v_mfma_f32_16x16x32_bf16 v[{t}:{t+3}], v[{x}:{x+3}], v[{c}:{c+3}], v[{t}:{t+3}]')
        return L
    DUPD = ['s_add_u32 s46, s46, 1', 's_cmp_eq_u32 s46, 3', 's_cselect_b32 s42, s50, s51', 's_cselect_b32 s46, 0, s46'] + [f'v_add_u32 v{r}, s42, v{r}' for r in (DX, DX+1, DC, DC+1)]
    def dloop3(name, stats):
        M1 = f2_mfmas(1); M0 = f2_mfmas(0)
        a(f'{name}:')
        for ins in interleave2(M1[:6], DUPD, 2): a(ins)
        a('s_waitcnt vmcnt(0) lgkmcnt(0)' if stats else 's_waitcnt lgkmcnt(0)')
        tick(7, ('s47', 1))
        if stats: a('s_barrier')
        else: mid_sync('L_dlast')
        tick(7, ('s47', 17))
        for ins in interleave2(M1[6:10], xb_reads(0) + c_reads(0) + ['s_add_u32 s47, s47, 1'], 3): a(ins)
        a('s_waitcnt lgkmcnt(10)')
        for ins in interleave2(M1[10:], fold(0, stats), 5): a(ins)
        a('s_waitcnt lgkmcnt(0)')
        a('s_nop 0')
        for ins in interleave2(M0[:7], xb_reads(1) + c_reads(1) + ([] if stats else [CNTRD]), 2): a(ins)
        a(f's_waitcnt lgkmcnt({10 if stats else 11})')
        for ins in interleave2(M0[7:], fold(1, stats) + DUPD, 5): a(ins)
        a('s_waitcnt lgkmcnt(0)')
        tick(7, ('s47', 1))
        if stats: a('s_barrier')
        else: mid_sync('L_dlast')
        tick(7, ('s47', 17))
        a('s_add_u32 s47, s47, 1')
        for ins in xa_reads() + ([] if stats else [CNTRD]): a(ins)
        if stats: a('s_cmp_lt_u32 s47, s45'); a(f's_cbranch_scc1 {name}')
        else: a(f's_branch {name}')
    def dloop2(name, stats):
        if opt('dp', 1): return dloop3(name, stats)
        a(f'{name}:')
        for ins in DUPD: a(ins)
        a('s_waitcnt vmcnt(0) lgkmcnt(0)' if stats else 's_waitcnt lgkmcnt(0)')
        tick(7, ('s47', 1))
        if stats: a('s_barrier')
        else: mid_sync('L_dlast')
        tick(7, ('s47', 17))
        a('s_add_u32 s47, s47, 1')
        for ins in xb_reads(0) + xb_reads(1) + c_reads(0): a(ins)
        a('s_waitcnt lgkmcnt(12)')
        for ins in fold(0, stats): a(ins)
        a('s_waitcnt lgkmcnt(0)')
        a('s_nop 0')
        for ins in interleave2(f2_mfmas(0), c_reads(1) + ([] if stats else [CNTRD]) + fold(1, stats) + DUPD, 3): a(ins)
        a('s_waitcnt lgkmcnt(0)')
        tick(7, ('s47', 1))
        if stats: a('s_barrier')
        else: mid_sync('L_dlast')
        tick(7, ('s47', 17))
        a('s_add_u32 s47, s47, 1')
        for ins in interleave2(f2_mfmas(1), xa_reads() + ([] if stats else [CNTRD]), 1): a(ins)
        if stats: a('s_cmp_lt_u32 s47, s45'); a(f's_cbranch_scc1 {name}')
        else: a(f's_branch {name}')
    a('s_waitcnt lgkmcnt(0)')
    for mi in range(2):
        for d in range(4):
            r = XA[0] + 4*mi + d
            a(f'v_lshlrev_b32 v36, 16, v{r}'); a(f'v_and_b32 v37, 0xffff0000, v{r}')
            if d == 0: a(f'v_add_f32 v{28+mi}, v36, v37')
            else: a(f'v_add_f32 v{28+mi}, v{28+mi}, v36'); a(f'v_add_f32 v{28+mi}, v{28+mi}, v37')
    for sw in ('v_permlane16_swap_b32', 'v_permlane32_swap_b32'):
        for mi in range(2): a(f'v_mov_b32 v{36+mi}, v{28+mi}')
        a('s_nop 1')
        for mi in range(2): a(f'{sw} v{28+mi}, v{36+mi}')
        a('s_nop 1')
        for mi in range(2): a(f'v_add_f32 v{28+mi}, v{28+mi}, v{36+mi}')
    a('s_bitcmp1_b32 s30, 0'); a(f's_cselect_b32 s66, 0x3d000000, 0')
    a('s_lshl_b32 s67, s3, 7'); a(f's_add_u32 s67, s67, {L_CH}'); a('v_lshlrev_b32 v38, 2, v3'); a('v_add_u32 v38, s67, v38')
    for mi in range(2):
        a(f'v_mul_f32 v{36+mi}, s66, v{28+mi}'); a(f'v_mul_f32 v{28+mi}, -2.0, v{36+mi}')
        if not NOCS: a(f'ds_write_b32 v38, v{36+mi} offset:{64*mi}')
    dloop2('L_dloopA', True)
a(f'v_mov_b32 v36, {L_NON}'); a('ds_read_b32 v14, v36')
for sw in ('v_permlane16_swap_b32', 'v_permlane32_swap_b32'):
    for r in range(32, 36): a(f'v_mov_b32 v{r+4}, v{r}')
    a('s_nop 1')
    for r in range(32, 36): a(f'{sw} v{r}, v{r+4}')
    a('s_nop 1')
    for r in range(32, 36): a(f'v_add_f32 v{r}, v{r}, v{r+4}')
a('s_lshl_b32 s66, s28, 2'); a('s_add_u32 s66, s66, s30'); a('s_lshl_b32 s66, s66, 11'); a('s_lshl_b32 s67, s3, 9'); a('s_add_u32 s66, s66, s67'); a(f's_add_u32 s66, s66, {WS_XP}')
a('v_cmp_gt_u32 vcc, 16, v0'); a('v_lshlrev_b32 v38, 4, v0')
a('s_waitcnt lgkmcnt(0)')
a('v_cndmask_b32 v12, v34, v32, vcc'); a('v_cndmask_b32 v13, v35, v33, vcc'); a('v_mov_b32 v15, v14')
a('v_readfirstlane_b32 s43, v14')
a('s_mov_b32 exec_hi, 0')
a('buffer_store_dwordx4 v[12:15], v38, s[12:15], s66 offen sc1')
a('s_mov_b64 exec, -1')
a('s_nop 0')
dloop2('L_dloopB', False) if DF else dloop('L_dloopB', False)
if opt('inl', 1): emit_tails()
a('L_dlast:')
pre_epilogue()
stats_wait('L_dst')
tick(7, 40)
DP = []
DP.append('s_lshl_b32 s66, s3, 7'); DP.append(f's_add_u32 s66, s66, {L_R}')
DP.append('v_lshlrev_b32 v4, 4, v2'); DP.append('v_add_u32 v4, s66, v4')
for mi in range(2):
    DP.append(f'ds_read_b128 v[{40+4*mi}:{43+4*mi}], v4 offset:{64*mi}')
    if not NOCS: DP.append(f'ds_read_b128 v[{48+4*mi}:{51+4*mi}], v4 offset:{512 + 64*mi}')
    DP.append(f'ds_read_b128 v[{76+4*mi}:{79+4*mi}], v4 offset:{L_A0 - L_R + 64*mi}')
    if DF and not NOCS: DP.append(f'ds_read_b128 v[{84+4*mi}:{87+4*mi}], v4 offset:{L_CH - L_R + 64*mi}')
DP.append('v_lshlrev_b32 v5, 2, v3'); DP.append(f'v_add_u32 v5, {L_CS}, v5')
for part in range(2):
    for et in range(0 if NOCS else 5): DP.append(f'ds_read_b32 v{56+2*(5*part+et)}, v5 offset:{part*512 + et*64}')
DP.append('v_bfe_u32 v9, v3, 1, 2'); DP.append('v_xor_b32 v8, s3, v9'); DP.append('v_lshlrev_b32 v8, 4, v8'); DP.append('v_lshl_add_u32 v8, v3, 6, v8'); DP.append('v_lshl_add_u32 v8, v2, 2, v8')
DP.append('ds_read_b32 v14, v6 offset:20')
for ins in interleave2(f2_mfmas(1) if DF else d_mfmas(1), DP, 2): a(ins)
stamp(2)
a('s_waitcnt lgkmcnt(0)')
a('v_readfirstlane_b32 s78, v14')
a('s_cmp_ge_u32 s78, 4'); a('s_cbranch_scc1 L_dc9_ok')
lds_wait('L_dc9', 20, 14)
tick(7, 41)
if DF and not NOCS:
    for i in range(8): a(f'v_sub_f32 v{48+i}, v{48+i}, v{84+i}')
a('s_cmp_lg_u32 s30, 0'); a('s_cbranch_scc1 L_z0')
for mi in range(2):
    t = 76 + 4*mi; y = 84 + 4*mi
    a(f'v_pk_add_f32 v[{y}:{y+1}], v[{t}:{t+1}], v[{t+2}:{t+3}]')
    a(f'v_pk_add_f32 v[{y+2}:{y+3}], v[{t}:{t+1}], v[{t+2}:{t+3}] neg_lo:[0,1] neg_hi:[0,1]')
    a(f'v_add_f32 v{92+mi}, v{y}, v{y+1}'); a(f'v_sub_f32 v{94+mi}, v{y}, v{y+1}')
a('v_cvt_pk_bf16_f32 v96, v92, v93'); a('v_mov_b32 v97, 0')
a('v_cvt_pk_bf16_f32 v98, v86, v90'); a('v_cvt_pk_bf16_f32 v101, v87, v91'); a('v_xor_b32 v99, 0x80008000, v101')
a('v_cvt_pk_bf16_f32 v100, v94, v95')
for cpart, r in enumerate((96, 97, 98, 99, 100, 97, 98, 101)):
    a(f'ds_write_b32 v8, v{r} offset:{L_Z + (cpart*ZB + 80)*ZROW}')
a('L_z0:')
for et in range(5):
    for mi in range(2):
        for part in range(2):
            t = TD(part, mi, et); c = 56 + 2*(5*part + et)
            for d in (() if NOCS else (0, 2)):
                a(f'v_pk_fma_f32 v[{t+d}:{t+d+1}], v[{48+4*mi+d}:{49+4*mi+d}], v[{c}:{c+1}], v[{t+d}:{t+d+1}] op_sel_hi:[1,0,1] neg_lo:[1,0,0] neg_hi:[1,0,0]')
            for d in (0, 2):
                a(f'v_pk_mul_f32 v[{t+d}:{t+d+1}], v[{t+d}:{t+d+1}], v[{40+4*mi+d}:{41+4*mi+d}]')
        y = 80 + 16*mi
        for part in range(2):
            t = TD(part, mi, et)
            a(f'v_pk_add_f32 v[{y+4*part}:{y+4*part+1}], v[{t}:{t+1}], v[{t+2}:{t+3}]')
            a(f'v_pk_add_f32 v[{y+4*part+2}:{y+4*part+3}], v[{t}:{t+1}], v[{t+2}:{t+3}] neg_lo:[0,1] neg_hi:[0,1]')
        pa, qa, ra, sa, pb, qb, rb, sb = range(y, y+8); o = y + 8
        a(f'v_add_f32 v{o}, v{pa}, v{qa}'); a(f'v_add_f32 v{o+1}, v{pb}, v{qb}')
        a(f'v_add_f32 v{o+2}, v{ra}, v{sb}'); a(f'v_sub_f32 v{o+3}, v{rb}, v{sa}')
        a(f'v_sub_f32 v{o+4}, v{pa}, v{qa}'); a(f'v_sub_f32 v{o+5}, v{pb}, v{qb}')
        a(f'v_sub_f32 v{o+6}, v{ra}, v{sb}'); a(f'v_add_f32 v{o+7}, v{rb}, v{sa}')
    for cpart in range(8):
        a(f'v_cvt_pk_bf16_f32 v{112+cpart}, v{88+cpart}, v{104+cpart}')
    for cpart in range(8):
        a(f'ds_write_b32 v8, v{112+cpart} offset:{L_Z + (cpart*ZB + 16*et)*ZROW}')
tick(7, 42)
VADDR = []
VADDR += ['v_lshrrev_b32 v12, 1, v2', f'v_mul_u32_u24 v12, {8*VROW}, v12', 'v_and_b32 v13, 1, v2', f'v_mul_u32_u24 v11, {VROW}, v13', 'v_add_u32 v12, v12, v11', 'v_lshl_add_u32 v12, v3, 4, v12']
VADDR += ['s_mul_i32 s66, s28, 17', 's_add_u32 s67, s66, s3', f's_mul_i32 s67, s67, {2*VROW}', *(['s_and_b32 s68, s30, 1', 's_lshl_b32 s68, s68, 1', 's_lshr_b32 s69, s30, 1', 's_add_u32 s68, s68, s69', 's_mul_i32 s68, s68, 1280'] if DF else ['s_mul_i32 s68, s30, 1280']), f's_add_u32 s68, s68, {WS_V + 128}', 's_add_u32 s67, s67, s68', 's_sub_u32 s69, s67, 16']
VADDR += ['s_add_u32 s66, s66, 16', f's_mul_i32 s66, s66, {2*VROW}', 's_add_u32 s66, s66, s68', f's_add_u32 s70, s67, {16*VROW}']
a('v_mov_b32 v10, 1')
a('s_waitcnt lgkmcnt(0)')
a('s_mov_b64 exec, 1'); a('ds_add_u32 v6, v10 offset:4'); a('s_mov_b64 exec, -1')
a('v_bfe_u32 v8, v3, 1, 2'); a('v_xor_b32 v8, v8, v2'); a('v_lshlrev_b32 v8, 4, v8'); a('v_lshl_add_u32 v8, v3, 6, v8'); a(f's_mul_i32 s66, s3, {2*ZB*ZROW}'); a('v_add_u32 v8, s66, v8')
for ins in VADDR: a(ins)
lds_wait('L_zw', 4, 14)
tick(7, 43)
for part in range(2):
    for et in range(5):
        r = 40 + 20*part + 4*et
        a(f'ds_read_b128 v[{r}:{r+3}], v8 offset:{L_Z + (part*ZB + 16*et)*ZROW}')
for part in range(2): a(f'ds_read_b128 v[{120+4*part}:{123+4*part}], v8 offset:{L_Z + (part*ZB + 80)*ZROW}')
a('s_waitcnt lgkmcnt(0)')
a('s_mov_b64 exec, 1'); a('ds_add_u32 v6, v10 offset:8'); a('s_mov_b64 exec, -1')
a('v_mov_b32 v8, v12'); a('v_mov_b32 v10, v11')
tick(7, 44)
def VR(mt, et): return DACC + 20*mt + 4*et
def VI(mt, et): return DACC + 40 + 20*mt + 4*et
def vpack(et):
    L = []
    for mt in range(2):
        o = 80 + 20*mt + 4*et
        for i in range(4): L.append(f'v_cvt_pk_bf16_f32 v{o+i}, v{VR(mt,et)+i}, v{VI(mt,et)+i}')
        L.append(f'buffer_store_dwordx4 v[{o}:{o+3}], v8, s[12:15], s{67 + 3*mt} offen offset:{256*et} {STP}')
    return L
def vm(vr, vi, ya, yb):
    L = []
    for mt in range(2):
        L.append(f'v_mfma_f32_16x16x32_bf16 v[{vr(mt)}:{vr(mt)+3}], v[{FCOS+4*mt}:{FCOS+4*mt+3}], v[{ya}:{ya+3}], 0')
        L.append(f'v_mfma_f32_16x16x32_bf16 v[{vi(mt)}:{vi(mt)+3}], v[{FNS+4*mt}:{FNS+4*mt+3}], v[{ya}:{ya+3}], 0')
    for mt in range(2):
        L.append(f'v_mfma_f32_16x16x32_bf16 v[{vr(mt)}:{vr(mt)+3}], v[{FSIN+4*mt}:{FSIN+4*mt+3}], v[{yb}:{yb+3}], v[{vr(mt)}:{vr(mt)+3}]')
        L.append(f'v_mfma_f32_16x16x32_bf16 v[{vi(mt)}:{vi(mt)+3}], v[{FCOS+4*mt}:{FCOS+4*mt+3}], v[{yb}:{yb+3}], v[{vi(mt)}:{vi(mt)+3}]')
    return L
for et in range(5):
    M = vm(lambda mt: VR(mt, et), lambda mt: VI(mt, et), 40 + 4*et, 60 + 4*et)
    for ins in interleave2(M, vpack(et - 2) if et >= 2 else [], 2): a(ins)
a('s_cmp_lg_u32 s30, 0'); a('s_cbranch_scc1 L_v0a')
for ins in vm(lambda mt: 160 + 4*mt, lambda mt: 168 + 4*mt, 120, 124): a(ins)
a('L_v0a:')
tick(7, 45)
for ins in vpack(3): a(ins)
for ins in vpack(4): a(ins)
a('s_cmp_lg_u32 s30, 0'); a('s_cbranch_scc1 L_v0b')
for mt in range(2):
    for i in range(4): a(f'v_cvt_pk_bf16_f32 v{120+4*mt+i}, v{160+4*mt+i}, v{168+4*mt+i}')
a('s_mov_b32 exec_lo, 0x00010001'); a('s_mov_b32 exec_hi, 0x00010001')
a(f'buffer_store_dwordx4 v[120:123], v8, s[12:15], s69 offen {STP}')
a(f's_add_u32 s69, s69, {16*VROW}')
a(f'buffer_store_dwordx4 v[124:127], v8, s[12:15], s69 offen {STP}')
a('s_mov_b64 exec, -1')
a('L_v0b:')
tick(7, 46)
a('s_cmp_lg_u32 s3, 0')
a('s_cbranch_scc1 L_signal')
a('v_cvt_f32_u32 v62, s28'); a('v_mul_f32 v62, 0.0625, v62'); a('v_cos_f32 v63, v62'); a('v_sin_f32 v64, v62')
a('v_cmp_gt_u32 vcc, 16, v0')
a('v_lshlrev_b32 v11, 4, v3'); a('v_add_u32 v9, v10, v11')
for et in range(5):
    o = 80 + 4*et; vr = VR(0, et); vi = VI(0, et); n = 40 + 4*et
    a(f'v_mul_f32 v65, v63, v{vr}'); a(f'v_fmac_f32 v65, v64, v{vi}')
    a(f'v_mul_f32 v66, v63, v{vi}'); a(f'v_fma_f32 v66, -v64, v{vr}, v66')
    a(f'v_cvt_pk_bf16_f32 v65, v65, v66')
    a(f'v_cndmask_b32 v65, v{o}, v65, vcc')
    a(f'v_mov_b32 v{n}, v{o+1}')
    a(f'v_mov_b32 v66, v65')
    a(f'v_mov_b32 v{n+1}, v{o+2}'); a(f'v_mov_b32 v{n+2}, v{o+3}')
    a(f'v_permlane16_swap_b32 v65, v66')
    a('s_nop 1')
    a(f'v_cndmask_b32 v{n+3}, v65, v66, vcc')
a('s_mov_b32 exec_hi, 0')
for et in range(5):
    a(f'buffer_store_dwordx4 v[{40+4*et}:{43+4*et}], v9, s[12:15], s66 offen offset:{256*et} {STP}')
a('s_mov_b64 exec, -1')

a('L_signal:')
a('s_mov_b32 s79, 0')
tick(7, 32)
stamp(3)
a('s_lshl_b32 s66, s30, 2'); a('s_add_u32 s66, s66, s3'); a('s_lshl_b32 s66, s66, 7'); a('s_lshl_b32 s67, s28, 2'); a('s_add_u32 s66, s66, s67'); a(f's_add_u32 s66, s66, {WS_FV}')
a('v_mov_b32 v4, s43'); a('v_mov_b32 v5, 0')
a('s_waitcnt vmcnt(0)'); a('s_mov_b64 exec, 1')
a('buffer_store_dword v4, v5, s[12:15], s66 offen sc1'); a('s_mov_b64 exec, -1')
if TONE: lds_arrive(0, 4)
tick_dump(7, 4)
a('L_helper:')
if TONE:
    lds_wait('L_hc9', 20, 40)
    a('s_cmp_eq_u32 s35, 0'); a('s_cbranch_scc1 L_hnz')
    lds_wait('L_hzc', 8, 40)
    a('L_hnz:')
else:
    if 0 <= EARLY < 8: a('s_cmp_eq_u32 s35, 0'); a('s_cbranch_scc1 L_hea')
    if CBAR: a('s_barrier')
    else:
        lds_arrive(0, 4)
        a('L_hea:')
        lds_wait('L_hc9', 20, 40)
        a('s_cmp_eq_u32 s35, 0'); a('s_cbranch_scc1 L_hnz')
        lds_wait('L_hzc', 8, 40)
        a('L_hnz:')
    a('s_mov_b32 s44, s3')
    p2_setup()
    if HF1: lds_wait('L_hgo', 40, 40, opt('hgn', 4))
    a('s_cmp_eq_u32 s35, 1'); a('s_cbranch_scc1 L_hd')
    for st in range(12 - NLATE + opt('skipl', 0), 12): wdt_lds(st)
    a('s_branch L_hf')
    a('L_hd:')
    for st in range(12 - NLD, 12): wdt_lds(st)
    a('L_hf:')
    VT = opt('vtouch', 0)
    def vtouch():
        a('s_cmp_eq_u32 s35, 0'); a('s_cbranch_scc1 L_nvt')
        a('v_lshrrev_b32 v40, 2, v0'); a('v_lshlrev_b32 v40, 7, v40'); a('v_and_b32 v41, 3, v0'); a('v_lshl_add_u32 v40, v41, 4, v40')
        a(f's_mov_b32 s66, {WS_FV}')
        spin_begin('L_pollva')
        a('buffer_load_dwordx4 v[44:47], v40, s[12:15], s66 offen sc1')
        a('s_waitcnt vmcnt(0)')
        for i in range(4): a(f'v_xor_b32 v{44+i}, s43, v{44+i}')
        a('v_or_b32 v44, v44, v45'); a('v_or3_b32 v44, v46, v47, v44')
        a('v_cmp_ne_u32 vcc, 0, v44'); a('s_cmp_eq_u64 vcc, 0')
        spin_end('L_pollva')
        a('s_lshl_b32 s66, s30, 2'); a('s_sub_u32 s67, 13, s66'); a('s_cmp_eq_u32 s31, 1'); a('s_cselect_b32 s66, s67, s66')
        a('s_lshl_b32 s67, s32, 1'); a('s_lshr_b32 s68, s3, 1'); a('s_add_u32 s67, s67, s68'); a('s_mul_i32 s67, s67, 17'); a('s_add_u32 s66, s66, s67')
        a(f's_mul_i32 s66, s66, {2*VROW}'); a('s_and_b32 s67, s3, 1'); a(f's_mul_i32 s67, s67, {164*128}'); a('s_add_u32 s66, s66, s67'); a(f's_add_u32 s66, s66, {WS_V}')
        a('v_lshlrev_b32 v40, 7, v0')
        for i in range(3):
            if i == 2: a('s_mov_b32 exec_hi, 0xf')
            a(f'buffer_load_dword v41, v40, s[12:15], s66 offen sc1')
            if i < 2: a('s_add_u32 s66, s66, 8192')
        a('s_mov_b64 exec, -1')
        a('s_mov_b32 s79, 0')
        a('s_waitcnt vmcnt(0)')
        a('L_nvt:')
    if VT == 2: vtouch()
    a('s_waitcnt vmcnt(0)')
    lds_arrive(36, 4)
    if VT == 1: vtouch()
stamp(4)

a('s_cmp_eq_u32 s79, 1'); a('s_cbranch_scc1 L_vdone')
if VGO: a('s_cmp_lg_u32 s3, 3'); a('s_cbranch_scc1 L_vwait')
spin_begin('L_pollv')
a(f'buffer_load_dword v53, v{VFL}, s[12:15], s60 offen sc1')
a('s_waitcnt vmcnt(0)')
a('v_cmp_ne_u32 vcc, s43, v53')
a('s_cmp_eq_u64 vcc, 0')
spin_end('L_pollv')
if VGO:
    lds_arrive(28, 40)
    a('L_vwait:')
    lds_wait('L_vc', 28, 40, 1)
    lds_wait('L_vgo', 40, 40, 1)
v_loads()
a('L_vdone:')
stamp(5)
a('v_lshrrev_b32 v4, 2, v3'); a('v_and_b32 v5, 3, v3'); a('v_lshl_add_u32 v7, v5, 2, v4')
a('s_mul_i32 s66, s55, 15'); a('v_xor_b32 v4, s66, v7')
a('v_cvt_f32_u32 v4, v4'); a('v_mul_f32 v4, 0.0625, v4')
a('v_lshlrev_b32 v5, 2, v2'); a('v_cvt_f32_u32 v5, v5')
for i in range(4):
    a(f'v_add_f32 v52, {float(i)!r}, v5'); a('v_mul_f32 v52, v52, v4')
    a('v_cos_f32 v53, v52'); a('v_sin_f32 v54, v52'); a('s_nop 0')
    a(f'v_cvt_pk_bf16_f32 v{8+i}, v53, v54')
a(f's_mov_b32 s47, {PN}'); a('s_cmp_eq_u32 s55, 1'); a(f's_cselect_b32 s47, {(-PN) & 0xffffffff}, s47')
a(f'v_mul_u32_u24 v56, {PQ}, v2'); a('v_lshl_add_u32 v56, v3, 4, v56'); a(f's_mul_i32 s66, s55, {3*PN}'); a('v_add_u32 v56, s66, v56')
for k4 in range(1, 4): a(f'v_add_u32 v{56+k4}, s47, v{55+k4}')
def spec_tile(off_s, vb):
    for k4 in range(4):
        for i in range(4): a(f'v_mov_b32 v{64+4*k4+i}, v{vb+4*i+k4}')
    a('s_nop 1')
    for k4 in range(4):
        c = 80 + 4*k4
        a(f'v_mfma_f32_16x16x32_bf16 v[{c}:{c+3}], v[{64+4*k4}:{67+4*k4}], v[8:11], 0')
    for k4 in range(4): a(f'v_add_u32 v{40+k4}, {off_s}, v{56+k4}')
    a('s_nop 5')
    for k4 in range(4):
        c = 80 + 4*k4
        a(f'ds_write_b128 v{40+k4}, v[{c}:{c+3}]')
a('s_cmp_eq_u32 s3, 1'); a(f's_mov_b32 s73, {ST[0]}'); a(f's_cselect_b32 s73, {ST[1]}, s73')
a('s_cmp_eq_u32 s3, 2'); a(f's_cselect_b32 s73, {ST[2]}, s73')
a('s_cmp_eq_u32 s3, 3'); a(f's_cselect_b32 s73, {ST[3]}, s73')
a('s_waitcnt vmcnt(0)')
a('s_cmp_lg_u32 s3, 0'); a('s_cbranch_scc1 L_spec1')
a(f's_mov_b32 s74, {ST[4]}')
spec_tile('s74', VB1)
a('L_spec1:')
spec_tile('s73', VB0)
for r in range(3):
    for d in range(4):
        a(f'v_lshlrev_b32 v{96+8*r+2*d}, 16, v{XR[r]+d}'); a(f'v_and_b32 v{97+8*r+2*d}, 0xffff0000, v{XR[r]+d}')
if F8:
    lds_arrive(52, 40)
    lds_wait('L_spw', 52, 40)
    a(f'ds_read_b128 v[128:131], v{FA[5]}'); a(f'ds_read_b128 v[132:135], v{FA[5]} offset:{PQ}')
    a('s_waitcnt lgkmcnt(0)')
    for d in range(0, 8, 2): a(f'v_pk_add_f32 v[{128+d}:{129+d}], v[{128+d}:{129+d}], v[{104+d}:{105+d}]')
    a(f'ds_write_b128 v{FA[5]}, v[128:131]'); a(f'ds_write_b128 v{FA[5]}, v[132:135] offset:{PQ}')

a('L_final:')
def final_reads(r, b):
    d4, d11 = FA[3*r], FA[3*r+2]
    for p in range(5):
        reg = (d4, d4, d4, d4, d11)[p]; off = (0, P2W, 2*P2W, 3*P2W, 0)[p]
        a(f'ds_read_b128 v[{b+8*p}:{b+3+8*p}], v{reg} offset:{off}')
        a(f'ds_read_b128 v[{b+4+8*p}:{b+7+8*p}], v{reg} offset:{off+PQ}')
def final_sum(r, b, cnt):
    x = 96 + 8*r
    for p in range(5):
        a(f's_waitcnt lgkmcnt({min(15, cnt + 8 - 2*p)})')
        for d in range(0, 8, 2): a(f'v_pk_add_f32 v[{x+d}:{x+d+1}], v[{x+d}:{x+d+1}], v[{b+8*p+d}:{b+8*p+d+1}]')
    for d in range(4): a(f'v_cvt_pk_bf16_f32 v{b+d}, v{x+2*d}, v{x+2*d+1}')
    a(f'buffer_store_dwordx4 v[{b}:{b+3}], v{FA[3*r+1]}, s[16:19], 0 offen {OUTP}')
a('s_waitcnt lgkmcnt(0)')
a('s_barrier')
stamp(6)
if F8:
    final_reads(0, 128)
    a('s_cmp_ge_u32 s3, 2'); a('s_cbranch_scc1 L_fin8')
    final_reads(2, 168)
    final_sum(0, 128, 10)
    final_sum(2, 168, 0)
    a('s_branch L_fin2')
    a('L_fin8:')
    final_sum(0, 128, 0)
    a('s_branch L_fin2')
final_reads(0, 128)
final_reads(1, 168)
final_sum(0, 128, 10)
a('s_cmp_ge_u32 s3, 2'); a('s_cbranch_scc1 L_fin1')
final_reads(2, 208)
final_sum(1, 168, 10)
final_sum(2, 208, 0)
a('s_branch L_fin2')
a('L_fin1:')
final_sum(1, 168, 0)
a('L_fin2:')
if 'diag' in opts:
    a('s_cmp_lg_u32 s3, 0'); a('s_cbranch_scc1 L_diag')
    a('s_waitcnt vmcnt(0)')
    a('s_memrealtime s[94:95]'); a('s_waitcnt lgkmcnt(0)')
    if opts['diag'] == 'r': a('s_sub_u32 s66, s43, s80'); a('s_max_i32 s66, s66, 0'); a('s_min_u32 s66, s66, 5000'); a('s_lshl_b32 s66, s66, 4')
    elif opts['diag'] == 'b': a('s_sub_u32 s66, s82, s80'); a('s_max_i32 s66, s66, 0'); a('s_min_u32 s66, s66, 5000'); a('s_lshl_b32 s66, s66, 3')
    elif opts['diag'] == 'c': a('s_sub_u32 s66, s92, s90'); a('s_lshr_b32 s66, s66, 2'); a('s_cmp_eq_u32 s35, 1'); a('s_cselect_b32 s66, 0, s66')
    elif opts['diag'] == 'l': a('s_sub_u32 s66, s84, s82'); a('s_lshl_b32 s66, s66, 2'); a('s_cmp_eq_u32 s35, 1'); a('s_cselect_b32 s66, 0, s66')
    elif opts['diag'] == 'g': a('s_sub_u32 s66, s92, s86'); a('s_lshl_b32 s66, s66, 2')
    elif opts['diag'] == 'p': a('s_sub_u32 s66, s86, s84'); a('s_lshl_b32 s66, s66, 4'); a('s_cmp_eq_u32 s35, 1'); a('s_cselect_b32 s66, 0, s66')
    elif opts['diag'][0] == 'k': a('s_sub_u32 s66, s96, s80'); a('s_lshl_b32 s66, s66, 2'); a('s_cmp_eq_u32 s35, 1'); a('s_cselect_b32 s66, 0, s66')
    elif opts['diag'] == 'e': a('s_sub_u32 s66, s94, s80'); a('s_max_i32 s66, s66, 0'); a('s_min_u32 s66, s66, 5000'); a('s_lshl_b32 s66, s66, 2')
    else: a(f"s_sub_u32 s66, s{80 + 2*int(opts['diag'])}, s43"); a('s_max_i32 s66, s66, 0'); a('s_min_u32 s66, s66, 5000'); a('s_lshl_b32 s66, s66, 2')
    a('L_dsp:')
    a('s_memrealtime s[68:69]'); a('s_waitcnt lgkmcnt(0)'); a('s_sub_u32 s68, s68, s94'); a('s_cmp_lt_u32 s68, s66'); a('s_cbranch_scc1 L_dsp')
    a('s_endpgm')
    a('L_diag:')
if opt('dbgt', 0):
    a('s_cmp_lg_u32 s3, 0'); a('s_cbranch_scc1 L_dbgt')
    a('s_waitcnt vmcnt(0)')
    a('s_memrealtime s[94:95]'); a('s_waitcnt lgkmcnt(0)')
    a('s_mov_b64 exec, 1')
    for i, r in enumerate((80, 82, 84, 86, 88, 90, 92, 94)):
        a(f's_sub_u32 s66, s{r}, s43'); a('s_add_u32 s66, s66, 1000'); a('v_mov_b32 v4, s66'); a(f'v_mov_b32 v5, {4 + 4*i}')
        a('buffer_atomic_umax v4, v5, s[24:27], 0 offen sc1')
        a('s_nop 2')
    a('s_endpgm')
    a('L_dbgt:')
stamp(7)
if STAMPS:
    a('s_waitcnt vmcnt(0)')
    a('s_memrealtime s[96:97]')
    a('s_waitcnt lgkmcnt(0)')
    for i in range(8): a(f'v_mov_b32 v{16+i}, s{80+2*i}')
    a('v_mov_b32 v24, s96'); a('v_mov_b32 v25, s101')
    a('s_lshl_b32 s66, s2, 3'); a('s_add_u32 s66, s66, s3'); a('s_lshl_b32 s66, s66, 6'); a(f's_add_u32 s66, s66, {WS_TS}')
    a('v_mov_b32 v4, 0')
    a('s_mov_b64 exec, 1')
    a('buffer_store_dwordx4 v[16:19], v4, s[12:15], s66 offen')
    a('buffer_store_dwordx4 v[20:23], v4, s[12:15], s66 offen offset:16')
    a('buffer_store_dwordx2 v[24:25], v4, s[12:15], s66 offen offset:32')
a('s_endpgm')
emit_tails()
a('L_done:')
a.end(256, sgpr=102)
txt = a.text([])
txt = txt.replace('.amdgcn_target', f'; @launch grid=(256,1,1) block=(512,1,1) lds={LDS_BYTES}\n.amdgcn_target', 1)
open(sys.argv[1], 'w').write(txt)
if opt('ids', 0): print(wait_ids, spin_ids)
```

```python
import sys, math
from asmlib import *
opts = dict(o.split('=') for o in sys.argv[2:])
def opt(k, d): return type(d)(opts.get(k, d))
STAMPS = opt('stamps', 0)
CBAR = opt('cbar', 1)
HF1 = opt('hf1', 0)
WDA = opts.get('wda', '')
F8 = opt('f8', 1)
RSP = opts.get('rsp', 'sc1').replace('+', ' ')
RSEQ = opts.get('rseq', '0222200').replace('-', '')
FRB = opt('frb', 6)
FRSEP = opt('frsep', 1)
NOCS = opt('nocs', 1)
FWL = opt('fwl', 0)
DF = opt('df', 1)
PFW = opts.get('pfw', '2,1').replace('-', '')
PFP = opts.get('pfp', '-').replace('-', '')
HALF = opt('half', 1)
EARLY = opt('early', 8 if HALF else -1)
NTM = [sum(1 << int(c) for c in m) for m in opts['ntm'].split(',')] if 'ntm' in opts else None
RP = opts.get('rp', '-').replace('+', ' ').replace('-', '')
WP_ = opts.get('wp', '-').replace('+', ' ').replace('-', '')
XP_ = opts.get('xp', '-').replace('+', ' ').replace('-', '')
TONE = opt('t1', 0)
HDLY = opt('hdly', 0)
OUTP = opts.get('outp', 'sc1').replace('+', ' ').replace('-', '')
SENT = 1
RDFT = opt('rdft', 1)
RSL = opt('rsleep', 4)
AUXV = opt('auxv', 0)
VGO = opt('vgo', 1)
VCHK = opt('vchk', 4)
XR = [32, 36, 28]
FA = [16, 17, 18, 19, 20, 21, 22, 23, 24]; VA0, VA4, VFL = 25, 26, 27
NONIT = 1
WMODE = opt('wmode', 0)
STRICT = opt('strict', 1)
ZFIX = opt('zfix', 1)
FLAGA = opt('flaga', 0)
FAKEW = opt('fakew', 0)
FAKEH = opt('fakeh', 0)
P2MAP = opt('p2map', 1)
P2ROT = opt('p2rot', 5)
SPINMAX = opt('spinmax', 1 << 16)
CODEPF = opt('codepf', 1)
LDW = opts.get('ldw', 'sc1').replace('+', ' ').replace('-', '')
LDH = opts.get('ldh', 'sc1').replace('+', ' ').replace('-', '')
STP = opts.get('stp', 'sc1').replace('+', ' ').replace('-', '')
S, D, F = 2048, 640, 1536
KNAME = 'parallel_sum__spectral_fnet__swiglu_ffn__prompt_kernel'
STG = 49152
WS_H = 0
WS_WDT = 0x600000
WS_V = 0x800000
WS_XP = 0xB00000
WS_WP = 0xB20000
WS_FW = 0xB30000
WS_FH = 0xB31000
WS_FV = 0xB34000
WS_TS = 0xC00000
WS_SIZE = 0x1000000
L_AUX = 3*STG
L_R = L_AUX
L_M = L_AUX + 512
L_CS = L_AUX + 1024
L_CNT = L_AUX + 2048
L_NON = L_CNT + 32
L_A0 = L_AUX + 2560
L_CH = L_AUX + 3072
L_WD = L_AUX + 4096
L_Z = 0
ZROW = 64; ZB = 96
VROW = 5248
P2W = 10240
P2STEP = [STG, STG + 5120, 2*STG, 2*STG + 5120, 0, 5120]
PT = [STG, STG + 4416, 2*STG + 128, 2*STG + 128 + 4416, 0]
ST = [40960, STG + 40960 + 64, 2*STG + 40960 + 128, 3*STG + 4096 + 192, 3*STG + 4096 + 192 + 4416 ]
PQ, PN, PE = 272, 1088, 4416
LDS_BYTES = 163840

a = Asm()
stamp_n = [0]
def stamp(i):
    if STAMPS and opts.get('diag') == 'c' and i in (1, 2): a(f's_memtime s[{88 + 2*i}:{89 + 2*i}]'); return
    if STAMPS and opts.get('diag') == 'c' and i in (5, 6): return
    if STAMPS:
        if not ((FAKEW or FAKEH) and i >= 5): a(f's_memrealtime s[{80+2*i}:{81+2*i}]')
TICKS = opt('ticks', 0)
def tick(reg, idx):
    if TICKS:
        a('s_memrealtime s[98:99]'); a('s_waitcnt lgkmcnt(0)')
        if isinstance(idx, tuple):
            a(f's_add_u32 m0, {idx[0]}, {idx[1]}'); a('s_nop 3'); a(f'v_writelane_b32 v{reg}, s98, m0')
        else:
            a(f'v_writelane_b32 v{reg}, s98, {idx}')
def tick_dump(reg, tmp):
    if TICKS:
        a('s_lshl_b32 s98, s2, 3'); a('s_add_u32 s98, s98, s3'); a('s_lshl_b32 s98, s98, 8'); a(f's_add_u32 s98, s98, {WS_TS + 0x100000}')
        a(f'v_lshlrev_b32 v{tmp}, 2, v0')
        a(f'buffer_store_dword v{reg}, v{tmp}, s[12:15], s98 offen')
def rbf(v):
    a(f'v_cvt_pk_bf16_f32 v{v}, v{v}, v{v}')
    a(f'v_lshlrev_b32 v{v}, 16, v{v}')
def srd_from(d, b, nbytes):
    srd(a, d, b, nbytes)
spin_ids = {}
def spin_begin(name):
    a(f's_mov_b32 s79, 0')
    a(f'{name}:')
def spin_end(name):
    a(f's_cbranch_scc1 {name}_ok')
    a('s_add_u32 s79, s79, 1')
    a(f's_cmp_ge_u32 s79, {SPINMAX}')
    if STAMPS: spin_ids[name] = 100 + len(spin_ids); a(f's_cselect_b32 s101, {spin_ids[name]}, s101')
    a(f's_cbranch_scc1 {name}_ok')
    a(f"s_sleep {opt('gsl', 4)}")
    a(f's_branch {name}')
    a(f'{name}_ok:')

def lds_arrive(off, v):
    a(f'v_mov_b32 v{v}, {L_CNT}'); a(f'v_mov_b32 v{v+1}, 1')
    a('s_waitcnt lgkmcnt(0)')
    a('s_mov_b64 exec, 1')
    a(f'ds_add_u32 v{v}, v{v+1} offset:{off}')
    a('s_mov_b64 exec, -1')
wait_ids = {}
def lds_wait(name, off, v, cnt=4):
    wait_ids[name] = len(wait_ids) + 1
    a(f'v_mov_b32 v{v}, {L_CNT}')
    a('s_mov_b32 s100, 0')
    a(f'{name}:')
    a(f'ds_read_b32 v{v+1}, v{v} offset:{off}')
    a('s_waitcnt lgkmcnt(0)')
    a(f'v_readfirstlane_b32 s78, v{v+1}')
    a(f's_cmp_lt_u32 s78, {cnt}')
    a(f's_cbranch_scc0 {name}_ok')
    a('s_add_u32 s100, s100, 1')
    a(f's_cmp_lt_u32 s100, {SPINMAX*8}')
    a(f"s_sleep {opt('lsl', 3)}")
    a(f's_cbranch_scc1 {name}')
    if STAMPS: a(f's_mov_b32 s101, {wait_ids[name]}')
    a(f'{name}_ok:')
a.begin(KNAME)
a('s_cmp_ge_u32 s2, 256')
a('s_cbranch_scc1 L_done')
stamp(0)
if STAMPS: a('s_mov_b32 s101, 0')
a('s_load_dwordx2 s[64:65], s[0:1], 0')
a('s_load_dwordx4 s[60:63], s[0:1], 24')
a('s_load_dwordx8 s[48:55], s[0:1], 48')
a('s_load_dwordx4 s[56:59], s[0:1], 80')
a('v_lshrrev_b32 v1, 6, v0')
a('v_and_b32 v0, 63, v0')
a('v_readfirstlane_b32 s3, v1')
a('s_and_b32 s40, s2, 7'); a('s_lshr_b32 s41, s2, 3')
a('s_and_b32 s31, s40, 1'); a('s_lshr_b32 s30, s40, 1')
a('s_and_b32 s32, s41, 7'); a('s_lshr_b32 s33, s41, 3')
a('s_lshl_b32 s28, s31, 3'); a('s_add_u32 s28, s28, s32')
a('s_mul_i32 s29, s30, 3'); a('s_add_u32 s29, s29, s33')
a('s_add_u32 s42, s30, 12')
a('s_cmp_eq_u32 s33, 3')
a('s_cselect_b32 s29, s42, s29')
a('s_cselect_b32 s35, 1, 0')
OFFA = opt('offa', 2)
assert DF or OFFA == 0
if OFFA == 0: a('s_mul_i32 s34, s30, 5'); a('s_add_u32 s34, s34, 1'); a('s_lshr_b32 s34, s34, 1')
elif OFFA == 1: a('s_min_u32 s34, s30, 1'); a('s_add_u32 s34, s34, s30')
elif OFFA == 2: a('s_mov_b32 s34, 0')
elif OFFA == 3: a('s_min_u32 s34, s30, 1'); a('s_add_u32 s34, s34, s30'); a('s_and_b32 s42, s30, 1'); a('s_mul_i32 s42, s42, 5'); a('s_add_u32 s34, s34, s42')
a('s_mul_i32 s42, s31, 5'); a('s_add_u32 s34, s34, s42')
a('s_cmp_ge_u32 s34, 10'); a('s_cselect_b32 s42, 10, 0'); a('s_sub_u32 s34, s34, s42')
if P2MAP == 0:
    a('s_lshl_b32 s42, s30, 3'); a('s_add_u32 s42, s42, s32')
    a('s_lshl_b32 s38, s31, 2'); a('s_add_u32 s38, s38, s33')
else:
    a('s_lshl_b32 s42, s40, 2'); a('s_add_u32 s42, s42, s33')
    a('s_mov_b32 s38, s32')
if EARLY < 0:
    a('s_mul_i32 s39, s32, 3'); a('s_lshr_b32 s39, s39, 1'); a('s_mul_i32 s66, s33, 3'); a('s_add_u32 s39, s39, s66')
    a('s_cmp_ge_u32 s39, 12'); a('s_cselect_b32 s66, 12, 0'); a('s_sub_u32 s39, s39, s66')
else:
    a('s_lshl_b32 s39, s33, 1'); a('s_add_u32 s39, s39, s32'); a('s_mul_i32 s39, s39, 3'); a('s_lshr_b32 s39, s39, 2')
    a('s_cmp_ge_u32 s39, 6'); a('s_cselect_b32 s66, 6, 0'); a('s_sub_u32 s39, s39, s66')
if not P2ROT: a('s_mov_b32 s39, 0')
if P2ROT == 2: a('s_mul_i32 s39, s32, 3'); a('s_lshr_b32 s39, s39, 1')
if P2ROT == 3: a('s_mul_i32 s39, s33, 3')
if P2ROT == 4: a('s_add_u32 s39, s32, s33'); a('s_and_b32 s39, s39, 1'); a('s_mul_i32 s39, s39, 6')
if P2ROT == 5: a('s_and_b32 s39, s2, 7'); a('s_mul_i32 s39, s39, 3'); a(f's_lshr_b32 s39, s39, {1 if EARLY < 0 else 2}')
a('s_lshr_b32 s36, s42, 1'); a('s_and_b32 s37, s42, 1')
WSOFF = opt('wsoff', 0)
WSRD = 's[12:15]'; HSRD = 's[12:15]'
def common_srds(loader=False):
    a('s_waitcnt lgkmcnt(0)')
    tick(7, 50)
    srd(a, 12, 58, WS_SIZE, WSOFF << 20)
    if not loader:
        srd_from(4, 64, S*D*2)
        srd_from(16, 54, S*D*2)
        srd_from(20, 52, F*D*2)
        srd_from(24, 56, 256)
a('s_cmp_lt_u32 s3, 4')
a('s_cbranch_scc1 L_compute')
a('s_sub_u32 s44, s3, 4')
a('s_cmp_eq_u32 s44, 3')
a('s_cbranch_scc1 L_aux')

W0 = 5
PT_ = [20, 21, 22, 23, 24, 25, 26, 27, 4, 5, 6, 7, 16, 17, 18, 19]
GT_ = [66, 67, 68, 69, 76, 77, 78, 79, 96, 97, 100, 101, 40, 41, 42, 43]
GT_ = [66, 67, 68, 69, 76, 77, 78, 79, 28, 29, 30, 31, 40, 41, 33, 43]
def emit_p0(dst, t):
    a(f's_min_u32 s{t}, s30, 1'); a(f's_add_u32 s{dst}, s30, s{t}'); a(f's_mul_i32 s{t}, s31, 3'); a(f's_add_u32 s{dst}, s{dst}, s{t}')
    a(f's_cmp_ge_u32 s{dst}, 5'); a(f's_cselect_b32 s{t}, 5, 0'); a(f's_sub_u32 s{dst}, s{dst}, s{t}')
H0 = opt('h0', 12)
def dma_loop(name, npieces):
    h = npieces * H0 // 16
    def pieces1(lo, hi, pol):
        for t in range(lo, hi):
            a(f's_add_u32 m0, s{PT_[t]}, s46'); a('s_nop 0')
            a(f'buffer_load_dwordx4 v{4 + (t & 1)}, s[8:11], s{GT_[t]} offen {pol} lds')
    def pieces(lo, hi):
        if not NTM: return pieces1(lo, hi, RP)
        L = a.label('L_pc')
        a('s_bitcmp1_b32 s50, s47'); a(f's_cbranch_scc1 {L}_n')
        pieces1(lo, hi, ''); a(f's_branch {L}_e')
        a(f'{L}_n:'); pieces1(lo, hi, 'nt'); a(f'{L}_e:')
    a('s_mov_b32 s46, 0'); a('s_mov_b32 s47, 0')
    a('v_add_u32 v4, s42, v4'); a('v_add_u32 v5, s42, v5')
    tick(7, 51)
    if opt('uni', 0):
        pieces(0, h)
        a(f'{name}_l:')
        pieces(h, npieces)
        a('s_cmp_eq_u32 s47, 9'); a('s_cbranch_scc1 L_p2last')
        a('s_add_u32 s45, s45, 1'); a('s_cmp_eq_u32 s45, 10'); a('s_cselect_b32 s45, 0, s45')
        a('s_cselect_b32 s42, s49, s48')
        a('v_add_u32 v4, s42, v4'); a('v_add_u32 v5, s42, v5')
        a(f's_add_u32 s46, s46, {STG}'); a(f's_cmp_eq_u32 s46, {3*STG}'); a('s_cselect_b32 s46, 0, s46')
        pieces(0, h)
        a(f's_waitcnt vmcnt({h})')
        tick(7, ('s47', 0))
        a('s_barrier')
        tick(7, ('s47', 16))
        a('s_add_u32 s47, s47, 1'); a(f's_branch {name}_l')
        return
    a(f'{name}_l:')
    pieces(0, h)
    a('s_cmp_lg_u32 s47, 1'); a(f's_cbranch_scc1 {name}_m')
    a(f's_waitcnt vmcnt({h})')
    tick(7, 0)
    a('s_barrier')
    tick(7, 16)
    a(f'{name}_m:')
    pieces(h, npieces)
    a('s_add_u32 s45, s45, 1'); a('s_cmp_eq_u32 s45, 10'); a('s_cselect_b32 s45, 0, s45')
    a('s_cselect_b32 s42, s49, s48')
    a('s_mov_b32 s70, s48'); a('s_mov_b32 s48, s51'); a('s_mov_b32 s51, s70')
    a('v_add_u32 v4, s42, v4'); a('v_add_u32 v5, s42, v5')
    a(f's_add_u32 s46, s46, {STG}'); a(f's_cmp_eq_u32 s46, {3*STG}'); a('s_cselect_b32 s46, 0, s46')
    tick(7, ('s47', 52))
    a('s_cmp_lt_u32 s47, 2'); a(f's_cbranch_scc1 {name}_nx')
    a(f's_waitcnt vmcnt({npieces})')
    tick(7, ('s47', -1))
    a('s_barrier')
    tick(7, ('s47', 15))
    a('s_cmp_eq_u32 s47, 9'); a('s_cbranch_scc1 L_p2last')
    a(f'{name}_nx:')
    a('s_add_u32 s47, s47, 1'); a(f's_branch {name}_l')

a('s_cmp_eq_u32 s44, 2')
a('s_cbranch_scc1 L_ldx')
a('s_cmp_eq_u32 s35, 1')
a('s_cbranch_scc1 L_ldc')
a('v_lshrrev_b32 v1, 4, v0')
a('v_and_b32 v2, 15, v0')
a('v_lshlrev_b32 v3, 1, v1')
a('v_xor_b32 v2, v2, v3')
a('v_lshlrev_b32 v2, 4, v2')
a(f'v_mul_u32_u24 v3, {F*2}, v1')
a('v_add_u32 v2, v2, v3')
a('s_lshl_b32 s70, s29, 8')
a('v_add_u32 v2, s70, v2')
a('s_and_b32 s70, s32, 1'); a('s_lshl_b32 s70, s70, 7')
a('v_xor_b32 v4, s70, v2')
a('v_xor_b32 v5, 128, v4')
a('s_lshl_b32 s70, s32, 11')
a('s_lshl_b32 s71, s44, 14')
for g in range(4):
    if g: a('s_add_u32 s70, s70, 2048'); a('s_and_b32 s70, s70, 0x3c00')
    a(f's_or_b32 s{PT_[4*g]}, s70, s71'); a(f's_mul_i32 s{GT_[4*g]}, s70, 12')
    a(f's_add_u32 s{PT_[4*g+2]}, s{PT_[4*g]}, 1024'); a(f's_add_u32 s{GT_[4*g+2]}, s{GT_[4*g]}, {4*F*2}')
    a('s_add_u32 s70, s70, 2048'); a('s_and_b32 s70, s70, 0x3c00')
    a(f's_or_b32 s{PT_[4*g+1]}, s70, s71'); a(f's_mul_i32 s{GT_[4*g+1]}, s70, 12')
    a(f's_add_u32 s{PT_[4*g+3]}, s{PT_[4*g+1]}, 1024'); a(f's_add_u32 s{GT_[4*g+3]}, s{GT_[4*g+1]}, {4*F*2}')
a('s_cmp_eq_u32 s44, 1')
a('s_waitcnt lgkmcnt(0)')
a('s_cselect_b32 s8, s50, s48'); a('s_cselect_b32 s9, s51, s49'); a(f's_mov_b32 s10, {D*F*2}'); a('s_mov_b32 s11, 0x00020000')
a(f's_mov_b32 s48, {64*F*2}'); a('s_mov_b32 s51, s48'); a('s_mov_b32 s45, s34'); a('s_mul_i32 s42, s34, s48'); a('s_mul_i32 s49, s48, -9')
if NTM: a(f's_mov_b32 s50, {NTM[0]}')
a('s_branch L_ld16')
a('L_ldx:')
if DF: emit_p0(71, 72)
a('v_lshrrev_b32 v1, 3, v0')
a('v_and_b32 v2, 7, v0')
a('v_lshrrev_b32 v3, 1, v1')
a('v_xor_b32 v2, v2, v3')
a('v_lshlrev_b32 v2, 4, v2')
a('v_lshrrev_b32 v3, 2, v1'); a('v_and_b32 v6, 3, v1'); a('v_lshl_add_u32 v3, v6, 2, v3')
XMAP = opt('xmap', 0)
if XMAP == 0:
    a('v_lshlrev_b32 v3, 7, v3'); a('v_add_u32 v3, s28, v3')
elif XMAP == 1:
    a('v_lshlrev_b32 v3, 7, v3'); a('s_lshl_b32 s70, s28, 3'); a('v_add_u32 v3, s70, v3')
else:
    a('v_lshlrev_b32 v3, 3, v3'); a('s_lshl_b32 s70, s28, 7'); a('v_add_u32 v3, s70, v3')
a(f'v_mul_u32_u24 v3, {D*2}, v3')
a('v_add_u32 v4, v2, v3')
a('v_xor_b32 v5, 64, v4'); a(f'v_add_u32 v5, {(256 if XMAP < 2 else 16)*D*2}, v5')
a('s_lshl_b32 s70, s33, 12')
for t in range(0, 16, 2):
    if t: a('s_add_u32 s70, s70, 2048'); a('s_and_b32 s70, s70, 0x3c00')
    a(f's_or_b32 s{PT_[t]}, s70, 0x8000'); a(f's_or_b32 s{PT_[t+1]}, s70, 0x8400')
    if XMAP == 0: a(f's_mul_i32 s{GT_[t]}, s70, {16*D*2//2048}')
    else: a(f's_mul_i32 s{GT_[t]}, s70, 5'); a(f's_lshr_b32 s{GT_[t]}, s{GT_[t]}, 3')
    a(f's_mov_b32 s{GT_[t+1]}, s{GT_[t]}')
a('s_waitcnt lgkmcnt(0)')
srd_from(8, 64, S*D*2)
a('s_movk_i32 s48, 128'); a('s_movk_i32 s51, 128'); a('s_mov_b32 s45, s34'); a('s_lshl_b32 s42, s34, 7'); a('s_movk_i32 s49, -1152')
if DF:
    a('s_cmp_eq_u32 s35, 0'); a('s_cbranch_scc1 L_ld16')
    a('s_movk_i32 s48, 640'); a('s_movk_i32 s51, -512'); a('s_lshl_b32 s45, s71, 1'); a('s_lshl_b32 s42, s71, 7')
if NTM: a(f's_mov_b32 s50, {NTM[1]}')
a('L_ld16:')
dma_loop('L_ldw', 16)
a('L_ldc:')
a('v_lshrrev_b32 v1, 3, v0')
a('v_and_b32 v2, 7, v0')
a('v_lshrrev_b32 v3, 1, v1')
a('v_xor_b32 v2, v2, v3')
a('v_lshlrev_b32 v2, 4, v2')
if DF:
    emit_p0(45, 72)
    a('s_lshr_b32 s70, s30, 1'); a('s_mul_i32 s70, s70, 160'); a('s_and_b32 s71, s30, 1'); a('s_add_u32 s70, s70, s71'); a('s_add_u32 s70, s70, 1')
    a('v_lshlrev_b32 v1, 1, v1')
else:
    a('s_mul_i32 s70, s30, 80'); a('s_add_u32 s70, s70, 1')
a('v_add_u32 v1, s70, v1')
a(f'v_mul_u32_u24 v3, {D*2}, v1')
a('v_add_u32 v2, v2, v3')
a('s_and_b32 s70, s32, 1'); a('s_lshl_b32 s70, s70, 6')
a('v_xor_b32 v4, s70, v2')
a('v_xor_b32 v5, 64, v4')
a('s_lshl_b32 s70, s32, 10')
a('s_lshl_b32 s71, s44, 14')
for t in range(10):
    if t: a('s_add_u32 s70, s70, 1024'); a('s_cmp_eq_u32 s70, 10240'); a('s_cselect_b32 s70, 0, s70')
    a(f's_or_b32 s{PT_[t]}, s70, s71'); a(f's_mul_i32 s{GT_[t]}, s70, {(16 if DF else 8)*D*2//1024}')
a('s_cmp_eq_u32 s44, 1')
a('s_waitcnt lgkmcnt(0)')
a('s_cselect_b32 s8, s62, s60'); a('s_cselect_b32 s9, s63, s61'); a(f's_mov_b32 s10, {D*D*2}'); a('s_mov_b32 s11, 0x00020000')
if not DF:
    a('s_movk_i32 s48, 128'); a('s_movk_i32 s51, 128'); a('s_mov_b32 s45, s34'); a('s_lshl_b32 s42, s34, 7'); a('s_movk_i32 s49, -1152')
    if NTM: a(f's_mov_b32 s50, {NTM[0]}')
    dma_loop('L_ldcl', 10)
else:
    a('s_lshl_b32 s42, s45, 7'); a('v_add_u32 v4, s42, v4'); a('v_add_u32 v5, s42, v5')
    a(f's_mov_b32 s46, {STG}'); a('s_mov_b32 s47, 1')
    a('L_ldcl:')
    for t in range(10):
        a(f's_add_u32 m0, s{PT_[t]}, s46'); a('s_nop 0')
        a(f'buffer_load_dwordx4 v{4 + (t & 1)}, s[8:11], s{GT_[t]} offen lds')
    a('s_add_u32 s45, s45, 1'); a('s_cmp_eq_u32 s45, 5'); a('s_cselect_b32 s45, 0, s45')
    a('s_movk_i32 s42, 128'); a('s_cselect_b32 s42, -512, s42')
    a('v_add_u32 v4, s42, v4'); a('v_add_u32 v5, s42, v5')
    a(f's_sub_u32 s46, s46, {STG}'); a(f's_cselect_b32 s46, {2*STG}, s46')
    a('s_barrier')
    a('s_cmp_eq_u32 s47, 9'); a('s_cbranch_scc1 L_p2last')
    a('s_waitcnt vmcnt(0)')
    a('s_barrier')
    a('s_add_u32 s47, s47, 2'); a('s_branch L_ldcl')

P2ACC = 176; P2W_R = 56; P2H = 8
def p2_setup():
    a('v_lshlrev_b32 v1, 4, v0')
    srd(a, 12, 58, WS_SIZE, WSOFF << 20)
    a('s_mul_i32 s70, s38, 48'); a('s_mul_i32 s71, s44, 12'); a('s_add_u32 s70, s70, s71')
    a(f's_mul_i32 s70, s70, 5120'); a(f's_add_u32 s70, s70, {WS_WDT}')
    a(f's_mul_i32 s73, s44, {P2W}')
def kidx(step):
    if EARLY < 0:
        a(f's_add_u32 s72, s39, {step}'); a('s_cmp_ge_u32 s72, 12'); a('s_cselect_b32 s71, 12, 0'); a('s_sub_u32 s72, s72, s71')
    else:
        a(f's_add_u32 s72, s39, {step % 6}'); a('s_cmp_ge_u32 s72, 6'); a('s_cselect_b32 s71, 6, 0'); a('s_sub_u32 s72, s72, s71')
        a('s_lshl_b32 s72, s72, 1')
        if (step >= 6) != bool(HALF): a('s_add_u32 s72, s72, 1')
def wdt_reg(step):
    kidx(step)
    a('s_mul_i32 s72, s72, 5120'); a('s_add_u32 s72, s72, s70')
    for ei in range(5):
        r = P2W_R + 20*step + 4*ei
        if ei == 4: a('s_add_u32 s72, s72, 4096')
        a(f'buffer_load_dwordx4 v[{r}:{r+3}], v1, {WSRD}, s72 offen offset:{(ei % 4)*1024} {LDW}')
def wdt_lds(step):
    kidx(step)
    a('s_mul_i32 s72, s72, 5120'); a('s_add_u32 s72, s72, s70')
    for ei in range(5):
        a(f's_add_u32 m0, s73, {P2STEP[step-6] + ei*1024}')
        if ei: a('s_add_u32 s72, s72, 1024')
        else: a('s_nop 0')
        a(f'buffer_load_dwordx4 v1, {WSRD}, s72 offen {LDW} lds')
WD = [[0, 1], [2, 3], [4, 5], []]
def read_nonce(v):
    a(f'v_mov_b32 v{v}, {L_NON}'); a(f'ds_read_b32 v{v}, v{v}'); a('s_waitcnt lgkmcnt(0)'); a(f'v_readfirstlane_b32 s43, v{v}')
def final_addr(tau_off, d4, d5, d11, t, a=a):
    v4, v5, v6, v7, v8, v9, v10 = d4, d5, t, t+1, t+2, t+3, t+4
    a('s_lshl_b32 s66, s3, 6'); a(f's_add_u32 s66, s66, {tau_off}')
    a(f'v_add_u32 v{v4}, s66, v0')
    a(f'v_mul_u32_u24 v{v5}, 6554, v{v4}'); a(f'v_lshrrev_b32 v{v5}, 16, v{v5}')
    a(f'v_mul_u32_u24 v{v6}, 10, v{v5}'); a(f'v_sub_u32 v{v6}, v{v4}, v{v6}')
    a(f'v_lshrrev_b32 v{v7}, 4, v{v5}'); a(f'v_and_b32 v{v5}, 15, v{v5}')
    a(f'v_lshrrev_b32 v{v9}, 1, v{v6}')
    a(f'v_mov_b32 v{v10}, {PT[0]}'); a(f'v_mov_b32 v{d11}, {ST[0]}')
    for e in range(1, 5):
        a(f'v_cmp_eq_u32 vcc, {e}, v{v9}'); a(f'v_mov_b32 v{t+5}, {PT[e]}'); a(f'v_mov_b32 v{t+6}, {ST[e]}')
        a(f'v_cndmask_b32 v{v10}, v{v10}, v{t+5}, vcc'); a(f'v_cndmask_b32 v{d11}, v{d11}, v{t+6}, vcc')
    a(f'v_and_b32 v{v8}, 1, v{v6}'); a(f'v_mul_u32_u24 v{v4}, {2*PQ}, v{v8}')
    a(f'v_mul_u32_u24 v{v8}, {PN}, v{v7}'); a(f'v_add_u32 v{v4}, v{v4}, v{v8}'); a(f'v_lshl_add_u32 v{v4}, v{v5}, 4, v{v4}')
    a(f'v_add_u32 v{d11}, v{d11}, v{v4}'); a(f'v_add_u32 v{v4}, v{v10}, v{v4}')
    a(f'v_lshrrev_b32 v{v8}, 2, v{v5}'); a(f'v_and_b32 v{v5}, 3, v{v5}'); a(f'v_lshl_add_u32 v{v5}, v{v5}, 2, v{v8}')
    a(f'v_lshlrev_b32 v{v5}, 3, v{v5}'); a(f'v_add_u32 v{v5}, v{v5}, v{v7}'); a(f'v_lshlrev_b32 v{v5}, 4, v{v5}')
    a('s_lshl_b32 s66, s37, 6'); a('s_add_u32 s66, s66, s36'); a(f'v_add_u32 v{v5}, s66, v{v5}')
    a(f'v_mul_u32_u24 v{v5}, {D*2}, v{v5}'); a(f'v_lshl_add_u32 v{v5}, v{v6}, 4, v{v5}'); a('s_mul_i32 s66, s38, 160'); a(f'v_add_u32 v{v5}, s66, v{v5}')

VB0, VB1 = 128, 144
def p2h_setup():
    a('s_cmp_ge_u32 s38, 4'); a('s_cselect_b32 s55, 1, 0')
    a('s_sub_u32 s67, 16, s36'); a('s_xor_b32 s68, s37, 1')
    a('s_cmp_eq_u32 s55, 1')
    a('s_cselect_b32 s67, s67, s36'); a('s_cselect_b32 s68, s68, s37')
    a('s_and_b32 s60, s67, 3'); a('s_lshl_b32 s60, s60, 7'); a(f's_add_u32 s60, s60, {WS_FV}')
    a('s_lshl_b32 s67, s67, 1'); a('s_add_u32 s67, s67, s68'); a(f's_mul_i32 s67, s67, {VROW}'); a(f's_add_u32 s56, s67, {WS_V}')
    a('s_lshl_b32 s57, s55, 9'); a('s_sub_u32 s57, 256, s57')
def fv_addr(v, t):
    if DF:
        a(f'v_lshrrev_b32 v{v}, 4, v0'); a(f'v_lshlrev_b32 v{v}, 9, v{v}'); a(f'v_and_b32 v{t}, 15, v0'); a(f'v_lshl_add_u32 v{v}, v{t}, 2, v{v}')
        return
    a('s_sub_u32 s66, 7, s38'); a('s_sub_u32 s67, s38, 1'); a('s_max_i32 s67, s67, 0')
    a('s_cmp_ge_u32 s38, 4'); a('s_cselect_b32 s67, s66, s67'); a('s_cselect_b32 s66, s66, s38')
    a(f'v_mov_b32 v{v}, s66'); a(f'v_mov_b32 v{t}, s67'); a(f'v_bfe_u32 v{t+1}, v0, 4, 1'); a(f'v_cmp_eq_u32 vcc, 0, v{t+1}'); a(f'v_and_b32 v{t+1}, 15, v0')
    a(f'v_cndmask_b32 v{v}, v{t}, v{v}, vcc'); a(f'v_lshlrev_b32 v{v}, 9, v{v}'); a(f'v_lshl_add_u32 v{v}, v{t+1}, 2, v{v}')
def pre_loop():
    for r in range(3):
        final_addr(256*r, FA[3*r], FA[3*r+1], FA[3*r+2], 40)
    a('s_cmp_ge_u32 s3, 2'); a('s_cselect_b32 s66, -1, 0'); a(f'v_or_b32 v{FA[7]}, s66, v{FA[7]}')
    fv_addr(VFL, 40)
    if DF:
        for dst, ei in ((VA0, 's3'), (VA4, '4')):
            a('s_mul_i32 s66, s38, 80'); a(f's_lshl_b32 s67, {ei}, 4'); a('s_add_u32 s66, s66, s67'); a('v_add_u32 v40, s66, v3')
            a('v_sub_u32 v41, 640, v40'); a('s_cmp_eq_u32 s55, 1'); a('s_cselect_b64 vcc, -1, 0'); a('s_nop 1')
            a('v_cndmask_b32 v40, v40, v41, vcc')
            a('v_and_b32 v41, 1, v40'); a('v_mul_u32_u24 v41, 160, v41'); a('v_add_u32 v42, 335, v40'); a('v_lshrrev_b32 v42, 1, v42'); a('v_sub_u32 v42, v42, v41')
            a('v_cmp_eq_u32 vcc, 0, v40'); a(f'v_mul_u32_u24 v43, {4*17*2*VROW}, v2'); a('s_nop 0')
            a('v_cndmask_b32 v42, v42, 7, vcc')
            a(f'v_lshl_add_u32 v{dst}, v42, 4, v43')
        return
    a('s_mul_i32 s66, s38, 80'); a('v_add_u32 v40, s66, v3')
    a('v_add_u32 v41, 7, v40'); a('v_sub_u32 v42, 647, v40')
    a('s_cmp_eq_u32 s55, 1'); a('s_cselect_b64 vcc, -1, 0')
    a(f'v_mul_u32_u24 v43, {4*17*2*VROW}, v2')
    a('v_cndmask_b32 v40, v41, v42, vcc')
    a('v_lshl_add_u32 v43, v40, 4, v43')
    a('s_mul_i32 s66, s3, s57'); a(f'v_add_u32 v{VA0}, s66, v43')
    a('s_lshl_b32 s66, s57, 2'); a(f'v_add_u32 v{VA4}, s66, v43')
def pre_epilogue():
    for r in range(3): a(f'buffer_load_dwordx4 v[{XR[r]}:{XR[r]+3}], v{FA[3*r+1]}, s[4:7], 0 offen {XP_}')
def v_loads():
    L = a.label('L_vl')
    a('s_mov_b32 s72, s56')
    for i in range(4):
        a(f'buffer_load_dwordx4 v[{VB0+4*i}:{VB0+3+4*i}], v{VA0}, s[12:15], s72 offen {LDH}')
        if i < 3: a(f's_add_u32 s72, s72, {17*2*VROW}')
    a('s_cmp_lg_u32 s3, 0'); a(f's_cbranch_scc1 {L}')
    a('s_mov_b32 s72, s56')
    for i in range(4):
        a(f'buffer_load_dwordx4 v[{VB1+4*i}:{VB1+3+4*i}], v{VA4}, s[12:15], s72 offen {LDH}')
        if i < 3: a(f's_add_u32 s72, s72, {17*2*VROW}')
    a(f'{L}:')

a('L_p2last:')
a('s_waitcnt vmcnt(0)')
lds_arrive(12, 2)
read_nonce(2)
p2_setup()
srd_from(16, 54, S*D*2)
if FWL: lds_wait('L_fwok', 44, 2, 1)
a('L_p2join:')
tick(7, 27)
NLATE = opt('nlate', 6)
WTOUCH = opt('wtouch', 0)
if WTOUCH:
    a('s_cmp_eq_u32 s35, 0'); a('s_cbranch_scc1 L_nwt')
    a('s_lshl_b32 s66, s32, 2'); a('s_add_u32 s66, s66, s44'); a('s_mul_i32 s66, s66, 23040')
    a('s_and_b32 s67, s38, 4'); a(f's_mul_i32 s67, s67, {48*5120}'); a('s_add_u32 s66, s66, s67'); a(f's_add_u32 s66, s66, {WS_WDT}')
    a('v_lshlrev_b32 v4, 7, v0')
    if WTOUCH == 2:
        for st in range(6): wdt_reg(st)
    for i in range(3):
        a(f'buffer_load_dword v8, v4, s[12:15], s66 offen {LDW}')
        if i < 2: a('s_add_u32 s66, s66, 8192')
    if WTOUCH == 2: a('s_branch L_p2d')
    a('L_nwt:')
for st in range(6): wdt_reg(st)
NLD = opt('nld', 2)
a('s_cmp_eq_u32 s35, 0')
a('s_cbranch_scc1 L_p2ffn')
if NLD < 6:
    for st in (6, 7): wdt_lds(st)
if NLD < 4:
    lds_wait('L_c8d', 16, 4)
    for st in (8, 9): wdt_lds(st)
a('s_branch L_p2d')
a('L_p2ffn:')
if NLATE < 6:
    for st in (6, 7): wdt_lds(st)
if NLATE < 4:
    lds_wait('L_c8', 16, 4)
    for st in (8, 9): wdt_lds(st)
if NLATE < 2:
    lds_wait('L_c9', 20, 4)
    for st in (10, 11): wdt_lds(st)
if AUXV:
    a('s_cmp_lg_u32 s44, 3'); a('s_cbranch_scc1 L_p2d')
    p2h_setup(); fv_addr(8, 9)
    a('s_mov_b32 s79, 0')
    a('L_av:')
    a('buffer_load_dword v9, v8, s[12:15], s60 offen sc1')
    a('s_waitcnt vmcnt(0)')
    a('v_cmp_ne_u32 vcc, s43, v9'); a('s_cmp_eq_u64 vcc, 0'); a('s_cbranch_scc1 L_av_ok')
    a('s_add_u32 s79, s79, 1'); a(f's_cmp_ge_u32 s79, {AUXV}'); a('s_cbranch_scc1 L_p2d')
    a('s_branch L_av')
    a('L_av_ok:')
    lds_arrive(28, 8)
a('L_p2d:')
tick(7, 28)
a(f'v_add_u32 v2, s73, v1')
a(f'v_add_u32 v3, {2*STG}, v2')
a('v_min_u32 v4, 5, v0'); a('v_lshrrev_b32 v5, 1, v4'); a('v_and_b32 v4, 1, v4'); a('v_lshlrev_b32 v4, 2, v4'); a('v_lshl_add_u32 v6, v5, 4, v4')
a('s_lshl_b32 s76, s36, 8'); a('s_mul_i32 s77, s44, 48'); a('s_add_u32 s76, s76, s77'); a('s_lshl_b32 s77, s37, 3'); a('s_add_u32 s76, s76, s77'); a(f's_add_u32 s76, s76, {WS_FH}')
a('s_lshl_b32 s74, s36, 3'); a('s_lshl_b32 s75, s37, 2'); a('s_add_u32 s74, s74, s75')
a('s_mul_i32 s74, s74, 48'); a('s_mul_i32 s75, s44, 12'); a('s_add_u32 s74, s74, s75'); a('s_lshl_b32 s74, s74, 10')
for i in range(80): a(f'v_mov_b32 v{P2ACC+i}, 0')
a('s_barrier') if CBAR else lds_wait('L_own', 0, 4, 5 if SENT else 4)
tick(7, 29)
stamp(2)
if TONE:
    a('s_cmp_eq_u32 s35, 0'); a('s_cbranch_scc1 L_p2f')
    for st in range(6, 12 - NLATE): wdt_lds(st)
    a('L_p2f:')
    for st in range(12 - NLATE, 12): wdt_lds(st)
    if HDLY: a(f's_sleep {HDLY}')

tick(7, 32)
def hsoff(step):
    kidx(step)
    a('s_lshl_b32 s72, s72, 10'); a(f's_add_u32 s72, s72, s74')
    if SENT: a(f's_mov_b32 s{66 + step % 4}, s72')
def hld(step, ni):
    r = P2H + 16*(step % 3) + 4*ni
    L = []
    if ni: L.append(f's_add_u32 s72, s72, {48*1024}')
    L.append(f'buffer_load_dwordx4 v[{r}:{r+3}], v1, {HSRD}, s72 offen {LDH}')
    return L
def hpoll(name, kp):
    spin_begin(name)
    a(f'buffer_load_dword v4, v6, s[12:15], s76 offen sc1')
    a('s_waitcnt vmcnt(0)')
    a(f'v_cmp_ne_u32 vcc, s43, v{4+kp}')
    a('s_cmp_eq_u64 vcc, 0')
    spin_end(name)
if not SENT: hpoll('L_pollh0', 0)
else: a('s_waitcnt vmcnt(0)'); a('s_mov_b32 s79, 0')
if VGO and not HF1:
    a(f'v_mov_b32 v4, {L_CNT}'); a('v_mov_b32 v5, 1'); a('ds_write_b32 v4, v5 offset:40')
stamp(3)
tick(7, 33)
for st in range(3):
    hsoff(st)
    for ni in range(4):
        for ins in hld(st, ni): a(ins)
if HF1: lds_arrive(40, 4)
def pwrite(ni):
    return [f'ds_write_b128 v{2 if PT[ei] < 2*STG else 3}, v[{P2ACC+16*ei+4*ni}:{P2ACC+16*ei+4*ni+3}] offset:{PT[ei] + ni*PN - (0 if PT[ei] < 2*STG else 2*STG)}' for ei in range(5)]
for st in range(12):
    rem = min(2, 11 - st)
    RDD = opt('rdd', 2)
    if st == 6 - RDD: lds_wait('L_lw', 36, 4)
    if st < 9: hsoff(st + 3)
    if st == 11:
        a('v_and_b32 v2, 15, v0'); a('v_lshrrev_b32 v4, 4, v0')
        a(f'v_mul_u32_u24 v4, {PQ}, v4'); a('v_lshl_add_u32 v2, v2, 4, v4'); a('v_add_u32 v2, s73, v2'); a(f'v_add_u32 v3, {2*STG}, v2')
    a(f's_waitcnt vmcnt({4*rem})' + (' lgkmcnt(0)' if st >= 6 else ''))
    hb = P2H + 16*(st % 3)
    if SENT and not (HALF and st >= 6):
        a(f'L_hchk{st}:')
        a(f'v_max_u32 v4, v{hb}, v{hb+4}'); a(f'v_max3_u32 v4, v{hb+8}, v{hb+12}, v4')
        a('v_cmp_eq_u32 vcc, -1, v4'); a('s_cmp_lg_u64 vcc, 0')
        a(f's_cbranch_scc1 L_hretry{st}')
        a(f'L_hok{st}:')
    tick(7, 36 + st)
    w0 = P2W_R + 20*(st % 6)
    rd = []
    if 6 <= st + RDD <= 11:
        wr = P2W_R + 20*((st + RDD) % 6)
        for ei in range(5):
            o = P2STEP[st + RDD - 6] + ei*1024
            rd.append(f'ds_read_b128 v[{wr+4*ei}:{wr+4*ei+3}], v{2 if o < 2*STG else 3} offset:{o if o < 2*STG else o - 2*STG}')
    if F8 and st == 10:
        final_addr(0, 8, 9, 10, 11, rd.append)
    for ni in range(4):
        for ei in (range(5) if ni % 2 == 0 else range(4, -1, -1)):
            t = P2ACC + 16*ei + 4*ni
            h = hb + 4*ni
            a(f'v_mfma_f32_16x16x32_bf16 v[{t}:{t+3}], v[{w0+4*ei}:{w0+4*ei+3}], v[{h}:{h+3}], v[{t}:{t+3}]')
            for _ in range(3 if st == 10 else 1):
                if rd: a(rd.pop(0))
        if st < 9:
            for ins in hld(st + 3, ni): a(ins)
        if st == 11 and ni >= 2:
            for w in pwrite(ni - 2): a(w)
for w in pwrite(2): a(w)
a('s_nop 3')
for w in pwrite(3): a(w)
stamp(4)
tick(7, 48)
a('s_waitcnt lgkmcnt(0)')
a('s_barrier')
if F8:
    for p in range(5):
        reg = (8, 8, 8, 8, 10)[p]; off = (0, P2W, 2*P2W, 3*P2W, 0)[p]
        a(f'ds_read_b128 v[{56+8*p}:{59+8*p}], v{reg} offset:{off}')
        a(f'ds_read_b128 v[{60+8*p}:{63+8*p}], v{reg} offset:{off+PQ}')
    for p in range(1, 5):
        a(f's_waitcnt lgkmcnt({8 - 2*p})')
        for d in range(0, 8, 2): a(f'v_pk_add_f32 v[{56+d}:{57+d}], v[{56+d}:{57+d}], v[{56+8*p+d}:{57+8*p+d}]')
    for d in range(4): a(f'v_cvt_pk_bf16_f32 v{64+d}, v{56+2*d}, v{57+2*d}')
    a(f'buffer_store_dwordx4 v[64:67], v9, s[16:19], 0 offen {OUTP}')
tick_dump(7, 4)
a('s_branch L_fin2')
if SENT:
    for st in range(6 if HALF else 12):
        a(f'L_hretry{st}:')
        a('s_add_u32 s79, s79, 1'); a(f's_cmp_ge_u32 s79, {SPINMAX}')
        if STAMPS: a(f's_cselect_b32 s101, {60 + st}, s101')
        a(f's_cbranch_scc1 L_hok{st}')
        if RSL: a(f's_sleep {RSL}')
        a(f's_mov_b32 s77, s{66 + st % 4}')
        for ni in range(4):
            r = P2H + 16*(st % 3) + 4*ni
            if ni: a(f's_add_u32 s77, s77, {48*1024}')
            a(f'buffer_load_dwordx4 v[{r}:{r+3}], v1, {HSRD}, s77 offen {LDH}')
        a('s_waitcnt vmcnt(0)')
        a(f's_branch L_hchk{st}')

a('L_aux:')
if opt('aprio', 0): a(f"s_setprio {opt('aprio', 0)}")
common_srds()
AB = 248
a('v_mov_b32 v1, 0'); a(f'v_mov_b32 v3, {L_CNT}')
a('s_mov_b64 exec, 1')
a('s_cmp_lg_u32 s2, 0'); a('s_cbranch_scc1 L_aux_n0')
a('s_memrealtime s[66:67]'); a('s_waitcnt lgkmcnt(0)'); a('s_or_b32 s66, s66, 1'); a('v_mov_b32 v2, s66')
a('buffer_store_dword v2, v1, s[24:27], 0 offen sc1')
a('L_aux_n0:')
[a(f'ds_write_b32 v3, v1 offset:{4*i}') for i in range(14)]
a('s_mov_b64 exec, -1')
if CODEPF:
    a('s_getpc_b64 s[66:67]')
    a('L_pcref:')
    a(f's_sub_u32 s66, s66, L_pcref-{KNAME}'); a('s_subb_u32 s67, s67, 0')
    a('s_mul_i32 s68, s41, 9')
    a('v_add_u32 v4, s68, v0'); a('v_lshlrev_b32 v4, 7, v4')
    a(f'v_min_u32 v4, L_done-{KNAME}, v4')
    a('s_mov_b64 exec, 0x1ff')
    a(f'global_load_dword v{AB+7}, v4, s[66:67]')
    a('s_mov_b64 exec, -1')
if PFW:
    pf_first, pf_n0 = map(int, PFW.split(','))
    a('v_lshrrev_b32 v14, 4, v0'); a('s_mul_i32 s66, s30, 3'); a('v_add_u32 v14, s66, v14'); a('v_lshlrev_b32 v14, 8, v14')
    a('v_bfe_u32 v15, v0, 1, 3'); a('s_lshl_b32 s66, s32, 3'); a('v_add_u32 v15, s66, v15'); a(f'v_mul_u32_u24 v15, {F*2}, v15'); a('v_add_u32 v14, v14, v15')
    a('v_and_b32 v15, 1, v0'); a('v_lshl_add_u32 v14, v15, 7, v14')
    srd(a, 8, 48, D*F*2); srd(a, 52, 50, D*F*2)
    a(f's_add_u32 s64, s34, {pf_first}'); a(f's_mov_b32 s61, {pf_first}')
    PFC = opts.get('pfc', '1111111')
    a(f's_mov_b32 s60, {sum(int(c) << (4*i) for i, c in enumerate(PFC))}')
    def pfw():
        L = a.label('L_pf')
        a('s_and_b32 s62, s60, 15'); a('s_lshr_b32 s60, s60, 4')
        a(f'{L}_n:')
        a('s_cmp_eq_u32 s62, 0'); a(f's_cbranch_scc1 {L}')
        pfw1(L)
        a('s_sub_u32 s62, s62, 1'); a(f's_branch {L}_n')
        a(f'{L}:')
    def pfw0():
        L = a.label('L_pf')
        pfw1(L)
        a(f'{L}:')
    def pfw1(L):
        a('s_cmp_eq_u32 s35, 0'); a(f's_cbranch_scc1 {L}')
        a(f"s_cmp_ge_u32 s61, {opt('pfl', 10)}"); a(f's_cbranch_scc1 {L}')
        a('s_cmp_ge_u32 s64, 10'); a('s_cselect_b32 s66, 10, 0'); a('s_sub_u32 s64, s64, s66'); a(f's_mul_i32 s66, s64, {64*F*2}')
        a('s_mov_b32 exec_hi, 0xffff')
        a(f'buffer_load_dword v15, v14, s[8:11], s66 offen {PFP}'); a(f'buffer_load_dword v15, v14, s[52:55], s66 offen {PFP}')
        a('s_mov_b64 exec, -1')
        a('s_add_u32 s64, s64, 1'); a('s_add_u32 s61, s61, 1')
    for _ in range(pf_n0): pfw0()
else:
    def pfw(): pass
def wda_load():
    a('v_lshrrev_b32 v4, 4, v0'); a('v_and_b32 v5, 15, v0')
    a(f'v_mul_u32_u24 v4, {D*2}, v4'); a('v_lshl_add_u32 v4, v5, 4, v4')
    a(f's_mul_i32 s68, s56, {32*D*2}'); a('s_lshl_b32 s69, s57, 8'); a('s_add_u32 s68, s68, s69')
    for i in range(8):
        a(f's_mov_b32 m0, {L_WD + i*1024}')
        if i: a(f's_add_u32 s68, s68, {4*D*2}')
        else: a('s_nop 0')
        a(f'buffer_load_dwordx4 v4, s[20:23], s68 offen {WP_} lds')
if WDA:
    wi, wj, wk = map(int, WDA.split(','))
    a(f's_mul_hi_u32 s56, s2, {-(-(1<<32)//5)}'); a('s_mul_i32 s57, s56, 5'); a('s_sub_u32 s57, s2, s57')
    if wi < 0:
        a('s_cmp_ge_u32 s2, 240'); a('s_cbranch_scc1 L_wda0'); wda_load(); a('L_wda0:')
for i in range(48, 56): a(f'v_mov_b32 v{i}, 0')
a('v_lshrrev_b32 v4, 2, v0'); a('v_and_b32 v5, 3, v4'); a('v_bfe_u32 v6, v4, 3, 1'); a('v_lshl_or_b32 v5, v6, 2, v5'); a('v_lshlrev_b32 v5, 1, v5')
a('s_and_b32 s66, s32, 3'); a('s_lshl_b32 s66, s66, 2')
a('v_and_b32 v6, 3, v0'); a('v_add_u32 v6, s66, v6'); a('v_xor_b32 v5, v5, v6')
a('v_lshlrev_b32 v4, 8, v4'); a(f'v_lshl_add_u32 v{AB+1}, v5, 4, v4')
a('s_lshr_b32 s66, s32, 2'); a('s_lshl_b32 s66, s66, 14'); a(f'v_add_u32 v{AB+1}, s66, v{AB+1}')
a('s_cmp_eq_u32 s35, 0'); a('s_cbranch_scc1 L_aux_w')
a('s_and_b32 s67, s32, 3'); a(f's_mul_i32 s67, s67, {20*128}'); a('s_add_u32 s66, s66, s67')
a(f'v_lshlrev_b32 v{AB+1}, 4, v0'); a(f'v_add_u32 v{AB+1}, s66, v{AB+1}')
a('L_aux_w:')
a('s_mov_b32 s46, 0')
a('s_lshl_b32 s77, s29, 1'); a('s_add_u32 s77, s77, s31'); a('s_lshl_b32 s77, s77, 11'); a('s_lshr_b32 s67, s32, 2'); a('s_lshl_b32 s67, s67, 10'); a('s_add_u32 s77, s77, s67'); a(f's_add_u32 s77, s77, {WS_WP}')
a('s_and_b32 s67, s32, 3'); a('s_cmp_eq_u32 s35, 1'); a('s_cselect_b32 s68, 20, 32'); a('s_mul_i32 s67, s67, s68'); a('s_lshl_b32 s67, s67, 3'); a('s_add_u32 s77, s77, s67')
a(f'v_min_u32 v{AB+6}, 47, v0'); a(f'v_lshlrev_b32 v{AB+6}, 2, v{AB+6}')
a('s_mul_i32 s74, s38, 80'); a('s_add_u32 s75, s74, 79'); a('s_lshr_b32 s74, s74, 7'); a('s_lshr_b32 s75, s75, 7')
a('s_lshl_b32 s74, s74, 8'); a('s_lshl_b32 s75, s75, 8'); a(f's_add_u32 s74, s74, {WS_FW}'); a(f's_add_u32 s75, s75, {WS_FW}')
if SENT:
    for i in range(4): a(f'v_mov_b32 v{8+i}, -1')
    a('v_lshlrev_b32 v12, 4, v0')
    a(f's_mul_i32 s76, s28, {8*48*1024}')
    if RDFT: a('s_mul_i32 s67, s30, 12288')
    else: a('s_lshl_b32 s67, s29, 12')
    a('s_add_u32 s76, s76, s67')
a('s_mov_b32 s47, 0'); a('s_mov_b32 s42, 0')
a('s_waitcnt lgkmcnt(0)')
a('L_aux_l:')
tick(7, ('s47', 0))
a('s_barrier')
tick(7, ('s47', 16))
pfw()
a(f'v_add_u32 v{AB+3}, s46, v{AB+1}')
a('s_add_u32 s66, s47, s35') if opt('non2', 0) else a('s_add_u32 s66, s47, 1')
a(f's_cmp_lg_u32 s47, {NONIT-1}'); a('s_cbranch_scc1 L_aux_nb')
a('s_mov_b64 exec, 1'); a('buffer_load_dword v2, v1, s[24:27], 0 offen sc1'); a('s_mov_b64 exec, -1')
a('L_aux_nb:')
a(f's_cmp_lg_u32 s66, {NONIT+1}'); a('s_cbranch_scc1 L_aux_na')
a('s_mov_b32 s79, 0')
a('L_non:')
a('s_waitcnt vmcnt(0)')
a('v_readfirstlane_b32 s43, v2')
a('s_cmp_lg_u32 s43, 0'); a('s_cbranch_scc1 L_non_ok')
a('s_add_u32 s79, s79, 1'); a(f's_cmp_ge_u32 s79, {SPINMAX}'); (a('s_cselect_b32 s101, 51, s101') if STAMPS else None); a('s_cbranch_scc1 L_non_ok')
a('s_sleep 4')
a('s_mov_b64 exec, 1'); a('buffer_load_dword v2, v1, s[24:27], 0 offen sc1'); a('s_mov_b64 exec, -1')
a('s_branch L_non')
a('L_non_ok:')
a('v_mov_b32 v2, s43'); a(f'v_mov_b32 v3, {L_NON}'); a('ds_write_b32 v3, v2')
if not WDA:
    a('s_cmp_ge_u32 s2, 240'); a('s_cbranch_scc1 L_aux_na')
    a(f's_mul_hi_u32 s66, s2, {-(-(1<<32)//5)}'); a('s_mul_i32 s67, s66, 5'); a('s_sub_u32 s67, s2, s67')
    a('s_lshl_b32 s67, s67, 8'); a('s_lshl_b32 s66, s66, 2'); a('s_add_u32 s66, s66, s67'); a(f's_add_u32 s66, s66, {WS_FW}')
    a('s_mov_b64 exec, 1'); a('buffer_store_dword v2, v1, s[12:15], s66 offen sc1'); a('s_mov_b64 exec, -1')
a('L_aux_na:')
if WDA:
    a('s_cmp_ge_u32 s2, 240'); a('s_cbranch_scc1 L_aux_nw')
    if wi >= 0:
        a(f's_cmp_lg_u32 s47, {wi}'); a('s_cbranch_scc1 L_aux_w1'); wda_load(); a('L_aux_w1:')
    a(f's_cmp_lg_u32 s47, {wj}'); a('s_cbranch_scc1 L_aux_w2')
    a('v_lshrrev_b32 v4, 2, v0'); a('v_lshlrev_b32 v4, 8, v4'); a('v_and_b32 v5, 3, v0'); a('v_lshl_add_u32 v4, v5, 3, v4')
    a(f'v_add_u32 v4, {L_WD}, v4')
    a('v_lshlrev_b32 v6, 4, v0')
    a('s_waitcnt vmcnt(0)')
    for e in range(8):
        for b in range(2):
            a(f'ds_read_b64_tr_b16 v[{64+4*e+2*b}:{65+4*e+2*b}], v4 offset:{32*e + 4096*b}')
    a('s_lshl_b32 s63, s57, 3')
    a(f's_mul_i32 s65, s56, 5120'); a(f's_add_u32 s65, s65, {WS_WDT}')
    a('s_waitcnt lgkmcnt(0)')
    for e in range(8):
        a(f's_add_u32 s68, s63, {e}')
        a(f's_mul_hi_u32 s69, s68, {-(-(1<<32)//5)}')
        a('s_mul_i32 s70, s69, 5'); a('s_sub_u32 s70, s68, s70')
        a(f's_mul_i32 s69, s69, {48*5120}'); a('s_lshl_b32 s70, s70, 10')
        a('s_add_u32 s69, s69, s70'); a('s_add_u32 s69, s69, s65')
        a(f'buffer_store_dwordx4 v[{64+4*e}:{67+4*e}], v6, s[12:15], s69 offen sc1')
    a('L_aux_w2:')
    a(f's_cmp_lg_u32 s47, {wk}'); a('s_cbranch_scc1 L_aux_nw')
    a('s_lshl_b32 s67, s57, 8'); a('s_lshl_b32 s66, s56, 2'); a('s_add_u32 s66, s66, s67'); a(f's_add_u32 s66, s66, {WS_FW}')
    a('s_waitcnt vmcnt(0)')
    a('s_mov_b64 exec, 1'); a('buffer_store_dword v2, v1, s[12:15], s66 offen sc1'); a('s_mov_b64 exec, -1')
    a('L_aux_nw:')
def fw_ask():
    a(f'buffer_load_dword v{AB+2}, v{AB+6}, s[12:15], s74 offen sc1'); a(f'buffer_load_dword v{AB+3}, v{AB+6}, s[12:15], s75 offen sc1')
def fw_ask2():
    a(f'buffer_load_dword v62, v{AB+6}, s[12:15], s74 offen sc1'); a(f'buffer_load_dword v63, v{AB+6}, s[12:15], s75 offen sc1')
def fw_check(nm):
    a('s_mov_b32 s79, 0')
    a(f'{nm}:')
    a('s_waitcnt vmcnt(0)')
    a('v_cmp_ne_u32 vcc, s43, v62'); a('v_cmp_ne_u32 s[66:67], s43, v63'); a('s_or_b64 vcc, vcc, s[66:67]')
    a(f's_cbranch_scc0 {nm}_ok')
    a('s_add_u32 s79, s79, 1'); a(f's_cmp_ge_u32 s79, {SPINMAX}'); (a('s_cselect_b32 s101, 52, s101') if STAMPS else None); a(f's_cbranch_scc1 {nm}_ok')
    a('s_sleep 4')
    fw_ask2()
    a(f's_branch {nm}')
    a(f'{nm}_ok:')

T0, T1 = AB + 4, AB + 5
if SENT:
    RS0 = opt('rs0', 2)
    def resets(n):
        L = a.label('L_rs')
        a(f's_cmp_eq_u32 s35, {0 if RDFT else 1}'); a(f's_cbranch_scc1 {L}')
        if RDFT:
            for t in range(n // 12):
                for g in range(3):
                    for i in ((1, 3) if HALF else range(4)): a(f'buffer_store_dwordx4 v[8:11], v12, s[12:15], s76 offen offset:{i*1024} sc1')
                    a(f's_add_u32 s76, s76, {4096 if g < 2 else 48*1024 - 8192}')
        else:
            for i in range(n):
                if not (HALF and i % 2 == 0): a(f'buffer_store_dwordx4 v[8:11], v12, s[12:15], s76 offen offset:{(i % 4)*1024} {RSP}')
                if i % 4 == 3: a(f's_add_u32 s76, s76, {48*1024}')
        a(f'{L}:')
    if RSEQ:
        assert sum(map(int, RSEQ)) == 8
        a(f's_lshr_b32 s63, {sum(int(c) << (4*i) for i, c in enumerate(RSEQ[:5]))}, s42'); a('s_and_b32 s63, s63, 15'); a('s_add_u32 s42, s42, 4')
        a('L_aux_rr:')
        a('s_cmp_eq_u32 s63, 0'); a('s_cbranch_scc1 L_aux_nr')
        resets(12)
        a('s_sub_u32 s63, s63, 1'); a('s_branch L_aux_rr')
    else:
        a(f's_cmp_lt_u32 s47, {RS0}'); a('s_cbranch_scc1 L_aux_nr')
        resets(12 if RDFT else 8)
    a('L_aux_nr:')
a('s_cmp_eq_u32 s35, 1'); a('s_cbranch_scc1 L_aux_c')
for i in range(4): a(f'ds_read_b128 v[{24+4*i}:{27+4*i}], v{AB+3} offset:{i*4096}')
a('s_waitcnt lgkmcnt(0)')
for i in range(4):
    for d in range(4):
        r = 24 + 4*i + d
        a(f'v_lshlrev_b32 v{T0}, 16, v{r}'); a(f'v_and_b32 v{T1}, 0xffff0000, v{r}')
        a(f'v_add_f32 v{48+2*d}, v{48+2*d}, v{T0}'); a(f'v_add_f32 v{49+2*d}, v{49+2*d}, v{T1}')
a('s_branch L_aux_x')
a('L_aux_c:')
if NOCS: a('s_branch L_aux_x')
if DF: a('s_bitcmp1_b32 s47, 0'); a('s_cbranch_scc0 L_aux_x')
def csum():
    for i in range(3): a(f'ds_read_b128 v[{24+4*i}:{27+4*i}], v{AB+3} offset:{i*1024}')
    a('s_waitcnt lgkmcnt(0)')
    for i in range(3):
        for d in range(4):
            r = 24 + 4*i + d
            a(f'v_lshlrev_b32 v{T0}, 16, v{r}'); a(f'v_and_b32 v{T1}, 0xffff0000, v{r}')
            a(f'v_add_f32 v{48+2*i}, v{48+2*i}, v{T0}'); a(f'v_add_f32 v{49+2*i}, v{49+2*i}, v{T1}')
if not NOCS: csum()
a('L_aux_x:')
a(f's_add_u32 s46, s46, {STG}'); a(f's_cmp_eq_u32 s46, {3*STG}'); a('s_cselect_b32 s46, 0, s46')
a('s_add_u32 s47, s47, 1'); a('s_cmp_lt_u32 s47, 5'); a('s_cbranch_scc1 L_aux_l')
def fr_pub():
    a('s_lshl_b32 s66, s28, 8'); a('s_lshl_b32 s67, s29, 2'); a('s_add_u32 s66, s66, s67'); a(f's_add_u32 s66, s66, {WS_FH}')
    a('v_mov_b32 v4, s43'); a('v_mov_b32 v5, 0')
    a('s_waitcnt vmcnt(0)')
    a('s_mov_b64 exec, 1'); a('buffer_store_dword v4, v5, s[12:15], s66 offen sc1'); a('s_mov_b64 exec, -1')
tick(7, 5)
a('s_barrier')
tick(7, 21)
if FRB == 5: fr_pub()
pfw()
if RSEQ: resets(12*int(RSEQ[5]))
elif RDFT: resets(12*(RS0 + 3 - (RS0 + 3)//2))
elif RS0 >= 2: resets(12 if RS0 == 4 else 8)
p2_setup()
def red8(regs):
    for mod in ('quad_perm:[1,0,3,2]', 'quad_perm:[2,3,0,1]', 'row_half_mirror'):
        a('s_nop 1')
        for r in regs: a(f'v_add_f32_dpp v{r}, v{r}, v{r} {mod} row_mask:0xf bank_mask:0xf')
a('s_cmp_eq_u32 s35, 1'); a('s_cbranch_scc1 L_aux_pc')
for mod in ('row_ror:4', 'row_ror:8'):
    a('s_nop 1')
    for r in range(48, 56): a(f'v_add_f32_dpp v{r}, v{r}, v{r} {mod} row_mask:0xf bank_mask:0xf')
for sw in ('v_permlane16_swap_b32', 'v_permlane32_swap_b32'):
    for r in range(48, 56): a(f'v_mov_b32 v{r-24}, v{r}')
    a('s_nop 1')
    for r in range(48, 56): a(f'{sw} v{r}, v{r-24}')
    a('s_nop 1')
    for r in range(48, 56): a(f'v_add_f32 v{r}, v{r}, v{r-24}')
for d in range(4):
    a(f'v_cmp_eq_u32 vcc, {d}, v6') if d else a('v_lshrrev_b32 v6, 2, v0')
    if d == 0:
        a('v_mov_b32 v24, v48'); a('v_mov_b32 v26, v49')
    else:
        a('s_nop 1'); a(f'v_cndmask_b32 v24, v24, v{48+2*d}, vcc'); a(f'v_cndmask_b32 v26, v26, v{49+2*d}, vcc')
a('v_mov_b32 v25, s43'); a('v_mov_b32 v27, s43')
a('v_and_b32 v4, 3, v0'); a('v_lshlrev_b32 v4, 6, v4'); a('v_lshl_add_u32 v4, v6, 4, v4')
a('s_mov_b64 exec, 0xffff')
a('buffer_store_dwordx4 v[24:27], v4, s[12:15], s77 offen sc1')
a('s_branch L_aux_pub')
a('L_aux_pc:')
if NOCS: a('s_branch L_aux_pub')
if not NOCS:
    if DF:
        a('s_cmp_eq_u32 s31, 1'); a('s_cbranch_scc1 L_aux_c5')
        a(f'v_add_u32 v{AB+3}, s46, v{AB+1}')
        csum()
        a('L_aux_c5:')
        a('s_and_b32 s66, s30, 1'); a('s_lshl_b32 s66, s66, 30')
    for i in range(3):
        a(f'v_add_f32 v{48+i*2}, v{48+i*2}, v{49+i*2}')
        if DF: a(f'v_mul_f32 v{48+i*2}, s66, v{48+i*2}')
    red8([48, 50, 52])
    for i in range(3): a(f'v_mov_b32 v{49+i*2}, s43')
    a('s_mov_b32 exec_lo, 0x01010101'); a('s_mov_b32 exec_hi, 0x01010101')
    a('buffer_store_dwordx2 v[48:49], v0, s[12:15], s77 offen sc1')
    a('buffer_store_dwordx2 v[50:51], v0, s[12:15], s77 offen offset:64 sc1')
    a('s_mov_b32 exec_hi, 0')
    a('buffer_store_dwordx2 v[52:53], v0, s[12:15], s77 offen offset:128 sc1')
a('L_aux_pub:')
a('s_mov_b64 exec, -1')
a('s_lshl_b32 s48, s28, 13'); a(f's_add_u32 s48, s48, {WS_XP}'); a('s_add_u32 s50, s48, 4096')
a('s_lshl_b32 s49, s29, 12'); a(f's_add_u32 s49, s49, {WS_WP}')
def gather():
    for i in range(8): a(f'buffer_load_dwordx4 v[{8+4*i}:{11+4*i}], v1, s[12:15], s{48 if i < 4 else 50} offen offset:{(i%4)*1024} sc1')
    Lg = a.label('L_gw')
    if NOCS: a('s_cmp_eq_u32 s35, 1'); a(f's_cbranch_scc1 {Lg}')
    for i in range(4): a(f'buffer_load_dwordx4 v[{40+4*i}:{43+4*i}], v1, s[12:15], s49 offen offset:{i*1024} sc1')
    a(f'{Lg}:')
    a(f'buffer_load_dword v{AB+1}, v{AB}, s[12:15], s65 offen sc1')
    if FWL: fw_ask2()
a(f's_mov_b32 s65, {WS_FH}')
if RDFT:
    a(f'v_and_b32 v{AB}, 3, v0'); a(f'v_lshlrev_b32 v{AB}, 2, v{AB}'); a('s_lshl_b32 s69, s36, 8'); a('s_add_u32 s69, s69, 48'); a(f'v_add_u32 v{AB}, s69, v{AB}')
    a('s_lshl_b32 s69, s28, 8'); a('s_lshl_b32 s63, s30, 2'); a('s_add_u32 s69, s69, s63'); a('s_add_u32 s69, s69, 48'); a('v_mov_b32 v4, s69')
    a('v_cmp_gt_u32 vcc, 16, v0'); a('s_nop 1'); a(f'v_cndmask_b32 v{AB}, v4, v{AB}, vcc')
else:
    a(f'v_min_u32 v{AB}, 11, v0'); a(f'v_lshlrev_b32 v{AB}, 2, v{AB}'); a('s_lshl_b32 s69, s36, 8'); a(f'v_add_u32 v{AB}, s69, v{AB}')
GAT = opt('gat', 8)
tick(7, 6)
a('s_barrier')
tick(7, 22)
if FRB == 6: fr_pub()
pfw()
if RSEQ: resets(12*int(RSEQ[6]))
elif RDFT: resets(12*((RS0 + 3)//2))
elif RS0 >= 3: resets(12 if RS0 == 4 else 8)
if not FWL: fw_ask2()
if GAT == 68:
    a('s_cmp_eq_u32 s35, 0'); a('s_cbranch_scc1 L_g6'); gather(); a('L_g6:')
tick(7, 7)
a('s_barrier')
tick(7, 23)
if not FWL: fw_check('L_pollwf')
else: a('s_waitcnt vmcnt(0)')
if FRB == 7: fr_pub()
if GAT == 7: gather()
if GAT == 78:
    a('s_cmp_eq_u32 s35, 0'); a('s_cbranch_scc1 L_g7'); gather(); a('L_g7:')
a('s_cmp_eq_u32 s35, 1'); a(f's_cselect_b32 s69, {0 if NOCS else 40}, 64'); a('v_cmp_gt_u32 s[76:77], s69, v0')
if GAT == 68: a('s_cmp_eq_u32 s35, 1'); a('s_cbranch_scc1 L_g8x')
tick(7, 8)
a('s_barrier')
tick(7, 24)
if GAT in (8, 68): gather()
a('L_g8x:')
if GAT == 78:
    a('s_cmp_eq_u32 s35, 1'); a('s_cbranch_scc1 L_g8'); gather(); a('L_g8:')
a('s_mov_b32 s79, 0')
a('s_waitcnt vmcnt(0)')
a('L_gchk:')
a(f'v_xor_b32 v2, s43, v{AB+1}'); a('s_sub_u32 s64, s35, 1' if RDFT and not FRSEP else 's_mov_b32 s64, 0'); a('v_and_b32 v2, s64, v2')
for i in range(0, 8): a(f'v_xor_b32 v3, s43, v{10+4*i}'); a('v_or_b32 v2, v2, v3')
a('v_xor_b32 v4, s43, v41')
for r in (43, 45, 47, 49, 51, 53, 55): a(f'v_xor_b32 v3, s43, v{r}'); a('v_or_b32 v4, v4, v3')
if FWL: a('v_xor_b32 v3, s43, v62'); a('v_or_b32 v2, v2, v3'); a('v_xor_b32 v3, s43, v63'); a('v_or_b32 v2, v2, v3')
a('v_cmp_ne_u32 vcc, 0, v4'); a('s_and_b64 s[62:63], vcc, s[76:77]')
a('v_cmp_ne_u32 vcc, 0, v2'); a('s_or_b64 s[62:63], s[62:63], vcc')
a('s_cbranch_scc0 L_gok')
a('s_add_u32 s79, s79, 1'); a(f's_cmp_ge_u32 s79, {SPINMAX}'); (a('s_cselect_b32 s101, 50, s101') if STAMPS else None); a('s_cbranch_scc1 L_gok')
a('s_sleep 4')
gather()
a('s_waitcnt vmcnt(0)')
a('s_branch L_gchk')
a('L_gok:')
if FWL: lds_arrive(44, 2)
tick(7, 9)
for h in range(2):
    for d in range(2):
        b = 8 + 4*h + d
        a(f'v_add_f32 v{b}, v{b}, v{b+8}'); a(f'v_add_f32 v{b+16}, v{b+16}, v{b+24}'); a(f'v_add_f32 v{b}, v{b}, v{b+16}')
    a(f'v_add_f32 v{40+4*h}, v{40+4*h}, v{48+4*h}'); a(f'v_add_f32 v{41+4*h}, v{42+4*h}, v{50+4*h}')
a('v_lshlrev_b32 v2, 3, v0'); a(f'v_add_u32 v2, {L_CS}, v2')
a('ds_write_b64 v2, v[40:41]'); a('ds_write_b64 v2, v[44:45] offset:512')
for (s_, q_, ro, mo) in ((8, 9, 16, 18), (12, 13, 17, 19)):
    a(f'v_mul_f32 v{mo}, {1.0/D!r}, v{s_}')
    a(f'v_mul_f32 v{q_}, {1.0/D!r}, v{q_}')
    a(f'v_fma_f32 v{q_}, -v{mo}, v{mo}, v{q_}')
    a(f'v_max_f32 v{q_}, 0, v{q_}')
    rbf(mo); rbf(q_)
    a(f'v_add_f32 v{q_}, 0x3727c5ac, v{q_}')
    rbf(q_)
    a(f'v_sqrt_f32 v{q_}, v{q_}'); a('s_nop 0')
    rbf(q_)
    a(f'v_rcp_f32 v{ro}, v{q_}')
    a(f'v_fmac_f32 v{s_}, {-float(D)!r}, v{mo}')
    a(f'v_mul_f32 v{s_}, v{s_}, v{ro}')
a('v_lshlrev_b32 v2, 2, v0'); a(f'v_add_u32 v2, {L_R}, v2')
a(f'ds_write_b32 v2, v8 offset:{L_A0 - L_R}'); a(f'ds_write_b32 v2, v12 offset:{L_A0 - L_R + 256}')
a('ds_write_b32 v2, v16'); a('ds_write_b32 v2, v17 offset:256'); a('ds_write_b32 v2, v18 offset:512'); a('ds_write_b32 v2, v19 offset:768')
lds_arrive(24, 2)
tick(7, 10)
if GAT == 68:
    a('s_cmp_eq_u32 s35, 0'); a('s_cbranch_scc1 L_g8y')
    a('s_barrier')
    a('L_g8y:')
a(f'v_cmp_ne_u32 vcc, s43, v{AB+1}'); a('s_cmp_eq_u64 vcc, 0'); a('s_cbranch_scc1 L_pollr_ok')
spin_begin('L_pollr')
a(f'buffer_load_dword v{AB+1}, v{AB}, s[12:15], s65 offen sc1')
a('s_waitcnt vmcnt(0)')
a(f'v_cmp_ne_u32 vcc, s43, v{AB+1}'); a('s_cmp_eq_u64 vcc, 0')
spin_end('L_pollr')
if not CBAR: lds_arrive(0, 2)
if RDFT and FRSEP: lds_arrive(48, 2)
if opt('aprio', 0): a('s_setprio 0')
a('s_branch L_p2join')

a('L_compute:')
common_srds()
a(f's_mov_b32 s50, {(-2*STG) & 0xffffffff}'); a(f's_mov_b32 s51, {STG}')
a('s_mov_b32 s46, 0'); a('s_mov_b32 s47, 0')
p2h_setup()
a('v_lshrrev_b32 v2, 4, v0')
a('v_and_b32 v3, 15, v0')
a('v_bfe_u32 v6, v0, 1, 3'); a('v_xor_b32 v6, v6, v2')
def wd_issue():
    Lw = a.label('L_nowd')
    a(f"s_cmp_ge_u32 s2, {0 if opt('nowd', 0) else 240}")
    a(f's_cbranch_scc1 {Lw}')
    a(f's_mul_hi_u32 s76, s2, {-(-(1<<32)//5)}'); a('s_mul_i32 s77, s76, 5'); a('s_sub_u32 s77, s2, s77')
    a('v_lshrrev_b32 v36, 2, v0'); a('v_and_b32 v37, 3, v0')
    a(f'v_mul_u32_u24 v38, {D*2}, v36'); a('v_lshl_add_u32 v38, v37, 4, v38')
    a(f's_mul_i32 s68, s76, {32*D*2}'); a('s_lshl_b32 s69, s77, 8'); a('s_add_u32 s68, s68, s69'); a('s_lshl_b32 s69, s3, 6'); a('s_add_u32 s68, s68, s69')
    a('s_lshl_b32 s70, s3, 11'); a(f's_add_u32 s70, s70, {L_WD}')
    a('s_mov_b32 m0, s70'); a('s_nop 0')
    a(f'buffer_load_dwordx4 v38, s[20:23], s68 offen {WP_} lds')
    a('s_add_u32 m0, s70, 1024'); a(f's_add_u32 s68, s68, {16*D*2}')
    a(f'buffer_load_dwordx4 v38, s[20:23], s68 offen {WP_} lds')
    a(f'{Lw}:')
WDL = opt('wdlate', 0) if not WDA else 9
if WDL == 0: wd_issue()
def wd_finish():
    if WDA: return
    if WDL == 2: wd_issue()
    L = a.label('L_wdf')
    a(f"s_cmp_ge_u32 s2, {0 if opt('nowd', 0) else 240}"); a(f's_cbranch_scc1 {L}')
    a('v_lshlrev_b32 v36, 6, v36'); a('v_lshl_add_u32 v36, v37, 3, v36'); a('v_add_u32 v36, s70, v36')
    a('v_lshlrev_b32 v37, 4, v0')
    a('s_lshl_b32 s77, s77, 3'); a('s_lshl_b32 s68, s3, 1'); a('s_add_u32 s77, s77, s68')
    a(f's_mul_i32 s76, s76, 5120'); a(f's_add_u32 s76, s76, {WS_WDT}')
    a('s_waitcnt vmcnt(0)')
    for e in range(2):
        for b in range(2):
            a(f'ds_read_b64_tr_b16 v[{48+4*e+2*b}:{49+4*e+2*b}], v36 offset:{32*e + 1024*b}')
    for e in range(2):
        a(f's_add_u32 s68, s77, {e}')
        a(f's_mul_hi_u32 s69, s68, {-(-(1<<32)//5)}')
        a('s_mul_i32 s70, s69, 5'); a('s_sub_u32 s70, s68, s70')
        a(f's_mul_i32 s69, s69, {48*5120}'); a('s_lshl_b32 s70, s70, 10')
        a('s_add_u32 s69, s69, s70'); a('s_add_u32 s69, s69, s76')
        a('s_waitcnt lgkmcnt(0)')
        a(f'buffer_store_dwordx4 v[{48+4*e}:{51+4*e}], v37, s[12:15], s69 offen sc1')
    a(f'{L}:')
pre_loop()
if WDL == 1: wd_issue()
a('s_cmp_eq_u32 s35, 1')
a('s_cbranch_scc1 L_dft')
def interleave(M, R):
    out = []; R = list(R)
    for m in M:
        out.append(m)
        if R: out.append(R.pop(0))
    return out + R
tails = []
def mid_sync(last):
    L = a.label('L_ms')
    a('s_cmp_ge_u32 s47, 8'); a(f's_cbranch_scc1 {L}_t')
    a('s_barrier')
    a(f'{L}_b:')
    tails.append((L, last))
CNTRD = 'ds_read2_b32 v[14:15], v6 offset0:3 offset1:6'
def emit_tails():
    for L, last in tails:
        a(f'{L}_t:')
        a('s_mov_b64 exec, 1')
        a('s_cmp_eq_u32 s47, 9'); a(f's_cbranch_scc1 {L}_9')
        a('ds_add_u32 v6, v5 offset:16')
        a('s_mov_b64 exec, -1')
        a('v_readfirstlane_b32 s78, v14')
        a('s_cmp_ge_u32 s78, 3'); a(f's_cbranch_scc1 {L}_b')
        lds_wait(f'{L}_w', 12, 14, 3)
        a(f's_branch {L}_b')
        a(f'{L}_9:')
        a('ds_add_u32 v6, v5 offset:20')
        a('s_mov_b64 exec, -1')
        a(f's_branch {last}')
    tails.clear()
def stats_wait(name):
    a('v_readfirstlane_b32 s78, v15')
    a('s_cmp_ge_u32 s78, 1'); a(f's_cbranch_scc1 {name}_ok')
    lds_wait(name, 24, 14, 1)
def slot_advance():
    a('s_add_u32 s46, s46, 1'); a('s_cmp_eq_u32 s46, 3'); a('s_cselect_b32 s42, s50, s51'); a('s_cselect_b32 s46, 0, s46')
ACC = 128
def T16(mat, mi, ni): return ACC + 64*mat + 16*mi + 4*ni
FR = 32
def fW(p, mat, mi): return FR + 48*p + 16*mat + 4*mi
def fX(p, ni): return FR + 48*p + 32 + 4*ni
AW, AX = 8, 12
a('s_and_b32 s44, s3, 1'); a('s_lshr_b32 s45, s3, 1')
SPF = opts.get('spf', '')
if SPF:
    a('s_load_dwordx4 s[80:83], s[0:1], 48') if STAMPS == 0 else a('s_load_dwordx4 s[72:75], s[0:1], 48')
    wb = 80 if STAMPS == 0 else 72
    a('s_waitcnt lgkmcnt(0)')
    a('s_cmp_ge_u32 s3, 2'); a('s_cbranch_scc1 L_spx')
    a('s_cmp_eq_u32 s3, 1'); a(f's_cselect_b32 s62, s{wb+2}, s{wb}'); a(f's_cselect_b32 s63, s{wb+3}, s{wb+1}')
    a(f's_mul_i32 s66, s32, {8*F*2}'); a('s_lshl_b32 s67, s29, 8'); a('s_add_u32 s66, s66, s67'); a('s_add_u32 s62, s62, s66'); a('s_addc_u32 s63, s63, 0')
    for dc in map(int, SPF.split(',')):
        a(f's_add_u32 s66, s34, {dc}'); a('s_cmp_ge_u32 s66, 10'); a('s_cselect_b32 s67, 10, 0'); a('s_sub_u32 s66, s66, s67'); a(f's_mul_i32 s66, s66, {64*F*2}')
        a('s_add_u32 s52, s62, s66'); a('s_addc_u32 s53, s63, 0')
        for i in range(16): a(f's_load_dword s54, s[52:53], {(i >> 1)*F*2 + (i & 1)*128}')
    a('s_branch L_spd')
    a('L_spx:')
    a('s_lshl_b32 s66, s33, 1'); a('s_add_u32 s66, s66, s44'); a('s_lshl_b32 s66, s66, 4'); a('s_add_u32 s66, s66, s28'); a(f's_mul_i32 s66, s66, {D*2}')
    a(f's_add_u32 s66, s66, {4*128*D*2}'); a('s_add_u32 s62, s64, s66'); a('s_addc_u32 s63, s65, 0')
    for dc in map(int, SPF.split(',')):
        a(f's_add_u32 s66, s34, {dc}'); a('s_cmp_ge_u32 s66, 10'); a('s_cselect_b32 s67, 10, 0'); a('s_sub_u32 s66, s66, s67'); a('s_lshl_b32 s66, s66, 7')
        a('s_add_u32 s52, s62, s66'); a('s_addc_u32 s53, s63, 0')
        for i in range(8): a(f's_load_dword s54, s[52:53], {(i-4)*128*D*2}')
        a(f's_add_u32 s52, s52, {8*128*D*2}'); a('s_addc_u32 s53, s53, 0')
        for i in range(8): a(f's_load_dword s54, s[52:53], {(i-4)*128*D*2}')
    a('L_spd:')
a('v_bfe_u32 v7, v0, 2, 2')
a('v_lshl_add_u32 v4, v2, 3, v7'); a('v_lshlrev_b32 v4, 8, v4')
a('v_bfe_u32 v5, v0, 1, 1'); a('v_lshl_add_u32 v4, v5, 4, v4')
a('v_and_b32 v5, 1, v0'); a('v_lshl_add_u32 v4, v5, 3, v4')
a('v_and_b32 v5, 1, v2'); a('v_lshl_or_b32 v5, v5, 2, v7')
for mi in range(4):
    a('s_lshl_b32 s66, s44, 2'); a(f's_add_u32 s66, s66, {mi}')
    a('v_xor_b32 v7, s66, v5')
    a(f'v_lshl_add_u32 v{AW+mi}, v7, 5, v4')
a('s_lshl_b32 s66, s45, 13'); a('s_add_u32 s66, s66, 32768')
a('v_lshlrev_b32 v5, 7, v3'); a('v_add_u32 v5, s66, v5')
for ks in range(2):
    a(f'v_xor_b32 v7, {4*ks}, v6')
    a(f'v_lshl_add_u32 v{AX+ks}, v7, 4, v5')
for i in range(128): a(f'v_mov_b32 v{ACC+i}, 0')
def f_reads(p, ks):
    L = []
    def w(mat, mi):
        for b in range(2):
            L.append(f'ds_read_b64_tr_b16 v[{fW(p,mat,mi)+2*b}:{fW(p,mat,mi)+2*b+1}], v{AW+mi} offset:{mat*16384 + ks*8192 + b*1024}')
    w(0, 0)
    for ni in range(4): L.append(f'ds_read_b128 v[{fX(p,ni)}:{fX(p,ni)+3}], v{AX+ks} offset:{ni*2048}')
    for mat in range(2):
        for mi in range(4):
            if (mat, mi) != (0, 0): w(mat, mi)
    return L
def f_mfmas(p):
    L = []
    for i, (mat, mi) in enumerate([(mat, mi) for mat in range(2) for mi in range(4)]):
        for ni in (range(4) if i % 2 == 0 else range(3, -1, -1)):
            t = T16(mat, mi, ni)
            L.append(f'v_mfma_f32_16x16x32_bf16 v[{t}:{t+3}], v[{fW(p,mat,mi)}:{fW(p,mat,mi)+3}], v[{fX(p,ni)}:{fX(p,ni)+3}], v[{t}:{t+3}]')
    return L
wd_finish()
a('v_mov_b32 v5, 1'); a(f'v_mov_b32 v6, {L_CNT}')
tick(7, 0)
a('s_barrier')
tick(7, 16)
stamp(1)
for r in f_reads(0, 0): a(r)
a('L_floop:')
a('s_waitcnt lgkmcnt(0)')
UPD = ['s_add_u32 s46, s46, 1', 's_cmp_eq_u32 s46, 3', 's_cselect_b32 s42, s50, s51', 's_cselect_b32 s46, 0, s46'] + [f'v_add_u32 v{r}, s42, v{r}' for r in (AW, AW+1, AW+2, AW+3, AX, AX+1)]
for ins in interleave(f_mfmas(0), f_reads(1, 1) + [CNTRD] + UPD): a(ins)
a('s_waitcnt vmcnt(0) lgkmcnt(0)')
tick(7, ('s47', 1))
mid_sync('L_flast')
if opts.get('diag', '').startswith('k'):
    a(f"s_cmp_lg_u32 s47, {int(opts['diag'][1:])}"); a('s_cbranch_scc1 L_dk'); a('s_memrealtime s[96:97]'); a('L_dk:')
tick(7, ('s47', 17))
for ins in interleave(f_mfmas(1), f_reads(0, 0) + ['s_add_u32 s47, s47, 1']): a(ins)
a('s_branch L_floop')
if opt('inl', 1): emit_tails()
a('L_flast:')
pre_epilogue()
stats_wait('L_fst')
tick(7, 40)
CSB = 48
P = []
P += ['s_lshl_b32 s66, s45, 8', f's_add_u32 s66, s66, {L_R}', 'v_lshlrev_b32 v4, 2, v3', 'v_add_u32 v4, s66, v4']
for ni in range(4):
    P += [f'ds_read_b32 v{40+ni}, v4 offset:{64*ni}', f'ds_read_b32 v{44+ni}, v4 offset:{512 + 64*ni}']
P += [f'v_mov_b32 v10, {L_CNT}', 'ds_read_b32 v8, v10 offset:32', 'ds_read_b32 v11, v10 offset:48']
P += ['s_lshl_b32 s66, s44, 8', f's_add_u32 s66, s66, {L_CS}', 'v_lshlrev_b32 v5, 4, v2', 'v_add_u32 v5, s66, v5']
for mat in range(2):
    for mi in range(4):
        r = CSB + 16*mat + 4*mi
        P.append(f'ds_read_b128 v[{r}:{r+3}], v5 offset:{mat*512 + mi*64}')
P += ['v_lshlrev_b32 v1, 4, v0', 'v_mov_b32 v9, 0']
P += ['s_lshl_b32 s66, s28, 3', 's_lshl_b32 s67, s45, 2', 's_add_u32 s66, s66, s67', 's_mul_i32 s66, s66, 48',
      's_lshl_b32 s67, s29, 2', 's_add_u32 s66, s66, s67', 's_lshl_b32 s67, s44, 1', 's_add_u32 s66, s66, s67', 's_lshl_b32 s66, s66, 10']
P += ['s_lshl_b32 s70, s28, 8', 's_lshl_b32 s71, s29, 4', 's_add_u32 s70, s70, s71', 's_lshl_b32 s71, s3, 2', 's_add_u32 s70, s70, s71', f's_add_u32 s70, s70, {WS_FH}']
M = f_mfmas(1)
for i, m in enumerate(M):
    a(m)
    for _ in range(2):
        if P: a(P.pop(0))
for x_ in P: a(x_)
stamp(2)
a('s_waitcnt lgkmcnt(0)')
a('v_readfirstlane_b32 s43, v8')
for ni in range(4):
    c = 80 + 6*ni
    a(f'v_sub_f32 v{c}, 0, v{44+ni}')
    a(f'v_mul_f32 v{c+2}, {-1.4426950408889634!r}, v{40+ni}')
    a(f'v_mul_f32 v{c+4}, v{40+ni}, v{40+ni}')
for ni in range(4): a(f'v_rcp_f32 v{84+6*ni}, v{84+6*ni}')
tick(7, 42)
BC = 'op_sel_hi:[1,0,1]'
for ni in range(1, 4): a(f's_add_u32 s{66+ni}, s{65+ni}, {48*1024}')
for kp in range(2):
    for ni in range(4):
        if kp == 1 and ni == VCHK - 1: a('ds_read_b32 v11, v10 offset:28')
        if kp == 1 and ni == VCHK:
            a('s_waitcnt lgkmcnt(0)'); a('v_readfirstlane_b32 s79, v11')
            a('s_cmp_lg_u32 s79, 1'); a('s_cbranch_scc1 L_fnov')
            v_loads()
            a('L_fnov:')
        c = 80 + 6*ni
        prs = [(2*kp + h, d) for h in range(2) for d in (0, 2)]
        G_ = [T16(0, mi, ni) + d for mi, d in prs]; U_ = [T16(1, mi, ni) + d for mi, d in prs]
        for n, (mi, d) in enumerate(prs): a(f'v_pk_fma_f32 v[{G_[n]}:{G_[n]+1}], v[{CSB+4*mi+d}:{CSB+1+4*mi+d}], v[{c}:{c+1}], v[{G_[n]}:{G_[n]+1}] {BC}')
        for n, (mi, d) in enumerate(prs): a(f'v_pk_fma_f32 v[{U_[n]}:{U_[n]+1}], v[{CSB+16+4*mi+d}:{CSB+17+4*mi+d}], v[{c}:{c+1}], v[{U_[n]}:{U_[n]+1}] {BC}')
        for n in range(4): a(f'v_pk_mul_f32 v[{104+2*n}:{105+2*n}], v[{G_[n]}:{G_[n]+1}], v[{c+2}:{c+3}] op_sel_hi:[1,0]')
        for n in range(4): a(f'v_pk_mul_f32 v[{G_[n]}:{G_[n]+1}], v[{G_[n]}:{G_[n]+1}], v[{U_[n]}:{U_[n]+1}]')
        for n in range(8): a(f'v_exp_f32 v{104+n}, v{104+n}')
        a('s_nop 0')
        for n in range(4): a(f'v_pk_fma_f32 v[{104+2*n}:{105+2*n}], v[{104+2*n}:{105+2*n}], v[{c+4}:{c+5}], v[{c+4}:{c+5}] op_sel_hi:[1,0,0]')
        for n in range(8): a(f'v_rcp_f32 v{104+n}, v{104+n}')
        a('s_nop 0')
        o = 112 + 4*ni
        for n in range(4): a(f'v_pk_mul_f32 v[{G_[n]}:{G_[n]+1}], v[{G_[n]}:{G_[n]+1}], v[{104+2*n}:{105+2*n}]')
        for n in range(4): a(f'v_cvt_pk_bf16_f32 v{o+n}, v{G_[n]}, v{G_[n]+1}')
        if RDFT and FRSEP and kp == 0 and ni == 0:
            a('v_readfirstlane_b32 s78, v11'); a('s_cmp_ge_u32 s78, 1'); a('s_cbranch_scc1 L_frw_ok')
            lds_wait('L_frw', 48, 14, 1)
        if HALF and kp == 1 and ni == 3: a('s_waitcnt vmcnt(3)')
        a(f'buffer_store_dwordx4 v[{o}:{o+3}], v1, s[12:15], s{66+ni} offen offset:{kp*1024} {STP}')
        if 4*kp + ni == EARLY:
            a('v_mov_b32 v12, 1'); a('s_mov_b64 exec, 1'); a('ds_add_u32 v10, v12'); a('s_mov_b64 exec, -1')
        tick(7, 43 + 4*kp + ni)
tick(7, 32)
stamp(3)
if TONE: lds_arrive(0, 4)
else: a('s_waitcnt vmcnt(0)')
if not SENT:
    a('s_mov_b64 exec, 1'); a('buffer_store_dword v8, v9, s[12:15], s70 offen sc1'); a('s_mov_b64 exec, -1')
if VCHK == 4:
    a('s_waitcnt lgkmcnt(0)'); a('v_readfirstlane_b32 s79, v11')
    a('s_cmp_lg_u32 s79, 1'); a('s_cbranch_scc1 L_fnov')
    v_loads()
    a('L_fnov:')
tick_dump(7, 4)
a('s_branch L_helper')

a('L_dft:')
DACC = 176
def TD(part, mi, et): return DACC + 40*part + 20*mi + 4*et
DFR = 40
def dX(p, mi): return DFR + 48*p + 4*mi
def dC(p, part, et): return DFR + 48*p + 8 + 20*part + 4*et
DX, DC = 8, 10
FCOS, FSIN, FNS = 136, 144, 152
a('v_lshlrev_b32 v5, 7, v3')
a('s_lshl_b32 s66, s3, 12'); a('s_add_u32 s66, s66, 32768')
for ks in range(2):
    a(f'v_xor_b32 v7, {4*ks}, v6')
    a(f'v_lshl_add_u32 v{DC+ks}, v7, 4, v5')
    a(f'v_add_u32 v{DX+ks}, s66, v{DC+ks}')
for i in range(80): a(f'v_mov_b32 v{DACC+i}, 0')
if DF:
    for i in list(range(104, 136)) + list(range(160, 176)): a(f'v_mov_b32 v{i}, 0')
if DF:
    a('s_cmp_eq_u32 s30, 0'); a('s_cselect_b32 s45, 4, 2')
    a('s_bitcmp1_b32 s30, 0'); a('s_cselect_b32 s53, 1.0, -1.0')
else:
    a('s_and_b32 s45, s30, 1'); a('s_sub_u32 s45, 3, s45')
a('v_lshrrev_b32 v12, 3, v3'); a('v_and_b32 v13, 7, v3'); a('v_lshlrev_b32 v13, 4, v13'); a('v_lshl_add_u32 v12, v12, 2, v13'); a('v_add_u32 v12, s3, v12')
a('v_lshlrev_b32 v13, 5, v2'); a('v_add_u32 v13, s28, v13'); a('v_cvt_f32_u32 v13, v13')
for mt in range(2):
    a(f'v_add_u32 v14, {8*mt}, v12'); a('v_cvt_f32_u32 v14, v14'); a(f'v_mul_f32 v14, {1.0/2048!r}, v14')
    for d in range(4):
        for h in range(2):
            a(f'v_add_f32 v{60+h}, {float(16*h + 128*d)!r}, v13')
            a(f'v_mul_f32 v{60+h}, v{60+h}, v14')
        a('v_cos_f32 v62, v60'); a('v_cos_f32 v63, v61'); a('v_sin_f32 v64, v60'); a('v_sin_f32 v65, v61')
        a(f'v_cvt_pk_bf16_f32 v{FCOS+4*mt+d}, v62, v63')
        a(f'v_cvt_pk_bf16_f32 v{FSIN+4*mt+d}, v64, v65')
        a(f'v_xor_b32 v{FNS+4*mt+d}, 0x80008000, v{FSIN+4*mt+d}')
def d_reads(p, ks):
    L = [f'ds_read_b128 v[{dX(p,mi)}:{dX(p,mi)+3}], v{DX+ks} offset:{mi*2048}' for mi in range(2)]
    for part in range(2):
        for et in range(5):
            L.append(f'ds_read_b128 v[{dC(p,part,et)}:{dC(p,part,et)+3}], v{DC+ks} offset:{part*16384 + et*2048}')
    return L
def d_mfmas(p):
    L = []
    i = 0
    for part in range(2):
        for et in range(5):
            for mi in ((0, 1) if i % 2 == 0 else (1, 0)):
                t = TD(part, mi, et)
                L.append(f'v_mfma_f32_16x16x32_bf16 v[{t}:{t+3}], v[{dX(p,mi)}:{dX(p,mi)+3}], v[{dC(p,part,et)}:{dC(p,part,et)+3}], v[{t}:{t+3}]')
            i += 1
    return L
wd_finish()
a('v_mov_b32 v5, 1'); a(f'v_mov_b32 v6, {L_CNT}')
for i in range(32, 36): a(f'v_mov_b32 v{i}, 0')
tick(7, 0)
a('s_barrier')
tick(7, 16)
stamp(1)
if DF:
    for ks in range(2):
        for mi in range(2): a(f'ds_read_b128 v[{40+8*ks+4*mi}:{43+8*ks+4*mi}], v{DX+ks} offset:{mi*2048}')
else:
    for r in d_reads(0, 0): a(r)
if not DF:
    def xstat(p):
        L = []
        for mi in range(2):
            for d in range(4):
                r = dX(p, mi) + d; t = 36 + 2*(d & 1)
                L += [f'v_lshlrev_b32 v{t}, 16, v{r}', f'v_and_b32 v{t+1}, 0xffff0000, v{r}',
                      f'v_add_f32 v{32+2*mi}, v{32+2*mi}, v{t}', f'v_fmac_f32 v{33+2*mi}, v{t}, v{t}',
                      f'v_add_f32 v{32+2*mi}, v{32+2*mi}, v{t+1}', f'v_fmac_f32 v{33+2*mi}, v{t+1}, v{t+1}']
        return L
    def interleave2(M, R, per):
        out = []; R = list(R)
        for m in M:
            out.append(m)
            for _ in range(per):
                if R: out.append(R.pop(0))
        return out + R
    def dloop(name, stats):
        a(f'{name}:')
        a('s_waitcnt lgkmcnt(0)')
        for ins in interleave2(d_mfmas(0), d_reads(1, 1) + (xstat(0) if stats else [CNTRD]), 3 if stats else 1): a(ins)
        a('s_waitcnt vmcnt(0) lgkmcnt(0)' if stats else 's_waitcnt lgkmcnt(0)')
        tick(7, ('s47', 1))
        if stats: a('s_barrier')
        else: mid_sync('L_dlast')
        tick(7, ('s47', 17))
        slot_advance()
        for r in (DX, DC): a(f'v_add_u32 v{r}, s42, v{r}')
        R = d_reads(0, 0) + [f'v_add_u32 v{r}, s42, v{r}' for r in (DX+1, DC+1)]
        for ins in interleave2(d_mfmas(1), R + (xstat(1) if stats else []), 3 if stats else 1): a(ins)
        a('s_add_u32 s47, s47, 1')
        if stats: a('s_cmp_lt_u32 s47, s45'); a(f's_cbranch_scc1 {name}')
        else: a(f's_branch {name}')
    dloop('L_dloopA', True)
else:
    def interleave2(M, R, per):
        out = []; R = list(R)
        for m in M:
            out.append(m)
            for _ in range(per):
                if R: out.append(R.pop(0))
        return out + R
    XA = [40, 48]; XB = [56, 104]
    CF = [[64 + 4*i for i in range(10)], [112 + 4*i for i in range(6)] + [160 + 4*i for i in range(4)]]
    def xa_reads(): return [f'ds_read_b128 v[{XA[ks]+4*mi}:{XA[ks]+4*mi+3}], v{DX+ks} offset:{mi*2048}' for ks in range(2) for mi in range(2)]
    def xb_reads(ks): return [f'ds_read_b128 v[{XB[ks]+4*mi}:{XB[ks]+4*mi+3}], v{DX+ks} offset:{mi*2048}' for mi in range(2)]
    def c_reads(ks): return [f'ds_read_b128 v[{CF[ks][5*part+et]}:{CF[ks][5*part+et]+3}], v{DC+ks} offset:{part*16384 + et*2048}' for part in range(2) for et in range(5)]
    def fold(ks, stats):
        L = []
        for mi in range(2):
            for d in range(4):
                ra = XA[ks] + 4*mi + d; rb = XB[ks] + 4*mi + d; sm, sq = 32 + 2*mi, 33 + 2*mi
                L += [f'v_lshlrev_b32 v36, 16, v{ra}', f'v_and_b32 v37, 0xffff0000, v{ra}', f'v_lshlrev_b32 v38, 16, v{rb}', f'v_and_b32 v39, 0xffff0000, v{rb}']
                if stats:
                    for t in (36, 37, 38, 39): L += [f'v_add_f32 v{sm}, v{sm}, v{t}', f'v_fmac_f32 v{sq}, v{t}, v{t}']
                L += [f'v_add_f32 v36, v{28+mi}, v36', f'v_add_f32 v37, v{28+mi}, v37']
                L += ['v_fmac_f32 v36, s53, v38', 'v_fmac_f32 v37, s53, v39', f'v_cvt_pk_bf16_f32 v{rb}, v36, v37']
        return L
    def f2_mfmas(ks):
        L = []
        for i in range(10):
            part, et = divmod(i, 5)
            for mi in ((0, 1) if i % 2 == 0 else (1, 0)):
                t = TD(part, mi, et); x = XB[ks] + 4*mi; c = CF[ks][i]
                L.append(f'v_mfma_f32_16x16x32_bf16 v[{t}:{t+3}], v[{x}:{x+3}], v[{c}:{c+3}], v[{t}:{t+3}]')
        return L
    DUPD = ['s_add_u32 s46, s46, 1', 's_cmp_eq_u32 s46, 3', 's_cselect_b32 s42, s50, s51', 's_cselect_b32 s46, 0, s46'] + [f'v_add_u32 v{r}, s42, v{r}' for r in (DX, DX+1, DC, DC+1)]
    def dloop3(name, stats):
        M1 = f2_mfmas(1); M0 = f2_mfmas(0)
        a(f'{name}:')
        for ins in interleave2(M1[:6], DUPD, 2): a(ins)
        a('s_waitcnt vmcnt(0) lgkmcnt(0)' if stats else 's_waitcnt lgkmcnt(0)')
        tick(7, ('s47', 1))
        if stats: a('s_barrier')
        else: mid_sync('L_dlast')
        tick(7, ('s47', 17))
        for ins in interleave2(M1[6:10], xb_reads(0) + c_reads(0) + ['s_add_u32 s47, s47, 1'], 3): a(ins)
        a('s_waitcnt lgkmcnt(10)')
        for ins in interleave2(M1[10:], fold(0, stats), 5): a(ins)
        a('s_waitcnt lgkmcnt(0)')
        a('s_nop 0')
        for ins in interleave2(M0[:7], xb_reads(1) + c_reads(1) + ([] if stats else [CNTRD]), 2): a(ins)
        a(f's_waitcnt lgkmcnt({10 if stats else 11})')
        for ins in interleave2(M0[7:], fold(1, stats) + DUPD, 5): a(ins)
        a('s_waitcnt lgkmcnt(0)')
        tick(7, ('s47', 1))
        if stats: a('s_barrier')
        else: mid_sync('L_dlast')
        tick(7, ('s47', 17))
        a('s_add_u32 s47, s47, 1')
        for ins in xa_reads() + ([] if stats else [CNTRD]): a(ins)
        if stats: a('s_cmp_lt_u32 s47, s45'); a(f's_cbranch_scc1 {name}')
        else: a(f's_branch {name}')
    def dloop2(name, stats):
        if opt('dp', 1): return dloop3(name, stats)
        a(f'{name}:')
        for ins in DUPD: a(ins)
        a('s_waitcnt vmcnt(0) lgkmcnt(0)' if stats else 's_waitcnt lgkmcnt(0)')
        tick(7, ('s47', 1))
        if stats: a('s_barrier')
        else: mid_sync('L_dlast')
        tick(7, ('s47', 17))
        a('s_add_u32 s47, s47, 1')
        for ins in xb_reads(0) + xb_reads(1) + c_reads(0): a(ins)
        a('s_waitcnt lgkmcnt(12)')
        for ins in fold(0, stats): a(ins)
        a('s_waitcnt lgkmcnt(0)')
        a('s_nop 0')
        for ins in interleave2(f2_mfmas(0), c_reads(1) + ([] if stats else [CNTRD]) + fold(1, stats) + DUPD, 3): a(ins)
        a('s_waitcnt lgkmcnt(0)')
        tick(7, ('s47', 1))
        if stats: a('s_barrier')
        else: mid_sync('L_dlast')
        tick(7, ('s47', 17))
        a('s_add_u32 s47, s47, 1')
        for ins in interleave2(f2_mfmas(1), xa_reads() + ([] if stats else [CNTRD]), 1): a(ins)
        if stats: a('s_cmp_lt_u32 s47, s45'); a(f's_cbranch_scc1 {name}')
        else: a(f's_branch {name}')
    a('s_waitcnt lgkmcnt(0)')
    for mi in range(2):
        for d in range(4):
            r = XA[0] + 4*mi + d
            a(f'v_lshlrev_b32 v36, 16, v{r}'); a(f'v_and_b32 v37, 0xffff0000, v{r}')
            if d == 0: a(f'v_add_f32 v{28+mi}, v36, v37')
            else: a(f'v_add_f32 v{28+mi}, v{28+mi}, v36'); a(f'v_add_f32 v{28+mi}, v{28+mi}, v37')
    for sw in ('v_permlane16_swap_b32', 'v_permlane32_swap_b32'):
        for mi in range(2): a(f'v_mov_b32 v{36+mi}, v{28+mi}')
        a('s_nop 1')
        for mi in range(2): a(f'{sw} v{28+mi}, v{36+mi}')
        a('s_nop 1')
        for mi in range(2): a(f'v_add_f32 v{28+mi}, v{28+mi}, v{36+mi}')
    a('s_bitcmp1_b32 s30, 0'); a(f's_cselect_b32 s66, 0x3d000000, 0')
    a('s_lshl_b32 s67, s3, 7'); a(f's_add_u32 s67, s67, {L_CH}'); a('v_lshlrev_b32 v38, 2, v3'); a('v_add_u32 v38, s67, v38')
    for mi in range(2):
        a(f'v_mul_f32 v{36+mi}, s66, v{28+mi}'); a(f'v_mul_f32 v{28+mi}, -2.0, v{36+mi}')
        if not NOCS: a(f'ds_write_b32 v38, v{36+mi} offset:{64*mi}')
    dloop2('L_dloopA', True)
a(f'v_mov_b32 v36, {L_NON}'); a('ds_read_b32 v14, v36')
for sw in ('v_permlane16_swap_b32', 'v_permlane32_swap_b32'):
    for r in range(32, 36): a(f'v_mov_b32 v{r+4}, v{r}')
    a('s_nop 1')
    for r in range(32, 36): a(f'{sw} v{r}, v{r+4}')
    a('s_nop 1')
    for r in range(32, 36): a(f'v_add_f32 v{r}, v{r}, v{r+4}')
a('s_lshl_b32 s66, s28, 2'); a('s_add_u32 s66, s66, s30'); a('s_lshl_b32 s66, s66, 11'); a('s_lshl_b32 s67, s3, 9'); a('s_add_u32 s66, s66, s67'); a(f's_add_u32 s66, s66, {WS_XP}')
a('v_cmp_gt_u32 vcc, 16, v0'); a('v_lshlrev_b32 v38, 4, v0')
a('s_waitcnt lgkmcnt(0)')
a('v_cndmask_b32 v12, v34, v32, vcc'); a('v_cndmask_b32 v13, v35, v33, vcc'); a('v_mov_b32 v15, v14')
a('v_readfirstlane_b32 s43, v14')
a('s_mov_b32 exec_hi, 0')
a('buffer_store_dwordx4 v[12:15], v38, s[12:15], s66 offen sc1')
a('s_mov_b64 exec, -1')
a('s_nop 0')
dloop2('L_dloopB', False) if DF else dloop('L_dloopB', False)
if opt('inl', 1): emit_tails()
a('L_dlast:')
pre_epilogue()
stats_wait('L_dst')
tick(7, 40)
DP = []
DP.append('s_lshl_b32 s66, s3, 7'); DP.append(f's_add_u32 s66, s66, {L_R}')
DP.append('v_lshlrev_b32 v4, 4, v2'); DP.append('v_add_u32 v4, s66, v4')
for mi in range(2):
    DP.append(f'ds_read_b128 v[{40+4*mi}:{43+4*mi}], v4 offset:{64*mi}')
    if not NOCS: DP.append(f'ds_read_b128 v[{48+4*mi}:{51+4*mi}], v4 offset:{512 + 64*mi}')
    DP.append(f'ds_read_b128 v[{76+4*mi}:{79+4*mi}], v4 offset:{L_A0 - L_R + 64*mi}')
    if DF and not NOCS: DP.append(f'ds_read_b128 v[{84+4*mi}:{87+4*mi}], v4 offset:{L_CH - L_R + 64*mi}')
DP.append('v_lshlrev_b32 v5, 2, v3'); DP.append(f'v_add_u32 v5, {L_CS}, v5')
for part in range(2):
    for et in range(0 if NOCS else 5): DP.append(f'ds_read_b32 v{56+2*(5*part+et)}, v5 offset:{part*512 + et*64}')
DP.append('v_bfe_u32 v9, v3, 1, 2'); DP.append('v_xor_b32 v8, s3, v9'); DP.append('v_lshlrev_b32 v8, 4, v8'); DP.append('v_lshl_add_u32 v8, v3, 6, v8'); DP.append('v_lshl_add_u32 v8, v2, 2, v8')
DP.append('ds_read_b32 v14, v6 offset:20')
for ins in interleave2(f2_mfmas(1) if DF else d_mfmas(1), DP, 2): a(ins)
stamp(2)
a('s_waitcnt lgkmcnt(0)')
a('v_readfirstlane_b32 s78, v14')
a('s_cmp_ge_u32 s78, 4'); a('s_cbranch_scc1 L_dc9_ok')
lds_wait('L_dc9', 20, 14)
tick(7, 41)
if DF and not NOCS:
    for i in range(8): a(f'v_sub_f32 v{48+i}, v{48+i}, v{84+i}')
a('s_cmp_lg_u32 s30, 0'); a('s_cbranch_scc1 L_z0')
for mi in range(2):
    t = 76 + 4*mi; y = 84 + 4*mi
    a(f'v_pk_add_f32 v[{y}:{y+1}], v[{t}:{t+1}], v[{t+2}:{t+3}]')
    a(f'v_pk_add_f32 v[{y+2}:{y+3}], v[{t}:{t+1}], v[{t+2}:{t+3}] neg_lo:[0,1] neg_hi:[0,1]')
    a(f'v_add_f32 v{92+mi}, v{y}, v{y+1}'); a(f'v_sub_f32 v{94+mi}, v{y}, v{y+1}')
a('v_cvt_pk_bf16_f32 v96, v92, v93'); a('v_mov_b32 v97, 0')
a('v_cvt_pk_bf16_f32 v98, v86, v90'); a('v_cvt_pk_bf16_f32 v101, v87, v91'); a('v_xor_b32 v99, 0x80008000, v101')
a('v_cvt_pk_bf16_f32 v100, v94, v95')
for cpart, r in enumerate((96, 97, 98, 99, 100, 97, 98, 101)):
    a(f'ds_write_b32 v8, v{r} offset:{L_Z + (cpart*ZB + 80)*ZROW}')
a('L_z0:')
for et in range(5):
    for mi in range(2):
        for part in range(2):
            t = TD(part, mi, et); c = 56 + 2*(5*part + et)
            for d in (() if NOCS else (0, 2)):
                a(f'v_pk_fma_f32 v[{t+d}:{t+d+1}], v[{48+4*mi+d}:{49+4*mi+d}], v[{c}:{c+1}], v[{t+d}:{t+d+1}] op_sel_hi:[1,0,1] neg_lo:[1,0,0] neg_hi:[1,0,0]')
            for d in (0, 2):
                a(f'v_pk_mul_f32 v[{t+d}:{t+d+1}], v[{t+d}:{t+d+1}], v[{40+4*mi+d}:{41+4*mi+d}]')
        y = 80 + 16*mi
        for part in range(2):
            t = TD(part, mi, et)
            a(f'v_pk_add_f32 v[{y+4*part}:{y+4*part+1}], v[{t}:{t+1}], v[{t+2}:{t+3}]')
            a(f'v_pk_add_f32 v[{y+4*part+2}:{y+4*part+3}], v[{t}:{t+1}], v[{t+2}:{t+3}] neg_lo:[0,1] neg_hi:[0,1]')
        pa, qa, ra, sa, pb, qb, rb, sb = range(y, y+8); o = y + 8
        a(f'v_add_f32 v{o}, v{pa}, v{qa}'); a(f'v_add_f32 v{o+1}, v{pb}, v{qb}')
        a(f'v_add_f32 v{o+2}, v{ra}, v{sb}'); a(f'v_sub_f32 v{o+3}, v{rb}, v{sa}')
        a(f'v_sub_f32 v{o+4}, v{pa}, v{qa}'); a(f'v_sub_f32 v{o+5}, v{pb}, v{qb}')
        a(f'v_sub_f32 v{o+6}, v{ra}, v{sb}'); a(f'v_add_f32 v{o+7}, v{rb}, v{sa}')
    for cpart in range(8):
        a(f'v_cvt_pk_bf16_f32 v{112+cpart}, v{88+cpart}, v{104+cpart}')
    for cpart in range(8):
        a(f'ds_write_b32 v8, v{112+cpart} offset:{L_Z + (cpart*ZB + 16*et)*ZROW}')
tick(7, 42)
VADDR = []
VADDR += ['v_lshrrev_b32 v12, 1, v2', f'v_mul_u32_u24 v12, {8*VROW}, v12', 'v_and_b32 v13, 1, v2', f'v_mul_u32_u24 v11, {VROW}, v13', 'v_add_u32 v12, v12, v11', 'v_lshl_add_u32 v12, v3, 4, v12']
VADDR += ['s_mul_i32 s66, s28, 17', 's_add_u32 s67, s66, s3', f's_mul_i32 s67, s67, {2*VROW}', *(['s_and_b32 s68, s30, 1', 's_lshl_b32 s68, s68, 1', 's_lshr_b32 s69, s30, 1', 's_add_u32 s68, s68, s69', 's_mul_i32 s68, s68, 1280'] if DF else ['s_mul_i32 s68, s30, 1280']), f's_add_u32 s68, s68, {WS_V + 128}', 's_add_u32 s67, s67, s68', 's_sub_u32 s69, s67, 16']
VADDR += ['s_add_u32 s66, s66, 16', f's_mul_i32 s66, s66, {2*VROW}', 's_add_u32 s66, s66, s68', f's_add_u32 s70, s67, {16*VROW}']
a('v_mov_b32 v10, 1')
a('s_waitcnt lgkmcnt(0)')
a('s_mov_b64 exec, 1'); a('ds_add_u32 v6, v10 offset:4'); a('s_mov_b64 exec, -1')
a('v_bfe_u32 v8, v3, 1, 2'); a('v_xor_b32 v8, v8, v2'); a('v_lshlrev_b32 v8, 4, v8'); a('v_lshl_add_u32 v8, v3, 6, v8'); a(f's_mul_i32 s66, s3, {2*ZB*ZROW}'); a('v_add_u32 v8, s66, v8')
for ins in VADDR: a(ins)
lds_wait('L_zw', 4, 14)
tick(7, 43)
for part in range(2):
    for et in range(5):
        r = 40 + 20*part + 4*et
        a(f'ds_read_b128 v[{r}:{r+3}], v8 offset:{L_Z + (part*ZB + 16*et)*ZROW}')
for part in range(2): a(f'ds_read_b128 v[{120+4*part}:{123+4*part}], v8 offset:{L_Z + (part*ZB + 80)*ZROW}')
a('s_waitcnt lgkmcnt(0)')
a('s_mov_b64 exec, 1'); a('ds_add_u32 v6, v10 offset:8'); a('s_mov_b64 exec, -1')
a('v_mov_b32 v8, v12'); a('v_mov_b32 v10, v11')
tick(7, 44)
def VR(mt, et): return DACC + 20*mt + 4*et
def VI(mt, et): return DACC + 40 + 20*mt + 4*et
def vpack(et):
    L = []
    for mt in range(2):
        o = 80 + 20*mt + 4*et
        for i in range(4): L.append(f'v_cvt_pk_bf16_f32 v{o+i}, v{VR(mt,et)+i}, v{VI(mt,et)+i}')
        L.append(f'buffer_store_dwordx4 v[{o}:{o+3}], v8, s[12:15], s{67 + 3*mt} offen offset:{256*et} {STP}')
    return L
def vm(vr, vi, ya, yb):
    L = []
    for mt in range(2):
        L.append(f'v_mfma_f32_16x16x32_bf16 v[{vr(mt)}:{vr(mt)+3}], v[{FCOS+4*mt}:{FCOS+4*mt+3}], v[{ya}:{ya+3}], 0')
        L.append(f'v_mfma_f32_16x16x32_bf16 v[{vi(mt)}:{vi(mt)+3}], v[{FNS+4*mt}:{FNS+4*mt+3}], v[{ya}:{ya+3}], 0')
    for mt in range(2):
        L.append(f'v_mfma_f32_16x16x32_bf16 v[{vr(mt)}:{vr(mt)+3}], v[{FSIN+4*mt}:{FSIN+4*mt+3}], v[{yb}:{yb+3}], v[{vr(mt)}:{vr(mt)+3}]')
        L.append(f'v_mfma_f32_16x16x32_bf16 v[{vi(mt)}:{vi(mt)+3}], v[{FCOS+4*mt}:{FCOS+4*mt+3}], v[{yb}:{yb+3}], v[{vi(mt)}:{vi(mt)+3}]')
    return L
for et in range(5):
    M = vm(lambda mt: VR(mt, et), lambda mt: VI(mt, et), 40 + 4*et, 60 + 4*et)
    for ins in interleave2(M, vpack(et - 2) if et >= 2 else [], 2): a(ins)
a('s_cmp_lg_u32 s30, 0'); a('s_cbranch_scc1 L_v0a')
for ins in vm(lambda mt: 160 + 4*mt, lambda mt: 168 + 4*mt, 120, 124): a(ins)
a('L_v0a:')
tick(7, 45)
for ins in vpack(3): a(ins)
for ins in vpack(4): a(ins)
a('s_cmp_lg_u32 s30, 0'); a('s_cbranch_scc1 L_v0b')
for mt in range(2):
    for i in range(4): a(f'v_cvt_pk_bf16_f32 v{120+4*mt+i}, v{160+4*mt+i}, v{168+4*mt+i}')
a('s_mov_b32 exec_lo, 0x00010001'); a('s_mov_b32 exec_hi, 0x00010001')
a(f'buffer_store_dwordx4 v[120:123], v8, s[12:15], s69 offen {STP}')
a(f's_add_u32 s69, s69, {16*VROW}')
a(f'buffer_store_dwordx4 v[124:127], v8, s[12:15], s69 offen {STP}')
a('s_mov_b64 exec, -1')
a('L_v0b:')
tick(7, 46)
a('s_cmp_lg_u32 s3, 0')
a('s_cbranch_scc1 L_signal')
a('v_cvt_f32_u32 v62, s28'); a('v_mul_f32 v62, 0.0625, v62'); a('v_cos_f32 v63, v62'); a('v_sin_f32 v64, v62')
a('v_cmp_gt_u32 vcc, 16, v0')
a('v_lshlrev_b32 v11, 4, v3'); a('v_add_u32 v9, v10, v11')
for et in range(5):
    o = 80 + 4*et; vr = VR(0, et); vi = VI(0, et); n = 40 + 4*et
    a(f'v_mul_f32 v65, v63, v{vr}'); a(f'v_fmac_f32 v65, v64, v{vi}')
    a(f'v_mul_f32 v66, v63, v{vi}'); a(f'v_fma_f32 v66, -v64, v{vr}, v66')
    a(f'v_cvt_pk_bf16_f32 v65, v65, v66')
    a(f'v_cndmask_b32 v65, v{o}, v65, vcc')
    a(f'v_mov_b32 v{n}, v{o+1}')
    a(f'v_mov_b32 v66, v65')
    a(f'v_mov_b32 v{n+1}, v{o+2}'); a(f'v_mov_b32 v{n+2}, v{o+3}')
    a(f'v_permlane16_swap_b32 v65, v66')
    a('s_nop 1')
    a(f'v_cndmask_b32 v{n+3}, v65, v66, vcc')
a('s_mov_b32 exec_hi, 0')
for et in range(5):
    a(f'buffer_store_dwordx4 v[{40+4*et}:{43+4*et}], v9, s[12:15], s66 offen offset:{256*et} {STP}')
a('s_mov_b64 exec, -1')

a('L_signal:')
a('s_mov_b32 s79, 0')
tick(7, 32)
stamp(3)
a('s_lshl_b32 s66, s30, 2'); a('s_add_u32 s66, s66, s3'); a('s_lshl_b32 s66, s66, 7'); a('s_lshl_b32 s67, s28, 2'); a('s_add_u32 s66, s66, s67'); a(f's_add_u32 s66, s66, {WS_FV}')
a('v_mov_b32 v4, s43'); a('v_mov_b32 v5, 0')
a('s_waitcnt vmcnt(0)'); a('s_mov_b64 exec, 1')
a('buffer_store_dword v4, v5, s[12:15], s66 offen sc1'); a('s_mov_b64 exec, -1')
if TONE: lds_arrive(0, 4)
tick_dump(7, 4)
a('L_helper:')
if TONE:
    lds_wait('L_hc9', 20, 40)
    a('s_cmp_eq_u32 s35, 0'); a('s_cbranch_scc1 L_hnz')
    lds_wait('L_hzc', 8, 40)
    a('L_hnz:')
else:
    if 0 <= EARLY < 8: a('s_cmp_eq_u32 s35, 0'); a('s_cbranch_scc1 L_hea')
    if CBAR: a('s_barrier')
    else:
        lds_arrive(0, 4)
        a('L_hea:')
        lds_wait('L_hc9', 20, 40)
        a('s_cmp_eq_u32 s35, 0'); a('s_cbranch_scc1 L_hnz')
        lds_wait('L_hzc', 8, 40)
        a('L_hnz:')
    a('s_mov_b32 s44, s3')
    p2_setup()
    if HF1: lds_wait('L_hgo', 40, 40, opt('hgn', 4))
    a('s_cmp_eq_u32 s35, 1'); a('s_cbranch_scc1 L_hd')
    for st in range(12 - NLATE + opt('skipl', 0), 12): wdt_lds(st)
    a('s_branch L_hf')
    a('L_hd:')
    for st in range(12 - NLD, 12): wdt_lds(st)
    a('L_hf:')
    VT = opt('vtouch', 0)
    def vtouch():
        a('s_cmp_eq_u32 s35, 0'); a('s_cbranch_scc1 L_nvt')
        a('v_lshrrev_b32 v40, 2, v0'); a('v_lshlrev_b32 v40, 7, v40'); a('v_and_b32 v41, 3, v0'); a('v_lshl_add_u32 v40, v41, 4, v40')
        a(f's_mov_b32 s66, {WS_FV}')
        spin_begin('L_pollva')
        a('buffer_load_dwordx4 v[44:47], v40, s[12:15], s66 offen sc1')
        a('s_waitcnt vmcnt(0)')
        for i in range(4): a(f'v_xor_b32 v{44+i}, s43, v{44+i}')
        a('v_or_b32 v44, v44, v45'); a('v_or3_b32 v44, v46, v47, v44')
        a('v_cmp_ne_u32 vcc, 0, v44'); a('s_cmp_eq_u64 vcc, 0')
        spin_end('L_pollva')
        a('s_lshl_b32 s66, s30, 2'); a('s_sub_u32 s67, 13, s66'); a('s_cmp_eq_u32 s31, 1'); a('s_cselect_b32 s66, s67, s66')
        a('s_lshl_b32 s67, s32, 1'); a('s_lshr_b32 s68, s3, 1'); a('s_add_u32 s67, s67, s68'); a('s_mul_i32 s67, s67, 17'); a('s_add_u32 s66, s66, s67')
        a(f's_mul_i32 s66, s66, {2*VROW}'); a('s_and_b32 s67, s3, 1'); a(f's_mul_i32 s67, s67, {164*128}'); a('s_add_u32 s66, s66, s67'); a(f's_add_u32 s66, s66, {WS_V}')
        a('v_lshlrev_b32 v40, 7, v0')
        for i in range(3):
            if i == 2: a('s_mov_b32 exec_hi, 0xf')
            a(f'buffer_load_dword v41, v40, s[12:15], s66 offen sc1')
            if i < 2: a('s_add_u32 s66, s66, 8192')
        a('s_mov_b64 exec, -1')
        a('s_mov_b32 s79, 0')
        a('s_waitcnt vmcnt(0)')
        a('L_nvt:')
    if VT == 2: vtouch()
    a('s_waitcnt vmcnt(0)')
    lds_arrive(36, 4)
    if VT == 1: vtouch()
stamp(4)

a('s_cmp_eq_u32 s79, 1'); a('s_cbranch_scc1 L_vdone')
if VGO: a('s_cmp_lg_u32 s3, 3'); a('s_cbranch_scc1 L_vwait')
spin_begin('L_pollv')
a(f'buffer_load_dword v53, v{VFL}, s[12:15], s60 offen sc1')
a('s_waitcnt vmcnt(0)')
a('v_cmp_ne_u32 vcc, s43, v53')
a('s_cmp_eq_u64 vcc, 0')
spin_end('L_pollv')
if VGO:
    lds_arrive(28, 40)
    a('L_vwait:')
    lds_wait('L_vc', 28, 40, 1)
    lds_wait('L_vgo', 40, 40, 1)
v_loads()
a('L_vdone:')
stamp(5)
a('v_lshrrev_b32 v4, 2, v3'); a('v_and_b32 v5, 3, v3'); a('v_lshl_add_u32 v7, v5, 2, v4')
a('s_mul_i32 s66, s55, 15'); a('v_xor_b32 v4, s66, v7')
a('v_cvt_f32_u32 v4, v4'); a('v_mul_f32 v4, 0.0625, v4')
a('v_lshlrev_b32 v5, 2, v2'); a('v_cvt_f32_u32 v5, v5')
for i in range(4):
    a(f'v_add_f32 v52, {float(i)!r}, v5'); a('v_mul_f32 v52, v52, v4')
    a('v_cos_f32 v53, v52'); a('v_sin_f32 v54, v52'); a('s_nop 0')
    a(f'v_cvt_pk_bf16_f32 v{8+i}, v53, v54')
a(f's_mov_b32 s47, {PN}'); a('s_cmp_eq_u32 s55, 1'); a(f's_cselect_b32 s47, {(-PN) & 0xffffffff}, s47')
a(f'v_mul_u32_u24 v56, {PQ}, v2'); a('v_lshl_add_u32 v56, v3, 4, v56'); a(f's_mul_i32 s66, s55, {3*PN}'); a('v_add_u32 v56, s66, v56')
for k4 in range(1, 4): a(f'v_add_u32 v{56+k4}, s47, v{55+k4}')
def spec_tile(off_s, vb):
    for k4 in range(4):
        for i in range(4): a(f'v_mov_b32 v{64+4*k4+i}, v{vb+4*i+k4}')
    a('s_nop 1')
    for k4 in range(4):
        c = 80 + 4*k4
        a(f'v_mfma_f32_16x16x32_bf16 v[{c}:{c+3}], v[{64+4*k4}:{67+4*k4}], v[8:11], 0')
    for k4 in range(4): a(f'v_add_u32 v{40+k4}, {off_s}, v{56+k4}')
    a('s_nop 5')
    for k4 in range(4):
        c = 80 + 4*k4
        a(f'ds_write_b128 v{40+k4}, v[{c}:{c+3}]')
a('s_cmp_eq_u32 s3, 1'); a(f's_mov_b32 s73, {ST[0]}'); a(f's_cselect_b32 s73, {ST[1]}, s73')
a('s_cmp_eq_u32 s3, 2'); a(f's_cselect_b32 s73, {ST[2]}, s73')
a('s_cmp_eq_u32 s3, 3'); a(f's_cselect_b32 s73, {ST[3]}, s73')
a('s_waitcnt vmcnt(0)')
a('s_cmp_lg_u32 s3, 0'); a('s_cbranch_scc1 L_spec1')
a(f's_mov_b32 s74, {ST[4]}')
spec_tile('s74', VB1)
a('L_spec1:')
spec_tile('s73', VB0)
for r in range(3):
    for d in range(4):
        a(f'v_lshlrev_b32 v{96+8*r+2*d}, 16, v{XR[r]+d}'); a(f'v_and_b32 v{97+8*r+2*d}, 0xffff0000, v{XR[r]+d}')
if F8:
    lds_arrive(52, 40)
    lds_wait('L_spw', 52, 40)
    a(f'ds_read_b128 v[128:131], v{FA[5]}'); a(f'ds_read_b128 v[132:135], v{FA[5]} offset:{PQ}')
    a('s_waitcnt lgkmcnt(0)')
    for d in range(0, 8, 2): a(f'v_pk_add_f32 v[{128+d}:{129+d}], v[{128+d}:{129+d}], v[{104+d}:{105+d}]')
    a(f'ds_write_b128 v{FA[5]}, v[128:131]'); a(f'ds_write_b128 v{FA[5]}, v[132:135] offset:{PQ}')

a('L_final:')
def final_reads(r, b):
    d4, d11 = FA[3*r], FA[3*r+2]
    for p in range(5):
        reg = (d4, d4, d4, d4, d11)[p]; off = (0, P2W, 2*P2W, 3*P2W, 0)[p]
        a(f'ds_read_b128 v[{b+8*p}:{b+3+8*p}], v{reg} offset:{off}')
        a(f'ds_read_b128 v[{b+4+8*p}:{b+7+8*p}], v{reg} offset:{off+PQ}')
def final_sum(r, b, cnt):
    x = 96 + 8*r
    for p in range(5):
        a(f's_waitcnt lgkmcnt({min(15, cnt + 8 - 2*p)})')
        for d in range(0, 8, 2): a(f'v_pk_add_f32 v[{x+d}:{x+d+1}], v[{x+d}:{x+d+1}], v[{b+8*p+d}:{b+8*p+d+1}]')
    for d in range(4): a(f'v_cvt_pk_bf16_f32 v{b+d}, v{x+2*d}, v{x+2*d+1}')
    a(f'buffer_store_dwordx4 v[{b}:{b+3}], v{FA[3*r+1]}, s[16:19], 0 offen {OUTP}')
a('s_waitcnt lgkmcnt(0)')
a('s_barrier')
stamp(6)
if F8:
    final_reads(0, 128)
    a('s_cmp_ge_u32 s3, 2'); a('s_cbranch_scc1 L_fin8')
    final_reads(2, 168)
    final_sum(0, 128, 10)
    final_sum(2, 168, 0)
    a('s_branch L_fin2')
    a('L_fin8:')
    final_sum(0, 128, 0)
    a('s_branch L_fin2')
final_reads(0, 128)
final_reads(1, 168)
final_sum(0, 128, 10)
a('s_cmp_ge_u32 s3, 2'); a('s_cbranch_scc1 L_fin1')
final_reads(2, 208)
final_sum(1, 168, 10)
final_sum(2, 208, 0)
a('s_branch L_fin2')
a('L_fin1:')
final_sum(1, 168, 0)
a('L_fin2:')
if 'diag' in opts:
    a('s_cmp_lg_u32 s3, 0'); a('s_cbranch_scc1 L_diag')
    a('s_waitcnt vmcnt(0)')
    a('s_memrealtime s[94:95]'); a('s_waitcnt lgkmcnt(0)')
    if opts['diag'] == 'r': a('s_sub_u32 s66, s43, s80'); a('s_max_i32 s66, s66, 0'); a('s_min_u32 s66, s66, 5000'); a('s_lshl_b32 s66, s66, 4')
    elif opts['diag'] == 'b': a('s_sub_u32 s66, s82, s80'); a('s_max_i32 s66, s66, 0'); a('s_min_u32 s66, s66, 5000'); a('s_lshl_b32 s66, s66, 3')
    elif opts['diag'] == 'c': a('s_sub_u32 s66, s92, s90'); a('s_lshr_b32 s66, s66, 2'); a('s_cmp_eq_u32 s35, 1'); a('s_cselect_b32 s66, 0, s66')
    elif opts['diag'] == 'l': a('s_sub_u32 s66, s84, s82'); a('s_lshl_b32 s66, s66, 2'); a('s_cmp_eq_u32 s35, 1'); a('s_cselect_b32 s66, 0, s66')
    elif opts['diag'] == 'g': a('s_sub_u32 s66, s92, s86'); a('s_lshl_b32 s66, s66, 2')
    elif opts['diag'] == 'p': a('s_sub_u32 s66, s86, s84'); a('s_lshl_b32 s66, s66, 4'); a('s_cmp_eq_u32 s35, 1'); a('s_cselect_b32 s66, 0, s66')
    elif opts['diag'][0] == 'k': a('s_sub_u32 s66, s96, s80'); a('s_lshl_b32 s66, s66, 2'); a('s_cmp_eq_u32 s35, 1'); a('s_cselect_b32 s66, 0, s66')
    elif opts['diag'] == 'e': a('s_sub_u32 s66, s94, s80'); a('s_max_i32 s66, s66, 0'); a('s_min_u32 s66, s66, 5000'); a('s_lshl_b32 s66, s66, 2')
    else: a(f"s_sub_u32 s66, s{80 + 2*int(opts['diag'])}, s43"); a('s_max_i32 s66, s66, 0'); a('s_min_u32 s66, s66, 5000'); a('s_lshl_b32 s66, s66, 2')
    a('L_dsp:')
    a('s_memrealtime s[68:69]'); a('s_waitcnt lgkmcnt(0)'); a('s_sub_u32 s68, s68, s94'); a('s_cmp_lt_u32 s68, s66'); a('s_cbranch_scc1 L_dsp')
    a('s_endpgm')
    a('L_diag:')
if opt('dbgt', 0):
    a('s_cmp_lg_u32 s3, 0'); a('s_cbranch_scc1 L_dbgt')
    a('s_waitcnt vmcnt(0)')
    a('s_memrealtime s[94:95]'); a('s_waitcnt lgkmcnt(0)')
    a('s_mov_b64 exec, 1')
    for i, r in enumerate((80, 82, 84, 86, 88, 90, 92, 94)):
        a(f's_sub_u32 s66, s{r}, s43'); a('s_add_u32 s66, s66, 1000'); a('v_mov_b32 v4, s66'); a(f'v_mov_b32 v5, {4 + 4*i}')
        a('buffer_atomic_umax v4, v5, s[24:27], 0 offen sc1')
        a('s_nop 2')
    a('s_endpgm')
    a('L_dbgt:')
stamp(7)
if STAMPS:
    a('s_waitcnt vmcnt(0)')
    a('s_memrealtime s[96:97]')
    a('s_waitcnt lgkmcnt(0)')
    for i in range(8): a(f'v_mov_b32 v{16+i}, s{80+2*i}')
    a('v_mov_b32 v24, s96'); a('v_mov_b32 v25, s101')
    a('s_lshl_b32 s66, s2, 3'); a('s_add_u32 s66, s66, s3'); a('s_lshl_b32 s66, s66, 6'); a(f's_add_u32 s66, s66, {WS_TS}')
    a('v_mov_b32 v4, 0')
    a('s_mov_b64 exec, 1')
    a('buffer_store_dwordx4 v[16:19], v4, s[12:15], s66 offen')
    a('buffer_store_dwordx4 v[20:23], v4, s[12:15], s66 offen offset:16')
    a('buffer_store_dwordx2 v[24:25], v4, s[12:15], s66 offen offset:32')
a('s_endpgm')
emit_tails()
a('L_done:')
a.end(256, sgpr=102)
txt = a.text([])
txt = txt.replace('.amdgcn_target', f'; @launch grid=(256,1,1) block=(512,1,1) lds={LDS_BYTES}\n.amdgcn_target', 1)
open(sys.argv[1], 'w').write(txt)
if opt('ids', 0): print(wait_ids, spin_ids)
```

```python
import sys, math
from asmlib import *
opts = dict(o.split('=') for o in sys.argv[2:])
def opt(k, d): return type(d)(opts.get(k, d))
STAMPS = opt('stamps', 0)
CBAR = opt('cbar', 1)
HF1 = opt('hf1', 0)
WDA = opts.get('wda', '')
F8 = opt('f8', 1)
RSP = opts.get('rsp', 'sc1').replace('+', ' ')
RSEQ = opts.get('rseq', '0222200').replace('-', '')
FRB = opt('frb', 6)
FRSEP = opt('frsep', 1)
NOCS = opt('nocs', 1)
FWL = opt('fwl', 0)
DF = opt('df', 1)
PFW = opts.get('pfw', '2,1').replace('-', '')
PFP = opts.get('pfp', '-').replace('-', '')
HALF = opt('half', 1)
EARLY = opt('early', 8 if HALF else -1)
NTM = [sum(1 << int(c) for c in m) for m in opts['ntm'].split(',')] if 'ntm' in opts else None
RP = opts.get('rp', '-').replace('+', ' ').replace('-', '')
WP_ = opts.get('wp', '-').replace('+', ' ').replace('-', '')
XP_ = opts.get('xp', '-').replace('+', ' ').replace('-', '')
TONE = opt('t1', 0)
HDLY = opt('hdly', 0)
OUTP = opts.get('outp', 'sc1').replace('+', ' ').replace('-', '')
SENT = 1
RDFT = opt('rdft', 1)
RSL = opt('rsleep', 4)
AUXV = opt('auxv', 0)
VGO = opt('vgo', 1)
VCHK = opt('vchk', 4)
XR = [32, 36, 28]
FA = [16, 17, 18, 19, 20, 21, 22, 23, 24]; VA0, VA4, VFL = 25, 26, 27
NONIT = 1
WMODE = opt('wmode', 0)
STRICT = opt('strict', 1)
ZFIX = opt('zfix', 1)
FLAGA = opt('flaga', 0)
FAKEW = opt('fakew', 0)
FAKEH = opt('fakeh', 0)
P2MAP = opt('p2map', 1)
P2ROT = opt('p2rot', 5)
SPINMAX = opt('spinmax', 1 << 16)
CODEPF = opt('codepf', 1)
LDW = opts.get('ldw', 'sc1').replace('+', ' ').replace('-', '')
LDH = opts.get('ldh', 'sc1').replace('+', ' ').replace('-', '')
STP = opts.get('stp', 'sc1').replace('+', ' ').replace('-', '')
S, D, F = 2048, 640, 1536
KNAME = 'parallel_sum__spectral_fnet__swiglu_ffn__prompt_kernel'
STG = 49152
WS_H = 0
WS_WDT = 0x600000
WS_V = 0x800000
WS_XP = 0xB00000
WS_WP = 0xB20000
WS_FW = 0xB30000
WS_FH = 0xB31000
WS_FV = 0xB34000
WS_TS = 0xC00000
WS_SIZE = 0x1000000
L_AUX = 3*STG
L_R = L_AUX
L_M = L_AUX + 512
L_CS = L_AUX + 1024
L_CNT = L_AUX + 2048
L_NON = L_CNT + 32
L_A0 = L_AUX + 2560
L_CH = L_AUX + 3072
L_WD = L_AUX + 4096
L_Z = 0
ZROW = 64; ZB = 96
VROW = 5248
P2W = 10240
P2STEP = [STG, STG + 5120, 2*STG, 2*STG + 5120, 0, 5120]
PT = [STG, STG + 4416, 2*STG + 128, 2*STG + 128 + 4416, 0]
ST = [40960, STG + 40960 + 64, 2*STG + 40960 + 128, 3*STG + 4096 + 192, 3*STG + 4096 + 192 + 4416 ]
PQ, PN, PE = 272, 1088, 4416
LDS_BYTES = 163840

a = Asm()
stamp_n = [0]
def stamp(i):
    if STAMPS and opts.get('diag') == 'c' and i in (1, 2): a(f's_memtime s[{88 + 2*i}:{89 + 2*i}]'); return
    if STAMPS and opts.get('diag') == 'c' and i in (5, 6): return
    if STAMPS:
        if not ((FAKEW or FAKEH) and i >= 5): a(f's_memrealtime s[{80+2*i}:{81+2*i}]')
TICKS = opt('ticks', 0)
def tick(reg, idx):
    if TICKS:
        a('s_memrealtime s[98:99]'); a('s_waitcnt lgkmcnt(0)')
        if isinstance(idx, tuple):
            a(f's_add_u32 m0, {idx[0]}, {idx[1]}'); a('s_nop 3'); a(f'v_writelane_b32 v{reg}, s98, m0')
        else:
            a(f'v_writelane_b32 v{reg}, s98, {idx}')
def tick_dump(reg, tmp):
    if TICKS:
        a('s_lshl_b32 s98, s2, 3'); a('s_add_u32 s98, s98, s3'); a('s_lshl_b32 s98, s98, 8'); a(f's_add_u32 s98, s98, {WS_TS + 0x100000}')
        a(f'v_lshlrev_b32 v{tmp}, 2, v0')
        a(f'buffer_store_dword v{reg}, v{tmp}, s[12:15], s98 offen')
def rbf(v):
    a(f'v_cvt_pk_bf16_f32 v{v}, v{v}, v{v}')
    a(f'v_lshlrev_b32 v{v}, 16, v{v}')
def srd_from(d, b, nbytes):
    srd(a, d, b, nbytes)
spin_ids = {}
def spin_begin(name):
    a(f's_mov_b32 s79, 0')
    a(f'{name}:')
def spin_end(name):
    a(f's_cbranch_scc1 {name}_ok')
    a('s_add_u32 s79, s79, 1')
    a(f's_cmp_ge_u32 s79, {SPINMAX}')
    if STAMPS: spin_ids[name] = 100 + len(spin_ids); a(f's_cselect_b32 s101, {spin_ids[name]}, s101')
    a(f's_cbranch_scc1 {name}_ok')
    a(f"s_sleep {opt('gsl', 4)}")
    a(f's_branch {name}')
    a(f'{name}_ok:')

def lds_arrive(off, v):
    a(f'v_mov_b32 v{v}, {L_CNT}'); a(f'v_mov_b32 v{v+1}, 1')
    a('s_waitcnt lgkmcnt(0)')
    a('s_mov_b64 exec, 1')
    a(f'ds_add_u32 v{v}, v{v+1} offset:{off}')
    a('s_mov_b64 exec, -1')
wait_ids = {}
def lds_wait(name, off, v, cnt=4):
    wait_ids[name] = len(wait_ids) + 1
    a(f'v_mov_b32 v{v}, {L_CNT}')
    a('s_mov_b32 s100, 0')
    a(f'{name}:')
    a(f'ds_read_b32 v{v+1}, v{v} offset:{off}')
    a('s_waitcnt lgkmcnt(0)')
    a(f'v_readfirstlane_b32 s78, v{v+1}')
    a(f's_cmp_lt_u32 s78, {cnt}')
    a(f's_cbranch_scc0 {name}_ok')
    a('s_add_u32 s100, s100, 1')
    a(f's_cmp_lt_u32 s100, {SPINMAX*8}')
    a(f"s_sleep {opt('lsl', 3)}")
    a(f's_cbranch_scc1 {name}')
    if STAMPS: a(f's_mov_b32 s101, {wait_ids[name]}')
    a(f'{name}_ok:')
a.begin(KNAME)
a('s_cmp_ge_u32 s2, 256')
a('s_cbranch_scc1 L_done')
stamp(0)
if STAMPS: a('s_mov_b32 s101, 0')
a('s_load_dwordx2 s[64:65], s[0:1], 0')
a('s_load_dwordx4 s[60:63], s[0:1], 24')
a('s_load_dwordx8 s[48:55], s[0:1], 48')
a('s_load_dwordx4 s[56:59], s[0:1], 80')
a('v_lshrrev_b32 v1, 6, v0')
a('v_and_b32 v0, 63, v0')
a('v_readfirstlane_b32 s3, v1')
a('s_and_b32 s40, s2, 7'); a('s_lshr_b32 s41, s2, 3')
a('s_and_b32 s31, s40, 1'); a('s_lshr_b32 s30, s40, 1')
a('s_and_b32 s32, s41, 7'); a('s_lshr_b32 s33, s41, 3')
a('s_lshl_b32 s28, s31, 3'); a('s_add_u32 s28, s28, s32')
a('s_mul_i32 s29, s30, 3'); a('s_add_u32 s29, s29, s33')
a('s_add_u32 s42, s30, 12')
a('s_cmp_eq_u32 s33, 3')
a('s_cselect_b32 s29, s42, s29')
a('s_cselect_b32 s35, 1, 0')
OFFA = opt('offa', 2)
assert DF or OFFA == 0
if OFFA == 0: a('s_mul_i32 s34, s30, 5'); a('s_add_u32 s34, s34, 1'); a('s_lshr_b32 s34, s34, 1')
elif OFFA == 1: a('s_min_u32 s34, s30, 1'); a('s_add_u32 s34, s34, s30')
elif OFFA == 2: a('s_mov_b32 s34, 0')
elif OFFA == 3: a('s_min_u32 s34, s30, 1'); a('s_add_u32 s34, s34, s30'); a('s_and_b32 s42, s30, 1'); a('s_mul_i32 s42, s42, 5'); a('s_add_u32 s34, s34, s42')
a('s_mul_i32 s42, s31, 5'); a('s_add_u32 s34, s34, s42')
a('s_cmp_ge_u32 s34, 10'); a('s_cselect_b32 s42, 10, 0'); a('s_sub_u32 s34, s34, s42')
if P2MAP == 0:
    a('s_lshl_b32 s42, s30, 3'); a('s_add_u32 s42, s42, s32')
    a('s_lshl_b32 s38, s31, 2'); a('s_add_u32 s38, s38, s33')
else:
    a('s_lshl_b32 s42, s40, 2'); a('s_add_u32 s42, s42, s33')
    a('s_mov_b32 s38, s32')
if EARLY < 0:
    a('s_mul_i32 s39, s32, 3'); a('s_lshr_b32 s39, s39, 1'); a('s_mul_i32 s66, s33, 3'); a('s_add_u32 s39, s39, s66')
    a('s_cmp_ge_u32 s39, 12'); a('s_cselect_b32 s66, 12, 0'); a('s_sub_u32 s39, s39, s66')
else:
    a('s_lshl_b32 s39, s33, 1'); a('s_add_u32 s39, s39, s32'); a('s_mul_i32 s39, s39, 3'); a('s_lshr_b32 s39, s39, 2')
    a('s_cmp_ge_u32 s39, 6'); a('s_cselect_b32 s66, 6, 0'); a('s_sub_u32 s39, s39, s66')
if not P2ROT: a('s_mov_b32 s39, 0')
if P2ROT == 2: a('s_mul_i32 s39, s32, 3'); a('s_lshr_b32 s39, s39, 1')
if P2ROT == 3: a('s_mul_i32 s39, s33, 3')
if P2ROT == 4: a('s_add_u32 s39, s32, s33'); a('s_and_b32 s39, s39, 1'); a('s_mul_i32 s39, s39, 6')
if P2ROT == 5: a('s_and_b32 s39, s2, 7'); a('s_mul_i32 s39, s39, 3'); a(f's_lshr_b32 s39, s39, {1 if EARLY < 0 else 2}')
a('s_lshr_b32 s36, s42, 1'); a('s_and_b32 s37, s42, 1')
WSOFF = opt('wsoff', 0)
WSRD = 's[12:15]'; HSRD = 's[12:15]'
def common_srds(loader=False):
    a('s_waitcnt lgkmcnt(0)')
    tick(7, 50)
    srd(a, 12, 58, WS_SIZE, WSOFF << 20)
    if not loader:
        srd_from(4, 64, S*D*2)
        srd_from(16, 54, S*D*2)
        srd_from(20, 52, F*D*2)
        srd_from(24, 56, 256)
a('s_cmp_lt_u32 s3, 4')
a('s_cbranch_scc1 L_compute')
a('s_sub_u32 s44, s3, 4')
a('s_cmp_eq_u32 s44, 3')
a('s_cbranch_scc1 L_aux')

W0 = 5
PT_ = [20, 21, 22, 23, 24, 25, 26, 27, 4, 5, 6, 7, 16, 17, 18, 19]
GT_ = [66, 67, 68, 69, 76, 77, 78, 79, 96, 97, 100, 101, 40, 41, 42, 43]
GT_ = [66, 67, 68, 69, 76, 77, 78, 79, 28, 29, 30, 31, 40, 41, 33, 43]
def emit_p0(dst, t):
    a(f's_min_u32 s{t}, s30, 1'); a(f's_add_u32 s{dst}, s30, s{t}'); a(f's_mul_i32 s{t}, s31, 3'); a(f's_add_u32 s{dst}, s{dst}, s{t}')
    a(f's_cmp_ge_u32 s{dst}, 5'); a(f's_cselect_b32 s{t}, 5, 0'); a(f's_sub_u32 s{dst}, s{dst}, s{t}')
H0 = opt('h0', 12)
def dma_loop(name, npieces):
    h = npieces * H0 // 16
    def pieces1(lo, hi, pol):
        for t in range(lo, hi):
            a(f's_add_u32 m0, s{PT_[t]}, s46'); a('s_nop 0')
            a(f'buffer_load_dwordx4 v{4 + (t & 1)}, s[8:11], s{GT_[t]} offen {pol} lds')
    def pieces(lo, hi):
        if not NTM: return pieces1(lo, hi, RP)
        L = a.label('L_pc')
        a('s_bitcmp1_b32 s50, s47'); a(f's_cbranch_scc1 {L}_n')
        pieces1(lo, hi, ''); a(f's_branch {L}_e')
        a(f'{L}_n:'); pieces1(lo, hi, 'nt'); a(f'{L}_e:')
    a('s_mov_b32 s46, 0'); a('s_mov_b32 s47, 0')
    a('v_add_u32 v4, s42, v4'); a('v_add_u32 v5, s42, v5')
    tick(7, 51)
    if opt('uni', 0):
        pieces(0, h)
        a(f'{name}_l:')
        pieces(h, npieces)
        a('s_cmp_eq_u32 s47, 9'); a('s_cbranch_scc1 L_p2last')
        a('s_add_u32 s45, s45, 1'); a('s_cmp_eq_u32 s45, 10'); a('s_cselect_b32 s45, 0, s45')
        a('s_cselect_b32 s42, s49, s48')
        a('v_add_u32 v4, s42, v4'); a('v_add_u32 v5, s42, v5')
        a(f's_add_u32 s46, s46, {STG}'); a(f's_cmp_eq_u32 s46, {3*STG}'); a('s_cselect_b32 s46, 0, s46')
        pieces(0, h)
        a(f's_waitcnt vmcnt({h})')
        tick(7, ('s47', 0))
        a('s_barrier')
        tick(7, ('s47', 16))
        a('s_add_u32 s47, s47, 1'); a(f's_branch {name}_l')
        return
    a(f'{name}_l:')
    pieces(0, h)
    a('s_cmp_lg_u32 s47, 1'); a(f's_cbranch_scc1 {name}_m')
    a(f's_waitcnt vmcnt({h})')
    tick(7, 0)
    a('s_barrier')
    tick(7, 16)
    a(f'{name}_m:')
    pieces(h, npieces)
    a('s_add_u32 s45, s45, 1'); a('s_cmp_eq_u32 s45, 10'); a('s_cselect_b32 s45, 0, s45')
    a('s_cselect_b32 s42, s49, s48')
    a('s_mov_b32 s70, s48'); a('s_mov_b32 s48, s51'); a('s_mov_b32 s51, s70')
    a('v_add_u32 v4, s42, v4'); a('v_add_u32 v5, s42, v5')
    a(f's_add_u32 s46, s46, {STG}'); a(f's_cmp_eq_u32 s46, {3*STG}'); a('s_cselect_b32 s46, 0, s46')
    tick(7, ('s47', 52))
    a('s_cmp_lt_u32 s47, 2'); a(f's_cbranch_scc1 {name}_nx')
    a(f's_waitcnt vmcnt({npieces})')
    tick(7, ('s47', -1))
    a('s_barrier')
    tick(7, ('s47', 15))
    a('s_cmp_eq_u32 s47, 9'); a('s_cbranch_scc1 L_p2last')
    a(f'{name}_nx:')
    a('s_add_u32 s47, s47, 1'); a(f's_branch {name}_l')

a('s_cmp_eq_u32 s44, 2')
a('s_cbranch_scc1 L_ldx')
a('s_cmp_eq_u32 s35, 1')
a('s_cbranch_scc1 L_ldc')
a('v_lshrrev_b32 v1, 4, v0')
a('v_and_b32 v2, 15, v0')
a('v_lshlrev_b32 v3, 1, v1')
a('v_xor_b32 v2, v2, v3')
a('v_lshlrev_b32 v2, 4, v2')
a(f'v_mul_u32_u24 v3, {F*2}, v1')
a('v_add_u32 v2, v2, v3')
a('s_lshl_b32 s70, s29, 8')
a('v_add_u32 v2, s70, v2')
a('s_and_b32 s70, s32, 1'); a('s_lshl_b32 s70, s70, 7')
a('v_xor_b32 v4, s70, v2')
a('v_xor_b32 v5, 128, v4')
a('s_lshl_b32 s70, s32, 11')
a('s_lshl_b32 s71, s44, 14')
for g in range(4):
    if g: a('s_add_u32 s70, s70, 2048'); a('s_and_b32 s70, s70, 0x3c00')
    a(f's_or_b32 s{PT_[4*g]}, s70, s71'); a(f's_mul_i32 s{GT_[4*g]}, s70, 12')
    a(f's_add_u32 s{PT_[4*g+2]}, s{PT_[4*g]}, 1024'); a(f's_add_u32 s{GT_[4*g+2]}, s{GT_[4*g]}, {4*F*2}')
    a('s_add_u32 s70, s70, 2048'); a('s_and_b32 s70, s70, 0x3c00')
    a(f's_or_b32 s{PT_[4*g+1]}, s70, s71'); a(f's_mul_i32 s{GT_[4*g+1]}, s70, 12')
    a(f's_add_u32 s{PT_[4*g+3]}, s{PT_[4*g+1]}, 1024'); a(f's_add_u32 s{GT_[4*g+3]}, s{GT_[4*g+1]}, {4*F*2}')
a('s_cmp_eq_u32 s44, 1')
a('s_waitcnt lgkmcnt(0)')
a('s_cselect_b32 s8, s50, s48'); a('s_cselect_b32 s9, s51, s49'); a(f's_mov_b32 s10, {D*F*2}'); a('s_mov_b32 s11, 0x00020000')
a(f's_mov_b32 s48, {64*F*2}'); a('s_mov_b32 s51, s48'); a('s_mov_b32 s45, s34'); a('s_mul_i32 s42, s34, s48'); a('s_mul_i32 s49, s48, -9')
if NTM: a(f's_mov_b32 s50, {NTM[0]}')
a('s_branch L_ld16')
a('L_ldx:')
if DF: emit_p0(71, 72)
a('v_lshrrev_b32 v1, 3, v0')
a('v_and_b32 v2, 7, v0')
a('v_lshrrev_b32 v3, 1, v1')
a('v_xor_b32 v2, v2, v3')
a('v_lshlrev_b32 v2, 4, v2')
a('v_lshrrev_b32 v3, 2, v1'); a('v_and_b32 v6, 3, v1'); a('v_lshl_add_u32 v3, v6, 2, v3')
XMAP = opt('xmap', 0)
if XMAP == 0:
    a('v_lshlrev_b32 v3, 7, v3'); a('v_add_u32 v3, s28, v3')
elif XMAP == 1:
    a('v_lshlrev_b32 v3, 7, v3'); a('s_lshl_b32 s70, s28, 3'); a('v_add_u32 v3, s70, v3')
else:
    a('v_lshlrev_b32 v3, 3, v3'); a('s_lshl_b32 s70, s28, 7'); a('v_add_u32 v3, s70, v3')
a(f'v_mul_u32_u24 v3, {D*2}, v3')
a('v_add_u32 v4, v2, v3')
a('v_xor_b32 v5, 64, v4'); a(f'v_add_u32 v5, {(256 if XMAP < 2 else 16)*D*2}, v5')
a('s_lshl_b32 s70, s33, 12')
for t in range(0, 16, 2):
    if t: a('s_add_u32 s70, s70, 2048'); a('s_and_b32 s70, s70, 0x3c00')
    a(f's_or_b32 s{PT_[t]}, s70, 0x8000'); a(f's_or_b32 s{PT_[t+1]}, s70, 0x8400')
    if XMAP == 0: a(f's_mul_i32 s{GT_[t]}, s70, {16*D*2//2048}')
    else: a(f's_mul_i32 s{GT_[t]}, s70, 5'); a(f's_lshr_b32 s{GT_[t]}, s{GT_[t]}, 3')
    a(f's_mov_b32 s{GT_[t+1]}, s{GT_[t]}')
a('s_waitcnt lgkmcnt(0)')
srd_from(8, 64, S*D*2)
a('s_movk_i32 s48, 128'); a('s_movk_i32 s51, 128'); a('s_mov_b32 s45, s34'); a('s_lshl_b32 s42, s34, 7'); a('s_movk_i32 s49, -1152')
if DF:
    a('s_cmp_eq_u32 s35, 0'); a('s_cbranch_scc1 L_ld16')
    a('s_movk_i32 s48, 640'); a('s_movk_i32 s51, -512'); a('s_lshl_b32 s45, s71, 1'); a('s_lshl_b32 s42, s71, 7')
if NTM: a(f's_mov_b32 s50, {NTM[1]}')
a('L_ld16:')
dma_loop('L_ldw', 16)
a('L_ldc:')
a('v_lshrrev_b32 v1, 3, v0')
a('v_and_b32 v2, 7, v0')
a('v_lshrrev_b32 v3, 1, v1')
a('v_xor_b32 v2, v2, v3')
a('v_lshlrev_b32 v2, 4, v2')
if DF:
    emit_p0(45, 72)
    a('s_lshr_b32 s70, s30, 1'); a('s_mul_i32 s70, s70, 160'); a('s_and_b32 s71, s30, 1'); a('s_add_u32 s70, s70, s71'); a('s_add_u32 s70, s70, 1')
    a('v_lshlrev_b32 v1, 1, v1')
else:
    a('s_mul_i32 s70, s30, 80'); a('s_add_u32 s70, s70, 1')
a('v_add_u32 v1, s70, v1')
a(f'v_mul_u32_u24 v3, {D*2}, v1')
a('v_add_u32 v2, v2, v3')
a('s_and_b32 s70, s32, 1'); a('s_lshl_b32 s70, s70, 6')
a('v_xor_b32 v4, s70, v2')
a('v_xor_b32 v5, 64, v4')
a('s_lshl_b32 s70, s32, 10')
a('s_lshl_b32 s71, s44, 14')
for t in range(10):
    if t: a('s_add_u32 s70, s70, 1024'); a('s_cmp_eq_u32 s70, 10240'); a('s_cselect_b32 s70, 0, s70')
    a(f's_or_b32 s{PT_[t]}, s70, s71'); a(f's_mul_i32 s{GT_[t]}, s70, {(16 if DF else 8)*D*2//1024}')
a('s_cmp_eq_u32 s44, 1')
a('s_waitcnt lgkmcnt(0)')
a('s_cselect_b32 s8, s62, s60'); a('s_cselect_b32 s9, s63, s61'); a(f's_mov_b32 s10, {D*D*2}'); a('s_mov_b32 s11, 0x00020000')
if not DF:
    a('s_movk_i32 s48, 128'); a('s_movk_i32 s51, 128'); a('s_mov_b32 s45, s34'); a('s_lshl_b32 s42, s34, 7'); a('s_movk_i32 s49, -1152')
    if NTM: a(f's_mov_b32 s50, {NTM[0]}')
    dma_loop('L_ldcl', 10)
else:
    a('s_lshl_b32 s42, s45, 7'); a('v_add_u32 v4, s42, v4'); a('v_add_u32 v5, s42, v5')
    a(f's_mov_b32 s46, {STG}'); a('s_mov_b32 s47, 1')
    a('L_ldcl:')
    for t in range(10):
        a(f's_add_u32 m0, s{PT_[t]}, s46'); a('s_nop 0')
        a(f'buffer_load_dwordx4 v{4 + (t & 1)}, s[8:11], s{GT_[t]} offen lds')
    a('s_add_u32 s45, s45, 1'); a('s_cmp_eq_u32 s45, 5'); a('s_cselect_b32 s45, 0, s45')
    a('s_movk_i32 s42, 128'); a('s_cselect_b32 s42, -512, s42')
    a('v_add_u32 v4, s42, v4'); a('v_add_u32 v5, s42, v5')
    a(f's_sub_u32 s46, s46, {STG}'); a(f's_cselect_b32 s46, {2*STG}, s46')
    a('s_barrier')
    a('s_cmp_eq_u32 s47, 9'); a('s_cbranch_scc1 L_p2last')
    a('s_waitcnt vmcnt(0)')
    a('s_barrier')
    a('s_add_u32 s47, s47, 2'); a('s_branch L_ldcl')

P2ACC = 176; P2W_R = 56; P2H = 8
def p2_setup():
    a('v_lshlrev_b32 v1, 4, v0')
    srd(a, 12, 58, WS_SIZE, WSOFF << 20)
    a('s_mul_i32 s70, s38, 48'); a('s_mul_i32 s71, s44, 12'); a('s_add_u32 s70, s70, s71')
    a(f's_mul_i32 s70, s70, 5120'); a(f's_add_u32 s70, s70, {WS_WDT}')
    a(f's_mul_i32 s73, s44, {P2W}')
def kidx(step):
    if EARLY < 0:
        a(f's_add_u32 s72, s39, {step}'); a('s_cmp_ge_u32 s72, 12'); a('s_cselect_b32 s71, 12, 0'); a('s_sub_u32 s72, s72, s71')
    else:
        a(f's_add_u32 s72, s39, {step % 6}'); a('s_cmp_ge_u32 s72, 6'); a('s_cselect_b32 s71, 6, 0'); a('s_sub_u32 s72, s72, s71')
        a('s_lshl_b32 s72, s72, 1')
        if (step >= 6) != bool(HALF): a('s_add_u32 s72, s72, 1')
def wdt_reg(step):
    kidx(step)
    a('s_mul_i32 s72, s72, 5120'); a('s_add_u32 s72, s72, s70')
    for ei in range(5):
        r = P2W_R + 20*step + 4*ei
        if ei == 4: a('s_add_u32 s72, s72, 4096')
        a(f'buffer_load_dwordx4 v[{r}:{r+3}], v1, {WSRD}, s72 offen offset:{(ei % 4)*1024} {LDW}')
def wdt_lds(step):
    kidx(step)
    a('s_mul_i32 s72, s72, 5120'); a('s_add_u32 s72, s72, s70')
    for ei in range(5):
        a(f's_add_u32 m0, s73, {P2STEP[step-6] + ei*1024}')
        if ei: a('s_add_u32 s72, s72, 1024')
        else: a('s_nop 0')
        a(f'buffer_load_dwordx4 v1, {WSRD}, s72 offen {LDW} lds')
WD = [[0, 1], [2, 3], [4, 5], []]
def read_nonce(v):
    a(f'v_mov_b32 v{v}, {L_NON}'); a(f'ds_read_b32 v{v}, v{v}'); a('s_waitcnt lgkmcnt(0)'); a(f'v_readfirstlane_b32 s43, v{v}')
def final_addr(tau_off, d4, d5, d11, t, a=a):
    v4, v5, v6, v7, v8, v9, v10 = d4, d5, t, t+1, t+2, t+3, t+4
    a('s_lshl_b32 s66, s3, 6'); a(f's_add_u32 s66, s66, {tau_off}')
    a(f'v_add_u32 v{v4}, s66, v0')
    a(f'v_mul_u32_u24 v{v5}, 6554, v{v4}'); a(f'v_lshrrev_b32 v{v5}, 16, v{v5}')
    a(f'v_mul_u32_u24 v{v6}, 10, v{v5}'); a(f'v_sub_u32 v{v6}, v{v4}, v{v6}')
    a(f'v_lshrrev_b32 v{v7}, 4, v{v5}'); a(f'v_and_b32 v{v5}, 15, v{v5}')
    a(f'v_lshrrev_b32 v{v9}, 1, v{v6}')
    a(f'v_mov_b32 v{v10}, {PT[0]}'); a(f'v_mov_b32 v{d11}, {ST[0]}')
    for e in range(1, 5):
        a(f'v_cmp_eq_u32 vcc, {e}, v{v9}'); a(f'v_mov_b32 v{t+5}, {PT[e]}'); a(f'v_mov_b32 v{t+6}, {ST[e]}')
        a(f'v_cndmask_b32 v{v10}, v{v10}, v{t+5}, vcc'); a(f'v_cndmask_b32 v{d11}, v{d11}, v{t+6}, vcc')
    a(f'v_and_b32 v{v8}, 1, v{v6}'); a(f'v_mul_u32_u24 v{v4}, {2*PQ}, v{v8}')
    a(f'v_mul_u32_u24 v{v8}, {PN}, v{v7}'); a(f'v_add_u32 v{v4}, v{v4}, v{v8}'); a(f'v_lshl_add_u32 v{v4}, v{v5}, 4, v{v4}')
    a(f'v_add_u32 v{d11}, v{d11}, v{v4}'); a(f'v_add_u32 v{v4}, v{v10}, v{v4}')
    a(f'v_lshrrev_b32 v{v8}, 2, v{v5}'); a(f'v_and_b32 v{v5}, 3, v{v5}'); a(f'v_lshl_add_u32 v{v5}, v{v5}, 2, v{v8}')
    a(f'v_lshlrev_b32 v{v5}, 3, v{v5}'); a(f'v_add_u32 v{v5}, v{v5}, v{v7}'); a(f'v_lshlrev_b32 v{v5}, 4, v{v5}')
    a('s_lshl_b32 s66, s37, 6'); a('s_add_u32 s66, s66, s36'); a(f'v_add_u32 v{v5}, s66, v{v5}')
    a(f'v_mul_u32_u24 v{v5}, {D*2}, v{v5}'); a(f'v_lshl_add_u32 v{v5}, v{v6}, 4, v{v5}'); a('s_mul_i32 s66, s38, 160'); a(f'v_add_u32 v{v5}, s66, v{v5}')

VB0, VB1 = 128, 144
def p2h_setup():
    a('s_cmp_ge_u32 s38, 4'); a('s_cselect_b32 s55, 1, 0')
    a('s_sub_u32 s67, 16, s36'); a('s_xor_b32 s68, s37, 1')
    a('s_cmp_eq_u32 s55, 1')
    a('s_cselect_b32 s67, s67, s36'); a('s_cselect_b32 s68, s68, s37')
    a('s_and_b32 s60, s67, 3'); a('s_lshl_b32 s60, s60, 7'); a(f's_add_u32 s60, s60, {WS_FV}')
    a('s_lshl_b32 s67, s67, 1'); a('s_add_u32 s67, s67, s68'); a(f's_mul_i32 s67, s67, {VROW}'); a(f's_add_u32 s56, s67, {WS_V}')
    a('s_lshl_b32 s57, s55, 9'); a('s_sub_u32 s57, 256, s57')
def fv_addr(v, t):
    if DF:
        a(f'v_lshrrev_b32 v{v}, 4, v0'); a(f'v_lshlrev_b32 v{v}, 9, v{v}'); a(f'v_and_b32 v{t}, 15, v0'); a(f'v_lshl_add_u32 v{v}, v{t}, 2, v{v}')
        return
    a('s_sub_u32 s66, 7, s38'); a('s_sub_u32 s67, s38, 1'); a('s_max_i32 s67, s67, 0')
    a('s_cmp_ge_u32 s38, 4'); a('s_cselect_b32 s67, s66, s67'); a('s_cselect_b32 s66, s66, s38')
    a(f'v_mov_b32 v{v}, s66'); a(f'v_mov_b32 v{t}, s67'); a(f'v_bfe_u32 v{t+1}, v0, 4, 1'); a(f'v_cmp_eq_u32 vcc, 0, v{t+1}'); a(f'v_and_b32 v{t+1}, 15, v0')
    a(f'v_cndmask_b32 v{v}, v{t}, v{v}, vcc'); a(f'v_lshlrev_b32 v{v}, 9, v{v}'); a(f'v_lshl_add_u32 v{v}, v{t+1}, 2, v{v}')
def pre_loop():
    for r in range(3):
        final_addr(256*r, FA[3*r], FA[3*r+1], FA[3*r+2], 40)
    a('s_cmp_ge_u32 s3, 2'); a('s_cselect_b32 s66, -1, 0'); a(f'v_or_b32 v{FA[7]}, s66, v{FA[7]}')
    fv_addr(VFL, 40)
    if DF:
        for dst, ei in ((VA0, 's3'), (VA4, '4')):
            a('s_mul_i32 s66, s38, 80'); a(f's_lshl_b32 s67, {ei}, 4'); a('s_add_u32 s66, s66, s67'); a('v_add_u32 v40, s66, v3')
            a('v_sub_u32 v41, 640, v40'); a('s_cmp_eq_u32 s55, 1'); a('s_cselect_b64 vcc, -1, 0'); a('s_nop 1')
            a('v_cndmask_b32 v40, v40, v41, vcc')
            a('v_and_b32 v41, 1, v40'); a('v_mul_u32_u24 v41, 160, v41'); a('v_add_u32 v42, 335, v40'); a('v_lshrrev_b32 v42, 1, v42'); a('v_sub_u32 v42, v42, v41')
            a('v_cmp_eq_u32 vcc, 0, v40'); a(f'v_mul_u32_u24 v43, {4*17*2*VROW}, v2'); a('s_nop 0')
            a('v_cndmask_b32 v42, v42, 7, vcc')
            a(f'v_lshl_add_u32 v{dst}, v42, 4, v43')
        return
    a('s_mul_i32 s66, s38, 80'); a('v_add_u32 v40, s66, v3')
    a('v_add_u32 v41, 7, v40'); a('v_sub_u32 v42, 647, v40')
    a('s_cmp_eq_u32 s55, 1'); a('s_cselect_b64 vcc, -1, 0')
    a(f'v_mul_u32_u24 v43, {4*17*2*VROW}, v2')
    a('v_cndmask_b32 v40, v41, v42, vcc')
    a('v_lshl_add_u32 v43, v40, 4, v43')
    a('s_mul_i32 s66, s3, s57'); a(f'v_add_u32 v{VA0}, s66, v43')
    a('s_lshl_b32 s66, s57, 2'); a(f'v_add_u32 v{VA4}, s66, v43')
def pre_epilogue():
    for r in range(3): a(f'buffer_load_dwordx4 v[{XR[r]}:{XR[r]+3}], v{FA[3*r+1]}, s[4:7], 0 offen {XP_}')
def v_loads():
    L = a.label('L_vl')
    a('s_mov_b32 s72, s56')
    for i in range(4):
        a(f'buffer_load_dwordx4 v[{VB0+4*i}:{VB0+3+4*i}], v{VA0}, s[12:15], s72 offen {LDH}')
        if i < 3: a(f's_add_u32 s72, s72, {17*2*VROW}')
    a('s_cmp_lg_u32 s3, 0'); a(f's_cbranch_scc1 {L}')
    a('s_mov_b32 s72, s56')
    for i in range(4):
        a(f'buffer_load_dwordx4 v[{VB1+4*i}:{VB1+3+4*i}], v{VA4}, s[12:15], s72 offen {LDH}')
        if i < 3: a(f's_add_u32 s72, s72, {17*2*VROW}')
    a(f'{L}:')

a('L_p2last:')
a('s_waitcnt vmcnt(0)')
lds_arrive(12, 2)
read_nonce(2)
p2_setup()
srd_from(16, 54, S*D*2)
if FWL: lds_wait('L_fwok', 44, 2, 1)
a('L_p2join:')
tick(7, 27)
NLATE = opt('nlate', 6)
WTOUCH = opt('wtouch', 0)
if WTOUCH:
    a('s_cmp_eq_u32 s35, 0'); a('s_cbranch_scc1 L_nwt')
    a('s_lshl_b32 s66, s32, 2'); a('s_add_u32 s66, s66, s44'); a('s_mul_i32 s66, s66, 23040')
    a('s_and_b32 s67, s38, 4'); a(f's_mul_i32 s67, s67, {48*5120}'); a('s_add_u32 s66, s66, s67'); a(f's_add_u32 s66, s66, {WS_WDT}')
    a('v_lshlrev_b32 v4, 7, v0')
    if WTOUCH == 2:
        for st in range(6): wdt_reg(st)
    for i in range(3):
        a(f'buffer_load_dword v8, v4, s[12:15], s66 offen {LDW}')
        if i < 2: a('s_add_u32 s66, s66, 8192')
    if WTOUCH == 2: a('s_branch L_p2d')
    a('L_nwt:')
for st in range(6): wdt_reg(st)
NLD = opt('nld', 2)
a('s_cmp_eq_u32 s35, 0')
a('s_cbranch_scc1 L_p2ffn')
if NLD < 6:
    for st in (6, 7): wdt_lds(st)
if NLD < 4:
    lds_wait('L_c8d', 16, 4)
    for st in (8, 9): wdt_lds(st)
a('s_branch L_p2d')
a('L_p2ffn:')
if NLATE < 6:
    for st in (6, 7): wdt_lds(st)
if NLATE < 4:
    lds_wait('L_c8', 16, 4)
    for st in (8, 9): wdt_lds(st)
if NLATE < 2:
    lds_wait('L_c9', 20, 4)
    for st in (10, 11): wdt_lds(st)
if AUXV:
    a('s_cmp_lg_u32 s44, 3'); a('s_cbranch_scc1 L_p2d')
    p2h_setup(); fv_addr(8, 9)
    a('s_mov_b32 s79, 0')
    a('L_av:')
    a('buffer_load_dword v9, v8, s[12:15], s60 offen sc1')
    a('s_waitcnt vmcnt(0)')
    a('v_cmp_ne_u32 vcc, s43, v9'); a('s_cmp_eq_u64 vcc, 0'); a('s_cbranch_scc1 L_av_ok')
    a('s_add_u32 s79, s79, 1'); a(f's_cmp_ge_u32 s79, {AUXV}'); a('s_cbranch_scc1 L_p2d')
    a('s_branch L_av')
    a('L_av_ok:')
    lds_arrive(28, 8)
a('L_p2d:')
tick(7, 28)
a(f'v_add_u32 v2, s73, v1')
a(f'v_add_u32 v3, {2*STG}, v2')
a('v_min_u32 v4, 5, v0'); a('v_lshrrev_b32 v5, 1, v4'); a('v_and_b32 v4, 1, v4'); a('v_lshlrev_b32 v4, 2, v4'); a('v_lshl_add_u32 v6, v5, 4, v4')
a('s_lshl_b32 s76, s36, 8'); a('s_mul_i32 s77, s44, 48'); a('s_add_u32 s76, s76, s77'); a('s_lshl_b32 s77, s37, 3'); a('s_add_u32 s76, s76, s77'); a(f's_add_u32 s76, s76, {WS_FH}')
a('s_lshl_b32 s74, s36, 3'); a('s_lshl_b32 s75, s37, 2'); a('s_add_u32 s74, s74, s75')
a('s_mul_i32 s74, s74, 48'); a('s_mul_i32 s75, s44, 12'); a('s_add_u32 s74, s74, s75'); a('s_lshl_b32 s74, s74, 10')
for i in range(80): a(f'v_mov_b32 v{P2ACC+i}, 0')
a('s_barrier') if CBAR else lds_wait('L_own', 0, 4, 5 if SENT else 4)
tick(7, 29)
stamp(2)
if TONE:
    a('s_cmp_eq_u32 s35, 0'); a('s_cbranch_scc1 L_p2f')
    for st in range(6, 12 - NLATE): wdt_lds(st)
    a('L_p2f:')
    for st in range(12 - NLATE, 12): wdt_lds(st)
    if HDLY: a(f's_sleep {HDLY}')

tick(7, 32)
def hsoff(step):
    kidx(step)
    a('s_lshl_b32 s72, s72, 10'); a(f's_add_u32 s72, s72, s74')
    if SENT: a(f's_mov_b32 s{66 + step % 4}, s72')
def hld(step, ni):
    r = P2H + 16*(step % 3) + 4*ni
    L = []
    if ni: L.append(f's_add_u32 s72, s72, {48*1024}')
    L.append(f'buffer_load_dwordx4 v[{r}:{r+3}], v1, {HSRD}, s72 offen {LDH}')
    return L
def hpoll(name, kp):
    spin_begin(name)
    a(f'buffer_load_dword v4, v6, s[12:15], s76 offen sc1')
    a('s_waitcnt vmcnt(0)')
    a(f'v_cmp_ne_u32 vcc, s43, v{4+kp}')
    a('s_cmp_eq_u64 vcc, 0')
    spin_end(name)
if not SENT: hpoll('L_pollh0', 0)
else: a('s_waitcnt vmcnt(0)'); a('s_mov_b32 s79, 0')
if VGO and not HF1:
    a(f'v_mov_b32 v4, {L_CNT}'); a('v_mov_b32 v5, 1'); a('ds_write_b32 v4, v5 offset:40')
stamp(3)
tick(7, 33)
for st in range(3):
    hsoff(st)
    for ni in range(4):
        for ins in hld(st, ni): a(ins)
if HF1: lds_arrive(40, 4)
def pwrite(ni):
    return [f'ds_write_b128 v{2 if PT[ei] < 2*STG else 3}, v[{P2ACC+16*ei+4*ni}:{P2ACC+16*ei+4*ni+3}] offset:{PT[ei] + ni*PN - (0 if PT[ei] < 2*STG else 2*STG)}' for ei in range(5)]
for st in range(12):
    rem = min(2, 11 - st)
    RDD = opt('rdd', 2)
    if st == 6 - RDD: lds_wait('L_lw', 36, 4)
    if st < 9: hsoff(st + 3)
    if st == 11:
        a('v_and_b32 v2, 15, v0'); a('v_lshrrev_b32 v4, 4, v0')
        a(f'v_mul_u32_u24 v4, {PQ}, v4'); a('v_lshl_add_u32 v2, v2, 4, v4'); a('v_add_u32 v2, s73, v2'); a(f'v_add_u32 v3, {2*STG}, v2')
    a(f's_waitcnt vmcnt({4*rem})' + (' lgkmcnt(0)' if st >= 6 else ''))
    hb = P2H + 16*(st % 3)
    if SENT and not (HALF and st >= 6):
        a(f'L_hchk{st}:')
        a(f'v_max_u32 v4, v{hb}, v{hb+4}'); a(f'v_max3_u32 v4, v{hb+8}, v{hb+12}, v4')
        a('v_cmp_eq_u32 vcc, -1, v4'); a('s_cmp_lg_u64 vcc, 0')
        a(f's_cbranch_scc1 L_hretry{st}')
        a(f'L_hok{st}:')
    tick(7, 36 + st)
    w0 = P2W_R + 20*(st % 6)
    rd = []
    if 6 <= st + RDD <= 11:
        wr = P2W_R + 20*((st + RDD) % 6)
        for ei in range(5):
            o = P2STEP[st + RDD - 6] + ei*1024
            rd.append(f'ds_read_b128 v[{wr+4*ei}:{wr+4*ei+3}], v{2 if o < 2*STG else 3} offset:{o if o < 2*STG else o - 2*STG}')
    if F8 and st == 10:
        final_addr(0, 8, 9, 10, 11, rd.append)
    for ni in range(4):
        for ei in (range(5) if ni % 2 == 0 else range(4, -1, -1)):
            t = P2ACC + 16*ei + 4*ni
            h = hb + 4*ni
            a(f'v_mfma_f32_16x16x32_bf16 v[{t}:{t+3}], v[{w0+4*ei}:{w0+4*ei+3}], v[{h}:{h+3}], v[{t}:{t+3}]')
            for _ in range(3 if st == 10 else 1):
                if rd: a(rd.pop(0))
        if st < 9:
            for ins in hld(st + 3, ni): a(ins)
        if st == 11 and ni >= 2:
            for w in pwrite(ni - 2): a(w)
for w in pwrite(2): a(w)
a('s_nop 3')
for w in pwrite(3): a(w)
stamp(4)
tick(7, 48)
a('s_waitcnt lgkmcnt(0)')
a('s_barrier')
if F8:
    for p in range(5):
        reg = (8, 8, 8, 8, 10)[p]; off = (0, P2W, 2*P2W, 3*P2W, 0)[p]
        a(f'ds_read_b128 v[{56+8*p}:{59+8*p}], v{reg} offset:{off}')
        a(f'ds_read_b128 v[{60+8*p}:{63+8*p}], v{reg} offset:{off+PQ}')
    for p in range(1, 5):
        a(f's_waitcnt lgkmcnt({8 - 2*p})')
        for d in range(0, 8, 2): a(f'v_pk_add_f32 v[{56+d}:{57+d}], v[{56+d}:{57+d}], v[{56+8*p+d}:{57+8*p+d}]')
    for d in range(4): a(f'v_cvt_pk_bf16_f32 v{64+d}, v{56+2*d}, v{57+2*d}')
    a(f'buffer_store_dwordx4 v[64:67], v9, s[16:19], 0 offen {OUTP}')
tick_dump(7, 4)
a('s_branch L_fin2')
if SENT:
    for st in range(6 if HALF else 12):
        a(f'L_hretry{st}:')
        a('s_add_u32 s79, s79, 1'); a(f's_cmp_ge_u32 s79, {SPINMAX}')
        if STAMPS: a(f's_cselect_b32 s101, {60 + st}, s101')
        a(f's_cbranch_scc1 L_hok{st}')
        if RSL: a(f's_sleep {RSL}')
        a(f's_mov_b32 s77, s{66 + st % 4}')
        for ni in range(4):
            r = P2H + 16*(st % 3) + 4*ni
            if ni: a(f's_add_u32 s77, s77, {48*1024}')
            a(f'buffer_load_dwordx4 v[{r}:{r+3}], v1, {HSRD}, s77 offen {LDH}')
        a('s_waitcnt vmcnt(0)')
        a(f's_branch L_hchk{st}')

a('L_aux:')
if opt('aprio', 0): a(f"s_setprio {opt('aprio', 0)}")
common_srds()
AB = 248
a('v_mov_b32 v1, 0'); a(f'v_mov_b32 v3, {L_CNT}')
a('s_mov_b64 exec, 1')
a('s_cmp_lg_u32 s2, 0'); a('s_cbranch_scc1 L_aux_n0')
a('s_memrealtime s[66:67]'); a('s_waitcnt lgkmcnt(0)'); a('s_or_b32 s66, s66, 1'); a('v_mov_b32 v2, s66')
a('buffer_store_dword v2, v1, s[24:27], 0 offen sc1')
a('L_aux_n0:')
[a(f'ds_write_b32 v3, v1 offset:{4*i}') for i in range(14)]
a('s_mov_b64 exec, -1')
if CODEPF:
    a('s_getpc_b64 s[66:67]')
    a('L_pcref:')
    a(f's_sub_u32 s66, s66, L_pcref-{KNAME}'); a('s_subb_u32 s67, s67, 0')
    a('s_mul_i32 s68, s41, 9')
    a('v_add_u32 v4, s68, v0'); a('v_lshlrev_b32 v4, 7, v4')
    a(f'v_min_u32 v4, L_done-{KNAME}, v4')
    a('s_mov_b64 exec, 0x1ff')
    a(f'global_load_dword v{AB+7}, v4, s[66:67]')
    a('s_mov_b64 exec, -1')
if PFW:
    pf_first, pf_n0 = map(int, PFW.split(','))
    a('v_lshrrev_b32 v14, 4, v0'); a('s_mul_i32 s66, s30, 3'); a('v_add_u32 v14, s66, v14'); a('v_lshlrev_b32 v14, 8, v14')
    a('v_bfe_u32 v15, v0, 1, 3'); a('s_lshl_b32 s66, s32, 3'); a('v_add_u32 v15, s66, v15'); a(f'v_mul_u32_u24 v15, {F*2}, v15'); a('v_add_u32 v14, v14, v15')
    a('v_and_b32 v15, 1, v0'); a('v_lshl_add_u32 v14, v15, 7, v14')
    srd(a, 8, 48, D*F*2); srd(a, 52, 50, D*F*2)
    a(f's_add_u32 s64, s34, {pf_first}'); a(f's_mov_b32 s61, {pf_first}')
    PFC = opts.get('pfc', '1111111')
    a(f's_mov_b32 s60, {sum(int(c) << (4*i) for i, c in enumerate(PFC))}')
    def pfw():
        L = a.label('L_pf')
        a('s_and_b32 s62, s60, 15'); a('s_lshr_b32 s60, s60, 4')
        a(f'{L}_n:')
        a('s_cmp_eq_u32 s62, 0'); a(f's_cbranch_scc1 {L}')
        pfw1(L)
        a('s_sub_u32 s62, s62, 1'); a(f's_branch {L}_n')
        a(f'{L}:')
    def pfw0():
        L = a.label('L_pf')
        pfw1(L)
        a(f'{L}:')
    def pfw1(L):
        a('s_cmp_eq_u32 s35, 0'); a(f's_cbranch_scc1 {L}')
        a(f"s_cmp_ge_u32 s61, {opt('pfl', 10)}"); a(f's_cbranch_scc1 {L}')
        a('s_cmp_ge_u32 s64, 10'); a('s_cselect_b32 s66, 10, 0'); a('s_sub_u32 s64, s64, s66'); a(f's_mul_i32 s66, s64, {64*F*2}')
        a('s_mov_b32 exec_hi, 0xffff')
        a(f'buffer_load_dword v15, v14, s[8:11], s66 offen {PFP}'); a(f'buffer_load_dword v15, v14, s[52:55], s66 offen {PFP}')
        a('s_mov_b64 exec, -1')
        a('s_add_u32 s64, s64, 1'); a('s_add_u32 s61, s61, 1')
    for _ in range(pf_n0): pfw0()
else:
    def pfw(): pass
def wda_load():
    a('v_lshrrev_b32 v4, 4, v0'); a('v_and_b32 v5, 15, v0')
    a(f'v_mul_u32_u24 v4, {D*2}, v4'); a('v_lshl_add_u32 v4, v5, 4, v4')
    a(f's_mul_i32 s68, s56, {32*D*2}'); a('s_lshl_b32 s69, s57, 8'); a('s_add_u32 s68, s68, s69')
    for i in range(8):
        a(f's_mov_b32 m0, {L_WD + i*1024}')
        if i: a(f's_add_u32 s68, s68, {4*D*2}')
        else: a('s_nop 0')
        a(f'buffer_load_dwordx4 v4, s[20:23], s68 offen {WP_} lds')
if WDA:
    wi, wj, wk = map(int, WDA.split(','))
    a(f's_mul_hi_u32 s56, s2, {-(-(1<<32)//5)}'); a('s_mul_i32 s57, s56, 5'); a('s_sub_u32 s57, s2, s57')
    if wi < 0:
        a('s_cmp_ge_u32 s2, 240'); a('s_cbranch_scc1 L_wda0'); wda_load(); a('L_wda0:')
for i in range(48, 56): a(f'v_mov_b32 v{i}, 0')
a('v_lshrrev_b32 v4, 2, v0'); a('v_and_b32 v5, 3, v4'); a('v_bfe_u32 v6, v4, 3, 1'); a('v_lshl_or_b32 v5, v6, 2, v5'); a('v_lshlrev_b32 v5, 1, v5')
a('s_and_b32 s66, s32, 3'); a('s_lshl_b32 s66, s66, 2')
a('v_and_b32 v6, 3, v0'); a('v_add_u32 v6, s66, v6'); a('v_xor_b32 v5, v5, v6')
a('v_lshlrev_b32 v4, 8, v4'); a(f'v_lshl_add_u32 v{AB+1}, v5, 4, v4')
a('s_lshr_b32 s66, s32, 2'); a('s_lshl_b32 s66, s66, 14'); a(f'v_add_u32 v{AB+1}, s66, v{AB+1}')
a('s_cmp_eq_u32 s35, 0'); a('s_cbranch_scc1 L_aux_w')
a('s_and_b32 s67, s32, 3'); a(f's_mul_i32 s67, s67, {20*128}'); a('s_add_u32 s66, s66, s67')
a(f'v_lshlrev_b32 v{AB+1}, 4, v0'); a(f'v_add_u32 v{AB+1}, s66, v{AB+1}')
a('L_aux_w:')
a('s_mov_b32 s46, 0')
a('s_lshl_b32 s77, s29, 1'); a('s_add_u32 s77, s77, s31'); a('s_lshl_b32 s77, s77, 11'); a('s_lshr_b32 s67, s32, 2'); a('s_lshl_b32 s67, s67, 10'); a('s_add_u32 s77, s77, s67'); a(f's_add_u32 s77, s77, {WS_WP}')
a('s_and_b32 s67, s32, 3'); a('s_cmp_eq_u32 s35, 1'); a('s_cselect_b32 s68, 20, 32'); a('s_mul_i32 s67, s67, s68'); a('s_lshl_b32 s67, s67, 3'); a('s_add_u32 s77, s77, s67')
a(f'v_min_u32 v{AB+6}, 47, v0'); a(f'v_lshlrev_b32 v{AB+6}, 2, v{AB+6}')
a('s_mul_i32 s74, s38, 80'); a('s_add_u32 s75, s74, 79'); a('s_lshr_b32 s74, s74, 7'); a('s_lshr_b32 s75, s75, 7')
a('s_lshl_b32 s74, s74, 8'); a('s_lshl_b32 s75, s75, 8'); a(f's_add_u32 s74, s74, {WS_FW}'); a(f's_add_u32 s75, s75, {WS_FW}')
if SENT:
    for i in range(4): a(f'v_mov_b32 v{8+i}, -1')
    a('v_lshlrev_b32 v12, 4, v0')
    a(f's_mul_i32 s76, s28, {8*48*1024}')
    if RDFT: a('s_mul_i32 s67, s30, 12288')
    else: a('s_lshl_b32 s67, s29, 12')
    a('s_add_u32 s76, s76, s67')
a('s_mov_b32 s47, 0'); a('s_mov_b32 s42, 0')
a('s_waitcnt lgkmcnt(0)')
a('L_aux_l:')
tick(7, ('s47', 0))
a('s_barrier')
tick(7, ('s47', 16))
pfw()
a(f'v_add_u32 v{AB+3}, s46, v{AB+1}')
a('s_add_u32 s66, s47, s35') if opt('non2', 0) else a('s_add_u32 s66, s47, 1')
a(f's_cmp_lg_u32 s47, {NONIT-1}'); a('s_cbranch_scc1 L_aux_nb')
a('s_mov_b64 exec, 1'); a('buffer_load_dword v2, v1, s[24:27], 0 offen sc1'); a('s_mov_b64 exec, -1')
a('L_aux_nb:')
a(f's_cmp_lg_u32 s66, {NONIT+1}'); a('s_cbranch_scc1 L_aux_na')
a('s_mov_b32 s79, 0')
a('L_non:')
a('s_waitcnt vmcnt(0)')
a('v_readfirstlane_b32 s43, v2')
a('s_cmp_lg_u32 s43, 0'); a('s_cbranch_scc1 L_non_ok')
a('s_add_u32 s79, s79, 1'); a(f's_cmp_ge_u32 s79, {SPINMAX}'); (a('s_cselect_b32 s101, 51, s101') if STAMPS else None); a('s_cbranch_scc1 L_non_ok')
a('s_sleep 4')
a('s_mov_b64 exec, 1'); a('buffer_load_dword v2, v1, s[24:27], 0 offen sc1'); a('s_mov_b64 exec, -1')
a('s_branch L_non')
a('L_non_ok:')
a('v_mov_b32 v2, s43'); a(f'v_mov_b32 v3, {L_NON}'); a('ds_write_b32 v3, v2')
if not WDA:
    a('s_cmp_ge_u32 s2, 240'); a('s_cbranch_scc1 L_aux_na')
    a(f's_mul_hi_u32 s66, s2, {-(-(1<<32)//5)}'); a('s_mul_i32 s67, s66, 5'); a('s_sub_u32 s67, s2, s67')
    a('s_lshl_b32 s67, s67, 8'); a('s_lshl_b32 s66, s66, 2'); a('s_add_u32 s66, s66, s67'); a(f's_add_u32 s66, s66, {WS_FW}')
    a('s_mov_b64 exec, 1'); a('buffer_store_dword v2, v1, s[12:15], s66 offen sc1'); a('s_mov_b64 exec, -1')
a('L_aux_na:')
if WDA:
    a('s_cmp_ge_u32 s2, 240'); a('s_cbranch_scc1 L_aux_nw')
    if wi >= 0:
        a(f's_cmp_lg_u32 s47, {wi}'); a('s_cbranch_scc1 L_aux_w1'); wda_load(); a('L_aux_w1:')
    a(f's_cmp_lg_u32 s47, {wj}'); a('s_cbranch_scc1 L_aux_w2')
    a('v_lshrrev_b32 v4, 2, v0'); a('v_lshlrev_b32 v4, 8, v4'); a('v_and_b32 v5, 3, v0'); a('v_lshl_add_u32 v4, v5, 3, v4')
    a(f'v_add_u32 v4, {L_WD}, v4')
    a('v_lshlrev_b32 v6, 4, v0')
    a('s_waitcnt vmcnt(0)')
    for e in range(8):
        for b in range(2):
            a(f'ds_read_b64_tr_b16 v[{64+4*e+2*b}:{65+4*e+2*b}], v4 offset:{32*e + 4096*b}')
    a('s_lshl_b32 s63, s57, 3')
    a(f's_mul_i32 s65, s56, 5120'); a(f's_add_u32 s65, s65, {WS_WDT}')
    a('s_waitcnt lgkmcnt(0)')
    for e in range(8):
        a(f's_add_u32 s68, s63, {e}')
        a(f's_mul_hi_u32 s69, s68, {-(-(1<<32)//5)}')
        a('s_mul_i32 s70, s69, 5'); a('s_sub_u32 s70, s68, s70')
        a(f's_mul_i32 s69, s69, {48*5120}'); a('s_lshl_b32 s70, s70, 10')
        a('s_add_u32 s69, s69, s70'); a('s_add_u32 s69, s69, s65')
        a(f'buffer_store_dwordx4 v[{64+4*e}:{67+4*e}], v6, s[12:15], s69 offen sc1')
    a('L_aux_w2:')
    a(f's_cmp_lg_u32 s47, {wk}'); a('s_cbranch_scc1 L_aux_nw')
    a('s_lshl_b32 s67, s57, 8'); a('s_lshl_b32 s66, s56, 2'); a('s_add_u32 s66, s66, s67'); a(f's_add_u32 s66, s66, {WS_FW}')
    a('s_waitcnt vmcnt(0)')
    a('s_mov_b64 exec, 1'); a('buffer_store_dword v2, v1, s[12:15], s66 offen sc1'); a('s_mov_b64 exec, -1')
    a('L_aux_nw:')
def fw_ask():
    a(f'buffer_load_dword v{AB+2}, v{AB+6}, s[12:15], s74 offen sc1'); a(f'buffer_load_dword v{AB+3}, v{AB+6}, s[12:15], s75 offen sc1')
def fw_ask2():
    a(f'buffer_load_dword v62, v{AB+6}, s[12:15], s74 offen sc1'); a(f'buffer_load_dword v63, v{AB+6}, s[12:15], s75 offen sc1')
def fw_check(nm):
    a('s_mov_b32 s79, 0')
    a(f'{nm}:')
    a('s_waitcnt vmcnt(0)')
    a('v_cmp_ne_u32 vcc, s43, v62'); a('v_cmp_ne_u32 s[66:67], s43, v63'); a('s_or_b64 vcc, vcc, s[66:67]')
    a(f's_cbranch_scc0 {nm}_ok')
    a('s_add_u32 s79, s79, 1'); a(f's_cmp_ge_u32 s79, {SPINMAX}'); (a('s_cselect_b32 s101, 52, s101') if STAMPS else None); a(f's_cbranch_scc1 {nm}_ok')
    a('s_sleep 4')
    fw_ask2()
    a(f's_branch {nm}')
    a(f'{nm}_ok:')

T0, T1 = AB + 4, AB + 5
if SENT:
    RS0 = opt('rs0', 2)
    def resets(n):
        L = a.label('L_rs')
        a(f's_cmp_eq_u32 s35, {0 if RDFT else 1}'); a(f's_cbranch_scc1 {L}')
        if RDFT:
            for t in range(n // 12):
                for g in range(3):
                    for i in ((1, 3) if HALF else range(4)): a(f'buffer_store_dwordx4 v[8:11], v12, s[12:15], s76 offen offset:{i*1024} sc1')
                    a(f's_add_u32 s76, s76, {4096 if g < 2 else 48*1024 - 8192}')
        else:
            for i in range(n):
                if not (HALF and i % 2 == 0): a(f'buffer_store_dwordx4 v[8:11], v12, s[12:15], s76 offen offset:{(i % 4)*1024} {RSP}')
                if i % 4 == 3: a(f's_add_u32 s76, s76, {48*1024}')
        a(f'{L}:')
    if RSEQ:
        assert sum(map(int, RSEQ)) == 8
        a(f's_lshr_b32 s63, {sum(int(c) << (4*i) for i, c in enumerate(RSEQ[:5]))}, s42'); a('s_and_b32 s63, s63, 15'); a('s_add_u32 s42, s42, 4')
        a('L_aux_rr:')
        a('s_cmp_eq_u32 s63, 0'); a('s_cbranch_scc1 L_aux_nr')
        resets(12)
        a('s_sub_u32 s63, s63, 1'); a('s_branch L_aux_rr')
    else:
        a(f's_cmp_lt_u32 s47, {RS0}'); a('s_cbranch_scc1 L_aux_nr')
        resets(12 if RDFT else 8)
    a('L_aux_nr:')
a('s_cmp_eq_u32 s35, 1'); a('s_cbranch_scc1 L_aux_c')
for i in range(4): a(f'ds_read_b128 v[{24+4*i}:{27+4*i}], v{AB+3} offset:{i*4096}')
a('s_waitcnt lgkmcnt(0)')
for i in range(4):
    for d in range(4):
        r = 24 + 4*i + d
        a(f'v_lshlrev_b32 v{T0}, 16, v{r}'); a(f'v_and_b32 v{T1}, 0xffff0000, v{r}')
        a(f'v_add_f32 v{48+2*d}, v{48+2*d}, v{T0}'); a(f'v_add_f32 v{49+2*d}, v{49+2*d}, v{T1}')
a('s_branch L_aux_x')
a('L_aux_c:')
if NOCS: a('s_branch L_aux_x')
if DF: a('s_bitcmp1_b32 s47, 0'); a('s_cbranch_scc0 L_aux_x')
def csum():
    for i in range(3): a(f'ds_read_b128 v[{24+4*i}:{27+4*i}], v{AB+3} offset:{i*1024}')
    a('s_waitcnt lgkmcnt(0)')
    for i in range(3):
        for d in range(4):
            r = 24 + 4*i + d
            a(f'v_lshlrev_b32 v{T0}, 16, v{r}'); a(f'v_and_b32 v{T1}, 0xffff0000, v{r}')
            a(f'v_add_f32 v{48+2*i}, v{48+2*i}, v{T0}'); a(f'v_add_f32 v{49+2*i}, v{49+2*i}, v{T1}')
if not NOCS: csum()
a('L_aux_x:')
a(f's_add_u32 s46, s46, {STG}'); a(f's_cmp_eq_u32 s46, {3*STG}'); a('s_cselect_b32 s46, 0, s46')
a('s_add_u32 s47, s47, 1'); a('s_cmp_lt_u32 s47, 5'); a('s_cbranch_scc1 L_aux_l')
def fr_pub():
    a('s_lshl_b32 s66, s28, 8'); a('s_lshl_b32 s67, s29, 2'); a('s_add_u32 s66, s66, s67'); a(f's_add_u32 s66, s66, {WS_FH}')
    a('v_mov_b32 v4, s43'); a('v_mov_b32 v5, 0')
    a('s_waitcnt vmcnt(0)')
    a('s_mov_b64 exec, 1'); a('buffer_store_dword v4, v5, s[12:15], s66 offen sc1'); a('s_mov_b64 exec, -1')
tick(7, 5)
a('s_barrier')
tick(7, 21)
if FRB == 5: fr_pub()
pfw()
if RSEQ: resets(12*int(RSEQ[5]))
elif RDFT: resets(12*(RS0 + 3 - (RS0 + 3)//2))
elif RS0 >= 2: resets(12 if RS0 == 4 else 8)
p2_setup()
def red8(regs):
    for mod in ('quad_perm:[1,0,3,2]', 'quad_perm:[2,3,0,1]', 'row_half_mirror'):
        a('s_nop 1')
        for r in regs: a(f'v_add_f32_dpp v{r}, v{r}, v{r} {mod} row_mask:0xf bank_mask:0xf')
a('s_cmp_eq_u32 s35, 1'); a('s_cbranch_scc1 L_aux_pc')
for mod in ('row_ror:4', 'row_ror:8'):
    a('s_nop 1')
    for r in range(48, 56): a(f'v_add_f32_dpp v{r}, v{r}, v{r} {mod} row_mask:0xf bank_mask:0xf')
for sw in ('v_permlane16_swap_b32', 'v_permlane32_swap_b32'):
    for r in range(48, 56): a(f'v_mov_b32 v{r-24}, v{r}')
    a('s_nop 1')
    for r in range(48, 56): a(f'{sw} v{r}, v{r-24}')
    a('s_nop 1')
    for r in range(48, 56): a(f'v_add_f32 v{r}, v{r}, v{r-24}')
for d in range(4):
    a(f'v_cmp_eq_u32 vcc, {d}, v6') if d else a('v_lshrrev_b32 v6, 2, v0')
    if d == 0:
        a('v_mov_b32 v24, v48'); a('v_mov_b32 v26, v49')
    else:
        a('s_nop 1'); a(f'v_cndmask_b32 v24, v24, v{48+2*d}, vcc'); a(f'v_cndmask_b32 v26, v26, v{49+2*d}, vcc')
a('v_mov_b32 v25, s43'); a('v_mov_b32 v27, s43')
a('v_and_b32 v4, 3, v0'); a('v_lshlrev_b32 v4, 6, v4'); a('v_lshl_add_u32 v4, v6, 4, v4')
a('s_mov_b64 exec, 0xffff')
a('buffer_store_dwordx4 v[24:27], v4, s[12:15], s77 offen sc1')
a('s_branch L_aux_pub')
a('L_aux_pc:')
if NOCS: a('s_branch L_aux_pub')
if not NOCS:
    if DF:
        a('s_cmp_eq_u32 s31, 1'); a('s_cbranch_scc1 L_aux_c5')
        a(f'v_add_u32 v{AB+3}, s46, v{AB+1}')
        csum()
        a('L_aux_c5:')
        a('s_and_b32 s66, s30, 1'); a('s_lshl_b32 s66, s66, 30')
    for i in range(3):
        a(f'v_add_f32 v{48+i*2}, v{48+i*2}, v{49+i*2}')
        if DF: a(f'v_mul_f32 v{48+i*2}, s66, v{48+i*2}')
    red8([48, 50, 52])
    for i in range(3): a(f'v_mov_b32 v{49+i*2}, s43')
    a('s_mov_b32 exec_lo, 0x01010101'); a('s_mov_b32 exec_hi, 0x01010101')
    a('buffer_store_dwordx2 v[48:49], v0, s[12:15], s77 offen sc1')
    a('buffer_store_dwordx2 v[50:51], v0, s[12:15], s77 offen offset:64 sc1')
    a('s_mov_b32 exec_hi, 0')
    a('buffer_store_dwordx2 v[52:53], v0, s[12:15], s77 offen offset:128 sc1')
a('L_aux_pub:')
a('s_mov_b64 exec, -1')
a('s_lshl_b32 s48, s28, 13'); a(f's_add_u32 s48, s48, {WS_XP}'); a('s_add_u32 s50, s48, 4096')
a('s_lshl_b32 s49, s29, 12'); a(f's_add_u32 s49, s49, {WS_WP}')
def gather():
    for i in range(8): a(f'buffer_load_dwordx4 v[{8+4*i}:{11+4*i}], v1, s[12:15], s{48 if i < 4 else 50} offen offset:{(i%4)*1024} sc1')
    Lg = a.label('L_gw')
    if NOCS: a('s_cmp_eq_u32 s35, 1'); a(f's_cbranch_scc1 {Lg}')
    for i in range(4): a(f'buffer_load_dwordx4 v[{40+4*i}:{43+4*i}], v1, s[12:15], s49 offen offset:{i*1024} sc1')
    a(f'{Lg}:')
    a(f'buffer_load_dword v{AB+1}, v{AB}, s[12:15], s65 offen sc1')
    if FWL: fw_ask2()
a(f's_mov_b32 s65, {WS_FH}')
if RDFT:
    a(f'v_and_b32 v{AB}, 3, v0'); a(f'v_lshlrev_b32 v{AB}, 2, v{AB}'); a('s_lshl_b32 s69, s36, 8'); a('s_add_u32 s69, s69, 48'); a(f'v_add_u32 v{AB}, s69, v{AB}')
    a('s_lshl_b32 s69, s28, 8'); a('s_lshl_b32 s63, s30, 2'); a('s_add_u32 s69, s69, s63'); a('s_add_u32 s69, s69, 48'); a('v_mov_b32 v4, s69')
    a('v_cmp_gt_u32 vcc, 16, v0'); a('s_nop 1'); a(f'v_cndmask_b32 v{AB}, v4, v{AB}, vcc')
else:
    a(f'v_min_u32 v{AB}, 11, v0'); a(f'v_lshlrev_b32 v{AB}, 2, v{AB}'); a('s_lshl_b32 s69, s36, 8'); a(f'v_add_u32 v{AB}, s69, v{AB}')
GAT = opt('gat', 8)
tick(7, 6)
a('s_barrier')
tick(7, 22)
if FRB == 6: fr_pub()
pfw()
if RSEQ: resets(12*int(RSEQ[6]))
elif RDFT: resets(12*((RS0 + 3)//2))
elif RS0 >= 3: resets(12 if RS0 == 4 else 8)
if not FWL: fw_ask2()
if GAT == 68:
    a('s_cmp_eq_u32 s35, 0'); a('s_cbranch_scc1 L_g6'); gather(); a('L_g6:')
tick(7, 7)
a('s_barrier')
tick(7, 23)
if not FWL: fw_check('L_pollwf')
else: a('s_waitcnt vmcnt(0)')
if FRB == 7: fr_pub()
if GAT == 7: gather()
if GAT == 78:
    a('s_cmp_eq_u32 s35, 0'); a('s_cbranch_scc1 L_g7'); gather(); a('L_g7:')
a('s_cmp_eq_u32 s35, 1'); a(f's_cselect_b32 s69, {0 if NOCS else 40}, 64'); a('v_cmp_gt_u32 s[76:77], s69, v0')
if GAT == 68: a('s_cmp_eq_u32 s35, 1'); a('s_cbranch_scc1 L_g8x')
tick(7, 8)
a('s_barrier')
tick(7, 24)
if GAT in (8, 68): gather()
a('L_g8x:')
if GAT == 78:
    a('s_cmp_eq_u32 s35, 1'); a('s_cbranch_scc1 L_g8'); gather(); a('L_g8:')
a('s_mov_b32 s79, 0')
a('s_waitcnt vmcnt(0)')
if opt('gprio', 0): a('s_setprio 3')
a('L_gchk:')
a(f'v_xor_b32 v2, s43, v{AB+1}'); a('s_sub_u32 s64, s35, 1' if RDFT and not FRSEP else 's_mov_b32 s64, 0'); a('v_and_b32 v2, s64, v2')
for i in range(0, 8): a(f'v_xor_b32 v3, s43, v{10+4*i}'); a('v_or_b32 v2, v2, v3')
a('v_xor_b32 v4, s43, v41')
for r in (43, 45, 47, 49, 51, 53, 55): a(f'v_xor_b32 v3, s43, v{r}'); a('v_or_b32 v4, v4, v3')
if FWL: a('v_xor_b32 v3, s43, v62'); a('v_or_b32 v2, v2, v3'); a('v_xor_b32 v3, s43, v63'); a('v_or_b32 v2, v2, v3')
a('v_cmp_ne_u32 vcc, 0, v4'); a('s_and_b64 s[62:63], vcc, s[76:77]')
a('v_cmp_ne_u32 vcc, 0, v2'); a('s_or_b64 s[62:63], s[62:63], vcc')
a('s_cbranch_scc0 L_gok')
a('s_add_u32 s79, s79, 1'); a(f's_cmp_ge_u32 s79, {SPINMAX}'); (a('s_cselect_b32 s101, 50, s101') if STAMPS else None); a('s_cbranch_scc1 L_gok')
a('s_sleep 4')
gather()
a('s_waitcnt vmcnt(0)')
a('s_branch L_gchk')
a('L_gok:')
if FWL: lds_arrive(44, 2)
tick(7, 9)
for h in range(2):
    for d in range(2):
        b = 8 + 4*h + d
        a(f'v_add_f32 v{b}, v{b}, v{b+8}'); a(f'v_add_f32 v{b+16}, v{b+16}, v{b+24}'); a(f'v_add_f32 v{b}, v{b}, v{b+16}')
    a(f'v_add_f32 v{40+4*h}, v{40+4*h}, v{48+4*h}'); a(f'v_add_f32 v{41+4*h}, v{42+4*h}, v{50+4*h}')
a('v_lshlrev_b32 v2, 3, v0'); a(f'v_add_u32 v2, {L_CS}, v2')
a('ds_write_b64 v2, v[40:41]'); a('ds_write_b64 v2, v[44:45] offset:512')
for (s_, q_, ro, mo) in ((8, 9, 16, 18), (12, 13, 17, 19)):
    a(f'v_mul_f32 v{mo}, {1.0/D!r}, v{s_}')
    a(f'v_mul_f32 v{q_}, {1.0/D!r}, v{q_}')
    a(f'v_fma_f32 v{q_}, -v{mo}, v{mo}, v{q_}')
    a(f'v_max_f32 v{q_}, 0, v{q_}')
    rbf(mo); rbf(q_)
    a(f'v_add_f32 v{q_}, 0x3727c5ac, v{q_}')
    rbf(q_)
    a(f'v_sqrt_f32 v{q_}, v{q_}'); a('s_nop 0')
    rbf(q_)
    a(f'v_rcp_f32 v{ro}, v{q_}')
    a(f'v_fmac_f32 v{s_}, {-float(D)!r}, v{mo}')
    a(f'v_mul_f32 v{s_}, v{s_}, v{ro}')
a('v_lshlrev_b32 v2, 2, v0'); a(f'v_add_u32 v2, {L_R}, v2')
a(f'ds_write_b32 v2, v8 offset:{L_A0 - L_R}'); a(f'ds_write_b32 v2, v12 offset:{L_A0 - L_R + 256}')
a('ds_write_b32 v2, v16'); a('ds_write_b32 v2, v17 offset:256'); a('ds_write_b32 v2, v18 offset:512'); a('ds_write_b32 v2, v19 offset:768')
lds_arrive(24, 2)
if opt('gprio', 0): a('s_setprio 0')
tick(7, 10)
if GAT == 68:
    a('s_cmp_eq_u32 s35, 0'); a('s_cbranch_scc1 L_g8y')
    a('s_barrier')
    a('L_g8y:')
a(f'v_cmp_ne_u32 vcc, s43, v{AB+1}'); a('s_cmp_eq_u64 vcc, 0'); a('s_cbranch_scc1 L_pollr_ok')
spin_begin('L_pollr')
a(f'buffer_load_dword v{AB+1}, v{AB}, s[12:15], s65 offen sc1')
a('s_waitcnt vmcnt(0)')
a(f'v_cmp_ne_u32 vcc, s43, v{AB+1}'); a('s_cmp_eq_u64 vcc, 0')
spin_end('L_pollr')
if not CBAR: lds_arrive(0, 2)
if RDFT and FRSEP: lds_arrive(48, 2)
if opt('aprio', 0): a('s_setprio 0')
a('s_branch L_p2join')

a('L_compute:')
common_srds()
a(f's_mov_b32 s50, {(-2*STG) & 0xffffffff}'); a(f's_mov_b32 s51, {STG}')
a('s_mov_b32 s46, 0'); a('s_mov_b32 s47, 0')
p2h_setup()
a('v_lshrrev_b32 v2, 4, v0')
a('v_and_b32 v3, 15, v0')
a('v_bfe_u32 v6, v0, 1, 3'); a('v_xor_b32 v6, v6, v2')
def wd_issue():
    Lw = a.label('L_nowd')
    a(f"s_cmp_ge_u32 s2, {0 if opt('nowd', 0) else 240}")
    a(f's_cbranch_scc1 {Lw}')
    a(f's_mul_hi_u32 s76, s2, {-(-(1<<32)//5)}'); a('s_mul_i32 s77, s76, 5'); a('s_sub_u32 s77, s2, s77')
    a('v_lshrrev_b32 v36, 2, v0'); a('v_and_b32 v37, 3, v0')
    a(f'v_mul_u32_u24 v38, {D*2}, v36'); a('v_lshl_add_u32 v38, v37, 4, v38')
    a(f's_mul_i32 s68, s76, {32*D*2}'); a('s_lshl_b32 s69, s77, 8'); a('s_add_u32 s68, s68, s69'); a('s_lshl_b32 s69, s3, 6'); a('s_add_u32 s68, s68, s69')
    a('s_lshl_b32 s70, s3, 11'); a(f's_add_u32 s70, s70, {L_WD}')
    a('s_mov_b32 m0, s70'); a('s_nop 0')
    a(f'buffer_load_dwordx4 v38, s[20:23], s68 offen {WP_} lds')
    a('s_add_u32 m0, s70, 1024'); a(f's_add_u32 s68, s68, {16*D*2}')
    a(f'buffer_load_dwordx4 v38, s[20:23], s68 offen {WP_} lds')
    a(f'{Lw}:')
WDL = opt('wdlate', 0) if not WDA else 9
if WDL == 0: wd_issue()
def wd_finish():
    if WDA: return
    if WDL == 2: wd_issue()
    L = a.label('L_wdf')
    a(f"s_cmp_ge_u32 s2, {0 if opt('nowd', 0) else 240}"); a(f's_cbranch_scc1 {L}')
    a('v_lshlrev_b32 v36, 6, v36'); a('v_lshl_add_u32 v36, v37, 3, v36'); a('v_add_u32 v36, s70, v36')
    a('v_lshlrev_b32 v37, 4, v0')
    a('s_lshl_b32 s77, s77, 3'); a('s_lshl_b32 s68, s3, 1'); a('s_add_u32 s77, s77, s68')
    a(f's_mul_i32 s76, s76, 5120'); a(f's_add_u32 s76, s76, {WS_WDT}')
    a('s_waitcnt vmcnt(0)')
    for e in range(2):
        for b in range(2):
            a(f'ds_read_b64_tr_b16 v[{48+4*e+2*b}:{49+4*e+2*b}], v36 offset:{32*e + 1024*b}')
    for e in range(2):
        a(f's_add_u32 s68, s77, {e}')
        a(f's_mul_hi_u32 s69, s68, {-(-(1<<32)//5)}')
        a('s_mul_i32 s70, s69, 5'); a('s_sub_u32 s70, s68, s70')
        a(f's_mul_i32 s69, s69, {48*5120}'); a('s_lshl_b32 s70, s70, 10')
        a('s_add_u32 s69, s69, s70'); a('s_add_u32 s69, s69, s76')
        a('s_waitcnt lgkmcnt(0)')
        a(f'buffer_store_dwordx4 v[{48+4*e}:{51+4*e}], v37, s[12:15], s69 offen sc1')
    a(f'{L}:')
pre_loop()
if WDL == 1: wd_issue()
a('s_cmp_eq_u32 s35, 1')
a('s_cbranch_scc1 L_dft')
def interleave(M, R):
    out = []; R = list(R)
    for m in M:
        out.append(m)
        if R: out.append(R.pop(0))
    return out + R
tails = []
def mid_sync(last):
    L = a.label('L_ms')
    a('s_cmp_ge_u32 s47, 8'); a(f's_cbranch_scc1 {L}_t')
    a('s_barrier')
    a(f'{L}_b:')
    tails.append((L, last))
CNTRD = 'ds_read2_b32 v[14:15], v6 offset0:3 offset1:6'
def emit_tails():
    for L, last in tails:
        a(f'{L}_t:')
        a('s_mov_b64 exec, 1')
        a('s_cmp_eq_u32 s47, 9'); a(f's_cbranch_scc1 {L}_9')
        a('ds_add_u32 v6, v5 offset:16')
        a('s_mov_b64 exec, -1')
        a('v_readfirstlane_b32 s78, v14')
        a('s_cmp_ge_u32 s78, 3'); a(f's_cbranch_scc1 {L}_b')
        lds_wait(f'{L}_w', 12, 14, 3)
        a(f's_branch {L}_b')
        a(f'{L}_9:')
        a('ds_add_u32 v6, v5 offset:20')
        a('s_mov_b64 exec, -1')
        a(f's_branch {last}')
    tails.clear()
def stats_wait(name):
    a('v_readfirstlane_b32 s78, v15')
    a('s_cmp_ge_u32 s78, 1'); a(f's_cbranch_scc1 {name}_ok')
    lds_wait(name, 24, 14, 1)
def slot_advance():
    a('s_add_u32 s46, s46, 1'); a('s_cmp_eq_u32 s46, 3'); a('s_cselect_b32 s42, s50, s51'); a('s_cselect_b32 s46, 0, s46')
ACC = 128
def T16(mat, mi, ni): return ACC + 64*mat + 16*mi + 4*ni
FR = 32
def fW(p, mat, mi): return FR + 48*p + 16*mat + 4*mi
def fX(p, ni): return FR + 48*p + 32 + 4*ni
AW, AX = 8, 12
a('s_and_b32 s44, s3, 1'); a('s_lshr_b32 s45, s3, 1')
SPF = opts.get('spf', '')
if SPF:
    a('s_load_dwordx4 s[80:83], s[0:1], 48') if STAMPS == 0 else a('s_load_dwordx4 s[72:75], s[0:1], 48')
    wb = 80 if STAMPS == 0 else 72
    a('s_waitcnt lgkmcnt(0)')
    a('s_cmp_ge_u32 s3, 2'); a('s_cbranch_scc1 L_spx')
    a('s_cmp_eq_u32 s3, 1'); a(f's_cselect_b32 s62, s{wb+2}, s{wb}'); a(f's_cselect_b32 s63, s{wb+3}, s{wb+1}')
    a(f's_mul_i32 s66, s32, {8*F*2}'); a('s_lshl_b32 s67, s29, 8'); a('s_add_u32 s66, s66, s67'); a('s_add_u32 s62, s62, s66'); a('s_addc_u32 s63, s63, 0')
    for dc in map(int, SPF.split(',')):
        a(f's_add_u32 s66, s34, {dc}'); a('s_cmp_ge_u32 s66, 10'); a('s_cselect_b32 s67, 10, 0'); a('s_sub_u32 s66, s66, s67'); a(f's_mul_i32 s66, s66, {64*F*2}')
        a('s_add_u32 s52, s62, s66'); a('s_addc_u32 s53, s63, 0')
        for i in range(16): a(f's_load_dword s54, s[52:53], {(i >> 1)*F*2 + (i & 1)*128}')
    a('s_branch L_spd')
    a('L_spx:')
    a('s_lshl_b32 s66, s33, 1'); a('s_add_u32 s66, s66, s44'); a('s_lshl_b32 s66, s66, 4'); a('s_add_u32 s66, s66, s28'); a(f's_mul_i32 s66, s66, {D*2}')
    a(f's_add_u32 s66, s66, {4*128*D*2}'); a('s_add_u32 s62, s64, s66'); a('s_addc_u32 s63, s65, 0')
    for dc in map(int, SPF.split(',')):
        a(f's_add_u32 s66, s34, {dc}'); a('s_cmp_ge_u32 s66, 10'); a('s_cselect_b32 s67, 10, 0'); a('s_sub_u32 s66, s66, s67'); a('s_lshl_b32 s66, s66, 7')
        a('s_add_u32 s52, s62, s66'); a('s_addc_u32 s53, s63, 0')
        for i in range(8): a(f's_load_dword s54, s[52:53], {(i-4)*128*D*2}')
        a(f's_add_u32 s52, s52, {8*128*D*2}'); a('s_addc_u32 s53, s53, 0')
        for i in range(8): a(f's_load_dword s54, s[52:53], {(i-4)*128*D*2}')
    a('L_spd:')
a('v_bfe_u32 v7, v0, 2, 2')
a('v_lshl_add_u32 v4, v2, 3, v7'); a('v_lshlrev_b32 v4, 8, v4')
a('v_bfe_u32 v5, v0, 1, 1'); a('v_lshl_add_u32 v4, v5, 4, v4')
a('v_and_b32 v5, 1, v0'); a('v_lshl_add_u32 v4, v5, 3, v4')
a('v_and_b32 v5, 1, v2'); a('v_lshl_or_b32 v5, v5, 2, v7')
for mi in range(4):
    a('s_lshl_b32 s66, s44, 2'); a(f's_add_u32 s66, s66, {mi}')
    a('v_xor_b32 v7, s66, v5')
    a(f'v_lshl_add_u32 v{AW+mi}, v7, 5, v4')
a('s_lshl_b32 s66, s45, 13'); a('s_add_u32 s66, s66, 32768')
a('v_lshlrev_b32 v5, 7, v3'); a('v_add_u32 v5, s66, v5')
for ks in range(2):
    a(f'v_xor_b32 v7, {4*ks}, v6')
    a(f'v_lshl_add_u32 v{AX+ks}, v7, 4, v5')
for i in range(128): a(f'v_mov_b32 v{ACC+i}, 0')
def f_reads(p, ks):
    L = []
    def w(mat, mi):
        for b in range(2):
            L.append(f'ds_read_b64_tr_b16 v[{fW(p,mat,mi)+2*b}:{fW(p,mat,mi)+2*b+1}], v{AW+mi} offset:{mat*16384 + ks*8192 + b*1024}')
    w(0, 0)
    for ni in range(4): L.append(f'ds_read_b128 v[{fX(p,ni)}:{fX(p,ni)+3}], v{AX+ks} offset:{ni*2048}')
    for mat in range(2):
        for mi in range(4):
            if (mat, mi) != (0, 0): w(mat, mi)
    return L
def f_mfmas(p):
    L = []
    for i, (mat, mi) in enumerate([(mat, mi) for mat in range(2) for mi in range(4)]):
        for ni in (range(4) if i % 2 == 0 else range(3, -1, -1)):
            t = T16(mat, mi, ni)
            L.append(f'v_mfma_f32_16x16x32_bf16 v[{t}:{t+3}], v[{fW(p,mat,mi)}:{fW(p,mat,mi)+3}], v[{fX(p,ni)}:{fX(p,ni)+3}], v[{t}:{t+3}]')
    return L
wd_finish()
a('v_mov_b32 v5, 1'); a(f'v_mov_b32 v6, {L_CNT}')
tick(7, 0)
a('s_barrier')
tick(7, 16)
stamp(1)
for r in f_reads(0, 0): a(r)
a('L_floop:')
a('s_waitcnt lgkmcnt(0)')
UPD = ['s_add_u32 s46, s46, 1', 's_cmp_eq_u32 s46, 3', 's_cselect_b32 s42, s50, s51', 's_cselect_b32 s46, 0, s46'] + [f'v_add_u32 v{r}, s42, v{r}' for r in (AW, AW+1, AW+2, AW+3, AX, AX+1)]
for ins in interleave(f_mfmas(0), f_reads(1, 1) + [CNTRD] + UPD): a(ins)
a('s_waitcnt vmcnt(0) lgkmcnt(0)')
tick(7, ('s47', 1))
mid_sync('L_flast')
if opts.get('diag', '').startswith('k'):
    a(f"s_cmp_lg_u32 s47, {int(opts['diag'][1:])}"); a('s_cbranch_scc1 L_dk'); a('s_memrealtime s[96:97]'); a('L_dk:')
tick(7, ('s47', 17))
for ins in interleave(f_mfmas(1), f_reads(0, 0) + ['s_add_u32 s47, s47, 1']): a(ins)
a('s_branch L_floop')
if opt('inl', 1): emit_tails()
a('L_flast:')
pre_epilogue()
if opts.get('diag') == 'w': a('s_memrealtime s[96:97]')
stats_wait('L_fst')
if opts.get('diag') == 'w': a('s_memrealtime s[98:99]')
tick(7, 40)
CSB = 48
P = []
P += ['s_lshl_b32 s66, s45, 8', f's_add_u32 s66, s66, {L_R}', 'v_lshlrev_b32 v4, 2, v3', 'v_add_u32 v4, s66, v4']
for ni in range(4):
    P += [f'ds_read_b32 v{40+ni}, v4 offset:{64*ni}', f'ds_read_b32 v{44+ni}, v4 offset:{512 + 64*ni}']
P += [f'v_mov_b32 v10, {L_CNT}', 'ds_read_b32 v8, v10 offset:32', 'ds_read_b32 v11, v10 offset:48']
P += ['s_lshl_b32 s66, s44, 8', f's_add_u32 s66, s66, {L_CS}', 'v_lshlrev_b32 v5, 4, v2', 'v_add_u32 v5, s66, v5']
for mat in range(2):
    for mi in range(4):
        r = CSB + 16*mat + 4*mi
        P.append(f'ds_read_b128 v[{r}:{r+3}], v5 offset:{mat*512 + mi*64}')
P += ['v_lshlrev_b32 v1, 4, v0', 'v_mov_b32 v9, 0']
P += ['s_lshl_b32 s66, s28, 3', 's_lshl_b32 s67, s45, 2', 's_add_u32 s66, s66, s67', 's_mul_i32 s66, s66, 48',
      's_lshl_b32 s67, s29, 2', 's_add_u32 s66, s66, s67', 's_lshl_b32 s67, s44, 1', 's_add_u32 s66, s66, s67', 's_lshl_b32 s66, s66, 10']
P += ['s_lshl_b32 s70, s28, 8', 's_lshl_b32 s71, s29, 4', 's_add_u32 s70, s70, s71', 's_lshl_b32 s71, s3, 2', 's_add_u32 s70, s70, s71', f's_add_u32 s70, s70, {WS_FH}']
M = f_mfmas(1)
for i, m in enumerate(M):
    a(m)
    for _ in range(2):
        if P: a(P.pop(0))
for x_ in P: a(x_)
stamp(2)
a('s_waitcnt lgkmcnt(0)')
a('v_readfirstlane_b32 s43, v8')
for ni in range(4):
    c = 80 + 6*ni
    a(f'v_sub_f32 v{c}, 0, v{44+ni}')
    a(f'v_mul_f32 v{c+2}, {-1.4426950408889634!r}, v{40+ni}')
    a(f'v_mul_f32 v{c+4}, v{40+ni}, v{40+ni}')
for ni in range(4): a(f'v_rcp_f32 v{84+6*ni}, v{84+6*ni}')
tick(7, 42)
BC = 'op_sel_hi:[1,0,1]'
for ni in range(1, 4): a(f's_add_u32 s{66+ni}, s{65+ni}, {48*1024}')
for kp in range(2):
    for ni in range(4):
        if kp == 1 and ni == VCHK - 1: a('ds_read_b32 v11, v10 offset:28')
        if kp == 1 and ni == VCHK:
            a('s_waitcnt lgkmcnt(0)'); a('v_readfirstlane_b32 s79, v11')
            a('s_cmp_lg_u32 s79, 1'); a('s_cbranch_scc1 L_fnov')
            v_loads()
            a('L_fnov:')
        c = 80 + 6*ni
        prs = [(2*kp + h, d) for h in range(2) for d in (0, 2)]
        G_ = [T16(0, mi, ni) + d for mi, d in prs]; U_ = [T16(1, mi, ni) + d for mi, d in prs]
        for n, (mi, d) in enumerate(prs): a(f'v_pk_fma_f32 v[{G_[n]}:{G_[n]+1}], v[{CSB+4*mi+d}:{CSB+1+4*mi+d}], v[{c}:{c+1}], v[{G_[n]}:{G_[n]+1}] {BC}')
        for n, (mi, d) in enumerate(prs): a(f'v_pk_fma_f32 v[{U_[n]}:{U_[n]+1}], v[{CSB+16+4*mi+d}:{CSB+17+4*mi+d}], v[{c}:{c+1}], v[{U_[n]}:{U_[n]+1}] {BC}')
        for n in range(4): a(f'v_pk_mul_f32 v[{104+2*n}:{105+2*n}], v[{G_[n]}:{G_[n]+1}], v[{c+2}:{c+3}] op_sel_hi:[1,0]')
        for n in range(4): a(f'v_pk_mul_f32 v[{G_[n]}:{G_[n]+1}], v[{G_[n]}:{G_[n]+1}], v[{U_[n]}:{U_[n]+1}]')
        for n in range(8): a(f'v_exp_f32 v{104+n}, v{104+n}')
        a('s_nop 0')
        for n in range(4): a(f'v_pk_fma_f32 v[{104+2*n}:{105+2*n}], v[{104+2*n}:{105+2*n}], v[{c+4}:{c+5}], v[{c+4}:{c+5}] op_sel_hi:[1,0,0]')
        for n in range(8): a(f'v_rcp_f32 v{104+n}, v{104+n}')
        a('s_nop 0')
        o = 112 + 4*ni
        for n in range(4): a(f'v_pk_mul_f32 v[{G_[n]}:{G_[n]+1}], v[{G_[n]}:{G_[n]+1}], v[{104+2*n}:{105+2*n}]')
        for n in range(4): a(f'v_cvt_pk_bf16_f32 v{o+n}, v{G_[n]}, v{G_[n]+1}')
        if RDFT and FRSEP and kp == 0 and ni == 0:
            if opts.get('diag') == 'f': a('s_memrealtime s[96:97]')
            a('v_readfirstlane_b32 s78, v11'); a('s_cmp_ge_u32 s78, 1'); a('s_cbranch_scc1 L_frw_ok')
            lds_wait('L_frw', 48, 14, 1)
            if opts.get('diag') == 'f': a('s_memrealtime s[98:99]')
        if HALF and kp == 1 and ni == 3: a('s_waitcnt vmcnt(3)')
        a(f'buffer_store_dwordx4 v[{o}:{o+3}], v1, s[12:15], s{66+ni} offen offset:{kp*1024} {STP}')
        if 4*kp + ni == EARLY:
            a('v_mov_b32 v12, 1'); a('s_mov_b64 exec, 1'); a('ds_add_u32 v10, v12'); a('s_mov_b64 exec, -1')
        tick(7, 43 + 4*kp + ni)
tick(7, 32)
stamp(3)
if TONE: lds_arrive(0, 4)
else: a('s_waitcnt vmcnt(0)')
if not SENT:
    a('s_mov_b64 exec, 1'); a('buffer_store_dword v8, v9, s[12:15], s70 offen sc1'); a('s_mov_b64 exec, -1')
if VCHK == 4:
    a('s_waitcnt lgkmcnt(0)'); a('v_readfirstlane_b32 s79, v11')
    a('s_cmp_lg_u32 s79, 1'); a('s_cbranch_scc1 L_fnov')
    v_loads()
    a('L_fnov:')
tick_dump(7, 4)
a('s_branch L_helper')

a('L_dft:')
DACC = 176
def TD(part, mi, et): return DACC + 40*part + 20*mi + 4*et
DFR = 40
def dX(p, mi): return DFR + 48*p + 4*mi
def dC(p, part, et): return DFR + 48*p + 8 + 20*part + 4*et
DX, DC = 8, 10
FCOS, FSIN, FNS = 136, 144, 152
a('v_lshlrev_b32 v5, 7, v3')
a('s_lshl_b32 s66, s3, 12'); a('s_add_u32 s66, s66, 32768')
for ks in range(2):
    a(f'v_xor_b32 v7, {4*ks}, v6')
    a(f'v_lshl_add_u32 v{DC+ks}, v7, 4, v5')
    a(f'v_add_u32 v{DX+ks}, s66, v{DC+ks}')
for i in range(80): a(f'v_mov_b32 v{DACC+i}, 0')
if DF:
    for i in list(range(104, 136)) + list(range(160, 176)): a(f'v_mov_b32 v{i}, 0')
if DF:
    a('s_cmp_eq_u32 s30, 0'); a('s_cselect_b32 s45, 4, 2')
    a('s_bitcmp1_b32 s30, 0'); a('s_cselect_b32 s53, 1.0, -1.0')
else:
    a('s_and_b32 s45, s30, 1'); a('s_sub_u32 s45, 3, s45')
a('v_lshrrev_b32 v12, 3, v3'); a('v_and_b32 v13, 7, v3'); a('v_lshlrev_b32 v13, 4, v13'); a('v_lshl_add_u32 v12, v12, 2, v13'); a('v_add_u32 v12, s3, v12')
a('v_lshlrev_b32 v13, 5, v2'); a('v_add_u32 v13, s28, v13'); a('v_cvt_f32_u32 v13, v13')
for mt in range(2):
    a(f'v_add_u32 v14, {8*mt}, v12'); a('v_cvt_f32_u32 v14, v14'); a(f'v_mul_f32 v14, {1.0/2048!r}, v14')
    for d in range(4):
        for h in range(2):
            a(f'v_add_f32 v{60+h}, {float(16*h + 128*d)!r}, v13')
            a(f'v_mul_f32 v{60+h}, v{60+h}, v14')
        a('v_cos_f32 v62, v60'); a('v_cos_f32 v63, v61'); a('v_sin_f32 v64, v60'); a('v_sin_f32 v65, v61')
        a(f'v_cvt_pk_bf16_f32 v{FCOS+4*mt+d}, v62, v63')
        a(f'v_cvt_pk_bf16_f32 v{FSIN+4*mt+d}, v64, v65')
        a(f'v_xor_b32 v{FNS+4*mt+d}, 0x80008000, v{FSIN+4*mt+d}')
def d_reads(p, ks):
    L = [f'ds_read_b128 v[{dX(p,mi)}:{dX(p,mi)+3}], v{DX+ks} offset:{mi*2048}' for mi in range(2)]
    for part in range(2):
        for et in range(5):
            L.append(f'ds_read_b128 v[{dC(p,part,et)}:{dC(p,part,et)+3}], v{DC+ks} offset:{part*16384 + et*2048}')
    return L
def d_mfmas(p):
    L = []
    i = 0
    for part in range(2):
        for et in range(5):
            for mi in ((0, 1) if i % 2 == 0 else (1, 0)):
                t = TD(part, mi, et)
                L.append(f'v_mfma_f32_16x16x32_bf16 v[{t}:{t+3}], v[{dX(p,mi)}:{dX(p,mi)+3}], v[{dC(p,part,et)}:{dC(p,part,et)+3}], v[{t}:{t+3}]')
            i += 1
    return L
wd_finish()
a('v_mov_b32 v5, 1'); a(f'v_mov_b32 v6, {L_CNT}')
for i in range(32, 36): a(f'v_mov_b32 v{i}, 0')
tick(7, 0)
a('s_barrier')
tick(7, 16)
stamp(1)
if DF:
    for ks in range(2):
        for mi in range(2): a(f'ds_read_b128 v[{40+8*ks+4*mi}:{43+8*ks+4*mi}], v{DX+ks} offset:{mi*2048}')
else:
    for r in d_reads(0, 0): a(r)
if not DF:
    def xstat(p):
        L = []
        for mi in range(2):
            for d in range(4):
                r = dX(p, mi) + d; t = 36 + 2*(d & 1)
                L += [f'v_lshlrev_b32 v{t}, 16, v{r}', f'v_and_b32 v{t+1}, 0xffff0000, v{r}',
                      f'v_add_f32 v{32+2*mi}, v{32+2*mi}, v{t}', f'v_fmac_f32 v{33+2*mi}, v{t}, v{t}',
                      f'v_add_f32 v{32+2*mi}, v{32+2*mi}, v{t+1}', f'v_fmac_f32 v{33+2*mi}, v{t+1}, v{t+1}']
        return L
    def interleave2(M, R, per):
        out = []; R = list(R)
        for m in M:
            out.append(m)
            for _ in range(per):
                if R: out.append(R.pop(0))
        return out + R
    def dloop(name, stats):
        a(f'{name}:')
        a('s_waitcnt lgkmcnt(0)')
        for ins in interleave2(d_mfmas(0), d_reads(1, 1) + (xstat(0) if stats else [CNTRD]), 3 if stats else 1): a(ins)
        a('s_waitcnt vmcnt(0) lgkmcnt(0)' if stats else 's_waitcnt lgkmcnt(0)')
        tick(7, ('s47', 1))
        if stats: a('s_barrier')
        else: mid_sync('L_dlast')
        tick(7, ('s47', 17))
        slot_advance()
        for r in (DX, DC): a(f'v_add_u32 v{r}, s42, v{r}')
        R = d_reads(0, 0) + [f'v_add_u32 v{r}, s42, v{r}' for r in (DX+1, DC+1)]
        for ins in interleave2(d_mfmas(1), R + (xstat(1) if stats else []), 3 if stats else 1): a(ins)
        a('s_add_u32 s47, s47, 1')
        if stats: a('s_cmp_lt_u32 s47, s45'); a(f's_cbranch_scc1 {name}')
        else: a(f's_branch {name}')
    dloop('L_dloopA', True)
else:
    def interleave2(M, R, per):
        out = []; R = list(R)
        for m in M:
            out.append(m)
            for _ in range(per):
                if R: out.append(R.pop(0))
        return out + R
    XA = [40, 48]; XB = [56, 104]
    CF = [[64 + 4*i for i in range(10)], [112 + 4*i for i in range(6)] + [160 + 4*i for i in range(4)]]
    def xa_reads(): return [f'ds_read_b128 v[{XA[ks]+4*mi}:{XA[ks]+4*mi+3}], v{DX+ks} offset:{mi*2048}' for ks in range(2) for mi in range(2)]
    def xb_reads(ks): return [f'ds_read_b128 v[{XB[ks]+4*mi}:{XB[ks]+4*mi+3}], v{DX+ks} offset:{mi*2048}' for mi in range(2)]
    def c_reads(ks): return [f'ds_read_b128 v[{CF[ks][5*part+et]}:{CF[ks][5*part+et]+3}], v{DC+ks} offset:{part*16384 + et*2048}' for part in range(2) for et in range(5)]
    def fold(ks, stats):
        L = []
        for mi in range(2):
            for d in range(4):
                ra = XA[ks] + 4*mi + d; rb = XB[ks] + 4*mi + d; sm, sq = 32 + 2*mi, 33 + 2*mi
                L += [f'v_lshlrev_b32 v36, 16, v{ra}', f'v_and_b32 v37, 0xffff0000, v{ra}', f'v_lshlrev_b32 v38, 16, v{rb}', f'v_and_b32 v39, 0xffff0000, v{rb}']
                if stats:
                    for t in (36, 37, 38, 39): L += [f'v_add_f32 v{sm}, v{sm}, v{t}', f'v_fmac_f32 v{sq}, v{t}, v{t}']
                L += [f'v_add_f32 v36, v{28+mi}, v36', f'v_add_f32 v37, v{28+mi}, v37']
                L += ['v_fmac_f32 v36, s53, v38', 'v_fmac_f32 v37, s53, v39', f'v_cvt_pk_bf16_f32 v{rb}, v36, v37']
        return L
    def f2_mfmas(ks):
        L = []
        for i in range(10):
            part, et = divmod(i, 5)
            for mi in ((0, 1) if i % 2 == 0 else (1, 0)):
                t = TD(part, mi, et); x = XB[ks] + 4*mi; c = CF[ks][i]
                L.append(f'v_mfma_f32_16x16x32_bf16 v[{t}:{t+3}], v[{x}:{x+3}], v[{c}:{c+3}], v[{t}:{t+3}]')
        return L
    DUPD = ['s_add_u32 s46, s46, 1', 's_cmp_eq_u32 s46, 3', 's_cselect_b32 s42, s50, s51', 's_cselect_b32 s46, 0, s46'] + [f'v_add_u32 v{r}, s42, v{r}' for r in (DX, DX+1, DC, DC+1)]
    def dloop3(name, stats):
        M1 = f2_mfmas(1); M0 = f2_mfmas(0)
        a(f'{name}:')
        for ins in interleave2(M1[:6], DUPD, 2): a(ins)
        a('s_waitcnt vmcnt(0) lgkmcnt(0)' if stats else 's_waitcnt lgkmcnt(0)')
        tick(7, ('s47', 1))
        if stats: a('s_barrier')
        else: mid_sync('L_dlast')
        tick(7, ('s47', 17))
        for ins in interleave2(M1[6:10], xb_reads(0) + c_reads(0) + ['s_add_u32 s47, s47, 1'], 3): a(ins)
        a('s_waitcnt lgkmcnt(10)')
        for ins in interleave2(M1[10:], fold(0, stats), 5): a(ins)
        a('s_waitcnt lgkmcnt(0)')
        a('s_nop 0')
        for ins in interleave2(M0[:7], xb_reads(1) + c_reads(1) + ([] if stats else [CNTRD]), 2): a(ins)
        a(f's_waitcnt lgkmcnt({10 if stats else 11})')
        for ins in interleave2(M0[7:], fold(1, stats) + DUPD, 5): a(ins)
        a('s_waitcnt lgkmcnt(0)')
        tick(7, ('s47', 1))
        if stats: a('s_barrier')
        else: mid_sync('L_dlast')
        tick(7, ('s47', 17))
        a('s_add_u32 s47, s47, 1')
        for ins in xa_reads() + ([] if stats else [CNTRD]): a(ins)
        if stats: a('s_cmp_lt_u32 s47, s45'); a(f's_cbranch_scc1 {name}')
        else: a(f's_branch {name}')
    def dloop2(name, stats):
        if opt('dp', 1): return dloop3(name, stats)
        a(f'{name}:')
        for ins in DUPD: a(ins)
        a('s_waitcnt vmcnt(0) lgkmcnt(0)' if stats else 's_waitcnt lgkmcnt(0)')
        tick(7, ('s47', 1))
        if stats: a('s_barrier')
        else: mid_sync('L_dlast')
        tick(7, ('s47', 17))
        a('s_add_u32 s47, s47, 1')
        for ins in xb_reads(0) + xb_reads(1) + c_reads(0): a(ins)
        a('s_waitcnt lgkmcnt(12)')
        for ins in fold(0, stats): a(ins)
        a('s_waitcnt lgkmcnt(0)')
        a('s_nop 0')
        for ins in interleave2(f2_mfmas(0), c_reads(1) + ([] if stats else [CNTRD]) + fold(1, stats) + DUPD, 3): a(ins)
        a('s_waitcnt lgkmcnt(0)')
        tick(7, ('s47', 1))
        if stats: a('s_barrier')
        else: mid_sync('L_dlast')
        tick(7, ('s47', 17))
        a('s_add_u32 s47, s47, 1')
        for ins in interleave2(f2_mfmas(1), xa_reads() + ([] if stats else [CNTRD]), 1): a(ins)
        if stats: a('s_cmp_lt_u32 s47, s45'); a(f's_cbranch_scc1 {name}')
        else: a(f's_branch {name}')
    a('s_waitcnt lgkmcnt(0)')
    for mi in range(2):
        for d in range(4):
            r = XA[0] + 4*mi + d
            a(f'v_lshlrev_b32 v36, 16, v{r}'); a(f'v_and_b32 v37, 0xffff0000, v{r}')
            if d == 0: a(f'v_add_f32 v{28+mi}, v36, v37')
            else: a(f'v_add_f32 v{28+mi}, v{28+mi}, v36'); a(f'v_add_f32 v{28+mi}, v{28+mi}, v37')
    for sw in ('v_permlane16_swap_b32', 'v_permlane32_swap_b32'):
        for mi in range(2): a(f'v_mov_b32 v{36+mi}, v{28+mi}')
        a('s_nop 1')
        for mi in range(2): a(f'{sw} v{28+mi}, v{36+mi}')
        a('s_nop 1')
        for mi in range(2): a(f'v_add_f32 v{28+mi}, v{28+mi}, v{36+mi}')
    a('s_bitcmp1_b32 s30, 0'); a(f's_cselect_b32 s66, 0x3d000000, 0')
    a('s_lshl_b32 s67, s3, 7'); a(f's_add_u32 s67, s67, {L_CH}'); a('v_lshlrev_b32 v38, 2, v3'); a('v_add_u32 v38, s67, v38')
    for mi in range(2):
        a(f'v_mul_f32 v{36+mi}, s66, v{28+mi}'); a(f'v_mul_f32 v{28+mi}, -2.0, v{36+mi}')
        if not NOCS: a(f'ds_write_b32 v38, v{36+mi} offset:{64*mi}')
    dloop2('L_dloopA', True)
a(f'v_mov_b32 v36, {L_NON}'); a('ds_read_b32 v14, v36')
for sw in ('v_permlane16_swap_b32', 'v_permlane32_swap_b32'):
    for r in range(32, 36): a(f'v_mov_b32 v{r+4}, v{r}')
    a('s_nop 1')
    for r in range(32, 36): a(f'{sw} v{r}, v{r+4}')
    a('s_nop 1')
    for r in range(32, 36): a(f'v_add_f32 v{r}, v{r}, v{r+4}')
a('s_lshl_b32 s66, s28, 2'); a('s_add_u32 s66, s66, s30'); a('s_lshl_b32 s66, s66, 11'); a('s_lshl_b32 s67, s3, 9'); a('s_add_u32 s66, s66, s67'); a(f's_add_u32 s66, s66, {WS_XP}')
a('v_cmp_gt_u32 vcc, 16, v0'); a('v_lshlrev_b32 v38, 4, v0')
a('s_waitcnt lgkmcnt(0)')
a('v_cndmask_b32 v12, v34, v32, vcc'); a('v_cndmask_b32 v13, v35, v33, vcc'); a('v_mov_b32 v15, v14')
a('v_readfirstlane_b32 s43, v14')
a('s_mov_b32 exec_hi, 0')
a('buffer_store_dwordx4 v[12:15], v38, s[12:15], s66 offen sc1')
a('s_mov_b64 exec, -1')
a('s_nop 0')
dloop2('L_dloopB', False) if DF else dloop('L_dloopB', False)
if opt('inl', 1): emit_tails()
a('L_dlast:')
pre_epilogue()
stats_wait('L_dst')
tick(7, 40)
DP = []
DP.append('s_lshl_b32 s66, s3, 7'); DP.append(f's_add_u32 s66, s66, {L_R}')
DP.append('v_lshlrev_b32 v4, 4, v2'); DP.append('v_add_u32 v4, s66, v4')
for mi in range(2):
    DP.append(f'ds_read_b128 v[{40+4*mi}:{43+4*mi}], v4 offset:{64*mi}')
    if not NOCS: DP.append(f'ds_read_b128 v[{48+4*mi}:{51+4*mi}], v4 offset:{512 + 64*mi}')
    DP.append(f'ds_read_b128 v[{76+4*mi}:{79+4*mi}], v4 offset:{L_A0 - L_R + 64*mi}')
    if DF and not NOCS: DP.append(f'ds_read_b128 v[{84+4*mi}:{87+4*mi}], v4 offset:{L_CH - L_R + 64*mi}')
DP.append('v_lshlrev_b32 v5, 2, v3'); DP.append(f'v_add_u32 v5, {L_CS}, v5')
for part in range(2):
    for et in range(0 if NOCS else 5): DP.append(f'ds_read_b32 v{56+2*(5*part+et)}, v5 offset:{part*512 + et*64}')
DP.append('v_bfe_u32 v9, v3, 1, 2'); DP.append('v_xor_b32 v8, s3, v9'); DP.append('v_lshlrev_b32 v8, 4, v8'); DP.append('v_lshl_add_u32 v8, v3, 6, v8'); DP.append('v_lshl_add_u32 v8, v2, 2, v8')
DP.append('ds_read_b32 v14, v6 offset:20')
for ins in interleave2(f2_mfmas(1) if DF else d_mfmas(1), DP, 2): a(ins)
stamp(2)
a('s_waitcnt lgkmcnt(0)')
a('v_readfirstlane_b32 s78, v14')
a('s_cmp_ge_u32 s78, 4'); a('s_cbranch_scc1 L_dc9_ok')
lds_wait('L_dc9', 20, 14)
tick(7, 41)
if DF and not NOCS:
    for i in range(8): a(f'v_sub_f32 v{48+i}, v{48+i}, v{84+i}')
a('s_cmp_lg_u32 s30, 0'); a('s_cbranch_scc1 L_z0')
for mi in range(2):
    t = 76 + 4*mi; y = 84 + 4*mi
    a(f'v_pk_add_f32 v[{y}:{y+1}], v[{t}:{t+1}], v[{t+2}:{t+3}]')
    a(f'v_pk_add_f32 v[{y+2}:{y+3}], v[{t}:{t+1}], v[{t+2}:{t+3}] neg_lo:[0,1] neg_hi:[0,1]')
    a(f'v_add_f32 v{92+mi}, v{y}, v{y+1}'); a(f'v_sub_f32 v{94+mi}, v{y}, v{y+1}')
a('v_cvt_pk_bf16_f32 v96, v92, v93'); a('v_mov_b32 v97, 0')
a('v_cvt_pk_bf16_f32 v98, v86, v90'); a('v_cvt_pk_bf16_f32 v101, v87, v91'); a('v_xor_b32 v99, 0x80008000, v101')
a('v_cvt_pk_bf16_f32 v100, v94, v95')
for cpart, r in enumerate((96, 97, 98, 99, 100, 97, 98, 101)):
    a(f'ds_write_b32 v8, v{r} offset:{L_Z + (cpart*ZB + 80)*ZROW}')
a('L_z0:')
for et in range(5):
    for mi in range(2):
        for part in range(2):
            t = TD(part, mi, et); c = 56 + 2*(5*part + et)
            for d in (() if NOCS else (0, 2)):
                a(f'v_pk_fma_f32 v[{t+d}:{t+d+1}], v[{48+4*mi+d}:{49+4*mi+d}], v[{c}:{c+1}], v[{t+d}:{t+d+1}] op_sel_hi:[1,0,1] neg_lo:[1,0,0] neg_hi:[1,0,0]')
            for d in (0, 2):
                a(f'v_pk_mul_f32 v[{t+d}:{t+d+1}], v[{t+d}:{t+d+1}], v[{40+4*mi+d}:{41+4*mi+d}]')
        y = 80 + 16*mi
        for part in range(2):
            t = TD(part, mi, et)
            a(f'v_pk_add_f32 v[{y+4*part}:{y+4*part+1}], v[{t}:{t+1}], v[{t+2}:{t+3}]')
            a(f'v_pk_add_f32 v[{y+4*part+2}:{y+4*part+3}], v[{t}:{t+1}], v[{t+2}:{t+3}] neg_lo:[0,1] neg_hi:[0,1]')
        pa, qa, ra, sa, pb, qb, rb, sb = range(y, y+8); o = y + 8
        a(f'v_add_f32 v{o}, v{pa}, v{qa}'); a(f'v_add_f32 v{o+1}, v{pb}, v{qb}')
        a(f'v_add_f32 v{o+2}, v{ra}, v{sb}'); a(f'v_sub_f32 v{o+3}, v{rb}, v{sa}')
        a(f'v_sub_f32 v{o+4}, v{pa}, v{qa}'); a(f'v_sub_f32 v{o+5}, v{pb}, v{qb}')
        a(f'v_sub_f32 v{o+6}, v{ra}, v{sb}'); a(f'v_add_f32 v{o+7}, v{rb}, v{sa}')
    for cpart in range(8):
        a(f'v_cvt_pk_bf16_f32 v{112+cpart}, v{88+cpart}, v{104+cpart}')
    for cpart in range(8):
        a(f'ds_write_b32 v8, v{112+cpart} offset:{L_Z + (cpart*ZB + 16*et)*ZROW}')
tick(7, 42)
VADDR = []
VADDR += ['v_lshrrev_b32 v12, 1, v2', f'v_mul_u32_u24 v12, {8*VROW}, v12', 'v_and_b32 v13, 1, v2', f'v_mul_u32_u24 v11, {VROW}, v13', 'v_add_u32 v12, v12, v11', 'v_lshl_add_u32 v12, v3, 4, v12']
VADDR += ['s_mul_i32 s66, s28, 17', 's_add_u32 s67, s66, s3', f's_mul_i32 s67, s67, {2*VROW}', *(['s_and_b32 s68, s30, 1', 's_lshl_b32 s68, s68, 1', 's_lshr_b32 s69, s30, 1', 's_add_u32 s68, s68, s69', 's_mul_i32 s68, s68, 1280'] if DF else ['s_mul_i32 s68, s30, 1280']), f's_add_u32 s68, s68, {WS_V + 128}', 's_add_u32 s67, s67, s68', 's_sub_u32 s69, s67, 16']
VADDR += ['s_add_u32 s66, s66, 16', f's_mul_i32 s66, s66, {2*VROW}', 's_add_u32 s66, s66, s68', f's_add_u32 s70, s67, {16*VROW}']
a('v_mov_b32 v10, 1')
a('s_waitcnt lgkmcnt(0)')
a('s_mov_b64 exec, 1'); a('ds_add_u32 v6, v10 offset:4'); a('s_mov_b64 exec, -1')
a('v_bfe_u32 v8, v3, 1, 2'); a('v_xor_b32 v8, v8, v2'); a('v_lshlrev_b32 v8, 4, v8'); a('v_lshl_add_u32 v8, v3, 6, v8'); a(f's_mul_i32 s66, s3, {2*ZB*ZROW}'); a('v_add_u32 v8, s66, v8')
for ins in VADDR: a(ins)
lds_wait('L_zw', 4, 14)
tick(7, 43)
for part in range(2):
    for et in range(5):
        r = 40 + 20*part + 4*et
        a(f'ds_read_b128 v[{r}:{r+3}], v8 offset:{L_Z + (part*ZB + 16*et)*ZROW}')
for part in range(2): a(f'ds_read_b128 v[{120+4*part}:{123+4*part}], v8 offset:{L_Z + (part*ZB + 80)*ZROW}')
a('s_waitcnt lgkmcnt(0)')
a('s_mov_b64 exec, 1'); a('ds_add_u32 v6, v10 offset:8'); a('s_mov_b64 exec, -1')
a('v_mov_b32 v8, v12'); a('v_mov_b32 v10, v11')
tick(7, 44)
def VR(mt, et): return DACC + 20*mt + 4*et
def VI(mt, et): return DACC + 40 + 20*mt + 4*et
def vpack(et):
    L = []
    for mt in range(2):
        o = 80 + 20*mt + 4*et
        for i in range(4): L.append(f'v_cvt_pk_bf16_f32 v{o+i}, v{VR(mt,et)+i}, v{VI(mt,et)+i}')
        L.append(f'buffer_store_dwordx4 v[{o}:{o+3}], v8, s[12:15], s{67 + 3*mt} offen offset:{256*et} {STP}')
    return L
def vm(vr, vi, ya, yb):
    L = []
    for mt in range(2):
        L.append(f'v_mfma_f32_16x16x32_bf16 v[{vr(mt)}:{vr(mt)+3}], v[{FCOS+4*mt}:{FCOS+4*mt+3}], v[{ya}:{ya+3}], 0')
        L.append(f'v_mfma_f32_16x16x32_bf16 v[{vi(mt)}:{vi(mt)+3}], v[{FNS+4*mt}:{FNS+4*mt+3}], v[{ya}:{ya+3}], 0')
    for mt in range(2):
        L.append(f'v_mfma_f32_16x16x32_bf16 v[{vr(mt)}:{vr(mt)+3}], v[{FSIN+4*mt}:{FSIN+4*mt+3}], v[{yb}:{yb+3}], v[{vr(mt)}:{vr(mt)+3}]')
        L.append(f'v_mfma_f32_16x16x32_bf16 v[{vi(mt)}:{vi(mt)+3}], v[{FCOS+4*mt}:{FCOS+4*mt+3}], v[{yb}:{yb+3}], v[{vi(mt)}:{vi(mt)+3}]')
    return L
for et in range(5):
    M = vm(lambda mt: VR(mt, et), lambda mt: VI(mt, et), 40 + 4*et, 60 + 4*et)
    for ins in interleave2(M, vpack(et - 2) if et >= 2 else [], 2): a(ins)
a('s_cmp_lg_u32 s30, 0'); a('s_cbranch_scc1 L_v0a')
for ins in vm(lambda mt: 160 + 4*mt, lambda mt: 168 + 4*mt, 120, 124): a(ins)
a('L_v0a:')
tick(7, 45)
for ins in vpack(3): a(ins)
for ins in vpack(4): a(ins)
a('s_cmp_lg_u32 s30, 0'); a('s_cbranch_scc1 L_v0b')
for mt in range(2):
    for i in range(4): a(f'v_cvt_pk_bf16_f32 v{120+4*mt+i}, v{160+4*mt+i}, v{168+4*mt+i}')
a('s_mov_b32 exec_lo, 0x00010001'); a('s_mov_b32 exec_hi, 0x00010001')
a(f'buffer_store_dwordx4 v[120:123], v8, s[12:15], s69 offen {STP}')
a(f's_add_u32 s69, s69, {16*VROW}')
a(f'buffer_store_dwordx4 v[124:127], v8, s[12:15], s69 offen {STP}')
a('s_mov_b64 exec, -1')
a('L_v0b:')
tick(7, 46)
a('s_cmp_lg_u32 s3, 0')
a('s_cbranch_scc1 L_signal')
a('v_cvt_f32_u32 v62, s28'); a('v_mul_f32 v62, 0.0625, v62'); a('v_cos_f32 v63, v62'); a('v_sin_f32 v64, v62')
a('v_cmp_gt_u32 vcc, 16, v0')
a('v_lshlrev_b32 v11, 4, v3'); a('v_add_u32 v9, v10, v11')
for et in range(5):
    o = 80 + 4*et; vr = VR(0, et); vi = VI(0, et); n = 40 + 4*et
    a(f'v_mul_f32 v65, v63, v{vr}'); a(f'v_fmac_f32 v65, v64, v{vi}')
    a(f'v_mul_f32 v66, v63, v{vi}'); a(f'v_fma_f32 v66, -v64, v{vr}, v66')
    a(f'v_cvt_pk_bf16_f32 v65, v65, v66')
    a(f'v_cndmask_b32 v65, v{o}, v65, vcc')
    a(f'v_mov_b32 v{n}, v{o+1}')
    a(f'v_mov_b32 v66, v65')
    a(f'v_mov_b32 v{n+1}, v{o+2}'); a(f'v_mov_b32 v{n+2}, v{o+3}')
    a(f'v_permlane16_swap_b32 v65, v66')
    a('s_nop 1')
    a(f'v_cndmask_b32 v{n+3}, v65, v66, vcc')
a('s_mov_b32 exec_hi, 0')
for et in range(5):
    a(f'buffer_store_dwordx4 v[{40+4*et}:{43+4*et}], v9, s[12:15], s66 offen offset:{256*et} {STP}')
a('s_mov_b64 exec, -1')

a('L_signal:')
a('s_mov_b32 s79, 0')
tick(7, 32)
stamp(3)
a('s_lshl_b32 s66, s30, 2'); a('s_add_u32 s66, s66, s3'); a('s_lshl_b32 s66, s66, 7'); a('s_lshl_b32 s67, s28, 2'); a('s_add_u32 s66, s66, s67'); a(f's_add_u32 s66, s66, {WS_FV}')
a('v_mov_b32 v4, s43'); a('v_mov_b32 v5, 0')
a('s_waitcnt vmcnt(0)'); a('s_mov_b64 exec, 1')
a('buffer_store_dword v4, v5, s[12:15], s66 offen sc1'); a('s_mov_b64 exec, -1')
if TONE: lds_arrive(0, 4)
tick_dump(7, 4)
a('L_helper:')
if TONE:
    lds_wait('L_hc9', 20, 40)
    a('s_cmp_eq_u32 s35, 0'); a('s_cbranch_scc1 L_hnz')
    lds_wait('L_hzc', 8, 40)
    a('L_hnz:')
else:
    if 0 <= EARLY < 8: a('s_cmp_eq_u32 s35, 0'); a('s_cbranch_scc1 L_hea')
    if CBAR: a('s_barrier')
    else:
        lds_arrive(0, 4)
        a('L_hea:')
        lds_wait('L_hc9', 20, 40)
        a('s_cmp_eq_u32 s35, 0'); a('s_cbranch_scc1 L_hnz')
        lds_wait('L_hzc', 8, 40)
        a('L_hnz:')
    a('s_mov_b32 s44, s3')
    p2_setup()
    if HF1: lds_wait('L_hgo', 40, 40, opt('hgn', 4))
    a('s_cmp_eq_u32 s35, 1'); a('s_cbranch_scc1 L_hd')
    for st in range(12 - NLATE + opt('skipl', 0), 12): wdt_lds(st)
    a('s_branch L_hf')
    a('L_hd:')
    for st in range(12 - NLD, 12): wdt_lds(st)
    a('L_hf:')
    VT = opt('vtouch', 0)
    def vtouch():
        a('s_cmp_eq_u32 s35, 0'); a('s_cbranch_scc1 L_nvt')
        a('v_lshrrev_b32 v40, 2, v0'); a('v_lshlrev_b32 v40, 7, v40'); a('v_and_b32 v41, 3, v0'); a('v_lshl_add_u32 v40, v41, 4, v40')
        a(f's_mov_b32 s66, {WS_FV}')
        spin_begin('L_pollva')
        a('buffer_load_dwordx4 v[44:47], v40, s[12:15], s66 offen sc1')
        a('s_waitcnt vmcnt(0)')
        for i in range(4): a(f'v_xor_b32 v{44+i}, s43, v{44+i}')
        a('v_or_b32 v44, v44, v45'); a('v_or3_b32 v44, v46, v47, v44')
        a('v_cmp_ne_u32 vcc, 0, v44'); a('s_cmp_eq_u64 vcc, 0')
        spin_end('L_pollva')
        a('s_lshl_b32 s66, s30, 2'); a('s_sub_u32 s67, 13, s66'); a('s_cmp_eq_u32 s31, 1'); a('s_cselect_b32 s66, s67, s66')
        a('s_lshl_b32 s67, s32, 1'); a('s_lshr_b32 s68, s3, 1'); a('s_add_u32 s67, s67, s68'); a('s_mul_i32 s67, s67, 17'); a('s_add_u32 s66, s66, s67')
        a(f's_mul_i32 s66, s66, {2*VROW}'); a('s_and_b32 s67, s3, 1'); a(f's_mul_i32 s67, s67, {164*128}'); a('s_add_u32 s66, s66, s67'); a(f's_add_u32 s66, s66, {WS_V}')
        a('v_lshlrev_b32 v40, 7, v0')
        for i in range(3):
            if i == 2: a('s_mov_b32 exec_hi, 0xf')
            a(f'buffer_load_dword v41, v40, s[12:15], s66 offen sc1')
            if i < 2: a('s_add_u32 s66, s66, 8192')
        a('s_mov_b64 exec, -1')
        a('s_mov_b32 s79, 0')
        a('s_waitcnt vmcnt(0)')
        a('L_nvt:')
    if VT == 2: vtouch()
    a('s_waitcnt vmcnt(0)')
    lds_arrive(36, 4)
    if VT == 1: vtouch()
stamp(4)

a('s_cmp_eq_u32 s79, 1'); a('s_cbranch_scc1 L_vdone')
if VGO: a('s_cmp_lg_u32 s3, 3'); a('s_cbranch_scc1 L_vwait')
spin_begin('L_pollv')
a(f'buffer_load_dword v53, v{VFL}, s[12:15], s60 offen sc1')
a('s_waitcnt vmcnt(0)')
a('v_cmp_ne_u32 vcc, s43, v53')
a('s_cmp_eq_u64 vcc, 0')
spin_end('L_pollv')
if VGO:
    lds_arrive(28, 40)
    a('L_vwait:')
    lds_wait('L_vc', 28, 40, 1)
    lds_wait('L_vgo', 40, 40, 1)
v_loads()
a('L_vdone:')
stamp(5)
a('v_lshrrev_b32 v4, 2, v3'); a('v_and_b32 v5, 3, v3'); a('v_lshl_add_u32 v7, v5, 2, v4')
a('s_mul_i32 s66, s55, 15'); a('v_xor_b32 v4, s66, v7')
a('v_cvt_f32_u32 v4, v4'); a('v_mul_f32 v4, 0.0625, v4')
a('v_lshlrev_b32 v5, 2, v2'); a('v_cvt_f32_u32 v5, v5')
for i in range(4):
    a(f'v_add_f32 v52, {float(i)!r}, v5'); a('v_mul_f32 v52, v52, v4')
    a('v_cos_f32 v53, v52'); a('v_sin_f32 v54, v52'); a('s_nop 0')
    a(f'v_cvt_pk_bf16_f32 v{8+i}, v53, v54')
a(f's_mov_b32 s47, {PN}'); a('s_cmp_eq_u32 s55, 1'); a(f's_cselect_b32 s47, {(-PN) & 0xffffffff}, s47')
a(f'v_mul_u32_u24 v56, {PQ}, v2'); a('v_lshl_add_u32 v56, v3, 4, v56'); a(f's_mul_i32 s66, s55, {3*PN}'); a('v_add_u32 v56, s66, v56')
for k4 in range(1, 4): a(f'v_add_u32 v{56+k4}, s47, v{55+k4}')
def spec_tile(off_s, vb):
    for k4 in range(4):
        for i in range(4): a(f'v_mov_b32 v{64+4*k4+i}, v{vb+4*i+k4}')
    a('s_nop 1')
    for k4 in range(4):
        c = 80 + 4*k4
        a(f'v_mfma_f32_16x16x32_bf16 v[{c}:{c+3}], v[{64+4*k4}:{67+4*k4}], v[8:11], 0')
    for k4 in range(4): a(f'v_add_u32 v{40+k4}, {off_s}, v{56+k4}')
    a('s_nop 5')
    for k4 in range(4):
        c = 80 + 4*k4
        a(f'ds_write_b128 v{40+k4}, v[{c}:{c+3}]')
a('s_cmp_eq_u32 s3, 1'); a(f's_mov_b32 s73, {ST[0]}'); a(f's_cselect_b32 s73, {ST[1]}, s73')
a('s_cmp_eq_u32 s3, 2'); a(f's_cselect_b32 s73, {ST[2]}, s73')
a('s_cmp_eq_u32 s3, 3'); a(f's_cselect_b32 s73, {ST[3]}, s73')
a('s_waitcnt vmcnt(0)')
a('s_cmp_lg_u32 s3, 0'); a('s_cbranch_scc1 L_spec1')
a(f's_mov_b32 s74, {ST[4]}')
spec_tile('s74', VB1)
a('L_spec1:')
spec_tile('s73', VB0)
for r in range(3):
    for d in range(4):
        a(f'v_lshlrev_b32 v{96+8*r+2*d}, 16, v{XR[r]+d}'); a(f'v_and_b32 v{97+8*r+2*d}, 0xffff0000, v{XR[r]+d}')
if F8:
    lds_arrive(52, 40)
    lds_wait('L_spw', 52, 40)
    a(f'ds_read_b128 v[128:131], v{FA[5]}'); a(f'ds_read_b128 v[132:135], v{FA[5]} offset:{PQ}')
    a('s_waitcnt lgkmcnt(0)')
    for d in range(0, 8, 2): a(f'v_pk_add_f32 v[{128+d}:{129+d}], v[{128+d}:{129+d}], v[{104+d}:{105+d}]')
    a(f'ds_write_b128 v{FA[5]}, v[128:131]'); a(f'ds_write_b128 v{FA[5]}, v[132:135] offset:{PQ}')

a('L_final:')
def final_reads(r, b):
    d4, d11 = FA[3*r], FA[3*r+2]
    for p in range(5):
        reg = (d4, d4, d4, d4, d11)[p]; off = (0, P2W, 2*P2W, 3*P2W, 0)[p]
        a(f'ds_read_b128 v[{b+8*p}:{b+3+8*p}], v{reg} offset:{off}')
        a(f'ds_read_b128 v[{b+4+8*p}:{b+7+8*p}], v{reg} offset:{off+PQ}')
def final_sum(r, b, cnt):
    x = 96 + 8*r
    for p in range(5):
        a(f's_waitcnt lgkmcnt({min(15, cnt + 8 - 2*p)})')
        for d in range(0, 8, 2): a(f'v_pk_add_f32 v[{x+d}:{x+d+1}], v[{x+d}:{x+d+1}], v[{b+8*p+d}:{b+8*p+d+1}]')
    for d in range(4): a(f'v_cvt_pk_bf16_f32 v{b+d}, v{x+2*d}, v{x+2*d+1}')
    a(f'buffer_store_dwordx4 v[{b}:{b+3}], v{FA[3*r+1]}, s[16:19], 0 offen {OUTP}')
a('s_waitcnt lgkmcnt(0)')
a('s_barrier')
stamp(6)
if F8:
    final_reads(0, 128)
    a('s_cmp_ge_u32 s3, 2'); a('s_cbranch_scc1 L_fin8')
    final_reads(2, 168)
    final_sum(0, 128, 10)
    final_sum(2, 168, 0)
    a('s_branch L_fin2')
    a('L_fin8:')
    final_sum(0, 128, 0)
    a('s_branch L_fin2')
final_reads(0, 128)
final_reads(1, 168)
final_sum(0, 128, 10)
a('s_cmp_ge_u32 s3, 2'); a('s_cbranch_scc1 L_fin1')
final_reads(2, 208)
final_sum(1, 168, 10)
final_sum(2, 208, 0)
a('s_branch L_fin2')
a('L_fin1:')
final_sum(1, 168, 0)
a('L_fin2:')
if 'diag' in opts:
    a('s_cmp_lg_u32 s3, 0'); a('s_cbranch_scc1 L_diag')
    a('s_waitcnt vmcnt(0)')
    a('s_memrealtime s[94:95]'); a('s_waitcnt lgkmcnt(0)')
    if opts['diag'] == 'r': a('s_sub_u32 s66, s43, s80'); a('s_max_i32 s66, s66, 0'); a('s_min_u32 s66, s66, 5000'); a('s_lshl_b32 s66, s66, 4')
    elif opts['diag'] == 'b': a('s_sub_u32 s66, s82, s80'); a('s_max_i32 s66, s66, 0'); a('s_min_u32 s66, s66, 5000'); a('s_lshl_b32 s66, s66, 3')
    elif opts['diag'] == 'c': a('s_sub_u32 s66, s92, s90'); a('s_lshr_b32 s66, s66, 2'); a('s_cmp_eq_u32 s35, 1'); a('s_cselect_b32 s66, 0, s66')
    elif opts['diag'] == 'l': a('s_sub_u32 s66, s84, s82'); a('s_lshl_b32 s66, s66, 2'); a('s_cmp_eq_u32 s35, 1'); a('s_cselect_b32 s66, 0, s66')
    elif opts['diag'] == 'g': a('s_sub_u32 s66, s92, s86'); a('s_lshl_b32 s66, s66, 2')
    elif opts['diag'] == 'p': a('s_sub_u32 s66, s86, s84'); a('s_lshl_b32 s66, s66, 4'); a('s_cmp_eq_u32 s35, 1'); a('s_cselect_b32 s66, 0, s66')
    elif opts['diag'][0] == 'k': a('s_sub_u32 s66, s96, s80'); a('s_lshl_b32 s66, s66, 2'); a('s_cmp_eq_u32 s35, 1'); a('s_cselect_b32 s66, 0, s66')
    elif opts['diag'] in 'wf': a('s_sub_u32 s66, s98, s96'); a('s_lshl_b32 s66, s66, 4'); a('s_cmp_eq_u32 s35, 1'); a('s_cselect_b32 s66, 0, s66')
    elif opts['diag'] == 'D': a('s_sub_u32 s66, s86, s80'); a('s_lshl_b32 s66, s66, 2'); a('s_cmp_eq_u32 s35, 0'); a('s_cselect_b32 s66, 0, s66')
    elif opts['diag'] == 'F': a('s_sub_u32 s66, s86, s80'); a('s_lshl_b32 s66, s66, 2'); a('s_cmp_eq_u32 s35, 1'); a('s_cselect_b32 s66, 0, s66')
    elif opts['diag'] == 'V': a('s_sub_u32 s66, s90, s80'); a('s_lshl_b32 s66, s66, 2')
    elif opts['diag'] == 'e': a('s_sub_u32 s66, s94, s80'); a('s_max_i32 s66, s66, 0'); a('s_min_u32 s66, s66, 5000'); a('s_lshl_b32 s66, s66, 2')
    else: a(f"s_sub_u32 s66, s{80 + 2*int(opts['diag'])}, s43"); a('s_max_i32 s66, s66, 0'); a('s_min_u32 s66, s66, 5000'); a('s_lshl_b32 s66, s66, 2')
    a('L_dsp:')
    a('s_memrealtime s[68:69]'); a('s_waitcnt lgkmcnt(0)'); a('s_sub_u32 s68, s68, s94'); a('s_cmp_lt_u32 s68, s66'); a('s_cbranch_scc1 L_dsp')
    a('s_endpgm')
    a('L_diag:')
if opt('dbgt', 0):
    a('s_cmp_lg_u32 s3, 0'); a('s_cbranch_scc1 L_dbgt')
    a('s_waitcnt vmcnt(0)')
    a('s_memrealtime s[94:95]'); a('s_waitcnt lgkmcnt(0)')
    a('s_mov_b64 exec, 1')
    for i, r in enumerate((80, 82, 84, 86, 88, 90, 92, 94)):
        a(f's_sub_u32 s66, s{r}, s43'); a('s_add_u32 s66, s66, 1000'); a('v_mov_b32 v4, s66'); a(f'v_mov_b32 v5, {4 + 4*i}')
        a('buffer_atomic_umax v4, v5, s[24:27], 0 offen sc1')
        a('s_nop 2')
    a('s_endpgm')
    a('L_dbgt:')
stamp(7)
if STAMPS:
    a('s_waitcnt vmcnt(0)')
    a('s_memrealtime s[96:97]')
    a('s_waitcnt lgkmcnt(0)')
    for i in range(8): a(f'v_mov_b32 v{16+i}, s{80+2*i}')
    a('v_mov_b32 v24, s96'); a('v_mov_b32 v25, s101')
    a('s_lshl_b32 s66, s2, 3'); a('s_add_u32 s66, s66, s3'); a('s_lshl_b32 s66, s66, 6'); a(f's_add_u32 s66, s66, {WS_TS}')
    a('v_mov_b32 v4, 0')
    a('s_mov_b64 exec, 1')
    a('buffer_store_dwordx4 v[16:19], v4, s[12:15], s66 offen')
    a('buffer_store_dwordx4 v[20:23], v4, s[12:15], s66 offen offset:16')
    a('buffer_store_dwordx2 v[24:25], v4, s[12:15], s66 offen offset:32')
a('s_endpgm')
emit_tails()
a('L_done:')
a.end(256, sgpr=102)
txt = a.text([])
txt = txt.replace('.amdgcn_target', f'; @launch grid=(256,1,1) block=(512,1,1) lds={LDS_BYTES}\n.amdgcn_target', 1)
open(sys.argv[1], 'w').write(txt)
if opt('ids', 0): print(wait_ids, spin_ids)
```

```python
import sys, math
from asmlib import *
opts = dict(o.split('=') for o in sys.argv[2:])
def opt(k, d): return type(d)(opts.get(k, d))
STAMPS = opt('stamps', 0)
DGO = opt('dgo', 0)
CBAR = opt('cbar', 1)
HF1 = opt('hf1', 0)
WDA = opts.get('wda', '')
F8 = opt('f8', 1)
RSP = opts.get('rsp', 'sc1').replace('+', ' ')
RSEQ = opts.get('rseq', '0222200').replace('-', '')
FRB = opt('frb', 6)
FRSEP = opt('frsep', 1)
NOCS = opt('nocs', 1)
FWL = opt('fwl', 0)
DF = opt('df', 1)
PFW = opts.get('pfw', '2,1').replace('-', '')
PFP = opts.get('pfp', '-').replace('-', '')
HALF = opt('half', 1)
EARLY = opt('early', 8 if HALF else -1)
NTM = [sum(1 << int(c) for c in m) for m in opts['ntm'].split(',')] if 'ntm' in opts else None
RP = opts.get('rp', '-').replace('+', ' ').replace('-', '')
WP_ = opts.get('wp', '-').replace('+', ' ').replace('-', '')
XP_ = opts.get('xp', '-').replace('+', ' ').replace('-', '')
TONE = opt('t1', 0)
HDLY = opt('hdly', 0)
OUTP = opts.get('outp', 'sc1').replace('+', ' ').replace('-', '')
SENT = 1
RDFT = opt('rdft', 1)
RSL = opt('rsleep', 4)
AUXV = opt('auxv', 0)
VGO = opt('vgo', 1)
VCHK = opt('vchk', 4)
XR = [32, 36, 28]
FA = [16, 17, 18, 19, 20, 21, 22, 23, 24]; VA0, VA4, VFL = 25, 26, 27
NONIT = 1
WMODE = opt('wmode', 0)
STRICT = opt('strict', 1)
ZFIX = opt('zfix', 1)
FLAGA = opt('flaga', 0)
FAKEW = opt('fakew', 0)
FAKEH = opt('fakeh', 0)
P2MAP = opt('p2map', 1)
P2ROT = opt('p2rot', 5)
SPINMAX = opt('spinmax', 1 << 16)
CODEPF = opt('codepf', 1)
LDW = opts.get('ldw', 'sc1').replace('+', ' ').replace('-', '')
LDH = opts.get('ldh', 'sc1').replace('+', ' ').replace('-', '')
STP = opts.get('stp', 'sc1').replace('+', ' ').replace('-', '')
S, D, F = 2048, 640, 1536
KNAME = 'parallel_sum__spectral_fnet__swiglu_ffn__prompt_kernel'
STG = 49152
WS_H = 0
WS_WDT = 0x600000
WS_V = 0x800000
WS_XP = 0xB00000
WS_WP = 0xB20000
WS_FW = 0xB30000
WS_FH = 0xB31000
WS_FV = 0xB34000
WS_TS = 0xC00000
WS_SIZE = 0x1000000
L_AUX = 3*STG
L_R = L_AUX
L_M = L_AUX + 512
L_CS = L_AUX + 1024
L_CNT = L_AUX + 2048
L_NON = L_CNT + 32
L_A0 = L_AUX + 2560
L_CH = L_AUX + 3072
L_WD = L_AUX + 4096
L_Z = 0
ZROW = 64; ZB = 96
VROW = 5248
P2W = 10240
P2STEP = [STG, STG + 5120, 2*STG, 2*STG + 5120, 0, 5120]
PT = [STG, STG + 4416, 2*STG + 128, 2*STG + 128 + 4416, 0]
ST = [40960, STG + 40960 + 64, 2*STG + 40960 + 128, 3*STG + 4096 + 192, 3*STG + 4096 + 192 + 4416 ]
PQ, PN, PE = 272, 1088, 4416
LDS_BYTES = 163840

a = Asm()
stamp_n = [0]
def stamp(i):
    if STAMPS and opts.get('diag') == 'c' and i in (1, 2): a(f's_memtime s[{88 + 2*i}:{89 + 2*i}]'); return
    if STAMPS and opts.get('diag') == 'c' and i in (5, 6): return
    if STAMPS:
        if not ((FAKEW or FAKEH) and i >= 5): a(f's_memrealtime s[{80+2*i}:{81+2*i}]')
TICKS = opt('ticks', 0)
def tick(reg, idx):
    if TICKS:
        a('s_memrealtime s[98:99]'); a('s_waitcnt lgkmcnt(0)')
        if isinstance(idx, tuple):
            a(f's_add_u32 m0, {idx[0]}, {idx[1]}'); a('s_nop 3'); a(f'v_writelane_b32 v{reg}, s98, m0')
        else:
            a(f'v_writelane_b32 v{reg}, s98, {idx}')
def tick_dump(reg, tmp):
    if TICKS:
        a('s_lshl_b32 s98, s2, 3'); a('s_add_u32 s98, s98, s3'); a('s_lshl_b32 s98, s98, 8'); a(f's_add_u32 s98, s98, {WS_TS + 0x100000}')
        a(f'v_lshlrev_b32 v{tmp}, 2, v0')
        a(f'buffer_store_dword v{reg}, v{tmp}, s[12:15], s98 offen')
def rbf(v):
    a(f'v_cvt_pk_bf16_f32 v{v}, v{v}, v{v}')
    a(f'v_lshlrev_b32 v{v}, 16, v{v}')
def srd_from(d, b, nbytes):
    srd(a, d, b, nbytes)
spin_ids = {}
def spin_begin(name):
    a(f's_mov_b32 s79, 0')
    a(f'{name}:')
def spin_end(name):
    a(f's_cbranch_scc1 {name}_ok')
    a('s_add_u32 s79, s79, 1')
    a(f's_cmp_ge_u32 s79, {SPINMAX}')
    if STAMPS: spin_ids[name] = 100 + len(spin_ids); a(f's_cselect_b32 s101, {spin_ids[name]}, s101')
    a(f's_cbranch_scc1 {name}_ok')
    a(f"s_sleep {opt('gsl', 4)}")
    a(f's_branch {name}')
    a(f'{name}_ok:')

def lds_arrive(off, v):
    a(f'v_mov_b32 v{v}, {L_CNT}'); a(f'v_mov_b32 v{v+1}, 1')
    a('s_waitcnt lgkmcnt(0)')
    a('s_mov_b64 exec, 1')
    a(f'ds_add_u32 v{v}, v{v+1} offset:{off}')
    a('s_mov_b64 exec, -1')
wait_ids = {}
def lds_wait(name, off, v, cnt=4):
    wait_ids[name] = len(wait_ids) + 1
    a(f'v_mov_b32 v{v}, {L_CNT}')
    a('s_mov_b32 s100, 0')
    a(f'{name}:')
    a(f'ds_read_b32 v{v+1}, v{v} offset:{off}')
    a('s_waitcnt lgkmcnt(0)')
    a(f'v_readfirstlane_b32 s78, v{v+1}')
    a(f's_cmp_lt_u32 s78, {cnt}')
    a(f's_cbranch_scc0 {name}_ok')
    a('s_add_u32 s100, s100, 1')
    a(f's_cmp_lt_u32 s100, {SPINMAX*8}')
    a(f"s_sleep {opt('lsl', 3)}")
    a(f's_cbranch_scc1 {name}')
    if STAMPS: a(f's_mov_b32 s101, {wait_ids[name]}')
    a(f'{name}_ok:')
a.begin(KNAME)
a('s_cmp_ge_u32 s2, 256')
a('s_cbranch_scc1 L_done')
stamp(0)
if STAMPS: a('s_mov_b32 s101, 0')
a('s_load_dwordx2 s[64:65], s[0:1], 0')
a('s_load_dwordx4 s[60:63], s[0:1], 24')
a('s_load_dwordx8 s[48:55], s[0:1], 48')
a('s_load_dwordx4 s[56:59], s[0:1], 80')
a('v_lshrrev_b32 v1, 6, v0')
a('v_and_b32 v0, 63, v0')
a('v_readfirstlane_b32 s3, v1')
a('s_and_b32 s40, s2, 7'); a('s_lshr_b32 s41, s2, 3')
a('s_and_b32 s31, s40, 1'); a('s_lshr_b32 s30, s40, 1')
a('s_and_b32 s32, s41, 7'); a('s_lshr_b32 s33, s41, 3')
a('s_lshl_b32 s28, s31, 3'); a('s_add_u32 s28, s28, s32')
a('s_mul_i32 s29, s30, 3'); a('s_add_u32 s29, s29, s33')
a('s_add_u32 s42, s30, 12')
a('s_cmp_eq_u32 s33, 3')
a('s_cselect_b32 s29, s42, s29')
a('s_cselect_b32 s35, 1, 0')
OFFA = opt('offa', 2)
assert DF or OFFA == 0
if OFFA == 0: a('s_mul_i32 s34, s30, 5'); a('s_add_u32 s34, s34, 1'); a('s_lshr_b32 s34, s34, 1')
elif OFFA == 1: a('s_min_u32 s34, s30, 1'); a('s_add_u32 s34, s34, s30')
elif OFFA == 2: a('s_mov_b32 s34, 0')
elif OFFA == 3: a('s_min_u32 s34, s30, 1'); a('s_add_u32 s34, s34, s30'); a('s_and_b32 s42, s30, 1'); a('s_mul_i32 s42, s42, 5'); a('s_add_u32 s34, s34, s42')
a('s_mul_i32 s42, s31, 5'); a('s_add_u32 s34, s34, s42')
a('s_cmp_ge_u32 s34, 10'); a('s_cselect_b32 s42, 10, 0'); a('s_sub_u32 s34, s34, s42')
if P2MAP == 0:
    a('s_lshl_b32 s42, s30, 3'); a('s_add_u32 s42, s42, s32')
    a('s_lshl_b32 s38, s31, 2'); a('s_add_u32 s38, s38, s33')
else:
    a('s_lshl_b32 s42, s40, 2'); a('s_add_u32 s42, s42, s33')
    a('s_mov_b32 s38, s32')
if EARLY < 0:
    a('s_mul_i32 s39, s32, 3'); a('s_lshr_b32 s39, s39, 1'); a('s_mul_i32 s66, s33, 3'); a('s_add_u32 s39, s39, s66')
    a('s_cmp_ge_u32 s39, 12'); a('s_cselect_b32 s66, 12, 0'); a('s_sub_u32 s39, s39, s66')
else:
    a('s_lshl_b32 s39, s33, 1'); a('s_add_u32 s39, s39, s32'); a('s_mul_i32 s39, s39, 3'); a('s_lshr_b32 s39, s39, 2')
    a('s_cmp_ge_u32 s39, 6'); a('s_cselect_b32 s66, 6, 0'); a('s_sub_u32 s39, s39, s66')
if not P2ROT: a('s_mov_b32 s39, 0')
if P2ROT == 2: a('s_mul_i32 s39, s32, 3'); a('s_lshr_b32 s39, s39, 1')
if P2ROT == 3: a('s_mul_i32 s39, s33, 3')
if P2ROT == 4: a('s_add_u32 s39, s32, s33'); a('s_and_b32 s39, s39, 1'); a('s_mul_i32 s39, s39, 6')
if P2ROT == 5: a('s_and_b32 s39, s2, 7'); a('s_mul_i32 s39, s39, 3'); a(f's_lshr_b32 s39, s39, {1 if EARLY < 0 else 2}')
a('s_lshr_b32 s36, s42, 1'); a('s_and_b32 s37, s42, 1')
WSOFF = opt('wsoff', 0)
WSRD = 's[12:15]'; HSRD = 's[12:15]'
def common_srds(loader=False):
    a('s_waitcnt lgkmcnt(0)')
    tick(7, 50)
    srd(a, 12, 58, WS_SIZE, WSOFF << 20)
    if not loader:
        srd_from(4, 64, S*D*2)
        srd_from(16, 54, S*D*2)
        srd_from(20, 52, F*D*2)
        srd_from(24, 56, 256)
a('s_cmp_lt_u32 s3, 4')
a('s_cbranch_scc1 L_compute')
a('s_sub_u32 s44, s3, 4')
a('s_cmp_eq_u32 s44, 3')
a('s_cbranch_scc1 L_aux')

W0 = 5
PT_ = [20, 21, 22, 23, 24, 25, 26, 27, 4, 5, 6, 7, 16, 17, 18, 19]
GT_ = [66, 67, 68, 69, 76, 77, 78, 79, 96, 97, 100, 101, 40, 41, 42, 43]
GT_ = [66, 67, 68, 69, 76, 77, 78, 79, 28, 29, 30, 31, 40, 41, 33, 43]
def emit_p0(dst, t):
    a(f's_min_u32 s{t}, s30, 1'); a(f's_add_u32 s{dst}, s30, s{t}'); a(f's_mul_i32 s{t}, s31, 3'); a(f's_add_u32 s{dst}, s{dst}, s{t}')
    a(f's_cmp_ge_u32 s{dst}, 5'); a(f's_cselect_b32 s{t}, 5, 0'); a(f's_sub_u32 s{dst}, s{dst}, s{t}')
H0 = opt('h0', 12)
def dma_loop(name, npieces):
    h = npieces * H0 // 16
    def pieces1(lo, hi, pol):
        for t in range(lo, hi):
            a(f's_add_u32 m0, s{PT_[t]}, s46'); a('s_nop 0')
            a(f'buffer_load_dwordx4 v{4 + (t & 1)}, s[8:11], s{GT_[t]} offen {pol} lds')
    def pieces(lo, hi):
        if not NTM: return pieces1(lo, hi, RP)
        L = a.label('L_pc')
        a('s_bitcmp1_b32 s50, s47'); a(f's_cbranch_scc1 {L}_n')
        pieces1(lo, hi, ''); a(f's_branch {L}_e')
        a(f'{L}_n:'); pieces1(lo, hi, 'nt'); a(f'{L}_e:')
    a('s_mov_b32 s46, 0'); a('s_mov_b32 s47, 0')
    a('v_add_u32 v4, s42, v4'); a('v_add_u32 v5, s42, v5')
    tick(7, 51)
    if opt('uni', 0):
        pieces(0, h)
        a(f'{name}_l:')
        pieces(h, npieces)
        a('s_cmp_eq_u32 s47, 9'); a('s_cbranch_scc1 L_p2last')
        a('s_add_u32 s45, s45, 1'); a('s_cmp_eq_u32 s45, 10'); a('s_cselect_b32 s45, 0, s45')
        a('s_cselect_b32 s42, s49, s48')
        a('v_add_u32 v4, s42, v4'); a('v_add_u32 v5, s42, v5')
        a(f's_add_u32 s46, s46, {STG}'); a(f's_cmp_eq_u32 s46, {3*STG}'); a('s_cselect_b32 s46, 0, s46')
        pieces(0, h)
        a(f's_waitcnt vmcnt({h})')
        tick(7, ('s47', 0))
        a('s_barrier')
        tick(7, ('s47', 16))
        a('s_add_u32 s47, s47, 1'); a(f's_branch {name}_l')
        return
    a(f'{name}_l:')
    pieces(0, h)
    a('s_cmp_lg_u32 s47, 1'); a(f's_cbranch_scc1 {name}_m')
    a(f's_waitcnt vmcnt({h})')
    tick(7, 0)
    a('s_barrier')
    tick(7, 16)
    a(f'{name}_m:')
    pieces(h, npieces)
    a('s_add_u32 s45, s45, 1'); a('s_cmp_eq_u32 s45, 10'); a('s_cselect_b32 s45, 0, s45')
    a('s_cselect_b32 s42, s49, s48')
    a('s_mov_b32 s70, s48'); a('s_mov_b32 s48, s51'); a('s_mov_b32 s51, s70')
    a('v_add_u32 v4, s42, v4'); a('v_add_u32 v5, s42, v5')
    a(f's_add_u32 s46, s46, {STG}'); a(f's_cmp_eq_u32 s46, {3*STG}'); a('s_cselect_b32 s46, 0, s46')
    tick(7, ('s47', 52))
    a('s_cmp_lt_u32 s47, 2'); a(f's_cbranch_scc1 {name}_nx')
    a(f's_waitcnt vmcnt({npieces})')
    tick(7, ('s47', -1))
    a('s_barrier')
    tick(7, ('s47', 15))
    a('s_cmp_eq_u32 s47, 9'); a('s_cbranch_scc1 L_p2last')
    a(f'{name}_nx:')
    a('s_add_u32 s47, s47, 1'); a(f's_branch {name}_l')

a('s_cmp_eq_u32 s44, 2')
a('s_cbranch_scc1 L_ldx')
a('s_cmp_eq_u32 s35, 1')
a('s_cbranch_scc1 L_ldc')
a('v_lshrrev_b32 v1, 4, v0')
a('v_and_b32 v2, 15, v0')
a('v_lshlrev_b32 v3, 1, v1')
a('v_xor_b32 v2, v2, v3')
a('v_lshlrev_b32 v2, 4, v2')
a(f'v_mul_u32_u24 v3, {F*2}, v1')
a('v_add_u32 v2, v2, v3')
a('s_lshl_b32 s70, s29, 8')
a('v_add_u32 v2, s70, v2')
a('s_and_b32 s70, s32, 1'); a('s_lshl_b32 s70, s70, 7')
a('v_xor_b32 v4, s70, v2')
a('v_xor_b32 v5, 128, v4')
a('s_lshl_b32 s70, s32, 11')
a('s_lshl_b32 s71, s44, 14')
for g in range(4):
    if g: a('s_add_u32 s70, s70, 2048'); a('s_and_b32 s70, s70, 0x3c00')
    a(f's_or_b32 s{PT_[4*g]}, s70, s71'); a(f's_mul_i32 s{GT_[4*g]}, s70, 12')
    a(f's_add_u32 s{PT_[4*g+2]}, s{PT_[4*g]}, 1024'); a(f's_add_u32 s{GT_[4*g+2]}, s{GT_[4*g]}, {4*F*2}')
    a('s_add_u32 s70, s70, 2048'); a('s_and_b32 s70, s70, 0x3c00')
    a(f's_or_b32 s{PT_[4*g+1]}, s70, s71'); a(f's_mul_i32 s{GT_[4*g+1]}, s70, 12')
    a(f's_add_u32 s{PT_[4*g+3]}, s{PT_[4*g+1]}, 1024'); a(f's_add_u32 s{GT_[4*g+3]}, s{GT_[4*g+1]}, {4*F*2}')
a('s_cmp_eq_u32 s44, 1')
a('s_waitcnt lgkmcnt(0)')
a('s_cselect_b32 s8, s50, s48'); a('s_cselect_b32 s9, s51, s49'); a(f's_mov_b32 s10, {D*F*2}'); a('s_mov_b32 s11, 0x00020000')
a(f's_mov_b32 s48, {64*F*2}'); a('s_mov_b32 s51, s48'); a('s_mov_b32 s45, s34'); a('s_mul_i32 s42, s34, s48'); a('s_mul_i32 s49, s48, -9')
if NTM: a(f's_mov_b32 s50, {NTM[0]}')
a('s_branch L_ld16')
a('L_ldx:')
if DF: emit_p0(71, 72)
a('v_lshrrev_b32 v1, 3, v0')
a('v_and_b32 v2, 7, v0')
a('v_lshrrev_b32 v3, 1, v1')
a('v_xor_b32 v2, v2, v3')
a('v_lshlrev_b32 v2, 4, v2')
a('v_lshrrev_b32 v3, 2, v1'); a('v_and_b32 v6, 3, v1'); a('v_lshl_add_u32 v3, v6, 2, v3')
XMAP = opt('xmap', 0)
if XMAP == 0:
    a('v_lshlrev_b32 v3, 7, v3'); a('v_add_u32 v3, s28, v3')
elif XMAP == 1:
    a('v_lshlrev_b32 v3, 7, v3'); a('s_lshl_b32 s70, s28, 3'); a('v_add_u32 v3, s70, v3')
else:
    a('v_lshlrev_b32 v3, 3, v3'); a('s_lshl_b32 s70, s28, 7'); a('v_add_u32 v3, s70, v3')
a(f'v_mul_u32_u24 v3, {D*2}, v3')
a('v_add_u32 v4, v2, v3')
a('v_xor_b32 v5, 64, v4'); a(f'v_add_u32 v5, {(256 if XMAP < 2 else 16)*D*2}, v5')
a('s_lshl_b32 s70, s33, 12')
for t in range(0, 16, 2):
    if t: a('s_add_u32 s70, s70, 2048'); a('s_and_b32 s70, s70, 0x3c00')
    a(f's_or_b32 s{PT_[t]}, s70, 0x8000'); a(f's_or_b32 s{PT_[t+1]}, s70, 0x8400')
    if XMAP == 0: a(f's_mul_i32 s{GT_[t]}, s70, {16*D*2//2048}')
    else: a(f's_mul_i32 s{GT_[t]}, s70, 5'); a(f's_lshr_b32 s{GT_[t]}, s{GT_[t]}, 3')
    a(f's_mov_b32 s{GT_[t+1]}, s{GT_[t]}')
a('s_waitcnt lgkmcnt(0)')
srd_from(8, 64, S*D*2)
a('s_movk_i32 s48, 128'); a('s_movk_i32 s51, 128'); a('s_mov_b32 s45, s34'); a('s_lshl_b32 s42, s34, 7'); a('s_movk_i32 s49, -1152')
if DF:
    a('s_cmp_eq_u32 s35, 0'); a('s_cbranch_scc1 L_ld16')
    a('s_movk_i32 s48, 640'); a('s_movk_i32 s51, -512'); a('s_lshl_b32 s45, s71, 1'); a('s_lshl_b32 s42, s71, 7')
if NTM: a(f's_mov_b32 s50, {NTM[1]}')
a('L_ld16:')
dma_loop('L_ldw', 16)
a('L_ldc:')
a('v_lshrrev_b32 v1, 3, v0')
a('v_and_b32 v2, 7, v0')
a('v_lshrrev_b32 v3, 1, v1')
a('v_xor_b32 v2, v2, v3')
a('v_lshlrev_b32 v2, 4, v2')
if DF:
    emit_p0(45, 72)
    a('s_lshr_b32 s70, s30, 1'); a('s_mul_i32 s70, s70, 160'); a('s_and_b32 s71, s30, 1'); a('s_add_u32 s70, s70, s71'); a('s_add_u32 s70, s70, 1')
    a('v_lshlrev_b32 v1, 1, v1')
else:
    a('s_mul_i32 s70, s30, 80'); a('s_add_u32 s70, s70, 1')
a('v_add_u32 v1, s70, v1')
a(f'v_mul_u32_u24 v3, {D*2}, v1')
a('v_add_u32 v2, v2, v3')
a('s_and_b32 s70, s32, 1'); a('s_lshl_b32 s70, s70, 6')
a('v_xor_b32 v4, s70, v2')
a('v_xor_b32 v5, 64, v4')
a('s_lshl_b32 s70, s32, 10')
a('s_lshl_b32 s71, s44, 14')
for t in range(10):
    if t: a('s_add_u32 s70, s70, 1024'); a('s_cmp_eq_u32 s70, 10240'); a('s_cselect_b32 s70, 0, s70')
    a(f's_or_b32 s{PT_[t]}, s70, s71'); a(f's_mul_i32 s{GT_[t]}, s70, {(16 if DF else 8)*D*2//1024}')
a('s_cmp_eq_u32 s44, 1')
a('s_waitcnt lgkmcnt(0)')
a('s_cselect_b32 s8, s62, s60'); a('s_cselect_b32 s9, s63, s61'); a(f's_mov_b32 s10, {D*D*2}'); a('s_mov_b32 s11, 0x00020000')
if not DF:
    a('s_movk_i32 s48, 128'); a('s_movk_i32 s51, 128'); a('s_mov_b32 s45, s34'); a('s_lshl_b32 s42, s34, 7'); a('s_movk_i32 s49, -1152')
    if NTM: a(f's_mov_b32 s50, {NTM[0]}')
    dma_loop('L_ldcl', 10)
else:
    a('s_lshl_b32 s42, s45, 7'); a('v_add_u32 v4, s42, v4'); a('v_add_u32 v5, s42, v5')
    a(f's_mov_b32 s46, {STG}'); a('s_mov_b32 s47, 1')
    a('L_ldcl:')
    for t in range(10):
        a(f's_add_u32 m0, s{PT_[t]}, s46'); a('s_nop 0')
        a(f'buffer_load_dwordx4 v{4 + (t & 1)}, s[8:11], s{GT_[t]} offen lds')
    a('s_add_u32 s45, s45, 1'); a('s_cmp_eq_u32 s45, 5'); a('s_cselect_b32 s45, 0, s45')
    a('s_movk_i32 s42, 128'); a('s_cselect_b32 s42, -512, s42')
    a('v_add_u32 v4, s42, v4'); a('v_add_u32 v5, s42, v5')
    a(f's_sub_u32 s46, s46, {STG}'); a(f's_cselect_b32 s46, {2*STG}, s46')
    a('s_barrier')
    a('s_cmp_eq_u32 s47, 9'); a('s_cbranch_scc1 L_p2last')
    a('s_waitcnt vmcnt(0)')
    a('s_barrier')
    a('s_add_u32 s47, s47, 2'); a('s_branch L_ldcl')

P2ACC = 176; P2W_R = 56; P2H = 8
def p2_setup():
    a('v_lshlrev_b32 v1, 4, v0')
    srd(a, 12, 58, WS_SIZE, WSOFF << 20)
    a('s_mul_i32 s70, s38, 48'); a('s_mul_i32 s71, s44, 12'); a('s_add_u32 s70, s70, s71')
    a(f's_mul_i32 s70, s70, 5120'); a(f's_add_u32 s70, s70, {WS_WDT}')
    a(f's_mul_i32 s73, s44, {P2W}')
def kidx(step):
    if EARLY < 0:
        a(f's_add_u32 s72, s39, {step}'); a('s_cmp_ge_u32 s72, 12'); a('s_cselect_b32 s71, 12, 0'); a('s_sub_u32 s72, s72, s71')
    else:
        a(f's_add_u32 s72, s39, {step % 6}'); a('s_cmp_ge_u32 s72, 6'); a('s_cselect_b32 s71, 6, 0'); a('s_sub_u32 s72, s72, s71')
        a('s_lshl_b32 s72, s72, 1')
        if (step >= 6) != bool(HALF): a('s_add_u32 s72, s72, 1')
def wdt_reg(step):
    kidx(step)
    a('s_mul_i32 s72, s72, 5120'); a('s_add_u32 s72, s72, s70')
    for ei in range(5):
        r = P2W_R + 20*step + 4*ei
        if ei == 4: a('s_add_u32 s72, s72, 4096')
        a(f'buffer_load_dwordx4 v[{r}:{r+3}], v1, {WSRD}, s72 offen offset:{(ei % 4)*1024} {LDW}')
def wdt_lds(step):
    kidx(step)
    a('s_mul_i32 s72, s72, 5120'); a('s_add_u32 s72, s72, s70')
    for ei in range(5):
        a(f's_add_u32 m0, s73, {P2STEP[step-6] + ei*1024}')
        if ei: a('s_add_u32 s72, s72, 1024')
        else: a('s_nop 0')
        a(f'buffer_load_dwordx4 v1, {WSRD}, s72 offen {LDW} lds')
WD = [[0, 1], [2, 3], [4, 5], []]
def read_nonce(v):
    a(f'v_mov_b32 v{v}, {L_NON}'); a(f'ds_read_b32 v{v}, v{v}'); a('s_waitcnt lgkmcnt(0)'); a(f'v_readfirstlane_b32 s43, v{v}')
def final_addr(tau_off, d4, d5, d11, t, a=a):
    v4, v5, v6, v7, v8, v9, v10 = d4, d5, t, t+1, t+2, t+3, t+4
    a('s_lshl_b32 s66, s3, 6'); a(f's_add_u32 s66, s66, {tau_off}')
    a(f'v_add_u32 v{v4}, s66, v0')
    a(f'v_mul_u32_u24 v{v5}, 6554, v{v4}'); a(f'v_lshrrev_b32 v{v5}, 16, v{v5}')
    a(f'v_mul_u32_u24 v{v6}, 10, v{v5}'); a(f'v_sub_u32 v{v6}, v{v4}, v{v6}')
    a(f'v_lshrrev_b32 v{v7}, 4, v{v5}'); a(f'v_and_b32 v{v5}, 15, v{v5}')
    a(f'v_lshrrev_b32 v{v9}, 1, v{v6}')
    a(f'v_mov_b32 v{v10}, {PT[0]}'); a(f'v_mov_b32 v{d11}, {ST[0]}')
    for e in range(1, 5):
        a(f'v_cmp_eq_u32 vcc, {e}, v{v9}'); a(f'v_mov_b32 v{t+5}, {PT[e]}'); a(f'v_mov_b32 v{t+6}, {ST[e]}')
        a(f'v_cndmask_b32 v{v10}, v{v10}, v{t+5}, vcc'); a(f'v_cndmask_b32 v{d11}, v{d11}, v{t+6}, vcc')
    a(f'v_and_b32 v{v8}, 1, v{v6}'); a(f'v_mul_u32_u24 v{v4}, {2*PQ}, v{v8}')
    a(f'v_mul_u32_u24 v{v8}, {PN}, v{v7}'); a(f'v_add_u32 v{v4}, v{v4}, v{v8}'); a(f'v_lshl_add_u32 v{v4}, v{v5}, 4, v{v4}')
    a(f'v_add_u32 v{d11}, v{d11}, v{v4}'); a(f'v_add_u32 v{v4}, v{v10}, v{v4}')
    a(f'v_lshrrev_b32 v{v8}, 2, v{v5}'); a(f'v_and_b32 v{v5}, 3, v{v5}'); a(f'v_lshl_add_u32 v{v5}, v{v5}, 2, v{v8}')
    a(f'v_lshlrev_b32 v{v5}, 3, v{v5}'); a(f'v_add_u32 v{v5}, v{v5}, v{v7}'); a(f'v_lshlrev_b32 v{v5}, 4, v{v5}')
    a('s_lshl_b32 s66, s37, 6'); a('s_add_u32 s66, s66, s36'); a(f'v_add_u32 v{v5}, s66, v{v5}')
    a(f'v_mul_u32_u24 v{v5}, {D*2}, v{v5}'); a(f'v_lshl_add_u32 v{v5}, v{v6}, 4, v{v5}'); a('s_mul_i32 s66, s38, 160'); a(f'v_add_u32 v{v5}, s66, v{v5}')

VB0, VB1 = 128, 144
def p2h_setup():
    a('s_cmp_ge_u32 s38, 4'); a('s_cselect_b32 s55, 1, 0')
    a('s_sub_u32 s67, 16, s36'); a('s_xor_b32 s68, s37, 1')
    a('s_cmp_eq_u32 s55, 1')
    a('s_cselect_b32 s67, s67, s36'); a('s_cselect_b32 s68, s68, s37')
    a('s_and_b32 s60, s67, 3'); a('s_lshl_b32 s60, s60, 7'); a(f's_add_u32 s60, s60, {WS_FV}')
    a('s_lshl_b32 s67, s67, 1'); a('s_add_u32 s67, s67, s68'); a(f's_mul_i32 s67, s67, {VROW}'); a(f's_add_u32 s56, s67, {WS_V}')
    a('s_lshl_b32 s57, s55, 9'); a('s_sub_u32 s57, 256, s57')
def fv_addr(v, t):
    if DF:
        a(f'v_lshrrev_b32 v{v}, 4, v0'); a(f'v_lshlrev_b32 v{v}, 9, v{v}'); a(f'v_and_b32 v{t}, 15, v0'); a(f'v_lshl_add_u32 v{v}, v{t}, 2, v{v}')
        return
    a('s_sub_u32 s66, 7, s38'); a('s_sub_u32 s67, s38, 1'); a('s_max_i32 s67, s67, 0')
    a('s_cmp_ge_u32 s38, 4'); a('s_cselect_b32 s67, s66, s67'); a('s_cselect_b32 s66, s66, s38')
    a(f'v_mov_b32 v{v}, s66'); a(f'v_mov_b32 v{t}, s67'); a(f'v_bfe_u32 v{t+1}, v0, 4, 1'); a(f'v_cmp_eq_u32 vcc, 0, v{t+1}'); a(f'v_and_b32 v{t+1}, 15, v0')
    a(f'v_cndmask_b32 v{v}, v{t}, v{v}, vcc'); a(f'v_lshlrev_b32 v{v}, 9, v{v}'); a(f'v_lshl_add_u32 v{v}, v{t+1}, 2, v{v}')
def pre_loop():
    for r in range(3):
        final_addr(256*r, FA[3*r], FA[3*r+1], FA[3*r+2], 40)
    a('s_cmp_ge_u32 s3, 2'); a('s_cselect_b32 s66, -1, 0'); a(f'v_or_b32 v{FA[7]}, s66, v{FA[7]}')
    fv_addr(VFL, 40)
    if DF:
        for dst, ei in ((VA0, 's3'), (VA4, '4')):
            a('s_mul_i32 s66, s38, 80'); a(f's_lshl_b32 s67, {ei}, 4'); a('s_add_u32 s66, s66, s67'); a('v_add_u32 v40, s66, v3')
            a('v_sub_u32 v41, 640, v40'); a('s_cmp_eq_u32 s55, 1'); a('s_cselect_b64 vcc, -1, 0'); a('s_nop 1')
            a('v_cndmask_b32 v40, v40, v41, vcc')
            a('v_and_b32 v41, 1, v40'); a('v_mul_u32_u24 v41, 160, v41'); a('v_add_u32 v42, 335, v40'); a('v_lshrrev_b32 v42, 1, v42'); a('v_sub_u32 v42, v42, v41')
            a('v_cmp_eq_u32 vcc, 0, v40'); a(f'v_mul_u32_u24 v43, {4*17*2*VROW}, v2'); a('s_nop 0')
            a('v_cndmask_b32 v42, v42, 7, vcc')
            a(f'v_lshl_add_u32 v{dst}, v42, 4, v43')
        return
    a('s_mul_i32 s66, s38, 80'); a('v_add_u32 v40, s66, v3')
    a('v_add_u32 v41, 7, v40'); a('v_sub_u32 v42, 647, v40')
    a('s_cmp_eq_u32 s55, 1'); a('s_cselect_b64 vcc, -1, 0')
    a(f'v_mul_u32_u24 v43, {4*17*2*VROW}, v2')
    a('v_cndmask_b32 v40, v41, v42, vcc')
    a('v_lshl_add_u32 v43, v40, 4, v43')
    a('s_mul_i32 s66, s3, s57'); a(f'v_add_u32 v{VA0}, s66, v43')
    a('s_lshl_b32 s66, s57, 2'); a(f'v_add_u32 v{VA4}, s66, v43')
def pre_epilogue():
    for r in range(3): a(f'buffer_load_dwordx4 v[{XR[r]}:{XR[r]+3}], v{FA[3*r+1]}, s[4:7], 0 offen {XP_}')
def v_loads():
    L = a.label('L_vl')
    a('s_mov_b32 s72, s56')
    for i in range(4):
        a(f'buffer_load_dwordx4 v[{VB0+4*i}:{VB0+3+4*i}], v{VA0}, s[12:15], s72 offen {LDH}')
        if i < 3: a(f's_add_u32 s72, s72, {17*2*VROW}')
    a('s_cmp_lg_u32 s3, 0'); a(f's_cbranch_scc1 {L}')
    a('s_mov_b32 s72, s56')
    for i in range(4):
        a(f'buffer_load_dwordx4 v[{VB1+4*i}:{VB1+3+4*i}], v{VA4}, s[12:15], s72 offen {LDH}')
        if i < 3: a(f's_add_u32 s72, s72, {17*2*VROW}')
    a(f'{L}:')

a('L_p2last:')
a('s_waitcnt vmcnt(0)')
lds_arrive(12, 2)
read_nonce(2)
p2_setup()
srd_from(16, 54, S*D*2)
if FWL: lds_wait('L_fwok', 44, 2, 1)
a('L_p2join:')
tick(7, 27)
NLATE = opt('nlate', 6)
WTOUCH = opt('wtouch', 0)
if WTOUCH:
    a('s_cmp_eq_u32 s35, 0'); a('s_cbranch_scc1 L_nwt')
    a('s_lshl_b32 s66, s32, 2'); a('s_add_u32 s66, s66, s44'); a('s_mul_i32 s66, s66, 23040')
    a('s_and_b32 s67, s38, 4'); a(f's_mul_i32 s67, s67, {48*5120}'); a('s_add_u32 s66, s66, s67'); a(f's_add_u32 s66, s66, {WS_WDT}')
    a('v_lshlrev_b32 v4, 7, v0')
    if WTOUCH == 2:
        for st in range(6): wdt_reg(st)
    for i in range(3):
        a(f'buffer_load_dword v8, v4, s[12:15], s66 offen {LDW}')
        if i < 2: a('s_add_u32 s66, s66, 8192')
    if WTOUCH == 2: a('s_branch L_p2d')
    a('L_nwt:')
for st in range(6): wdt_reg(st)
NLD = opt('nld', 2)
a('s_cmp_eq_u32 s35, 0')
a('s_cbranch_scc1 L_p2ffn')
if NLD < 6:
    for st in (6, 7): wdt_lds(st)
if NLD < 4:
    lds_wait('L_c8d', 16, 4)
    for st in (8, 9): wdt_lds(st)
a('s_branch L_p2d')
a('L_p2ffn:')
if NLATE < 6:
    for st in (6, 7): wdt_lds(st)
if NLATE < 4:
    lds_wait('L_c8', 16, 4)
    for st in (8, 9): wdt_lds(st)
if NLATE < 2:
    lds_wait('L_c9', 20, 4)
    for st in (10, 11): wdt_lds(st)
if AUXV:
    a('s_cmp_lg_u32 s44, 3'); a('s_cbranch_scc1 L_p2d')
    p2h_setup(); fv_addr(8, 9)
    a('s_mov_b32 s79, 0')
    a('L_av:')
    a('buffer_load_dword v9, v8, s[12:15], s60 offen sc1')
    a('s_waitcnt vmcnt(0)')
    a('v_cmp_ne_u32 vcc, s43, v9'); a('s_cmp_eq_u64 vcc, 0'); a('s_cbranch_scc1 L_av_ok')
    a('s_add_u32 s79, s79, 1'); a(f's_cmp_ge_u32 s79, {AUXV}'); a('s_cbranch_scc1 L_p2d')
    a('s_branch L_av')
    a('L_av_ok:')
    lds_arrive(28, 8)
a('L_p2d:')
tick(7, 28)
a(f'v_add_u32 v2, s73, v1')
a(f'v_add_u32 v3, {2*STG}, v2')
a('v_min_u32 v4, 5, v0'); a('v_lshrrev_b32 v5, 1, v4'); a('v_and_b32 v4, 1, v4'); a('v_lshlrev_b32 v4, 2, v4'); a('v_lshl_add_u32 v6, v5, 4, v4')
a('s_lshl_b32 s76, s36, 8'); a('s_mul_i32 s77, s44, 48'); a('s_add_u32 s76, s76, s77'); a('s_lshl_b32 s77, s37, 3'); a('s_add_u32 s76, s76, s77'); a(f's_add_u32 s76, s76, {WS_FH}')
a('s_lshl_b32 s74, s36, 3'); a('s_lshl_b32 s75, s37, 2'); a('s_add_u32 s74, s74, s75')
a('s_mul_i32 s74, s74, 48'); a('s_mul_i32 s75, s44, 12'); a('s_add_u32 s74, s74, s75'); a('s_lshl_b32 s74, s74, 10')
for i in range(80): a(f'v_mov_b32 v{P2ACC+i}, 0')
if DGO:
    a('s_cmp_eq_u32 s35, 0'); a('s_cbranch_scc1 L_ownf')
    lds_wait('L_ownz', 8 if DGO == 1 else 56, 4); lds_wait('L_ownr', 48, 4, 1)
    a('s_branch L_ownd')
    a('L_ownf:')
    a('s_barrier')
    a('L_ownd:')
else: a('s_barrier') if CBAR else lds_wait('L_own', 0, 4, 5 if SENT else 4)
tick(7, 29)
stamp(2)
if TONE:
    a('s_cmp_eq_u32 s35, 0'); a('s_cbranch_scc1 L_p2f')
    for st in range(6, 12 - NLATE): wdt_lds(st)
    a('L_p2f:')
    for st in range(12 - NLATE, 12): wdt_lds(st)
    if HDLY: a(f's_sleep {HDLY}')

tick(7, 32)
def hsoff(step):
    kidx(step)
    a('s_lshl_b32 s72, s72, 10'); a(f's_add_u32 s72, s72, s74')
    if SENT: a(f's_mov_b32 s{66 + step % 4}, s72')
def hld(step, ni):
    r = P2H + 16*(step % 3) + 4*ni
    L = []
    if ni: L.append(f's_add_u32 s72, s72, {48*1024}')
    L.append(f'buffer_load_dwordx4 v[{r}:{r+3}], v1, {HSRD}, s72 offen {LDH}')
    return L
def hpoll(name, kp):
    spin_begin(name)
    a(f'buffer_load_dword v4, v6, s[12:15], s76 offen sc1')
    a('s_waitcnt vmcnt(0)')
    a(f'v_cmp_ne_u32 vcc, s43, v{4+kp}')
    a('s_cmp_eq_u64 vcc, 0')
    spin_end(name)
if not SENT: hpoll('L_pollh0', 0)
else: a('s_waitcnt vmcnt(0)'); a('s_mov_b32 s79, 0')
if VGO and not HF1:
    a(f'v_mov_b32 v4, {L_CNT}'); a('v_mov_b32 v5, 1'); a('ds_write_b32 v4, v5 offset:40')
stamp(3)
tick(7, 33)
for st in range(3):
    hsoff(st)
    for ni in range(4):
        for ins in hld(st, ni): a(ins)
if HF1: lds_arrive(40, 4)
def pwrite(ni):
    return [f'ds_write_b128 v{2 if PT[ei] < 2*STG else 3}, v[{P2ACC+16*ei+4*ni}:{P2ACC+16*ei+4*ni+3}] offset:{PT[ei] + ni*PN - (0 if PT[ei] < 2*STG else 2*STG)}' for ei in range(5)]
for st in range(12):
    rem = min(2, 11 - st)
    RDD = opt('rdd', 2)
    if st == 6 - RDD: lds_wait('L_lw', 36, 4)
    if st < 9: hsoff(st + 3)
    if st == 11:
        a('v_and_b32 v2, 15, v0'); a('v_lshrrev_b32 v4, 4, v0')
        a(f'v_mul_u32_u24 v4, {PQ}, v4'); a('v_lshl_add_u32 v2, v2, 4, v4'); a('v_add_u32 v2, s73, v2'); a(f'v_add_u32 v3, {2*STG}, v2')
    a(f's_waitcnt vmcnt({4*rem})' + (' lgkmcnt(0)' if st >= 6 else ''))
    hb = P2H + 16*(st % 3)
    if SENT and not (HALF and st >= 6):
        a(f'L_hchk{st}:')
        a(f'v_max_u32 v4, v{hb}, v{hb+4}'); a(f'v_max3_u32 v4, v{hb+8}, v{hb+12}, v4')
        a('v_cmp_eq_u32 vcc, -1, v4'); a('s_cmp_lg_u64 vcc, 0')
        a(f's_cbranch_scc1 L_hretry{st}')
        a(f'L_hok{st}:')
    tick(7, 36 + st)
    w0 = P2W_R + 20*(st % 6)
    rd = []
    if 6 <= st + RDD <= 11:
        wr = P2W_R + 20*((st + RDD) % 6)
        for ei in range(5):
            o = P2STEP[st + RDD - 6] + ei*1024
            rd.append(f'ds_read_b128 v[{wr+4*ei}:{wr+4*ei+3}], v{2 if o < 2*STG else 3} offset:{o if o < 2*STG else o - 2*STG}')
    if F8 and st == 10:
        final_addr(0, 8, 9, 10, 11, rd.append)
    for ni in range(4):
        for ei in (range(5) if ni % 2 == 0 else range(4, -1, -1)):
            t = P2ACC + 16*ei + 4*ni
            h = hb + 4*ni
            a(f'v_mfma_f32_16x16x32_bf16 v[{t}:{t+3}], v[{w0+4*ei}:{w0+4*ei+3}], v[{h}:{h+3}], v[{t}:{t+3}]')
            for _ in range(3 if st == 10 else 1):
                if rd: a(rd.pop(0))
        if st < 9:
            for ins in hld(st + 3, ni): a(ins)
        if st == 11 and ni >= 2:
            for w in pwrite(ni - 2): a(w)
for w in pwrite(2): a(w)
a('s_nop 3')
for w in pwrite(3): a(w)
stamp(4)
tick(7, 48)
a('s_waitcnt lgkmcnt(0)')
a('s_barrier')
if F8:
    for p in range(5):
        reg = (8, 8, 8, 8, 10)[p]; off = (0, P2W, 2*P2W, 3*P2W, 0)[p]
        a(f'ds_read_b128 v[{56+8*p}:{59+8*p}], v{reg} offset:{off}')
        a(f'ds_read_b128 v[{60+8*p}:{63+8*p}], v{reg} offset:{off+PQ}')
    for p in range(1, 5):
        a(f's_waitcnt lgkmcnt({8 - 2*p})')
        for d in range(0, 8, 2): a(f'v_pk_add_f32 v[{56+d}:{57+d}], v[{56+d}:{57+d}], v[{56+8*p+d}:{57+8*p+d}]')
    for d in range(4): a(f'v_cvt_pk_bf16_f32 v{64+d}, v{56+2*d}, v{57+2*d}')
    a(f'buffer_store_dwordx4 v[64:67], v9, s[16:19], 0 offen {OUTP}')
tick_dump(7, 4)
a('s_branch L_fin2')
if SENT:
    for st in range(6 if HALF else 12):
        a(f'L_hretry{st}:')
        a('s_add_u32 s79, s79, 1'); a(f's_cmp_ge_u32 s79, {SPINMAX}')
        if STAMPS: a(f's_cselect_b32 s101, {60 + st}, s101')
        a(f's_cbranch_scc1 L_hok{st}')
        if RSL: a(f's_sleep {RSL}')
        a(f's_mov_b32 s77, s{66 + st % 4}')
        for ni in range(4):
            r = P2H + 16*(st % 3) + 4*ni
            if ni: a(f's_add_u32 s77, s77, {48*1024}')
            a(f'buffer_load_dwordx4 v[{r}:{r+3}], v1, {HSRD}, s77 offen {LDH}')
        a('s_waitcnt vmcnt(0)')
        a(f's_branch L_hchk{st}')

a('L_aux:')
if opt('aprio', 0): a(f"s_setprio {opt('aprio', 0)}")
common_srds()
AB = 248
a('v_mov_b32 v1, 0'); a(f'v_mov_b32 v3, {L_CNT}')
a('s_mov_b64 exec, 1')
a('s_cmp_lg_u32 s2, 0'); a('s_cbranch_scc1 L_aux_n0')
a('s_memrealtime s[66:67]'); a('s_waitcnt lgkmcnt(0)'); a('s_or_b32 s66, s66, 1'); a('v_mov_b32 v2, s66')
a('buffer_store_dword v2, v1, s[24:27], 0 offen sc1')
a('L_aux_n0:')
[a(f'ds_write_b32 v3, v1 offset:{4*i}') for i in range(15)]
a('s_mov_b64 exec, -1')
if CODEPF:
    a('s_getpc_b64 s[66:67]')
    a('L_pcref:')
    a(f's_sub_u32 s66, s66, L_pcref-{KNAME}'); a('s_subb_u32 s67, s67, 0')
    a('s_mul_i32 s68, s41, 9')
    a('v_add_u32 v4, s68, v0'); a('v_lshlrev_b32 v4, 7, v4')
    a(f'v_min_u32 v4, L_done-{KNAME}, v4')
    a('s_mov_b64 exec, 0x1ff')
    a(f'global_load_dword v{AB+7}, v4, s[66:67]')
    a('s_mov_b64 exec, -1')
if PFW:
    pf_first, pf_n0 = map(int, PFW.split(','))
    a('v_lshrrev_b32 v14, 4, v0'); a('s_mul_i32 s66, s30, 3'); a('v_add_u32 v14, s66, v14'); a('v_lshlrev_b32 v14, 8, v14')
    a('v_bfe_u32 v15, v0, 1, 3'); a('s_lshl_b32 s66, s32, 3'); a('v_add_u32 v15, s66, v15'); a(f'v_mul_u32_u24 v15, {F*2}, v15'); a('v_add_u32 v14, v14, v15')
    a('v_and_b32 v15, 1, v0'); a('v_lshl_add_u32 v14, v15, 7, v14')
    srd(a, 8, 48, D*F*2); srd(a, 52, 50, D*F*2)
    a(f's_add_u32 s64, s34, {pf_first}'); a(f's_mov_b32 s61, {pf_first}')
    PFC = opts.get('pfc', '1111111')
    a(f's_mov_b32 s60, {sum(int(c) << (4*i) for i, c in enumerate(PFC))}')
    def pfw():
        L = a.label('L_pf')
        a('s_and_b32 s62, s60, 15'); a('s_lshr_b32 s60, s60, 4')
        a(f'{L}_n:')
        a('s_cmp_eq_u32 s62, 0'); a(f's_cbranch_scc1 {L}')
        pfw1(L)
        a('s_sub_u32 s62, s62, 1'); a(f's_branch {L}_n')
        a(f'{L}:')
    def pfw0():
        L = a.label('L_pf')
        pfw1(L)
        a(f'{L}:')
    def pfw1(L):
        a('s_cmp_eq_u32 s35, 0'); a(f's_cbranch_scc1 {L}')
        a(f"s_cmp_ge_u32 s61, {opt('pfl', 10)}"); a(f's_cbranch_scc1 {L}')
        a('s_cmp_ge_u32 s64, 10'); a('s_cselect_b32 s66, 10, 0'); a('s_sub_u32 s64, s64, s66'); a(f's_mul_i32 s66, s64, {64*F*2}')
        a('s_mov_b32 exec_hi, 0xffff')
        a(f'buffer_load_dword v15, v14, s[8:11], s66 offen {PFP}'); a(f'buffer_load_dword v15, v14, s[52:55], s66 offen {PFP}')
        a('s_mov_b64 exec, -1')
        a('s_add_u32 s64, s64, 1'); a('s_add_u32 s61, s61, 1')
    for _ in range(pf_n0): pfw0()
else:
    def pfw(): pass
def wda_load():
    a('v_lshrrev_b32 v4, 4, v0'); a('v_and_b32 v5, 15, v0')
    a(f'v_mul_u32_u24 v4, {D*2}, v4'); a('v_lshl_add_u32 v4, v5, 4, v4')
    a(f's_mul_i32 s68, s56, {32*D*2}'); a('s_lshl_b32 s69, s57, 8'); a('s_add_u32 s68, s68, s69')
    for i in range(8):
        a(f's_mov_b32 m0, {L_WD + i*1024}')
        if i: a(f's_add_u32 s68, s68, {4*D*2}')
        else: a('s_nop 0')
        a(f'buffer_load_dwordx4 v4, s[20:23], s68 offen {WP_} lds')
if WDA:
    wi, wj, wk = map(int, WDA.split(','))
    a(f's_mul_hi_u32 s56, s2, {-(-(1<<32)//5)}'); a('s_mul_i32 s57, s56, 5'); a('s_sub_u32 s57, s2, s57')
    if wi < 0:
        a('s_cmp_ge_u32 s2, 240'); a('s_cbranch_scc1 L_wda0'); wda_load(); a('L_wda0:')
for i in range(48, 56): a(f'v_mov_b32 v{i}, 0')
a('v_lshrrev_b32 v4, 2, v0'); a('v_and_b32 v5, 3, v4'); a('v_bfe_u32 v6, v4, 3, 1'); a('v_lshl_or_b32 v5, v6, 2, v5'); a('v_lshlrev_b32 v5, 1, v5')
a('s_and_b32 s66, s32, 3'); a('s_lshl_b32 s66, s66, 2')
a('v_and_b32 v6, 3, v0'); a('v_add_u32 v6, s66, v6'); a('v_xor_b32 v5, v5, v6')
a('v_lshlrev_b32 v4, 8, v4'); a(f'v_lshl_add_u32 v{AB+1}, v5, 4, v4')
a('s_lshr_b32 s66, s32, 2'); a('s_lshl_b32 s66, s66, 14'); a(f'v_add_u32 v{AB+1}, s66, v{AB+1}')
a('s_cmp_eq_u32 s35, 0'); a('s_cbranch_scc1 L_aux_w')
a('s_and_b32 s67, s32, 3'); a(f's_mul_i32 s67, s67, {20*128}'); a('s_add_u32 s66, s66, s67')
a(f'v_lshlrev_b32 v{AB+1}, 4, v0'); a(f'v_add_u32 v{AB+1}, s66, v{AB+1}')
a('L_aux_w:')
a('s_mov_b32 s46, 0')
a('s_lshl_b32 s77, s29, 1'); a('s_add_u32 s77, s77, s31'); a('s_lshl_b32 s77, s77, 11'); a('s_lshr_b32 s67, s32, 2'); a('s_lshl_b32 s67, s67, 10'); a('s_add_u32 s77, s77, s67'); a(f's_add_u32 s77, s77, {WS_WP}')
a('s_and_b32 s67, s32, 3'); a('s_cmp_eq_u32 s35, 1'); a('s_cselect_b32 s68, 20, 32'); a('s_mul_i32 s67, s67, s68'); a('s_lshl_b32 s67, s67, 3'); a('s_add_u32 s77, s77, s67')
a(f'v_min_u32 v{AB+6}, 47, v0'); a(f'v_lshlrev_b32 v{AB+6}, 2, v{AB+6}')
a('s_mul_i32 s74, s38, 80'); a('s_add_u32 s75, s74, 79'); a('s_lshr_b32 s74, s74, 7'); a('s_lshr_b32 s75, s75, 7')
a('s_lshl_b32 s74, s74, 8'); a('s_lshl_b32 s75, s75, 8'); a(f's_add_u32 s74, s74, {WS_FW}'); a(f's_add_u32 s75, s75, {WS_FW}')
if SENT:
    for i in range(4): a(f'v_mov_b32 v{8+i}, -1')
    a('v_lshlrev_b32 v12, 4, v0')
    a(f's_mul_i32 s76, s28, {8*48*1024}')
    if RDFT: a('s_mul_i32 s67, s30, 12288')
    else: a('s_lshl_b32 s67, s29, 12')
    a('s_add_u32 s76, s76, s67')
a('s_mov_b32 s47, 0'); a('s_mov_b32 s42, 0')
a('s_waitcnt lgkmcnt(0)')
a('L_aux_l:')
tick(7, ('s47', 0))
a('s_barrier')
tick(7, ('s47', 16))
pfw()
a(f'v_add_u32 v{AB+3}, s46, v{AB+1}')
a('s_add_u32 s66, s47, s35') if opt('non2', 0) else a('s_add_u32 s66, s47, 1')
a(f's_cmp_lg_u32 s47, {NONIT-1}'); a('s_cbranch_scc1 L_aux_nb')
a('s_mov_b64 exec, 1'); a('buffer_load_dword v2, v1, s[24:27], 0 offen sc1'); a('s_mov_b64 exec, -1')
a('L_aux_nb:')
a(f's_cmp_lg_u32 s66, {NONIT+1}'); a('s_cbranch_scc1 L_aux_na')
a('s_mov_b32 s79, 0')
a('L_non:')
a('s_waitcnt vmcnt(0)')
a('v_readfirstlane_b32 s43, v2')
a('s_cmp_lg_u32 s43, 0'); a('s_cbranch_scc1 L_non_ok')
a('s_add_u32 s79, s79, 1'); a(f's_cmp_ge_u32 s79, {SPINMAX}'); (a('s_cselect_b32 s101, 51, s101') if STAMPS else None); a('s_cbranch_scc1 L_non_ok')
a('s_sleep 4')
a('s_mov_b64 exec, 1'); a('buffer_load_dword v2, v1, s[24:27], 0 offen sc1'); a('s_mov_b64 exec, -1')
a('s_branch L_non')
a('L_non_ok:')
a('v_mov_b32 v2, s43'); a(f'v_mov_b32 v3, {L_NON}'); a('ds_write_b32 v3, v2')
if not WDA:
    a('s_cmp_ge_u32 s2, 240'); a('s_cbranch_scc1 L_aux_na')
    a(f's_mul_hi_u32 s66, s2, {-(-(1<<32)//5)}'); a('s_mul_i32 s67, s66, 5'); a('s_sub_u32 s67, s2, s67')
    a('s_lshl_b32 s67, s67, 8'); a('s_lshl_b32 s66, s66, 2'); a('s_add_u32 s66, s66, s67'); a(f's_add_u32 s66, s66, {WS_FW}')
    a('s_mov_b64 exec, 1'); a('buffer_store_dword v2, v1, s[12:15], s66 offen sc1'); a('s_mov_b64 exec, -1')
a('L_aux_na:')
if WDA:
    a('s_cmp_ge_u32 s2, 240'); a('s_cbranch_scc1 L_aux_nw')
    if wi >= 0:
        a(f's_cmp_lg_u32 s47, {wi}'); a('s_cbranch_scc1 L_aux_w1'); wda_load(); a('L_aux_w1:')
    a(f's_cmp_lg_u32 s47, {wj}'); a('s_cbranch_scc1 L_aux_w2')
    a('v_lshrrev_b32 v4, 2, v0'); a('v_lshlrev_b32 v4, 8, v4'); a('v_and_b32 v5, 3, v0'); a('v_lshl_add_u32 v4, v5, 3, v4')
    a(f'v_add_u32 v4, {L_WD}, v4')
    a('v_lshlrev_b32 v6, 4, v0')
    a('s_waitcnt vmcnt(0)')
    for e in range(8):
        for b in range(2):
            a(f'ds_read_b64_tr_b16 v[{64+4*e+2*b}:{65+4*e+2*b}], v4 offset:{32*e + 4096*b}')
    a('s_lshl_b32 s63, s57, 3')
    a(f's_mul_i32 s65, s56, 5120'); a(f's_add_u32 s65, s65, {WS_WDT}')
    a('s_waitcnt lgkmcnt(0)')
    for e in range(8):
        a(f's_add_u32 s68, s63, {e}')
        a(f's_mul_hi_u32 s69, s68, {-(-(1<<32)//5)}')
        a('s_mul_i32 s70, s69, 5'); a('s_sub_u32 s70, s68, s70')
        a(f's_mul_i32 s69, s69, {48*5120}'); a('s_lshl_b32 s70, s70, 10')
        a('s_add_u32 s69, s69, s70'); a('s_add_u32 s69, s69, s65')
        a(f'buffer_store_dwordx4 v[{64+4*e}:{67+4*e}], v6, s[12:15], s69 offen sc1')
    a('L_aux_w2:')
    a(f's_cmp_lg_u32 s47, {wk}'); a('s_cbranch_scc1 L_aux_nw')
    a('s_lshl_b32 s67, s57, 8'); a('s_lshl_b32 s66, s56, 2'); a('s_add_u32 s66, s66, s67'); a(f's_add_u32 s66, s66, {WS_FW}')
    a('s_waitcnt vmcnt(0)')
    a('s_mov_b64 exec, 1'); a('buffer_store_dword v2, v1, s[12:15], s66 offen sc1'); a('s_mov_b64 exec, -1')
    a('L_aux_nw:')
def fw_ask():
    a(f'buffer_load_dword v{AB+2}, v{AB+6}, s[12:15], s74 offen sc1'); a(f'buffer_load_dword v{AB+3}, v{AB+6}, s[12:15], s75 offen sc1')
def fw_ask2():
    a(f'buffer_load_dword v62, v{AB+6}, s[12:15], s74 offen sc1'); a(f'buffer_load_dword v63, v{AB+6}, s[12:15], s75 offen sc1')
def fw_check(nm):
    a('s_mov_b32 s79, 0')
    a(f'{nm}:')
    a('s_waitcnt vmcnt(0)')
    a('v_cmp_ne_u32 vcc, s43, v62'); a('v_cmp_ne_u32 s[66:67], s43, v63'); a('s_or_b64 vcc, vcc, s[66:67]')
    a(f's_cbranch_scc0 {nm}_ok')
    a('s_add_u32 s79, s79, 1'); a(f's_cmp_ge_u32 s79, {SPINMAX}'); (a('s_cselect_b32 s101, 52, s101') if STAMPS else None); a(f's_cbranch_scc1 {nm}_ok')
    a('s_sleep 4')
    fw_ask2()
    a(f's_branch {nm}')
    a(f'{nm}_ok:')

T0, T1 = AB + 4, AB + 5
if SENT:
    RS0 = opt('rs0', 2)
    def resets(n):
        L = a.label('L_rs')
        a(f's_cmp_eq_u32 s35, {0 if RDFT else 1}'); a(f's_cbranch_scc1 {L}')
        if RDFT:
            for t in range(n // 12):
                for g in range(3):
                    for i in ((1, 3) if HALF else range(4)): a(f'buffer_store_dwordx4 v[8:11], v12, s[12:15], s76 offen offset:{i*1024} sc1')
                    a(f's_add_u32 s76, s76, {4096 if g < 2 else 48*1024 - 8192}')
        else:
            for i in range(n):
                if not (HALF and i % 2 == 0): a(f'buffer_store_dwordx4 v[8:11], v12, s[12:15], s76 offen offset:{(i % 4)*1024} {RSP}')
                if i % 4 == 3: a(f's_add_u32 s76, s76, {48*1024}')
        a(f'{L}:')
    if RSEQ:
        assert sum(map(int, RSEQ)) == 8
        a(f's_lshr_b32 s63, {sum(int(c) << (4*i) for i, c in enumerate(RSEQ[:5]))}, s42'); a('s_and_b32 s63, s63, 15'); a('s_add_u32 s42, s42, 4')
        a('L_aux_rr:')
        a('s_cmp_eq_u32 s63, 0'); a('s_cbranch_scc1 L_aux_nr')
        resets(12)
        a('s_sub_u32 s63, s63, 1'); a('s_branch L_aux_rr')
    else:
        a(f's_cmp_lt_u32 s47, {RS0}'); a('s_cbranch_scc1 L_aux_nr')
        resets(12 if RDFT else 8)
    a('L_aux_nr:')
a('s_cmp_eq_u32 s35, 1'); a('s_cbranch_scc1 L_aux_c')
for i in range(4): a(f'ds_read_b128 v[{24+4*i}:{27+4*i}], v{AB+3} offset:{i*4096}')
a('s_waitcnt lgkmcnt(0)')
for i in range(4):
    for d in range(4):
        r = 24 + 4*i + d
        a(f'v_lshlrev_b32 v{T0}, 16, v{r}'); a(f'v_and_b32 v{T1}, 0xffff0000, v{r}')
        a(f'v_add_f32 v{48+2*d}, v{48+2*d}, v{T0}'); a(f'v_add_f32 v{49+2*d}, v{49+2*d}, v{T1}')
a('s_branch L_aux_x')
a('L_aux_c:')
if NOCS: a('s_branch L_aux_x')
if DF: a('s_bitcmp1_b32 s47, 0'); a('s_cbranch_scc0 L_aux_x')
def csum():
    for i in range(3): a(f'ds_read_b128 v[{24+4*i}:{27+4*i}], v{AB+3} offset:{i*1024}')
    a('s_waitcnt lgkmcnt(0)')
    for i in range(3):
        for d in range(4):
            r = 24 + 4*i + d
            a(f'v_lshlrev_b32 v{T0}, 16, v{r}'); a(f'v_and_b32 v{T1}, 0xffff0000, v{r}')
            a(f'v_add_f32 v{48+2*i}, v{48+2*i}, v{T0}'); a(f'v_add_f32 v{49+2*i}, v{49+2*i}, v{T1}')
if not NOCS: csum()
a('L_aux_x:')
a(f's_add_u32 s46, s46, {STG}'); a(f's_cmp_eq_u32 s46, {3*STG}'); a('s_cselect_b32 s46, 0, s46')
a('s_add_u32 s47, s47, 1'); a('s_cmp_lt_u32 s47, 5'); a('s_cbranch_scc1 L_aux_l')
def fr_pub():
    a('s_lshl_b32 s66, s28, 8'); a('s_lshl_b32 s67, s29, 2'); a('s_add_u32 s66, s66, s67'); a(f's_add_u32 s66, s66, {WS_FH}')
    a('v_mov_b32 v4, s43'); a('v_mov_b32 v5, 0')
    a('s_waitcnt vmcnt(0)')
    a('s_mov_b64 exec, 1'); a('buffer_store_dword v4, v5, s[12:15], s66 offen sc1'); a('s_mov_b64 exec, -1')
tick(7, 5)
a('s_barrier')
tick(7, 21)
if FRB == 5: fr_pub()
pfw()
if RSEQ: resets(12*int(RSEQ[5]))
elif RDFT: resets(12*(RS0 + 3 - (RS0 + 3)//2))
elif RS0 >= 2: resets(12 if RS0 == 4 else 8)
p2_setup()
def red8(regs):
    for mod in ('quad_perm:[1,0,3,2]', 'quad_perm:[2,3,0,1]', 'row_half_mirror'):
        a('s_nop 1')
        for r in regs: a(f'v_add_f32_dpp v{r}, v{r}, v{r} {mod} row_mask:0xf bank_mask:0xf')
a('s_cmp_eq_u32 s35, 1'); a('s_cbranch_scc1 L_aux_pc')
for mod in ('row_ror:4', 'row_ror:8'):
    a('s_nop 1')
    for r in range(48, 56): a(f'v_add_f32_dpp v{r}, v{r}, v{r} {mod} row_mask:0xf bank_mask:0xf')
for sw in ('v_permlane16_swap_b32', 'v_permlane32_swap_b32'):
    for r in range(48, 56): a(f'v_mov_b32 v{r-24}, v{r}')
    a('s_nop 1')
    for r in range(48, 56): a(f'{sw} v{r}, v{r-24}')
    a('s_nop 1')
    for r in range(48, 56): a(f'v_add_f32 v{r}, v{r}, v{r-24}')
for d in range(4):
    a(f'v_cmp_eq_u32 vcc, {d}, v6') if d else a('v_lshrrev_b32 v6, 2, v0')
    if d == 0:
        a('v_mov_b32 v24, v48'); a('v_mov_b32 v26, v49')
    else:
        a('s_nop 1'); a(f'v_cndmask_b32 v24, v24, v{48+2*d}, vcc'); a(f'v_cndmask_b32 v26, v26, v{49+2*d}, vcc')
a('v_mov_b32 v25, s43'); a('v_mov_b32 v27, s43')
a('v_and_b32 v4, 3, v0'); a('v_lshlrev_b32 v4, 6, v4'); a('v_lshl_add_u32 v4, v6, 4, v4')
a('s_mov_b64 exec, 0xffff')
a('buffer_store_dwordx4 v[24:27], v4, s[12:15], s77 offen sc1')
a('s_branch L_aux_pub')
a('L_aux_pc:')
if NOCS: a('s_branch L_aux_pub')
if not NOCS:
    if DF:
        a('s_cmp_eq_u32 s31, 1'); a('s_cbranch_scc1 L_aux_c5')
        a(f'v_add_u32 v{AB+3}, s46, v{AB+1}')
        csum()
        a('L_aux_c5:')
        a('s_and_b32 s66, s30, 1'); a('s_lshl_b32 s66, s66, 30')
    for i in range(3):
        a(f'v_add_f32 v{48+i*2}, v{48+i*2}, v{49+i*2}')
        if DF: a(f'v_mul_f32 v{48+i*2}, s66, v{48+i*2}')
    red8([48, 50, 52])
    for i in range(3): a(f'v_mov_b32 v{49+i*2}, s43')
    a('s_mov_b32 exec_lo, 0x01010101'); a('s_mov_b32 exec_hi, 0x01010101')
    a('buffer_store_dwordx2 v[48:49], v0, s[12:15], s77 offen sc1')
    a('buffer_store_dwordx2 v[50:51], v0, s[12:15], s77 offen offset:64 sc1')
    a('s_mov_b32 exec_hi, 0')
    a('buffer_store_dwordx2 v[52:53], v0, s[12:15], s77 offen offset:128 sc1')
a('L_aux_pub:')
a('s_mov_b64 exec, -1')
a('s_lshl_b32 s48, s28, 13'); a(f's_add_u32 s48, s48, {WS_XP}'); a('s_add_u32 s50, s48, 4096')
a('s_lshl_b32 s49, s29, 12'); a(f's_add_u32 s49, s49, {WS_WP}')
def gather():
    for i in range(8): a(f'buffer_load_dwordx4 v[{8+4*i}:{11+4*i}], v1, s[12:15], s{48 if i < 4 else 50} offen offset:{(i%4)*1024} sc1')
    Lg = a.label('L_gw')
    if NOCS: a('s_cmp_eq_u32 s35, 1'); a(f's_cbranch_scc1 {Lg}')
    for i in range(4): a(f'buffer_load_dwordx4 v[{40+4*i}:{43+4*i}], v1, s[12:15], s49 offen offset:{i*1024} sc1')
    a(f'{Lg}:')
    a(f'buffer_load_dword v{AB+1}, v{AB}, s[12:15], s65 offen sc1')
    if FWL: fw_ask2()
a(f's_mov_b32 s65, {WS_FH}')
if RDFT:
    a(f'v_and_b32 v{AB}, 3, v0'); a(f'v_lshlrev_b32 v{AB}, 2, v{AB}'); a('s_lshl_b32 s69, s36, 8'); a('s_add_u32 s69, s69, 48'); a(f'v_add_u32 v{AB}, s69, v{AB}')
    a('s_lshl_b32 s69, s28, 8'); a('s_lshl_b32 s63, s30, 2'); a('s_add_u32 s69, s69, s63'); a('s_add_u32 s69, s69, 48'); a('v_mov_b32 v4, s69')
    a('v_cmp_gt_u32 vcc, 16, v0'); a('s_nop 1'); a(f'v_cndmask_b32 v{AB}, v4, v{AB}, vcc')
else:
    a(f'v_min_u32 v{AB}, 11, v0'); a(f'v_lshlrev_b32 v{AB}, 2, v{AB}'); a('s_lshl_b32 s69, s36, 8'); a(f'v_add_u32 v{AB}, s69, v{AB}')
GAT = opt('gat', 8)
tick(7, 6)
a('s_barrier')
tick(7, 22)
if FRB == 6: fr_pub()
pfw()
if RSEQ: resets(12*int(RSEQ[6]))
elif RDFT: resets(12*((RS0 + 3)//2))
elif RS0 >= 3: resets(12 if RS0 == 4 else 8)
if not FWL: fw_ask2()
if GAT == 68:
    a('s_cmp_eq_u32 s35, 0'); a('s_cbranch_scc1 L_g6'); gather(); a('L_g6:')
tick(7, 7)
a('s_barrier')
tick(7, 23)
if not FWL: fw_check('L_pollwf')
else: a('s_waitcnt vmcnt(0)')
if FRB == 7: fr_pub()
if GAT == 7: gather()
if GAT == 78:
    a('s_cmp_eq_u32 s35, 0'); a('s_cbranch_scc1 L_g7'); gather(); a('L_g7:')
a('s_cmp_eq_u32 s35, 1'); a(f's_cselect_b32 s69, {0 if NOCS else 40}, 64'); a('v_cmp_gt_u32 s[76:77], s69, v0')
if GAT == 68: a('s_cmp_eq_u32 s35, 1'); a('s_cbranch_scc1 L_g8x')
tick(7, 8)
a('s_barrier')
tick(7, 24)
if GAT in (8, 68): gather()
a('L_g8x:')
if GAT == 78:
    a('s_cmp_eq_u32 s35, 1'); a('s_cbranch_scc1 L_g8'); gather(); a('L_g8:')
a('s_mov_b32 s79, 0')
a('s_waitcnt vmcnt(0)')
if opt('gprio', 0): a('s_setprio 3')
a('L_gchk:')
a(f'v_xor_b32 v2, s43, v{AB+1}'); a('s_sub_u32 s64, s35, 1' if RDFT and not FRSEP else 's_mov_b32 s64, 0'); a('v_and_b32 v2, s64, v2')
for i in range(0, 8): a(f'v_xor_b32 v3, s43, v{10+4*i}'); a('v_or_b32 v2, v2, v3')
a('v_xor_b32 v4, s43, v41')
for r in (43, 45, 47, 49, 51, 53, 55): a(f'v_xor_b32 v3, s43, v{r}'); a('v_or_b32 v4, v4, v3')
if FWL: a('v_xor_b32 v3, s43, v62'); a('v_or_b32 v2, v2, v3'); a('v_xor_b32 v3, s43, v63'); a('v_or_b32 v2, v2, v3')
a('v_cmp_ne_u32 vcc, 0, v4'); a('s_and_b64 s[62:63], vcc, s[76:77]')
a('v_cmp_ne_u32 vcc, 0, v2'); a('s_or_b64 s[62:63], s[62:63], vcc')
a('s_cbranch_scc0 L_gok')
a('s_add_u32 s79, s79, 1'); a(f's_cmp_ge_u32 s79, {SPINMAX}'); (a('s_cselect_b32 s101, 50, s101') if STAMPS else None); a('s_cbranch_scc1 L_gok')
a('s_sleep 4')
gather()
a('s_waitcnt vmcnt(0)')
a('s_branch L_gchk')
a('L_gok:')
if FWL: lds_arrive(44, 2)
tick(7, 9)
for h in range(2):
    for d in range(2):
        b = 8 + 4*h + d
        a(f'v_add_f32 v{b}, v{b}, v{b+8}'); a(f'v_add_f32 v{b+16}, v{b+16}, v{b+24}'); a(f'v_add_f32 v{b}, v{b}, v{b+16}')
    a(f'v_add_f32 v{40+4*h}, v{40+4*h}, v{48+4*h}'); a(f'v_add_f32 v{41+4*h}, v{42+4*h}, v{50+4*h}')
a('v_lshlrev_b32 v2, 3, v0'); a(f'v_add_u32 v2, {L_CS}, v2')
a('ds_write_b64 v2, v[40:41]'); a('ds_write_b64 v2, v[44:45] offset:512')
for (s_, q_, ro, mo) in ((8, 9, 16, 18), (12, 13, 17, 19)):
    a(f'v_mul_f32 v{mo}, {1.0/D!r}, v{s_}')
    a(f'v_mul_f32 v{q_}, {1.0/D!r}, v{q_}')
    a(f'v_fma_f32 v{q_}, -v{mo}, v{mo}, v{q_}')
    a(f'v_max_f32 v{q_}, 0, v{q_}')
    rbf(mo); rbf(q_)
    a(f'v_add_f32 v{q_}, 0x3727c5ac, v{q_}')
    rbf(q_)
    a(f'v_sqrt_f32 v{q_}, v{q_}'); a('s_nop 0')
    rbf(q_)
    a(f'v_rcp_f32 v{ro}, v{q_}')
    a(f'v_fmac_f32 v{s_}, {-float(D)!r}, v{mo}')
    a(f'v_mul_f32 v{s_}, v{s_}, v{ro}')
a('v_lshlrev_b32 v2, 2, v0'); a(f'v_add_u32 v2, {L_R}, v2')
a(f'ds_write_b32 v2, v8 offset:{L_A0 - L_R}'); a(f'ds_write_b32 v2, v12 offset:{L_A0 - L_R + 256}')
a('ds_write_b32 v2, v16'); a('ds_write_b32 v2, v17 offset:256'); a('ds_write_b32 v2, v18 offset:512'); a('ds_write_b32 v2, v19 offset:768')
lds_arrive(24, 2)
if opt('gprio', 0): a('s_setprio 0')
tick(7, 10)
if GAT == 68:
    a('s_cmp_eq_u32 s35, 0'); a('s_cbranch_scc1 L_g8y')
    a('s_barrier')
    a('L_g8y:')
a(f'v_cmp_ne_u32 vcc, s43, v{AB+1}'); a('s_cmp_eq_u64 vcc, 0'); a('s_cbranch_scc1 L_pollr_ok')
spin_begin('L_pollr')
a(f'buffer_load_dword v{AB+1}, v{AB}, s[12:15], s65 offen sc1')
a('s_waitcnt vmcnt(0)')
a(f'v_cmp_ne_u32 vcc, s43, v{AB+1}'); a('s_cmp_eq_u64 vcc, 0')
spin_end('L_pollr')
if not CBAR: lds_arrive(0, 2)
if RDFT and FRSEP: lds_arrive(48, 2)
if opt('aprio', 0): a('s_setprio 0')
a('s_branch L_p2join')

a('L_compute:')
common_srds()
a(f's_mov_b32 s50, {(-2*STG) & 0xffffffff}'); a(f's_mov_b32 s51, {STG}')
a('s_mov_b32 s46, 0'); a('s_mov_b32 s47, 0')
p2h_setup()
a('v_lshrrev_b32 v2, 4, v0')
a('v_and_b32 v3, 15, v0')
a('v_bfe_u32 v6, v0, 1, 3'); a('v_xor_b32 v6, v6, v2')
def wd_issue():
    Lw = a.label('L_nowd')
    a(f"s_cmp_ge_u32 s2, {0 if opt('nowd', 0) else 240}")
    a(f's_cbranch_scc1 {Lw}')
    a(f's_mul_hi_u32 s76, s2, {-(-(1<<32)//5)}'); a('s_mul_i32 s77, s76, 5'); a('s_sub_u32 s77, s2, s77')
    a('v_lshrrev_b32 v36, 2, v0'); a('v_and_b32 v37, 3, v0')
    a(f'v_mul_u32_u24 v38, {D*2}, v36'); a('v_lshl_add_u32 v38, v37, 4, v38')
    a(f's_mul_i32 s68, s76, {32*D*2}'); a('s_lshl_b32 s69, s77, 8'); a('s_add_u32 s68, s68, s69'); a('s_lshl_b32 s69, s3, 6'); a('s_add_u32 s68, s68, s69')
    a('s_lshl_b32 s70, s3, 11'); a(f's_add_u32 s70, s70, {L_WD}')
    a('s_mov_b32 m0, s70'); a('s_nop 0')
    a(f'buffer_load_dwordx4 v38, s[20:23], s68 offen {WP_} lds')
    a('s_add_u32 m0, s70, 1024'); a(f's_add_u32 s68, s68, {16*D*2}')
    a(f'buffer_load_dwordx4 v38, s[20:23], s68 offen {WP_} lds')
    a(f'{Lw}:')
WDL = opt('wdlate', 0) if not WDA else 9
if WDL == 0: wd_issue()
def wd_finish():
    if WDA: return
    if WDL == 2: wd_issue()
    L = a.label('L_wdf')
    a(f"s_cmp_ge_u32 s2, {0 if opt('nowd', 0) else 240}"); a(f's_cbranch_scc1 {L}')
    a('v_lshlrev_b32 v36, 6, v36'); a('v_lshl_add_u32 v36, v37, 3, v36'); a('v_add_u32 v36, s70, v36')
    a('v_lshlrev_b32 v37, 4, v0')
    a('s_lshl_b32 s77, s77, 3'); a('s_lshl_b32 s68, s3, 1'); a('s_add_u32 s77, s77, s68')
    a(f's_mul_i32 s76, s76, 5120'); a(f's_add_u32 s76, s76, {WS_WDT}')
    a('s_waitcnt vmcnt(0)')
    for e in range(2):
        for b in range(2):
            a(f'ds_read_b64_tr_b16 v[{48+4*e+2*b}:{49+4*e+2*b}], v36 offset:{32*e + 1024*b}')
    for e in range(2):
        a(f's_add_u32 s68, s77, {e}')
        a(f's_mul_hi_u32 s69, s68, {-(-(1<<32)//5)}')
        a('s_mul_i32 s70, s69, 5'); a('s_sub_u32 s70, s68, s70')
        a(f's_mul_i32 s69, s69, {48*5120}'); a('s_lshl_b32 s70, s70, 10')
        a('s_add_u32 s69, s69, s70'); a('s_add_u32 s69, s69, s76')
        a('s_waitcnt lgkmcnt(0)')
        a(f'buffer_store_dwordx4 v[{48+4*e}:{51+4*e}], v37, s[12:15], s69 offen sc1')
    a(f'{L}:')
pre_loop()
if WDL == 1: wd_issue()
a('s_cmp_eq_u32 s35, 1')
a('s_cbranch_scc1 L_dft')
def interleave(M, R):
    out = []; R = list(R)
    for m in M:
        out.append(m)
        if R: out.append(R.pop(0))
    return out + R
tails = []
def mid_sync(last):
    L = a.label('L_ms')
    a('s_cmp_ge_u32 s47, 8'); a(f's_cbranch_scc1 {L}_t')
    a('s_barrier')
    a(f'{L}_b:')
    tails.append((L, last))
CNTRD = 'ds_read2_b32 v[14:15], v6 offset0:3 offset1:6'
def emit_tails():
    for L, last in tails:
        a(f'{L}_t:')
        a('s_mov_b64 exec, 1')
        a('s_cmp_eq_u32 s47, 9'); a(f's_cbranch_scc1 {L}_9')
        a('ds_add_u32 v6, v5 offset:16')
        a('s_mov_b64 exec, -1')
        a('v_readfirstlane_b32 s78, v14')
        a('s_cmp_ge_u32 s78, 3'); a(f's_cbranch_scc1 {L}_b')
        lds_wait(f'{L}_w', 12, 14, 3)
        a(f's_branch {L}_b')
        a(f'{L}_9:')
        a('ds_add_u32 v6, v5 offset:20')
        a('s_mov_b64 exec, -1')
        a(f's_branch {last}')
    tails.clear()
def stats_wait(name):
    a('v_readfirstlane_b32 s78, v15')
    a('s_cmp_ge_u32 s78, 1'); a(f's_cbranch_scc1 {name}_ok')
    lds_wait(name, 24, 14, 1)
def slot_advance():
    a('s_add_u32 s46, s46, 1'); a('s_cmp_eq_u32 s46, 3'); a('s_cselect_b32 s42, s50, s51'); a('s_cselect_b32 s46, 0, s46')
ACC = 128
def T16(mat, mi, ni): return ACC + 64*mat + 16*mi + 4*ni
FR = 32
def fW(p, mat, mi): return FR + 48*p + 16*mat + 4*mi
def fX(p, ni): return FR + 48*p + 32 + 4*ni
AW, AX = 8, 12
a('s_and_b32 s44, s3, 1'); a('s_lshr_b32 s45, s3, 1')
SPF = opts.get('spf', '')
if SPF:
    a('s_load_dwordx4 s[80:83], s[0:1], 48') if STAMPS == 0 else a('s_load_dwordx4 s[72:75], s[0:1], 48')
    wb = 80 if STAMPS == 0 else 72
    a('s_waitcnt lgkmcnt(0)')
    a('s_cmp_ge_u32 s3, 2'); a('s_cbranch_scc1 L_spx')
    a('s_cmp_eq_u32 s3, 1'); a(f's_cselect_b32 s62, s{wb+2}, s{wb}'); a(f's_cselect_b32 s63, s{wb+3}, s{wb+1}')
    a(f's_mul_i32 s66, s32, {8*F*2}'); a('s_lshl_b32 s67, s29, 8'); a('s_add_u32 s66, s66, s67'); a('s_add_u32 s62, s62, s66'); a('s_addc_u32 s63, s63, 0')
    for dc in map(int, SPF.split(',')):
        a(f's_add_u32 s66, s34, {dc}'); a('s_cmp_ge_u32 s66, 10'); a('s_cselect_b32 s67, 10, 0'); a('s_sub_u32 s66, s66, s67'); a(f's_mul_i32 s66, s66, {64*F*2}')
        a('s_add_u32 s52, s62, s66'); a('s_addc_u32 s53, s63, 0')
        for i in range(16): a(f's_load_dword s54, s[52:53], {(i >> 1)*F*2 + (i & 1)*128}')
    a('s_branch L_spd')
    a('L_spx:')
    a('s_lshl_b32 s66, s33, 1'); a('s_add_u32 s66, s66, s44'); a('s_lshl_b32 s66, s66, 4'); a('s_add_u32 s66, s66, s28'); a(f's_mul_i32 s66, s66, {D*2}')
    a(f's_add_u32 s66, s66, {4*128*D*2}'); a('s_add_u32 s62, s64, s66'); a('s_addc_u32 s63, s65, 0')
    for dc in map(int, SPF.split(',')):
        a(f's_add_u32 s66, s34, {dc}'); a('s_cmp_ge_u32 s66, 10'); a('s_cselect_b32 s67, 10, 0'); a('s_sub_u32 s66, s66, s67'); a('s_lshl_b32 s66, s66, 7')
        a('s_add_u32 s52, s62, s66'); a('s_addc_u32 s53, s63, 0')
        for i in range(8): a(f's_load_dword s54, s[52:53], {(i-4)*128*D*2}')
        a(f's_add_u32 s52, s52, {8*128*D*2}'); a('s_addc_u32 s53, s53, 0')
        for i in range(8): a(f's_load_dword s54, s[52:53], {(i-4)*128*D*2}')
    a('L_spd:')
a('v_bfe_u32 v7, v0, 2, 2')
a('v_lshl_add_u32 v4, v2, 3, v7'); a('v_lshlrev_b32 v4, 8, v4')
a('v_bfe_u32 v5, v0, 1, 1'); a('v_lshl_add_u32 v4, v5, 4, v4')
a('v_and_b32 v5, 1, v0'); a('v_lshl_add_u32 v4, v5, 3, v4')
a('v_and_b32 v5, 1, v2'); a('v_lshl_or_b32 v5, v5, 2, v7')
for mi in range(4):
    a('s_lshl_b32 s66, s44, 2'); a(f's_add_u32 s66, s66, {mi}')
    a('v_xor_b32 v7, s66, v5')
    a(f'v_lshl_add_u32 v{AW+mi}, v7, 5, v4')
a('s_lshl_b32 s66, s45, 13'); a('s_add_u32 s66, s66, 32768')
a('v_lshlrev_b32 v5, 7, v3'); a('v_add_u32 v5, s66, v5')
for ks in range(2):
    a(f'v_xor_b32 v7, {4*ks}, v6')
    a(f'v_lshl_add_u32 v{AX+ks}, v7, 4, v5')
for i in range(128): a(f'v_mov_b32 v{ACC+i}, 0')
def f_reads(p, ks):
    L = []
    def w(mat, mi):
        for b in range(2):
            L.append(f'ds_read_b64_tr_b16 v[{fW(p,mat,mi)+2*b}:{fW(p,mat,mi)+2*b+1}], v{AW+mi} offset:{mat*16384 + ks*8192 + b*1024}')
    w(0, 0)
    for ni in range(4): L.append(f'ds_read_b128 v[{fX(p,ni)}:{fX(p,ni)+3}], v{AX+ks} offset:{ni*2048}')
    for mat in range(2):
        for mi in range(4):
            if (mat, mi) != (0, 0): w(mat, mi)
    return L
def f_mfmas(p):
    L = []
    for i, (mat, mi) in enumerate([(mat, mi) for mat in range(2) for mi in range(4)]):
        for ni in (range(4) if i % 2 == 0 else range(3, -1, -1)):
            t = T16(mat, mi, ni)
            L.append(f'v_mfma_f32_16x16x32_bf16 v[{t}:{t+3}], v[{fW(p,mat,mi)}:{fW(p,mat,mi)+3}], v[{fX(p,ni)}:{fX(p,ni)+3}], v[{t}:{t+3}]')
    return L
wd_finish()
a('v_mov_b32 v5, 1'); a(f'v_mov_b32 v6, {L_CNT}')
tick(7, 0)
a('s_barrier')
tick(7, 16)
stamp(1)
for r in f_reads(0, 0): a(r)
a('L_floop:')
a('s_waitcnt lgkmcnt(0)')
UPD = ['s_add_u32 s46, s46, 1', 's_cmp_eq_u32 s46, 3', 's_cselect_b32 s42, s50, s51', 's_cselect_b32 s46, 0, s46'] + [f'v_add_u32 v{r}, s42, v{r}' for r in (AW, AW+1, AW+2, AW+3, AX, AX+1)]
for ins in interleave(f_mfmas(0), f_reads(1, 1) + [CNTRD] + UPD): a(ins)
a('s_waitcnt vmcnt(0) lgkmcnt(0)')
tick(7, ('s47', 1))
mid_sync('L_flast')
if opts.get('diag', '').startswith('k'):
    a(f"s_cmp_lg_u32 s47, {int(opts['diag'][1:])}"); a('s_cbranch_scc1 L_dk'); a('s_memrealtime s[96:97]'); a('L_dk:')
tick(7, ('s47', 17))
for ins in interleave(f_mfmas(1), f_reads(0, 0) + ['s_add_u32 s47, s47, 1']): a(ins)
a('s_branch L_floop')
if opt('inl', 1): emit_tails()
a('L_flast:')
pre_epilogue()
if opts.get('diag') == 'w': a('s_memrealtime s[96:97]')
stats_wait('L_fst')
if opts.get('diag') == 'w': a('s_memrealtime s[98:99]')
tick(7, 40)
CSB = 48
P = []
P += ['s_lshl_b32 s66, s45, 8', f's_add_u32 s66, s66, {L_R}', 'v_lshlrev_b32 v4, 2, v3', 'v_add_u32 v4, s66, v4']
for ni in range(4):
    P += [f'ds_read_b32 v{40+ni}, v4 offset:{64*ni}', f'ds_read_b32 v{44+ni}, v4 offset:{512 + 64*ni}']
P += [f'v_mov_b32 v10, {L_CNT}', 'ds_read_b32 v8, v10 offset:32', 'ds_read_b32 v11, v10 offset:48']
P += ['s_lshl_b32 s66, s44, 8', f's_add_u32 s66, s66, {L_CS}', 'v_lshlrev_b32 v5, 4, v2', 'v_add_u32 v5, s66, v5']
for mat in range(2):
    for mi in range(4):
        r = CSB + 16*mat + 4*mi
        P.append(f'ds_read_b128 v[{r}:{r+3}], v5 offset:{mat*512 + mi*64}')
P += ['v_lshlrev_b32 v1, 4, v0', 'v_mov_b32 v9, 0']
P += ['s_lshl_b32 s66, s28, 3', 's_lshl_b32 s67, s45, 2', 's_add_u32 s66, s66, s67', 's_mul_i32 s66, s66, 48',
      's_lshl_b32 s67, s29, 2', 's_add_u32 s66, s66, s67', 's_lshl_b32 s67, s44, 1', 's_add_u32 s66, s66, s67', 's_lshl_b32 s66, s66, 10']
P += ['s_lshl_b32 s70, s28, 8', 's_lshl_b32 s71, s29, 4', 's_add_u32 s70, s70, s71', 's_lshl_b32 s71, s3, 2', 's_add_u32 s70, s70, s71', f's_add_u32 s70, s70, {WS_FH}']
M = f_mfmas(1)
for i, m in enumerate(M):
    a(m)
    for _ in range(2):
        if P: a(P.pop(0))
for x_ in P: a(x_)
stamp(2)
a('s_waitcnt lgkmcnt(0)')
a('v_readfirstlane_b32 s43, v8')
for ni in range(4):
    c = 80 + 6*ni
    a(f'v_sub_f32 v{c}, 0, v{44+ni}')
    a(f'v_mul_f32 v{c+2}, {-1.4426950408889634!r}, v{40+ni}')
    a(f'v_mul_f32 v{c+4}, v{40+ni}, v{40+ni}')
for ni in range(4): a(f'v_rcp_f32 v{84+6*ni}, v{84+6*ni}')
tick(7, 42)
BC = 'op_sel_hi:[1,0,1]'
for ni in range(1, 4): a(f's_add_u32 s{66+ni}, s{65+ni}, {48*1024}')
for kp in range(2):
    for ni in range(4):
        if kp == 1 and ni == VCHK - 1: a('ds_read_b32 v11, v10 offset:28')
        if kp == 1 and ni == VCHK:
            a('s_waitcnt lgkmcnt(0)'); a('v_readfirstlane_b32 s79, v11')
            a('s_cmp_lg_u32 s79, 1'); a('s_cbranch_scc1 L_fnov')
            v_loads()
            a('L_fnov:')
        c = 80 + 6*ni
        prs = [(2*kp + h, d) for h in range(2) for d in (0, 2)]
        G_ = [T16(0, mi, ni) + d for mi, d in prs]; U_ = [T16(1, mi, ni) + d for mi, d in prs]
        for n, (mi, d) in enumerate(prs): a(f'v_pk_fma_f32 v[{G_[n]}:{G_[n]+1}], v[{CSB+4*mi+d}:{CSB+1+4*mi+d}], v[{c}:{c+1}], v[{G_[n]}:{G_[n]+1}] {BC}')
        for n, (mi, d) in enumerate(prs): a(f'v_pk_fma_f32 v[{U_[n]}:{U_[n]+1}], v[{CSB+16+4*mi+d}:{CSB+17+4*mi+d}], v[{c}:{c+1}], v[{U_[n]}:{U_[n]+1}] {BC}')
        for n in range(4): a(f'v_pk_mul_f32 v[{104+2*n}:{105+2*n}], v[{G_[n]}:{G_[n]+1}], v[{c+2}:{c+3}] op_sel_hi:[1,0]')
        for n in range(4): a(f'v_pk_mul_f32 v[{G_[n]}:{G_[n]+1}], v[{G_[n]}:{G_[n]+1}], v[{U_[n]}:{U_[n]+1}]')
        for n in range(8): a(f'v_exp_f32 v{104+n}, v{104+n}')
        a('s_nop 0')
        for n in range(4): a(f'v_pk_fma_f32 v[{104+2*n}:{105+2*n}], v[{104+2*n}:{105+2*n}], v[{c+4}:{c+5}], v[{c+4}:{c+5}] op_sel_hi:[1,0,0]')
        for n in range(8): a(f'v_rcp_f32 v{104+n}, v{104+n}')
        a('s_nop 0')
        o = 112 + 4*ni
        for n in range(4): a(f'v_pk_mul_f32 v[{G_[n]}:{G_[n]+1}], v[{G_[n]}:{G_[n]+1}], v[{104+2*n}:{105+2*n}]')
        for n in range(4): a(f'v_cvt_pk_bf16_f32 v{o+n}, v{G_[n]}, v{G_[n]+1}')
        if RDFT and FRSEP and kp == 0 and ni == 0:
            if opts.get('diag') == 'f': a('s_memrealtime s[96:97]')
            a('v_readfirstlane_b32 s78, v11'); a('s_cmp_ge_u32 s78, 1'); a('s_cbranch_scc1 L_frw_ok')
            lds_wait('L_frw', 48, 14, 1)
            if opts.get('diag') == 'f': a('s_memrealtime s[98:99]')
        if HALF and kp == 1 and ni == 3: a('s_waitcnt vmcnt(3)')
        a(f'buffer_store_dwordx4 v[{o}:{o+3}], v1, s[12:15], s{66+ni} offen offset:{kp*1024} {STP}')
        if 4*kp + ni == EARLY:
            a('v_mov_b32 v12, 1'); a('s_mov_b64 exec, 1'); a('ds_add_u32 v10, v12'); a('s_mov_b64 exec, -1')
        tick(7, 43 + 4*kp + ni)
tick(7, 32)
stamp(3)
if TONE: lds_arrive(0, 4)
else: a('s_waitcnt vmcnt(0)')
if not SENT:
    a('s_mov_b64 exec, 1'); a('buffer_store_dword v8, v9, s[12:15], s70 offen sc1'); a('s_mov_b64 exec, -1')
if VCHK == 4:
    a('s_waitcnt lgkmcnt(0)'); a('v_readfirstlane_b32 s79, v11')
    a('s_cmp_lg_u32 s79, 1'); a('s_cbranch_scc1 L_fnov')
    v_loads()
    a('L_fnov:')
tick_dump(7, 4)
a('s_branch L_helper')

a('L_dft:')
DACC = 176
def TD(part, mi, et): return DACC + 40*part + 20*mi + 4*et
DFR = 40
def dX(p, mi): return DFR + 48*p + 4*mi
def dC(p, part, et): return DFR + 48*p + 8 + 20*part + 4*et
DX, DC = 8, 10
FCOS, FSIN, FNS = 136, 144, 152
a('v_lshlrev_b32 v5, 7, v3')
a('s_lshl_b32 s66, s3, 12'); a('s_add_u32 s66, s66, 32768')
for ks in range(2):
    a(f'v_xor_b32 v7, {4*ks}, v6')
    a(f'v_lshl_add_u32 v{DC+ks}, v7, 4, v5')
    a(f'v_add_u32 v{DX+ks}, s66, v{DC+ks}')
for i in range(80): a(f'v_mov_b32 v{DACC+i}, 0')
if DF:
    for i in list(range(104, 136)) + list(range(160, 176)): a(f'v_mov_b32 v{i}, 0')
if DF:
    a('s_cmp_eq_u32 s30, 0'); a('s_cselect_b32 s45, 4, 2')
    a('s_bitcmp1_b32 s30, 0'); a('s_cselect_b32 s53, 1.0, -1.0')
else:
    a('s_and_b32 s45, s30, 1'); a('s_sub_u32 s45, 3, s45')
a('v_lshrrev_b32 v12, 3, v3'); a('v_and_b32 v13, 7, v3'); a('v_lshlrev_b32 v13, 4, v13'); a('v_lshl_add_u32 v12, v12, 2, v13'); a('v_add_u32 v12, s3, v12')
a('v_lshlrev_b32 v13, 5, v2'); a('v_add_u32 v13, s28, v13'); a('v_cvt_f32_u32 v13, v13')
for mt in range(2):
    a(f'v_add_u32 v14, {8*mt}, v12'); a('v_cvt_f32_u32 v14, v14'); a(f'v_mul_f32 v14, {1.0/2048!r}, v14')
    for d in range(4):
        for h in range(2):
            a(f'v_add_f32 v{60+h}, {float(16*h + 128*d)!r}, v13')
            a(f'v_mul_f32 v{60+h}, v{60+h}, v14')
        a('v_cos_f32 v62, v60'); a('v_cos_f32 v63, v61'); a('v_sin_f32 v64, v60'); a('v_sin_f32 v65, v61')
        a(f'v_cvt_pk_bf16_f32 v{FCOS+4*mt+d}, v62, v63')
        a(f'v_cvt_pk_bf16_f32 v{FSIN+4*mt+d}, v64, v65')
        a(f'v_xor_b32 v{FNS+4*mt+d}, 0x80008000, v{FSIN+4*mt+d}')
def d_reads(p, ks):
    L = [f'ds_read_b128 v[{dX(p,mi)}:{dX(p,mi)+3}], v{DX+ks} offset:{mi*2048}' for mi in range(2)]
    for part in range(2):
        for et in range(5):
            L.append(f'ds_read_b128 v[{dC(p,part,et)}:{dC(p,part,et)+3}], v{DC+ks} offset:{part*16384 + et*2048}')
    return L
def d_mfmas(p):
    L = []
    i = 0
    for part in range(2):
        for et in range(5):
            for mi in ((0, 1) if i % 2 == 0 else (1, 0)):
                t = TD(part, mi, et)
                L.append(f'v_mfma_f32_16x16x32_bf16 v[{t}:{t+3}], v[{dX(p,mi)}:{dX(p,mi)+3}], v[{dC(p,part,et)}:{dC(p,part,et)+3}], v[{t}:{t+3}]')
            i += 1
    return L
wd_finish()
a('v_mov_b32 v5, 1'); a(f'v_mov_b32 v6, {L_CNT}')
for i in range(32, 36): a(f'v_mov_b32 v{i}, 0')
tick(7, 0)
a('s_barrier')
tick(7, 16)
stamp(1)
if DF:
    for ks in range(2):
        for mi in range(2): a(f'ds_read_b128 v[{40+8*ks+4*mi}:{43+8*ks+4*mi}], v{DX+ks} offset:{mi*2048}')
else:
    for r in d_reads(0, 0): a(r)
if not DF:
    def xstat(p):
        L = []
        for mi in range(2):
            for d in range(4):
                r = dX(p, mi) + d; t = 36 + 2*(d & 1)
                L += [f'v_lshlrev_b32 v{t}, 16, v{r}', f'v_and_b32 v{t+1}, 0xffff0000, v{r}',
                      f'v_add_f32 v{32+2*mi}, v{32+2*mi}, v{t}', f'v_fmac_f32 v{33+2*mi}, v{t}, v{t}',
                      f'v_add_f32 v{32+2*mi}, v{32+2*mi}, v{t+1}', f'v_fmac_f32 v{33+2*mi}, v{t+1}, v{t+1}']
        return L
    def interleave2(M, R, per):
        out = []; R = list(R)
        for m in M:
            out.append(m)
            for _ in range(per):
                if R: out.append(R.pop(0))
        return out + R
    def dloop(name, stats):
        a(f'{name}:')
        a('s_waitcnt lgkmcnt(0)')
        for ins in interleave2(d_mfmas(0), d_reads(1, 1) + (xstat(0) if stats else [CNTRD]), 3 if stats else 1): a(ins)
        a('s_waitcnt vmcnt(0) lgkmcnt(0)' if stats else 's_waitcnt lgkmcnt(0)')
        tick(7, ('s47', 1))
        if stats: a('s_barrier')
        else: mid_sync('L_dlast')
        tick(7, ('s47', 17))
        slot_advance()
        for r in (DX, DC): a(f'v_add_u32 v{r}, s42, v{r}')
        R = d_reads(0, 0) + [f'v_add_u32 v{r}, s42, v{r}' for r in (DX+1, DC+1)]
        for ins in interleave2(d_mfmas(1), R + (xstat(1) if stats else []), 3 if stats else 1): a(ins)
        a('s_add_u32 s47, s47, 1')
        if stats: a('s_cmp_lt_u32 s47, s45'); a(f's_cbranch_scc1 {name}')
        else: a(f's_branch {name}')
    dloop('L_dloopA', True)
else:
    def interleave2(M, R, per):
        out = []; R = list(R)
        for m in M:
            out.append(m)
            for _ in range(per):
                if R: out.append(R.pop(0))
        return out + R
    XA = [40, 48]; XB = [56, 104]
    CF = [[64 + 4*i for i in range(10)], [112 + 4*i for i in range(6)] + [160 + 4*i for i in range(4)]]
    def xa_reads(): return [f'ds_read_b128 v[{XA[ks]+4*mi}:{XA[ks]+4*mi+3}], v{DX+ks} offset:{mi*2048}' for ks in range(2) for mi in range(2)]
    def xb_reads(ks): return [f'ds_read_b128 v[{XB[ks]+4*mi}:{XB[ks]+4*mi+3}], v{DX+ks} offset:{mi*2048}' for mi in range(2)]
    def c_reads(ks): return [f'ds_read_b128 v[{CF[ks][5*part+et]}:{CF[ks][5*part+et]+3}], v{DC+ks} offset:{part*16384 + et*2048}' for part in range(2) for et in range(5)]
    def fold(ks, stats):
        L = []
        for mi in range(2):
            for d in range(4):
                ra = XA[ks] + 4*mi + d; rb = XB[ks] + 4*mi + d; sm, sq = 32 + 2*mi, 33 + 2*mi
                L += [f'v_lshlrev_b32 v36, 16, v{ra}', f'v_and_b32 v37, 0xffff0000, v{ra}', f'v_lshlrev_b32 v38, 16, v{rb}', f'v_and_b32 v39, 0xffff0000, v{rb}']
                if stats:
                    for t in (36, 37, 38, 39): L += [f'v_add_f32 v{sm}, v{sm}, v{t}', f'v_fmac_f32 v{sq}, v{t}, v{t}']
                L += [f'v_add_f32 v36, v{28+mi}, v36', f'v_add_f32 v37, v{28+mi}, v37']
                L += ['v_fmac_f32 v36, s53, v38', 'v_fmac_f32 v37, s53, v39', f'v_cvt_pk_bf16_f32 v{rb}, v36, v37']
        return L
    def f2_mfmas(ks):
        L = []
        for i in range(10):
            part, et = divmod(i, 5)
            for mi in ((0, 1) if i % 2 == 0 else (1, 0)):
                t = TD(part, mi, et); x = XB[ks] + 4*mi; c = CF[ks][i]
                L.append(f'v_mfma_f32_16x16x32_bf16 v[{t}:{t+3}], v[{x}:{x+3}], v[{c}:{c+3}], v[{t}:{t+3}]')
        return L
    DUPD = ['s_add_u32 s46, s46, 1', 's_cmp_eq_u32 s46, 3', 's_cselect_b32 s42, s50, s51', 's_cselect_b32 s46, 0, s46'] + [f'v_add_u32 v{r}, s42, v{r}' for r in (DX, DX+1, DC, DC+1)]
    def dloop3(name, stats):
        M1 = f2_mfmas(1); M0 = f2_mfmas(0)
        a(f'{name}:')
        for ins in interleave2(M1[:6], DUPD, 2): a(ins)
        a('s_waitcnt vmcnt(0) lgkmcnt(0)' if stats else 's_waitcnt lgkmcnt(0)')
        tick(7, ('s47', 1))
        if stats: a('s_barrier')
        else: mid_sync('L_dlast')
        tick(7, ('s47', 17))
        for ins in interleave2(M1[6:10], xb_reads(0) + c_reads(0) + ['s_add_u32 s47, s47, 1'], 3): a(ins)
        a('s_waitcnt lgkmcnt(10)')
        for ins in interleave2(M1[10:], fold(0, stats), 5): a(ins)
        a('s_waitcnt lgkmcnt(0)')
        a('s_nop 0')
        for ins in interleave2(M0[:7], xb_reads(1) + c_reads(1) + ([] if stats else [CNTRD]), 2): a(ins)
        a(f's_waitcnt lgkmcnt({10 if stats else 11})')
        for ins in interleave2(M0[7:], fold(1, stats) + DUPD, 5): a(ins)
        a('s_waitcnt lgkmcnt(0)')
        tick(7, ('s47', 1))
        if stats: a('s_barrier')
        else: mid_sync('L_dlast')
        tick(7, ('s47', 17))
        a('s_add_u32 s47, s47, 1')
        for ins in xa_reads() + ([] if stats else [CNTRD]): a(ins)
        if stats: a('s_cmp_lt_u32 s47, s45'); a(f's_cbranch_scc1 {name}')
        else: a(f's_branch {name}')
    def dloop2(name, stats):
        if opt('dp', 1): return dloop3(name, stats)
        a(f'{name}:')
        for ins in DUPD: a(ins)
        a('s_waitcnt vmcnt(0) lgkmcnt(0)' if stats else 's_waitcnt lgkmcnt(0)')
        tick(7, ('s47', 1))
        if stats: a('s_barrier')
        else: mid_sync('L_dlast')
        tick(7, ('s47', 17))
        a('s_add_u32 s47, s47, 1')
        for ins in xb_reads(0) + xb_reads(1) + c_reads(0): a(ins)
        a('s_waitcnt lgkmcnt(12)')
        for ins in fold(0, stats): a(ins)
        a('s_waitcnt lgkmcnt(0)')
        a('s_nop 0')
        for ins in interleave2(f2_mfmas(0), c_reads(1) + ([] if stats else [CNTRD]) + fold(1, stats) + DUPD, 3): a(ins)
        a('s_waitcnt lgkmcnt(0)')
        tick(7, ('s47', 1))
        if stats: a('s_barrier')
        else: mid_sync('L_dlast')
        tick(7, ('s47', 17))
        a('s_add_u32 s47, s47, 1')
        for ins in interleave2(f2_mfmas(1), xa_reads() + ([] if stats else [CNTRD]), 1): a(ins)
        if stats: a('s_cmp_lt_u32 s47, s45'); a(f's_cbranch_scc1 {name}')
        else: a(f's_branch {name}')
    a('s_waitcnt lgkmcnt(0)')
    for mi in range(2):
        for d in range(4):
            r = XA[0] + 4*mi + d
            a(f'v_lshlrev_b32 v36, 16, v{r}'); a(f'v_and_b32 v37, 0xffff0000, v{r}')
            if d == 0: a(f'v_add_f32 v{28+mi}, v36, v37')
            else: a(f'v_add_f32 v{28+mi}, v{28+mi}, v36'); a(f'v_add_f32 v{28+mi}, v{28+mi}, v37')
    for sw in ('v_permlane16_swap_b32', 'v_permlane32_swap_b32'):
        for mi in range(2): a(f'v_mov_b32 v{36+mi}, v{28+mi}')
        a('s_nop 1')
        for mi in range(2): a(f'{sw} v{28+mi}, v{36+mi}')
        a('s_nop 1')
        for mi in range(2): a(f'v_add_f32 v{28+mi}, v{28+mi}, v{36+mi}')
    a('s_bitcmp1_b32 s30, 0'); a(f's_cselect_b32 s66, 0x3d000000, 0')
    a('s_lshl_b32 s67, s3, 7'); a(f's_add_u32 s67, s67, {L_CH}'); a('v_lshlrev_b32 v38, 2, v3'); a('v_add_u32 v38, s67, v38')
    for mi in range(2):
        a(f'v_mul_f32 v{36+mi}, s66, v{28+mi}'); a(f'v_mul_f32 v{28+mi}, -2.0, v{36+mi}')
        if not NOCS: a(f'ds_write_b32 v38, v{36+mi} offset:{64*mi}')
    dloop2('L_dloopA', True)
a(f'v_mov_b32 v36, {L_NON}'); a('ds_read_b32 v14, v36')
for sw in ('v_permlane16_swap_b32', 'v_permlane32_swap_b32'):
    for r in range(32, 36): a(f'v_mov_b32 v{r+4}, v{r}')
    a('s_nop 1')
    for r in range(32, 36): a(f'{sw} v{r}, v{r+4}')
    a('s_nop 1')
    for r in range(32, 36): a(f'v_add_f32 v{r}, v{r}, v{r+4}')
a('s_lshl_b32 s66, s28, 2'); a('s_add_u32 s66, s66, s30'); a('s_lshl_b32 s66, s66, 11'); a('s_lshl_b32 s67, s3, 9'); a('s_add_u32 s66, s66, s67'); a(f's_add_u32 s66, s66, {WS_XP}')
a('v_cmp_gt_u32 vcc, 16, v0'); a('v_lshlrev_b32 v38, 4, v0')
a('s_waitcnt lgkmcnt(0)')
a('v_cndmask_b32 v12, v34, v32, vcc'); a('v_cndmask_b32 v13, v35, v33, vcc'); a('v_mov_b32 v15, v14')
a('v_readfirstlane_b32 s43, v14')
a('s_mov_b32 exec_hi, 0')
a('buffer_store_dwordx4 v[12:15], v38, s[12:15], s66 offen sc1')
a('s_mov_b64 exec, -1')
a('s_nop 0')
dloop2('L_dloopB', False) if DF else dloop('L_dloopB', False)
if opt('inl', 1): emit_tails()
a('L_dlast:')
pre_epilogue()
stats_wait('L_dst')
tick(7, 40)
DP = []
DP.append('s_lshl_b32 s66, s3, 7'); DP.append(f's_add_u32 s66, s66, {L_R}')
DP.append('v_lshlrev_b32 v4, 4, v2'); DP.append('v_add_u32 v4, s66, v4')
for mi in range(2):
    DP.append(f'ds_read_b128 v[{40+4*mi}:{43+4*mi}], v4 offset:{64*mi}')
    if not NOCS: DP.append(f'ds_read_b128 v[{48+4*mi}:{51+4*mi}], v4 offset:{512 + 64*mi}')
    DP.append(f'ds_read_b128 v[{76+4*mi}:{79+4*mi}], v4 offset:{L_A0 - L_R + 64*mi}')
    if DF and not NOCS: DP.append(f'ds_read_b128 v[{84+4*mi}:{87+4*mi}], v4 offset:{L_CH - L_R + 64*mi}')
DP.append('v_lshlrev_b32 v5, 2, v3'); DP.append(f'v_add_u32 v5, {L_CS}, v5')
for part in range(2):
    for et in range(0 if NOCS else 5): DP.append(f'ds_read_b32 v{56+2*(5*part+et)}, v5 offset:{part*512 + et*64}')
DP.append('v_bfe_u32 v9, v3, 1, 2'); DP.append('v_xor_b32 v8, s3, v9'); DP.append('v_lshlrev_b32 v8, 4, v8'); DP.append('v_lshl_add_u32 v8, v3, 6, v8'); DP.append('v_lshl_add_u32 v8, v2, 2, v8')
DP.append('ds_read_b32 v14, v6 offset:20')
for ins in interleave2(f2_mfmas(1) if DF else d_mfmas(1), DP, 2): a(ins)
stamp(2)
a('s_waitcnt lgkmcnt(0)')
a('v_readfirstlane_b32 s78, v14')
a('s_cmp_ge_u32 s78, 4'); a('s_cbranch_scc1 L_dc9_ok')
lds_wait('L_dc9', 20, 14)
tick(7, 41)
if DF and not NOCS:
    for i in range(8): a(f'v_sub_f32 v{48+i}, v{48+i}, v{84+i}')
a('s_cmp_lg_u32 s30, 0'); a('s_cbranch_scc1 L_z0')
for mi in range(2):
    t = 76 + 4*mi; y = 84 + 4*mi
    a(f'v_pk_add_f32 v[{y}:{y+1}], v[{t}:{t+1}], v[{t+2}:{t+3}]')
    a(f'v_pk_add_f32 v[{y+2}:{y+3}], v[{t}:{t+1}], v[{t+2}:{t+3}] neg_lo:[0,1] neg_hi:[0,1]')
    a(f'v_add_f32 v{92+mi}, v{y}, v{y+1}'); a(f'v_sub_f32 v{94+mi}, v{y}, v{y+1}')
a('v_cvt_pk_bf16_f32 v96, v92, v93'); a('v_mov_b32 v97, 0')
a('v_cvt_pk_bf16_f32 v98, v86, v90'); a('v_cvt_pk_bf16_f32 v101, v87, v91'); a('v_xor_b32 v99, 0x80008000, v101')
a('v_cvt_pk_bf16_f32 v100, v94, v95')
for cpart, r in enumerate((96, 97, 98, 99, 100, 97, 98, 101)):
    a(f'ds_write_b32 v8, v{r} offset:{L_Z + (cpart*ZB + 80)*ZROW}')
a('L_z0:')
for et in range(5):
    for mi in range(2):
        for part in range(2):
            t = TD(part, mi, et); c = 56 + 2*(5*part + et)
            for d in (() if NOCS else (0, 2)):
                a(f'v_pk_fma_f32 v[{t+d}:{t+d+1}], v[{48+4*mi+d}:{49+4*mi+d}], v[{c}:{c+1}], v[{t+d}:{t+d+1}] op_sel_hi:[1,0,1] neg_lo:[1,0,0] neg_hi:[1,0,0]')
            for d in (0, 2):
                a(f'v_pk_mul_f32 v[{t+d}:{t+d+1}], v[{t+d}:{t+d+1}], v[{40+4*mi+d}:{41+4*mi+d}]')
        y = 80 + 16*mi
        for part in range(2):
            t = TD(part, mi, et)
            a(f'v_pk_add_f32 v[{y+4*part}:{y+4*part+1}], v[{t}:{t+1}], v[{t+2}:{t+3}]')
            a(f'v_pk_add_f32 v[{y+4*part+2}:{y+4*part+3}], v[{t}:{t+1}], v[{t+2}:{t+3}] neg_lo:[0,1] neg_hi:[0,1]')
        pa, qa, ra, sa, pb, qb, rb, sb = range(y, y+8); o = y + 8
        a(f'v_add_f32 v{o}, v{pa}, v{qa}'); a(f'v_add_f32 v{o+1}, v{pb}, v{qb}')
        a(f'v_add_f32 v{o+2}, v{ra}, v{sb}'); a(f'v_sub_f32 v{o+3}, v{rb}, v{sa}')
        a(f'v_sub_f32 v{o+4}, v{pa}, v{qa}'); a(f'v_sub_f32 v{o+5}, v{pb}, v{qb}')
        a(f'v_sub_f32 v{o+6}, v{ra}, v{sb}'); a(f'v_add_f32 v{o+7}, v{rb}, v{sa}')
    for cpart in range(8):
        a(f'v_cvt_pk_bf16_f32 v{112+cpart}, v{88+cpart}, v{104+cpart}')
    for cpart in range(8):
        a(f'ds_write_b32 v8, v{112+cpart} offset:{L_Z + (cpart*ZB + 16*et)*ZROW}')
tick(7, 42)
VADDR = []
VADDR += ['v_lshrrev_b32 v12, 1, v2', f'v_mul_u32_u24 v12, {8*VROW}, v12', 'v_and_b32 v13, 1, v2', f'v_mul_u32_u24 v11, {VROW}, v13', 'v_add_u32 v12, v12, v11', 'v_lshl_add_u32 v12, v3, 4, v12']
VADDR += ['s_mul_i32 s66, s28, 17', 's_add_u32 s67, s66, s3', f's_mul_i32 s67, s67, {2*VROW}', *(['s_and_b32 s68, s30, 1', 's_lshl_b32 s68, s68, 1', 's_lshr_b32 s69, s30, 1', 's_add_u32 s68, s68, s69', 's_mul_i32 s68, s68, 1280'] if DF else ['s_mul_i32 s68, s30, 1280']), f's_add_u32 s68, s68, {WS_V + 128}', 's_add_u32 s67, s67, s68', 's_sub_u32 s69, s67, 16']
VADDR += ['s_add_u32 s66, s66, 16', f's_mul_i32 s66, s66, {2*VROW}', 's_add_u32 s66, s66, s68', f's_add_u32 s70, s67, {16*VROW}']
a('v_mov_b32 v10, 1')
a('s_waitcnt lgkmcnt(0)')
a('s_mov_b64 exec, 1'); a('ds_add_u32 v6, v10 offset:4'); a('s_mov_b64 exec, -1')
a('v_bfe_u32 v8, v3, 1, 2'); a('v_xor_b32 v8, v8, v2'); a('v_lshlrev_b32 v8, 4, v8'); a('v_lshl_add_u32 v8, v3, 6, v8'); a(f's_mul_i32 s66, s3, {2*ZB*ZROW}'); a('v_add_u32 v8, s66, v8')
for ins in VADDR: a(ins)
lds_wait('L_zw', 4, 14)
tick(7, 43)
for part in range(2):
    for et in range(5):
        r = 40 + 20*part + 4*et
        a(f'ds_read_b128 v[{r}:{r+3}], v8 offset:{L_Z + (part*ZB + 16*et)*ZROW}')
for part in range(2): a(f'ds_read_b128 v[{120+4*part}:{123+4*part}], v8 offset:{L_Z + (part*ZB + 80)*ZROW}')
a('s_waitcnt lgkmcnt(0)')
a('s_mov_b64 exec, 1'); a('ds_add_u32 v6, v10 offset:8'); a('s_mov_b64 exec, -1')
a('v_mov_b32 v8, v12'); a('v_mov_b32 v10, v11')
tick(7, 44)
def VR(mt, et): return DACC + 20*mt + 4*et
def VI(mt, et): return DACC + 40 + 20*mt + 4*et
def vpack(et):
    L = []
    for mt in range(2):
        o = 80 + 20*mt + 4*et
        for i in range(4): L.append(f'v_cvt_pk_bf16_f32 v{o+i}, v{VR(mt,et)+i}, v{VI(mt,et)+i}')
        L.append(f'buffer_store_dwordx4 v[{o}:{o+3}], v8, s[12:15], s{67 + 3*mt} offen offset:{256*et} {STP}')
    return L
def vm(vr, vi, ya, yb):
    L = []
    for mt in range(2):
        L.append(f'v_mfma_f32_16x16x32_bf16 v[{vr(mt)}:{vr(mt)+3}], v[{FCOS+4*mt}:{FCOS+4*mt+3}], v[{ya}:{ya+3}], 0')
        L.append(f'v_mfma_f32_16x16x32_bf16 v[{vi(mt)}:{vi(mt)+3}], v[{FNS+4*mt}:{FNS+4*mt+3}], v[{ya}:{ya+3}], 0')
    for mt in range(2):
        L.append(f'v_mfma_f32_16x16x32_bf16 v[{vr(mt)}:{vr(mt)+3}], v[{FSIN+4*mt}:{FSIN+4*mt+3}], v[{yb}:{yb+3}], v[{vr(mt)}:{vr(mt)+3}]')
        L.append(f'v_mfma_f32_16x16x32_bf16 v[{vi(mt)}:{vi(mt)+3}], v[{FCOS+4*mt}:{FCOS+4*mt+3}], v[{yb}:{yb+3}], v[{vi(mt)}:{vi(mt)+3}]')
    return L
for et in range(5):
    M = vm(lambda mt: VR(mt, et), lambda mt: VI(mt, et), 40 + 4*et, 60 + 4*et)
    for ins in interleave2(M, vpack(et - 2) if et >= 2 else [], 2): a(ins)
a('s_cmp_lg_u32 s30, 0'); a('s_cbranch_scc1 L_v0a')
for ins in vm(lambda mt: 160 + 4*mt, lambda mt: 168 + 4*mt, 120, 124): a(ins)
a('L_v0a:')
tick(7, 45)
for ins in vpack(3): a(ins)
for ins in vpack(4): a(ins)
a('s_cmp_lg_u32 s30, 0'); a('s_cbranch_scc1 L_v0b')
for mt in range(2):
    for i in range(4): a(f'v_cvt_pk_bf16_f32 v{120+4*mt+i}, v{160+4*mt+i}, v{168+4*mt+i}')
a('s_mov_b32 exec_lo, 0x00010001'); a('s_mov_b32 exec_hi, 0x00010001')
a(f'buffer_store_dwordx4 v[120:123], v8, s[12:15], s69 offen {STP}')
a(f's_add_u32 s69, s69, {16*VROW}')
a(f'buffer_store_dwordx4 v[124:127], v8, s[12:15], s69 offen {STP}')
a('s_mov_b64 exec, -1')
a('L_v0b:')
tick(7, 46)
a('s_cmp_lg_u32 s3, 0')
a('s_cbranch_scc1 L_signal')
a('v_cvt_f32_u32 v62, s28'); a('v_mul_f32 v62, 0.0625, v62'); a('v_cos_f32 v63, v62'); a('v_sin_f32 v64, v62')
a('v_cmp_gt_u32 vcc, 16, v0')
a('v_lshlrev_b32 v11, 4, v3'); a('v_add_u32 v9, v10, v11')
for et in range(5):
    o = 80 + 4*et; vr = VR(0, et); vi = VI(0, et); n = 40 + 4*et
    a(f'v_mul_f32 v65, v63, v{vr}'); a(f'v_fmac_f32 v65, v64, v{vi}')
    a(f'v_mul_f32 v66, v63, v{vi}'); a(f'v_fma_f32 v66, -v64, v{vr}, v66')
    a(f'v_cvt_pk_bf16_f32 v65, v65, v66')
    a(f'v_cndmask_b32 v65, v{o}, v65, vcc')
    a(f'v_mov_b32 v{n}, v{o+1}')
    a(f'v_mov_b32 v66, v65')
    a(f'v_mov_b32 v{n+1}, v{o+2}'); a(f'v_mov_b32 v{n+2}, v{o+3}')
    a(f'v_permlane16_swap_b32 v65, v66')
    a('s_nop 1')
    a(f'v_cndmask_b32 v{n+3}, v65, v66, vcc')
a('s_mov_b32 exec_hi, 0')
for et in range(5):
    a(f'buffer_store_dwordx4 v[{40+4*et}:{43+4*et}], v9, s[12:15], s66 offen offset:{256*et} {STP}')
a('s_mov_b64 exec, -1')

a('L_signal:')
if DGO == 2: lds_arrive(56, 4)
a('s_mov_b32 s79, 0')
tick(7, 32)
stamp(3)
a('s_lshl_b32 s66, s30, 2'); a('s_add_u32 s66, s66, s3'); a('s_lshl_b32 s66, s66, 7'); a('s_lshl_b32 s67, s28, 2'); a('s_add_u32 s66, s66, s67'); a(f's_add_u32 s66, s66, {WS_FV}')
a('v_mov_b32 v4, s43'); a('v_mov_b32 v5, 0')
a('s_waitcnt vmcnt(0)'); a('s_mov_b64 exec, 1')
a('buffer_store_dword v4, v5, s[12:15], s66 offen sc1'); a('s_mov_b64 exec, -1')
if TONE: lds_arrive(0, 4)
tick_dump(7, 4)
a('L_helper:')
if TONE:
    lds_wait('L_hc9', 20, 40)
    a('s_cmp_eq_u32 s35, 0'); a('s_cbranch_scc1 L_hnz')
    lds_wait('L_hzc', 8, 40)
    a('L_hnz:')
else:
    if 0 <= EARLY < 8: a('s_cmp_eq_u32 s35, 0'); a('s_cbranch_scc1 L_hea')
    if DGO:
        a('s_cmp_eq_u32 s35, 0'); a('s_cbranch_scc1 L_hbf')
        lds_wait('L_hzc', 8, 40)
        a('s_branch L_hbd')
        a('L_hbf:')
        a('s_barrier')
        a('L_hbd:')
    elif CBAR: a('s_barrier')
    else:
        lds_arrive(0, 4)
        a('L_hea:')
        lds_wait('L_hc9', 20, 40)
        a('s_cmp_eq_u32 s35, 0'); a('s_cbranch_scc1 L_hnz')
        lds_wait('L_hzc', 8, 40)
        a('L_hnz:')
    a('s_mov_b32 s44, s3')
    p2_setup()
    if HF1: lds_wait('L_hgo', 40, 40, opt('hgn', 4))
    a('s_cmp_eq_u32 s35, 1'); a('s_cbranch_scc1 L_hd')
    for st in range(12 - NLATE + opt('skipl', 0), 12): wdt_lds(st)
    a('s_branch L_hf')
    a('L_hd:')
    for st in range(12 - NLD, 12): wdt_lds(st)
    a('L_hf:')
    VT = opt('vtouch', 0)
    def vtouch():
        a('s_cmp_eq_u32 s35, 0'); a('s_cbranch_scc1 L_nvt')
        a('v_lshrrev_b32 v40, 2, v0'); a('v_lshlrev_b32 v40, 7, v40'); a('v_and_b32 v41, 3, v0'); a('v_lshl_add_u32 v40, v41, 4, v40')
        a(f's_mov_b32 s66, {WS_FV}')
        spin_begin('L_pollva')
        a('buffer_load_dwordx4 v[44:47], v40, s[12:15], s66 offen sc1')
        a('s_waitcnt vmcnt(0)')
        for i in range(4): a(f'v_xor_b32 v{44+i}, s43, v{44+i}')
        a('v_or_b32 v44, v44, v45'); a('v_or3_b32 v44, v46, v47, v44')
        a('v_cmp_ne_u32 vcc, 0, v44'); a('s_cmp_eq_u64 vcc, 0')
        spin_end('L_pollva')
        a('s_lshl_b32 s66, s30, 2'); a('s_sub_u32 s67, 13, s66'); a('s_cmp_eq_u32 s31, 1'); a('s_cselect_b32 s66, s67, s66')
        a('s_lshl_b32 s67, s32, 1'); a('s_lshr_b32 s68, s3, 1'); a('s_add_u32 s67, s67, s68'); a('s_mul_i32 s67, s67, 17'); a('s_add_u32 s66, s66, s67')
        a(f's_mul_i32 s66, s66, {2*VROW}'); a('s_and_b32 s67, s3, 1'); a(f's_mul_i32 s67, s67, {164*128}'); a('s_add_u32 s66, s66, s67'); a(f's_add_u32 s66, s66, {WS_V}')
        a('v_lshlrev_b32 v40, 7, v0')
        for i in range(3):
            if i == 2: a('s_mov_b32 exec_hi, 0xf')
            a(f'buffer_load_dword v41, v40, s[12:15], s66 offen sc1')
            if i < 2: a('s_add_u32 s66, s66, 8192')
        a('s_mov_b64 exec, -1')
        a('s_mov_b32 s79, 0')
        a('s_waitcnt vmcnt(0)')
        a('L_nvt:')
    if VT == 2: vtouch()
    a('s_waitcnt vmcnt(0)')
    lds_arrive(36, 4)
    if VT == 1: vtouch()
stamp(4)

a('s_cmp_eq_u32 s79, 1'); a('s_cbranch_scc1 L_vdone')
if VGO: a('s_cmp_lg_u32 s3, 3'); a('s_cbranch_scc1 L_vwait')
spin_begin('L_pollv')
a(f'buffer_load_dword v53, v{VFL}, s[12:15], s60 offen sc1')
a('s_waitcnt vmcnt(0)')
a('v_cmp_ne_u32 vcc, s43, v53')
a('s_cmp_eq_u64 vcc, 0')
spin_end('L_pollv')
if VGO:
    lds_arrive(28, 40)
    a('L_vwait:')
    lds_wait('L_vc', 28, 40, 1)
    lds_wait('L_vgo', 40, 40, 1)
v_loads()
a('L_vdone:')
stamp(5)
a('v_lshrrev_b32 v4, 2, v3'); a('v_and_b32 v5, 3, v3'); a('v_lshl_add_u32 v7, v5, 2, v4')
a('s_mul_i32 s66, s55, 15'); a('v_xor_b32 v4, s66, v7')
a('v_cvt_f32_u32 v4, v4'); a('v_mul_f32 v4, 0.0625, v4')
a('v_lshlrev_b32 v5, 2, v2'); a('v_cvt_f32_u32 v5, v5')
for i in range(4):
    a(f'v_add_f32 v52, {float(i)!r}, v5'); a('v_mul_f32 v52, v52, v4')
    a('v_cos_f32 v53, v52'); a('v_sin_f32 v54, v52'); a('s_nop 0')
    a(f'v_cvt_pk_bf16_f32 v{8+i}, v53, v54')
a(f's_mov_b32 s47, {PN}'); a('s_cmp_eq_u32 s55, 1'); a(f's_cselect_b32 s47, {(-PN) & 0xffffffff}, s47')
a(f'v_mul_u32_u24 v56, {PQ}, v2'); a('v_lshl_add_u32 v56, v3, 4, v56'); a(f's_mul_i32 s66, s55, {3*PN}'); a('v_add_u32 v56, s66, v56')
for k4 in range(1, 4): a(f'v_add_u32 v{56+k4}, s47, v{55+k4}')
def spec_tile(off_s, vb):
    for k4 in range(4):
        for i in range(4): a(f'v_mov_b32 v{64+4*k4+i}, v{vb+4*i+k4}')
    a('s_nop 1')
    for k4 in range(4):
        c = 80 + 4*k4
        a(f'v_mfma_f32_16x16x32_bf16 v[{c}:{c+3}], v[{64+4*k4}:{67+4*k4}], v[8:11], 0')
    for k4 in range(4): a(f'v_add_u32 v{40+k4}, {off_s}, v{56+k4}')
    a('s_nop 5')
    for k4 in range(4):
        c = 80 + 4*k4
        a(f'ds_write_b128 v{40+k4}, v[{c}:{c+3}]')
a('s_cmp_eq_u32 s3, 1'); a(f's_mov_b32 s73, {ST[0]}'); a(f's_cselect_b32 s73, {ST[1]}, s73')
a('s_cmp_eq_u32 s3, 2'); a(f's_cselect_b32 s73, {ST[2]}, s73')
a('s_cmp_eq_u32 s3, 3'); a(f's_cselect_b32 s73, {ST[3]}, s73')
a('s_waitcnt vmcnt(0)')
a('s_cmp_lg_u32 s3, 0'); a('s_cbranch_scc1 L_spec1')
a(f's_mov_b32 s74, {ST[4]}')
spec_tile('s74', VB1)
a('L_spec1:')
spec_tile('s73', VB0)
for r in range(3):
    for d in range(4):
        a(f'v_lshlrev_b32 v{96+8*r+2*d}, 16, v{XR[r]+d}'); a(f'v_and_b32 v{97+8*r+2*d}, 0xffff0000, v{XR[r]+d}')
if F8:
    lds_arrive(52, 40)
    lds_wait('L_spw', 52, 40)
    a(f'ds_read_b128 v[128:131], v{FA[5]}'); a(f'ds_read_b128 v[132:135], v{FA[5]} offset:{PQ}')
    a('s_waitcnt lgkmcnt(0)')
    for d in range(0, 8, 2): a(f'v_pk_add_f32 v[{128+d}:{129+d}], v[{128+d}:{129+d}], v[{104+d}:{105+d}]')
    a(f'ds_write_b128 v{FA[5]}, v[128:131]'); a(f'ds_write_b128 v{FA[5]}, v[132:135] offset:{PQ}')

a('L_final:')
def final_reads(r, b):
    d4, d11 = FA[3*r], FA[3*r+2]
    for p in range(5):
        reg = (d4, d4, d4, d4, d11)[p]; off = (0, P2W, 2*P2W, 3*P2W, 0)[p]
        a(f'ds_read_b128 v[{b+8*p}:{b+3+8*p}], v{reg} offset:{off}')
        a(f'ds_read_b128 v[{b+4+8*p}:{b+7+8*p}], v{reg} offset:{off+PQ}')
def final_sum(r, b, cnt):
    x = 96 + 8*r
    for p in range(5):
        a(f's_waitcnt lgkmcnt({min(15, cnt + 8 - 2*p)})')
        for d in range(0, 8, 2): a(f'v_pk_add_f32 v[{x+d}:{x+d+1}], v[{x+d}:{x+d+1}], v[{b+8*p+d}:{b+8*p+d+1}]')
    for d in range(4): a(f'v_cvt_pk_bf16_f32 v{b+d}, v{x+2*d}, v{x+2*d+1}')
    a(f'buffer_store_dwordx4 v[{b}:{b+3}], v{FA[3*r+1]}, s[16:19], 0 offen {OUTP}')
a('s_waitcnt lgkmcnt(0)')
a('s_barrier')
stamp(6)
if F8:
    final_reads(0, 128)
    a('s_cmp_ge_u32 s3, 2'); a('s_cbranch_scc1 L_fin8')
    final_reads(2, 168)
    final_sum(0, 128, 10)
    final_sum(2, 168, 0)
    a('s_branch L_fin2')
    a('L_fin8:')
    final_sum(0, 128, 0)
    a('s_branch L_fin2')
final_reads(0, 128)
final_reads(1, 168)
final_sum(0, 128, 10)
a('s_cmp_ge_u32 s3, 2'); a('s_cbranch_scc1 L_fin1')
final_reads(2, 208)
final_sum(1, 168, 10)
final_sum(2, 208, 0)
a('s_branch L_fin2')
a('L_fin1:')
final_sum(1, 168, 0)
a('L_fin2:')
if 'diag' in opts:
    a('s_cmp_lg_u32 s3, 0'); a('s_cbranch_scc1 L_diag')
    a('s_waitcnt vmcnt(0)')
    a('s_memrealtime s[94:95]'); a('s_waitcnt lgkmcnt(0)')
    if opts['diag'] == 'r': a('s_sub_u32 s66, s43, s80'); a('s_max_i32 s66, s66, 0'); a('s_min_u32 s66, s66, 5000'); a('s_lshl_b32 s66, s66, 4')
    elif opts['diag'] == 'b': a('s_sub_u32 s66, s82, s80'); a('s_max_i32 s66, s66, 0'); a('s_min_u32 s66, s66, 5000'); a('s_lshl_b32 s66, s66, 3')
    elif opts['diag'] == 'c': a('s_sub_u32 s66, s92, s90'); a('s_lshr_b32 s66, s66, 2'); a('s_cmp_eq_u32 s35, 1'); a('s_cselect_b32 s66, 0, s66')
    elif opts['diag'] == 'l': a('s_sub_u32 s66, s84, s82'); a('s_lshl_b32 s66, s66, 2'); a('s_cmp_eq_u32 s35, 1'); a('s_cselect_b32 s66, 0, s66')
    elif opts['diag'] == 'g': a('s_sub_u32 s66, s92, s86'); a('s_lshl_b32 s66, s66, 2')
    elif opts['diag'] == 'p': a('s_sub_u32 s66, s86, s84'); a('s_lshl_b32 s66, s66, 4'); a('s_cmp_eq_u32 s35, 1'); a('s_cselect_b32 s66, 0, s66')
    elif opts['diag'][0] == 'k': a('s_sub_u32 s66, s96, s80'); a('s_lshl_b32 s66, s66, 2'); a('s_cmp_eq_u32 s35, 1'); a('s_cselect_b32 s66, 0, s66')
    elif opts['diag'] in 'wf': a('s_sub_u32 s66, s98, s96'); a('s_lshl_b32 s66, s66, 4'); a('s_cmp_eq_u32 s35, 1'); a('s_cselect_b32 s66, 0, s66')
    elif opts['diag'] == 'D': a('s_sub_u32 s66, s86, s80'); a('s_lshl_b32 s66, s66, 2'); a('s_cmp_eq_u32 s35, 0'); a('s_cselect_b32 s66, 0, s66')
    elif opts['diag'] == 'F': a('s_sub_u32 s66, s86, s80'); a('s_lshl_b32 s66, s66, 2'); a('s_cmp_eq_u32 s35, 1'); a('s_cselect_b32 s66, 0, s66')
    elif opts['diag'] == 'V': a('s_sub_u32 s66, s90, s80'); a('s_lshl_b32 s66, s66, 2')
    elif opts['diag'] == 'X': a('s_sub_u32 s66, s92, s80'); a('s_lshl_b32 s66, s66, 2'); a('s_cmp_eq_u32 s35, 0'); a('s_cselect_b32 s66, 0, s66')
    elif opts['diag'] == 'Y': a('s_sub_u32 s66, s92, s80'); a('s_lshl_b32 s66, s66, 2'); a('s_cmp_eq_u32 s35, 1'); a('s_cselect_b32 s66, 0, s66')
    elif opts['diag'] == 'H': a('s_sub_u32 s66, s88, s80'); a('s_lshl_b32 s66, s66, 2')
    elif opts['diag'] == 'e': a('s_sub_u32 s66, s94, s80'); a('s_max_i32 s66, s66, 0'); a('s_min_u32 s66, s66, 5000'); a('s_lshl_b32 s66, s66, 2')
    else: a(f"s_sub_u32 s66, s{80 + 2*int(opts['diag'])}, s43"); a('s_max_i32 s66, s66, 0'); a('s_min_u32 s66, s66, 5000'); a('s_lshl_b32 s66, s66, 2')
    a('L_dsp:')
    a('s_memrealtime s[68:69]'); a('s_waitcnt lgkmcnt(0)'); a('s_sub_u32 s68, s68, s94'); a('s_cmp_lt_u32 s68, s66'); a('s_cbranch_scc1 L_dsp')
    a('s_endpgm')
    a('L_diag:')
if opt('dbgt', 0):
    a('s_cmp_lg_u32 s3, 0'); a('s_cbranch_scc1 L_dbgt')
    a('s_waitcnt vmcnt(0)')
    a('s_memrealtime s[94:95]'); a('s_waitcnt lgkmcnt(0)')
    a('s_mov_b64 exec, 1')
    for i, r in enumerate((80, 82, 84, 86, 88, 90, 92, 94)):
        a(f's_sub_u32 s66, s{r}, s43'); a('s_add_u32 s66, s66, 1000'); a('v_mov_b32 v4, s66'); a(f'v_mov_b32 v5, {4 + 4*i}')
        a('buffer_atomic_umax v4, v5, s[24:27], 0 offen sc1')
        a('s_nop 2')
    a('s_endpgm')
    a('L_dbgt:')
stamp(7)
if STAMPS:
    a('s_waitcnt vmcnt(0)')
    a('s_memrealtime s[96:97]')
    a('s_waitcnt lgkmcnt(0)')
    for i in range(8): a(f'v_mov_b32 v{16+i}, s{80+2*i}')
    a('v_mov_b32 v24, s96'); a('v_mov_b32 v25, s101')
    a('s_lshl_b32 s66, s2, 3'); a('s_add_u32 s66, s66, s3'); a('s_lshl_b32 s66, s66, 6'); a(f's_add_u32 s66, s66, {WS_TS}')
    a('v_mov_b32 v4, 0')
    a('s_mov_b64 exec, 1')
    a('buffer_store_dwordx4 v[16:19], v4, s[12:15], s66 offen')
    a('buffer_store_dwordx4 v[20:23], v4, s[12:15], s66 offen offset:16')
    a('buffer_store_dwordx2 v[24:25], v4, s[12:15], s66 offen offset:32')
a('s_endpgm')
emit_tails()
a('L_done:')
a.end(256, sgpr=102)
txt = a.text([])
txt = txt.replace('.amdgcn_target', f'; @launch grid=(256,1,1) block=(512,1,1) lds={LDS_BYTES}\n.amdgcn_target', 1)
open(sys.argv[1], 'w').write(txt)
if opt('ids', 0): print(wait_ids, spin_ids)
```

```python
import sys, math
from asmlib import *
opts = dict(o.split('=') for o in sys.argv[2:])
def opt(k, d): return type(d)(opts.get(k, d))
STAMPS = opt('stamps', 0)
TRK = opt('trk', 0)
TF = {0: [], 1: [[0], [1], [2]], 2: [[0], [1, 2], [3]], 3: [[], [0], [1]]}[TRK]
TD_ = [[0, 1], [2, 3], [4, 5]] if TRK else []
DGO = opt('dgo', 0)
CBAR = opt('cbar', 1)
HF1 = opt('hf1', 0)
WDA = opts.get('wda', '')
F8 = opt('f8', 1)
RSP = opts.get('rsp', 'sc1').replace('+', ' ')
RSEQ = opts.get('rseq', '0222200').replace('-', '')
FRB = opt('frb', 6)
FRSEP = opt('frsep', 1)
NOCS = opt('nocs', 1)
FWL = opt('fwl', 0)
DF = opt('df', 1)
PFW = opts.get('pfw', '2,1').replace('-', '')
PFP = opts.get('pfp', '-').replace('-', '')
HALF = opt('half', 1)
EARLY = opt('early', 8 if HALF else -1)
NTM = [sum(1 << int(c) for c in m) for m in opts['ntm'].split(',')] if 'ntm' in opts else None
RP = opts.get('rp', '-').replace('+', ' ').replace('-', '')
WP_ = opts.get('wp', '-').replace('+', ' ').replace('-', '')
XP_ = opts.get('xp', '-').replace('+', ' ').replace('-', '')
TONE = opt('t1', 0)
HDLY = opt('hdly', 0)
OUTP = opts.get('outp', 'sc1').replace('+', ' ').replace('-', '')
SENT = 1
RDFT = opt('rdft', 1)
RSL = opt('rsleep', 4)
AUXV = opt('auxv', 0)
VGO = opt('vgo', 1)
VCHK = opt('vchk', 4)
XR = [32, 36, 28]
FA = [16, 17, 18, 19, 20, 21, 22, 23, 24]; VA0, VA4, VFL = 25, 26, 27
NONIT = 1
WMODE = opt('wmode', 0)
STRICT = opt('strict', 1)
ZFIX = opt('zfix', 1)
FLAGA = opt('flaga', 0)
FAKEW = opt('fakew', 0)
FAKEH = opt('fakeh', 0)
P2MAP = opt('p2map', 1)
P2ROT = opt('p2rot', 5)
SPINMAX = opt('spinmax', 1 << 16)
CODEPF = opt('codepf', 1)
LDW = opts.get('ldw', 'sc1').replace('+', ' ').replace('-', '')
LDH = opts.get('ldh', 'sc1').replace('+', ' ').replace('-', '')
STP = opts.get('stp', 'sc1').replace('+', ' ').replace('-', '')
S, D, F = 2048, 640, 1536
KNAME = 'parallel_sum__spectral_fnet__swiglu_ffn__prompt_kernel'
STG = 49152
WS_H = 0
WS_WDT = 0x600000
WS_V = 0x800000
WS_XP = 0xB00000
WS_WP = 0xB20000
WS_FW = 0xB30000
WS_FH = 0xB31000
WS_FV = 0xB34000
WS_TS = 0xC00000
WS_SIZE = 0x1000000
L_AUX = 3*STG
L_R = L_AUX
L_M = L_AUX + 512
L_CS = L_AUX + 1024
L_CNT = L_AUX + 2048
L_NON = L_CNT + 32
L_A0 = L_AUX + 2560
L_CH = L_AUX + 3072
L_WD = L_AUX + 4096
L_Z = 0
ZROW = 64; ZB = 96
VROW = 5248
P2W = 10240
P2STEP = [STG, STG + 5120, 2*STG, 2*STG + 5120, 0, 5120]
PT = [STG, STG + 4416, 2*STG + 128, 2*STG + 128 + 4416, 0]
ST = [40960, STG + 40960 + 64, 2*STG + 40960 + 128, 3*STG + 4096 + 192, 3*STG + 4096 + 192 + 4416 ]
PQ, PN, PE = 272, 1088, 4416
LDS_BYTES = 163840

a = Asm()
stamp_n = [0]
def stamp(i):
    if STAMPS and opts.get('diag') == 'c' and i in (1, 2): a(f's_memtime s[{88 + 2*i}:{89 + 2*i}]'); return
    if STAMPS and opts.get('diag') == 'c' and i in (5, 6): return
    if STAMPS:
        if not ((FAKEW or FAKEH) and i >= 5): a(f's_memrealtime s[{80+2*i}:{81+2*i}]')
TICKS = opt('ticks', 0)
def tick(reg, idx):
    if TICKS:
        a('s_memrealtime s[98:99]'); a('s_waitcnt lgkmcnt(0)')
        if isinstance(idx, tuple):
            a(f's_add_u32 m0, {idx[0]}, {idx[1]}'); a('s_nop 3'); a(f'v_writelane_b32 v{reg}, s98, m0')
        else:
            a(f'v_writelane_b32 v{reg}, s98, {idx}')
def tick_dump(reg, tmp):
    if TICKS:
        a('s_lshl_b32 s98, s2, 3'); a('s_add_u32 s98, s98, s3'); a('s_lshl_b32 s98, s98, 8'); a(f's_add_u32 s98, s98, {WS_TS + 0x100000}')
        a(f'v_lshlrev_b32 v{tmp}, 2, v0')
        a(f'buffer_store_dword v{reg}, v{tmp}, s[12:15], s98 offen')
def rbf(v):
    a(f'v_cvt_pk_bf16_f32 v{v}, v{v}, v{v}')
    a(f'v_lshlrev_b32 v{v}, 16, v{v}')
def srd_from(d, b, nbytes):
    srd(a, d, b, nbytes)
spin_ids = {}
def spin_begin(name):
    a(f's_mov_b32 s79, 0')
    a(f'{name}:')
def spin_end(name):
    a(f's_cbranch_scc1 {name}_ok')
    a('s_add_u32 s79, s79, 1')
    a(f's_cmp_ge_u32 s79, {SPINMAX}')
    if STAMPS: spin_ids[name] = 100 + len(spin_ids); a(f's_cselect_b32 s101, {spin_ids[name]}, s101')
    a(f's_cbranch_scc1 {name}_ok')
    a(f"s_sleep {opt('gsl', 4)}")
    a(f's_branch {name}')
    a(f'{name}_ok:')

def lds_arrive(off, v):
    a(f'v_mov_b32 v{v}, {L_CNT}'); a(f'v_mov_b32 v{v+1}, 1')
    a('s_waitcnt lgkmcnt(0)')
    a('s_mov_b64 exec, 1')
    a(f'ds_add_u32 v{v}, v{v+1} offset:{off}')
    a('s_mov_b64 exec, -1')
wait_ids = {}
def lds_wait(name, off, v, cnt=4):
    wait_ids[name] = len(wait_ids) + 1
    a(f'v_mov_b32 v{v}, {L_CNT}')
    a('s_mov_b32 s100, 0')
    a(f'{name}:')
    a(f'ds_read_b32 v{v+1}, v{v} offset:{off}')
    a('s_waitcnt lgkmcnt(0)')
    a(f'v_readfirstlane_b32 s78, v{v+1}')
    a(f's_cmp_lt_u32 s78, {cnt}')
    a(f's_cbranch_scc0 {name}_ok')
    a('s_add_u32 s100, s100, 1')
    a(f's_cmp_lt_u32 s100, {SPINMAX*8}')
    a(f"s_sleep {opt('lsl', 3)}")
    a(f's_cbranch_scc1 {name}')
    if STAMPS: a(f's_mov_b32 s101, {wait_ids[name]}')
    a(f'{name}_ok:')
a.begin(KNAME)
a('s_cmp_ge_u32 s2, 256')
a('s_cbranch_scc1 L_done')
stamp(0)
if STAMPS: a('s_mov_b32 s101, 0')
a('s_load_dwordx2 s[64:65], s[0:1], 0')
a('s_load_dwordx4 s[60:63], s[0:1], 24')
a('s_load_dwordx8 s[48:55], s[0:1], 48')
a('s_load_dwordx4 s[56:59], s[0:1], 80')
a('v_lshrrev_b32 v1, 6, v0')
a('v_and_b32 v0, 63, v0')
a('v_readfirstlane_b32 s3, v1')
a('s_and_b32 s40, s2, 7'); a('s_lshr_b32 s41, s2, 3')
a('s_and_b32 s31, s40, 1'); a('s_lshr_b32 s30, s40, 1')
a('s_and_b32 s32, s41, 7'); a('s_lshr_b32 s33, s41, 3')
a('s_lshl_b32 s28, s31, 3'); a('s_add_u32 s28, s28, s32')
a('s_mul_i32 s29, s30, 3'); a('s_add_u32 s29, s29, s33')
a('s_add_u32 s42, s30, 12')
a('s_cmp_eq_u32 s33, 3')
a('s_cselect_b32 s29, s42, s29')
a('s_cselect_b32 s35, 1, 0')
OFFA = opt('offa', 2)
assert DF or OFFA == 0
if OFFA == 0: a('s_mul_i32 s34, s30, 5'); a('s_add_u32 s34, s34, 1'); a('s_lshr_b32 s34, s34, 1')
elif OFFA == 1: a('s_min_u32 s34, s30, 1'); a('s_add_u32 s34, s34, s30')
elif OFFA == 2: a('s_mov_b32 s34, 0')
elif OFFA == 3: a('s_min_u32 s34, s30, 1'); a('s_add_u32 s34, s34, s30'); a('s_and_b32 s42, s30, 1'); a('s_mul_i32 s42, s42, 5'); a('s_add_u32 s34, s34, s42')
a('s_mul_i32 s42, s31, 5'); a('s_add_u32 s34, s34, s42')
a('s_cmp_ge_u32 s34, 10'); a('s_cselect_b32 s42, 10, 0'); a('s_sub_u32 s34, s34, s42')
if P2MAP == 0:
    a('s_lshl_b32 s42, s30, 3'); a('s_add_u32 s42, s42, s32')
    a('s_lshl_b32 s38, s31, 2'); a('s_add_u32 s38, s38, s33')
else:
    a('s_lshl_b32 s42, s40, 2'); a('s_add_u32 s42, s42, s33')
    a('s_mov_b32 s38, s32')
if EARLY < 0:
    a('s_mul_i32 s39, s32, 3'); a('s_lshr_b32 s39, s39, 1'); a('s_mul_i32 s66, s33, 3'); a('s_add_u32 s39, s39, s66')
    a('s_cmp_ge_u32 s39, 12'); a('s_cselect_b32 s66, 12, 0'); a('s_sub_u32 s39, s39, s66')
else:
    a('s_lshl_b32 s39, s33, 1'); a('s_add_u32 s39, s39, s32'); a('s_mul_i32 s39, s39, 3'); a('s_lshr_b32 s39, s39, 2')
    a('s_cmp_ge_u32 s39, 6'); a('s_cselect_b32 s66, 6, 0'); a('s_sub_u32 s39, s39, s66')
if not P2ROT: a('s_mov_b32 s39, 0')
if P2ROT == 2: a('s_mul_i32 s39, s32, 3'); a('s_lshr_b32 s39, s39, 1')
if P2ROT == 3: a('s_mul_i32 s39, s33, 3')
if P2ROT == 4: a('s_add_u32 s39, s32, s33'); a('s_and_b32 s39, s39, 1'); a('s_mul_i32 s39, s39, 6')
if P2ROT == 5: a('s_and_b32 s39, s2, 7'); a('s_mul_i32 s39, s39, 3'); a(f's_lshr_b32 s39, s39, {1 if EARLY < 0 else 2}')
a('s_lshr_b32 s36, s42, 1'); a('s_and_b32 s37, s42, 1')
WSOFF = opt('wsoff', 0)
WSRD = 's[12:15]'; HSRD = 's[12:15]'
def common_srds(loader=False):
    a('s_waitcnt lgkmcnt(0)')
    tick(7, 50)
    srd(a, 12, 58, WS_SIZE, WSOFF << 20)
    if not loader:
        srd_from(4, 64, S*D*2)
        srd_from(16, 54, S*D*2)
        srd_from(20, 52, F*D*2)
        srd_from(24, 56, 256)
a('s_cmp_lt_u32 s3, 4')
a('s_cbranch_scc1 L_compute')
a('s_sub_u32 s44, s3, 4')
a('s_cmp_eq_u32 s44, 3')
a('s_cbranch_scc1 L_aux')

W0 = 5
PT_ = [20, 21, 22, 23, 24, 25, 26, 27, 4, 5, 6, 7, 16, 17, 18, 19]
GT_ = [66, 67, 68, 69, 76, 77, 78, 79, 96, 97, 100, 101, 40, 41, 42, 43]
GT_ = [66, 67, 68, 69, 76, 77, 78, 79, 28, 29, 30, 31, 40, 41, 33, 43]
def emit_p0(dst, t):
    a(f's_min_u32 s{t}, s30, 1'); a(f's_add_u32 s{dst}, s30, s{t}'); a(f's_mul_i32 s{t}, s31, 3'); a(f's_add_u32 s{dst}, s{dst}, s{t}')
    a(f's_cmp_ge_u32 s{dst}, 5'); a(f's_cselect_b32 s{t}, 5, 0'); a(f's_sub_u32 s{dst}, s{dst}, s{t}')
H0 = opt('h0', 12)
def dma_loop(name, npieces):
    h = npieces * H0 // 16
    def pieces1(lo, hi, pol):
        for t in range(lo, hi):
            a(f's_add_u32 m0, s{PT_[t]}, s46'); a('s_nop 0')
            a(f'buffer_load_dwordx4 v{4 + (t & 1)}, s[8:11], s{GT_[t]} offen {pol} lds')
    def pieces(lo, hi):
        if not NTM: return pieces1(lo, hi, RP)
        L = a.label('L_pc')
        a('s_bitcmp1_b32 s50, s47'); a(f's_cbranch_scc1 {L}_n')
        pieces1(lo, hi, ''); a(f's_branch {L}_e')
        a(f'{L}_n:'); pieces1(lo, hi, 'nt'); a(f'{L}_e:')
    a('s_mov_b32 s46, 0'); a('s_mov_b32 s47, 0')
    a('v_add_u32 v4, s42, v4'); a('v_add_u32 v5, s42, v5')
    tick(7, 51)
    if opt('uni', 0):
        pieces(0, h)
        a(f'{name}_l:')
        pieces(h, npieces)
        a('s_cmp_eq_u32 s47, 9'); a('s_cbranch_scc1 L_p2last')
        a('s_add_u32 s45, s45, 1'); a('s_cmp_eq_u32 s45, 10'); a('s_cselect_b32 s45, 0, s45')
        a('s_cselect_b32 s42, s49, s48')
        a('v_add_u32 v4, s42, v4'); a('v_add_u32 v5, s42, v5')
        a(f's_add_u32 s46, s46, {STG}'); a(f's_cmp_eq_u32 s46, {3*STG}'); a('s_cselect_b32 s46, 0, s46')
        pieces(0, h)
        a(f's_waitcnt vmcnt({h})')
        tick(7, ('s47', 0))
        a('s_barrier')
        tick(7, ('s47', 16))
        a('s_add_u32 s47, s47, 1'); a(f's_branch {name}_l')
        return
    a(f'{name}_l:')
    pieces(0, h)
    a('s_cmp_lg_u32 s47, 1'); a(f's_cbranch_scc1 {name}_m')
    a(f's_waitcnt vmcnt({h})')
    tick(7, 0)
    a('s_barrier')
    tick(7, 16)
    a(f'{name}_m:')
    pieces(h, npieces)
    a('s_add_u32 s45, s45, 1'); a('s_cmp_eq_u32 s45, 10'); a('s_cselect_b32 s45, 0, s45')
    a('s_cselect_b32 s42, s49, s48')
    a('s_mov_b32 s70, s48'); a('s_mov_b32 s48, s51'); a('s_mov_b32 s51, s70')
    a('v_add_u32 v4, s42, v4'); a('v_add_u32 v5, s42, v5')
    a(f's_add_u32 s46, s46, {STG}'); a(f's_cmp_eq_u32 s46, {3*STG}'); a('s_cselect_b32 s46, 0, s46')
    tick(7, ('s47', 52))
    a('s_cmp_lt_u32 s47, 2'); a(f's_cbranch_scc1 {name}_nx')
    a(f's_waitcnt vmcnt({npieces})')
    tick(7, ('s47', -1))
    a('s_barrier')
    tick(7, ('s47', 15))
    a('s_cmp_eq_u32 s47, 9'); a('s_cbranch_scc1 L_p2last')
    if TRK:
        a('s_sub_u32 s72, s47, 1'); a('s_call_b64 s[74:75], L_trk')
    a(f'{name}_nx:')
    a('s_add_u32 s47, s47, 1'); a(f's_branch {name}_l')

a('s_cmp_eq_u32 s44, 2')
a('s_cbranch_scc1 L_ldx')
a('s_cmp_eq_u32 s35, 1')
a('s_cbranch_scc1 L_ldc')
a('v_lshrrev_b32 v1, 4, v0')
a('v_and_b32 v2, 15, v0')
a('v_lshlrev_b32 v3, 1, v1')
a('v_xor_b32 v2, v2, v3')
a('v_lshlrev_b32 v2, 4, v2')
a(f'v_mul_u32_u24 v3, {F*2}, v1')
a('v_add_u32 v2, v2, v3')
a('s_lshl_b32 s70, s29, 8')
a('v_add_u32 v2, s70, v2')
a('s_and_b32 s70, s32, 1'); a('s_lshl_b32 s70, s70, 7')
a('v_xor_b32 v4, s70, v2')
a('v_xor_b32 v5, 128, v4')
a('s_lshl_b32 s70, s32, 11')
a('s_lshl_b32 s71, s44, 14')
for g in range(4):
    if g: a('s_add_u32 s70, s70, 2048'); a('s_and_b32 s70, s70, 0x3c00')
    a(f's_or_b32 s{PT_[4*g]}, s70, s71'); a(f's_mul_i32 s{GT_[4*g]}, s70, 12')
    a(f's_add_u32 s{PT_[4*g+2]}, s{PT_[4*g]}, 1024'); a(f's_add_u32 s{GT_[4*g+2]}, s{GT_[4*g]}, {4*F*2}')
    a('s_add_u32 s70, s70, 2048'); a('s_and_b32 s70, s70, 0x3c00')
    a(f's_or_b32 s{PT_[4*g+1]}, s70, s71'); a(f's_mul_i32 s{GT_[4*g+1]}, s70, 12')
    a(f's_add_u32 s{PT_[4*g+3]}, s{PT_[4*g+1]}, 1024'); a(f's_add_u32 s{GT_[4*g+3]}, s{GT_[4*g+1]}, {4*F*2}')
a('s_cmp_eq_u32 s44, 1')
a('s_waitcnt lgkmcnt(0)')
a('s_cselect_b32 s8, s50, s48'); a('s_cselect_b32 s9, s51, s49'); a(f's_mov_b32 s10, {D*F*2}'); a('s_mov_b32 s11, 0x00020000')
a(f's_mov_b32 s48, {64*F*2}'); a('s_mov_b32 s51, s48'); a('s_mov_b32 s45, s34'); a('s_mul_i32 s42, s34, s48'); a('s_mul_i32 s49, s48, -9')
if NTM: a(f's_mov_b32 s50, {NTM[0]}')
a('s_branch L_ld16')
a('L_ldx:')
if DF: emit_p0(71, 72)
a('v_lshrrev_b32 v1, 3, v0')
a('v_and_b32 v2, 7, v0')
a('v_lshrrev_b32 v3, 1, v1')
a('v_xor_b32 v2, v2, v3')
a('v_lshlrev_b32 v2, 4, v2')
a('v_lshrrev_b32 v3, 2, v1'); a('v_and_b32 v6, 3, v1'); a('v_lshl_add_u32 v3, v6, 2, v3')
XMAP = opt('xmap', 0)
if XMAP == 0:
    a('v_lshlrev_b32 v3, 7, v3'); a('v_add_u32 v3, s28, v3')
elif XMAP == 1:
    a('v_lshlrev_b32 v3, 7, v3'); a('s_lshl_b32 s70, s28, 3'); a('v_add_u32 v3, s70, v3')
else:
    a('v_lshlrev_b32 v3, 3, v3'); a('s_lshl_b32 s70, s28, 7'); a('v_add_u32 v3, s70, v3')
a(f'v_mul_u32_u24 v3, {D*2}, v3')
a('v_add_u32 v4, v2, v3')
a('v_xor_b32 v5, 64, v4'); a(f'v_add_u32 v5, {(256 if XMAP < 2 else 16)*D*2}, v5')
a('s_lshl_b32 s70, s33, 12')
for t in range(0, 16, 2):
    if t: a('s_add_u32 s70, s70, 2048'); a('s_and_b32 s70, s70, 0x3c00')
    a(f's_or_b32 s{PT_[t]}, s70, 0x8000'); a(f's_or_b32 s{PT_[t+1]}, s70, 0x8400')
    if XMAP == 0: a(f's_mul_i32 s{GT_[t]}, s70, {16*D*2//2048}')
    else: a(f's_mul_i32 s{GT_[t]}, s70, 5'); a(f's_lshr_b32 s{GT_[t]}, s{GT_[t]}, 3')
    a(f's_mov_b32 s{GT_[t+1]}, s{GT_[t]}')
a('s_waitcnt lgkmcnt(0)')
srd_from(8, 64, S*D*2)
a('s_movk_i32 s48, 128'); a('s_movk_i32 s51, 128'); a('s_mov_b32 s45, s34'); a('s_lshl_b32 s42, s34, 7'); a('s_movk_i32 s49, -1152')
if DF:
    a('s_cmp_eq_u32 s35, 0'); a('s_cbranch_scc1 L_ld16')
    a('s_movk_i32 s48, 640'); a('s_movk_i32 s51, -512'); a('s_lshl_b32 s45, s71, 1'); a('s_lshl_b32 s42, s71, 7')
if NTM: a(f's_mov_b32 s50, {NTM[1]}')
a('L_ld16:')
dma_loop('L_ldw', 16)
a('L_ldc:')
a('v_lshrrev_b32 v1, 3, v0')
a('v_and_b32 v2, 7, v0')
a('v_lshrrev_b32 v3, 1, v1')
a('v_xor_b32 v2, v2, v3')
a('v_lshlrev_b32 v2, 4, v2')
if DF:
    emit_p0(45, 72)
    a('s_lshr_b32 s70, s30, 1'); a('s_mul_i32 s70, s70, 160'); a('s_and_b32 s71, s30, 1'); a('s_add_u32 s70, s70, s71'); a('s_add_u32 s70, s70, 1')
    a('v_lshlrev_b32 v1, 1, v1')
else:
    a('s_mul_i32 s70, s30, 80'); a('s_add_u32 s70, s70, 1')
a('v_add_u32 v1, s70, v1')
a(f'v_mul_u32_u24 v3, {D*2}, v1')
a('v_add_u32 v2, v2, v3')
a('s_and_b32 s70, s32, 1'); a('s_lshl_b32 s70, s70, 6')
a('v_xor_b32 v4, s70, v2')
a('v_xor_b32 v5, 64, v4')
a('s_lshl_b32 s70, s32, 10')
a('s_lshl_b32 s71, s44, 14')
for t in range(10):
    if t: a('s_add_u32 s70, s70, 1024'); a('s_cmp_eq_u32 s70, 10240'); a('s_cselect_b32 s70, 0, s70')
    a(f's_or_b32 s{PT_[t]}, s70, s71'); a(f's_mul_i32 s{GT_[t]}, s70, {(16 if DF else 8)*D*2//1024}')
a('s_cmp_eq_u32 s44, 1')
a('s_waitcnt lgkmcnt(0)')
a('s_cselect_b32 s8, s62, s60'); a('s_cselect_b32 s9, s63, s61'); a(f's_mov_b32 s10, {D*D*2}'); a('s_mov_b32 s11, 0x00020000')
if not DF:
    a('s_movk_i32 s48, 128'); a('s_movk_i32 s51, 128'); a('s_mov_b32 s45, s34'); a('s_lshl_b32 s42, s34, 7'); a('s_movk_i32 s49, -1152')
    if NTM: a(f's_mov_b32 s50, {NTM[0]}')
    dma_loop('L_ldcl', 10)
else:
    a('s_lshl_b32 s42, s45, 7'); a('v_add_u32 v4, s42, v4'); a('v_add_u32 v5, s42, v5')
    a(f's_mov_b32 s46, {STG}'); a('s_mov_b32 s47, 1')
    a('L_ldcl:')
    for t in range(10):
        a(f's_add_u32 m0, s{PT_[t]}, s46'); a('s_nop 0')
        a(f'buffer_load_dwordx4 v{4 + (t & 1)}, s[8:11], s{GT_[t]} offen lds')
    a('s_add_u32 s45, s45, 1'); a('s_cmp_eq_u32 s45, 5'); a('s_cselect_b32 s45, 0, s45')
    a('s_movk_i32 s42, 128'); a('s_cselect_b32 s42, -512, s42')
    a('v_add_u32 v4, s42, v4'); a('v_add_u32 v5, s42, v5')
    a(f's_sub_u32 s46, s46, {STG}'); a(f's_cselect_b32 s46, {2*STG}, s46')
    a('s_barrier')
    a('s_cmp_eq_u32 s47, 9'); a('s_cbranch_scc1 L_p2last')
    a('s_waitcnt vmcnt(0)')
    if TRK: a('s_sub_u32 s72, s47, 1'); a('s_call_b64 s[74:75], L_trk')
    a('s_barrier')
    if TRK: a('s_mov_b32 s72, s47'); a('s_call_b64 s[74:75], L_trk')
    a('s_add_u32 s47, s47, 2'); a('s_branch L_ldcl')

P2ACC = 176; P2W_R = 56; P2H = 8
def p2_setup():
    a('v_lshlrev_b32 v1, 4, v0')
    srd(a, 12, 58, WS_SIZE, WSOFF << 20)
    a('s_mul_i32 s70, s38, 48'); a('s_mul_i32 s71, s44, 12'); a('s_add_u32 s70, s70, s71')
    a(f's_mul_i32 s70, s70, 5120'); a(f's_add_u32 s70, s70, {WS_WDT}')
    a(f's_mul_i32 s73, s44, {P2W}')
def kidx(step):
    if EARLY < 0:
        a(f's_add_u32 s72, s39, {step}'); a('s_cmp_ge_u32 s72, 12'); a('s_cselect_b32 s71, 12, 0'); a('s_sub_u32 s72, s72, s71')
    else:
        a(f's_add_u32 s72, s39, {step % 6}'); a('s_cmp_ge_u32 s72, 6'); a('s_cselect_b32 s71, 6, 0'); a('s_sub_u32 s72, s72, s71')
        a('s_lshl_b32 s72, s72, 1')
        if (step >= 6) != bool(HALF): a('s_add_u32 s72, s72, 1')
def wdt_reg(step):
    kidx(step)
    a('s_mul_i32 s72, s72, 5120'); a('s_add_u32 s72, s72, s70')
    for ei in range(5):
        r = P2W_R + 20*step + 4*ei
        if ei == 4: a('s_add_u32 s72, s72, 4096')
        a(f'buffer_load_dwordx4 v[{r}:{r+3}], v1, {WSRD}, s72 offen offset:{(ei % 4)*1024} {LDW}')
def wdt_lds(step):
    kidx(step)
    a('s_mul_i32 s72, s72, 5120'); a('s_add_u32 s72, s72, s70')
    for ei in range(5):
        a(f's_add_u32 m0, s73, {P2STEP[step-6] + ei*1024}')
        if ei: a('s_add_u32 s72, s72, 1024')
        else: a('s_nop 0')
        a(f'buffer_load_dwordx4 v1, {WSRD}, s72 offen {LDW} lds')
WD = [[0, 1], [2, 3], [4, 5], []]
def read_nonce(v):
    a(f'v_mov_b32 v{v}, {L_NON}'); a(f'ds_read_b32 v{v}, v{v}'); a('s_waitcnt lgkmcnt(0)'); a(f'v_readfirstlane_b32 s43, v{v}')
def final_addr(tau_off, d4, d5, d11, t, a=a):
    v4, v5, v6, v7, v8, v9, v10 = d4, d5, t, t+1, t+2, t+3, t+4
    a('s_lshl_b32 s66, s3, 6'); a(f's_add_u32 s66, s66, {tau_off}')
    a(f'v_add_u32 v{v4}, s66, v0')
    a(f'v_mul_u32_u24 v{v5}, 6554, v{v4}'); a(f'v_lshrrev_b32 v{v5}, 16, v{v5}')
    a(f'v_mul_u32_u24 v{v6}, 10, v{v5}'); a(f'v_sub_u32 v{v6}, v{v4}, v{v6}')
    a(f'v_lshrrev_b32 v{v7}, 4, v{v5}'); a(f'v_and_b32 v{v5}, 15, v{v5}')
    a(f'v_lshrrev_b32 v{v9}, 1, v{v6}')
    a(f'v_mov_b32 v{v10}, {PT[0]}'); a(f'v_mov_b32 v{d11}, {ST[0]}')
    for e in range(1, 5):
        a(f'v_cmp_eq_u32 vcc, {e}, v{v9}'); a(f'v_mov_b32 v{t+5}, {PT[e]}'); a(f'v_mov_b32 v{t+6}, {ST[e]}')
        a(f'v_cndmask_b32 v{v10}, v{v10}, v{t+5}, vcc'); a(f'v_cndmask_b32 v{d11}, v{d11}, v{t+6}, vcc')
    a(f'v_and_b32 v{v8}, 1, v{v6}'); a(f'v_mul_u32_u24 v{v4}, {2*PQ}, v{v8}')
    a(f'v_mul_u32_u24 v{v8}, {PN}, v{v7}'); a(f'v_add_u32 v{v4}, v{v4}, v{v8}'); a(f'v_lshl_add_u32 v{v4}, v{v5}, 4, v{v4}')
    a(f'v_add_u32 v{d11}, v{d11}, v{v4}'); a(f'v_add_u32 v{v4}, v{v10}, v{v4}')
    a(f'v_lshrrev_b32 v{v8}, 2, v{v5}'); a(f'v_and_b32 v{v5}, 3, v{v5}'); a(f'v_lshl_add_u32 v{v5}, v{v5}, 2, v{v8}')
    a(f'v_lshlrev_b32 v{v5}, 3, v{v5}'); a(f'v_add_u32 v{v5}, v{v5}, v{v7}'); a(f'v_lshlrev_b32 v{v5}, 4, v{v5}')
    a('s_lshl_b32 s66, s37, 6'); a('s_add_u32 s66, s66, s36'); a(f'v_add_u32 v{v5}, s66, v{v5}')
    a(f'v_mul_u32_u24 v{v5}, {D*2}, v{v5}'); a(f'v_lshl_add_u32 v{v5}, v{v6}, 4, v{v5}'); a('s_mul_i32 s66, s38, 160'); a(f'v_add_u32 v{v5}, s66, v{v5}')

VB0, VB1 = 128, 144
def p2h_setup():
    a('s_cmp_ge_u32 s38, 4'); a('s_cselect_b32 s55, 1, 0')
    a('s_sub_u32 s67, 16, s36'); a('s_xor_b32 s68, s37, 1')
    a('s_cmp_eq_u32 s55, 1')
    a('s_cselect_b32 s67, s67, s36'); a('s_cselect_b32 s68, s68, s37')
    a('s_and_b32 s60, s67, 3'); a('s_lshl_b32 s60, s60, 7'); a(f's_add_u32 s60, s60, {WS_FV}')
    a('s_lshl_b32 s67, s67, 1'); a('s_add_u32 s67, s67, s68'); a(f's_mul_i32 s67, s67, {VROW}'); a(f's_add_u32 s56, s67, {WS_V}')
    a('s_lshl_b32 s57, s55, 9'); a('s_sub_u32 s57, 256, s57')
def fv_addr(v, t):
    if DF:
        a(f'v_lshrrev_b32 v{v}, 4, v0'); a(f'v_lshlrev_b32 v{v}, 9, v{v}'); a(f'v_and_b32 v{t}, 15, v0'); a(f'v_lshl_add_u32 v{v}, v{t}, 2, v{v}')
        return
    a('s_sub_u32 s66, 7, s38'); a('s_sub_u32 s67, s38, 1'); a('s_max_i32 s67, s67, 0')
    a('s_cmp_ge_u32 s38, 4'); a('s_cselect_b32 s67, s66, s67'); a('s_cselect_b32 s66, s66, s38')
    a(f'v_mov_b32 v{v}, s66'); a(f'v_mov_b32 v{t}, s67'); a(f'v_bfe_u32 v{t+1}, v0, 4, 1'); a(f'v_cmp_eq_u32 vcc, 0, v{t+1}'); a(f'v_and_b32 v{t+1}, 15, v0')
    a(f'v_cndmask_b32 v{v}, v{t}, v{v}, vcc'); a(f'v_lshlrev_b32 v{v}, 9, v{v}'); a(f'v_lshl_add_u32 v{v}, v{t+1}, 2, v{v}')
def pre_loop():
    for r in range(3):
        final_addr(256*r, FA[3*r], FA[3*r+1], FA[3*r+2], 40)
    a('s_cmp_ge_u32 s3, 2'); a('s_cselect_b32 s66, -1, 0'); a(f'v_or_b32 v{FA[7]}, s66, v{FA[7]}')
    fv_addr(VFL, 40)
    if DF:
        for dst, ei in ((VA0, 's3'), (VA4, '4')):
            a('s_mul_i32 s66, s38, 80'); a(f's_lshl_b32 s67, {ei}, 4'); a('s_add_u32 s66, s66, s67'); a('v_add_u32 v40, s66, v3')
            a('v_sub_u32 v41, 640, v40'); a('s_cmp_eq_u32 s55, 1'); a('s_cselect_b64 vcc, -1, 0'); a('s_nop 1')
            a('v_cndmask_b32 v40, v40, v41, vcc')
            a('v_and_b32 v41, 1, v40'); a('v_mul_u32_u24 v41, 160, v41'); a('v_add_u32 v42, 335, v40'); a('v_lshrrev_b32 v42, 1, v42'); a('v_sub_u32 v42, v42, v41')
            a('v_cmp_eq_u32 vcc, 0, v40'); a(f'v_mul_u32_u24 v43, {4*17*2*VROW}, v2'); a('s_nop 0')
            a('v_cndmask_b32 v42, v42, 7, vcc')
            a(f'v_lshl_add_u32 v{dst}, v42, 4, v43')
        return
    a('s_mul_i32 s66, s38, 80'); a('v_add_u32 v40, s66, v3')
    a('v_add_u32 v41, 7, v40'); a('v_sub_u32 v42, 647, v40')
    a('s_cmp_eq_u32 s55, 1'); a('s_cselect_b64 vcc, -1, 0')
    a(f'v_mul_u32_u24 v43, {4*17*2*VROW}, v2')
    a('v_cndmask_b32 v40, v41, v42, vcc')
    a('v_lshl_add_u32 v43, v40, 4, v43')
    a('s_mul_i32 s66, s3, s57'); a(f'v_add_u32 v{VA0}, s66, v43')
    a('s_lshl_b32 s66, s57, 2'); a(f'v_add_u32 v{VA4}, s66, v43')
def pre_epilogue():
    for r in range(3): a(f'buffer_load_dwordx4 v[{XR[r]}:{XR[r]+3}], v{FA[3*r+1]}, s[4:7], 0 offen {XP_}')
def v_loads():
    L = a.label('L_vl')
    a('s_mov_b32 s72, s56')
    for i in range(4):
        a(f'buffer_load_dwordx4 v[{VB0+4*i}:{VB0+3+4*i}], v{VA0}, s[12:15], s72 offen {LDH}')
        if i < 3: a(f's_add_u32 s72, s72, {17*2*VROW}')
    a('s_cmp_lg_u32 s3, 0'); a(f's_cbranch_scc1 {L}')
    a('s_mov_b32 s72, s56')
    for i in range(4):
        a(f'buffer_load_dwordx4 v[{VB1+4*i}:{VB1+3+4*i}], v{VA4}, s[12:15], s72 offen {LDH}')
        if i < 3: a(f's_add_u32 s72, s72, {17*2*VROW}')
    a(f'{L}:')

if TRK:
    a('L_trk:')
    a('s_add_u32 s71, s72, s35')
    a('s_cmp_lt_u32 s71, 5'); a('s_cbranch_scc1 L_trk_r')
    a('s_cmp_gt_u32 s71, 7'); a('s_cbranch_scc1 L_trk_r')
    a('s_mul_i32 s72, s35, 3'); a('s_add_u32 s57, s71, s72')
    p2_setup()
    for i in range(6):
        a(f's_cmp_lg_u32 s57, {5 + i}'); a(f's_cbranch_scc1 L_trk{i}')
        for st in (TF + TD_)[i]: wdt_reg(st)
        a(f'L_trk{i}:')
    a('L_trk_r:')
    a('s_setpc_b64 s[74:75]')
a('L_p2last:')
a('s_waitcnt vmcnt(0)')
lds_arrive(12, 2)
read_nonce(2)
p2_setup()
srd_from(16, 54, S*D*2)
if FWL: lds_wait('L_fwok', 44, 2, 1)
a('L_p2join:')
tick(7, 27)
NLATE = opt('nlate', 6)
WTOUCH = opt('wtouch', 0)
if WTOUCH:
    a('s_cmp_eq_u32 s35, 0'); a('s_cbranch_scc1 L_nwt')
    a('s_lshl_b32 s66, s32, 2'); a('s_add_u32 s66, s66, s44'); a('s_mul_i32 s66, s66, 23040')
    a('s_and_b32 s67, s38, 4'); a(f's_mul_i32 s67, s67, {48*5120}'); a('s_add_u32 s66, s66, s67'); a(f's_add_u32 s66, s66, {WS_WDT}')
    a('v_lshlrev_b32 v4, 7, v0')
    if WTOUCH == 2:
        for st in range(6): wdt_reg(st)
    for i in range(3):
        a(f'buffer_load_dword v8, v4, s[12:15], s66 offen {LDW}')
        if i < 2: a('s_add_u32 s66, s66, 8192')
    if WTOUCH == 2: a('s_branch L_p2d')
    a('L_nwt:')
if TRK:
    a('s_cmp_eq_u32 s35, 1'); a('s_cbranch_scc1 L_trkd')
    for st in range(6):
        if not any(st in w for w in TF): wdt_reg(st)
    a('L_trkd:')
else:
    for st in range(6): wdt_reg(st)
NLD = opt('nld', 2)
a('s_cmp_eq_u32 s35, 0')
a('s_cbranch_scc1 L_p2ffn')
if NLD < 6:
    for st in (6, 7): wdt_lds(st)
if NLD < 4:
    lds_wait('L_c8d', 16, 4)
    for st in (8, 9): wdt_lds(st)
a('s_branch L_p2d')
a('L_p2ffn:')
if NLATE < 6:
    for st in (6, 7): wdt_lds(st)
if NLATE < 4:
    lds_wait('L_c8', 16, 4)
    for st in (8, 9): wdt_lds(st)
if NLATE < 2:
    lds_wait('L_c9', 20, 4)
    for st in (10, 11): wdt_lds(st)
if AUXV:
    a('s_cmp_lg_u32 s44, 3'); a('s_cbranch_scc1 L_p2d')
    p2h_setup(); fv_addr(8, 9)
    a('s_mov_b32 s79, 0')
    a('L_av:')
    a('buffer_load_dword v9, v8, s[12:15], s60 offen sc1')
    a('s_waitcnt vmcnt(0)')
    a('v_cmp_ne_u32 vcc, s43, v9'); a('s_cmp_eq_u64 vcc, 0'); a('s_cbranch_scc1 L_av_ok')
    a('s_add_u32 s79, s79, 1'); a(f's_cmp_ge_u32 s79, {AUXV}'); a('s_cbranch_scc1 L_p2d')
    a('s_branch L_av')
    a('L_av_ok:')
    lds_arrive(28, 8)
a('L_p2d:')
tick(7, 28)
a(f'v_add_u32 v2, s73, v1')
a(f'v_add_u32 v3, {2*STG}, v2')
a('v_min_u32 v4, 5, v0'); a('v_lshrrev_b32 v5, 1, v4'); a('v_and_b32 v4, 1, v4'); a('v_lshlrev_b32 v4, 2, v4'); a('v_lshl_add_u32 v6, v5, 4, v4')
a('s_lshl_b32 s76, s36, 8'); a('s_mul_i32 s77, s44, 48'); a('s_add_u32 s76, s76, s77'); a('s_lshl_b32 s77, s37, 3'); a('s_add_u32 s76, s76, s77'); a(f's_add_u32 s76, s76, {WS_FH}')
a('s_lshl_b32 s74, s36, 3'); a('s_lshl_b32 s75, s37, 2'); a('s_add_u32 s74, s74, s75')
a('s_mul_i32 s74, s74, 48'); a('s_mul_i32 s75, s44, 12'); a('s_add_u32 s74, s74, s75'); a('s_lshl_b32 s74, s74, 10')
for i in range(80): a(f'v_mov_b32 v{P2ACC+i}, 0')
if DGO:
    a('s_cmp_eq_u32 s35, 0'); a('s_cbranch_scc1 L_ownf')
    lds_wait('L_ownz', 8 if DGO == 1 else 56, 4); lds_wait('L_ownr', 48, 4, 1)
    a('s_branch L_ownd')
    a('L_ownf:')
    a('s_barrier')
    a('L_ownd:')
else: a('s_barrier') if CBAR else lds_wait('L_own', 0, 4, 5 if SENT else 4)
tick(7, 29)
stamp(2)
if TONE:
    a('s_cmp_eq_u32 s35, 0'); a('s_cbranch_scc1 L_p2f')
    for st in range(6, 12 - NLATE): wdt_lds(st)
    a('L_p2f:')
    for st in range(12 - NLATE, 12): wdt_lds(st)
    if HDLY: a(f's_sleep {HDLY}')

tick(7, 32)
def hsoff(step):
    kidx(step)
    a('s_lshl_b32 s72, s72, 10'); a(f's_add_u32 s72, s72, s74')
    if SENT: a(f's_mov_b32 s{66 + step % 4}, s72')
def hld(step, ni):
    r = P2H + 16*(step % 3) + 4*ni
    L = []
    if ni: L.append(f's_add_u32 s72, s72, {48*1024}')
    L.append(f'buffer_load_dwordx4 v[{r}:{r+3}], v1, {HSRD}, s72 offen {LDH}')
    return L
def hpoll(name, kp):
    spin_begin(name)
    a(f'buffer_load_dword v4, v6, s[12:15], s76 offen sc1')
    a('s_waitcnt vmcnt(0)')
    a(f'v_cmp_ne_u32 vcc, s43, v{4+kp}')
    a('s_cmp_eq_u64 vcc, 0')
    spin_end(name)
if not SENT: hpoll('L_pollh0', 0)
else: a('s_waitcnt vmcnt(0)'); a('s_mov_b32 s79, 0')
if VGO and not HF1:
    a(f'v_mov_b32 v4, {L_CNT}'); a('v_mov_b32 v5, 1'); a('ds_write_b32 v4, v5 offset:40')
stamp(3)
tick(7, 33)
for st in range(3):
    hsoff(st)
    for ni in range(4):
        for ins in hld(st, ni): a(ins)
if HF1: lds_arrive(40, 4)
def pwrite(ni):
    return [f'ds_write_b128 v{2 if PT[ei] < 2*STG else 3}, v[{P2ACC+16*ei+4*ni}:{P2ACC+16*ei+4*ni+3}] offset:{PT[ei] + ni*PN - (0 if PT[ei] < 2*STG else 2*STG)}' for ei in range(5)]
for st in range(12):
    rem = min(2, 11 - st)
    RDD = opt('rdd', 2)
    if st == 6 - RDD: lds_wait('L_lw', 36, 4)
    if st < 9: hsoff(st + 3)
    if st == 11:
        a('v_and_b32 v2, 15, v0'); a('v_lshrrev_b32 v4, 4, v0')
        a(f'v_mul_u32_u24 v4, {PQ}, v4'); a('v_lshl_add_u32 v2, v2, 4, v4'); a('v_add_u32 v2, s73, v2'); a(f'v_add_u32 v3, {2*STG}, v2')
    a(f's_waitcnt vmcnt({4*rem})' + (' lgkmcnt(0)' if st >= 6 else ''))
    hb = P2H + 16*(st % 3)
    if SENT and not (HALF and st >= 6):
        a(f'L_hchk{st}:')
        a(f'v_max_u32 v4, v{hb}, v{hb+4}'); a(f'v_max3_u32 v4, v{hb+8}, v{hb+12}, v4')
        a('v_cmp_eq_u32 vcc, -1, v4'); a('s_cmp_lg_u64 vcc, 0')
        a(f's_cbranch_scc1 L_hretry{st}')
        a(f'L_hok{st}:')
    tick(7, 36 + st)
    w0 = P2W_R + 20*(st % 6)
    rd = []
    if 6 <= st + RDD <= 11:
        wr = P2W_R + 20*((st + RDD) % 6)
        for ei in range(5):
            o = P2STEP[st + RDD - 6] + ei*1024
            rd.append(f'ds_read_b128 v[{wr+4*ei}:{wr+4*ei+3}], v{2 if o < 2*STG else 3} offset:{o if o < 2*STG else o - 2*STG}')
    if F8 and st == 10:
        final_addr(0, 8, 9, 10, 11, rd.append)
    for ni in range(4):
        for ei in (range(5) if ni % 2 == 0 else range(4, -1, -1)):
            t = P2ACC + 16*ei + 4*ni
            h = hb + 4*ni
            a(f'v_mfma_f32_16x16x32_bf16 v[{t}:{t+3}], v[{w0+4*ei}:{w0+4*ei+3}], v[{h}:{h+3}], v[{t}:{t+3}]')
            for _ in range(3 if st == 10 else 1):
                if rd: a(rd.pop(0))
        if st < 9:
            for ins in hld(st + 3, ni): a(ins)
        if st == 11 and ni >= 2:
            for w in pwrite(ni - 2): a(w)
for w in pwrite(2): a(w)
a('s_nop 3')
for w in pwrite(3): a(w)
stamp(4)
tick(7, 48)
a('s_waitcnt lgkmcnt(0)')
a('s_barrier')
if F8:
    for p in range(5):
        reg = (8, 8, 8, 8, 10)[p]; off = (0, P2W, 2*P2W, 3*P2W, 0)[p]
        a(f'ds_read_b128 v[{56+8*p}:{59+8*p}], v{reg} offset:{off}')
        a(f'ds_read_b128 v[{60+8*p}:{63+8*p}], v{reg} offset:{off+PQ}')
    for p in range(1, 5):
        a(f's_waitcnt lgkmcnt({8 - 2*p})')
        for d in range(0, 8, 2): a(f'v_pk_add_f32 v[{56+d}:{57+d}], v[{56+d}:{57+d}], v[{56+8*p+d}:{57+8*p+d}]')
    for d in range(4): a(f'v_cvt_pk_bf16_f32 v{64+d}, v{56+2*d}, v{57+2*d}')
    a(f'buffer_store_dwordx4 v[64:67], v9, s[16:19], 0 offen {OUTP}')
tick_dump(7, 4)
a('s_branch L_fin2')
if SENT:
    for st in range(6 if HALF else 12):
        a(f'L_hretry{st}:')
        a('s_add_u32 s79, s79, 1'); a(f's_cmp_ge_u32 s79, {SPINMAX}')
        if STAMPS: a(f's_cselect_b32 s101, {60 + st}, s101')
        a(f's_cbranch_scc1 L_hok{st}')
        if RSL: a(f's_sleep {RSL}')
        a(f's_mov_b32 s77, s{66 + st % 4}')
        for ni in range(4):
            r = P2H + 16*(st % 3) + 4*ni
            if ni: a(f's_add_u32 s77, s77, {48*1024}')
            a(f'buffer_load_dwordx4 v[{r}:{r+3}], v1, {HSRD}, s77 offen {LDH}')
        a('s_waitcnt vmcnt(0)')
        a(f's_branch L_hchk{st}')

a('L_aux:')
if opt('aprio', 0): a(f"s_setprio {opt('aprio', 0)}")
common_srds()
AB = 248
a('v_mov_b32 v1, 0'); a(f'v_mov_b32 v3, {L_CNT}')
a('s_mov_b64 exec, 1')
a('s_cmp_lg_u32 s2, 0'); a('s_cbranch_scc1 L_aux_n0')
a('s_memrealtime s[66:67]'); a('s_waitcnt lgkmcnt(0)'); a('s_or_b32 s66, s66, 1'); a('v_mov_b32 v2, s66')
a('buffer_store_dword v2, v1, s[24:27], 0 offen sc1')
a('L_aux_n0:')
[a(f'ds_write_b32 v3, v1 offset:{4*i}') for i in range(15)]
a('s_mov_b64 exec, -1')
if CODEPF:
    a('s_getpc_b64 s[66:67]')
    a('L_pcref:')
    a(f's_sub_u32 s66, s66, L_pcref-{KNAME}'); a('s_subb_u32 s67, s67, 0')
    a('s_mul_i32 s68, s41, 9')
    a('v_add_u32 v4, s68, v0'); a('v_lshlrev_b32 v4, 7, v4')
    a(f'v_min_u32 v4, L_done-{KNAME}, v4')
    a('s_mov_b64 exec, 0x1ff')
    a(f'global_load_dword v{AB+7}, v4, s[66:67]')
    a('s_mov_b64 exec, -1')
if PFW:
    pf_first, pf_n0 = map(int, PFW.split(','))
    a('v_lshrrev_b32 v14, 4, v0'); a('s_mul_i32 s66, s30, 3'); a('v_add_u32 v14, s66, v14'); a('v_lshlrev_b32 v14, 8, v14')
    a('v_bfe_u32 v15, v0, 1, 3'); a('s_lshl_b32 s66, s32, 3'); a('v_add_u32 v15, s66, v15'); a(f'v_mul_u32_u24 v15, {F*2}, v15'); a('v_add_u32 v14, v14, v15')
    a('v_and_b32 v15, 1, v0'); a('v_lshl_add_u32 v14, v15, 7, v14')
    srd(a, 8, 48, D*F*2); srd(a, 52, 50, D*F*2)
    a(f's_add_u32 s64, s34, {pf_first}'); a(f's_mov_b32 s61, {pf_first}')
    PFC = opts.get('pfc', '1111111')
    a(f's_mov_b32 s60, {sum(int(c) << (4*i) for i, c in enumerate(PFC))}')
    def pfw():
        L = a.label('L_pf')
        a('s_and_b32 s62, s60, 15'); a('s_lshr_b32 s60, s60, 4')
        a(f'{L}_n:')
        a('s_cmp_eq_u32 s62, 0'); a(f's_cbranch_scc1 {L}')
        pfw1(L)
        a('s_sub_u32 s62, s62, 1'); a(f's_branch {L}_n')
        a(f'{L}:')
    def pfw0():
        L = a.label('L_pf')
        pfw1(L)
        a(f'{L}:')
    def pfw1(L):
        a('s_cmp_eq_u32 s35, 0'); a(f's_cbranch_scc1 {L}')
        a(f"s_cmp_ge_u32 s61, {opt('pfl', 10)}"); a(f's_cbranch_scc1 {L}')
        a('s_cmp_ge_u32 s64, 10'); a('s_cselect_b32 s66, 10, 0'); a('s_sub_u32 s64, s64, s66'); a(f's_mul_i32 s66, s64, {64*F*2}')
        a('s_mov_b32 exec_hi, 0xffff')
        a(f'buffer_load_dword v15, v14, s[8:11], s66 offen {PFP}'); a(f'buffer_load_dword v15, v14, s[52:55], s66 offen {PFP}')
        a('s_mov_b64 exec, -1')
        a('s_add_u32 s64, s64, 1'); a('s_add_u32 s61, s61, 1')
    for _ in range(pf_n0): pfw0()
else:
    def pfw(): pass
def wda_load():
    a('v_lshrrev_b32 v4, 4, v0'); a('v_and_b32 v5, 15, v0')
    a(f'v_mul_u32_u24 v4, {D*2}, v4'); a('v_lshl_add_u32 v4, v5, 4, v4')
    a(f's_mul_i32 s68, s56, {32*D*2}'); a('s_lshl_b32 s69, s57, 8'); a('s_add_u32 s68, s68, s69')
    for i in range(8):
        a(f's_mov_b32 m0, {L_WD + i*1024}')
        if i: a(f's_add_u32 s68, s68, {4*D*2}')
        else: a('s_nop 0')
        a(f'buffer_load_dwordx4 v4, s[20:23], s68 offen {WP_} lds')
if WDA:
    wi, wj, wk = map(int, WDA.split(','))
    a(f's_mul_hi_u32 s56, s2, {-(-(1<<32)//5)}'); a('s_mul_i32 s57, s56, 5'); a('s_sub_u32 s57, s2, s57')
    if wi < 0:
        a('s_cmp_ge_u32 s2, 240'); a('s_cbranch_scc1 L_wda0'); wda_load(); a('L_wda0:')
for i in range(48, 56): a(f'v_mov_b32 v{i}, 0')
a('v_lshrrev_b32 v4, 2, v0'); a('v_and_b32 v5, 3, v4'); a('v_bfe_u32 v6, v4, 3, 1'); a('v_lshl_or_b32 v5, v6, 2, v5'); a('v_lshlrev_b32 v5, 1, v5')
a('s_and_b32 s66, s32, 3'); a('s_lshl_b32 s66, s66, 2')
a('v_and_b32 v6, 3, v0'); a('v_add_u32 v6, s66, v6'); a('v_xor_b32 v5, v5, v6')
a('v_lshlrev_b32 v4, 8, v4'); a(f'v_lshl_add_u32 v{AB+1}, v5, 4, v4')
a('s_lshr_b32 s66, s32, 2'); a('s_lshl_b32 s66, s66, 14'); a(f'v_add_u32 v{AB+1}, s66, v{AB+1}')
a('s_cmp_eq_u32 s35, 0'); a('s_cbranch_scc1 L_aux_w')
a('s_and_b32 s67, s32, 3'); a(f's_mul_i32 s67, s67, {20*128}'); a('s_add_u32 s66, s66, s67')
a(f'v_lshlrev_b32 v{AB+1}, 4, v0'); a(f'v_add_u32 v{AB+1}, s66, v{AB+1}')
a('L_aux_w:')
a('s_mov_b32 s46, 0')
a('s_lshl_b32 s77, s29, 1'); a('s_add_u32 s77, s77, s31'); a('s_lshl_b32 s77, s77, 11'); a('s_lshr_b32 s67, s32, 2'); a('s_lshl_b32 s67, s67, 10'); a('s_add_u32 s77, s77, s67'); a(f's_add_u32 s77, s77, {WS_WP}')
a('s_and_b32 s67, s32, 3'); a('s_cmp_eq_u32 s35, 1'); a('s_cselect_b32 s68, 20, 32'); a('s_mul_i32 s67, s67, s68'); a('s_lshl_b32 s67, s67, 3'); a('s_add_u32 s77, s77, s67')
a(f'v_min_u32 v{AB+6}, 47, v0'); a(f'v_lshlrev_b32 v{AB+6}, 2, v{AB+6}')
a('s_mul_i32 s74, s38, 80'); a('s_add_u32 s75, s74, 79'); a('s_lshr_b32 s74, s74, 7'); a('s_lshr_b32 s75, s75, 7')
a('s_lshl_b32 s74, s74, 8'); a('s_lshl_b32 s75, s75, 8'); a(f's_add_u32 s74, s74, {WS_FW}'); a(f's_add_u32 s75, s75, {WS_FW}')
if SENT:
    for i in range(4): a(f'v_mov_b32 v{8+i}, -1')
    a('v_lshlrev_b32 v12, 4, v0')
    a(f's_mul_i32 s76, s28, {8*48*1024}')
    if RDFT: a('s_mul_i32 s67, s30, 12288')
    else: a('s_lshl_b32 s67, s29, 12')
    a('s_add_u32 s76, s76, s67')
a('s_mov_b32 s47, 0'); a('s_mov_b32 s42, 0')
a('s_waitcnt lgkmcnt(0)')
a('L_aux_l:')
tick(7, ('s47', 0))
a('s_barrier')
tick(7, ('s47', 16))
pfw()
a(f'v_add_u32 v{AB+3}, s46, v{AB+1}')
a('s_add_u32 s66, s47, s35') if opt('non2', 0) else a('s_add_u32 s66, s47, 1')
a(f's_cmp_lg_u32 s47, {NONIT-1}'); a('s_cbranch_scc1 L_aux_nb')
a('s_mov_b64 exec, 1'); a('buffer_load_dword v2, v1, s[24:27], 0 offen sc1'); a('s_mov_b64 exec, -1')
a('L_aux_nb:')
a(f's_cmp_lg_u32 s66, {NONIT+1}'); a('s_cbranch_scc1 L_aux_na')
a('s_mov_b32 s79, 0')
a('L_non:')
a('s_waitcnt vmcnt(0)')
a('v_readfirstlane_b32 s43, v2')
a('s_cmp_lg_u32 s43, 0'); a('s_cbranch_scc1 L_non_ok')
a('s_add_u32 s79, s79, 1'); a(f's_cmp_ge_u32 s79, {SPINMAX}'); (a('s_cselect_b32 s101, 51, s101') if STAMPS else None); a('s_cbranch_scc1 L_non_ok')
a('s_sleep 4')
a('s_mov_b64 exec, 1'); a('buffer_load_dword v2, v1, s[24:27], 0 offen sc1'); a('s_mov_b64 exec, -1')
a('s_branch L_non')
a('L_non_ok:')
a('v_mov_b32 v2, s43'); a(f'v_mov_b32 v3, {L_NON}'); a('ds_write_b32 v3, v2')
if not WDA:
    a('s_cmp_ge_u32 s2, 240'); a('s_cbranch_scc1 L_aux_na')
    a(f's_mul_hi_u32 s66, s2, {-(-(1<<32)//5)}'); a('s_mul_i32 s67, s66, 5'); a('s_sub_u32 s67, s2, s67')
    a('s_lshl_b32 s67, s67, 8'); a('s_lshl_b32 s66, s66, 2'); a('s_add_u32 s66, s66, s67'); a(f's_add_u32 s66, s66, {WS_FW}')
    a('s_mov_b64 exec, 1'); a('buffer_store_dword v2, v1, s[12:15], s66 offen sc1'); a('s_mov_b64 exec, -1')
a('L_aux_na:')
if WDA:
    a('s_cmp_ge_u32 s2, 240'); a('s_cbranch_scc1 L_aux_nw')
    if wi >= 0:
        a(f's_cmp_lg_u32 s47, {wi}'); a('s_cbranch_scc1 L_aux_w1'); wda_load(); a('L_aux_w1:')
    a(f's_cmp_lg_u32 s47, {wj}'); a('s_cbranch_scc1 L_aux_w2')
    a('v_lshrrev_b32 v4, 2, v0'); a('v_lshlrev_b32 v4, 8, v4'); a('v_and_b32 v5, 3, v0'); a('v_lshl_add_u32 v4, v5, 3, v4')
    a(f'v_add_u32 v4, {L_WD}, v4')
    a('v_lshlrev_b32 v6, 4, v0')
    a('s_waitcnt vmcnt(0)')
    for e in range(8):
        for b in range(2):
            a(f'ds_read_b64_tr_b16 v[{64+4*e+2*b}:{65+4*e+2*b}], v4 offset:{32*e + 4096*b}')
    a('s_lshl_b32 s63, s57, 3')
    a(f's_mul_i32 s65, s56, 5120'); a(f's_add_u32 s65, s65, {WS_WDT}')
    a('s_waitcnt lgkmcnt(0)')
    for e in range(8):
        a(f's_add_u32 s68, s63, {e}')
        a(f's_mul_hi_u32 s69, s68, {-(-(1<<32)//5)}')
        a('s_mul_i32 s70, s69, 5'); a('s_sub_u32 s70, s68, s70')
        a(f's_mul_i32 s69, s69, {48*5120}'); a('s_lshl_b32 s70, s70, 10')
        a('s_add_u32 s69, s69, s70'); a('s_add_u32 s69, s69, s65')
        a(f'buffer_store_dwordx4 v[{64+4*e}:{67+4*e}], v6, s[12:15], s69 offen sc1')
    a('L_aux_w2:')
    a(f's_cmp_lg_u32 s47, {wk}'); a('s_cbranch_scc1 L_aux_nw')
    a('s_lshl_b32 s67, s57, 8'); a('s_lshl_b32 s66, s56, 2'); a('s_add_u32 s66, s66, s67'); a(f's_add_u32 s66, s66, {WS_FW}')
    a('s_waitcnt vmcnt(0)')
    a('s_mov_b64 exec, 1'); a('buffer_store_dword v2, v1, s[12:15], s66 offen sc1'); a('s_mov_b64 exec, -1')
    a('L_aux_nw:')
def fw_ask():
    a(f'buffer_load_dword v{AB+2}, v{AB+6}, s[12:15], s74 offen sc1'); a(f'buffer_load_dword v{AB+3}, v{AB+6}, s[12:15], s75 offen sc1')
def fw_ask2():
    a(f'buffer_load_dword v62, v{AB+6}, s[12:15], s74 offen sc1'); a(f'buffer_load_dword v63, v{AB+6}, s[12:15], s75 offen sc1')
def fw_check(nm):
    a('s_mov_b32 s79, 0')
    a(f'{nm}:')
    a('s_waitcnt vmcnt(0)')
    a('v_cmp_ne_u32 vcc, s43, v62'); a('v_cmp_ne_u32 s[66:67], s43, v63'); a('s_or_b64 vcc, vcc, s[66:67]')
    a(f's_cbranch_scc0 {nm}_ok')
    a('s_add_u32 s79, s79, 1'); a(f's_cmp_ge_u32 s79, {SPINMAX}'); (a('s_cselect_b32 s101, 52, s101') if STAMPS else None); a(f's_cbranch_scc1 {nm}_ok')
    a('s_sleep 4')
    fw_ask2()
    a(f's_branch {nm}')
    a(f'{nm}_ok:')

T0, T1 = AB + 4, AB + 5
if TRK:
    a('s_add_u32 s66, s47, s35')
    a('s_cmp_lg_u32 s66, 3'); a('s_cbranch_scc1 L_tk_a'); fw_ask2(); a('L_tk_a:')
if SENT:
    RS0 = opt('rs0', 2)
    def resets(n):
        L = a.label('L_rs')
        a(f's_cmp_eq_u32 s35, {0 if RDFT else 1}'); a(f's_cbranch_scc1 {L}')
        if RDFT:
            for t in range(n // 12):
                for g in range(3):
                    for i in ((1, 3) if HALF else range(4)): a(f'buffer_store_dwordx4 v[8:11], v12, s[12:15], s76 offen offset:{i*1024} sc1')
                    a(f's_add_u32 s76, s76, {4096 if g < 2 else 48*1024 - 8192}')
        else:
            for i in range(n):
                if not (HALF and i % 2 == 0): a(f'buffer_store_dwordx4 v[8:11], v12, s[12:15], s76 offen offset:{(i % 4)*1024} {RSP}')
                if i % 4 == 3: a(f's_add_u32 s76, s76, {48*1024}')
        a(f'{L}:')
    if RSEQ:
        assert sum(map(int, RSEQ)) == 8
        a(f's_lshr_b32 s63, {sum(int(c) << (4*i) for i, c in enumerate(RSEQ[:5]))}, s42'); a('s_and_b32 s63, s63, 15'); a('s_add_u32 s42, s42, 4')
        a('L_aux_rr:')
        a('s_cmp_eq_u32 s63, 0'); a('s_cbranch_scc1 L_aux_nr')
        resets(12)
        a('s_sub_u32 s63, s63, 1'); a('s_branch L_aux_rr')
    else:
        a(f's_cmp_lt_u32 s47, {RS0}'); a('s_cbranch_scc1 L_aux_nr')
        resets(12 if RDFT else 8)
    a('L_aux_nr:')
a('s_cmp_eq_u32 s35, 1'); a('s_cbranch_scc1 L_aux_c')
for i in range(4): a(f'ds_read_b128 v[{24+4*i}:{27+4*i}], v{AB+3} offset:{i*4096}')
a('s_waitcnt lgkmcnt(0)')
for i in range(4):
    for d in range(4):
        r = 24 + 4*i + d
        a(f'v_lshlrev_b32 v{T0}, 16, v{r}'); a(f'v_and_b32 v{T1}, 0xffff0000, v{r}')
        a(f'v_add_f32 v{48+2*d}, v{48+2*d}, v{T0}'); a(f'v_add_f32 v{49+2*d}, v{49+2*d}, v{T1}')
a('s_branch L_aux_x')
a('L_aux_c:')
if NOCS: a('s_branch L_aux_x')
if DF: a('s_bitcmp1_b32 s47, 0'); a('s_cbranch_scc0 L_aux_x')
def csum():
    for i in range(3): a(f'ds_read_b128 v[{24+4*i}:{27+4*i}], v{AB+3} offset:{i*1024}')
    a('s_waitcnt lgkmcnt(0)')
    for i in range(3):
        for d in range(4):
            r = 24 + 4*i + d
            a(f'v_lshlrev_b32 v{T0}, 16, v{r}'); a(f'v_and_b32 v{T1}, 0xffff0000, v{r}')
            a(f'v_add_f32 v{48+2*i}, v{48+2*i}, v{T0}'); a(f'v_add_f32 v{49+2*i}, v{49+2*i}, v{T1}')
if not NOCS: csum()
a('L_aux_x:')
if TRK:
    a('s_add_u32 s66, s47, s35')
    a('s_cmp_lg_u32 s66, 4'); a('s_cbranch_scc1 L_pollwt_ok')
    fw_check('L_pollwt')
    a('s_cmp_lg_u32 s47, 4'); a('s_cbranch_scc1 L_tk_c')
    a('s_mov_b32 s72, 4'); a('s_mov_b64 s[50:51], s[74:75]'); a('s_call_b64 s[74:75], L_trk'); a('s_mov_b64 s[74:75], s[50:51]')
    a('L_tk_c:')
a(f's_add_u32 s46, s46, {STG}'); a(f's_cmp_eq_u32 s46, {3*STG}'); a('s_cselect_b32 s46, 0, s46')
a('s_add_u32 s47, s47, 1'); a('s_cmp_lt_u32 s47, 5'); a('s_cbranch_scc1 L_aux_l')
def fr_pub():
    a('s_lshl_b32 s66, s28, 8'); a('s_lshl_b32 s67, s29, 2'); a('s_add_u32 s66, s66, s67'); a(f's_add_u32 s66, s66, {WS_FH}')
    a('v_mov_b32 v4, s43'); a('v_mov_b32 v5, 0')
    a('s_waitcnt vmcnt(0)')
    a('s_mov_b64 exec, 1'); a('buffer_store_dword v4, v5, s[12:15], s66 offen sc1'); a('s_mov_b64 exec, -1')
tick(7, 5)
a('s_barrier')
tick(7, 21)
if FRB == 5: fr_pub()
pfw()
if RSEQ: resets(12*int(RSEQ[5]))
elif RDFT: resets(12*(RS0 + 3 - (RS0 + 3)//2))
elif RS0 >= 2: resets(12 if RS0 == 4 else 8)
p2_setup()
def red8(regs):
    for mod in ('quad_perm:[1,0,3,2]', 'quad_perm:[2,3,0,1]', 'row_half_mirror'):
        a('s_nop 1')
        for r in regs: a(f'v_add_f32_dpp v{r}, v{r}, v{r} {mod} row_mask:0xf bank_mask:0xf')
a('s_cmp_eq_u32 s35, 1'); a('s_cbranch_scc1 L_aux_pc')
for mod in ('row_ror:4', 'row_ror:8'):
    a('s_nop 1')
    for r in range(48, 56): a(f'v_add_f32_dpp v{r}, v{r}, v{r} {mod} row_mask:0xf bank_mask:0xf')
for sw in ('v_permlane16_swap_b32', 'v_permlane32_swap_b32'):
    for r in range(48, 56): a(f'v_mov_b32 v{r-24}, v{r}')
    a('s_nop 1')
    for r in range(48, 56): a(f'{sw} v{r}, v{r-24}')
    a('s_nop 1')
    for r in range(48, 56): a(f'v_add_f32 v{r}, v{r}, v{r-24}')
for d in range(4):
    a(f'v_cmp_eq_u32 vcc, {d}, v6') if d else a('v_lshrrev_b32 v6, 2, v0')
    if d == 0:
        a('v_mov_b32 v24, v48'); a('v_mov_b32 v26, v49')
    else:
        a('s_nop 1'); a(f'v_cndmask_b32 v24, v24, v{48+2*d}, vcc'); a(f'v_cndmask_b32 v26, v26, v{49+2*d}, vcc')
a('v_mov_b32 v25, s43'); a('v_mov_b32 v27, s43')
a('v_and_b32 v4, 3, v0'); a('v_lshlrev_b32 v4, 6, v4'); a('v_lshl_add_u32 v4, v6, 4, v4')
a('s_mov_b64 exec, 0xffff')
a('buffer_store_dwordx4 v[24:27], v4, s[12:15], s77 offen sc1')
a('s_branch L_aux_pub')
a('L_aux_pc:')
if NOCS: a('s_branch L_aux_pub')
if not NOCS:
    if DF:
        a('s_cmp_eq_u32 s31, 1'); a('s_cbranch_scc1 L_aux_c5')
        a(f'v_add_u32 v{AB+3}, s46, v{AB+1}')
        csum()
        a('L_aux_c5:')
        a('s_and_b32 s66, s30, 1'); a('s_lshl_b32 s66, s66, 30')
    for i in range(3):
        a(f'v_add_f32 v{48+i*2}, v{48+i*2}, v{49+i*2}')
        if DF: a(f'v_mul_f32 v{48+i*2}, s66, v{48+i*2}')
    red8([48, 50, 52])
    for i in range(3): a(f'v_mov_b32 v{49+i*2}, s43')
    a('s_mov_b32 exec_lo, 0x01010101'); a('s_mov_b32 exec_hi, 0x01010101')
    a('buffer_store_dwordx2 v[48:49], v0, s[12:15], s77 offen sc1')
    a('buffer_store_dwordx2 v[50:51], v0, s[12:15], s77 offen offset:64 sc1')
    a('s_mov_b32 exec_hi, 0')
    a('buffer_store_dwordx2 v[52:53], v0, s[12:15], s77 offen offset:128 sc1')
a('L_aux_pub:')
a('s_mov_b64 exec, -1')
a('s_lshl_b32 s48, s28, 13'); a(f's_add_u32 s48, s48, {WS_XP}'); a('s_add_u32 s50, s48, 4096')
a('s_lshl_b32 s49, s29, 12'); a(f's_add_u32 s49, s49, {WS_WP}')
def gather():
    for i in range(8): a(f'buffer_load_dwordx4 v[{8+4*i}:{11+4*i}], v1, s[12:15], s{48 if i < 4 else 50} offen offset:{(i%4)*1024} sc1')
    Lg = a.label('L_gw')
    if NOCS: a('s_cmp_eq_u32 s35, 1'); a(f's_cbranch_scc1 {Lg}')
    for i in range(4): a(f'buffer_load_dwordx4 v[{40+4*i}:{43+4*i}], v1, s[12:15], s49 offen offset:{i*1024} sc1')
    a(f'{Lg}:')
    a(f'buffer_load_dword v{AB+1}, v{AB}, s[12:15], s65 offen sc1')
    if FWL: fw_ask2()
a(f's_mov_b32 s65, {WS_FH}')
if RDFT:
    a(f'v_and_b32 v{AB}, 3, v0'); a(f'v_lshlrev_b32 v{AB}, 2, v{AB}'); a('s_lshl_b32 s69, s36, 8'); a('s_add_u32 s69, s69, 48'); a(f'v_add_u32 v{AB}, s69, v{AB}')
    a('s_lshl_b32 s69, s28, 8'); a('s_lshl_b32 s63, s30, 2'); a('s_add_u32 s69, s69, s63'); a('s_add_u32 s69, s69, 48'); a('v_mov_b32 v4, s69')
    a('v_cmp_gt_u32 vcc, 16, v0'); a('s_nop 1'); a(f'v_cndmask_b32 v{AB}, v4, v{AB}, vcc')
else:
    a(f'v_min_u32 v{AB}, 11, v0'); a(f'v_lshlrev_b32 v{AB}, 2, v{AB}'); a('s_lshl_b32 s69, s36, 8'); a(f'v_add_u32 v{AB}, s69, v{AB}')
GAT = opt('gat', 8)
if TRK: a('s_mov_b32 s72, 5'); a('s_call_b64 s[74:75], L_trk')
tick(7, 6)
a('s_barrier')
tick(7, 22)
if FRB == 6: fr_pub()
pfw()
if RSEQ: resets(12*int(RSEQ[6]))
elif RDFT: resets(12*((RS0 + 3)//2))
elif RS0 >= 3: resets(12 if RS0 == 4 else 8)
if not FWL and not TRK: fw_ask2()
if GAT == 68:
    a('s_cmp_eq_u32 s35, 0'); a('s_cbranch_scc1 L_g6'); gather(); a('L_g6:')
if TRK: a('s_mov_b32 s72, 6'); a('s_call_b64 s[74:75], L_trk')
tick(7, 7)
a('s_barrier')
tick(7, 23)
if not FWL and not TRK: fw_check('L_pollwf')
elif FWL: a('s_waitcnt vmcnt(0)')
if FRB == 7: fr_pub()
if GAT == 7: gather()
if GAT == 78:
    a('s_cmp_eq_u32 s35, 0'); a('s_cbranch_scc1 L_g7'); gather(); a('L_g7:')
a('s_cmp_eq_u32 s35, 1'); a(f's_cselect_b32 s69, {0 if NOCS else 40}, 64'); a('v_cmp_gt_u32 s[76:77], s69, v0')
if GAT == 68: a('s_cmp_eq_u32 s35, 1'); a('s_cbranch_scc1 L_g8x')
if TRK: a('s_mov_b32 s72, 7'); a('s_call_b64 s[74:75], L_trk')
tick(7, 8)
a('s_barrier')
tick(7, 24)
if GAT in (8, 68): gather()
a('L_g8x:')
if GAT == 78:
    a('s_cmp_eq_u32 s35, 1'); a('s_cbranch_scc1 L_g8'); gather(); a('L_g8:')
a('s_mov_b32 s79, 0')
a('s_waitcnt vmcnt(0)')
if opt('gprio', 0): a('s_setprio 3')
a('L_gchk:')
a(f'v_xor_b32 v2, s43, v{AB+1}'); a('s_sub_u32 s64, s35, 1' if RDFT and not FRSEP else 's_mov_b32 s64, 0'); a('v_and_b32 v2, s64, v2')
for i in range(0, 8): a(f'v_xor_b32 v3, s43, v{10+4*i}'); a('v_or_b32 v2, v2, v3')
a('v_xor_b32 v4, s43, v41')
for r in (43, 45, 47, 49, 51, 53, 55): a(f'v_xor_b32 v3, s43, v{r}'); a('v_or_b32 v4, v4, v3')
if FWL: a('v_xor_b32 v3, s43, v62'); a('v_or_b32 v2, v2, v3'); a('v_xor_b32 v3, s43, v63'); a('v_or_b32 v2, v2, v3')
a('v_cmp_ne_u32 vcc, 0, v4'); a('s_and_b64 s[62:63], vcc, s[76:77]')
a('v_cmp_ne_u32 vcc, 0, v2'); a('s_or_b64 s[62:63], s[62:63], vcc')
a('s_cbranch_scc0 L_gok')
a('s_add_u32 s79, s79, 1'); a(f's_cmp_ge_u32 s79, {SPINMAX}'); (a('s_cselect_b32 s101, 50, s101') if STAMPS else None); a('s_cbranch_scc1 L_gok')
a('s_sleep 4')
gather()
a('s_waitcnt vmcnt(0)')
a('s_branch L_gchk')
a('L_gok:')
if FWL: lds_arrive(44, 2)
tick(7, 9)
for h in range(2):
    for d in range(2):
        b = 8 + 4*h + d
        a(f'v_add_f32 v{b}, v{b}, v{b+8}'); a(f'v_add_f32 v{b+16}, v{b+16}, v{b+24}'); a(f'v_add_f32 v{b}, v{b}, v{b+16}')
    a(f'v_add_f32 v{40+4*h}, v{40+4*h}, v{48+4*h}'); a(f'v_add_f32 v{41+4*h}, v{42+4*h}, v{50+4*h}')
a('v_lshlrev_b32 v2, 3, v0'); a(f'v_add_u32 v2, {L_CS}, v2')
a('ds_write_b64 v2, v[40:41]'); a('ds_write_b64 v2, v[44:45] offset:512')
for (s_, q_, ro, mo) in ((8, 9, 16, 18), (12, 13, 17, 19)):
    a(f'v_mul_f32 v{mo}, {1.0/D!r}, v{s_}')
    a(f'v_mul_f32 v{q_}, {1.0/D!r}, v{q_}')
    a(f'v_fma_f32 v{q_}, -v{mo}, v{mo}, v{q_}')
    a(f'v_max_f32 v{q_}, 0, v{q_}')
    rbf(mo); rbf(q_)
    a(f'v_add_f32 v{q_}, 0x3727c5ac, v{q_}')
    rbf(q_)
    a(f'v_sqrt_f32 v{q_}, v{q_}'); a('s_nop 0')
    rbf(q_)
    a(f'v_rcp_f32 v{ro}, v{q_}')
    a(f'v_fmac_f32 v{s_}, {-float(D)!r}, v{mo}')
    a(f'v_mul_f32 v{s_}, v{s_}, v{ro}')
a('v_lshlrev_b32 v2, 2, v0'); a(f'v_add_u32 v2, {L_R}, v2')
a(f'ds_write_b32 v2, v8 offset:{L_A0 - L_R}'); a(f'ds_write_b32 v2, v12 offset:{L_A0 - L_R + 256}')
a('ds_write_b32 v2, v16'); a('ds_write_b32 v2, v17 offset:256'); a('ds_write_b32 v2, v18 offset:512'); a('ds_write_b32 v2, v19 offset:768')
lds_arrive(24, 2)
if opt('gprio', 0): a('s_setprio 0')
tick(7, 10)
if GAT == 68:
    a('s_cmp_eq_u32 s35, 0'); a('s_cbranch_scc1 L_g8y')
    a('s_barrier')
    a('L_g8y:')
a(f'v_cmp_ne_u32 vcc, s43, v{AB+1}'); a('s_cmp_eq_u64 vcc, 0'); a('s_cbranch_scc1 L_pollr_ok')
spin_begin('L_pollr')
a(f'buffer_load_dword v{AB+1}, v{AB}, s[12:15], s65 offen sc1')
a('s_waitcnt vmcnt(0)')
a(f'v_cmp_ne_u32 vcc, s43, v{AB+1}'); a('s_cmp_eq_u64 vcc, 0')
spin_end('L_pollr')
if not CBAR: lds_arrive(0, 2)
if RDFT and FRSEP: lds_arrive(48, 2)
if opt('aprio', 0): a('s_setprio 0')
a('s_branch L_p2join')

a('L_compute:')
common_srds()
a(f's_mov_b32 s50, {(-2*STG) & 0xffffffff}'); a(f's_mov_b32 s51, {STG}')
a('s_mov_b32 s46, 0'); a('s_mov_b32 s47, 0')
p2h_setup()
a('v_lshrrev_b32 v2, 4, v0')
a('v_and_b32 v3, 15, v0')
a('v_bfe_u32 v6, v0, 1, 3'); a('v_xor_b32 v6, v6, v2')
def wd_issue():
    Lw = a.label('L_nowd')
    a(f"s_cmp_ge_u32 s2, {0 if opt('nowd', 0) else 240}")
    a(f's_cbranch_scc1 {Lw}')
    a(f's_mul_hi_u32 s76, s2, {-(-(1<<32)//5)}'); a('s_mul_i32 s77, s76, 5'); a('s_sub_u32 s77, s2, s77')
    a('v_lshrrev_b32 v36, 2, v0'); a('v_and_b32 v37, 3, v0')
    a(f'v_mul_u32_u24 v38, {D*2}, v36'); a('v_lshl_add_u32 v38, v37, 4, v38')
    a(f's_mul_i32 s68, s76, {32*D*2}'); a('s_lshl_b32 s69, s77, 8'); a('s_add_u32 s68, s68, s69'); a('s_lshl_b32 s69, s3, 6'); a('s_add_u32 s68, s68, s69')
    a('s_lshl_b32 s70, s3, 11'); a(f's_add_u32 s70, s70, {L_WD}')
    a('s_mov_b32 m0, s70'); a('s_nop 0')
    a(f'buffer_load_dwordx4 v38, s[20:23], s68 offen {WP_} lds')
    a('s_add_u32 m0, s70, 1024'); a(f's_add_u32 s68, s68, {16*D*2}')
    a(f'buffer_load_dwordx4 v38, s[20:23], s68 offen {WP_} lds')
    a(f'{Lw}:')
WDL = opt('wdlate', 0) if not WDA else 9
if WDL == 0: wd_issue()
def wd_finish():
    if WDA: return
    if WDL == 2: wd_issue()
    L = a.label('L_wdf')
    a(f"s_cmp_ge_u32 s2, {0 if opt('nowd', 0) else 240}"); a(f's_cbranch_scc1 {L}')
    a('v_lshlrev_b32 v36, 6, v36'); a('v_lshl_add_u32 v36, v37, 3, v36'); a('v_add_u32 v36, s70, v36')
    a('v_lshlrev_b32 v37, 4, v0')
    a('s_lshl_b32 s77, s77, 3'); a('s_lshl_b32 s68, s3, 1'); a('s_add_u32 s77, s77, s68')
    a(f's_mul_i32 s76, s76, 5120'); a(f's_add_u32 s76, s76, {WS_WDT}')
    a('s_waitcnt vmcnt(0)')
    for e in range(2):
        for b in range(2):
            a(f'ds_read_b64_tr_b16 v[{48+4*e+2*b}:{49+4*e+2*b}], v36 offset:{32*e + 1024*b}')
    for e in range(2):
        a(f's_add_u32 s68, s77, {e}')
        a(f's_mul_hi_u32 s69, s68, {-(-(1<<32)//5)}')
        a('s_mul_i32 s70, s69, 5'); a('s_sub_u32 s70, s68, s70')
        a(f's_mul_i32 s69, s69, {48*5120}'); a('s_lshl_b32 s70, s70, 10')
        a('s_add_u32 s69, s69, s70'); a('s_add_u32 s69, s69, s76')
        a('s_waitcnt lgkmcnt(0)')
        a(f'buffer_store_dwordx4 v[{48+4*e}:{51+4*e}], v37, s[12:15], s69 offen sc1')
    a(f'{L}:')
pre_loop()
if WDL == 1: wd_issue()
a('s_cmp_eq_u32 s35, 1')
a('s_cbranch_scc1 L_dft')
def interleave(M, R):
    out = []; R = list(R)
    for m in M:
        out.append(m)
        if R: out.append(R.pop(0))
    return out + R
tails = []
def mid_sync(last):
    L = a.label('L_ms')
    a('s_cmp_ge_u32 s47, 8'); a(f's_cbranch_scc1 {L}_t')
    a('s_barrier')
    a(f'{L}_b:')
    tails.append((L, last))
CNTRD = 'ds_read2_b32 v[14:15], v6 offset0:3 offset1:6'
def emit_tails():
    for L, last in tails:
        a(f'{L}_t:')
        a('s_mov_b64 exec, 1')
        a('s_cmp_eq_u32 s47, 9'); a(f's_cbranch_scc1 {L}_9')
        a('ds_add_u32 v6, v5 offset:16')
        a('s_mov_b64 exec, -1')
        a('v_readfirstlane_b32 s78, v14')
        a('s_cmp_ge_u32 s78, 3'); a(f's_cbranch_scc1 {L}_b')
        lds_wait(f'{L}_w', 12, 14, 3)
        a(f's_branch {L}_b')
        a(f'{L}_9:')
        a('ds_add_u32 v6, v5 offset:20')
        a('s_mov_b64 exec, -1')
        a(f's_branch {last}')
    tails.clear()
def stats_wait(name):
    a('v_readfirstlane_b32 s78, v15')
    a('s_cmp_ge_u32 s78, 1'); a(f's_cbranch_scc1 {name}_ok')
    lds_wait(name, 24, 14, 1)
def slot_advance():
    a('s_add_u32 s46, s46, 1'); a('s_cmp_eq_u32 s46, 3'); a('s_cselect_b32 s42, s50, s51'); a('s_cselect_b32 s46, 0, s46')
ACC = 128
def T16(mat, mi, ni): return ACC + 64*mat + 16*mi + 4*ni
FR = 32
def fW(p, mat, mi): return FR + 48*p + 16*mat + 4*mi
def fX(p, ni): return FR + 48*p + 32 + 4*ni
AW, AX = 8, 12
a('s_and_b32 s44, s3, 1'); a('s_lshr_b32 s45, s3, 1')
SPF = opts.get('spf', '')
if SPF:
    a('s_load_dwordx4 s[80:83], s[0:1], 48') if STAMPS == 0 else a('s_load_dwordx4 s[72:75], s[0:1], 48')
    wb = 80 if STAMPS == 0 else 72
    a('s_waitcnt lgkmcnt(0)')
    a('s_cmp_ge_u32 s3, 2'); a('s_cbranch_scc1 L_spx')
    a('s_cmp_eq_u32 s3, 1'); a(f's_cselect_b32 s62, s{wb+2}, s{wb}'); a(f's_cselect_b32 s63, s{wb+3}, s{wb+1}')
    a(f's_mul_i32 s66, s32, {8*F*2}'); a('s_lshl_b32 s67, s29, 8'); a('s_add_u32 s66, s66, s67'); a('s_add_u32 s62, s62, s66'); a('s_addc_u32 s63, s63, 0')
    for dc in map(int, SPF.split(',')):
        a(f's_add_u32 s66, s34, {dc}'); a('s_cmp_ge_u32 s66, 10'); a('s_cselect_b32 s67, 10, 0'); a('s_sub_u32 s66, s66, s67'); a(f's_mul_i32 s66, s66, {64*F*2}')
        a('s_add_u32 s52, s62, s66'); a('s_addc_u32 s53, s63, 0')
        for i in range(16): a(f's_load_dword s54, s[52:53], {(i >> 1)*F*2 + (i & 1)*128}')
    a('s_branch L_spd')
    a('L_spx:')
    a('s_lshl_b32 s66, s33, 1'); a('s_add_u32 s66, s66, s44'); a('s_lshl_b32 s66, s66, 4'); a('s_add_u32 s66, s66, s28'); a(f's_mul_i32 s66, s66, {D*2}')
    a(f's_add_u32 s66, s66, {4*128*D*2}'); a('s_add_u32 s62, s64, s66'); a('s_addc_u32 s63, s65, 0')
    for dc in map(int, SPF.split(',')):
        a(f's_add_u32 s66, s34, {dc}'); a('s_cmp_ge_u32 s66, 10'); a('s_cselect_b32 s67, 10, 0'); a('s_sub_u32 s66, s66, s67'); a('s_lshl_b32 s66, s66, 7')
        a('s_add_u32 s52, s62, s66'); a('s_addc_u32 s53, s63, 0')
        for i in range(8): a(f's_load_dword s54, s[52:53], {(i-4)*128*D*2}')
        a(f's_add_u32 s52, s52, {8*128*D*2}'); a('s_addc_u32 s53, s53, 0')
        for i in range(8): a(f's_load_dword s54, s[52:53], {(i-4)*128*D*2}')
    a('L_spd:')
a('v_bfe_u32 v7, v0, 2, 2')
a('v_lshl_add_u32 v4, v2, 3, v7'); a('v_lshlrev_b32 v4, 8, v4')
a('v_bfe_u32 v5, v0, 1, 1'); a('v_lshl_add_u32 v4, v5, 4, v4')
a('v_and_b32 v5, 1, v0'); a('v_lshl_add_u32 v4, v5, 3, v4')
a('v_and_b32 v5, 1, v2'); a('v_lshl_or_b32 v5, v5, 2, v7')
for mi in range(4):
    a('s_lshl_b32 s66, s44, 2'); a(f's_add_u32 s66, s66, {mi}')
    a('v_xor_b32 v7, s66, v5')
    a(f'v_lshl_add_u32 v{AW+mi}, v7, 5, v4')
a('s_lshl_b32 s66, s45, 13'); a('s_add_u32 s66, s66, 32768')
a('v_lshlrev_b32 v5, 7, v3'); a('v_add_u32 v5, s66, v5')
for ks in range(2):
    a(f'v_xor_b32 v7, {4*ks}, v6')
    a(f'v_lshl_add_u32 v{AX+ks}, v7, 4, v5')
for i in range(128): a(f'v_mov_b32 v{ACC+i}, 0')
def f_reads(p, ks):
    L = []
    def w(mat, mi):
        for b in range(2):
            L.append(f'ds_read_b64_tr_b16 v[{fW(p,mat,mi)+2*b}:{fW(p,mat,mi)+2*b+1}], v{AW+mi} offset:{mat*16384 + ks*8192 + b*1024}')
    w(0, 0)
    for ni in range(4): L.append(f'ds_read_b128 v[{fX(p,ni)}:{fX(p,ni)+3}], v{AX+ks} offset:{ni*2048}')
    for mat in range(2):
        for mi in range(4):
            if (mat, mi) != (0, 0): w(mat, mi)
    return L
def f_mfmas(p):
    L = []
    for i, (mat, mi) in enumerate([(mat, mi) for mat in range(2) for mi in range(4)]):
        for ni in (range(4) if i % 2 == 0 else range(3, -1, -1)):
            t = T16(mat, mi, ni)
            L.append(f'v_mfma_f32_16x16x32_bf16 v[{t}:{t+3}], v[{fW(p,mat,mi)}:{fW(p,mat,mi)+3}], v[{fX(p,ni)}:{fX(p,ni)+3}], v[{t}:{t+3}]')
    return L
wd_finish()
a('v_mov_b32 v5, 1'); a(f'v_mov_b32 v6, {L_CNT}')
tick(7, 0)
a('s_barrier')
tick(7, 16)
stamp(1)
for r in f_reads(0, 0): a(r)
a('L_floop:')
a('s_waitcnt lgkmcnt(0)')
UPD = ['s_add_u32 s46, s46, 1', 's_cmp_eq_u32 s46, 3', 's_cselect_b32 s42, s50, s51', 's_cselect_b32 s46, 0, s46'] + [f'v_add_u32 v{r}, s42, v{r}' for r in (AW, AW+1, AW+2, AW+3, AX, AX+1)]
for ins in interleave(f_mfmas(0), f_reads(1, 1) + [CNTRD] + UPD): a(ins)
a('s_waitcnt vmcnt(0) lgkmcnt(0)')
tick(7, ('s47', 1))
mid_sync('L_flast')
if opts.get('diag', '').startswith('k'):
    a(f"s_cmp_lg_u32 s47, {int(opts['diag'][1:])}"); a('s_cbranch_scc1 L_dk'); a('s_memrealtime s[96:97]'); a('L_dk:')
tick(7, ('s47', 17))
for ins in interleave(f_mfmas(1), f_reads(0, 0) + ['s_add_u32 s47, s47, 1']): a(ins)
a('s_branch L_floop')
if opt('inl', 1): emit_tails()
a('L_flast:')
pre_epilogue()
if opts.get('diag') == 'w': a('s_memrealtime s[96:97]')
stats_wait('L_fst')
if opts.get('diag') == 'w': a('s_memrealtime s[98:99]')
tick(7, 40)
CSB = 48
P = []
P += ['s_lshl_b32 s66, s45, 8', f's_add_u32 s66, s66, {L_R}', 'v_lshlrev_b32 v4, 2, v3', 'v_add_u32 v4, s66, v4']
for ni in range(4):
    P += [f'ds_read_b32 v{40+ni}, v4 offset:{64*ni}', f'ds_read_b32 v{44+ni}, v4 offset:{512 + 64*ni}']
P += [f'v_mov_b32 v10, {L_CNT}', 'ds_read_b32 v8, v10 offset:32', 'ds_read_b32 v11, v10 offset:48']
P += ['s_lshl_b32 s66, s44, 8', f's_add_u32 s66, s66, {L_CS}', 'v_lshlrev_b32 v5, 4, v2', 'v_add_u32 v5, s66, v5']
for mat in range(2):
    for mi in range(4):
        r = CSB + 16*mat + 4*mi
        P.append(f'ds_read_b128 v[{r}:{r+3}], v5 offset:{mat*512 + mi*64}')
P += ['v_lshlrev_b32 v1, 4, v0', 'v_mov_b32 v9, 0']
P += ['s_lshl_b32 s66, s28, 3', 's_lshl_b32 s67, s45, 2', 's_add_u32 s66, s66, s67', 's_mul_i32 s66, s66, 48',
      's_lshl_b32 s67, s29, 2', 's_add_u32 s66, s66, s67', 's_lshl_b32 s67, s44, 1', 's_add_u32 s66, s66, s67', 's_lshl_b32 s66, s66, 10']
P += ['s_lshl_b32 s70, s28, 8', 's_lshl_b32 s71, s29, 4', 's_add_u32 s70, s70, s71', 's_lshl_b32 s71, s3, 2', 's_add_u32 s70, s70, s71', f's_add_u32 s70, s70, {WS_FH}']
M = f_mfmas(1)
for i, m in enumerate(M):
    a(m)
    for _ in range(2):
        if P: a(P.pop(0))
for x_ in P: a(x_)
stamp(2)
a('s_waitcnt lgkmcnt(0)')
a('v_readfirstlane_b32 s43, v8')
for ni in range(4):
    c = 80 + 6*ni
    a(f'v_sub_f32 v{c}, 0, v{44+ni}')
    a(f'v_mul_f32 v{c+2}, {-1.4426950408889634!r}, v{40+ni}')
    a(f'v_mul_f32 v{c+4}, v{40+ni}, v{40+ni}')
for ni in range(4): a(f'v_rcp_f32 v{84+6*ni}, v{84+6*ni}')
tick(7, 42)
BC = 'op_sel_hi:[1,0,1]'
for ni in range(1, 4): a(f's_add_u32 s{66+ni}, s{65+ni}, {48*1024}')
for kp in range(2):
    for ni in range(4):
        if kp == 1 and ni == VCHK - 1: a('ds_read_b32 v11, v10 offset:28')
        if kp == 1 and ni == VCHK:
            a('s_waitcnt lgkmcnt(0)'); a('v_readfirstlane_b32 s79, v11')
            a('s_cmp_lg_u32 s79, 1'); a('s_cbranch_scc1 L_fnov')
            v_loads()
            a('L_fnov:')
        c = 80 + 6*ni
        prs = [(2*kp + h, d) for h in range(2) for d in (0, 2)]
        G_ = [T16(0, mi, ni) + d for mi, d in prs]; U_ = [T16(1, mi, ni) + d for mi, d in prs]
        for n, (mi, d) in enumerate(prs): a(f'v_pk_fma_f32 v[{G_[n]}:{G_[n]+1}], v[{CSB+4*mi+d}:{CSB+1+4*mi+d}], v[{c}:{c+1}], v[{G_[n]}:{G_[n]+1}] {BC}')
        for n, (mi, d) in enumerate(prs): a(f'v_pk_fma_f32 v[{U_[n]}:{U_[n]+1}], v[{CSB+16+4*mi+d}:{CSB+17+4*mi+d}], v[{c}:{c+1}], v[{U_[n]}:{U_[n]+1}] {BC}')
        for n in range(4): a(f'v_pk_mul_f32 v[{104+2*n}:{105+2*n}], v[{G_[n]}:{G_[n]+1}], v[{c+2}:{c+3}] op_sel_hi:[1,0]')
        for n in range(4): a(f'v_pk_mul_f32 v[{G_[n]}:{G_[n]+1}], v[{G_[n]}:{G_[n]+1}], v[{U_[n]}:{U_[n]+1}]')
        for n in range(8): a(f'v_exp_f32 v{104+n}, v{104+n}')
        a('s_nop 0')
        for n in range(4): a(f'v_pk_fma_f32 v[{104+2*n}:{105+2*n}], v[{104+2*n}:{105+2*n}], v[{c+4}:{c+5}], v[{c+4}:{c+5}] op_sel_hi:[1,0,0]')
        for n in range(8): a(f'v_rcp_f32 v{104+n}, v{104+n}')
        a('s_nop 0')
        o = 112 + 4*ni
        for n in range(4): a(f'v_pk_mul_f32 v[{G_[n]}:{G_[n]+1}], v[{G_[n]}:{G_[n]+1}], v[{104+2*n}:{105+2*n}]')
        for n in range(4): a(f'v_cvt_pk_bf16_f32 v{o+n}, v{G_[n]}, v{G_[n]+1}')
        if RDFT and FRSEP and kp == 0 and ni == 0:
            if opts.get('diag') == 'f': a('s_memrealtime s[96:97]')
            a('v_readfirstlane_b32 s78, v11'); a('s_cmp_ge_u32 s78, 1'); a('s_cbranch_scc1 L_frw_ok')
            lds_wait('L_frw', 48, 14, 1)
            if opts.get('diag') == 'f': a('s_memrealtime s[98:99]')
        if HALF and kp == 1 and ni == 3: a('s_waitcnt vmcnt(3)')
        a(f'buffer_store_dwordx4 v[{o}:{o+3}], v1, s[12:15], s{66+ni} offen offset:{kp*1024} {STP}')
        if 4*kp + ni == EARLY:
            a('v_mov_b32 v12, 1'); a('s_mov_b64 exec, 1'); a('ds_add_u32 v10, v12'); a('s_mov_b64 exec, -1')
        tick(7, 43 + 4*kp + ni)
tick(7, 32)
stamp(3)
if TONE: lds_arrive(0, 4)
else: a('s_waitcnt vmcnt(0)')
if not SENT:
    a('s_mov_b64 exec, 1'); a('buffer_store_dword v8, v9, s[12:15], s70 offen sc1'); a('s_mov_b64 exec, -1')
if VCHK == 4:
    a('s_waitcnt lgkmcnt(0)'); a('v_readfirstlane_b32 s79, v11')
    a('s_cmp_lg_u32 s79, 1'); a('s_cbranch_scc1 L_fnov')
    v_loads()
    a('L_fnov:')
tick_dump(7, 4)
a('s_branch L_helper')

a('L_dft:')
DACC = 176
def TD(part, mi, et): return DACC + 40*part + 20*mi + 4*et
DFR = 40
def dX(p, mi): return DFR + 48*p + 4*mi
def dC(p, part, et): return DFR + 48*p + 8 + 20*part + 4*et
DX, DC = 8, 10
FCOS, FSIN, FNS = 136, 144, 152
a('v_lshlrev_b32 v5, 7, v3')
a('s_lshl_b32 s66, s3, 12'); a('s_add_u32 s66, s66, 32768')
for ks in range(2):
    a(f'v_xor_b32 v7, {4*ks}, v6')
    a(f'v_lshl_add_u32 v{DC+ks}, v7, 4, v5')
    a(f'v_add_u32 v{DX+ks}, s66, v{DC+ks}')
for i in range(80): a(f'v_mov_b32 v{DACC+i}, 0')
if DF:
    for i in list(range(104, 136)) + list(range(160, 176)): a(f'v_mov_b32 v{i}, 0')
if DF:
    a('s_cmp_eq_u32 s30, 0'); a('s_cselect_b32 s45, 4, 2')
    a('s_bitcmp1_b32 s30, 0'); a('s_cselect_b32 s53, 1.0, -1.0')
else:
    a('s_and_b32 s45, s30, 1'); a('s_sub_u32 s45, 3, s45')
a('v_lshrrev_b32 v12, 3, v3'); a('v_and_b32 v13, 7, v3'); a('v_lshlrev_b32 v13, 4, v13'); a('v_lshl_add_u32 v12, v12, 2, v13'); a('v_add_u32 v12, s3, v12')
a('v_lshlrev_b32 v13, 5, v2'); a('v_add_u32 v13, s28, v13'); a('v_cvt_f32_u32 v13, v13')
for mt in range(2):
    a(f'v_add_u32 v14, {8*mt}, v12'); a('v_cvt_f32_u32 v14, v14'); a(f'v_mul_f32 v14, {1.0/2048!r}, v14')
    for d in range(4):
        for h in range(2):
            a(f'v_add_f32 v{60+h}, {float(16*h + 128*d)!r}, v13')
            a(f'v_mul_f32 v{60+h}, v{60+h}, v14')
        a('v_cos_f32 v62, v60'); a('v_cos_f32 v63, v61'); a('v_sin_f32 v64, v60'); a('v_sin_f32 v65, v61')
        a(f'v_cvt_pk_bf16_f32 v{FCOS+4*mt+d}, v62, v63')
        a(f'v_cvt_pk_bf16_f32 v{FSIN+4*mt+d}, v64, v65')
        a(f'v_xor_b32 v{FNS+4*mt+d}, 0x80008000, v{FSIN+4*mt+d}')
def d_reads(p, ks):
    L = [f'ds_read_b128 v[{dX(p,mi)}:{dX(p,mi)+3}], v{DX+ks} offset:{mi*2048}' for mi in range(2)]
    for part in range(2):
        for et in range(5):
            L.append(f'ds_read_b128 v[{dC(p,part,et)}:{dC(p,part,et)+3}], v{DC+ks} offset:{part*16384 + et*2048}')
    return L
def d_mfmas(p):
    L = []
    i = 0
    for part in range(2):
        for et in range(5):
            for mi in ((0, 1) if i % 2 == 0 else (1, 0)):
                t = TD(part, mi, et)
                L.append(f'v_mfma_f32_16x16x32_bf16 v[{t}:{t+3}], v[{dX(p,mi)}:{dX(p,mi)+3}], v[{dC(p,part,et)}:{dC(p,part,et)+3}], v[{t}:{t+3}]')
            i += 1
    return L
wd_finish()
a('v_mov_b32 v5, 1'); a(f'v_mov_b32 v6, {L_CNT}')
for i in range(32, 36): a(f'v_mov_b32 v{i}, 0')
tick(7, 0)
a('s_barrier')
tick(7, 16)
stamp(1)
if DF:
    for ks in range(2):
        for mi in range(2): a(f'ds_read_b128 v[{40+8*ks+4*mi}:{43+8*ks+4*mi}], v{DX+ks} offset:{mi*2048}')
else:
    for r in d_reads(0, 0): a(r)
if not DF:
    def xstat(p):
        L = []
        for mi in range(2):
            for d in range(4):
                r = dX(p, mi) + d; t = 36 + 2*(d & 1)
                L += [f'v_lshlrev_b32 v{t}, 16, v{r}', f'v_and_b32 v{t+1}, 0xffff0000, v{r}',
                      f'v_add_f32 v{32+2*mi}, v{32+2*mi}, v{t}', f'v_fmac_f32 v{33+2*mi}, v{t}, v{t}',
                      f'v_add_f32 v{32+2*mi}, v{32+2*mi}, v{t+1}', f'v_fmac_f32 v{33+2*mi}, v{t+1}, v{t+1}']
        return L
    def interleave2(M, R, per):
        out = []; R = list(R)
        for m in M:
            out.append(m)
            for _ in range(per):
                if R: out.append(R.pop(0))
        return out + R
    def dloop(name, stats):
        a(f'{name}:')
        a('s_waitcnt lgkmcnt(0)')
        for ins in interleave2(d_mfmas(0), d_reads(1, 1) + (xstat(0) if stats else [CNTRD]), 3 if stats else 1): a(ins)
        a('s_waitcnt vmcnt(0) lgkmcnt(0)' if stats else 's_waitcnt lgkmcnt(0)')
        tick(7, ('s47', 1))
        if stats: a('s_barrier')
        else: mid_sync('L_dlast')
        tick(7, ('s47', 17))
        slot_advance()
        for r in (DX, DC): a(f'v_add_u32 v{r}, s42, v{r}')
        R = d_reads(0, 0) + [f'v_add_u32 v{r}, s42, v{r}' for r in (DX+1, DC+1)]
        for ins in interleave2(d_mfmas(1), R + (xstat(1) if stats else []), 3 if stats else 1): a(ins)
        a('s_add_u32 s47, s47, 1')
        if stats: a('s_cmp_lt_u32 s47, s45'); a(f's_cbranch_scc1 {name}')
        else: a(f's_branch {name}')
    dloop('L_dloopA', True)
else:
    def interleave2(M, R, per):
        out = []; R = list(R)
        for m in M:
            out.append(m)
            for _ in range(per):
                if R: out.append(R.pop(0))
        return out + R
    XA = [40, 48]; XB = [56, 104]
    CF = [[64 + 4*i for i in range(10)], [112 + 4*i for i in range(6)] + [160 + 4*i for i in range(4)]]
    def xa_reads(): return [f'ds_read_b128 v[{XA[ks]+4*mi}:{XA[ks]+4*mi+3}], v{DX+ks} offset:{mi*2048}' for ks in range(2) for mi in range(2)]
    def xb_reads(ks): return [f'ds_read_b128 v[{XB[ks]+4*mi}:{XB[ks]+4*mi+3}], v{DX+ks} offset:{mi*2048}' for mi in range(2)]
    def c_reads(ks): return [f'ds_read_b128 v[{CF[ks][5*part+et]}:{CF[ks][5*part+et]+3}], v{DC+ks} offset:{part*16384 + et*2048}' for part in range(2) for et in range(5)]
    def fold(ks, stats):
        L = []
        for mi in range(2):
            for d in range(4):
                ra = XA[ks] + 4*mi + d; rb = XB[ks] + 4*mi + d; sm, sq = 32 + 2*mi, 33 + 2*mi
                L += [f'v_lshlrev_b32 v36, 16, v{ra}', f'v_and_b32 v37, 0xffff0000, v{ra}', f'v_lshlrev_b32 v38, 16, v{rb}', f'v_and_b32 v39, 0xffff0000, v{rb}']
                if stats:
                    for t in (36, 37, 38, 39): L += [f'v_add_f32 v{sm}, v{sm}, v{t}', f'v_fmac_f32 v{sq}, v{t}, v{t}']
                L += [f'v_add_f32 v36, v{28+mi}, v36', f'v_add_f32 v37, v{28+mi}, v37']
                L += ['v_fmac_f32 v36, s53, v38', 'v_fmac_f32 v37, s53, v39', f'v_cvt_pk_bf16_f32 v{rb}, v36, v37']
        return L
    def f2_mfmas(ks):
        L = []
        for i in range(10):
            part, et = divmod(i, 5)
            for mi in ((0, 1) if i % 2 == 0 else (1, 0)):
                t = TD(part, mi, et); x = XB[ks] + 4*mi; c = CF[ks][i]
                L.append(f'v_mfma_f32_16x16x32_bf16 v[{t}:{t+3}], v[{x}:{x+3}], v[{c}:{c+3}], v[{t}:{t+3}]')
        return L
    DUPD = ['s_add_u32 s46, s46, 1', 's_cmp_eq_u32 s46, 3', 's_cselect_b32 s42, s50, s51', 's_cselect_b32 s46, 0, s46'] + [f'v_add_u32 v{r}, s42, v{r}' for r in (DX, DX+1, DC, DC+1)]
    def dloop3(name, stats):
        M1 = f2_mfmas(1); M0 = f2_mfmas(0)
        a(f'{name}:')
        for ins in interleave2(M1[:6], DUPD, 2): a(ins)
        a('s_waitcnt vmcnt(0) lgkmcnt(0)' if stats else 's_waitcnt lgkmcnt(0)')
        tick(7, ('s47', 1))
        if stats: a('s_barrier')
        else: mid_sync('L_dlast')
        tick(7, ('s47', 17))
        for ins in interleave2(M1[6:10], xb_reads(0) + c_reads(0) + ['s_add_u32 s47, s47, 1'], 3): a(ins)
        a('s_waitcnt lgkmcnt(10)')
        for ins in interleave2(M1[10:], fold(0, stats), 5): a(ins)
        a('s_waitcnt lgkmcnt(0)')
        a('s_nop 0')
        for ins in interleave2(M0[:7], xb_reads(1) + c_reads(1) + ([] if stats else [CNTRD]), 2): a(ins)
        a(f's_waitcnt lgkmcnt({10 if stats else 11})')
        for ins in interleave2(M0[7:], fold(1, stats) + DUPD, 5): a(ins)
        a('s_waitcnt lgkmcnt(0)')
        tick(7, ('s47', 1))
        if stats: a('s_barrier')
        else: mid_sync('L_dlast')
        tick(7, ('s47', 17))
        a('s_add_u32 s47, s47, 1')
        for ins in xa_reads() + ([] if stats else [CNTRD]): a(ins)
        if stats: a('s_cmp_lt_u32 s47, s45'); a(f's_cbranch_scc1 {name}')
        else: a(f's_branch {name}')
    def dloop2(name, stats):
        if opt('dp', 1): return dloop3(name, stats)
        a(f'{name}:')
        for ins in DUPD: a(ins)
        a('s_waitcnt vmcnt(0) lgkmcnt(0)' if stats else 's_waitcnt lgkmcnt(0)')
        tick(7, ('s47', 1))
        if stats: a('s_barrier')
        else: mid_sync('L_dlast')
        tick(7, ('s47', 17))
        a('s_add_u32 s47, s47, 1')
        for ins in xb_reads(0) + xb_reads(1) + c_reads(0): a(ins)
        a('s_waitcnt lgkmcnt(12)')
        for ins in fold(0, stats): a(ins)
        a('s_waitcnt lgkmcnt(0)')
        a('s_nop 0')
        for ins in interleave2(f2_mfmas(0), c_reads(1) + ([] if stats else [CNTRD]) + fold(1, stats) + DUPD, 3): a(ins)
        a('s_waitcnt lgkmcnt(0)')
        tick(7, ('s47', 1))
        if stats: a('s_barrier')
        else: mid_sync('L_dlast')
        tick(7, ('s47', 17))
        a('s_add_u32 s47, s47, 1')
        for ins in interleave2(f2_mfmas(1), xa_reads() + ([] if stats else [CNTRD]), 1): a(ins)
        if stats: a('s_cmp_lt_u32 s47, s45'); a(f's_cbranch_scc1 {name}')
        else: a(f's_branch {name}')
    a('s_waitcnt lgkmcnt(0)')
    for mi in range(2):
        for d in range(4):
            r = XA[0] + 4*mi + d
            a(f'v_lshlrev_b32 v36, 16, v{r}'); a(f'v_and_b32 v37, 0xffff0000, v{r}')
            if d == 0: a(f'v_add_f32 v{28+mi}, v36, v37')
            else: a(f'v_add_f32 v{28+mi}, v{28+mi}, v36'); a(f'v_add_f32 v{28+mi}, v{28+mi}, v37')
    for sw in ('v_permlane16_swap_b32', 'v_permlane32_swap_b32'):
        for mi in range(2): a(f'v_mov_b32 v{36+mi}, v{28+mi}')
        a('s_nop 1')
        for mi in range(2): a(f'{sw} v{28+mi}, v{36+mi}')
        a('s_nop 1')
        for mi in range(2): a(f'v_add_f32 v{28+mi}, v{28+mi}, v{36+mi}')
    a('s_bitcmp1_b32 s30, 0'); a(f's_cselect_b32 s66, 0x3d000000, 0')
    a('s_lshl_b32 s67, s3, 7'); a(f's_add_u32 s67, s67, {L_CH}'); a('v_lshlrev_b32 v38, 2, v3'); a('v_add_u32 v38, s67, v38')
    for mi in range(2):
        a(f'v_mul_f32 v{36+mi}, s66, v{28+mi}'); a(f'v_mul_f32 v{28+mi}, -2.0, v{36+mi}')
        if not NOCS: a(f'ds_write_b32 v38, v{36+mi} offset:{64*mi}')
    dloop2('L_dloopA', True)
a(f'v_mov_b32 v36, {L_NON}'); a('ds_read_b32 v14, v36')
for sw in ('v_permlane16_swap_b32', 'v_permlane32_swap_b32'):
    for r in range(32, 36): a(f'v_mov_b32 v{r+4}, v{r}')
    a('s_nop 1')
    for r in range(32, 36): a(f'{sw} v{r}, v{r+4}')
    a('s_nop 1')
    for r in range(32, 36): a(f'v_add_f32 v{r}, v{r}, v{r+4}')
a('s_lshl_b32 s66, s28, 2'); a('s_add_u32 s66, s66, s30'); a('s_lshl_b32 s66, s66, 11'); a('s_lshl_b32 s67, s3, 9'); a('s_add_u32 s66, s66, s67'); a(f's_add_u32 s66, s66, {WS_XP}')
a('v_cmp_gt_u32 vcc, 16, v0'); a('v_lshlrev_b32 v38, 4, v0')
a('s_waitcnt lgkmcnt(0)')
a('v_cndmask_b32 v12, v34, v32, vcc'); a('v_cndmask_b32 v13, v35, v33, vcc'); a('v_mov_b32 v15, v14')
a('v_readfirstlane_b32 s43, v14')
a('s_mov_b32 exec_hi, 0')
a('buffer_store_dwordx4 v[12:15], v38, s[12:15], s66 offen sc1')
a('s_mov_b64 exec, -1')
a('s_nop 0')
dloop2('L_dloopB', False) if DF else dloop('L_dloopB', False)
if opt('inl', 1): emit_tails()
a('L_dlast:')
pre_epilogue()
stats_wait('L_dst')
tick(7, 40)
DP = []
DP.append('s_lshl_b32 s66, s3, 7'); DP.append(f's_add_u32 s66, s66, {L_R}')
DP.append('v_lshlrev_b32 v4, 4, v2'); DP.append('v_add_u32 v4, s66, v4')
for mi in range(2):
    DP.append(f'ds_read_b128 v[{40+4*mi}:{43+4*mi}], v4 offset:{64*mi}')
    if not NOCS: DP.append(f'ds_read_b128 v[{48+4*mi}:{51+4*mi}], v4 offset:{512 + 64*mi}')
    DP.append(f'ds_read_b128 v[{76+4*mi}:{79+4*mi}], v4 offset:{L_A0 - L_R + 64*mi}')
    if DF and not NOCS: DP.append(f'ds_read_b128 v[{84+4*mi}:{87+4*mi}], v4 offset:{L_CH - L_R + 64*mi}')
DP.append('v_lshlrev_b32 v5, 2, v3'); DP.append(f'v_add_u32 v5, {L_CS}, v5')
for part in range(2):
    for et in range(0 if NOCS else 5): DP.append(f'ds_read_b32 v{56+2*(5*part+et)}, v5 offset:{part*512 + et*64}')
DP.append('v_bfe_u32 v9, v3, 1, 2'); DP.append('v_xor_b32 v8, s3, v9'); DP.append('v_lshlrev_b32 v8, 4, v8'); DP.append('v_lshl_add_u32 v8, v3, 6, v8'); DP.append('v_lshl_add_u32 v8, v2, 2, v8')
DP.append('ds_read_b32 v14, v6 offset:20')
for ins in interleave2(f2_mfmas(1) if DF else d_mfmas(1), DP, 2): a(ins)
stamp(2)
a('s_waitcnt lgkmcnt(0)')
a('v_readfirstlane_b32 s78, v14')
a('s_cmp_ge_u32 s78, 4'); a('s_cbranch_scc1 L_dc9_ok')
lds_wait('L_dc9', 20, 14)
tick(7, 41)
if DF and not NOCS:
    for i in range(8): a(f'v_sub_f32 v{48+i}, v{48+i}, v{84+i}')
a('s_cmp_lg_u32 s30, 0'); a('s_cbranch_scc1 L_z0')
for mi in range(2):
    t = 76 + 4*mi; y = 84 + 4*mi
    a(f'v_pk_add_f32 v[{y}:{y+1}], v[{t}:{t+1}], v[{t+2}:{t+3}]')
    a(f'v_pk_add_f32 v[{y+2}:{y+3}], v[{t}:{t+1}], v[{t+2}:{t+3}] neg_lo:[0,1] neg_hi:[0,1]')
    a(f'v_add_f32 v{92+mi}, v{y}, v{y+1}'); a(f'v_sub_f32 v{94+mi}, v{y}, v{y+1}')
a('v_cvt_pk_bf16_f32 v96, v92, v93'); a('v_mov_b32 v97, 0')
a('v_cvt_pk_bf16_f32 v98, v86, v90'); a('v_cvt_pk_bf16_f32 v101, v87, v91'); a('v_xor_b32 v99, 0x80008000, v101')
a('v_cvt_pk_bf16_f32 v100, v94, v95')
for cpart, r in enumerate((96, 97, 98, 99, 100, 97, 98, 101)):
    a(f'ds_write_b32 v8, v{r} offset:{L_Z + (cpart*ZB + 80)*ZROW}')
a('L_z0:')
for et in range(5):
    for mi in range(2):
        for part in range(2):
            t = TD(part, mi, et); c = 56 + 2*(5*part + et)
            for d in (() if NOCS else (0, 2)):
                a(f'v_pk_fma_f32 v[{t+d}:{t+d+1}], v[{48+4*mi+d}:{49+4*mi+d}], v[{c}:{c+1}], v[{t+d}:{t+d+1}] op_sel_hi:[1,0,1] neg_lo:[1,0,0] neg_hi:[1,0,0]')
            for d in (0, 2):
                a(f'v_pk_mul_f32 v[{t+d}:{t+d+1}], v[{t+d}:{t+d+1}], v[{40+4*mi+d}:{41+4*mi+d}]')
        y = 80 + 16*mi
        for part in range(2):
            t = TD(part, mi, et)
            a(f'v_pk_add_f32 v[{y+4*part}:{y+4*part+1}], v[{t}:{t+1}], v[{t+2}:{t+3}]')
            a(f'v_pk_add_f32 v[{y+4*part+2}:{y+4*part+3}], v[{t}:{t+1}], v[{t+2}:{t+3}] neg_lo:[0,1] neg_hi:[0,1]')
        pa, qa, ra, sa, pb, qb, rb, sb = range(y, y+8); o = y + 8
        a(f'v_add_f32 v{o}, v{pa}, v{qa}'); a(f'v_add_f32 v{o+1}, v{pb}, v{qb}')
        a(f'v_add_f32 v{o+2}, v{ra}, v{sb}'); a(f'v_sub_f32 v{o+3}, v{rb}, v{sa}')
        a(f'v_sub_f32 v{o+4}, v{pa}, v{qa}'); a(f'v_sub_f32 v{o+5}, v{pb}, v{qb}')
        a(f'v_sub_f32 v{o+6}, v{ra}, v{sb}'); a(f'v_add_f32 v{o+7}, v{rb}, v{sa}')
    for cpart in range(8):
        a(f'v_cvt_pk_bf16_f32 v{112+cpart}, v{88+cpart}, v{104+cpart}')
    for cpart in range(8):
        a(f'ds_write_b32 v8, v{112+cpart} offset:{L_Z + (cpart*ZB + 16*et)*ZROW}')
tick(7, 42)
VADDR = []
VADDR += ['v_lshrrev_b32 v12, 1, v2', f'v_mul_u32_u24 v12, {8*VROW}, v12', 'v_and_b32 v13, 1, v2', f'v_mul_u32_u24 v11, {VROW}, v13', 'v_add_u32 v12, v12, v11', 'v_lshl_add_u32 v12, v3, 4, v12']
VADDR += ['s_mul_i32 s66, s28, 17', 's_add_u32 s67, s66, s3', f's_mul_i32 s67, s67, {2*VROW}', *(['s_and_b32 s68, s30, 1', 's_lshl_b32 s68, s68, 1', 's_lshr_b32 s69, s30, 1', 's_add_u32 s68, s68, s69', 's_mul_i32 s68, s68, 1280'] if DF else ['s_mul_i32 s68, s30, 1280']), f's_add_u32 s68, s68, {WS_V + 128}', 's_add_u32 s67, s67, s68', 's_sub_u32 s69, s67, 16']
VADDR += ['s_add_u32 s66, s66, 16', f's_mul_i32 s66, s66, {2*VROW}', 's_add_u32 s66, s66, s68', f's_add_u32 s70, s67, {16*VROW}']
a('v_mov_b32 v10, 1')
a('s_waitcnt lgkmcnt(0)')
a('s_mov_b64 exec, 1'); a('ds_add_u32 v6, v10 offset:4'); a('s_mov_b64 exec, -1')
a('v_bfe_u32 v8, v3, 1, 2'); a('v_xor_b32 v8, v8, v2'); a('v_lshlrev_b32 v8, 4, v8'); a('v_lshl_add_u32 v8, v3, 6, v8'); a(f's_mul_i32 s66, s3, {2*ZB*ZROW}'); a('v_add_u32 v8, s66, v8')
for ins in VADDR: a(ins)
lds_wait('L_zw', 4, 14)
tick(7, 43)
for part in range(2):
    for et in range(5):
        r = 40 + 20*part + 4*et
        a(f'ds_read_b128 v[{r}:{r+3}], v8 offset:{L_Z + (part*ZB + 16*et)*ZROW}')
for part in range(2): a(f'ds_read_b128 v[{120+4*part}:{123+4*part}], v8 offset:{L_Z + (part*ZB + 80)*ZROW}')
a('s_waitcnt lgkmcnt(0)')
a('s_mov_b64 exec, 1'); a('ds_add_u32 v6, v10 offset:8'); a('s_mov_b64 exec, -1')
a('v_mov_b32 v8, v12'); a('v_mov_b32 v10, v11')
tick(7, 44)
def VR(mt, et): return DACC + 20*mt + 4*et
def VI(mt, et): return DACC + 40 + 20*mt + 4*et
def vpack(et):
    L = []
    for mt in range(2):
        o = 80 + 20*mt + 4*et
        for i in range(4): L.append(f'v_cvt_pk_bf16_f32 v{o+i}, v{VR(mt,et)+i}, v{VI(mt,et)+i}')
        L.append(f'buffer_store_dwordx4 v[{o}:{o+3}], v8, s[12:15], s{67 + 3*mt} offen offset:{256*et} {STP}')
    return L
def vm(vr, vi, ya, yb):
    L = []
    for mt in range(2):
        L.append(f'v_mfma_f32_16x16x32_bf16 v[{vr(mt)}:{vr(mt)+3}], v[{FCOS+4*mt}:{FCOS+4*mt+3}], v[{ya}:{ya+3}], 0')
        L.append(f'v_mfma_f32_16x16x32_bf16 v[{vi(mt)}:{vi(mt)+3}], v[{FNS+4*mt}:{FNS+4*mt+3}], v[{ya}:{ya+3}], 0')
    for mt in range(2):
        L.append(f'v_mfma_f32_16x16x32_bf16 v[{vr(mt)}:{vr(mt)+3}], v[{FSIN+4*mt}:{FSIN+4*mt+3}], v[{yb}:{yb+3}], v[{vr(mt)}:{vr(mt)+3}]')
        L.append(f'v_mfma_f32_16x16x32_bf16 v[{vi(mt)}:{vi(mt)+3}], v[{FCOS+4*mt}:{FCOS+4*mt+3}], v[{yb}:{yb+3}], v[{vi(mt)}:{vi(mt)+3}]')
    return L
for et in range(5):
    M = vm(lambda mt: VR(mt, et), lambda mt: VI(mt, et), 40 + 4*et, 60 + 4*et)
    for ins in interleave2(M, vpack(et - 2) if et >= 2 else [], 2): a(ins)
a('s_cmp_lg_u32 s30, 0'); a('s_cbranch_scc1 L_v0a')
for ins in vm(lambda mt: 160 + 4*mt, lambda mt: 168 + 4*mt, 120, 124): a(ins)
a('L_v0a:')
tick(7, 45)
for ins in vpack(3): a(ins)
for ins in vpack(4): a(ins)
a('s_cmp_lg_u32 s30, 0'); a('s_cbranch_scc1 L_v0b')
for mt in range(2):
    for i in range(4): a(f'v_cvt_pk_bf16_f32 v{120+4*mt+i}, v{160+4*mt+i}, v{168+4*mt+i}')
a('s_mov_b32 exec_lo, 0x00010001'); a('s_mov_b32 exec_hi, 0x00010001')
a(f'buffer_store_dwordx4 v[120:123], v8, s[12:15], s69 offen {STP}')
a(f's_add_u32 s69, s69, {16*VROW}')
a(f'buffer_store_dwordx4 v[124:127], v8, s[12:15], s69 offen {STP}')
a('s_mov_b64 exec, -1')
a('L_v0b:')
tick(7, 46)
a('s_cmp_lg_u32 s3, 0')
a('s_cbranch_scc1 L_signal')
a('v_cvt_f32_u32 v62, s28'); a('v_mul_f32 v62, 0.0625, v62'); a('v_cos_f32 v63, v62'); a('v_sin_f32 v64, v62')
a('v_cmp_gt_u32 vcc, 16, v0')
a('v_lshlrev_b32 v11, 4, v3'); a('v_add_u32 v9, v10, v11')
for et in range(5):
    o = 80 + 4*et; vr = VR(0, et); vi = VI(0, et); n = 40 + 4*et
    a(f'v_mul_f32 v65, v63, v{vr}'); a(f'v_fmac_f32 v65, v64, v{vi}')
    a(f'v_mul_f32 v66, v63, v{vi}'); a(f'v_fma_f32 v66, -v64, v{vr}, v66')
    a(f'v_cvt_pk_bf16_f32 v65, v65, v66')
    a(f'v_cndmask_b32 v65, v{o}, v65, vcc')
    a(f'v_mov_b32 v{n}, v{o+1}')
    a(f'v_mov_b32 v66, v65')
    a(f'v_mov_b32 v{n+1}, v{o+2}'); a(f'v_mov_b32 v{n+2}, v{o+3}')
    a(f'v_permlane16_swap_b32 v65, v66')
    a('s_nop 1')
    a(f'v_cndmask_b32 v{n+3}, v65, v66, vcc')
a('s_mov_b32 exec_hi, 0')
for et in range(5):
    a(f'buffer_store_dwordx4 v[{40+4*et}:{43+4*et}], v9, s[12:15], s66 offen offset:{256*et} {STP}')
a('s_mov_b64 exec, -1')

a('L_signal:')
if DGO == 2: lds_arrive(56, 4)
a('s_mov_b32 s79, 0')
tick(7, 32)
stamp(3)
a('s_lshl_b32 s66, s30, 2'); a('s_add_u32 s66, s66, s3'); a('s_lshl_b32 s66, s66, 7'); a('s_lshl_b32 s67, s28, 2'); a('s_add_u32 s66, s66, s67'); a(f's_add_u32 s66, s66, {WS_FV}')
a('v_mov_b32 v4, s43'); a('v_mov_b32 v5, 0')
a('s_waitcnt vmcnt(0)'); a('s_mov_b64 exec, 1')
a('buffer_store_dword v4, v5, s[12:15], s66 offen sc1'); a('s_mov_b64 exec, -1')
if TONE: lds_arrive(0, 4)
tick_dump(7, 4)
a('L_helper:')
if TONE:
    lds_wait('L_hc9', 20, 40)
    a('s_cmp_eq_u32 s35, 0'); a('s_cbranch_scc1 L_hnz')
    lds_wait('L_hzc', 8, 40)
    a('L_hnz:')
else:
    if 0 <= EARLY < 8: a('s_cmp_eq_u32 s35, 0'); a('s_cbranch_scc1 L_hea')
    if DGO:
        a('s_cmp_eq_u32 s35, 0'); a('s_cbranch_scc1 L_hbf')
        lds_wait('L_hzc', 8, 40)
        a('s_branch L_hbd')
        a('L_hbf:')
        a('s_barrier')
        a('L_hbd:')
    elif CBAR: a('s_barrier')
    else:
        lds_arrive(0, 4)
        a('L_hea:')
        lds_wait('L_hc9', 20, 40)
        a('s_cmp_eq_u32 s35, 0'); a('s_cbranch_scc1 L_hnz')
        lds_wait('L_hzc', 8, 40)
        a('L_hnz:')
    a('s_mov_b32 s44, s3')
    p2_setup()
    if HF1: lds_wait('L_hgo', 40, 40, opt('hgn', 4))
    a('s_cmp_eq_u32 s35, 1'); a('s_cbranch_scc1 L_hd')
    for st in range(12 - NLATE + opt('skipl', 0), 12): wdt_lds(st)
    a('s_branch L_hf')
    a('L_hd:')
    for st in range(12 - NLD, 12): wdt_lds(st)
    a('L_hf:')
    VT = opt('vtouch', 0)
    def vtouch():
        a('s_cmp_eq_u32 s35, 0'); a('s_cbranch_scc1 L_nvt')
        a('v_lshrrev_b32 v40, 2, v0'); a('v_lshlrev_b32 v40, 7, v40'); a('v_and_b32 v41, 3, v0'); a('v_lshl_add_u32 v40, v41, 4, v40')
        a(f's_mov_b32 s66, {WS_FV}')
        spin_begin('L_pollva')
        a('buffer_load_dwordx4 v[44:47], v40, s[12:15], s66 offen sc1')
        a('s_waitcnt vmcnt(0)')
        for i in range(4): a(f'v_xor_b32 v{44+i}, s43, v{44+i}')
        a('v_or_b32 v44, v44, v45'); a('v_or3_b32 v44, v46, v47, v44')
        a('v_cmp_ne_u32 vcc, 0, v44'); a('s_cmp_eq_u64 vcc, 0')
        spin_end('L_pollva')
        a('s_lshl_b32 s66, s30, 2'); a('s_sub_u32 s67, 13, s66'); a('s_cmp_eq_u32 s31, 1'); a('s_cselect_b32 s66, s67, s66')
        a('s_lshl_b32 s67, s32, 1'); a('s_lshr_b32 s68, s3, 1'); a('s_add_u32 s67, s67, s68'); a('s_mul_i32 s67, s67, 17'); a('s_add_u32 s66, s66, s67')
        a(f's_mul_i32 s66, s66, {2*VROW}'); a('s_and_b32 s67, s3, 1'); a(f's_mul_i32 s67, s67, {164*128}'); a('s_add_u32 s66, s66, s67'); a(f's_add_u32 s66, s66, {WS_V}')
        a('v_lshlrev_b32 v40, 7, v0')
        for i in range(3):
            if i == 2: a('s_mov_b32 exec_hi, 0xf')
            a(f'buffer_load_dword v41, v40, s[12:15], s66 offen sc1')
            if i < 2: a('s_add_u32 s66, s66, 8192')
        a('s_mov_b64 exec, -1')
        a('s_mov_b32 s79, 0')
        a('s_waitcnt vmcnt(0)')
        a('L_nvt:')
    if VT == 2: vtouch()
    a('s_waitcnt vmcnt(0)')
    lds_arrive(36, 4)
    if VT == 1: vtouch()
stamp(4)

a('s_cmp_eq_u32 s79, 1'); a('s_cbranch_scc1 L_vdone')
if VGO: a('s_cmp_lg_u32 s3, 3'); a('s_cbranch_scc1 L_vwait')
spin_begin('L_pollv')
a(f'buffer_load_dword v53, v{VFL}, s[12:15], s60 offen sc1')
a('s_waitcnt vmcnt(0)')
a('v_cmp_ne_u32 vcc, s43, v53')
a('s_cmp_eq_u64 vcc, 0')
spin_end('L_pollv')
if VGO:
    lds_arrive(28, 40)
    a('L_vwait:')
    lds_wait('L_vc', 28, 40, 1)
    lds_wait('L_vgo', 40, 40, 1)
v_loads()
a('L_vdone:')
stamp(5)
a('v_lshrrev_b32 v4, 2, v3'); a('v_and_b32 v5, 3, v3'); a('v_lshl_add_u32 v7, v5, 2, v4')
a('s_mul_i32 s66, s55, 15'); a('v_xor_b32 v4, s66, v7')
a('v_cvt_f32_u32 v4, v4'); a('v_mul_f32 v4, 0.0625, v4')
a('v_lshlrev_b32 v5, 2, v2'); a('v_cvt_f32_u32 v5, v5')
for i in range(4):
    a(f'v_add_f32 v52, {float(i)!r}, v5'); a('v_mul_f32 v52, v52, v4')
    a('v_cos_f32 v53, v52'); a('v_sin_f32 v54, v52'); a('s_nop 0')
    a(f'v_cvt_pk_bf16_f32 v{8+i}, v53, v54')
a(f's_mov_b32 s47, {PN}'); a('s_cmp_eq_u32 s55, 1'); a(f's_cselect_b32 s47, {(-PN) & 0xffffffff}, s47')
a(f'v_mul_u32_u24 v56, {PQ}, v2'); a('v_lshl_add_u32 v56, v3, 4, v56'); a(f's_mul_i32 s66, s55, {3*PN}'); a('v_add_u32 v56, s66, v56')
for k4 in range(1, 4): a(f'v_add_u32 v{56+k4}, s47, v{55+k4}')
def spec_tile(off_s, vb):
    for k4 in range(4):
        for i in range(4): a(f'v_mov_b32 v{64+4*k4+i}, v{vb+4*i+k4}')
    a('s_nop 1')
    for k4 in range(4):
        c = 80 + 4*k4
        a(f'v_mfma_f32_16x16x32_bf16 v[{c}:{c+3}], v[{64+4*k4}:{67+4*k4}], v[8:11], 0')
    for k4 in range(4): a(f'v_add_u32 v{40+k4}, {off_s}, v{56+k4}')
    a('s_nop 5')
    for k4 in range(4):
        c = 80 + 4*k4
        a(f'ds_write_b128 v{40+k4}, v[{c}:{c+3}]')
a('s_cmp_eq_u32 s3, 1'); a(f's_mov_b32 s73, {ST[0]}'); a(f's_cselect_b32 s73, {ST[1]}, s73')
a('s_cmp_eq_u32 s3, 2'); a(f's_cselect_b32 s73, {ST[2]}, s73')
a('s_cmp_eq_u32 s3, 3'); a(f's_cselect_b32 s73, {ST[3]}, s73')
a('s_waitcnt vmcnt(0)')
a('s_cmp_lg_u32 s3, 0'); a('s_cbranch_scc1 L_spec1')
a(f's_mov_b32 s74, {ST[4]}')
spec_tile('s74', VB1)
a('L_spec1:')
spec_tile('s73', VB0)
for r in range(3):
    for d in range(4):
        a(f'v_lshlrev_b32 v{96+8*r+2*d}, 16, v{XR[r]+d}'); a(f'v_and_b32 v{97+8*r+2*d}, 0xffff0000, v{XR[r]+d}')
if F8:
    lds_arrive(52, 40)
    lds_wait('L_spw', 52, 40)
    a(f'ds_read_b128 v[128:131], v{FA[5]}'); a(f'ds_read_b128 v[132:135], v{FA[5]} offset:{PQ}')
    a('s_waitcnt lgkmcnt(0)')
    for d in range(0, 8, 2): a(f'v_pk_add_f32 v[{128+d}:{129+d}], v[{128+d}:{129+d}], v[{104+d}:{105+d}]')
    a(f'ds_write_b128 v{FA[5]}, v[128:131]'); a(f'ds_write_b128 v{FA[5]}, v[132:135] offset:{PQ}')

a('L_final:')
def final_reads(r, b):
    d4, d11 = FA[3*r], FA[3*r+2]
    for p in range(5):
        reg = (d4, d4, d4, d4, d11)[p]; off = (0, P2W, 2*P2W, 3*P2W, 0)[p]
        a(f'ds_read_b128 v[{b+8*p}:{b+3+8*p}], v{reg} offset:{off}')
        a(f'ds_read_b128 v[{b+4+8*p}:{b+7+8*p}], v{reg} offset:{off+PQ}')
def final_sum(r, b, cnt):
    x = 96 + 8*r
    for p in range(5):
        a(f's_waitcnt lgkmcnt({min(15, cnt + 8 - 2*p)})')
        for d in range(0, 8, 2): a(f'v_pk_add_f32 v[{x+d}:{x+d+1}], v[{x+d}:{x+d+1}], v[{b+8*p+d}:{b+8*p+d+1}]')
    for d in range(4): a(f'v_cvt_pk_bf16_f32 v{b+d}, v{x+2*d}, v{x+2*d+1}')
    a(f'buffer_store_dwordx4 v[{b}:{b+3}], v{FA[3*r+1]}, s[16:19], 0 offen {OUTP}')
a('s_waitcnt lgkmcnt(0)')
a('s_barrier')
stamp(6)
if F8:
    final_reads(0, 128)
    a('s_cmp_ge_u32 s3, 2'); a('s_cbranch_scc1 L_fin8')
    final_reads(2, 168)
    final_sum(0, 128, 10)
    final_sum(2, 168, 0)
    a('s_branch L_fin2')
    a('L_fin8:')
    final_sum(0, 128, 0)
if not F8:
    final_reads(0, 128)
    final_reads(1, 168)
    final_sum(0, 128, 10)
    a('s_cmp_ge_u32 s3, 2'); a('s_cbranch_scc1 L_fin1')
    final_reads(2, 208)
    final_sum(1, 168, 10)
    final_sum(2, 208, 0)
    a('s_branch L_fin2')
    a('L_fin1:')
    final_sum(1, 168, 0)
a('L_fin2:')
if 'diag' in opts:
    a('s_cmp_lg_u32 s3, 0'); a('s_cbranch_scc1 L_diag')
    a('s_waitcnt vmcnt(0)')
    a('s_memrealtime s[94:95]'); a('s_waitcnt lgkmcnt(0)')
    if opts['diag'] == 'r': a('s_sub_u32 s66, s43, s80'); a('s_max_i32 s66, s66, 0'); a('s_min_u32 s66, s66, 5000'); a('s_lshl_b32 s66, s66, 4')
    elif opts['diag'] == 'b': a('s_sub_u32 s66, s82, s80'); a('s_max_i32 s66, s66, 0'); a('s_min_u32 s66, s66, 5000'); a('s_lshl_b32 s66, s66, 3')
    elif opts['diag'] == 'c': a('s_sub_u32 s66, s92, s90'); a('s_lshr_b32 s66, s66, 2'); a('s_cmp_eq_u32 s35, 1'); a('s_cselect_b32 s66, 0, s66')
    elif opts['diag'] == 'l': a('s_sub_u32 s66, s84, s82'); a('s_lshl_b32 s66, s66, 2'); a('s_cmp_eq_u32 s35, 1'); a('s_cselect_b32 s66, 0, s66')
    elif opts['diag'] == 'g': a('s_sub_u32 s66, s92, s86'); a('s_lshl_b32 s66, s66, 2')
    elif opts['diag'] == 'p': a('s_sub_u32 s66, s86, s84'); a('s_lshl_b32 s66, s66, 4'); a('s_cmp_eq_u32 s35, 1'); a('s_cselect_b32 s66, 0, s66')
    elif opts['diag'][0] == 'k': a('s_sub_u32 s66, s96, s80'); a('s_lshl_b32 s66, s66, 2'); a('s_cmp_eq_u32 s35, 1'); a('s_cselect_b32 s66, 0, s66')
    elif opts['diag'] in 'wf': a('s_sub_u32 s66, s98, s96'); a('s_lshl_b32 s66, s66, 4'); a('s_cmp_eq_u32 s35, 1'); a('s_cselect_b32 s66, 0, s66')
    elif opts['diag'] == 'D': a('s_sub_u32 s66, s86, s80'); a('s_lshl_b32 s66, s66, 2'); a('s_cmp_eq_u32 s35, 0'); a('s_cselect_b32 s66, 0, s66')
    elif opts['diag'] == 'F': a('s_sub_u32 s66, s86, s80'); a('s_lshl_b32 s66, s66, 2'); a('s_cmp_eq_u32 s35, 1'); a('s_cselect_b32 s66, 0, s66')
    elif opts['diag'] == 'V': a('s_sub_u32 s66, s90, s80'); a('s_lshl_b32 s66, s66, 2')
    elif opts['diag'] == 'X': a('s_sub_u32 s66, s92, s80'); a('s_lshl_b32 s66, s66, 2'); a('s_cmp_eq_u32 s35, 0'); a('s_cselect_b32 s66, 0, s66')
    elif opts['diag'] == 'Y': a('s_sub_u32 s66, s92, s80'); a('s_lshl_b32 s66, s66, 2'); a('s_cmp_eq_u32 s35, 1'); a('s_cselect_b32 s66, 0, s66')
    elif opts['diag'] == 'H': a('s_sub_u32 s66, s88, s80'); a('s_lshl_b32 s66, s66, 2')
    elif opts['diag'] == 'e': a('s_sub_u32 s66, s94, s80'); a('s_max_i32 s66, s66, 0'); a('s_min_u32 s66, s66, 5000'); a('s_lshl_b32 s66, s66, 2')
    else: a(f"s_sub_u32 s66, s{80 + 2*int(opts['diag'])}, s43"); a('s_max_i32 s66, s66, 0'); a('s_min_u32 s66, s66, 5000'); a('s_lshl_b32 s66, s66, 2')
    a('L_dsp:')
    a('s_memrealtime s[68:69]'); a('s_waitcnt lgkmcnt(0)'); a('s_sub_u32 s68, s68, s94'); a('s_cmp_lt_u32 s68, s66'); a('s_cbranch_scc1 L_dsp')
    a('s_endpgm')
    a('L_diag:')
if opt('dbgt', 0):
    a('s_cmp_lg_u32 s3, 0'); a('s_cbranch_scc1 L_dbgt')
    a('s_waitcnt vmcnt(0)')
    a('s_memrealtime s[94:95]'); a('s_waitcnt lgkmcnt(0)')
    a('s_mov_b64 exec, 1')
    for i, r in enumerate((80, 82, 84, 86, 88, 90, 92, 94)):
        a(f's_sub_u32 s66, s{r}, s43'); a('s_add_u32 s66, s66, 1000'); a('v_mov_b32 v4, s66'); a(f'v_mov_b32 v5, {4 + 4*i}')
        a('buffer_atomic_umax v4, v5, s[24:27], 0 offen sc1')
        a('s_nop 2')
    a('s_endpgm')
    a('L_dbgt:')
stamp(7)
if STAMPS:
    a('s_waitcnt vmcnt(0)')
    a('s_memrealtime s[96:97]')
    a('s_waitcnt lgkmcnt(0)')
    for i in range(8): a(f'v_mov_b32 v{16+i}, s{80+2*i}')
    a('v_mov_b32 v24, s96'); a('v_mov_b32 v25, s101')
    a('s_lshl_b32 s66, s2, 3'); a('s_add_u32 s66, s66, s3'); a('s_lshl_b32 s66, s66, 6'); a(f's_add_u32 s66, s66, {WS_TS}')
    a('v_mov_b32 v4, 0')
    a('s_mov_b64 exec, 1')
    a('buffer_store_dwordx4 v[16:19], v4, s[12:15], s66 offen')
    a('buffer_store_dwordx4 v[20:23], v4, s[12:15], s66 offen offset:16')
    a('buffer_store_dwordx2 v[24:25], v4, s[12:15], s66 offen offset:32')
a('s_endpgm')
emit_tails()
a('L_done:')
a.end(256, sgpr=102)

DESC = """; ---------------------------------------------------------------------------------------------------------
; ---------------------------------------------------------------------------------------------------------
"""
txt = a.text([])
txt = txt.replace('.amdgcn_target', f'; @launch grid=(256,1,1) block=(512,1,1) lds={LDS_BYTES}\n' + DESC + '.amdgcn_target', 1)
open(sys.argv[1], 'w').write(txt)
if opt('ids', 0): print(wait_ids, spin_ids)
```
